```python
import torch

def _softmax(x, axis=-1):
    return torch.softmax(x, dim=axis)
def _gelu(x):
    return torch.nn.functional.gelu(x, approximate="tanh")
def _silu(x):
    return torch.nn.functional.silu(x)
def _sigmoid(x):
    return torch.sigmoid(x)
def _layernorm(x, axis=-1, eps=1e-5):
    m = x.mean(dim=axis, keepdim=True)
    v = x.var(dim=axis, keepdim=True, unbiased=False)
    return (x - m) / torch.sqrt(v + eps)
def _scatter_add(tgt, idx, src, axis=0):
    return tgt.clone().index_add_(axis, idx, src)
def _segment_sum(src, seg, n):
    out = torch.zeros((n,) + src.shape[1:], dtype=src.dtype)
    return out.index_add_(0, seg, src)
def _pad(x, pw):
    flat = tuple(v for pair in reversed(pw) for v in pair)
    return torch.nn.functional.pad(x, flat)

kernel_name = 'standalone__global_local_windowed_global_tokens__prompt'

def setup_inputs():

    _w = (lambda a: (lambda t: t.to(torch.bfloat16) if t.is_floating_point() else t)(torch.as_tensor(a)))
    B, H, S, D = 1, 32, 2048, 128
    return {
        "q": _w((lambda *s: torch.randn(*s, dtype=torch.bfloat16) * 0.8)(B, H, S, D)),
        "k": _w((lambda *s: torch.randn(*s, dtype=torch.bfloat16) * 0.8)(B, H, S, D)),
        "v": _w((lambda *s: torch.randn(*s, dtype=torch.bfloat16) * 0.05)(B, H, S, D)),
        "window": 32,
        "n_global": 2,
    }

def reference(q, k, v, window, n_global):
    B, H, S, D = q.shape
    scale = D ** -0.5
    scores = torch.einsum("bhqd,bhkd->bhqk", q, k) * scale
    idx = torch.arange(S)
    dist = idx[:, None] - idx[None, :]
    local = (dist <= window) & (dist >= -window)
    is_global_q = (idx < n_global)[:, None]
    is_global_k = (idx < n_global)[None, :]
    mask = local | is_global_q | is_global_k
    scores = torch.where(mask[None, None], scores, -1e9)
    p = _softmax(scores, axis=-1)
    return torch.einsum("bhqk,bhkd->bhqd", p, v)
```

```python
import re

class Asm:
    def __init__(self):
        self.lines = []
    def __call__(self, s, *a):
        for l in s.split('\n'):
            l = l.strip()
            if l:
                self.lines.append(l)
    def label(self, n):
        self.lines.append(n + ':')
    def nop(self, n):
        while n > 0:
            k = min(n, 16)
            self.lines.append('s_nop %d' % (k - 1))
            n -= k
    def text(self):
        out = []
        for l in self.lines:
            if l.endswith(':') or l.startswith('.') or l.startswith(';'):
                out.append(l)
            else:
                out.append('    ' + l)
        return '\n'.join(out) + '\n'

def vr(b, n=1):
    return 'v%d' % b if n == 1 else 'v[%d:%d]' % (b, b + n - 1)
def sr(b, n=1):
    return 's%d' % b if n == 1 else 's[%d:%d]' % (b, b + n - 1)

_reg = re.compile(r'^-?\|?(?:abs\()?([vsa])(?:(\d+)|\[(\d+):(\d+)\])\)?\|?$')
def regs(tok):
    tok = tok.strip()
    if tok in ('vcc',):
        return {('s', 'vcc')}
    if tok in ('exec',):
        return {('s', 'exec')}
    if tok == 'm0':
        return {('s', 'm0')}
    m = _reg.match(tok)
    if not m:
        return set()
    k = m.group(1)
    if m.group(2) is not None:
        return {(k, int(m.group(2)))}
    return {(k, i) for i in range(int(m.group(3)), int(m.group(4)) + 1)}

TRANS = ('v_exp_f32', 'v_log_f32', 'v_rcp_f32', 'v_rsq_f32', 'v_sqrt_f32', 'v_sin_f32', 'v_cos_f32')

def parse(line):
    line = line.split(';')[0].strip()
    if not line or line.endswith(':') or line.startswith('.'):
        return None
    parts = line.split(None, 1)
    op = parts[0]
    rest = parts[1] if len(parts) > 1 else ''
    toks, cur, depth = [], '', 0
    for ch in rest:
        if ch == '[': depth += 1
        if ch == ']': depth -= 1
        if ch == ',' and depth == 0:
            toks.append(cur.strip()); cur = ''
        else:
            cur += ch
    if cur.strip():
        toks.append(cur.strip())
    mods = ''
    if toks:
        sp = toks[-1].split(None, 1)
        toks[-1] = sp[0]
        mods = sp[1] if len(sp) > 1 else ''
    d = dict(op=op, toks=toks, mods=mods, dst=set(), src=set(), kind='other', line=line)
    R = [regs(t) for t in toks]
    U = lambda xs: set().union(*xs) if xs else set()
    base = re.sub(r'_(e32|e64|dpp|sdwa)$', '', op)
    d['base'] = base
    if op.startswith('v_mfma'):
        d['kind'] = 'mfma'; d['dst'] = R[0]; d['a'] = R[1]; d['b'] = R[2]; d['c'] = R[3]; d['src'] = U(R[1:])
        d['passes'] = 4 if '16x16x32' in op or '16x16x16' in op else 8
    elif op.startswith('v_cmp'):
        d['kind'] = 'valu'; d['dst'] = R[0]; d['src'] = U(R[1:])
    elif op.startswith('v_permlane') and 'swap' in op:
        d['kind'] = 'valu'; d['dst'] = R[0] | R[1]; d['src'] = R[0] | R[1]; d['perm'] = True
    elif base in ('v_readfirstlane_b32', 'v_readlane_b32'):
        d['kind'] = 'valu'; d['dst'] = R[0]; d['src'] = U(R[1:]); d['rl'] = True
    elif op.startswith('v_'):
        d['kind'] = 'valu'; d['dst'] = R[0]; d['src'] = U(R[1:])
        if base in ('v_add_co_u32', 'v_addc_co_u32', 'v_sub_co_u32'):
            d['dst'] = R[0] | R[1]; d['src'] = U(R[2:])
        if base in ('v_fmac_f32',):
            d['src'] |= R[0]
        if base in TRANS: d['trans'] = True
        if 'dpp' in op or 'quad_perm' in mods or 'row_' in mods: d['dpp'] = True; d['src'] |= R[0]
    elif op.startswith('ds_read'):
        d['kind'] = 'ds'; d['dst'] = R[0]; d['src'] = U(R[1:])
    elif op.startswith('ds_'):
        d['kind'] = 'ds'; d['src'] = U(R)
    elif op.startswith('buffer_load') or op.startswith('global_load'):
        d['kind'] = 'vmem'
        if ' lds' in (' ' + mods) or 'load_lds' in op:
            d['src'] = U(R) | {('s', 'm0')}; d['ldsdma'] = True
        else:
            d['dst'] = R[0]; d['src'] = U(R[1:])
    elif op.startswith('buffer_store') or op.startswith('global_store'):
        d['kind'] = 'vmem'; d['src'] = U(R); d['store'] = True
        if 'x4' in op or 'x3' in op:
            d['wide'] = R[0] if op.startswith('buffer') else R[1]
    elif op.startswith('buffer_atomic') or op.startswith('global_atomic'):
        d['kind'] = 'vmem'; d['src'] = U(R)
        if 'sc0' in mods: d['dst'] = R[0]
    elif op.startswith('buffer_'):
        d['kind'] = 'vmem'
    elif op.startswith('s_'):
        d['kind'] = 'salu'
        if op.startswith(('s_cmp', 's_waitcnt', 's_barrier', 's_nop', 's_cbranch', 's_branch', 's_endpgm', 's_setprio', 's_sleep')):
            d['src'] = U(R)
        else:
            d['dst'] = R[0] if R else set(); d['src'] = U(R[1:])
            if 'saveexec' in op: d['dst'] = d['dst'] | {('s', 'exec')}
    return d

def states(ins):
    if ins['op'] == 's_nop':
        return int(ins['toks'][0], 0) + 1
    return 1

def check(lines, verbose=True):
    ins = [(n, parse(l)) for n, l in enumerate(lines)]
    ins = [(n, x) for n, x in ins if x]
    probs = []
    XD = {4: 8, 8: 12}
    XC = {4: 6, 8: 10}
    WAR = {4: 3, 8: 7}
    for k, (n, c) in enumerate(ins):
        dist = 0
        for j in range(k - 1, max(-1, k - 24), -1):
            p = ins[j][1]
            if p['op'] in ('s_branch', 's_endpgm'): break
            need = 0; why = ''
            vd = {r for r in p['dst'] if r[0] in 'va'}
            sd = {r for r in p['dst'] if r[0] == 's'}
            if p['kind'] == 'mfma':
                D = p['dst']
                if c['kind'] == 'mfma':
                    if D & (c['a'] | c['b']): need, why = XD[p['passes']], 'mfma D->A/B'
                    elif D & c['c'] and D != c['c']: need, why = XC[p['passes']], 'mfma D->C partial'
                    elif D & c['dst'] and D != c['c']: need, why = XD[p['passes']], 'mfma D->D waw'
                elif c['kind'] in ('valu', 'ds', 'vmem'):
                    if D & (c['src'] | c['dst']): need, why = XD[p['passes']], 'mfma D->use'
                    if c['kind'] == 'valu' and p['c'] & c['dst'] and WAR[p['passes']] > need:
                        need, why = WAR[p['passes']], 'mfma C WAR'
            elif p['kind'] == 'valu':
                if c['kind'] == 'mfma' and vd & c['src']: need, why = 2, 'valu->mfma'
                if c.get('perm') and vd & c['src']: need, why = 2, 'valu->permlane'
                if c.get('dpp') and vd & c['src']: need, why = 2, 'valu->dpp'
                if c.get('rl') and vd & c['src']: need, why = max(need, 1), 'valu->readlane'
                if p.get('trans') and c['kind'] in ('valu', 'mfma') and not c.get('trans') and vd & c['src']:
                    need, why = max(need, 1), why or 'trans->valu'
                if sd and c['kind'] == 'valu' and sd & c['src']: need, why = max(need, 2), 'valu sgpr->valu'
                if sd and c['kind'] == 'vmem' and sd & c['src']: need, why = max(need, 5), 'valu sgpr->vmem'
                if sd and c['kind'] == 'salu' and sd & c['src']: need, why = max(need, 1), 'valu sgpr->salu(pad)'
            elif p['kind'] == 'salu':
                if ('s', 'm0') in p['dst'] and c.get('ldsdma'): need, why = 1, 'm0->dma'
            elif p['kind'] == 'vmem':
                if p.get('wide') and c['kind'] == 'valu' and p['wide'] & c['dst']: need, why = 2, 'store data WAR'
                elif p.get('wide') and p['wide'] & c['dst']: need, why = 1, 'store data WAR'
            if need > dist:
                probs.append((n, c['line'], p['line'], why, need, dist))
            dist += states(p)
            if dist >= 20: break
    if verbose:
        for n, cl, pl, why, need, dist in probs:
            print('HAZARD line %d: [%s] after [%s]: %s need %d have %d' % (n, cl, pl, why, need, dist))
    return probs
```

```python
import sys, math, struct
from asmlib import *

NAME = 'standalone__global_local_windowed_global_tokens__prompt_kernel'

def f2u(x): return struct.unpack('<I', struct.pack('<f', x))[0]

def gen(opt):
    a = Asm()
    NEG = 0xFF000000
    CSC = f2u(128 ** -0.5 * math.log2(math.e))
    KOFF, VOFF, SOFF = 0, 73728, 155648
    PART, PARTML, STG = 0, 8192, 16384
    STGP = 272
    ldpol = opt.get('ldpol', '')
    qpol = opt.get('qpol', '')
    stpol = opt.get('stpol', '')
    sQ, sK, sV, sO, sW = 20, 24, 28, 32, 36
    sWV, sH, sC, sHO, sQ0B = 40, 43, 44, 45, 46
    sT0, sT1, sT2, sT3 = 47, 48, 49, 50
    sCS = 51
    sKG0 = 52
    sQB = 54
    s2046 = 55
    sEX = 56
    sQLT2 = 58
    VA = 0
    vSW, vSR, vOO, vNEG = 8, 9, 10, 11
    vT0, vT1, vT2, v4KG = 12, 13, 14, 15
    KF = 16
    KG = 112
    QA, QB = 128, 144
    VG = 160
    O = 192
    S = 224
    BLO, BHI = 248, 252
    kf = lambda W, ks: KF + 16 * W + 4 * ks
    vLANE, vI, vKGp, vDK, vDV, vDQ, vAG, vAK = O + 16, O + 17, O + 18, O + 19, O + 20, O + 21, O + 22, O + 24
    vAVG = O + 28

    a('s_load_dwordx16 s[4:19], s[0:1], 0')
    a('s_cmp_ge_u32 s2, 256')
    a('s_cbranch_scc1 L_end')
    a(f'v_lshrrev_b32 v1, 6, v0')
    a(f'v_and_b32 {vr(vLANE)}, 63, v0')
    a(f'v_readfirstlane_b32 s{sWV}, v1')
    a(f'v_and_b32 {vr(vI)}, 15, v0')
    a(f'v_bfe_u32 {vr(vKGp)}, v0, 4, 2')
    a('s_and_b32 s41, s2, 7')
    a('s_lshr_b32 s42, s2, 3')
    a(f's_lshr_b32 s{sH}, s42, 3')
    a(f's_lshl2_add_u32 s{sH}, s41, s{sH}')
    a(f's_and_b32 s{sC}, s42, 7')
    a(f's_lshl_b32 s{sHO}, s{sH}, 19')
    a(f's_lshl_b32 s{sQ0B}, s{sC}, 16')
    a(f's_and_b32 s{sT0}, s{sWV}, 3')
    a(f's_lshl_b32 s{sT0}, s{sT0}, 2')
    a(f's_lshl_b32 s{sT1}, s{sWV}, 10')
    a(f's_add_u32 s{sT2}, s{sT1}, s{sQ0B}')
    a(f'v_add_u32 {vr(vDK)}, s{sT0}, {vr(vKGp)}')
    a(f'v_xor_b32 {vr(vDK)}, {vr(vDK)}, {vr(vI)}')
    a(f'v_lshlrev_b32 {vr(vDK)}, 4, {vr(vDK)}')
    a(f'v_lshl_add_u32 {vr(vDK)}, {vr(vKGp)}, 8, {vr(vDK)}')
    a(f'v_add_u32 {vr(vDK)}, s{sT2}, {vr(vDK)}')
    a(f's_mov_b32 m0, s{sT1}')
    a(f's_mov_b32 s{sK+2}, 0x80000')
    a(f's_mov_b32 s{sK+3}, 0x20000')
    a(f's_mov_b32 s{sV+2}, 0x80000')
    a(f's_mov_b32 s{sV+3}, 0x20000')
    a(f's_mov_b32 s{sQ+2}, 0x80000')
    a(f's_mov_b32 s{sQ+3}, 0x20000')
    a('s_waitcnt lgkmcnt(0)')
    a(f's_add_u32 s{sK}, s6, s{sHO}')
    a(f's_addc_u32 s{sK+1}, s7, 0')
    for i in range(9):
        if i:
            a('s_add_u32 m0, m0, 0x2000')
            a(f'v_add_u32 {vr(vDK)}, 0x2000, {vr(vDK)}')
        a(f'buffer_load_dwordx4 {vr(vDK)}, {sr(sK,4)}, 0 offen {ldpol} lds')
    a(f's_add_u32 s{sV}, s8, s{sHO}')
    a(f's_addc_u32 s{sV+1}, s9, 0')
    a(f's_add_u32 s{sQ}, s4, s{sHO}')
    a(f's_addc_u32 s{sQ+1}, s5, 0')
    a(f's_cmp_eq_u32 s{sC}, 0')
    a(f's_cselect_b32 s{sT3}, 0x40000000, 0')
    a(f's_lshl_b32 s{sT0}, s{sWV}, 13')
    a(f's_add_u32 s{sT0}, s{sT0}, s{sQ0B}')
    a(f'v_lshlrev_b32 {vr(vDQ)}, 4, {vr(vKGp)}')
    a(f'v_lshl_add_u32 {vr(vDQ)}, {vr(vI)}, 8, {vr(vDQ)}')
    a(f'v_add_u32 {vr(vDQ)}, s{sT0}, {vr(vDQ)}')
    a(f's_cmp_lg_u32 s{sWV}, 0')
    a('s_cbranch_scc1 L_nohalo')
    a(f's_sub_u32 s{sT0}, s{sT3}, 0x2000')
    a(f'v_add_u32 {vr(vT0)}, s{sT0}, {vr(vDQ)}')
    a(f'v_add_u32 {vr(vT1)}, 0x1000, {vr(vT0)}')
    for T in range(2):
        for ks in range(4):
            a(f'buffer_load_dwordx4 {vr(kf(T,ks),4)}, {vr(vT0+T)}, {sr(sK,4)}, 0 offen offset:{64*ks}')
    a.label('L_nohalo')
    a(f's_cmp_lg_u32 s{sWV}, 1')
    a('s_cbranch_scc1 L_nosmall')
    a(f'v_lshlrev_b32 {vr(vT0)}, 4, {vr(vLANE)}')
    for n, srd in enumerate((sK, sQ, sV)):
        a(f's_mov_b32 m0, {SOFF + 1024*n}')
        a('s_nop 0')
        a(f'buffer_load_dwordx4 {vr(vT0)}, {sr(srd,4)}, 0 offen lds')
    a.label('L_nosmall')
    a(f's_and_b32 s{sT0}, s{sWV}, 1')
    a(f's_lshl_b32 s{sT0}, s{sT0}, 2')
    a(f'v_add_lshl_u32 {vr(vDV)}, s{sT0}, {vr(vKGp)}, 1')
    a(f'v_xor_b32 {vr(vDV)}, {vr(vDV)}, {vr(vI)}')
    a(f'v_lshlrev_b32 {vr(vDV)}, 4, {vr(vDV)}')
    a(f'v_lshl_add_u32 {vr(vDV)}, {vr(vKGp)}, 8, {vr(vDV)}')
    a(f's_sub_u32 s{sT2}, s{sT2}, 0x2000')
    a(f'v_add_u32 {vr(vDV)}, s{sT2}, {vr(vDV)}')
    a(f's_add_u32 m0, s{sT1}, {VOFF}')
    a(f'v_add_u32 {vr(vT0)}, s{sT3}, {vr(vDV)}')
    a(f'buffer_load_dwordx4 {vr(vT0)}, {sr(sV,4)}, 0 offen {ldpol} lds')
    for i in range(1, 10):
        a('s_add_u32 m0, m0, 0x2000')
        a(f'v_add_u32 {vr(vDV)}, 0x2000, {vr(vDV)}')
        a(f'buffer_load_dwordx4 {vr(vDV)}, {sr(sV,4)}, 0 offen {ldpol} lds')

    def issue_q():
        for ks in range(4):
            a(f'buffer_load_dwordx4 {vr(QA+4*ks,4)}, {vr(vDQ)}, {sr(sQ,4)}, 0 offen offset:{64*ks} {qpol}')
        a(f'v_add_u32 {vr(vDQ)}, 0x1000, {vr(vDQ)}')
        for ks in range(4):
            a(f'buffer_load_dwordx4 {vr(QB+4*ks,4)}, {vr(vDQ)}, {sr(sQ,4)}, 0 offen offset:{64*ks} {qpol}')
    qearly = opt.get('qearly', True)
    if qearly: issue_q()

    a(f's_add_u32 s{sO}, s14, s{sHO}')
    a(f's_addc_u32 s{sO+1}, s15, 0')
    a(f's_mov_b32 s{sO+2}, 0x80000')
    a(f's_mov_b32 s{sO+3}, 0x20000')
    a(f's_lshl_b32 s{sT0}, s{sH}, 14')
    a(f's_add_u32 s{sW}, s18, s{sT0}')
    a(f's_addc_u32 s{sW+1}, s19, 0')
    a(f's_mov_b32 s{sW+2}, 0x4000')
    a(f's_mov_b32 s{sW+3}, 0x20000')
    a(f's_mov_b32 s{sCS}, 0x{CSC:08x}')
    a(f's_movk_i32 s{s2046}, 2046')
    a(f'v_mov_b32 {vr(vNEG)}, 0x{NEG:08x}')
    a(f'v_lshlrev_b32 {vr(v4KG)}, 2, {vr(vKGp)}')
    a(f'v_cmp_eq_u32 {sr(sKG0,2)}, 0, {vr(vKGp)}')
    a(f'v_cmp_gt_u32 {sr(sQLT2,2)}, 2, {vr(vI)}')
    for r in range(4):
        a(f'v_add_u32 {vr(vT0)}, {r}, {vr(v4KG)}')
        a(f'v_cmp_ge_u32 vcc, {vr(vT0)}, {vr(vI)}')
        a('s_nop 1')
        a(f'v_cndmask_b32 {vr(BLO+r)}, {vr(vNEG)}, 0, vcc')
        a(f'v_cmp_le_u32 vcc, {vr(vT0)}, {vr(vI)}')
        a('s_nop 1')
        a(f'v_cndmask_b32 {vr(BHI+r)}, {vr(vNEG)}, 0, vcc')
    a(f's_lshl_b32 s{sT0}, s{sWV}, 13')
    a(f'v_xor_b32 {vr(vT0)}, {vr(vKGp)}, {vr(vI)}')
    a(f'v_lshlrev_b32 {vr(vT0)}, 4, {vr(vT0)}')
    a(f'v_lshl_add_u32 {vr(vT0)}, {vr(vI)}, 8, {vr(vT0)}')
    a(f'v_add_u32 {vr(vAK)}, s{sT0}, {vr(vT0)}')
    for ks in range(1, 4):
        a(f'v_xor_b32 {vr(vAK+ks)}, {64*ks}, {vr(vAK)}')
    a(f'v_and_b32 {vr(vT0)}, 1, {vr(vI)}')
    a(f'v_lshlrev_b32 {vr(vT0)}, 8, {vr(vT0)}')
    a(f'v_lshl_add_u32 {vr(vT0)}, {vr(vKGp)}, 4, {vr(vT0)}')
    a(f'v_add_u32 {vr(vAG)}, {SOFF}, {vr(vT0)}')
    a(f'v_bfe_u32 {vr(vT0)}, {vr(vLANE)}, 2, 2')
    a(f'v_and_b32 {vr(vT1)}, 3, {vr(vLANE)}')
    a(f'v_lshlrev_b32 {vr(vT1)}, 3, {vr(vT1)}')
    a(f'v_lshl_add_u32 {vr(vT0)}, {vr(vT0)}, 8, {vr(vT1)}')
    a(f'v_add_u32 {vr(vAVG)}, {SOFF+2048}, {vr(vT0)}')
    a(f'v_lshrrev_b32 {vr(vT0)}, 2, {vr(vLANE)}')
    a(f'v_and_b32 {vr(vT2)}, 7, {vr(vT0)}')
    a(f'v_lshl_add_u32 {vr(vT1)}, {vr(vT2)}, 5, {vr(vT1)}')
    a(f'v_lshl_add_u32 {vr(vT1)}, {vr(vT0)}, 8, {vr(vT1)}')
    a(f's_add_u32 s{sT1}, s{sT0}, {VOFF}')
    a(f'v_add_u32 {vr(VA)}, s{sT1}, {vr(vT1)}')
    for t in range(1, 8):
        a(f'v_xor_b32 {vr(VA+t)}, {32*t}, {vr(VA)}')
    a(f's_mul_i32 s{sT1}, s{sWV}, {16*STGP}')
    a(f's_add_u32 s{sT1}, s{sT1}, {STG}')
    a(f'v_mul_u32_u24 {vr(vT0)}, {STGP}, {vr(vI)}')
    a(f'v_lshl_add_u32 {vr(vT0)}, {vr(vKGp)}, 3, {vr(vT0)}')
    a(f'v_add_u32 {vr(vSW)}, s{sT1}, {vr(vT0)}')
    a(f'v_mul_u32_u24 {vr(vT0)}, {STGP}, {vr(vKGp)}')
    a(f'v_lshl_add_u32 {vr(vT0)}, {vr(vI)}, 4, {vr(vT0)}')
    a(f'v_add_u32 {vr(vSR)}, s{sT1}, {vr(vT0)}')
    a(f's_add_u32 s{sT0}, s{sT0}, s{sQ0B}')
    a(f'v_lshlrev_b32 {vr(vT0)}, 4, {vr(vLANE)}')
    a(f'v_add_u32 {vr(vOO)}, s{sT0}, {vr(vT0)}')
    a(f's_lshr_b32 s{sQB}, s{sT0}, 8')
    a(f's_cmp_eq_u32 s{sQB}, 0')
    a(f's_cselect_b32 s{sEX}, 0, -1')
    a(f's_mov_b32 s{sEX+1}, -1')

    a(f's_waitcnt vmcnt({18 if qearly else 10})')
    a('s_barrier')
    QG = O
    for ks in range(4):
        a(f'ds_read_b128 {vr(QG+4*ks,4)}, {vr(vAG)} offset:{1024+64*ks}')
    for W in (2, 3):
        for ks in range(4):
            a(f'ds_read_b128 {vr(kf(W,ks),4)}, {vr(vAK+ks)} offset:{4096*(W-2)}')
    for ks in range(4):
        a(f'ds_read_b128 {vr(KG+4*ks,4)}, {vr(vAG)} offset:{64*ks}')
    for W in (4, 5):
        for ks in range(4):
            a(f'ds_read_b128 {vr(kf(W,ks),4)}, {vr(vAK+ks)} offset:{4096*(W-2)}')
    a(f's_cmp_eq_u32 s{sWV}, 0')
    a('s_cbranch_scc1 L_k01done')
    for ks in range(4):
        a(f'v_subrev_u32 {vr(vAK+ks)}, 0x2000, {vr(vAK+ks)}')
    for W in (0, 1):
        for ks in range(4):
            a(f'ds_read_b128 {vr(kf(W,ks),4)}, {vr(vAK+ks)} offset:{4096*W}')
    a.label('L_k01done')
    a('s_waitcnt lgkmcnt(0)')
    for T in range(2):
        for ks in range(4):
            c = '0' if ks == 0 else vr(S+4*T, 4)
            a(f'v_mfma_f32_16x16x32_bf16 {vr(S+4*T,4)}, {vr(kf(2+T,ks),4)}, {vr(QG+4*ks,4)}, {c}')
    if not qearly:
        issue_q()
        a.nop(1)
    else:
        a.nop(8)

    def xmax(m, t):
        a(f'v_mov_b32 {vr(t)}, {vr(m)}')
        a.nop(2)
        a(f'v_permlane16_swap_b32 {vr(m)}, {vr(t)}')
        a(f'v_max_f32 {vr(m)}, {vr(m)}, {vr(t)}')
        a(f'v_mov_b32 {vr(t)}, {vr(m)}')
        a.nop(2)
        a(f'v_permlane32_swap_b32 {vr(m)}, {vr(t)}')
        a(f'v_max_f32 {vr(m)}, {vr(m)}, {vr(t)}')

    def maxtree(vals, m):
        a(f'v_max3_f32 {vr(m)}, {vr(vals[0])}, {vr(vals[1])}, {vr(vals[2])}')
        rest = vals[3:]
        while len(rest) >= 2:
            a(f'v_max3_f32 {vr(m)}, {vr(m)}, {vr(rest[0])}, {vr(rest[1])}')
            rest = rest[2:]
        if rest:
            a(f'v_max_f32 {vr(m)}, {vr(m)}, {vr(rest[0])}')

    def expall(vals, mc):
        for v in vals:
            a(f'v_fma_f32 {vr(v)}, {vr(v)}, s{sCS}, -{vr(mc)}')
        for v in vals:
            a(f'v_exp_f32 {vr(v)}, {vr(v)}')

    vMG = vT2
    maxtree([S+x for x in range(8)], vMG)
    xmax(vMG, vT0)
    a(f'v_mul_f32 {vr(vMG)}, s{sCS}, {vr(vMG)}')
    expall([S+x for x in range(8)], vMG)
    a.nop(1)
    for n in range(4):
        a(f'v_cvt_pk_bf16_f32 {vr(S+n)}, {vr(S+2*n)}, {vr(S+2*n+1)}')
    ONES, LACC = S + 4, vAK
    LACC = S + 8
    for n in range(4):
        a(f'v_mov_b32 {vr(ONES+n)}, 0x3f803f80')
    a(f'v_mov_b32 {vr(vT1)}, {vr(vAVG)}')
    a('s_waitcnt vmcnt(8)')
    a('s_barrier')
    for t in range(8):
        a(f'ds_read_b64_tr_b16 {vr(VG+4*t+2,2)}, {vr(vT1)} offset:{32*t}')
    a(f'v_mfma_f32_16x16x32_bf16 {vr(LACC,4)}, {vr(ONES,4)}, {vr(S,4)}, 0')
    grp = [S + 12, S + 16, S + 20]
    for t0 in range(0, 8, 3):
        ts = list(range(t0, min(8, t0 + 3)))
        for n, t in enumerate(ts):
            a(f'ds_read_b64_tr_b16 {vr(grp[n],2)}, {vr(VA+t)} offset:{4096*2}')
            a(f'ds_read_b64_tr_b16 {vr(grp[n]+2,2)}, {vr(VA+t)} offset:{4096*3}')
        a('s_waitcnt lgkmcnt(0)')
        for n, t in enumerate(ts):
            a(f'v_mfma_f32_16x16x32_bf16 {vr(O+4*t,4)}, {vr(grp[n],4)}, {vr(S,4)}, 0')
    a(f's_lshl_b32 s{sT0}, s{sWV}, 10')
    a(f'v_mbcnt_lo_u32_b32 {vr(vT0)}, -1, 0')
    a(f'v_mbcnt_hi_u32_b32 {vr(vT0)}, -1, {vr(vT0)}')
    a(f'v_and_b32 {vr(vT1)}, 1, {vr(vT0)}')
    a(f'v_lshlrev_b32 {vr(S+4)}, 9, {vr(vT1)}')
    a(f'v_lshl_add_u32 {vr(S+4)}, {vr(v4KG)}, 2, {vr(S+4)}')
    a(f'v_add_u32 {vr(S+4)}, s{sT0}, {vr(S+4)}')
    a(f's_lshl_b32 s{sT0}, s{sWV}, 4')
    a(f'v_lshlrev_b32 {vr(S+5)}, 3, {vr(vT1)}')
    a(f'v_add_u32 {vr(S+5)}, s{sT0}, {vr(S+5)}')
    a(f'v_mov_b32 {vr(S+6)}, {vr(vMG)}')
    a(f'v_mov_b32 {vr(S+7)}, {vr(LACC)}')
    a(f's_mov_b64 exec, {sr(sQLT2,2)}')
    for t in range(8):
        a(f'ds_write_b128 {vr(S+4)}, {vr(O+4*t,4)} offset:{PART+64*t}')
    a(f'ds_write_b64 {vr(S+5)}, {vr(S+6,2)} offset:{PARTML}')
    a('s_mov_b64 exec, -1')
    a('s_waitcnt lgkmcnt(0)')
    a('s_barrier')

    def combine8(ob, mlb, tm, tf):
        maxtree([mlb + 2*n for n in range(8)], tm)
        for n in range(8):
            a(f'v_sub_f32 {vr(mlb+2*n)}, {vr(mlb+2*n)}, {vr(tm)}')
        for n in range(8):
            a(f'v_exp_f32 {vr(mlb+2*n)}, {vr(mlb+2*n)}')
        a.nop(1)
        for e in range(4):
            a(f'v_mul_f32 {vr(ob+e)}, {vr(ob+e)}, {vr(mlb)}')
        a(f'v_mul_f32 {vr(mlb+1)}, {vr(mlb+1)}, {vr(mlb)}')
        for n in range(1, 8):
            for e in range(4):
                a(f'v_fmac_f32 {vr(ob+e)}, {vr(ob+4*n+e)}, {vr(mlb+2*n)}')
            a(f'v_fmac_f32 {vr(mlb+1)}, {vr(mlb+2*n+1)}, {vr(mlb+2*n)}')

    RW = 7
    a(f's_cmp_eq_u32 s{sWV}, {RW}')
    a('s_cbranch_scc1 L_reduce')
    a('s_waitcnt vmcnt(4)')
    a('s_branch L_tileA')
    a.label('L_reduce')
    a(f'v_lshlrev_b32 {vr(vT1)}, 4, {vr(vT0)}')
    a(f'v_lshrrev_b32 {vr(vT2)}, 5, {vr(vT0)}')
    a(f'v_lshlrev_b32 {vr(vT2)}, 3, {vr(vT2)}')
    for n in range(8):
        a(f'ds_read_b128 {vr(O+4*n,4)}, {vr(vT1)} offset:{PART+1024*n}')
    for n in range(8):
        a(f'ds_read_b64 {vr(S+2*n,2)}, {vr(vT2)} offset:{PARTML+16*n}')
    a('s_waitcnt lgkmcnt(0)')
    combine8(O, S, vT2, None)
    a(f'v_mov_b32 {vr(S)}, {vr(vT2)}')
    a(f's_lshl_b32 s{sT0}, s{sC}, 11')
    a(f'v_lshlrev_b32 {vr(vT2)}, 3, {vr(vT0)}')
    a(f'buffer_store_dwordx4 {vr(O,4)}, {vr(vT1)}, {sr(sW,4)}, s{sT0} offen sc0 sc1')
    a(f'buffer_store_dwordx2 {vr(S,2)}, {vr(vT2)}, {sr(sW,4)}, s{sT0} offen offset:1024 sc0 sc1')
    a('s_waitcnt vmcnt(6)')
    a.label('L_tileA')

    def tile(tau):
        Q = QA if tau == 0 else QB
        nm = 'AB'[tau]
        for T in range(5):
            for ks in range(4):
                c = vr(S+4*T, 4)
                if ks == 0:
                    c = vr(BLO, 4) if T == 0 else vr(BHI, 4) if T == 4 else '0'
                a(f'v_mfma_f32_16x16x32_bf16 {vr(S+4*T,4)}, {vr(kf(tau+T,ks),4)}, {vr(Q+4*ks,4)}, {c}')
        for ks in range(4):
            c = '0' if ks == 0 else vr(S+20, 4)
            a(f'v_mfma_f32_16x16x32_bf16 {vr(S+20,4)}, {vr(KG+4*ks,4)}, {vr(Q+4*ks,4)}, {c}')
        buf0 = [kf(tau, n) for n in range(4)] + [Q + 4*n for n in range(4)]
        buf1 = ([kf(0, n) for n in range(4)] + [QA + 4*n for n in range(4)]) if tau == 1 else None
        def vread(dst, t, W):
            a(f'ds_read_b64_tr_b16 {vr(dst,2)}, {vr(VA+t)} offset:{4096*W}')
        for t in range(8):
            vread(VG+4*t, t, tau+4)
        for t in range(8):
            vread(buf0[t], t, tau+0)
            vread(buf0[t]+2, t, tau+1)
        if buf1:
            for t in range(8):
                vread(buf1[t], t, tau+2)
                vread(buf1[t]+2, t, tau+3)
        a(f's_sub_u32 s{sT0}, s{sQB}, {48 - 16*tau}')
        a(f's_cmp_lt_u32 s{sT0}, 1968')
        a(f's_cbranch_scc1 L_noedge{nm}')
        a(f's_sub_u32 s{sT0}, s{sQB}, {34 - 16*tau}')
        a(f'v_add_u32 {vr(O)}, s{sT0}, {vr(v4KG)}')
        for T in range(5):
            for r in range(4):
                a(f'v_add_u32 {vr(O+1)}, {16*T+r}, {vr(O)}')
                a(f'v_cmp_gt_u32 vcc, s{s2046}, {vr(O+1)}')
                a('s_nop 1')
                a(f'v_cndmask_b32 {vr(S+4*T+r)}, {vr(vNEG)}, {vr(S+4*T+r)}, vcc')
        a.label(f'L_noedge{nm}')
        for r in range(2):
            a(f'v_cndmask_b32 {vr(S+20+r)}, {vr(vNEG)}, {vr(S+20+r)}, {sr(sKG0,2)}')
        vals = [S + x for x in range(22)]
        m, m2 = vT0, vT1
        maxtree(vals[:11], m)
        maxtree(vals[11:], m2)
        a(f'v_max_f32 {vr(m)}, {vr(m)}, {vr(m2)}')
        xmax(m, m2)
        a(f'v_mul_f32 {vr(m)}, s{sCS}, {vr(m)}')
        expall(vals, m)
        a.nop(1)
        for n in range(11):
            a(f'v_cvt_pk_bf16_f32 {vr(S+n)}, {vr(S+2*n)}, {vr(S+2*n+1)}')
        a(f'v_mov_b32 {vr(S+11)}, 0')
        ONES, LACC = S + 12, S + 16
        for n in range(4):
            a(f'v_mov_b32 {vr(ONES+n)}, 0x3f803f80')
        P = lambda ks: vr(S + 4*ks, 4)
        a('s_waitcnt lgkmcnt(0)' if not buf1 else 's_waitcnt lgkmcnt(15)')
        if buf1: a('s_nop 0')
        for t in range(8):
            a(f'v_mfma_f32_16x16x32_bf16 {vr(O+4*t,4)}, {vr(VG+4*t,4)}, {P(2)}, 0')
        a(f'v_mfma_f32_16x16x32_bf16 {vr(LACC,4)}, {vr(ONES,4)}, {P(2)}, 0')
        for t in range(8):
            a(f'v_mfma_f32_16x16x32_bf16 {vr(O+4*t,4)}, {vr(buf0[t],4)}, {P(0)}, {vr(O+4*t,4)}')
            if not buf1:
                vread(buf0[t], t, tau+2)
                vread(buf0[t]+2, t, tau+3)
        a(f'v_mfma_f32_16x16x32_bf16 {vr(LACC,4)}, {vr(ONES,4)}, {P(0)}, {vr(LACC,4)}')
        a(f'v_mfma_f32_16x16x32_bf16 {vr(LACC,4)}, {vr(ONES,4)}, {P(1)}, {vr(LACC,4)}')
        b = buf1 or buf0
        for t in range(8):
            a(f's_waitcnt lgkmcnt({min(15, 14 - 2*t)})')
            a(f'v_mfma_f32_16x16x32_bf16 {vr(O+4*t,4)}, {vr(b[t],4)}, {P(1)}, {vr(O+4*t,4)}')
        a(f'v_rcp_f32 {vr(vT0)}, {vr(LACC)}')
        a.nop(1)
        for t in range(8):
            for e in range(4):
                a(f'v_mul_f32 {vr(O+4*t+e)}, {vr(O+4*t+e)}, {vr(vT0)}')
            a(f'v_cvt_pk_bf16_f32 {vr(O+4*t)}, {vr(O+4*t)}, {vr(O+4*t+1)}')
            a(f'v_cvt_pk_bf16_f32 {vr(O+4*t+1)}, {vr(O+4*t+2)}, {vr(O+4*t+3)}')
            a(f'ds_write_b64 {vr(vSW)}, {vr(O+4*t,2)} offset:{32*t}')
        for j in range(4):
            a(f'ds_read_b128 {vr(S+4*j,4)}, {vr(vSR)} offset:{4*STGP*j}')
        for j in range(4):
            a(f's_waitcnt lgkmcnt({3-j})')
            if tau == 0 and j == 0:
                a(f's_mov_b64 exec, {sr(sEX,2)}')
            a(f'buffer_store_dwordx4 {vr(S+4*j,4)}, {vr(vOO)}, {sr(sO,4)}, 0 offen offset:{1024*j} {stpol}')
            if tau == 0 and j == 0:
                a('s_mov_b64 exec, -1')
        if tau == 0:
            a(f'v_add_u32 {vr(vOO)}, 0x1000, {vr(vOO)}')
            a('s_waitcnt vmcnt(4)')

    tile(0)
    tile(1)

    a(f's_cmp_lg_u32 s{sWV}, {RW}')
    a('s_cbranch_scc1 L_end')
    a('s_waitcnt vmcnt(0)')
    a(f'v_mbcnt_lo_u32_b32 {vr(vT0)}, -1, 0')
    a(f'v_mbcnt_hi_u32_b32 {vr(vT0)}, -1, {vr(vT0)}')
    a(f's_lshl_b32 s{sT0}, s{sH}, 2')
    a(f'v_mov_b32 {vr(vT1)}, s{sT0}')
    a(f'v_mov_b32 {vr(vT2)}, 1')
    a('s_mov_b64 exec, 1')
    a(f'global_atomic_add {vr(O)}, {vr(vT1)}, {vr(vT2)}, s[16:17] sc0 sc1')
    a('s_mov_b64 exec, -1')
    a('s_waitcnt vmcnt(0)')
    a(f'v_readfirstlane_b32 s{sT0}, {vr(O)}')
    a('s_nop 1')
    a(f's_cmp_lg_u32 s{sT0}, 7')
    a('s_cbranch_scc1 L_end')
    a(f'v_lshlrev_b32 {vr(vT1)}, 4, {vr(vT0)}')
    a(f'v_lshlrev_b32 {vr(vT2)}, 3, {vr(vT0)}')
    for n in range(8):
        a(f's_movk_i32 s{sT0}, {2048*n}')
        a(f'buffer_load_dwordx4 {vr(O+4*n,4)}, {vr(vT1)}, {sr(sW,4)}, s{sT0} offen sc0 sc1')
        a(f'buffer_load_dwordx2 {vr(S+2*n,2)}, {vr(vT2)}, {sr(sW,4)}, s{sT0} offen offset:1024 sc0 sc1')
    a('s_waitcnt vmcnt(0)')
    combine8(O, S, vT1, None)
    a(f'v_rcp_f32 {vr(vT1)}, {vr(S+1)}')
    a.nop(1)
    for e in range(4):
        a(f'v_mul_f32 {vr(O+e)}, {vr(O+e)}, {vr(vT1)}')
    a(f'v_cvt_pk_bf16_f32 {vr(O)}, {vr(O)}, {vr(O+1)}')
    a(f'v_cvt_pk_bf16_f32 {vr(O+1)}, {vr(O+2)}, {vr(O+3)}')
    a(f'buffer_store_dwordx2 {vr(O,2)}, {vr(vT2)}, {sr(sO,4)}, 0 offen')
    a.label('L_end')
    a('s_endpgm')

    check(a.lines)
    head = f'''; windowed + global-token attention, B=1 H=32 S=2048 D=128 bf16 (window 32, 2 global tokens)
; @launch grid=(256,1,1) block=(512,1,1) lds=163840
.amdgcn_target "amdgcn-amd-amdhsa--gfx950"
.text
.globl {NAME}
.p2align 8
.type {NAME},@function
{NAME}:
'''
    tail = f'''.section .rodata,"a"
.p2align 6
.amdhsa_kernel {NAME}
  .amdhsa_next_free_vgpr 256
  .amdhsa_next_free_sgpr 64
  .amdhsa_accum_offset 256
  .amdhsa_group_segment_fixed_size 0
  .amdhsa_kernarg_size 64
  .amdhsa_user_sgpr_count 2
  .amdhsa_user_sgpr_kernarg_segment_ptr 1
  .amdhsa_system_sgpr_workgroup_id_x 1
.end_amdhsa_kernel
'''
    return head + a.text() + tail

if __name__ == '__main__':
    out = sys.argv[1]
    opt = {}
    for kv in sys.argv[2:]:
        k, v = kv.split('=', 1)
        opt[k] = {'True': True, 'False': False}.get(v, v.replace('+', ' '))
    open(out, 'w').write(gen(opt))
```

```python
import sys, math, struct
from asmlib import *

NAME = 'standalone__global_local_windowed_global_tokens__prompt_kernel'

def f2u(x): return struct.unpack('<I', struct.pack('<f', x))[0]

def gen(opt):
    a = Asm()
    NEG = 0xFF000000
    CSC = f2u(128 ** -0.5 * math.log2(math.e))
    KOFF, VOFF, SOFF = 0, 73728, 155648
    PART, PARTML, STG = 0, 8192, 16384
    STGP = 272
    ldpol = opt.get('ldpol', '')
    qpol = opt.get('qpol', '')
    stpol = opt.get('stpol', '')
    sQ, sK, sV, sO, sW = 20, 24, 28, 32, 36
    sWV, sH, sC, sHO, sQ0B = 40, 43, 44, 45, 46
    sT0, sT1, sT2, sT3 = 47, 48, 49, 50
    sCS = 51
    sKG0 = 52
    sQB = 54
    s2046 = 55
    sEX = 56
    sQLT2 = 58
    VA = 0
    vSW, vSR, vOO, vNEG = 8, 9, 10, 11
    vT0, vT1, vT2, v4KG = 12, 13, 14, 15
    KF = 16
    KG = 112
    QA, QB = 128, 144
    VG = 160
    O = 192
    S = 224
    BLO, BHI = 248, 252
    kf = lambda W, ks: KF + 16 * W + 4 * ks
    vLANE, vI, vKGp, vDK, vDV, vDQ, vAG, vAK = O + 16, O + 17, O + 18, O + 19, O + 20, O + 21, O + 22, O + 24
    vAVG = O + 28

    stamps = opt.get('stamps', False)
    nst = [0]
    def stamp():
        if stamps:
            a(f's_memrealtime s[{64+2*nst[0]}:{65+2*nst[0]}]')
            if nst[0]: a('s_waitcnt lgkmcnt(0)')
            nst[0] += 1
    stamp()
    a('s_load_dwordx16 s[4:19], s[0:1], 0')
    a('s_cmp_ge_u32 s2, 256')
    a('s_cbranch_scc1 L_end')
    a(f'v_lshrrev_b32 v1, 6, v0')
    a(f'v_and_b32 {vr(vLANE)}, 63, v0')
    a(f'v_readfirstlane_b32 s{sWV}, v1')
    a(f'v_and_b32 {vr(vI)}, 15, v0')
    a(f'v_bfe_u32 {vr(vKGp)}, v0, 4, 2')
    a('s_and_b32 s41, s2, 7')
    a('s_lshr_b32 s42, s2, 3')
    a(f's_lshr_b32 s{sH}, s42, 3')
    a(f's_lshl2_add_u32 s{sH}, s41, s{sH}')
    a(f's_and_b32 s{sC}, s42, 7')
    a(f's_lshl_b32 s{sHO}, s{sH}, 19')
    a(f's_lshl_b32 s{sQ0B}, s{sC}, 16')
    a(f's_and_b32 s{sT0}, s{sWV}, 3')
    a(f's_lshl_b32 s{sT0}, s{sT0}, 2')
    a(f's_lshl_b32 s{sT1}, s{sWV}, 10')
    a(f's_add_u32 s{sT2}, s{sT1}, s{sQ0B}')
    a(f'v_add_u32 {vr(vDK)}, s{sT0}, {vr(vKGp)}')
    a(f'v_xor_b32 {vr(vDK)}, {vr(vDK)}, {vr(vI)}')
    a(f'v_lshlrev_b32 {vr(vDK)}, 4, {vr(vDK)}')
    a(f'v_lshl_add_u32 {vr(vDK)}, {vr(vKGp)}, 8, {vr(vDK)}')
    a(f'v_add_u32 {vr(vDK)}, s{sT2}, {vr(vDK)}')
    a(f's_mov_b32 m0, s{sT1}')
    a(f's_mov_b32 s{sK+2}, 0x80000')
    a(f's_mov_b32 s{sK+3}, 0x20000')
    a(f's_mov_b32 s{sV+2}, 0x80000')
    a(f's_mov_b32 s{sV+3}, 0x20000')
    a(f's_mov_b32 s{sQ+2}, 0x80000')
    a(f's_mov_b32 s{sQ+3}, 0x20000')
    a('s_waitcnt lgkmcnt(0)')
    stamp()
    a(f's_add_u32 s{sK}, s6, s{sHO}')
    a(f's_addc_u32 s{sK+1}, s7, 0')
    for i in range(9):
        if i:
            a('s_add_u32 m0, m0, 0x2000')
            a(f'v_add_u32 {vr(vDK)}, 0x2000, {vr(vDK)}')
        a(f'buffer_load_dwordx4 {vr(vDK)}, {sr(sK,4)}, 0 offen {ldpol} lds')
    a(f's_add_u32 s{sV}, s8, s{sHO}')
    a(f's_addc_u32 s{sV+1}, s9, 0')
    a(f's_add_u32 s{sQ}, s4, s{sHO}')
    a(f's_addc_u32 s{sQ+1}, s5, 0')
    a(f's_cmp_eq_u32 s{sC}, 0')
    a(f's_cselect_b32 s{sT3}, 0x40000000, 0')
    a(f's_lshl_b32 s{sT0}, s{sWV}, 13')
    a(f's_add_u32 s{sT0}, s{sT0}, s{sQ0B}')
    a(f'v_lshlrev_b32 {vr(vDQ)}, 4, {vr(vKGp)}')
    a(f'v_lshl_add_u32 {vr(vDQ)}, {vr(vI)}, 8, {vr(vDQ)}')
    a(f'v_add_u32 {vr(vDQ)}, s{sT0}, {vr(vDQ)}')
    a(f's_cmp_lg_u32 s{sWV}, 0')
    a('s_cbranch_scc1 L_nohalo')
    a(f's_sub_u32 s{sT0}, s{sT3}, 0x2000')
    a(f'v_add_u32 {vr(vT0)}, s{sT0}, {vr(vDQ)}')
    a(f'v_add_u32 {vr(vT1)}, 0x1000, {vr(vT0)}')
    for T in range(2):
        for ks in range(4):
            a(f'buffer_load_dwordx4 {vr(kf(T,ks),4)}, {vr(vT0+T)}, {sr(sK,4)}, 0 offen offset:{64*ks}')
    a.label('L_nohalo')
    a(f's_cmp_lg_u32 s{sWV}, 1')
    a('s_cbranch_scc1 L_nosmall')
    a(f'v_lshlrev_b32 {vr(vT0)}, 4, {vr(vLANE)}')
    for n, srd in enumerate((sK, sQ, sV)):
        a(f's_mov_b32 m0, {SOFF + 1024*n}')
        a('s_nop 0')
        a(f'buffer_load_dwordx4 {vr(vT0)}, {sr(srd,4)}, 0 offen lds')
    a.label('L_nosmall')
    a(f's_and_b32 s{sT0}, s{sWV}, 1')
    a(f's_lshl_b32 s{sT0}, s{sT0}, 2')
    a(f'v_add_lshl_u32 {vr(vDV)}, s{sT0}, {vr(vKGp)}, 1')
    a(f'v_xor_b32 {vr(vDV)}, {vr(vDV)}, {vr(vI)}')
    a(f'v_lshlrev_b32 {vr(vDV)}, 4, {vr(vDV)}')
    a(f'v_lshl_add_u32 {vr(vDV)}, {vr(vKGp)}, 8, {vr(vDV)}')
    a(f's_sub_u32 s{sT2}, s{sT2}, 0x2000')
    a(f'v_add_u32 {vr(vDV)}, s{sT2}, {vr(vDV)}')
    a(f's_add_u32 m0, s{sT1}, {VOFF}')
    a(f'v_add_u32 {vr(vT0)}, s{sT3}, {vr(vDV)}')
    a(f'buffer_load_dwordx4 {vr(vT0)}, {sr(sV,4)}, 0 offen {ldpol} lds')
    for i in range(1, 10):
        a('s_add_u32 m0, m0, 0x2000')
        a(f'v_add_u32 {vr(vDV)}, 0x2000, {vr(vDV)}')
        a(f'buffer_load_dwordx4 {vr(vDV)}, {sr(sV,4)}, 0 offen {ldpol} lds')

    def issue_q():
        for ks in range(4):
            a(f'buffer_load_dwordx4 {vr(QA+4*ks,4)}, {vr(vDQ)}, {sr(sQ,4)}, 0 offen offset:{64*ks} {qpol}')
        a(f'v_add_u32 {vr(vDQ)}, 0x1000, {vr(vDQ)}')
        for ks in range(4):
            a(f'buffer_load_dwordx4 {vr(QB+4*ks,4)}, {vr(vDQ)}, {sr(sQ,4)}, 0 offen offset:{64*ks} {qpol}')
    qearly = opt.get('qearly', True)
    if qearly: issue_q()
    stamp()

    a(f's_add_u32 s{sO}, s14, s{sHO}')
    a(f's_addc_u32 s{sO+1}, s15, 0')
    a(f's_mov_b32 s{sO+2}, 0x80000')
    a(f's_mov_b32 s{sO+3}, 0x20000')
    a(f's_lshl_b32 s{sT0}, s{sH}, 14')
    a(f's_add_u32 s{sW}, s18, s{sT0}')
    a(f's_addc_u32 s{sW+1}, s19, 0')
    a(f's_mov_b32 s{sW+2}, 0x4000')
    a(f's_mov_b32 s{sW+3}, 0x20000')
    a(f's_mov_b32 s{sCS}, 0x{CSC:08x}')
    a(f's_movk_i32 s{s2046}, 2046')
    a(f'v_mov_b32 {vr(vNEG)}, 0x{NEG:08x}')
    a(f'v_lshlrev_b32 {vr(v4KG)}, 2, {vr(vKGp)}')
    a(f'v_cmp_eq_u32 {sr(sKG0,2)}, 0, {vr(vKGp)}')
    a(f'v_cmp_gt_u32 {sr(sQLT2,2)}, 2, {vr(vI)}')
    for r in range(4):
        a(f'v_add_u32 {vr(vT0)}, {r}, {vr(v4KG)}')
        a(f'v_cmp_ge_u32 vcc, {vr(vT0)}, {vr(vI)}')
        a('s_nop 1')
        a(f'v_cndmask_b32 {vr(BLO+r)}, {vr(vNEG)}, 0, vcc')
        a(f'v_cmp_le_u32 vcc, {vr(vT0)}, {vr(vI)}')
        a('s_nop 1')
        a(f'v_cndmask_b32 {vr(BHI+r)}, {vr(vNEG)}, 0, vcc')
    a(f's_lshl_b32 s{sT0}, s{sWV}, 13')
    a(f'v_xor_b32 {vr(vT0)}, {vr(vKGp)}, {vr(vI)}')
    a(f'v_lshlrev_b32 {vr(vT0)}, 4, {vr(vT0)}')
    a(f'v_lshl_add_u32 {vr(vT0)}, {vr(vI)}, 8, {vr(vT0)}')
    a(f'v_add_u32 {vr(vAK)}, s{sT0}, {vr(vT0)}')
    for ks in range(1, 4):
        a(f'v_xor_b32 {vr(vAK+ks)}, {64*ks}, {vr(vAK)}')
    a(f'v_and_b32 {vr(vT0)}, 1, {vr(vI)}')
    a(f'v_lshlrev_b32 {vr(vT0)}, 8, {vr(vT0)}')
    a(f'v_lshl_add_u32 {vr(vT0)}, {vr(vKGp)}, 4, {vr(vT0)}')
    a(f'v_add_u32 {vr(vAG)}, {SOFF}, {vr(vT0)}')
    a(f'v_bfe_u32 {vr(vT0)}, {vr(vLANE)}, 2, 2')
    a(f'v_and_b32 {vr(vT1)}, 3, {vr(vLANE)}')
    a(f'v_lshlrev_b32 {vr(vT1)}, 3, {vr(vT1)}')
    a(f'v_lshl_add_u32 {vr(vT0)}, {vr(vT0)}, 8, {vr(vT1)}')
    a(f'v_add_u32 {vr(vAVG)}, {SOFF+2048}, {vr(vT0)}')
    a(f'v_lshrrev_b32 {vr(vT0)}, 2, {vr(vLANE)}')
    a(f'v_and_b32 {vr(vT2)}, 7, {vr(vT0)}')
    a(f'v_lshl_add_u32 {vr(vT1)}, {vr(vT2)}, 5, {vr(vT1)}')
    a(f'v_lshl_add_u32 {vr(vT1)}, {vr(vT0)}, 8, {vr(vT1)}')
    a(f's_add_u32 s{sT1}, s{sT0}, {VOFF}')
    a(f'v_add_u32 {vr(VA)}, s{sT1}, {vr(vT1)}')
    for t in range(1, 8):
        a(f'v_xor_b32 {vr(VA+t)}, {32*t}, {vr(VA)}')
    a(f's_mul_i32 s{sT1}, s{sWV}, {16*STGP}')
    a(f's_add_u32 s{sT1}, s{sT1}, {STG}')
    a(f'v_mul_u32_u24 {vr(vT0)}, {STGP}, {vr(vI)}')
    a(f'v_lshl_add_u32 {vr(vT0)}, {vr(vKGp)}, 3, {vr(vT0)}')
    a(f'v_add_u32 {vr(vSW)}, s{sT1}, {vr(vT0)}')
    a(f'v_mul_u32_u24 {vr(vT0)}, {STGP}, {vr(vKGp)}')
    a(f'v_lshl_add_u32 {vr(vT0)}, {vr(vI)}, 4, {vr(vT0)}')
    a(f'v_add_u32 {vr(vSR)}, s{sT1}, {vr(vT0)}')
    a(f's_add_u32 s{sT0}, s{sT0}, s{sQ0B}')
    a(f'v_lshlrev_b32 {vr(vT0)}, 4, {vr(vLANE)}')
    a(f'v_add_u32 {vr(vOO)}, s{sT0}, {vr(vT0)}')
    a(f's_lshr_b32 s{sQB}, s{sT0}, 8')
    a(f's_cmp_eq_u32 s{sQB}, 0')
    a(f's_cselect_b32 s{sEX}, 0, -1')
    a(f's_mov_b32 s{sEX+1}, -1')

    a(f's_waitcnt vmcnt({18 if qearly else 10})')
    a('s_barrier')
    stamp()
    QG = O
    for ks in range(4):
        a(f'ds_read_b128 {vr(QG+4*ks,4)}, {vr(vAG)} offset:{1024+64*ks}')
    for W in (2, 3):
        for ks in range(4):
            a(f'ds_read_b128 {vr(kf(W,ks),4)}, {vr(vAK+ks)} offset:{4096*(W-2)}')
    for ks in range(4):
        a(f'ds_read_b128 {vr(KG+4*ks,4)}, {vr(vAG)} offset:{64*ks}')
    for W in (4, 5):
        for ks in range(4):
            a(f'ds_read_b128 {vr(kf(W,ks),4)}, {vr(vAK+ks)} offset:{4096*(W-2)}')
    a(f's_cmp_eq_u32 s{sWV}, 0')
    a('s_cbranch_scc1 L_k01done')
    for ks in range(4):
        a(f'v_subrev_u32 {vr(vAK+ks)}, 0x2000, {vr(vAK+ks)}')
    for W in (0, 1):
        for ks in range(4):
            a(f'ds_read_b128 {vr(kf(W,ks),4)}, {vr(vAK+ks)} offset:{4096*W}')
    a.label('L_k01done')
    a('s_waitcnt lgkmcnt(0)')
    for T in range(2):
        for ks in range(4):
            c = '0' if ks == 0 else vr(S+4*T, 4)
            a(f'v_mfma_f32_16x16x32_bf16 {vr(S+4*T,4)}, {vr(kf(2+T,ks),4)}, {vr(QG+4*ks,4)}, {c}')
    if not qearly:
        issue_q()
        a.nop(1)
    else:
        a.nop(8)

    def xmax(m, t):
        a(f'v_mov_b32 {vr(t)}, {vr(m)}')
        a.nop(2)
        a(f'v_permlane16_swap_b32 {vr(m)}, {vr(t)}')
        a(f'v_max_f32 {vr(m)}, {vr(m)}, {vr(t)}')
        a(f'v_mov_b32 {vr(t)}, {vr(m)}')
        a.nop(2)
        a(f'v_permlane32_swap_b32 {vr(m)}, {vr(t)}')
        a(f'v_max_f32 {vr(m)}, {vr(m)}, {vr(t)}')

    def maxtree(vals, m):
        a(f'v_max3_f32 {vr(m)}, {vr(vals[0])}, {vr(vals[1])}, {vr(vals[2])}')
        rest = vals[3:]
        while len(rest) >= 2:
            a(f'v_max3_f32 {vr(m)}, {vr(m)}, {vr(rest[0])}, {vr(rest[1])}')
            rest = rest[2:]
        if rest:
            a(f'v_max_f32 {vr(m)}, {vr(m)}, {vr(rest[0])}')

    def expall(vals, mc):
        for v in vals:
            a(f'v_fma_f32 {vr(v)}, {vr(v)}, s{sCS}, -{vr(mc)}')
        for v in vals:
            a(f'v_exp_f32 {vr(v)}, {vr(v)}')

    vMG = vT2
    maxtree([S+x for x in range(8)], vMG)
    xmax(vMG, vT0)
    a(f'v_mul_f32 {vr(vMG)}, s{sCS}, {vr(vMG)}')
    expall([S+x for x in range(8)], vMG)
    a.nop(1)
    for n in range(4):
        a(f'v_cvt_pk_bf16_f32 {vr(S+n)}, {vr(S+2*n)}, {vr(S+2*n+1)}')
    ONES, LACC = S + 4, vAK
    LACC = S + 8
    for n in range(4):
        a(f'v_mov_b32 {vr(ONES+n)}, 0x3f803f80')
    a(f'v_mov_b32 {vr(vT1)}, {vr(vAVG)}')
    a('s_waitcnt vmcnt(8)')
    a('s_barrier')
    stamp()
    for t in range(8):
        a(f'ds_read_b64_tr_b16 {vr(VG+4*t+2,2)}, {vr(vT1)} offset:{32*t}')
    a(f'v_mfma_f32_16x16x32_bf16 {vr(LACC,4)}, {vr(ONES,4)}, {vr(S,4)}, 0')
    grp = [S + 12, S + 16, S + 20]
    for t0 in range(0, 8, 3):
        ts = list(range(t0, min(8, t0 + 3)))
        for n, t in enumerate(ts):
            a(f'ds_read_b64_tr_b16 {vr(grp[n],2)}, {vr(VA+t)} offset:{4096*2}')
            a(f'ds_read_b64_tr_b16 {vr(grp[n]+2,2)}, {vr(VA+t)} offset:{4096*3}')
        a('s_waitcnt lgkmcnt(0)')
        for n, t in enumerate(ts):
            a(f'v_mfma_f32_16x16x32_bf16 {vr(O+4*t,4)}, {vr(grp[n],4)}, {vr(S,4)}, 0')
    a(f's_lshl_b32 s{sT0}, s{sWV}, 10')
    a(f'v_mbcnt_lo_u32_b32 {vr(vT0)}, -1, 0')
    a(f'v_mbcnt_hi_u32_b32 {vr(vT0)}, -1, {vr(vT0)}')
    a(f'v_and_b32 {vr(vT1)}, 1, {vr(vT0)}')
    a(f'v_lshlrev_b32 {vr(S+4)}, 9, {vr(vT1)}')
    a(f'v_lshl_add_u32 {vr(S+4)}, {vr(v4KG)}, 2, {vr(S+4)}')
    a(f'v_add_u32 {vr(S+4)}, s{sT0}, {vr(S+4)}')
    a(f's_lshl_b32 s{sT0}, s{sWV}, 4')
    a(f'v_lshlrev_b32 {vr(S+5)}, 3, {vr(vT1)}')
    a(f'v_add_u32 {vr(S+5)}, s{sT0}, {vr(S+5)}')
    a(f'v_mov_b32 {vr(S+6)}, {vr(vMG)}')
    a(f'v_mov_b32 {vr(S+7)}, {vr(LACC)}')
    a(f's_mov_b64 exec, {sr(sQLT2,2)}')
    for t in range(8):
        a(f'ds_write_b128 {vr(S+4)}, {vr(O+4*t,4)} offset:{PART+64*t}')
    a(f'ds_write_b64 {vr(S+5)}, {vr(S+6,2)} offset:{PARTML}')
    a('s_mov_b64 exec, -1')
    a('s_waitcnt lgkmcnt(0)')
    a('s_barrier')
    stamp()

    def combine8(ob, mlb, tm, tf):
        maxtree([mlb + 2*n for n in range(8)], tm)
        for n in range(8):
            a(f'v_sub_f32 {vr(mlb+2*n)}, {vr(mlb+2*n)}, {vr(tm)}')
        for n in range(8):
            a(f'v_exp_f32 {vr(mlb+2*n)}, {vr(mlb+2*n)}')
        a.nop(1)
        for e in range(4):
            a(f'v_mul_f32 {vr(ob+e)}, {vr(ob+e)}, {vr(mlb)}')
        a(f'v_mul_f32 {vr(mlb+1)}, {vr(mlb+1)}, {vr(mlb)}')
        for n in range(1, 8):
            for e in range(4):
                a(f'v_fmac_f32 {vr(ob+e)}, {vr(ob+4*n+e)}, {vr(mlb+2*n)}')
            a(f'v_fmac_f32 {vr(mlb+1)}, {vr(mlb+2*n+1)}, {vr(mlb+2*n)}')

    RW = 7
    a(f's_cmp_eq_u32 s{sWV}, {RW}')
    a('s_cbranch_scc1 L_reduce')
    a('s_waitcnt vmcnt(4)')
    a('s_branch L_tileA')
    a.label('L_reduce')
    a(f'v_lshlrev_b32 {vr(vT1)}, 4, {vr(vT0)}')
    a(f'v_lshrrev_b32 {vr(vT2)}, 5, {vr(vT0)}')
    a(f'v_lshlrev_b32 {vr(vT2)}, 3, {vr(vT2)}')
    for n in range(8):
        a(f'ds_read_b128 {vr(O+4*n,4)}, {vr(vT1)} offset:{PART+1024*n}')
    for n in range(8):
        a(f'ds_read_b64 {vr(S+2*n,2)}, {vr(vT2)} offset:{PARTML+16*n}')
    a('s_waitcnt lgkmcnt(0)')
    combine8(O, S, vT2, None)
    a(f'v_mov_b32 {vr(S)}, {vr(vT2)}')
    a(f's_lshl_b32 s{sT0}, s{sC}, 11')
    a(f'v_lshlrev_b32 {vr(vT2)}, 3, {vr(vT0)}')
    a(f'buffer_store_dwordx4 {vr(O,4)}, {vr(vT1)}, {sr(sW,4)}, s{sT0} offen sc0 sc1')
    a(f'buffer_store_dwordx2 {vr(S,2)}, {vr(vT2)}, {sr(sW,4)}, s{sT0} offen offset:1024 sc0 sc1')
    a('s_waitcnt vmcnt(6)')
    a.label('L_tileA')
    stamp()

    def tile(tau):
        Q = QA if tau == 0 else QB
        nm = 'AB'[tau]
        for T in range(5):
            for ks in range(4):
                c = vr(S+4*T, 4)
                if ks == 0:
                    c = vr(BLO, 4) if T == 0 else vr(BHI, 4) if T == 4 else '0'
                a(f'v_mfma_f32_16x16x32_bf16 {vr(S+4*T,4)}, {vr(kf(tau+T,ks),4)}, {vr(Q+4*ks,4)}, {c}')
        for ks in range(4):
            c = '0' if ks == 0 else vr(S+20, 4)
            a(f'v_mfma_f32_16x16x32_bf16 {vr(S+20,4)}, {vr(KG+4*ks,4)}, {vr(Q+4*ks,4)}, {c}')
        buf0 = [kf(tau, n) for n in range(4)] + [Q + 4*n for n in range(4)]
        buf1 = ([kf(0, n) for n in range(4)] + [QA + 4*n for n in range(4)]) if tau == 1 else None
        def vread(dst, t, W):
            a(f'ds_read_b64_tr_b16 {vr(dst,2)}, {vr(VA+t)} offset:{4096*W}')
        for t in range(8):
            vread(VG+4*t, t, tau+4)
        for t in range(8):
            vread(buf0[t], t, tau+0)
            vread(buf0[t]+2, t, tau+1)
        if buf1:
            for t in range(8):
                vread(buf1[t], t, tau+2)
                vread(buf1[t]+2, t, tau+3)
        a(f's_sub_u32 s{sT0}, s{sQB}, {48 - 16*tau}')
        a(f's_cmp_lt_u32 s{sT0}, 1968')
        a(f's_cbranch_scc1 L_noedge{nm}')
        a(f's_sub_u32 s{sT0}, s{sQB}, {34 - 16*tau}')
        a(f'v_add_u32 {vr(O)}, s{sT0}, {vr(v4KG)}')
        for T in range(5):
            for r in range(4):
                a(f'v_add_u32 {vr(O+1)}, {16*T+r}, {vr(O)}')
                a(f'v_cmp_gt_u32 vcc, s{s2046}, {vr(O+1)}')
                a('s_nop 1')
                a(f'v_cndmask_b32 {vr(S+4*T+r)}, {vr(vNEG)}, {vr(S+4*T+r)}, vcc')
        a.label(f'L_noedge{nm}')
        for r in range(2):
            a(f'v_cndmask_b32 {vr(S+20+r)}, {vr(vNEG)}, {vr(S+20+r)}, {sr(sKG0,2)}')
        vals = [S + x for x in range(22)]
        m, m2 = vT0, vT1
        maxtree(vals[:11], m)
        maxtree(vals[11:], m2)
        a(f'v_max_f32 {vr(m)}, {vr(m)}, {vr(m2)}')
        xmax(m, m2)
        a(f'v_mul_f32 {vr(m)}, s{sCS}, {vr(m)}')
        expall(vals, m)
        a.nop(1)
        for n in range(11):
            a(f'v_cvt_pk_bf16_f32 {vr(S+n)}, {vr(S+2*n)}, {vr(S+2*n+1)}')
        a(f'v_mov_b32 {vr(S+11)}, 0')
        ONES, LACC = S + 12, S + 16
        for n in range(4):
            a(f'v_mov_b32 {vr(ONES+n)}, 0x3f803f80')
        P = lambda ks: vr(S + 4*ks, 4)
        a('s_waitcnt lgkmcnt(0)' if not buf1 else 's_waitcnt lgkmcnt(15)')
        if buf1: a('s_nop 0')
        for t in range(8):
            a(f'v_mfma_f32_16x16x32_bf16 {vr(O+4*t,4)}, {vr(VG+4*t,4)}, {P(2)}, 0')
        a(f'v_mfma_f32_16x16x32_bf16 {vr(LACC,4)}, {vr(ONES,4)}, {P(2)}, 0')
        for t in range(8):
            a(f'v_mfma_f32_16x16x32_bf16 {vr(O+4*t,4)}, {vr(buf0[t],4)}, {P(0)}, {vr(O+4*t,4)}')
            if not buf1:
                vread(buf0[t], t, tau+2)
                vread(buf0[t]+2, t, tau+3)
        a(f'v_mfma_f32_16x16x32_bf16 {vr(LACC,4)}, {vr(ONES,4)}, {P(0)}, {vr(LACC,4)}')
        a(f'v_mfma_f32_16x16x32_bf16 {vr(LACC,4)}, {vr(ONES,4)}, {P(1)}, {vr(LACC,4)}')
        b = buf1 or buf0
        for t in range(8):
            a(f's_waitcnt lgkmcnt({min(15, 14 - 2*t)})')
            a(f'v_mfma_f32_16x16x32_bf16 {vr(O+4*t,4)}, {vr(b[t],4)}, {P(1)}, {vr(O+4*t,4)}')
        a(f'v_rcp_f32 {vr(vT0)}, {vr(LACC)}')
        a.nop(1)
        for t in range(8):
            for e in range(4):
                a(f'v_mul_f32 {vr(O+4*t+e)}, {vr(O+4*t+e)}, {vr(vT0)}')
            a(f'v_cvt_pk_bf16_f32 {vr(O+4*t)}, {vr(O+4*t)}, {vr(O+4*t+1)}')
            a(f'v_cvt_pk_bf16_f32 {vr(O+4*t+1)}, {vr(O+4*t+2)}, {vr(O+4*t+3)}')
            a(f'ds_write_b64 {vr(vSW)}, {vr(O+4*t,2)} offset:{32*t}')
        for j in range(4):
            a(f'ds_read_b128 {vr(S+4*j,4)}, {vr(vSR)} offset:{4*STGP*j}')
        for j in range(4):
            a(f's_waitcnt lgkmcnt({3-j})')
            if tau == 0 and j == 0:
                a(f's_mov_b64 exec, {sr(sEX,2)}')
            a(f'buffer_store_dwordx4 {vr(S+4*j,4)}, {vr(vOO)}, {sr(sO,4)}, 0 offen offset:{1024*j} {stpol}')
            if tau == 0 and j == 0:
                a('s_mov_b64 exec, -1')
        if tau == 0:
            a(f'v_add_u32 {vr(vOO)}, 0x1000, {vr(vOO)}')
            stamp()
            a('s_waitcnt vmcnt(4)')
        stamp()

    tile(0)
    tile(1)

    if stamps:
        a('s_waitcnt vmcnt(0)')
        stamp()
    a(f's_cmp_lg_u32 s{sWV}, {RW}')
    a('s_cbranch_scc1 L_fin')
    a('s_waitcnt vmcnt(0)')
    a(f'v_mbcnt_lo_u32_b32 {vr(vT0)}, -1, 0')
    a(f'v_mbcnt_hi_u32_b32 {vr(vT0)}, -1, {vr(vT0)}')
    a(f's_lshl_b32 s{sT0}, s{sH}, 2')
    a(f'v_mov_b32 {vr(vT1)}, s{sT0}')
    a(f'v_mov_b32 {vr(vT2)}, 1')
    a('s_mov_b64 exec, 1')
    a(f'global_atomic_add {vr(O)}, {vr(vT1)}, {vr(vT2)}, s[16:17] sc0 sc1')
    a('s_mov_b64 exec, -1')
    a('s_waitcnt vmcnt(0)')
    a(f'v_readfirstlane_b32 s{sT0}, {vr(O)}')
    a('s_nop 1')
    a(f's_cmp_lg_u32 s{sT0}, 7')
    a('s_cbranch_scc1 L_fin')
    a(f'v_lshlrev_b32 {vr(vT1)}, 4, {vr(vT0)}')
    a(f'v_lshlrev_b32 {vr(vT2)}, 3, {vr(vT0)}')
    for n in range(8):
        a(f's_movk_i32 s{sT0}, {2048*n}')
        a(f'buffer_load_dwordx4 {vr(O+4*n,4)}, {vr(vT1)}, {sr(sW,4)}, s{sT0} offen sc0 sc1')
        a(f'buffer_load_dwordx2 {vr(S+2*n,2)}, {vr(vT2)}, {sr(sW,4)}, s{sT0} offen offset:1024 sc0 sc1')
    a('s_waitcnt vmcnt(0)')
    combine8(O, S, vT1, None)
    a(f'v_rcp_f32 {vr(vT1)}, {vr(S+1)}')
    a.nop(1)
    for e in range(4):
        a(f'v_mul_f32 {vr(O+e)}, {vr(O+e)}, {vr(vT1)}')
    a(f'v_cvt_pk_bf16_f32 {vr(O)}, {vr(O)}, {vr(O+1)}')
    a(f'v_cvt_pk_bf16_f32 {vr(O+1)}, {vr(O+2)}, {vr(O+3)}')
    a(f'buffer_store_dwordx2 {vr(O,2)}, {vr(vT2)}, {sr(sO,4)}, 0 offen')
    a.label('L_fin')
    if stamps:
        a('s_waitcnt vmcnt(0)')
        stamp()
        a(f's_lshl_b32 s{sT0}, s2, 3')
        a(f's_add_u32 s{sT0}, s{sT0}, s{sWV}')
        a(f's_lshl_b32 s{sT0}, s{sT0}, 6')
        a(f's_add_u32 s{sT0}, s{sT0}, 0x100000')
        a(f's_add_u32 s{sW}, s18, s{sT0}')
        a(f's_addc_u32 s{sW+1}, s19, 0')
        a(f'v_mov_b32 v1, 0')
        a('s_mov_b64 exec, 1')
        for n in range(nst[0]):
            a(f'v_mov_b32 v2, s{64+2*n}')
            a(f'buffer_store_dword v2, v1, {sr(sW,4)}, 0 offen offset:{4*n}')
    a.label('L_end')
    a('s_endpgm')

    check(a.lines)
    head = f'''; windowed + global-token attention, B=1 H=32 S=2048 D=128 bf16 (window 32, 2 global tokens)
; @launch grid=(256,1,1) block=(512,1,1) lds=163840
.amdgcn_target "amdgcn-amd-amdhsa--gfx950"
.text
.globl {NAME}
.p2align 8
.type {NAME},@function
{NAME}:
'''
    tail = f'''.section .rodata,"a"
.p2align 6
.amdhsa_kernel {NAME}
  .amdhsa_next_free_vgpr 256
  .amdhsa_next_free_sgpr 100
  .amdhsa_accum_offset 256
  .amdhsa_group_segment_fixed_size 0
  .amdhsa_kernarg_size 64
  .amdhsa_user_sgpr_count 2
  .amdhsa_user_sgpr_kernarg_segment_ptr 1
  .amdhsa_system_sgpr_workgroup_id_x 1
.end_amdhsa_kernel
'''
    return head + a.text() + tail

if __name__ == '__main__':
    out = sys.argv[1]
    opt = {}
    for kv in sys.argv[2:]:
        k, v = kv.split('=', 1)
        opt[k] = {'True': True, 'False': False}.get(v, v.replace('+', ' '))
    open(out, 'w').write(gen(opt))
```

```python
import sys, math, struct
from asmlib import *

NAME = 'standalone__global_local_windowed_global_tokens__prompt_kernel'

def f2u(x): return struct.unpack('<I', struct.pack('<f', x))[0]

def gen(opt):
    a = Asm()
    NEG = 0xFF000000
    CSC = f2u(128 ** -0.5 * math.log2(math.e))
    KOFF, VOFF, SOFF = 0, 73728, 155648
    PART, PARTML, STG = 0, 8192, 16384
    STGP = 272
    ldpol = opt.get('ldpol', '')
    qpol = opt.get('qpol', '')
    stpol = opt.get('stpol', '')
    sQ, sK, sV, sO, sW = 20, 24, 28, 32, 36
    sWV, sH, sC, sHO, sQ0B = 40, 43, 44, 45, 46
    sT0, sT1, sT2, sT3 = 47, 48, 49, 50
    sCS = 51
    sKG0 = 52
    sQB = 54
    s2046 = 55
    sEX = 56
    sQLT2 = 58
    VA = 0
    vSW, vSR, vOO, vNEG = 8, 9, 10, 11
    vT0, vT1, vT2, v4KG = 12, 13, 14, 15
    KF = 16
    KG = 112
    QA, QB = 128, 144
    VG = 160
    O = 192
    S = 224
    BLO, BHI = 248, 252
    kf = lambda W, ks: KF + 16 * W + 4 * ks
    vLANE, vI, vKGp, vDK, vDV, vDQ, vAG, vAK = O + 16, O + 17, O + 18, O + 19, O + 20, O + 21, O + 22, O + 24
    vAVG = O + 28

    stamps = opt.get('stamps', False)
    nst = [0]
    def stamp():
        if stamps:
            a(f's_memrealtime s[{64+2*nst[0]}:{65+2*nst[0]}]')
            if nst[0]: a('s_waitcnt lgkmcnt(0)')
            nst[0] += 1
    stamp()
    a('s_load_dwordx16 s[4:19], s[0:1], 0')
    a('s_cmp_ge_u32 s2, 256')
    a('s_cbranch_scc1 L_end')
    a(f'v_lshrrev_b32 v1, 6, v0')
    a(f'v_and_b32 {vr(vLANE)}, 63, v0')
    a(f'v_readfirstlane_b32 s{sWV}, v1')
    a(f'v_and_b32 {vr(vI)}, 15, v0')
    a(f'v_bfe_u32 {vr(vKGp)}, v0, 4, 2')
    a('s_and_b32 s41, s2, 7')
    a('s_lshr_b32 s42, s2, 3')
    a(f's_lshr_b32 s{sH}, s42, 3')
    a(f's_lshl2_add_u32 s{sH}, s41, s{sH}')
    a(f's_and_b32 s{sC}, s42, 7')
    a(f's_lshl_b32 s{sHO}, s{sH}, 19')
    a(f's_lshl_b32 s{sQ0B}, s{sC}, 16')
    a(f's_and_b32 s{sT0}, s{sWV}, 3')
    a(f's_lshl_b32 s{sT0}, s{sT0}, 2')
    a(f's_lshl_b32 s{sT1}, s{sWV}, 10')
    a(f's_add_u32 s{sT2}, s{sT1}, s{sQ0B}')
    a(f'v_add_u32 {vr(vDK)}, s{sT0}, {vr(vKGp)}')
    a(f'v_xor_b32 {vr(vDK)}, {vr(vDK)}, {vr(vI)}')
    a(f'v_lshlrev_b32 {vr(vDK)}, 4, {vr(vDK)}')
    a(f'v_lshl_add_u32 {vr(vDK)}, {vr(vKGp)}, 8, {vr(vDK)}')
    a(f'v_add_u32 {vr(vDK)}, s{sT2}, {vr(vDK)}')
    a(f's_mov_b32 m0, s{sT1}')
    a(f's_mov_b32 s{sK+2}, 0x80000')
    a(f's_mov_b32 s{sK+3}, 0x20000')
    a(f's_mov_b32 s{sV+2}, 0x80000')
    a(f's_mov_b32 s{sV+3}, 0x20000')
    a(f's_mov_b32 s{sQ+2}, 0x80000')
    a(f's_mov_b32 s{sQ+3}, 0x20000')
    a('s_waitcnt lgkmcnt(0)')
    stamp()
    a(f's_add_u32 s{sK}, s6, s{sHO}')
    a(f's_addc_u32 s{sK+1}, s7, 0')
    for i in range(9):
        if i:
            a('s_add_u32 m0, m0, 0x2000')
            a(f'v_add_u32 {vr(vDK)}, 0x2000, {vr(vDK)}')
        a(f'buffer_load_dwordx4 {vr(vDK)}, {sr(sK,4)}, 0 offen {ldpol} lds')
    a(f's_add_u32 s{sV}, s8, s{sHO}')
    a(f's_addc_u32 s{sV+1}, s9, 0')
    a(f's_add_u32 s{sQ}, s4, s{sHO}')
    a(f's_addc_u32 s{sQ+1}, s5, 0')
    a(f's_cmp_eq_u32 s{sC}, 0')
    a(f's_cselect_b32 s{sT3}, 0x40000000, 0')
    a(f's_lshl_b32 s{sT0}, s{sWV}, 13')
    a(f's_add_u32 s{sT0}, s{sT0}, s{sQ0B}')
    a(f'v_lshlrev_b32 {vr(vDQ)}, 4, {vr(vKGp)}')
    a(f'v_lshl_add_u32 {vr(vDQ)}, {vr(vI)}, 8, {vr(vDQ)}')
    a(f'v_add_u32 {vr(vDQ)}, s{sT0}, {vr(vDQ)}')
    a(f's_cmp_lg_u32 s{sWV}, 0')
    a('s_cbranch_scc1 L_nohalo')
    a(f's_sub_u32 s{sT0}, s{sT3}, 0x2000')
    a(f'v_add_u32 {vr(vT0)}, s{sT0}, {vr(vDQ)}')
    a(f'v_add_u32 {vr(vT1)}, 0x1000, {vr(vT0)}')
    for T in range(2):
        for ks in range(4):
            a(f'buffer_load_dwordx4 {vr(kf(T,ks),4)}, {vr(vT0+T)}, {sr(sK,4)}, 0 offen offset:{64*ks}')
    a.label('L_nohalo')
    a(f's_cmp_lg_u32 s{sWV}, 1')
    a('s_cbranch_scc1 L_nosmall')
    a(f'v_lshlrev_b32 {vr(vT0)}, 4, {vr(vLANE)}')
    for n, srd in enumerate((sK, sQ, sV)):
        a(f's_mov_b32 m0, {SOFF + 1024*n}')
        a('s_nop 0')
        a(f'buffer_load_dwordx4 {vr(vT0)}, {sr(srd,4)}, 0 offen lds')
    a.label('L_nosmall')
    a(f's_and_b32 s{sT0}, s{sWV}, 1')
    a(f's_lshl_b32 s{sT0}, s{sT0}, 2')
    a(f'v_add_lshl_u32 {vr(vDV)}, s{sT0}, {vr(vKGp)}, 1')
    a(f'v_xor_b32 {vr(vDV)}, {vr(vDV)}, {vr(vI)}')
    a(f'v_lshlrev_b32 {vr(vDV)}, 4, {vr(vDV)}')
    a(f'v_lshl_add_u32 {vr(vDV)}, {vr(vKGp)}, 8, {vr(vDV)}')
    a(f's_sub_u32 s{sT2}, s{sT2}, 0x2000')
    a(f'v_add_u32 {vr(vDV)}, s{sT2}, {vr(vDV)}')
    a(f's_add_u32 m0, s{sT1}, {VOFF}')
    a(f'v_add_u32 {vr(vT0)}, s{sT3}, {vr(vDV)}')
    a(f'buffer_load_dwordx4 {vr(vT0)}, {sr(sV,4)}, 0 offen {ldpol} lds')
    for i in range(1, 10):
        a('s_add_u32 m0, m0, 0x2000')
        a(f'v_add_u32 {vr(vDV)}, 0x2000, {vr(vDV)}')
        a(f'buffer_load_dwordx4 {vr(vDV)}, {sr(sV,4)}, 0 offen {ldpol} lds')

    def issue_q():
        for ks in range(4):
            a(f'buffer_load_dwordx4 {vr(QA+4*ks,4)}, {vr(vDQ)}, {sr(sQ,4)}, 0 offen offset:{64*ks} {qpol}')
        a(f'v_add_u32 {vr(vDQ)}, 0x1000, {vr(vDQ)}')
        for ks in range(4):
            a(f'buffer_load_dwordx4 {vr(QB+4*ks,4)}, {vr(vDQ)}, {sr(sQ,4)}, 0 offen offset:{64*ks} {qpol}')
    qearly = opt.get('qearly', True)
    if qearly: issue_q()
    stamp()

    a(f's_add_u32 s{sO}, s14, s{sHO}')
    a(f's_addc_u32 s{sO+1}, s15, 0')
    a(f's_mov_b32 s{sO+2}, 0x80000')
    a(f's_mov_b32 s{sO+3}, 0x20000')
    a(f's_lshl_b32 s{sT0}, s{sH}, 14')
    a(f's_add_u32 s{sW}, s18, s{sT0}')
    a(f's_addc_u32 s{sW+1}, s19, 0')
    a(f's_mov_b32 s{sW+2}, 0x4000')
    a(f's_mov_b32 s{sW+3}, 0x20000')
    a(f's_mov_b32 s{sCS}, 0x{CSC:08x}')
    a(f's_movk_i32 s{s2046}, 2046')
    a(f'v_mov_b32 {vr(vNEG)}, 0x{NEG:08x}')
    a(f'v_lshlrev_b32 {vr(v4KG)}, 2, {vr(vKGp)}')
    a(f'v_cmp_eq_u32 {sr(sKG0,2)}, 0, {vr(vKGp)}')
    a(f'v_cmp_gt_u32 {sr(sQLT2,2)}, 2, {vr(vI)}')
    for r in range(4):
        a(f'v_add_u32 {vr(vT0)}, {r}, {vr(v4KG)}')
        a(f'v_cmp_ge_u32 vcc, {vr(vT0)}, {vr(vI)}')
        a('s_nop 1')
        a(f'v_cndmask_b32 {vr(BLO+r)}, {vr(vNEG)}, 0, vcc')
        a(f'v_cmp_le_u32 vcc, {vr(vT0)}, {vr(vI)}')
        a('s_nop 1')
        a(f'v_cndmask_b32 {vr(BHI+r)}, {vr(vNEG)}, 0, vcc')
    a(f's_lshl_b32 s{sT0}, s{sWV}, 13')
    a(f'v_xor_b32 {vr(vT0)}, {vr(vKGp)}, {vr(vI)}')
    a(f'v_lshlrev_b32 {vr(vT0)}, 4, {vr(vT0)}')
    a(f'v_lshl_add_u32 {vr(vT0)}, {vr(vI)}, 8, {vr(vT0)}')
    a(f'v_add_u32 {vr(vAK)}, s{sT0}, {vr(vT0)}')
    for ks in range(1, 4):
        a(f'v_xor_b32 {vr(vAK+ks)}, {64*ks}, {vr(vAK)}')
    a(f'v_and_b32 {vr(vT0)}, 1, {vr(vI)}')
    a(f'v_lshlrev_b32 {vr(vT0)}, 8, {vr(vT0)}')
    a(f'v_lshl_add_u32 {vr(vT0)}, {vr(vKGp)}, 4, {vr(vT0)}')
    a(f'v_add_u32 {vr(vAG)}, {SOFF}, {vr(vT0)}')
    a(f'v_bfe_u32 {vr(vT0)}, {vr(vLANE)}, 2, 2')
    a(f'v_and_b32 {vr(vT1)}, 3, {vr(vLANE)}')
    a(f'v_lshlrev_b32 {vr(vT1)}, 3, {vr(vT1)}')
    a(f'v_lshl_add_u32 {vr(vT0)}, {vr(vT0)}, 8, {vr(vT1)}')
    a(f'v_add_u32 {vr(vAVG)}, {SOFF+2048}, {vr(vT0)}')
    a(f'v_lshrrev_b32 {vr(vT0)}, 2, {vr(vLANE)}')
    a(f'v_and_b32 {vr(vT2)}, 7, {vr(vT0)}')
    a(f'v_lshl_add_u32 {vr(vT1)}, {vr(vT2)}, 5, {vr(vT1)}')
    a(f'v_lshl_add_u32 {vr(vT1)}, {vr(vT0)}, 8, {vr(vT1)}')
    a(f's_add_u32 s{sT1}, s{sT0}, {VOFF}')
    a(f'v_add_u32 {vr(VA)}, s{sT1}, {vr(vT1)}')
    for t in range(1, 8):
        a(f'v_xor_b32 {vr(VA+t)}, {32*t}, {vr(VA)}')
    a(f's_mul_i32 s{sT1}, s{sWV}, {16*STGP}')
    a(f's_add_u32 s{sT1}, s{sT1}, {STG}')
    a(f'v_mul_u32_u24 {vr(vT0)}, {STGP}, {vr(vI)}')
    a(f'v_lshl_add_u32 {vr(vT0)}, {vr(vKGp)}, 3, {vr(vT0)}')
    a(f'v_add_u32 {vr(vSW)}, s{sT1}, {vr(vT0)}')
    a(f'v_mul_u32_u24 {vr(vT0)}, {STGP}, {vr(vKGp)}')
    a(f'v_lshl_add_u32 {vr(vT0)}, {vr(vI)}, 4, {vr(vT0)}')
    a(f'v_add_u32 {vr(vSR)}, s{sT1}, {vr(vT0)}')
    a(f's_add_u32 s{sT0}, s{sT0}, s{sQ0B}')
    a(f'v_lshlrev_b32 {vr(vT0)}, 4, {vr(vLANE)}')
    a(f'v_add_u32 {vr(vOO)}, s{sT0}, {vr(vT0)}')
    a(f's_lshr_b32 s{sQB}, s{sT0}, 8')
    a(f's_cmp_eq_u32 s{sQB}, 0')
    a(f's_cselect_b32 s{sEX}, 0, -1')
    a(f's_mov_b32 s{sEX+1}, -1')

    a(f's_waitcnt vmcnt({18 if qearly else 10})')
    a('s_barrier')
    stamp()
    QG = O
    for ks in range(4):
        a(f'ds_read_b128 {vr(QG+4*ks,4)}, {vr(vAG)} offset:{1024+64*ks}')
    for W in (2, 3):
        for ks in range(4):
            a(f'ds_read_b128 {vr(kf(W,ks),4)}, {vr(vAK+ks)} offset:{4096*(W-2)}')
    for ks in range(4):
        a(f'ds_read_b128 {vr(KG+4*ks,4)}, {vr(vAG)} offset:{64*ks}')
    for W in (4, 5):
        for ks in range(4):
            a(f'ds_read_b128 {vr(kf(W,ks),4)}, {vr(vAK+ks)} offset:{4096*(W-2)}')
    a(f's_cmp_eq_u32 s{sWV}, 0')
    a('s_cbranch_scc1 L_k01done')
    for ks in range(4):
        a(f'v_subrev_u32 {vr(vAK+ks)}, 0x2000, {vr(vAK+ks)}')
    for W in (0, 1):
        for ks in range(4):
            a(f'ds_read_b128 {vr(kf(W,ks),4)}, {vr(vAK+ks)} offset:{4096*W}')
    a.label('L_k01done')
    a('s_waitcnt lgkmcnt(0)')
    for T in range(2):
        for ks in range(4):
            c = '0' if ks == 0 else vr(S+4*T, 4)
            a(f'v_mfma_f32_16x16x32_bf16 {vr(S+4*T,4)}, {vr(kf(2+T,ks),4)}, {vr(QG+4*ks,4)}, {c}')
    if not qearly:
        issue_q()
        a.nop(1)
    else:
        a.nop(8)

    def xmax(m, t):
        a(f'v_mov_b32 {vr(t)}, {vr(m)}')
        a.nop(2)
        a(f'v_permlane16_swap_b32 {vr(m)}, {vr(t)}')
        a(f'v_max_f32 {vr(m)}, {vr(m)}, {vr(t)}')
        a(f'v_mov_b32 {vr(t)}, {vr(m)}')
        a.nop(2)
        a(f'v_permlane32_swap_b32 {vr(m)}, {vr(t)}')
        a(f'v_max_f32 {vr(m)}, {vr(m)}, {vr(t)}')

    def maxtree(vals, m):
        a(f'v_max3_f32 {vr(m)}, {vr(vals[0])}, {vr(vals[1])}, {vr(vals[2])}')
        rest = vals[3:]
        while len(rest) >= 2:
            a(f'v_max3_f32 {vr(m)}, {vr(m)}, {vr(rest[0])}, {vr(rest[1])}')
            rest = rest[2:]
        if rest:
            a(f'v_max_f32 {vr(m)}, {vr(m)}, {vr(rest[0])}')

    def expall(vals, mc):
        for v in vals:
            a(f'v_fma_f32 {vr(v)}, {vr(v)}, s{sCS}, -{vr(mc)}')
        for v in vals:
            a(f'v_exp_f32 {vr(v)}, {vr(v)}')

    vMG = vT2
    maxtree([S+x for x in range(8)], vMG)
    xmax(vMG, vT0)
    a(f'v_mul_f32 {vr(vMG)}, s{sCS}, {vr(vMG)}')
    expall([S+x for x in range(8)], vMG)
    a.nop(1)
    for n in range(4):
        a(f'v_cvt_pk_bf16_f32 {vr(S+n)}, {vr(S+2*n)}, {vr(S+2*n+1)}')
    ONES, LACC = S + 4, vAK
    LACC = S + 8
    for n in range(4):
        a(f'v_mov_b32 {vr(ONES+n)}, 0x3f803f80')
    a(f'v_mov_b32 {vr(vT1)}, {vr(vAVG)}')
    a('s_waitcnt vmcnt(8)')
    a('s_barrier')
    stamp()
    for t in range(8):
        a(f'ds_read_b64_tr_b16 {vr(VG+4*t+2,2)}, {vr(vT1)} offset:{32*t}')
    a(f'v_mfma_f32_16x16x32_bf16 {vr(LACC,4)}, {vr(ONES,4)}, {vr(S,4)}, 0')
    grp = [S + 12, S + 16, S + 20]
    for t0 in range(0, 8, 3):
        ts = list(range(t0, min(8, t0 + 3)))
        for n, t in enumerate(ts):
            a(f'ds_read_b64_tr_b16 {vr(grp[n],2)}, {vr(VA+t)} offset:{4096*2}')
            a(f'ds_read_b64_tr_b16 {vr(grp[n]+2,2)}, {vr(VA+t)} offset:{4096*3}')
        a('s_waitcnt lgkmcnt(0)')
        for n, t in enumerate(ts):
            a(f'v_mfma_f32_16x16x32_bf16 {vr(O+4*t,4)}, {vr(grp[n],4)}, {vr(S,4)}, 0')
    a(f's_lshl_b32 s{sT0}, s{sWV}, 10')
    a(f'v_mbcnt_lo_u32_b32 {vr(vT0)}, -1, 0')
    a(f'v_mbcnt_hi_u32_b32 {vr(vT0)}, -1, {vr(vT0)}')
    a(f'v_and_b32 {vr(vT1)}, 1, {vr(vT0)}')
    a(f'v_lshlrev_b32 {vr(S+4)}, 9, {vr(vT1)}')
    a(f'v_lshl_add_u32 {vr(S+4)}, {vr(v4KG)}, 2, {vr(S+4)}')
    a(f'v_add_u32 {vr(S+4)}, s{sT0}, {vr(S+4)}')
    a(f's_lshl_b32 s{sT0}, s{sWV}, 4')
    a(f'v_lshlrev_b32 {vr(S+5)}, 3, {vr(vT1)}')
    a(f'v_add_u32 {vr(S+5)}, s{sT0}, {vr(S+5)}')
    a(f'v_mov_b32 {vr(S+6)}, {vr(vMG)}')
    a(f'v_mov_b32 {vr(S+7)}, {vr(LACC)}')
    a(f's_mov_b64 exec, {sr(sQLT2,2)}')
    for t in range(8):
        a(f'ds_write_b128 {vr(S+4)}, {vr(O+4*t,4)} offset:{PART+64*t}')
    a(f'ds_write_b64 {vr(S+5)}, {vr(S+6,2)} offset:{PARTML}')
    a('s_mov_b64 exec, -1')
    a('s_waitcnt lgkmcnt(0)')
    a('s_barrier')
    stamp()

    def combine8(ob, mlb, tm, tf):
        maxtree([mlb + 2*n for n in range(8)], tm)
        for n in range(8):
            a(f'v_sub_f32 {vr(mlb+2*n)}, {vr(mlb+2*n)}, {vr(tm)}')
        for n in range(8):
            a(f'v_exp_f32 {vr(mlb+2*n)}, {vr(mlb+2*n)}')
        a.nop(1)
        for e in range(4):
            a(f'v_mul_f32 {vr(ob+e)}, {vr(ob+e)}, {vr(mlb)}')
        a(f'v_mul_f32 {vr(mlb+1)}, {vr(mlb+1)}, {vr(mlb)}')
        for n in range(1, 8):
            for e in range(4):
                a(f'v_fmac_f32 {vr(ob+e)}, {vr(ob+4*n+e)}, {vr(mlb+2*n)}')
            a(f'v_fmac_f32 {vr(mlb+1)}, {vr(mlb+2*n+1)}, {vr(mlb+2*n)}')

    RW = 7
    a(f's_cmp_eq_u32 s{sWV}, {RW}')
    a('s_cbranch_scc1 L_reduce')
    a('s_waitcnt vmcnt(4)')
    a('s_branch L_tileA')
    a.label('L_reduce')
    a(f'v_lshlrev_b32 {vr(vT1)}, 4, {vr(vT0)}')
    a(f'v_lshrrev_b32 {vr(vT2)}, 5, {vr(vT0)}')
    a(f'v_lshlrev_b32 {vr(vT2)}, 3, {vr(vT2)}')
    for n in range(8):
        a(f'ds_read_b128 {vr(O+4*n,4)}, {vr(vT1)} offset:{PART+1024*n}')
    for n in range(8):
        a(f'ds_read_b64 {vr(S+2*n,2)}, {vr(vT2)} offset:{PARTML+16*n}')
    a('s_waitcnt lgkmcnt(0)')
    combine8(O, S, vT2, None)
    a(f'v_mov_b32 {vr(S)}, {vr(vT2)}')
    a(f's_lshl_b32 s{sT0}, s{sC}, 11')
    a(f'v_lshlrev_b32 {vr(vT2)}, 3, {vr(vT0)}')
    a(f'buffer_store_dwordx4 {vr(O,4)}, {vr(vT1)}, {sr(sW,4)}, s{sT0} offen sc0 sc1')
    a(f'buffer_store_dwordx2 {vr(S,2)}, {vr(vT2)}, {sr(sW,4)}, s{sT0} offen offset:1024 sc0 sc1')
    a('s_waitcnt vmcnt(6)')
    a.label('L_tileA')
    stamp()

    def tile(tau):
        Q = QA if tau == 0 else QB
        nm = 'AB'[tau]
        for T in range(5):
            for ks in range(4):
                c = vr(S+4*T, 4)
                if ks == 0:
                    c = vr(BLO, 4) if T == 0 else vr(BHI, 4) if T == 4 else '0'
                a(f'v_mfma_f32_16x16x32_bf16 {vr(S+4*T,4)}, {vr(kf(tau+T,ks),4)}, {vr(Q+4*ks,4)}, {c}')
        for ks in range(4):
            c = '0' if ks == 0 else vr(S+20, 4)
            a(f'v_mfma_f32_16x16x32_bf16 {vr(S+20,4)}, {vr(KG+4*ks,4)}, {vr(Q+4*ks,4)}, {c}')
        buf0 = [kf(tau, n) for n in range(4)] + [Q + 4*n for n in range(4)]
        buf1 = ([kf(0, n) for n in range(4)] + [QA + 4*n for n in range(4)]) if tau == 1 else None
        def vread(dst, t, W):
            a(f'ds_read_b64_tr_b16 {vr(dst,2)}, {vr(VA+t)} offset:{4096*W}')
        for t in range(8):
            vread(VG+4*t, t, tau+4)
        for t in range(8):
            vread(buf0[t], t, tau+0)
            vread(buf0[t]+2, t, tau+1)
        if buf1:
            for t in range(8):
                vread(buf1[t], t, tau+2)
                vread(buf1[t]+2, t, tau+3)
        a(f's_sub_u32 s{sT0}, s{sQB}, {48 - 16*tau}')
        a(f's_cmp_lt_u32 s{sT0}, 1968')
        a(f's_cbranch_scc1 L_noedge{nm}')
        a(f's_sub_u32 s{sT0}, s{sQB}, {34 - 16*tau}')
        a(f'v_add_u32 {vr(O)}, s{sT0}, {vr(v4KG)}')
        for T in range(5):
            for r in range(4):
                a(f'v_add_u32 {vr(O+1)}, {16*T+r}, {vr(O)}')
                a(f'v_cmp_gt_u32 vcc, s{s2046}, {vr(O+1)}')
                a('s_nop 1')
                a(f'v_cndmask_b32 {vr(S+4*T+r)}, {vr(vNEG)}, {vr(S+4*T+r)}, vcc')
        a.label(f'L_noedge{nm}')
        for r in range(2):
            a(f'v_cndmask_b32 {vr(S+20+r)}, {vr(vNEG)}, {vr(S+20+r)}, {sr(sKG0,2)}')
        vals = [S + x for x in range(22)]
        m, m2 = vT0, vT1
        maxtree(vals[:11], m)
        maxtree(vals[11:], m2)
        a(f'v_max_f32 {vr(m)}, {vr(m)}, {vr(m2)}')
        xmax(m, m2)
        a(f'v_mul_f32 {vr(m)}, s{sCS}, {vr(m)}')
        expall(vals, m)
        a.nop(1)
        for n in range(11):
            a(f'v_cvt_pk_bf16_f32 {vr(S+n)}, {vr(S+2*n)}, {vr(S+2*n+1)}')
        a(f'v_mov_b32 {vr(S+11)}, 0')
        ONES, LACC = S + 12, S + 16
        for n in range(4):
            a(f'v_mov_b32 {vr(ONES+n)}, 0x3f803f80')
        P = lambda ks: vr(S + 4*ks, 4)
        a('s_waitcnt lgkmcnt(0)' if not buf1 else 's_waitcnt lgkmcnt(15)')
        if buf1: a('s_nop 0')
        for t in range(8):
            a(f'v_mfma_f32_16x16x32_bf16 {vr(O+4*t,4)}, {vr(VG+4*t,4)}, {P(2)}, 0')
        a(f'v_mfma_f32_16x16x32_bf16 {vr(LACC,4)}, {vr(ONES,4)}, {P(2)}, 0')
        for t in range(8):
            a(f'v_mfma_f32_16x16x32_bf16 {vr(O+4*t,4)}, {vr(buf0[t],4)}, {P(0)}, {vr(O+4*t,4)}')
            if not buf1:
                vread(buf0[t], t, tau+2)
                vread(buf0[t]+2, t, tau+3)
        a(f'v_mfma_f32_16x16x32_bf16 {vr(LACC,4)}, {vr(ONES,4)}, {P(0)}, {vr(LACC,4)}')
        a(f'v_mfma_f32_16x16x32_bf16 {vr(LACC,4)}, {vr(ONES,4)}, {P(1)}, {vr(LACC,4)}')
        b = buf1 or buf0
        for t in range(8):
            a(f's_waitcnt lgkmcnt({min(15, 14 - 2*t)})')
            a(f'v_mfma_f32_16x16x32_bf16 {vr(O+4*t,4)}, {vr(b[t],4)}, {P(1)}, {vr(O+4*t,4)}')
        a(f'v_rcp_f32 {vr(vT0)}, {vr(LACC)}')
        a.nop(1)
        for t in range(8):
            for e in range(4):
                a(f'v_mul_f32 {vr(O+4*t+e)}, {vr(O+4*t+e)}, {vr(vT0)}')
            a(f'v_cvt_pk_bf16_f32 {vr(O+4*t)}, {vr(O+4*t)}, {vr(O+4*t+1)}')
            a(f'v_cvt_pk_bf16_f32 {vr(O+4*t+1)}, {vr(O+4*t+2)}, {vr(O+4*t+3)}')
            a(f'ds_write_b64 {vr(vSW)}, {vr(O+4*t,2)} offset:{32*t}')
        for j in range(4):
            a(f'ds_read_b128 {vr(S+4*j,4)}, {vr(vSR)} offset:{4*STGP*j}')
        for j in range(4):
            a(f's_waitcnt lgkmcnt({3-j})')
            if tau == 0 and j == 0:
                a(f's_mov_b64 exec, {sr(sEX,2)}')
            a(f'buffer_store_dwordx4 {vr(S+4*j,4)}, {vr(vOO)}, {sr(sO,4)}, 0 offen offset:{1024*j} {stpol}')
            if tau == 0 and j == 0:
                a('s_mov_b64 exec, -1')
        if tau == 0:
            a(f'v_add_u32 {vr(vOO)}, 0x1000, {vr(vOO)}')
            stamp()
            a('s_waitcnt vmcnt(4)')
        stamp()

    tile(0)
    tile(1)

    if stamps:
        a('s_waitcnt vmcnt(0)')
        stamp()
    a(f's_cmp_lg_u32 s{sWV}, {RW}')
    a('s_cbranch_scc1 L_fin')
    a('s_waitcnt vmcnt(0)')
    a(f'v_mbcnt_lo_u32_b32 {vr(vT0)}, -1, 0')
    a(f'v_mbcnt_hi_u32_b32 {vr(vT0)}, -1, {vr(vT0)}')
    a(f's_lshl_b32 s{sT0}, s{sH}, 2')
    a(f'v_mov_b32 {vr(vT1)}, s{sT0}')
    a(f'v_mov_b32 {vr(vT2)}, 1')
    a('s_mov_b64 exec, 1')
    a(f'global_atomic_add {vr(O)}, {vr(vT1)}, {vr(vT2)}, s[16:17] sc0 sc1')
    a('s_mov_b64 exec, -1')
    a('s_waitcnt vmcnt(0)')
    a(f'v_readfirstlane_b32 s{sT0}, {vr(O)}')
    a('s_nop 1')
    a(f's_cmp_lg_u32 s{sT0}, 7')
    a('s_cbranch_scc1 L_fin')
    a(f'v_lshlrev_b32 {vr(vT1)}, 4, {vr(vT0)}')
    a(f'v_lshlrev_b32 {vr(vT2)}, 3, {vr(vT0)}')
    for n in range(8):
        a(f's_movk_i32 s{sT0}, {2048*n}')
        a(f'buffer_load_dwordx4 {vr(O+4*n,4)}, {vr(vT1)}, {sr(sW,4)}, s{sT0} offen sc0 sc1')
        a(f'buffer_load_dwordx2 {vr(S+2*n,2)}, {vr(vT2)}, {sr(sW,4)}, s{sT0} offen offset:1024 sc0 sc1')
    a('s_waitcnt vmcnt(0)')
    combine8(O, S, vT1, None)
    a(f'v_rcp_f32 {vr(vT1)}, {vr(S+1)}')
    a.nop(1)
    for e in range(4):
        a(f'v_mul_f32 {vr(O+e)}, {vr(O+e)}, {vr(vT1)}')
    a(f'v_cvt_pk_bf16_f32 {vr(O)}, {vr(O)}, {vr(O+1)}')
    a(f'v_cvt_pk_bf16_f32 {vr(O+1)}, {vr(O+2)}, {vr(O+3)}')
    a(f'buffer_store_dwordx2 {vr(O,2)}, {vr(vT2)}, {sr(sO,4)}, 0 offen')
    a.label('L_fin')
    if stamps:
        a('s_waitcnt vmcnt(0)')
        stamp()
        a(f's_lshl_b32 s{sT0}, s2, 3')
        a(f's_add_u32 s{sT0}, s{sT0}, s{sWV}')
        a(f's_lshl_b32 s{sT0}, s{sT0}, 6')
        a(f's_add_u32 s{sT0}, s{sT0}, 0x100000')
        a(f's_add_u32 s{sW}, s18, s{sT0}')
        a(f's_addc_u32 s{sW+1}, s19, 0')
        a(f'v_mov_b32 v1, 0')
        a('s_mov_b64 exec, 1')
        for n in range(nst[0]):
            a(f'v_mov_b32 v2, s{64+2*n}')
            a(f'buffer_store_dword v2, v1, {sr(sW,4)}, 0 offen offset:{4*n}')
        if 'leak' in opt:
            k = int(opt['leak'])
            a(f's_sub_u32 s{sT0}, s{64+2*k}, s64')
            a(f's_lshl_b32 s{sT0}, s{sT0}, 2')
            a(f"s_add_u32 s{sT0}, s{sT0}, {opt.get('spin', 5000)}")
            a.label('L_spin')
            a('s_memrealtime s[96:97]')
            a('s_waitcnt lgkmcnt(0)')
            a(f's_sub_u32 s{sT1}, s96, s64')
            a(f's_cmp_lt_u32 s{sT1}, s{sT0}')
            a('s_cbranch_scc1 L_spin')
    a.label('L_end')
    a('s_endpgm')

    check(a.lines)
    head = f'''; windowed + global-token attention, B=1 H=32 S=2048 D=128 bf16 (window 32, 2 global tokens)
; @launch grid=(256,1,1) block=(512,1,1) lds=163840
.amdgcn_target "amdgcn-amd-amdhsa--gfx950"
.text
.globl {NAME}
.p2align 8
.type {NAME},@function
{NAME}:
'''
    tail = f'''.section .rodata,"a"
.p2align 6
.amdhsa_kernel {NAME}
  .amdhsa_next_free_vgpr 256
  .amdhsa_next_free_sgpr 100
  .amdhsa_accum_offset 256
  .amdhsa_group_segment_fixed_size 0
  .amdhsa_kernarg_size 64
  .amdhsa_user_sgpr_count 2
  .amdhsa_user_sgpr_kernarg_segment_ptr 1
  .amdhsa_system_sgpr_workgroup_id_x 1
.end_amdhsa_kernel
'''
    return head + a.text() + tail

if __name__ == '__main__':
    out = sys.argv[1]
    opt = {}
    for kv in sys.argv[2:]:
        k, v = kv.split('=', 1)
        opt[k] = {'True': True, 'False': False}.get(v, v.replace('+', ' '))
    open(out, 'w').write(gen(opt))
```

```python
import sys, math, struct
from asmlib import *

NAME = 'standalone__global_local_windowed_global_tokens__prompt_kernel'
def f2u(x): return struct.unpack('<I', struct.pack('<f', x))[0]

def gen(opt):
    a = Asm()
    NEG = 0xFF000000
    CSC = f2u(128 ** -0.5 * math.log2(math.e))
    KOFF, VOFF, SOFF = 0, 73728, 155648
    PART, PARTML, STG = 0, 8192, 16384
    STGP = 272
    ldpol = opt.get('ldpol', '')
    qpol = opt.get('qpol', '')
    stpol = opt.get('stpol', 'nt')
    pk = opt.get('pk', False)
    flagmode = opt.get('flag', 'byte')
    RW = 7
    CW, CC = 2, 3
    sQ, sK, sV, sO, sW = 20, 24, 28, 32, 36
    sWV, sH, sC, sHO, sQ0B = 40, 43, 44, 45, 46
    sT0, sT1, sT2, sT3 = 47, 48, 49, 50
    sCS = 52
    sKG0 = 54
    sQB = 51
    sEX = 56
    sCMB = 58
    sCNT = 59
    VA = 0
    vSW, vSR, vOO, vT0 = 8, 9, 10, 11
    X8 = 12
    KF = 16
    KG = 112
    QA, QB = 128, 144
    VG = 160
    O = 192
    S = 224
    BLO, BHI = 248, 252
    kf = lambda W, ks: KF + 16 * W + 4 * ks
    X = [O + 4 * n for n in range(8)] + [X8]
    vLANE, vI, vKGp, vDK, vDV, vDQ, vAG, vNEG, vAK = O+16, O+17, O+18, O+19, O+20, O+21, O+22, O+23, O+24
    vAVG, t1, t2, t3 = O+28, O+29, O+30, O+31
    vDQk = VG + 7
    vFLAG = VG + 3

    stamps = opt.get('stamps', False)
    nst = [0]
    def stamp():
        if stamps:
            a(f's_memrealtime s[{64+2*nst[0]}:{65+2*nst[0]}]')
            if nst[0]: a('s_waitcnt lgkmcnt(0)')
            nst[0] += 1
    M16 = 'v_mfma_f32_16x16x32_bf16'
    def mfma(d, x, y, c):
        return f'{M16} {vr(d,4)}, {vr(x,4)}, {vr(y,4)}, {c if isinstance(c,str) else vr(c,4)}'

    stamp()
    a('s_load_dwordx16 s[4:19], s[0:1], 0')
    a('s_cmp_ge_u32 s2, 256')
    a('s_cbranch_scc1 L_end')
    a(f'v_lshrrev_b32 v1, 6, v0')
    a(f'v_and_b32 {vr(vLANE)}, 63, v0')
    a(f'v_readfirstlane_b32 s{sWV}, v1')
    a(f'v_and_b32 {vr(vI)}, 15, v0')
    a(f'v_bfe_u32 {vr(vKGp)}, v0, 4, 2')
    a('s_and_b32 s41, s2, 7')
    a('s_lshr_b32 s42, s2, 3')
    a(f's_lshr_b32 s{sH}, s42, 3')
    a(f's_lshl2_add_u32 s{sH}, s41, s{sH}')
    a(f's_and_b32 s{sC}, s42, 7')
    a(f's_lshl_b32 s{sHO}, s{sH}, 19')
    a(f's_lshl_b32 s{sQ0B}, s{sC}, 16')
    a(f's_and_b32 s{sT0}, s{sWV}, 3')
    a(f's_lshl_b32 s{sT0}, s{sT0}, 2')
    a(f's_lshl_b32 s{sT1}, s{sWV}, 10')
    a(f's_add_u32 s{sT2}, s{sT1}, s{sQ0B}')
    a(f'v_add_u32 {vr(vDK)}, s{sT0}, {vr(vKGp)}')
    a(f'v_xor_b32 {vr(vDK)}, {vr(vDK)}, {vr(vI)}')
    a(f'v_lshlrev_b32 {vr(vDK)}, 4, {vr(vDK)}')
    a(f'v_lshl_add_u32 {vr(vDK)}, {vr(vKGp)}, 8, {vr(vDK)}')
    a(f'v_add_u32 {vr(vDK)}, s{sT2}, {vr(vDK)}')
    a(f's_mov_b32 m0, s{sT1}')
    for s_ in (sK, sV, sQ):
        a(f's_mov_b32 s{s_+2}, 0x80000')
        a(f's_mov_b32 s{s_+3}, 0x20000')
    a(f's_mov_b32 s{sW+2}, 0x4000')
    a(f's_mov_b32 s{sW+3}, 0x20000')
    a(f's_lshl_b32 s{sT0}, s{sH}, 14')
    a('s_waitcnt lgkmcnt(0)')
    stamp()
    a(f's_add_u32 s{sK}, s6, s{sHO}')
    a(f's_addc_u32 s{sK+1}, s7, 0')
    a(f's_add_u32 s{sW}, s18, s{sT0}')
    a(f's_addc_u32 s{sW+1}, s19, 0')
    a(f's_cmp_lg_u32 s{sWV}, {RW}')
    a('s_cbranch_scc1 L_noclear')
    for n in range(4):
        a(f'v_mov_b32 {vr(S+n)}, -1')
    a(f's_lshl_b32 s{sT0}, s{sC}, 11')
    a(f'v_lshlrev_b32 {vr(t3)}, 4, {vr(vLANE)}')
    a(f'buffer_store_dwordx4 {vr(S,4)}, {vr(t3)}, {sr(sW,4)}, s{sT0} offen sc0 sc1')
    a('s_mov_b64 exec, 1')
    a(f'buffer_store_dwordx4 {vr(S,4)}, {vr(t3)}, {sr(sW,4)}, s{sT0} offen offset:1024 sc0 sc1')
    a('s_mov_b64 exec, -1')
    a.label('L_noclear')
    for i in range(9):
        if i:
            a('s_add_u32 m0, m0, 0x2000')
            a(f'v_add_u32 {vr(vDK)}, 0x2000, {vr(vDK)}')
        a(f'buffer_load_dwordx4 {vr(vDK)}, {sr(sK,4)}, 0 offen {ldpol} lds')
    a(f's_add_u32 s{sV}, s8, s{sHO}')
    a(f's_addc_u32 s{sV+1}, s9, 0')
    a(f's_add_u32 s{sQ}, s4, s{sHO}')
    a(f's_addc_u32 s{sQ+1}, s5, 0')
    a(f's_cmp_eq_u32 s{sC}, 0')
    a(f's_cselect_b32 s{sT3}, 0x40000000, 0')
    a(f's_lshl_b32 s{sT0}, s{sWV}, 13')
    a(f's_add_u32 s{sT0}, s{sT0}, s{sQ0B}')
    a(f'v_lshlrev_b32 {vr(vDQ)}, 4, {vr(vKGp)}')
    a(f'v_lshl_add_u32 {vr(vDQ)}, {vr(vI)}, 8, {vr(vDQ)}')
    a(f'v_add_u32 {vr(vDQ)}, s{sT0}, {vr(vDQ)}')
    a(f'v_lshlrev_b32 {vr(t3)}, 4, {vr(vLANE)}')
    a(f's_cmp_lg_u32 s{sWV}, 0')
    a('s_cbranch_scc1 L_nohalo')
    a(f's_sub_u32 s{sT0}, s{sT3}, 0x2000')
    a(f'v_add_u32 {vr(t1)}, s{sT0}, {vr(vDQ)}')
    a(f'v_add_u32 {vr(t2)}, 0x1000, {vr(t1)}')
    for T in range(2):
        for ks in range(4):
            a(f'buffer_load_dwordx4 {vr(kf(T,ks),4)}, {vr(t1+T)}, {sr(sK,4)}, 0 offen offset:{64*ks}')
    a.label('L_nohalo')
    a(f's_cmp_lg_u32 s{sWV}, 1')
    a('s_cbranch_scc1 L_nosmall')
    for n, srd in enumerate((sK, sQ, sV)):
        a(f's_mov_b32 m0, {SOFF + 1024*n}')
        a('s_nop 0')
        a(f'buffer_load_dwordx4 {vr(t3)}, {sr(srd,4)}, 0 offen lds')
    a.label('L_nosmall')
    a(f's_cmp_lg_u32 s{sWV}, {RW}')
    a('s_cbranch_scc1 L_noflagset')
    a('s_waitcnt vmcnt(9)')
    a('s_mov_b64 exec, 1')
    if flagmode == 'atomic':
        a(f's_lshl_b32 s{sT0}, s{sH}, 2')
        a(f'v_mov_b32 {vr(S+4)}, s{sT0}')
        a(f'v_mov_b32 {vr(S+5)}, 1')
        a(f'global_atomic_add {vr(S+4)}, {vr(S+5)}, s[16:17] sc1')
    else:
        a(f's_lshl3_add_u32 s{sT0}, s{sH}, s{sC}')
        a(f'v_mov_b32 {vr(S+4)}, s{sT0}')
        a(f'v_mov_b32 {vr(S+5)}, 1')
        a(f'global_store_byte {vr(S+4)}, {vr(S+5)}, s[16:17] sc0 sc1')
    a('s_mov_b64 exec, -1')
    a.label('L_noflagset')
    a(f's_and_b32 s{sT0}, s{sWV}, 1')
    a(f's_lshl_b32 s{sT0}, s{sT0}, 2')
    a(f'v_add_lshl_u32 {vr(vDV)}, s{sT0}, {vr(vKGp)}, 1')
    a(f'v_xor_b32 {vr(vDV)}, {vr(vDV)}, {vr(vI)}')
    a(f'v_lshlrev_b32 {vr(vDV)}, 4, {vr(vDV)}')
    a(f'v_lshl_add_u32 {vr(vDV)}, {vr(vKGp)}, 8, {vr(vDV)}')
    a(f's_sub_u32 s{sT2}, s{sT2}, 0x2000')
    a(f'v_add_u32 {vr(vDV)}, s{sT2}, {vr(vDV)}')
    a(f's_add_u32 m0, s{sT1}, {VOFF}')
    a(f'v_add_u32 {vr(t1)}, s{sT3}, {vr(vDV)}')
    a(f'buffer_load_dwordx4 {vr(t1)}, {sr(sV,4)}, 0 offen {ldpol} lds')
    for i in range(1, 10):
        a('s_add_u32 m0, m0, 0x2000')
        a(f'v_add_u32 {vr(vDV)}, 0x2000, {vr(vDV)}')
        a(f'buffer_load_dwordx4 {vr(vDV)}, {sr(sV,4)}, 0 offen {ldpol} lds')
    stamp()

    a(f's_add_u32 s{sO}, s14, s{sHO}')
    a(f's_addc_u32 s{sO+1}, s15, 0')
    a(f's_mov_b32 s{sO+2}, 0x80000')
    a(f's_mov_b32 s{sO+3}, 0x20000')
    a(f's_mov_b32 s{sCS}, 0x{CSC:08x}')
    a(f's_mov_b32 s{sCS+1}, 0x{CSC:08x}')
    a(f'v_mov_b32 {vr(vNEG)}, 0x{NEG:08x}')
    a(f'v_lshlrev_b32 {vr(t2)}, 2, {vr(vKGp)}')
    a(f'v_cmp_eq_u32 {sr(sKG0,2)}, 0, {vr(vKGp)}')
    for r in range(4):
        a(f'v_add_u32 {vr(t1)}, {r}, {vr(t2)}')
        a(f'v_cmp_ge_u32 vcc, {vr(t1)}, {vr(vI)}')
        a(f'v_cmp_le_u32 s[60:61], {vr(t1)}, {vr(vI)}')
        a('s_nop 0')
        a(f'v_cndmask_b32 {vr(BLO+r)}, {vr(vNEG)}, 0, vcc')
        a(f'v_cndmask_b32 {vr(BHI+r)}, {vr(vNEG)}, 0, s[60:61]')
    a(f's_lshl_b32 s{sT0}, s{sWV}, 13')
    a(f'v_xor_b32 {vr(t1)}, {vr(vKGp)}, {vr(vI)}')
    a(f'v_lshlrev_b32 {vr(t1)}, 4, {vr(t1)}')
    a(f'v_lshl_add_u32 {vr(t1)}, {vr(vI)}, 8, {vr(t1)}')
    a(f'v_add_u32 {vr(vAK)}, s{sT0}, {vr(t1)}')
    for ks in range(1, 4):
        a(f'v_xor_b32 {vr(vAK+ks)}, {64*ks}, {vr(vAK)}')
    a(f'v_and_b32 {vr(t1)}, 1, {vr(vI)}')
    a(f'v_lshlrev_b32 {vr(t1)}, 8, {vr(t1)}')
    a(f'v_lshl_add_u32 {vr(t1)}, {vr(vKGp)}, 4, {vr(t1)}')
    a(f'v_add_u32 {vr(vAG)}, {SOFF}, {vr(t1)}')
    a(f'v_bfe_u32 {vr(t1)}, {vr(vLANE)}, 2, 2')
    a(f'v_and_b32 {vr(t2)}, 3, {vr(vLANE)}')
    a(f'v_lshlrev_b32 {vr(t2)}, 3, {vr(t2)}')
    a(f'v_lshl_add_u32 {vr(t1)}, {vr(t1)}, 8, {vr(t2)}')
    a(f'v_add_u32 {vr(vAVG)}, {SOFF+2048}, {vr(t1)}')
    a(f'v_lshrrev_b32 {vr(t1)}, 2, {vr(vLANE)}')
    a(f'v_and_b32 {vr(vT0)}, 7, {vr(t1)}')
    a(f'v_lshl_add_u32 {vr(t2)}, {vr(vT0)}, 5, {vr(t2)}')
    a(f'v_lshl_add_u32 {vr(t2)}, {vr(t1)}, 8, {vr(t2)}')
    a(f's_add_u32 s{sT1}, s{sT0}, {VOFF}')
    a(f'v_add_u32 {vr(VA)}, s{sT1}, {vr(t2)}')
    for t in range(1, 8):
        a(f'v_xor_b32 {vr(VA+t)}, {32*t}, {vr(VA)}')
    a(f's_mul_i32 s{sT1}, s{sWV}, {16*STGP}')
    a(f's_add_u32 s{sT1}, s{sT1}, {STG}')
    a(f'v_mul_u32_u24 {vr(t1)}, {STGP}, {vr(vI)}')
    a(f'v_lshl_add_u32 {vr(t1)}, {vr(vKGp)}, 3, {vr(t1)}')
    a(f'v_add_u32 {vr(vSW)}, s{sT1}, {vr(t1)}')
    a(f'v_mul_u32_u24 {vr(t1)}, {STGP}, {vr(vKGp)}')
    a(f'v_lshl_add_u32 {vr(t1)}, {vr(vI)}, 4, {vr(t1)}')
    a(f'v_add_u32 {vr(vSR)}, s{sT1}, {vr(t1)}')
    a(f's_add_u32 s{sT0}, s{sT0}, s{sQ0B}')
    a(f'v_add_u32 {vr(vOO)}, s{sT0}, {vr(t3)}')
    a(f's_lshr_b32 s{sQB}, s{sT0}, 8')
    a(f's_cmp_eq_u32 s{sQB}, 0')
    a(f's_cselect_b32 s{sEX}, 0, -1')
    a(f's_mov_b32 s{sEX+1}, -1')
    a(f's_cmp_eq_u32 s{sQB}, {256*CC+32*CW}')
    a(f's_cselect_b32 s{sCMB}, 1, 0')

    a('s_waitcnt vmcnt(11)')
    a(f's_cmp_eq_u32 s{sWV}, {RW}')
    a('s_cbranch_scc1 L_kw')
    a('s_waitcnt vmcnt(10)')
    a.label('L_kw')
    a('s_barrier')
    stamp()
    QG = O
    for ks in range(4):
        a(f'ds_read_b128 {vr(QG+4*ks,4)}, {vr(vAG)} offset:{1024+64*ks}')
    for W in (2, 3):
        for ks in range(4):
            a(f'ds_read_b128 {vr(kf(W,ks),4)}, {vr(vAK+ks)} offset:{4096*(W-2)}')
    for ks in range(4):
        a(f'ds_read_b128 {vr(KG+4*ks,4)}, {vr(vAG)} offset:{64*ks}')
    for W in (4, 5):
        for ks in range(4):
            a(f'ds_read_b128 {vr(kf(W,ks),4)}, {vr(vAK+ks)} offset:{4096*(W-2)}')
    a('s_waitcnt lgkmcnt(12)')
    for T in range(2):
        for ks in range(4):
            a(mfma(S+4*T, kf(2+T,ks), QG+4*ks, '0' if ks == 0 else S+4*T))
    for t in range(8):
        a(f'ds_read_b64_tr_b16 {vr(VG+4*t+2,2)}, {vr(vAVG)} offset:{32*t}')
    a(f's_cmp_eq_u32 s{sWV}, 0')
    a('s_cbranch_scc1 L_k01done')
    for ks in range(4):
        a(f'v_subrev_u32 {vr(vAK+ks)}, 0x2000, {vr(vAK+ks)}')
    for W in (0, 1):
        for ks in range(4):
            a(f'ds_read_b128 {vr(kf(W,ks),4)}, {vr(vAK+ks)} offset:{4096*W}')
    a.label('L_k01done')

    def xmax(m, t):
        a(f'v_mov_b32 {vr(t)}, {vr(m)}')
        a.nop(2)
        a(f'v_permlane16_swap_b32 {vr(m)}, {vr(t)}')
        a(f'v_max_f32 {vr(m)}, {vr(m)}, {vr(t)}')
        a(f'v_mov_b32 {vr(t)}, {vr(m)}')
        a.nop(2)
        a(f'v_permlane32_swap_b32 {vr(m)}, {vr(t)}')
        a(f'v_max_f32 {vr(m)}, {vr(m)}, {vr(t)}')

    def maxtree_l(vals, m, first=True):
        out = []
        rest = list(vals)
        if first:
            out.append(f'v_max3_f32 {vr(m)}, {vr(rest[0])}, {vr(rest[1])}, {vr(rest[2])}')
            rest = rest[3:]
        while len(rest) >= 2:
            out.append(f'v_max3_f32 {vr(m)}, {vr(m)}, {vr(rest[0])}, {vr(rest[1])}')
            rest = rest[2:]
        if rest:
            out.append(f'v_max_f32 {vr(m)}, {vr(m)}, {vr(rest[0])}')
        return out

    def fma_l(vals, mc):
        if pk:
            return [f'v_pk_fma_f32 {vr(vals[n],2)}, {vr(vals[n],2)}, {sr(sCS,2)}, {vr(mc,2)} op_sel_hi:[1,1,0] neg_lo:[0,0,1] neg_hi:[0,0,1]' for n in range(0, len(vals), 2)]
        return [f'v_fma_f32 {vr(v)}, {vr(v)}, s{sCS}, -{vr(mc)}' for v in vals]
    exp_l = lambda vals: [f'v_exp_f32 {vr(v)}, {vr(v)}' for v in vals]
    cvt_l = lambda dst, src, n: [f'v_cvt_pk_bf16_f32 {vr(dst+k)}, {vr(src+2*k)}, {vr(src+2*k+1)}' for k in range(n)]

    vM, vT = S + 22, S + 23
    for l in maxtree_l([S+x for x in range(8)], vM): a(l)
    xmax(vM, vT)
    a(f'v_mul_f32 {vr(vM)}, s{sCS}, {vr(vM)}')
    for l in fma_l([S+x for x in range(8)], vM): a(l)
    for l in exp_l([S+x for x in range(8)]): a(l)
    a(f'v_mov_b32 {vr(vT0)}, {vr(vM)}')
    for l in cvt_l(S, S, 4): a(l)
    for n in range(4):
        a(f'v_mov_b32 {vr(S+4+n)}, 0x3f803f80')
    for ks in range(4):
        a(f'buffer_load_dwordx4 {vr(QA+4*ks,4)}, {vr(vDQ)}, {sr(sQ,4)}, 0 offen offset:{64*ks} {qpol}')
    a('s_waitcnt lgkmcnt(0)')
    a(f'v_add_u32 {vr(vDQk)}, 0x1000, {vr(vDQ)}')
    a('s_waitcnt vmcnt(4)')
    a('s_barrier')
    stamp()
    gb = [QB + 4*n for n in range(4)] + [S + 8 + 4*n for n in range(4)]
    for t in range(8):
        a(f'ds_read_b64_tr_b16 {vr(gb[t],2)}, {vr(VA+t)} offset:{4096*2}')
        a(f'ds_read_b64_tr_b16 {vr(gb[t]+2,2)}, {vr(VA+t)} offset:{4096*3}')
    a(mfma(X8, S, S+4, '0'))
    for t in range(8):
        a(f's_waitcnt lgkmcnt({14-2*t})')
        a(mfma(O+4*t, S, gb[t], '0'))
    a(f'v_mbcnt_lo_u32_b32 {vr(S+7)}, -1, 0')
    a(f's_lshl_b32 s{sT0}, s{sWV}, 10')
    a(f's_lshl_b32 s{sT1}, s{sWV}, 4')
    a(f'v_lshl_add_u32 {vr(S+4)}, {vr(S+7)}, 3, s{sT0}')
    a(f'v_and_b32 {vr(S+5)}, 1, {vr(S+7)}')
    a(f'v_lshl_add_u32 {vr(S+5)}, {vr(S+5)}, 2, s{sT1}')
    a(f'v_mov_b32 {vr(S+6)}, s{sT1}')
    a('s_mov_b64 exec, 0xffff')
    a(f'ds_write_b32 {vr(S+5)}, {vr(vT0)} offset:{PARTML}')
    a(f'ds_write_b64 {vr(S+6)}, {vr(X8,2)} offset:{PARTML+8}')
    for t in range(8):
        a(f'ds_write_b64 {vr(S+4)}, {vr(O+4*t,2)} offset:{PART+128*t}')
    a('s_mov_b64 exec, -1')
    a('s_waitcnt lgkmcnt(0)')
    a('s_barrier')
    stamp()

    def combine8(og, mg, tm):
        for e in range(2):
            for l in maxtree_l([mg[n]+e for n in range(8)], tm+e): a(l)
        for n in range(8):
            for e in range(2):
                a(f'v_sub_f32 {vr(mg[n]+e)}, {vr(mg[n]+e)}, {vr(tm+e)}')
        for n in range(8):
            for e in range(2):
                a(f'v_exp_f32 {vr(mg[n]+e)}, {vr(mg[n]+e)}')
        a.nop(1)
        a(f'v_pk_mul_f32 {vr(og[0],2)}, {vr(og[0],2)}, {vr(mg[0],2)}')
        a(f'v_pk_mul_f32 {vr(og[0]+2,2)}, {vr(og[0]+2,2)}, {vr(mg[0],2)}')
        a(f'v_pk_mul_f32 {vr(mg[0]+2,2)}, {vr(mg[0]+2,2)}, {vr(mg[0],2)}')
        for n in range(1, 8):
            a(f'v_pk_fma_f32 {vr(og[0],2)}, {vr(og[n],2)}, {vr(mg[n],2)}, {vr(og[0],2)}')
            a(f'v_pk_fma_f32 {vr(og[0]+2,2)}, {vr(og[n]+2,2)}, {vr(mg[n],2)}, {vr(og[0]+2,2)}')
            a(f'v_pk_fma_f32 {vr(mg[0]+2,2)}, {vr(mg[n]+2,2)}, {vr(mg[n],2)}, {vr(mg[0]+2,2)}')

    def issue_qb():
        for ks in range(4):
            a(f'buffer_load_dwordx4 {vr(QB+4*ks,4)}, {vr(vDQk)}, {sr(sQ,4)}, 0 offen offset:{64*ks} {qpol}')
        a(f'v_mov_b32 {vr(vDQk)}, 0')
    def vread(dst, t, W):
        return f'ds_read_b64_tr_b16 {vr(dst,2)}, {vr(VA+t)} offset:{4096*W}'
    def prefetch_a():
        for t in range(8):
            a(vread(X[t+1], t, 0)); a(vread(X[t+1]+2, t, 1))
        for t in range(8):
            a(vread(VG+4*t, t, 4))

    def flag_load():
        if flagmode == 'atomic':
            a(f's_lshl_b32 s{sT0}, s{sH}, 2')
            a(f'v_mov_b32 {vr(vT0)}, s{sT0}')
            a(f'global_load_dword {vr(vFLAG)}, {vr(vT0)}, s[16:17] sc0 sc1')
        else:
            a(f's_lshl_b32 s{sT0}, s{sH}, 3')
            a(f'v_mbcnt_lo_u32_b32 {vr(vT0)}, -1, 0')
            a(f'v_and_or_b32 {vr(vT0)}, {vr(vT0)}, 7, s{sT0}')
            a(f'global_load_ubyte {vr(vFLAG)}, {vr(vT0)}, s[16:17] sc0 sc1')
    def flag_test():
        a(f'v_cmp_eq_u32 vcc, {8 if flagmode == "atomic" else 1}, {vr(vFLAG)}')
        a('s_nop 1')
        a('s_cmp_eq_u64 vcc, exec')
    a(f's_cmp_eq_u32 s{sWV}, {RW}')
    a('s_cbranch_scc1 L_reduce')
    issue_qb()
    prefetch_a()
    a('s_waitcnt vmcnt(4) lgkmcnt(0)')
    a('s_branch L_tileA')
    a.label('L_reduce')
    og = [O + 4*n for n in range(8)]
    mg = [S + 4*n for n in range(6)] + [QB, QB+4]
    a(f'v_mbcnt_hi_u32_b32 {vr(vT0)}, -1, {vr(S+7)}')
    a(f'v_lshlrev_b32 {vr(vT0)}, 4, {vr(vT0)}')
    a(f'v_mov_b32 {vr(X8)}, {PARTML}')
    for n in range(8):
        a(f'ds_read_b128 {vr(mg[n],4)}, {vr(X8)} offset:{16*n}')
    for n in range(8):
        a(f'ds_read_b128 {vr(og[n],4)}, {vr(vT0)} offset:{PART+1024*n}')
    a('s_waitcnt lgkmcnt(0)')
    combine8(og, mg, X8)
    a(f'v_min_u32 {vr(S)}, -2, {vr(X8)}')
    a(f'v_min_u32 {vr(S+1)}, -2, {vr(X8+1)}')
    a(f'v_min_u32 {vr(S+2)}, -2, {vr(S+2)}')
    a(f'v_min_u32 {vr(S+3)}, -2, {vr(S+3)}')
    for e in range(4):
        a(f'v_min_u32 {vr(O+e)}, -2, {vr(O+e)}')
    a(f's_lshl_b32 s{sT0}, s{sC}, 11')
    a(f'buffer_store_dwordx4 {vr(O,4)}, {vr(vT0)}, {sr(sW,4)}, s{sT0} offen sc0 sc1')
    a('s_mov_b64 exec, 1')
    a(f'buffer_store_dwordx4 {vr(S,4)}, {vr(vT0)}, {sr(sW,4)}, s{sT0} offen offset:1024 sc0 sc1')
    a('s_mov_b64 exec, -1')
    issue_qb()
    prefetch_a()
    a('s_waitcnt vmcnt(6) lgkmcnt(0)')
    a.label('L_tileA')
    stamp()
    a(f's_cmp_eq_u32 s{sCMB}, 0')
    a('s_cbranch_scc1 L_noflag')
    flag_load()
    a.label('L_noflag')

    def inter(ms, vs, per=2):
        vs = list(vs)
        for m in ms:
            a(m)
            for _ in range(per):
                if vs: a(vs.pop(0))
        for v in vs: a(v)

    HB = kf(2, 0)
    def tile(tau):
        Q = QA if tau == 0 else QB
        nm = 'AB'[tau]
        buf = [kf(0, n) for n in range(4)] + [QA + 4*n for n in range(4)]
        def qk(T):
            if T == 'G':
                return [mfma(S+20, KG+4*ks, Q+4*ks, '0' if ks == 0 else S+20) for ks in range(4)]
            c0 = BLO if T == 0 else BHI if T == 4 else '0'
            return [mfma(S+4*T, kf(tau+T,ks), Q+4*ks, c0 if ks == 0 else S+4*T) for ks in range(4)]
        late = []
        if tau == 0:
            for t in range(8):
                late += [vread(buf[t], t, 2), vread(buf[t]+2, t, 3)]
        m = vM
        a(f's_sub_u32 s{sT0}, s{sQB}, {48 - 16*tau}')
        a(f's_cmp_lt_u32 s{sT0}, 1968')
        a(f's_cbranch_scc1 L_fast{nm}')
        for T in ('G', 0, 1, 2, 3, 4):
            for l in qk(T): a(l)
        for l in late: a(l)
        a(f'v_mbcnt_lo_u32_b32 {vr(vT0)}, -1, 0')
        a(f'v_mbcnt_hi_u32_b32 {vr(vT0)}, -1, {vr(vT0)}')
        a(f'v_lshrrev_b32 {vr(vT0)}, 4, {vr(vT0)}')
        a(f's_sub_u32 s{sT0}, s{sQB}, {34 - 16*tau}')
        a(f's_movk_i32 s{sT1}, 2046')
        a(f'v_lshl_add_u32 {vr(vT0)}, {vr(vT0)}, 2, s{sT0}')
        a(f'v_mov_b32 {vr(vM)}, 0x{NEG:08x}')
        a('s_nop 1')
        for T in range(5):
            for r in range(4):
                a(f'v_add_u32 {vr(vT)}, {16*T+r}, {vr(vT0)}')
                a(f'v_cmp_gt_u32 vcc, s{sT1}, {vr(vT)}')
                a('s_nop 1')
                a(f'v_cndmask_b32 {vr(S+4*T+r)}, {vr(vM)}, {vr(S+4*T+r)}, vcc')
        for l in maxtree_l([S+x for x in range(22)], m): a(l)
        a(f's_branch L_join{nm}')
        a.label(f'L_fast{nm}')
        for T in ('G', 0, 1, 2):
            for l in qk(T): a(l)
        mx = maxtree_l([S+20, S+21, S+0], m) + maxtree_l([S+1, S+2], m, False)
        inter(qk(3), [mx[0], mx[1]], per=1)
        mx = maxtree_l([S+3, S+4, S+5, S+6, S+7, S+8], m, False)
        inter(qk(4), mx, per=1)
        fill = late[:]
        mx = maxtree_l([S+9, S+10, S+11, S+12], m, False)
        for l in fill[:2]: a(l)
        for l in mx: a(l)
        for l in fill[2:5]: a(l)
        for l in maxtree_l([S+13, S+14, S+15], m, False): a(l)
        if fill:
            for l in fill[5:]: a(l)
        else:
            a.nop(4)
        for l in maxtree_l([S+16, S+17, S+18, S+19], m, False): a(l)
        a.label(f'L_join{nm}')
        if tau == 1:
            a(f's_cmp_eq_u32 s{sCMB}, 0')
            a('s_cbranch_scc1 L_nohand')
            a(f's_mov_b32 s{sCNT}, 0')
            flag_test()
            a('s_cbranch_scc1 L_flagok')
            a.label('L_flagspin')
            flag_load()
            a('s_waitcnt vmcnt(0)')
            a(f's_add_u32 s{sCNT}, s{sCNT}, 1')
            flag_test()
            a('s_cbranch_scc1 L_flagok')
            a(f's_cmp_lt_u32 s{sCNT}, 0x100000')
            a('s_cbranch_scc1 L_flagspin')
            a.label('L_flagok')
            hand_loads()
            a.label('L_nohand')
        if opt.get('fine'): stamp()
        xmax(m, vT)
        a(f'v_mul_f32 {vr(m)}, s{sCS}, {vr(m)}')
        set0 = [S+x for x in range(8)]; set1 = [S+8+x for x in range(8)]; set2 = [S+16+x for x in range(6)]
        for l in fma_l(set0, m): a(l)
        for l in exp_l(set0): a(l)
        f2 = fma_l(set2, m)
        a(f2[0])
        for l in cvt_l(S, S, 4): a(l)
        a(f2[1]); a(f2[2])
        ONES, LACC = S+4, S+20
        v2 = f2[3:] + exp_l(set2) + [f'v_mov_b32 {vr(ONES+n)}, 0x3f803f80' for n in range(4)] + cvt_l(S+16, S+16, 3) \
             + [f'v_mov_b32 {vr(S+19)}, 0', f'v_cndmask_b32 {vr(S+18)}, 0, {vr(S+18)}, {sr(sKG0,2)}']
        f1 = fma_l(set1, m)
        inter([mfma(X[t], X[t+1], S, '0') for t in range(8)], v2 + f1[:2])
        v1 = f1[2:] + exp_l(set1) + [f'v_mov_b32 {vr(vT0)}, {vr(vT0)}'] + cvt_l(S+8, S+8, 4)
        ms = [mfma(O+4*t, VG+4*t, S+16, O+4*t) for t in range(8)]
        inter(ms, v1)
        a(mfma(LACC, ONES, S, '0'))
        a(mfma(LACC, ONES, S+16, LACC))
        a(mfma(LACC, ONES, S+8, LACC))
        if tau == 0: a('s_waitcnt lgkmcnt(0)')
        def epi(t):
            if pk:
                l = [f'v_pk_mul_f32 {vr(O+4*t+e,2)}, {vr(O+4*t+e,2)}, {vr(vM,2)} op_sel_hi:[1,0]' for e in (0, 2)]
            else:
                l = [f'v_mul_f32 {vr(O+4*t+e)}, {vr(O+4*t+e)}, {vr(vM)}' for e in range(4)]
            l += [f'v_cvt_pk_bf16_f32 {vr(O+4*t)}, {vr(O+4*t)}, {vr(O+4*t+1)}',
                  f'v_cvt_pk_bf16_f32 {vr(O+4*t+1)}, {vr(O+4*t+2)}, {vr(O+4*t+3)}',
                  f'ds_write_b64 {vr(vSW)}, {vr(O+4*t,2)} offset:{32*t}']
            return l
        ms = [mfma(O+4*t, buf[t], S+8, O+4*t) for t in range(8)]
        for l in ms: a(l)
        a(f'v_rcp_f32 {vr(vT0)}, {vr(LACC)}')
        a('s_nop 0')
        a(f'v_mov_b32 {vr(vM)}, {vr(vT0)}')
        for t in range(8):
            for l in epi(t): a(l)
        for j in range(4):
            a(f'ds_read_b128 {vr(S+4*j,4)}, {vr(vSR)} offset:{4*STGP*j}')
        if tau == 0:
            for t in range(8): a(vread(VG+4*t, t, 5))
        if opt.get('fine'): stamp()
        for j in range(4):
            a(f's_waitcnt lgkmcnt({3-j + (8 if tau == 0 else 0)})')
            if tau == 0 and j == 0:
                a(f's_mov_b64 exec, {sr(sEX,2)}')
            a(f'buffer_store_dwordx4 {vr(S+4*j,4)}, {vr(vOO)}, {sr(sO,4)}, 0 offen offset:{1024*j} {stpol}')
            if tau == 0 and j == 0:
                a('s_mov_b64 exec, -1')
        if opt.get('fine') and tau == 0: stamp()
        if tau == 0:
            for t in range(8):
                a(vread(X[t+1], t, 1)); a(vread(X[t+1]+2, t, 2))
            for t in range(8):
                a(vread(buf[t], t, 3)); a(vread(buf[t]+2, t, 4))
            a(f'v_add_u32 {vr(vOO)}, 0x1000, {vr(vOO)}')
            stamp()
            a('s_waitcnt vmcnt(4) lgkmcnt(0)')
        stamp()

    hog = [HB + 4*n for n in range(8)]
    hmg = [HB + 32 + 4*n for n in range(8)]
    def hand_loads():
        a(f'v_mbcnt_lo_u32_b32 {vr(KG)}, -1, 0')
        a(f'v_mbcnt_hi_u32_b32 {vr(KG)}, -1, {vr(KG)}')
        a(f'v_lshlrev_b32 {vr(KG)}, 4, {vr(KG)}')
        a(f'v_mov_b32 {vr(KG+1)}, 0')
        for n in range(8):
            a(f's_movk_i32 s{sT0}, {2048*n}')
            a(f'buffer_load_dwordx4 {vr(hog[n],4)}, {vr(KG)}, {sr(sW,4)}, s{sT0} offen sc0 sc1')
            a(f'buffer_load_dwordx4 {vr(hmg[n],4)}, {vr(KG+1)}, {sr(sW,4)}, s{sT0} offen offset:1024 sc0 sc1')

    tile(0)
    tile(1)

    a(f's_cmp_eq_u32 s{sCMB}, 0')
    a('s_cbranch_scc1 L_fin')
    a('s_waitcnt vmcnt(4)')
    a(f's_mov_b32 s{sCNT}, 0')
    a.label('L_chk')
    a(f'v_max3_u32 {vr(vT0)}, {vr(HB)}, {vr(HB+1)}, {vr(HB+2)}')
    for n in range(3, 63, 2):
        a(f'v_max3_u32 {vr(vT0)}, {vr(vT0)}, {vr(HB+n)}, {vr(HB+n+1)}')
    a(f'v_max_u32 {vr(vT0)}, {vr(vT0)}, {vr(HB+63)}')
    a(f'v_cmp_eq_u32 vcc, -1, {vr(vT0)}')
    a(f's_add_u32 s{sCNT}, s{sCNT}, 1')
    a('s_nop 3')
    a('s_cbranch_vccz L_ready')
    a(f's_cmp_ge_u32 s{sCNT}, 0x40000')
    a('s_cbranch_scc1 L_ready')
    hand_loads()
    a('s_waitcnt vmcnt(0)')
    a('s_branch L_chk')
    a.label('L_ready')
    combine8(hog, hmg, X8)
    a(f'v_rcp_f32 {vr(X8)}, {vr(hmg[0]+2)}')
    a(f'v_rcp_f32 {vr(X8+1)}, {vr(hmg[0]+3)}')
    a(f'v_lshrrev_b32 {vr(KG)}, 2, {vr(KG)}')
    a(f'v_pk_mul_f32 {vr(HB,2)}, {vr(HB,2)}, {vr(X8,2)}')
    a(f'v_pk_mul_f32 {vr(HB+2,2)}, {vr(HB+2,2)}, {vr(X8,2)}')
    a(f'v_cvt_pk_bf16_f32 {vr(X8+2)}, {vr(HB)}, {vr(HB+2)}')
    a(f'v_cvt_pk_bf16_f32 {vr(X8+3)}, {vr(HB+1)}, {vr(HB+3)}')
    a(f'buffer_store_dword {vr(X8+2)}, {vr(KG)}, {sr(sO,4)}, 0 offen {stpol}')
    a(f'buffer_store_dword {vr(X8+3)}, {vr(KG)}, {sr(sO,4)}, 0 offen offset:256 {stpol}')
    a.label('L_fin')
    if stamps:
        if not opt.get('fine'): stamp()
        a('s_waitcnt vmcnt(0)')
        stamp()
        a(f's_lshl_b32 s{sT0}, s2, 3')
        a(f's_add_u32 s{sT0}, s{sT0}, s{sWV}')
        a(f's_lshl_b32 s{sT0}, s{sT0}, 6')
        a(f's_add_u32 s{sT0}, s{sT0}, 0x100000')
        a(f's_add_u32 s{sW}, s18, s{sT0}')
        a(f's_addc_u32 s{sW+1}, s19, 0')
        a(f'v_mov_b32 v1, 0')
        a('s_mov_b64 exec, 1')
        for n in range(nst[0]):
            a(f'v_mov_b32 v2, s{64+2*n}')
            a(f'buffer_store_dword v2, v1, {sr(sW,4)}, 0 offen offset:{4*n}')
        if 'leak' in opt:
            k = int(opt['leak'])
            a(f's_sub_u32 s{sT0}, s{64+2*k}, s64')
            a(f's_lshl_b32 s{sT0}, s{sT0}, 2')
            a(f"s_add_u32 s{sT0}, s{sT0}, {opt.get('spin', 5000)}")
            a.label('L_spin')
            a('s_memrealtime s[98:99]')
            a('s_waitcnt lgkmcnt(0)')
            a(f's_sub_u32 s{sT1}, s98, s64')
            a(f's_cmp_lt_u32 s{sT1}, s{sT0}')
            a('s_cbranch_scc1 L_spin')
    a.label('L_end')
    a('s_endpgm')

    check(a.lines)
    head = f'''; windowed + global-token attention, B=1 H=32 S=2048 D=128 bf16 (window 32, 2 global tokens)
; @launch grid=(256,1,1) block=(512,1,1) lds=163840
.amdgcn_target "amdgcn-amd-amdhsa--gfx950"
.text
.globl {NAME}
.p2align 8
.type {NAME},@function
{NAME}:
'''
    tail = f'''.section .rodata,"a"
.p2align 6
.amdhsa_kernel {NAME}
  .amdhsa_next_free_vgpr 256
  .amdhsa_next_free_sgpr {100 if stamps else 64}
  .amdhsa_accum_offset 256
  .amdhsa_group_segment_fixed_size 0
  .amdhsa_kernarg_size 64
  .amdhsa_user_sgpr_count 2
  .amdhsa_user_sgpr_kernarg_segment_ptr 1
  .amdhsa_system_sgpr_workgroup_id_x 1
.end_amdhsa_kernel
'''
    return head + a.text() + tail

if __name__ == '__main__':
    out = sys.argv[1]
    opt = {}
    for kv in sys.argv[2:]:
        k, v = kv.split('=', 1)
        opt[k] = {'True': True, 'False': False}.get(v, v.replace('+', ' '))
    open(out, 'w').write(gen(opt))
```

```python
import sys, math, struct
from asmlib import *

NAME = 'standalone__global_local_windowed_global_tokens__prompt_kernel'
def f2u(x): return struct.unpack('<I', struct.pack('<f', x))[0]

def gen(opt):
    a = Asm()
    NEG = 0xFF000000
    CSC = f2u(128 ** -0.5 * math.log2(math.e))
    KOFF, VOFF, SOFF = 0, 73728, 155648
    PART, PARTML, STG = 0, 8192, 16384
    STGP = 272
    ldpol = opt.get('ldpol', '')
    qpol = opt.get('qpol', '')
    stpol = opt.get('stpol', 'nt')
    pk = opt.get('pk', False)
    flagmode = opt.get('flag', 'byte')
    RW = 7
    CW, CC = 2, 3
    sQ, sK, sV, sO, sW = 20, 24, 28, 32, 36
    sWV, sH, sC, sHO, sQ0B = 40, 43, 44, 45, 46
    sT0, sT1, sT2, sT3 = 47, 48, 49, 50
    sCS = 52
    sKG0 = 54
    sQB = 51
    sEX = 56
    sCMB = 58
    sCNT = 59
    VA = 0
    vSW, vSR, vOO, vT0 = 8, 9, 10, 11
    X8 = 12
    KF = 16
    KG = 112
    QA, QB = 128, 144
    VG = 160
    O = 192
    S = 224
    BLO, BHI = 248, 252
    kf = lambda W, ks: KF + 16 * W + 4 * ks
    X = [O + 4 * n for n in range(8)] + [X8]
    vLANE, vI, vKGp, vDK, vDV, vDQ, vAG, vNEG, vAK = O+16, O+17, O+18, O+19, O+20, O+21, O+22, O+23, O+24
    vAVG, t1, t2, t3 = O+28, O+29, O+30, O+31
    vDQk = VG + 7
    vFLAG = VG + 3

    stamps = opt.get('stamps', False)
    nst = [0]
    def stamp():
        if stamps:
            a(f's_memrealtime s[{64+2*nst[0]}:{65+2*nst[0]}]')
            if nst[0]: a('s_waitcnt lgkmcnt(0)')
            nst[0] += 1
    M16 = 'v_mfma_f32_16x16x32_bf16'
    def mfma(d, x, y, c):
        return f'{M16} {vr(d,4)}, {vr(x,4)}, {vr(y,4)}, {c if isinstance(c,str) else vr(c,4)}'

    clr = opt.get('clr', 'late')
    def emit_clear():
        a(f's_cmp_lg_u32 s{sWV}, {RW}')
        a('s_cbranch_scc1 L_noclear')
        for n in range(4):
            a(f'v_mov_b32 {vr(S+n)}, -1')
        a(f's_lshl_b32 s{sT0}, s{sC}, 11')
        a(f'v_lshlrev_b32 {vr(t3)}, 4, {vr(vLANE)}')
        a(f'buffer_store_dwordx4 {vr(S,4)}, {vr(t3)}, {sr(sW,4)}, s{sT0} offen sc0 sc1')
        a('s_mov_b64 exec, 1')
        a(f'buffer_store_dwordx4 {vr(S,4)}, {vr(t3)}, {sr(sW,4)}, s{sT0} offen offset:1024 sc0 sc1')
        a('s_mov_b64 exec, -1')
        a.label('L_noclear')
    def emit_flag(wait, r):
        a(f's_cmp_lg_u32 s{sWV}, {RW}')
        a('s_cbranch_scc1 L_noflagset')
        if wait: a('s_waitcnt vmcnt(9)')
        a('s_mov_b64 exec, 1')
        if flagmode == 'atomic':
            a(f's_lshl_b32 s{sT0}, s{sH}, 2')
            a(f'v_mov_b32 {vr(r)}, s{sT0}')
            a(f'v_mov_b32 {vr(r+1)}, 1')
            a(f'global_atomic_add {vr(r)}, {vr(r+1)}, s[16:17] sc1')
        else:
            a(f's_lshl3_add_u32 s{sT0}, s{sH}, s{sC}')
            a(f'v_mov_b32 {vr(r)}, s{sT0}')
            a(f'v_mov_b32 {vr(r+1)}, 1')
            a(f'global_store_byte {vr(r)}, {vr(r+1)}, s[16:17] sc0 sc1')
        a('s_mov_b64 exec, -1')
        a.label('L_noflagset')
    def emit_touch():
        a(f's_cmp_lg_u32 s{sWV}, 3')
        a('s_cbranch_scc1 L_notouch')
        a(f's_add_u32 s{sT0}, s{sHO}, s{sQ0B}')
        a(f'v_mov_b32 {vr(S+8)}, s{sT0}')
        a(f'v_mov_b32 {vr(S+9)}, 0')
        a('s_mov_b64 exec, 1')
        a(f'global_load_dword {vr(S+10)}, {vr(S+8)}, s[8:9]')
        a(f'global_load_dword {vr(S+11)}, {vr(S+8)}, s[4:5]')
        a(f'global_load_dword {vr(S+12)}, {vr(S+8)}, s[14:15]')
        a(f'global_load_dword {vr(S+13)}, {vr(S+9)}, s[16:17]')
        a(f'global_load_dword {vr(S+14)}, {vr(S+9)}, s[{sW}:{sW+1}]')
        a('s_mov_b64 exec, -1')
        a.label('L_notouch')
    stamp()
    a('s_load_dwordx16 s[4:19], s[0:1], 0')
    a('s_cmp_ge_u32 s2, 256')
    a('s_cbranch_scc1 L_end')
    a(f'v_lshrrev_b32 v1, 6, v0')
    a(f'v_and_b32 {vr(vLANE)}, 63, v0')
    a(f'v_readfirstlane_b32 s{sWV}, v1')
    a(f'v_and_b32 {vr(vI)}, 15, v0')
    a(f'v_bfe_u32 {vr(vKGp)}, v0, 4, 2')
    a('s_and_b32 s41, s2, 7')
    a('s_lshr_b32 s42, s2, 3')
    a(f's_lshr_b32 s{sH}, s42, 3')
    a(f's_lshl2_add_u32 s{sH}, s41, s{sH}')
    a(f's_and_b32 s{sC}, s42, 7')
    a(f's_lshl_b32 s{sHO}, s{sH}, 19')
    a(f's_lshl_b32 s{sQ0B}, s{sC}, 16')
    a(f's_and_b32 s{sT0}, s{sWV}, 3')
    a(f's_lshl_b32 s{sT0}, s{sT0}, 2')
    a(f's_lshl_b32 s{sT1}, s{sWV}, 10')
    a(f's_add_u32 s{sT2}, s{sT1}, s{sQ0B}')
    a(f'v_add_u32 {vr(vDK)}, s{sT0}, {vr(vKGp)}')
    a(f'v_xor_b32 {vr(vDK)}, {vr(vDK)}, {vr(vI)}')
    a(f'v_lshlrev_b32 {vr(vDK)}, 4, {vr(vDK)}')
    a(f'v_lshl_add_u32 {vr(vDK)}, {vr(vKGp)}, 8, {vr(vDK)}')
    a(f'v_add_u32 {vr(vDK)}, s{sT2}, {vr(vDK)}')
    a(f's_mov_b32 m0, s{sT1}')
    for s_ in (sK, sV, sQ):
        a(f's_mov_b32 s{s_+2}, 0x80000')
        a(f's_mov_b32 s{s_+3}, 0x20000')
    a(f's_mov_b32 s{sW+2}, 0x4000')
    a(f's_mov_b32 s{sW+3}, 0x20000')
    a(f's_lshl_b32 s{sT0}, s{sH}, 14')
    a('s_waitcnt lgkmcnt(0)')
    stamp()
    a(f's_add_u32 s{sK}, s6, s{sHO}')
    a(f's_addc_u32 s{sK+1}, s7, 0')
    a(f's_add_u32 s{sW}, s18, s{sT0}')
    a(f's_addc_u32 s{sW+1}, s19, 0')
    if clr == 'early': emit_clear()
    if opt.get('touch'): emit_touch()
    for i in range(9):
        if i:
            a('s_add_u32 m0, m0, 0x2000')
            a(f'v_add_u32 {vr(vDK)}, 0x2000, {vr(vDK)}')
        a(f'buffer_load_dwordx4 {vr(vDK)}, {sr(sK,4)}, 0 offen {ldpol} lds')
    a(f's_add_u32 s{sV}, s8, s{sHO}')
    a(f's_addc_u32 s{sV+1}, s9, 0')
    a(f's_add_u32 s{sQ}, s4, s{sHO}')
    a(f's_addc_u32 s{sQ+1}, s5, 0')
    a(f's_cmp_eq_u32 s{sC}, 0')
    a(f's_cselect_b32 s{sT3}, 0x40000000, 0')
    a(f's_lshl_b32 s{sT0}, s{sWV}, 13')
    a(f's_add_u32 s{sT0}, s{sT0}, s{sQ0B}')
    a(f'v_lshlrev_b32 {vr(vDQ)}, 4, {vr(vKGp)}')
    a(f'v_lshl_add_u32 {vr(vDQ)}, {vr(vI)}, 8, {vr(vDQ)}')
    a(f'v_add_u32 {vr(vDQ)}, s{sT0}, {vr(vDQ)}')
    a(f'v_lshlrev_b32 {vr(t3)}, 4, {vr(vLANE)}')
    a(f's_cmp_lg_u32 s{sWV}, 0')
    a('s_cbranch_scc1 L_nohalo')
    a(f's_sub_u32 s{sT0}, s{sT3}, 0x2000')
    a(f'v_add_u32 {vr(t1)}, s{sT0}, {vr(vDQ)}')
    a(f'v_add_u32 {vr(t2)}, 0x1000, {vr(t1)}')
    for T in range(2):
        for ks in range(4):
            a(f'buffer_load_dwordx4 {vr(kf(T,ks),4)}, {vr(t1+T)}, {sr(sK,4)}, 0 offen offset:{64*ks}')
    a.label('L_nohalo')
    a(f's_cmp_lg_u32 s{sWV}, 1')
    a('s_cbranch_scc1 L_nosmall')
    for n, srd in enumerate((sK, sQ, sV)):
        a(f's_mov_b32 m0, {SOFF + 1024*n}')
        a('s_nop 0')
        a(f'buffer_load_dwordx4 {vr(t3)}, {sr(srd,4)}, 0 offen lds')
    a.label('L_nosmall')
    if clr == 'early': emit_flag(True, S+4)
    a(f's_and_b32 s{sT0}, s{sWV}, 1')
    a(f's_lshl_b32 s{sT0}, s{sT0}, 2')
    a(f'v_add_lshl_u32 {vr(vDV)}, s{sT0}, {vr(vKGp)}, 1')
    a(f'v_xor_b32 {vr(vDV)}, {vr(vDV)}, {vr(vI)}')
    a(f'v_lshlrev_b32 {vr(vDV)}, 4, {vr(vDV)}')
    a(f'v_lshl_add_u32 {vr(vDV)}, {vr(vKGp)}, 8, {vr(vDV)}')
    a(f's_sub_u32 s{sT2}, s{sT2}, 0x2000')
    a(f'v_add_u32 {vr(vDV)}, s{sT2}, {vr(vDV)}')
    a(f's_add_u32 m0, s{sT1}, {VOFF}')
    a(f'v_add_u32 {vr(t1)}, s{sT3}, {vr(vDV)}')
    a(f'buffer_load_dwordx4 {vr(t1)}, {sr(sV,4)}, 0 offen {ldpol} lds')
    for i in range(1, 10):
        a('s_add_u32 m0, m0, 0x2000')
        a(f'v_add_u32 {vr(vDV)}, 0x2000, {vr(vDV)}')
        a(f'buffer_load_dwordx4 {vr(vDV)}, {sr(sV,4)}, 0 offen {ldpol} lds')
    if clr == 'late': emit_clear()
    stamp()

    a(f's_add_u32 s{sO}, s14, s{sHO}')
    a(f's_addc_u32 s{sO+1}, s15, 0')
    a(f's_mov_b32 s{sO+2}, 0x80000')
    a(f's_mov_b32 s{sO+3}, 0x20000')
    a(f's_mov_b32 s{sCS}, 0x{CSC:08x}')
    a(f's_mov_b32 s{sCS+1}, 0x{CSC:08x}')
    a(f'v_mov_b32 {vr(vNEG)}, 0x{NEG:08x}')
    a(f'v_lshlrev_b32 {vr(t2)}, 2, {vr(vKGp)}')
    a(f'v_cmp_eq_u32 {sr(sKG0,2)}, 0, {vr(vKGp)}')
    for r in range(4):
        a(f'v_add_u32 {vr(t1)}, {r}, {vr(t2)}')
        a(f'v_cmp_ge_u32 vcc, {vr(t1)}, {vr(vI)}')
        a(f'v_cmp_le_u32 s[60:61], {vr(t1)}, {vr(vI)}')
        a('s_nop 0')
        a(f'v_cndmask_b32 {vr(BLO+r)}, {vr(vNEG)}, 0, vcc')
        a(f'v_cndmask_b32 {vr(BHI+r)}, {vr(vNEG)}, 0, s[60:61]')
    a(f's_lshl_b32 s{sT0}, s{sWV}, 13')
    a(f'v_xor_b32 {vr(t1)}, {vr(vKGp)}, {vr(vI)}')
    a(f'v_lshlrev_b32 {vr(t1)}, 4, {vr(t1)}')
    a(f'v_lshl_add_u32 {vr(t1)}, {vr(vI)}, 8, {vr(t1)}')
    a(f'v_add_u32 {vr(vAK)}, s{sT0}, {vr(t1)}')
    for ks in range(1, 4):
        a(f'v_xor_b32 {vr(vAK+ks)}, {64*ks}, {vr(vAK)}')
    a(f'v_and_b32 {vr(t1)}, 1, {vr(vI)}')
    a(f'v_lshlrev_b32 {vr(t1)}, 8, {vr(t1)}')
    a(f'v_lshl_add_u32 {vr(t1)}, {vr(vKGp)}, 4, {vr(t1)}')
    a(f'v_add_u32 {vr(vAG)}, {SOFF}, {vr(t1)}')
    a(f'v_bfe_u32 {vr(t1)}, {vr(vLANE)}, 2, 2')
    a(f'v_and_b32 {vr(t2)}, 3, {vr(vLANE)}')
    a(f'v_lshlrev_b32 {vr(t2)}, 3, {vr(t2)}')
    a(f'v_lshl_add_u32 {vr(t1)}, {vr(t1)}, 8, {vr(t2)}')
    a(f'v_add_u32 {vr(vAVG)}, {SOFF+2048}, {vr(t1)}')
    a(f'v_lshrrev_b32 {vr(t1)}, 2, {vr(vLANE)}')
    a(f'v_and_b32 {vr(vT0)}, 7, {vr(t1)}')
    a(f'v_lshl_add_u32 {vr(t2)}, {vr(vT0)}, 5, {vr(t2)}')
    a(f'v_lshl_add_u32 {vr(t2)}, {vr(t1)}, 8, {vr(t2)}')
    a(f's_add_u32 s{sT1}, s{sT0}, {VOFF}')
    a(f'v_add_u32 {vr(VA)}, s{sT1}, {vr(t2)}')
    for t in range(1, 8):
        a(f'v_xor_b32 {vr(VA+t)}, {32*t}, {vr(VA)}')
    a(f's_mul_i32 s{sT1}, s{sWV}, {16*STGP}')
    a(f's_add_u32 s{sT1}, s{sT1}, {STG}')
    a(f'v_mul_u32_u24 {vr(t1)}, {STGP}, {vr(vI)}')
    a(f'v_lshl_add_u32 {vr(t1)}, {vr(vKGp)}, 3, {vr(t1)}')
    a(f'v_add_u32 {vr(vSW)}, s{sT1}, {vr(t1)}')
    a(f'v_mul_u32_u24 {vr(t1)}, {STGP}, {vr(vKGp)}')
    a(f'v_lshl_add_u32 {vr(t1)}, {vr(vI)}, 4, {vr(t1)}')
    a(f'v_add_u32 {vr(vSR)}, s{sT1}, {vr(t1)}')
    a(f's_add_u32 s{sT0}, s{sT0}, s{sQ0B}')
    a(f'v_add_u32 {vr(vOO)}, s{sT0}, {vr(t3)}')
    a(f's_lshr_b32 s{sQB}, s{sT0}, 8')
    a(f's_cmp_eq_u32 s{sQB}, 0')
    a(f's_cselect_b32 s{sEX}, 0, -1')
    a(f's_mov_b32 s{sEX+1}, -1')
    a(f's_cmp_eq_u32 s{sQB}, {256*CC+32*CW}')
    a(f's_cselect_b32 s{sCMB}, 1, 0')

    a(f's_waitcnt vmcnt({11 if clr == "early" else 12})')
    a(f's_cmp_eq_u32 s{sWV}, {RW}')
    a('s_cbranch_scc1 L_kw')
    a('s_waitcnt vmcnt(10)')
    a.label('L_kw')
    a('s_barrier')
    stamp()
    QG = O
    for ks in range(4):
        a(f'ds_read_b128 {vr(QG+4*ks,4)}, {vr(vAG)} offset:{1024+64*ks}')
    for W in (2, 3):
        for ks in range(4):
            a(f'ds_read_b128 {vr(kf(W,ks),4)}, {vr(vAK+ks)} offset:{4096*(W-2)}')
    for ks in range(4):
        a(f'ds_read_b128 {vr(KG+4*ks,4)}, {vr(vAG)} offset:{64*ks}')
    for W in (4, 5):
        for ks in range(4):
            a(f'ds_read_b128 {vr(kf(W,ks),4)}, {vr(vAK+ks)} offset:{4096*(W-2)}')
    a('s_waitcnt lgkmcnt(12)')
    for T in range(2):
        for ks in range(4):
            a(mfma(S+4*T, kf(2+T,ks), QG+4*ks, '0' if ks == 0 else S+4*T))
    for t in range(8):
        a(f'ds_read_b64_tr_b16 {vr(VG+4*t+2,2)}, {vr(vAVG)} offset:{32*t}')
    a(f's_cmp_eq_u32 s{sWV}, 0')
    a('s_cbranch_scc1 L_k01done')
    for ks in range(4):
        a(f'v_subrev_u32 {vr(vAK+ks)}, 0x2000, {vr(vAK+ks)}')
    for W in (0, 1):
        for ks in range(4):
            a(f'ds_read_b128 {vr(kf(W,ks),4)}, {vr(vAK+ks)} offset:{4096*W}')
    a.label('L_k01done')

    def xmax(m, t):
        a(f'v_mov_b32 {vr(t)}, {vr(m)}')
        a.nop(2)
        a(f'v_permlane16_swap_b32 {vr(m)}, {vr(t)}')
        a(f'v_max_f32 {vr(m)}, {vr(m)}, {vr(t)}')
        a(f'v_mov_b32 {vr(t)}, {vr(m)}')
        a.nop(2)
        a(f'v_permlane32_swap_b32 {vr(m)}, {vr(t)}')
        a(f'v_max_f32 {vr(m)}, {vr(m)}, {vr(t)}')

    def maxtree_l(vals, m, first=True):
        out = []
        rest = list(vals)
        if first:
            out.append(f'v_max3_f32 {vr(m)}, {vr(rest[0])}, {vr(rest[1])}, {vr(rest[2])}')
            rest = rest[3:]
        while len(rest) >= 2:
            out.append(f'v_max3_f32 {vr(m)}, {vr(m)}, {vr(rest[0])}, {vr(rest[1])}')
            rest = rest[2:]
        if rest:
            out.append(f'v_max_f32 {vr(m)}, {vr(m)}, {vr(rest[0])}')
        return out

    def fma_l(vals, mc):
        if pk:
            return [f'v_pk_fma_f32 {vr(vals[n],2)}, {vr(vals[n],2)}, {sr(sCS,2)}, {vr(mc,2)} op_sel_hi:[1,1,0] neg_lo:[0,0,1] neg_hi:[0,0,1]' for n in range(0, len(vals), 2)]
        return [f'v_fma_f32 {vr(v)}, {vr(v)}, s{sCS}, -{vr(mc)}' for v in vals]
    exp_l = lambda vals: [f'v_exp_f32 {vr(v)}, {vr(v)}' for v in vals]
    cvt_l = lambda dst, src, n: [f'v_cvt_pk_bf16_f32 {vr(dst+k)}, {vr(src+2*k)}, {vr(src+2*k+1)}' for k in range(n)]

    vM, vT = S + 22, S + 23
    for l in maxtree_l([S+x for x in range(8)], vM): a(l)
    xmax(vM, vT)
    a(f'v_mul_f32 {vr(vM)}, s{sCS}, {vr(vM)}')
    for l in fma_l([S+x for x in range(8)], vM): a(l)
    for l in exp_l([S+x for x in range(8)]): a(l)
    a(f'v_mov_b32 {vr(vT0)}, {vr(vM)}')
    for l in cvt_l(S, S, 4): a(l)
    for n in range(4):
        a(f'v_mov_b32 {vr(S+4+n)}, 0x3f803f80')
    for ks in range(4):
        a(f'buffer_load_dwordx4 {vr(QA+4*ks,4)}, {vr(vDQ)}, {sr(sQ,4)}, 0 offen offset:{64*ks} {qpol}')
    a('s_waitcnt lgkmcnt(0)')
    a(f'v_add_u32 {vr(vDQk)}, 0x1000, {vr(vDQ)}')
    if clr == 'late':
        a('s_waitcnt vmcnt(6)')
        a(f's_cmp_eq_u32 s{sWV}, {RW}')
        a('s_cbranch_scc1 L_vw')
    a('s_waitcnt vmcnt(4)')
    a.label('L_vw')
    a('s_barrier')
    stamp()
    gb = [QB + 4*n for n in range(4)] + [S + 8 + 4*n for n in range(4)]
    for t in range(8):
        a(f'ds_read_b64_tr_b16 {vr(gb[t],2)}, {vr(VA+t)} offset:{4096*2}')
        a(f'ds_read_b64_tr_b16 {vr(gb[t]+2,2)}, {vr(VA+t)} offset:{4096*3}')
    a(mfma(X8, S, S+4, '0'))
    for t in range(8):
        a(f's_waitcnt lgkmcnt({14-2*t})')
        a(mfma(O+4*t, S, gb[t], '0'))
    a(f'v_mbcnt_lo_u32_b32 {vr(S+7)}, -1, 0')
    a(f's_lshl_b32 s{sT0}, s{sWV}, 10')
    a(f's_lshl_b32 s{sT1}, s{sWV}, 4')
    a(f'v_lshl_add_u32 {vr(S+4)}, {vr(S+7)}, 3, s{sT0}')
    a(f'v_and_b32 {vr(S+5)}, 1, {vr(S+7)}')
    a(f'v_lshl_add_u32 {vr(S+5)}, {vr(S+5)}, 2, s{sT1}')
    a(f'v_mov_b32 {vr(S+6)}, s{sT1}')
    a('s_mov_b64 exec, 0xffff')
    a(f'ds_write_b32 {vr(S+5)}, {vr(vT0)} offset:{PARTML}')
    a(f'ds_write_b64 {vr(S+6)}, {vr(X8,2)} offset:{PARTML+8}')
    for t in range(8):
        a(f'ds_write_b64 {vr(S+4)}, {vr(O+4*t,2)} offset:{PART+128*t}')
    a('s_mov_b64 exec, -1')
    a('s_waitcnt lgkmcnt(0)')
    a('s_barrier')
    stamp()

    def combine8(og, mg, tm):
        for e in range(2):
            for l in maxtree_l([mg[n]+e for n in range(8)], tm+e): a(l)
        for n in range(8):
            for e in range(2):
                a(f'v_sub_f32 {vr(mg[n]+e)}, {vr(mg[n]+e)}, {vr(tm+e)}')
        for n in range(8):
            for e in range(2):
                a(f'v_exp_f32 {vr(mg[n]+e)}, {vr(mg[n]+e)}')
        a.nop(1)
        a(f'v_pk_mul_f32 {vr(og[0],2)}, {vr(og[0],2)}, {vr(mg[0],2)}')
        a(f'v_pk_mul_f32 {vr(og[0]+2,2)}, {vr(og[0]+2,2)}, {vr(mg[0],2)}')
        a(f'v_pk_mul_f32 {vr(mg[0]+2,2)}, {vr(mg[0]+2,2)}, {vr(mg[0],2)}')
        for n in range(1, 8):
            a(f'v_pk_fma_f32 {vr(og[0],2)}, {vr(og[n],2)}, {vr(mg[n],2)}, {vr(og[0],2)}')
            a(f'v_pk_fma_f32 {vr(og[0]+2,2)}, {vr(og[n]+2,2)}, {vr(mg[n],2)}, {vr(og[0]+2,2)}')
            a(f'v_pk_fma_f32 {vr(mg[0]+2,2)}, {vr(mg[n]+2,2)}, {vr(mg[n],2)}, {vr(mg[0]+2,2)}')

    def issue_qb():
        for ks in range(4):
            a(f'buffer_load_dwordx4 {vr(QB+4*ks,4)}, {vr(vDQk)}, {sr(sQ,4)}, 0 offen offset:{64*ks} {qpol}')
        a(f'v_mov_b32 {vr(vDQk)}, 0')
    def vread(dst, t, W):
        return f'ds_read_b64_tr_b16 {vr(dst,2)}, {vr(VA+t)} offset:{4096*W}'
    def prefetch_a():
        for t in range(8):
            a(vread(X[t+1], t, 0)); a(vread(X[t+1]+2, t, 1))
        for t in range(8):
            a(vread(VG+4*t, t, 4))

    def flag_load():
        if flagmode == 'atomic':
            a(f's_lshl_b32 s{sT0}, s{sH}, 2')
            a(f'v_mov_b32 {vr(vT0)}, s{sT0}')
            a(f'global_load_dword {vr(vFLAG)}, {vr(vT0)}, s[16:17] sc0 sc1')
        else:
            a(f's_lshl_b32 s{sT0}, s{sH}, 3')
            a(f'v_mbcnt_lo_u32_b32 {vr(vT0)}, -1, 0')
            a(f'v_and_or_b32 {vr(vT0)}, {vr(vT0)}, 7, s{sT0}')
            a(f'global_load_ubyte {vr(vFLAG)}, {vr(vT0)}, s[16:17] sc0 sc1')
    def flag_test():
        a(f'v_cmp_eq_u32 vcc, {8 if flagmode == "atomic" else 1}, {vr(vFLAG)}')
        a('s_nop 1')
        a('s_cmp_eq_u64 vcc, exec')
    a(f's_cmp_eq_u32 s{sWV}, {RW}')
    a('s_cbranch_scc1 L_reduce')
    issue_qb()
    prefetch_a()
    a('s_waitcnt vmcnt(4) lgkmcnt(0)')
    a('s_branch L_tileA')
    a.label('L_reduce')
    og = [O + 4*n for n in range(8)]
    mg = [S + 4*n for n in range(6)] + [QB, QB+4]
    a(f'v_mbcnt_hi_u32_b32 {vr(vT0)}, -1, {vr(S+7)}')
    a(f'v_lshlrev_b32 {vr(vT0)}, 4, {vr(vT0)}')
    a(f'v_mov_b32 {vr(X8)}, {PARTML}')
    for n in range(8):
        a(f'ds_read_b128 {vr(mg[n],4)}, {vr(X8)} offset:{16*n}')
    for n in range(8):
        a(f'ds_read_b128 {vr(og[n],4)}, {vr(vT0)} offset:{PART+1024*n}')
    a('s_waitcnt lgkmcnt(0)')
    combine8(og, mg, X8)
    a(f'v_min_u32 {vr(S)}, -2, {vr(X8)}')
    a(f'v_min_u32 {vr(S+1)}, -2, {vr(X8+1)}')
    a(f'v_min_u32 {vr(S+2)}, -2, {vr(S+2)}')
    a(f'v_min_u32 {vr(S+3)}, -2, {vr(S+3)}')
    for e in range(4):
        a(f'v_min_u32 {vr(O+e)}, -2, {vr(O+e)}')
    a(f's_lshl_b32 s{sT0}, s{sC}, 11')
    a(f'buffer_store_dwordx4 {vr(O,4)}, {vr(vT0)}, {sr(sW,4)}, s{sT0} offen sc0 sc1')
    a('s_mov_b64 exec, 1')
    a(f'buffer_store_dwordx4 {vr(S,4)}, {vr(vT0)}, {sr(sW,4)}, s{sT0} offen offset:1024 sc0 sc1')
    a('s_mov_b64 exec, -1')
    issue_qb()
    prefetch_a()
    a('s_waitcnt vmcnt(6) lgkmcnt(0)')
    if clr == 'late': emit_flag(False, S)
    a.label('L_tileA')
    stamp()
    def cmb_flag():
        a(f's_cmp_eq_u32 s{sCMB}, 0')
        a('s_cbranch_scc1 L_noflag')
        flag_load()
        a.label('L_noflag')
    if clr == 'early': cmb_flag()

    def inter(ms, vs, per=2):
        vs = list(vs)
        for m in ms:
            a(m)
            for _ in range(per):
                if vs: a(vs.pop(0))
        for v in vs: a(v)

    HB = kf(2, 0)
    def tile(tau):
        Q = QA if tau == 0 else QB
        nm = 'AB'[tau]
        buf = [kf(0, n) for n in range(4)] + [QA + 4*n for n in range(4)]
        def qk(T):
            if T == 'G':
                return [mfma(S+20, KG+4*ks, Q+4*ks, '0' if ks == 0 else S+20) for ks in range(4)]
            c0 = BLO if T == 0 else BHI if T == 4 else '0'
            return [mfma(S+4*T, kf(tau+T,ks), Q+4*ks, c0 if ks == 0 else S+4*T) for ks in range(4)]
        late = []
        if tau == 0:
            for t in range(8):
                late += [vread(buf[t], t, 2), vread(buf[t]+2, t, 3)]
        m = vM
        a(f's_sub_u32 s{sT0}, s{sQB}, {48 - 16*tau}')
        a(f's_cmp_lt_u32 s{sT0}, 1968')
        a(f's_cbranch_scc1 L_fast{nm}')
        for T in ('G', 0, 1, 2, 3, 4):
            for l in qk(T): a(l)
        for l in late: a(l)
        a(f'v_mbcnt_lo_u32_b32 {vr(vT0)}, -1, 0')
        a(f'v_mbcnt_hi_u32_b32 {vr(vT0)}, -1, {vr(vT0)}')
        a(f'v_lshrrev_b32 {vr(vT0)}, 4, {vr(vT0)}')
        a(f's_sub_u32 s{sT0}, s{sQB}, {34 - 16*tau}')
        a(f's_movk_i32 s{sT1}, 2046')
        a(f'v_lshl_add_u32 {vr(vT0)}, {vr(vT0)}, 2, s{sT0}')
        a(f'v_mov_b32 {vr(vM)}, 0x{NEG:08x}')
        a('s_nop 1')
        for T in range(5):
            for r in range(4):
                a(f'v_add_u32 {vr(vT)}, {16*T+r}, {vr(vT0)}')
                a(f'v_cmp_gt_u32 vcc, s{sT1}, {vr(vT)}')
                a('s_nop 1')
                a(f'v_cndmask_b32 {vr(S+4*T+r)}, {vr(vM)}, {vr(S+4*T+r)}, vcc')
        for l in maxtree_l([S+x for x in range(22)], m): a(l)
        a(f's_branch L_join{nm}')
        a.label(f'L_fast{nm}')
        for T in ('G', 0, 1, 2):
            for l in qk(T): a(l)
        mx = maxtree_l([S+20, S+21, S+0], m) + maxtree_l([S+1, S+2], m, False)
        inter(qk(3), [mx[0], mx[1]], per=1)
        mx = maxtree_l([S+3, S+4, S+5, S+6, S+7, S+8], m, False)
        inter(qk(4), mx, per=1)
        fill = late[:]
        mx = maxtree_l([S+9, S+10, S+11, S+12], m, False)
        for l in fill[:2]: a(l)
        for l in mx: a(l)
        for l in fill[2:5]: a(l)
        for l in maxtree_l([S+13, S+14, S+15], m, False): a(l)
        if fill:
            for l in fill[5:]: a(l)
        else:
            a.nop(4)
        for l in maxtree_l([S+16, S+17, S+18, S+19], m, False): a(l)
        a.label(f'L_join{nm}')
        if tau == 1:
            a(f's_cmp_eq_u32 s{sCMB}, 0')
            a('s_cbranch_scc1 L_nohand')
            a(f's_mov_b32 s{sCNT}, 0')
            flag_test()
            a('s_cbranch_scc1 L_flagok')
            a.label('L_flagspin')
            flag_load()
            a('s_waitcnt vmcnt(0)')
            a(f's_add_u32 s{sCNT}, s{sCNT}, 1')
            flag_test()
            a('s_cbranch_scc1 L_flagok')
            a(f's_cmp_lt_u32 s{sCNT}, 0x100000')
            a('s_cbranch_scc1 L_flagspin')
            a.label('L_flagok')
            hand_loads()
            a.label('L_nohand')
        if opt.get('fine'): stamp()
        xmax(m, vT)
        a(f'v_mul_f32 {vr(m)}, s{sCS}, {vr(m)}')
        set0 = [S+x for x in range(8)]; set1 = [S+8+x for x in range(8)]; set2 = [S+16+x for x in range(6)]
        for l in fma_l(set0, m): a(l)
        for l in exp_l(set0): a(l)
        f2 = fma_l(set2, m)
        a(f2[0])
        for l in cvt_l(S, S, 4): a(l)
        a(f2[1]); a(f2[2])
        ONES, LACC = S+4, S+20
        v2 = f2[3:] + exp_l(set2) + [f'v_mov_b32 {vr(ONES+n)}, 0x3f803f80' for n in range(4)] + cvt_l(S+16, S+16, 3) \
             + [f'v_mov_b32 {vr(S+19)}, 0', f'v_cndmask_b32 {vr(S+18)}, 0, {vr(S+18)}, {sr(sKG0,2)}']
        f1 = fma_l(set1, m)
        inter([mfma(X[t], X[t+1], S, '0') for t in range(8)], v2 + f1[:2])
        v1 = f1[2:] + exp_l(set1) + [f'v_mov_b32 {vr(vT0)}, {vr(vT0)}'] + cvt_l(S+8, S+8, 4)
        ms = [mfma(O+4*t, VG+4*t, S+16, O+4*t) for t in range(8)]
        inter(ms, v1)
        a(mfma(LACC, ONES, S, '0'))
        a(mfma(LACC, ONES, S+16, LACC))
        a(mfma(LACC, ONES, S+8, LACC))
        if tau == 0: a('s_waitcnt lgkmcnt(0)')
        def epi(t):
            if pk:
                l = [f'v_pk_mul_f32 {vr(O+4*t+e,2)}, {vr(O+4*t+e,2)}, {vr(vM,2)} op_sel_hi:[1,0]' for e in (0, 2)]
            else:
                l = [f'v_mul_f32 {vr(O+4*t+e)}, {vr(O+4*t+e)}, {vr(vM)}' for e in range(4)]
            l += [f'v_cvt_pk_bf16_f32 {vr(O+4*t)}, {vr(O+4*t)}, {vr(O+4*t+1)}',
                  f'v_cvt_pk_bf16_f32 {vr(O+4*t+1)}, {vr(O+4*t+2)}, {vr(O+4*t+3)}',
                  f'ds_write_b64 {vr(vSW)}, {vr(O+4*t,2)} offset:{32*t}']
            return l
        ms = [mfma(O+4*t, buf[t], S+8, O+4*t) for t in range(8)]
        for l in ms: a(l)
        a(f'v_rcp_f32 {vr(vT0)}, {vr(LACC)}')
        a('s_nop 0')
        a(f'v_mov_b32 {vr(vM)}, {vr(vT0)}')
        for t in range(8):
            for l in epi(t): a(l)
        for j in range(4):
            a(f'ds_read_b128 {vr(S+4*j,4)}, {vr(vSR)} offset:{4*STGP*j}')
        if tau == 0:
            for t in range(8): a(vread(VG+4*t, t, 5))
        if opt.get('fine'): stamp()
        if tau == 0 and clr == 'late': cmb_flag()
        for j in range(4):
            a(f's_waitcnt lgkmcnt({3-j + (8 if tau == 0 else 0)})')
            if tau == 0 and j == 0:
                a(f's_mov_b64 exec, {sr(sEX,2)}')
            a(f'buffer_store_dwordx4 {vr(S+4*j,4)}, {vr(vOO)}, {sr(sO,4)}, 0 offen offset:{1024*j} {stpol}')
            if tau == 0 and j == 0:
                a('s_mov_b64 exec, -1')
        if opt.get('fine') and tau == 0: stamp()
        if tau == 0:
            for t in range(8):
                a(vread(X[t+1], t, 1)); a(vread(X[t+1]+2, t, 2))
            for t in range(8):
                a(vread(buf[t], t, 3)); a(vread(buf[t]+2, t, 4))
            a(f'v_add_u32 {vr(vOO)}, 0x1000, {vr(vOO)}')
            stamp()
            if clr == 'late':
                a('s_waitcnt vmcnt(5) lgkmcnt(0)')
                a(f's_cmp_eq_u32 s{sWV}, {RW}')
                a('s_cbranch_scc1 L_qbw')
            a('s_waitcnt vmcnt(4) lgkmcnt(0)')
            a.label('L_qbw')
        stamp()

    hog = [HB + 4*n for n in range(8)]
    hmg = [HB + 32 + 4*n for n in range(8)]
    def hand_loads():
        a(f'v_mbcnt_lo_u32_b32 {vr(KG)}, -1, 0')
        a(f'v_mbcnt_hi_u32_b32 {vr(KG)}, -1, {vr(KG)}')
        a(f'v_lshlrev_b32 {vr(KG)}, 4, {vr(KG)}')
        a(f'v_mov_b32 {vr(KG+1)}, 0')
        for n in range(8):
            a(f's_movk_i32 s{sT0}, {2048*n}')
            a(f'buffer_load_dwordx4 {vr(hog[n],4)}, {vr(KG)}, {sr(sW,4)}, s{sT0} offen sc0 sc1')
            a(f'buffer_load_dwordx4 {vr(hmg[n],4)}, {vr(KG+1)}, {sr(sW,4)}, s{sT0} offen offset:1024 sc0 sc1')

    tile(0)
    tile(1)

    a(f's_cmp_eq_u32 s{sCMB}, 0')
    a('s_cbranch_scc1 L_fin')
    a('s_waitcnt vmcnt(4)')
    a(f's_mov_b32 s{sCNT}, 0')
    a.label('L_chk')
    a(f'v_max3_u32 {vr(vT0)}, {vr(HB)}, {vr(HB+1)}, {vr(HB+2)}')
    for n in range(3, 63, 2):
        a(f'v_max3_u32 {vr(vT0)}, {vr(vT0)}, {vr(HB+n)}, {vr(HB+n+1)}')
    a(f'v_max_u32 {vr(vT0)}, {vr(vT0)}, {vr(HB+63)}')
    a(f'v_cmp_eq_u32 vcc, -1, {vr(vT0)}')
    a(f's_add_u32 s{sCNT}, s{sCNT}, 1')
    a('s_nop 3')
    a('s_cbranch_vccz L_ready')
    a(f's_cmp_ge_u32 s{sCNT}, 0x40000')
    a('s_cbranch_scc1 L_ready')
    hand_loads()
    a('s_waitcnt vmcnt(0)')
    a('s_branch L_chk')
    a.label('L_ready')
    combine8(hog, hmg, X8)
    a(f'v_rcp_f32 {vr(X8)}, {vr(hmg[0]+2)}')
    a(f'v_rcp_f32 {vr(X8+1)}, {vr(hmg[0]+3)}')
    a(f'v_lshrrev_b32 {vr(KG)}, 2, {vr(KG)}')
    a(f'v_pk_mul_f32 {vr(HB,2)}, {vr(HB,2)}, {vr(X8,2)}')
    a(f'v_pk_mul_f32 {vr(HB+2,2)}, {vr(HB+2,2)}, {vr(X8,2)}')
    a(f'v_cvt_pk_bf16_f32 {vr(X8+2)}, {vr(HB)}, {vr(HB+2)}')
    a(f'v_cvt_pk_bf16_f32 {vr(X8+3)}, {vr(HB+1)}, {vr(HB+3)}')
    a(f'buffer_store_dword {vr(X8+2)}, {vr(KG)}, {sr(sO,4)}, 0 offen {stpol}')
    a(f'buffer_store_dword {vr(X8+3)}, {vr(KG)}, {sr(sO,4)}, 0 offen offset:256 {stpol}')
    a.label('L_fin')
    if stamps:
        if not opt.get('fine'): stamp()
        a('s_waitcnt vmcnt(0)')
        stamp()
        a(f's_lshl_b32 s{sT0}, s2, 3')
        a(f's_add_u32 s{sT0}, s{sT0}, s{sWV}')
        a(f's_lshl_b32 s{sT0}, s{sT0}, 6')
        a(f's_add_u32 s{sT0}, s{sT0}, 0x100000')
        a(f's_add_u32 s{sW}, s18, s{sT0}')
        a(f's_addc_u32 s{sW+1}, s19, 0')
        a(f'v_mov_b32 v1, 0')
        a('s_mov_b64 exec, 1')
        for n in range(nst[0]):
            a(f'v_mov_b32 v2, s{64+2*n}')
            a(f'buffer_store_dword v2, v1, {sr(sW,4)}, 0 offen offset:{4*n}')
        if 'leak' in opt:
            k = int(opt['leak'])
            a(f's_sub_u32 s{sT0}, s{64+2*k}, s64')
            a(f's_lshl_b32 s{sT0}, s{sT0}, 2')
            a(f"s_add_u32 s{sT0}, s{sT0}, {opt.get('spin', 5000)}")
            a.label('L_spin')
            a('s_memrealtime s[98:99]')
            a('s_waitcnt lgkmcnt(0)')
            a(f's_sub_u32 s{sT1}, s98, s64')
            a(f's_cmp_lt_u32 s{sT1}, s{sT0}')
            a('s_cbranch_scc1 L_spin')
    a.label('L_end')
    a('s_endpgm')

    check(a.lines)
    head = f'''; windowed + global-token attention, B=1 H=32 S=2048 D=128 bf16 (window 32, 2 global tokens)
; @launch grid=(256,1,1) block=(512,1,1) lds=163840
.amdgcn_target "amdgcn-amd-amdhsa--gfx950"
.text
.globl {NAME}
.p2align 8
.type {NAME},@function
{NAME}:
'''
    tail = f'''.section .rodata,"a"
.p2align 6
.amdhsa_kernel {NAME}
  .amdhsa_next_free_vgpr 256
  .amdhsa_next_free_sgpr {100 if stamps else 64}
  .amdhsa_accum_offset 256
  .amdhsa_group_segment_fixed_size 0
  .amdhsa_kernarg_size 64
  .amdhsa_user_sgpr_count 2
  .amdhsa_user_sgpr_kernarg_segment_ptr 1
  .amdhsa_system_sgpr_workgroup_id_x 1
.end_amdhsa_kernel
'''
    return head + a.text() + tail

if __name__ == '__main__':
    out = sys.argv[1]
    opt = {}
    for kv in sys.argv[2:]:
        k, v = kv.split('=', 1)
        opt[k] = {'True': True, 'False': False}.get(v, v.replace('+', ' '))
    open(out, 'w').write(gen(opt))
```

```python
import sys, math, struct
from asmlib import *

NAME = 'standalone__global_local_windowed_global_tokens__prompt_kernel'
def f2u(x): return struct.unpack('<I', struct.pack('<f', x))[0]

def gen(opt):
    a = Asm()
    NEG = 0xFF000000
    CSC = f2u(128 ** -0.5 * math.log2(math.e))
    KOFF, VOFF, SOFF = 0, 73728, 155648
    PART, STG = 0, 16384
    PARTML, LCNT = SOFF + 3072, SOFF + 3072 + 128
    STGP = 272
    ldpol = opt.get('ldpol', '')
    qpol = opt.get('qpol', '')
    stpol = opt.get('stpol', 'nt')
    pk = opt.get('pk', True)
    N1 = int(opt.get('n1', 8))
    RW = int(opt.get('rw', 3))
    FW = 7
    SW = 5
    CW, CC = int(opt.get('cw', 1)), 3
    merge = opt.get('merge', True)
    sQ, sK, sV, sO, sW = 20, 24, 28, 32, 36
    sWV, sH, sC, sHO, sQ0B = 40, 43, 44, 45, 46
    sT0, sT1, sT2, sT3 = 47, 48, 49, 50
    sBK = 62
    HW = 4
    sCS = 52; sKG0 = 54; sQB = 51; sEX = 56; sCMB = 58; sCNT = 59
    VA = 0
    vSW, vSR, vOO, vT0 = 8, 9, 10, 11
    X8 = 12
    KF = 16; KG = 112; QA, QB = 128, 144; VG = 160; O = 192; S = 224
    BLO, BHI = 248, 252
    kf = lambda W, ks: KF + 16 * W + 4 * ks
    X = [O + 4 * n for n in range(8)] + [X8]
    vLANE, vI, vKGp, vDK, vDV, vDQ, vAG, vNEG, vAK = O+16, O+17, O+18, O+19, O+20, O+21, O+22, O+23, O+24
    vAVG, t1, t2, t3 = O+28, O+29, O+30, O+31
    vDQk = VG + 7
    vFLAG = VG + 3
    vM, vT = S + 22, S + 23

    stamps = opt.get('stamps', False)
    fine = opt.get('fine', False)
    nst = [0]
    def stamp(on=True):
        if stamps and on:
            a(f's_memrealtime s[{64+2*nst[0]}:{65+2*nst[0]}]')
            if nst[0]: a('s_waitcnt lgkmcnt(0)')
            nst[0] += 1
    M16 = 'v_mfma_f32_16x16x32_bf16'
    def mfma(d, x, y, c):
        return f'{M16} {vr(d,4)}, {vr(x,4)}, {vr(y,4)}, {c if isinstance(c,str) else vr(c,4)}'
    def only(w, lab):
        a(f's_cmp_lg_u32 s{sWV}, {w}')
        a(f's_cbranch_scc1 {lab}')

    stamp()
    if opt.get('clk'): a('s_memtime s[96:97]')
    a('s_load_dwordx16 s[4:19], s[0:1], 0')
    a('s_cmp_ge_u32 s2, 256')
    a('s_cbranch_scc1 L_end')
    a(f'v_lshrrev_b32 v1, 6, v0')
    a(f'v_and_b32 {vr(vLANE)}, 63, v0')
    a(f'v_readfirstlane_b32 s{sWV}, v1')
    a(f'v_and_b32 {vr(vI)}, 15, v0')
    a(f'v_bfe_u32 {vr(vKGp)}, v0, 4, 2')
    if opt.get('cpf'):
        a('s_getpc_b64 s[60:61]')
        a(f'v_lshlrev_b32 v1, 4, v0')
        a(f'global_load_dwordx4 {vr(X8,4)}, v1, s[60:61]')
    a('s_and_b32 s41, s2, 7')
    a('s_lshr_b32 s42, s2, 3')
    a(f's_lshr_b32 s{sH}, s42, 3')
    a(f's_lshl2_add_u32 s{sH}, s41, s{sH}')
    a(f's_and_b32 s{sC}, s42, 7')
    a(f's_lshl_b32 s{sHO}, s{sH}, 19')
    a(f's_lshl_b32 s{sQ0B}, s{sC}, 16')
    a(f's_lshl_b32 s{sT0}, s{sWV}, 2')
    a(f's_lshl_b32 s{sT1}, s{sWV}, 10')
    a(f's_add_u32 s{sT2}, s{sT1}, s{sQ0B}')
    a(f'v_add_u32 {vr(vDK)}, s{sT0}, {vr(vKGp)}')
    a(f'v_xor_b32 {vr(vDK)}, {vr(vDK)}, {vr(vI)}')
    a(f'v_lshlrev_b32 {vr(vDK)}, 4, {vr(vDK)}')
    a(f'v_lshl_add_u32 {vr(vDK)}, {vr(vKGp)}, 8, {vr(vDK)}')
    a(f'v_add_u32 {vr(vDK)}, s{sT2}, {vr(vDK)}')
    a(f's_mov_b32 m0, s{sT1}')
    for s_ in (sK, sV, sQ):
        a(f's_mov_b32 s{s_+2}, 0x80000')
        a(f's_mov_b32 s{s_+3}, 0x20000')
    a(f's_mov_b32 s{sW+2}, 0x4000')
    a(f's_mov_b32 s{sW+3}, 0x20000')
    a(f's_and_b32 s{sBK}, s{sWV}, 3')
    a(f's_lshl_b32 s{sBK}, s{sBK}, 1')
    a(f's_cmp_lt_u32 s{sWV}, 4')
    a(f's_addc_u32 s{sBK}, s{sBK}, 0')
    a(f's_cmp_eq_u32 s{sC}, 0')
    a(f's_cselect_b32 s{sT3}, 0x40000000, 0')
    a(f's_lshl_b32 s{sT0}, s{sBK}, 13')
    a(f's_add_u32 s{sT0}, s{sT0}, s{sQ0B}')
    a(f'v_lshlrev_b32 {vr(vDQ)}, 4, {vr(vKGp)}')
    a(f'v_lshl_add_u32 {vr(vDQ)}, {vr(vI)}, 8, {vr(vDQ)}')
    a(f'v_add_u32 {vr(vDQ)}, s{sT0}, {vr(vDQ)}')
    a(f'v_lshlrev_b32 {vr(t3)}, 4, {vr(vLANE)}')
    a(f's_sub_u32 s{sT0}, s{sT3}, 0x2000')
    a(f'v_add_u32 {vr(t1)}, s{sT0}, {vr(vDQ)}')
    a(f'v_add_u32 {vr(t2)}, 0x1000, {vr(t1)}')
    for n in range(4):
        a(f'v_mov_b32 {vr(S+n)}, -1')
    a(f's_lshl_b32 s41, s{sH}, 14')
    a(f's_lshl_b32 s42, s{sC}, 11')
    a(f's_cmp_ge_u32 s{sWV}, 4')
    a('s_cbranch_scc1 L_helper')
    a('s_waitcnt lgkmcnt(0)')
    stamp()
    a(f's_add_u32 s{sK}, s6, s{sHO}')
    a(f's_addc_u32 s{sK+1}, s7, 0')
    for i in range(18):
        if i:
            a('s_add_u32 m0, m0, 0x1000')
            a(f'v_add_u32 {vr(vDK)}, 0x1000, {vr(vDK)}')
        a(f'buffer_load_dwordx4 {vr(vDK)}, {sr(sK,4)}, 0 offen {ldpol} lds')
    def srds():
        a(f's_add_u32 s{sV}, s8, s{sHO}')
        a(f's_addc_u32 s{sV+1}, s9, 0')
        a(f's_add_u32 s{sQ}, s4, s{sHO}')
        a(f's_addc_u32 s{sQ+1}, s5, 0')
        a(f's_add_u32 s{sW}, s18, s41')
        a(f's_addc_u32 s{sW+1}, s19, 0')
    srds()
    a('s_branch L_v1')
    a.label('L_helper')
    a('s_setprio 3')
    a(f's_mov_b32 m0, {SOFF}')
    a('s_waitcnt lgkmcnt(0)')
    if stamps:
        nst[0] -= 1
        stamp()
    a(f's_add_u32 s{sK}, s6, s{sHO}')
    a(f's_addc_u32 s{sK+1}, s7, 0')
    srds()
    only(FW, 'L_noclear')
    a(f'buffer_store_dwordx4 {vr(S,4)}, {vr(t3)}, {sr(sW,4)}, s42 offen sc0 sc1')
    a('s_mov_b64 exec, 1')
    a(f'buffer_store_dwordx4 {vr(S,4)}, {vr(t3)}, {sr(sW,4)}, s42 offen offset:1024 sc0 sc1')
    a(f'v_mov_b32 {vr(S+4)}, {LCNT}')
    a(f'v_mov_b32 {vr(S+5)}, 0')
    a(f'ds_write_b32 {vr(S+4)}, {vr(S+5)}')
    a('s_mov_b64 exec, -1')
    a.label('L_noclear')
    only(SW, 'L_nosmall')
    for n, srd in enumerate((sK, sQ, sV)):
        if n:
            a(f's_mov_b32 m0, {SOFF + 1024*n}')
            a('s_nop 0')
        a(f'buffer_load_dwordx4 {vr(t3)}, {sr(srd,4)}, 0 offen lds')
    a.label('L_nosmall')
    only(HW, 'L_nohalo')
    for T in range(2):
        for ks in range(4):
            a(f'buffer_load_dwordx4 {vr(kf(T,ks),4)}, {vr(t1+T)}, {sr(sK,4)}, 0 offen offset:{64*ks}')
    a.label('L_nohalo')
    a('s_setprio 0')
    a('s_branch L_nov1')
    a.label('L_v1')
    def vpiece(i):
        if i:
            a('s_add_u32 m0, m0, 0x1000')
            a(f'v_add_u32 {vr(vDV)}, 0x1000, {vr(vDV)}')
        if i < 2:
            a(f'v_add_u32 {vr(t1)}, s{sT3}, {vr(vDV)}')
            a(f'buffer_load_dwordx4 {vr(t1)}, {sr(sV,4)}, 0 offen {ldpol} lds')
        else:
            a(f'buffer_load_dwordx4 {vr(vDV)}, {sr(sV,4)}, 0 offen {ldpol} lds')
    a(f's_and_b32 s{sT0}, s{sWV}, 1')
    a(f's_lshl_b32 s{sT0}, s{sT0}, 2')
    a(f'v_add_lshl_u32 {vr(vDV)}, s{sT0}, {vr(vKGp)}, 1')
    a(f'v_xor_b32 {vr(vDV)}, {vr(vDV)}, {vr(vI)}')
    a(f'v_lshlrev_b32 {vr(vDV)}, 4, {vr(vDV)}')
    a(f'v_lshl_add_u32 {vr(vDV)}, {vr(vKGp)}, 8, {vr(vDV)}')
    a(f's_sub_u32 s{sT2}, s{sT2}, 0x2000')
    a(f'v_add_u32 {vr(vDV)}, s{sT2}, {vr(vDV)}')
    a(f's_add_u32 m0, s{sT1}, {VOFF}')
    for i in range(N1): vpiece(i)
    a.label('L_nov1')
    stamp()

    a(f's_add_u32 s{sO}, s14, s{sHO}')
    a(f's_addc_u32 s{sO+1}, s15, 0')
    a(f's_mov_b32 s{sO+2}, 0x80000')
    a(f's_mov_b32 s{sO+3}, 0x20000')
    a(f's_mov_b32 s{sCS}, 0x{CSC:08x}')
    a(f's_mov_b32 s{sCS+1}, 0x{CSC:08x}')
    a(f'v_mov_b32 {vr(vNEG)}, 0x{NEG:08x}')
    a(f'v_lshlrev_b32 {vr(t2)}, 2, {vr(vKGp)}')
    a(f'v_cmp_eq_u32 {sr(sKG0,2)}, 0, {vr(vKGp)}')
    for r in range(4):
        a(f'v_add_u32 {vr(t1)}, {r}, {vr(t2)}')
        a(f'v_cmp_ge_u32 vcc, {vr(t1)}, {vr(vI)}')
        a(f'v_cmp_le_u32 s[60:61], {vr(t1)}, {vr(vI)}')
        a('s_nop 0')
        a(f'v_cndmask_b32 {vr(BLO+r)}, {vr(vNEG)}, 0, vcc')
        a(f'v_cndmask_b32 {vr(BHI+r)}, {vr(vNEG)}, 0, s[60:61]')
    a(f's_lshl_b32 s{sT0}, s{sBK}, 13')
    a(f'v_xor_b32 {vr(t1)}, {vr(vKGp)}, {vr(vI)}')
    a(f'v_lshlrev_b32 {vr(t1)}, 4, {vr(t1)}')
    a(f'v_lshl_add_u32 {vr(t1)}, {vr(vI)}, 8, {vr(t1)}')
    a(f'v_add_u32 {vr(vAK)}, s{sT0}, {vr(t1)}')
    for ks in range(1, 4):
        a(f'v_xor_b32 {vr(vAK+ks)}, {64*ks}, {vr(vAK)}')
    a(f'v_and_b32 {vr(t1)}, 1, {vr(vI)}')
    a(f'v_lshlrev_b32 {vr(vNEG)}, 3, {vr(t1)}')
    a(f'v_lshlrev_b32 {vr(t1)}, 8, {vr(t1)}')
    a(f'v_lshl_add_u32 {vr(t1)}, {vr(vKGp)}, 4, {vr(t1)}')
    a(f'v_add_u32 {vr(vAG)}, {SOFF}, {vr(t1)}')
    a(f'v_bfe_u32 {vr(t1)}, {vr(vLANE)}, 2, 2')
    a(f'v_and_b32 {vr(t2)}, 3, {vr(vLANE)}')
    a(f'v_lshlrev_b32 {vr(t2)}, 3, {vr(t2)}')
    a(f'v_lshl_add_u32 {vr(t1)}, {vr(t1)}, 8, {vr(t2)}')
    a(f'v_add_u32 {vr(vAVG)}, {SOFF+2048}, {vr(t1)}')
    a(f'v_lshrrev_b32 {vr(t1)}, 2, {vr(vLANE)}')
    a(f'v_and_b32 {vr(vT0)}, 7, {vr(t1)}')
    a(f'v_lshl_add_u32 {vr(t2)}, {vr(vT0)}, 5, {vr(t2)}')
    a(f'v_lshl_add_u32 {vr(t2)}, {vr(t1)}, 8, {vr(t2)}')
    a(f's_add_u32 s{sT1}, s{sT0}, {VOFF}')
    a(f'v_add_u32 {vr(VA)}, s{sT1}, {vr(t2)}')
    for t in range(1, 8):
        a(f'v_xor_b32 {vr(VA+t)}, {32*t}, {vr(VA)}')
    a(f's_mul_i32 s{sT1}, s{sWV}, {16*STGP}')
    a(f's_add_u32 s{sT1}, s{sT1}, {STG}')
    a(f'v_mul_u32_u24 {vr(t1)}, {STGP}, {vr(vI)}')
    a(f'v_lshl_add_u32 {vr(t1)}, {vr(vKGp)}, 3, {vr(t1)}')
    a(f'v_add_u32 {vr(vSW)}, s{sT1}, {vr(t1)}')
    a(f'v_mul_u32_u24 {vr(t1)}, {STGP}, {vr(vKGp)}')
    a(f'v_lshl_add_u32 {vr(t1)}, {vr(vI)}, 4, {vr(t1)}')
    a(f'v_add_u32 {vr(vSR)}, s{sT1}, {vr(t1)}')
    a(f's_add_u32 s{sT0}, s{sT0}, s{sQ0B}')
    a(f'v_add_u32 {vr(vOO)}, s{sT0}, {vr(t3)}')
    a(f's_lshr_b32 s{sQB}, s{sT0}, 8')
    a(f's_cmp_eq_u32 s{sQB}, 0')
    a(f's_cselect_b32 s{sEX}, 0, -1')
    a(f's_mov_b32 s{sEX+1}, -1')
    a(f's_cmp_eq_u32 s{sQB}, {256*CC+32*(2*CW+1)}')
    a(f's_cselect_b32 s{sCMB}, 1, 0')
    a(f's_lshl_b32 s{sT0}, s{sWV}, 4')
    a(f's_add_u32 s{sT0}, s{sT0}, {PARTML}')
    a(f'v_add_u32 {vr(vNEG)}, s{sT0}, {vr(vNEG)}')

    a(f's_waitcnt vmcnt({N1})')
    a(f's_cmp_lt_u32 s{sWV}, 4')
    a('s_cbranch_scc1 L_kw')
    a('s_waitcnt vmcnt(0) lgkmcnt(0)')
    only(FW, 'L_kw')
    a('s_mov_b64 exec, 1')
    a(f's_lshl3_add_u32 s{sT0}, s{sH}, s{sC}')
    a(f'v_mov_b32 {vr(S+4)}, s{sT0}')
    a(f'v_mov_b32 {vr(S+5)}, 1')
    a(f'global_store_byte {vr(S+4)}, {vr(S+5)}, s[16:17] sc0 sc1')
    a('s_mov_b64 exec, -1')
    a.label('L_kw')
    a('s_barrier')
    stamp()
    a(f's_cmp_ge_u32 s{sWV}, 4')
    a('s_cbranch_scc1 L_nov2')
    for i in range(N1, 20): vpiece(i)
    a.label('L_nov2')
    stamp(fine)
    QG = O
    for W in (2, 3, 4, 5):
        for ks in range(4):
            a(f'ds_read_b128 {vr(kf(W,ks),4)}, {vr(vAK+ks)} offset:{4096*(W-2)}')
    for ks in range(4):
        a(f'ds_read_b128 {vr(KG+4*ks,4)}, {vr(vAG)} offset:{64*ks}')
    for t in range(8):
        a(f'ds_read_b64_tr_b16 {vr(VG+4*t+2,2)}, {vr(vAVG)} offset:{32*t}')
    a(f's_cmp_eq_u32 s{sWV}, {HW}')
    a('s_cbranch_scc1 L_k01done')
    for ks in range(4):
        a(f'v_subrev_u32 {vr(vAK+ks)}, 0x2000, {vr(vAK+ks)}')
    for W in (0, 1):
        for ks in range(4):
            a(f'ds_read_b128 {vr(kf(W,ks),4)}, {vr(vAK+ks)} offset:{4096*W}')
    a.label('L_k01done')
    def issue_qa():
        if opt.get('qprio'): a('s_setprio 3')
        for ks in range(4):
            a(f'buffer_load_dwordx4 {vr(QA+4*ks,4)}, {vr(vDQ)}, {sr(sQ,4)}, 0 offen offset:{64*ks} {qpol}')
        if opt.get('qprio'): a('s_setprio 0')

    def xred(m, t, op='v_max_f32'):
        a(f'v_mov_b32 {vr(t)}, {vr(m)}')
        a.nop(2)
        a(f'v_permlane16_swap_b32 {vr(m)}, {vr(t)}')
        a(f'{op} {vr(m)}, {vr(m)}, {vr(t)}')
        a(f'v_mov_b32 {vr(t)}, {vr(m)}')
        a.nop(2)
        a(f'v_permlane32_swap_b32 {vr(m)}, {vr(t)}')
        a(f'{op} {vr(m)}, {vr(m)}, {vr(t)}')
    def maxtree_l(vals, m, first=True):
        out = []; rest = list(vals)
        if first:
            out.append(f'v_max3_f32 {vr(m)}, {vr(rest[0])}, {vr(rest[1])}, {vr(rest[2])}'); rest = rest[3:]
        while len(rest) >= 2:
            out.append(f'v_max3_f32 {vr(m)}, {vr(m)}, {vr(rest[0])}, {vr(rest[1])}'); rest = rest[2:]
        if rest:
            out.append(f'v_max_f32 {vr(m)}, {vr(m)}, {vr(rest[0])}')
        return out
    def fma_l(vals, mc):
        if pk:
            return [f'v_pk_fma_f32 {vr(vals[n],2)}, {vr(vals[n],2)}, {sr(sCS,2)}, {vr(mc,2)} op_sel_hi:[1,1,0] neg_lo:[0,0,1] neg_hi:[0,0,1]' for n in range(0, len(vals), 2)]
        return [f'v_fma_f32 {vr(v)}, {vr(v)}, s{sCS}, -{vr(mc)}' for v in vals]
    exp_l = lambda vals: [f'v_exp_f32 {vr(v)}, {vr(v)}' for v in vals]
    cvt_l = lambda dst, src, n: [f'v_cvt_pk_bf16_f32 {vr(dst+k)}, {vr(src+2*k)}, {vr(src+2*k+1)}' for k in range(n)]

    def vread(dst, t, W):
        return f'ds_read_b64_tr_b16 {vr(dst,2)}, {vr(VA+t)} offset:{4096*W}'
    a(f's_cmp_lt_u32 s{sWV}, 4')
    a('s_cbranch_scc1 L_gk')
    issue_qa()
    a('s_waitcnt lgkmcnt(0)')
    a(f'v_add_u32 {vr(vDQk)}, 0x1000, {vr(vDQ)}')
    stamp(fine)
    a('s_barrier')
    for t in range(8):
        a(vread(X[t+1], t, 0)); a(vread(X[t+1]+2, t, 1))
    a('s_branch L_gdone')
    a.label('L_gk')
    for ks in range(4):
        a(f'ds_read_b128 {vr(QG+4*ks,4)}, {vr(vAG)} offset:{1024+64*ks}')
    issue_qa()
    a('s_waitcnt lgkmcnt(0)')
    for T in range(4):
        for ks in range(4):
            a(mfma(S+4*T, kf(T,ks), QG+4*ks, '0' if ks == 0 else S+4*T))
    a(f'v_add_u32 {vr(vDQk)}, 0x1000, {vr(vDQ)}')
    a.nop(7)
    for l in maxtree_l([S+x for x in range(16)], vM): a(l)
    xred(vM, vT)
    a(f'v_mul_f32 {vr(vM)}, s{sCS}, {vr(vM)}')
    for l in fma_l([S+x for x in range(16)], vM): a(l)
    for l in exp_l([S+x for x in range(16)]): a(l)
    a.nop(1)
    a(f'v_add_f32 {vr(vT)}, {vr(S)}, {vr(S+1)}')
    for x in range(2, 16):
        a(f'v_add_f32 {vr(vT)}, {vr(vT)}, {vr(S+x)}')
    for l in cvt_l(S, S, 8): a(l)
    xred(vT, vT0, 'v_add_f32')
    a(f'ds_write_b64 {vr(vNEG)}, {vr(vM,2)}')
    a(f'v_mbcnt_lo_u32_b32 {vr(vT0)}, -1, 0')
    a(f's_lshl_b32 s{sT0}, s{sWV}, 10')
    a(f'v_lshl_add_u32 {vr(vT0)}, {vr(vT0)}, 3, s{sT0}')
    if stamps and fine:
        nst[0] -= 1
        stamp()
    a('s_waitcnt vmcnt(4) lgkmcnt(0)')
    a('s_barrier')
    gb = [QB + 4*n for n in range(4)] + [S + 8 + 4*n for n in range(4)]
    for t in range(8):
        a(vread(gb[t], t, 2)); a(vread(gb[t]+2, t, 3))
    for t in range(8):
        a('s_waitcnt lgkmcnt(14)')
        a(mfma(gb[t], S+4, gb[t], '0'))
        a(vread(X[t+1], t, 0)); a(vread(X[t+1]+2, t, 1))
    for t in range(8):
        a(f's_waitcnt lgkmcnt({14-2*t})')
        a(mfma(gb[t], S, X[t+1], gb[t]))
    a('s_mov_b64 exec, 1')
    a(f'v_mov_b32 {vr(S)}, {LCNT}')
    a(f'v_mov_b32 {vr(S+1)}, 1')
    a('s_mov_b64 exec, 0xffff')
    for t in range(8):
        a(f'ds_write_b64 {vr(vT0)}, {vr(gb[t],2)} offset:{PART+128*t}')
    a('s_mov_b64 exec, 1')
    a(f'ds_add_u32 {vr(S)}, {vr(S+1)}')
    a('s_mov_b64 exec, -1')
    a.label('L_gdone')
    stamp()

    def combine8(og, mg, tm):
        NP = len(og)
        for e in range(2):
            for l in maxtree_l([mg[n]+2*e for n in range(NP)], tm+e): a(l)
        for n in range(NP):
            for e in range(2):
                a(f'v_sub_f32 {vr(mg[n]+2*e)}, {vr(mg[n]+2*e)}, {vr(tm+e)}')
        for n in range(NP):
            for e in range(2):
                a(f'v_exp_f32 {vr(mg[n]+2*e)}, {vr(mg[n]+2*e)}')
        a.nop(1)
        for e in range(2):
            a(f'v_mul_f32 {vr(tm+2+e)}, {vr(mg[0]+2*e)}, {vr(mg[0]+2*e+1)}')
            a(f'v_mul_f32 {vr(og[0]+e)}, {vr(og[0]+e)}, {vr(mg[0]+2*e)}')
            a(f'v_mul_f32 {vr(og[0]+2+e)}, {vr(og[0]+2+e)}, {vr(mg[0]+2*e)}')
        for n in range(1, NP):
            for e in range(2):
                a(f'v_fmac_f32 {vr(tm+2+e)}, {vr(mg[n]+2*e)}, {vr(mg[n]+2*e+1)}')
                a(f'v_fmac_f32 {vr(og[0]+e)}, {vr(og[n]+e)}, {vr(mg[n]+2*e)}')
                a(f'v_fmac_f32 {vr(og[0]+2+e)}, {vr(og[n]+2+e)}, {vr(mg[n]+2*e)}')

    def issue_qb():
        for ks in range(4):
            a(f'buffer_load_dwordx4 {vr(QB+4*ks,4)}, {vr(vDQk)}, {sr(sQ,4)}, 0 offen offset:{64*ks} {qpol}')
        a(f'v_mov_b32 {vr(vDQk)}, 0')
    def flag_load():
        a(f's_lshl_b32 s{sT0}, s{sH}, 3')
        a(f'v_mbcnt_lo_u32_b32 {vr(vT0)}, -1, 0')
        a(f'v_and_or_b32 {vr(vT0)}, {vr(vT0)}, 7, s{sT0}')
        a(f'global_load_ubyte {vr(vFLAG)}, {vr(vT0)}, s[16:17] sc0 sc1')
    def flag_test():
        a(f'v_cmp_eq_u32 vcc, 1, {vr(vFLAG)}')
        a('s_nop 1')
        a('s_cmp_eq_u64 vcc, exec')

    a(f's_cmp_eq_u32 s{sWV}, {RW}')
    a('s_cbranch_scc1 L_reduce')
    issue_qb()
    a(f's_cmp_eq_u32 s{sCMB}, 0')
    a('s_cbranch_scc1 L_noflag')
    flag_load()
    a('s_waitcnt vmcnt(5)')
    a('s_branch L_tileA')
    a.label('L_noflag')
    a('s_waitcnt vmcnt(4)')
    a('s_branch L_tileA')
    a.label('L_reduce')
    og = [S + 8, S + 12, S + 16, S + 20]
    mg = [S, S + 4, QB, QB + 4]
    a(f'v_mbcnt_lo_u32_b32 {vr(vT0)}, -1, 0')
    a(f'v_mbcnt_hi_u32_b32 {vr(vT0)}, -1, {vr(vT0)}')
    a(f'v_lshlrev_b32 {vr(vT0)}, 4, {vr(vT0)}')
    a(f'v_mov_b32 {vr(QB+8)}, {PARTML}')
    a(f's_mov_b32 s{sCNT}, 0')
    a.label('L_lspin')
    a(f'ds_read_b32 {vr(QB+9)}, {vr(QB+8)} offset:128')
    a(f's_add_u32 s{sCNT}, s{sCNT}, 1')
    a('s_waitcnt lgkmcnt(0)')
    a(f'v_readfirstlane_b32 s{sT0}, {vr(QB+9)}')
    a(f's_cmp_ge_u32 s{sCNT}, 0x100000')
    a('s_cbranch_scc1 L_lok')
    a(f's_cmp_lt_u32 s{sT0}, 4')
    a('s_cbranch_scc1 L_lspin')
    a.label('L_lok')
    for n in range(4):
        a(f'ds_read_b128 {vr(mg[n],4)}, {vr(QB+8)} offset:{16*n}')
    for n in range(4):
        a(f'ds_read_b128 {vr(og[n],4)}, {vr(vT0)} offset:{PART+1024*n}')
    a('s_waitcnt lgkmcnt(0)')
    combine8(og, mg, QB+12)
    a(f'v_min_u32 {vr(S)}, -2, {vr(QB+12)}')
    a(f'v_min_u32 {vr(S+1)}, -2, {vr(QB+14)}')
    a(f'v_min_u32 {vr(S+2)}, -2, {vr(QB+13)}')
    a(f'v_min_u32 {vr(S+3)}, -2, {vr(QB+15)}')
    for e in range(4):
        a(f'v_min_u32 {vr(S+8+e)}, -2, {vr(S+8+e)}')
    a(f'buffer_store_dwordx4 {vr(S+8,4)}, {vr(vT0)}, {sr(sW,4)}, s42 offen sc0 sc1')
    a('s_mov_b64 exec, 1')
    a(f'buffer_store_dwordx4 {vr(S,4)}, {vr(vT0)}, {sr(sW,4)}, s42 offen offset:1024 sc0 sc1')
    a('s_mov_b64 exec, -1')
    issue_qb()
    a('s_waitcnt vmcnt(6)')
    a.label('L_tileA')
    stamp()

    def inter(ms, vs, per=2):
        vs = list(vs)
        for m in ms:
            a(m)
            for _ in range(per):
                if vs: a(vs.pop(0))
        for v in vs: a(v)

    HB = kf(2, 0)
    hog = [HB + 4*n for n in range(8)]
    hmg = [HB + 32 + 4*n for n in range(8)]
    def hand_loads():
        a(f'v_mbcnt_lo_u32_b32 {vr(KG)}, -1, 0')
        a(f'v_mbcnt_hi_u32_b32 {vr(KG)}, -1, {vr(KG)}')
        a(f'v_lshlrev_b32 {vr(KG)}, 4, {vr(KG)}')
        a(f'v_mov_b32 {vr(KG+1)}, 0')
        for n in range(8):
            a(f's_movk_i32 s{sT0}, {2048*n}')
            a(f'buffer_load_dwordx4 {vr(hog[n],4)}, {vr(KG)}, {sr(sW,4)}, s{sT0} offen sc0 sc1')
            a(f'buffer_load_dwordx4 {vr(hmg[n],4)}, {vr(KG+1)}, {sr(sW,4)}, s{sT0} offen offset:1024 sc0 sc1')

    buf = [kf(0, n) for n in range(4)] + [QA + 4*n for n in range(4)]
    SLOTW = {0: [0, 1, 2, 3, 4], 1: [4, 5, 2, 3, 1]}
    def qk(tau, sl):
        Q = QA if tau == 0 else QB
        if sl == 'G':
            return [mfma(S+20, KG+4*ks, Q+4*ks, '0' if ks == 0 else S+20) for ks in range(4)]
        W = SLOTW[tau][sl]
        c0 = BLO if W == tau else BHI if W == tau + 4 else '0'
        return [mfma(S+4*sl, kf(W,ks), Q+4*ks, c0 if ks == 0 else S+4*sl) for ks in range(4)]
    def edge_test(tau, lab):
        a(f's_sub_u32 s{sT0}, s{sQB}, {48 - 16*tau}')
        a(f's_cmp_lt_u32 s{sT0}, 1968')
        a(f's_cbranch_scc1 {lab}')
    def edge_mask(tau, tr):
        a(f'v_mbcnt_lo_u32_b32 {vr(tr)}, -1, 0')
        a(f'v_mbcnt_hi_u32_b32 {vr(tr)}, -1, {vr(tr)}')
        a(f'v_lshrrev_b32 {vr(tr)}, 4, {vr(tr)}')
        a(f's_sub_u32 s{sT0}, s{sQB}, 34')
        a(f's_movk_i32 s{sT1}, 2046')
        a(f'v_lshl_add_u32 {vr(tr)}, {vr(tr)}, 2, s{sT0}')
        a(f'v_mov_b32 {vr(vM)}, 0x{NEG:08x}')
        a('s_nop 3')
        for sl in range(5):
            for r in range(4):
                a(f'v_add_u32 {vr(vT)}, {16*SLOTW[tau][sl]+r}, {vr(tr)}')
                a(f'v_cmp_gt_u32 vcc, s{sT1}, {vr(vT)}')
                a('s_nop 1')
                a(f'v_cndmask_b32 {vr(S+4*sl+r)}, {vr(vM)}, {vr(S+4*sl+r)}, vcc')
        for l in maxtree_l([S+x for x in range(22)], vM): a(l)
    def epi(t):
        l = [f'v_mul_f32 {vr(O+4*t+e)}, {vr(O+4*t+e)}, {vr(vT0)}' for e in range(4)]
        l += [f'v_cvt_pk_bf16_f32 {vr(O+4*t)}, {vr(O+4*t)}, {vr(O+4*t+1)}',
              f'v_cvt_pk_bf16_f32 {vr(O+4*t+1)}, {vr(O+4*t+2)}, {vr(O+4*t+3)}',
              f'ds_write_b64 {vr(vSW)}, {vr(O+4*t,2)} offset:{32*t}']
        return l
    def stage_reads():
        return [f'ds_read_b128 {vr(O+4*j,4)}, {vr(vSR)} offset:{4*STGP*j}' for j in range(4)]
    def stores(tau):
        for j in range(4):
            a(f's_waitcnt lgkmcnt({3-j})')
            if tau == 0 and j == 0: a(f's_mov_b64 exec, {sr(sEX,2)}')
            a(f'buffer_store_dwordx4 {vr(O+4*j,4)}, {vr(vOO)}, {sr(sO,4)}, 0 offen offset:{1024*j} {stpol}')
            if tau == 0 and j == 0: a('s_mov_b64 exec, -1')
    def softmax_pv(tau):
        m = vM
        xred(m, vT)
        a(f'v_mul_f32 {vr(m)}, s{sCS}, {vr(m)}')
        set0 = [S+x for x in range(8)]; set1 = [S+8+x for x in range(8)]; set2 = [S+16+x for x in range(6)]
        for l in fma_l(set0, m): a(l)
        f2 = fma_l(set2, m); f1 = fma_l(set1, m)
        for l in exp_l(set0): a(l)
        a(f2[0])
        for l in cvt_l(S, S, 4): a(l)
        a(f2[1])
        a('s_waitcnt lgkmcnt(0)' if tau == 1 else 's_waitcnt lgkmcnt(8)')
        ONES, LACC = S+4, S+20
        v2 = f2[2:] + exp_l(set2) + [f'v_mov_b32 {vr(ONES+n)}, 0x3f803f80' for n in range(4)] + cvt_l(S+16, S+16, 3) \
             + [f'v_mov_b32 {vr(S+19)}, 0', f'v_cndmask_b32 {vr(S+18)}, 0, {vr(S+18)}, {sr(sKG0,2)}']
        inter([mfma(X[t], X[t+1], S, '0') for t in range(8)], v2 + f1[:2])
        v1 = f1[2:] + exp_l(set1) + [f'v_mov_b32 {vr(vT0)}, 0'] + cvt_l(S+8, S+8, 4)
        inter([mfma(O+4*t, VG+4*t, S+16, O+4*t) for t in range(8)], v1)
        a(mfma(LACC, ONES, S, '0'))
        a(mfma(LACC, ONES, S+16, LACC))
        a(mfma(LACC, ONES, S+8, LACC))
        if tau == 0:
            a('s_waitcnt lgkmcnt(0)')
        for t in range(8):
            a(mfma(O+4*t, buf[t], S+8, O+4*t))
            if tau == 0: a(vread(VG+4*t, t, 1))
        a(f'v_rcp_f32 {vr(vT0)}, {vr(LACC)}')

    late = []
    for t in range(8):
        late += [vread(buf[t], t, 2), vread(buf[t]+2, t, 3)]
    vgr = [vread(VG+4*t, t, 4) for t in range(8)]
    edge_test(0, 'L_fastA')
    for l in vgr: a(l)
    for sl in ('G', 0, 1, 2, 3, 4):
        for l in qk(0, sl): a(l)
    for l in late: a(l)
    edge_mask(0, vT0)
    a('s_branch L_joinA')
    a.label('L_fastA')
    m = vM
    inter(qk(0, 0) + qk(0, 'G'), vgr, per=1)
    inter(qk(0, 1) + qk(0, 2), late[:8], per=1)
    inter(qk(0, 3), maxtree_l([S+20, S+21, S+0], m) + maxtree_l([S+1, S+2, S+3, S+4, S+5, S+6], m, False), per=1)
    inter(qk(0, 4), maxtree_l([S+7, S+8, S+9, S+10], m, False), per=1)
    for l in late[8:11]: a(l)
    for l in maxtree_l([S+11, S+12], m, False): a(l)
    for l in late[11:13]: a(l)
    for l in maxtree_l([S+13, S+14, S+15], m, False): a(l)
    for l in late[13:]: a(l)
    for l in maxtree_l([S+16, S+17, S+18, S+19], m, False): a(l)
    a.label('L_joinA')
    stamp(fine)
    softmax_pv(0)
    stamp(fine)
    a('s_waitcnt vmcnt(0)')
    stamp()
    ep = []
    for t in range(8): ep += epi(t)
    ep += stage_reads()
    edge_test(1, 'L_fastB')
    for l in ep: a(l)
    stores(0)
    for sl in (0, 1, 2, 3, 4, 'G'):
        for l in qk(1, sl): a(l)
    for t in range(8):
        a(vread(X[t+1], t, 4)); a(vread(X[t+1]+2, t, 5))
    edge_mask(1, vT0)
    a('s_branch L_joinB')
    a.label('L_fastB')
    ms = []
    for sl in (0, 1, 2, 3, 4, 'G'): ms += qk(1, sl)
    inter(ms, ep, per=3)
    for l in maxtree_l([S+x for x in range(15)], vT0): a(l)
    stores(0)
    for t in range(8):
        a(vread(X[t+1], t, 4)); a(vread(X[t+1]+2, t, 5))
    a(f'v_max3_f32 {vr(vM)}, {vr(vT0)}, {vr(S+15)}, {vr(S+16)}')
    for l in maxtree_l([S+17, S+18, S+19, S+20, S+21], vM, False): a(l)
    a.label('L_joinB')
    a(f'v_add_u32 {vr(vOO)}, 0x1000, {vr(vOO)}')
    stamp()
    a(f's_cmp_eq_u32 s{sCMB}, 0')
    a('s_cbranch_scc1 L_nohand')
    a(f's_mov_b32 s{sCNT}, 0')
    flag_test()
    a('s_cbranch_scc1 L_flagok')
    a.label('L_flagspin')
    flag_load()
    a('s_waitcnt vmcnt(0)')
    a(f's_add_u32 s{sCNT}, s{sCNT}, 1')
    flag_test()
    a('s_cbranch_scc1 L_flagok')
    a(f's_cmp_lt_u32 s{sCNT}, 0x40000')
    a('s_cbranch_scc1 L_flagspin')
    a.label('L_flagok')
    hand_loads()
    a.label('L_nohand')
    softmax_pv(1)
    stamp(fine)
    a('s_nop 0')
    for t in range(8):
        for l in epi(t): a(l)
    for l in stage_reads(): a(l)
    stores(1)
    stamp()

    a(f's_cmp_eq_u32 s{sCMB}, 0')
    a('s_cbranch_scc1 L_fin')
    a('s_waitcnt vmcnt(4)')
    a(f's_mov_b32 s{sCNT}, 0')
    a.label('L_chk')
    a(f'v_max3_u32 {vr(vT0)}, {vr(HB)}, {vr(HB+1)}, {vr(HB+2)}')
    for n in range(3, 63, 2):
        a(f'v_max3_u32 {vr(vT0)}, {vr(vT0)}, {vr(HB+n)}, {vr(HB+n+1)}')
    a(f'v_max_u32 {vr(vT0)}, {vr(vT0)}, {vr(HB+63)}')
    a(f'v_cmp_eq_u32 vcc, -1, {vr(vT0)}')
    a(f's_add_u32 s{sCNT}, s{sCNT}, 1')
    a('s_nop 3')
    a('s_cbranch_vccz L_ready')
    a(f's_cmp_ge_u32 s{sCNT}, 0x40000')
    a('s_cbranch_scc1 L_ready')
    hand_loads()
    a('s_waitcnt vmcnt(0)')
    a('s_branch L_chk')
    a.label('L_ready')
    combine8(hog, hmg, X8)
    a(f'v_rcp_f32 {vr(X8)}, {vr(X8+2)}')
    a(f'v_rcp_f32 {vr(X8+1)}, {vr(X8+3)}')
    a(f'v_lshrrev_b32 {vr(KG)}, 2, {vr(KG)}')
    a(f'v_pk_mul_f32 {vr(HB,2)}, {vr(HB,2)}, {vr(X8,2)}')
    a(f'v_pk_mul_f32 {vr(HB+2,2)}, {vr(HB+2,2)}, {vr(X8,2)}')
    a(f'v_cvt_pk_bf16_f32 {vr(X8+2)}, {vr(HB)}, {vr(HB+2)}')
    a(f'v_cvt_pk_bf16_f32 {vr(X8+3)}, {vr(HB+1)}, {vr(HB+3)}')
    a(f'buffer_store_dword {vr(X8+2)}, {vr(KG)}, {sr(sO,4)}, 0 offen {stpol}')
    a(f'buffer_store_dword {vr(X8+3)}, {vr(KG)}, {sr(sO,4)}, 0 offen offset:256 {stpol}')
    a.label('L_fin')
    if stamps:
        stamp()
        a('s_waitcnt vmcnt(0)')
        stamp()
        if opt.get('clk'):
            a('s_memtime s[98:99]')
            a('s_waitcnt lgkmcnt(0)')
            a('s_sub_u32 s98, s98, s96')
            a(f's_add_u32 s{64+2*nst[0]}, s98, s64')
            nst[0] += 1
        a(f's_lshl_b32 s{sT0}, s2, 3')
        a(f's_add_u32 s{sT0}, s{sT0}, s{sWV}')
        a(f's_lshl_b32 s{sT0}, s{sT0}, 6')
        a(f's_add_u32 s{sT0}, s{sT0}, 0x100000')
        a(f's_add_u32 s{sW}, s18, s{sT0}')
        a(f's_addc_u32 s{sW+1}, s19, 0')
        a(f'v_mov_b32 v1, 0')
        a('s_mov_b64 exec, 1')
        for n in range(min(16, nst[0])):
            a(f'v_mov_b32 v2, s{64+2*n}')
            a(f'buffer_store_dword v2, v1, {sr(sW,4)}, 0 offen offset:{4*n}')
        if 'leak' in opt:
            k = int(opt['leak'])
            a(f's_sub_u32 s{sT0}, s{64+2*k}, s64')
            a(f's_lshl_b32 s{sT0}, s{sT0}, 2')
            a(f"s_add_u32 s{sT0}, s{sT0}, {opt.get('spin', 5000)}")
            a.label('L_spin')
            a('s_memrealtime s[100:101]')
            a('s_waitcnt lgkmcnt(0)')
            a(f's_sub_u32 s{sT1}, s100, s64')
            a(f's_cmp_lt_u32 s{sT1}, s{sT0}')
            a('s_cbranch_scc1 L_spin')
    a.label('L_end')
    a('s_endpgm')
    if opt.get('cpf'):
        a('.fill 2048, 4, 0xbf800000')

    check(a.lines)
    if stamps: print('stamps', nst[0])
    head = f'''; windowed + global-token attention, B=1 H=32 S=2048 D=128 bf16 (window 32, 2 global tokens)
; @launch grid=(256,1,1) block=(512,1,1) lds=163840
.amdgcn_target "amdgcn-amd-amdhsa--gfx950"
.text
.globl {NAME}
.p2align 8
.type {NAME},@function
{NAME}:
'''
    tail = f'''.section .rodata,"a"
.p2align 6
.amdhsa_kernel {NAME}
  .amdhsa_next_free_vgpr 256
  .amdhsa_next_free_sgpr {102 if stamps else 64}
  .amdhsa_accum_offset 256
  .amdhsa_group_segment_fixed_size 0
  .amdhsa_kernarg_size 64
  .amdhsa_user_sgpr_count 2
  .amdhsa_user_sgpr_kernarg_segment_ptr 1
  .amdhsa_system_sgpr_workgroup_id_x 1
.end_amdhsa_kernel
'''
    return head + a.text() + tail

if __name__ == '__main__':
    out = sys.argv[1]
    opt = {}
    for kv in sys.argv[2:]:
        k, v = kv.split('=', 1)
        opt[k] = {'True': True, 'False': False}.get(v, v.replace('+', ' '))
    open(out, 'w').write(gen(opt))
```

```python
import sys, math, struct
from asmlib import *

NAME = 'standalone__global_local_windowed_global_tokens__prompt_kernel'
def f2u(x): return struct.unpack('<I', struct.pack('<f', x))[0]

def gen(opt):
    a = Asm()
    NEG = 0xFF000000
    CSC = f2u(128 ** -0.5 * math.log2(math.e))
    KOFF, VOFF, SOFF = 0, 73728, 155648
    PART, STG = 0, 16384
    PARTML, LCNT = SOFF + 3072, SOFF + 3072 + 128
    STGP = 272
    ldpol = opt.get('ldpol', '')
    qpol = opt.get('qpol', '')
    stpol = opt.get('stpol', 'nt')
    pk = opt.get('pk', True)
    N1 = int(opt.get('n1', 8))
    RW = int(opt.get('rw', 3))
    FW = 7
    SW = 5
    CW, CC = int(opt.get('cw', 1)), 3
    merge = opt.get('merge', True)
    sQ, sK, sV, sO, sW = 20, 24, 28, 32, 36
    sWV, sH, sC, sHO, sQ0B = 40, 43, 44, 45, 46
    sT0, sT1, sT2, sT3 = 47, 48, 49, 50
    sBK = 62
    HW = 4
    sCS = 52; sKG0 = 54; sQB = 51; sEX = 56; sCMB = 58; sCNT = 59
    VA = 0
    vSW, vSR, vOO, vT0 = 8, 9, 10, 11
    X8 = 12
    KF = 16; KG = 112; QA, QB = 128, 144; VG = 160; O = 192; S = 224
    BLO, BHI = 248, 252
    kf = lambda W, ks: KF + 16 * W + 4 * ks
    X = [O + 4 * n for n in range(8)] + [X8]
    vLANE, vI, vKGp, vDK, vDV, vDQ, vAG, vNEG, vAK = O+16, O+17, O+18, O+19, O+20, O+21, O+22, O+23, O+24
    vAVG, t1, t2, t3 = O+28, O+29, O+30, O+31
    vDQk = VG + 7
    vFLAG = VG + 3
    vM, vT = S + 22, S + 23

    stamps = opt.get('stamps', False)
    fine = opt.get('fine', False)
    nst = [0]
    def stamp(on=True):
        if stamps and on:
            a(f's_memrealtime s[{64+2*nst[0]}:{65+2*nst[0]}]')
            if nst[0]: a('s_waitcnt lgkmcnt(0)')
            nst[0] += 1
    M16 = 'v_mfma_f32_16x16x32_bf16'
    def mfma(d, x, y, c):
        return f'{M16} {vr(d,4)}, {vr(x,4)}, {vr(y,4)}, {c if isinstance(c,str) else vr(c,4)}'
    def only(w, lab):
        a(f's_cmp_lg_u32 s{sWV}, {w}')
        a(f's_cbranch_scc1 {lab}')

    stamp()
    if opt.get('clk'): a('s_memtime s[96:97]')
    a('s_load_dwordx16 s[4:19], s[0:1], 0')
    a('s_cmp_ge_u32 s2, 256')
    a('s_cbranch_scc1 L_end')
    a(f'v_lshrrev_b32 v1, 6, v0')
    a(f'v_and_b32 {vr(vLANE)}, 63, v0')
    a(f'v_readfirstlane_b32 s{sWV}, v1')
    a(f'v_and_b32 {vr(vI)}, 15, v0')
    a(f'v_bfe_u32 {vr(vKGp)}, v0, 4, 2')
    if opt.get('cpf'):
        a('s_getpc_b64 s[60:61]')
        a(f'v_lshlrev_b32 v1, 4, v0')
        a(f'global_load_dwordx4 {vr(X8,4)}, v1, s[60:61]')
    a('s_and_b32 s41, s2, 7')
    a('s_lshr_b32 s42, s2, 3')
    a(f's_lshr_b32 s{sH}, s42, 3')
    a(f's_lshl2_add_u32 s{sH}, s41, s{sH}')
    a(f's_and_b32 s{sC}, s42, 7')
    a(f's_lshl_b32 s{sHO}, s{sH}, 19')
    a(f's_lshl_b32 s{sQ0B}, s{sC}, 16')
    a(f's_lshl_b32 s{sT0}, s{sWV}, 2')
    a(f's_lshl_b32 s{sT1}, s{sWV}, 10')
    a(f's_add_u32 s{sT2}, s{sT1}, s{sQ0B}')
    a(f'v_add_u32 {vr(vDK)}, s{sT0}, {vr(vKGp)}')
    a(f'v_xor_b32 {vr(vDK)}, {vr(vDK)}, {vr(vI)}')
    a(f'v_lshlrev_b32 {vr(vDK)}, 4, {vr(vDK)}')
    a(f'v_lshl_add_u32 {vr(vDK)}, {vr(vKGp)}, 8, {vr(vDK)}')
    a(f'v_add_u32 {vr(vDK)}, s{sT2}, {vr(vDK)}')
    a(f's_mov_b32 m0, s{sT1}')
    for s_ in (sK, sV, sQ):
        a(f's_mov_b32 s{s_+2}, 0x80000')
        a(f's_mov_b32 s{s_+3}, 0x20000')
    a(f's_mov_b32 s{sW+2}, 0x4000')
    a(f's_mov_b32 s{sW+3}, 0x20000')
    a(f's_and_b32 s{sBK}, s{sWV}, 3')
    a(f's_lshl_b32 s{sBK}, s{sBK}, 1')
    a(f's_cmp_lt_u32 s{sWV}, 4')
    a(f's_addc_u32 s{sBK}, s{sBK}, 0')
    a(f's_cmp_eq_u32 s{sC}, 0')
    a(f's_cselect_b32 s{sT3}, 0x40000000, 0')
    a(f's_lshl_b32 s{sT0}, s{sBK}, 13')
    a(f's_add_u32 s{sT0}, s{sT0}, s{sQ0B}')
    a(f'v_lshlrev_b32 {vr(vDQ)}, 4, {vr(vKGp)}')
    a(f'v_lshl_add_u32 {vr(vDQ)}, {vr(vI)}, 8, {vr(vDQ)}')
    a(f'v_add_u32 {vr(vDQ)}, s{sT0}, {vr(vDQ)}')
    a(f'v_lshlrev_b32 {vr(t3)}, 4, {vr(vLANE)}')
    a(f's_sub_u32 s{sT0}, s{sT3}, 0x2000')
    a(f'v_add_u32 {vr(t1)}, s{sT0}, {vr(vDQ)}')
    a(f'v_add_u32 {vr(t2)}, 0x1000, {vr(t1)}')
    for n in range(4):
        a(f'v_mov_b32 {vr(S+n)}, -1')
    a(f's_lshl_b32 s41, s{sH}, 14')
    a(f's_lshl_b32 s42, s{sC}, 11')
    a(f's_cmp_ge_u32 s{sWV}, 4')
    a('s_cbranch_scc1 L_helper')
    a('s_waitcnt lgkmcnt(0)')
    stamp()
    a(f's_add_u32 s{sK}, s6, s{sHO}')
    a(f's_addc_u32 s{sK+1}, s7, 0')
    for i in range(18):
        if i:
            a('s_add_u32 m0, m0, 0x1000')
            a(f'v_add_u32 {vr(vDK)}, 0x1000, {vr(vDK)}')
        a(f'buffer_load_dwordx4 {vr(vDK)}, {sr(sK,4)}, 0 offen {ldpol} lds')
    def srds():
        a(f's_add_u32 s{sV}, s8, s{sHO}')
        a(f's_addc_u32 s{sV+1}, s9, 0')
        a(f's_add_u32 s{sQ}, s4, s{sHO}')
        a(f's_addc_u32 s{sQ+1}, s5, 0')
        a(f's_add_u32 s{sW}, s18, s41')
        a(f's_addc_u32 s{sW+1}, s19, 0')
    srds()
    a('s_branch L_v1')
    a.label('L_helper')
    a('s_setprio 3')
    a(f's_mov_b32 m0, {SOFF}')
    a('s_waitcnt lgkmcnt(0)')
    if stamps:
        nst[0] -= 1
        stamp()
    a(f's_add_u32 s{sK}, s6, s{sHO}')
    a(f's_addc_u32 s{sK+1}, s7, 0')
    srds()
    only(FW, 'L_noclear')
    if not opt.get('noclear'): a(f'buffer_store_dwordx4 {vr(S,4)}, {vr(t3)}, {sr(sW,4)}, s42 offen sc0 sc1')
    a('s_mov_b64 exec, 1')
    if not opt.get('noclear'): a(f'buffer_store_dwordx4 {vr(S,4)}, {vr(t3)}, {sr(sW,4)}, s42 offen offset:1024 sc0 sc1')
    a(f'v_mov_b32 {vr(S+4)}, {LCNT}')
    a(f'v_mov_b32 {vr(S+5)}, 0')
    a(f'ds_write_b32 {vr(S+4)}, {vr(S+5)}')
    a('s_mov_b64 exec, -1')
    a.label('L_noclear')
    only(SW, 'L_nosmall')
    for n, srd in enumerate((sK, sQ, sV)):
        if n:
            a(f's_mov_b32 m0, {SOFF + 1024*n}')
            a('s_nop 0')
        a(f'buffer_load_dwordx4 {vr(t3)}, {sr(srd,4)}, 0 offen lds')
    a.label('L_nosmall')
    only(HW, 'L_nohalo')
    for T in range(2):
        for ks in range(4):
            a(f'buffer_load_dwordx4 {vr(kf(T,ks),4)}, {vr(t1+T)}, {sr(sK,4)}, 0 offen offset:{64*ks}')
    a.label('L_nohalo')
    a('s_setprio 0')
    a('s_branch L_nov1')
    a.label('L_v1')
    def vpiece(i):
        if i:
            a('s_add_u32 m0, m0, 0x1000')
            a(f'v_add_u32 {vr(vDV)}, 0x1000, {vr(vDV)}')
        if i < 2:
            a(f'v_add_u32 {vr(t1)}, s{sT3}, {vr(vDV)}')
            a(f'buffer_load_dwordx4 {vr(t1)}, {sr(sV,4)}, 0 offen {ldpol} lds')
        else:
            a(f'buffer_load_dwordx4 {vr(vDV)}, {sr(sV,4)}, 0 offen {ldpol} lds')
    a(f's_and_b32 s{sT0}, s{sWV}, 1')
    a(f's_lshl_b32 s{sT0}, s{sT0}, 2')
    a(f'v_add_lshl_u32 {vr(vDV)}, s{sT0}, {vr(vKGp)}, 1')
    a(f'v_xor_b32 {vr(vDV)}, {vr(vDV)}, {vr(vI)}')
    a(f'v_lshlrev_b32 {vr(vDV)}, 4, {vr(vDV)}')
    a(f'v_lshl_add_u32 {vr(vDV)}, {vr(vKGp)}, 8, {vr(vDV)}')
    a(f's_sub_u32 s{sT2}, s{sT2}, 0x2000')
    a(f'v_add_u32 {vr(vDV)}, s{sT2}, {vr(vDV)}')
    a(f's_add_u32 m0, s{sT1}, {VOFF}')
    for i in range(N1): vpiece(i)
    a.label('L_nov1')
    stamp()

    a(f's_add_u32 s{sO}, s14, s{sHO}')
    a(f's_addc_u32 s{sO+1}, s15, 0')
    a(f's_mov_b32 s{sO+2}, 0x80000')
    a(f's_mov_b32 s{sO+3}, 0x20000')
    a(f's_mov_b32 s{sCS}, 0x{CSC:08x}')
    a(f's_mov_b32 s{sCS+1}, 0x{CSC:08x}')
    a(f'v_mov_b32 {vr(vNEG)}, 0x{NEG:08x}')
    a(f'v_lshlrev_b32 {vr(t2)}, 2, {vr(vKGp)}')
    a(f'v_cmp_eq_u32 {sr(sKG0,2)}, 0, {vr(vKGp)}')
    for r in range(4):
        a(f'v_add_u32 {vr(t1)}, {r}, {vr(t2)}')
        a(f'v_cmp_ge_u32 vcc, {vr(t1)}, {vr(vI)}')
        a(f'v_cmp_le_u32 s[60:61], {vr(t1)}, {vr(vI)}')
        a('s_nop 0')
        a(f'v_cndmask_b32 {vr(BLO+r)}, {vr(vNEG)}, 0, vcc')
        a(f'v_cndmask_b32 {vr(BHI+r)}, {vr(vNEG)}, 0, s[60:61]')
    a(f's_lshl_b32 s{sT0}, s{sBK}, 13')
    a(f'v_xor_b32 {vr(t1)}, {vr(vKGp)}, {vr(vI)}')
    a(f'v_lshlrev_b32 {vr(t1)}, 4, {vr(t1)}')
    a(f'v_lshl_add_u32 {vr(t1)}, {vr(vI)}, 8, {vr(t1)}')
    a(f'v_add_u32 {vr(vAK)}, s{sT0}, {vr(t1)}')
    for ks in range(1, 4):
        a(f'v_xor_b32 {vr(vAK+ks)}, {64*ks}, {vr(vAK)}')
    a(f'v_and_b32 {vr(t1)}, 1, {vr(vI)}')
    a(f'v_lshlrev_b32 {vr(vNEG)}, 3, {vr(t1)}')
    a(f'v_lshlrev_b32 {vr(t1)}, 8, {vr(t1)}')
    a(f'v_lshl_add_u32 {vr(t1)}, {vr(vKGp)}, 4, {vr(t1)}')
    a(f'v_add_u32 {vr(vAG)}, {SOFF}, {vr(t1)}')
    a(f'v_bfe_u32 {vr(t1)}, {vr(vLANE)}, 2, 2')
    a(f'v_and_b32 {vr(t2)}, 3, {vr(vLANE)}')
    a(f'v_lshlrev_b32 {vr(t2)}, 3, {vr(t2)}')
    a(f'v_lshl_add_u32 {vr(t1)}, {vr(t1)}, 8, {vr(t2)}')
    a(f'v_add_u32 {vr(vAVG)}, {SOFF+2048}, {vr(t1)}')
    a(f'v_lshrrev_b32 {vr(t1)}, 2, {vr(vLANE)}')
    a(f'v_and_b32 {vr(vT0)}, 7, {vr(t1)}')
    a(f'v_lshl_add_u32 {vr(t2)}, {vr(vT0)}, 5, {vr(t2)}')
    a(f'v_lshl_add_u32 {vr(t2)}, {vr(t1)}, 8, {vr(t2)}')
    a(f's_add_u32 s{sT1}, s{sT0}, {VOFF}')
    a(f'v_add_u32 {vr(VA)}, s{sT1}, {vr(t2)}')
    for t in range(1, 8):
        a(f'v_xor_b32 {vr(VA+t)}, {32*t}, {vr(VA)}')
    a(f's_mul_i32 s{sT1}, s{sWV}, {16*STGP}')
    a(f's_add_u32 s{sT1}, s{sT1}, {STG}')
    a(f'v_mul_u32_u24 {vr(t1)}, {STGP}, {vr(vI)}')
    a(f'v_lshl_add_u32 {vr(t1)}, {vr(vKGp)}, 3, {vr(t1)}')
    a(f'v_add_u32 {vr(vSW)}, s{sT1}, {vr(t1)}')
    a(f'v_mul_u32_u24 {vr(t1)}, {STGP}, {vr(vKGp)}')
    a(f'v_lshl_add_u32 {vr(t1)}, {vr(vI)}, 4, {vr(t1)}')
    a(f'v_add_u32 {vr(vSR)}, s{sT1}, {vr(t1)}')
    a(f's_add_u32 s{sT0}, s{sT0}, s{sQ0B}')
    a(f'v_add_u32 {vr(vOO)}, s{sT0}, {vr(t3)}')
    a(f's_lshr_b32 s{sQB}, s{sT0}, 8')
    a(f's_cmp_eq_u32 s{sQB}, 0')
    a(f's_cselect_b32 s{sEX}, 0, -1')
    a(f's_mov_b32 s{sEX+1}, -1')
    a(f's_cmp_eq_u32 s{sQB}, {256*CC+32*(2*CW+1)}')
    a(f's_cselect_b32 s{sCMB}, 1, 0')
    a(f's_lshl_b32 s{sT0}, s{sWV}, 4')
    a(f's_add_u32 s{sT0}, s{sT0}, {PARTML}')
    a(f'v_add_u32 {vr(vNEG)}, s{sT0}, {vr(vNEG)}')

    a(f's_waitcnt vmcnt({N1})')
    a(f's_cmp_lt_u32 s{sWV}, 4')
    a('s_cbranch_scc1 L_kw')
    a('s_waitcnt vmcnt(0) lgkmcnt(0)')
    only(FW, 'L_kw')
    a('s_mov_b64 exec, 1')
    a(f's_lshl3_add_u32 s{sT0}, s{sH}, s{sC}')
    a(f'v_mov_b32 {vr(S+4)}, s{sT0}')
    a(f'v_mov_b32 {vr(S+5)}, 1')
    if not opt.get('noflag'): a(f'global_store_byte {vr(S+4)}, {vr(S+5)}, s[16:17] sc0 sc1')
    a('s_mov_b64 exec, -1')
    a.label('L_kw')
    stamp(opt.get('prek', False))
    a('s_barrier')
    stamp()
    a(f's_cmp_ge_u32 s{sWV}, 4')
    a('s_cbranch_scc1 L_nov2')
    for i in range(N1, 20): vpiece(i)
    a.label('L_nov2')
    stamp(fine)
    QG = O
    for W in (2, 3, 4, 5):
        for ks in range(4):
            a(f'ds_read_b128 {vr(kf(W,ks),4)}, {vr(vAK+ks)} offset:{4096*(W-2)}')
    for ks in range(4):
        a(f'ds_read_b128 {vr(KG+4*ks,4)}, {vr(vAG)} offset:{64*ks}')
    for t in range(8):
        a(f'ds_read_b64_tr_b16 {vr(VG+4*t+2,2)}, {vr(vAVG)} offset:{32*t}')
    a(f's_cmp_eq_u32 s{sWV}, {HW}')
    a('s_cbranch_scc1 L_k01done')
    for ks in range(4):
        a(f'v_subrev_u32 {vr(vAK+ks)}, 0x2000, {vr(vAK+ks)}')
    for W in (0, 1):
        for ks in range(4):
            a(f'ds_read_b128 {vr(kf(W,ks),4)}, {vr(vAK+ks)} offset:{4096*W}')
    a.label('L_k01done')
    def issue_qa():
        if opt.get('qprio'): a('s_setprio 3')
        for ks in range(4):
            a(f'buffer_load_dwordx4 {vr(QA+4*ks,4)}, {vr(vDQ)}, {sr(sQ,4)}, 0 offen offset:{64*ks} {qpol}')
        if opt.get('qprio'): a('s_setprio 0')

    def xred(m, t, op='v_max_f32'):
        a(f'v_mov_b32 {vr(t)}, {vr(m)}')
        a.nop(2)
        a(f'v_permlane16_swap_b32 {vr(m)}, {vr(t)}')
        a(f'{op} {vr(m)}, {vr(m)}, {vr(t)}')
        a(f'v_mov_b32 {vr(t)}, {vr(m)}')
        a.nop(2)
        a(f'v_permlane32_swap_b32 {vr(m)}, {vr(t)}')
        a(f'{op} {vr(m)}, {vr(m)}, {vr(t)}')
    def maxtree_l(vals, m, first=True):
        out = []; rest = list(vals)
        if first:
            out.append(f'v_max3_f32 {vr(m)}, {vr(rest[0])}, {vr(rest[1])}, {vr(rest[2])}'); rest = rest[3:]
        while len(rest) >= 2:
            out.append(f'v_max3_f32 {vr(m)}, {vr(m)}, {vr(rest[0])}, {vr(rest[1])}'); rest = rest[2:]
        if rest:
            out.append(f'v_max_f32 {vr(m)}, {vr(m)}, {vr(rest[0])}')
        return out
    def fma_l(vals, mc):
        if pk:
            return [f'v_pk_fma_f32 {vr(vals[n],2)}, {vr(vals[n],2)}, {sr(sCS,2)}, {vr(mc,2)} op_sel_hi:[1,1,0] neg_lo:[0,0,1] neg_hi:[0,0,1]' for n in range(0, len(vals), 2)]
        return [f'v_fma_f32 {vr(v)}, {vr(v)}, s{sCS}, -{vr(mc)}' for v in vals]
    exp_l = lambda vals: [f'v_exp_f32 {vr(v)}, {vr(v)}' for v in vals]
    cvt_l = lambda dst, src, n: [f'v_cvt_pk_bf16_f32 {vr(dst+k)}, {vr(src+2*k)}, {vr(src+2*k+1)}' for k in range(n)]

    def vread(dst, t, W):
        return f'ds_read_b64_tr_b16 {vr(dst,2)}, {vr(VA+t)} offset:{4096*W}'
    a(f's_cmp_lt_u32 s{sWV}, 4')
    a('s_cbranch_scc1 L_gk')
    issue_qa()
    a('s_waitcnt lgkmcnt(0)')
    a(f'v_add_u32 {vr(vDQk)}, 0x1000, {vr(vDQ)}')
    stamp(fine)
    a('s_barrier')
    for t in range(8):
        a(vread(X[t+1], t, 0)); a(vread(X[t+1]+2, t, 1))
    a('s_branch L_gdone')
    a.label('L_gk')
    for ks in range(4):
        a(f'ds_read_b128 {vr(QG+4*ks,4)}, {vr(vAG)} offset:{1024+64*ks}')
    issue_qa()
    a('s_waitcnt lgkmcnt(0)')
    for T in range(4):
        for ks in range(4):
            a(mfma(S+4*T, kf(T,ks), QG+4*ks, '0' if ks == 0 else S+4*T))
    a(f'v_add_u32 {vr(vDQk)}, 0x1000, {vr(vDQ)}')
    a.nop(7)
    for l in maxtree_l([S+x for x in range(16)], vM): a(l)
    xred(vM, vT)
    a(f'v_mul_f32 {vr(vM)}, s{sCS}, {vr(vM)}')
    for l in fma_l([S+x for x in range(16)], vM): a(l)
    for l in exp_l([S+x for x in range(16)]): a(l)
    a.nop(1)
    a(f'v_add_f32 {vr(vT)}, {vr(S)}, {vr(S+1)}')
    for x in range(2, 16):
        a(f'v_add_f32 {vr(vT)}, {vr(vT)}, {vr(S+x)}')
    for l in cvt_l(S, S, 8): a(l)
    xred(vT, vT0, 'v_add_f32')
    a(f'ds_write_b64 {vr(vNEG)}, {vr(vM,2)}')
    a(f'v_mbcnt_lo_u32_b32 {vr(vT0)}, -1, 0')
    a(f's_lshl_b32 s{sT0}, s{sWV}, 10')
    a(f'v_lshl_add_u32 {vr(vT0)}, {vr(vT0)}, 3, s{sT0}')
    if stamps and fine:
        nst[0] -= 1
        stamp()
    a('s_waitcnt vmcnt(4) lgkmcnt(0)')
    a('s_barrier')
    gb = [QB + 4*n for n in range(4)] + [S + 8 + 4*n for n in range(4)]
    for t in range(8):
        a(vread(gb[t], t, 2)); a(vread(gb[t]+2, t, 3))
    for t in range(8):
        a('s_waitcnt lgkmcnt(14)')
        a(mfma(gb[t], S+4, gb[t], '0'))
        a(vread(X[t+1], t, 0)); a(vread(X[t+1]+2, t, 1))
    for t in range(8):
        a(f's_waitcnt lgkmcnt({14-2*t})')
        a(mfma(gb[t], S, X[t+1], gb[t]))
    a('s_mov_b64 exec, 1')
    a(f'v_mov_b32 {vr(S)}, {LCNT}')
    a(f'v_mov_b32 {vr(S+1)}, 1')
    a('s_mov_b64 exec, 0xffff')
    for t in range(8):
        a(f'ds_write_b64 {vr(vT0)}, {vr(gb[t],2)} offset:{PART+128*t}')
    a('s_mov_b64 exec, 1')
    a(f'ds_add_u32 {vr(S)}, {vr(S+1)}')
    a('s_mov_b64 exec, -1')
    a.label('L_gdone')
    stamp()

    def combine8(og, mg, tm):
        NP = len(og)
        for e in range(2):
            for l in maxtree_l([mg[n]+2*e for n in range(NP)], tm+e): a(l)
        for n in range(NP):
            for e in range(2):
                a(f'v_sub_f32 {vr(mg[n]+2*e)}, {vr(mg[n]+2*e)}, {vr(tm+e)}')
        for n in range(NP):
            for e in range(2):
                a(f'v_exp_f32 {vr(mg[n]+2*e)}, {vr(mg[n]+2*e)}')
        a.nop(1)
        for e in range(2):
            a(f'v_mul_f32 {vr(tm+2+e)}, {vr(mg[0]+2*e)}, {vr(mg[0]+2*e+1)}')
            a(f'v_mul_f32 {vr(og[0]+e)}, {vr(og[0]+e)}, {vr(mg[0]+2*e)}')
            a(f'v_mul_f32 {vr(og[0]+2+e)}, {vr(og[0]+2+e)}, {vr(mg[0]+2*e)}')
        for n in range(1, NP):
            for e in range(2):
                a(f'v_fmac_f32 {vr(tm+2+e)}, {vr(mg[n]+2*e)}, {vr(mg[n]+2*e+1)}')
                a(f'v_fmac_f32 {vr(og[0]+e)}, {vr(og[n]+e)}, {vr(mg[n]+2*e)}')
                a(f'v_fmac_f32 {vr(og[0]+2+e)}, {vr(og[n]+2+e)}, {vr(mg[n]+2*e)}')

    def issue_qb():
        for ks in range(4):
            a(f'buffer_load_dwordx4 {vr(QB+4*ks,4)}, {vr(vDQk)}, {sr(sQ,4)}, 0 offen offset:{64*ks} {qpol}')
        a(f'v_mov_b32 {vr(vDQk)}, 0')
    def flag_load():
        a(f's_lshl_b32 s{sT0}, s{sH}, 3')
        a(f'v_mbcnt_lo_u32_b32 {vr(vT0)}, -1, 0')
        a(f'v_and_or_b32 {vr(vT0)}, {vr(vT0)}, 7, s{sT0}')
        a(f'global_load_ubyte {vr(vFLAG)}, {vr(vT0)}, s[16:17] sc0 sc1')
    def flag_test():
        a(f'v_cmp_eq_u32 vcc, 1, {vr(vFLAG)}')
        a('s_nop 1')
        a('s_cmp_eq_u64 vcc, exec')

    a(f's_cmp_eq_u32 s{sWV}, {RW}')
    a('s_cbranch_scc1 L_reduce')
    issue_qb()
    a(f's_cmp_eq_u32 s{sCMB}, 0')
    a('s_cbranch_scc1 L_noflag')
    flag_load()
    a('s_waitcnt vmcnt(5)')
    a('s_branch L_tileA')
    a.label('L_noflag')
    a('s_waitcnt vmcnt(4)')
    a('s_branch L_tileA')
    a.label('L_reduce')
    og = [S + 8, S + 12, S + 16, S + 20]
    mg = [S, S + 4, QB, QB + 4]
    a(f'v_mbcnt_lo_u32_b32 {vr(vT0)}, -1, 0')
    a(f'v_mbcnt_hi_u32_b32 {vr(vT0)}, -1, {vr(vT0)}')
    a(f'v_lshlrev_b32 {vr(vT0)}, 4, {vr(vT0)}')
    a(f'v_mov_b32 {vr(QB+8)}, {PARTML}')
    a(f's_mov_b32 s{sCNT}, 0')
    a.label('L_lspin')
    a(f'ds_read_b32 {vr(QB+9)}, {vr(QB+8)} offset:128')
    a(f's_add_u32 s{sCNT}, s{sCNT}, 1')
    a('s_waitcnt lgkmcnt(0)')
    a(f'v_readfirstlane_b32 s{sT0}, {vr(QB+9)}')
    a(f's_cmp_ge_u32 s{sCNT}, 0x100000')
    a('s_cbranch_scc1 L_lok')
    a(f's_cmp_lt_u32 s{sT0}, 4')
    a('s_cbranch_scc1 L_lspin')
    a.label('L_lok')
    for n in range(4):
        a(f'ds_read_b128 {vr(mg[n],4)}, {vr(QB+8)} offset:{16*n}')
    for n in range(4):
        a(f'ds_read_b128 {vr(og[n],4)}, {vr(vT0)} offset:{PART+1024*n}')
    a('s_waitcnt lgkmcnt(0)')
    combine8(og, mg, QB+12)
    a(f'v_min_u32 {vr(S)}, -2, {vr(QB+12)}')
    a(f'v_min_u32 {vr(S+1)}, -2, {vr(QB+14)}')
    a(f'v_min_u32 {vr(S+2)}, -2, {vr(QB+13)}')
    a(f'v_min_u32 {vr(S+3)}, -2, {vr(QB+15)}')
    for e in range(4):
        a(f'v_min_u32 {vr(S+8+e)}, -2, {vr(S+8+e)}')
    a(f'buffer_store_dwordx4 {vr(S+8,4)}, {vr(vT0)}, {sr(sW,4)}, s42 offen sc0 sc1')
    a('s_mov_b64 exec, 1')
    a(f'buffer_store_dwordx4 {vr(S,4)}, {vr(vT0)}, {sr(sW,4)}, s42 offen offset:1024 sc0 sc1')
    a('s_mov_b64 exec, -1')
    issue_qb()
    a('s_waitcnt vmcnt(6)')
    a.label('L_tileA')
    stamp()

    def inter(ms, vs, per=2):
        vs = list(vs)
        for m in ms:
            a(m)
            for _ in range(per):
                if vs: a(vs.pop(0))
        for v in vs: a(v)

    HB = kf(2, 0)
    hog = [HB + 4*n for n in range(8)]
    hmg = [HB + 32 + 4*n for n in range(8)]
    def hand_loads():
        a(f'v_mbcnt_lo_u32_b32 {vr(KG)}, -1, 0')
        a(f'v_mbcnt_hi_u32_b32 {vr(KG)}, -1, {vr(KG)}')
        a(f'v_lshlrev_b32 {vr(KG)}, 4, {vr(KG)}')
        a(f'v_mov_b32 {vr(KG+1)}, 0')
        for n in range(8):
            a(f's_movk_i32 s{sT0}, {2048*n}')
            a(f'buffer_load_dwordx4 {vr(hog[n],4)}, {vr(KG)}, {sr(sW,4)}, s{sT0} offen sc0 sc1')
            a(f'buffer_load_dwordx4 {vr(hmg[n],4)}, {vr(KG+1)}, {sr(sW,4)}, s{sT0} offen offset:1024 sc0 sc1')

    buf = [kf(0, n) for n in range(4)] + [QA + 4*n for n in range(4)]
    SLOTW = {0: [0, 1, 2, 3, 4], 1: [4, 5, 2, 3, 1]}
    def qk(tau, sl):
        Q = QA if tau == 0 else QB
        if sl == 'G':
            return [mfma(S+20, KG+4*ks, Q+4*ks, '0' if ks == 0 else S+20) for ks in range(4)]
        W = SLOTW[tau][sl]
        c0 = BLO if W == tau else BHI if W == tau + 4 else '0'
        return [mfma(S+4*sl, kf(W,ks), Q+4*ks, c0 if ks == 0 else S+4*sl) for ks in range(4)]
    def edge_test(tau, lab):
        a(f's_sub_u32 s{sT0}, s{sQB}, {48 - 16*tau}')
        a(f's_cmp_lt_u32 s{sT0}, 1968')
        a(f's_cbranch_scc1 {lab}')
    def edge_mask(tau, tr):
        a(f'v_mbcnt_lo_u32_b32 {vr(tr)}, -1, 0')
        a(f'v_mbcnt_hi_u32_b32 {vr(tr)}, -1, {vr(tr)}')
        a(f'v_lshrrev_b32 {vr(tr)}, 4, {vr(tr)}')
        a(f's_sub_u32 s{sT0}, s{sQB}, 34')
        a(f's_movk_i32 s{sT1}, 2046')
        a(f'v_lshl_add_u32 {vr(tr)}, {vr(tr)}, 2, s{sT0}')
        a(f'v_mov_b32 {vr(vM)}, 0x{NEG:08x}')
        a('s_nop 3')
        for sl in range(5):
            for r in range(4):
                a(f'v_add_u32 {vr(vT)}, {16*SLOTW[tau][sl]+r}, {vr(tr)}')
                a(f'v_cmp_gt_u32 vcc, s{sT1}, {vr(vT)}')
                a('s_nop 1')
                a(f'v_cndmask_b32 {vr(S+4*sl+r)}, {vr(vM)}, {vr(S+4*sl+r)}, vcc')
        for l in maxtree_l([S+x for x in range(22)], vM): a(l)
    def epi(t):
        l = [f'v_mul_f32 {vr(O+4*t+e)}, {vr(O+4*t+e)}, {vr(vT0)}' for e in range(4)]
        l += [f'v_cvt_pk_bf16_f32 {vr(O+4*t)}, {vr(O+4*t)}, {vr(O+4*t+1)}',
              f'v_cvt_pk_bf16_f32 {vr(O+4*t+1)}, {vr(O+4*t+2)}, {vr(O+4*t+3)}',
              f'ds_write_b64 {vr(vSW)}, {vr(O+4*t,2)} offset:{32*t}']
        return l
    def stage_reads():
        return [f'ds_read_b128 {vr(O+4*j,4)}, {vr(vSR)} offset:{4*STGP*j}' for j in range(4)]
    def stores(tau):
        for j in range(4):
            a(f's_waitcnt lgkmcnt({3-j})')
            if tau == 0 and j == 0: a(f's_mov_b64 exec, {sr(sEX,2)}')
            a(f'buffer_store_dwordx4 {vr(O+4*j,4)}, {vr(vOO)}, {sr(sO,4)}, 0 offen offset:{1024*j} {stpol}')
            if tau == 0 and j == 0: a('s_mov_b64 exec, -1')
    def softmax_pv(tau):
        m = vM
        xred(m, vT)
        a(f'v_mul_f32 {vr(m)}, s{sCS}, {vr(m)}')
        set0 = [S+x for x in range(8)]; set1 = [S+8+x for x in range(8)]; set2 = [S+16+x for x in range(6)]
        for l in fma_l(set0, m): a(l)
        f2 = fma_l(set2, m); f1 = fma_l(set1, m)
        for l in exp_l(set0): a(l)
        a(f2[0])
        for l in cvt_l(S, S, 4): a(l)
        a(f2[1])
        a('s_waitcnt lgkmcnt(0)' if tau == 1 else 's_waitcnt lgkmcnt(8)')
        ONES, LACC = S+4, S+20
        v2 = f2[2:] + exp_l(set2) + [f'v_mov_b32 {vr(ONES+n)}, 0x3f803f80' for n in range(4)] + cvt_l(S+16, S+16, 3) \
             + [f'v_mov_b32 {vr(S+19)}, 0', f'v_cndmask_b32 {vr(S+18)}, 0, {vr(S+18)}, {sr(sKG0,2)}']
        inter([mfma(X[t], X[t+1], S, '0') for t in range(8)], v2 + f1[:2])
        v1 = f1[2:] + exp_l(set1) + [f'v_mov_b32 {vr(vT0)}, 0'] + cvt_l(S+8, S+8, 4)
        inter([mfma(O+4*t, VG+4*t, S+16, O+4*t) for t in range(8)], v1)
        a(mfma(LACC, ONES, S, '0'))
        a(mfma(LACC, ONES, S+16, LACC))
        a(mfma(LACC, ONES, S+8, LACC))
        if tau == 0:
            a('s_waitcnt lgkmcnt(0)')
        for t in range(8):
            a(mfma(O+4*t, buf[t], S+8, O+4*t))
            if tau == 0: a(vread(VG+4*t, t, 1))
        a(f'v_rcp_f32 {vr(vT0)}, {vr(LACC)}')

    late = []
    for t in range(8):
        late += [vread(buf[t], t, 2), vread(buf[t]+2, t, 3)]
    vgr = [vread(VG+4*t, t, 4) for t in range(8)]
    edge_test(0, 'L_fastA')
    for l in vgr: a(l)
    for sl in ('G', 0, 1, 2, 3, 4):
        for l in qk(0, sl): a(l)
    for l in late: a(l)
    edge_mask(0, vT0)
    a('s_branch L_joinA')
    a.label('L_fastA')
    m = vM
    inter(qk(0, 0) + qk(0, 'G'), vgr, per=1)
    inter(qk(0, 1) + qk(0, 2), late[:8], per=1)
    inter(qk(0, 3), maxtree_l([S+20, S+21, S+0], m) + maxtree_l([S+1, S+2, S+3, S+4, S+5, S+6], m, False), per=1)
    inter(qk(0, 4), maxtree_l([S+7, S+8, S+9, S+10], m, False), per=1)
    for l in late[8:11]: a(l)
    for l in maxtree_l([S+11, S+12], m, False): a(l)
    for l in late[11:13]: a(l)
    for l in maxtree_l([S+13, S+14, S+15], m, False): a(l)
    for l in late[13:]: a(l)
    for l in maxtree_l([S+16, S+17, S+18, S+19], m, False): a(l)
    a.label('L_joinA')
    stamp(fine)
    softmax_pv(0)
    stamp(fine)
    a('s_waitcnt vmcnt(0)')
    stamp()
    ep = []
    for t in range(8): ep += epi(t)
    ep += stage_reads()
    edge_test(1, 'L_fastB')
    for l in ep: a(l)
    stores(0)
    for sl in (0, 1, 2, 3, 4, 'G'):
        for l in qk(1, sl): a(l)
    for t in range(8):
        a(vread(X[t+1], t, 4)); a(vread(X[t+1]+2, t, 5))
    edge_mask(1, vT0)
    a('s_branch L_joinB')
    a.label('L_fastB')
    ms = []
    for sl in (0, 1, 2, 3, 4, 'G'): ms += qk(1, sl)
    inter(ms, ep, per=3)
    for l in maxtree_l([S+x for x in range(15)], vT0): a(l)
    stores(0)
    for t in range(8):
        a(vread(X[t+1], t, 4)); a(vread(X[t+1]+2, t, 5))
    a(f'v_max3_f32 {vr(vM)}, {vr(vT0)}, {vr(S+15)}, {vr(S+16)}')
    for l in maxtree_l([S+17, S+18, S+19, S+20, S+21], vM, False): a(l)
    a.label('L_joinB')
    a(f'v_add_u32 {vr(vOO)}, 0x1000, {vr(vOO)}')
    stamp()
    a(f's_cmp_eq_u32 s{sCMB}, 0')
    a('s_cbranch_scc1 L_nohand')
    a(f's_mov_b32 s{sCNT}, 0')
    flag_test()
    if opt.get('noflag'): a('s_branch L_flagok')
    a('s_cbranch_scc1 L_flagok')
    a.label('L_flagspin')
    flag_load()
    a('s_waitcnt vmcnt(0)')
    a(f's_add_u32 s{sCNT}, s{sCNT}, 1')
    flag_test()
    a('s_cbranch_scc1 L_flagok')
    a(f's_cmp_lt_u32 s{sCNT}, 0x40000')
    a('s_cbranch_scc1 L_flagspin')
    a.label('L_flagok')
    hand_loads()
    a.label('L_nohand')
    softmax_pv(1)
    stamp(fine)
    a('s_nop 0')
    for t in range(8):
        for l in epi(t): a(l)
    for l in stage_reads(): a(l)
    stores(1)
    stamp()

    a(f's_cmp_eq_u32 s{sCMB}, 0')
    a('s_cbranch_scc1 L_fin')
    a('s_waitcnt vmcnt(4)')
    a(f's_mov_b32 s{sCNT}, 0')
    a.label('L_chk')
    a(f'v_max3_u32 {vr(vT0)}, {vr(HB)}, {vr(HB+1)}, {vr(HB+2)}')
    for n in range(3, 63, 2):
        a(f'v_max3_u32 {vr(vT0)}, {vr(vT0)}, {vr(HB+n)}, {vr(HB+n+1)}')
    a(f'v_max_u32 {vr(vT0)}, {vr(vT0)}, {vr(HB+63)}')
    a(f'v_cmp_eq_u32 vcc, -1, {vr(vT0)}')
    a(f's_add_u32 s{sCNT}, s{sCNT}, 1')
    a('s_nop 3')
    a('s_cbranch_vccz L_ready')
    a(f's_cmp_ge_u32 s{sCNT}, 0x40000')
    a('s_cbranch_scc1 L_ready')
    hand_loads()
    a('s_waitcnt vmcnt(0)')
    a('s_branch L_chk')
    a.label('L_ready')
    combine8(hog, hmg, X8)
    a(f'v_rcp_f32 {vr(X8)}, {vr(X8+2)}')
    a(f'v_rcp_f32 {vr(X8+1)}, {vr(X8+3)}')
    a(f'v_lshrrev_b32 {vr(KG)}, 2, {vr(KG)}')
    a(f'v_pk_mul_f32 {vr(HB,2)}, {vr(HB,2)}, {vr(X8,2)}')
    a(f'v_pk_mul_f32 {vr(HB+2,2)}, {vr(HB+2,2)}, {vr(X8,2)}')
    a(f'v_cvt_pk_bf16_f32 {vr(X8+2)}, {vr(HB)}, {vr(HB+2)}')
    a(f'v_cvt_pk_bf16_f32 {vr(X8+3)}, {vr(HB+1)}, {vr(HB+3)}')
    a(f'buffer_store_dword {vr(X8+2)}, {vr(KG)}, {sr(sO,4)}, 0 offen {stpol}')
    a(f'buffer_store_dword {vr(X8+3)}, {vr(KG)}, {sr(sO,4)}, 0 offen offset:256 {stpol}')
    a.label('L_fin')
    if stamps:
        stamp()
        a('s_waitcnt vmcnt(0)')
        stamp()
        if opt.get('clk'):
            a('s_memtime s[98:99]')
            a('s_waitcnt lgkmcnt(0)')
            a('s_sub_u32 s98, s98, s96')
            a(f's_add_u32 s{64+2*nst[0]}, s98, s64')
            nst[0] += 1
        a(f's_lshl_b32 s{sT0}, s2, 3')
        a(f's_add_u32 s{sT0}, s{sT0}, s{sWV}')
        a(f's_lshl_b32 s{sT0}, s{sT0}, 6')
        a(f's_add_u32 s{sT0}, s{sT0}, 0x100000')
        a(f's_add_u32 s{sW}, s18, s{sT0}')
        a(f's_addc_u32 s{sW+1}, s19, 0')
        a(f'v_mov_b32 v1, 0')
        a('s_mov_b64 exec, 1')
        for n in range(min(16, nst[0])):
            a(f'v_mov_b32 v2, s{64+2*n}')
            a(f'buffer_store_dword v2, v1, {sr(sW,4)}, 0 offen offset:{4*n}')
        if 'leak' in opt:
            k = int(opt['leak'])
            a(f's_sub_u32 s{sT0}, s{64+2*k}, s64')
            a(f's_lshl_b32 s{sT0}, s{sT0}, 2')
            if 'leakw' in opt:
                a(f's_lshr_b32 s{sT1}, {opt["leakw"]}, s{sWV}')
                a(f's_bitcmp1_b32 s{sT1}, 0')
                a(f's_cselect_b32 s{sT0}, s{sT0}, 0')
            a(f"s_add_u32 s{sT0}, s{sT0}, {opt.get('spin', 5000)}")
            a.label('L_spin')
            a('s_memrealtime s[100:101]')
            a('s_waitcnt lgkmcnt(0)')
            a(f's_sub_u32 s{sT1}, s100, s64')
            a(f's_cmp_lt_u32 s{sT1}, s{sT0}')
            a('s_cbranch_scc1 L_spin')
    a.label('L_end')
    a('s_endpgm')
    if opt.get('cpf'):
        a('.fill 2048, 4, 0xbf800000')

    check(a.lines)
    if stamps: print('stamps', nst[0])
    head = f'''; windowed + global-token attention, B=1 H=32 S=2048 D=128 bf16 (window 32, 2 global tokens)
; @launch grid=(256,1,1) block=(512,1,1) lds=163840
.amdgcn_target "amdgcn-amd-amdhsa--gfx950"
.text
.globl {NAME}
.p2align 8
.type {NAME},@function
{NAME}:
'''
    tail = f'''.section .rodata,"a"
.p2align 6
.amdhsa_kernel {NAME}
  .amdhsa_next_free_vgpr 256
  .amdhsa_next_free_sgpr {102 if stamps else 64}
  .amdhsa_accum_offset 256
  .amdhsa_group_segment_fixed_size 0
  .amdhsa_kernarg_size 64
  .amdhsa_user_sgpr_count 2
  .amdhsa_user_sgpr_kernarg_segment_ptr 1
  .amdhsa_system_sgpr_workgroup_id_x 1
.end_amdhsa_kernel
'''
    return head + a.text() + tail

if __name__ == '__main__':
    out = sys.argv[1]
    opt = {}
    for kv in sys.argv[2:]:
        k, v = kv.split('=', 1)
        opt[k] = {'True': True, 'False': False}.get(v, v.replace('+', ' '))
    open(out, 'w').write(gen(opt))
```

```python
import sys, math, struct
from asmlib import *

NAME = 'standalone__global_local_windowed_global_tokens__prompt_kernel'
def f2u(x): return struct.unpack('<I', struct.pack('<f', x))[0]

def gen(opt):
    a = Asm()
    NEG = 0xFF000000
    CSC = f2u(128 ** -0.5 * math.log2(math.e))
    KOFF, VOFF, SOFF = 0, 73728, 155648
    PART, STG = 0, 16384
    PARTML, LCNT, LNON = SOFF + 3072, SOFF + 3072 + 128, SOFF + 3072 + 132
    STGP = 272
    ldpol = opt.get('ldpol', '')
    qpol = opt.get('qpol', '')
    stpol = opt.get('stpol', 'nt')
    pk = opt.get('pk', True)
    N1 = int(opt.get('n1', 8))
    RW = int(opt.get('rw', 3))
    FW = 7
    SW = 5
    CW, CC = int(opt.get('cw', 1)), 3
    merge = opt.get('merge', True)
    sQ, sK, sV, sO, sW = 20, 24, 28, 32, 36
    sWV, sH, sC, sHO, sQ0B = 40, 43, 44, 45, 46
    sT0, sT1, sT2, sT3 = 47, 48, 49, 50
    sBK = 62
    HW = 4
    sCS = 52; sKG0 = 54; sQB = 51; sEX = 56; sCMB = 58; sCNT = 59; sN = 63
    VA = 0
    vSW, vSR, vOO, vT0 = 8, 9, 10, 11
    X8 = 12
    KF = 16; KG = 112; QA, QB = 128, 144; VG = 160; O = 192; S = 224
    BLO, BHI = 248, 252
    kf = lambda W, ks: KF + 16 * W + 4 * ks
    X = [O + 4 * n for n in range(8)] + [X8]
    vLANE, vI, vKGp, vDK, vDV, vDQ, vAG, vNEG, vAK = O+16, O+17, O+18, O+19, O+20, O+21, O+22, O+23, O+24
    vAVG, t1, t2, t3 = O+28, O+29, O+30, O+31
    vDQk = VG + 7
    vFLAG = VG + 3
    vM, vT = S + 22, S + 23

    stamps = opt.get('stamps', False)
    fine = opt.get('fine', False)
    nst = [0]
    def stamp(on=True):
        if stamps and on:
            a(f's_memrealtime s[{64+2*nst[0]}:{65+2*nst[0]}]')
            if nst[0]: a('s_waitcnt lgkmcnt(0)')
            nst[0] += 1
    M16 = 'v_mfma_f32_16x16x32_bf16'
    def mfma(d, x, y, c):
        return f'{M16} {vr(d,4)}, {vr(x,4)}, {vr(y,4)}, {c if isinstance(c,str) else vr(c,4)}'
    def only(w, lab):
        a(f's_cmp_lg_u32 s{sWV}, {w}')
        a(f's_cbranch_scc1 {lab}')

    stamp()
    if opt.get('clk'): a('s_memtime s[96:97]')
    a('s_load_dwordx16 s[4:19], s[0:1], 0')
    a('s_memrealtime s[60:61]')
    a('s_cmp_ge_u32 s2, 256')
    a('s_cbranch_scc1 L_end')
    a(f'v_lshrrev_b32 v1, 6, v0')
    a(f'v_and_b32 {vr(vLANE)}, 63, v0')
    a(f'v_readfirstlane_b32 s{sWV}, v1')
    a(f'v_and_b32 {vr(vI)}, 15, v0')
    a(f'v_bfe_u32 {vr(vKGp)}, v0, 4, 2')
    if opt.get('cpf', True):
        a(f's_getpc_b64 s[{sEX}:{sEX+1}]')
        a(f'v_lshlrev_b32 v1, 5, v0')
        a(f'global_load_dword {vr(X8)}, v1, s[{sEX}:{sEX+1}]')
    a('s_and_b32 s41, s2, 7')
    a('s_lshr_b32 s42, s2, 3')
    a(f's_lshr_b32 s{sH}, s42, 3')
    a(f's_lshl2_add_u32 s{sH}, s41, s{sH}')
    a(f's_and_b32 s{sC}, s42, 7')
    a(f's_lshl_b32 s{sHO}, s{sH}, 19')
    a(f's_lshl_b32 s{sQ0B}, s{sC}, 16')
    a(f's_lshl_b32 s{sT0}, s{sWV}, 2')
    a(f's_lshl_b32 s{sT1}, s{sWV}, 10')
    a(f's_add_u32 s{sT2}, s{sT1}, s{sQ0B}')
    a(f'v_add_u32 {vr(vDK)}, s{sT0}, {vr(vKGp)}')
    a(f'v_xor_b32 {vr(vDK)}, {vr(vDK)}, {vr(vI)}')
    a(f'v_lshlrev_b32 {vr(vDK)}, 4, {vr(vDK)}')
    a(f'v_lshl_add_u32 {vr(vDK)}, {vr(vKGp)}, 8, {vr(vDK)}')
    a(f'v_add_u32 {vr(vDK)}, s{sT2}, {vr(vDK)}')
    a(f's_mov_b32 m0, s{sT1}')
    for s_ in (sK, sV, sQ):
        a(f's_mov_b32 s{s_+2}, 0x80000')
        a(f's_mov_b32 s{s_+3}, 0x20000')
    a(f's_mov_b32 s{sW+2}, 0x4000')
    a(f's_mov_b32 s{sW+3}, 0x20000')
    a(f's_and_b32 s{sBK}, s{sWV}, 3')
    a(f's_lshl_b32 s{sBK}, s{sBK}, 1')
    a(f's_cmp_lt_u32 s{sWV}, 4')
    a(f's_addc_u32 s{sBK}, s{sBK}, 0')
    a(f's_cmp_eq_u32 s{sC}, 0')
    a(f's_cselect_b32 s{sT3}, 0x40000000, 0')
    a(f's_lshl_b32 s{sT0}, s{sBK}, 13')
    a(f's_add_u32 s{sT0}, s{sT0}, s{sQ0B}')
    a(f'v_lshlrev_b32 {vr(vDQ)}, 4, {vr(vKGp)}')
    a(f'v_lshl_add_u32 {vr(vDQ)}, {vr(vI)}, 8, {vr(vDQ)}')
    a(f'v_add_u32 {vr(vDQ)}, s{sT0}, {vr(vDQ)}')
    a(f'v_lshlrev_b32 {vr(t3)}, 4, {vr(vLANE)}')
    a(f's_sub_u32 s{sT0}, s{sT3}, 0x2000')
    a(f'v_add_u32 {vr(t1)}, s{sT0}, {vr(vDQ)}')
    a(f'v_add_u32 {vr(t2)}, 0x1000, {vr(t1)}')
    a(f's_lshl_b32 s41, s{sH}, 14')
    a(f's_lshl_b32 s42, s{sC}, 11')
    a(f's_cmp_ge_u32 s{sWV}, 4')
    a('s_cbranch_scc1 L_helper')
    a('s_waitcnt lgkmcnt(0)')
    stamp()
    a(f's_add_u32 s{sK}, s6, s{sHO}')
    a(f's_addc_u32 s{sK+1}, s7, 0')
    for i in range(18):
        if i:
            a('s_add_u32 m0, m0, 0x1000')
            a(f'v_add_u32 {vr(vDK)}, 0x1000, {vr(vDK)}')
        a(f'buffer_load_dwordx4 {vr(vDK)}, {sr(sK,4)}, 0 offen {ldpol} lds')
    def srds():
        a(f's_add_u32 s{sV}, s8, s{sHO}')
        a(f's_addc_u32 s{sV+1}, s9, 0')
        a(f's_add_u32 s{sQ}, s4, s{sHO}')
        a(f's_addc_u32 s{sQ+1}, s5, 0')
        a(f's_add_u32 s{sW}, s18, s41')
        a(f's_addc_u32 s{sW+1}, s19, 0')
    srds()
    a('s_branch L_v1')
    a.label('L_helper')
    a('s_setprio 3')
    a(f's_mov_b32 m0, {SOFF}')
    a('s_waitcnt lgkmcnt(0)')
    if stamps:
        nst[0] -= 1
        stamp()
    a(f's_add_u32 s{sK}, s6, s{sHO}')
    a(f's_addc_u32 s{sK+1}, s7, 0')
    srds()
    a(f's_or_b32 s{sN}, s60, 1')
    only(FW, 'L_noclear')
    a(f's_lshl_b32 s{sT0}, s{sH}, 3')
    a(f'v_mov_b32 {vr(S+4)}, s{sT0}')
    a(f'v_mov_b32 {vr(S+5)}, s{sN}')
    a(f'v_mov_b32 {vr(S+6)}, {LCNT}')
    a(f'v_mov_b32 {vr(S+7)}, 0')
    a('s_mov_b64 exec, 1')
    a(f's_cmp_lg_u32 s{sC}, {CC}')
    a('s_cbranch_scc1 L_nopub')
    a(f'global_store_dword {vr(S+4)}, {vr(S+5)}, s[16:17] sc0 sc1')
    a.label('L_nopub')
    a(f'ds_write_b32 {vr(S+6)}, {vr(S+7)}')
    a('s_mov_b64 exec, -1')
    a.label('L_noclear')
    only(SW, 'L_nosmall')
    for n, srd in enumerate((sK, sQ, sV)):
        if n:
            a(f's_mov_b32 m0, {SOFF + 1024*n}')
            a('s_nop 0')
        a(f'buffer_load_dwordx4 {vr(t3)}, {sr(srd,4)}, 0 offen lds')
    a.label('L_nosmall')
    only(HW, 'L_nohalo')
    for T in range(2):
        for ks in range(4):
            a(f'buffer_load_dwordx4 {vr(kf(T,ks),4)}, {vr(t1+T)}, {sr(sK,4)}, 0 offen offset:{64*ks}')
    a.label('L_nohalo')
    a('s_setprio 0')
    a('s_branch L_nov1')
    a.label('L_v1')
    def vpiece(i):
        if i:
            a('s_add_u32 m0, m0, 0x1000')
            a(f'v_add_u32 {vr(vDV)}, 0x1000, {vr(vDV)}')
        if i < 2:
            a(f'v_add_u32 {vr(t1)}, s{sT3}, {vr(vDV)}')
            a(f'buffer_load_dwordx4 {vr(t1)}, {sr(sV,4)}, 0 offen {ldpol} lds')
        else:
            a(f'buffer_load_dwordx4 {vr(vDV)}, {sr(sV,4)}, 0 offen {ldpol} lds')
    a(f's_and_b32 s{sT0}, s{sWV}, 1')
    a(f's_lshl_b32 s{sT0}, s{sT0}, 2')
    a(f'v_add_lshl_u32 {vr(vDV)}, s{sT0}, {vr(vKGp)}, 1')
    a(f'v_xor_b32 {vr(vDV)}, {vr(vDV)}, {vr(vI)}')
    a(f'v_lshlrev_b32 {vr(vDV)}, 4, {vr(vDV)}')
    a(f'v_lshl_add_u32 {vr(vDV)}, {vr(vKGp)}, 8, {vr(vDV)}')
    a(f's_sub_u32 s{sT2}, s{sT2}, 0x2000')
    a(f'v_add_u32 {vr(vDV)}, s{sT2}, {vr(vDV)}')
    a(f's_add_u32 m0, s{sT1}, {VOFF}')
    for i in range(N1): vpiece(i)
    a.label('L_nov1')
    stamp()

    a(f's_add_u32 s{sO}, s14, s{sHO}')
    a(f's_addc_u32 s{sO+1}, s15, 0')
    a(f's_mov_b32 s{sO+2}, 0x80000')
    a(f's_mov_b32 s{sO+3}, 0x20000')
    a(f's_mov_b32 s{sCS}, 0x{CSC:08x}')
    a(f's_mov_b32 s{sCS+1}, 0x{CSC:08x}')
    a(f'v_mov_b32 {vr(vNEG)}, 0x{NEG:08x}')
    a(f'v_lshlrev_b32 {vr(t2)}, 2, {vr(vKGp)}')
    a(f'v_cmp_eq_u32 {sr(sKG0,2)}, 0, {vr(vKGp)}')
    for r in range(4):
        a(f'v_add_u32 {vr(t1)}, {r}, {vr(t2)}')
        a(f'v_cmp_ge_u32 vcc, {vr(t1)}, {vr(vI)}')
        a(f'v_cmp_le_u32 s[60:61], {vr(t1)}, {vr(vI)}')
        a('s_nop 0')
        a(f'v_cndmask_b32 {vr(BLO+r)}, {vr(vNEG)}, 0, vcc')
        a(f'v_cndmask_b32 {vr(BHI+r)}, {vr(vNEG)}, 0, s[60:61]')
    a(f's_lshl_b32 s{sT0}, s{sBK}, 13')
    a(f'v_xor_b32 {vr(t1)}, {vr(vKGp)}, {vr(vI)}')
    a(f'v_lshlrev_b32 {vr(t1)}, 4, {vr(t1)}')
    a(f'v_lshl_add_u32 {vr(t1)}, {vr(vI)}, 8, {vr(t1)}')
    a(f'v_add_u32 {vr(vAK)}, s{sT0}, {vr(t1)}')
    for ks in range(1, 4):
        a(f'v_xor_b32 {vr(vAK+ks)}, {64*ks}, {vr(vAK)}')
    a(f'v_and_b32 {vr(t1)}, 1, {vr(vI)}')
    a(f'v_lshlrev_b32 {vr(vNEG)}, 3, {vr(t1)}')
    a(f'v_lshlrev_b32 {vr(t1)}, 8, {vr(t1)}')
    a(f'v_lshl_add_u32 {vr(t1)}, {vr(vKGp)}, 4, {vr(t1)}')
    a(f'v_add_u32 {vr(vAG)}, {SOFF}, {vr(t1)}')
    a(f'v_bfe_u32 {vr(t1)}, {vr(vLANE)}, 2, 2')
    a(f'v_and_b32 {vr(t2)}, 3, {vr(vLANE)}')
    a(f'v_lshlrev_b32 {vr(t2)}, 3, {vr(t2)}')
    a(f'v_lshl_add_u32 {vr(t1)}, {vr(t1)}, 8, {vr(t2)}')
    a(f'v_add_u32 {vr(vAVG)}, {SOFF+2048}, {vr(t1)}')
    a(f'v_lshrrev_b32 {vr(t1)}, 2, {vr(vLANE)}')
    a(f'v_and_b32 {vr(vT0)}, 7, {vr(t1)}')
    a(f'v_lshl_add_u32 {vr(t2)}, {vr(vT0)}, 5, {vr(t2)}')
    a(f'v_lshl_add_u32 {vr(t2)}, {vr(t1)}, 8, {vr(t2)}')
    a(f's_add_u32 s{sT1}, s{sT0}, {VOFF}')
    a(f'v_add_u32 {vr(VA)}, s{sT1}, {vr(t2)}')
    for t in range(1, 8):
        a(f'v_xor_b32 {vr(VA+t)}, {32*t}, {vr(VA)}')
    a(f's_mul_i32 s{sT1}, s{sWV}, {16*STGP}')
    a(f's_add_u32 s{sT1}, s{sT1}, {STG}')
    a(f'v_mul_u32_u24 {vr(t1)}, {STGP}, {vr(vI)}')
    a(f'v_lshl_add_u32 {vr(t1)}, {vr(vKGp)}, 3, {vr(t1)}')
    a(f'v_add_u32 {vr(vSW)}, s{sT1}, {vr(t1)}')
    a(f'v_mul_u32_u24 {vr(t1)}, {STGP}, {vr(vKGp)}')
    a(f'v_lshl_add_u32 {vr(t1)}, {vr(vI)}, 4, {vr(t1)}')
    a(f'v_add_u32 {vr(vSR)}, s{sT1}, {vr(t1)}')
    a(f's_add_u32 s{sT0}, s{sT0}, s{sQ0B}')
    a(f'v_add_u32 {vr(vOO)}, s{sT0}, {vr(t3)}')
    a(f's_lshr_b32 s{sQB}, s{sT0}, 8')
    a(f's_cmp_eq_u32 s{sQB}, 0')
    a(f's_cselect_b32 s{sEX}, 0, -1')
    a(f's_mov_b32 s{sEX+1}, -1')
    a(f's_cmp_eq_u32 s{sQB}, {256*CC+32*(2*CW+1)}')
    a(f's_cselect_b32 s{sCMB}, 1, 0')
    a(f's_lshl_b32 s{sT0}, s{sWV}, 4')
    a(f's_add_u32 s{sT0}, s{sT0}, {PARTML}')
    a(f'v_add_u32 {vr(vNEG)}, s{sT0}, {vr(vNEG)}')

    a(f's_waitcnt vmcnt({N1}) lgkmcnt(0)')
    a(f's_cmp_lt_u32 s{sWV}, 4')
    a('s_cbranch_scc1 L_kw')
    a(f's_cmp_eq_u32 s{sWV}, {FW}')
    a('s_cbranch_scc1 L_kw')
    a('s_waitcnt vmcnt(0)')
    a.label('L_kw')
    stamp(opt.get('prek', False))
    a('s_barrier')
    stamp()
    a(f's_cmp_ge_u32 s{sWV}, 4')
    a('s_cbranch_scc1 L_nov2')
    for i in range(N1, 20): vpiece(i)
    a.label('L_nov2')
    stamp(fine)
    QG = O
    for W in (2, 3, 4, 5):
        for ks in range(4):
            a(f'ds_read_b128 {vr(kf(W,ks),4)}, {vr(vAK+ks)} offset:{4096*(W-2)}')
    for ks in range(4):
        a(f'ds_read_b128 {vr(KG+4*ks,4)}, {vr(vAG)} offset:{64*ks}')
    for t in range(8):
        a(f'ds_read_b64_tr_b16 {vr(VG+4*t+2,2)}, {vr(vAVG)} offset:{32*t}')
    a(f's_cmp_eq_u32 s{sWV}, {HW}')
    a('s_cbranch_scc1 L_k01done')
    for ks in range(4):
        a(f'v_subrev_u32 {vr(vAK+ks)}, 0x2000, {vr(vAK+ks)}')
    for W in (0, 1):
        for ks in range(4):
            a(f'ds_read_b128 {vr(kf(W,ks),4)}, {vr(vAK+ks)} offset:{4096*W}')
    a.label('L_k01done')
    def issue_qa():
        if opt.get('qprio'): a('s_setprio 3')
        for ks in range(4):
            a(f'buffer_load_dwordx4 {vr(QA+4*ks,4)}, {vr(vDQ)}, {sr(sQ,4)}, 0 offen offset:{64*ks} {qpol}')
        if opt.get('qprio'): a('s_setprio 0')

    def xred(m, t, op='v_max_f32'):
        a(f'v_mov_b32 {vr(t)}, {vr(m)}')
        a.nop(2)
        a(f'v_permlane16_swap_b32 {vr(m)}, {vr(t)}')
        a(f'{op} {vr(m)}, {vr(m)}, {vr(t)}')
        a(f'v_mov_b32 {vr(t)}, {vr(m)}')
        a.nop(2)
        a(f'v_permlane32_swap_b32 {vr(m)}, {vr(t)}')
        a(f'{op} {vr(m)}, {vr(m)}, {vr(t)}')
    def maxtree_l(vals, m, first=True):
        out = []; rest = list(vals)
        if first:
            out.append(f'v_max3_f32 {vr(m)}, {vr(rest[0])}, {vr(rest[1])}, {vr(rest[2])}'); rest = rest[3:]
        while len(rest) >= 2:
            out.append(f'v_max3_f32 {vr(m)}, {vr(m)}, {vr(rest[0])}, {vr(rest[1])}'); rest = rest[2:]
        if rest:
            out.append(f'v_max_f32 {vr(m)}, {vr(m)}, {vr(rest[0])}')
        return out
    def fma_l(vals, mc):
        if pk:
            return [f'v_pk_fma_f32 {vr(vals[n],2)}, {vr(vals[n],2)}, {sr(sCS,2)}, {vr(mc,2)} op_sel_hi:[1,1,0] neg_lo:[0,0,1] neg_hi:[0,0,1]' for n in range(0, len(vals), 2)]
        return [f'v_fma_f32 {vr(v)}, {vr(v)}, s{sCS}, -{vr(mc)}' for v in vals]
    exp_l = lambda vals: [f'v_exp_f32 {vr(v)}, {vr(v)}' for v in vals]
    cvt_l = lambda dst, src, n: [f'v_cvt_pk_bf16_f32 {vr(dst+k)}, {vr(src+2*k)}, {vr(src+2*k+1)}' for k in range(n)]

    def vread(dst, t, W):
        return f'ds_read_b64_tr_b16 {vr(dst,2)}, {vr(VA+t)} offset:{4096*W}'
    a(f's_cmp_lt_u32 s{sWV}, 4')
    a('s_cbranch_scc1 L_gk')
    only(FW, 'L_notag')
    a('s_setprio 3')
    a(f'global_load_dword {vr(S+7)}, {vr(S+4)}, s[16:17]')
    a('s_setprio 0')
    issue_qa()
    a('s_waitcnt vmcnt(4)')
    a(f's_cmp_eq_u32 s{sC}, {CC}')
    a('s_cselect_b64 vcc, -1, 0')
    a(f'v_cndmask_b32 {vr(S+7)}, {vr(S+7)}, {vr(S+5)}, vcc')
    a('s_mov_b64 exec, 1')
    a(f'ds_write_b32 {vr(S+6)}, {vr(S+7)} offset:4')
    a('s_mov_b64 exec, -1')
    a('s_branch L_tagdone')
    a.label('L_notag')
    issue_qa()
    a.label('L_tagdone')
    a('s_waitcnt lgkmcnt(0)')
    a(f'v_add_u32 {vr(vDQk)}, 0x1000, {vr(vDQ)}')
    stamp(fine)
    a('s_barrier')
    for t in range(8):
        a(vread(X[t+1], t, 0)); a(vread(X[t+1]+2, t, 1))
    a('s_branch L_gdone')
    a.label('L_gk')
    for ks in range(4):
        a(f'ds_read_b128 {vr(QG+4*ks,4)}, {vr(vAG)} offset:{1024+64*ks}')
    issue_qa()
    a('s_waitcnt lgkmcnt(0)')
    for T in range(4):
        for ks in range(4):
            a(mfma(S+4*T, kf(T,ks), QG+4*ks, '0' if ks == 0 else S+4*T))
    a(f'v_add_u32 {vr(vDQk)}, 0x1000, {vr(vDQ)}')
    a.nop(7)
    for l in maxtree_l([S+x for x in range(16)], vM): a(l)
    xred(vM, vT)
    a(f'v_mul_f32 {vr(vM)}, s{sCS}, {vr(vM)}')
    for l in fma_l([S+x for x in range(16)], vM): a(l)
    for l in exp_l([S+x for x in range(16)]): a(l)
    a.nop(1)
    a(f'v_add_f32 {vr(vT)}, {vr(S)}, {vr(S+1)}')
    for x in range(2, 16):
        a(f'v_add_f32 {vr(vT)}, {vr(vT)}, {vr(S+x)}')
    for l in cvt_l(S, S, 8): a(l)
    xred(vT, vT0, 'v_add_f32')
    a(f'ds_write_b64 {vr(vNEG)}, {vr(vM,2)}')
    a(f'v_mbcnt_lo_u32_b32 {vr(vT0)}, -1, 0')
    a(f's_lshl_b32 s{sT0}, s{sWV}, 10')
    a(f'v_lshl_add_u32 {vr(vT0)}, {vr(vT0)}, 3, s{sT0}')
    if stamps and fine:
        nst[0] -= 1
        stamp()
    a('s_waitcnt vmcnt(4) lgkmcnt(0)')
    a('s_barrier')
    gb = [QB + 4*n for n in range(4)] + [S + 8 + 4*n for n in range(4)]
    for t in range(8):
        a(vread(gb[t], t, 2)); a(vread(gb[t]+2, t, 3))
    for t in range(8):
        a('s_waitcnt lgkmcnt(14)')
        a(mfma(gb[t], S+4, gb[t], '0'))
        a(vread(X[t+1], t, 0)); a(vread(X[t+1]+2, t, 1))
    for t in range(8):
        a(f's_waitcnt lgkmcnt({14-2*t})')
        a(mfma(gb[t], S, X[t+1], gb[t]))
    a('s_mov_b64 exec, 1')
    a(f'v_mov_b32 {vr(S)}, {LCNT}')
    a(f'v_mov_b32 {vr(S+1)}, 1')
    a('s_mov_b64 exec, 0xffff')
    for t in range(8):
        a(f'ds_write_b64 {vr(vT0)}, {vr(gb[t],2)} offset:{PART+128*t}')
    a('s_mov_b64 exec, 1')
    a(f'ds_add_u32 {vr(S)}, {vr(S+1)}')
    a('s_mov_b64 exec, -1')
    a.label('L_gdone')
    stamp()

    emit = lambda ls: [a(l) for l in ls]
    def combine(og, mg, tm):
        NP = len(og)
        emit(maxtree_l([mg[n] for n in range(NP)], tm))
        for n in range(NP):
            a(f'v_sub_f32 {vr(mg[n])}, {vr(mg[n])}, {vr(tm)}')
        for n in range(NP):
            a(f'v_exp_f32 {vr(mg[n])}, {vr(mg[n])}')
        a.nop(1)
        for e in range(4):
            a(f'v_mul_f32 {vr(og[0][e])}, {vr(og[0][e])}, {vr(mg[0])}')
        a(f'v_mul_f32 {vr(mg[0]+1)}, {vr(mg[0]+1)}, {vr(mg[0])}')
        for n in range(1, NP):
            for e in range(4):
                a(f'v_fmac_f32 {vr(og[0][e])}, {vr(og[n][e])}, {vr(mg[n])}')
            a(f'v_fmac_f32 {vr(mg[0]+1)}, {vr(mg[n]+1)}, {vr(mg[n])}')

    def issue_qb():
        for ks in range(4):
            a(f'buffer_load_dwordx4 {vr(QB+4*ks,4)}, {vr(vDQk)}, {sr(sQ,4)}, 0 offen offset:{64*ks} {qpol}')
        a(f'v_mov_b32 {vr(vDQk)}, 0')
    issue_qb()
    a(f's_cmp_eq_u32 s{sWV}, {RW}')
    a('s_cbranch_scc1 L_reduce')
    a(f's_cmp_eq_u32 s{sCMB}, 0')
    a('s_cbranch_scc1 L_noflag')
    a(f'v_mov_b32 {vr(vT0)}, {LNON}')
    a(f'ds_read_b32 {vr(vT0)}, {vr(vT0)}')
    a('s_waitcnt lgkmcnt(0)')
    a(f'v_readfirstlane_b32 s{sN}, {vr(vT0)}')
    a.label('L_noflag')
    a('s_waitcnt vmcnt(4)')
    a('s_branch L_tileA')
    a.label('L_reduce')
    R0 = S
    a(f'v_mbcnt_lo_u32_b32 {vr(R0)}, -1, 0')
    a(f'v_mbcnt_hi_u32_b32 {vr(R0)}, -1, {vr(R0)}')
    a(f'v_lshrrev_b32 {vr(R0+1)}, 5, {vr(R0)}')
    a(f'v_and_b32 {vr(R0+3)}, 31, {vr(R0)}')
    a(f'v_lshlrev_b32 {vr(R0+3)}, 5, {vr(R0+3)}')
    a(f'v_lshl_add_u32 {vr(R0+3)}, {vr(R0+1)}, 2, {vr(R0+3)}')
    a(f'v_lshlrev_b32 {vr(R0+1)}, 3, {vr(R0+1)}')
    a(f'v_add_u32 {vr(R0+1)}, {PARTML}, {vr(R0+1)}')
    a(f'v_lshlrev_b32 {vr(R0)}, 4, {vr(R0)}')
    a(f'v_mov_b32 {vr(R0+2)}, {LCNT}')
    a(f's_mov_b32 s{sCNT}, 0')
    a.label('L_lspin')
    a(f'ds_read_b64 {vr(S+4,2)}, {vr(R0+2)}')
    a(f's_add_u32 s{sCNT}, s{sCNT}, 1')
    a('s_waitcnt lgkmcnt(0)')
    a(f'v_readfirstlane_b32 s{sT0}, {vr(S+4)}')
    a(f'v_readfirstlane_b32 s{sN}, {vr(S+5)}')
    a(f's_cmp_ge_u32 s{sCNT}, 0x100000')
    a('s_cbranch_scc1 L_lok')
    a(f's_cmp_lt_u32 s{sT0}, 4')
    a('s_cbranch_scc1 L_lspin')
    a.label('L_lok')
    mg = [S+4, S+6, O, O+2]
    G0 = S + 8
    og = [[G0+4*n+e for e in range(4)] for n in range(4)]
    for n in range(4):
        a(f'ds_read_b64 {vr(mg[n],2)}, {vr(R0+1)} offset:{16*n}')
    for n in range(4):
        if n: a(f'v_add_u32 {vr(R0+3)}, 1024, {vr(R0+3)}')
        a(f'ds_read2_b32 {vr(G0+4*n,2)}, {vr(R0+3)} offset0:0 offset1:2')
        a(f'ds_read2_b32 {vr(G0+4*n+2,2)}, {vr(R0+3)} offset0:4 offset1:6')
    a('s_waitcnt lgkmcnt(0)')
    combine(og, mg, R0+1)
    a(f'v_mov_b32 {vr(G0+4)}, {vr(G0+3)}')
    a(f'v_mov_b32 {vr(G0+5)}, {vr(R0+1)}')
    a(f'v_mov_b32 {vr(G0+6)}, {vr(mg[0]+1)}')
    a(f'v_mov_b32 {vr(G0+7)}, s{sN}')
    a(f'v_mov_b32 {vr(G0+3)}, s{sN}')
    a(f'buffer_store_dwordx4 {vr(G0+4,4)}, {vr(R0)}, {sr(sW,4)}, s42 offen offset:1024 sc0 sc1')
    a(f'buffer_store_dwordx4 {vr(G0,4)}, {vr(R0)}, {sr(sW,4)}, s42 offen sc0 sc1')
    a(f's_cmp_lg_u32 s{sN}, 0')
    a('s_cbranch_scc1 L_tagged')
    a('s_waitcnt vmcnt(0)')
    a(f's_lshl_b32 s{sT0}, s{sH}, 3')
    a(f's_lshl_b32 s{sT1}, 1, s{sC}')
    a(f'v_mov_b32 {vr(R0)}, s{sT0}')
    a(f'v_mov_b32 {vr(R0+1)}, s{sT1}')
    a('s_mov_b64 exec, 1')
    a(f'global_atomic_or {vr(R0)}, {vr(R0+1)}, s[16:17] offset:4 sc1')
    a('s_mov_b64 exec, -1')
    a.label('L_tagged')
    a('s_waitcnt vmcnt(6)')
    a.label('L_tileA')
    stamp()

    def inter(ms, vs, per=2):
        vs = list(vs)
        for m in ms:
            a(m)
            for _ in range(per):
                if vs: a(vs.pop(0))
        for v in vs: a(v)

    HB = kf(2, 0)
    def hand_loads():
        a(f'v_mbcnt_lo_u32_b32 {vr(KG)}, -1, 0')
        a(f'v_mbcnt_hi_u32_b32 {vr(KG)}, -1, {vr(KG)}')
        a(f'v_lshlrev_b32 {vr(KG)}, 4, {vr(KG)}')
        for n in range(8):
            a(f's_movk_i32 s{sT0}, {2048*n}')
            a(f'buffer_load_dwordx4 {vr(HB+8*n,4)}, {vr(KG)}, {sr(sW,4)}, s{sT0} offen sc0 sc1')
            a(f'buffer_load_dwordx4 {vr(HB+8*n+4,4)}, {vr(KG)}, {sr(sW,4)}, s{sT0} offen offset:1024 sc0 sc1')

    buf = [kf(0, n) for n in range(4)] + [QA + 4*n for n in range(4)]
    SLOTW = {0: [0, 1, 2, 3, 4], 1: [4, 5, 2, 3, 1]}
    def qk(tau, sl):
        Q = QA if tau == 0 else QB
        if sl == 'G':
            return [mfma(S+20, KG+4*ks, Q+4*ks, '0' if ks == 0 else S+20) for ks in range(4)]
        W = SLOTW[tau][sl]
        c0 = BLO if W == tau else BHI if W == tau + 4 else '0'
        return [mfma(S+4*sl, kf(W,ks), Q+4*ks, c0 if ks == 0 else S+4*sl) for ks in range(4)]
    def edge_test(tau, lab):
        a(f's_sub_u32 s{sT0}, s{sQB}, {48 - 16*tau}')
        a(f's_cmp_lt_u32 s{sT0}, 1968')
        a(f's_cbranch_scc1 {lab}')
    def edge_mask(tau, tr):
        a(f'v_mbcnt_lo_u32_b32 {vr(tr)}, -1, 0')
        a(f'v_mbcnt_hi_u32_b32 {vr(tr)}, -1, {vr(tr)}')
        a(f'v_lshrrev_b32 {vr(tr)}, 4, {vr(tr)}')
        a(f's_sub_u32 s{sT0}, s{sQB}, 34')
        a(f's_movk_i32 s{sT1}, 2046')
        a(f'v_lshl_add_u32 {vr(tr)}, {vr(tr)}, 2, s{sT0}')
        a(f'v_mov_b32 {vr(vM)}, 0x{NEG:08x}')
        a('s_nop 3')
        for sl in range(5):
            for r in range(4):
                a(f'v_add_u32 {vr(vT)}, {16*SLOTW[tau][sl]+r}, {vr(tr)}')
                a(f'v_cmp_gt_u32 vcc, s{sT1}, {vr(vT)}')
                a('s_nop 1')
                a(f'v_cndmask_b32 {vr(S+4*sl+r)}, {vr(vM)}, {vr(S+4*sl+r)}, vcc')
        for l in maxtree_l([S+x for x in range(22)], vM): a(l)
    def epi(t):
        l = [f'v_mul_f32 {vr(O+4*t+e)}, {vr(O+4*t+e)}, {vr(vT0)}' for e in range(4)]
        l += [f'v_cvt_pk_bf16_f32 {vr(O+4*t)}, {vr(O+4*t)}, {vr(O+4*t+1)}',
              f'v_cvt_pk_bf16_f32 {vr(O+4*t+1)}, {vr(O+4*t+2)}, {vr(O+4*t+3)}',
              f'ds_write_b64 {vr(vSW)}, {vr(O+4*t,2)} offset:{32*t}']
        return l
    def stage_reads():
        return [f'ds_read_b128 {vr(O+4*j,4)}, {vr(vSR)} offset:{4*STGP*j}' for j in range(4)]
    def stores(tau):
        for j in range(4):
            a(f's_waitcnt lgkmcnt({3-j})')
            if tau == 0 and j == 0: a(f's_mov_b64 exec, {sr(sEX,2)}')
            a(f'buffer_store_dwordx4 {vr(O+4*j,4)}, {vr(vOO)}, {sr(sO,4)}, 0 offen offset:{1024*j} {stpol}')
            if tau == 0 and j == 0: a('s_mov_b64 exec, -1')
    def softmax_pv(tau):
        m = vM
        xred(m, vT)
        a(f'v_mul_f32 {vr(m)}, s{sCS}, {vr(m)}')
        set0 = [S+x for x in range(8)]; set1 = [S+8+x for x in range(8)]; set2 = [S+16+x for x in range(6)]
        for l in fma_l(set0, m): a(l)
        f2 = fma_l(set2, m); f1 = fma_l(set1, m)
        for l in exp_l(set0): a(l)
        a(f2[0])
        for l in cvt_l(S, S, 4): a(l)
        a(f2[1])
        a('s_waitcnt lgkmcnt(0)' if tau == 1 else 's_waitcnt lgkmcnt(8)')
        ONES, LACC = S+4, S+20
        v2 = f2[2:] + exp_l(set2) + [f'v_mov_b32 {vr(ONES+n)}, 0x3f803f80' for n in range(4)] + cvt_l(S+16, S+16, 3) \
             + [f'v_mov_b32 {vr(S+19)}, 0', f'v_cndmask_b32 {vr(S+18)}, 0, {vr(S+18)}, {sr(sKG0,2)}']
        inter([mfma(X[t], X[t+1], S, '0') for t in range(8)], v2 + f1[:2])
        v1 = f1[2:] + exp_l(set1) + [f'v_mov_b32 {vr(vT0)}, 0'] + cvt_l(S+8, S+8, 4)
        inter([mfma(O+4*t, VG+4*t, S+16, O+4*t) for t in range(8)], v1)
        a(mfma(LACC, ONES, S, '0'))
        a(mfma(LACC, ONES, S+16, LACC))
        a(mfma(LACC, ONES, S+8, LACC))
        if tau == 0:
            a('s_waitcnt lgkmcnt(0)')
        for t in range(8):
            a(mfma(O+4*t, buf[t], S+8, O+4*t))
            if tau == 0: a(vread(VG+4*t, t, 1))
        a(f'v_rcp_f32 {vr(vT0)}, {vr(LACC)}')

    late = []
    for t in range(8):
        late += [vread(buf[t], t, 2), vread(buf[t]+2, t, 3)]
    vgr = [vread(VG+4*t, t, 4) for t in range(8)]
    edge_test(0, 'L_fastA')
    for l in vgr: a(l)
    for sl in ('G', 0, 1, 2, 3, 4):
        for l in qk(0, sl): a(l)
    for l in late: a(l)
    edge_mask(0, vT0)
    a('s_branch L_joinA')
    a.label('L_fastA')
    m = vM
    inter(qk(0, 0) + qk(0, 'G'), vgr, per=1)
    inter(qk(0, 1) + qk(0, 2), late[:8], per=1)
    inter(qk(0, 3), maxtree_l([S+20, S+21, S+0], m) + maxtree_l([S+1, S+2, S+3, S+4, S+5, S+6], m, False), per=1)
    inter(qk(0, 4), maxtree_l([S+7, S+8, S+9, S+10], m, False), per=1)
    for l in late[8:11]: a(l)
    for l in maxtree_l([S+11, S+12], m, False): a(l)
    for l in late[11:13]: a(l)
    for l in maxtree_l([S+13, S+14, S+15], m, False): a(l)
    for l in late[13:]: a(l)
    for l in maxtree_l([S+16, S+17, S+18, S+19], m, False): a(l)
    a.label('L_joinA')
    stamp(fine)
    softmax_pv(0)
    stamp(fine)
    a('s_waitcnt vmcnt(2)')
    a(f's_cmp_eq_u32 s{sWV}, {RW}')
    a('s_cbranch_scc1 L_qbw')
    a('s_waitcnt vmcnt(0)')
    a.label('L_qbw')
    stamp()
    ep = []
    for t in range(8): ep += epi(t)
    ep += stage_reads()
    edge_test(1, 'L_fastB')
    for l in ep: a(l)
    stores(0)
    for sl in (0, 1, 2, 3, 4, 'G'):
        for l in qk(1, sl): a(l)
    for t in range(8):
        a(vread(X[t+1], t, 4)); a(vread(X[t+1]+2, t, 5))
    edge_mask(1, vT0)
    a('s_branch L_joinB')
    a.label('L_fastB')
    ms = []
    for sl in (0, 1, 2, 3, 4, 'G'): ms += qk(1, sl)
    inter(ms, ep, per=3)
    for l in maxtree_l([S+x for x in range(15)], vT0): a(l)
    stores(0)
    for t in range(8):
        a(vread(X[t+1], t, 4)); a(vread(X[t+1]+2, t, 5))
    a(f'v_max3_f32 {vr(vM)}, {vr(vT0)}, {vr(S+15)}, {vr(S+16)}')
    for l in maxtree_l([S+17, S+18, S+19, S+20, S+21], vM, False): a(l)
    a.label('L_joinB')
    a(f'v_add_u32 {vr(vOO)}, 0x1000, {vr(vOO)}')
    stamp()
    a(f's_cmp_eq_u32 s{sCMB}, 0')
    a('s_cbranch_scc1 L_nohand')
    hand_loads()
    a.label('L_nohand')
    softmax_pv(1)
    stamp(fine)
    a('s_nop 0')
    for t in range(8):
        for l in epi(t): a(l)
    for l in stage_reads(): a(l)
    stores(1)
    stamp()

    a(f's_cmp_eq_u32 s{sCMB}, 0')
    a('s_cbranch_scc1 L_fin')
    a('s_waitcnt vmcnt(4)')
    a(f's_mov_b32 s{sCNT}, 0')
    a(f's_mov_b32 s{sT2}, 0')
    a.label('L_chk')
    a(f's_mov_b32 s{sT3}, s{sT2}')
    for n in range(8):
        a(f'v_cmp_eq_u32 vcc, s{sN}, {vr(HB+8*n+3)}')
        a(f'v_cmp_eq_u32 s[60:61], s{sN}, {vr(HB+8*n+7)}')
        a('s_nop 0')
        a('s_and_b64 vcc, vcc, s[60:61]')
        a('s_cmp_eq_u64 vcc, exec')
        a(f's_cselect_b32 s{sT0}, {1 << n}, 0')
        a(f's_or_b32 s{sT3}, s{sT3}, s{sT0}')
    a(f's_add_u32 s{sCNT}, s{sCNT}, 1')
    a(f's_cmp_eq_u32 s{sT3}, 0xff')
    a('s_cbranch_scc1 L_ready')
    a(f's_cmp_ge_u32 s{sCNT}, 0x40000')
    a('s_cbranch_scc1 L_ready')
    a(f's_lshl_b32 s{sT0}, s{sH}, 3')
    a(f'v_mov_b32 {vr(KG+1)}, s{sT0}')
    a(f'global_load_dword {vr(KG+2)}, {vr(KG+1)}, s[16:17] offset:4 sc0 sc1')
    a('s_waitcnt vmcnt(0)')
    a(f'v_readfirstlane_b32 s{sT2}, {vr(KG+2)}')
    hand_loads()
    a('s_waitcnt vmcnt(0)')
    a('s_branch L_chk')
    a.label('L_ready')
    hog = [[HB+8*n, HB+8*n+1, HB+8*n+2, HB+8*n+4] for n in range(8)]
    hmg = [HB+8*n+5 for n in range(8)]
    combine(hog, hmg, X8)
    a(f'v_rcp_f32 {vr(X8)}, {vr(hmg[0]+1)}')
    a(f'v_lshrrev_b32 {vr(KG)}, 1, {vr(KG)}')
    for e in range(4):
        a(f'v_mul_f32 {vr(hog[0][e])}, {vr(hog[0][e])}, {vr(X8)}')
    a(f'v_cvt_pk_bf16_f32 {vr(X8+2)}, {vr(hog[0][0])}, {vr(hog[0][1])}')
    a(f'v_cvt_pk_bf16_f32 {vr(X8+3)}, {vr(hog[0][2])}, {vr(hog[0][3])}')
    a(f'buffer_store_dwordx2 {vr(X8+2,2)}, {vr(KG)}, {sr(sO,4)}, 0 offen {stpol}')
    a.label('L_fin')
    if stamps:
        stamp()
        a('s_waitcnt vmcnt(0)')
        stamp()
        if opt.get('clk'):
            a('s_memtime s[98:99]')
            a('s_waitcnt lgkmcnt(0)')
            a('s_sub_u32 s98, s98, s96')
            a(f's_add_u32 s{64+2*nst[0]}, s98, s64')
            nst[0] += 1
        a(f's_lshl_b32 s{sT0}, s2, 3')
        a(f's_add_u32 s{sT0}, s{sT0}, s{sWV}')
        a(f's_lshl_b32 s{sT0}, s{sT0}, 6')
        a(f's_add_u32 s{sT0}, s{sT0}, 0x100000')
        a(f's_add_u32 s{sW}, s18, s{sT0}')
        a(f's_addc_u32 s{sW+1}, s19, 0')
        a(f'v_mov_b32 v1, 0')
        a('s_mov_b64 exec, 1')
        for n in range(min(16, nst[0])):
            a(f'v_mov_b32 v2, s{64+2*n}')
            a(f'buffer_store_dword v2, v1, {sr(sW,4)}, 0 offen offset:{4*n}')
        if 'leak' in opt:
            k = int(opt['leak'])
            a(f's_sub_u32 s{sT0}, s{64+2*k}, s64')
            a(f's_lshl_b32 s{sT0}, s{sT0}, 2')
            if 'leakw' in opt:
                a(f's_lshr_b32 s{sT1}, {opt["leakw"]}, s{sWV}')
                a(f's_bitcmp1_b32 s{sT1}, 0')
                a(f's_cselect_b32 s{sT0}, s{sT0}, 0')
            a(f"s_add_u32 s{sT0}, s{sT0}, {opt.get('spin', 5000)}")
            a.label('L_spin')
            a('s_memrealtime s[100:101]')
            a('s_waitcnt lgkmcnt(0)')
            a(f's_sub_u32 s{sT1}, s100, s64')
            a(f's_cmp_lt_u32 s{sT1}, s{sT0}')
            a('s_cbranch_scc1 L_spin')
    a.label('L_end')
    a('s_endpgm')
    if opt.get('cpf', True):
        a('.fill 4096, 4, 0xbf800000')

    check(a.lines)
    if stamps: print('stamps', nst[0])
    head = f'''; windowed + global-token attention, B=1 H=32 S=2048 D=128 bf16 (window 32, 2 global tokens)
; @launch grid=(256,1,1) block=(512,1,1) lds=163840
.amdgcn_target "amdgcn-amd-amdhsa--gfx950"
.text
.globl {NAME}
.p2align 8
.type {NAME},@function
{NAME}:
'''
    tail = f'''.section .rodata,"a"
.p2align 6
.amdhsa_kernel {NAME}
  .amdhsa_next_free_vgpr 256
  .amdhsa_next_free_sgpr {102 if stamps else 64}
  .amdhsa_accum_offset 256
  .amdhsa_group_segment_fixed_size 0
  .amdhsa_kernarg_size 64
  .amdhsa_user_sgpr_count 2
  .amdhsa_user_sgpr_kernarg_segment_ptr 1
  .amdhsa_system_sgpr_workgroup_id_x 1
.end_amdhsa_kernel
'''
    return head + a.text() + tail

if __name__ == '__main__':
    out = sys.argv[1]
    opt = {}
    for kv in sys.argv[2:]:
        k, v = kv.split('=', 1)
        opt[k] = {'True': True, 'False': False}.get(v, v.replace('+', ' '))
    open(out, 'w').write(gen(opt))
```

```python
import sys, math, struct
from asmlib import *

NAME = 'standalone__global_local_windowed_global_tokens__prompt_kernel'
def f2u(x): return struct.unpack('<I', struct.pack('<f', x))[0]

def gen(opt):
    a = Asm()
    NEG = 0xFF000000
    CSC = f2u(128 ** -0.5 * math.log2(math.e))
    KOFF, VOFF, SOFF = 0, 73728, 155648
    PART, STG = 0, 16384
    PARTML, LCNT, LNON = SOFF + 3072, SOFF + 3072 + 128, SOFF + 3072 + 132
    STGP = 272
    ldpol = opt.get('ldpol', '')
    qpol = opt.get('qpol', '')
    stpol = opt.get('stpol', 'nt')
    pk = opt.get('pk', True)
    N1 = int(opt.get('n1', 8))
    RW = int(opt.get('rw', 3))
    FW = 7
    SW = 5
    CW, CC = int(opt.get('cw', 1)), 3
    merge = opt.get('merge', True)
    sQ, sK, sV, sO, sW = 20, 24, 28, 32, 36
    sWV, sH, sC, sHO, sQ0B = 40, 43, 44, 45, 46
    sT0, sT1, sT2, sT3 = 47, 48, 49, 50
    sBK = 62
    HW = 4
    sCS = 52; sKG0 = 54; sQB = 51; sEX = 56; sCMB = 58; sCNT = 59; sN = 63
    VA = 0
    vSW, vSR, vOO, vT0 = 8, 9, 10, 11
    X8 = 12
    KF = 16; KG = 112; QA, QB = 128, 144; VG = 160; O = 192; S = 224
    BLO, BHI = 248, 252
    kf = lambda W, ks: KF + 16 * W + 4 * ks
    X = [O + 4 * n for n in range(8)] + [X8]
    vLANE, vI, vKGp, vDK, vDV, vDQ, vAG, vNEG, vAK = O+16, O+17, O+18, O+19, O+20, O+21, O+22, O+23, O+24
    vAVG, t1, t2, t3 = O+28, O+29, O+30, O+31
    vDQk = VG + 7
    vFLAG = VG + 3
    vM, vT = S + 22, S + 23

    stamps = opt.get('stamps', False)
    fine = opt.get('fine', False)
    nst = [0]
    def stamp(on=True):
        if stamps and on:
            a(f's_memrealtime s[{64+2*nst[0]}:{65+2*nst[0]}]')
            if nst[0]: a('s_waitcnt lgkmcnt(0)')
            nst[0] += 1
    M16 = 'v_mfma_f32_16x16x32_bf16'
    def mfma(d, x, y, c):
        return f'{M16} {vr(d,4)}, {vr(x,4)}, {vr(y,4)}, {c if isinstance(c,str) else vr(c,4)}'
    def only(w, lab):
        a(f's_cmp_lg_u32 s{sWV}, {w}')
        a(f's_cbranch_scc1 {lab}')

    stamp()
    if opt.get('clk'): a('s_memtime s[96:97]')
    a('s_load_dwordx16 s[4:19], s[0:1], 0')
    a('s_memrealtime s[60:61]')
    a('s_cmp_ge_u32 s2, 256')
    a('s_cbranch_scc1 L_end')
    a(f'v_lshrrev_b32 v1, 6, v0')
    a(f'v_and_b32 {vr(vLANE)}, 63, v0')
    a(f'v_readfirstlane_b32 s{sWV}, v1')
    a(f'v_and_b32 {vr(vI)}, 15, v0')
    a(f'v_bfe_u32 {vr(vKGp)}, v0, 4, 2')
    if opt.get('cpf', True):
        a(f's_getpc_b64 s[{sEX}:{sEX+1}]')
        a(f'v_lshlrev_b32 v1, 5, v0')
        a(f'global_load_dword {vr(X8)}, v1, s[{sEX}:{sEX+1}]')
    a('s_and_b32 s41, s2, 7')
    a('s_lshr_b32 s42, s2, 3')
    a(f's_lshr_b32 s{sH}, s42, 3')
    a(f's_lshl2_add_u32 s{sH}, s41, s{sH}')
    a(f's_and_b32 s{sC}, s42, 7')
    a(f's_lshl_b32 s{sHO}, s{sH}, 19')
    a(f's_lshl_b32 s{sQ0B}, s{sC}, 16')
    a(f's_lshl_b32 s{sT0}, s{sWV}, 2')
    a(f's_lshl_b32 s{sT1}, s{sWV}, 10')
    a(f's_add_u32 s{sT2}, s{sT1}, s{sQ0B}')
    a(f'v_add_u32 {vr(vDK)}, s{sT0}, {vr(vKGp)}')
    a(f'v_xor_b32 {vr(vDK)}, {vr(vDK)}, {vr(vI)}')
    a(f'v_lshlrev_b32 {vr(vDK)}, 4, {vr(vDK)}')
    a(f'v_lshl_add_u32 {vr(vDK)}, {vr(vKGp)}, 8, {vr(vDK)}')
    a(f'v_add_u32 {vr(vDK)}, s{sT2}, {vr(vDK)}')
    a(f's_mov_b32 m0, s{sT1}')
    for s_ in (sK, sV, sQ):
        a(f's_mov_b32 s{s_+2}, 0x80000')
        a(f's_mov_b32 s{s_+3}, 0x20000')
    a(f's_mov_b32 s{sW+2}, 0x4000')
    a(f's_mov_b32 s{sW+3}, 0x20000')
    a(f's_and_b32 s{sBK}, s{sWV}, 3')
    a(f's_lshl_b32 s{sBK}, s{sBK}, 1')
    a(f's_cmp_lt_u32 s{sWV}, 4')
    a(f's_addc_u32 s{sBK}, s{sBK}, 0')
    a(f's_cmp_eq_u32 s{sC}, 0')
    a(f's_cselect_b32 s{sT3}, 0x40000000, 0')
    a(f's_lshl_b32 s{sT0}, s{sBK}, 13')
    a(f's_add_u32 s{sT0}, s{sT0}, s{sQ0B}')
    a(f'v_lshlrev_b32 {vr(vDQ)}, 4, {vr(vKGp)}')
    a(f'v_lshl_add_u32 {vr(vDQ)}, {vr(vI)}, 8, {vr(vDQ)}')
    a(f'v_add_u32 {vr(vDQ)}, s{sT0}, {vr(vDQ)}')
    a(f'v_lshlrev_b32 {vr(t3)}, 4, {vr(vLANE)}')
    a(f's_sub_u32 s{sT0}, s{sT3}, 0x2000')
    a(f'v_add_u32 {vr(t1)}, s{sT0}, {vr(vDQ)}')
    a(f'v_add_u32 {vr(t2)}, 0x1000, {vr(t1)}')
    a(f's_lshl_b32 s41, s{sH}, 14')
    a(f's_lshl_b32 s42, s{sC}, 11')
    a(f's_mov_b32 s{sN}, 0')
    a(f's_cmp_ge_u32 s{sWV}, 4')
    a('s_cbranch_scc1 L_helper')
    a('s_waitcnt lgkmcnt(0)')
    stamp()
    a(f's_add_u32 s{sK}, s6, s{sHO}')
    a(f's_addc_u32 s{sK+1}, s7, 0')
    for i in range(18):
        if i:
            a('s_add_u32 m0, m0, 0x1000')
            a(f'v_add_u32 {vr(vDK)}, 0x1000, {vr(vDK)}')
        a(f'buffer_load_dwordx4 {vr(vDK)}, {sr(sK,4)}, 0 offen {ldpol} lds')
    def srds():
        a(f's_add_u32 s{sV}, s8, s{sHO}')
        a(f's_addc_u32 s{sV+1}, s9, 0')
        a(f's_add_u32 s{sQ}, s4, s{sHO}')
        a(f's_addc_u32 s{sQ+1}, s5, 0')
        a(f's_add_u32 s{sW}, s18, s41')
        a(f's_addc_u32 s{sW+1}, s19, 0')
    srds()
    a('s_branch L_v1')
    a.label('L_helper')
    a('s_setprio 3')
    a(f's_mov_b32 m0, {SOFF}')
    a('s_waitcnt lgkmcnt(0)')
    if stamps:
        nst[0] -= 1
        stamp()
    a(f's_add_u32 s{sK}, s6, s{sHO}')
    a(f's_addc_u32 s{sK+1}, s7, 0')
    srds()
    a(f's_or_b32 s{sN}, s60, 1')
    only(FW, 'L_noclear')
    a(f's_lshl_b32 s{sT0}, s{sH}, 3')
    a(f'v_mov_b32 {vr(S+4)}, s{sT0}')
    a(f'v_mov_b32 {vr(S+5)}, s{sN}')
    a(f'v_mov_b32 {vr(S+6)}, {LCNT}')
    a(f'v_mov_b32 {vr(S+7)}, 0')
    a('s_mov_b64 exec, 1')
    a(f's_cmp_lg_u32 s{sC}, {CC}')
    a('s_cbranch_scc1 L_nopub')
    a(f'global_store_dword {vr(S+4)}, {vr(S+5)}, s[16:17] sc0 sc1')
    a.label('L_nopub')
    a(f'ds_write_b32 {vr(S+6)}, {vr(S+7)}')
    a('s_mov_b64 exec, -1')
    a.label('L_noclear')
    only(SW, 'L_nosmall')
    for n, srd in enumerate((sK, sQ, sV)):
        if n:
            a(f's_mov_b32 m0, {SOFF + 1024*n}')
            a('s_nop 0')
        a(f'buffer_load_dwordx4 {vr(t3)}, {sr(srd,4)}, 0 offen lds')
    a.label('L_nosmall')
    only(HW, 'L_nohalo')
    for T in range(2):
        for ks in range(4):
            a(f'buffer_load_dwordx4 {vr(kf(T,ks),4)}, {vr(t1+T)}, {sr(sK,4)}, 0 offen offset:{64*ks}')
    a.label('L_nohalo')
    a('s_setprio 0')
    a('s_branch L_nov1')
    a.label('L_v1')
    def vpiece(i):
        if i:
            a('s_add_u32 m0, m0, 0x1000')
            a(f'v_add_u32 {vr(vDV)}, 0x1000, {vr(vDV)}')
        if i < 2:
            a(f'v_add_u32 {vr(t1)}, s{sT3}, {vr(vDV)}')
            a(f'buffer_load_dwordx4 {vr(t1)}, {sr(sV,4)}, 0 offen {ldpol} lds')
        else:
            a(f'buffer_load_dwordx4 {vr(vDV)}, {sr(sV,4)}, 0 offen {ldpol} lds')
    a(f's_and_b32 s{sT0}, s{sWV}, 1')
    a(f's_lshl_b32 s{sT0}, s{sT0}, 2')
    a(f'v_add_lshl_u32 {vr(vDV)}, s{sT0}, {vr(vKGp)}, 1')
    a(f'v_xor_b32 {vr(vDV)}, {vr(vDV)}, {vr(vI)}')
    a(f'v_lshlrev_b32 {vr(vDV)}, 4, {vr(vDV)}')
    a(f'v_lshl_add_u32 {vr(vDV)}, {vr(vKGp)}, 8, {vr(vDV)}')
    a(f's_sub_u32 s{sT2}, s{sT2}, 0x2000')
    a(f'v_add_u32 {vr(vDV)}, s{sT2}, {vr(vDV)}')
    a(f's_add_u32 m0, s{sT1}, {VOFF}')
    for i in range(N1): vpiece(i)
    a.label('L_nov1')
    stamp()

    a(f's_add_u32 s{sO}, s14, s{sHO}')
    a(f's_addc_u32 s{sO+1}, s15, 0')
    a(f's_mov_b32 s{sO+2}, 0x80000')
    a(f's_mov_b32 s{sO+3}, 0x20000')
    a(f's_mov_b32 s{sCS}, 0x{CSC:08x}')
    a(f's_mov_b32 s{sCS+1}, 0x{CSC:08x}')
    a(f'v_mov_b32 {vr(vNEG)}, 0x{NEG:08x}')
    a(f'v_lshlrev_b32 {vr(t2)}, 2, {vr(vKGp)}')
    a(f'v_cmp_eq_u32 {sr(sKG0,2)}, 0, {vr(vKGp)}')
    for r in range(4):
        a(f'v_add_u32 {vr(t1)}, {r}, {vr(t2)}')
        a(f'v_cmp_ge_u32 vcc, {vr(t1)}, {vr(vI)}')
        a(f'v_cmp_le_u32 s[60:61], {vr(t1)}, {vr(vI)}')
        a('s_nop 0')
        a(f'v_cndmask_b32 {vr(BLO+r)}, {vr(vNEG)}, 0, vcc')
        a(f'v_cndmask_b32 {vr(BHI+r)}, {vr(vNEG)}, 0, s[60:61]')
    a(f's_lshl_b32 s{sT0}, s{sBK}, 13')
    a(f'v_xor_b32 {vr(t1)}, {vr(vKGp)}, {vr(vI)}')
    a(f'v_lshlrev_b32 {vr(t1)}, 4, {vr(t1)}')
    a(f'v_lshl_add_u32 {vr(t1)}, {vr(vI)}, 8, {vr(t1)}')
    a(f'v_add_u32 {vr(vAK)}, s{sT0}, {vr(t1)}')
    for ks in range(1, 4):
        a(f'v_xor_b32 {vr(vAK+ks)}, {64*ks}, {vr(vAK)}')
    a(f'v_and_b32 {vr(t1)}, 1, {vr(vI)}')
    a(f'v_lshlrev_b32 {vr(vNEG)}, 3, {vr(t1)}')
    a(f'v_lshlrev_b32 {vr(t1)}, 8, {vr(t1)}')
    a(f'v_lshl_add_u32 {vr(t1)}, {vr(vKGp)}, 4, {vr(t1)}')
    a(f'v_add_u32 {vr(vAG)}, {SOFF}, {vr(t1)}')
    a(f'v_bfe_u32 {vr(t1)}, {vr(vLANE)}, 2, 2')
    a(f'v_and_b32 {vr(t2)}, 3, {vr(vLANE)}')
    a(f'v_lshlrev_b32 {vr(t2)}, 3, {vr(t2)}')
    a(f'v_lshl_add_u32 {vr(t1)}, {vr(t1)}, 8, {vr(t2)}')
    a(f'v_add_u32 {vr(vAVG)}, {SOFF+2048}, {vr(t1)}')
    a(f'v_lshrrev_b32 {vr(t1)}, 2, {vr(vLANE)}')
    a(f'v_and_b32 {vr(vT0)}, 7, {vr(t1)}')
    a(f'v_lshl_add_u32 {vr(t2)}, {vr(vT0)}, 5, {vr(t2)}')
    a(f'v_lshl_add_u32 {vr(t2)}, {vr(t1)}, 8, {vr(t2)}')
    a(f's_add_u32 s{sT1}, s{sT0}, {VOFF}')
    a(f'v_add_u32 {vr(VA)}, s{sT1}, {vr(t2)}')
    for t in range(1, 8):
        a(f'v_xor_b32 {vr(VA+t)}, {32*t}, {vr(VA)}')
    a(f's_mul_i32 s{sT1}, s{sWV}, {16*STGP}')
    a(f's_add_u32 s{sT1}, s{sT1}, {STG}')
    a(f'v_mul_u32_u24 {vr(t1)}, {STGP}, {vr(vI)}')
    a(f'v_lshl_add_u32 {vr(t1)}, {vr(vKGp)}, 3, {vr(t1)}')
    a(f'v_add_u32 {vr(vSW)}, s{sT1}, {vr(t1)}')
    a(f'v_mul_u32_u24 {vr(t1)}, {STGP}, {vr(vKGp)}')
    a(f'v_lshl_add_u32 {vr(t1)}, {vr(vI)}, 4, {vr(t1)}')
    a(f'v_add_u32 {vr(vSR)}, s{sT1}, {vr(t1)}')
    a(f's_add_u32 s{sT0}, s{sT0}, s{sQ0B}')
    a(f'v_add_u32 {vr(vOO)}, s{sT0}, {vr(t3)}')
    a(f's_lshr_b32 s{sQB}, s{sT0}, 8')
    a(f's_cmp_eq_u32 s{sQB}, 0')
    a(f's_cselect_b32 s{sEX}, 0, -1')
    a(f's_mov_b32 s{sEX+1}, -1')
    a(f's_cmp_eq_u32 s{sQB}, {256*CC+32*(2*CW+1)}')
    a(f's_cselect_b32 s{sCMB}, 1, 0')
    a(f's_lshl_b32 s{sT0}, s{sWV}, 4')
    a(f's_add_u32 s{sT0}, s{sT0}, {PARTML}')
    a(f'v_add_u32 {vr(vNEG)}, s{sT0}, {vr(vNEG)}')

    a(f's_waitcnt vmcnt({N1}) lgkmcnt(0)')
    a(f's_cmp_lt_u32 s{sWV}, 4')
    a('s_cbranch_scc1 L_kw')
    a(f's_cmp_eq_u32 s{sWV}, {FW}')
    a('s_cbranch_scc1 L_kw')
    a('s_waitcnt vmcnt(0)')
    a.label('L_kw')
    stamp(opt.get('prek', False))
    a('s_barrier')
    stamp()
    a(f's_cmp_ge_u32 s{sWV}, 4')
    a('s_cbranch_scc1 L_nov2')
    for i in range(N1, 20): vpiece(i)
    a.label('L_nov2')
    stamp(fine)
    QG = O
    for W in (2, 3, 4, 5):
        for ks in range(4):
            a(f'ds_read_b128 {vr(kf(W,ks),4)}, {vr(vAK+ks)} offset:{4096*(W-2)}')
    for ks in range(4):
        a(f'ds_read_b128 {vr(KG+4*ks,4)}, {vr(vAG)} offset:{64*ks}')
    for t in range(8):
        a(f'ds_read_b64_tr_b16 {vr(VG+4*t+2,2)}, {vr(vAVG)} offset:{32*t}')
    a(f's_cmp_eq_u32 s{sWV}, {HW}')
    a('s_cbranch_scc1 L_k01done')
    for ks in range(4):
        a(f'v_subrev_u32 {vr(vAK+ks)}, 0x2000, {vr(vAK+ks)}')
    for W in (0, 1):
        for ks in range(4):
            a(f'ds_read_b128 {vr(kf(W,ks),4)}, {vr(vAK+ks)} offset:{4096*W}')
    a.label('L_k01done')
    def issue_qa():
        if opt.get('qprio'): a('s_setprio 3')
        for ks in range(4):
            a(f'buffer_load_dwordx4 {vr(QA+4*ks,4)}, {vr(vDQ)}, {sr(sQ,4)}, 0 offen offset:{64*ks} {qpol}')
        if opt.get('qprio'): a('s_setprio 0')

    def xred(m, t, op='v_max_f32'):
        a(f'v_mov_b32 {vr(t)}, {vr(m)}')
        a.nop(2)
        a(f'v_permlane16_swap_b32 {vr(m)}, {vr(t)}')
        a(f'{op} {vr(m)}, {vr(m)}, {vr(t)}')
        a(f'v_mov_b32 {vr(t)}, {vr(m)}')
        a.nop(2)
        a(f'v_permlane32_swap_b32 {vr(m)}, {vr(t)}')
        a(f'{op} {vr(m)}, {vr(m)}, {vr(t)}')
    def maxtree_l(vals, m, first=True):
        out = []; rest = list(vals)
        if first:
            out.append(f'v_max3_f32 {vr(m)}, {vr(rest[0])}, {vr(rest[1])}, {vr(rest[2])}'); rest = rest[3:]
        while len(rest) >= 2:
            out.append(f'v_max3_f32 {vr(m)}, {vr(m)}, {vr(rest[0])}, {vr(rest[1])}'); rest = rest[2:]
        if rest:
            out.append(f'v_max_f32 {vr(m)}, {vr(m)}, {vr(rest[0])}')
        return out
    def fma_l(vals, mc):
        if pk:
            return [f'v_pk_fma_f32 {vr(vals[n],2)}, {vr(vals[n],2)}, {sr(sCS,2)}, {vr(mc,2)} op_sel_hi:[1,1,0] neg_lo:[0,0,1] neg_hi:[0,0,1]' for n in range(0, len(vals), 2)]
        return [f'v_fma_f32 {vr(v)}, {vr(v)}, s{sCS}, -{vr(mc)}' for v in vals]
    exp_l = lambda vals: [f'v_exp_f32 {vr(v)}, {vr(v)}' for v in vals]
    cvt_l = lambda dst, src, n: [f'v_cvt_pk_bf16_f32 {vr(dst+k)}, {vr(src+2*k)}, {vr(src+2*k+1)}' for k in range(n)]

    def vread(dst, t, W):
        return f'ds_read_b64_tr_b16 {vr(dst,2)}, {vr(VA+t)} offset:{4096*W}'
    a(f's_cmp_lt_u32 s{sWV}, 4')
    a('s_cbranch_scc1 L_gk')
    only(FW, 'L_notag')
    a('s_setprio 3')
    a(f's_lshl_b32 s{sT0}, s{sH}, 3')
    a(f'v_mov_b32 {vr(S+4)}, s{sT0}')
    a(f'v_mov_b32 {vr(S+5)}, s{sN}')
    a(f'v_mov_b32 {vr(S+6)}, {LCNT}')
    a(f'global_load_dword {vr(S+7)}, {vr(S+4)}, s[16:17]')
    a('s_setprio 0')
    issue_qa()
    a('s_waitcnt vmcnt(4)')
    a(f's_cmp_eq_u32 s{sC}, {CC}')
    a('s_cselect_b64 vcc, -1, 0')
    a(f'v_cndmask_b32 {vr(S+7)}, {vr(S+7)}, {vr(S+5)}, vcc')
    a('s_mov_b64 exec, 1')
    a(f'ds_write_b32 {vr(S+6)}, {vr(S+7)} offset:4')
    a('s_mov_b64 exec, -1')
    a('s_branch L_tagdone')
    a.label('L_notag')
    issue_qa()
    a.label('L_tagdone')
    a('s_waitcnt lgkmcnt(0)')
    a(f'v_add_u32 {vr(vDQk)}, 0x1000, {vr(vDQ)}')
    stamp(fine)
    a('s_barrier')
    for t in range(8):
        a(vread(X[t+1], t, 0)); a(vread(X[t+1]+2, t, 1))
    a('s_branch L_gdone')
    a.label('L_gk')
    for ks in range(4):
        a(f'ds_read_b128 {vr(QG+4*ks,4)}, {vr(vAG)} offset:{1024+64*ks}')
    issue_qa()
    a('s_waitcnt lgkmcnt(0)')
    for T in range(4):
        for ks in range(4):
            a(mfma(S+4*T, kf(T,ks), QG+4*ks, '0' if ks == 0 else S+4*T))
    a(f'v_add_u32 {vr(vDQk)}, 0x1000, {vr(vDQ)}')
    a.nop(7)
    for l in maxtree_l([S+x for x in range(16)], vM): a(l)
    xred(vM, vT)
    a(f'v_mul_f32 {vr(vM)}, s{sCS}, {vr(vM)}')
    for l in fma_l([S+x for x in range(16)], vM): a(l)
    for l in exp_l([S+x for x in range(16)]): a(l)
    a.nop(1)
    a(f'v_add_f32 {vr(vT)}, {vr(S)}, {vr(S+1)}')
    for x in range(2, 16):
        a(f'v_add_f32 {vr(vT)}, {vr(vT)}, {vr(S+x)}')
    for l in cvt_l(S, S, 8): a(l)
    xred(vT, vT0, 'v_add_f32')
    a(f'ds_write_b64 {vr(vNEG)}, {vr(vM,2)}')
    a(f'v_mbcnt_lo_u32_b32 {vr(vT0)}, -1, 0')
    a(f's_lshl_b32 s{sT0}, s{sWV}, 10')
    a(f'v_lshl_add_u32 {vr(vT0)}, {vr(vT0)}, 3, s{sT0}')
    if stamps and fine:
        nst[0] -= 1
        stamp()
    a('s_waitcnt vmcnt(4) lgkmcnt(0)')
    a('s_barrier')
    gb = [QB + 4*n for n in range(4)] + [S + 8 + 4*n for n in range(4)]
    for t in range(8):
        a(vread(gb[t], t, 2)); a(vread(gb[t]+2, t, 3))
    for t in range(8):
        a('s_waitcnt lgkmcnt(14)')
        a(mfma(gb[t], S+4, gb[t], '0'))
        a(vread(X[t+1], t, 0)); a(vread(X[t+1]+2, t, 1))
    for t in range(8):
        a(f's_waitcnt lgkmcnt({14-2*t})')
        a(mfma(gb[t], S, X[t+1], gb[t]))
    a('s_mov_b64 exec, 1')
    a(f'v_mov_b32 {vr(S)}, {LCNT}')
    a(f'v_mov_b32 {vr(S+1)}, 1')
    a('s_mov_b64 exec, 0xffff')
    for t in range(8):
        a(f'ds_write_b64 {vr(vT0)}, {vr(gb[t],2)} offset:{PART+128*t}')
    a('s_mov_b64 exec, 1')
    a(f'ds_add_u32 {vr(S)}, {vr(S+1)}')
    a('s_mov_b64 exec, -1')
    a.label('L_gdone')
    stamp()

    emit = lambda ls: [a(l) for l in ls]
    def combine(og, mg, tm):
        NP = len(og)
        emit(maxtree_l([mg[n] for n in range(NP)], tm))
        for n in range(NP):
            a(f'v_sub_f32 {vr(mg[n])}, {vr(mg[n])}, {vr(tm)}')
        for n in range(NP):
            a(f'v_exp_f32 {vr(mg[n])}, {vr(mg[n])}')
        a.nop(1)
        for e in range(4):
            a(f'v_mul_f32 {vr(og[0][e])}, {vr(og[0][e])}, {vr(mg[0])}')
        a(f'v_mul_f32 {vr(mg[0]+1)}, {vr(mg[0]+1)}, {vr(mg[0])}')
        for n in range(1, NP):
            for e in range(4):
                a(f'v_fmac_f32 {vr(og[0][e])}, {vr(og[n][e])}, {vr(mg[n])}')
            a(f'v_fmac_f32 {vr(mg[0]+1)}, {vr(mg[n]+1)}, {vr(mg[n])}')

    def issue_qb():
        for ks in range(4):
            a(f'buffer_load_dwordx4 {vr(QB+4*ks,4)}, {vr(vDQk)}, {sr(sQ,4)}, 0 offen offset:{64*ks} {qpol}')
        a(f'v_mov_b32 {vr(vDQk)}, 0')
    issue_qb()
    a(f's_cmp_eq_u32 s{sWV}, {RW}')
    a('s_cbranch_scc1 L_reduce')
    a(f's_cmp_eq_u32 s{sCMB}, 0')
    a('s_cbranch_scc1 L_noflag')
    a(f'v_mov_b32 {vr(vT0)}, {LNON}')
    a(f'ds_read_b32 {vr(vT0)}, {vr(vT0)}')
    a('s_waitcnt lgkmcnt(0)')
    a(f'v_readfirstlane_b32 s{sN}, {vr(vT0)}')
    a.label('L_noflag')
    a('s_waitcnt vmcnt(4)')
    a('s_branch L_tileA')
    a.label('L_reduce')
    R0 = S
    a(f'v_mbcnt_lo_u32_b32 {vr(R0)}, -1, 0')
    a(f'v_mbcnt_hi_u32_b32 {vr(R0)}, -1, {vr(R0)}')
    a(f'v_lshrrev_b32 {vr(R0+1)}, 5, {vr(R0)}')
    a(f'v_and_b32 {vr(R0+3)}, 31, {vr(R0)}')
    a(f'v_lshlrev_b32 {vr(R0+3)}, 5, {vr(R0+3)}')
    a(f'v_lshl_add_u32 {vr(R0+3)}, {vr(R0+1)}, 2, {vr(R0+3)}')
    a(f'v_lshlrev_b32 {vr(R0+1)}, 3, {vr(R0+1)}')
    a(f'v_add_u32 {vr(R0+1)}, {PARTML}, {vr(R0+1)}')
    a(f'v_lshlrev_b32 {vr(R0)}, 4, {vr(R0)}')
    a(f'v_mov_b32 {vr(R0+2)}, {LCNT}')
    a(f's_mov_b32 s{sCNT}, 0')
    a.label('L_lspin')
    a(f'ds_read_b64 {vr(S+4,2)}, {vr(R0+2)}')
    a(f's_add_u32 s{sCNT}, s{sCNT}, 1')
    a('s_waitcnt lgkmcnt(0)')
    a(f'v_readfirstlane_b32 s{sT0}, {vr(S+4)}')
    a(f'v_readfirstlane_b32 s{sN}, {vr(S+5)}')
    a(f's_cmp_ge_u32 s{sCNT}, 0x100000')
    a('s_cbranch_scc1 L_lok')
    a(f's_cmp_lt_u32 s{sT0}, 4')
    a('s_cbranch_scc1 L_lspin')
    a.label('L_lok')
    mg = [S+4, S+6, O, O+2]
    G0 = S + 8
    og = [[G0+4*n+e for e in range(4)] for n in range(4)]
    for n in range(4):
        a(f'ds_read_b64 {vr(mg[n],2)}, {vr(R0+1)} offset:{16*n}')
    for n in range(4):
        if n: a(f'v_add_u32 {vr(R0+3)}, 1024, {vr(R0+3)}')
        a(f'ds_read2_b32 {vr(G0+4*n,2)}, {vr(R0+3)} offset0:0 offset1:2')
        a(f'ds_read2_b32 {vr(G0+4*n+2,2)}, {vr(R0+3)} offset0:4 offset1:6')
    a('s_waitcnt lgkmcnt(0)')
    combine(og, mg, R0+1)
    a(f'v_mov_b32 {vr(G0+4)}, {vr(G0+3)}')
    a(f'v_mov_b32 {vr(G0+5)}, {vr(R0+1)}')
    a(f'v_mov_b32 {vr(G0+6)}, {vr(mg[0]+1)}')
    a(f'v_mov_b32 {vr(G0+7)}, s{sN}')
    a(f'v_mov_b32 {vr(G0+3)}, s{sN}')
    a(f'buffer_store_dwordx4 {vr(G0+4,4)}, {vr(R0)}, {sr(sW,4)}, s42 offen offset:1024 sc0 sc1')
    a(f'buffer_store_dwordx4 {vr(G0,4)}, {vr(R0)}, {sr(sW,4)}, s42 offen sc0 sc1')
    a(f's_cmp_lg_u32 s{sN}, 0')
    a('s_cbranch_scc1 L_tagged')
    a('s_waitcnt vmcnt(0)')
    a(f's_lshl_b32 s{sT0}, s{sH}, 3')
    a(f's_lshl_b32 s{sT1}, 1, s{sC}')
    a(f'v_mov_b32 {vr(R0)}, s{sT0}')
    a(f'v_mov_b32 {vr(R0+1)}, s{sT1}')
    a('s_mov_b64 exec, 1')
    a(f'global_atomic_or {vr(R0)}, {vr(R0+1)}, s[16:17] offset:4 sc1')
    a('s_mov_b64 exec, -1')
    a.label('L_tagged')
    a('s_waitcnt vmcnt(6)')
    a.label('L_tileA')
    stamp()

    def inter(ms, vs, per=2):
        vs = list(vs)
        for m in ms:
            a(m)
            for _ in range(per):
                if vs: a(vs.pop(0))
        for v in vs: a(v)

    HB = kf(2, 0)
    def hand_loads():
        a(f'v_mbcnt_lo_u32_b32 {vr(KG)}, -1, 0')
        a(f'v_mbcnt_hi_u32_b32 {vr(KG)}, -1, {vr(KG)}')
        a(f'v_lshlrev_b32 {vr(KG)}, 4, {vr(KG)}')
        for n in range(8):
            a(f's_movk_i32 s{sT0}, {2048*n}')
            a(f'buffer_load_dwordx4 {vr(HB+8*n,4)}, {vr(KG)}, {sr(sW,4)}, s{sT0} offen sc0 sc1')
            a(f'buffer_load_dwordx4 {vr(HB+8*n+4,4)}, {vr(KG)}, {sr(sW,4)}, s{sT0} offen offset:1024 sc0 sc1')

    buf = [kf(0, n) for n in range(4)] + [QA + 4*n for n in range(4)]
    SLOTW = {0: [0, 1, 2, 3, 4], 1: [4, 5, 2, 3, 1]}
    def qk(tau, sl):
        Q = QA if tau == 0 else QB
        if sl == 'G':
            return [mfma(S+20, KG+4*ks, Q+4*ks, '0' if ks == 0 else S+20) for ks in range(4)]
        W = SLOTW[tau][sl]
        c0 = BLO if W == tau else BHI if W == tau + 4 else '0'
        return [mfma(S+4*sl, kf(W,ks), Q+4*ks, c0 if ks == 0 else S+4*sl) for ks in range(4)]
    def edge_test(tau, lab):
        a(f's_sub_u32 s{sT0}, s{sQB}, {48 - 16*tau}')
        a(f's_cmp_lt_u32 s{sT0}, 1968')
        a(f's_cbranch_scc1 {lab}')
    def edge_mask(tau, tr):
        a(f'v_mbcnt_lo_u32_b32 {vr(tr)}, -1, 0')
        a(f'v_mbcnt_hi_u32_b32 {vr(tr)}, -1, {vr(tr)}')
        a(f'v_lshrrev_b32 {vr(tr)}, 4, {vr(tr)}')
        a(f's_sub_u32 s{sT0}, s{sQB}, 34')
        a(f's_movk_i32 s{sT1}, 2046')
        a(f'v_lshl_add_u32 {vr(tr)}, {vr(tr)}, 2, s{sT0}')
        a(f'v_mov_b32 {vr(vM)}, 0x{NEG:08x}')
        a('s_nop 3')
        for sl in range(5):
            for r in range(4):
                a(f'v_add_u32 {vr(vT)}, {16*SLOTW[tau][sl]+r}, {vr(tr)}')
                a(f'v_cmp_gt_u32 vcc, s{sT1}, {vr(vT)}')
                a('s_nop 1')
                a(f'v_cndmask_b32 {vr(S+4*sl+r)}, {vr(vM)}, {vr(S+4*sl+r)}, vcc')
        for l in maxtree_l([S+x for x in range(22)], vM): a(l)
    def epi(t):
        l = [f'v_mul_f32 {vr(O+4*t+e)}, {vr(O+4*t+e)}, {vr(vT0)}' for e in range(4)]
        l += [f'v_cvt_pk_bf16_f32 {vr(O+4*t)}, {vr(O+4*t)}, {vr(O+4*t+1)}',
              f'v_cvt_pk_bf16_f32 {vr(O+4*t+1)}, {vr(O+4*t+2)}, {vr(O+4*t+3)}',
              f'ds_write_b64 {vr(vSW)}, {vr(O+4*t,2)} offset:{32*t}']
        return l
    def stage_reads():
        return [f'ds_read_b128 {vr(O+4*j,4)}, {vr(vSR)} offset:{4*STGP*j}' for j in range(4)]
    def stores(tau):
        for j in range(4):
            a(f's_waitcnt lgkmcnt({3-j})')
            if tau == 0 and j == 0: a(f's_mov_b64 exec, {sr(sEX,2)}')
            a(f'buffer_store_dwordx4 {vr(O+4*j,4)}, {vr(vOO)}, {sr(sO,4)}, 0 offen offset:{1024*j} {stpol}')
            if tau == 0 and j == 0: a('s_mov_b64 exec, -1')
    def softmax_pv(tau):
        m = vM
        xred(m, vT)
        a(f'v_mul_f32 {vr(m)}, s{sCS}, {vr(m)}')
        set0 = [S+x for x in range(8)]; set1 = [S+8+x for x in range(8)]; set2 = [S+16+x for x in range(6)]
        for l in fma_l(set0, m): a(l)
        f2 = fma_l(set2, m); f1 = fma_l(set1, m)
        for l in exp_l(set0): a(l)
        a(f2[0])
        for l in cvt_l(S, S, 4): a(l)
        a(f2[1])
        a('s_waitcnt lgkmcnt(0)' if tau == 1 else 's_waitcnt lgkmcnt(8)')
        ONES, LACC = S+4, S+20
        v2 = f2[2:] + exp_l(set2) + [f'v_mov_b32 {vr(ONES+n)}, 0x3f803f80' for n in range(4)] + cvt_l(S+16, S+16, 3) \
             + [f'v_mov_b32 {vr(S+19)}, 0', f'v_cndmask_b32 {vr(S+18)}, 0, {vr(S+18)}, {sr(sKG0,2)}']
        inter([mfma(X[t], X[t+1], S, '0') for t in range(8)], v2 + f1[:2])
        v1 = f1[2:] + exp_l(set1) + [f'v_mov_b32 {vr(vT0)}, 0'] + cvt_l(S+8, S+8, 4)
        inter([mfma(O+4*t, VG+4*t, S+16, O+4*t) for t in range(8)], v1)
        a(mfma(LACC, ONES, S, '0'))
        a(mfma(LACC, ONES, S+16, LACC))
        a(mfma(LACC, ONES, S+8, LACC))
        if tau == 0:
            a('s_waitcnt lgkmcnt(0)')
        for t in range(8):
            a(mfma(O+4*t, buf[t], S+8, O+4*t))
            if tau == 0: a(vread(VG+4*t, t, 1))
        a(f'v_rcp_f32 {vr(vT0)}, {vr(LACC)}')

    late = []
    for t in range(8):
        late += [vread(buf[t], t, 2), vread(buf[t]+2, t, 3)]
    vgr = [vread(VG+4*t, t, 4) for t in range(8)]
    edge_test(0, 'L_fastA')
    for l in vgr: a(l)
    for sl in ('G', 0, 1, 2, 3, 4):
        for l in qk(0, sl): a(l)
    for l in late: a(l)
    edge_mask(0, vT0)
    a('s_branch L_joinA')
    a.label('L_fastA')
    m = vM
    inter(qk(0, 0) + qk(0, 'G'), vgr, per=1)
    inter(qk(0, 1) + qk(0, 2), late[:8], per=1)
    inter(qk(0, 3), maxtree_l([S+20, S+21, S+0], m) + maxtree_l([S+1, S+2, S+3, S+4, S+5, S+6], m, False), per=1)
    inter(qk(0, 4), maxtree_l([S+7, S+8, S+9, S+10], m, False), per=1)
    for l in late[8:11]: a(l)
    for l in maxtree_l([S+11, S+12], m, False): a(l)
    for l in late[11:13]: a(l)
    for l in maxtree_l([S+13, S+14, S+15], m, False): a(l)
    for l in late[13:]: a(l)
    for l in maxtree_l([S+16, S+17, S+18, S+19], m, False): a(l)
    a.label('L_joinA')
    stamp(fine)
    softmax_pv(0)
    stamp(fine)
    ep = []
    for t in range(8): ep += epi(t)
    ep += stage_reads()
    xb = []
    for t in range(8): xb += [vread(X[t+1], t, 4), vread(X[t+1]+2, t, 5)]
    def qb_wait(n):
        a(f's_waitcnt vmcnt({n+2})')
        a(f's_cmp_eq_u32 s{sWV}, {RW}')
        a('s_cbranch_scc1 L_qbw')
        a(f's_waitcnt vmcnt({n})')
        a.label('L_qbw')
    if not merge:
        a('s_nop 0')
        for l in ep: a(l)
        stores(0)
        for l in xb: a(l)
        qb_wait(4)
        stamp()
        edge_test(1, 'L_fastB')
        for sl in ('G', 0, 1, 2, 3, 4):
            for l in qk(1, sl): a(l)
        edge_mask(1, vT0)
        a('s_branch L_joinB')
        a.label('L_fastB')
        for sl in ('G', 0, 1, 2):
            for l in qk(1, sl): a(l)
        inter(qk(1, 3), maxtree_l([S+20, S+21, S+0], m) + maxtree_l([S+1, S+2], m, False), per=1)
        inter(qk(1, 4), maxtree_l([S+3, S+4, S+5, S+6, S+7, S+8], m, False), per=1)
        a.nop(1)
        for l in maxtree_l([S+9, S+10, S+11, S+12], m, False): a(l)
        a.nop(1)
        for l in maxtree_l([S+13, S+14, S+15], m, False): a(l)
        a.nop(2)
        for l in maxtree_l([S+16, S+17, S+18, S+19], m, False): a(l)
    else:
        qb_wait(0)
        stamp()
        edge_test(1, 'L_fastB')
        for l in ep: a(l)
        stores(0)
        for sl in (0, 1, 2, 3, 4, 'G'):
            for l in qk(1, sl): a(l)
        for l in xb: a(l)
        edge_mask(1, vT0)
        a('s_branch L_joinB')
        a.label('L_fastB')
        ms = []
        for sl in (0, 1, 2, 3, 4, 'G'): ms += qk(1, sl)
        inter(ms, ep, per=3)
        for l in maxtree_l([S+x for x in range(15)], vT0): a(l)
        stores(0)
        for l in xb: a(l)
        a(f'v_max3_f32 {vr(vM)}, {vr(vT0)}, {vr(S+15)}, {vr(S+16)}')
        for l in maxtree_l([S+17, S+18, S+19, S+20, S+21], vM, False): a(l)
    a.label('L_joinB')
    a(f'v_add_u32 {vr(vOO)}, 0x1000, {vr(vOO)}')
    stamp()
    a(f's_cmp_eq_u32 s{sCMB}, 0')
    a('s_cbranch_scc1 L_nohand')
    hand_loads()
    a.label('L_nohand')
    softmax_pv(1)
    stamp(fine)
    a('s_nop 0')
    for t in range(8):
        for l in epi(t): a(l)
    for l in stage_reads(): a(l)
    stores(1)
    stamp()

    a(f's_cmp_eq_u32 s{sCMB}, 0')
    a('s_cbranch_scc1 L_fin')
    a('s_waitcnt vmcnt(4)')
    a(f's_mov_b32 s{sCNT}, 0')
    a(f's_mov_b32 s{sT2}, 0')
    a.label('L_chk')
    a(f's_mov_b32 s{sT3}, s{sT2}')
    for n in range(8):
        a(f'v_cmp_eq_u32 vcc, s{sN}, {vr(HB+8*n+3)}')
        a(f'v_cmp_eq_u32 s[60:61], s{sN}, {vr(HB+8*n+7)}')
        a('s_nop 0')
        a('s_and_b64 vcc, vcc, s[60:61]')
        a('s_cmp_eq_u64 vcc, exec')
        a(f's_cselect_b32 s{sT0}, {1 << n}, 0')
        a(f's_or_b32 s{sT3}, s{sT3}, s{sT0}')
    a(f's_add_u32 s{sCNT}, s{sCNT}, 1')
    a(f's_cmp_eq_u32 s{sT3}, 0xff')
    a('s_cbranch_scc1 L_ready')
    a(f's_cmp_ge_u32 s{sCNT}, 0x40000')
    a('s_cbranch_scc1 L_ready')
    a(f's_lshl_b32 s{sT0}, s{sH}, 3')
    a(f'v_mov_b32 {vr(KG+1)}, s{sT0}')
    a(f'global_load_dword {vr(KG+2)}, {vr(KG+1)}, s[16:17] offset:4 sc0 sc1')
    a('s_waitcnt vmcnt(0)')
    a(f'v_readfirstlane_b32 s{sT2}, {vr(KG+2)}')
    hand_loads()
    a('s_waitcnt vmcnt(0)')
    a('s_branch L_chk')
    a.label('L_ready')
    hog = [[HB+8*n, HB+8*n+1, HB+8*n+2, HB+8*n+4] for n in range(8)]
    hmg = [HB+8*n+5 for n in range(8)]
    combine(hog, hmg, X8)
    a(f'v_rcp_f32 {vr(X8)}, {vr(hmg[0]+1)}')
    a(f'v_lshrrev_b32 {vr(KG)}, 1, {vr(KG)}')
    for e in range(4):
        a(f'v_mul_f32 {vr(hog[0][e])}, {vr(hog[0][e])}, {vr(X8)}')
    a(f'v_cvt_pk_bf16_f32 {vr(X8+2)}, {vr(hog[0][0])}, {vr(hog[0][1])}')
    a(f'v_cvt_pk_bf16_f32 {vr(X8+3)}, {vr(hog[0][2])}, {vr(hog[0][3])}')
    a(f'buffer_store_dwordx2 {vr(X8+2,2)}, {vr(KG)}, {sr(sO,4)}, 0 offen {stpol}')
    a.label('L_fin')
    if stamps:
        stamp()
        a('s_waitcnt vmcnt(0)')
        stamp()
        if opt.get('clk'):
            a('s_memtime s[98:99]')
            a('s_waitcnt lgkmcnt(0)')
            a('s_sub_u32 s98, s98, s96')
            a(f's_add_u32 s{64+2*nst[0]}, s98, s64')
            nst[0] += 1
        a(f's_lshl_b32 s{sT0}, s2, 3')
        a(f's_add_u32 s{sT0}, s{sT0}, s{sWV}')
        a(f's_lshl_b32 s{sT0}, s{sT0}, 6')
        a(f's_add_u32 s{sT0}, s{sT0}, 0x100000')
        a(f's_add_u32 s{sW}, s18, s{sT0}')
        a(f's_addc_u32 s{sW+1}, s19, 0')
        a(f'v_mov_b32 v1, 0')
        a('s_mov_b64 exec, 1')
        for n in range(min(16, nst[0])):
            a(f'v_mov_b32 v2, s{64+2*n}')
            a(f'buffer_store_dword v2, v1, {sr(sW,4)}, 0 offen offset:{4*n}')
        if 'leak' in opt:
            k = int(opt['leak'])
            a(f's_sub_u32 s{sT0}, s{64+2*k}, s64')
            a(f's_lshl_b32 s{sT0}, s{sT0}, 2')
            if 'leakw' in opt:
                a(f's_lshr_b32 s{sT1}, {opt["leakw"]}, s{sWV}')
                a(f's_bitcmp1_b32 s{sT1}, 0')
                a(f's_cselect_b32 s{sT0}, s{sT0}, 0')
            a(f"s_add_u32 s{sT0}, s{sT0}, {opt.get('spin', 5000)}")
            a.label('L_spin')
            a('s_memrealtime s[100:101]')
            a('s_waitcnt lgkmcnt(0)')
            a(f's_sub_u32 s{sT1}, s100, s64')
            a(f's_cmp_lt_u32 s{sT1}, s{sT0}')
            a('s_cbranch_scc1 L_spin')
    a.label('L_end')
    a('s_endpgm')
    if opt.get('cpf', True):
        a('.fill 4096, 4, 0xbf800000')

    check(a.lines)
    if stamps: print('stamps', nst[0])
    head = f'''; windowed + global-token attention, B=1 H=32 S=2048 D=128 bf16 (window 32, 2 global tokens)
; @launch grid=(256,1,1) block=(512,1,1) lds=163840
.amdgcn_target "amdgcn-amd-amdhsa--gfx950"
.text
.globl {NAME}
.p2align 8
.type {NAME},@function
{NAME}:
'''
    tail = f'''.section .rodata,"a"
.p2align 6
.amdhsa_kernel {NAME}
  .amdhsa_next_free_vgpr 256
  .amdhsa_next_free_sgpr {102 if stamps else 64}
  .amdhsa_accum_offset 256
  .amdhsa_group_segment_fixed_size 0
  .amdhsa_kernarg_size 64
  .amdhsa_user_sgpr_count 2
  .amdhsa_user_sgpr_kernarg_segment_ptr 1
  .amdhsa_system_sgpr_workgroup_id_x 1
.end_amdhsa_kernel
'''
    return head + a.text() + tail

if __name__ == '__main__':
    out = sys.argv[1]
    opt = {}
    for kv in sys.argv[2:]:
        k, v = kv.split('=', 1)
        opt[k] = {'True': True, 'False': False}.get(v, v.replace('+', ' '))
    open(out, 'w').write(gen(opt))
```

```python
import sys, math, struct
from asmlib import *

NAME = 'standalone__global_local_windowed_global_tokens__prompt_kernel'
def f2u(x): return struct.unpack('<I', struct.pack('<f', x))[0]

def gen(opt):
    a = Asm()
    NEG = 0xFF000000
    CSC = f2u(128 ** -0.5 * math.log2(math.e))
    KOFF, VOFF, SOFF = 0, 73728, 155648
    PART, STG = 0, 16384
    PARTML, LCNT, LNON = SOFF + 3072, SOFF + 3072 + 128, SOFF + 3072 + 132
    STGP = 272
    ldpol = opt.get('ldpol', '')
    qpol = opt.get('qpol', '')
    stpol = opt.get('stpol', 'nt')
    pk = opt.get('pk', True)
    N1 = int(opt.get('n1', 8))
    RW = int(opt.get('rw', 3))
    FW = 7
    SW = 5
    CW, CC = int(opt.get('cw', 1)), 3
    merge = opt.get('merge', True)
    sQ, sK, sV, sO, sW = 20, 24, 28, 32, 36
    sWV, sH, sC, sHO, sQ0B = 40, 43, 44, 45, 46
    sT0, sT1, sT2, sT3 = 47, 48, 49, 50
    sBK = 62
    HW = 4
    sCS = 52; sKG0 = 54; sQB = 51; sEX = 56; sCMB = 58; sCNT = 59; sN = 63
    VA = 0
    vSW, vSR, vOO, vT0 = 8, 9, 10, 11
    X8 = 12
    KF = 16; KG = 112; QA, QB = 128, 144; VG = 160; O = 192; S = 224
    BLO, BHI = 248, 252
    kf = lambda W, ks: KF + 16 * W + 4 * ks
    X = [O + 4 * n for n in range(8)] + [X8]
    vLANE, vI, vKGp, vDK, vDV, vDQ, vAG, vNEG, vAK = O+16, O+17, O+18, O+19, O+20, O+21, O+22, O+23, O+24
    vAVG, t1, t2, t3 = O+28, O+29, O+30, O+31
    vDQk = VG + 7
    vFLAG = VG + 3
    vM, vT = S + 22, S + 23

    stamps = opt.get('stamps', False)
    fine = opt.get('fine', False)
    nst = [0]
    def stamp(on=True):
        if stamps and on:
            a(f's_memrealtime s[{64+2*nst[0]}:{65+2*nst[0]}]')
            if nst[0]: a('s_waitcnt lgkmcnt(0)')
            nst[0] += 1
    M16 = 'v_mfma_f32_16x16x32_bf16'
    def mfma(d, x, y, c):
        return f'{M16} {vr(d,4)}, {vr(x,4)}, {vr(y,4)}, {c if isinstance(c,str) else vr(c,4)}'
    def only(w, lab):
        a(f's_cmp_lg_u32 s{sWV}, {w}')
        a(f's_cbranch_scc1 {lab}')

    stamp()
    if opt.get('clk'): a('s_memtime s[96:97]')
    a('s_load_dwordx16 s[4:19], s[0:1], 0')
    a('s_memrealtime s[60:61]')
    a('s_cmp_ge_u32 s2, 256')
    a('s_cbranch_scc1 L_end')
    a(f'v_lshrrev_b32 v1, 6, v0')
    a(f'v_and_b32 {vr(vLANE)}, 63, v0')
    a(f'v_readfirstlane_b32 s{sWV}, v1')
    a(f'v_and_b32 {vr(vI)}, 15, v0')
    a(f'v_bfe_u32 {vr(vKGp)}, v0, 4, 2')
    if opt.get('cpf', True):
        a(f's_getpc_b64 s[{sEX}:{sEX+1}]')
        a(f'v_lshlrev_b32 v1, 5, v0')
        a(f'global_load_dword {vr(X8)}, v1, s[{sEX}:{sEX+1}]')
    a('s_and_b32 s41, s2, 7')
    a('s_lshr_b32 s42, s2, 3')
    a(f's_lshr_b32 s{sH}, s42, 3')
    a(f's_lshl2_add_u32 s{sH}, s41, s{sH}')
    a(f's_and_b32 s{sC}, s42, 7')
    a(f's_lshl_b32 s{sHO}, s{sH}, 19')
    a(f's_lshl_b32 s{sQ0B}, s{sC}, 16')
    a(f's_lshl_b32 s{sT0}, s{sWV}, 2')
    a(f's_lshl_b32 s{sT1}, s{sWV}, 10')
    a(f's_add_u32 s{sT2}, s{sT1}, s{sQ0B}')
    a(f'v_add_u32 {vr(vDK)}, s{sT0}, {vr(vKGp)}')
    a(f'v_xor_b32 {vr(vDK)}, {vr(vDK)}, {vr(vI)}')
    a(f'v_lshlrev_b32 {vr(vDK)}, 4, {vr(vDK)}')
    a(f'v_lshl_add_u32 {vr(vDK)}, {vr(vKGp)}, 8, {vr(vDK)}')
    a(f'v_add_u32 {vr(vDK)}, s{sT2}, {vr(vDK)}')
    a(f's_mov_b32 m0, s{sT1}')
    for s_ in (sK, sV, sQ):
        a(f's_mov_b32 s{s_+2}, 0x80000')
        a(f's_mov_b32 s{s_+3}, 0x20000')
    a(f's_mov_b32 s{sW+2}, 0x4000')
    a(f's_mov_b32 s{sW+3}, 0x20000')
    a(f's_and_b32 s{sBK}, s{sWV}, 3')
    a(f's_lshl_b32 s{sBK}, s{sBK}, 1')
    a(f's_cmp_lt_u32 s{sWV}, 4')
    a(f's_addc_u32 s{sBK}, s{sBK}, 0')
    a(f's_cmp_eq_u32 s{sC}, 0')
    a(f's_cselect_b32 s{sT3}, 0x40000000, 0')
    a(f's_lshl_b32 s{sT0}, s{sBK}, 13')
    a(f's_add_u32 s{sT0}, s{sT0}, s{sQ0B}')
    a(f'v_lshlrev_b32 {vr(vDQ)}, 4, {vr(vKGp)}')
    a(f'v_lshl_add_u32 {vr(vDQ)}, {vr(vI)}, 8, {vr(vDQ)}')
    a(f'v_add_u32 {vr(vDQ)}, s{sT0}, {vr(vDQ)}')
    a(f'v_lshlrev_b32 {vr(t3)}, 4, {vr(vLANE)}')
    a(f's_sub_u32 s{sT0}, s{sT3}, 0x2000')
    a(f'v_add_u32 {vr(t1)}, s{sT0}, {vr(vDQ)}')
    a(f'v_add_u32 {vr(t2)}, 0x1000, {vr(t1)}')
    a(f's_lshl_b32 s41, s{sH}, 14')
    a(f's_lshl_b32 s42, s{sC}, 11')
    a(f's_mov_b32 s{sN}, 0')
    a(f's_cmp_ge_u32 s{sWV}, 4')
    a('s_cbranch_scc1 L_helper')
    a('s_waitcnt lgkmcnt(0)')
    stamp()
    a(f's_add_u32 s{sK}, s6, s{sHO}')
    a(f's_addc_u32 s{sK+1}, s7, 0')
    for i in range(18):
        if i:
            a('s_add_u32 m0, m0, 0x1000')
            a(f'v_add_u32 {vr(vDK)}, 0x1000, {vr(vDK)}')
        a(f'buffer_load_dwordx4 {vr(vDK)}, {sr(sK,4)}, 0 offen {ldpol} lds')
    def srds():
        a(f's_add_u32 s{sV}, s8, s{sHO}')
        a(f's_addc_u32 s{sV+1}, s9, 0')
        a(f's_add_u32 s{sQ}, s4, s{sHO}')
        a(f's_addc_u32 s{sQ+1}, s5, 0')
        a(f's_add_u32 s{sW}, s18, s41')
        a(f's_addc_u32 s{sW+1}, s19, 0')
    srds()
    a('s_branch L_v1')
    a.label('L_helper')
    a('s_setprio 3')
    a(f's_mov_b32 m0, {SOFF}')
    a('s_waitcnt lgkmcnt(0)')
    if stamps:
        nst[0] -= 1
        stamp()
    a(f's_add_u32 s{sK}, s6, s{sHO}')
    a(f's_addc_u32 s{sK+1}, s7, 0')
    srds()
    a(f's_or_b32 s{sN}, s60, 1')
    only(FW, 'L_noclear')
    a(f's_lshl_b32 s{sT0}, s{sH}, 3')
    a(f'v_mov_b32 {vr(S+4)}, s{sT0}')
    a(f'v_mov_b32 {vr(S+5)}, s{sN}')
    a(f'v_mov_b32 {vr(S+6)}, {LCNT}')
    a(f'v_mov_b32 {vr(S+7)}, 0')
    a('s_mov_b64 exec, 1')
    a(f's_cmp_lg_u32 s{sC}, {CC}')
    a('s_cbranch_scc1 L_nopub')
    a(f'global_store_dword {vr(S+4)}, {vr(S+5)}, s[16:17] sc0 sc1')
    a.label('L_nopub')
    a(f'ds_write_b32 {vr(S+6)}, {vr(S+7)}')
    a('s_mov_b64 exec, -1')
    if opt.get('wstouch'):
        pol = {'ld': '', 'ldsc': 'sc0 sc1'}.get(opt['wstouch'])
        if pol is not None:
            a(f'buffer_load_dwordx4 {vr(S+8,4)}, {vr(t3)}, {sr(sW,4)}, s42 offen {pol}')
            a(f'buffer_load_dwordx4 {vr(S+12,4)}, {vr(t3)}, {sr(sW,4)}, s42 offen offset:1024 {pol}')
        else:
            for n in range(4): a(f'v_mov_b32 {vr(S+8+n)}, 0')
            a(f'buffer_store_dwordx4 {vr(S+8,4)}, {vr(t3)}, {sr(sW,4)}, s42 offen sc0 sc1')
            a(f'buffer_store_dwordx4 {vr(S+8,4)}, {vr(t3)}, {sr(sW,4)}, s42 offen offset:1024 sc0 sc1')
    a.label('L_noclear')
    only(SW, 'L_nosmall')
    for n, srd in enumerate((sK, sQ, sV)):
        if n:
            a(f's_mov_b32 m0, {SOFF + 1024*n}')
            a('s_nop 0')
        a(f'buffer_load_dwordx4 {vr(t3)}, {sr(srd,4)}, 0 offen lds')
    a.label('L_nosmall')
    only(HW, 'L_nohalo')
    for T in range(2):
        for ks in range(4):
            a(f'buffer_load_dwordx4 {vr(kf(T,ks),4)}, {vr(t1+T)}, {sr(sK,4)}, 0 offen offset:{64*ks}')
    a.label('L_nohalo')
    a('s_setprio 0')
    a('s_branch L_nov1')
    a.label('L_v1')
    def vpiece(i):
        if i:
            a('s_add_u32 m0, m0, 0x1000')
            a(f'v_add_u32 {vr(vDV)}, 0x1000, {vr(vDV)}')
        if i < 2:
            a(f'v_add_u32 {vr(t1)}, s{sT3}, {vr(vDV)}')
            a(f'buffer_load_dwordx4 {vr(t1)}, {sr(sV,4)}, 0 offen {ldpol} lds')
        else:
            a(f'buffer_load_dwordx4 {vr(vDV)}, {sr(sV,4)}, 0 offen {ldpol} lds')
    a(f's_and_b32 s{sT0}, s{sWV}, 1')
    a(f's_lshl_b32 s{sT0}, s{sT0}, 2')
    a(f'v_add_lshl_u32 {vr(vDV)}, s{sT0}, {vr(vKGp)}, 1')
    a(f'v_xor_b32 {vr(vDV)}, {vr(vDV)}, {vr(vI)}')
    a(f'v_lshlrev_b32 {vr(vDV)}, 4, {vr(vDV)}')
    a(f'v_lshl_add_u32 {vr(vDV)}, {vr(vKGp)}, 8, {vr(vDV)}')
    a(f's_sub_u32 s{sT2}, s{sT2}, 0x2000')
    a(f'v_add_u32 {vr(vDV)}, s{sT2}, {vr(vDV)}')
    a(f's_add_u32 m0, s{sT1}, {VOFF}')
    for i in range(N1): vpiece(i)
    a.label('L_nov1')
    stamp()

    a(f's_add_u32 s{sO}, s14, s{sHO}')
    a(f's_addc_u32 s{sO+1}, s15, 0')
    a(f's_mov_b32 s{sO+2}, 0x80000')
    a(f's_mov_b32 s{sO+3}, 0x20000')
    a(f's_mov_b32 s{sCS}, 0x{CSC:08x}')
    a(f's_mov_b32 s{sCS+1}, 0x{CSC:08x}')
    a(f'v_mov_b32 {vr(vNEG)}, 0x{NEG:08x}')
    a(f'v_lshlrev_b32 {vr(t2)}, 2, {vr(vKGp)}')
    a(f'v_cmp_eq_u32 {sr(sKG0,2)}, 0, {vr(vKGp)}')
    for r in range(4):
        a(f'v_add_u32 {vr(t1)}, {r}, {vr(t2)}')
        a(f'v_cmp_ge_u32 vcc, {vr(t1)}, {vr(vI)}')
        a(f'v_cmp_le_u32 s[60:61], {vr(t1)}, {vr(vI)}')
        a('s_nop 0')
        a(f'v_cndmask_b32 {vr(BLO+r)}, {vr(vNEG)}, 0, vcc')
        a(f'v_cndmask_b32 {vr(BHI+r)}, {vr(vNEG)}, 0, s[60:61]')
    a(f's_lshl_b32 s{sT0}, s{sBK}, 13')
    a(f'v_xor_b32 {vr(t1)}, {vr(vKGp)}, {vr(vI)}')
    a(f'v_lshlrev_b32 {vr(t1)}, 4, {vr(t1)}')
    a(f'v_lshl_add_u32 {vr(t1)}, {vr(vI)}, 8, {vr(t1)}')
    a(f'v_add_u32 {vr(vAK)}, s{sT0}, {vr(t1)}')
    for ks in range(1, 4):
        a(f'v_xor_b32 {vr(vAK+ks)}, {64*ks}, {vr(vAK)}')
    a(f'v_and_b32 {vr(t1)}, 1, {vr(vI)}')
    a(f'v_lshlrev_b32 {vr(vNEG)}, 3, {vr(t1)}')
    a(f'v_lshlrev_b32 {vr(t1)}, 8, {vr(t1)}')
    a(f'v_lshl_add_u32 {vr(t1)}, {vr(vKGp)}, 4, {vr(t1)}')
    a(f'v_add_u32 {vr(vAG)}, {SOFF}, {vr(t1)}')
    a(f'v_bfe_u32 {vr(t1)}, {vr(vLANE)}, 2, 2')
    a(f'v_and_b32 {vr(t2)}, 3, {vr(vLANE)}')
    a(f'v_lshlrev_b32 {vr(t2)}, 3, {vr(t2)}')
    a(f'v_lshl_add_u32 {vr(t1)}, {vr(t1)}, 8, {vr(t2)}')
    a(f'v_add_u32 {vr(vAVG)}, {SOFF+2048}, {vr(t1)}')
    a(f'v_lshrrev_b32 {vr(t1)}, 2, {vr(vLANE)}')
    a(f'v_and_b32 {vr(vT0)}, 7, {vr(t1)}')
    a(f'v_lshl_add_u32 {vr(t2)}, {vr(vT0)}, 5, {vr(t2)}')
    a(f'v_lshl_add_u32 {vr(t2)}, {vr(t1)}, 8, {vr(t2)}')
    a(f's_add_u32 s{sT1}, s{sT0}, {VOFF}')
    a(f'v_add_u32 {vr(VA)}, s{sT1}, {vr(t2)}')
    for t in range(1, 8):
        a(f'v_xor_b32 {vr(VA+t)}, {32*t}, {vr(VA)}')
    a(f's_mul_i32 s{sT1}, s{sWV}, {16*STGP}')
    a(f's_add_u32 s{sT1}, s{sT1}, {STG}')
    a(f'v_mul_u32_u24 {vr(t1)}, {STGP}, {vr(vI)}')
    a(f'v_lshl_add_u32 {vr(t1)}, {vr(vKGp)}, 3, {vr(t1)}')
    a(f'v_add_u32 {vr(vSW)}, s{sT1}, {vr(t1)}')
    a(f'v_mul_u32_u24 {vr(t1)}, {STGP}, {vr(vKGp)}')
    a(f'v_lshl_add_u32 {vr(t1)}, {vr(vI)}, 4, {vr(t1)}')
    a(f'v_add_u32 {vr(vSR)}, s{sT1}, {vr(t1)}')
    a(f's_add_u32 s{sT0}, s{sT0}, s{sQ0B}')
    a(f'v_add_u32 {vr(vOO)}, s{sT0}, {vr(t3)}')
    a(f's_lshr_b32 s{sQB}, s{sT0}, 8')
    a(f's_cmp_eq_u32 s{sQB}, 0')
    a(f's_cselect_b32 s{sEX}, 0, -1')
    a(f's_mov_b32 s{sEX+1}, -1')
    a(f's_cmp_eq_u32 s{sQB}, {256*CC+32*(2*CW+1)}')
    a(f's_cselect_b32 s{sCMB}, 1, 0')
    a(f's_lshl_b32 s{sT0}, s{sWV}, 4')
    a(f's_add_u32 s{sT0}, s{sT0}, {PARTML}')
    a(f'v_add_u32 {vr(vNEG)}, s{sT0}, {vr(vNEG)}')

    a(f's_waitcnt vmcnt({N1}) lgkmcnt(0)')
    a(f's_cmp_lt_u32 s{sWV}, 4')
    a('s_cbranch_scc1 L_kw')
    a(f's_cmp_eq_u32 s{sWV}, {FW}')
    a('s_cbranch_scc1 L_kw')
    a('s_waitcnt vmcnt(0)')
    a.label('L_kw')
    stamp(opt.get('prek', False))
    a('s_barrier')
    stamp()
    a(f's_cmp_ge_u32 s{sWV}, 4')
    a('s_cbranch_scc1 L_nov2')
    for i in range(N1, 20): vpiece(i)
    a.label('L_nov2')
    stamp(fine)
    QG = O
    for W in (2, 3, 4, 5):
        for ks in range(4):
            a(f'ds_read_b128 {vr(kf(W,ks),4)}, {vr(vAK+ks)} offset:{4096*(W-2)}')
    for ks in range(4):
        a(f'ds_read_b128 {vr(KG+4*ks,4)}, {vr(vAG)} offset:{64*ks}')
    for t in range(8):
        a(f'ds_read_b64_tr_b16 {vr(VG+4*t+2,2)}, {vr(vAVG)} offset:{32*t}')
    a(f's_cmp_eq_u32 s{sWV}, {HW}')
    a('s_cbranch_scc1 L_k01done')
    for ks in range(4):
        a(f'v_subrev_u32 {vr(vAK+ks)}, 0x2000, {vr(vAK+ks)}')
    for W in (0, 1):
        for ks in range(4):
            a(f'ds_read_b128 {vr(kf(W,ks),4)}, {vr(vAK+ks)} offset:{4096*W}')
    a.label('L_k01done')
    def issue_qa():
        if opt.get('qprio'): a('s_setprio 3')
        for ks in range(4):
            a(f'buffer_load_dwordx4 {vr(QA+4*ks,4)}, {vr(vDQ)}, {sr(sQ,4)}, 0 offen offset:{64*ks} {qpol}')
        if opt.get('qprio'): a('s_setprio 0')

    def xred(m, t, op='v_max_f32'):
        a(f'v_mov_b32 {vr(t)}, {vr(m)}')
        a.nop(2)
        a(f'v_permlane16_swap_b32 {vr(m)}, {vr(t)}')
        a(f'{op} {vr(m)}, {vr(m)}, {vr(t)}')
        a(f'v_mov_b32 {vr(t)}, {vr(m)}')
        a.nop(2)
        a(f'v_permlane32_swap_b32 {vr(m)}, {vr(t)}')
        a(f'{op} {vr(m)}, {vr(m)}, {vr(t)}')
    def maxtree_l(vals, m, first=True):
        out = []; rest = list(vals)
        if first:
            out.append(f'v_max3_f32 {vr(m)}, {vr(rest[0])}, {vr(rest[1])}, {vr(rest[2])}'); rest = rest[3:]
        while len(rest) >= 2:
            out.append(f'v_max3_f32 {vr(m)}, {vr(m)}, {vr(rest[0])}, {vr(rest[1])}'); rest = rest[2:]
        if rest:
            out.append(f'v_max_f32 {vr(m)}, {vr(m)}, {vr(rest[0])}')
        return out
    def fma_l(vals, mc):
        if pk:
            return [f'v_pk_fma_f32 {vr(vals[n],2)}, {vr(vals[n],2)}, {sr(sCS,2)}, {vr(mc,2)} op_sel_hi:[1,1,0] neg_lo:[0,0,1] neg_hi:[0,0,1]' for n in range(0, len(vals), 2)]
        return [f'v_fma_f32 {vr(v)}, {vr(v)}, s{sCS}, -{vr(mc)}' for v in vals]
    exp_l = lambda vals: [f'v_exp_f32 {vr(v)}, {vr(v)}' for v in vals]
    cvt_l = lambda dst, src, n: [f'v_cvt_pk_bf16_f32 {vr(dst+k)}, {vr(src+2*k)}, {vr(src+2*k+1)}' for k in range(n)]

    def vread(dst, t, W):
        return f'ds_read_b64_tr_b16 {vr(dst,2)}, {vr(VA+t)} offset:{4096*W}'
    a(f's_cmp_lt_u32 s{sWV}, 4')
    a('s_cbranch_scc1 L_gk')
    only(FW, 'L_notag')
    a('s_setprio 3')
    a(f's_lshl_b32 s{sT0}, s{sH}, 3')
    a(f'v_mov_b32 {vr(S+4)}, s{sT0}')
    a(f'v_mov_b32 {vr(S+5)}, s{sN}')
    a(f'v_mov_b32 {vr(S+6)}, {LCNT}')
    a(f'global_load_dword {vr(S+7)}, {vr(S+4)}, s[16:17]')
    a('s_setprio 0')
    issue_qa()
    a('s_waitcnt vmcnt(4)')
    a(f's_cmp_eq_u32 s{sC}, {CC}')
    a('s_cselect_b64 vcc, -1, 0')
    a(f'v_cndmask_b32 {vr(S+7)}, {vr(S+7)}, {vr(S+5)}, vcc')
    a('s_mov_b64 exec, 1')
    a(f'ds_write_b32 {vr(S+6)}, {vr(S+7)} offset:4')
    a('s_mov_b64 exec, -1')
    a('s_branch L_tagdone')
    a.label('L_notag')
    issue_qa()
    a.label('L_tagdone')
    a('s_waitcnt lgkmcnt(0)')
    a(f'v_add_u32 {vr(vDQk)}, 0x1000, {vr(vDQ)}')
    stamp(fine)
    a('s_barrier')
    for t in range(8):
        a(vread(X[t+1], t, 0)); a(vread(X[t+1]+2, t, 1))
    a('s_branch L_gdone')
    a.label('L_gk')
    for ks in range(4):
        a(f'ds_read_b128 {vr(QG+4*ks,4)}, {vr(vAG)} offset:{1024+64*ks}')
    issue_qa()
    a('s_waitcnt lgkmcnt(0)')
    for T in range(4):
        for ks in range(4):
            a(mfma(S+4*T, kf(T,ks), QG+4*ks, '0' if ks == 0 else S+4*T))
    a(f'v_add_u32 {vr(vDQk)}, 0x1000, {vr(vDQ)}')
    a.nop(7)
    for l in maxtree_l([S+x for x in range(16)], vM): a(l)
    xred(vM, vT)
    a(f'v_mul_f32 {vr(vM)}, s{sCS}, {vr(vM)}')
    for l in fma_l([S+x for x in range(16)], vM): a(l)
    for l in exp_l([S+x for x in range(16)]): a(l)
    a.nop(1)
    a(f'v_add_f32 {vr(vT)}, {vr(S)}, {vr(S+1)}')
    for x in range(2, 16):
        a(f'v_add_f32 {vr(vT)}, {vr(vT)}, {vr(S+x)}')
    for l in cvt_l(S, S, 8): a(l)
    xred(vT, vT0, 'v_add_f32')
    a(f'ds_write_b64 {vr(vNEG)}, {vr(vM,2)}')
    a(f'v_mbcnt_lo_u32_b32 {vr(vT0)}, -1, 0')
    a(f's_lshl_b32 s{sT0}, s{sWV}, 10')
    a(f'v_lshl_add_u32 {vr(vT0)}, {vr(vT0)}, 3, s{sT0}')
    if stamps and fine:
        nst[0] -= 1
        stamp()
    a('s_waitcnt vmcnt(4) lgkmcnt(0)')
    a('s_barrier')
    gb = [QB + 4*n for n in range(4)] + [S + 8 + 4*n for n in range(4)]
    for t in range(8):
        a(vread(gb[t], t, 2)); a(vread(gb[t]+2, t, 3))
    for t in range(8):
        a('s_waitcnt lgkmcnt(14)')
        a(mfma(gb[t], S+4, gb[t], '0'))
        a(vread(X[t+1], t, 0)); a(vread(X[t+1]+2, t, 1))
    for t in range(8):
        a(f's_waitcnt lgkmcnt({14-2*t})')
        a(mfma(gb[t], S, X[t+1], gb[t]))
    a('s_mov_b64 exec, 1')
    a(f'v_mov_b32 {vr(S)}, {LCNT}')
    a(f'v_mov_b32 {vr(S+1)}, 1')
    a('s_mov_b64 exec, 0xffff')
    for t in range(8):
        a(f'ds_write_b64 {vr(vT0)}, {vr(gb[t],2)} offset:{PART+128*t}')
    a('s_mov_b64 exec, 1')
    a(f'ds_add_u32 {vr(S)}, {vr(S+1)}')
    a('s_mov_b64 exec, -1')
    a.label('L_gdone')
    stamp()

    emit = lambda ls: [a(l) for l in ls]
    def combine(og, mg, tm):
        NP = len(og)
        emit(maxtree_l([mg[n] for n in range(NP)], tm))
        for n in range(NP):
            a(f'v_sub_f32 {vr(mg[n])}, {vr(mg[n])}, {vr(tm)}')
        for n in range(NP):
            a(f'v_exp_f32 {vr(mg[n])}, {vr(mg[n])}')
        a.nop(1)
        for e in range(4):
            a(f'v_mul_f32 {vr(og[0][e])}, {vr(og[0][e])}, {vr(mg[0])}')
        a(f'v_mul_f32 {vr(mg[0]+1)}, {vr(mg[0]+1)}, {vr(mg[0])}')
        for n in range(1, NP):
            for e in range(4):
                a(f'v_fmac_f32 {vr(og[0][e])}, {vr(og[n][e])}, {vr(mg[n])}')
            a(f'v_fmac_f32 {vr(mg[0]+1)}, {vr(mg[n]+1)}, {vr(mg[n])}')

    def issue_qb():
        for ks in range(4):
            a(f'buffer_load_dwordx4 {vr(QB+4*ks,4)}, {vr(vDQk)}, {sr(sQ,4)}, 0 offen offset:{64*ks} {qpol}')
        a(f'v_mov_b32 {vr(vDQk)}, 0')
    issue_qb()
    a(f's_cmp_eq_u32 s{sWV}, {RW}')
    a('s_cbranch_scc1 L_reduce')
    a(f's_cmp_eq_u32 s{sCMB}, 0')
    a('s_cbranch_scc1 L_noflag')
    a(f'v_mov_b32 {vr(vT0)}, {LNON}')
    a(f'ds_read_b32 {vr(vT0)}, {vr(vT0)}')
    a('s_waitcnt lgkmcnt(0)')
    a(f'v_readfirstlane_b32 s{sN}, {vr(vT0)}')
    a.label('L_noflag')
    a('s_waitcnt vmcnt(4)')
    a('s_branch L_tileA')
    a.label('L_reduce')
    R0 = S
    a(f'v_mbcnt_lo_u32_b32 {vr(R0)}, -1, 0')
    a(f'v_mbcnt_hi_u32_b32 {vr(R0)}, -1, {vr(R0)}')
    a(f'v_lshrrev_b32 {vr(R0+1)}, 5, {vr(R0)}')
    a(f'v_and_b32 {vr(R0+3)}, 31, {vr(R0)}')
    a(f'v_lshlrev_b32 {vr(R0+3)}, 5, {vr(R0+3)}')
    a(f'v_lshl_add_u32 {vr(R0+3)}, {vr(R0+1)}, 2, {vr(R0+3)}')
    a(f'v_lshlrev_b32 {vr(R0+1)}, 3, {vr(R0+1)}')
    a(f'v_add_u32 {vr(R0+1)}, {PARTML}, {vr(R0+1)}')
    a(f'v_lshlrev_b32 {vr(R0)}, 4, {vr(R0)}')
    a(f'v_mov_b32 {vr(R0+2)}, {LCNT}')
    a(f's_mov_b32 s{sCNT}, 0')
    a.label('L_lspin')
    a(f'ds_read_b64 {vr(S+4,2)}, {vr(R0+2)}')
    a(f's_add_u32 s{sCNT}, s{sCNT}, 1')
    a('s_waitcnt lgkmcnt(0)')
    a(f'v_readfirstlane_b32 s{sT0}, {vr(S+4)}')
    a(f'v_readfirstlane_b32 s{sN}, {vr(S+5)}')
    a(f's_cmp_ge_u32 s{sCNT}, 0x100000')
    a('s_cbranch_scc1 L_lok')
    a(f's_cmp_lt_u32 s{sT0}, 4')
    a('s_cbranch_scc1 L_lspin')
    a.label('L_lok')
    mg = [S+4, S+6, O, O+2]
    G0 = S + 8
    og = [[G0+4*n+e for e in range(4)] for n in range(4)]
    for n in range(4):
        a(f'ds_read_b64 {vr(mg[n],2)}, {vr(R0+1)} offset:{16*n}')
    for n in range(4):
        if n: a(f'v_add_u32 {vr(R0+3)}, 1024, {vr(R0+3)}')
        a(f'ds_read2_b32 {vr(G0+4*n,2)}, {vr(R0+3)} offset0:0 offset1:2')
        a(f'ds_read2_b32 {vr(G0+4*n+2,2)}, {vr(R0+3)} offset0:4 offset1:6')
    a('s_waitcnt lgkmcnt(0)')
    combine(og, mg, R0+1)
    a(f'v_mov_b32 {vr(G0+4)}, {vr(G0+3)}')
    a(f'v_mov_b32 {vr(G0+5)}, {vr(R0+1)}')
    a(f'v_mov_b32 {vr(G0+6)}, {vr(mg[0]+1)}')
    a(f'v_mov_b32 {vr(G0+7)}, s{sN}')
    a(f'v_mov_b32 {vr(G0+3)}, s{sN}')
    a(f'buffer_store_dwordx4 {vr(G0+4,4)}, {vr(R0)}, {sr(sW,4)}, s42 offen offset:1024 sc0 sc1')
    a(f'buffer_store_dwordx4 {vr(G0,4)}, {vr(R0)}, {sr(sW,4)}, s42 offen sc0 sc1')
    a(f's_cmp_lg_u32 s{sN}, 0')
    a('s_cbranch_scc1 L_tagged')
    a('s_waitcnt vmcnt(0)')
    a(f's_lshl_b32 s{sT0}, s{sH}, 3')
    a(f's_lshl_b32 s{sT1}, 1, s{sC}')
    a(f'v_mov_b32 {vr(R0)}, s{sT0}')
    a(f'v_mov_b32 {vr(R0+1)}, s{sT1}')
    a('s_mov_b64 exec, 1')
    a(f'global_atomic_or {vr(R0)}, {vr(R0+1)}, s[16:17] offset:4 sc1')
    a('s_mov_b64 exec, -1')
    a.label('L_tagged')
    a('s_waitcnt vmcnt(6)')
    a.label('L_tileA')
    stamp()

    def inter(ms, vs, per=2):
        vs = list(vs)
        for m in ms:
            a(m)
            for _ in range(per):
                if vs: a(vs.pop(0))
        for v in vs: a(v)

    HB = kf(2, 0)
    def hand_loads():
        a(f'v_mbcnt_lo_u32_b32 {vr(KG)}, -1, 0')
        a(f'v_mbcnt_hi_u32_b32 {vr(KG)}, -1, {vr(KG)}')
        a(f'v_lshlrev_b32 {vr(KG)}, 4, {vr(KG)}')
        for n in range(8):
            a(f's_movk_i32 s{sT0}, {2048*n}')
            a(f'buffer_load_dwordx4 {vr(HB+8*n,4)}, {vr(KG)}, {sr(sW,4)}, s{sT0} offen sc0 sc1')
            a(f'buffer_load_dwordx4 {vr(HB+8*n+4,4)}, {vr(KG)}, {sr(sW,4)}, s{sT0} offen offset:1024 sc0 sc1')

    buf = [kf(0, n) for n in range(4)] + [QA + 4*n for n in range(4)]
    SLOTW = {0: [0, 1, 2, 3, 4], 1: [4, 5, 2, 3, 1]}
    def qk(tau, sl):
        Q = QA if tau == 0 else QB
        if sl == 'G':
            return [mfma(S+20, KG+4*ks, Q+4*ks, '0' if ks == 0 else S+20) for ks in range(4)]
        W = SLOTW[tau][sl]
        c0 = BLO if W == tau else BHI if W == tau + 4 else '0'
        return [mfma(S+4*sl, kf(W,ks), Q+4*ks, c0 if ks == 0 else S+4*sl) for ks in range(4)]
    def edge_test(tau, lab):
        a(f's_sub_u32 s{sT0}, s{sQB}, {48 - 16*tau}')
        a(f's_cmp_lt_u32 s{sT0}, 1968')
        a(f's_cbranch_scc1 {lab}')
    def edge_mask(tau, tr):
        a(f'v_mbcnt_lo_u32_b32 {vr(tr)}, -1, 0')
        a(f'v_mbcnt_hi_u32_b32 {vr(tr)}, -1, {vr(tr)}')
        a(f'v_lshrrev_b32 {vr(tr)}, 4, {vr(tr)}')
        a(f's_sub_u32 s{sT0}, s{sQB}, 34')
        a(f's_movk_i32 s{sT1}, 2046')
        a(f'v_lshl_add_u32 {vr(tr)}, {vr(tr)}, 2, s{sT0}')
        a(f'v_mov_b32 {vr(vM)}, 0x{NEG:08x}')
        a('s_nop 3')
        for sl in range(5):
            for r in range(4):
                a(f'v_add_u32 {vr(vT)}, {16*SLOTW[tau][sl]+r}, {vr(tr)}')
                a(f'v_cmp_gt_u32 vcc, s{sT1}, {vr(vT)}')
                a('s_nop 1')
                a(f'v_cndmask_b32 {vr(S+4*sl+r)}, {vr(vM)}, {vr(S+4*sl+r)}, vcc')
        for l in maxtree_l([S+x for x in range(22)], vM): a(l)
    def epi(t):
        l = [f'v_mul_f32 {vr(O+4*t+e)}, {vr(O+4*t+e)}, {vr(vT0)}' for e in range(4)]
        l += [f'v_cvt_pk_bf16_f32 {vr(O+4*t)}, {vr(O+4*t)}, {vr(O+4*t+1)}',
              f'v_cvt_pk_bf16_f32 {vr(O+4*t+1)}, {vr(O+4*t+2)}, {vr(O+4*t+3)}',
              f'ds_write_b64 {vr(vSW)}, {vr(O+4*t,2)} offset:{32*t}']
        return l
    def stage_reads():
        return [f'ds_read_b128 {vr(O+4*j,4)}, {vr(vSR)} offset:{4*STGP*j}' for j in range(4)]
    def stores(tau):
        for j in range(4):
            a(f's_waitcnt lgkmcnt({3-j})')
            if tau == 0 and j == 0: a(f's_mov_b64 exec, {sr(sEX,2)}')
            a(f'buffer_store_dwordx4 {vr(O+4*j,4)}, {vr(vOO)}, {sr(sO,4)}, 0 offen offset:{1024*j} {stpol}')
            if tau == 0 and j == 0: a('s_mov_b64 exec, -1')
    def softmax_pv(tau):
        m = vM
        xred(m, vT)
        a(f'v_mul_f32 {vr(m)}, s{sCS}, {vr(m)}')
        set0 = [S+x for x in range(8)]; set1 = [S+8+x for x in range(8)]; set2 = [S+16+x for x in range(6)]
        for l in fma_l(set0, m): a(l)
        f2 = fma_l(set2, m); f1 = fma_l(set1, m)
        for l in exp_l(set0): a(l)
        a(f2[0])
        for l in cvt_l(S, S, 4): a(l)
        a(f2[1])
        a('s_waitcnt lgkmcnt(0)' if tau == 1 else 's_waitcnt lgkmcnt(8)')
        ONES, LACC = S+4, S+20
        v2 = f2[2:] + exp_l(set2) + [f'v_mov_b32 {vr(ONES+n)}, 0x3f803f80' for n in range(4)] + cvt_l(S+16, S+16, 3) \
             + [f'v_mov_b32 {vr(S+19)}, 0', f'v_cndmask_b32 {vr(S+18)}, 0, {vr(S+18)}, {sr(sKG0,2)}']
        inter([mfma(X[t], X[t+1], S, '0') for t in range(8)], v2 + f1[:2])
        v1 = f1[2:] + exp_l(set1) + [f'v_mov_b32 {vr(vT0)}, 0'] + cvt_l(S+8, S+8, 4)
        inter([mfma(O+4*t, VG+4*t, S+16, O+4*t) for t in range(8)], v1)
        a(mfma(LACC, ONES, S, '0'))
        a(mfma(LACC, ONES, S+16, LACC))
        a(mfma(LACC, ONES, S+8, LACC))
        if tau == 0:
            a('s_waitcnt lgkmcnt(0)')
        for t in range(8):
            a(mfma(O+4*t, buf[t], S+8, O+4*t))
            if tau == 0: a(vread(VG+4*t, t, 1))
        a(f'v_rcp_f32 {vr(vT0)}, {vr(LACC)}')

    late = []
    for t in range(8):
        late += [vread(buf[t], t, 2), vread(buf[t]+2, t, 3)]
    vgr = [vread(VG+4*t, t, 4) for t in range(8)]
    edge_test(0, 'L_fastA')
    for l in vgr: a(l)
    for sl in ('G', 0, 1, 2, 3, 4):
        for l in qk(0, sl): a(l)
    for l in late: a(l)
    edge_mask(0, vT0)
    a('s_branch L_joinA')
    a.label('L_fastA')
    m = vM
    inter(qk(0, 0) + qk(0, 'G'), vgr, per=1)
    inter(qk(0, 1) + qk(0, 2), late[:8], per=1)
    inter(qk(0, 3), maxtree_l([S+20, S+21, S+0], m) + maxtree_l([S+1, S+2, S+3, S+4, S+5, S+6], m, False), per=1)
    inter(qk(0, 4), maxtree_l([S+7, S+8, S+9, S+10], m, False), per=1)
    for l in late[8:11]: a(l)
    for l in maxtree_l([S+11, S+12], m, False): a(l)
    for l in late[11:13]: a(l)
    for l in maxtree_l([S+13, S+14, S+15], m, False): a(l)
    for l in late[13:]: a(l)
    for l in maxtree_l([S+16, S+17, S+18, S+19], m, False): a(l)
    a.label('L_joinA')
    stamp(fine)
    softmax_pv(0)
    stamp(fine)
    ep = []
    for t in range(8): ep += epi(t)
    ep += stage_reads()
    xb = []
    for t in range(8): xb += [vread(X[t+1], t, 4), vread(X[t+1]+2, t, 5)]
    def qb_wait(n):
        a(f's_waitcnt vmcnt({n+2})')
        a(f's_cmp_eq_u32 s{sWV}, {RW}')
        a('s_cbranch_scc1 L_qbw')
        a(f's_waitcnt vmcnt({n})')
        a.label('L_qbw')
    if not merge:
        a('s_nop 0')
        for l in ep: a(l)
        stores(0)
        for l in xb: a(l)
        qb_wait(4)
        stamp()
        edge_test(1, 'L_fastB')
        for sl in ('G', 0, 1, 2, 3, 4):
            for l in qk(1, sl): a(l)
        edge_mask(1, vT0)
        a('s_branch L_joinB')
        a.label('L_fastB')
        for sl in ('G', 0, 1, 2):
            for l in qk(1, sl): a(l)
        inter(qk(1, 3), maxtree_l([S+20, S+21, S+0], m) + maxtree_l([S+1, S+2], m, False), per=1)
        inter(qk(1, 4), maxtree_l([S+3, S+4, S+5, S+6, S+7, S+8], m, False), per=1)
        a.nop(1)
        for l in maxtree_l([S+9, S+10, S+11, S+12], m, False): a(l)
        a.nop(1)
        for l in maxtree_l([S+13, S+14, S+15], m, False): a(l)
        a.nop(2)
        for l in maxtree_l([S+16, S+17, S+18, S+19], m, False): a(l)
    else:
        qb_wait(0)
        stamp()
        edge_test(1, 'L_fastB')
        for l in ep: a(l)
        stores(0)
        for sl in (0, 1, 2, 3, 4, 'G'):
            for l in qk(1, sl): a(l)
        for l in xb: a(l)
        edge_mask(1, vT0)
        a('s_branch L_joinB')
        a.label('L_fastB')
        ms = []
        for sl in (0, 1, 2, 3, 4, 'G'): ms += qk(1, sl)
        inter(ms, ep, per=3)
        for l in maxtree_l([S+x for x in range(15)], vT0): a(l)
        stores(0)
        for l in xb: a(l)
        a(f'v_max3_f32 {vr(vM)}, {vr(vT0)}, {vr(S+15)}, {vr(S+16)}')
        for l in maxtree_l([S+17, S+18, S+19, S+20, S+21], vM, False): a(l)
    a.label('L_joinB')
    a(f'v_add_u32 {vr(vOO)}, 0x1000, {vr(vOO)}')
    stamp()
    a(f's_cmp_eq_u32 s{sCMB}, 0')
    a('s_cbranch_scc1 L_nohand')
    hand_loads()
    a.label('L_nohand')
    softmax_pv(1)
    stamp(fine)
    a('s_nop 0')
    for t in range(8):
        for l in epi(t): a(l)
    for l in stage_reads(): a(l)
    stores(1)
    stamp()

    a(f's_cmp_eq_u32 s{sCMB}, 0')
    a('s_cbranch_scc1 L_fin')
    a('s_waitcnt vmcnt(4)')
    a(f's_mov_b32 s{sCNT}, 0')
    a(f's_mov_b32 s{sT2}, 0')
    a.label('L_chk')
    a(f's_mov_b32 s{sT3}, s{sT2}')
    for n in range(8):
        a(f'v_cmp_eq_u32 vcc, s{sN}, {vr(HB+8*n+3)}')
        a(f'v_cmp_eq_u32 s[60:61], s{sN}, {vr(HB+8*n+7)}')
        a('s_nop 0')
        a('s_and_b64 vcc, vcc, s[60:61]')
        a('s_cmp_eq_u64 vcc, exec')
        a(f's_cselect_b32 s{sT0}, {1 << n}, 0')
        a(f's_or_b32 s{sT3}, s{sT3}, s{sT0}')
    a(f's_add_u32 s{sCNT}, s{sCNT}, 1')
    a(f's_cmp_eq_u32 s{sT3}, 0xff')
    a('s_cbranch_scc1 L_ready')
    a(f's_cmp_ge_u32 s{sCNT}, 0x40000')
    a('s_cbranch_scc1 L_ready')
    a(f's_lshl_b32 s{sT0}, s{sH}, 3')
    a(f'v_mov_b32 {vr(KG+1)}, s{sT0}')
    a(f'global_load_dword {vr(KG+2)}, {vr(KG+1)}, s[16:17] offset:4 sc0 sc1')
    a('s_waitcnt vmcnt(0)')
    a(f'v_readfirstlane_b32 s{sT2}, {vr(KG+2)}')
    hand_loads()
    a('s_waitcnt vmcnt(0)')
    a('s_branch L_chk')
    a.label('L_ready')
    hog = [[HB+8*n, HB+8*n+1, HB+8*n+2, HB+8*n+4] for n in range(8)]
    hmg = [HB+8*n+5 for n in range(8)]
    combine(hog, hmg, X8)
    a(f'v_rcp_f32 {vr(X8)}, {vr(hmg[0]+1)}')
    a(f'v_lshrrev_b32 {vr(KG)}, 1, {vr(KG)}')
    for e in range(4):
        a(f'v_mul_f32 {vr(hog[0][e])}, {vr(hog[0][e])}, {vr(X8)}')
    a(f'v_cvt_pk_bf16_f32 {vr(X8+2)}, {vr(hog[0][0])}, {vr(hog[0][1])}')
    a(f'v_cvt_pk_bf16_f32 {vr(X8+3)}, {vr(hog[0][2])}, {vr(hog[0][3])}')
    a(f'buffer_store_dwordx2 {vr(X8+2,2)}, {vr(KG)}, {sr(sO,4)}, 0 offen {stpol}')
    a.label('L_fin')
    if stamps:
        stamp()
        a('s_waitcnt vmcnt(0)')
        stamp()
        if opt.get('clk'):
            a('s_memtime s[98:99]')
            a('s_waitcnt lgkmcnt(0)')
            a('s_sub_u32 s98, s98, s96')
            a(f's_add_u32 s{64+2*nst[0]}, s98, s64')
            nst[0] += 1
        a(f's_lshl_b32 s{sT0}, s2, 3')
        a(f's_add_u32 s{sT0}, s{sT0}, s{sWV}')
        a(f's_lshl_b32 s{sT0}, s{sT0}, 6')
        a(f's_add_u32 s{sT0}, s{sT0}, 0x100000')
        a(f's_add_u32 s{sW}, s18, s{sT0}')
        a(f's_addc_u32 s{sW+1}, s19, 0')
        a(f'v_mov_b32 v1, 0')
        a('s_mov_b64 exec, 1')
        for n in range(min(16, nst[0])):
            a(f'v_mov_b32 v2, s{64+2*n}')
            a(f'buffer_store_dword v2, v1, {sr(sW,4)}, 0 offen offset:{4*n}')
        if 'leak' in opt:
            k = int(opt['leak'])
            a(f's_sub_u32 s{sT0}, s{64+2*k}, s64')
            a(f's_lshl_b32 s{sT0}, s{sT0}, 2')
            if opt.get('leakcnt'):
                a(f's_mul_i32 s{sT0}, s{sCNT}, 500')
                a(f's_mul_i32 s{sT0}, s{sT0}, s{sCMB}')
            if 'leakw' in opt:
                a(f's_lshr_b32 s{sT1}, {opt["leakw"]}, s{sWV}')
                a(f's_bitcmp1_b32 s{sT1}, 0')
                a(f's_cselect_b32 s{sT0}, s{sT0}, 0')
            a(f"s_add_u32 s{sT0}, s{sT0}, {opt.get('spin', 5000)}")
            a.label('L_spin')
            a('s_memrealtime s[100:101]')
            a('s_waitcnt lgkmcnt(0)')
            a(f's_sub_u32 s{sT1}, s100, s64')
            a(f's_cmp_lt_u32 s{sT1}, s{sT0}')
            a('s_cbranch_scc1 L_spin')
    a.label('L_end')
    a('s_endpgm')
    if opt.get('cpf', True):
        a('.fill 4096, 4, 0xbf800000')

    check(a.lines)
    if stamps: print('stamps', nst[0])
    head = f'''; windowed + global-token attention, B=1 H=32 S=2048 D=128 bf16 (window 32, 2 global tokens)
; @launch grid=(256,1,1) block=(512,1,1) lds=163840
.amdgcn_target "amdgcn-amd-amdhsa--gfx950"
.text
.globl {NAME}
.p2align 8
.type {NAME},@function
{NAME}:
'''
    tail = f'''.section .rodata,"a"
.p2align 6
.amdhsa_kernel {NAME}
  .amdhsa_next_free_vgpr 256
  .amdhsa_next_free_sgpr {102 if stamps else 64}
  .amdhsa_accum_offset 256
  .amdhsa_group_segment_fixed_size 0
  .amdhsa_kernarg_size 64
  .amdhsa_user_sgpr_count 2
  .amdhsa_user_sgpr_kernarg_segment_ptr 1
  .amdhsa_system_sgpr_workgroup_id_x 1
.end_amdhsa_kernel
'''
    return head + a.text() + tail

if __name__ == '__main__':
    out = sys.argv[1]
    opt = {}
    for kv in sys.argv[2:]:
        k, v = kv.split('=', 1)
        opt[k] = {'True': True, 'False': False}.get(v, v.replace('+', ' '))
    open(out, 'w').write(gen(opt))
```

```python
import sys, math, struct
from asmlib import *

NAME = 'standalone__global_local_windowed_global_tokens__prompt_kernel'
def f2u(x): return struct.unpack('<I', struct.pack('<f', x))[0]

def gen(opt):
    a = Asm()
    NEG = 0xFF000000
    CSC = f2u(128 ** -0.5 * math.log2(math.e))
    KOFF, VOFF, SOFF = 0, 73728, 155648
    PART, STG = 0, 16384
    PARTML, LCNT, LNON = SOFF + 3072, SOFF + 3072 + 128, SOFF + 3072 + 132
    STGP = 272
    ldpol = opt.get('ldpol', '')
    qpol = opt.get('qpol', '')
    stpol = opt.get('stpol', 'sc0 sc1 nt')
    pk = opt.get('pk', True)
    N1 = int(opt.get('n1', 8))
    RW = int(opt.get('rw', 3))
    FW = 7
    SW = 5
    CW, CC = int(opt.get('cw', 1)), 3
    merge = opt.get('merge', True)
    sQ, sK, sV, sO, sW = 20, 24, 28, 32, 36
    sWV, sH, sC, sHO, sQ0B = 40, 43, 44, 45, 46
    sT0, sT1, sT2, sT3 = 47, 48, 49, 50
    sBK = 62
    HW = 4
    sCS = 52; sKG0 = 54; sQB = 51; sEX = 56; sCMB = 58; sCNT = 59; sN = 63
    VA = 0
    vSW, vSR, vOO, vT0 = 8, 9, 10, 11
    X8 = 12
    KF = 16; KG = 112; QA, QB = 128, 144; VG = 160; O = 192; S = 224
    BLO, BHI = 248, 252
    kf = lambda W, ks: KF + 16 * W + 4 * ks
    X = [O + 4 * n for n in range(8)] + [X8]
    vLANE, vI, vKGp, vDK, vDV, vDQ, vAG, vNEG, vAK = O+16, O+17, O+18, O+19, O+20, O+21, O+22, O+23, O+24
    vAVG, t1, t2, t3 = O+28, O+29, O+30, O+31
    vDQk = VG + 7
    vFLAG = VG + 3
    vM, vT = S + 22, S + 23

    stamps = opt.get('stamps', False)
    fine = opt.get('fine', False)
    nst = [0]
    def stamp(on=True):
        if stamps and on:
            a(f's_memrealtime s[{64+2*nst[0]}:{65+2*nst[0]}]')
            if nst[0]: a('s_waitcnt lgkmcnt(0)')
            nst[0] += 1
    M16 = 'v_mfma_f32_16x16x32_bf16'
    def mfma(d, x, y, c):
        return f'{M16} {vr(d,4)}, {vr(x,4)}, {vr(y,4)}, {c if isinstance(c,str) else vr(c,4)}'
    def only(w, lab):
        a(f's_cmp_lg_u32 s{sWV}, {w}')
        a(f's_cbranch_scc1 {lab}')

    stamp()
    if opt.get('clk'): a('s_memtime s[96:97]')
    a('s_load_dwordx16 s[4:19], s[0:1], 0')
    a('s_memrealtime s[60:61]')
    a('s_cmp_ge_u32 s2, 256')
    a('s_cbranch_scc1 L_end')
    a(f'v_lshrrev_b32 v1, 6, v0')
    a(f'v_and_b32 {vr(vLANE)}, 63, v0')
    a(f'v_readfirstlane_b32 s{sWV}, v1')
    a(f'v_and_b32 {vr(vI)}, 15, v0')
    a(f'v_bfe_u32 {vr(vKGp)}, v0, 4, 2')
    if opt.get('cpf', True):
        a(f's_getpc_b64 s[{sEX}:{sEX+1}]')
        a(f'v_lshlrev_b32 v1, 5, v0')
        a(f'global_load_dword {vr(X8)}, v1, s[{sEX}:{sEX+1}]')
    a('s_and_b32 s41, s2, 7')
    a('s_lshr_b32 s42, s2, 3')
    a(f's_lshr_b32 s{sH}, s42, 3')
    a(f's_lshl2_add_u32 s{sH}, s41, s{sH}')
    a(f's_and_b32 s{sC}, s42, 7')
    a(f's_lshl_b32 s{sHO}, s{sH}, 19')
    a(f's_lshl_b32 s{sQ0B}, s{sC}, 16')
    a(f's_lshl_b32 s{sT0}, s{sWV}, 2')
    a(f's_lshl_b32 s{sT1}, s{sWV}, 10')
    a(f's_add_u32 s{sT2}, s{sT1}, s{sQ0B}')
    a(f'v_add_u32 {vr(vDK)}, s{sT0}, {vr(vKGp)}')
    a(f'v_xor_b32 {vr(vDK)}, {vr(vDK)}, {vr(vI)}')
    a(f'v_lshlrev_b32 {vr(vDK)}, 4, {vr(vDK)}')
    a(f'v_lshl_add_u32 {vr(vDK)}, {vr(vKGp)}, 8, {vr(vDK)}')
    a(f'v_add_u32 {vr(vDK)}, s{sT2}, {vr(vDK)}')
    a(f's_mov_b32 m0, s{sT1}')
    for s_ in (sK, sV, sQ):
        a(f's_mov_b32 s{s_+2}, 0x80000')
        a(f's_mov_b32 s{s_+3}, 0x20000')
    a(f's_mov_b32 s{sW+2}, 0x4000')
    a(f's_mov_b32 s{sW+3}, 0x20000')
    a(f's_and_b32 s{sBK}, s{sWV}, 3')
    a(f's_lshl_b32 s{sBK}, s{sBK}, 1')
    a(f's_cmp_lt_u32 s{sWV}, 4')
    a(f's_addc_u32 s{sBK}, s{sBK}, 0')
    a(f's_cmp_eq_u32 s{sC}, 0')
    a(f's_cselect_b32 s{sT3}, 0x40000000, 0')
    a(f's_lshl_b32 s{sT0}, s{sBK}, 13')
    a(f's_add_u32 s{sT0}, s{sT0}, s{sQ0B}')
    a(f'v_lshlrev_b32 {vr(vDQ)}, 4, {vr(vKGp)}')
    a(f'v_lshl_add_u32 {vr(vDQ)}, {vr(vI)}, 8, {vr(vDQ)}')
    a(f'v_add_u32 {vr(vDQ)}, s{sT0}, {vr(vDQ)}')
    a(f'v_lshlrev_b32 {vr(t3)}, 4, {vr(vLANE)}')
    a(f's_sub_u32 s{sT0}, s{sT3}, 0x2000')
    a(f'v_add_u32 {vr(t1)}, s{sT0}, {vr(vDQ)}')
    a(f'v_add_u32 {vr(t2)}, 0x1000, {vr(t1)}')
    a(f's_lshl_b32 s41, s{sH}, 14')
    a(f's_lshl_b32 s42, s{sC}, 11')
    a(f's_mov_b32 s{sN}, 0')
    a(f's_cmp_ge_u32 s{sWV}, 4')
    a('s_cbranch_scc1 L_helper')
    a('s_waitcnt lgkmcnt(0)')
    stamp()
    a(f's_add_u32 s{sK}, s6, s{sHO}')
    a(f's_addc_u32 s{sK+1}, s7, 0')
    if opt.get('loop'):
        a(f's_movk_i32 s{sCNT}, 18')
        a.label('L_kloop')
        a(f'buffer_load_dwordx4 {vr(vDK)}, {sr(sK,4)}, 0 offen {ldpol} lds')
        a('s_add_u32 m0, m0, 0x1000')
        a(f'v_add_u32 {vr(vDK)}, 0x1000, {vr(vDK)}')
        a(f's_sub_u32 s{sCNT}, s{sCNT}, 1')
        a(f's_cmp_lg_u32 s{sCNT}, 0')
        a('s_cbranch_scc1 L_kloop')
    else:
        for i in range(18):
            if i:
                a('s_add_u32 m0, m0, 0x1000')
                a(f'v_add_u32 {vr(vDK)}, 0x1000, {vr(vDK)}')
            a(f'buffer_load_dwordx4 {vr(vDK)}, {sr(sK,4)}, 0 offen {ldpol} lds')
    stamp(opt.get('postk', False))
    def srds():
        a(f's_add_u32 s{sV}, s8, s{sHO}')
        a(f's_addc_u32 s{sV+1}, s9, 0')
        a(f's_add_u32 s{sQ}, s4, s{sHO}')
        a(f's_addc_u32 s{sQ+1}, s5, 0')
        a(f's_add_u32 s{sW}, s18, s41')
        a(f's_addc_u32 s{sW+1}, s19, 0')
    srds()
    a('s_branch L_v1')
    a.label('L_helper')
    a('s_setprio 3')
    a(f's_mov_b32 m0, {SOFF}')
    a('s_waitcnt lgkmcnt(0)')
    if stamps:
        nst[0] -= 1
        stamp()
    a(f's_add_u32 s{sK}, s6, s{sHO}')
    a(f's_addc_u32 s{sK+1}, s7, 0')
    srds()
    if stamps and opt.get('postk'):
        nst[0] -= 1
        stamp()
    a(f's_or_b32 s{sN}, s60, 1')
    only(FW, 'L_noclear')
    a(f's_lshl_b32 s{sT0}, s{sH}, 3')
    a(f'v_mov_b32 {vr(S+4)}, s{sT0}')
    a(f'v_mov_b32 {vr(S+5)}, s{sN}')
    a(f'v_mov_b32 {vr(S+6)}, {LCNT}')
    a(f'v_mov_b32 {vr(S+7)}, 0')
    a('s_mov_b64 exec, 1')
    a(f's_cmp_lg_u32 s{sC}, {CC}')
    a('s_cbranch_scc1 L_nopub')
    a(f'global_store_dword {vr(S+4)}, {vr(S+5)}, s[16:17] sc0 sc1')
    a.label('L_nopub')
    a(f'ds_write_b32 {vr(S+6)}, {vr(S+7)}')
    a('s_mov_b64 exec, -1')
    if opt.get('wstouch'):
        pol = {'ld': '', 'ldsc': 'sc0 sc1'}.get(opt['wstouch'])
        if pol is not None:
            a(f'buffer_load_dwordx4 {vr(S+8,4)}, {vr(t3)}, {sr(sW,4)}, s42 offen {pol}')
            a(f'buffer_load_dwordx4 {vr(S+12,4)}, {vr(t3)}, {sr(sW,4)}, s42 offen offset:1024 {pol}')
        else:
            for n in range(4): a(f'v_mov_b32 {vr(S+8+n)}, 0')
            a(f'buffer_store_dwordx4 {vr(S+8,4)}, {vr(t3)}, {sr(sW,4)}, s42 offen sc0 sc1')
            a(f'buffer_store_dwordx4 {vr(S+8,4)}, {vr(t3)}, {sr(sW,4)}, s42 offen offset:1024 sc0 sc1')
    a.label('L_noclear')
    only(SW, 'L_nosmall')
    for n, srd in enumerate((sK, sQ, sV)):
        if n:
            a(f's_mov_b32 m0, {SOFF + 1024*n}')
            a('s_nop 0')
        a(f'buffer_load_dwordx4 {vr(t3)}, {sr(srd,4)}, 0 offen lds')
    a.label('L_nosmall')
    only(HW, 'L_nohalo')
    for T in range(2):
        for ks in range(4):
            a(f'buffer_load_dwordx4 {vr(kf(T,ks),4)}, {vr(t1+T)}, {sr(sK,4)}, 0 offen offset:{64*ks}')
    a.label('L_nohalo')
    a('s_setprio 0')
    a('s_branch L_nov1')
    a.label('L_v1')
    def vpiece(i):
        if i:
            a('s_add_u32 m0, m0, 0x1000')
            a(f'v_add_u32 {vr(vDV)}, 0x1000, {vr(vDV)}')
        if i < 2:
            a(f'v_add_u32 {vr(t1)}, s{sT3}, {vr(vDV)}')
            a(f'buffer_load_dwordx4 {vr(t1)}, {sr(sV,4)}, 0 offen {ldpol} lds')
        else:
            a(f'buffer_load_dwordx4 {vr(vDV)}, {sr(sV,4)}, 0 offen {ldpol} lds')
    a(f's_and_b32 s{sT0}, s{sWV}, 1')
    a(f's_lshl_b32 s{sT0}, s{sT0}, 2')
    a(f'v_add_lshl_u32 {vr(vDV)}, s{sT0}, {vr(vKGp)}, 1')
    a(f'v_xor_b32 {vr(vDV)}, {vr(vDV)}, {vr(vI)}')
    a(f'v_lshlrev_b32 {vr(vDV)}, 4, {vr(vDV)}')
    a(f'v_lshl_add_u32 {vr(vDV)}, {vr(vKGp)}, 8, {vr(vDV)}')
    a(f's_sub_u32 s{sT2}, s{sT2}, 0x2000')
    a(f'v_add_u32 {vr(vDV)}, s{sT2}, {vr(vDV)}')
    a(f's_add_u32 m0, s{sT1}, {VOFF}')
    for i in range(N1): vpiece(i)
    a.label('L_nov1')
    stamp()

    a(f's_add_u32 s{sO}, s14, s{sHO}')
    a(f's_addc_u32 s{sO+1}, s15, 0')
    a(f's_mov_b32 s{sO+2}, 0x80000')
    a(f's_mov_b32 s{sO+3}, 0x20000')
    a(f's_mov_b32 s{sCS}, 0x{CSC:08x}')
    a(f's_mov_b32 s{sCS+1}, 0x{CSC:08x}')
    a(f'v_mov_b32 {vr(vNEG)}, 0x{NEG:08x}')
    a(f'v_lshlrev_b32 {vr(t2)}, 2, {vr(vKGp)}')
    a(f'v_cmp_eq_u32 {sr(sKG0,2)}, 0, {vr(vKGp)}')
    for r in range(4):
        a(f'v_add_u32 {vr(t1)}, {r}, {vr(t2)}')
        a(f'v_cmp_ge_u32 vcc, {vr(t1)}, {vr(vI)}')
        a(f'v_cmp_le_u32 s[60:61], {vr(t1)}, {vr(vI)}')
        a('s_nop 0')
        a(f'v_cndmask_b32 {vr(BLO+r)}, {vr(vNEG)}, 0, vcc')
        a(f'v_cndmask_b32 {vr(BHI+r)}, {vr(vNEG)}, 0, s[60:61]')
    a(f's_lshl_b32 s{sT0}, s{sBK}, 13')
    a(f'v_xor_b32 {vr(t1)}, {vr(vKGp)}, {vr(vI)}')
    a(f'v_lshlrev_b32 {vr(t1)}, 4, {vr(t1)}')
    a(f'v_lshl_add_u32 {vr(t1)}, {vr(vI)}, 8, {vr(t1)}')
    a(f'v_add_u32 {vr(vAK)}, s{sT0}, {vr(t1)}')
    for ks in range(1, 4):
        a(f'v_xor_b32 {vr(vAK+ks)}, {64*ks}, {vr(vAK)}')
    a(f'v_and_b32 {vr(t1)}, 1, {vr(vI)}')
    a(f'v_lshlrev_b32 {vr(vNEG)}, 3, {vr(t1)}')
    a(f'v_lshlrev_b32 {vr(t1)}, 8, {vr(t1)}')
    a(f'v_lshl_add_u32 {vr(t1)}, {vr(vKGp)}, 4, {vr(t1)}')
    a(f'v_add_u32 {vr(vAG)}, {SOFF}, {vr(t1)}')
    a(f'v_bfe_u32 {vr(t1)}, {vr(vLANE)}, 2, 2')
    a(f'v_and_b32 {vr(t2)}, 3, {vr(vLANE)}')
    a(f'v_lshlrev_b32 {vr(t2)}, 3, {vr(t2)}')
    a(f'v_lshl_add_u32 {vr(t1)}, {vr(t1)}, 8, {vr(t2)}')
    a(f'v_add_u32 {vr(vAVG)}, {SOFF+2048}, {vr(t1)}')
    a(f'v_lshrrev_b32 {vr(t1)}, 2, {vr(vLANE)}')
    a(f'v_and_b32 {vr(vT0)}, 7, {vr(t1)}')
    a(f'v_lshl_add_u32 {vr(t2)}, {vr(vT0)}, 5, {vr(t2)}')
    a(f'v_lshl_add_u32 {vr(t2)}, {vr(t1)}, 8, {vr(t2)}')
    a(f's_add_u32 s{sT1}, s{sT0}, {VOFF}')
    a(f'v_add_u32 {vr(VA)}, s{sT1}, {vr(t2)}')
    for t in range(1, 8):
        a(f'v_xor_b32 {vr(VA+t)}, {32*t}, {vr(VA)}')
    a(f's_mul_i32 s{sT1}, s{sWV}, {16*STGP}')
    a(f's_add_u32 s{sT1}, s{sT1}, {STG}')
    a(f'v_mul_u32_u24 {vr(t1)}, {STGP}, {vr(vI)}')
    a(f'v_lshl_add_u32 {vr(t1)}, {vr(vKGp)}, 3, {vr(t1)}')
    a(f'v_add_u32 {vr(vSW)}, s{sT1}, {vr(t1)}')
    a(f'v_mul_u32_u24 {vr(t1)}, {STGP}, {vr(vKGp)}')
    a(f'v_lshl_add_u32 {vr(t1)}, {vr(vI)}, 4, {vr(t1)}')
    a(f'v_add_u32 {vr(vSR)}, s{sT1}, {vr(t1)}')
    a(f's_add_u32 s{sT0}, s{sT0}, s{sQ0B}')
    a(f'v_add_u32 {vr(vOO)}, s{sT0}, {vr(t3)}')
    a(f's_lshr_b32 s{sQB}, s{sT0}, 8')
    a(f's_cmp_eq_u32 s{sQB}, 0')
    a(f's_cselect_b32 s{sEX}, 0, -1')
    a(f's_mov_b32 s{sEX+1}, -1')
    a(f's_cmp_eq_u32 s{sQB}, {256*CC+32*(2*CW+1)}')
    a(f's_cselect_b32 s{sCMB}, 1, 0')
    a(f's_lshl_b32 s{sT0}, s{sWV}, 4')
    a(f's_add_u32 s{sT0}, s{sT0}, {PARTML}')
    a(f'v_add_u32 {vr(vNEG)}, s{sT0}, {vr(vNEG)}')

    a(f's_waitcnt vmcnt({N1}) lgkmcnt(0)')
    a(f's_cmp_lt_u32 s{sWV}, 4')
    a('s_cbranch_scc1 L_kw')
    a(f's_cmp_eq_u32 s{sWV}, {FW}')
    a('s_cbranch_scc1 L_kw')
    a('s_waitcnt vmcnt(0)')
    a.label('L_kw')
    stamp(opt.get('prek', False))
    a('s_barrier')
    stamp()
    a(f's_cmp_ge_u32 s{sWV}, 4')
    a('s_cbranch_scc1 L_nov2')
    for i in range(N1, 20): vpiece(i)
    a.label('L_nov2')
    stamp(fine)
    QG = O
    for W in (2, 3, 4, 5):
        for ks in range(4):
            a(f'ds_read_b128 {vr(kf(W,ks),4)}, {vr(vAK+ks)} offset:{4096*(W-2)}')
    for ks in range(4):
        a(f'ds_read_b128 {vr(KG+4*ks,4)}, {vr(vAG)} offset:{64*ks}')
    for t in range(8):
        a(f'ds_read_b64_tr_b16 {vr(VG+4*t+2,2)}, {vr(vAVG)} offset:{32*t}')
    a(f's_cmp_eq_u32 s{sWV}, {HW}')
    a('s_cbranch_scc1 L_k01done')
    for ks in range(4):
        a(f'v_subrev_u32 {vr(vAK+ks)}, 0x2000, {vr(vAK+ks)}')
    for W in (0, 1):
        for ks in range(4):
            a(f'ds_read_b128 {vr(kf(W,ks),4)}, {vr(vAK+ks)} offset:{4096*W}')
    a.label('L_k01done')
    def issue_qa():
        if opt.get('qprio'): a('s_setprio 3')
        for ks in range(4):
            a(f'buffer_load_dwordx4 {vr(QA+4*ks,4)}, {vr(vDQ)}, {sr(sQ,4)}, 0 offen offset:{64*ks} {qpol}')
        if opt.get('qprio'): a('s_setprio 0')

    def xred(m, t, op='v_max_f32'):
        a(f'v_mov_b32 {vr(t)}, {vr(m)}')
        a.nop(2)
        a(f'v_permlane16_swap_b32 {vr(m)}, {vr(t)}')
        a(f'{op} {vr(m)}, {vr(m)}, {vr(t)}')
        a(f'v_mov_b32 {vr(t)}, {vr(m)}')
        a.nop(2)
        a(f'v_permlane32_swap_b32 {vr(m)}, {vr(t)}')
        a(f'{op} {vr(m)}, {vr(m)}, {vr(t)}')
    def maxtree_l(vals, m, first=True):
        out = []; rest = list(vals)
        if first:
            out.append(f'v_max3_f32 {vr(m)}, {vr(rest[0])}, {vr(rest[1])}, {vr(rest[2])}'); rest = rest[3:]
        while len(rest) >= 2:
            out.append(f'v_max3_f32 {vr(m)}, {vr(m)}, {vr(rest[0])}, {vr(rest[1])}'); rest = rest[2:]
        if rest:
            out.append(f'v_max_f32 {vr(m)}, {vr(m)}, {vr(rest[0])}')
        return out
    def fma_l(vals, mc):
        if pk:
            return [f'v_pk_fma_f32 {vr(vals[n],2)}, {vr(vals[n],2)}, {sr(sCS,2)}, {vr(mc,2)} op_sel_hi:[1,1,0] neg_lo:[0,0,1] neg_hi:[0,0,1]' for n in range(0, len(vals), 2)]
        return [f'v_fma_f32 {vr(v)}, {vr(v)}, s{sCS}, -{vr(mc)}' for v in vals]
    exp_l = lambda vals: [f'v_exp_f32 {vr(v)}, {vr(v)}' for v in vals]
    cvt_l = lambda dst, src, n: [f'v_cvt_pk_bf16_f32 {vr(dst+k)}, {vr(src+2*k)}, {vr(src+2*k+1)}' for k in range(n)]

    def vread(dst, t, W):
        return f'ds_read_b64_tr_b16 {vr(dst,2)}, {vr(VA+t)} offset:{4096*W}'
    a(f's_cmp_lt_u32 s{sWV}, 4')
    a('s_cbranch_scc1 L_gk')
    only(FW, 'L_notag')
    a('s_setprio 3')
    a(f's_lshl_b32 s{sT0}, s{sH}, 3')
    a(f'v_mov_b32 {vr(S+4)}, s{sT0}')
    a(f'v_mov_b32 {vr(S+5)}, s{sN}')
    a(f'v_mov_b32 {vr(S+6)}, {LCNT}')
    a(f'global_load_dword {vr(S+7)}, {vr(S+4)}, s[16:17]')
    a('s_setprio 0')
    issue_qa()
    a('s_waitcnt vmcnt(4)')
    a(f's_cmp_eq_u32 s{sC}, {CC}')
    a('s_cselect_b64 vcc, -1, 0')
    a(f'v_cndmask_b32 {vr(S+7)}, {vr(S+7)}, {vr(S+5)}, vcc')
    a('s_mov_b64 exec, 1')
    a(f'ds_write_b32 {vr(S+6)}, {vr(S+7)} offset:4')
    a('s_mov_b64 exec, -1')
    a('s_branch L_tagdone')
    a.label('L_notag')
    issue_qa()
    a.label('L_tagdone')
    a('s_waitcnt lgkmcnt(0)')
    a(f'v_add_u32 {vr(vDQk)}, 0x1000, {vr(vDQ)}')
    stamp(fine)
    a('s_barrier')
    for t in range(8):
        a(vread(X[t+1], t, 0)); a(vread(X[t+1]+2, t, 1))
    a('s_branch L_gdone')
    a.label('L_gk')
    for ks in range(4):
        a(f'ds_read_b128 {vr(QG+4*ks,4)}, {vr(vAG)} offset:{1024+64*ks}')
    issue_qa()
    a('s_waitcnt lgkmcnt(0)')
    for T in range(4):
        for ks in range(4):
            a(mfma(S+4*T, kf(T,ks), QG+4*ks, '0' if ks == 0 else S+4*T))
    a(f'v_add_u32 {vr(vDQk)}, 0x1000, {vr(vDQ)}')
    a.nop(7)
    for l in maxtree_l([S+x for x in range(16)], vM): a(l)
    xred(vM, vT)
    a(f'v_mul_f32 {vr(vM)}, s{sCS}, {vr(vM)}')
    for l in fma_l([S+x for x in range(16)], vM): a(l)
    for l in exp_l([S+x for x in range(16)]): a(l)
    a.nop(1)
    a(f'v_add_f32 {vr(vT)}, {vr(S)}, {vr(S+1)}')
    for x in range(2, 16):
        a(f'v_add_f32 {vr(vT)}, {vr(vT)}, {vr(S+x)}')
    for l in cvt_l(S, S, 8): a(l)
    xred(vT, vT0, 'v_add_f32')
    a(f'ds_write_b64 {vr(vNEG)}, {vr(vM,2)}')
    a(f'v_mbcnt_lo_u32_b32 {vr(vT0)}, -1, 0')
    a(f's_lshl_b32 s{sT0}, s{sWV}, 10')
    a(f'v_lshl_add_u32 {vr(vT0)}, {vr(vT0)}, 3, s{sT0}')
    if stamps and fine:
        nst[0] -= 1
        stamp()
    a('s_waitcnt vmcnt(4) lgkmcnt(0)')
    a('s_barrier')
    gb = [QB + 4*n for n in range(4)] + [S + 8 + 4*n for n in range(4)]
    for t in range(8):
        a(vread(gb[t], t, 2)); a(vread(gb[t]+2, t, 3))
    for t in range(8):
        a('s_waitcnt lgkmcnt(14)')
        a(mfma(gb[t], S+4, gb[t], '0'))
        a(vread(X[t+1], t, 0)); a(vread(X[t+1]+2, t, 1))
    for t in range(8):
        a(f's_waitcnt lgkmcnt({14-2*t})')
        a(mfma(gb[t], S, X[t+1], gb[t]))
    a('s_mov_b64 exec, 1')
    a(f'v_mov_b32 {vr(S)}, {LCNT}')
    a(f'v_mov_b32 {vr(S+1)}, 1')
    a('s_mov_b64 exec, 0xffff')
    for t in range(8):
        a(f'ds_write_b64 {vr(vT0)}, {vr(gb[t],2)} offset:{PART+128*t}')
    a('s_mov_b64 exec, 1')
    a(f'ds_add_u32 {vr(S)}, {vr(S+1)}')
    a('s_mov_b64 exec, -1')
    a.label('L_gdone')
    stamp()

    emit = lambda ls: [a(l) for l in ls]
    def combine(og, mg, tm):
        NP = len(og)
        emit(maxtree_l([mg[n] for n in range(NP)], tm))
        for n in range(NP):
            a(f'v_sub_f32 {vr(mg[n])}, {vr(mg[n])}, {vr(tm)}')
        for n in range(NP):
            a(f'v_exp_f32 {vr(mg[n])}, {vr(mg[n])}')
        a.nop(1)
        for e in range(4):
            a(f'v_mul_f32 {vr(og[0][e])}, {vr(og[0][e])}, {vr(mg[0])}')
        a(f'v_mul_f32 {vr(mg[0]+1)}, {vr(mg[0]+1)}, {vr(mg[0])}')
        for n in range(1, NP):
            for e in range(4):
                a(f'v_fmac_f32 {vr(og[0][e])}, {vr(og[n][e])}, {vr(mg[n])}')
            a(f'v_fmac_f32 {vr(mg[0]+1)}, {vr(mg[n]+1)}, {vr(mg[n])}')

    def issue_qb():
        for ks in range(4):
            a(f'buffer_load_dwordx4 {vr(QB+4*ks,4)}, {vr(vDQk)}, {sr(sQ,4)}, 0 offen offset:{64*ks} {qpol}')
        a(f'v_mov_b32 {vr(vDQk)}, 0')
    issue_qb()
    if opt.get('otouch'):
        only(FW, 'L_nootouch')
        a(f's_mov_b32 m0, {PARTML+256}')
        a('s_mov_b64 exec, 1')
        a(f'buffer_load_dword {vr(vOO)}, {sr(sO,4)}, 0 offen lds')
        a(f'buffer_load_dword {vr(vOO)}, {sr(sO,4)}, 0 offen offset:512 lds')
        a('s_mov_b64 exec, -1')
        a('s_waitcnt vmcnt(6)')
        a('s_branch L_tileA')
        a.label('L_nootouch')
    a(f's_cmp_eq_u32 s{sWV}, {RW}')
    a('s_cbranch_scc1 L_reduce')
    a(f's_cmp_eq_u32 s{sCMB}, 0')
    a('s_cbranch_scc1 L_noflag')
    a(f'v_mov_b32 {vr(vT0)}, {LNON}')
    a(f'ds_read_b32 {vr(vT0)}, {vr(vT0)}')
    a('s_waitcnt lgkmcnt(0)')
    a(f'v_readfirstlane_b32 s{sN}, {vr(vT0)}')
    a.label('L_noflag')
    a('s_waitcnt vmcnt(4)')
    a('s_branch L_tileA')
    a.label('L_reduce')
    R0 = S
    a(f'v_mbcnt_lo_u32_b32 {vr(R0)}, -1, 0')
    a(f'v_mbcnt_hi_u32_b32 {vr(R0)}, -1, {vr(R0)}')
    a(f'v_lshrrev_b32 {vr(R0+1)}, 5, {vr(R0)}')
    a(f'v_and_b32 {vr(R0+3)}, 31, {vr(R0)}')
    a(f'v_lshlrev_b32 {vr(R0+3)}, 5, {vr(R0+3)}')
    a(f'v_lshl_add_u32 {vr(R0+3)}, {vr(R0+1)}, 2, {vr(R0+3)}')
    a(f'v_lshlrev_b32 {vr(R0+1)}, 3, {vr(R0+1)}')
    a(f'v_add_u32 {vr(R0+1)}, {PARTML}, {vr(R0+1)}')
    a(f'v_lshlrev_b32 {vr(R0)}, 4, {vr(R0)}')
    a(f'v_mov_b32 {vr(R0+2)}, {LCNT}')
    a(f's_mov_b32 s{sCNT}, 0')
    a.label('L_lspin')
    a(f'ds_read_b64 {vr(S+4,2)}, {vr(R0+2)}')
    a(f's_add_u32 s{sCNT}, s{sCNT}, 1')
    a('s_waitcnt lgkmcnt(0)')
    a(f'v_readfirstlane_b32 s{sT0}, {vr(S+4)}')
    a(f'v_readfirstlane_b32 s{sN}, {vr(S+5)}')
    a(f's_cmp_ge_u32 s{sCNT}, 0x100000')
    a('s_cbranch_scc1 L_lok')
    a(f's_cmp_lt_u32 s{sT0}, 4')
    a('s_cbranch_scc1 L_lspin')
    a.label('L_lok')
    mg = [S+4, S+6, O, O+2]
    G0 = S + 8
    og = [[G0+4*n+e for e in range(4)] for n in range(4)]
    for n in range(4):
        a(f'ds_read_b64 {vr(mg[n],2)}, {vr(R0+1)} offset:{16*n}')
    for n in range(4):
        if n: a(f'v_add_u32 {vr(R0+3)}, 1024, {vr(R0+3)}')
        a(f'ds_read2_b32 {vr(G0+4*n,2)}, {vr(R0+3)} offset0:0 offset1:2')
        a(f'ds_read2_b32 {vr(G0+4*n+2,2)}, {vr(R0+3)} offset0:4 offset1:6')
    a('s_waitcnt lgkmcnt(0)')
    combine(og, mg, R0+1)
    a(f'v_mov_b32 {vr(G0+4)}, {vr(G0+3)}')
    a(f'v_mov_b32 {vr(G0+5)}, {vr(R0+1)}')
    a(f'v_mov_b32 {vr(G0+6)}, {vr(mg[0]+1)}')
    a(f'v_mov_b32 {vr(G0+7)}, s{sN}')
    a(f'v_mov_b32 {vr(G0+3)}, s{sN}')
    a(f'buffer_store_dwordx4 {vr(G0+4,4)}, {vr(R0)}, {sr(sW,4)}, s42 offen offset:1024 sc0 sc1')
    a(f'buffer_store_dwordx4 {vr(G0,4)}, {vr(R0)}, {sr(sW,4)}, s42 offen sc0 sc1')
    a(f's_cmp_lg_u32 s{sN}, 0')
    a('s_cbranch_scc1 L_tagged')
    a('s_waitcnt vmcnt(0)')
    a(f's_lshl_b32 s{sT0}, s{sH}, 3')
    a(f's_lshl_b32 s{sT1}, 1, s{sC}')
    a(f'v_mov_b32 {vr(R0)}, s{sT0}')
    a(f'v_mov_b32 {vr(R0+1)}, s{sT1}')
    a('s_mov_b64 exec, 1')
    a(f'global_atomic_or {vr(R0)}, {vr(R0+1)}, s[16:17] offset:4 sc1')
    a('s_mov_b64 exec, -1')
    a.label('L_tagged')
    a('s_waitcnt vmcnt(6)')
    a.label('L_tileA')
    stamp()

    def inter(ms, vs, per=2):
        vs = list(vs)
        for m in ms:
            a(m)
            for _ in range(per):
                if vs: a(vs.pop(0))
        for v in vs: a(v)

    HB = kf(2, 0)
    def hand_loads():
        a(f'v_mbcnt_lo_u32_b32 {vr(KG)}, -1, 0')
        a(f'v_mbcnt_hi_u32_b32 {vr(KG)}, -1, {vr(KG)}')
        a(f'v_lshlrev_b32 {vr(KG)}, 4, {vr(KG)}')
        for n in range(8):
            a(f's_movk_i32 s{sT0}, {2048*n}')
            a(f'buffer_load_dwordx4 {vr(HB+8*n,4)}, {vr(KG)}, {sr(sW,4)}, s{sT0} offen sc0 sc1')
            a(f'buffer_load_dwordx4 {vr(HB+8*n+4,4)}, {vr(KG)}, {sr(sW,4)}, s{sT0} offen offset:1024 sc0 sc1')

    buf = [kf(0, n) for n in range(4)] + [QA + 4*n for n in range(4)]
    SLOTW = {0: [0, 1, 2, 3, 4], 1: [4, 5, 2, 3, 1]}
    def qk(tau, sl):
        Q = QA if tau == 0 else QB
        if sl == 'G':
            return [mfma(S+20, KG+4*ks, Q+4*ks, '0' if ks == 0 else S+20) for ks in range(4)]
        W = SLOTW[tau][sl]
        c0 = BLO if W == tau else BHI if W == tau + 4 else '0'
        return [mfma(S+4*sl, kf(W,ks), Q+4*ks, c0 if ks == 0 else S+4*sl) for ks in range(4)]
    def edge_test(tau, lab):
        a(f's_sub_u32 s{sT0}, s{sQB}, {48 - 16*tau}')
        a(f's_cmp_lt_u32 s{sT0}, 1968')
        a(f's_cbranch_scc1 {lab}')
    def edge_mask(tau, tr):
        a(f'v_mbcnt_lo_u32_b32 {vr(tr)}, -1, 0')
        a(f'v_mbcnt_hi_u32_b32 {vr(tr)}, -1, {vr(tr)}')
        a(f'v_lshrrev_b32 {vr(tr)}, 4, {vr(tr)}')
        a(f's_sub_u32 s{sT0}, s{sQB}, 34')
        a(f's_movk_i32 s{sT1}, 2046')
        a(f'v_lshl_add_u32 {vr(tr)}, {vr(tr)}, 2, s{sT0}')
        a(f'v_mov_b32 {vr(vM)}, 0x{NEG:08x}')
        a('s_nop 3')
        for sl in range(5):
            for r in range(4):
                a(f'v_add_u32 {vr(vT)}, {16*SLOTW[tau][sl]+r}, {vr(tr)}')
                a(f'v_cmp_gt_u32 vcc, s{sT1}, {vr(vT)}')
                a('s_nop 1')
                a(f'v_cndmask_b32 {vr(S+4*sl+r)}, {vr(vM)}, {vr(S+4*sl+r)}, vcc')
        for l in maxtree_l([S+x for x in range(22)], vM): a(l)
    def epi(t):
        l = [f'v_mul_f32 {vr(O+4*t+e)}, {vr(O+4*t+e)}, {vr(vT0)}' for e in range(4)]
        l += [f'v_cvt_pk_bf16_f32 {vr(O+4*t)}, {vr(O+4*t)}, {vr(O+4*t+1)}',
              f'v_cvt_pk_bf16_f32 {vr(O+4*t+1)}, {vr(O+4*t+2)}, {vr(O+4*t+3)}',
              f'ds_write_b64 {vr(vSW)}, {vr(O+4*t,2)} offset:{32*t}']
        return l
    def stage_reads():
        return [f'ds_read_b128 {vr(O+4*j,4)}, {vr(vSR)} offset:{4*STGP*j}' for j in range(4)]
    def stores(tau):
        for j in range(4):
            a(f's_waitcnt lgkmcnt({3-j})')
            if tau == 0 and j == 0: a(f's_mov_b64 exec, {sr(sEX,2)}')
            a(f'buffer_store_dwordx4 {vr(O+4*j,4)}, {vr(vOO)}, {sr(sO,4)}, 0 offen offset:{1024*j} {stpol}')
            if tau == 0 and j == 0: a('s_mov_b64 exec, -1')
    def softmax_pv(tau):
        m = vM
        xred(m, vT)
        a(f'v_mul_f32 {vr(m)}, s{sCS}, {vr(m)}')
        set0 = [S+x for x in range(8)]; set1 = [S+8+x for x in range(8)]; set2 = [S+16+x for x in range(6)]
        for l in fma_l(set0, m): a(l)
        f2 = fma_l(set2, m); f1 = fma_l(set1, m)
        for l in exp_l(set0): a(l)
        a(f2[0])
        for l in cvt_l(S, S, 4): a(l)
        a(f2[1])
        a('s_waitcnt lgkmcnt(0)' if tau == 1 else 's_waitcnt lgkmcnt(8)')
        ONES, LACC = S+4, S+20
        v2 = f2[2:] + exp_l(set2) + [f'v_mov_b32 {vr(ONES+n)}, 0x3f803f80' for n in range(4)] + cvt_l(S+16, S+16, 3) \
             + [f'v_mov_b32 {vr(S+19)}, 0', f'v_cndmask_b32 {vr(S+18)}, 0, {vr(S+18)}, {sr(sKG0,2)}']
        inter([mfma(X[t], X[t+1], S, '0') for t in range(8)], v2 + f1[:2])
        v1 = f1[2:] + exp_l(set1) + [f'v_mov_b32 {vr(vT0)}, 0'] + cvt_l(S+8, S+8, 4)
        inter([mfma(O+4*t, VG+4*t, S+16, O+4*t) for t in range(8)], v1)
        a(mfma(LACC, ONES, S, '0'))
        a(mfma(LACC, ONES, S+16, LACC))
        a(mfma(LACC, ONES, S+8, LACC))
        if tau == 0:
            a('s_waitcnt lgkmcnt(0)')
        for t in range(8):
            a(mfma(O+4*t, buf[t], S+8, O+4*t))
            if tau == 0: a(vread(VG+4*t, t, 1))
        a(f'v_rcp_f32 {vr(vT0)}, {vr(LACC)}')

    late = []
    for t in range(8):
        late += [vread(buf[t], t, 2), vread(buf[t]+2, t, 3)]
    vgr = [vread(VG+4*t, t, 4) for t in range(8)]
    edge_test(0, 'L_fastA')
    for l in vgr: a(l)
    for sl in ('G', 0, 1, 2, 3, 4):
        for l in qk(0, sl): a(l)
    for l in late: a(l)
    edge_mask(0, vT0)
    a('s_branch L_joinA')
    a.label('L_fastA')
    m = vM
    inter(qk(0, 0) + qk(0, 'G'), vgr, per=1)
    inter(qk(0, 1) + qk(0, 2), late[:8], per=1)
    inter(qk(0, 3), maxtree_l([S+20, S+21, S+0], m) + maxtree_l([S+1, S+2, S+3, S+4, S+5, S+6], m, False), per=1)
    inter(qk(0, 4), maxtree_l([S+7, S+8, S+9, S+10], m, False), per=1)
    for l in late[8:11]: a(l)
    for l in maxtree_l([S+11, S+12], m, False): a(l)
    for l in late[11:13]: a(l)
    for l in maxtree_l([S+13, S+14, S+15], m, False): a(l)
    for l in late[13:]: a(l)
    for l in maxtree_l([S+16, S+17, S+18, S+19], m, False): a(l)
    a.label('L_joinA')
    stamp(fine)
    softmax_pv(0)
    stamp(fine)
    ep = []
    for t in range(8): ep += epi(t)
    ep += stage_reads()
    xb = []
    for t in range(8): xb += [vread(X[t+1], t, 4), vread(X[t+1]+2, t, 5)]
    def qb_wait(n):
        a(f's_waitcnt vmcnt({n+2})')
        if opt.get('otouch'):
            a(f's_and_b32 s{sT0}, s{sWV}, 3')
            a(f's_cmp_eq_u32 s{sT0}, 3')
        else:
            a(f's_cmp_eq_u32 s{sWV}, {RW}')
        a('s_cbranch_scc1 L_qbw')
        a(f's_waitcnt vmcnt({n})')
        a.label('L_qbw')
    if not merge:
        a('s_nop 0')
        for l in ep: a(l)
        stores(0)
        for l in xb: a(l)
        qb_wait(4)
        stamp()
        edge_test(1, 'L_fastB')
        for sl in ('G', 0, 1, 2, 3, 4):
            for l in qk(1, sl): a(l)
        edge_mask(1, vT0)
        a('s_branch L_joinB')
        a.label('L_fastB')
        for sl in ('G', 0, 1, 2):
            for l in qk(1, sl): a(l)
        inter(qk(1, 3), maxtree_l([S+20, S+21, S+0], m) + maxtree_l([S+1, S+2], m, False), per=1)
        inter(qk(1, 4), maxtree_l([S+3, S+4, S+5, S+6, S+7, S+8], m, False), per=1)
        a.nop(1)
        for l in maxtree_l([S+9, S+10, S+11, S+12], m, False): a(l)
        a.nop(1)
        for l in maxtree_l([S+13, S+14, S+15], m, False): a(l)
        a.nop(2)
        for l in maxtree_l([S+16, S+17, S+18, S+19], m, False): a(l)
    else:
        qb_wait(0)
        stamp()
        edge_test(1, 'L_fastB')
        for l in ep: a(l)
        stores(0)
        for sl in (0, 1, 2, 3, 4, 'G'):
            for l in qk(1, sl): a(l)
        for l in xb: a(l)
        edge_mask(1, vT0)
        a('s_branch L_joinB')
        a.label('L_fastB')
        ms = []
        for sl in (0, 1, 2, 3, 4, 'G'): ms += qk(1, sl)
        inter(ms, ep, per=3)
        for l in maxtree_l([S+x for x in range(15)], vT0): a(l)
        stores(0)
        for l in xb: a(l)
        a(f'v_max3_f32 {vr(vM)}, {vr(vT0)}, {vr(S+15)}, {vr(S+16)}')
        for l in maxtree_l([S+17, S+18, S+19, S+20, S+21], vM, False): a(l)
    a.label('L_joinB')
    a(f'v_add_u32 {vr(vOO)}, 0x1000, {vr(vOO)}')
    stamp()
    a(f's_cmp_eq_u32 s{sCMB}, 0')
    a('s_cbranch_scc1 L_nohand')
    hand_loads()
    a.label('L_nohand')
    softmax_pv(1)
    stamp(fine)
    a('s_nop 0')
    for t in range(8):
        for l in epi(t): a(l)
    for l in stage_reads(): a(l)
    stores(1)
    stamp()

    a(f's_cmp_eq_u32 s{sCMB}, 0')
    a('s_cbranch_scc1 L_fin')
    a('s_waitcnt vmcnt(4)')
    a(f's_mov_b32 s{sCNT}, 0')
    a(f's_mov_b32 s{sT2}, 0')
    a.label('L_chk')
    a(f's_mov_b32 s{sT3}, s{sT2}')
    for n in range(8):
        a(f'v_cmp_eq_u32 vcc, s{sN}, {vr(HB+8*n+3)}')
        a(f'v_cmp_eq_u32 s[60:61], s{sN}, {vr(HB+8*n+7)}')
        a('s_nop 0')
        a('s_and_b64 vcc, vcc, s[60:61]')
        a('s_cmp_eq_u64 vcc, exec')
        a(f's_cselect_b32 s{sT0}, {1 << n}, 0')
        a(f's_or_b32 s{sT3}, s{sT3}, s{sT0}')
    a(f's_add_u32 s{sCNT}, s{sCNT}, 1')
    a(f's_cmp_eq_u32 s{sT3}, 0xff')
    a('s_cbranch_scc1 L_ready')
    a(f's_cmp_ge_u32 s{sCNT}, 0x40000')
    a('s_cbranch_scc1 L_ready')
    a(f's_lshl_b32 s{sT0}, s{sH}, 3')
    a(f'v_mov_b32 {vr(KG+1)}, s{sT0}')
    a(f'global_load_dword {vr(KG+2)}, {vr(KG+1)}, s[16:17] offset:4 sc0 sc1')
    a('s_waitcnt vmcnt(0)')
    a(f'v_readfirstlane_b32 s{sT2}, {vr(KG+2)}')
    hand_loads()
    a('s_waitcnt vmcnt(0)')
    a('s_branch L_chk')
    a.label('L_ready')
    hog = [[HB+8*n, HB+8*n+1, HB+8*n+2, HB+8*n+4] for n in range(8)]
    hmg = [HB+8*n+5 for n in range(8)]
    combine(hog, hmg, X8)
    a(f'v_rcp_f32 {vr(X8)}, {vr(hmg[0]+1)}')
    a(f'v_lshrrev_b32 {vr(KG)}, 1, {vr(KG)}')
    for e in range(4):
        a(f'v_mul_f32 {vr(hog[0][e])}, {vr(hog[0][e])}, {vr(X8)}')
    a(f'v_cvt_pk_bf16_f32 {vr(X8+2)}, {vr(hog[0][0])}, {vr(hog[0][1])}')
    a(f'v_cvt_pk_bf16_f32 {vr(X8+3)}, {vr(hog[0][2])}, {vr(hog[0][3])}')
    a(f'buffer_store_dwordx2 {vr(X8+2,2)}, {vr(KG)}, {sr(sO,4)}, 0 offen {stpol}')
    a.label('L_fin')
    if stamps:
        stamp()
        a('s_waitcnt vmcnt(0)')
        stamp()
        if opt.get('clk'):
            a('s_memtime s[98:99]')
            a('s_waitcnt lgkmcnt(0)')
            a('s_sub_u32 s98, s98, s96')
            a(f's_add_u32 s{64+2*nst[0]}, s98, s64')
            nst[0] += 1
        a(f's_lshl_b32 s{sT0}, s2, 3')
        a(f's_add_u32 s{sT0}, s{sT0}, s{sWV}')
        a(f's_lshl_b32 s{sT0}, s{sT0}, 6')
        a(f's_add_u32 s{sT0}, s{sT0}, 0x100000')
        a(f's_add_u32 s{sW}, s18, s{sT0}')
        a(f's_addc_u32 s{sW+1}, s19, 0')
        a(f'v_mov_b32 v1, 0')
        a('s_mov_b64 exec, 1')
        for n in range(min(16, nst[0])):
            a(f'v_mov_b32 v2, s{64+2*n}')
            a(f'buffer_store_dword v2, v1, {sr(sW,4)}, 0 offen offset:{4*n}')
        if 'leak' in opt:
            k = int(opt['leak'])
            a(f's_sub_u32 s{sT0}, s{64+2*k}, s64')
            a(f's_lshl_b32 s{sT0}, s{sT0}, 2')
            if opt.get('leakcnt'):
                a(f's_mul_i32 s{sT0}, s{sCNT}, 500')
                a(f's_mul_i32 s{sT0}, s{sT0}, s{sCMB}')
            if 'leakw' in opt:
                a(f's_lshr_b32 s{sT1}, {opt["leakw"]}, s{sWV}')
                a(f's_bitcmp1_b32 s{sT1}, 0')
                a(f's_cselect_b32 s{sT0}, s{sT0}, 0')
            a(f"s_add_u32 s{sT0}, s{sT0}, {opt.get('spin', 5000)}")
            a.label('L_spin')
            a('s_memrealtime s[100:101]')
            a('s_waitcnt lgkmcnt(0)')
            a(f's_sub_u32 s{sT1}, s100, s64')
            a(f's_cmp_lt_u32 s{sT1}, s{sT0}')
            a('s_cbranch_scc1 L_spin')
    a.label('L_end')
    a('s_endpgm')
    if opt.get('cpf', True):
        a('.fill 4096, 4, 0xbf800000')

    check(a.lines)
    if stamps: print('stamps', nst[0])
    head = f'''; windowed + global-token attention, B=1 H=32 S=2048 D=128 bf16 (window 32, 2 global tokens)
; @launch grid=(256,1,1) block=(512,1,1) lds=163840
.amdgcn_target "amdgcn-amd-amdhsa--gfx950"
.text
.globl {NAME}
.p2align 8
.type {NAME},@function
{NAME}:
'''
    tail = f'''.section .rodata,"a"
.p2align 6
.amdhsa_kernel {NAME}
  .amdhsa_next_free_vgpr 256
  .amdhsa_next_free_sgpr {102 if stamps else 64}
  .amdhsa_accum_offset 256
  .amdhsa_group_segment_fixed_size 0
  .amdhsa_kernarg_size 64
  .amdhsa_user_sgpr_count 2
  .amdhsa_user_sgpr_kernarg_segment_ptr 1
  .amdhsa_system_sgpr_workgroup_id_x 1
.end_amdhsa_kernel
'''
    return head + a.text() + tail

if __name__ == '__main__':
    out = sys.argv[1]
    opt = {}
    for kv in sys.argv[2:]:
        k, v = kv.split('=', 1)
        opt[k] = {'True': True, 'False': False}.get(v, v.replace('+', ' '))
    open(out, 'w').write(gen(opt))
```

```python
import sys, math, struct
from asmlib import *

NAME = 'standalone__global_local_windowed_global_tokens__prompt_kernel'
def f2u(x): return struct.unpack('<I', struct.pack('<f', x))[0]

def gen(opt):
    a = Asm()
    NEG = 0xFF000000
    CSC = f2u(128 ** -0.5 * math.log2(math.e))
    KOFF, VOFF, SOFF = 0, 73728, 155648
    PART, STG = 0, 16384
    PARTML, LCNT, LNON = SOFF + 3072, SOFF + 3072 + 128, SOFF + 3072 + 132
    STGP = 272
    ldpol = opt.get('ldpol', '')
    qpol = opt.get('qpol', '')
    stpol = opt.get('stpol', 'sc0 sc1 nt')
    pk = opt.get('pk', True)
    N1 = int(opt.get('n1', 8))
    RW = int(opt.get('rw', 3))
    FW = 7
    SW = 5
    CW, CC = int(opt.get('cw', 1)), 3
    merge = opt.get('merge', True)
    sQ, sK, sV, sO, sW = 20, 24, 28, 32, 36
    sWV, sH, sC, sHO, sQ0B = 40, 43, 44, 45, 46
    sT0, sT1, sT2, sT3 = 47, 48, 49, 50
    sBK = 62
    HW = 4
    sCS = 52; sKG0 = 54; sQB = 51; sEX = 56; sCMB = 58; sCNT = 59; sN = 63
    VA = 0
    vSW, vSR, vOO, vT0 = 8, 9, 10, 11
    X8 = 12
    KF = 16; KG = 112; QA, QB = 128, 144; VG = 160; O = 192; S = 224
    BLO, BHI = 248, 252
    kf = lambda W, ks: KF + 16 * W + 4 * ks
    X = [O + 4 * n for n in range(8)] + [X8]
    vLANE, vI, vKGp, vDK, vDV, vDQ, vAG, vNEG, vAK = O+16, O+17, O+18, O+19, O+20, O+21, O+22, O+23, O+24
    vAVG, t1, t2, t3 = O+28, O+29, O+30, O+31
    vDQk = VG + 7
    vFLAG = VG + 3
    vM, vT = S + 22, S + 23

    stamps = opt.get('stamps', False)
    fine = opt.get('fine', False)
    nst = [0]
    def stamp(on=True):
        if stamps and on:
            a(f's_memrealtime s[{64+2*nst[0]}:{65+2*nst[0]}]')
            if nst[0]: a('s_waitcnt lgkmcnt(0)')
            nst[0] += 1
    M16 = 'v_mfma_f32_16x16x32_bf16'
    def mfma(d, x, y, c):
        return f'{M16} {vr(d,4)}, {vr(x,4)}, {vr(y,4)}, {c if isinstance(c,str) else vr(c,4)}'
    def only(w, lab):
        a(f's_cmp_lg_u32 s{sWV}, {w}')
        a(f's_cbranch_scc1 {lab}')

    stamp()
    if opt.get('clk'): a('s_memtime s[96:97]')
    a('s_load_dwordx16 s[4:19], s[0:1], 0')
    a(f'v_readfirstlane_b32 s{sWV}, v0')
    a('s_cmp_ge_u32 s2, 256')
    a('s_cbranch_scc1 L_end')
    a(f'v_lshrrev_b32 {vr(t1)}, 4, v0')
    a(f'v_xor_b32 {vr(vDK)}, {vr(t1)}, v0')
    a(f'v_and_b32 {vr(vDK)}, 15, {vr(vDK)}')
    a(f'v_lshl_add_u32 {vr(vDK)}, {vr(t1)}, 4, {vr(vDK)}')
    a(f's_bfe_u32 s{sC}, s2, 0x30003')
    a(f's_lshl_b32 s{sQ0B}, s{sC}, 16')
    a(f'v_lshl_add_u32 {vr(vDK)}, {vr(vDK)}, 4, s{sQ0B}')
    a('s_and_b32 s41, s2, 7')
    a(f's_lshr_b32 s{sH}, s2, 6')
    a(f's_lshl2_add_u32 s{sH}, s41, s{sH}')
    a(f's_lshl_b32 s{sHO}, s{sH}, 19')
    a(f's_lshl_b32 m0, s{sWV}, 4')
    a(f's_mov_b32 s{sK+2}, 0x80000')
    a(f's_mov_b32 s{sK+3}, 0x20000')
    a(f's_movk_i32 s{sCNT}, 17')
    if opt.get('cpf', True):
        a(f's_getpc_b64 s[{sEX}:{sEX+1}]')
        a(f'v_lshlrev_b32 v1, 5, v0')
        a(f'global_load_dword {vr(X8)}, v1, s[{sEX}:{sEX+1}]')
    a(f's_cmp_ge_u32 s{sWV}, 256')
    a('s_cbranch_scc1 L_helper')
    a('s_waitcnt lgkmcnt(0)')
    stamp()
    a(f's_add_u32 s{sK}, s6, s{sHO}')
    a(f's_addc_u32 s{sK+1}, s7, 0')
    a.label('L_kloop')
    a(f'buffer_load_dwordx4 {vr(vDK)}, {sr(sK,4)}, 0 offen {ldpol} lds')
    a('s_add_u32 m0, m0, 0x1000')
    a(f'v_add_u32 {vr(vDK)}, 0x1000, {vr(vDK)}')
    a(f's_sub_u32 s{sCNT}, s{sCNT}, 1')
    a('s_cbranch_scc0 L_kloop')
    stamp(opt.get('postk', False))
    def common():
        a(f's_lshr_b32 s{sWV}, s{sWV}, 6')
        a(f'v_and_b32 {vr(vLANE)}, 63, v0')
        a(f'v_and_b32 {vr(vI)}, 15, v0')
        a(f'v_bfe_u32 {vr(vKGp)}, v0, 4, 2')
        a(f's_lshl_b32 s{sT1}, s{sWV}, 10')
        a(f's_add_u32 s{sT2}, s{sT1}, s{sQ0B}')
        for s_ in (sV, sQ):
            a(f's_mov_b32 s{s_+2}, 0x80000')
            a(f's_mov_b32 s{s_+3}, 0x20000')
        a(f's_mov_b32 s{sW+2}, 0x4000')
        a(f's_mov_b32 s{sW+3}, 0x20000')
        a(f's_and_b32 s{sBK}, s{sWV}, 3')
        a(f's_lshl_b32 s{sBK}, s{sBK}, 1')
        a(f's_cmp_lt_u32 s{sWV}, 4')
        a(f's_addc_u32 s{sBK}, s{sBK}, 0')
        a(f's_cmp_eq_u32 s{sC}, 0')
        a(f's_cselect_b32 s{sT3}, 0x40000000, 0')
        a(f's_lshl_b32 s{sT0}, s{sBK}, 13')
        a(f's_add_u32 s{sT0}, s{sT0}, s{sQ0B}')
        a(f'v_lshlrev_b32 {vr(vDQ)}, 4, {vr(vKGp)}')
        a(f'v_lshl_add_u32 {vr(vDQ)}, {vr(vI)}, 8, {vr(vDQ)}')
        a(f'v_add_u32 {vr(vDQ)}, s{sT0}, {vr(vDQ)}')
        a(f'v_lshlrev_b32 {vr(t3)}, 4, {vr(vLANE)}')
        a(f's_lshl_b32 s41, s{sH}, 14')
        a(f's_lshl_b32 s42, s{sC}, 11')
    common()
    a(f's_mov_b32 s{sN}, 0')
    def srds():
        a(f's_add_u32 s{sV}, s8, s{sHO}')
        a(f's_addc_u32 s{sV+1}, s9, 0')
        a(f's_add_u32 s{sQ}, s4, s{sHO}')
        a(f's_addc_u32 s{sQ+1}, s5, 0')
        a(f's_add_u32 s{sW}, s18, s41')
        a(f's_addc_u32 s{sW+1}, s19, 0')
    srds()
    a('s_branch L_v1')
    a.label('L_helper')
    a('s_setprio 3')
    a('s_memrealtime s[60:61]')
    common()
    a(f's_sub_u32 s{sT0}, s{sT3}, 0x2000')
    a(f'v_add_u32 {vr(t1)}, s{sT0}, {vr(vDQ)}')
    a(f'v_add_u32 {vr(t2)}, 0x1000, {vr(t1)}')
    a(f's_mov_b32 m0, {SOFF}')
    a('s_waitcnt lgkmcnt(0)')
    if stamps:
        nst[0] -= 1
        stamp()
    a(f's_add_u32 s{sK}, s6, s{sHO}')
    a(f's_addc_u32 s{sK+1}, s7, 0')
    srds()
    if stamps and opt.get('postk'):
        nst[0] -= 1
        stamp()
    a(f's_or_b32 s{sN}, s60, 1')
    only(FW, 'L_noclear')
    a(f's_lshl_b32 s{sT0}, s{sH}, 3')
    a(f'v_mov_b32 {vr(S+4)}, s{sT0}')
    a(f'v_mov_b32 {vr(S+5)}, s{sN}')
    a(f'v_mov_b32 {vr(S+6)}, {LCNT}')
    a(f'v_mov_b32 {vr(S+7)}, 0')
    a('s_mov_b64 exec, 1')
    a(f's_cmp_lg_u32 s{sC}, {CC}')
    a('s_cbranch_scc1 L_nopub')
    a(f'global_store_dword {vr(S+4)}, {vr(S+5)}, s[16:17] sc0 sc1')
    a.label('L_nopub')
    a(f'ds_write_b32 {vr(S+6)}, {vr(S+7)}')
    a('s_mov_b64 exec, -1')
    if opt.get('wstouch'):
        pol = {'ld': '', 'ldsc': 'sc0 sc1'}.get(opt['wstouch'])
        if pol is not None:
            a(f'buffer_load_dwordx4 {vr(S+8,4)}, {vr(t3)}, {sr(sW,4)}, s42 offen {pol}')
            a(f'buffer_load_dwordx4 {vr(S+12,4)}, {vr(t3)}, {sr(sW,4)}, s42 offen offset:1024 {pol}')
        else:
            for n in range(4): a(f'v_mov_b32 {vr(S+8+n)}, 0')
            a(f'buffer_store_dwordx4 {vr(S+8,4)}, {vr(t3)}, {sr(sW,4)}, s42 offen sc0 sc1')
            a(f'buffer_store_dwordx4 {vr(S+8,4)}, {vr(t3)}, {sr(sW,4)}, s42 offen offset:1024 sc0 sc1')
    a.label('L_noclear')
    only(SW, 'L_nosmall')
    for n, srd in enumerate((sK, sQ, sV)):
        if n:
            a(f's_mov_b32 m0, {SOFF + 1024*n}')
            a('s_nop 0')
        a(f'buffer_load_dwordx4 {vr(t3)}, {sr(srd,4)}, 0 offen lds')
    a.label('L_nosmall')
    only(HW, 'L_nohalo')
    for T in range(2):
        for ks in range(4):
            a(f'buffer_load_dwordx4 {vr(kf(T,ks),4)}, {vr(t1+T)}, {sr(sK,4)}, 0 offen offset:{64*ks}')
    a.label('L_nohalo')
    a('s_setprio 0')
    a('s_branch L_nov1')
    a.label('L_v1')
    def vpiece(i):
        if i:
            a('s_add_u32 m0, m0, 0x1000')
            a(f'v_add_u32 {vr(vDV)}, 0x1000, {vr(vDV)}')
        if i < 2:
            a(f'v_add_u32 {vr(t1)}, s{sT3}, {vr(vDV)}')
            a(f'buffer_load_dwordx4 {vr(t1)}, {sr(sV,4)}, 0 offen {ldpol} lds')
        else:
            a(f'buffer_load_dwordx4 {vr(vDV)}, {sr(sV,4)}, 0 offen {ldpol} lds')
    a(f's_and_b32 s{sT0}, s{sWV}, 1')
    a(f's_lshl_b32 s{sT0}, s{sT0}, 2')
    a(f'v_add_lshl_u32 {vr(vDV)}, s{sT0}, {vr(vKGp)}, 1')
    a(f'v_xor_b32 {vr(vDV)}, {vr(vDV)}, {vr(vI)}')
    a(f'v_lshlrev_b32 {vr(vDV)}, 4, {vr(vDV)}')
    a(f'v_lshl_add_u32 {vr(vDV)}, {vr(vKGp)}, 8, {vr(vDV)}')
    a(f's_sub_u32 s{sT2}, s{sT2}, 0x2000')
    a(f'v_add_u32 {vr(vDV)}, s{sT2}, {vr(vDV)}')
    a(f's_add_u32 m0, s{sT1}, {VOFF}')
    for i in range(N1): vpiece(i)
    a.label('L_nov1')
    stamp()

    a(f's_add_u32 s{sO}, s14, s{sHO}')
    a(f's_addc_u32 s{sO+1}, s15, 0')
    a(f's_mov_b32 s{sO+2}, 0x80000')
    a(f's_mov_b32 s{sO+3}, 0x20000')
    a(f's_mov_b32 s{sCS}, 0x{CSC:08x}')
    a(f's_mov_b32 s{sCS+1}, 0x{CSC:08x}')
    a(f'v_mov_b32 {vr(vNEG)}, 0x{NEG:08x}')
    a(f'v_lshlrev_b32 {vr(t2)}, 2, {vr(vKGp)}')
    a(f'v_cmp_eq_u32 {sr(sKG0,2)}, 0, {vr(vKGp)}')
    for r in range(4):
        a(f'v_add_u32 {vr(t1)}, {r}, {vr(t2)}')
        a(f'v_cmp_ge_u32 vcc, {vr(t1)}, {vr(vI)}')
        a(f'v_cmp_le_u32 s[60:61], {vr(t1)}, {vr(vI)}')
        a('s_nop 0')
        a(f'v_cndmask_b32 {vr(BLO+r)}, {vr(vNEG)}, 0, vcc')
        a(f'v_cndmask_b32 {vr(BHI+r)}, {vr(vNEG)}, 0, s[60:61]')
    a(f's_lshl_b32 s{sT0}, s{sBK}, 13')
    a(f'v_xor_b32 {vr(t1)}, {vr(vKGp)}, {vr(vI)}')
    a(f'v_lshlrev_b32 {vr(t1)}, 4, {vr(t1)}')
    a(f'v_lshl_add_u32 {vr(t1)}, {vr(vI)}, 8, {vr(t1)}')
    a(f'v_add_u32 {vr(vAK)}, s{sT0}, {vr(t1)}')
    for ks in range(1, 4):
        a(f'v_xor_b32 {vr(vAK+ks)}, {64*ks}, {vr(vAK)}')
    a(f'v_and_b32 {vr(t1)}, 1, {vr(vI)}')
    a(f'v_lshlrev_b32 {vr(vNEG)}, 3, {vr(t1)}')
    a(f'v_lshlrev_b32 {vr(t1)}, 8, {vr(t1)}')
    a(f'v_lshl_add_u32 {vr(t1)}, {vr(vKGp)}, 4, {vr(t1)}')
    a(f'v_add_u32 {vr(vAG)}, {SOFF}, {vr(t1)}')
    a(f'v_bfe_u32 {vr(t1)}, {vr(vLANE)}, 2, 2')
    a(f'v_and_b32 {vr(t2)}, 3, {vr(vLANE)}')
    a(f'v_lshlrev_b32 {vr(t2)}, 3, {vr(t2)}')
    a(f'v_lshl_add_u32 {vr(t1)}, {vr(t1)}, 8, {vr(t2)}')
    a(f'v_add_u32 {vr(vAVG)}, {SOFF+2048}, {vr(t1)}')
    a(f'v_lshrrev_b32 {vr(t1)}, 2, {vr(vLANE)}')
    a(f'v_and_b32 {vr(vT0)}, 7, {vr(t1)}')
    a(f'v_lshl_add_u32 {vr(t2)}, {vr(vT0)}, 5, {vr(t2)}')
    a(f'v_lshl_add_u32 {vr(t2)}, {vr(t1)}, 8, {vr(t2)}')
    a(f's_add_u32 s{sT1}, s{sT0}, {VOFF}')
    a(f'v_add_u32 {vr(VA)}, s{sT1}, {vr(t2)}')
    for t in range(1, 8):
        a(f'v_xor_b32 {vr(VA+t)}, {32*t}, {vr(VA)}')
    a(f's_mul_i32 s{sT1}, s{sWV}, {16*STGP}')
    a(f's_add_u32 s{sT1}, s{sT1}, {STG}')
    a(f'v_mul_u32_u24 {vr(t1)}, {STGP}, {vr(vI)}')
    a(f'v_lshl_add_u32 {vr(t1)}, {vr(vKGp)}, 3, {vr(t1)}')
    a(f'v_add_u32 {vr(vSW)}, s{sT1}, {vr(t1)}')
    a(f'v_mul_u32_u24 {vr(t1)}, {STGP}, {vr(vKGp)}')
    a(f'v_lshl_add_u32 {vr(t1)}, {vr(vI)}, 4, {vr(t1)}')
    a(f'v_add_u32 {vr(vSR)}, s{sT1}, {vr(t1)}')
    a(f's_add_u32 s{sT0}, s{sT0}, s{sQ0B}')
    a(f'v_add_u32 {vr(vOO)}, s{sT0}, {vr(t3)}')
    a(f's_lshr_b32 s{sQB}, s{sT0}, 8')
    a(f's_cmp_eq_u32 s{sQB}, 0')
    a(f's_cselect_b32 s{sEX}, 0, -1')
    a(f's_mov_b32 s{sEX+1}, -1')
    a(f's_cmp_eq_u32 s{sQB}, {256*CC+32*(2*CW+1)}')
    a(f's_cselect_b32 s{sCMB}, 1, 0')
    a(f's_lshl_b32 s{sT0}, s{sWV}, 4')
    a(f's_add_u32 s{sT0}, s{sT0}, {PARTML}')
    a(f'v_add_u32 {vr(vNEG)}, s{sT0}, {vr(vNEG)}')

    a(f's_waitcnt vmcnt({N1}) lgkmcnt(0)')
    a(f's_cmp_lt_u32 s{sWV}, 4')
    a('s_cbranch_scc1 L_kw')
    a(f's_cmp_eq_u32 s{sWV}, {FW}')
    a('s_cbranch_scc1 L_kw')
    a('s_waitcnt vmcnt(0)')
    a.label('L_kw')
    stamp(opt.get('prek', False))
    a('s_barrier')
    stamp()
    a(f's_cmp_ge_u32 s{sWV}, 4')
    a('s_cbranch_scc1 L_nov2')
    for i in range(N1, 20): vpiece(i)
    a.label('L_nov2')
    stamp(fine)
    QG = O
    for W in (2, 3, 4, 5):
        for ks in range(4):
            a(f'ds_read_b128 {vr(kf(W,ks),4)}, {vr(vAK+ks)} offset:{4096*(W-2)}')
    for ks in range(4):
        a(f'ds_read_b128 {vr(KG+4*ks,4)}, {vr(vAG)} offset:{64*ks}')
    for t in range(8):
        a(f'ds_read_b64_tr_b16 {vr(VG+4*t+2,2)}, {vr(vAVG)} offset:{32*t}')
    a(f's_cmp_eq_u32 s{sWV}, {HW}')
    a('s_cbranch_scc1 L_k01done')
    for ks in range(4):
        a(f'v_subrev_u32 {vr(vAK+ks)}, 0x2000, {vr(vAK+ks)}')
    for W in (0, 1):
        for ks in range(4):
            a(f'ds_read_b128 {vr(kf(W,ks),4)}, {vr(vAK+ks)} offset:{4096*W}')
    a.label('L_k01done')
    def issue_qa():
        if opt.get('qprio'): a('s_setprio 3')
        for ks in range(4):
            a(f'buffer_load_dwordx4 {vr(QA+4*ks,4)}, {vr(vDQ)}, {sr(sQ,4)}, 0 offen offset:{64*ks} {qpol}')
        if opt.get('qprio'): a('s_setprio 0')

    def xred(m, t, op='v_max_f32'):
        a(f'v_mov_b32 {vr(t)}, {vr(m)}')
        a.nop(2)
        a(f'v_permlane16_swap_b32 {vr(m)}, {vr(t)}')
        a(f'{op} {vr(m)}, {vr(m)}, {vr(t)}')
        a(f'v_mov_b32 {vr(t)}, {vr(m)}')
        a.nop(2)
        a(f'v_permlane32_swap_b32 {vr(m)}, {vr(t)}')
        a(f'{op} {vr(m)}, {vr(m)}, {vr(t)}')
    def maxtree_l(vals, m, first=True):
        out = []; rest = list(vals)
        if first:
            out.append(f'v_max3_f32 {vr(m)}, {vr(rest[0])}, {vr(rest[1])}, {vr(rest[2])}'); rest = rest[3:]
        while len(rest) >= 2:
            out.append(f'v_max3_f32 {vr(m)}, {vr(m)}, {vr(rest[0])}, {vr(rest[1])}'); rest = rest[2:]
        if rest:
            out.append(f'v_max_f32 {vr(m)}, {vr(m)}, {vr(rest[0])}')
        return out
    def fma_l(vals, mc):
        if pk:
            return [f'v_pk_fma_f32 {vr(vals[n],2)}, {vr(vals[n],2)}, {sr(sCS,2)}, {vr(mc,2)} op_sel_hi:[1,1,0] neg_lo:[0,0,1] neg_hi:[0,0,1]' for n in range(0, len(vals), 2)]
        return [f'v_fma_f32 {vr(v)}, {vr(v)}, s{sCS}, -{vr(mc)}' for v in vals]
    exp_l = lambda vals: [f'v_exp_f32 {vr(v)}, {vr(v)}' for v in vals]
    cvt_l = lambda dst, src, n: [f'v_cvt_pk_bf16_f32 {vr(dst+k)}, {vr(src+2*k)}, {vr(src+2*k+1)}' for k in range(n)]

    def vread(dst, t, W):
        return f'ds_read_b64_tr_b16 {vr(dst,2)}, {vr(VA+t)} offset:{4096*W}'
    a(f's_cmp_lt_u32 s{sWV}, 4')
    a('s_cbranch_scc1 L_gk')
    only(FW, 'L_notag')
    a('s_setprio 3')
    a(f's_lshl_b32 s{sT0}, s{sH}, 3')
    a(f'v_mov_b32 {vr(S+4)}, s{sT0}')
    a(f'v_mov_b32 {vr(S+5)}, s{sN}')
    a(f'v_mov_b32 {vr(S+6)}, {LCNT}')
    a(f'global_load_dword {vr(S+7)}, {vr(S+4)}, s[16:17]')
    a('s_setprio 0')
    issue_qa()
    a('s_waitcnt vmcnt(4)')
    a(f's_cmp_eq_u32 s{sC}, {CC}')
    a('s_cselect_b64 vcc, -1, 0')
    a(f'v_cndmask_b32 {vr(S+7)}, {vr(S+7)}, {vr(S+5)}, vcc')
    a('s_mov_b64 exec, 1')
    a(f'ds_write_b32 {vr(S+6)}, {vr(S+7)} offset:4')
    a('s_mov_b64 exec, -1')
    a('s_branch L_tagdone')
    a.label('L_notag')
    issue_qa()
    a.label('L_tagdone')
    a('s_waitcnt lgkmcnt(0)')
    a(f'v_add_u32 {vr(vDQk)}, 0x1000, {vr(vDQ)}')
    stamp(fine)
    a('s_barrier')
    for t in range(8):
        a(vread(X[t+1], t, 0)); a(vread(X[t+1]+2, t, 1))
    a('s_branch L_gdone')
    a.label('L_gk')
    for ks in range(4):
        a(f'ds_read_b128 {vr(QG+4*ks,4)}, {vr(vAG)} offset:{1024+64*ks}')
    issue_qa()
    a('s_waitcnt lgkmcnt(0)')
    for T in range(4):
        for ks in range(4):
            a(mfma(S+4*T, kf(T,ks), QG+4*ks, '0' if ks == 0 else S+4*T))
    a(f'v_add_u32 {vr(vDQk)}, 0x1000, {vr(vDQ)}')
    a.nop(7)
    for l in maxtree_l([S+x for x in range(16)], vM): a(l)
    xred(vM, vT)
    a(f'v_mul_f32 {vr(vM)}, s{sCS}, {vr(vM)}')
    for l in fma_l([S+x for x in range(16)], vM): a(l)
    for l in exp_l([S+x for x in range(16)]): a(l)
    a.nop(1)
    a(f'v_add_f32 {vr(vT)}, {vr(S)}, {vr(S+1)}')
    for x in range(2, 16):
        a(f'v_add_f32 {vr(vT)}, {vr(vT)}, {vr(S+x)}')
    for l in cvt_l(S, S, 8): a(l)
    xred(vT, vT0, 'v_add_f32')
    a(f'ds_write_b64 {vr(vNEG)}, {vr(vM,2)}')
    a(f'v_mbcnt_lo_u32_b32 {vr(vT0)}, -1, 0')
    a(f's_lshl_b32 s{sT0}, s{sWV}, 10')
    a(f'v_lshl_add_u32 {vr(vT0)}, {vr(vT0)}, 3, s{sT0}')
    if stamps and fine:
        nst[0] -= 1
        stamp()
    a('s_waitcnt vmcnt(4) lgkmcnt(0)')
    a('s_barrier')
    gb = [QB + 4*n for n in range(4)] + [S + 8 + 4*n for n in range(4)]
    for t in range(8):
        a(vread(gb[t], t, 2)); a(vread(gb[t]+2, t, 3))
    for t in range(8):
        a('s_waitcnt lgkmcnt(14)')
        a(mfma(gb[t], S+4, gb[t], '0'))
        a(vread(X[t+1], t, 0)); a(vread(X[t+1]+2, t, 1))
    for t in range(8):
        a(f's_waitcnt lgkmcnt({14-2*t})')
        a(mfma(gb[t], S, X[t+1], gb[t]))
    a('s_mov_b64 exec, 1')
    a(f'v_mov_b32 {vr(S)}, {LCNT}')
    a(f'v_mov_b32 {vr(S+1)}, 1')
    a('s_mov_b64 exec, 0xffff')
    for t in range(8):
        a(f'ds_write_b64 {vr(vT0)}, {vr(gb[t],2)} offset:{PART+128*t}')
    a('s_mov_b64 exec, 1')
    a(f'ds_add_u32 {vr(S)}, {vr(S+1)}')
    a('s_mov_b64 exec, -1')
    a.label('L_gdone')
    stamp()

    emit = lambda ls: [a(l) for l in ls]
    def combine(og, mg, tm):
        NP = len(og)
        emit(maxtree_l([mg[n] for n in range(NP)], tm))
        for n in range(NP):
            a(f'v_sub_f32 {vr(mg[n])}, {vr(mg[n])}, {vr(tm)}')
        for n in range(NP):
            a(f'v_exp_f32 {vr(mg[n])}, {vr(mg[n])}')
        a.nop(1)
        for e in range(4):
            a(f'v_mul_f32 {vr(og[0][e])}, {vr(og[0][e])}, {vr(mg[0])}')
        a(f'v_mul_f32 {vr(mg[0]+1)}, {vr(mg[0]+1)}, {vr(mg[0])}')
        for n in range(1, NP):
            for e in range(4):
                a(f'v_fmac_f32 {vr(og[0][e])}, {vr(og[n][e])}, {vr(mg[n])}')
            a(f'v_fmac_f32 {vr(mg[0]+1)}, {vr(mg[n]+1)}, {vr(mg[n])}')

    def issue_qb():
        for ks in range(4):
            a(f'buffer_load_dwordx4 {vr(QB+4*ks,4)}, {vr(vDQk)}, {sr(sQ,4)}, 0 offen offset:{64*ks} {qpol}')
        a(f'v_mov_b32 {vr(vDQk)}, 0')
    issue_qb()
    if opt.get('otouch'):
        only(FW, 'L_nootouch')
        a(f's_mov_b32 m0, {PARTML+256}')
        a('s_mov_b64 exec, 1')
        a(f'buffer_load_dword {vr(vOO)}, {sr(sO,4)}, 0 offen lds')
        a(f'buffer_load_dword {vr(vOO)}, {sr(sO,4)}, 0 offen offset:512 lds')
        a('s_mov_b64 exec, -1')
        a('s_waitcnt vmcnt(6)')
        a('s_branch L_tileA')
        a.label('L_nootouch')
    a(f's_cmp_eq_u32 s{sWV}, {RW}')
    a('s_cbranch_scc1 L_reduce')
    a(f's_cmp_eq_u32 s{sCMB}, 0')
    a('s_cbranch_scc1 L_noflag')
    a(f'v_mov_b32 {vr(vT0)}, {LNON}')
    a(f'ds_read_b32 {vr(vT0)}, {vr(vT0)}')
    a('s_waitcnt lgkmcnt(0)')
    a(f'v_readfirstlane_b32 s{sN}, {vr(vT0)}')
    a.label('L_noflag')
    a('s_waitcnt vmcnt(4)')
    a('s_branch L_tileA')
    a.label('L_reduce')
    R0 = S
    a(f'v_mbcnt_lo_u32_b32 {vr(R0)}, -1, 0')
    a(f'v_mbcnt_hi_u32_b32 {vr(R0)}, -1, {vr(R0)}')
    a(f'v_lshrrev_b32 {vr(R0+1)}, 5, {vr(R0)}')
    a(f'v_and_b32 {vr(R0+3)}, 31, {vr(R0)}')
    a(f'v_lshlrev_b32 {vr(R0+3)}, 5, {vr(R0+3)}')
    a(f'v_lshl_add_u32 {vr(R0+3)}, {vr(R0+1)}, 2, {vr(R0+3)}')
    a(f'v_lshlrev_b32 {vr(R0+1)}, 3, {vr(R0+1)}')
    a(f'v_add_u32 {vr(R0+1)}, {PARTML}, {vr(R0+1)}')
    a(f'v_lshlrev_b32 {vr(R0)}, 4, {vr(R0)}')
    a(f'v_mov_b32 {vr(R0+2)}, {LCNT}')
    a(f's_mov_b32 s{sCNT}, 0')
    a.label('L_lspin')
    a(f'ds_read_b64 {vr(S+4,2)}, {vr(R0+2)}')
    a(f's_add_u32 s{sCNT}, s{sCNT}, 1')
    a('s_waitcnt lgkmcnt(0)')
    a(f'v_readfirstlane_b32 s{sT0}, {vr(S+4)}')
    a(f'v_readfirstlane_b32 s{sN}, {vr(S+5)}')
    a(f's_cmp_ge_u32 s{sCNT}, 0x100000')
    a('s_cbranch_scc1 L_lok')
    a(f's_cmp_lt_u32 s{sT0}, 4')
    a('s_cbranch_scc1 L_lspin')
    a.label('L_lok')
    mg = [S+4, S+6, O, O+2]
    G0 = S + 8
    og = [[G0+4*n+e for e in range(4)] for n in range(4)]
    for n in range(4):
        a(f'ds_read_b64 {vr(mg[n],2)}, {vr(R0+1)} offset:{16*n}')
    for n in range(4):
        if n: a(f'v_add_u32 {vr(R0+3)}, 1024, {vr(R0+3)}')
        a(f'ds_read2_b32 {vr(G0+4*n,2)}, {vr(R0+3)} offset0:0 offset1:2')
        a(f'ds_read2_b32 {vr(G0+4*n+2,2)}, {vr(R0+3)} offset0:4 offset1:6')
    a('s_waitcnt lgkmcnt(0)')
    combine(og, mg, R0+1)
    a(f'v_mov_b32 {vr(G0+4)}, {vr(G0+3)}')
    a(f'v_mov_b32 {vr(G0+5)}, {vr(R0+1)}')
    a(f'v_mov_b32 {vr(G0+6)}, {vr(mg[0]+1)}')
    a(f'v_mov_b32 {vr(G0+7)}, s{sN}')
    a(f'v_mov_b32 {vr(G0+3)}, s{sN}')
    a(f'buffer_store_dwordx4 {vr(G0+4,4)}, {vr(R0)}, {sr(sW,4)}, s42 offen offset:1024 sc0 sc1')
    a(f'buffer_store_dwordx4 {vr(G0,4)}, {vr(R0)}, {sr(sW,4)}, s42 offen sc0 sc1')
    a(f's_cmp_lg_u32 s{sN}, 0')
    a('s_cbranch_scc1 L_tagged')
    a('s_waitcnt vmcnt(0)')
    a(f's_lshl_b32 s{sT0}, s{sH}, 3')
    a(f's_lshl_b32 s{sT1}, 1, s{sC}')
    a(f'v_mov_b32 {vr(R0)}, s{sT0}')
    a(f'v_mov_b32 {vr(R0+1)}, s{sT1}')
    a('s_mov_b64 exec, 1')
    a(f'global_atomic_or {vr(R0)}, {vr(R0+1)}, s[16:17] offset:4 sc1')
    a('s_mov_b64 exec, -1')
    a.label('L_tagged')
    a('s_waitcnt vmcnt(6)')
    a.label('L_tileA')
    stamp()

    def inter(ms, vs, per=2):
        vs = list(vs)
        for m in ms:
            a(m)
            for _ in range(per):
                if vs: a(vs.pop(0))
        for v in vs: a(v)

    HB = kf(2, 0)
    def hand_loads():
        a(f'v_mbcnt_lo_u32_b32 {vr(KG)}, -1, 0')
        a(f'v_mbcnt_hi_u32_b32 {vr(KG)}, -1, {vr(KG)}')
        a(f'v_lshlrev_b32 {vr(KG)}, 4, {vr(KG)}')
        for n in range(8):
            a(f's_movk_i32 s{sT0}, {2048*n}')
            a(f'buffer_load_dwordx4 {vr(HB+8*n,4)}, {vr(KG)}, {sr(sW,4)}, s{sT0} offen sc0 sc1')
            a(f'buffer_load_dwordx4 {vr(HB+8*n+4,4)}, {vr(KG)}, {sr(sW,4)}, s{sT0} offen offset:1024 sc0 sc1')

    buf = [kf(0, n) for n in range(4)] + [QA + 4*n for n in range(4)]
    SLOTW = {0: [0, 1, 2, 3, 4], 1: [4, 5, 2, 3, 1]}
    def qk(tau, sl):
        Q = QA if tau == 0 else QB
        if sl == 'G':
            return [mfma(S+20, KG+4*ks, Q+4*ks, '0' if ks == 0 else S+20) for ks in range(4)]
        W = SLOTW[tau][sl]
        c0 = BLO if W == tau else BHI if W == tau + 4 else '0'
        return [mfma(S+4*sl, kf(W,ks), Q+4*ks, c0 if ks == 0 else S+4*sl) for ks in range(4)]
    def edge_test(tau, lab):
        a(f's_sub_u32 s{sT0}, s{sQB}, {48 - 16*tau}')
        a(f's_cmp_lt_u32 s{sT0}, 1968')
        a(f's_cbranch_scc1 {lab}')
    def edge_mask(tau, tr):
        a(f'v_mbcnt_lo_u32_b32 {vr(tr)}, -1, 0')
        a(f'v_mbcnt_hi_u32_b32 {vr(tr)}, -1, {vr(tr)}')
        a(f'v_lshrrev_b32 {vr(tr)}, 4, {vr(tr)}')
        a(f's_sub_u32 s{sT0}, s{sQB}, 34')
        a(f's_movk_i32 s{sT1}, 2046')
        a(f'v_lshl_add_u32 {vr(tr)}, {vr(tr)}, 2, s{sT0}')
        a(f'v_mov_b32 {vr(vM)}, 0x{NEG:08x}')
        a('s_nop 3')
        for sl in range(5):
            for r in range(4):
                a(f'v_add_u32 {vr(vT)}, {16*SLOTW[tau][sl]+r}, {vr(tr)}')
                a(f'v_cmp_gt_u32 vcc, s{sT1}, {vr(vT)}')
                a('s_nop 1')
                a(f'v_cndmask_b32 {vr(S+4*sl+r)}, {vr(vM)}, {vr(S+4*sl+r)}, vcc')
        for l in maxtree_l([S+x for x in range(22)], vM): a(l)
    def epi(t):
        l = [f'v_mul_f32 {vr(O+4*t+e)}, {vr(O+4*t+e)}, {vr(vT0)}' for e in range(4)]
        l += [f'v_cvt_pk_bf16_f32 {vr(O+4*t)}, {vr(O+4*t)}, {vr(O+4*t+1)}',
              f'v_cvt_pk_bf16_f32 {vr(O+4*t+1)}, {vr(O+4*t+2)}, {vr(O+4*t+3)}',
              f'ds_write_b64 {vr(vSW)}, {vr(O+4*t,2)} offset:{32*t}']
        return l
    def stage_reads():
        return [f'ds_read_b128 {vr(O+4*j,4)}, {vr(vSR)} offset:{4*STGP*j}' for j in range(4)]
    def stores(tau):
        for j in range(4):
            a(f's_waitcnt lgkmcnt({3-j})')
            if tau == 0 and j == 0: a(f's_mov_b64 exec, {sr(sEX,2)}')
            a(f'buffer_store_dwordx4 {vr(O+4*j,4)}, {vr(vOO)}, {sr(sO,4)}, 0 offen offset:{1024*j} {stpol}')
            if tau == 0 and j == 0: a('s_mov_b64 exec, -1')
    def softmax_pv(tau):
        m = vM
        xred(m, vT)
        a(f'v_mul_f32 {vr(m)}, s{sCS}, {vr(m)}')
        set0 = [S+x for x in range(8)]; set1 = [S+8+x for x in range(8)]; set2 = [S+16+x for x in range(6)]
        for l in fma_l(set0, m): a(l)
        f2 = fma_l(set2, m); f1 = fma_l(set1, m)
        for l in exp_l(set0): a(l)
        a(f2[0])
        for l in cvt_l(S, S, 4): a(l)
        a(f2[1])
        a('s_waitcnt lgkmcnt(0)' if tau == 1 else 's_waitcnt lgkmcnt(8)')
        ONES, LACC = S+4, S+20
        v2 = f2[2:] + exp_l(set2) + [f'v_mov_b32 {vr(ONES+n)}, 0x3f803f80' for n in range(4)] + cvt_l(S+16, S+16, 3) \
             + [f'v_mov_b32 {vr(S+19)}, 0', f'v_cndmask_b32 {vr(S+18)}, 0, {vr(S+18)}, {sr(sKG0,2)}']
        inter([mfma(X[t], X[t+1], S, '0') for t in range(8)], v2 + f1[:2])
        v1 = f1[2:] + exp_l(set1) + [f'v_mov_b32 {vr(vT0)}, 0'] + cvt_l(S+8, S+8, 4)
        inter([mfma(O+4*t, VG+4*t, S+16, O+4*t) for t in range(8)], v1)
        a(mfma(LACC, ONES, S, '0'))
        a(mfma(LACC, ONES, S+16, LACC))
        a(mfma(LACC, ONES, S+8, LACC))
        if tau == 0:
            a('s_waitcnt lgkmcnt(0)')
        for t in range(8):
            a(mfma(O+4*t, buf[t], S+8, O+4*t))
            if tau == 0: a(vread(VG+4*t, t, 1))
        a(f'v_rcp_f32 {vr(vT0)}, {vr(LACC)}')

    late = []
    for t in range(8):
        late += [vread(buf[t], t, 2), vread(buf[t]+2, t, 3)]
    vgr = [vread(VG+4*t, t, 4) for t in range(8)]
    edge_test(0, 'L_fastA')
    for l in vgr: a(l)
    for sl in ('G', 0, 1, 2, 3, 4):
        for l in qk(0, sl): a(l)
    for l in late: a(l)
    edge_mask(0, vT0)
    a('s_branch L_joinA')
    a.label('L_fastA')
    m = vM
    inter(qk(0, 0) + qk(0, 'G'), vgr, per=1)
    inter(qk(0, 1) + qk(0, 2), late[:8], per=1)
    inter(qk(0, 3), maxtree_l([S+20, S+21, S+0], m) + maxtree_l([S+1, S+2, S+3, S+4, S+5, S+6], m, False), per=1)
    inter(qk(0, 4), maxtree_l([S+7, S+8, S+9, S+10], m, False), per=1)
    for l in late[8:11]: a(l)
    for l in maxtree_l([S+11, S+12], m, False): a(l)
    for l in late[11:13]: a(l)
    for l in maxtree_l([S+13, S+14, S+15], m, False): a(l)
    for l in late[13:]: a(l)
    for l in maxtree_l([S+16, S+17, S+18, S+19], m, False): a(l)
    a.label('L_joinA')
    stamp(fine)
    softmax_pv(0)
    stamp(fine)
    ep = []
    for t in range(8): ep += epi(t)
    ep += stage_reads()
    xb = []
    for t in range(8): xb += [vread(X[t+1], t, 4), vread(X[t+1]+2, t, 5)]
    def qb_wait(n):
        a(f's_waitcnt vmcnt({n+2})')
        if opt.get('otouch'):
            a(f's_and_b32 s{sT0}, s{sWV}, 3')
            a(f's_cmp_eq_u32 s{sT0}, 3')
        else:
            a(f's_cmp_eq_u32 s{sWV}, {RW}')
        a('s_cbranch_scc1 L_qbw')
        a(f's_waitcnt vmcnt({n})')
        a.label('L_qbw')
    if not merge:
        a('s_nop 0')
        for l in ep: a(l)
        stores(0)
        for l in xb: a(l)
        qb_wait(4)
        stamp()
        edge_test(1, 'L_fastB')
        for sl in ('G', 0, 1, 2, 3, 4):
            for l in qk(1, sl): a(l)
        edge_mask(1, vT0)
        a('s_branch L_joinB')
        a.label('L_fastB')
        for sl in ('G', 0, 1, 2):
            for l in qk(1, sl): a(l)
        inter(qk(1, 3), maxtree_l([S+20, S+21, S+0], m) + maxtree_l([S+1, S+2], m, False), per=1)
        inter(qk(1, 4), maxtree_l([S+3, S+4, S+5, S+6, S+7, S+8], m, False), per=1)
        a.nop(1)
        for l in maxtree_l([S+9, S+10, S+11, S+12], m, False): a(l)
        a.nop(1)
        for l in maxtree_l([S+13, S+14, S+15], m, False): a(l)
        a.nop(2)
        for l in maxtree_l([S+16, S+17, S+18, S+19], m, False): a(l)
    else:
        qb_wait(0)
        stamp()
        edge_test(1, 'L_fastB')
        for l in ep: a(l)
        stores(0)
        for sl in (0, 1, 2, 3, 4, 'G'):
            for l in qk(1, sl): a(l)
        for l in xb: a(l)
        edge_mask(1, vT0)
        a('s_branch L_joinB')
        a.label('L_fastB')
        ms = []
        for sl in (0, 1, 2, 3, 4, 'G'): ms += qk(1, sl)
        inter(ms, ep, per=3)
        for l in maxtree_l([S+x for x in range(15)], vT0): a(l)
        stores(0)
        for l in xb: a(l)
        a(f'v_max3_f32 {vr(vM)}, {vr(vT0)}, {vr(S+15)}, {vr(S+16)}')
        for l in maxtree_l([S+17, S+18, S+19, S+20, S+21], vM, False): a(l)
    a.label('L_joinB')
    a(f'v_add_u32 {vr(vOO)}, 0x1000, {vr(vOO)}')
    stamp()
    a(f's_cmp_eq_u32 s{sCMB}, 0')
    a('s_cbranch_scc1 L_nohand')
    hand_loads()
    a.label('L_nohand')
    softmax_pv(1)
    stamp(fine)
    a('s_nop 0')
    for t in range(8):
        for l in epi(t): a(l)
    for l in stage_reads(): a(l)
    stores(1)
    stamp()

    a(f's_cmp_eq_u32 s{sCMB}, 0')
    a('s_cbranch_scc1 L_fin')
    a('s_waitcnt vmcnt(4)')
    a(f's_mov_b32 s{sCNT}, 0')
    a(f's_mov_b32 s{sT2}, 0')
    a.label('L_chk')
    a(f's_mov_b32 s{sT3}, s{sT2}')
    for n in range(8):
        a(f'v_cmp_eq_u32 vcc, s{sN}, {vr(HB+8*n+3)}')
        a(f'v_cmp_eq_u32 s[60:61], s{sN}, {vr(HB+8*n+7)}')
        a('s_nop 0')
        a('s_and_b64 vcc, vcc, s[60:61]')
        a('s_cmp_eq_u64 vcc, exec')
        a(f's_cselect_b32 s{sT0}, {1 << n}, 0')
        a(f's_or_b32 s{sT3}, s{sT3}, s{sT0}')
    a(f's_add_u32 s{sCNT}, s{sCNT}, 1')
    a(f's_cmp_eq_u32 s{sT3}, 0xff')
    a('s_cbranch_scc1 L_ready')
    a(f's_cmp_ge_u32 s{sCNT}, 0x40000')
    a('s_cbranch_scc1 L_ready')
    a(f's_lshl_b32 s{sT0}, s{sH}, 3')
    a(f'v_mov_b32 {vr(KG+1)}, s{sT0}')
    a(f'global_load_dword {vr(KG+2)}, {vr(KG+1)}, s[16:17] offset:4 sc0 sc1')
    a('s_waitcnt vmcnt(0)')
    a(f'v_readfirstlane_b32 s{sT2}, {vr(KG+2)}')
    hand_loads()
    a('s_waitcnt vmcnt(0)')
    a('s_branch L_chk')
    a.label('L_ready')
    hog = [[HB+8*n, HB+8*n+1, HB+8*n+2, HB+8*n+4] for n in range(8)]
    hmg = [HB+8*n+5 for n in range(8)]
    combine(hog, hmg, X8)
    a(f'v_rcp_f32 {vr(X8)}, {vr(hmg[0]+1)}')
    a(f'v_lshrrev_b32 {vr(KG)}, 1, {vr(KG)}')
    for e in range(4):
        a(f'v_mul_f32 {vr(hog[0][e])}, {vr(hog[0][e])}, {vr(X8)}')
    a(f'v_cvt_pk_bf16_f32 {vr(X8+2)}, {vr(hog[0][0])}, {vr(hog[0][1])}')
    a(f'v_cvt_pk_bf16_f32 {vr(X8+3)}, {vr(hog[0][2])}, {vr(hog[0][3])}')
    a(f'buffer_store_dwordx2 {vr(X8+2,2)}, {vr(KG)}, {sr(sO,4)}, 0 offen {stpol}')
    a.label('L_fin')
    if stamps:
        stamp()
        a('s_waitcnt vmcnt(0)')
        stamp()
        if opt.get('clk'):
            a('s_memtime s[98:99]')
            a('s_waitcnt lgkmcnt(0)')
            a('s_sub_u32 s98, s98, s96')
            a(f's_add_u32 s{64+2*nst[0]}, s98, s64')
            nst[0] += 1
        a(f's_lshl_b32 s{sT0}, s2, 3')
        a(f's_add_u32 s{sT0}, s{sT0}, s{sWV}')
        a(f's_lshl_b32 s{sT0}, s{sT0}, 6')
        a(f's_add_u32 s{sT0}, s{sT0}, 0x100000')
        a(f's_add_u32 s{sW}, s18, s{sT0}')
        a(f's_addc_u32 s{sW+1}, s19, 0')
        a(f'v_mov_b32 v1, 0')
        a('s_mov_b64 exec, 1')
        for n in range(min(16, nst[0])):
            a(f'v_mov_b32 v2, s{64+2*n}')
            a(f'buffer_store_dword v2, v1, {sr(sW,4)}, 0 offen offset:{4*n}')
        if 'leak' in opt:
            k = int(opt['leak'])
            a(f's_sub_u32 s{sT0}, s{64+2*k}, s64')
            a(f's_lshl_b32 s{sT0}, s{sT0}, 2')
            if opt.get('leakcnt'):
                a(f's_mul_i32 s{sT0}, s{sCNT}, 500')
                a(f's_mul_i32 s{sT0}, s{sT0}, s{sCMB}')
            if 'leakw' in opt:
                a(f's_lshr_b32 s{sT1}, {opt["leakw"]}, s{sWV}')
                a(f's_bitcmp1_b32 s{sT1}, 0')
                a(f's_cselect_b32 s{sT0}, s{sT0}, 0')
            a(f"s_add_u32 s{sT0}, s{sT0}, {opt.get('spin', 5000)}")
            a.label('L_spin')
            a('s_memrealtime s[100:101]')
            a('s_waitcnt lgkmcnt(0)')
            a(f's_sub_u32 s{sT1}, s100, s64')
            a(f's_cmp_lt_u32 s{sT1}, s{sT0}')
            a('s_cbranch_scc1 L_spin')
    a.label('L_end')
    a('s_endpgm')
    if opt.get('cpf', True):
        a('.fill 4096, 4, 0xbf800000')

    check(a.lines)
    if stamps: print('stamps', nst[0])
    head = f'''; windowed + global-token attention, B=1 H=32 S=2048 D=128 bf16 (window 32, 2 global tokens)
; @launch grid=(256,1,1) block=(512,1,1) lds=163840
.amdgcn_target "amdgcn-amd-amdhsa--gfx950"
.text
.globl {NAME}
.p2align 8
.type {NAME},@function
{NAME}:
'''
    tail = f'''.section .rodata,"a"
.p2align 6
.amdhsa_kernel {NAME}
  .amdhsa_next_free_vgpr 256
  .amdhsa_next_free_sgpr {102 if stamps else 64}
  .amdhsa_accum_offset 256
  .amdhsa_group_segment_fixed_size 0
  .amdhsa_kernarg_size 64
  .amdhsa_user_sgpr_count 2
  .amdhsa_user_sgpr_kernarg_segment_ptr 1
  .amdhsa_system_sgpr_workgroup_id_x 1
.end_amdhsa_kernel
'''
    return head + a.text() + tail

if __name__ == '__main__':
    out = sys.argv[1]
    opt = {}
    for kv in sys.argv[2:]:
        k, v = kv.split('=', 1)
        opt[k] = {'True': True, 'False': False}.get(v, v.replace('+', ' '))
    open(out, 'w').write(gen(opt))
```

```python
import sys, math, struct
from asmlib import *

NAME = 'standalone__global_local_windowed_global_tokens__prompt_kernel'
def f2u(x): return struct.unpack('<I', struct.pack('<f', x))[0]

def gen(opt):
    a = Asm()
    NEG = 0xFF000000
    CSC = f2u(128 ** -0.5 * math.log2(math.e))
    KOFF, VOFF, SOFF = 0, 73728, 155648
    apos = int(opt.get('apos', 0))
    PART, STG = 0, 4096
    PARTML, LCNT, LNON = SOFF + 3072, SOFF + 3072 + 128, SOFF + 3072 + 132
    STGP = 272
    ldpol = opt.get('ldpol', '')
    qpol = opt.get('qpol', '')
    stpol = opt.get('stpol', 'sc0 sc1 nt')
    pk = opt.get('pk', True)
    N1 = int(opt.get('n1', 8))
    RW = int(opt.get('rw', 3))
    FW = 7
    SW = 5
    CW, CC = int(opt.get('cw', 1)), 3
    merge = opt.get('merge', True)
    sQ, sK, sV, sO, sW = 20, 24, 28, 32, 36
    sWV, sH, sC, sHO, sQ0B = 40, 43, 44, 45, 46
    sT0, sT1, sT2, sT3 = 47, 48, 49, 50
    sBK = 62
    HW = 4
    sCS = 52; sKG0 = 54; sQB = 51; sEX = 56; sCMB = 58; sCNT = 59; sN = 63; sTOFF = 41; sZERO = 3
    VA = 0
    vSW, vSR, vOO, vT0 = 8, 9, 10, 11
    X8 = 12
    KF = 16; KG = 112; QA, QB = 128, 144; VG = 160; O = 192; S = 224
    BLO, BHI = 248, 252
    kf = lambda W, ks: KF + 16 * W + 4 * ks
    X = [O + 4 * n for n in range(8)] + [X8]
    vLANE, vI, vKGp, vDK, vDV, vDQ, vAG, vNEG, vAK = O+16, O+17, O+18, O+19, O+20, O+21, O+22, O+23, O+24
    vAVG, t1, t2, t3 = O+28, O+29, O+30, O+31
    vDQk = VG + 7
    vFLAG = VG + 3
    vM, vT = S + 22, S + 23

    stamps = opt.get('stamps', False)
    fine = opt.get('fine', False)
    nst = [0]
    def stamp(on=True):
        if stamps and on:
            a(f's_memrealtime s[{64+2*nst[0]}:{65+2*nst[0]}]')
            if nst[0]: a('s_waitcnt lgkmcnt(0)')
            nst[0] += 1
    M16 = 'v_mfma_f32_16x16x32_bf16'
    def mfma(d, x, y, c):
        return f'{M16} {vr(d,4)}, {vr(x,4)}, {vr(y,4)}, {c if isinstance(c,str) else vr(c,4)}'
    def only(w, lab):
        a(f's_cmp_lg_u32 s{sWV}, {w}')
        a(f's_cbranch_scc1 {lab}')

    stamp()
    if opt.get('clk'): a('s_memtime s[96:97]')
    a('s_load_dwordx16 s[4:19], s[0:1], 0')
    a(f'v_readfirstlane_b32 s{sWV}, v0')
    a('s_cmp_ge_u32 s2, 256')
    a('s_cbranch_scc1 L_end')
    a(f'v_lshrrev_b32 {vr(t1)}, 4, v0')
    a(f'v_xor_b32 {vr(vDK)}, {vr(t1)}, v0')
    a(f'v_and_b32 {vr(vDK)}, 15, {vr(vDK)}')
    a(f'v_lshl_add_u32 {vr(vDK)}, {vr(t1)}, 4, {vr(vDK)}')
    a(f's_bfe_u32 s{sC}, s2, 0x30003')
    a(f's_lshl_b32 s{sQ0B}, s{sC}, 16')
    a(f'v_lshl_add_u32 {vr(vDK)}, {vr(vDK)}, 4, s{sQ0B}')
    a('s_and_b32 s41, s2, 7')
    a(f's_lshr_b32 s{sH}, s2, 6')
    a(f's_lshl2_add_u32 s{sH}, s41, s{sH}')
    a(f's_lshl_b32 s{sHO}, s{sH}, 19')
    a(f's_lshl_b32 m0, s{sWV}, 4')
    a(f's_mov_b32 s{sK+2}, 0x80000')
    a(f's_mov_b32 s{sK+3}, 0x20000')
    a(f's_movk_i32 s{sCNT}, 17')
    if opt.get('cpf', True):
        a(f's_getpc_b64 s[{sEX}:{sEX+1}]')
        a(f'v_lshlrev_b32 v1, 5, v0')
        a(f'global_load_dword {vr(X8)}, v1, s[{sEX}:{sEX+1}]')
    a(f's_cmp_ge_u32 s{sWV}, 256')
    a('s_cbranch_scc1 L_helper')
    a('s_waitcnt lgkmcnt(0)')
    stamp()
    a(f's_add_u32 s{sK}, s6, s{sHO}')
    a(f's_addc_u32 s{sK+1}, s7, 0')
    a.label('L_kloop')
    a(f'buffer_load_dwordx4 {vr(vDK)}, {sr(sK,4)}, 0 offen {ldpol} lds')
    a('s_add_u32 m0, m0, 0x1000')
    a(f'v_add_u32 {vr(vDK)}, 0x1000, {vr(vDK)}')
    a(f's_sub_u32 s{sCNT}, s{sCNT}, 1')
    a('s_cbranch_scc0 L_kloop')
    stamp(opt.get('postk', False))
    def common():
        a(f's_lshr_b32 s{sWV}, s{sWV}, 6')
        a(f'v_and_b32 {vr(vLANE)}, 63, v0')
        a(f'v_and_b32 {vr(vI)}, 15, v0')
        a(f'v_bfe_u32 {vr(vKGp)}, v0, 4, 2')
        a(f's_lshl_b32 s{sT1}, s{sWV}, 10')
        a(f's_add_u32 s{sT2}, s{sT1}, s{sQ0B}')
        for s_ in (sV, sQ):
            a(f's_mov_b32 s{s_+2}, 0x80000')
            a(f's_mov_b32 s{s_+3}, 0x20000')
        a(f's_mov_b32 s{sW+2}, 0x4000')
        a(f's_mov_b32 s{sW+3}, 0x20000')
        a(f's_and_b32 s{sBK}, s{sWV}, 3')
        a(f's_lshl_b32 s{sBK}, s{sBK}, 1')
        a(f's_cmp_lt_u32 s{sWV}, 4')
        a(f's_addc_u32 s{sBK}, s{sBK}, 0')
        a(f's_cmp_eq_u32 s{sC}, 0')
        a(f's_cselect_b32 s{sT3}, 0x40000000, 0')
        a(f's_lshl_b32 s{sT0}, s{sBK}, 13')
        a(f's_add_u32 s{sT0}, s{sT0}, s{sQ0B}')
        a(f'v_lshlrev_b32 {vr(vDQ)}, 4, {vr(vKGp)}')
        a(f'v_lshl_add_u32 {vr(vDQ)}, {vr(vI)}, 8, {vr(vDQ)}')
        a(f'v_add_u32 {vr(vDQ)}, s{sT0}, {vr(vDQ)}')
        a(f'v_lshlrev_b32 {vr(t3)}, 4, {vr(vLANE)}')
        a(f's_lshl_b32 s41, s{sH}, 14')
        a(f's_lshl_b32 s42, s{sC}, 11')
    common()
    a(f's_mov_b32 s{sN}, 0')
    def srds():
        a(f's_add_u32 s{sV}, s8, s{sHO}')
        a(f's_addc_u32 s{sV+1}, s9, 0')
        a(f's_add_u32 s{sQ}, s4, s{sHO}')
        a(f's_addc_u32 s{sQ+1}, s5, 0')
        a(f's_add_u32 s{sW}, s18, s41')
        a(f's_addc_u32 s{sW+1}, s19, 0')
    srds()
    a('s_branch L_v1')
    a.label('L_helper')
    a('s_setprio 3')
    a('s_memrealtime s[60:61]')
    common()
    a(f's_sub_u32 s{sT0}, s{sT3}, 0x2000')
    a(f'v_add_u32 {vr(t1)}, s{sT0}, {vr(vDQ)}')
    a(f'v_add_u32 {vr(t2)}, 0x1000, {vr(t1)}')
    a(f's_mov_b32 m0, {SOFF}')
    a('s_waitcnt lgkmcnt(0)')
    if stamps:
        nst[0] -= 1
        stamp()
    a(f's_add_u32 s{sK}, s6, s{sHO}')
    a(f's_addc_u32 s{sK+1}, s7, 0')
    srds()
    if stamps and opt.get('postk'):
        nst[0] -= 1
        stamp()
    a(f's_or_b32 s{sN}, s60, 1')
    only(FW, 'L_noclear')
    a(f's_lshl_b32 s{sT0}, s{sH}, 3')
    a(f'v_mov_b32 {vr(S+4)}, s{sT0}')
    a(f'v_mov_b32 {vr(S+5)}, s{sN}')
    a(f'v_mov_b32 {vr(S+6)}, {LCNT}')
    a(f'v_mov_b32 {vr(S+7)}, 0')
    a('s_mov_b64 exec, 1')
    a(f's_cmp_lg_u32 s{sC}, {CC}')
    a('s_cbranch_scc1 L_nopub')
    a(f'global_store_dword {vr(S+4)}, {vr(S+5)}, s[16:17] sc0 sc1')
    a.label('L_nopub')
    a(f'ds_write_b32 {vr(S+6)}, {vr(S+7)}')
    a('s_mov_b64 exec, -1')
    if opt.get('wstouch'):
        pol = {'ld': '', 'ldsc': 'sc0 sc1'}.get(opt['wstouch'])
        if pol is not None:
            a(f'buffer_load_dwordx4 {vr(S+8,4)}, {vr(t3)}, {sr(sW,4)}, s42 offen {pol}')
            a(f'buffer_load_dwordx4 {vr(S+12,4)}, {vr(t3)}, {sr(sW,4)}, s42 offen offset:1024 {pol}')
        else:
            for n in range(4): a(f'v_mov_b32 {vr(S+8+n)}, 0')
            a(f'buffer_store_dwordx4 {vr(S+8,4)}, {vr(t3)}, {sr(sW,4)}, s42 offen sc0 sc1')
            a(f'buffer_store_dwordx4 {vr(S+8,4)}, {vr(t3)}, {sr(sW,4)}, s42 offen offset:1024 sc0 sc1')
    a.label('L_noclear')
    only(SW, 'L_nosmall')
    for n, srd in enumerate((sK, sQ, sV)):
        if n:
            a(f's_mov_b32 m0, {SOFF + 1024*n}')
            a('s_nop 0')
        a(f'buffer_load_dwordx4 {vr(t3)}, {sr(srd,4)}, 0 offen lds')
    a.label('L_nosmall')
    only(HW, 'L_nohalo')
    for T in range(2):
        for ks in range(4):
            a(f'buffer_load_dwordx4 {vr(kf(T,ks),4)}, {vr(t1+T)}, {sr(sK,4)}, 0 offen offset:{64*ks}')
    a.label('L_nohalo')
    a('s_setprio 0')
    a('s_branch L_nov1')
    a.label('L_v1')
    def vpiece(i):
        if i:
            a('s_add_u32 m0, m0, 0x1000')
            a(f'v_add_u32 {vr(vDV)}, 0x1000, {vr(vDV)}')
        if i < 2:
            a(f'v_add_u32 {vr(t1)}, s{sT3}, {vr(vDV)}')
            a(f'buffer_load_dwordx4 {vr(t1)}, {sr(sV,4)}, 0 offen {ldpol} lds')
        else:
            a(f'buffer_load_dwordx4 {vr(vDV)}, {sr(sV,4)}, 0 offen {ldpol} lds')
    a(f's_and_b32 s{sT0}, s{sWV}, 1')
    a(f's_lshl_b32 s{sT0}, s{sT0}, 2')
    a(f'v_add_lshl_u32 {vr(vDV)}, s{sT0}, {vr(vKGp)}, 1')
    a(f'v_xor_b32 {vr(vDV)}, {vr(vDV)}, {vr(vI)}')
    a(f'v_lshlrev_b32 {vr(vDV)}, 4, {vr(vDV)}')
    a(f'v_lshl_add_u32 {vr(vDV)}, {vr(vKGp)}, 8, {vr(vDV)}')
    a(f's_sub_u32 s{sT2}, s{sT2}, 0x2000')
    a(f'v_add_u32 {vr(vDV)}, s{sT2}, {vr(vDV)}')
    a(f's_add_u32 m0, s{sT1}, {VOFF}')
    for i in range(N1): vpiece(i)
    a.label('L_nov1')
    stamp()

    a(f's_add_u32 s{sO}, s14, s{sHO}')
    a(f's_addc_u32 s{sO+1}, s15, 0')
    a(f's_mov_b32 s{sO+2}, 0x80000')
    a(f's_mov_b32 s{sO+3}, 0x20000')
    a(f's_movk_i32 s{sTOFF}, 0x1000')
    a(f's_mov_b32 s{sZERO}, 0')
    a(f's_mov_b32 s{sCS}, 0x{CSC:08x}')
    a(f's_mov_b32 s{sCS+1}, 0x{CSC:08x}')
    a(f'v_mov_b32 {vr(vNEG)}, 0x{NEG:08x}')
    a(f'v_lshlrev_b32 {vr(t2)}, 2, {vr(vKGp)}')
    a(f'v_cmp_eq_u32 {sr(sKG0,2)}, 0, {vr(vKGp)}')
    for r in range(4):
        a(f'v_add_u32 {vr(t1)}, {r}, {vr(t2)}')
        a(f'v_cmp_ge_u32 vcc, {vr(t1)}, {vr(vI)}')
        a(f'v_cmp_le_u32 s[60:61], {vr(t1)}, {vr(vI)}')
        a('s_nop 0')
        a(f'v_cndmask_b32 {vr(BLO+r)}, {vr(vNEG)}, 0, vcc')
        a(f'v_cndmask_b32 {vr(BHI+r)}, {vr(vNEG)}, 0, s[60:61]')
    a(f's_lshl_b32 s{sT0}, s{sBK}, 13')
    a(f'v_xor_b32 {vr(t1)}, {vr(vKGp)}, {vr(vI)}')
    a(f'v_lshlrev_b32 {vr(t1)}, 4, {vr(t1)}')
    a(f'v_lshl_add_u32 {vr(t1)}, {vr(vI)}, 8, {vr(t1)}')
    a(f'v_add_u32 {vr(vAK)}, s{sT0}, {vr(t1)}')
    for ks in range(1, 4):
        a(f'v_xor_b32 {vr(vAK+ks)}, {64*ks}, {vr(vAK)}')
    a(f'v_and_b32 {vr(t1)}, 1, {vr(vI)}')
    a(f'v_lshlrev_b32 {vr(vNEG)}, 3, {vr(t1)}')
    a(f'v_lshlrev_b32 {vr(t1)}, 8, {vr(t1)}')
    a(f'v_lshl_add_u32 {vr(t1)}, {vr(vKGp)}, 4, {vr(t1)}')
    a(f'v_add_u32 {vr(vAG)}, {SOFF}, {vr(t1)}')
    a(f'v_bfe_u32 {vr(t1)}, {vr(vLANE)}, 2, 2')
    a(f'v_and_b32 {vr(t2)}, 3, {vr(vLANE)}')
    a(f'v_lshlrev_b32 {vr(t2)}, 3, {vr(t2)}')
    a(f'v_lshl_add_u32 {vr(t1)}, {vr(t1)}, 8, {vr(t2)}')
    a(f'v_add_u32 {vr(vAVG)}, {SOFF+2048}, {vr(t1)}')
    a(f'v_lshrrev_b32 {vr(t1)}, 2, {vr(vLANE)}')
    a(f'v_and_b32 {vr(vT0)}, 7, {vr(t1)}')
    a(f'v_lshl_add_u32 {vr(t2)}, {vr(vT0)}, 5, {vr(t2)}')
    a(f'v_lshl_add_u32 {vr(t2)}, {vr(t1)}, 8, {vr(t2)}')
    a(f's_add_u32 s{sT1}, s{sT0}, {VOFF}')
    a(f'v_add_u32 {vr(VA)}, s{sT1}, {vr(t2)}')
    for t in range(1, 8):
        a(f'v_xor_b32 {vr(VA+t)}, {32*t}, {vr(VA)}')
    a(f's_mul_i32 s{sT1}, s{sWV}, {32*STGP}')
    a(f's_add_u32 s{sT1}, s{sT1}, {STG}')
    a(f'v_mul_u32_u24 {vr(t1)}, {STGP}, {vr(vI)}')
    a(f'v_lshl_add_u32 {vr(t1)}, {vr(vKGp)}, 3, {vr(t1)}')
    a(f'v_add_u32 {vr(vSW)}, s{sT1}, {vr(t1)}')
    a(f'v_mul_u32_u24 {vr(t1)}, {STGP}, {vr(vKGp)}')
    a(f'v_lshl_add_u32 {vr(t1)}, {vr(vI)}, 4, {vr(t1)}')
    a(f'v_add_u32 {vr(vSR)}, s{sT1}, {vr(t1)}')
    a(f's_add_u32 s{sT0}, s{sT0}, s{sQ0B}')
    a(f'v_add_u32 {vr(vOO)}, s{sT0}, {vr(t3)}')
    a(f's_lshr_b32 s{sQB}, s{sT0}, 8')
    a(f's_cmp_eq_u32 s{sQB}, 0')
    a(f's_cselect_b32 s{sEX}, 0, -1')
    a(f's_mov_b32 s{sEX+1}, -1')
    a(f's_cmp_eq_u32 s{sQB}, {256*CC+32*(2*CW+1)}')
    a(f's_cselect_b32 s{sCMB}, 1, 0')
    a(f's_lshl_b32 s{sT0}, s{sWV}, 4')
    a(f's_add_u32 s{sT0}, s{sT0}, {PARTML}')
    a(f'v_add_u32 {vr(vNEG)}, s{sT0}, {vr(vNEG)}')

    a(f's_waitcnt vmcnt({N1}) lgkmcnt(0)')
    a(f's_cmp_lt_u32 s{sWV}, 4')
    a('s_cbranch_scc1 L_kw')
    a(f's_cmp_eq_u32 s{sWV}, {FW}')
    a('s_cbranch_scc1 L_kw')
    a('s_waitcnt vmcnt(0)')
    a.label('L_kw')
    stamp(opt.get('prek', False))
    a('s_barrier')
    stamp()
    a(f's_cmp_ge_u32 s{sWV}, 4')
    a('s_cbranch_scc1 L_nov2')
    for i in range(N1, 20): vpiece(i)
    a.label('L_nov2')
    stamp(fine)
    QG = O
    for W in (2, 3, 4, 5):
        for ks in range(4):
            a(f'ds_read_b128 {vr(kf(W,ks),4)}, {vr(vAK+ks)} offset:{4096*(W-2)}')
    for ks in range(4):
        a(f'ds_read_b128 {vr(KG+4*ks,4)}, {vr(vAG)} offset:{64*ks}')
    for t in range(8):
        a(f'ds_read_b64_tr_b16 {vr(VG+4*t+2,2)}, {vr(vAVG)} offset:{32*t}')
    a(f's_cmp_eq_u32 s{sWV}, {HW}')
    a('s_cbranch_scc1 L_k01done')
    for ks in range(4):
        a(f'v_subrev_u32 {vr(vAK+ks)}, 0x2000, {vr(vAK+ks)}')
    for W in (0, 1):
        for ks in range(4):
            a(f'ds_read_b128 {vr(kf(W,ks),4)}, {vr(vAK+ks)} offset:{4096*W}')
    a.label('L_k01done')
    def issue_qa():
        if opt.get('qprio'): a('s_setprio 3')
        for ks in range(4):
            a(f'buffer_load_dwordx4 {vr(QA+4*ks,4)}, {vr(vDQ)}, {sr(sQ,4)}, 0 offen offset:{64*ks} {qpol}')
        if opt.get('qprio'): a('s_setprio 0')

    def xred(m, t, op='v_max_f32'):
        a(f'v_mov_b32 {vr(t)}, {vr(m)}')
        a.nop(2)
        a(f'v_permlane16_swap_b32 {vr(m)}, {vr(t)}')
        a(f'{op} {vr(m)}, {vr(m)}, {vr(t)}')
        a(f'v_mov_b32 {vr(t)}, {vr(m)}')
        a.nop(2)
        a(f'v_permlane32_swap_b32 {vr(m)}, {vr(t)}')
        a(f'{op} {vr(m)}, {vr(m)}, {vr(t)}')
    def maxtree_l(vals, m, first=True):
        out = []; rest = list(vals)
        if first:
            out.append(f'v_max3_f32 {vr(m)}, {vr(rest[0])}, {vr(rest[1])}, {vr(rest[2])}'); rest = rest[3:]
        while len(rest) >= 2:
            out.append(f'v_max3_f32 {vr(m)}, {vr(m)}, {vr(rest[0])}, {vr(rest[1])}'); rest = rest[2:]
        if rest:
            out.append(f'v_max_f32 {vr(m)}, {vr(m)}, {vr(rest[0])}')
        return out
    def fma_l(vals, mc):
        if pk:
            return [f'v_pk_fma_f32 {vr(vals[n],2)}, {vr(vals[n],2)}, {sr(sCS,2)}, {vr(mc,2)} op_sel_hi:[1,1,0] neg_lo:[0,0,1] neg_hi:[0,0,1]' for n in range(0, len(vals), 2)]
        return [f'v_fma_f32 {vr(v)}, {vr(v)}, s{sCS}, -{vr(mc)}' for v in vals]
    exp_l = lambda vals: [f'v_exp_f32 {vr(v)}, {vr(v)}' for v in vals]
    cvt_l = lambda dst, src, n: [f'v_cvt_pk_bf16_f32 {vr(dst+k)}, {vr(src+2*k)}, {vr(src+2*k+1)}' for k in range(n)]

    def vread(dst, t, W):
        return f'ds_read_b64_tr_b16 {vr(dst,2)}, {vr(VA+t)} offset:{4096*W}'
    a(f's_cmp_lt_u32 s{sWV}, 4')
    a('s_cbranch_scc1 L_gk')
    only(FW, 'L_notag')
    a('s_setprio 3')
    a(f's_lshl_b32 s{sT0}, s{sH}, 3')
    a(f'v_mov_b32 {vr(S+4)}, s{sT0}')
    a(f'v_mov_b32 {vr(S+5)}, s{sN}')
    a(f'v_mov_b32 {vr(S+6)}, {LCNT}')
    a(f'global_load_dword {vr(S+7)}, {vr(S+4)}, s[16:17]')
    a('s_setprio 0')
    issue_qa()
    a('s_waitcnt vmcnt(4)')
    a(f's_cmp_eq_u32 s{sC}, {CC}')
    a('s_cselect_b64 vcc, -1, 0')
    a(f'v_cndmask_b32 {vr(S+7)}, {vr(S+7)}, {vr(S+5)}, vcc')
    a('s_mov_b64 exec, 1')
    a(f'ds_write_b32 {vr(S+6)}, {vr(S+7)} offset:4')
    a('s_mov_b64 exec, -1')
    a('s_branch L_tagdone')
    a.label('L_notag')
    issue_qa()
    a.label('L_tagdone')
    a('s_waitcnt lgkmcnt(0)')
    a(f'v_add_u32 {vr(vDQk)}, 0x1000, {vr(vDQ)}')
    stamp(fine)
    a('s_barrier')
    for t in range(8):
        a(vread(X[t+1], t, 0)); a(vread(X[t+1]+2, t, 1))
    a('s_branch L_gdone')
    a.label('L_gk')
    for ks in range(4):
        a(f'ds_read_b128 {vr(QG+4*ks,4)}, {vr(vAG)} offset:{1024+64*ks}')
    issue_qa()
    a('s_waitcnt lgkmcnt(0)')
    for T in range(4):
        for ks in range(4):
            a(mfma(S+4*T, kf(T,ks), QG+4*ks, '0' if ks == 0 else S+4*T))
    a(f'v_add_u32 {vr(vDQk)}, 0x1000, {vr(vDQ)}')
    a.nop(7)
    for l in maxtree_l([S+x for x in range(16)], vM): a(l)
    xred(vM, vT)
    a(f'v_mul_f32 {vr(vM)}, s{sCS}, {vr(vM)}')
    for l in fma_l([S+x for x in range(16)], vM): a(l)
    for l in exp_l([S+x for x in range(16)]): a(l)
    a.nop(1)
    a(f'v_add_f32 {vr(vT)}, {vr(S)}, {vr(S+1)}')
    for x in range(2, 16):
        a(f'v_add_f32 {vr(vT)}, {vr(vT)}, {vr(S+x)}')
    for l in cvt_l(S, S, 8): a(l)
    xred(vT, vT0, 'v_add_f32')
    a(f'ds_write_b64 {vr(vNEG)}, {vr(vM,2)}')
    a(f'v_mbcnt_lo_u32_b32 {vr(vT0)}, -1, 0')
    a(f's_lshl_b32 s{sT0}, s{sWV}, 10')
    a(f'v_lshl_add_u32 {vr(vT0)}, {vr(vT0)}, 3, s{sT0}')
    if stamps and fine:
        nst[0] -= 1
        stamp()
    a('s_waitcnt vmcnt(4) lgkmcnt(0)')
    a('s_barrier')
    gb = [QB + 4*n for n in range(4)] + [S + 8 + 4*n for n in range(4)]
    for t in range(8):
        a(vread(gb[t], t, 2)); a(vread(gb[t]+2, t, 3))
    for t in range(8):
        a('s_waitcnt lgkmcnt(14)')
        a(mfma(gb[t], S+4, gb[t], '0'))
        a(vread(X[t+1], t, 0)); a(vread(X[t+1]+2, t, 1))
    for t in range(8):
        a(f's_waitcnt lgkmcnt({14-2*t})')
        a(mfma(gb[t], S, X[t+1], gb[t]))
    a('s_mov_b64 exec, 1')
    a(f'v_mov_b32 {vr(S)}, {LCNT}')
    a(f'v_mov_b32 {vr(S+1)}, 1')
    a('s_mov_b64 exec, 0xffff')
    for t in range(8):
        a(f'ds_write_b64 {vr(vT0)}, {vr(gb[t],2)} offset:{PART+128*t}')
    a('s_mov_b64 exec, 1')
    a(f'ds_add_u32 {vr(S)}, {vr(S+1)}')
    a('s_mov_b64 exec, -1')
    a.label('L_gdone')
    stamp()

    emit = lambda ls: [a(l) for l in ls]
    def combine(og, mg, tm):
        NP = len(og)
        emit(maxtree_l([mg[n] for n in range(NP)], tm))
        for n in range(NP):
            a(f'v_sub_f32 {vr(mg[n])}, {vr(mg[n])}, {vr(tm)}')
        for n in range(NP):
            a(f'v_exp_f32 {vr(mg[n])}, {vr(mg[n])}')
        a.nop(1)
        for e in range(4):
            a(f'v_mul_f32 {vr(og[0][e])}, {vr(og[0][e])}, {vr(mg[0])}')
        a(f'v_mul_f32 {vr(mg[0]+1)}, {vr(mg[0]+1)}, {vr(mg[0])}')
        for n in range(1, NP):
            for e in range(4):
                a(f'v_fmac_f32 {vr(og[0][e])}, {vr(og[n][e])}, {vr(mg[n])}')
            a(f'v_fmac_f32 {vr(mg[0]+1)}, {vr(mg[n]+1)}, {vr(mg[n])}')

    def issue_qb():
        for ks in range(4):
            a(f'buffer_load_dwordx4 {vr(QB+4*ks,4)}, {vr(vDQk)}, {sr(sQ,4)}, 0 offen offset:{64*ks} {qpol}')
        a(f'v_mov_b32 {vr(vDQk)}, 0')
    issue_qb()
    if opt.get('otouch'):
        only(FW, 'L_nootouch')
        a(f's_mov_b32 m0, {PARTML+256}')
        a('s_mov_b64 exec, 1')
        a(f'buffer_load_dword {vr(vOO)}, {sr(sO,4)}, 0 offen lds')
        a(f'buffer_load_dword {vr(vOO)}, {sr(sO,4)}, 0 offen offset:512 lds')
        a('s_mov_b64 exec, -1')
        a('s_waitcnt vmcnt(6)')
        a('s_branch L_tileA')
        a.label('L_nootouch')
    a(f's_cmp_eq_u32 s{sWV}, {RW}')
    a('s_cbranch_scc1 L_reduce')
    a(f's_cmp_eq_u32 s{sCMB}, 0')
    a('s_cbranch_scc1 L_noflag')
    a(f'v_mov_b32 {vr(vT0)}, {LNON}')
    a(f'ds_read_b32 {vr(vT0)}, {vr(vT0)}')
    a('s_waitcnt lgkmcnt(0)')
    a(f'v_readfirstlane_b32 s{sN}, {vr(vT0)}')
    a.label('L_noflag')
    a('s_waitcnt vmcnt(4)')
    a('s_branch L_tileA')
    a.label('L_reduce')
    R0 = S
    a(f'v_mbcnt_lo_u32_b32 {vr(R0)}, -1, 0')
    a(f'v_mbcnt_hi_u32_b32 {vr(R0)}, -1, {vr(R0)}')
    a(f'v_lshrrev_b32 {vr(R0+1)}, 5, {vr(R0)}')
    a(f'v_and_b32 {vr(R0+3)}, 31, {vr(R0)}')
    a(f'v_lshlrev_b32 {vr(R0+3)}, 5, {vr(R0+3)}')
    a(f'v_lshl_add_u32 {vr(R0+3)}, {vr(R0+1)}, 2, {vr(R0+3)}')
    a(f'v_lshlrev_b32 {vr(R0+1)}, 3, {vr(R0+1)}')
    a(f'v_add_u32 {vr(R0+1)}, {PARTML}, {vr(R0+1)}')
    a(f'v_lshlrev_b32 {vr(R0)}, 4, {vr(R0)}')
    a(f'v_mov_b32 {vr(R0+2)}, {LCNT}')
    a(f's_mov_b32 s{sCNT}, 0')
    a.label('L_lspin')
    a(f'ds_read_b64 {vr(S+4,2)}, {vr(R0+2)}')
    a(f's_add_u32 s{sCNT}, s{sCNT}, 1')
    a('s_waitcnt lgkmcnt(0)')
    a(f'v_readfirstlane_b32 s{sT0}, {vr(S+4)}')
    a(f'v_readfirstlane_b32 s{sN}, {vr(S+5)}')
    a(f's_cmp_ge_u32 s{sCNT}, 0x100000')
    a('s_cbranch_scc1 L_lok')
    a(f's_cmp_lt_u32 s{sT0}, 4')
    a('s_cbranch_scc1 L_lspin')
    a.label('L_lok')
    mg = [S+4, S+6, O, O+2]
    G0 = S + 8
    og = [[G0+4*n+e for e in range(4)] for n in range(4)]
    for n in range(4):
        a(f'ds_read_b64 {vr(mg[n],2)}, {vr(R0+1)} offset:{16*n}')
    for n in range(4):
        if n: a(f'v_add_u32 {vr(R0+3)}, 1024, {vr(R0+3)}')
        a(f'ds_read2_b32 {vr(G0+4*n,2)}, {vr(R0+3)} offset0:0 offset1:2')
        a(f'ds_read2_b32 {vr(G0+4*n+2,2)}, {vr(R0+3)} offset0:4 offset1:6')
    a('s_waitcnt lgkmcnt(0)')
    combine(og, mg, R0+1)
    a(f'v_mov_b32 {vr(G0+4)}, {vr(G0+3)}')
    a(f'v_mov_b32 {vr(G0+5)}, {vr(R0+1)}')
    a(f'v_mov_b32 {vr(G0+6)}, {vr(mg[0]+1)}')
    a(f'v_mov_b32 {vr(G0+7)}, s{sN}')
    a(f'v_mov_b32 {vr(G0+3)}, s{sN}')
    a(f'buffer_store_dwordx4 {vr(G0+4,4)}, {vr(R0)}, {sr(sW,4)}, s42 offen offset:1024 sc0 sc1')
    a(f'buffer_store_dwordx4 {vr(G0,4)}, {vr(R0)}, {sr(sW,4)}, s42 offen sc0 sc1')
    a(f's_cmp_lg_u32 s{sN}, 0')
    a('s_cbranch_scc1 L_tagged')
    a('s_waitcnt vmcnt(0)')
    a(f's_lshl_b32 s{sT0}, s{sH}, 3')
    a(f's_lshl_b32 s{sT1}, 1, s{sC}')
    a(f'v_mov_b32 {vr(R0)}, s{sT0}')
    a(f'v_mov_b32 {vr(R0+1)}, s{sT1}')
    a('s_mov_b64 exec, 1')
    a(f'global_atomic_or {vr(R0)}, {vr(R0+1)}, s[16:17] offset:4 sc1')
    a('s_mov_b64 exec, -1')
    a.label('L_tagged')
    a('s_waitcnt vmcnt(6)')
    a.label('L_tileA')
    stamp()

    def inter(ms, vs, per=2):
        vs = list(vs)
        for m in ms:
            a(m)
            for _ in range(per):
                if vs: a(vs.pop(0))
        for v in vs: a(v)

    HB = kf(2, 0)
    def hand_loads():
        a(f'v_mbcnt_lo_u32_b32 {vr(KG)}, -1, 0')
        a(f'v_mbcnt_hi_u32_b32 {vr(KG)}, -1, {vr(KG)}')
        a(f'v_lshlrev_b32 {vr(KG)}, 4, {vr(KG)}')
        for n in range(8):
            a(f's_movk_i32 s{sT0}, {2048*n}')
            a(f'buffer_load_dwordx4 {vr(HB+8*n,4)}, {vr(KG)}, {sr(sW,4)}, s{sT0} offen sc0 sc1')
            a(f'buffer_load_dwordx4 {vr(HB+8*n+4,4)}, {vr(KG)}, {sr(sW,4)}, s{sT0} offen offset:1024 sc0 sc1')

    buf = [kf(0, n) for n in range(4)] + [QA + 4*n for n in range(4)]
    SLOTW = {0: [0, 1, 2, 3, 4], 1: [4, 5, 2, 3, 1]}
    def qk(tau, sl):
        Q = QA if tau == 0 else QB
        if sl == 'G':
            return [mfma(S+20, KG+4*ks, Q+4*ks, '0' if ks == 0 else S+20) for ks in range(4)]
        W = SLOTW[tau][sl]
        c0 = BLO if W == tau else BHI if W == tau + 4 else '0'
        return [mfma(S+4*sl, kf(W,ks), Q+4*ks, c0 if ks == 0 else S+4*sl) for ks in range(4)]
    def edge_test(tau, lab):
        a(f's_sub_u32 s{sT0}, s{sQB}, {48 - 16*tau}')
        a(f's_cmp_lt_u32 s{sT0}, 1968')
        a(f's_cbranch_scc1 {lab}')
    def edge_mask(tau, tr):
        a(f'v_mbcnt_lo_u32_b32 {vr(tr)}, -1, 0')
        a(f'v_mbcnt_hi_u32_b32 {vr(tr)}, -1, {vr(tr)}')
        a(f'v_lshrrev_b32 {vr(tr)}, 4, {vr(tr)}')
        a(f's_sub_u32 s{sT0}, s{sQB}, 34')
        a(f's_movk_i32 s{sT1}, 2046')
        a(f'v_lshl_add_u32 {vr(tr)}, {vr(tr)}, 2, s{sT0}')
        a(f'v_mov_b32 {vr(vM)}, 0x{NEG:08x}')
        a('s_nop 3')
        for sl in range(5):
            for r in range(4):
                a(f'v_add_u32 {vr(vT)}, {16*SLOTW[tau][sl]+r}, {vr(tr)}')
                a(f'v_cmp_gt_u32 vcc, s{sT1}, {vr(vT)}')
                a('s_nop 1')
                a(f'v_cndmask_b32 {vr(S+4*sl+r)}, {vr(vM)}, {vr(S+4*sl+r)}, vcc')
        for l in maxtree_l([S+x for x in range(22)], vM): a(l)
    def epi(t, tau=0):
        l = [f'v_mul_f32 {vr(O+4*t+e)}, {vr(O+4*t+e)}, {vr(vT0)}' for e in range(4)]
        l += [f'v_cvt_pk_bf16_f32 {vr(O+4*t)}, {vr(O+4*t)}, {vr(O+4*t+1)}',
              f'v_cvt_pk_bf16_f32 {vr(O+4*t+1)}, {vr(O+4*t+2)}, {vr(O+4*t+3)}',
              f'ds_write_b64 {vr(vSW)}, {vr(O+4*t,2)} offset:{32*t + 16*STGP*tau}']
        return l
    def stage_reads(tau=0, R=O):
        return [f'ds_read_b128 {vr(R+4*j,4)}, {vr(vSR)} offset:{4*STGP*j + 16*STGP*tau}' for j in range(4)]
    def stores(tau, R=O, extra=0):
        for j in range(4):
            a(f's_waitcnt lgkmcnt({3-j+extra})')
            if tau == 0 and j == 0: a(f's_mov_b64 exec, {sr(sEX,2)}')
            a(f'buffer_store_dwordx4 {vr(R+4*j,4)}, {vr(vOO)}, {sr(sO,4)}, s{sTOFF if tau else sZERO} offen offset:{1024*j} {stpol}')
            if tau == 0 and j == 0: a('s_mov_b64 exec, -1')
    RA = kf(1, 0)
    def late_a():
        for l in stage_reads(0, RA): a(l)
        stores(0, RA)
    def softmax_pv(tau):
        m = vM
        xred(m, vT)
        a(f'v_mul_f32 {vr(m)}, s{sCS}, {vr(m)}')
        set0 = [S+x for x in range(8)]; set1 = [S+8+x for x in range(8)]; set2 = [S+16+x for x in range(6)]
        for l in fma_l(set0, m): a(l)
        f2 = fma_l(set2, m); f1 = fma_l(set1, m)
        for l in exp_l(set0): a(l)
        a(f2[0])
        for l in cvt_l(S, S, 4): a(l)
        a(f2[1])
        a('s_waitcnt lgkmcnt(0)' if tau == 1 else 's_waitcnt lgkmcnt(8)')
        if tau == 1 and apos == 1: late_a()
        ONES, LACC = S+4, S+20
        v2 = f2[2:] + exp_l(set2) + [f'v_mov_b32 {vr(ONES+n)}, 0x3f803f80' for n in range(4)] + cvt_l(S+16, S+16, 3) \
             + [f'v_mov_b32 {vr(S+19)}, 0', f'v_cndmask_b32 {vr(S+18)}, 0, {vr(S+18)}, {sr(sKG0,2)}']
        inter([mfma(X[t], X[t+1], S, '0') for t in range(8)], v2 + f1[:2])
        v1 = f1[2:] + exp_l(set1) + [f'v_mov_b32 {vr(vT0)}, 0'] + cvt_l(S+8, S+8, 4)
        inter([mfma(O+4*t, VG+4*t, S+16, O+4*t) for t in range(8)], v1)
        a(mfma(LACC, ONES, S, '0'))
        a(mfma(LACC, ONES, S+16, LACC))
        a(mfma(LACC, ONES, S+8, LACC))
        if tau == 0:
            a('s_waitcnt lgkmcnt(0)')
        for t in range(8):
            a(mfma(O+4*t, buf[t], S+8, O+4*t))
            if tau == 0: a(vread(VG+4*t, t, 1))
        a(f'v_rcp_f32 {vr(vT0)}, {vr(LACC)}')

    late = []
    for t in range(8):
        late += [vread(buf[t], t, 2), vread(buf[t]+2, t, 3)]
    vgr = [vread(VG+4*t, t, 4) for t in range(8)]
    edge_test(0, 'L_fastA')
    for l in vgr: a(l)
    for sl in ('G', 0, 1, 2, 3, 4):
        for l in qk(0, sl): a(l)
    for l in late: a(l)
    edge_mask(0, vT0)
    a('s_branch L_joinA')
    a.label('L_fastA')
    m = vM
    inter(qk(0, 0) + qk(0, 'G'), vgr, per=1)
    inter(qk(0, 1) + qk(0, 2), late[:8], per=1)
    inter(qk(0, 3), maxtree_l([S+20, S+21, S+0], m) + maxtree_l([S+1, S+2, S+3, S+4, S+5, S+6], m, False), per=1)
    inter(qk(0, 4), maxtree_l([S+7, S+8, S+9, S+10], m, False), per=1)
    for l in late[8:11]: a(l)
    for l in maxtree_l([S+11, S+12], m, False): a(l)
    for l in late[11:13]: a(l)
    for l in maxtree_l([S+13, S+14, S+15], m, False): a(l)
    for l in late[13:]: a(l)
    for l in maxtree_l([S+16, S+17, S+18, S+19], m, False): a(l)
    a.label('L_joinA')
    stamp(fine)
    softmax_pv(0)
    stamp(fine)
    ep = []
    for t in range(8): ep += epi(t)
    if apos == 0: ep += stage_reads()
    xb = []
    for t in range(8): xb += [vread(X[t+1], t, 4), vread(X[t+1]+2, t, 5)]
    def qb_wait(n):
        a(f's_waitcnt vmcnt({n+2})')
        if opt.get('otouch'):
            a(f's_and_b32 s{sT0}, s{sWV}, 3')
            a(f's_cmp_eq_u32 s{sT0}, 3')
        else:
            a(f's_cmp_eq_u32 s{sWV}, {RW}')
        a('s_cbranch_scc1 L_qbw')
        a(f's_waitcnt vmcnt({n})')
        a.label('L_qbw')
    if not merge:
        a('s_nop 0')
        for l in ep: a(l)
        stores(0)
        for l in xb: a(l)
        qb_wait(4)
        stamp()
        edge_test(1, 'L_fastB')
        for sl in ('G', 0, 1, 2, 3, 4):
            for l in qk(1, sl): a(l)
        edge_mask(1, vT0)
        a('s_branch L_joinB')
        a.label('L_fastB')
        for sl in ('G', 0, 1, 2):
            for l in qk(1, sl): a(l)
        inter(qk(1, 3), maxtree_l([S+20, S+21, S+0], m) + maxtree_l([S+1, S+2], m, False), per=1)
        inter(qk(1, 4), maxtree_l([S+3, S+4, S+5, S+6, S+7, S+8], m, False), per=1)
        a.nop(1)
        for l in maxtree_l([S+9, S+10, S+11, S+12], m, False): a(l)
        a.nop(1)
        for l in maxtree_l([S+13, S+14, S+15], m, False): a(l)
        a.nop(2)
        for l in maxtree_l([S+16, S+17, S+18, S+19], m, False): a(l)
    else:
        qb_wait(0)
        stamp()
        edge_test(1, 'L_fastB')
        for l in ep: a(l)
        if apos == 0: stores(0)
        for sl in (0, 1, 2, 3, 4, 'G'):
            for l in qk(1, sl): a(l)
        for l in xb: a(l)
        edge_mask(1, vT0)
        a('s_branch L_joinB')
        a.label('L_fastB')
        ms = []
        for sl in (0, 1, 2, 3, 4, 'G'): ms += qk(1, sl)
        inter(ms, ep, per=3)
        for l in maxtree_l([S+x for x in range(15)], vT0): a(l)
        if apos == 0: stores(0)
        for l in xb: a(l)
        a(f'v_max3_f32 {vr(vM)}, {vr(vT0)}, {vr(S+15)}, {vr(S+16)}')
        for l in maxtree_l([S+17, S+18, S+19, S+20, S+21], vM, False): a(l)
    a.label('L_joinB')
    stamp()
    a(f's_cmp_eq_u32 s{sCMB}, 0')
    a('s_cbranch_scc1 L_nohand')
    hand_loads()
    a.label('L_nohand')
    softmax_pv(1)
    stamp(fine)
    if apos == 2:
        late_a()
    a('s_nop 0')
    if apos == 3:
        for l in stage_reads(0, RA): a(l)
    for t in range(8):
        for l in epi(t, 1): a(l)
    for l in stage_reads(1): a(l)
    if apos == 3:
        stores(0, RA, extra=4+8) if False else None
        for j in range(4):
            if j == 0: a(f's_mov_b64 exec, {sr(sEX,2)}')
            if j == 0: a('s_waitcnt lgkmcnt(4)')
            a(f'buffer_store_dwordx4 {vr(RA+4*j,4)}, {vr(vOO)}, {sr(sO,4)}, s{sZERO} offen offset:{1024*j} {stpol}')
            if j == 0: a('s_mov_b64 exec, -1')
    stores(1)
    stamp()

    a(f's_cmp_eq_u32 s{sCMB}, 0')
    a('s_cbranch_scc1 L_fin')
    a(f's_waitcnt vmcnt({4 if apos == 0 else 8})')
    a(f's_mov_b32 s{sCNT}, 0')
    a(f's_mov_b32 s{sT2}, 0')
    a.label('L_chk')
    a(f's_mov_b32 s{sT3}, s{sT2}')
    for n in range(8):
        a(f'v_cmp_eq_u32 vcc, s{sN}, {vr(HB+8*n+3)}')
        a(f'v_cmp_eq_u32 s[60:61], s{sN}, {vr(HB+8*n+7)}')
        a('s_nop 0')
        a('s_and_b64 vcc, vcc, s[60:61]')
        a('s_cmp_eq_u64 vcc, exec')
        a(f's_cselect_b32 s{sT0}, {1 << n}, 0')
        a(f's_or_b32 s{sT3}, s{sT3}, s{sT0}')
    a(f's_add_u32 s{sCNT}, s{sCNT}, 1')
    a(f's_cmp_eq_u32 s{sT3}, 0xff')
    a('s_cbranch_scc1 L_ready')
    a(f's_cmp_ge_u32 s{sCNT}, 0x40000')
    a('s_cbranch_scc1 L_ready')
    a(f's_lshl_b32 s{sT0}, s{sH}, 3')
    a(f'v_mov_b32 {vr(KG+1)}, s{sT0}')
    a(f'global_load_dword {vr(KG+2)}, {vr(KG+1)}, s[16:17] offset:4 sc0 sc1')
    a('s_waitcnt vmcnt(0)')
    a(f'v_readfirstlane_b32 s{sT2}, {vr(KG+2)}')
    hand_loads()
    a('s_waitcnt vmcnt(0)')
    a('s_branch L_chk')
    a.label('L_ready')
    hog = [[HB+8*n, HB+8*n+1, HB+8*n+2, HB+8*n+4] for n in range(8)]
    hmg = [HB+8*n+5 for n in range(8)]
    combine(hog, hmg, X8)
    a(f'v_rcp_f32 {vr(X8)}, {vr(hmg[0]+1)}')
    a(f'v_lshrrev_b32 {vr(KG)}, 1, {vr(KG)}')
    for e in range(4):
        a(f'v_mul_f32 {vr(hog[0][e])}, {vr(hog[0][e])}, {vr(X8)}')
    a(f'v_cvt_pk_bf16_f32 {vr(X8+2)}, {vr(hog[0][0])}, {vr(hog[0][1])}')
    a(f'v_cvt_pk_bf16_f32 {vr(X8+3)}, {vr(hog[0][2])}, {vr(hog[0][3])}')
    a(f'buffer_store_dwordx2 {vr(X8+2,2)}, {vr(KG)}, {sr(sO,4)}, 0 offen {stpol}')
    a.label('L_fin')
    if stamps:
        stamp()
        a('s_waitcnt vmcnt(0)')
        stamp()
        if opt.get('clk'):
            a('s_memtime s[98:99]')
            a('s_waitcnt lgkmcnt(0)')
            a('s_sub_u32 s98, s98, s96')
            a(f's_add_u32 s{64+2*nst[0]}, s98, s64')
            nst[0] += 1
        a(f's_lshl_b32 s{sT0}, s2, 3')
        a(f's_add_u32 s{sT0}, s{sT0}, s{sWV}')
        a(f's_lshl_b32 s{sT0}, s{sT0}, 6')
        a(f's_add_u32 s{sT0}, s{sT0}, 0x100000')
        a(f's_add_u32 s{sW}, s18, s{sT0}')
        a(f's_addc_u32 s{sW+1}, s19, 0')
        a(f'v_mov_b32 v1, 0')
        a('s_mov_b64 exec, 1')
        for n in range(min(16, nst[0])):
            a(f'v_mov_b32 v2, s{64+2*n}')
            a(f'buffer_store_dword v2, v1, {sr(sW,4)}, 0 offen offset:{4*n}')
        if 'leak' in opt:
            k = int(opt['leak'])
            a(f's_sub_u32 s{sT0}, s{64+2*k}, s64')
            a(f's_lshl_b32 s{sT0}, s{sT0}, 2')
            if opt.get('leakcnt'):
                a(f's_mul_i32 s{sT0}, s{sCNT}, 500')
                a(f's_mul_i32 s{sT0}, s{sT0}, s{sCMB}')
            if 'leakw' in opt:
                a(f's_lshr_b32 s{sT1}, {opt["leakw"]}, s{sWV}')
                a(f's_bitcmp1_b32 s{sT1}, 0')
                a(f's_cselect_b32 s{sT0}, s{sT0}, 0')
            a(f"s_add_u32 s{sT0}, s{sT0}, {opt.get('spin', 5000)}")
            a.label('L_spin')
            a('s_memrealtime s[100:101]')
            a('s_waitcnt lgkmcnt(0)')
            a(f's_sub_u32 s{sT1}, s100, s64')
            a(f's_cmp_lt_u32 s{sT1}, s{sT0}')
            a('s_cbranch_scc1 L_spin')
    a.label('L_end')
    a('s_endpgm')
    if opt.get('cpf', True):
        a('.fill 4096, 4, 0xbf800000')

    check(a.lines)
    if stamps: print('stamps', nst[0])
    head = f'''; windowed + global-token attention, B=1 H=32 S=2048 D=128 bf16 (window 32, 2 global tokens)
; @launch grid=(256,1,1) block=(512,1,1) lds=163840
.amdgcn_target "amdgcn-amd-amdhsa--gfx950"
.text
.globl {NAME}
.p2align 8
.type {NAME},@function
{NAME}:
'''
    tail = f'''.section .rodata,"a"
.p2align 6
.amdhsa_kernel {NAME}
  .amdhsa_next_free_vgpr 256
  .amdhsa_next_free_sgpr {102 if stamps else 64}
  .amdhsa_accum_offset 256
  .amdhsa_group_segment_fixed_size 0
  .amdhsa_kernarg_size 64
  .amdhsa_user_sgpr_count 2
  .amdhsa_user_sgpr_kernarg_segment_ptr 1
  .amdhsa_system_sgpr_workgroup_id_x 1
.end_amdhsa_kernel
'''
    return head + a.text() + tail

if __name__ == '__main__':
    out = sys.argv[1]
    opt = {}
    for kv in sys.argv[2:]:
        k, v = kv.split('=', 1)
        opt[k] = {'True': True, 'False': False}.get(v, v.replace('+', ' '))
    open(out, 'w').write(gen(opt))
```

```python
import sys, math, struct
from asmlib import *

NAME = 'standalone__global_local_windowed_global_tokens__prompt_kernel'
def f2u(x): return struct.unpack('<I', struct.pack('<f', x))[0]

def gen(opt):
    a = Asm()
    NEG = 0xFF000000
    CSC = f2u(128 ** -0.5 * math.log2(math.e))
    KOFF, VOFF, SOFF = 0, 73728, 155648
    apos = int(opt.get('apos', 0))
    PART, STG = 0, 4096
    PARTML, LCNT, LNON = SOFF + 3072, SOFF + 3072 + 128, SOFF + 3072 + 132
    STGP = 272
    ldpol = opt.get('ldpol', '')
    qpol = opt.get('qpol', '')
    stpol = opt.get('stpol', 'sc0 sc1 nt')
    pk = opt.get('pk', True)
    N1 = int(opt.get('n1', 8))
    RW = int(opt.get('rw', 3))
    FW = 7
    SW = 5
    CW, CC = int(opt.get('cw', 1)), 3
    merge = opt.get('merge', True)
    sQ, sK, sV, sO, sW = 20, 24, 28, 32, 36
    sWV, sH, sC, sHO, sQ0B = 40, 43, 44, 45, 46
    sT0, sT1, sT2, sT3 = 47, 48, 49, 50
    sBK = 62
    HW = 4
    sCS = 52; sKG0 = 54; sQB = 51; sEX = 56; sCMB = 58; sCNT = 59; sN = 63; sTOFF = 41; sZERO = 3
    VA = 0
    vSW, vSR, vOO, vT0 = 8, 9, 10, 11
    X8 = 12
    KF = 16; KG = 112; QA, QB = 128, 144; VG = 160; O = 192; S = 224
    BLO, BHI = 248, 252
    kf = lambda W, ks: KF + 16 * W + 4 * ks
    X = [O + 4 * n for n in range(8)] + [X8]
    vLANE, vI, vKGp, vDK, vDV, vDQ, vAG, vNEG, vAK = O+16, O+17, O+18, O+19, O+20, O+21, O+22, O+23, O+24
    vAVG, t1, t2, t3 = O+28, O+29, O+30, O+31
    vDQk = VG + 7
    vFLAG = VG + 3
    vM, vT = S + 22, S + 23

    stamps = opt.get('stamps', False)
    fine = opt.get('fine', False)
    nst = [0]
    def stamp(on=True):
        if stamps and on:
            a(f's_memrealtime s[{64+2*nst[0]}:{65+2*nst[0]}]')
            if nst[0]: a('s_waitcnt lgkmcnt(0)')
            nst[0] += 1
    M16 = 'v_mfma_f32_16x16x32_bf16'
    def mfma(d, x, y, c):
        return f'{M16} {vr(d,4)}, {vr(x,4)}, {vr(y,4)}, {c if isinstance(c,str) else vr(c,4)}'
    def only(w, lab):
        a(f's_cmp_lg_u32 s{sWV}, {w}')
        a(f's_cbranch_scc1 {lab}')

    stamp()
    if opt.get('clk'): a('s_memtime s[96:97]')
    a('s_load_dwordx16 s[4:19], s[0:1], 0')
    a(f'v_readfirstlane_b32 s{sWV}, v0')
    a('s_cmp_ge_u32 s2, 256')
    a('s_cbranch_scc1 L_end')
    a(f'v_lshrrev_b32 {vr(t1)}, 4, v0')
    a(f'v_xor_b32 {vr(vDK)}, {vr(t1)}, v0')
    a(f'v_and_b32 {vr(vDK)}, 15, {vr(vDK)}')
    a(f'v_lshl_add_u32 {vr(vDK)}, {vr(t1)}, 4, {vr(vDK)}')
    a(f's_bfe_u32 s{sC}, s2, 0x30003')
    a(f's_lshl_b32 s{sQ0B}, s{sC}, 16')
    a(f'v_lshl_add_u32 {vr(vDK)}, {vr(vDK)}, 4, s{sQ0B}')
    a('s_and_b32 s41, s2, 7')
    a(f's_lshr_b32 s{sH}, s2, 6')
    a(f's_lshl2_add_u32 s{sH}, s41, s{sH}')
    a(f's_lshl_b32 s{sHO}, s{sH}, 19')
    a(f's_lshl_b32 m0, s{sWV}, 4')
    a(f's_mov_b32 s{sK+2}, 0x80000')
    a(f's_mov_b32 s{sK+3}, 0x20000')
    a(f's_movk_i32 s{sCNT}, 17')
    if opt.get('cpf', True):
        a(f's_getpc_b64 s[{sEX}:{sEX+1}]')
        a(f'v_lshlrev_b32 v1, 5, v0')
        a(f'global_load_dword {vr(X8)}, v1, s[{sEX}:{sEX+1}]')
    a(f's_cmp_ge_u32 s{sWV}, 256')
    a('s_cbranch_scc1 L_helper')
    a('s_waitcnt lgkmcnt(0)')
    stamp()
    a(f's_add_u32 s{sK}, s6, s{sHO}')
    a(f's_addc_u32 s{sK+1}, s7, 0')
    a.label('L_kloop')
    a(f'buffer_load_dwordx4 {vr(vDK)}, {sr(sK,4)}, 0 offen {ldpol} lds')
    a('s_add_u32 m0, m0, 0x1000')
    a(f'v_add_u32 {vr(vDK)}, 0x1000, {vr(vDK)}')
    a(f's_sub_u32 s{sCNT}, s{sCNT}, 1')
    a('s_cbranch_scc0 L_kloop')
    stamp(opt.get('postk', False))
    def common():
        a(f's_lshr_b32 s{sWV}, s{sWV}, 6')
        a(f'v_and_b32 {vr(vLANE)}, 63, v0')
        a(f'v_and_b32 {vr(vI)}, 15, v0')
        a(f'v_bfe_u32 {vr(vKGp)}, v0, 4, 2')
        a(f's_lshl_b32 s{sT1}, s{sWV}, 10')
        a(f's_add_u32 s{sT2}, s{sT1}, s{sQ0B}')
        for s_ in (sV, sQ):
            a(f's_mov_b32 s{s_+2}, 0x80000')
            a(f's_mov_b32 s{s_+3}, 0x20000')
        a(f's_mov_b32 s{sW+2}, 0x4000')
        a(f's_mov_b32 s{sW+3}, 0x20000')
        a(f's_and_b32 s{sBK}, s{sWV}, 3')
        a(f's_lshl_b32 s{sBK}, s{sBK}, 1')
        a(f's_cmp_lt_u32 s{sWV}, 4')
        a(f's_addc_u32 s{sBK}, s{sBK}, 0')
        a(f's_cmp_eq_u32 s{sC}, 0')
        a(f's_cselect_b32 s{sT3}, 0x40000000, 0')
        a(f's_lshl_b32 s{sT0}, s{sBK}, 13')
        a(f's_add_u32 s{sT0}, s{sT0}, s{sQ0B}')
        a(f'v_lshlrev_b32 {vr(vDQ)}, 4, {vr(vKGp)}')
        a(f'v_lshl_add_u32 {vr(vDQ)}, {vr(vI)}, 8, {vr(vDQ)}')
        a(f'v_add_u32 {vr(vDQ)}, s{sT0}, {vr(vDQ)}')
        a(f'v_lshlrev_b32 {vr(t3)}, 4, {vr(vLANE)}')
        a(f's_lshl_b32 s41, s{sH}, 14')
        a(f's_lshl_b32 s42, s{sC}, 11')
    common()
    a(f's_mov_b32 s{sN}, 0')
    def srds():
        a(f's_add_u32 s{sV}, s8, s{sHO}')
        a(f's_addc_u32 s{sV+1}, s9, 0')
        a(f's_add_u32 s{sQ}, s4, s{sHO}')
        a(f's_addc_u32 s{sQ+1}, s5, 0')
        a(f's_add_u32 s{sW}, s18, s41')
        a(f's_addc_u32 s{sW+1}, s19, 0')
    srds()
    a('s_branch L_v1')
    a.label('L_helper')
    a('s_setprio 3')
    a('s_memrealtime s[60:61]')
    common()
    a(f's_sub_u32 s{sT0}, s{sT3}, 0x2000')
    a(f'v_add_u32 {vr(t1)}, s{sT0}, {vr(vDQ)}')
    a(f'v_add_u32 {vr(t2)}, 0x1000, {vr(t1)}')
    a(f's_mov_b32 m0, {SOFF}')
    a('s_waitcnt lgkmcnt(0)')
    if stamps:
        nst[0] -= 1
        stamp()
    a(f's_add_u32 s{sK}, s6, s{sHO}')
    a(f's_addc_u32 s{sK+1}, s7, 0')
    srds()
    if stamps and opt.get('postk'):
        nst[0] -= 1
        stamp()
    a(f's_or_b32 s{sN}, s60, 1')
    only(FW, 'L_noclear')
    a(f's_lshl_b32 s{sT0}, s{sH}, 3')
    a(f'v_mov_b32 {vr(S+4)}, s{sT0}')
    a(f'v_mov_b32 {vr(S+5)}, s{sN}')
    a(f'v_mov_b32 {vr(S+6)}, {LCNT}')
    a(f'v_mov_b32 {vr(S+7)}, 0')
    a('s_mov_b64 exec, 1')
    a(f's_cmp_lg_u32 s{sC}, {CC}')
    a('s_cbranch_scc1 L_nopub')
    a(f'global_store_dword {vr(S+4)}, {vr(S+5)}, s[16:17] sc0 sc1')
    a.label('L_nopub')
    a(f'ds_write_b32 {vr(S+6)}, {vr(S+7)}')
    a('s_mov_b64 exec, -1')
    if opt.get('wstouch'):
        pol = {'ld': '', 'ldsc': 'sc0 sc1'}.get(opt['wstouch'])
        if pol is not None:
            a(f'buffer_load_dwordx4 {vr(S+8,4)}, {vr(t3)}, {sr(sW,4)}, s42 offen {pol}')
            a(f'buffer_load_dwordx4 {vr(S+12,4)}, {vr(t3)}, {sr(sW,4)}, s42 offen offset:1024 {pol}')
        else:
            for n in range(4): a(f'v_mov_b32 {vr(S+8+n)}, 0')
            a(f'buffer_store_dwordx4 {vr(S+8,4)}, {vr(t3)}, {sr(sW,4)}, s42 offen sc0 sc1')
            a(f'buffer_store_dwordx4 {vr(S+8,4)}, {vr(t3)}, {sr(sW,4)}, s42 offen offset:1024 sc0 sc1')
    a.label('L_noclear')
    only(SW, 'L_nosmall')
    for n, srd in enumerate((sK, sQ, sV)):
        if n:
            a(f's_mov_b32 m0, {SOFF + 1024*n}')
            a('s_nop 0')
        a(f'buffer_load_dwordx4 {vr(t3)}, {sr(srd,4)}, 0 offen lds')
    a.label('L_nosmall')
    only(HW, 'L_nohalo')
    for T in range(2):
        for ks in range(4):
            a(f'buffer_load_dwordx4 {vr(kf(T,ks),4)}, {vr(t1+T)}, {sr(sK,4)}, 0 offen offset:{64*ks}')
    a.label('L_nohalo')
    a('s_setprio 0')
    a('s_branch L_nov1')
    a.label('L_v1')
    def vpiece(i):
        if i:
            a('s_add_u32 m0, m0, 0x1000')
            a(f'v_add_u32 {vr(vDV)}, 0x1000, {vr(vDV)}')
        if i < 2:
            a(f'v_add_u32 {vr(t1)}, s{sT3}, {vr(vDV)}')
            a(f'buffer_load_dwordx4 {vr(t1)}, {sr(sV,4)}, 0 offen {ldpol} lds')
        else:
            a(f'buffer_load_dwordx4 {vr(vDV)}, {sr(sV,4)}, 0 offen {ldpol} lds')
    a(f's_and_b32 s{sT0}, s{sWV}, 1')
    a(f's_lshl_b32 s{sT0}, s{sT0}, 2')
    a(f'v_add_lshl_u32 {vr(vDV)}, s{sT0}, {vr(vKGp)}, 1')
    a(f'v_xor_b32 {vr(vDV)}, {vr(vDV)}, {vr(vI)}')
    a(f'v_lshlrev_b32 {vr(vDV)}, 4, {vr(vDV)}')
    a(f'v_lshl_add_u32 {vr(vDV)}, {vr(vKGp)}, 8, {vr(vDV)}')
    a(f's_sub_u32 s{sT2}, s{sT2}, 0x2000')
    a(f'v_add_u32 {vr(vDV)}, s{sT2}, {vr(vDV)}')
    a(f's_add_u32 m0, s{sT1}, {VOFF}')
    for i in range(N1): vpiece(i)
    a.label('L_nov1')
    stamp()

    a(f's_add_u32 s{sO}, s14, s{sHO}')
    a(f's_addc_u32 s{sO+1}, s15, 0')
    a(f's_mov_b32 s{sO+2}, 0x80000')
    a(f's_mov_b32 s{sO+3}, 0x20000')
    a(f's_movk_i32 s{sTOFF}, 0x1000')
    a(f's_mov_b32 s{sZERO}, 0')
    a(f's_mov_b32 s{sCS}, 0x{CSC:08x}')
    a(f's_mov_b32 s{sCS+1}, 0x{CSC:08x}')
    a(f'v_mov_b32 {vr(vNEG)}, 0x{NEG:08x}')
    a(f'v_lshlrev_b32 {vr(t2)}, 2, {vr(vKGp)}')
    a(f'v_cmp_eq_u32 {sr(sKG0,2)}, 0, {vr(vKGp)}')
    for r in range(4):
        a(f'v_add_u32 {vr(t1)}, {r}, {vr(t2)}')
        a(f'v_cmp_ge_u32 vcc, {vr(t1)}, {vr(vI)}')
        a(f'v_cmp_le_u32 s[60:61], {vr(t1)}, {vr(vI)}')
        a('s_nop 0')
        a(f'v_cndmask_b32 {vr(BLO+r)}, {vr(vNEG)}, 0, vcc')
        a(f'v_cndmask_b32 {vr(BHI+r)}, {vr(vNEG)}, 0, s[60:61]')
    a(f's_lshl_b32 s{sT0}, s{sBK}, 13')
    a(f'v_xor_b32 {vr(t1)}, {vr(vKGp)}, {vr(vI)}')
    a(f'v_lshlrev_b32 {vr(t1)}, 4, {vr(t1)}')
    a(f'v_lshl_add_u32 {vr(t1)}, {vr(vI)}, 8, {vr(t1)}')
    a(f'v_add_u32 {vr(vAK)}, s{sT0}, {vr(t1)}')
    for ks in range(1, 4):
        a(f'v_xor_b32 {vr(vAK+ks)}, {64*ks}, {vr(vAK)}')
    a(f'v_and_b32 {vr(t1)}, 1, {vr(vI)}')
    a(f'v_lshlrev_b32 {vr(vNEG)}, 3, {vr(t1)}')
    a(f'v_lshlrev_b32 {vr(t1)}, 8, {vr(t1)}')
    a(f'v_lshl_add_u32 {vr(t1)}, {vr(vKGp)}, 4, {vr(t1)}')
    a(f'v_add_u32 {vr(vAG)}, {SOFF}, {vr(t1)}')
    a(f'v_bfe_u32 {vr(t1)}, {vr(vLANE)}, 2, 2')
    a(f'v_and_b32 {vr(t2)}, 3, {vr(vLANE)}')
    a(f'v_lshlrev_b32 {vr(t2)}, 3, {vr(t2)}')
    a(f'v_lshl_add_u32 {vr(t1)}, {vr(t1)}, 8, {vr(t2)}')
    a(f'v_add_u32 {vr(vAVG)}, {SOFF+2048}, {vr(t1)}')
    a(f'v_lshrrev_b32 {vr(t1)}, 2, {vr(vLANE)}')
    a(f'v_and_b32 {vr(vT0)}, 7, {vr(t1)}')
    a(f'v_lshl_add_u32 {vr(t2)}, {vr(vT0)}, 5, {vr(t2)}')
    a(f'v_lshl_add_u32 {vr(t2)}, {vr(t1)}, 8, {vr(t2)}')
    a(f's_add_u32 s{sT1}, s{sT0}, {VOFF}')
    a(f'v_add_u32 {vr(VA)}, s{sT1}, {vr(t2)}')
    for t in range(1, 8):
        a(f'v_xor_b32 {vr(VA+t)}, {32*t}, {vr(VA)}')
    a(f's_mul_i32 s{sT1}, s{sWV}, {32*STGP}')
    a(f's_add_u32 s{sT1}, s{sT1}, {STG}')
    a(f'v_mul_u32_u24 {vr(t1)}, {STGP}, {vr(vI)}')
    a(f'v_lshl_add_u32 {vr(t1)}, {vr(vKGp)}, 3, {vr(t1)}')
    a(f'v_add_u32 {vr(vSW)}, s{sT1}, {vr(t1)}')
    a(f'v_mul_u32_u24 {vr(t1)}, {STGP}, {vr(vKGp)}')
    a(f'v_lshl_add_u32 {vr(t1)}, {vr(vI)}, 4, {vr(t1)}')
    a(f'v_add_u32 {vr(vSR)}, s{sT1}, {vr(t1)}')
    a(f's_add_u32 s{sT0}, s{sT0}, s{sQ0B}')
    a(f'v_add_u32 {vr(vOO)}, s{sT0}, {vr(t3)}')
    a(f's_lshr_b32 s{sQB}, s{sT0}, 8')
    a(f's_cmp_eq_u32 s{sQB}, 0')
    a(f's_cselect_b32 s{sEX}, 0, -1')
    a(f's_mov_b32 s{sEX+1}, -1')
    a(f's_cmp_eq_u32 s{sQB}, {256*CC+32*(2*CW+1)}')
    a(f's_cselect_b32 s{sCMB}, 1, 0')
    a(f's_lshl_b32 s{sT0}, s{sWV}, 4')
    a(f's_add_u32 s{sT0}, s{sT0}, {PARTML}')
    a(f'v_add_u32 {vr(vNEG)}, s{sT0}, {vr(vNEG)}')

    a(f's_waitcnt vmcnt({N1}) lgkmcnt(0)')
    a(f's_cmp_lt_u32 s{sWV}, 4')
    a('s_cbranch_scc1 L_kw')
    a(f's_cmp_eq_u32 s{sWV}, {FW}')
    a('s_cbranch_scc1 L_kw')
    a('s_waitcnt vmcnt(0)')
    a.label('L_kw')
    stamp(opt.get('prek', False))
    a('s_barrier')
    stamp()
    a(f's_cmp_ge_u32 s{sWV}, 4')
    a('s_cbranch_scc1 L_nov2')
    for i in range(N1, 20): vpiece(i)
    a.label('L_nov2')
    stamp(fine)
    QG = O
    for W in (2, 3, 4, 5):
        for ks in range(4):
            a(f'ds_read_b128 {vr(kf(W,ks),4)}, {vr(vAK+ks)} offset:{4096*(W-2)}')
    for ks in range(4):
        a(f'ds_read_b128 {vr(KG+4*ks,4)}, {vr(vAG)} offset:{64*ks}')
    for t in range(8):
        a(f'ds_read_b64_tr_b16 {vr(VG+4*t+2,2)}, {vr(vAVG)} offset:{32*t}')
    a(f's_cmp_eq_u32 s{sWV}, {HW}')
    a('s_cbranch_scc1 L_k01done')
    for ks in range(4):
        a(f'v_subrev_u32 {vr(vAK+ks)}, 0x2000, {vr(vAK+ks)}')
    for W in (0, 1):
        for ks in range(4):
            a(f'ds_read_b128 {vr(kf(W,ks),4)}, {vr(vAK+ks)} offset:{4096*W}')
    a.label('L_k01done')
    def issue_qa():
        if opt.get('qprio'): a('s_setprio 3')
        for ks in range(4):
            a(f'buffer_load_dwordx4 {vr(QA+4*ks,4)}, {vr(vDQ)}, {sr(sQ,4)}, 0 offen offset:{64*ks} {qpol}')
        if opt.get('qprio'): a('s_setprio 0')

    def xred(m, t, op='v_max_f32'):
        a(f'v_mov_b32 {vr(t)}, {vr(m)}')
        a.nop(2)
        a(f'v_permlane16_swap_b32 {vr(m)}, {vr(t)}')
        a(f'{op} {vr(m)}, {vr(m)}, {vr(t)}')
        a(f'v_mov_b32 {vr(t)}, {vr(m)}')
        a.nop(2)
        a(f'v_permlane32_swap_b32 {vr(m)}, {vr(t)}')
        a(f'{op} {vr(m)}, {vr(m)}, {vr(t)}')
    def maxtree_l(vals, m, first=True):
        out = []; rest = list(vals)
        if first:
            out.append(f'v_max3_f32 {vr(m)}, {vr(rest[0])}, {vr(rest[1])}, {vr(rest[2])}'); rest = rest[3:]
        while len(rest) >= 2:
            out.append(f'v_max3_f32 {vr(m)}, {vr(m)}, {vr(rest[0])}, {vr(rest[1])}'); rest = rest[2:]
        if rest:
            out.append(f'v_max_f32 {vr(m)}, {vr(m)}, {vr(rest[0])}')
        return out
    def fma_l(vals, mc):
        if pk:
            return [f'v_pk_fma_f32 {vr(vals[n],2)}, {vr(vals[n],2)}, {sr(sCS,2)}, {vr(mc,2)} op_sel_hi:[1,1,0] neg_lo:[0,0,1] neg_hi:[0,0,1]' for n in range(0, len(vals), 2)]
        return [f'v_fma_f32 {vr(v)}, {vr(v)}, s{sCS}, -{vr(mc)}' for v in vals]
    exp_l = lambda vals: [f'v_exp_f32 {vr(v)}, {vr(v)}' for v in vals]
    cvt_l = lambda dst, src, n: [f'v_cvt_pk_bf16_f32 {vr(dst+k)}, {vr(src+2*k)}, {vr(src+2*k+1)}' for k in range(n)]

    def vread(dst, t, W):
        return f'ds_read_b64_tr_b16 {vr(dst,2)}, {vr(VA+t)} offset:{4096*W}'
    a(f's_cmp_lt_u32 s{sWV}, 4')
    a('s_cbranch_scc1 L_gk')
    only(FW, 'L_notag')
    a('s_setprio 3')
    a(f's_lshl_b32 s{sT0}, s{sH}, 3')
    a(f'v_mov_b32 {vr(S+4)}, s{sT0}')
    a(f'v_mov_b32 {vr(S+5)}, s{sN}')
    a(f'v_mov_b32 {vr(S+6)}, {LCNT}')
    a(f'global_load_dword {vr(S+7)}, {vr(S+4)}, s[16:17]')
    a('s_setprio 0')
    issue_qa()
    a('s_waitcnt vmcnt(4)')
    a(f's_cmp_eq_u32 s{sC}, {CC}')
    a('s_cselect_b64 vcc, -1, 0')
    a(f'v_cndmask_b32 {vr(S+7)}, {vr(S+7)}, {vr(S+5)}, vcc')
    a('s_mov_b64 exec, 1')
    a(f'ds_write_b32 {vr(S+6)}, {vr(S+7)} offset:4')
    a('s_mov_b64 exec, -1')
    a('s_branch L_tagdone')
    a.label('L_notag')
    issue_qa()
    a.label('L_tagdone')
    a('s_waitcnt lgkmcnt(0)')
    a(f'v_add_u32 {vr(vDQk)}, 0x1000, {vr(vDQ)}')
    stamp(fine)
    a('s_barrier')
    for t in range(8):
        a(vread(X[t+1], t, 0)); a(vread(X[t+1]+2, t, 1))
    a('s_branch L_gdone')
    a.label('L_gk')
    for ks in range(4):
        a(f'ds_read_b128 {vr(QG+4*ks,4)}, {vr(vAG)} offset:{1024+64*ks}')
    issue_qa()
    a('s_waitcnt lgkmcnt(0)')
    for T in range(4):
        for ks in range(4):
            a(mfma(S+4*T, kf(T,ks), QG+4*ks, '0' if ks == 0 else S+4*T))
    a(f'v_add_u32 {vr(vDQk)}, 0x1000, {vr(vDQ)}')
    a.nop(7)
    for l in maxtree_l([S+x for x in range(16)], vM): a(l)
    xred(vM, vT)
    a(f'v_mul_f32 {vr(vM)}, s{sCS}, {vr(vM)}')
    for l in fma_l([S+x for x in range(16)], vM): a(l)
    for l in exp_l([S+x for x in range(16)]): a(l)
    a.nop(1)
    a(f'v_add_f32 {vr(vT)}, {vr(S)}, {vr(S+1)}')
    for x in range(2, 16):
        a(f'v_add_f32 {vr(vT)}, {vr(vT)}, {vr(S+x)}')
    for l in cvt_l(S, S, 8): a(l)
    xred(vT, vT0, 'v_add_f32')
    a(f'ds_write_b64 {vr(vNEG)}, {vr(vM,2)}')
    a(f'v_mbcnt_lo_u32_b32 {vr(vT0)}, -1, 0')
    a(f's_lshl_b32 s{sT0}, s{sWV}, 10')
    a(f'v_lshl_add_u32 {vr(vT0)}, {vr(vT0)}, 3, s{sT0}')
    if stamps and fine:
        nst[0] -= 1
        stamp()
    a('s_waitcnt vmcnt(4) lgkmcnt(0)')
    a('s_barrier')
    gb = [QB + 4*n for n in range(4)] + [S + 8 + 4*n for n in range(4)]
    for t in range(8):
        a(vread(gb[t], t, 2)); a(vread(gb[t]+2, t, 3))
    for t in range(8):
        a('s_waitcnt lgkmcnt(14)')
        a(mfma(gb[t], S+4, gb[t], '0'))
        a(vread(X[t+1], t, 0)); a(vread(X[t+1]+2, t, 1))
    for t in range(8):
        a(f's_waitcnt lgkmcnt({14-2*t})')
        a(mfma(gb[t], S, X[t+1], gb[t]))
    a('s_mov_b64 exec, 1')
    a(f'v_mov_b32 {vr(S)}, {LCNT}')
    a(f'v_mov_b32 {vr(S+1)}, 1')
    a('s_mov_b64 exec, 0xffff')
    for t in range(8):
        a(f'ds_write_b64 {vr(vT0)}, {vr(gb[t],2)} offset:{PART+128*t}')
    a('s_mov_b64 exec, 1')
    a(f'ds_add_u32 {vr(S)}, {vr(S+1)}')
    a('s_mov_b64 exec, -1')
    a.label('L_gdone')
    stamp()

    emit = lambda ls: [a(l) for l in ls]
    def combine(og, mg, tm):
        NP = len(og)
        emit(maxtree_l([mg[n] for n in range(NP)], tm))
        for n in range(NP):
            a(f'v_sub_f32 {vr(mg[n])}, {vr(mg[n])}, {vr(tm)}')
        for n in range(NP):
            a(f'v_exp_f32 {vr(mg[n])}, {vr(mg[n])}')
        a.nop(1)
        for e in range(4):
            a(f'v_mul_f32 {vr(og[0][e])}, {vr(og[0][e])}, {vr(mg[0])}')
        a(f'v_mul_f32 {vr(mg[0]+1)}, {vr(mg[0]+1)}, {vr(mg[0])}')
        for n in range(1, NP):
            for e in range(4):
                a(f'v_fmac_f32 {vr(og[0][e])}, {vr(og[n][e])}, {vr(mg[n])}')
            a(f'v_fmac_f32 {vr(mg[0]+1)}, {vr(mg[n]+1)}, {vr(mg[n])}')

    def issue_qb():
        for ks in range(4):
            a(f'buffer_load_dwordx4 {vr(QB+4*ks,4)}, {vr(vDQk)}, {sr(sQ,4)}, 0 offen offset:{64*ks} {qpol}')
        a(f'v_mov_b32 {vr(vDQk)}, 0')
    issue_qb()
    if opt.get('otouch'):
        only(FW, 'L_nootouch')
        a(f's_mov_b32 m0, {PARTML+256}')
        a('s_mov_b64 exec, 1')
        a(f'buffer_load_dword {vr(vOO)}, {sr(sO,4)}, 0 offen lds')
        a(f'buffer_load_dword {vr(vOO)}, {sr(sO,4)}, 0 offen offset:512 lds')
        a('s_mov_b64 exec, -1')
        a('s_waitcnt vmcnt(6)')
        a('s_branch L_tileA')
        a.label('L_nootouch')
    a(f's_cmp_eq_u32 s{sWV}, {RW}')
    a('s_cbranch_scc1 L_reduce')
    a(f's_cmp_eq_u32 s{sCMB}, 0')
    a('s_cbranch_scc1 L_noflag')
    a(f'v_mov_b32 {vr(vT0)}, {LNON}')
    a(f'ds_read_b32 {vr(vT0)}, {vr(vT0)}')
    a('s_waitcnt lgkmcnt(0)')
    a(f'v_readfirstlane_b32 s{sN}, {vr(vT0)}')
    a.label('L_noflag')
    a('s_waitcnt vmcnt(4)')
    a('s_branch L_tileA')
    a.label('L_reduce')
    R0 = S
    a(f'v_mbcnt_lo_u32_b32 {vr(R0)}, -1, 0')
    a(f'v_mbcnt_hi_u32_b32 {vr(R0)}, -1, {vr(R0)}')
    a(f'v_lshrrev_b32 {vr(R0+1)}, 5, {vr(R0)}')
    a(f'v_and_b32 {vr(R0+3)}, 31, {vr(R0)}')
    a(f'v_lshlrev_b32 {vr(R0+3)}, 5, {vr(R0+3)}')
    a(f'v_lshl_add_u32 {vr(R0+3)}, {vr(R0+1)}, 2, {vr(R0+3)}')
    a(f'v_lshlrev_b32 {vr(R0+1)}, 3, {vr(R0+1)}')
    a(f'v_add_u32 {vr(R0+1)}, {PARTML}, {vr(R0+1)}')
    a(f'v_lshlrev_b32 {vr(R0)}, 4, {vr(R0)}')
    a(f'v_mov_b32 {vr(R0+2)}, {LCNT}')
    a(f's_mov_b32 s{sCNT}, 0')
    a.label('L_lspin')
    a(f'ds_read_b64 {vr(S+4,2)}, {vr(R0+2)}')
    a(f's_add_u32 s{sCNT}, s{sCNT}, 1')
    a('s_waitcnt lgkmcnt(0)')
    a(f'v_readfirstlane_b32 s{sT0}, {vr(S+4)}')
    a(f'v_readfirstlane_b32 s{sN}, {vr(S+5)}')
    a(f's_cmp_ge_u32 s{sCNT}, 0x100000')
    a('s_cbranch_scc1 L_lok')
    a(f's_cmp_lt_u32 s{sT0}, 4')
    a('s_cbranch_scc1 L_lspin')
    a.label('L_lok')
    mg = [S+4, S+6, O, O+2]
    G0 = S + 8
    og = [[G0+4*n+e for e in range(4)] for n in range(4)]
    for n in range(4):
        a(f'ds_read_b64 {vr(mg[n],2)}, {vr(R0+1)} offset:{16*n}')
    for n in range(4):
        if n: a(f'v_add_u32 {vr(R0+3)}, 1024, {vr(R0+3)}')
        a(f'ds_read2_b32 {vr(G0+4*n,2)}, {vr(R0+3)} offset0:0 offset1:2')
        a(f'ds_read2_b32 {vr(G0+4*n+2,2)}, {vr(R0+3)} offset0:4 offset1:6')
    a('s_waitcnt lgkmcnt(0)')
    combine(og, mg, R0+1)
    a(f'v_mov_b32 {vr(G0+4)}, {vr(G0+3)}')
    a(f'v_mov_b32 {vr(G0+5)}, {vr(R0+1)}')
    a(f'v_mov_b32 {vr(G0+6)}, {vr(mg[0]+1)}')
    a(f'v_mov_b32 {vr(G0+7)}, s{sN}')
    a(f'v_mov_b32 {vr(G0+3)}, s{sN}')
    a(f'buffer_store_dwordx4 {vr(G0+4,4)}, {vr(R0)}, {sr(sW,4)}, s42 offen offset:1024 sc0 sc1')
    a(f'buffer_store_dwordx4 {vr(G0,4)}, {vr(R0)}, {sr(sW,4)}, s42 offen sc0 sc1')
    a(f's_cmp_lg_u32 s{sN}, 0')
    a('s_cbranch_scc1 L_tagged')
    a('s_waitcnt vmcnt(0)')
    a(f's_lshl_b32 s{sT0}, s{sH}, 3')
    a(f's_lshl_b32 s{sT1}, 1, s{sC}')
    a(f'v_mov_b32 {vr(R0)}, s{sT0}')
    a(f'v_mov_b32 {vr(R0+1)}, s{sT1}')
    a('s_mov_b64 exec, 1')
    a(f'global_atomic_or {vr(R0)}, {vr(R0+1)}, s[16:17] offset:4 sc1')
    a('s_mov_b64 exec, -1')
    a.label('L_tagged')
    a('s_waitcnt vmcnt(6)')
    a.label('L_tileA')
    stamp()

    def inter(ms, vs, per=2):
        vs = list(vs)
        for m in ms:
            a(m)
            for _ in range(per):
                if vs: a(vs.pop(0))
        for v in vs: a(v)

    HB = kf(2, 0)
    def hand_loads():
        a(f'v_mbcnt_lo_u32_b32 {vr(KG)}, -1, 0')
        a(f'v_mbcnt_hi_u32_b32 {vr(KG)}, -1, {vr(KG)}')
        a(f'v_lshlrev_b32 {vr(KG)}, 4, {vr(KG)}')
        for n in range(8):
            a(f's_movk_i32 s{sT0}, {2048*n}')
            a(f'buffer_load_dwordx4 {vr(HB+8*n,4)}, {vr(KG)}, {sr(sW,4)}, s{sT0} offen sc0 sc1')
            a(f'buffer_load_dwordx4 {vr(HB+8*n+4,4)}, {vr(KG)}, {sr(sW,4)}, s{sT0} offen offset:1024 sc0 sc1')

    buf = [kf(0, n) for n in range(4)] + [QA + 4*n for n in range(4)]
    SLOTW = {0: [0, 1, 2, 3, 4], 1: [4, 5, 2, 3, 1]}
    def qk(tau, sl):
        Q = QA if tau == 0 else QB
        if sl == 'G':
            return [mfma(S+20, KG+4*ks, Q+4*ks, '0' if ks == 0 else S+20) for ks in range(4)]
        W = SLOTW[tau][sl]
        c0 = BLO if W == tau else BHI if W == tau + 4 else '0'
        return [mfma(S+4*sl, kf(W,ks), Q+4*ks, c0 if ks == 0 else S+4*sl) for ks in range(4)]
    def edge_test(tau, lab):
        a(f's_sub_u32 s{sT0}, s{sQB}, {48 - 16*tau}')
        a(f's_cmp_lt_u32 s{sT0}, 1968')
        a(f's_cbranch_scc1 {lab}')
    def edge_mask(tau, tr):
        a(f'v_mbcnt_lo_u32_b32 {vr(tr)}, -1, 0')
        a(f'v_mbcnt_hi_u32_b32 {vr(tr)}, -1, {vr(tr)}')
        a(f'v_lshrrev_b32 {vr(tr)}, 4, {vr(tr)}')
        a(f's_sub_u32 s{sT0}, s{sQB}, 34')
        a(f's_movk_i32 s{sT1}, 2046')
        a(f'v_lshl_add_u32 {vr(tr)}, {vr(tr)}, 2, s{sT0}')
        a(f'v_mov_b32 {vr(vM)}, 0x{NEG:08x}')
        a('s_nop 3')
        for sl in range(5):
            for r in range(4):
                a(f'v_add_u32 {vr(vT)}, {16*SLOTW[tau][sl]+r}, {vr(tr)}')
                a(f'v_cmp_gt_u32 vcc, s{sT1}, {vr(vT)}')
                a('s_nop 1')
                a(f'v_cndmask_b32 {vr(S+4*sl+r)}, {vr(vM)}, {vr(S+4*sl+r)}, vcc')
        for l in maxtree_l([S+x for x in range(22)], vM): a(l)
    def epi(t, tau=0):
        l = [f'v_mul_f32 {vr(O+4*t+e)}, {vr(O+4*t+e)}, {vr(vT0)}' for e in range(4)]
        l += [f'v_cvt_pk_bf16_f32 {vr(O+4*t)}, {vr(O+4*t)}, {vr(O+4*t+1)}',
              f'v_cvt_pk_bf16_f32 {vr(O+4*t+1)}, {vr(O+4*t+2)}, {vr(O+4*t+3)}',
              f'ds_write_b64 {vr(vSW)}, {vr(O+4*t,2)} offset:{32*t + 16*STGP*tau}']
        return l
    def stage_reads(tau=0, R=O):
        return [f'ds_read_b128 {vr(R+4*j,4)}, {vr(vSR)} offset:{4*STGP*j + 16*STGP*tau}' for j in range(4)]
    def stores(tau, R=O, extra=0):
        for j in range(4):
            a(f's_waitcnt lgkmcnt({3-j+extra})')
            if tau == 0 and j == 0: a(f's_mov_b64 exec, {sr(sEX,2)}')
            a(f'buffer_store_dwordx4 {vr(R+4*j,4)}, {vr(vOO)}, {sr(sO,4)}, s{sTOFF if tau else sZERO} offen offset:{1024*j} {stpol}')
            if tau == 0 and j == 0: a('s_mov_b64 exec, -1')
    RA = kf(1, 0)
    def late_a():
        for l in stage_reads(0, RA): a(l)
        stores(0, RA)
    def softmax_pv(tau):
        m = vM
        xred(m, vT)
        a(f'v_mul_f32 {vr(m)}, s{sCS}, {vr(m)}')
        set0 = [S+x for x in range(8)]; set1 = [S+8+x for x in range(8)]; set2 = [S+16+x for x in range(6)]
        for l in fma_l(set0, m): a(l)
        f2 = fma_l(set2, m); f1 = fma_l(set1, m)
        for l in exp_l(set0): a(l)
        a(f2[0])
        for l in cvt_l(S, S, 4): a(l)
        a(f2[1])
        a('s_waitcnt lgkmcnt(0)' if tau == 1 else 's_waitcnt lgkmcnt(8)')
        if tau == 1 and apos == 1: late_a()
        ONES, LACC = S+4, S+20
        v2 = f2[2:] + exp_l(set2) + [f'v_mov_b32 {vr(ONES+n)}, 0x3f803f80' for n in range(4)] + cvt_l(S+16, S+16, 3) \
             + [f'v_mov_b32 {vr(S+19)}, 0', f'v_cndmask_b32 {vr(S+18)}, 0, {vr(S+18)}, {sr(sKG0,2)}']
        inter([mfma(X[t], X[t+1], S, '0') for t in range(8)], v2 + f1[:2])
        v1 = f1[2:] + exp_l(set1) + [f'v_mov_b32 {vr(vT0)}, 0'] + cvt_l(S+8, S+8, 4)
        inter([mfma(O+4*t, VG+4*t, S+16, O+4*t) for t in range(8)], v1)
        a(mfma(LACC, ONES, S, '0'))
        a(mfma(LACC, ONES, S+16, LACC))
        a(mfma(LACC, ONES, S+8, LACC))
        if tau == 0:
            a('s_waitcnt lgkmcnt(0)')
        for t in range(8):
            a(mfma(O+4*t, buf[t], S+8, O+4*t))
            if tau == 0: a(vread(VG+4*t, t, 1))
        a(f'v_rcp_f32 {vr(vT0)}, {vr(LACC)}')

    late = []
    for t in range(8):
        late += [vread(buf[t], t, 2), vread(buf[t]+2, t, 3)]
    vgr = [vread(VG+4*t, t, 4) for t in range(8)]
    edge_test(0, 'L_fastA')
    for l in vgr: a(l)
    for sl in ('G', 0, 1, 2, 3, 4):
        for l in qk(0, sl): a(l)
    for l in late: a(l)
    edge_mask(0, vT0)
    a('s_branch L_joinA')
    a.label('L_fastA')
    m = vM
    inter(qk(0, 0) + qk(0, 'G'), vgr, per=1)
    inter(qk(0, 1) + qk(0, 2), late[:8], per=1)
    inter(qk(0, 3), maxtree_l([S+20, S+21, S+0], m) + maxtree_l([S+1, S+2, S+3, S+4, S+5, S+6], m, False), per=1)
    inter(qk(0, 4), maxtree_l([S+7, S+8, S+9, S+10], m, False), per=1)
    for l in late[8:11]: a(l)
    for l in maxtree_l([S+11, S+12], m, False): a(l)
    for l in late[11:13]: a(l)
    for l in maxtree_l([S+13, S+14, S+15], m, False): a(l)
    for l in late[13:]: a(l)
    for l in maxtree_l([S+16, S+17, S+18, S+19], m, False): a(l)
    a.label('L_joinA')
    stamp(fine)
    softmax_pv(0)
    stamp(fine)
    ep = []
    for t in range(8): ep += epi(t)
    if apos == 0: ep += stage_reads()
    xb = []
    for t in range(8): xb += [vread(X[t+1], t, 4), vread(X[t+1]+2, t, 5)]
    def qb_wait(n):
        a(f's_waitcnt vmcnt({n+2})')
        if opt.get('otouch'):
            a(f's_and_b32 s{sT0}, s{sWV}, 3')
            a(f's_cmp_eq_u32 s{sT0}, 3')
        else:
            a(f's_cmp_eq_u32 s{sWV}, {RW}')
        a('s_cbranch_scc1 L_qbw')
        a(f's_waitcnt vmcnt({n})')
        a.label('L_qbw')
    if not merge:
        a('s_nop 0')
        for l in ep: a(l)
        stores(0)
        for l in xb: a(l)
        qb_wait(4)
        stamp()
        edge_test(1, 'L_fastB')
        for sl in ('G', 0, 1, 2, 3, 4):
            for l in qk(1, sl): a(l)
        edge_mask(1, vT0)
        a('s_branch L_joinB')
        a.label('L_fastB')
        for sl in ('G', 0, 1, 2):
            for l in qk(1, sl): a(l)
        inter(qk(1, 3), maxtree_l([S+20, S+21, S+0], m) + maxtree_l([S+1, S+2], m, False), per=1)
        inter(qk(1, 4), maxtree_l([S+3, S+4, S+5, S+6, S+7, S+8], m, False), per=1)
        a.nop(1)
        for l in maxtree_l([S+9, S+10, S+11, S+12], m, False): a(l)
        a.nop(1)
        for l in maxtree_l([S+13, S+14, S+15], m, False): a(l)
        a.nop(2)
        for l in maxtree_l([S+16, S+17, S+18, S+19], m, False): a(l)
    else:
        qb_wait(0)
        stamp()
        edge_test(1, 'L_fastB')
        for l in ep: a(l)
        if apos == 0: stores(0)
        for sl in (0, 1, 2, 3, 4, 'G'):
            for l in qk(1, sl): a(l)
        for l in xb: a(l)
        edge_mask(1, vT0)
        a('s_branch L_joinB')
        a.label('L_fastB')
        ms = []
        for sl in (0, 1, 2, 3, 4, 'G'): ms += qk(1, sl)
        inter(ms, ep, per=3)
        for l in maxtree_l([S+x for x in range(15)], vT0): a(l)
        if apos == 0: stores(0)
        for l in xb: a(l)
        a(f'v_max3_f32 {vr(vM)}, {vr(vT0)}, {vr(S+15)}, {vr(S+16)}')
        for l in maxtree_l([S+17, S+18, S+19, S+20, S+21], vM, False): a(l)
    a.label('L_joinB')
    stamp()
    a(f's_cmp_eq_u32 s{sCMB}, 0')
    a('s_cbranch_scc1 L_nohand')
    hand_loads()
    a.label('L_nohand')
    softmax_pv(1)
    stamp(fine)
    if apos == 2:
        late_a()
    a('s_nop 0')
    if apos == 3:
        for l in stage_reads(0, RA): a(l)
    for t in range(8):
        for l in epi(t, 1): a(l)
    for l in stage_reads(1): a(l)
    if apos == 3:
        stores(0, RA, extra=4+8) if False else None
        for j in range(4):
            if j == 0: a(f's_mov_b64 exec, {sr(sEX,2)}')
            if j == 0: a('s_waitcnt lgkmcnt(4)')
            a(f'buffer_store_dwordx4 {vr(RA+4*j,4)}, {vr(vOO)}, {sr(sO,4)}, s{sZERO} offen offset:{1024*j} {stpol}')
            if j == 0: a('s_mov_b64 exec, -1')
    stores(1)
    stamp()

    a(f's_cmp_eq_u32 s{sCMB}, 0')
    a('s_cbranch_scc1 L_fin')
    a(f's_waitcnt vmcnt({4 if apos == 0 else 8})')
    a(f's_mov_b32 s{sCNT}, 0')
    a(f's_mov_b32 s{sT2}, 0')
    a.label('L_chk')
    a(f's_mov_b32 s{sT3}, s{sT2}')
    for n in range(8):
        a(f'v_cmp_eq_u32 vcc, s{sN}, {vr(HB+8*n+3)}')
        a(f'v_cmp_eq_u32 s[60:61], s{sN}, {vr(HB+8*n+7)}')
        a('s_nop 0')
        a('s_and_b64 vcc, vcc, s[60:61]')
        a('s_cmp_eq_u64 vcc, exec')
        a(f's_cselect_b32 s{sT0}, {1 << n}, 0')
        a(f's_or_b32 s{sT3}, s{sT3}, s{sT0}')
    a(f's_add_u32 s{sCNT}, s{sCNT}, 1')
    a(f's_cmp_eq_u32 s{sT3}, 0xff')
    a('s_cbranch_scc1 L_ready')
    a(f's_cmp_ge_u32 s{sCNT}, 0x40000')
    a('s_cbranch_scc1 L_ready')
    a(f's_lshl_b32 s{sT0}, s{sH}, 3')
    a(f'v_mov_b32 {vr(KG+1)}, s{sT0}')
    a(f'global_load_dword {vr(KG+2)}, {vr(KG+1)}, s[16:17] offset:4 sc0 sc1')
    a('s_waitcnt vmcnt(0)')
    a(f'v_readfirstlane_b32 s{sT2}, {vr(KG+2)}')
    hand_loads()
    a('s_waitcnt vmcnt(0)')
    a('s_branch L_chk')
    a.label('L_ready')
    hog = [[HB+8*n, HB+8*n+1, HB+8*n+2, HB+8*n+4] for n in range(8)]
    hmg = [HB+8*n+5 for n in range(8)]
    combine(hog, hmg, X8)
    a(f'v_rcp_f32 {vr(X8)}, {vr(hmg[0]+1)}')
    a(f'v_lshrrev_b32 {vr(KG)}, 1, {vr(KG)}')
    for e in range(4):
        a(f'v_mul_f32 {vr(hog[0][e])}, {vr(hog[0][e])}, {vr(X8)}')
    a(f'v_cvt_pk_bf16_f32 {vr(X8+2)}, {vr(hog[0][0])}, {vr(hog[0][1])}')
    a(f'v_cvt_pk_bf16_f32 {vr(X8+3)}, {vr(hog[0][2])}, {vr(hog[0][3])}')
    a(f'buffer_store_dwordx2 {vr(X8+2,2)}, {vr(KG)}, {sr(sO,4)}, 0 offen {stpol}')
    a.label('L_fin')
    if stamps:
        stamp()
        a('s_waitcnt vmcnt(0)')
        stamp()
        if opt.get('clk'):
            a('s_memtime s[98:99]')
            a('s_waitcnt lgkmcnt(0)')
            a('s_sub_u32 s98, s98, s96')
            a(f's_add_u32 s{64+2*nst[0]}, s98, s64')
            nst[0] += 1
        a(f's_lshl_b32 s{sT0}, s2, 3')
        a(f's_add_u32 s{sT0}, s{sT0}, s{sWV}')
        a(f's_lshl_b32 s{sT0}, s{sT0}, 6')
        a(f's_add_u32 s{sT0}, s{sT0}, 0x100000')
        a(f's_add_u32 s{sW}, s18, s{sT0}')
        a(f's_addc_u32 s{sW+1}, s19, 0')
        a(f'v_mov_b32 v1, 0')
        a('s_mov_b64 exec, 1')
        for n in range(min(16, nst[0])):
            a(f'v_mov_b32 v2, s{64+2*n}')
            a(f'buffer_store_dword v2, v1, {sr(sW,4)}, 0 offen offset:{4*n}')
        if 'leak' in opt:
            k = int(opt['leak'])
            a(f's_sub_u32 s{sT0}, s{64+2*k}, s64')
            a(f's_lshl_b32 s{sT0}, s{sT0}, 2')
            if opt.get('leakskew'):
                a.label('L_pre')
                a('s_memrealtime s[100:101]')
                a('s_waitcnt lgkmcnt(0)')
                a(f's_sub_u32 s{sT1}, s100, s64')
                a(f's_cmp_lt_u32 s{sT1}, 3000')
                a('s_cbranch_scc1 L_pre')
                a('s_mov_b64 exec, -1')
                a('v_mbcnt_lo_u32_b32 v3, -1, 0')
                a('v_and_b32 v3, 31, v3')
                a('v_lshlrev_b32 v3, 3, v3')
                a('global_load_dword v4, v3, s[16:17] sc0 sc1')
                a('s_waitcnt vmcnt(0)')
                a('v_readlane_b32 s20, v4, 0')
                a('s_mov_b32 s21, 0'); a('s_mov_b32 s22, 0')
                for n in range(1, 32):
                    a(f'v_readlane_b32 s23, v4, {n}')
                    a('s_nop 0')
                    a('s_sub_i32 s23, s23, s20')
                    a('s_min_i32 s21, s21, s23')
                    a('s_max_i32 s22, s22, s23')
                a(f's_sub_u32 s{sT0}, s22, s21')
                a(f's_min_u32 s{sT0}, s{sT0}, 2000')
                a(f's_lshl_b32 s{sT0}, s{sT0}, 2')
            if opt.get('leakcnt'):
                a(f's_mul_i32 s{sT0}, s{sCNT}, 500')
                a(f's_mul_i32 s{sT0}, s{sT0}, s{sCMB}')
            if 'leakw' in opt:
                a(f's_lshr_b32 s{sT1}, {opt["leakw"]}, s{sWV}')
                a(f's_bitcmp1_b32 s{sT1}, 0')
                a(f's_cselect_b32 s{sT0}, s{sT0}, 0')
            a(f"s_add_u32 s{sT0}, s{sT0}, {opt.get('spin', 5000)}")
            a.label('L_spin')
            a('s_memrealtime s[100:101]')
            a('s_waitcnt lgkmcnt(0)')
            a(f's_sub_u32 s{sT1}, s100, s64')
            a(f's_cmp_lt_u32 s{sT1}, s{sT0}')
            a('s_cbranch_scc1 L_spin')
    a.label('L_end')
    a('s_endpgm')
    if opt.get('cpf', True):
        a('.fill 4096, 4, 0xbf800000')

    check(a.lines)
    if stamps: print('stamps', nst[0])
    head = f'''; windowed + global-token attention, B=1 H=32 S=2048 D=128 bf16 (window 32, 2 global tokens)
; @launch grid=(256,1,1) block=(512,1,1) lds=163840
.amdgcn_target "amdgcn-amd-amdhsa--gfx950"
.text
.globl {NAME}
.p2align 8
.type {NAME},@function
{NAME}:
'''
    tail = f'''.section .rodata,"a"
.p2align 6
.amdhsa_kernel {NAME}
  .amdhsa_next_free_vgpr 256
  .amdhsa_next_free_sgpr {102 if stamps else 64}
  .amdhsa_accum_offset 256
  .amdhsa_group_segment_fixed_size 0
  .amdhsa_kernarg_size 64
  .amdhsa_user_sgpr_count 2
  .amdhsa_user_sgpr_kernarg_segment_ptr 1
  .amdhsa_system_sgpr_workgroup_id_x 1
.end_amdhsa_kernel
'''
    return head + a.text() + tail

if __name__ == '__main__':
    out = sys.argv[1]
    opt = {}
    for kv in sys.argv[2:]:
        k, v = kv.split('=', 1)
        opt[k] = {'True': True, 'False': False}.get(v, v.replace('+', ' '))
    open(out, 'w').write(gen(opt))
```

```python
import sys, math, struct
from asmlib import *

NAME = 'standalone__global_local_windowed_global_tokens__prompt_kernel'
def f2u(x): return struct.unpack('<I', struct.pack('<f', x))[0]

def gen(opt):
    a = Asm()
    NEG = 0xFF000000
    CSC = f2u(128 ** -0.5 * math.log2(math.e))
    KOFF, VOFF, SOFF = 0, 73728, 155648
    PART, STG = 0, 16384
    PARTML = SOFF + 3072
    LCNT, LNON = PARTML + 128, PARTML + 132
    STGP = 272
    ldpol = opt.get('ldpol', ''); qpol = opt.get('qpol', ''); stpol = opt.get('stpol', 'sc0 sc1 nt')
    N1 = int(opt.get('n1', 8)); N2 = int(opt.get('n2', 14))
    QYB = opt.get('qyb', 'b')
    QOB = opt.get('qob', 'v')
    hpos = opt.get('hpos', 'sm')
    merge = opt.get('merge', True)
    RW, FW, SW, HW = 3, 7, 5, 4
    CW, CC = int(opt.get('cw', 1)), 3
    sQ, sK, sV, sO, sW = 20, 24, 28, 32, 36
    sWV, sH, sC, sHO, sQ0B = 40, 43, 44, 45, 46
    sSLOT = 42
    sT0, sT1, sT2, sT3 = 47, 48, 49, 50
    sQB = 51; sCS = 52; sKG0 = 54; sEX = 56; sCMB = 58; sCNT = 59; sBK = 62; sN = 63; sTOFF = 0; sZERO = 3
    VA = 0
    vSW, vSR, vOO, vT0 = 8, 9, 10, 11
    X8 = 12
    KF = 16; KG = 112; QA, QB = 128, 144; VG = 160; O = 192; S = 224
    BLO, BHI = 248, 252
    kf = lambda W, ks: KF + 16 * W + 4 * ks
    X = [O + 4 * n for n in range(8)] + [X8]
    vLANE, vI, vKGp, vDK, vDV, vDQ, vML, vNEG, vAK = O+16, O+17, O+18, O+19, O+20, O+21, O+22, O+23, O+24
    vAVG, t1, t2, t3 = O+28, O+29, O+30, O+31
    vAG = vT0
    vM, vT = S + 22, S + 23
    vDQk = VG + 7

    stamps = opt.get('stamps', False); fine = opt.get('fine', False)
    nst = [0]
    def stamp(on=True):
        if stamps and on:
            a(f's_memrealtime s[{64+2*nst[0]}:{65+2*nst[0]}]')
            if nst[0]: a('s_waitcnt lgkmcnt(0)')
            nst[0] += 1
    M16 = 'v_mfma_f32_16x16x32_bf16'
    def mfma(d, x, y, c):
        return f'{M16} {vr(d,4)}, {vr(x,4)}, {vr(y,4)}, {c if isinstance(c,str) else vr(c,4)}'
    def only(w, lab):
        a(f's_cmp_lg_u32 s{sWV}, {w}')
        a(f's_cbranch_scc1 {lab}')
    def emit(ls):
        for l in ls: a(l)
    def qld(tile, ks, voff=None):
        Q = QB if tile else QA
        return f'buffer_load_dwordx4 {vr(Q+4*ks,4)}, {vr(voff or vDQ)}, {sr(sQ,4)}, s{sTOFF if tile else sZERO} offen offset:{64*ks} {qpol}'
    qall = lambda tile, voff=None: [qld(tile, ks, voff) for ks in range(4)]

    stamp()
    a('s_load_dwordx16 s[4:19], s[0:1], 0')
    a(f'v_readfirstlane_b32 s{sWV}, v0')
    a('s_cmp_ge_u32 s2, 256')
    a('s_cbranch_scc1 L_end')
    a(f'v_lshrrev_b32 {vr(t1)}, 4, v0')
    a(f'v_xor_b32 {vr(vDK)}, {vr(t1)}, v0')
    a(f'v_and_b32 {vr(vDK)}, 15, {vr(vDK)}')
    a(f'v_lshl_add_u32 {vr(vDK)}, {vr(t1)}, 4, {vr(vDK)}')
    a(f's_bfe_u32 s{sC}, s2, 0x30003')
    a(f's_lshl_b32 s{sQ0B}, s{sC}, 16')
    a(f'v_lshl_add_u32 {vr(vDK)}, {vr(vDK)}, 4, s{sQ0B}')
    a('s_and_b32 s41, s2, 7')
    a(f's_lshr_b32 s{sH}, s2, 6')
    a(f's_lshl2_add_u32 s{sH}, s41, s{sH}')
    a(f's_lshl_b32 s{sHO}, s{sH}, 19')
    a(f's_lshl_b32 m0, s{sWV}, 4')
    a(f's_mov_b32 s{sK+2}, 0x80000')
    a(f's_mov_b32 s{sK+3}, 0x20000')
    a(f's_movk_i32 s{sCNT}, 17')
    a(f's_getpc_b64 s[{sEX}:{sEX+1}]')
    a(f'v_lshlrev_b32 v1, 5, v0')
    a(f'global_load_dword {vr(X8)}, v1, s[{sEX}:{sEX+1}]')
    a(f's_cmp_ge_u32 s{sWV}, 256')
    a('s_cbranch_scc1 L_helper')
    a('s_waitcnt lgkmcnt(0)')
    stamp()
    a(f's_add_u32 s{sK}, s6, s{sHO}')
    a(f's_addc_u32 s{sK+1}, s7, 0')
    a.label('L_kloop')
    a(f'buffer_load_dwordx4 {vr(vDK)}, {sr(sK,4)}, 0 offen {ldpol} lds')
    a('s_add_u32 m0, m0, 0x1000')
    a(f'v_add_u32 {vr(vDK)}, 0x1000, {vr(vDK)}')
    a(f's_sub_u32 s{sCNT}, s{sCNT}, 1')
    a('s_cbranch_scc0 L_kloop')
    def common():
        a(f's_lshr_b32 s{sWV}, s{sWV}, 6')
        a(f'v_and_b32 {vr(vLANE)}, 63, v0')
        a(f'v_and_b32 {vr(vI)}, 15, v0')
        a(f'v_bfe_u32 {vr(vKGp)}, v0, 4, 2')
        for s_ in (sV, sQ):
            a(f's_mov_b32 s{s_+2}, 0x80000')
            a(f's_mov_b32 s{s_+3}, 0x20000')
        a(f's_mov_b32 s{sW+2}, 0x4000')
        a(f's_mov_b32 s{sW+3}, 0x20000')
        a(f's_and_b32 s{sBK}, s{sWV}, 3')
        a(f's_lshl_b32 s{sT1}, s{sBK}, 10')
        a(f's_and_b32 s{sT0}, s{sWV}, 1')
        a(f's_lshl_b32 s{sT0}, s{sT0}, 2')
        a(f'v_add_lshl_u32 {vr(vDV)}, s{sT0}, {vr(vKGp)}, 1')
        a(f'v_xor_b32 {vr(vDV)}, {vr(vDV)}, {vr(vI)}')
        a(f'v_lshlrev_b32 {vr(vDV)}, 4, {vr(vDV)}')
        a(f'v_lshl_add_u32 {vr(vDV)}, {vr(vKGp)}, 8, {vr(vDV)}')
        a(f's_add_u32 s{sT2}, s{sT1}, s{sQ0B}')
        a(f's_sub_u32 s{sT2}, s{sT2}, 0x2000')
        a(f'v_add_u32 {vr(vDV)}, s{sT2}, {vr(vDV)}')
        a(f's_lshl_b32 s{sBK}, s{sBK}, 1')
        a(f's_cmp_lt_u32 s{sWV}, 4')
        a(f's_addc_u32 s{sBK}, s{sBK}, 0')
        a(f's_cmp_eq_u32 s{sC}, 0')
        a(f's_cselect_b32 s{sT3}, 0x40000000, 0')
        a(f's_lshl_b32 s{sT0}, s{sBK}, 13')
        a(f's_add_u32 s{sT0}, s{sT0}, s{sQ0B}')
        a(f'v_lshlrev_b32 {vr(vDQ)}, 4, {vr(vKGp)}')
        a(f'v_lshl_add_u32 {vr(vDQ)}, {vr(vI)}, 8, {vr(vDQ)}')
        a(f'v_add_u32 {vr(vDQ)}, s{sT0}, {vr(vDQ)}')
        a(f'v_lshlrev_b32 {vr(t3)}, 4, {vr(vLANE)}')
        a(f's_lshl_b32 s41, s{sH}, 14')
        a(f's_lshl_b32 s{sSLOT}, s{sC}, 11')
        a(f's_movk_i32 s{sTOFF}, 0x1000')
        a(f's_mov_b32 s{sZERO}, 0')
    def srds():
        a(f's_add_u32 s{sV}, s8, s{sHO}')
        a(f's_addc_u32 s{sV+1}, s9, 0')
        a(f's_add_u32 s{sQ}, s4, s{sHO}')
        a(f's_addc_u32 s{sQ+1}, s5, 0')
        a(f's_add_u32 s{sW}, s18, s41')
        a(f's_addc_u32 s{sW+1}, s19, 0')
    common()
    a(f's_mov_b32 s{sN}, 0')
    srds()
    def vpiece(i, first=False):
        if not first:
            a('s_add_u32 m0, m0, 0x1000')
            a(f'v_add_u32 {vr(vDV)}, 0x1000, {vr(vDV)}')
        if i < 2:
            a(f'v_add_u32 {vr(t1)}, s{sT3}, {vr(vDV)}')
            a(f'buffer_load_dwordx4 {vr(t1)}, {sr(sV,4)}, 0 offen {ldpol} lds')
        else:
            a(f'buffer_load_dwordx4 {vr(vDV)}, {sr(sV,4)}, 0 offen {ldpol} lds')
    def vpart(lo, hi, qs, first=False):
        qs = list(qs); n = hi - lo; nq = len(qs)
        at = [lo + n * (x + 1) // (nq + 1) - 1 for x in range(nq)]
        after = 0
        for i in range(lo, hi):
            vpiece(i, first and i == lo); after += 1
            while qs and at[0] <= i:
                a(qs.pop(0)); at.pop(0); after = 0
        return after
    a(f's_add_u32 m0, s{sT1}, {VOFF}')
    after_qa = vpart(0, N1, qall(0), first=True)
    a('s_branch L_setup')
    a.label('L_helper')
    a('s_setprio 3')
    a('s_memrealtime s[60:61]')
    common()
    a(f's_sub_u32 s{sT0}, s{sT3}, 0x2000')
    a(f'v_add_u32 {vr(t1)}, s{sT0}, {vr(vDQ)}')
    a(f'v_add_u32 {vr(t2)}, 0x1000, {vr(t1)}')
    a(f's_mov_b32 m0, {SOFF}')
    a('s_waitcnt lgkmcnt(0)')
    if stamps:
        nst[0] -= 1
        stamp()
    a(f's_add_u32 s{sK}, s6, s{sHO}')
    a(f's_addc_u32 s{sK+1}, s7, 0')
    srds()
    a(f's_or_b32 s{sN}, s60, 1')
    only(SW, 'L_nosmall')
    for n, srd in enumerate((sK, sQ, sV)):
        if n:
            a(f's_mov_b32 m0, {SOFF + 1024*n}')
            a('s_nop 0')
        a(f'buffer_load_dwordx4 {vr(t3)}, {sr(srd,4)}, 0 offen lds')
    a.label('L_nosmall')
    only(HW, 'L_nohalo')
    for T in range(2):
        for ks in range(4):
            a(f'buffer_load_dwordx4 {vr(kf(T,ks),4)}, {vr(t1+T)}, {sr(sK,4)}, 0 offen offset:{64*ks}')
    a.label('L_nohalo')
    emit(qall(0))
    only(FW, 'L_noclear')
    a(f's_lshl_b32 s{sT0}, s{sH}, 3')
    a(f'v_mov_b32 {vr(S+4)}, s{sT0}')
    a(f'v_mov_b32 {vr(S+5)}, s{sN}')
    a(f'v_mov_b32 {vr(S+6)}, {LCNT}')
    a(f'v_mov_b32 {vr(S+7)}, 0')
    a('s_mov_b64 exec, 1')
    a(f's_cmp_lg_u32 s{sC}, {CC}')
    a('s_cbranch_scc1 L_nopub')
    a(f'global_store_dword {vr(S+4)}, {vr(S+5)}, s[16:17] sc0 sc1')
    a.label('L_nopub')
    a(f'ds_write_b32 {vr(S+6)}, {vr(S+7)}')
    a('s_mov_b64 exec, -1')
    a.label('L_noclear')
    a('s_setprio 0')
    a(f's_add_u32 m0, s{sT1}, {VOFF + 0x1000*N2}')
    a(f'v_add_u32 {vr(vDV)}, {0x1000*N2}, {vr(vDV)}')
    a.label('L_setup')
    stamp()

    a(f's_add_u32 s{sO}, s14, s{sHO}')
    a(f's_addc_u32 s{sO+1}, s15, 0')
    a(f's_mov_b32 s{sO+2}, 0x80000')
    a(f's_mov_b32 s{sO+3}, 0x20000')
    a(f's_mov_b32 s{sCS}, 0x{CSC:08x}')
    a(f's_mov_b32 s{sCS+1}, 0x{CSC:08x}')
    a(f'v_mov_b32 {vr(vNEG)}, 0x{NEG:08x}')
    a(f'v_lshlrev_b32 {vr(t2)}, 2, {vr(vKGp)}')
    a(f'v_cmp_eq_u32 {sr(sKG0,2)}, 0, {vr(vKGp)}')
    for r in range(4):
        a(f'v_add_u32 {vr(t1)}, {r}, {vr(t2)}')
        a(f'v_cmp_ge_u32 vcc, {vr(t1)}, {vr(vI)}')
        a(f'v_cmp_le_u32 s[60:61], {vr(t1)}, {vr(vI)}')
        a('s_nop 0')
        a(f'v_cndmask_b32 {vr(BLO+r)}, {vr(vNEG)}, 0, vcc')
        a(f'v_cndmask_b32 {vr(BHI+r)}, {vr(vNEG)}, 0, s[60:61]')
    a(f's_lshl_b32 s{sT0}, s{sBK}, 13')
    a(f'v_xor_b32 {vr(t1)}, {vr(vKGp)}, {vr(vI)}')
    a(f'v_lshlrev_b32 {vr(t1)}, 4, {vr(t1)}')
    a(f'v_lshl_add_u32 {vr(t1)}, {vr(vI)}, 8, {vr(t1)}')
    a(f'v_add_u32 {vr(vAK)}, s{sT0}, {vr(t1)}')
    for ks in range(1, 4):
        a(f'v_xor_b32 {vr(vAK+ks)}, {64*ks}, {vr(vAK)}')
    a(f'v_and_b32 {vr(t1)}, 1, {vr(vI)}')
    a(f'v_lshlrev_b32 {vr(vML)}, 3, {vr(t1)}')
    a(f'v_lshlrev_b32 {vr(t1)}, 8, {vr(t1)}')
    a(f'v_lshl_add_u32 {vr(t1)}, {vr(vKGp)}, 4, {vr(t1)}')
    a(f'v_add_u32 {vr(vAG)}, {SOFF}, {vr(t1)}')
    a(f'v_bfe_u32 {vr(t1)}, {vr(vLANE)}, 2, 2')
    a(f'v_and_b32 {vr(t2)}, 3, {vr(vLANE)}')
    a(f'v_lshlrev_b32 {vr(t2)}, 3, {vr(t2)}')
    a(f'v_lshl_add_u32 {vr(t1)}, {vr(t1)}, 8, {vr(t2)}')
    a(f'v_add_u32 {vr(vAVG)}, {SOFF+2048}, {vr(t1)}')
    a(f'v_lshrrev_b32 {vr(t1)}, 2, {vr(vLANE)}')
    a(f'v_and_b32 {vr(vNEG)}, 7, {vr(t1)}')
    a(f'v_lshl_add_u32 {vr(t2)}, {vr(vNEG)}, 5, {vr(t2)}')
    a(f'v_lshl_add_u32 {vr(t2)}, {vr(t1)}, 8, {vr(t2)}')
    a(f's_add_u32 s{sT1}, s{sT0}, {VOFF}')
    a(f'v_add_u32 {vr(VA)}, s{sT1}, {vr(t2)}')
    for t in range(1, 8):
        a(f'v_xor_b32 {vr(VA+t)}, {32*t}, {vr(VA)}')
    a(f's_mul_i32 s{sT1}, s{sWV}, {16*STGP}')
    a(f's_add_u32 s{sT1}, s{sT1}, {STG}')
    a(f'v_mul_u32_u24 {vr(t1)}, {STGP}, {vr(vI)}')
    a(f'v_lshl_add_u32 {vr(t1)}, {vr(vKGp)}, 3, {vr(t1)}')
    a(f'v_add_u32 {vr(vSW)}, s{sT1}, {vr(t1)}')
    a(f'v_mul_u32_u24 {vr(t1)}, {STGP}, {vr(vKGp)}')
    a(f'v_lshl_add_u32 {vr(t1)}, {vr(vI)}, 4, {vr(t1)}')
    a(f'v_add_u32 {vr(vSR)}, s{sT1}, {vr(t1)}')
    a(f's_add_u32 s{sT0}, s{sT0}, s{sQ0B}')
    a(f'v_add_u32 {vr(vOO)}, s{sT0}, {vr(t3)}')
    a(f's_lshr_b32 s{sQB}, s{sT0}, 8')
    a(f's_cmp_eq_u32 s{sQB}, 0')
    a(f's_cselect_b32 s{sEX}, 0, -1')
    a(f's_mov_b32 s{sEX+1}, -1')
    cblk = 2*CW + 1 if CW < 4 else 2*(CW-4)
    a(f's_cmp_eq_u32 s{sQB}, {256*CC+32*cblk}')
    a(f's_cselect_b32 s{sCMB}, 1, 0')
    a(f's_lshl_b32 s{sT0}, s{sWV}, 4')
    a(f's_add_u32 s{sT0}, s{sT0}, {PARTML}')
    a(f'v_add_u32 {vr(vML)}, s{sT0}, {vr(vML)}')

    def xred(m, t, op='v_max_f32'):
        return [f'v_mov_b32 {vr(t)}, {vr(m)}', 's_nop 1', f'v_permlane16_swap_b32 {vr(m)}, {vr(t)}', f'{op} {vr(m)}, {vr(m)}, {vr(t)}',
                f'v_mov_b32 {vr(t)}, {vr(m)}', 's_nop 1', f'v_permlane32_swap_b32 {vr(m)}, {vr(t)}', f'{op} {vr(m)}, {vr(m)}, {vr(t)}']
    def maxtree_l(vals, m, first=True):
        out = []; rest = list(vals)
        if first:
            out.append(f'v_max3_f32 {vr(m)}, {vr(rest[0])}, {vr(rest[1])}, {vr(rest[2])}'); rest = rest[3:]
        while len(rest) >= 2:
            out.append(f'v_max3_f32 {vr(m)}, {vr(m)}, {vr(rest[0])}, {vr(rest[1])}'); rest = rest[2:]
        if rest:
            out.append(f'v_max_f32 {vr(m)}, {vr(m)}, {vr(rest[0])}')
        return out
    def fma_l(vals, mc):
        return [f'v_pk_fma_f32 {vr(vals[n],2)}, {vr(vals[n],2)}, {sr(sCS,2)}, {vr(mc,2)} op_sel_hi:[1,1,0] neg_lo:[0,0,1] neg_hi:[0,0,1]' for n in range(0, len(vals), 2)]
    exp_l = lambda vals: [f'v_exp_f32 {vr(v)}, {vr(v)}' for v in vals]
    cvt_l = lambda dst, src, n: [f'v_cvt_pk_bf16_f32 {vr(dst+k)}, {vr(src+2*k)}, {vr(src+2*k+1)}' for k in range(n)]
    def vread(dst, t, W):
        return f'ds_read_b64_tr_b16 {vr(dst,2)}, {vr(VA+t)} offset:{4096*W}'
    buf = [kf(0, n) for n in range(4)] + [QA + 4*n for n in range(4)]
    SLOTW = {0: [0, 1, 2, 3, 4], 1: [4, 5, 2, 3, 1]}
    def qk(tau, sl):
        Q = QA if tau == 0 else QB
        if sl == 'G':
            return [mfma(S+20, KG+4*ks, Q+4*ks, '0' if ks == 0 else S+20) for ks in range(4)]
        W = SLOTW[tau][sl]
        c0 = BLO if W == tau else BHI if W == tau + 4 else '0'
        return [mfma(S+4*sl, kf(W,ks), Q+4*ks, c0 if ks == 0 else S+4*sl) for ks in range(4)]
    def edge_test(tau, lab):
        a(f's_sub_u32 s{sT0}, s{sQB}, {48 - 16*tau}')
        a(f's_cmp_lt_u32 s{sT0}, 1968')
        a(f's_cbranch_scc1 {lab}')
    def edge_mask(tau, tr):
        a(f'v_mbcnt_lo_u32_b32 {vr(tr)}, -1, 0')
        a(f'v_mbcnt_hi_u32_b32 {vr(tr)}, -1, {vr(tr)}')
        a(f'v_lshrrev_b32 {vr(tr)}, 4, {vr(tr)}')
        a(f's_sub_u32 s{sT0}, s{sQB}, 34')
        a(f's_movk_i32 s{sT1}, 2046')
        a(f'v_lshl_add_u32 {vr(tr)}, {vr(tr)}, 2, s{sT0}')
        a('s_nop 3')
        a(f'v_mov_b32 {vr(vM)}, 0x{NEG:08x}')
        for sl in range(5):
            for r in range(4):
                a(f'v_add_u32 {vr(vT)}, {16*SLOTW[tau][sl]+r}, {vr(tr)}')
                a(f'v_cmp_gt_u32 vcc, s{sT1}, {vr(vT)}')
                a('s_nop 1')
                a(f'v_cndmask_b32 {vr(S+4*sl+r)}, {vr(vM)}, {vr(S+4*sl+r)}, vcc')
    ONES, LACC = S+4, S+20
    set0 = [S+x for x in range(8)]; set1 = [S+8+x for x in range(8)]; set2 = [S+16+x for x in range(6)]
    fin2 = cvt_l(S+16, S+16, 3) + [f'v_mov_b32 {vr(S+19)}, 0', f'v_cndmask_b32 {vr(S+18)}, 0, {vr(S+18)}, {sr(sKG0,2)}']
    ones = [f'v_mov_b32 {vr(ONES+n)}, 0x3f803f80' for n in range(4)]
    def kg_reads():
        return [f'ds_read_b128 {vr(KG+4*ks,4)}, {vr(vAG)} offset:{64*ks}' for ks in range(4)]
    def kreads():
        l = []
        for W in (2, 3, 4, 5):
            l += [f'ds_read_b128 {vr(kf(W,ks),4)}, {vr(vAK+ks)} offset:{4096*(W-2)}' for ks in range(4)]
        l += kg_reads()
        l += [f'ds_read_b64_tr_b16 {vr(VG+4*t+2,2)}, {vr(vAVG)} offset:{32*t}' for t in range(8)]
        return l
    def k01reads():
        l = [f'v_subrev_u32 {vr(vAK+ks)}, 0x2000, {vr(vAK+ks)}' for ks in range(4)]
        for W in (0, 1):
            l += [f'ds_read_b128 {vr(kf(W,ks),4)}, {vr(vAK+ks)} offset:{4096*W}' for ks in range(4)]
        return l
    def softmax_a(nm):
        for sl in ('G', 0, 1, 2, 3, 4): emit(qk(0, sl))
        edge_test(0, f'L_noedgeA{nm}')
        edge_mask(0, t1)
        a.label(f'L_noedgeA{nm}')
        a('s_nop 4')
        emit(maxtree_l([S+20, S+21] + [S+x for x in range(20)], vM))
        emit(xred(vM, vT))
        a(f'v_mul_f32 {vr(vM)}, s{sCS}, {vr(vM)}')
        emit(fma_l(set0 + set1 + set2, vM))
        emit(exp_l(set0 + set1 + set2))
        emit(['s_nop 0'] + cvt_l(S, S, 4) + cvt_l(S+8, S+8, 4) + fin2 + ones)
    lmf = [mfma(LACC, ONES, S, '0'), mfma(LACC, ONES, S+16, LACC), mfma(LACC, ONES, S+8, LACC)]
    def read_tag():
        a(f'v_mov_b32 {vr(X[0])}, {LNON}')
        a(f'ds_read_b32 {vr(X[0])}, {vr(X[0])}')
        a('s_waitcnt lgkmcnt(0)')
        a(f'v_readfirstlane_b32 s{sN}, {vr(X[0])}')

    a(f's_cmp_lt_u32 s{sWV}, 4')
    a('s_cbranch_scc1 L_p1g')
    a(f's_cmp_eq_u32 s{sWV}, {FW}')
    a('s_cbranch_scc1 L_kw')
    a('s_waitcnt vmcnt(4)')
    a.label('L_kw')
    a('s_waitcnt lgkmcnt(0)')
    a('s_barrier')
    stamp()
    TG = O + 12
    nq = 0
    a('s_setprio 3')
    if QYB == 'b': emit(qall(1)); nq = 4
    only(FW, 'L_notag')
    a(f's_lshl_b32 s{sT0}, s{sH}, 3')
    a(f'v_mov_b32 {vr(TG)}, s{sT0}')
    a(f'global_load_dword {vr(TG+3)}, {vr(TG)}, s[16:17]')
    a.label('L_notag')
    a('s_setprio 0')
    emit(kreads())
    a(f's_cmp_eq_u32 s{sWV}, {HW}')
    a('s_cbranch_scc1 L_k01done')
    emit(k01reads())
    a.label('L_k01done')
    a(f's_cmp_eq_u32 s{sWV}, {FW}')
    a('s_cbranch_scc1 L_qaw')
    a(f's_waitcnt vmcnt({nq})')
    a.label('L_qaw')
    a(f's_waitcnt vmcnt({nq+1}) lgkmcnt(0)')
    softmax_a('Y')
    if opt.get('vprio', True): a('s_setprio 3')
    vpart(N2, 20, qall(1) if QYB == 'v' else [], first=True)
    a('s_setprio 0')
    if QYB == 'e': a(f'v_mov_b32 {vr(vDQk)}, {vr(vDQ)}')
    stamp(fine)
    a('s_waitcnt vmcnt(0)')
    only(FW, 'L_tagdone')
    a(f'v_mov_b32 {vr(TG+1)}, s{sN}')
    a(f'v_mov_b32 {vr(TG+2)}, {LNON}')
    a(f's_cmp_eq_u32 s{sC}, {CC}')
    a('s_cselect_b64 vcc, -1, 0')
    a(f'v_cndmask_b32 {vr(TG+3)}, {vr(TG+3)}, {vr(TG+1)}, vcc')
    a('s_mov_b64 exec, 1')
    a(f'ds_write_b32 {vr(TG+2)}, {vr(TG+3)}')
    a('s_mov_b64 exec, -1')
    a('s_waitcnt lgkmcnt(0)')
    a.label('L_tagdone')
    a('s_barrier')
    stamp()
    if QYB == 'e':
        emit(qall(1, vDQk)); a(f'v_mov_b32 {vr(vDQk)}, 0')
    if CW >= 4:
        a(f's_cmp_eq_u32 s{sCMB}, 0')
        a('s_cbranch_scc1 L_notagY')
        read_tag()
        a.label('L_notagY')
    for t in range(8):
        a(vread(X[t+1], t, 0)); a(vread(X[t+1]+2, t, 1))
    stamp(fine)
    for t in range(8):
        a('s_waitcnt lgkmcnt(14)')
        a(mfma(X[t], X[t+1], S, '0'))
        a(vread(buf[t], t, 2)); a(vread(buf[t]+2, t, 3))
    for t in range(8): a(vread(VG+4*t, t, 4))
    emit(lmf)
    for t in range(8):
        a(f's_waitcnt lgkmcnt({min(15, 22-2*t)})')
        a(mfma(O+4*t, buf[t], S+8, O+4*t))
    a('s_branch L_pvA2')

    a.label('L_p1g')
    if stamps: nst[0] -= (4 if fine else 2)
    a(f's_waitcnt vmcnt({N1+4})')
    a('s_barrier')
    stamp()
    qs = qall(1) if QOB == 'v' else []
    vpart(N1, N2, qs)
    QG = O
    emit([f'ds_read_b128 {vr(QG+4*ks,4)}, {vr(vAG)} offset:{1024+64*ks}' for ks in range(4)])
    emit(kreads())
    emit(k01reads())
    a('s_waitcnt lgkmcnt(0)')
    for T in range(4):
        for ks in range(4):
            a(mfma(S+4*T, kf(T,ks), QG+4*ks, '0' if ks == 0 else S+4*T))
    if QOB == 'e': a(f'v_mov_b32 {vr(vDQk)}, {vr(vDQ)}')
    a.nop(8)
    g16 = [S+x for x in range(16)]
    emit(maxtree_l(g16, vM))
    emit(xred(vM, vT))
    a(f'v_mul_f32 {vr(vM)}, s{sCS}, {vr(vM)}')
    emit(fma_l(g16, vM))
    emit(exp_l(g16))
    a.nop(1)
    a(f'v_add_f32 {vr(vT)}, {vr(S)}, {vr(S+1)}')
    for x in range(2, 16):
        a(f'v_add_f32 {vr(vT)}, {vr(vT)}, {vr(S+x)}')
    emit(cvt_l(O, S, 8))
    emit(xred(vT, t1, 'v_add_f32'))
    a(f'ds_write_b64 {vr(vML)}, {vr(vM,2)}')
    a(f's_waitcnt vmcnt({after_qa + (N2-N1) + len(qs)})')
    softmax_a('G')
    for n in range(4):
        a(f'v_mov_b32 {vr(S+12+n)}, {vr(O+n)}')
        a(f'v_mov_b32 {vr(S+20+n)}, {vr(O+4+n)}')
    a(f'v_mbcnt_lo_u32_b32 {vr(X[0])}, -1, 0')
    a(f's_lshl_b32 s{sT0}, s{sWV}, 10')
    a(f'v_lshl_add_u32 {vr(X[0])}, {vr(X[0])}, 3, s{sT0}')
    a(f'v_mov_b32 {vr(X[0]+2)}, {LCNT}')
    a(f'v_mov_b32 {vr(X[0]+3)}, 1')
    stamp(fine)
    a('s_waitcnt vmcnt(0) lgkmcnt(0)')
    a('s_barrier')
    stamp()
    if QOB == 'e':
        emit(qall(1, vDQk)); a(f'v_mov_b32 {vr(vDQk)}, 0')
    for t in range(8):
        a(vread(buf[t], t, 2)); a(vread(buf[t]+2, t, 3))
        a(vread(X[t+1], t, 0)); a(vread(X[t+1]+2, t, 1))
    for h in range(2):
        for n in range(4):
            t = 4*h + n
            a(f's_waitcnt lgkmcnt({min(15, 28-4*t + (4 if h else 0))})')
            a(mfma(KG+4*n, S+20, buf[t], '0'))
            a(mfma(KG+4*n, S+12, X[t+1], KG+4*n))
        if h == 0:
            a.nop(2)
        else:
            emit([vread(VG+4*t, t, 4) for t in range(2)])
        a('s_mov_b64 exec, 0xffff')
        for n in range(4):
            if n == 3: a.nop(2)
            a(f'ds_write_b64 {vr(X[0])}, {vr(KG+4*n,2)} offset:{PART+128*(4*h+n)}')
        a('s_mov_b64 exec, -1' if h == 0 else 's_mov_b64 exec, 1')
    a(f'ds_add_u32 {vr(X[0]+2)}, {vr(X[0]+3)}')
    a('s_mov_b64 exec, -1')
    emit([vread(VG+4*t, t, 4) for t in range(2, 8)])

    def combine(og, mg, tm):
        NP = len(og)
        emit(maxtree_l([mg[n] for n in range(NP)], tm))
        for n in range(NP):
            a(f'v_sub_f32 {vr(mg[n])}, {vr(mg[n])}, {vr(tm)}')
        for n in range(NP):
            a(f'v_exp_f32 {vr(mg[n])}, {vr(mg[n])}')
        a.nop(1)
        for e in range(4):
            a(f'v_mul_f32 {vr(og[0][e])}, {vr(og[0][e])}, {vr(mg[0])}')
        a(f'v_mul_f32 {vr(mg[0]+1)}, {vr(mg[0]+1)}, {vr(mg[0])}')
        for n in range(1, NP):
            for e in range(4):
                a(f'v_fmac_f32 {vr(og[0][e])}, {vr(og[n][e])}, {vr(mg[n])}')
            a(f'v_fmac_f32 {vr(mg[0]+1)}, {vr(mg[n]+1)}, {vr(mg[n])}')

    a(f's_cmp_eq_u32 s{sWV}, {RW}')
    a('s_cbranch_scc1 L_reduce')
    if CW < 4:
        a(f's_cmp_eq_u32 s{sCMB}, 0')
        a('s_cbranch_scc1 L_nored')
        read_tag()
    a('s_branch L_nored')
    a.label('L_reduce')
    R0 = X[0]
    a(f'v_mbcnt_lo_u32_b32 {vr(R0)}, -1, 0')
    a(f'v_mbcnt_hi_u32_b32 {vr(R0)}, -1, {vr(R0)}')
    a(f'v_lshrrev_b32 {vr(R0+1)}, 5, {vr(R0)}')
    a(f'v_and_b32 {vr(R0+3)}, 31, {vr(R0)}')
    a(f'v_lshlrev_b32 {vr(R0+3)}, 5, {vr(R0+3)}')
    a(f'v_lshl_add_u32 {vr(R0+3)}, {vr(R0+1)}, 2, {vr(R0+3)}')
    a(f'v_lshlrev_b32 {vr(R0+1)}, 3, {vr(R0+1)}')
    a(f'v_add_u32 {vr(R0+1)}, {PARTML}, {vr(R0+1)}')
    a(f'v_lshlrev_b32 {vr(R0)}, 4, {vr(R0)}')
    a(f's_mov_b32 s{sCNT}, 0')
    a.label('L_lspin')
    a(f'ds_read_b64 {vr(S+12,2)}, {vr(R0+2)}')
    a(f's_add_u32 s{sCNT}, s{sCNT}, 1')
    a('s_waitcnt lgkmcnt(0)')
    a(f'v_readfirstlane_b32 s{sT0}, {vr(S+12)}')
    a(f'v_readfirstlane_b32 s{sN}, {vr(S+13)}')
    a(f's_cmp_ge_u32 s{sCNT}, 0x100000')
    a('s_cbranch_scc1 L_lok')
    a(f's_cmp_lt_u32 s{sT0}, 4')
    a('s_cbranch_scc1 L_lspin')
    a.label('L_lok')
    mg = [S+12, S+14, S+20, S+22]
    og = [[KG+4*n+e for e in range(4)] for n in range(4)]
    for n in range(4):
        a(f'ds_read_b64 {vr(mg[n],2)}, {vr(R0+1)} offset:{16*n}')
    for n in range(4):
        if n: a(f'v_add_u32 {vr(R0+3)}, 1024, {vr(R0+3)}')
        a(f'ds_read2_b32 {vr(KG+4*n,2)}, {vr(R0+3)} offset0:0 offset1:2')
        a(f'ds_read2_b32 {vr(KG+4*n+2,2)}, {vr(R0+3)} offset0:4 offset1:6')
    a('s_waitcnt lgkmcnt(0)')
    combine(og, mg, R0+1)
    a(f'v_mov_b32 {vr(KG+4)}, {vr(KG+3)}')
    a(f'v_mov_b32 {vr(KG+5)}, {vr(R0+1)}')
    a(f'v_mov_b32 {vr(KG+6)}, {vr(S+13)}')
    a(f'v_mov_b32 {vr(KG+7)}, s{sN}')
    a(f'v_mov_b32 {vr(KG+3)}, s{sN}')
    a(f'buffer_store_dwordx4 {vr(KG+4,4)}, {vr(R0)}, {sr(sW,4)}, s{sSLOT} offen offset:1024 sc0 sc1')
    a(f'buffer_store_dwordx4 {vr(KG,4)}, {vr(R0)}, {sr(sW,4)}, s{sSLOT} offen sc0 sc1')
    a(f's_cmp_lg_u32 s{sN}, 0')
    a('s_cbranch_scc1 L_nored')
    a('s_waitcnt vmcnt(0)')
    a(f's_lshl_b32 s{sT0}, s{sH}, 3')
    a(f's_lshl_b32 s{sT1}, 1, s{sC}')
    a(f'v_mov_b32 {vr(R0)}, s{sT0}')
    a(f'v_mov_b32 {vr(R0+1)}, s{sT1}')
    a('s_mov_b64 exec, 1')
    a(f'global_atomic_or {vr(R0)}, {vr(R0+1)}, s[16:17] offset:4 sc1')
    a('s_mov_b64 exec, -1')
    a.label('L_nored')
    stamp(fine)
    emit(kg_reads())
    for t in range(8):
        a(mfma(X[t], X[t+1], S, '0'))
    emit(lmf)
    for t in range(8):
        a(mfma(O+4*t, buf[t], S+8, O+4*t))
    a.label('L_pvA2')
    a('s_waitcnt lgkmcnt(0)')
    for t in range(8):
        a(mfma(O+4*t, VG+4*t, S+16, O+4*t))
        a(vread(VG+4*t, t, 1))
    a(f'v_rcp_f32 {vr(vT0)}, {vr(LACC)}')

    def inter(ms, vs, per=2):
        vs = list(vs)
        for m in ms:
            a(m)
            for _ in range(per):
                if vs: a(vs.pop(0))
        for v in vs: a(v)
    HB = kf(2, 0)
    def hand_loads():
        a(f'v_mbcnt_lo_u32_b32 {vr(KG)}, -1, 0')
        a(f'v_mbcnt_hi_u32_b32 {vr(KG)}, -1, {vr(KG)}')
        a(f'v_lshlrev_b32 {vr(KG)}, 4, {vr(KG)}')
        for n in range(8):
            a(f's_movk_i32 s{sT0}, {2048*n}')
            a(f'buffer_load_dwordx4 {vr(HB+8*n,4)}, {vr(KG)}, {sr(sW,4)}, s{sT0} offen sc0 sc1')
            a(f'buffer_load_dwordx4 {vr(HB+8*n+4,4)}, {vr(KG)}, {sr(sW,4)}, s{sT0} offen offset:1024 sc0 sc1')
    def hand_site():
        a(f's_cmp_eq_u32 s{sCMB}, 0')
        a('s_cbranch_scc1 L_nohand')
        hand_loads()
        a.label('L_nohand')
    def epi(t):
        l = [f'v_mul_f32 {vr(O+4*t+e)}, {vr(O+4*t+e)}, {vr(vT0)}' for e in range(4)]
        l += [f'v_cvt_pk_bf16_f32 {vr(O+4*t)}, {vr(O+4*t)}, {vr(O+4*t+1)}',
              f'v_cvt_pk_bf16_f32 {vr(O+4*t+1)}, {vr(O+4*t+2)}, {vr(O+4*t+3)}',
              f'ds_write_b64 {vr(vSW)}, {vr(O+4*t,2)} offset:{32*t}']
        return l
    stage_reads = [f'ds_read_b128 {vr(O+4*j,4)}, {vr(vSR)} offset:{4*STGP*j}' for j in range(4)]
    def stores(tau):
        for j in range(4):
            a(f's_waitcnt lgkmcnt({3-j})')
            if tau == 0 and j == 0: a(f's_mov_b64 exec, {sr(sEX,2)}')
            a(f'buffer_store_dwordx4 {vr(O+4*j,4)}, {vr(vOO)}, {sr(sO,4)}, s{sTOFF if tau else sZERO} offen offset:{1024*j} {stpol}')
            if tau == 0 and j == 0: a('s_mov_b64 exec, -1')
    xb = []
    for t in range(8): xb += [vread(X[t+1], t, 4), vread(X[t+1]+2, t, 5)]
    ep = []
    for t in range(8): ep += epi(t)
    ep += stage_reads
    def qb_wait(n):
        if 'e' in (QYB, QOB):
            a(f's_waitcnt vmcnt({n+2})')
            a(f's_cmp_eq_u32 s{sWV}, {RW}')
            a('s_cbranch_scc1 L_qbw')
            a(f's_waitcnt vmcnt({n})')
            a.label('L_qbw')
    m = vM
    if not merge:
        a('s_nop 0')
        emit(ep)
        stores(0)
        emit(xb)
        qb_wait(4)
        stamp()
        edge_test(1, 'L_fastB')
        for sl in ('G', 0, 1, 2, 3, 4): emit(qk(1, sl))
        edge_mask(1, vT0)
        emit(maxtree_l([S+x for x in range(22)], vM))
        a('s_branch L_joinB')
        a.label('L_fastB')
        for sl in ('G', 0, 1, 2): emit(qk(1, sl))
        inter(qk(1, 3), maxtree_l([S+20, S+21, S+0], m) + maxtree_l([S+1, S+2], m, False), per=1)
        inter(qk(1, 4), maxtree_l([S+3, S+4, S+5, S+6, S+7, S+8], m, False), per=1)
        a.nop(1)
        emit(maxtree_l([S+9, S+10, S+11, S+12], m, False))
        a.nop(1)
        emit(maxtree_l([S+13, S+14, S+15], m, False))
        a.nop(2)
        emit(maxtree_l([S+16, S+17, S+18, S+19], m, False))
    else:
        qb_wait(0)
        stamp()
        edge_test(1, 'L_fastB')
        emit(ep)
        stores(0)
        for sl in (0, 1, 2, 3, 4, 'G'): emit(qk(1, sl))
        emit(xb)
        edge_mask(1, vT0)
        emit(maxtree_l([S+x for x in range(22)], vM))
        a('s_branch L_joinB')
        a.label('L_fastB')
        ms = []
        for sl in (0, 1, 2, 3, 4, 'G'): ms += qk(1, sl)
        inter(ms, ep, per=3)
        emit(maxtree_l([S+x for x in range(15)], vT0))
        stores(0)
        mx = [f'v_max3_f32 {vr(vM)}, {vr(vT0)}, {vr(S+15)}, {vr(S+16)}'] + maxtree_l([S+17, S+18, S+19, S+20, S+21], vM, False)
        inter(mx, xb, per=4)
    a.label('L_joinB')
    stamp()
    if hpos == 'sm': hand_site()
    emit(xred(m, vT))
    a(f'v_mul_f32 {vr(m)}, s{sCS}, {vr(m)}')
    emit(fma_l(set0, m))
    f2 = fma_l(set2, m); f1 = fma_l(set1, m)
    emit(exp_l(set0))
    a(f2[0])
    emit(cvt_l(S, S, 4))
    a(f2[1])
    a('s_waitcnt lgkmcnt(0)')
    inter([mfma(X[t], X[t+1], S, '0') for t in range(8)], f2[2:] + exp_l(set2) + ones + fin2 + f1[:2])
    inter([mfma(O+4*t, VG+4*t, S+16, O+4*t) for t in range(8)], f1[2:] + exp_l(set1) + [f'v_mov_b32 {vr(vT0)}, 0'] + cvt_l(S+8, S+8, 4))
    emit(lmf)
    for t in range(8):
        a(mfma(O+4*t, buf[t], S+8, O+4*t))
    a(f'v_rcp_f32 {vr(vT0)}, {vr(LACC)}')
    stamp(fine)
    if hpos == 'ep': hand_site()
    a('s_nop 0')
    emit(ep)
    stores(1)
    stamp()

    a(f's_cmp_eq_u32 s{sCMB}, 0')
    a('s_cbranch_scc1 L_fin')
    a('s_waitcnt vmcnt(4)')
    a(f's_mov_b32 s{sCNT}, 0')
    a(f's_mov_b32 s{sT2}, 0')
    a.label('L_chk')
    a(f's_mov_b32 s{sT3}, s{sT2}')
    for n in range(8):
        a(f'v_cmp_eq_u32 vcc, s{sN}, {vr(HB+8*n+3)}')
        a(f'v_cmp_eq_u32 s[60:61], s{sN}, {vr(HB+8*n+7)}')
        a('s_nop 0')
        a('s_and_b64 vcc, vcc, s[60:61]')
        a('s_cmp_eq_u64 vcc, exec')
        a(f's_cselect_b32 s{sT0}, {1 << n}, 0')
        a(f's_or_b32 s{sT3}, s{sT3}, s{sT0}')
    a(f's_add_u32 s{sCNT}, s{sCNT}, 1')
    a(f's_cmp_eq_u32 s{sT3}, 0xff')
    a('s_cbranch_scc1 L_ready')
    a(f's_cmp_ge_u32 s{sCNT}, 0x40000')
    a('s_cbranch_scc1 L_ready')
    a(f's_lshl_b32 s{sT0}, s{sH}, 3')
    a(f'v_mov_b32 {vr(KG+1)}, s{sT0}')
    a(f'global_load_dword {vr(KG+2)}, {vr(KG+1)}, s[16:17] offset:4 sc0 sc1')
    a('s_waitcnt vmcnt(0)')
    a(f'v_readfirstlane_b32 s{sT2}, {vr(KG+2)}')
    hand_loads()
    a('s_waitcnt vmcnt(0)')
    a('s_branch L_chk')
    a.label('L_ready')
    hog = [[HB+8*n, HB+8*n+1, HB+8*n+2, HB+8*n+4] for n in range(8)]
    hmg = [HB+8*n+5 for n in range(8)]
    combine(hog, hmg, X8)
    a(f'v_rcp_f32 {vr(X8)}, {vr(hmg[0]+1)}')
    a(f'v_lshrrev_b32 {vr(KG)}, 1, {vr(KG)}')
    for e in range(4):
        a(f'v_mul_f32 {vr(hog[0][e])}, {vr(hog[0][e])}, {vr(X8)}')
    a(f'v_cvt_pk_bf16_f32 {vr(X8+2)}, {vr(hog[0][0])}, {vr(hog[0][1])}')
    a(f'v_cvt_pk_bf16_f32 {vr(X8+3)}, {vr(hog[0][2])}, {vr(hog[0][3])}')
    a(f'buffer_store_dwordx2 {vr(X8+2,2)}, {vr(KG)}, {sr(sO,4)}, 0 offen {stpol}')
    a.label('L_fin')
    if stamps:
        stamp()
        a('s_waitcnt vmcnt(0)')
        stamp()
        a(f's_lshl_b32 s{sT0}, s2, 3')
        a(f's_add_u32 s{sT0}, s{sT0}, s{sWV}')
        a(f's_lshl_b32 s{sT0}, s{sT0}, 6')
        a(f's_add_u32 s{sT0}, s{sT0}, 0x100000')
        a(f's_add_u32 s{sW}, s18, s{sT0}')
        a(f's_addc_u32 s{sW+1}, s19, 0')
        a(f'v_mov_b32 v1, 0')
        a('s_mov_b64 exec, 1')
        for n in range(min(16, nst[0])):
            a(f'v_mov_b32 v2, s{64+2*n}')
            a(f'buffer_store_dword v2, v1, {sr(sW,4)}, 0 offen offset:{4*n}')
        if 'leak' in opt:
            k = int(opt['leak'])
            a(f's_sub_u32 s{sT0}, s{64+2*k}, s64')
            a(f's_lshl_b32 s{sT0}, s{sT0}, 2')
            if opt.get('leakcnt'):
                a(f's_mul_i32 s{sT0}, s{sCNT}, 500')
                a(f's_mul_i32 s{sT0}, s{sT0}, s{sCMB}')
            if 'leakw' in opt:
                a(f's_lshr_b32 s{sT1}, {opt["leakw"]}, s{sWV}')
                a(f's_bitcmp1_b32 s{sT1}, 0')
                a(f's_cselect_b32 s{sT0}, s{sT0}, 0')
            a(f"s_add_u32 s{sT0}, s{sT0}, {opt.get('spin', 5000)}")
            a.label('L_spin')
            a('s_memrealtime s[100:101]')
            a('s_waitcnt lgkmcnt(0)')
            a(f's_sub_u32 s{sT1}, s100, s64')
            a(f's_cmp_lt_u32 s{sT1}, s{sT0}')
            a('s_cbranch_scc1 L_spin')
    a.label('L_end')
    a('s_endpgm')
    a('.fill 4096, 4, 0xbf800000')

    check(a.lines)
    if stamps: print('stamps', nst[0])
    head = f'''; windowed + global-token attention, B=1 H=32 S=2048 D=128 bf16 (window 32, 2 global tokens)
; @launch grid=(256,1,1) block=(512,1,1) lds=163840
.amdgcn_target "amdgcn-amd-amdhsa--gfx950"
.text
.globl {NAME}
.p2align 8
.type {NAME},@function
{NAME}:
'''
    tail = f'''.section .rodata,"a"
.p2align 6
.amdhsa_kernel {NAME}
  .amdhsa_next_free_vgpr 256
  .amdhsa_next_free_sgpr {102 if stamps else 64}
  .amdhsa_accum_offset 256
  .amdhsa_group_segment_fixed_size 0
  .amdhsa_kernarg_size 64
  .amdhsa_user_sgpr_count 2
  .amdhsa_user_sgpr_kernarg_segment_ptr 1
  .amdhsa_system_sgpr_workgroup_id_x 1
.end_amdhsa_kernel
'''
    return head + a.text() + tail

if __name__ == '__main__':
    out = sys.argv[1]
    opt = {}
    for kv in sys.argv[2:]:
        k, v = kv.split('=', 1)
        opt[k] = {'True': True, 'False': False}.get(v, v.replace('+', ' '))
    open(out, 'w').write(gen(opt))
```

```python
import sys, math, struct
from asmlib import *

NAME = 'standalone__global_local_windowed_global_tokens__prompt_kernel'
def f2u(x): return struct.unpack('<I', struct.pack('<f', x))[0]

def gen(opt):
    a = Asm()
    NEG = 0xFF000000
    CSC = f2u(128 ** -0.5 * math.log2(math.e))
    KOFF, VOFF, SOFF = 0, 73728, 155648
    apos = int(opt.get('apos', 0))
    PART, STG = 0, 4096
    PARTML, LCNT, LNON = SOFF + 3072, SOFF + 3072 + 128, SOFF + 3072 + 132
    STGP = 272
    ldpol = opt.get('ldpol', '')
    qpol = opt.get('qpol', '')
    stpol = opt.get('stpol', 'sc0 sc1 nt')
    pk = opt.get('pk', True)
    N1 = int(opt.get('n1', 8))
    RW = int(opt.get('rw', 3))
    FW = 7
    SW = 5
    CW, CC = int(opt.get('cw', 1)), 3
    merge = opt.get('merge', True)
    sQ, sK, sV, sO, sW = 20, 24, 28, 32, 36
    sWV, sH, sC, sHO, sQ0B = 40, 43, 44, 45, 46
    sT0, sT1, sT2, sT3 = 47, 48, 49, 50
    sBK = 62
    QY = opt.get('qy', 'kk')
    QO = opt.get('qo', 'kg')
    HW = 4
    sCS = 52; sKG0 = 54; sQB = 51; sEX = 56; sCMB = 58; sCNT = 59; sN = 63; sTOFF = 0; sZERO = 3
    VA = 0
    vSW, vSR, vOO, vT0 = 8, 9, 10, 11
    X8 = 12
    KF = 16; KG = 112; QA, QB = 128, 144; VG = 160; O = 192; S = 224
    BLO, BHI = 248, 252
    kf = lambda W, ks: KF + 16 * W + 4 * ks
    X = [O + 4 * n for n in range(8)] + [X8]
    vLANE, vI, vKGp, vDK, vDV, vDQ, vAG, vNEG, vAK = O+16, O+17, O+18, O+19, O+20, O+21, O+22, O+23, O+24
    vAVG, t1, t2, t3 = O+28, O+29, O+30, O+31
    vDQk = VG + 7
    vFLAG = VG + 3
    vM, vT = S + 22, S + 23

    stamps = opt.get('stamps', False)
    fine = opt.get('fine', False)
    nst = [0]
    def stamp(on=True):
        if stamps and on:
            a(f's_memrealtime s[{64+2*nst[0]}:{65+2*nst[0]}]')
            if nst[0]: a('s_waitcnt lgkmcnt(0)')
            nst[0] += 1
    M16 = 'v_mfma_f32_16x16x32_bf16'
    def mfma(d, x, y, c):
        return f'{M16} {vr(d,4)}, {vr(x,4)}, {vr(y,4)}, {c if isinstance(c,str) else vr(c,4)}'
    def only(w, lab):
        a(f's_cmp_lg_u32 s{sWV}, {w}')
        a(f's_cbranch_scc1 {lab}')

    stamp()
    if opt.get('clk'): a('s_memtime s[96:97]')
    a('s_load_dwordx16 s[4:19], s[0:1], 0')
    a(f'v_readfirstlane_b32 s{sWV}, v0')
    a('s_cmp_ge_u32 s2, 256')
    a('s_cbranch_scc1 L_end')
    a(f'v_lshrrev_b32 {vr(t1)}, 4, v0')
    a(f'v_xor_b32 {vr(vDK)}, {vr(t1)}, v0')
    a(f'v_and_b32 {vr(vDK)}, 15, {vr(vDK)}')
    a(f'v_lshl_add_u32 {vr(vDK)}, {vr(t1)}, 4, {vr(vDK)}')
    a(f's_bfe_u32 s{sC}, s2, 0x30003')
    a(f's_lshl_b32 s{sQ0B}, s{sC}, 16')
    a(f'v_lshl_add_u32 {vr(vDK)}, {vr(vDK)}, 4, s{sQ0B}')
    a('s_and_b32 s41, s2, 7')
    a(f's_lshr_b32 s{sH}, s2, 6')
    a(f's_lshl2_add_u32 s{sH}, s41, s{sH}')
    a(f's_lshl_b32 s{sHO}, s{sH}, 19')
    a(f's_lshl_b32 m0, s{sWV}, 4')
    a(f's_mov_b32 s{sK+2}, 0x80000')
    a(f's_mov_b32 s{sK+3}, 0x20000')
    a(f's_movk_i32 s{sCNT}, 17')
    if opt.get('cpf', True):
        a(f's_getpc_b64 s[{sEX}:{sEX+1}]')
        a(f'v_lshlrev_b32 v1, 5, v0')
        a(f'global_load_dword {vr(X8)}, v1, s[{sEX}:{sEX+1}]')
    a(f's_cmp_ge_u32 s{sWV}, 256')
    a('s_cbranch_scc1 L_helper')
    a('s_waitcnt lgkmcnt(0)')
    stamp()
    a(f's_add_u32 s{sK}, s6, s{sHO}')
    a(f's_addc_u32 s{sK+1}, s7, 0')
    a.label('L_kloop')
    a(f'buffer_load_dwordx4 {vr(vDK)}, {sr(sK,4)}, 0 offen {ldpol} lds')
    a('s_add_u32 m0, m0, 0x1000')
    a(f'v_add_u32 {vr(vDK)}, 0x1000, {vr(vDK)}')
    a(f's_sub_u32 s{sCNT}, s{sCNT}, 1')
    a('s_cbranch_scc0 L_kloop')
    stamp(opt.get('postk', False))
    def common():
        a(f's_lshr_b32 s{sWV}, s{sWV}, 6')
        a(f'v_and_b32 {vr(vLANE)}, 63, v0')
        a(f'v_and_b32 {vr(vI)}, 15, v0')
        a(f'v_bfe_u32 {vr(vKGp)}, v0, 4, 2')
        a(f's_lshl_b32 s{sT1}, s{sWV}, 10')
        a(f's_add_u32 s{sT2}, s{sT1}, s{sQ0B}')
        for s_ in (sV, sQ):
            a(f's_mov_b32 s{s_+2}, 0x80000')
            a(f's_mov_b32 s{s_+3}, 0x20000')
        a(f's_mov_b32 s{sW+2}, 0x4000')
        a(f's_mov_b32 s{sW+3}, 0x20000')
        a(f's_and_b32 s{sBK}, s{sWV}, 3')
        a(f's_lshl_b32 s{sBK}, s{sBK}, 1')
        a(f's_cmp_lt_u32 s{sWV}, 4')
        a(f's_addc_u32 s{sBK}, s{sBK}, 0')
        a(f's_cmp_eq_u32 s{sC}, 0')
        a(f's_cselect_b32 s{sT3}, 0x40000000, 0')
        a(f's_lshl_b32 s{sT0}, s{sBK}, 13')
        a(f's_add_u32 s{sT0}, s{sT0}, s{sQ0B}')
        a(f'v_lshlrev_b32 {vr(vDQ)}, 4, {vr(vKGp)}')
        a(f'v_lshl_add_u32 {vr(vDQ)}, {vr(vI)}, 8, {vr(vDQ)}')
        a(f'v_add_u32 {vr(vDQ)}, s{sT0}, {vr(vDQ)}')
        a(f'v_lshlrev_b32 {vr(t3)}, 4, {vr(vLANE)}')
        a(f's_lshl_b32 s41, s{sH}, 14')
        a(f's_lshl_b32 s42, s{sC}, 11')
        a(f's_movk_i32 s{sTOFF}, 0x1000')
        a(f's_mov_b32 s{sZERO}, 0')
    common()
    a(f's_mov_b32 s{sN}, 0')
    def srds():
        a(f's_add_u32 s{sV}, s8, s{sHO}')
        a(f's_addc_u32 s{sV+1}, s9, 0')
        a(f's_add_u32 s{sQ}, s4, s{sHO}')
        a(f's_addc_u32 s{sQ+1}, s5, 0')
        a(f's_add_u32 s{sW}, s18, s41')
        a(f's_addc_u32 s{sW+1}, s19, 0')
    srds()
    a('s_branch L_v1')
    a.label('L_helper')
    a('s_setprio 3')
    a('s_memrealtime s[60:61]')
    common()
    a(f's_sub_u32 s{sT0}, s{sT3}, 0x2000')
    a(f'v_add_u32 {vr(t1)}, s{sT0}, {vr(vDQ)}')
    a(f'v_add_u32 {vr(t2)}, 0x1000, {vr(t1)}')
    a(f's_mov_b32 m0, {SOFF}')
    a('s_waitcnt lgkmcnt(0)')
    if stamps:
        nst[0] -= 1
        stamp()
    a(f's_add_u32 s{sK}, s6, s{sHO}')
    a(f's_addc_u32 s{sK+1}, s7, 0')
    srds()
    if stamps and opt.get('postk'):
        nst[0] -= 1
        stamp()
    a(f's_or_b32 s{sN}, s60, 1')
    only(FW, 'L_noclear')
    a(f's_lshl_b32 s{sT0}, s{sH}, 3')
    a(f'v_mov_b32 {vr(S+4)}, s{sT0}')
    a(f'v_mov_b32 {vr(S+5)}, s{sN}')
    a(f'v_mov_b32 {vr(S+6)}, {LCNT}')
    a(f'v_mov_b32 {vr(S+7)}, 0')
    a('s_mov_b64 exec, 1')
    a(f's_cmp_lg_u32 s{sC}, {CC}')
    a('s_cbranch_scc1 L_nopub')
    a(f'global_store_dword {vr(S+4)}, {vr(S+5)}, s[16:17] sc0 sc1')
    a.label('L_nopub')
    a(f'ds_write_b32 {vr(S+6)}, {vr(S+7)}')
    a('s_mov_b64 exec, -1')
    if opt.get('wstouch'):
        pol = {'ld': '', 'ldsc': 'sc0 sc1'}.get(opt['wstouch'])
        if pol is not None:
            a(f'buffer_load_dwordx4 {vr(S+8,4)}, {vr(t3)}, {sr(sW,4)}, s42 offen {pol}')
            a(f'buffer_load_dwordx4 {vr(S+12,4)}, {vr(t3)}, {sr(sW,4)}, s42 offen offset:1024 {pol}')
        else:
            for n in range(4): a(f'v_mov_b32 {vr(S+8+n)}, 0')
            a(f'buffer_store_dwordx4 {vr(S+8,4)}, {vr(t3)}, {sr(sW,4)}, s42 offen sc0 sc1')
            a(f'buffer_store_dwordx4 {vr(S+8,4)}, {vr(t3)}, {sr(sW,4)}, s42 offen offset:1024 sc0 sc1')
    a.label('L_noclear')
    only(SW, 'L_nosmall')
    for n, srd in enumerate((sK, sQ, sV)):
        if n:
            a(f's_mov_b32 m0, {SOFF + 1024*n}')
            a('s_nop 0')
        a(f'buffer_load_dwordx4 {vr(t3)}, {sr(srd,4)}, 0 offen lds')
    a.label('L_nosmall')
    only(HW, 'L_nohalo')
    for T in range(2):
        for ks in range(4):
            a(f'buffer_load_dwordx4 {vr(kf(T,ks),4)}, {vr(t1+T)}, {sr(sK,4)}, 0 offen offset:{64*ks}')
    a.label('L_nohalo')
    def qld(Q, ks, tile):
        return f'buffer_load_dwordx4 {vr(Q+4*ks,4)}, {vr(vDQ)}, {sr(sQ,4)}, s{sTOFF if tile else sZERO} offen offset:{64*ks} {qpol}'
    def qy(when):
        for tile, Q in ((0, QA), (1, QB)):
            if QY[tile] == when:
                for ks in range(4): a(qld(Q, ks, tile))
    qy('s')
    a('s_setprio 0')
    a('s_branch L_nov1')
    a.label('L_v1')
    def vpiece(i):
        if i:
            a('s_add_u32 m0, m0, 0x1000')
            a(f'v_add_u32 {vr(vDV)}, 0x1000, {vr(vDV)}')
        if i < 2:
            a(f'v_add_u32 {vr(t1)}, s{sT3}, {vr(vDV)}')
            a(f'buffer_load_dwordx4 {vr(t1)}, {sr(sV,4)}, 0 offen {ldpol} lds')
        else:
            a(f'buffer_load_dwordx4 {vr(vDV)}, {sr(sV,4)}, 0 offen {ldpol} lds')
    a(f's_and_b32 s{sT0}, s{sWV}, 1')
    a(f's_lshl_b32 s{sT0}, s{sT0}, 2')
    a(f'v_add_lshl_u32 {vr(vDV)}, s{sT0}, {vr(vKGp)}, 1')
    a(f'v_xor_b32 {vr(vDV)}, {vr(vDV)}, {vr(vI)}')
    a(f'v_lshlrev_b32 {vr(vDV)}, 4, {vr(vDV)}')
    a(f'v_lshl_add_u32 {vr(vDV)}, {vr(vKGp)}, 8, {vr(vDV)}')
    a(f's_sub_u32 s{sT2}, s{sT2}, 0x2000')
    a(f'v_add_u32 {vr(vDV)}, s{sT2}, {vr(vDV)}')
    a(f's_add_u32 m0, s{sT1}, {VOFF}')
    def vpart(lo, hi, part):
        qs = [qld(Q, ks, tile) for tile, Q in ((0, QA), (1, QB)) if QO[tile] == part for ks in range(4)]
        n = hi - lo
        at = [lo + (n - 1) * (x + 1) // (len(qs) + 1) for x in range(len(qs))]
        for i in range(lo, hi):
            vpiece(i)
            while qs and at and at[0] == i and i < hi - 1:
                a(qs.pop(0)); at.pop(0)
        assert not qs
    vpart(0, N1, '1')
    NQ1 = 4 * QO.count('1')
    a.label('L_nov1')
    stamp()

    a(f's_add_u32 s{sO}, s14, s{sHO}')
    a(f's_addc_u32 s{sO+1}, s15, 0')
    a(f's_mov_b32 s{sO+2}, 0x80000')
    a(f's_mov_b32 s{sO+3}, 0x20000')
    a(f's_mov_b32 s{sCS}, 0x{CSC:08x}')
    a(f's_mov_b32 s{sCS+1}, 0x{CSC:08x}')
    a(f'v_mov_b32 {vr(vNEG)}, 0x{NEG:08x}')
    a(f'v_lshlrev_b32 {vr(t2)}, 2, {vr(vKGp)}')
    a(f'v_cmp_eq_u32 {sr(sKG0,2)}, 0, {vr(vKGp)}')
    for r in range(4):
        a(f'v_add_u32 {vr(t1)}, {r}, {vr(t2)}')
        a(f'v_cmp_ge_u32 vcc, {vr(t1)}, {vr(vI)}')
        a(f'v_cmp_le_u32 s[60:61], {vr(t1)}, {vr(vI)}')
        a('s_nop 0')
        a(f'v_cndmask_b32 {vr(BLO+r)}, {vr(vNEG)}, 0, vcc')
        a(f'v_cndmask_b32 {vr(BHI+r)}, {vr(vNEG)}, 0, s[60:61]')
    a(f's_lshl_b32 s{sT0}, s{sBK}, 13')
    a(f'v_xor_b32 {vr(t1)}, {vr(vKGp)}, {vr(vI)}')
    a(f'v_lshlrev_b32 {vr(t1)}, 4, {vr(t1)}')
    a(f'v_lshl_add_u32 {vr(t1)}, {vr(vI)}, 8, {vr(t1)}')
    a(f'v_add_u32 {vr(vAK)}, s{sT0}, {vr(t1)}')
    for ks in range(1, 4):
        a(f'v_xor_b32 {vr(vAK+ks)}, {64*ks}, {vr(vAK)}')
    a(f'v_and_b32 {vr(t1)}, 1, {vr(vI)}')
    a(f'v_lshlrev_b32 {vr(vNEG)}, 3, {vr(t1)}')
    a(f'v_lshlrev_b32 {vr(t1)}, 8, {vr(t1)}')
    a(f'v_lshl_add_u32 {vr(t1)}, {vr(vKGp)}, 4, {vr(t1)}')
    a(f'v_add_u32 {vr(vAG)}, {SOFF}, {vr(t1)}')
    a(f'v_bfe_u32 {vr(t1)}, {vr(vLANE)}, 2, 2')
    a(f'v_and_b32 {vr(t2)}, 3, {vr(vLANE)}')
    a(f'v_lshlrev_b32 {vr(t2)}, 3, {vr(t2)}')
    a(f'v_lshl_add_u32 {vr(t1)}, {vr(t1)}, 8, {vr(t2)}')
    a(f'v_add_u32 {vr(vAVG)}, {SOFF+2048}, {vr(t1)}')
    a(f'v_lshrrev_b32 {vr(t1)}, 2, {vr(vLANE)}')
    a(f'v_and_b32 {vr(vT0)}, 7, {vr(t1)}')
    a(f'v_lshl_add_u32 {vr(t2)}, {vr(vT0)}, 5, {vr(t2)}')
    a(f'v_lshl_add_u32 {vr(t2)}, {vr(t1)}, 8, {vr(t2)}')
    a(f's_add_u32 s{sT1}, s{sT0}, {VOFF}')
    a(f'v_add_u32 {vr(VA)}, s{sT1}, {vr(t2)}')
    for t in range(1, 8):
        a(f'v_xor_b32 {vr(VA+t)}, {32*t}, {vr(VA)}')
    a(f's_mul_i32 s{sT1}, s{sWV}, {32*STGP}')
    a(f's_add_u32 s{sT1}, s{sT1}, {STG}')
    a(f'v_mul_u32_u24 {vr(t1)}, {STGP}, {vr(vI)}')
    a(f'v_lshl_add_u32 {vr(t1)}, {vr(vKGp)}, 3, {vr(t1)}')
    a(f'v_add_u32 {vr(vSW)}, s{sT1}, {vr(t1)}')
    a(f'v_mul_u32_u24 {vr(t1)}, {STGP}, {vr(vKGp)}')
    a(f'v_lshl_add_u32 {vr(t1)}, {vr(vI)}, 4, {vr(t1)}')
    a(f'v_add_u32 {vr(vSR)}, s{sT1}, {vr(t1)}')
    a(f's_add_u32 s{sT0}, s{sT0}, s{sQ0B}')
    a(f'v_add_u32 {vr(vOO)}, s{sT0}, {vr(t3)}')
    a(f's_lshr_b32 s{sQB}, s{sT0}, 8')
    a(f's_cmp_eq_u32 s{sQB}, 0')
    a(f's_cselect_b32 s{sEX}, 0, -1')
    a(f's_mov_b32 s{sEX+1}, -1')
    a(f's_cmp_eq_u32 s{sQB}, {256*CC+32*(2*CW+1)}')
    a(f's_cselect_b32 s{sCMB}, 1, 0')
    a(f's_lshl_b32 s{sT0}, s{sWV}, 4')
    a(f's_add_u32 s{sT0}, s{sT0}, {PARTML}')
    a(f'v_add_u32 {vr(vNEG)}, s{sT0}, {vr(vNEG)}')

    a(f's_waitcnt vmcnt({N1+NQ1}) lgkmcnt(0)')
    a(f's_cmp_lt_u32 s{sWV}, 4')
    a('s_cbranch_scc1 L_kw')
    a(f's_cmp_eq_u32 s{sWV}, {FW}')
    a('s_cbranch_scc1 L_kw')
    a(f's_waitcnt vmcnt({4*QY.count("s")})')
    a.label('L_kw')
    stamp(opt.get('prek', False))
    a('s_barrier')
    stamp()
    a(f's_cmp_ge_u32 s{sWV}, 4')
    a('s_cbranch_scc1 L_nov2')
    vpart(N1, 20, '2')
    a('s_branch L_nov2b')
    a.label('L_nov2')
    a('s_setprio 3')
    qy('b')
    a('s_setprio 0')
    a.label('L_nov2b')
    stamp(fine)
    QG = O
    for W in (2, 3, 4, 5):
        for ks in range(4):
            a(f'ds_read_b128 {vr(kf(W,ks),4)}, {vr(vAK+ks)} offset:{4096*(W-2)}')
    for ks in range(4):
        a(f'ds_read_b128 {vr(KG+4*ks,4)}, {vr(vAG)} offset:{64*ks}')
    for t in range(8):
        a(f'ds_read_b64_tr_b16 {vr(VG+4*t+2,2)}, {vr(vAVG)} offset:{32*t}')
    a(f's_cmp_eq_u32 s{sWV}, {HW}')
    a('s_cbranch_scc1 L_k01done')
    for ks in range(4):
        a(f'v_subrev_u32 {vr(vAK+ks)}, 0x2000, {vr(vAK+ks)}')
    for W in (0, 1):
        for ks in range(4):
            a(f'ds_read_b128 {vr(kf(W,ks),4)}, {vr(vAK+ks)} offset:{4096*W}')
    a.label('L_k01done')
    def issue_qa():
        if opt.get('qprio'): a('s_setprio 3')
        for ks in range(4):
            a(f'buffer_load_dwordx4 {vr(QA+4*ks,4)}, {vr(vDQ)}, {sr(sQ,4)}, 0 offen offset:{64*ks} {qpol}')
        if opt.get('qprio'): a('s_setprio 0')

    def xred(m, t, op='v_max_f32'):
        a(f'v_mov_b32 {vr(t)}, {vr(m)}')
        a.nop(2)
        a(f'v_permlane16_swap_b32 {vr(m)}, {vr(t)}')
        a(f'{op} {vr(m)}, {vr(m)}, {vr(t)}')
        a(f'v_mov_b32 {vr(t)}, {vr(m)}')
        a.nop(2)
        a(f'v_permlane32_swap_b32 {vr(m)}, {vr(t)}')
        a(f'{op} {vr(m)}, {vr(m)}, {vr(t)}')
    def maxtree_l(vals, m, first=True):
        out = []; rest = list(vals)
        if first:
            out.append(f'v_max3_f32 {vr(m)}, {vr(rest[0])}, {vr(rest[1])}, {vr(rest[2])}'); rest = rest[3:]
        while len(rest) >= 2:
            out.append(f'v_max3_f32 {vr(m)}, {vr(m)}, {vr(rest[0])}, {vr(rest[1])}'); rest = rest[2:]
        if rest:
            out.append(f'v_max_f32 {vr(m)}, {vr(m)}, {vr(rest[0])}')
        return out
    def fma_l(vals, mc):
        if pk:
            return [f'v_pk_fma_f32 {vr(vals[n],2)}, {vr(vals[n],2)}, {sr(sCS,2)}, {vr(mc,2)} op_sel_hi:[1,1,0] neg_lo:[0,0,1] neg_hi:[0,0,1]' for n in range(0, len(vals), 2)]
        return [f'v_fma_f32 {vr(v)}, {vr(v)}, s{sCS}, -{vr(mc)}' for v in vals]
    exp_l = lambda vals: [f'v_exp_f32 {vr(v)}, {vr(v)}' for v in vals]
    cvt_l = lambda dst, src, n: [f'v_cvt_pk_bf16_f32 {vr(dst+k)}, {vr(src+2*k)}, {vr(src+2*k+1)}' for k in range(n)]

    def vread(dst, t, W):
        return f'ds_read_b64_tr_b16 {vr(dst,2)}, {vr(VA+t)} offset:{4096*W}'
    a(f's_cmp_lt_u32 s{sWV}, 4')
    a('s_cbranch_scc1 L_gk')
    only(FW, 'L_notag')
    a('s_setprio 3')
    a(f's_lshl_b32 s{sT0}, s{sH}, 3')
    a(f'v_mov_b32 {vr(S+4)}, s{sT0}')
    a(f'v_mov_b32 {vr(S+5)}, s{sN}')
    a(f'v_mov_b32 {vr(S+6)}, {LCNT}')
    a(f'global_load_dword {vr(S+7)}, {vr(S+4)}, s[16:17]')
    a('s_setprio 0')
    qy('k')
    a(f's_waitcnt vmcnt({4*QY.count("k")})')
    a(f's_cmp_eq_u32 s{sC}, {CC}')
    a('s_cselect_b64 vcc, -1, 0')
    a(f'v_cndmask_b32 {vr(S+7)}, {vr(S+7)}, {vr(S+5)}, vcc')
    a('s_mov_b64 exec, 1')
    a(f'ds_write_b32 {vr(S+6)}, {vr(S+7)} offset:4')
    a('s_mov_b64 exec, -1')
    a('s_branch L_tagdone')
    a.label('L_notag')
    qy('k')
    a.label('L_tagdone')
    a('s_waitcnt lgkmcnt(0)')
    stamp(fine)
    a('s_barrier')
    for t in range(8):
        a(vread(X[t+1], t, 0)); a(vread(X[t+1]+2, t, 1))
    a('s_branch L_gdone')
    a.label('L_gk')
    for ks in range(4):
        a(f'ds_read_b128 {vr(QG+4*ks,4)}, {vr(vAG)} offset:{1024+64*ks}')
    def qo(when):
        for tile, Q in ((0, QA), (1, QB)):
            if QO[tile] == when:
                for ks in range(4): a(qld(Q, ks, tile))
    qo('k')
    a('s_waitcnt lgkmcnt(0)')
    for T in range(4):
        for ks in range(4):
            a(mfma(S+4*T, kf(T,ks), QG+4*ks, '0' if ks == 0 else S+4*T))
    a(f'v_mov_b32 {vr(vDQk)}, {vr(vAG)}')
    a.nop(7)
    for l in maxtree_l([S+x for x in range(16)], vM): a(l)
    xred(vM, vT)
    a(f'v_mul_f32 {vr(vM)}, s{sCS}, {vr(vM)}')
    for l in fma_l([S+x for x in range(16)], vM): a(l)
    for l in exp_l([S+x for x in range(16)]): a(l)
    a.nop(1)
    a(f'v_add_f32 {vr(vT)}, {vr(S)}, {vr(S+1)}')
    for x in range(2, 16):
        a(f'v_add_f32 {vr(vT)}, {vr(vT)}, {vr(S+x)}')
    for l in cvt_l(S, S, 8): a(l)
    xred(vT, vT0, 'v_add_f32')
    a(f'ds_write_b64 {vr(vNEG)}, {vr(vM,2)}')
    a(f'v_mbcnt_lo_u32_b32 {vr(vT0)}, -1, 0')
    a(f's_lshl_b32 s{sT0}, s{sWV}, 10')
    a(f'v_lshl_add_u32 {vr(vT0)}, {vr(vT0)}, 3, s{sT0}')
    if stamps and fine:
        nst[0] -= 1
        stamp()
    qo('g')
    a(f's_waitcnt vmcnt({4*(QO.count("k")+QO.count("g"))}) lgkmcnt(0)')
    a('s_barrier')
    gb = [KG + 4*n for n in range(4)] + [S + 8 + 4*n for n in range(4)]
    for t in range(8):
        a(vread(gb[t], t, 2)); a(vread(gb[t]+2, t, 3))
    for t in range(8):
        a('s_waitcnt lgkmcnt(14)')
        a(mfma(gb[t], S+4, gb[t], '0'))
        a(vread(X[t+1], t, 0)); a(vread(X[t+1]+2, t, 1))
    for t in range(8):
        a(f's_waitcnt lgkmcnt({14-2*t})')
        a(mfma(gb[t], S, X[t+1], gb[t]))
    a('s_mov_b64 exec, 1')
    a(f'v_mov_b32 {vr(S)}, {LCNT}')
    a(f'v_mov_b32 {vr(S+1)}, 1')
    a('s_mov_b64 exec, 0xffff')
    for t in range(8):
        a(f'ds_write_b64 {vr(vT0)}, {vr(gb[t],2)} offset:{PART+128*t}')
    a('s_mov_b64 exec, 1')
    a(f'ds_add_u32 {vr(S)}, {vr(S+1)}')
    a('s_mov_b64 exec, -1')
    for ks in range(4):
        a(f'ds_read_b128 {vr(KG+4*ks,4)}, {vr(vDQk)} offset:{64*ks}')
    a(f'v_mov_b32 {vr(vDQk)}, 0')
    a.label('L_gdone')
    stamp()

    emit = lambda ls: [a(l) for l in ls]
    def combine(og, mg, tm):
        NP = len(og)
        emit(maxtree_l([mg[n] for n in range(NP)], tm))
        for n in range(NP):
            a(f'v_sub_f32 {vr(mg[n])}, {vr(mg[n])}, {vr(tm)}')
        for n in range(NP):
            a(f'v_exp_f32 {vr(mg[n])}, {vr(mg[n])}')
        a.nop(1)
        for e in range(4):
            a(f'v_mul_f32 {vr(og[0][e])}, {vr(og[0][e])}, {vr(mg[0])}')
        a(f'v_mul_f32 {vr(mg[0]+1)}, {vr(mg[0]+1)}, {vr(mg[0])}')
        for n in range(1, NP):
            for e in range(4):
                a(f'v_fmac_f32 {vr(og[0][e])}, {vr(og[n][e])}, {vr(mg[n])}')
            a(f'v_fmac_f32 {vr(mg[0]+1)}, {vr(mg[n]+1)}, {vr(mg[n])}')

    a(f's_cmp_eq_u32 s{sWV}, {RW}')
    a('s_cbranch_scc1 L_reduce')
    a(f's_cmp_eq_u32 s{sCMB}, 0')
    a('s_cbranch_scc1 L_noflag')
    a(f'v_mov_b32 {vr(vT0)}, {LNON}')
    a(f'ds_read_b32 {vr(vT0)}, {vr(vT0)}')
    a('s_waitcnt lgkmcnt(0)')
    a(f'v_readfirstlane_b32 s{sN}, {vr(vT0)}')
    a.label('L_noflag')
    a('s_waitcnt vmcnt(4) lgkmcnt(0)')
    a('s_branch L_tileA')
    a.label('L_reduce')
    R0 = S
    a(f'v_mbcnt_lo_u32_b32 {vr(R0)}, -1, 0')
    a(f'v_mbcnt_hi_u32_b32 {vr(R0)}, -1, {vr(R0)}')
    a(f'v_lshrrev_b32 {vr(R0+1)}, 5, {vr(R0)}')
    a(f'v_and_b32 {vr(R0+3)}, 31, {vr(R0)}')
    a(f'v_lshlrev_b32 {vr(R0+3)}, 5, {vr(R0+3)}')
    a(f'v_lshl_add_u32 {vr(R0+3)}, {vr(R0+1)}, 2, {vr(R0+3)}')
    a(f'v_lshlrev_b32 {vr(R0+1)}, 3, {vr(R0+1)}')
    a(f'v_add_u32 {vr(R0+1)}, {PARTML}, {vr(R0+1)}')
    a(f'v_lshlrev_b32 {vr(R0)}, 4, {vr(R0)}')
    a(f'v_mov_b32 {vr(R0+2)}, {LCNT}')
    a(f's_mov_b32 s{sCNT}, 0')
    a.label('L_lspin')
    a(f'ds_read_b64 {vr(S+4,2)}, {vr(R0+2)}')
    a(f's_add_u32 s{sCNT}, s{sCNT}, 1')
    a('s_waitcnt lgkmcnt(0)')
    a(f'v_readfirstlane_b32 s{sT0}, {vr(S+4)}')
    a(f'v_readfirstlane_b32 s{sN}, {vr(S+5)}')
    a(f's_cmp_ge_u32 s{sCNT}, 0x100000')
    a('s_cbranch_scc1 L_lok')
    a(f's_cmp_lt_u32 s{sT0}, 4')
    a('s_cbranch_scc1 L_lspin')
    a.label('L_lok')
    mg = [S+4, S+6, O, O+2]
    G0 = S + 8
    og = [[G0+4*n+e for e in range(4)] for n in range(4)]
    for n in range(4):
        a(f'ds_read_b64 {vr(mg[n],2)}, {vr(R0+1)} offset:{16*n}')
    for n in range(4):
        if n: a(f'v_add_u32 {vr(R0+3)}, 1024, {vr(R0+3)}')
        a(f'ds_read2_b32 {vr(G0+4*n,2)}, {vr(R0+3)} offset0:0 offset1:2')
        a(f'ds_read2_b32 {vr(G0+4*n+2,2)}, {vr(R0+3)} offset0:4 offset1:6')
    a('s_waitcnt lgkmcnt(0)')
    combine(og, mg, R0+1)
    a(f'v_mov_b32 {vr(G0+4)}, {vr(G0+3)}')
    a(f'v_mov_b32 {vr(G0+5)}, {vr(R0+1)}')
    a(f'v_mov_b32 {vr(G0+6)}, {vr(mg[0]+1)}')
    a(f'v_mov_b32 {vr(G0+7)}, s{sN}')
    a(f'v_mov_b32 {vr(G0+3)}, s{sN}')
    a(f'buffer_store_dwordx4 {vr(G0+4,4)}, {vr(R0)}, {sr(sW,4)}, s42 offen offset:1024 sc0 sc1')
    a(f'buffer_store_dwordx4 {vr(G0,4)}, {vr(R0)}, {sr(sW,4)}, s42 offen sc0 sc1')
    a(f's_cmp_lg_u32 s{sN}, 0')
    a('s_cbranch_scc1 L_tagged')
    a('s_waitcnt vmcnt(0)')
    a(f's_lshl_b32 s{sT0}, s{sH}, 3')
    a(f's_lshl_b32 s{sT1}, 1, s{sC}')
    a(f'v_mov_b32 {vr(R0)}, s{sT0}')
    a(f'v_mov_b32 {vr(R0+1)}, s{sT1}')
    a('s_mov_b64 exec, 1')
    a(f'global_atomic_or {vr(R0)}, {vr(R0+1)}, s[16:17] offset:4 sc1')
    a('s_mov_b64 exec, -1')
    a.label('L_tagged')
    a('s_waitcnt vmcnt(6)')
    a.label('L_tileA')
    stamp()

    def inter(ms, vs, per=2):
        vs = list(vs)
        for m in ms:
            a(m)
            for _ in range(per):
                if vs: a(vs.pop(0))
        for v in vs: a(v)

    HB = kf(2, 0)
    def hand_loads():
        a(f'v_mbcnt_lo_u32_b32 {vr(KG)}, -1, 0')
        a(f'v_mbcnt_hi_u32_b32 {vr(KG)}, -1, {vr(KG)}')
        a(f'v_lshlrev_b32 {vr(KG)}, 4, {vr(KG)}')
        for n in range(8):
            a(f's_movk_i32 s{sT0}, {2048*n}')
            a(f'buffer_load_dwordx4 {vr(HB+8*n,4)}, {vr(KG)}, {sr(sW,4)}, s{sT0} offen sc0 sc1')
            a(f'buffer_load_dwordx4 {vr(HB+8*n+4,4)}, {vr(KG)}, {sr(sW,4)}, s{sT0} offen offset:1024 sc0 sc1')

    buf = [kf(0, n) for n in range(4)] + [QA + 4*n for n in range(4)]
    SLOTW = {0: [0, 1, 2, 3, 4], 1: [4, 5, 2, 3, 1]}
    def qk(tau, sl):
        Q = QA if tau == 0 else QB
        if sl == 'G':
            return [mfma(S+20, KG+4*ks, Q+4*ks, '0' if ks == 0 else S+20) for ks in range(4)]
        W = SLOTW[tau][sl]
        c0 = BLO if W == tau else BHI if W == tau + 4 else '0'
        return [mfma(S+4*sl, kf(W,ks), Q+4*ks, c0 if ks == 0 else S+4*sl) for ks in range(4)]
    def edge_test(tau, lab):
        a(f's_sub_u32 s{sT0}, s{sQB}, {48 - 16*tau}')
        a(f's_cmp_lt_u32 s{sT0}, 1968')
        a(f's_cbranch_scc1 {lab}')
    def edge_mask(tau, tr):
        a(f'v_mbcnt_lo_u32_b32 {vr(tr)}, -1, 0')
        a(f'v_mbcnt_hi_u32_b32 {vr(tr)}, -1, {vr(tr)}')
        a(f'v_lshrrev_b32 {vr(tr)}, 4, {vr(tr)}')
        a(f's_sub_u32 s{sT0}, s{sQB}, 34')
        a(f's_movk_i32 s{sT1}, 2046')
        a(f'v_lshl_add_u32 {vr(tr)}, {vr(tr)}, 2, s{sT0}')
        a(f'v_mov_b32 {vr(vM)}, 0x{NEG:08x}')
        a('s_nop 3')
        for sl in range(5):
            for r in range(4):
                a(f'v_add_u32 {vr(vT)}, {16*SLOTW[tau][sl]+r}, {vr(tr)}')
                a(f'v_cmp_gt_u32 vcc, s{sT1}, {vr(vT)}')
                a('s_nop 1')
                a(f'v_cndmask_b32 {vr(S+4*sl+r)}, {vr(vM)}, {vr(S+4*sl+r)}, vcc')
        for l in maxtree_l([S+x for x in range(22)], vM): a(l)
    def epi(t, tau=0):
        l = [f'v_mul_f32 {vr(O+4*t+e)}, {vr(O+4*t+e)}, {vr(vT0)}' for e in range(4)]
        l += [f'v_cvt_pk_bf16_f32 {vr(O+4*t)}, {vr(O+4*t)}, {vr(O+4*t+1)}',
              f'v_cvt_pk_bf16_f32 {vr(O+4*t+1)}, {vr(O+4*t+2)}, {vr(O+4*t+3)}',
              f'ds_write_b64 {vr(vSW)}, {vr(O+4*t,2)} offset:{32*t + 16*STGP*tau}']
        return l
    def stage_reads(tau=0, R=O):
        return [f'ds_read_b128 {vr(R+4*j,4)}, {vr(vSR)} offset:{4*STGP*j + 16*STGP*tau}' for j in range(4)]
    def stores(tau, R=O, extra=0):
        for j in range(4):
            a(f's_waitcnt lgkmcnt({3-j+extra})')
            if tau == 0 and j == 0: a(f's_mov_b64 exec, {sr(sEX,2)}')
            a(f'buffer_store_dwordx4 {vr(R+4*j,4)}, {vr(vOO)}, {sr(sO,4)}, s{sTOFF if tau else sZERO} offen offset:{1024*j} {stpol}')
            if tau == 0 and j == 0: a('s_mov_b64 exec, -1')
    RA = kf(1, 0)
    def late_a():
        for l in stage_reads(0, RA): a(l)
        stores(0, RA)
    def softmax_pv(tau):
        m = vM
        xred(m, vT)
        a(f'v_mul_f32 {vr(m)}, s{sCS}, {vr(m)}')
        set0 = [S+x for x in range(8)]; set1 = [S+8+x for x in range(8)]; set2 = [S+16+x for x in range(6)]
        for l in fma_l(set0, m): a(l)
        f2 = fma_l(set2, m); f1 = fma_l(set1, m)
        for l in exp_l(set0): a(l)
        a(f2[0])
        for l in cvt_l(S, S, 4): a(l)
        a(f2[1])
        a('s_waitcnt lgkmcnt(0)' if tau == 1 else 's_waitcnt lgkmcnt(8)')
        if tau == 1 and apos == 1: late_a()
        ONES, LACC = S+4, S+20
        v2 = f2[2:] + exp_l(set2) + [f'v_mov_b32 {vr(ONES+n)}, 0x3f803f80' for n in range(4)] + cvt_l(S+16, S+16, 3) \
             + [f'v_mov_b32 {vr(S+19)}, 0', f'v_cndmask_b32 {vr(S+18)}, 0, {vr(S+18)}, {sr(sKG0,2)}']
        inter([mfma(X[t], X[t+1], S, '0') for t in range(8)], v2 + f1[:2])
        v1 = f1[2:] + exp_l(set1) + [f'v_mov_b32 {vr(vT0)}, 0'] + cvt_l(S+8, S+8, 4)
        inter([mfma(O+4*t, VG+4*t, S+16, O+4*t) for t in range(8)], v1)
        a(mfma(LACC, ONES, S, '0'))
        a(mfma(LACC, ONES, S+16, LACC))
        a(mfma(LACC, ONES, S+8, LACC))
        if tau == 0:
            a('s_waitcnt lgkmcnt(0)')
        for t in range(8):
            a(mfma(O+4*t, buf[t], S+8, O+4*t))
            if tau == 0: a(vread(VG+4*t, t, 1))
        a(f'v_rcp_f32 {vr(vT0)}, {vr(LACC)}')

    late = []
    for t in range(8):
        late += [vread(buf[t], t, 2), vread(buf[t]+2, t, 3)]
    vgr = [vread(VG+4*t, t, 4) for t in range(8)]
    edge_test(0, 'L_fastA')
    for l in vgr: a(l)
    for sl in ('G', 0, 1, 2, 3, 4):
        for l in qk(0, sl): a(l)
    for l in late: a(l)
    edge_mask(0, vT0)
    a('s_branch L_joinA')
    a.label('L_fastA')
    m = vM
    inter(qk(0, 0) + qk(0, 'G'), vgr, per=1)
    inter(qk(0, 1) + qk(0, 2), late[:8], per=1)
    inter(qk(0, 3), maxtree_l([S+20, S+21, S+0], m) + maxtree_l([S+1, S+2, S+3, S+4, S+5, S+6], m, False), per=1)
    inter(qk(0, 4), maxtree_l([S+7, S+8, S+9, S+10], m, False), per=1)
    for l in late[8:11]: a(l)
    for l in maxtree_l([S+11, S+12], m, False): a(l)
    for l in late[11:13]: a(l)
    for l in maxtree_l([S+13, S+14, S+15], m, False): a(l)
    for l in late[13:]: a(l)
    for l in maxtree_l([S+16, S+17, S+18, S+19], m, False): a(l)
    a.label('L_joinA')
    stamp(fine)
    softmax_pv(0)
    stamp(fine)
    ep = []
    for t in range(8): ep += epi(t)
    if apos == 0: ep += stage_reads()
    xb = []
    for t in range(8): xb += [vread(X[t+1], t, 4), vread(X[t+1]+2, t, 5)]
    def qb_wait(n):
        a(f's_waitcnt vmcnt({n+2})')
        a(f's_cmp_eq_u32 s{sWV}, {RW}')
        a('s_cbranch_scc1 L_qbw')
        a(f's_waitcnt vmcnt({n})')
        a.label('L_qbw')
    if not merge:
        a('s_nop 0')
        for l in ep: a(l)
        stores(0)
        for l in xb: a(l)
        qb_wait(4)
        stamp()
        edge_test(1, 'L_fastB')
        for sl in ('G', 0, 1, 2, 3, 4):
            for l in qk(1, sl): a(l)
        edge_mask(1, vT0)
        a('s_branch L_joinB')
        a.label('L_fastB')
        for sl in ('G', 0, 1, 2):
            for l in qk(1, sl): a(l)
        inter(qk(1, 3), maxtree_l([S+20, S+21, S+0], m) + maxtree_l([S+1, S+2], m, False), per=1)
        inter(qk(1, 4), maxtree_l([S+3, S+4, S+5, S+6, S+7, S+8], m, False), per=1)
        a.nop(1)
        for l in maxtree_l([S+9, S+10, S+11, S+12], m, False): a(l)
        a.nop(1)
        for l in maxtree_l([S+13, S+14, S+15], m, False): a(l)
        a.nop(2)
        for l in maxtree_l([S+16, S+17, S+18, S+19], m, False): a(l)
    else:
        qb_wait(0)
        stamp()
        edge_test(1, 'L_fastB')
        for l in ep: a(l)
        if apos == 0: stores(0)
        for sl in (0, 1, 2, 3, 4, 'G'):
            for l in qk(1, sl): a(l)
        for l in xb: a(l)
        edge_mask(1, vT0)
        a('s_branch L_joinB')
        a.label('L_fastB')
        ms = []
        for sl in (0, 1, 2, 3, 4, 'G'): ms += qk(1, sl)
        inter(ms, ep, per=3)
        for l in maxtree_l([S+x for x in range(15)], vT0): a(l)
        if apos == 0: stores(0)
        for l in xb: a(l)
        a(f'v_max3_f32 {vr(vM)}, {vr(vT0)}, {vr(S+15)}, {vr(S+16)}')
        for l in maxtree_l([S+17, S+18, S+19, S+20, S+21], vM, False): a(l)
    a.label('L_joinB')
    stamp()
    a(f's_cmp_eq_u32 s{sCMB}, 0')
    a('s_cbranch_scc1 L_nohand')
    hand_loads()
    a.label('L_nohand')
    softmax_pv(1)
    stamp(fine)
    if apos == 2:
        late_a()
    a('s_nop 0')
    if apos == 3:
        for l in stage_reads(0, RA): a(l)
    for t in range(8):
        for l in epi(t, 1): a(l)
    for l in stage_reads(1): a(l)
    if apos == 3:
        stores(0, RA, extra=4+8) if False else None
        for j in range(4):
            if j == 0: a(f's_mov_b64 exec, {sr(sEX,2)}')
            if j == 0: a('s_waitcnt lgkmcnt(4)')
            a(f'buffer_store_dwordx4 {vr(RA+4*j,4)}, {vr(vOO)}, {sr(sO,4)}, s{sZERO} offen offset:{1024*j} {stpol}')
            if j == 0: a('s_mov_b64 exec, -1')
    stores(1)
    stamp()

    a(f's_cmp_eq_u32 s{sCMB}, 0')
    a('s_cbranch_scc1 L_fin')
    a(f's_waitcnt vmcnt({4 if apos == 0 else 8})')
    a(f's_mov_b32 s{sCNT}, 0')
    a(f's_mov_b32 s{sT2}, 0')
    a.label('L_chk')
    a(f's_mov_b32 s{sT3}, s{sT2}')
    for n in range(8):
        a(f'v_cmp_eq_u32 vcc, s{sN}, {vr(HB+8*n+3)}')
        a(f'v_cmp_eq_u32 s[60:61], s{sN}, {vr(HB+8*n+7)}')
        a('s_nop 0')
        a('s_and_b64 vcc, vcc, s[60:61]')
        a('s_cmp_eq_u64 vcc, exec')
        a(f's_cselect_b32 s{sT0}, {1 << n}, 0')
        a(f's_or_b32 s{sT3}, s{sT3}, s{sT0}')
    a(f's_add_u32 s{sCNT}, s{sCNT}, 1')
    a(f's_cmp_eq_u32 s{sT3}, 0xff')
    a('s_cbranch_scc1 L_ready')
    a(f's_cmp_ge_u32 s{sCNT}, 0x40000')
    a('s_cbranch_scc1 L_ready')
    a(f's_lshl_b32 s{sT0}, s{sH}, 3')
    a(f'v_mov_b32 {vr(KG+1)}, s{sT0}')
    a(f'global_load_dword {vr(KG+2)}, {vr(KG+1)}, s[16:17] offset:4 sc0 sc1')
    a('s_waitcnt vmcnt(0)')
    a(f'v_readfirstlane_b32 s{sT2}, {vr(KG+2)}')
    hand_loads()
    a('s_waitcnt vmcnt(0)')
    a('s_branch L_chk')
    a.label('L_ready')
    hog = [[HB+8*n, HB+8*n+1, HB+8*n+2, HB+8*n+4] for n in range(8)]
    hmg = [HB+8*n+5 for n in range(8)]
    combine(hog, hmg, X8)
    a(f'v_rcp_f32 {vr(X8)}, {vr(hmg[0]+1)}')
    a(f'v_lshrrev_b32 {vr(KG)}, 1, {vr(KG)}')
    for e in range(4):
        a(f'v_mul_f32 {vr(hog[0][e])}, {vr(hog[0][e])}, {vr(X8)}')
    a(f'v_cvt_pk_bf16_f32 {vr(X8+2)}, {vr(hog[0][0])}, {vr(hog[0][1])}')
    a(f'v_cvt_pk_bf16_f32 {vr(X8+3)}, {vr(hog[0][2])}, {vr(hog[0][3])}')
    a(f'buffer_store_dwordx2 {vr(X8+2,2)}, {vr(KG)}, {sr(sO,4)}, 0 offen {stpol}')
    a.label('L_fin')
    if stamps:
        stamp()
        a('s_waitcnt vmcnt(0)')
        stamp()
        if opt.get('clk'):
            a('s_memtime s[98:99]')
            a('s_waitcnt lgkmcnt(0)')
            a('s_sub_u32 s98, s98, s96')
            a(f's_add_u32 s{64+2*nst[0]}, s98, s64')
            nst[0] += 1
        a(f's_lshl_b32 s{sT0}, s2, 3')
        a(f's_add_u32 s{sT0}, s{sT0}, s{sWV}')
        a(f's_lshl_b32 s{sT0}, s{sT0}, 6')
        a(f's_add_u32 s{sT0}, s{sT0}, 0x100000')
        a(f's_add_u32 s{sW}, s18, s{sT0}')
        a(f's_addc_u32 s{sW+1}, s19, 0')
        a(f'v_mov_b32 v1, 0')
        a('s_mov_b64 exec, 1')
        for n in range(min(16, nst[0])):
            a(f'v_mov_b32 v2, s{64+2*n}')
            a(f'buffer_store_dword v2, v1, {sr(sW,4)}, 0 offen offset:{4*n}')
        if 'leak' in opt:
            k = int(opt['leak'])
            a(f's_sub_u32 s{sT0}, s{64+2*k}, s64')
            a(f's_lshl_b32 s{sT0}, s{sT0}, 2')
            if opt.get('leakskew'):
                a.label('L_pre')
                a('s_memrealtime s[100:101]')
                a('s_waitcnt lgkmcnt(0)')
                a(f's_sub_u32 s{sT1}, s100, s64')
                a(f's_cmp_lt_u32 s{sT1}, 3000')
                a('s_cbranch_scc1 L_pre')
                a('s_mov_b64 exec, -1')
                a('v_mbcnt_lo_u32_b32 v3, -1, 0')
                a('v_and_b32 v3, 31, v3')
                a('v_lshlrev_b32 v3, 3, v3')
                a('global_load_dword v4, v3, s[16:17] sc0 sc1')
                a('s_waitcnt vmcnt(0)')
                a('v_readlane_b32 s20, v4, 0')
                a('s_mov_b32 s21, 0'); a('s_mov_b32 s22, 0')
                for n in range(1, 32):
                    a(f'v_readlane_b32 s23, v4, {n}')
                    a('s_nop 0')
                    a('s_sub_i32 s23, s23, s20')
                    a('s_min_i32 s21, s21, s23')
                    a('s_max_i32 s22, s22, s23')
                a(f's_sub_u32 s{sT0}, s22, s21')
                a(f's_min_u32 s{sT0}, s{sT0}, 2000')
                a(f's_lshl_b32 s{sT0}, s{sT0}, 2')
            if opt.get('leakcnt'):
                a(f's_mul_i32 s{sT0}, s{sCNT}, 500')
                a(f's_mul_i32 s{sT0}, s{sT0}, s{sCMB}')
            if 'leakw' in opt:
                a(f's_lshr_b32 s{sT1}, {opt["leakw"]}, s{sWV}')
                a(f's_bitcmp1_b32 s{sT1}, 0')
                a(f's_cselect_b32 s{sT0}, s{sT0}, 0')
            a(f"s_add_u32 s{sT0}, s{sT0}, {opt.get('spin', 5000)}")
            a.label('L_spin')
            a('s_memrealtime s[100:101]')
            a('s_waitcnt lgkmcnt(0)')
            a(f's_sub_u32 s{sT1}, s100, s64')
            a(f's_cmp_lt_u32 s{sT1}, s{sT0}')
            a('s_cbranch_scc1 L_spin')
    a.label('L_end')
    a('s_endpgm')
    if opt.get('cpf', True):
        a('.fill 4096, 4, 0xbf800000')

    check(a.lines)
    if stamps: print('stamps', nst[0])
    head = f'''; windowed + global-token attention, B=1 H=32 S=2048 D=128 bf16 (window 32, 2 global tokens)
; @launch grid=(256,1,1) block=(512,1,1) lds=163840
.amdgcn_target "amdgcn-amd-amdhsa--gfx950"
.text
.globl {NAME}
.p2align 8
.type {NAME},@function
{NAME}:
'''
    tail = f'''.section .rodata,"a"
.p2align 6
.amdhsa_kernel {NAME}
  .amdhsa_next_free_vgpr 256
  .amdhsa_next_free_sgpr {102 if stamps else 64}
  .amdhsa_accum_offset 256
  .amdhsa_group_segment_fixed_size 0
  .amdhsa_kernarg_size 64
  .amdhsa_user_sgpr_count 2
  .amdhsa_user_sgpr_kernarg_segment_ptr 1
  .amdhsa_system_sgpr_workgroup_id_x 1
.end_amdhsa_kernel
'''
    return head + a.text() + tail

if __name__ == '__main__':
    out = sys.argv[1]
    opt = {}
    for kv in sys.argv[2:]:
        k, v = kv.split('=', 1)
        opt[k] = {'True': True, 'False': False}.get(v, v.replace('+', ' '))
    open(out, 'w').write(gen(opt))
```

```python
import sys, math, struct
from asmlib import *

NAME = 'standalone__global_local_windowed_global_tokens__prompt_kernel'
def f2u(x): return struct.unpack('<I', struct.pack('<f', x))[0]

def gen(opt):
    a = Asm()
    NEG = 0xFF000000
    CSC = f2u(128 ** -0.5 * math.log2(math.e))
    KOFF, VOFF, SOFF = 0, 73728, 155648
    apos = int(opt.get('apos', 0))
    PART, STG = 0, 4096
    PARTML, LCNT, LNON = SOFF + 3072, SOFF + 3072 + 128, SOFF + 3072 + 132
    STGP = 272
    ldpol = opt.get('ldpol', '')
    qpol = opt.get('qpol', '')
    stpol = opt.get('stpol', 'sc0 sc1 nt')
    pk = opt.get('pk', True)
    N1 = int(opt.get('n1', 10))
    yp = opt.get('yp', '')
    RW = int(opt.get('rw', 3))
    FW = 7
    SW = 5
    CW, CC = int(opt.get('cw', 1)), 3
    merge = opt.get('merge', True)
    sQ, sK, sV, sO, sW = 20, 24, 28, 32, 36
    sWV, sH, sC, sHO, sQ0B = 40, 43, 44, 45, 46
    sT0, sT1, sT2, sT3 = 47, 48, 49, 50
    sBK = 62
    HW = 4
    sCS = 52; sKG0 = 54; sQB = 51; sEX = 56; sCMB = 58; sCNT = 59; sN = 63; sTOFF = 41; sZERO = 3
    VA = 0
    vSW, vSR, vOO, vT0 = 8, 9, 10, 11
    X8 = 12
    KF = 16; KG = 112; QA, QB = 128, 144; VG = 160; O = 192; S = 224
    BLO, BHI = 248, 252
    kf = lambda W, ks: KF + 16 * W + 4 * ks
    X = [O + 4 * n for n in range(8)] + [X8]
    vLANE, vI, vKGp, vDK, vDV, vDQ, vAG, vNEG, vAK = O+16, O+17, O+18, O+19, O+20, O+21, O+22, O+23, O+24
    vAVG, t1, t2, t3 = O+28, O+29, O+30, O+31
    vDQk = VG + 7
    vFLAG = VG + 3
    vM, vT = S + 22, S + 23

    stamps = opt.get('stamps', False)
    fine = opt.get('fine', False)
    nst = [0]
    def stamp(on=True):
        if stamps and on:
            a(f's_memrealtime s[{64+2*nst[0]}:{65+2*nst[0]}]')
            if nst[0]: a('s_waitcnt lgkmcnt(0)')
            nst[0] += 1
    M16 = 'v_mfma_f32_16x16x32_bf16'
    def mfma(d, x, y, c):
        return f'{M16} {vr(d,4)}, {vr(x,4)}, {vr(y,4)}, {c if isinstance(c,str) else vr(c,4)}'
    def only(w, lab):
        a(f's_cmp_lg_u32 s{sWV}, {w}')
        a(f's_cbranch_scc1 {lab}')

    stamp()
    if opt.get('clk'): a('s_memtime s[96:97]')
    a('s_load_dwordx16 s[4:19], s[0:1], 0')
    a(f'v_readfirstlane_b32 s{sWV}, v0')
    a('s_cmp_ge_u32 s2, 256')
    a('s_cbranch_scc1 L_end')
    a(f'v_lshrrev_b32 {vr(t1)}, 4, v0')
    a(f'v_xor_b32 {vr(vDK)}, {vr(t1)}, v0')
    a(f'v_and_b32 {vr(vDK)}, 15, {vr(vDK)}')
    a(f'v_lshl_add_u32 {vr(vDK)}, {vr(t1)}, 4, {vr(vDK)}')
    a(f's_bfe_u32 s{sC}, s2, 0x30003')
    a(f's_lshl_b32 s{sQ0B}, s{sC}, 16')
    a(f'v_lshl_add_u32 {vr(vDK)}, {vr(vDK)}, 4, s{sQ0B}')
    a('s_and_b32 s41, s2, 7')
    a(f's_lshr_b32 s{sH}, s2, 6')
    a(f's_lshl2_add_u32 s{sH}, s41, s{sH}')
    a(f's_lshl_b32 s{sHO}, s{sH}, 19')
    a(f's_lshl_b32 m0, s{sWV}, 4')
    a(f's_mov_b32 s{sK+2}, 0x80000')
    a(f's_mov_b32 s{sK+3}, 0x20000')
    a(f's_movk_i32 s{sCNT}, 17')
    if opt.get('cpf', True):
        a(f's_getpc_b64 s[{sEX}:{sEX+1}]')
        a(f'v_lshlrev_b32 v1, 5, v0')
        a(f'global_load_dword {vr(X8)}, v1, s[{sEX}:{sEX+1}]')
    a(f's_cmp_ge_u32 s{sWV}, 256')
    a('s_cbranch_scc1 L_helper')
    a('s_waitcnt lgkmcnt(0)')
    stamp()
    a(f's_add_u32 s{sK}, s6, s{sHO}')
    a(f's_addc_u32 s{sK+1}, s7, 0')
    a.label('L_kloop')
    a(f'buffer_load_dwordx4 {vr(vDK)}, {sr(sK,4)}, 0 offen {opt.get("kpol", ldpol)} lds')
    a('s_add_u32 m0, m0, 0x1000')
    a(f'v_add_u32 {vr(vDK)}, 0x1000, {vr(vDK)}')
    a(f's_sub_u32 s{sCNT}, s{sCNT}, 1')
    a('s_cbranch_scc0 L_kloop')
    stamp(opt.get('postk', False))
    def common():
        a(f's_lshr_b32 s{sWV}, s{sWV}, 6')
        a(f'v_and_b32 {vr(vLANE)}, 63, v0')
        a(f'v_and_b32 {vr(vI)}, 15, v0')
        a(f'v_bfe_u32 {vr(vKGp)}, v0, 4, 2')
        a(f's_lshl_b32 s{sT1}, s{sWV}, 10')
        a(f's_add_u32 s{sT2}, s{sT1}, s{sQ0B}')
        for s_ in (sV, sQ):
            a(f's_mov_b32 s{s_+2}, 0x80000')
            a(f's_mov_b32 s{s_+3}, 0x20000')
        a(f's_mov_b32 s{sW+2}, 0x4000')
        a(f's_mov_b32 s{sW+3}, 0x20000')
        a(f's_and_b32 s{sBK}, s{sWV}, 3')
        a(f's_lshl_b32 s{sBK}, s{sBK}, 1')
        a(f's_cmp_lt_u32 s{sWV}, 4')
        a(f's_addc_u32 s{sBK}, s{sBK}, 0')
        a(f's_cmp_eq_u32 s{sC}, 0')
        a(f's_cselect_b32 s{sT3}, 0x40000000, 0')
        a(f's_lshl_b32 s{sT0}, s{sBK}, 13')
        a(f's_add_u32 s{sT0}, s{sT0}, s{sQ0B}')
        a(f'v_lshlrev_b32 {vr(vDQ)}, 4, {vr(vKGp)}')
        a(f'v_lshl_add_u32 {vr(vDQ)}, {vr(vI)}, 8, {vr(vDQ)}')
        a(f'v_add_u32 {vr(vDQ)}, s{sT0}, {vr(vDQ)}')
        a(f'v_lshlrev_b32 {vr(t3)}, 4, {vr(vLANE)}')
        a(f's_lshl_b32 s41, s{sH}, 14')
        a(f's_lshl_b32 s42, s{sC}, 11')
    common()
    a(f's_mov_b32 s{sN}, 0')
    def srds():
        a(f's_add_u32 s{sV}, s8, s{sHO}')
        a(f's_addc_u32 s{sV+1}, s9, 0')
        a(f's_add_u32 s{sQ}, s4, s{sHO}')
        a(f's_addc_u32 s{sQ+1}, s5, 0')
        a(f's_add_u32 s{sW}, s18, s41')
        a(f's_addc_u32 s{sW+1}, s19, 0')
    srds()
    a('s_branch L_v1')
    a.label('L_helper')
    a('s_setprio 3')
    a('s_memrealtime s[60:61]')
    common()
    a(f's_sub_u32 s{sT0}, s{sT3}, 0x2000')
    a(f'v_add_u32 {vr(t1)}, s{sT0}, {vr(vDQ)}')
    a(f'v_add_u32 {vr(t2)}, 0x1000, {vr(t1)}')
    a(f's_mov_b32 m0, {SOFF}')
    a('s_waitcnt lgkmcnt(0)')
    if stamps:
        nst[0] -= 1
        stamp()
    a(f's_add_u32 s{sK}, s6, s{sHO}')
    a(f's_addc_u32 s{sK+1}, s7, 0')
    srds()
    if stamps and opt.get('postk'):
        nst[0] -= 1
        stamp()
    a(f's_or_b32 s{sN}, s60, 1')
    only(FW, 'L_noclear')
    a(f's_lshl_b32 s{sT0}, s{sH}, 3')
    a(f'v_mov_b32 {vr(S+4)}, s{sT0}')
    a(f'v_mov_b32 {vr(S+5)}, s{sN}')
    a(f'v_mov_b32 {vr(S+6)}, {LCNT}')
    a(f'v_mov_b32 {vr(S+7)}, 0')
    a('s_mov_b64 exec, 1')
    a(f's_cmp_lg_u32 s{sC}, {CC}')
    a('s_cbranch_scc1 L_nopub')
    a(f'global_store_dword {vr(S+4)}, {vr(S+5)}, s[16:17] sc0 sc1')
    a.label('L_nopub')
    a(f'ds_write_b32 {vr(S+6)}, {vr(S+7)}')
    a('s_mov_b64 exec, -1')
    if opt.get('wstouch'):
        pol = {'ld': '', 'ldsc': 'sc0 sc1'}.get(opt['wstouch'])
        if pol is not None:
            a(f'buffer_load_dwordx4 {vr(S+8,4)}, {vr(t3)}, {sr(sW,4)}, s42 offen {pol}')
            a(f'buffer_load_dwordx4 {vr(S+12,4)}, {vr(t3)}, {sr(sW,4)}, s42 offen offset:1024 {pol}')
        else:
            for n in range(4): a(f'v_mov_b32 {vr(S+8+n)}, 0')
            a(f'buffer_store_dwordx4 {vr(S+8,4)}, {vr(t3)}, {sr(sW,4)}, s42 offen sc0 sc1')
            a(f'buffer_store_dwordx4 {vr(S+8,4)}, {vr(t3)}, {sr(sW,4)}, s42 offen offset:1024 sc0 sc1')
    a.label('L_noclear')
    only(SW, 'L_nosmall')
    for n, srd in enumerate((sK, sQ, sV)):
        if n:
            a(f's_mov_b32 m0, {SOFF + 1024*n}')
            a('s_nop 0')
        a(f'buffer_load_dwordx4 {vr(t3)}, {sr(srd,4)}, 0 offen lds')
    a.label('L_nosmall')
    only(HW, 'L_nohalo')
    for T in range(2):
        for ks in range(4):
            a(f'buffer_load_dwordx4 {vr(kf(T,ks),4)}, {vr(t1+T)}, {sr(sK,4)}, 0 offen offset:{64*ks}')
    a.label('L_nohalo')
    a('s_setprio 0')
    a('s_branch L_nov1')
    a.label('L_v1')
    def vpiece(i):
        if i:
            a('s_add_u32 m0, m0, 0x1000')
            a(f'v_add_u32 {vr(vDV)}, 0x1000, {vr(vDV)}')
        if i < 2:
            a(f'v_add_u32 {vr(t1)}, s{sT3}, {vr(vDV)}')
            a(f'buffer_load_dwordx4 {vr(t1)}, {sr(sV,4)}, 0 offen {ldpol} lds')
        else:
            a(f'buffer_load_dwordx4 {vr(vDV)}, {sr(sV,4)}, 0 offen {ldpol} lds')
    a(f's_and_b32 s{sT0}, s{sWV}, 1')
    a(f's_lshl_b32 s{sT0}, s{sT0}, 2')
    a(f'v_add_lshl_u32 {vr(vDV)}, s{sT0}, {vr(vKGp)}, 1')
    a(f'v_xor_b32 {vr(vDV)}, {vr(vDV)}, {vr(vI)}')
    a(f'v_lshlrev_b32 {vr(vDV)}, 4, {vr(vDV)}')
    a(f'v_lshl_add_u32 {vr(vDV)}, {vr(vKGp)}, 8, {vr(vDV)}')
    a(f's_sub_u32 s{sT2}, s{sT2}, 0x2000')
    a(f'v_add_u32 {vr(vDV)}, s{sT2}, {vr(vDV)}')
    a(f's_add_u32 m0, s{sT1}, {VOFF}')
    for i in range(N1): vpiece(i)
    a.label('L_nov1')
    stamp()

    a(f's_add_u32 s{sO}, s14, s{sHO}')
    a(f's_addc_u32 s{sO+1}, s15, 0')
    a(f's_mov_b32 s{sO+2}, 0x80000')
    a(f's_mov_b32 s{sO+3}, 0x20000')
    a(f's_movk_i32 s{sTOFF}, 0x1000')
    a(f's_mov_b32 s{sZERO}, 0')
    a(f's_mov_b32 s{sCS}, 0x{CSC:08x}')
    a(f's_mov_b32 s{sCS+1}, 0x{CSC:08x}')
    a(f'v_mov_b32 {vr(vNEG)}, 0x{NEG:08x}')
    a(f'v_lshlrev_b32 {vr(t2)}, 2, {vr(vKGp)}')
    a(f'v_cmp_eq_u32 {sr(sKG0,2)}, 0, {vr(vKGp)}')
    for r in range(4):
        a(f'v_add_u32 {vr(t1)}, {r}, {vr(t2)}')
        a(f'v_cmp_ge_u32 vcc, {vr(t1)}, {vr(vI)}')
        a(f'v_cmp_le_u32 s[60:61], {vr(t1)}, {vr(vI)}')
        a('s_nop 0')
        a(f'v_cndmask_b32 {vr(BLO+r)}, {vr(vNEG)}, 0, vcc')
        a(f'v_cndmask_b32 {vr(BHI+r)}, {vr(vNEG)}, 0, s[60:61]')
    a(f's_lshl_b32 s{sT0}, s{sBK}, 13')
    a(f'v_xor_b32 {vr(t1)}, {vr(vKGp)}, {vr(vI)}')
    a(f'v_lshlrev_b32 {vr(t1)}, 4, {vr(t1)}')
    a(f'v_lshl_add_u32 {vr(t1)}, {vr(vI)}, 8, {vr(t1)}')
    a(f'v_add_u32 {vr(vAK)}, s{sT0}, {vr(t1)}')
    for ks in range(1, 4):
        a(f'v_xor_b32 {vr(vAK+ks)}, {64*ks}, {vr(vAK)}')
    a(f'v_and_b32 {vr(t1)}, 1, {vr(vI)}')
    a(f'v_lshlrev_b32 {vr(vNEG)}, 3, {vr(t1)}')
    a(f'v_lshlrev_b32 {vr(t1)}, 8, {vr(t1)}')
    a(f'v_lshl_add_u32 {vr(t1)}, {vr(vKGp)}, 4, {vr(t1)}')
    a(f'v_add_u32 {vr(vAG)}, {SOFF}, {vr(t1)}')
    a(f'v_bfe_u32 {vr(t1)}, {vr(vLANE)}, 2, 2')
    a(f'v_and_b32 {vr(t2)}, 3, {vr(vLANE)}')
    a(f'v_lshlrev_b32 {vr(t2)}, 3, {vr(t2)}')
    a(f'v_lshl_add_u32 {vr(t1)}, {vr(t1)}, 8, {vr(t2)}')
    a(f'v_add_u32 {vr(vAVG)}, {SOFF+2048}, {vr(t1)}')
    a(f'v_lshrrev_b32 {vr(t1)}, 2, {vr(vLANE)}')
    a(f'v_and_b32 {vr(vT0)}, 7, {vr(t1)}')
    a(f'v_lshl_add_u32 {vr(t2)}, {vr(vT0)}, 5, {vr(t2)}')
    a(f'v_lshl_add_u32 {vr(t2)}, {vr(t1)}, 8, {vr(t2)}')
    a(f's_add_u32 s{sT1}, s{sT0}, {VOFF}')
    a(f'v_add_u32 {vr(VA)}, s{sT1}, {vr(t2)}')
    for t in range(1, 8):
        a(f'v_xor_b32 {vr(VA+t)}, {32*t}, {vr(VA)}')
    a(f's_mul_i32 s{sT1}, s{sWV}, {32*STGP}')
    a(f's_add_u32 s{sT1}, s{sT1}, {STG}')
    a(f'v_mul_u32_u24 {vr(t1)}, {STGP}, {vr(vI)}')
    a(f'v_lshl_add_u32 {vr(t1)}, {vr(vKGp)}, 3, {vr(t1)}')
    a(f'v_add_u32 {vr(vSW)}, s{sT1}, {vr(t1)}')
    a(f'v_mul_u32_u24 {vr(t1)}, {STGP}, {vr(vKGp)}')
    a(f'v_lshl_add_u32 {vr(t1)}, {vr(vI)}, 4, {vr(t1)}')
    a(f'v_add_u32 {vr(vSR)}, s{sT1}, {vr(t1)}')
    a(f's_add_u32 s{sT0}, s{sT0}, s{sQ0B}')
    a(f'v_add_u32 {vr(vOO)}, s{sT0}, {vr(t3)}')
    a(f's_lshr_b32 s{sQB}, s{sT0}, 8')
    a(f's_cmp_eq_u32 s{sQB}, 0')
    a(f's_cselect_b32 s{sEX}, 0, -1')
    a(f's_mov_b32 s{sEX+1}, -1')
    a(f's_cmp_eq_u32 s{sQB}, {256*CC+32*(2*CW+1)}')
    a(f's_cselect_b32 s{sCMB}, 1, 0')
    a(f's_lshl_b32 s{sT0}, s{sWV}, 4')
    a(f's_add_u32 s{sT0}, s{sT0}, {PARTML}')
    a(f'v_add_u32 {vr(vNEG)}, s{sT0}, {vr(vNEG)}')

    a(f's_waitcnt vmcnt({N1}) lgkmcnt(0)')
    a(f's_cmp_lt_u32 s{sWV}, 4')
    a('s_cbranch_scc1 L_kw')
    a(f's_cmp_eq_u32 s{sWV}, {FW}')
    a('s_cbranch_scc1 L_kw')
    a('s_waitcnt vmcnt(0)')
    a.label('L_kw')
    stamp(opt.get('prek', False))
    a('s_barrier')
    stamp()
    a(f's_cmp_ge_u32 s{sWV}, 4')
    a('s_cbranch_scc1 L_nov2')
    for i in range(N1, 20): vpiece(i)
    a.label('L_nov2')
    stamp(fine)
    QG = O
    for W in (2, 3, 4, 5):
        for ks in range(4):
            a(f'ds_read_b128 {vr(kf(W,ks),4)}, {vr(vAK+ks)} offset:{4096*(W-2)}')
    for ks in range(4):
        a(f'ds_read_b128 {vr(KG+4*ks,4)}, {vr(vAG)} offset:{64*ks}')
    for t in range(8):
        a(f'ds_read_b64_tr_b16 {vr(VG+4*t+2,2)}, {vr(vAVG)} offset:{32*t}')
    a(f's_cmp_eq_u32 s{sWV}, {HW}')
    a('s_cbranch_scc1 L_k01done')
    for ks in range(4):
        a(f'v_subrev_u32 {vr(vAK+ks)}, 0x2000, {vr(vAK+ks)}')
    for W in (0, 1):
        for ks in range(4):
            a(f'ds_read_b128 {vr(kf(W,ks),4)}, {vr(vAK+ks)} offset:{4096*W}')
    a.label('L_k01done')
    def issue_qa():
        if opt.get('qprio'): a('s_setprio 3')
        for ks in range(4):
            a(f'buffer_load_dwordx4 {vr(QA+4*ks,4)}, {vr(vDQ)}, {sr(sQ,4)}, 0 offen offset:{64*ks} {qpol}')
        if opt.get('qprio'): a('s_setprio 0')

    def xred(m, t, op='v_max_f32'):
        a(f'v_mov_b32 {vr(t)}, {vr(m)}')
        a.nop(2)
        a(f'v_permlane16_swap_b32 {vr(m)}, {vr(t)}')
        a(f'{op} {vr(m)}, {vr(m)}, {vr(t)}')
        a(f'v_mov_b32 {vr(t)}, {vr(m)}')
        a.nop(2)
        a(f'v_permlane32_swap_b32 {vr(m)}, {vr(t)}')
        a(f'{op} {vr(m)}, {vr(m)}, {vr(t)}')
    def maxtree_l(vals, m, first=True):
        out = []; rest = list(vals)
        if first:
            out.append(f'v_max3_f32 {vr(m)}, {vr(rest[0])}, {vr(rest[1])}, {vr(rest[2])}'); rest = rest[3:]
        while len(rest) >= 2:
            out.append(f'v_max3_f32 {vr(m)}, {vr(m)}, {vr(rest[0])}, {vr(rest[1])}'); rest = rest[2:]
        if rest:
            out.append(f'v_max_f32 {vr(m)}, {vr(m)}, {vr(rest[0])}')
        return out
    def fma_l(vals, mc):
        if pk:
            return [f'v_pk_fma_f32 {vr(vals[n],2)}, {vr(vals[n],2)}, {sr(sCS,2)}, {vr(mc,2)} op_sel_hi:[1,1,0] neg_lo:[0,0,1] neg_hi:[0,0,1]' for n in range(0, len(vals), 2)]
        return [f'v_fma_f32 {vr(v)}, {vr(v)}, s{sCS}, -{vr(mc)}' for v in vals]
    exp_l = lambda vals: [f'v_exp_f32 {vr(v)}, {vr(v)}' for v in vals]
    cvt_l = lambda dst, src, n: [f'v_cvt_pk_bf16_f32 {vr(dst+k)}, {vr(src+2*k)}, {vr(src+2*k+1)}' for k in range(n)]

    def vread(dst, t, W):
        return f'ds_read_b64_tr_b16 {vr(dst,2)}, {vr(VA+t)} offset:{4096*W}'
    a(f's_cmp_lt_u32 s{sWV}, 4')
    a('s_cbranch_scc1 L_gk')
    only(FW, 'L_notag')
    a('s_setprio 3')
    a(f's_lshl_b32 s{sT0}, s{sH}, 3')
    a(f'v_mov_b32 {vr(S+4)}, s{sT0}')
    a(f'v_mov_b32 {vr(S+5)}, s{sN}')
    a(f'v_mov_b32 {vr(S+6)}, {LCNT}')
    a(f'global_load_dword {vr(S+7)}, {vr(S+4)}, s[16:17]')
    a('s_setprio 0')
    issue_qa()
    a('s_waitcnt vmcnt(4)')
    a(f's_cmp_eq_u32 s{sC}, {CC}')
    a('s_cselect_b64 vcc, -1, 0')
    a(f'v_cndmask_b32 {vr(S+7)}, {vr(S+7)}, {vr(S+5)}, vcc')
    a('s_mov_b64 exec, 1')
    a(f'ds_write_b32 {vr(S+6)}, {vr(S+7)} offset:4')
    a('s_mov_b64 exec, -1')
    a('s_branch L_tagdone')
    a.label('L_notag')
    issue_qa()
    a.label('L_tagdone')
    a('s_waitcnt lgkmcnt(0)')
    a(f'v_add_u32 {vr(vDQk)}, 0x1000, {vr(vDQ)}')
    stamp(fine)
    a('s_barrier')
    for t in range(8):
        a(vread(X[t+1], t, 0)); a(vread(X[t+1]+2, t, 1))
    a('s_branch L_gdone')
    a.label('L_gk')
    for ks in range(4):
        a(f'ds_read_b128 {vr(QG+4*ks,4)}, {vr(vAG)} offset:{1024+64*ks}')
    issue_qa()
    a('s_waitcnt lgkmcnt(0)')
    for T in range(4):
        for ks in range(4):
            a(mfma(S+4*T, kf(T,ks), QG+4*ks, '0' if ks == 0 else S+4*T))
    a(f'v_add_u32 {vr(vDQk)}, 0x1000, {vr(vDQ)}')
    a.nop(7)
    for l in maxtree_l([S+x for x in range(16)], vM): a(l)
    xred(vM, vT)
    a(f'v_mul_f32 {vr(vM)}, s{sCS}, {vr(vM)}')
    for l in fma_l([S+x for x in range(16)], vM): a(l)
    for l in exp_l([S+x for x in range(16)]): a(l)
    a.nop(1)
    a(f'v_add_f32 {vr(vT)}, {vr(S)}, {vr(S+1)}')
    for x in range(2, 16):
        a(f'v_add_f32 {vr(vT)}, {vr(vT)}, {vr(S+x)}')
    for l in cvt_l(S, S, 8): a(l)
    xred(vT, vT0, 'v_add_f32')
    a(f'ds_write_b64 {vr(vNEG)}, {vr(vM,2)}')
    a(f'v_mbcnt_lo_u32_b32 {vr(vT0)}, -1, 0')
    a(f's_lshl_b32 s{sT0}, s{sWV}, 10')
    a(f'v_lshl_add_u32 {vr(vT0)}, {vr(vT0)}, 3, s{sT0}')
    if stamps and fine:
        nst[0] -= 1
        stamp()
    a('s_waitcnt vmcnt(4) lgkmcnt(0)')
    a('s_barrier')
    gb = [QB + 4*n for n in range(4)] + [S + 8 + 4*n for n in range(4)]
    for t in range(8):
        a(vread(gb[t], t, 2)); a(vread(gb[t]+2, t, 3))
    for t in range(8):
        a('s_waitcnt lgkmcnt(14)')
        a(mfma(gb[t], S+4, gb[t], '0'))
        a(vread(X[t+1], t, 0)); a(vread(X[t+1]+2, t, 1))
    for t in range(8):
        a(f's_waitcnt lgkmcnt({14-2*t})')
        a(mfma(gb[t], S, X[t+1], gb[t]))
    a('s_mov_b64 exec, 1')
    a(f'v_mov_b32 {vr(S)}, {LCNT}')
    a(f'v_mov_b32 {vr(S+1)}, 1')
    a('s_mov_b64 exec, 0xffff')
    for t in range(8):
        a(f'ds_write_b64 {vr(vT0)}, {vr(gb[t],2)} offset:{PART+128*t}')
    a('s_mov_b64 exec, 1')
    a(f'ds_add_u32 {vr(S)}, {vr(S+1)}')
    a('s_mov_b64 exec, -1')
    a.label('L_gdone')
    stamp()

    emit = lambda ls: [a(l) for l in ls]
    def combine(og, mg, tm):
        NP = len(og)
        emit(maxtree_l([mg[n] for n in range(NP)], tm))
        for n in range(NP):
            a(f'v_sub_f32 {vr(mg[n])}, {vr(mg[n])}, {vr(tm)}')
        for n in range(NP):
            a(f'v_exp_f32 {vr(mg[n])}, {vr(mg[n])}')
        a.nop(1)
        for e in range(4):
            a(f'v_mul_f32 {vr(og[0][e])}, {vr(og[0][e])}, {vr(mg[0])}')
        a(f'v_mul_f32 {vr(mg[0]+1)}, {vr(mg[0]+1)}, {vr(mg[0])}')
        for n in range(1, NP):
            for e in range(4):
                a(f'v_fmac_f32 {vr(og[0][e])}, {vr(og[n][e])}, {vr(mg[n])}')
            a(f'v_fmac_f32 {vr(mg[0]+1)}, {vr(mg[n]+1)}, {vr(mg[n])}')

    def issue_qb():
        for ks in range(4):
            a(f'buffer_load_dwordx4 {vr(QB+4*ks,4)}, {vr(vDQk)}, {sr(sQ,4)}, 0 offen offset:{64*ks} {qpol}')
        a(f'v_mov_b32 {vr(vDQk)}, 0')
    issue_qb()
    if opt.get('otouch'):
        only(FW, 'L_nootouch')
        a(f's_mov_b32 m0, {PARTML+256}')
        a('s_mov_b64 exec, 1')
        a(f'buffer_load_dword {vr(vOO)}, {sr(sO,4)}, 0 offen lds')
        a(f'buffer_load_dword {vr(vOO)}, {sr(sO,4)}, 0 offen offset:512 lds')
        a('s_mov_b64 exec, -1')
        a('s_waitcnt vmcnt(6)')
        a('s_branch L_tileA')
        a.label('L_nootouch')
    a(f's_cmp_eq_u32 s{sWV}, {RW}')
    a('s_cbranch_scc1 L_reduce')
    a(f's_cmp_eq_u32 s{sCMB}, 0')
    a('s_cbranch_scc1 L_noflag')
    a(f'v_mov_b32 {vr(vT0)}, {LNON}')
    a(f'ds_read_b32 {vr(vT0)}, {vr(vT0)}')
    a('s_waitcnt lgkmcnt(0)')
    a(f'v_readfirstlane_b32 s{sN}, {vr(vT0)}')
    a.label('L_noflag')
    a('s_waitcnt vmcnt(4)')
    a('s_branch L_tileA')
    a.label('L_reduce')
    R0 = S
    a(f'v_mbcnt_lo_u32_b32 {vr(R0)}, -1, 0')
    a(f'v_mbcnt_hi_u32_b32 {vr(R0)}, -1, {vr(R0)}')
    a(f'v_lshrrev_b32 {vr(R0+1)}, 5, {vr(R0)}')
    a(f'v_and_b32 {vr(R0+3)}, 31, {vr(R0)}')
    a(f'v_lshlrev_b32 {vr(R0+3)}, 5, {vr(R0+3)}')
    a(f'v_lshl_add_u32 {vr(R0+3)}, {vr(R0+1)}, 2, {vr(R0+3)}')
    a(f'v_lshlrev_b32 {vr(R0+1)}, 3, {vr(R0+1)}')
    a(f'v_add_u32 {vr(R0+1)}, {PARTML}, {vr(R0+1)}')
    a(f'v_lshlrev_b32 {vr(R0)}, 4, {vr(R0)}')
    a(f'v_mov_b32 {vr(R0+2)}, {LCNT}')
    a(f's_mov_b32 s{sCNT}, 0')
    a.label('L_lspin')
    a(f'ds_read_b64 {vr(S+4,2)}, {vr(R0+2)}')
    a(f's_add_u32 s{sCNT}, s{sCNT}, 1')
    a('s_waitcnt lgkmcnt(0)')
    a(f'v_readfirstlane_b32 s{sT0}, {vr(S+4)}')
    a(f'v_readfirstlane_b32 s{sN}, {vr(S+5)}')
    a(f's_cmp_ge_u32 s{sCNT}, 0x100000')
    a('s_cbranch_scc1 L_lok')
    a(f's_cmp_lt_u32 s{sT0}, 4')
    a('s_cbranch_scc1 L_lspin')
    a.label('L_lok')
    mg = [S+4, S+6, O, O+2]
    G0 = S + 8
    og = [[G0+4*n+e for e in range(4)] for n in range(4)]
    for n in range(4):
        a(f'ds_read_b64 {vr(mg[n],2)}, {vr(R0+1)} offset:{16*n}')
    for n in range(4):
        if n: a(f'v_add_u32 {vr(R0+3)}, 1024, {vr(R0+3)}')
        a(f'ds_read2_b32 {vr(G0+4*n,2)}, {vr(R0+3)} offset0:0 offset1:2')
        a(f'ds_read2_b32 {vr(G0+4*n+2,2)}, {vr(R0+3)} offset0:4 offset1:6')
    a('s_waitcnt lgkmcnt(0)')
    combine(og, mg, R0+1)
    a(f'v_mov_b32 {vr(G0+4)}, {vr(G0+3)}')
    a(f'v_mov_b32 {vr(G0+5)}, {vr(R0+1)}')
    a(f'v_mov_b32 {vr(G0+6)}, {vr(mg[0]+1)}')
    a(f'v_mov_b32 {vr(G0+7)}, s{sN}')
    a(f'v_mov_b32 {vr(G0+3)}, s{sN}')
    a(f'buffer_store_dwordx4 {vr(G0+4,4)}, {vr(R0)}, {sr(sW,4)}, s42 offen offset:1024 sc0 sc1')
    a(f'buffer_store_dwordx4 {vr(G0,4)}, {vr(R0)}, {sr(sW,4)}, s42 offen sc0 sc1')
    a(f's_cmp_lg_u32 s{sN}, 0')
    a('s_cbranch_scc1 L_tagged')
    a('s_waitcnt vmcnt(0)')
    a(f's_lshl_b32 s{sT0}, s{sH}, 3')
    a(f's_lshl_b32 s{sT1}, 1, s{sC}')
    a(f'v_mov_b32 {vr(R0)}, s{sT0}')
    a(f'v_mov_b32 {vr(R0+1)}, s{sT1}')
    a('s_mov_b64 exec, 1')
    a(f'global_atomic_or {vr(R0)}, {vr(R0+1)}, s[16:17] offset:4 sc1')
    a('s_mov_b64 exec, -1')
    a.label('L_tagged')
    a('s_waitcnt vmcnt(6)')
    a.label('L_tileA')
    def yprio(tag):
        if yp == tag:
            a(f's_cmp_lt_u32 s{sWV}, 4')
            a(f's_cbranch_scc1 L_yp{tag}')
            a('s_setprio 1')
            a.label(f'L_yp{tag}')
    yprio('a')
    stamp()

    def inter(ms, vs, per=2):
        vs = list(vs)
        for m in ms:
            a(m)
            for _ in range(per):
                if vs: a(vs.pop(0))
        for v in vs: a(v)

    HB = kf(2, 0)
    def hand_loads():
        a(f'v_mbcnt_lo_u32_b32 {vr(KG)}, -1, 0')
        a(f'v_mbcnt_hi_u32_b32 {vr(KG)}, -1, {vr(KG)}')
        a(f'v_lshlrev_b32 {vr(KG)}, 4, {vr(KG)}')
        for n in range(8):
            a(f's_movk_i32 s{sT0}, {2048*n}')
            a(f'buffer_load_dwordx4 {vr(HB+8*n,4)}, {vr(KG)}, {sr(sW,4)}, s{sT0} offen sc0 sc1')
            a(f'buffer_load_dwordx4 {vr(HB+8*n+4,4)}, {vr(KG)}, {sr(sW,4)}, s{sT0} offen offset:1024 sc0 sc1')

    buf = [kf(0, n) for n in range(4)] + [QA + 4*n for n in range(4)]
    SLOTW = {0: [0, 1, 2, 3, 4], 1: [4, 5, 2, 3, 1]}
    def qk(tau, sl):
        Q = QA if tau == 0 else QB
        if sl == 'G':
            return [mfma(S+20, KG+4*ks, Q+4*ks, '0' if ks == 0 else S+20) for ks in range(4)]
        W = SLOTW[tau][sl]
        c0 = BLO if W == tau else BHI if W == tau + 4 else '0'
        return [mfma(S+4*sl, kf(W,ks), Q+4*ks, c0 if ks == 0 else S+4*sl) for ks in range(4)]
    def edge_test(tau, lab):
        a(f's_sub_u32 s{sT0}, s{sQB}, {48 - 16*tau}')
        a(f's_cmp_lt_u32 s{sT0}, 1968')
        a(f's_cbranch_scc1 {lab}')
    def edge_mask(tau, tr):
        a(f'v_mbcnt_lo_u32_b32 {vr(tr)}, -1, 0')
        a(f'v_mbcnt_hi_u32_b32 {vr(tr)}, -1, {vr(tr)}')
        a(f'v_lshrrev_b32 {vr(tr)}, 4, {vr(tr)}')
        a(f's_sub_u32 s{sT0}, s{sQB}, 34')
        a(f's_movk_i32 s{sT1}, 2046')
        a(f'v_lshl_add_u32 {vr(tr)}, {vr(tr)}, 2, s{sT0}')
        a(f'v_mov_b32 {vr(vM)}, 0x{NEG:08x}')
        a('s_nop 3')
        for sl in range(5):
            for r in range(4):
                a(f'v_add_u32 {vr(vT)}, {16*SLOTW[tau][sl]+r}, {vr(tr)}')
                a(f'v_cmp_gt_u32 vcc, s{sT1}, {vr(vT)}')
                a('s_nop 1')
                a(f'v_cndmask_b32 {vr(S+4*sl+r)}, {vr(vM)}, {vr(S+4*sl+r)}, vcc')
        for l in maxtree_l([S+x for x in range(22)], vM): a(l)
    def epi(t, tau=0):
        l = [f'v_mul_f32 {vr(O+4*t+e)}, {vr(O+4*t+e)}, {vr(vT0)}' for e in range(4)]
        l += [f'v_cvt_pk_bf16_f32 {vr(O+4*t)}, {vr(O+4*t)}, {vr(O+4*t+1)}',
              f'v_cvt_pk_bf16_f32 {vr(O+4*t+1)}, {vr(O+4*t+2)}, {vr(O+4*t+3)}',
              f'ds_write_b64 {vr(vSW)}, {vr(O+4*t,2)} offset:{32*t + 16*STGP*tau}']
        return l
    def stage_reads(tau=0, R=O):
        return [f'ds_read_b128 {vr(R+4*j,4)}, {vr(vSR)} offset:{4*STGP*j + 16*STGP*tau}' for j in range(4)]
    def stores(tau, R=O, extra=0):
        for j in range(4):
            a(f's_waitcnt lgkmcnt({3-j+extra})')
            if tau == 0 and j == 0: a(f's_mov_b64 exec, {sr(sEX,2)}')
            a(f'buffer_store_dwordx4 {vr(R+4*j,4)}, {vr(vOO)}, {sr(sO,4)}, s{sTOFF if tau else sZERO} offen offset:{1024*j} {stpol}')
            if tau == 0 and j == 0: a('s_mov_b64 exec, -1')
    RA = kf(1, 0)
    def late_a():
        for l in stage_reads(0, RA): a(l)
        stores(0, RA)
    def softmax_pv(tau):
        m = vM
        xred(m, vT)
        a(f'v_mul_f32 {vr(m)}, s{sCS}, {vr(m)}')
        set0 = [S+x for x in range(8)]; set1 = [S+8+x for x in range(8)]; set2 = [S+16+x for x in range(6)]
        for l in fma_l(set0, m): a(l)
        f2 = fma_l(set2, m); f1 = fma_l(set1, m)
        for l in exp_l(set0): a(l)
        a(f2[0])
        for l in cvt_l(S, S, 4): a(l)
        a(f2[1])
        a('s_waitcnt lgkmcnt(0)' if tau == 1 else 's_waitcnt lgkmcnt(8)')
        if tau == 1 and apos == 1: late_a()
        ONES, LACC = S+4, S+20
        v2 = f2[2:] + exp_l(set2) + [f'v_mov_b32 {vr(ONES+n)}, 0x3f803f80' for n in range(4)] + cvt_l(S+16, S+16, 3) \
             + [f'v_mov_b32 {vr(S+19)}, 0', f'v_cndmask_b32 {vr(S+18)}, 0, {vr(S+18)}, {sr(sKG0,2)}']
        inter([mfma(X[t], X[t+1], S, '0') for t in range(8)], v2 + f1[:2])
        v1 = f1[2:] + exp_l(set1) + [f'v_mov_b32 {vr(vT0)}, 0'] + cvt_l(S+8, S+8, 4)
        inter([mfma(O+4*t, VG+4*t, S+16, O+4*t) for t in range(8)], v1)
        a(mfma(LACC, ONES, S, '0'))
        a(mfma(LACC, ONES, S+16, LACC))
        a(mfma(LACC, ONES, S+8, LACC))
        if tau == 0:
            a('s_waitcnt lgkmcnt(0)')
        for t in range(8):
            a(mfma(O+4*t, buf[t], S+8, O+4*t))
            if tau == 0: a(vread(VG+4*t, t, 1))
        a(f'v_rcp_f32 {vr(vT0)}, {vr(LACC)}')

    late = []
    for t in range(8):
        late += [vread(buf[t], t, 2), vread(buf[t]+2, t, 3)]
    vgr = [vread(VG+4*t, t, 4) for t in range(8)]
    edge_test(0, 'L_fastA')
    for l in vgr: a(l)
    for sl in ('G', 0, 1, 2, 3, 4):
        for l in qk(0, sl): a(l)
    for l in late: a(l)
    edge_mask(0, vT0)
    a('s_branch L_joinA')
    a.label('L_fastA')
    m = vM
    inter(qk(0, 0) + qk(0, 'G'), vgr, per=1)
    inter(qk(0, 1) + qk(0, 2), late[:8], per=1)
    inter(qk(0, 3), maxtree_l([S+20, S+21, S+0], m) + maxtree_l([S+1, S+2, S+3, S+4, S+5, S+6], m, False), per=1)
    inter(qk(0, 4), maxtree_l([S+7, S+8, S+9, S+10], m, False), per=1)
    for l in late[8:11]: a(l)
    for l in maxtree_l([S+11, S+12], m, False): a(l)
    for l in late[11:13]: a(l)
    for l in maxtree_l([S+13, S+14, S+15], m, False): a(l)
    for l in late[13:]: a(l)
    for l in maxtree_l([S+16, S+17, S+18, S+19], m, False): a(l)
    a.label('L_joinA')
    yprio('s')
    stamp(fine)
    softmax_pv(0)
    stamp(fine)
    ep = []
    for t in range(8): ep += epi(t)
    if apos == 0: ep += stage_reads()
    xb = []
    for t in range(8): xb += [vread(X[t+1], t, 4), vread(X[t+1]+2, t, 5)]
    def qb_wait(n):
        a(f's_waitcnt vmcnt({n+2})')
        if opt.get('otouch'):
            a(f's_and_b32 s{sT0}, s{sWV}, 3')
            a(f's_cmp_eq_u32 s{sT0}, 3')
        else:
            a(f's_cmp_eq_u32 s{sWV}, {RW}')
        a('s_cbranch_scc1 L_qbw')
        a(f's_waitcnt vmcnt({n})')
        a.label('L_qbw')
    if not merge:
        a('s_nop 0')
        for l in ep: a(l)
        stores(0)
        for l in xb: a(l)
        qb_wait(4)
        stamp()
        edge_test(1, 'L_fastB')
        for sl in ('G', 0, 1, 2, 3, 4):
            for l in qk(1, sl): a(l)
        edge_mask(1, vT0)
        a('s_branch L_joinB')
        a.label('L_fastB')
        for sl in ('G', 0, 1, 2):
            for l in qk(1, sl): a(l)
        inter(qk(1, 3), maxtree_l([S+20, S+21, S+0], m) + maxtree_l([S+1, S+2], m, False), per=1)
        inter(qk(1, 4), maxtree_l([S+3, S+4, S+5, S+6, S+7, S+8], m, False), per=1)
        a.nop(1)
        for l in maxtree_l([S+9, S+10, S+11, S+12], m, False): a(l)
        a.nop(1)
        for l in maxtree_l([S+13, S+14, S+15], m, False): a(l)
        a.nop(2)
        for l in maxtree_l([S+16, S+17, S+18, S+19], m, False): a(l)
    else:
        qb_wait(0)
        yprio('m')
        stamp()
        edge_test(1, 'L_fastB')
        for l in ep: a(l)
        if apos == 0: stores(0)
        for sl in (0, 1, 2, 3, 4, 'G'):
            for l in qk(1, sl): a(l)
        for l in xb: a(l)
        edge_mask(1, vT0)
        a('s_branch L_joinB')
        a.label('L_fastB')
        ms = []
        for sl in (0, 1, 2, 3, 4, 'G'): ms += qk(1, sl)
        inter(ms, ep, per=3)
        for l in maxtree_l([S+x for x in range(15)], vT0): a(l)
        if apos == 0: stores(0)
        for l in xb: a(l)
        a(f'v_max3_f32 {vr(vM)}, {vr(vT0)}, {vr(S+15)}, {vr(S+16)}')
        for l in maxtree_l([S+17, S+18, S+19, S+20, S+21], vM, False): a(l)
    a.label('L_joinB')
    yprio('b')
    stamp()
    a(f's_cmp_eq_u32 s{sCMB}, 0')
    a('s_cbranch_scc1 L_nohand')
    hand_loads()
    a.label('L_nohand')
    softmax_pv(1)
    stamp(fine)
    if apos == 2:
        late_a()
    a('s_nop 0')
    if apos == 3:
        for l in stage_reads(0, RA): a(l)
    for t in range(8):
        for l in epi(t, 1): a(l)
    for l in stage_reads(1): a(l)
    if apos == 3:
        stores(0, RA, extra=4+8) if False else None
        for j in range(4):
            if j == 0: a(f's_mov_b64 exec, {sr(sEX,2)}')
            if j == 0: a('s_waitcnt lgkmcnt(4)')
            a(f'buffer_store_dwordx4 {vr(RA+4*j,4)}, {vr(vOO)}, {sr(sO,4)}, s{sZERO} offen offset:{1024*j} {stpol}')
            if j == 0: a('s_mov_b64 exec, -1')
    stores(1)
    stamp()

    a(f's_cmp_eq_u32 s{sCMB}, 0')
    a('s_cbranch_scc1 L_fin')
    a(f's_waitcnt vmcnt({4 if apos == 0 else 8})')
    a(f's_mov_b32 s{sCNT}, 0')
    a(f's_mov_b32 s{sT2}, 0')
    a.label('L_chk')
    a(f's_mov_b32 s{sT3}, s{sT2}')
    for n in range(8):
        a(f'v_cmp_eq_u32 vcc, s{sN}, {vr(HB+8*n+3)}')
        a(f'v_cmp_eq_u32 s[60:61], s{sN}, {vr(HB+8*n+7)}')
        a('s_nop 0')
        a('s_and_b64 vcc, vcc, s[60:61]')
        a('s_cmp_eq_u64 vcc, exec')
        a(f's_cselect_b32 s{sT0}, {1 << n}, 0')
        a(f's_or_b32 s{sT3}, s{sT3}, s{sT0}')
    a(f's_add_u32 s{sCNT}, s{sCNT}, 1')
    a(f's_cmp_eq_u32 s{sT3}, 0xff')
    a('s_cbranch_scc1 L_ready')
    a(f's_cmp_ge_u32 s{sCNT}, 0x40000')
    a('s_cbranch_scc1 L_ready')
    a(f's_lshl_b32 s{sT0}, s{sH}, 3')
    a(f'v_mov_b32 {vr(KG+1)}, s{sT0}')
    a(f'global_load_dword {vr(KG+2)}, {vr(KG+1)}, s[16:17] offset:4 sc0 sc1')
    a('s_waitcnt vmcnt(0)')
    a(f'v_readfirstlane_b32 s{sT2}, {vr(KG+2)}')
    hand_loads()
    a('s_waitcnt vmcnt(0)')
    a('s_branch L_chk')
    a.label('L_ready')
    hog = [[HB+8*n, HB+8*n+1, HB+8*n+2, HB+8*n+4] for n in range(8)]
    hmg = [HB+8*n+5 for n in range(8)]
    combine(hog, hmg, X8)
    a(f'v_rcp_f32 {vr(X8)}, {vr(hmg[0]+1)}')
    a(f'v_lshrrev_b32 {vr(KG)}, 1, {vr(KG)}')
    for e in range(4):
        a(f'v_mul_f32 {vr(hog[0][e])}, {vr(hog[0][e])}, {vr(X8)}')
    a(f'v_cvt_pk_bf16_f32 {vr(X8+2)}, {vr(hog[0][0])}, {vr(hog[0][1])}')
    a(f'v_cvt_pk_bf16_f32 {vr(X8+3)}, {vr(hog[0][2])}, {vr(hog[0][3])}')
    a(f'buffer_store_dwordx2 {vr(X8+2,2)}, {vr(KG)}, {sr(sO,4)}, 0 offen {stpol}')
    a.label('L_fin')
    if stamps:
        stamp()
        a('s_waitcnt vmcnt(0)')
        stamp()
        if opt.get('clk'):
            a('s_memtime s[98:99]')
            a('s_waitcnt lgkmcnt(0)')
            a('s_sub_u32 s98, s98, s96')
            a(f's_add_u32 s{64+2*nst[0]}, s98, s64')
            nst[0] += 1
        a(f's_lshl_b32 s{sT0}, s2, 3')
        a(f's_add_u32 s{sT0}, s{sT0}, s{sWV}')
        a(f's_lshl_b32 s{sT0}, s{sT0}, 6')
        a(f's_add_u32 s{sT0}, s{sT0}, 0x100000')
        a(f's_add_u32 s{sW}, s18, s{sT0}')
        a(f's_addc_u32 s{sW+1}, s19, 0')
        a(f'v_mov_b32 v1, 0')
        a('s_mov_b64 exec, 1')
        for n in range(min(16, nst[0])):
            a(f'v_mov_b32 v2, s{64+2*n}')
            a(f'buffer_store_dword v2, v1, {sr(sW,4)}, 0 offen offset:{4*n}')
        if 'leak' in opt:
            k = int(opt['leak'])
            a(f's_sub_u32 s{sT0}, s{64+2*k}, s64')
            a(f's_lshl_b32 s{sT0}, s{sT0}, 2')
            if opt.get('leakskew'):
                a.label('L_pre')
                a('s_memrealtime s[100:101]')
                a('s_waitcnt lgkmcnt(0)')
                a(f's_sub_u32 s{sT1}, s100, s64')
                a(f's_cmp_lt_u32 s{sT1}, 3000')
                a('s_cbranch_scc1 L_pre')
                a('s_mov_b64 exec, -1')
                a('v_mbcnt_lo_u32_b32 v3, -1, 0')
                a('v_and_b32 v3, 31, v3')
                a('v_lshlrev_b32 v3, 3, v3')
                a('global_load_dword v4, v3, s[16:17] sc0 sc1')
                a('s_waitcnt vmcnt(0)')
                a('v_readlane_b32 s20, v4, 0')
                a('s_mov_b32 s21, 0'); a('s_mov_b32 s22, 0')
                for n in range(1, 32):
                    a(f'v_readlane_b32 s23, v4, {n}')
                    a('s_nop 0')
                    a('s_sub_i32 s23, s23, s20')
                    a('s_min_i32 s21, s21, s23')
                    a('s_max_i32 s22, s22, s23')
                a(f's_sub_u32 s{sT0}, s22, s21')
                a(f's_min_u32 s{sT0}, s{sT0}, 2000')
                a(f's_lshl_b32 s{sT0}, s{sT0}, 2')
            if opt.get('leakcnt'):
                a(f's_mul_i32 s{sT0}, s{sCNT}, 500')
                a(f's_mul_i32 s{sT0}, s{sT0}, s{sCMB}')
            if 'leakw' in opt:
                a(f's_lshr_b32 s{sT1}, {opt["leakw"]}, s{sWV}')
                a(f's_bitcmp1_b32 s{sT1}, 0')
                a(f's_cselect_b32 s{sT0}, s{sT0}, 0')
            a(f"s_add_u32 s{sT0}, s{sT0}, {opt.get('spin', 5000)}")
            a.label('L_spin')
            a('s_memrealtime s[100:101]')
            a('s_waitcnt lgkmcnt(0)')
            a(f's_sub_u32 s{sT1}, s100, s64')
            a(f's_cmp_lt_u32 s{sT1}, s{sT0}')
            a('s_cbranch_scc1 L_spin')
    a.label('L_end')
    a('s_endpgm')
    if opt.get('cpf', True):
        a('.fill 4096, 4, 0xbf800000')

    check(a.lines)
    if stamps: print('stamps', nst[0])
    head = f'''; windowed + global-token attention, B=1 H=32 S=2048 D=128 bf16 (window 32, 2 global tokens)
; @launch grid=(256,1,1) block=(512,1,1) lds=163840
.amdgcn_target "amdgcn-amd-amdhsa--gfx950"
.text
.globl {NAME}
.p2align 8
.type {NAME},@function
{NAME}:
'''
    tail = f'''.section .rodata,"a"
.p2align 6
.amdhsa_kernel {NAME}
  .amdhsa_next_free_vgpr 256
  .amdhsa_next_free_sgpr {102 if stamps else 64}
  .amdhsa_accum_offset 256
  .amdhsa_group_segment_fixed_size 0
  .amdhsa_kernarg_size 64
  .amdhsa_user_sgpr_count 2
  .amdhsa_user_sgpr_kernarg_segment_ptr 1
  .amdhsa_system_sgpr_workgroup_id_x 1
.end_amdhsa_kernel
'''
    return head + a.text() + tail

if __name__ == '__main__':
    out = sys.argv[1]
    opt = {}
    for kv in sys.argv[2:]:
        k, v = kv.split('=', 1)
        opt[k] = {'True': True, 'False': False}.get(v, v.replace('+', ' '))
    open(out, 'w').write(gen(opt))
```

```python
import sys, math, struct
from asmlib import *

NAME = 'standalone__global_local_windowed_global_tokens__prompt_kernel'
def f2u(x): return struct.unpack('<I', struct.pack('<f', x))[0]

def gen(opt):
    a = Asm()
    NEG = 0xFF000000
    CSC = f2u(128 ** -0.5 * math.log2(math.e))
    KOFF, VOFF, SOFF = 0, 73728, 155648
    apos = int(opt.get('apos', 0))
    PART, STG = 0, 4096
    PARTML, LCNT, LNON = SOFF + 3072, SOFF + 3072 + 128, SOFF + 3072 + 132
    STGP = 272
    ldpol = opt.get('ldpol', '')
    qpol = opt.get('qpol', '')
    stpol = opt.get('stpol', 'sc0 sc1 nt')
    pk = opt.get('pk', True)
    N1 = int(opt.get('n1', 10))
    yp = opt.get('yp', '')
    RW = int(opt.get('rw', 3))
    FW = 7
    SW = 5
    CW, CC = int(opt.get('cw', 1)), 3
    merge = opt.get('merge', True)
    sQ, sK, sV, sO, sW = 20, 24, 28, 32, 36
    sWV, sH, sC, sHO, sQ0B = 40, 43, 44, 45, 46
    sT0, sT1, sT2, sT3 = 47, 48, 49, 50
    sBK = 62
    HW = 4
    sCS = 52; sKG0 = 54; sQB = 51; sEX = 56; sCMB = 58; sCNT = 59; sN = 63; sTOFF = 41; sZERO = 3
    VA = 0
    vSW, vSR, vOO, vT0 = 8, 9, 10, 11
    X8 = 12
    KF = 16; KG = 112; QA, QB = 128, 144; VG = 160; O = 192; S = 224
    BLO, BHI = 248, 252
    kf = lambda W, ks: KF + 16 * W + 4 * ks
    X = [O + 4 * n for n in range(8)] + [X8]
    vLANE, vI, vKGp, vDK, vDV, vDQ, vAG, vNEG, vAK = O+16, O+17, O+18, O+19, O+20, O+21, O+22, O+23, O+24
    vAVG, t1, t2, t3 = O+28, O+29, O+30, O+31
    vDQk = VG + 7
    vFLAG = VG + 3
    vM, vT = S + 22, S + 23

    stamps = opt.get('stamps', False)
    fine = opt.get('fine', False)
    nst = [0]
    def stamp(on=True):
        if stamps and on:
            a(f's_memrealtime s[{64+2*nst[0]}:{65+2*nst[0]}]')
            if nst[0]: a('s_waitcnt lgkmcnt(0)')
            nst[0] += 1
    M16 = 'v_mfma_f32_16x16x32_bf16'
    def mfma(d, x, y, c):
        return f'{M16} {vr(d,4)}, {vr(x,4)}, {vr(y,4)}, {c if isinstance(c,str) else vr(c,4)}'
    def only(w, lab):
        a(f's_cmp_lg_u32 s{sWV}, {w}')
        a(f's_cbranch_scc1 {lab}')

    stamp()
    if opt.get('clk'): a('s_memtime s[96:97]')
    a('s_load_dwordx16 s[4:19], s[0:1], 0')
    a(f'v_readfirstlane_b32 s{sWV}, v0')
    a('s_cmp_ge_u32 s2, 256')
    a('s_cbranch_scc1 L_end')
    a(f'v_lshrrev_b32 {vr(t1)}, 4, v0')
    a(f'v_xor_b32 {vr(vDK)}, {vr(t1)}, v0')
    a(f'v_and_b32 {vr(vDK)}, 15, {vr(vDK)}')
    a(f'v_lshl_add_u32 {vr(vDK)}, {vr(t1)}, 4, {vr(vDK)}')
    a(f's_bfe_u32 s{sC}, s2, 0x30003')
    a(f's_lshl_b32 s{sQ0B}, s{sC}, 16')
    a(f'v_lshl_add_u32 {vr(vDK)}, {vr(vDK)}, 4, s{sQ0B}')
    a('s_and_b32 s41, s2, 7')
    a(f's_lshr_b32 s{sH}, s2, 6')
    a(f's_lshl2_add_u32 s{sH}, s41, s{sH}')
    a(f's_lshl_b32 s{sHO}, s{sH}, 19')
    a(f's_lshl_b32 m0, s{sWV}, 4')
    a(f's_mov_b32 s{sK+2}, 0x80000')
    a(f's_mov_b32 s{sK+3}, 0x20000')
    a(f's_movk_i32 s{sCNT}, 17')
    if opt.get('cpf', True):
        a(f's_getpc_b64 s[{sEX}:{sEX+1}]')
        a(f'v_lshlrev_b32 v1, 5, v0')
        a(f'global_load_dword {vr(X8)}, v1, s[{sEX}:{sEX+1}]')
    a(f's_cmp_ge_u32 s{sWV}, 256')
    a('s_cbranch_scc1 L_helper')
    a('s_waitcnt lgkmcnt(0)')
    stamp()
    a(f's_add_u32 s{sK}, s6, s{sHO}')
    a(f's_addc_u32 s{sK+1}, s7, 0')
    a.label('L_kloop')
    a(f'buffer_load_dwordx4 {vr(vDK)}, {sr(sK,4)}, 0 offen {opt.get("kpol", ldpol)} lds')
    a('s_add_u32 m0, m0, 0x1000')
    a(f'v_add_u32 {vr(vDK)}, 0x1000, {vr(vDK)}')
    a(f's_sub_u32 s{sCNT}, s{sCNT}, 1')
    a('s_cbranch_scc0 L_kloop')
    stamp(opt.get('postk', False))
    def common():
        a(f's_lshr_b32 s{sWV}, s{sWV}, 6')
        a(f'v_and_b32 {vr(vLANE)}, 63, v0')
        a(f'v_and_b32 {vr(vI)}, 15, v0')
        a(f'v_bfe_u32 {vr(vKGp)}, v0, 4, 2')
        a(f's_lshl_b32 s{sT1}, s{sWV}, 10')
        a(f's_add_u32 s{sT2}, s{sT1}, s{sQ0B}')
        for s_ in (sV, sQ):
            a(f's_mov_b32 s{s_+2}, 0x80000')
            a(f's_mov_b32 s{s_+3}, 0x20000')
        a(f's_mov_b32 s{sW+2}, 0x4000')
        a(f's_mov_b32 s{sW+3}, 0x20000')
        a(f's_and_b32 s{sBK}, s{sWV}, 3')
        a(f's_lshl_b32 s{sBK}, s{sBK}, 1')
        a(f's_cmp_lt_u32 s{sWV}, 4')
        a(f's_addc_u32 s{sBK}, s{sBK}, 0')
        a(f's_cmp_eq_u32 s{sC}, 0')
        a(f's_cselect_b32 s{sT3}, 0x40000000, 0')
        a(f's_lshl_b32 s{sT0}, s{sBK}, 13')
        a(f's_add_u32 s{sT0}, s{sT0}, s{sQ0B}')
        a(f'v_lshlrev_b32 {vr(vDQ)}, 4, {vr(vKGp)}')
        a(f'v_lshl_add_u32 {vr(vDQ)}, {vr(vI)}, 8, {vr(vDQ)}')
        a(f'v_add_u32 {vr(vDQ)}, s{sT0}, {vr(vDQ)}')
        a(f'v_lshlrev_b32 {vr(t3)}, 4, {vr(vLANE)}')
        a(f's_lshl_b32 s41, s{sH}, 14')
        a(f's_lshl_b32 s42, s{sC}, 11')
    common()
    a(f's_mov_b32 s{sN}, 0')
    def srds():
        a(f's_add_u32 s{sV}, s8, s{sHO}')
        a(f's_addc_u32 s{sV+1}, s9, 0')
        a(f's_add_u32 s{sQ}, s4, s{sHO}')
        a(f's_addc_u32 s{sQ+1}, s5, 0')
        a(f's_add_u32 s{sW}, s18, s41')
        a(f's_addc_u32 s{sW+1}, s19, 0')
    srds()
    a('s_branch L_v1')
    a.label('L_helper')
    a('s_setprio 3')
    a('s_memrealtime s[60:61]')
    common()
    a(f's_sub_u32 s{sT0}, s{sT3}, 0x2000')
    a(f'v_add_u32 {vr(t1)}, s{sT0}, {vr(vDQ)}')
    a(f'v_add_u32 {vr(t2)}, 0x1000, {vr(t1)}')
    a(f's_mov_b32 m0, {SOFF}')
    a('s_waitcnt lgkmcnt(0)')
    if stamps:
        nst[0] -= 1
        stamp()
    a(f's_add_u32 s{sK}, s6, s{sHO}')
    a(f's_addc_u32 s{sK+1}, s7, 0')
    srds()
    if stamps and opt.get('postk'):
        nst[0] -= 1
        stamp()
    a(f's_or_b32 s{sN}, s60, 1')
    only(FW, 'L_noclear')
    a(f's_lshl_b32 s{sT0}, s{sH}, 3')
    a(f'v_mov_b32 {vr(S+4)}, s{sT0}')
    a(f'v_mov_b32 {vr(S+5)}, s{sN}')
    a(f'v_mov_b32 {vr(S+6)}, {LCNT}')
    a(f'v_mov_b32 {vr(S+7)}, 0')
    a('s_mov_b64 exec, 1')
    a(f's_cmp_lg_u32 s{sC}, {CC}')
    a('s_cbranch_scc1 L_nopub')
    a(f'global_store_dword {vr(S+4)}, {vr(S+5)}, s[16:17] sc0 sc1')
    a.label('L_nopub')
    a(f'ds_write_b32 {vr(S+6)}, {vr(S+7)}')
    a('s_mov_b64 exec, -1')
    if opt.get('wstouch'):
        pol = {'ld': '', 'ldsc': 'sc0 sc1'}.get(opt['wstouch'])
        if pol is not None:
            a(f'buffer_load_dwordx4 {vr(S+8,4)}, {vr(t3)}, {sr(sW,4)}, s42 offen {pol}')
            a(f'buffer_load_dwordx4 {vr(S+12,4)}, {vr(t3)}, {sr(sW,4)}, s42 offen offset:1024 {pol}')
        else:
            for n in range(4): a(f'v_mov_b32 {vr(S+8+n)}, 0')
            a(f'buffer_store_dwordx4 {vr(S+8,4)}, {vr(t3)}, {sr(sW,4)}, s42 offen sc0 sc1')
            a(f'buffer_store_dwordx4 {vr(S+8,4)}, {vr(t3)}, {sr(sW,4)}, s42 offen offset:1024 sc0 sc1')
    a.label('L_noclear')
    only(SW, 'L_nosmall')
    for n, srd in enumerate((sK, sQ, sV)):
        if n:
            a(f's_mov_b32 m0, {SOFF + 1024*n}')
            a('s_nop 0')
        a(f'buffer_load_dwordx4 {vr(t3)}, {sr(srd,4)}, 0 offen lds')
    a.label('L_nosmall')
    only(HW, 'L_nohalo')
    for T in range(2):
        for ks in range(4):
            a(f'buffer_load_dwordx4 {vr(kf(T,ks),4)}, {vr(t1+T)}, {sr(sK,4)}, 0 offen offset:{64*ks}')
    a.label('L_nohalo')
    a('s_setprio 0')
    a('s_branch L_nov1')
    a.label('L_v1')
    def vpiece(i):
        if i:
            a('s_add_u32 m0, m0, 0x1000')
            a(f'v_add_u32 {vr(vDV)}, 0x1000, {vr(vDV)}')
        if i < 2:
            a(f'v_add_u32 {vr(t1)}, s{sT3}, {vr(vDV)}')
            a(f'buffer_load_dwordx4 {vr(t1)}, {sr(sV,4)}, 0 offen {ldpol} lds')
        else:
            a(f'buffer_load_dwordx4 {vr(vDV)}, {sr(sV,4)}, 0 offen {ldpol} lds')
    a(f's_and_b32 s{sT0}, s{sWV}, 1')
    a(f's_lshl_b32 s{sT0}, s{sT0}, 2')
    a(f'v_add_lshl_u32 {vr(vDV)}, s{sT0}, {vr(vKGp)}, 1')
    a(f'v_xor_b32 {vr(vDV)}, {vr(vDV)}, {vr(vI)}')
    a(f'v_lshlrev_b32 {vr(vDV)}, 4, {vr(vDV)}')
    a(f'v_lshl_add_u32 {vr(vDV)}, {vr(vKGp)}, 8, {vr(vDV)}')
    a(f's_sub_u32 s{sT2}, s{sT2}, 0x2000')
    a(f'v_add_u32 {vr(vDV)}, s{sT2}, {vr(vDV)}')
    a(f's_add_u32 m0, s{sT1}, {VOFF}')
    for i in range(N1): vpiece(i)
    a.label('L_nov1')
    stamp()

    a(f's_add_u32 s{sO}, s14, s{sHO}')
    a(f's_addc_u32 s{sO+1}, s15, 0')
    a(f's_mov_b32 s{sO+2}, 0x80000')
    a(f's_mov_b32 s{sO+3}, 0x20000')
    a(f's_movk_i32 s{sTOFF}, 0x1000')
    a(f's_mov_b32 s{sZERO}, 0')
    a(f's_mov_b32 s{sCS}, 0x{CSC:08x}')
    a(f's_mov_b32 s{sCS+1}, 0x{CSC:08x}')
    a(f'v_mov_b32 {vr(vNEG)}, 0x{NEG:08x}')
    a(f'v_lshlrev_b32 {vr(t2)}, 2, {vr(vKGp)}')
    a(f'v_cmp_eq_u32 {sr(sKG0,2)}, 0, {vr(vKGp)}')
    for r in range(4):
        a(f'v_add_u32 {vr(t1)}, {r}, {vr(t2)}')
        a(f'v_cmp_ge_u32 vcc, {vr(t1)}, {vr(vI)}')
        a(f'v_cmp_le_u32 s[60:61], {vr(t1)}, {vr(vI)}')
        a('s_nop 0')
        a(f'v_cndmask_b32 {vr(BLO+r)}, {vr(vNEG)}, 0, vcc')
        a(f'v_cndmask_b32 {vr(BHI+r)}, {vr(vNEG)}, 0, s[60:61]')
    a(f's_lshl_b32 s{sT0}, s{sBK}, 13')
    a(f'v_xor_b32 {vr(t1)}, {vr(vKGp)}, {vr(vI)}')
    a(f'v_lshlrev_b32 {vr(t1)}, 4, {vr(t1)}')
    a(f'v_lshl_add_u32 {vr(t1)}, {vr(vI)}, 8, {vr(t1)}')
    a(f'v_add_u32 {vr(vAK)}, s{sT0}, {vr(t1)}')
    for ks in range(1, 4):
        a(f'v_xor_b32 {vr(vAK+ks)}, {64*ks}, {vr(vAK)}')
    a(f'v_and_b32 {vr(t1)}, 1, {vr(vI)}')
    a(f'v_lshlrev_b32 {vr(vNEG)}, 3, {vr(t1)}')
    a(f'v_lshlrev_b32 {vr(t1)}, 8, {vr(t1)}')
    a(f'v_lshl_add_u32 {vr(t1)}, {vr(vKGp)}, 4, {vr(t1)}')
    a(f'v_add_u32 {vr(vAG)}, {SOFF}, {vr(t1)}')
    a(f'v_bfe_u32 {vr(t1)}, {vr(vLANE)}, 2, 2')
    a(f'v_and_b32 {vr(t2)}, 3, {vr(vLANE)}')
    a(f'v_lshlrev_b32 {vr(t2)}, 3, {vr(t2)}')
    a(f'v_lshl_add_u32 {vr(t1)}, {vr(t1)}, 8, {vr(t2)}')
    a(f'v_add_u32 {vr(vAVG)}, {SOFF+2048}, {vr(t1)}')
    a(f'v_lshrrev_b32 {vr(t1)}, 2, {vr(vLANE)}')
    a(f'v_and_b32 {vr(vT0)}, 7, {vr(t1)}')
    a(f'v_lshl_add_u32 {vr(t2)}, {vr(vT0)}, 5, {vr(t2)}')
    a(f'v_lshl_add_u32 {vr(t2)}, {vr(t1)}, 8, {vr(t2)}')
    a(f's_add_u32 s{sT1}, s{sT0}, {VOFF}')
    a(f'v_add_u32 {vr(VA)}, s{sT1}, {vr(t2)}')
    for t in range(1, 8):
        a(f'v_xor_b32 {vr(VA+t)}, {32*t}, {vr(VA)}')
    a(f's_mul_i32 s{sT1}, s{sWV}, {32*STGP}')
    a(f's_add_u32 s{sT1}, s{sT1}, {STG}')
    a(f'v_mul_u32_u24 {vr(t1)}, {STGP}, {vr(vI)}')
    a(f'v_lshl_add_u32 {vr(t1)}, {vr(vKGp)}, 3, {vr(t1)}')
    a(f'v_add_u32 {vr(vSW)}, s{sT1}, {vr(t1)}')
    a(f'v_mul_u32_u24 {vr(t1)}, {STGP}, {vr(vKGp)}')
    a(f'v_lshl_add_u32 {vr(t1)}, {vr(vI)}, 4, {vr(t1)}')
    a(f'v_add_u32 {vr(vSR)}, s{sT1}, {vr(t1)}')
    a(f's_add_u32 s{sT0}, s{sT0}, s{sQ0B}')
    a(f'v_add_u32 {vr(vOO)}, s{sT0}, {vr(t3)}')
    a(f's_lshr_b32 s{sQB}, s{sT0}, 8')
    a(f's_cmp_eq_u32 s{sQB}, 0')
    a(f's_cselect_b32 s{sEX}, 0, -1')
    a(f's_mov_b32 s{sEX+1}, -1')
    a(f's_cmp_eq_u32 s{sQB}, {256*CC+32*(2*CW+1)}')
    a(f's_cselect_b32 s{sCMB}, 1, 0')
    a(f's_lshl_b32 s{sT0}, s{sWV}, 4')
    a(f's_add_u32 s{sT0}, s{sT0}, {PARTML}')
    a(f'v_add_u32 {vr(vNEG)}, s{sT0}, {vr(vNEG)}')

    a(f's_waitcnt vmcnt({N1}) lgkmcnt(0)')
    a(f's_cmp_lt_u32 s{sWV}, 4')
    a('s_cbranch_scc1 L_kw')
    a(f's_cmp_eq_u32 s{sWV}, {FW}')
    a('s_cbranch_scc1 L_kw')
    a('s_waitcnt vmcnt(0)')
    a.label('L_kw')
    stamp(opt.get('prek', False))
    a('s_barrier')
    stamp()
    a(f's_cmp_ge_u32 s{sWV}, 4')
    a('s_cbranch_scc1 L_nov2')
    for i in range(N1, 20): vpiece(i)
    a.label('L_nov2')
    stamp(fine)
    QG = O
    for W in (2, 3, 4, 5):
        for ks in range(4):
            a(f'ds_read_b128 {vr(kf(W,ks),4)}, {vr(vAK+ks)} offset:{4096*(W-2)}')
    for ks in range(4):
        a(f'ds_read_b128 {vr(KG+4*ks,4)}, {vr(vAG)} offset:{64*ks}')
    for t in range(8):
        a(f'ds_read_b64_tr_b16 {vr(VG+4*t+2,2)}, {vr(vAVG)} offset:{32*t}')
    a(f's_cmp_eq_u32 s{sWV}, {HW}')
    a('s_cbranch_scc1 L_k01done')
    for ks in range(4):
        a(f'v_subrev_u32 {vr(vAK+ks)}, 0x2000, {vr(vAK+ks)}')
    for W in (0, 1):
        for ks in range(4):
            a(f'ds_read_b128 {vr(kf(W,ks),4)}, {vr(vAK+ks)} offset:{4096*W}')
    a.label('L_k01done')
    def issue_qa():
        if opt.get('qprio'): a('s_setprio 3')
        for ks in range(4):
            a(f'buffer_load_dwordx4 {vr(QA+4*ks,4)}, {vr(vDQ)}, {sr(sQ,4)}, 0 offen offset:{64*ks} {qpol}')
        if opt.get('qprio'): a('s_setprio 0')

    def xred(m, t, op='v_max_f32'):
        a(f'v_mov_b32 {vr(t)}, {vr(m)}')
        a.nop(2)
        a(f'v_permlane16_swap_b32 {vr(m)}, {vr(t)}')
        a(f'{op} {vr(m)}, {vr(m)}, {vr(t)}')
        a(f'v_mov_b32 {vr(t)}, {vr(m)}')
        a.nop(2)
        a(f'v_permlane32_swap_b32 {vr(m)}, {vr(t)}')
        a(f'{op} {vr(m)}, {vr(m)}, {vr(t)}')
    def maxtree_l(vals, m, first=True):
        out = []; rest = list(vals)
        if first:
            out.append(f'v_max3_f32 {vr(m)}, {vr(rest[0])}, {vr(rest[1])}, {vr(rest[2])}'); rest = rest[3:]
        while len(rest) >= 2:
            out.append(f'v_max3_f32 {vr(m)}, {vr(m)}, {vr(rest[0])}, {vr(rest[1])}'); rest = rest[2:]
        if rest:
            out.append(f'v_max_f32 {vr(m)}, {vr(m)}, {vr(rest[0])}')
        return out
    def fma_l(vals, mc):
        if pk:
            return [f'v_pk_fma_f32 {vr(vals[n],2)}, {vr(vals[n],2)}, {sr(sCS,2)}, {vr(mc,2)} op_sel_hi:[1,1,0] neg_lo:[0,0,1] neg_hi:[0,0,1]' for n in range(0, len(vals), 2)]
        return [f'v_fma_f32 {vr(v)}, {vr(v)}, s{sCS}, -{vr(mc)}' for v in vals]
    exp_l = lambda vals: [f'v_exp_f32 {vr(v)}, {vr(v)}' for v in vals]
    cvt_l = lambda dst, src, n: [f'v_cvt_pk_bf16_f32 {vr(dst+k)}, {vr(src+2*k)}, {vr(src+2*k+1)}' for k in range(n)]

    def vread(dst, t, W):
        return f'ds_read_b64_tr_b16 {vr(dst,2)}, {vr(VA+t)} offset:{4096*W}'
    a(f's_cmp_lt_u32 s{sWV}, 4')
    a('s_cbranch_scc1 L_gk')
    only(FW, 'L_notag')
    a('s_setprio 3')
    a(f's_lshl_b32 s{sT0}, s{sH}, 3')
    a(f'v_mov_b32 {vr(S+4)}, s{sT0}')
    a(f'v_mov_b32 {vr(S+5)}, s{sN}')
    a(f'v_mov_b32 {vr(S+6)}, {LCNT}')
    a(f'global_load_dword {vr(S+7)}, {vr(S+4)}, s[16:17]')
    a('s_setprio 0')
    issue_qa()
    a('s_waitcnt vmcnt(4)')
    a(f's_cmp_eq_u32 s{sC}, {CC}')
    a('s_cselect_b64 vcc, -1, 0')
    a(f'v_cndmask_b32 {vr(S+7)}, {vr(S+7)}, {vr(S+5)}, vcc')
    a('s_mov_b64 exec, 1')
    a(f'ds_write_b32 {vr(S+6)}, {vr(S+7)} offset:4')
    a('s_mov_b64 exec, -1')
    a('s_branch L_tagdone')
    a.label('L_notag')
    issue_qa()
    a.label('L_tagdone')
    a('s_waitcnt lgkmcnt(0)')
    a(f'v_add_u32 {vr(vDQk)}, 0x1000, {vr(vDQ)}')
    stamp(fine)
    a('s_barrier')
    for t in range(8):
        a(vread(X[t+1], t, 0)); a(vread(X[t+1]+2, t, 1))
    a('s_branch L_gdone')
    a.label('L_gk')
    for ks in range(4):
        a(f'ds_read_b128 {vr(QG+4*ks,4)}, {vr(vAG)} offset:{1024+64*ks}')
    issue_qa()
    a('s_waitcnt lgkmcnt(0)')
    for T in range(4):
        for ks in range(4):
            a(mfma(S+4*T, kf(T,ks), QG+4*ks, '0' if ks == 0 else S+4*T))
    a(f'v_add_u32 {vr(vDQk)}, 0x1000, {vr(vDQ)}')
    a.nop(7)
    for l in maxtree_l([S+x for x in range(16)], vM): a(l)
    xred(vM, vT)
    a(f'v_mul_f32 {vr(vM)}, s{sCS}, {vr(vM)}')
    for l in fma_l([S+x for x in range(16)], vM): a(l)
    for l in exp_l([S+x for x in range(16)]): a(l)
    a.nop(1)
    a(f'v_add_f32 {vr(vT)}, {vr(S)}, {vr(S+1)}')
    for x in range(2, 16):
        a(f'v_add_f32 {vr(vT)}, {vr(vT)}, {vr(S+x)}')
    for l in cvt_l(S, S, 8): a(l)
    xred(vT, vT0, 'v_add_f32')
    a(f'ds_write_b64 {vr(vNEG)}, {vr(vM,2)}')
    a(f'v_mbcnt_lo_u32_b32 {vr(vT0)}, -1, 0')
    a(f's_lshl_b32 s{sT0}, s{sWV}, 10')
    a(f'v_lshl_add_u32 {vr(vT0)}, {vr(vT0)}, 3, s{sT0}')
    if stamps and fine:
        nst[0] -= 1
        stamp()
    a('s_waitcnt vmcnt(4) lgkmcnt(0)')
    a('s_barrier')
    gb = [QB + 4*n for n in range(4)] + [S + 8 + 4*n for n in range(4)]
    for t in range(8):
        a(vread(gb[t], t, 2)); a(vread(gb[t]+2, t, 3))
    for t in range(8):
        a('s_waitcnt lgkmcnt(14)')
        a(mfma(gb[t], S+4, gb[t], '0'))
        a(vread(X[t+1], t, 0)); a(vread(X[t+1]+2, t, 1))
    for t in range(8):
        a(f's_waitcnt lgkmcnt({14-2*t})')
        a(mfma(gb[t], S, X[t+1], gb[t]))
    a('s_mov_b64 exec, 1')
    a(f'v_mov_b32 {vr(S)}, {LCNT}')
    a(f'v_mov_b32 {vr(S+1)}, 1')
    a('s_mov_b64 exec, 0xffff')
    for t in range(8):
        a(f'ds_write_b64 {vr(vT0)}, {vr(gb[t],2)} offset:{PART+128*t}')
    a('s_mov_b64 exec, 1')
    a(f'ds_add_u32 {vr(S)}, {vr(S+1)}')
    a('s_mov_b64 exec, -1')
    a.label('L_gdone')
    stamp()

    emit = lambda ls: [a(l) for l in ls]
    def combine(og, mg, tm):
        NP = len(og)
        emit(maxtree_l([mg[n] for n in range(NP)], tm))
        for n in range(NP):
            a(f'v_sub_f32 {vr(mg[n])}, {vr(mg[n])}, {vr(tm)}')
        for n in range(NP):
            a(f'v_exp_f32 {vr(mg[n])}, {vr(mg[n])}')
        a.nop(1)
        for e in range(4):
            a(f'v_mul_f32 {vr(og[0][e])}, {vr(og[0][e])}, {vr(mg[0])}')
        a(f'v_mul_f32 {vr(mg[0]+1)}, {vr(mg[0]+1)}, {vr(mg[0])}')
        for n in range(1, NP):
            for e in range(4):
                a(f'v_fmac_f32 {vr(og[0][e])}, {vr(og[n][e])}, {vr(mg[n])}')
            a(f'v_fmac_f32 {vr(mg[0]+1)}, {vr(mg[n]+1)}, {vr(mg[n])}')

    def issue_qb():
        for ks in range(4):
            a(f'buffer_load_dwordx4 {vr(QB+4*ks,4)}, {vr(vDQk)}, {sr(sQ,4)}, 0 offen offset:{64*ks} {qpol}')
        a(f'v_mov_b32 {vr(vDQk)}, 0')
    issue_qb()
    if opt.get('otouch'):
        only(FW, 'L_nootouch')
        a(f's_mov_b32 m0, {PARTML+256}')
        a('s_mov_b64 exec, 1')
        a(f'buffer_load_dword {vr(vOO)}, {sr(sO,4)}, 0 offen lds')
        a(f'buffer_load_dword {vr(vOO)}, {sr(sO,4)}, 0 offen offset:512 lds')
        a('s_mov_b64 exec, -1')
        a('s_waitcnt vmcnt(6)')
        a('s_branch L_tileA')
        a.label('L_nootouch')
    a(f's_cmp_eq_u32 s{sWV}, {RW}')
    a('s_cbranch_scc1 L_reduce')
    a(f's_cmp_eq_u32 s{sCMB}, 0')
    a('s_cbranch_scc1 L_noflag')
    a(f'v_mov_b32 {vr(vT0)}, {LNON}')
    a(f'ds_read_b32 {vr(vT0)}, {vr(vT0)}')
    a('s_waitcnt lgkmcnt(0)')
    a(f'v_readfirstlane_b32 s{sN}, {vr(vT0)}')
    a.label('L_noflag')
    a('s_waitcnt vmcnt(4)')
    a('s_branch L_tileA')
    a.label('L_reduce')
    R0 = S
    a(f'v_mbcnt_lo_u32_b32 {vr(R0)}, -1, 0')
    a(f'v_mbcnt_hi_u32_b32 {vr(R0)}, -1, {vr(R0)}')
    a(f'v_lshrrev_b32 {vr(R0+1)}, 5, {vr(R0)}')
    a(f'v_and_b32 {vr(R0+3)}, 31, {vr(R0)}')
    a(f'v_lshlrev_b32 {vr(R0+3)}, 5, {vr(R0+3)}')
    a(f'v_lshl_add_u32 {vr(R0+3)}, {vr(R0+1)}, 2, {vr(R0+3)}')
    a(f'v_lshlrev_b32 {vr(R0+1)}, 3, {vr(R0+1)}')
    a(f'v_add_u32 {vr(R0+1)}, {PARTML}, {vr(R0+1)}')
    a(f'v_lshlrev_b32 {vr(R0)}, 4, {vr(R0)}')
    a(f'v_mov_b32 {vr(R0+2)}, {LCNT}')
    a(f's_mov_b32 s{sCNT}, 0')
    a.label('L_lspin')
    a(f'ds_read_b64 {vr(S+4,2)}, {vr(R0+2)}')
    a(f's_add_u32 s{sCNT}, s{sCNT}, 1')
    a('s_waitcnt lgkmcnt(0)')
    a(f'v_readfirstlane_b32 s{sT0}, {vr(S+4)}')
    a(f'v_readfirstlane_b32 s{sN}, {vr(S+5)}')
    a(f's_cmp_ge_u32 s{sCNT}, 0x100000')
    a('s_cbranch_scc1 L_lok')
    a(f's_cmp_lt_u32 s{sT0}, 4')
    a('s_cbranch_scc1 L_lspin')
    a.label('L_lok')
    mg = [S+4, S+6, O, O+2]
    G0 = S + 8
    og = [[G0+4*n+e for e in range(4)] for n in range(4)]
    for n in range(4):
        a(f'ds_read_b64 {vr(mg[n],2)}, {vr(R0+1)} offset:{16*n}')
    for n in range(4):
        if n: a(f'v_add_u32 {vr(R0+3)}, 1024, {vr(R0+3)}')
        a(f'ds_read2_b32 {vr(G0+4*n,2)}, {vr(R0+3)} offset0:0 offset1:2')
        a(f'ds_read2_b32 {vr(G0+4*n+2,2)}, {vr(R0+3)} offset0:4 offset1:6')
    a('s_waitcnt lgkmcnt(0)')
    combine(og, mg, R0+1)
    a(f'v_mov_b32 {vr(G0+4)}, {vr(G0+3)}')
    a(f'v_mov_b32 {vr(G0+5)}, {vr(R0+1)}')
    a(f'v_mov_b32 {vr(G0+6)}, {vr(mg[0]+1)}')
    a(f'v_mov_b32 {vr(G0+7)}, s{sN}')
    a(f'v_mov_b32 {vr(G0+3)}, s{sN}')
    a(f'buffer_store_dwordx4 {vr(G0+4,4)}, {vr(R0)}, {sr(sW,4)}, s42 offen offset:1024 sc0 sc1')
    a(f'buffer_store_dwordx4 {vr(G0,4)}, {vr(R0)}, {sr(sW,4)}, s42 offen sc0 sc1')
    a(f's_cmp_lg_u32 s{sN}, 0')
    a('s_cbranch_scc1 L_tagged')
    a('s_waitcnt vmcnt(0)')
    a(f's_lshl_b32 s{sT0}, s{sH}, 3')
    a(f's_lshl_b32 s{sT1}, 1, s{sC}')
    a(f'v_mov_b32 {vr(R0)}, s{sT0}')
    a(f'v_mov_b32 {vr(R0+1)}, s{sT1}')
    a('s_mov_b64 exec, 1')
    a(f'global_atomic_or {vr(R0)}, {vr(R0+1)}, s[16:17] offset:4 sc1')
    a('s_mov_b64 exec, -1')
    a.label('L_tagged')
    a('s_waitcnt vmcnt(6)')
    a.label('L_tileA')
    def yprio(tag):
        if yp == tag:
            a(f's_cmp_lt_u32 s{sWV}, 4')
            a(f's_cbranch_scc1 L_yp{tag}')
            a('s_setprio 1')
            a.label(f'L_yp{tag}')
    yprio('a')
    stamp()

    def inter(ms, vs, per=2):
        vs = list(vs)
        for m in ms:
            a(m)
            for _ in range(per):
                if vs: a(vs.pop(0))
        for v in vs: a(v)

    HB = kf(2, 0)
    def hand_loads():
        a(f'v_mbcnt_lo_u32_b32 {vr(KG)}, -1, 0')
        a(f'v_mbcnt_hi_u32_b32 {vr(KG)}, -1, {vr(KG)}')
        a(f'v_lshlrev_b32 {vr(KG)}, 4, {vr(KG)}')
        for n in range(8):
            a(f's_movk_i32 s{sT0}, {2048*n}')
            a(f'buffer_load_dwordx4 {vr(HB+8*n,4)}, {vr(KG)}, {sr(sW,4)}, s{sT0} offen sc0 sc1')
            a(f'buffer_load_dwordx4 {vr(HB+8*n+4,4)}, {vr(KG)}, {sr(sW,4)}, s{sT0} offen offset:1024 sc0 sc1')

    buf = [kf(0, n) for n in range(4)] + [QA + 4*n for n in range(4)]
    SLOTW = {0: [0, 1, 2, 3, 4], 1: [4, 5, 2, 3, 1]}
    def qk(tau, sl):
        Q = QA if tau == 0 else QB
        if sl == 'G':
            return [mfma(S+20, KG+4*ks, Q+4*ks, '0' if ks == 0 else S+20) for ks in range(4)]
        W = SLOTW[tau][sl]
        c0 = BLO if W == tau else BHI if W == tau + 4 else '0'
        return [mfma(S+4*sl, kf(W,ks), Q+4*ks, c0 if ks == 0 else S+4*sl) for ks in range(4)]
    def edge_test(tau, lab):
        a(f's_sub_u32 s{sT0}, s{sQB}, {48 - 16*tau}')
        a(f's_cmp_lt_u32 s{sT0}, 1968')
        a(f's_cbranch_scc1 {lab}')
    def edge_mask(tau, tr):
        a(f'v_mbcnt_lo_u32_b32 {vr(tr)}, -1, 0')
        a(f'v_mbcnt_hi_u32_b32 {vr(tr)}, -1, {vr(tr)}')
        a(f'v_lshrrev_b32 {vr(tr)}, 4, {vr(tr)}')
        a(f's_sub_u32 s{sT0}, s{sQB}, 34')
        a(f's_movk_i32 s{sT1}, 2046')
        a(f'v_lshl_add_u32 {vr(tr)}, {vr(tr)}, 2, s{sT0}')
        a(f'v_mov_b32 {vr(vM)}, 0x{NEG:08x}')
        a('s_nop 3')
        for sl in range(5):
            for r in range(4):
                a(f'v_add_u32 {vr(vT)}, {16*SLOTW[tau][sl]+r}, {vr(tr)}')
                a(f'v_cmp_gt_u32 vcc, s{sT1}, {vr(vT)}')
                a('s_nop 1')
                a(f'v_cndmask_b32 {vr(S+4*sl+r)}, {vr(vM)}, {vr(S+4*sl+r)}, vcc')
        for l in maxtree_l([S+x for x in range(22)], vM): a(l)
    def epi(t, tau=0):
        l = [f'v_mul_f32 {vr(O+4*t+e)}, {vr(O+4*t+e)}, {vr(vT0)}' for e in range(4)]
        l += [f'v_cvt_pk_bf16_f32 {vr(O+4*t)}, {vr(O+4*t)}, {vr(O+4*t+1)}',
              f'v_cvt_pk_bf16_f32 {vr(O+4*t+1)}, {vr(O+4*t+2)}, {vr(O+4*t+3)}',
              f'ds_write_b64 {vr(vSW)}, {vr(O+4*t,2)} offset:{32*t + 16*STGP*tau}']
        return l
    def stage_reads(tau=0, R=O):
        return [f'ds_read_b128 {vr(R+4*j,4)}, {vr(vSR)} offset:{4*STGP*j + 16*STGP*tau}' for j in range(4)]
    def stores(tau, R=O, extra=0):
        for j in range(4):
            a(f's_waitcnt lgkmcnt({3-j+extra})')
            if tau == 0 and j == 0: a(f's_mov_b64 exec, {sr(sEX,2)}')
            a(f'buffer_store_dwordx4 {vr(R+4*j,4)}, {vr(vOO)}, {sr(sO,4)}, s{sTOFF if tau else sZERO} offen offset:{1024*j} {stpol}')
            if tau == 0 and j == 0: a('s_mov_b64 exec, -1')
    RA = kf(1, 0)
    def late_a():
        for l in stage_reads(0, RA): a(l)
        stores(0, RA)
    def softmax_pv(tau):
        m = vM
        xred(m, vT)
        a(f'v_mul_f32 {vr(m)}, s{sCS}, {vr(m)}')
        set0 = [S+x for x in range(8)]; set1 = [S+8+x for x in range(8)]; set2 = [S+16+x for x in range(6)]
        for l in fma_l(set0, m): a(l)
        f2 = fma_l(set2, m); f1 = fma_l(set1, m)
        for l in exp_l(set0): a(l)
        a(f2[0])
        for l in cvt_l(S, S, 4): a(l)
        a(f2[1])
        a('s_waitcnt lgkmcnt(0)' if tau == 1 else 's_waitcnt lgkmcnt(8)')
        if tau == 1 and apos == 1: late_a()
        ONES, LACC = S+4, S+20
        v2 = f2[2:] + exp_l(set2) + [f'v_mov_b32 {vr(ONES+n)}, 0x3f803f80' for n in range(4)] + cvt_l(S+16, S+16, 3) \
             + [f'v_mov_b32 {vr(S+19)}, 0', f'v_cndmask_b32 {vr(S+18)}, 0, {vr(S+18)}, {sr(sKG0,2)}']
        inter([mfma(X[t], X[t+1], S, '0') for t in range(8)], v2 + f1[:2])
        v1 = f1[2:] + exp_l(set1) + [f'v_mov_b32 {vr(vT0)}, 0'] + cvt_l(S+8, S+8, 4)
        inter([mfma(O+4*t, VG+4*t, S+16, O+4*t) for t in range(8)], v1)
        a(mfma(LACC, ONES, S, '0'))
        a(mfma(LACC, ONES, S+16, LACC))
        a(mfma(LACC, ONES, S+8, LACC))
        if tau == 0:
            a('s_waitcnt lgkmcnt(0)')
        for t in range(8):
            a(mfma(O+4*t, buf[t], S+8, O+4*t))
            if tau == 0: a(vread(VG+4*t, t, 1))
        a(f'v_rcp_f32 {vr(vT0)}, {vr(LACC)}')

    late = []
    for t in range(8):
        late += [vread(buf[t], t, 2), vread(buf[t]+2, t, 3)]
    vgr = [vread(VG+4*t, t, 4) for t in range(8)]
    edge_test(0, 'L_fastA')
    for l in vgr: a(l)
    for sl in ('G', 0, 1, 2, 3, 4):
        for l in qk(0, sl): a(l)
    for l in late: a(l)
    edge_mask(0, vT0)
    a('s_branch L_joinA')
    a.label('L_fastA')
    m = vM
    inter(qk(0, 0) + qk(0, 'G'), vgr, per=1)
    inter(qk(0, 1) + qk(0, 2), late[:8], per=1)
    inter(qk(0, 3), maxtree_l([S+20, S+21, S+0], m) + maxtree_l([S+1, S+2, S+3, S+4, S+5, S+6], m, False), per=1)
    inter(qk(0, 4), maxtree_l([S+7, S+8, S+9, S+10], m, False), per=1)
    for l in late[8:11]: a(l)
    for l in maxtree_l([S+11, S+12], m, False): a(l)
    for l in late[11:13]: a(l)
    for l in maxtree_l([S+13, S+14, S+15], m, False): a(l)
    for l in late[13:]: a(l)
    for l in maxtree_l([S+16, S+17, S+18, S+19], m, False): a(l)
    a.label('L_joinA')
    yprio('s')
    stamp(fine)
    softmax_pv(0)
    stamp(fine)
    ep = []
    for t in range(8): ep += epi(t)
    if apos == 0: ep += stage_reads()
    xb = []
    for t in range(8): xb += [vread(X[t+1], t, 4), vread(X[t+1]+2, t, 5)]
    def qb_wait(n):
        a(f's_waitcnt vmcnt({n+2})')
        if opt.get('otouch'):
            a(f's_and_b32 s{sT0}, s{sWV}, 3')
            a(f's_cmp_eq_u32 s{sT0}, 3')
        else:
            a(f's_cmp_eq_u32 s{sWV}, {RW}')
        a('s_cbranch_scc1 L_qbw')
        a(f's_waitcnt vmcnt({n})')
        a.label('L_qbw')
    if merge == 'hyb':
        a('s_nop 0')
        for l in ep: a(l)
        qb_wait(0)
        stamp()
        spos = int(opt.get('spos', 0))
        edge_test(1, 'L_fastB')
        stores(0)
        for sl in ('G', 0, 1, 2, 3, 4):
            for l in qk(1, sl): a(l)
        for l in xb: a(l)
        edge_mask(1, vT0)
        a('s_branch L_joinB')
        a.label('L_fastB')
        if spos == 0:
            stores(0)
            inter(qk(1, 'G') + qk(1, 0) + qk(1, 1) + qk(1, 2), xb, per=1)
        else:
            for l in qk(1, 'G') + qk(1, 0): a(l)
            stores(0)
            inter(qk(1, 1) + qk(1, 2), xb, per=2)
        inter(qk(1, 3), maxtree_l([S+20, S+21, S+0], m) + maxtree_l([S+1, S+2, S+3, S+4, S+5, S+6], m, False), per=1)
        inter(qk(1, 4), maxtree_l([S+7, S+8], m, False), per=1)
        for l in maxtree_l([S+9, S+10, S+11, S+12], m, False): a(l)
        a.nop(1)
        for l in maxtree_l([S+13, S+14, S+15], m, False): a(l)
        a.nop(3)
        for l in maxtree_l([S+16, S+17, S+18, S+19], m, False): a(l)
    elif not merge:
        a('s_nop 0')
        for l in ep: a(l)
        stores(0)
        for l in xb: a(l)
        qb_wait(4)
        stamp()
        edge_test(1, 'L_fastB')
        for sl in ('G', 0, 1, 2, 3, 4):
            for l in qk(1, sl): a(l)
        edge_mask(1, vT0)
        a('s_branch L_joinB')
        a.label('L_fastB')
        for sl in ('G', 0, 1, 2):
            for l in qk(1, sl): a(l)
        inter(qk(1, 3), maxtree_l([S+20, S+21, S+0], m) + maxtree_l([S+1, S+2], m, False), per=1)
        inter(qk(1, 4), maxtree_l([S+3, S+4, S+5, S+6, S+7, S+8], m, False), per=1)
        a.nop(1)
        for l in maxtree_l([S+9, S+10, S+11, S+12], m, False): a(l)
        a.nop(1)
        for l in maxtree_l([S+13, S+14, S+15], m, False): a(l)
        a.nop(2)
        for l in maxtree_l([S+16, S+17, S+18, S+19], m, False): a(l)
    else:
        qb_wait(0)
        yprio('m')
        stamp()
        edge_test(1, 'L_fastB')
        for l in ep: a(l)
        if apos == 0: stores(0)
        for sl in (0, 1, 2, 3, 4, 'G'):
            for l in qk(1, sl): a(l)
        for l in xb: a(l)
        edge_mask(1, vT0)
        a('s_branch L_joinB')
        a.label('L_fastB')
        ms = []
        for sl in (0, 1, 2, 3, 4, 'G'): ms += qk(1, sl)
        inter(ms, ep, per=3)
        for l in maxtree_l([S+x for x in range(15)], vT0): a(l)
        if apos == 0: stores(0)
        for l in xb: a(l)
        a(f'v_max3_f32 {vr(vM)}, {vr(vT0)}, {vr(S+15)}, {vr(S+16)}')
        for l in maxtree_l([S+17, S+18, S+19, S+20, S+21], vM, False): a(l)
    a.label('L_joinB')
    yprio('b')
    stamp()
    a(f's_cmp_eq_u32 s{sCMB}, 0')
    a('s_cbranch_scc1 L_nohand')
    hand_loads()
    a.label('L_nohand')
    softmax_pv(1)
    stamp(fine)
    if apos == 2:
        late_a()
    a('s_nop 0')
    if apos == 3:
        for l in stage_reads(0, RA): a(l)
    for t in range(8):
        for l in epi(t, 1): a(l)
    for l in stage_reads(1): a(l)
    if apos == 3:
        stores(0, RA, extra=4+8) if False else None
        for j in range(4):
            if j == 0: a(f's_mov_b64 exec, {sr(sEX,2)}')
            if j == 0: a('s_waitcnt lgkmcnt(4)')
            a(f'buffer_store_dwordx4 {vr(RA+4*j,4)}, {vr(vOO)}, {sr(sO,4)}, s{sZERO} offen offset:{1024*j} {stpol}')
            if j == 0: a('s_mov_b64 exec, -1')
    stores(1)
    stamp()

    a(f's_cmp_eq_u32 s{sCMB}, 0')
    a('s_cbranch_scc1 L_fin')
    a(f's_waitcnt vmcnt({4 if apos == 0 else 8})')
    a(f's_mov_b32 s{sCNT}, 0')
    a(f's_mov_b32 s{sT2}, 0')
    a.label('L_chk')
    a(f's_mov_b32 s{sT3}, s{sT2}')
    for n in range(8):
        a(f'v_cmp_eq_u32 vcc, s{sN}, {vr(HB+8*n+3)}')
        a(f'v_cmp_eq_u32 s[60:61], s{sN}, {vr(HB+8*n+7)}')
        a('s_nop 0')
        a('s_and_b64 vcc, vcc, s[60:61]')
        a('s_cmp_eq_u64 vcc, exec')
        a(f's_cselect_b32 s{sT0}, {1 << n}, 0')
        a(f's_or_b32 s{sT3}, s{sT3}, s{sT0}')
    a(f's_add_u32 s{sCNT}, s{sCNT}, 1')
    a(f's_cmp_eq_u32 s{sT3}, 0xff')
    a('s_cbranch_scc1 L_ready')
    a(f's_cmp_ge_u32 s{sCNT}, 0x40000')
    a('s_cbranch_scc1 L_ready')
    a(f's_lshl_b32 s{sT0}, s{sH}, 3')
    a(f'v_mov_b32 {vr(KG+1)}, s{sT0}')
    a(f'global_load_dword {vr(KG+2)}, {vr(KG+1)}, s[16:17] offset:4 sc0 sc1')
    a('s_waitcnt vmcnt(0)')
    a(f'v_readfirstlane_b32 s{sT2}, {vr(KG+2)}')
    hand_loads()
    a('s_waitcnt vmcnt(0)')
    a('s_branch L_chk')
    a.label('L_ready')
    hog = [[HB+8*n, HB+8*n+1, HB+8*n+2, HB+8*n+4] for n in range(8)]
    hmg = [HB+8*n+5 for n in range(8)]
    combine(hog, hmg, X8)
    a(f'v_rcp_f32 {vr(X8)}, {vr(hmg[0]+1)}')
    a(f'v_lshrrev_b32 {vr(KG)}, 1, {vr(KG)}')
    for e in range(4):
        a(f'v_mul_f32 {vr(hog[0][e])}, {vr(hog[0][e])}, {vr(X8)}')
    a(f'v_cvt_pk_bf16_f32 {vr(X8+2)}, {vr(hog[0][0])}, {vr(hog[0][1])}')
    a(f'v_cvt_pk_bf16_f32 {vr(X8+3)}, {vr(hog[0][2])}, {vr(hog[0][3])}')
    a(f'buffer_store_dwordx2 {vr(X8+2,2)}, {vr(KG)}, {sr(sO,4)}, 0 offen {stpol}')
    a.label('L_fin')
    if stamps:
        stamp()
        a('s_waitcnt vmcnt(0)')
        stamp()
        if opt.get('clk'):
            a('s_memtime s[98:99]')
            a('s_waitcnt lgkmcnt(0)')
            a('s_sub_u32 s98, s98, s96')
            a(f's_add_u32 s{64+2*nst[0]}, s98, s64')
            nst[0] += 1
        a(f's_lshl_b32 s{sT0}, s2, 3')
        a(f's_add_u32 s{sT0}, s{sT0}, s{sWV}')
        a(f's_lshl_b32 s{sT0}, s{sT0}, 6')
        a(f's_add_u32 s{sT0}, s{sT0}, 0x100000')
        a(f's_add_u32 s{sW}, s18, s{sT0}')
        a(f's_addc_u32 s{sW+1}, s19, 0')
        a(f'v_mov_b32 v1, 0')
        a('s_mov_b64 exec, 1')
        for n in range(min(16, nst[0])):
            a(f'v_mov_b32 v2, s{64+2*n}')
            a(f'buffer_store_dword v2, v1, {sr(sW,4)}, 0 offen offset:{4*n}')
        if 'leak' in opt:
            k = int(opt['leak'])
            a(f's_sub_u32 s{sT0}, s{64+2*k}, s64')
            a(f's_lshl_b32 s{sT0}, s{sT0}, 2')
            if opt.get('leakskew'):
                a.label('L_pre')
                a('s_memrealtime s[100:101]')
                a('s_waitcnt lgkmcnt(0)')
                a(f's_sub_u32 s{sT1}, s100, s64')
                a(f's_cmp_lt_u32 s{sT1}, 3000')
                a('s_cbranch_scc1 L_pre')
                a('s_mov_b64 exec, -1')
                a('v_mbcnt_lo_u32_b32 v3, -1, 0')
                a('v_and_b32 v3, 31, v3')
                a('v_lshlrev_b32 v3, 3, v3')
                a('global_load_dword v4, v3, s[16:17] sc0 sc1')
                a('s_waitcnt vmcnt(0)')
                a('v_readlane_b32 s20, v4, 0')
                a('s_mov_b32 s21, 0'); a('s_mov_b32 s22, 0')
                for n in range(1, 32):
                    a(f'v_readlane_b32 s23, v4, {n}')
                    a('s_nop 0')
                    a('s_sub_i32 s23, s23, s20')
                    a('s_min_i32 s21, s21, s23')
                    a('s_max_i32 s22, s22, s23')
                a(f's_sub_u32 s{sT0}, s22, s21')
                a(f's_min_u32 s{sT0}, s{sT0}, 2000')
                a(f's_lshl_b32 s{sT0}, s{sT0}, 2')
            if opt.get('leakcnt'):
                a(f's_mul_i32 s{sT0}, s{sCNT}, 500')
                a(f's_mul_i32 s{sT0}, s{sT0}, s{sCMB}')
            if 'leakw' in opt:
                a(f's_lshr_b32 s{sT1}, {opt["leakw"]}, s{sWV}')
                a(f's_bitcmp1_b32 s{sT1}, 0')
                a(f's_cselect_b32 s{sT0}, s{sT0}, 0')
            a(f"s_add_u32 s{sT0}, s{sT0}, {opt.get('spin', 5000)}")
            a.label('L_spin')
            a('s_memrealtime s[100:101]')
            a('s_waitcnt lgkmcnt(0)')
            a(f's_sub_u32 s{sT1}, s100, s64')
            a(f's_cmp_lt_u32 s{sT1}, s{sT0}')
            a('s_cbranch_scc1 L_spin')
    a.label('L_end')
    a('s_endpgm')
    if opt.get('cpf', True):
        a('.fill 4096, 4, 0xbf800000')

    check(a.lines)
    if stamps: print('stamps', nst[0])
    head = f'''; windowed + global-token attention, B=1 H=32 S=2048 D=128 bf16 (window 32, 2 global tokens)
; @launch grid=(256,1,1) block=(512,1,1) lds=163840
.amdgcn_target "amdgcn-amd-amdhsa--gfx950"
.text
.globl {NAME}
.p2align 8
.type {NAME},@function
{NAME}:
'''
    tail = f'''.section .rodata,"a"
.p2align 6
.amdhsa_kernel {NAME}
  .amdhsa_next_free_vgpr 256
  .amdhsa_next_free_sgpr {102 if stamps else 64}
  .amdhsa_accum_offset 256
  .amdhsa_group_segment_fixed_size 0
  .amdhsa_kernarg_size 64
  .amdhsa_user_sgpr_count 2
  .amdhsa_user_sgpr_kernarg_segment_ptr 1
  .amdhsa_system_sgpr_workgroup_id_x 1
.end_amdhsa_kernel
'''
    return head + a.text() + tail

if __name__ == '__main__':
    out = sys.argv[1]
    opt = {}
    for kv in sys.argv[2:]:
        k, v = kv.split('=', 1)
        opt[k] = {'True': True, 'False': False}.get(v, v.replace('+', ' '))
    open(out, 'w').write(gen(opt))
```

```python
import sys, math, struct
from asmlib import *

NAME = 'standalone__global_local_windowed_global_tokens__prompt_kernel'
def f2u(x): return struct.unpack('<I', struct.pack('<f', x))[0]

def gen(opt):
    a = Asm()
    NEG = 0xFF000000
    CSC = f2u(128 ** -0.5 * math.log2(math.e))
    KOFF, VOFF, SOFF = 0, 73728, 155648
    apos = int(opt.get('apos', 0))
    PART, STG = 0, 4096
    PARTML, LCNT, LNON = SOFF + 3072, SOFF + 3072 + 128, SOFF + 3072 + 132
    STGP = 272
    ldpol = opt.get('ldpol', '')
    qpol = opt.get('qpol', '')
    stpol = opt.get('stpol', 'sc0 sc1 nt')
    pk = opt.get('pk', True)
    N1 = int(opt.get('n1', 10))
    yp = opt.get('yp', '')
    RW = int(opt.get('rw', 3))
    FW = 7
    SW = 5
    CW, CC = int(opt.get('cw', 1)), 3
    merge = opt.get('merge', True)
    sQ, sK, sV, sO, sW = 20, 24, 28, 32, 36
    sWV, sH, sC, sHO, sQ0B = 40, 43, 44, 45, 46
    sT0, sT1, sT2, sT3 = 47, 48, 49, 50
    sBK = 62
    HW = 4
    sCS = 52; sKG0 = 54; sQB = 51; sEX = 56; sCMB = 58; sCNT = 59; sN = 63; sTOFF = 41; sZERO = 3
    VA = 0
    vSW, vSR, vOO, vT0 = 8, 9, 10, 11
    X8 = 12
    KF = 16; KG = 112; QA, QB = 128, 144; VG = 160; O = 192; S = 224
    BLO, BHI = 248, 252
    kf = lambda W, ks: KF + 16 * W + 4 * ks
    X = [O + 4 * n for n in range(8)] + [X8]
    vLANE, vI, vKGp, vDK, vDV, vDQ, vAG, vNEG, vAK = O+16, O+17, O+18, O+19, O+20, O+21, O+22, O+23, O+24
    vAVG, t1, t2, t3 = O+28, O+29, O+30, O+31
    vDQk = VG + 7
    vFLAG = VG + 3
    vM, vT = S + 22, S + 23

    stamps = opt.get('stamps', False)
    fine = opt.get('fine', False)
    nst = [0]
    def stamp(on=True):
        if stamps and on:
            a(f's_memrealtime s[{64+2*nst[0]}:{65+2*nst[0]}]')
            if nst[0]: a('s_waitcnt lgkmcnt(0)')
            nst[0] += 1
    M16 = 'v_mfma_f32_16x16x32_bf16'
    def mfma(d, x, y, c):
        return f'{M16} {vr(d,4)}, {vr(x,4)}, {vr(y,4)}, {c if isinstance(c,str) else vr(c,4)}'
    def only(w, lab):
        a(f's_cmp_lg_u32 s{sWV}, {w}')
        a(f's_cbranch_scc1 {lab}')

    stamp()
    if opt.get('clk'): a('s_memtime s[96:97]')
    a('s_load_dwordx16 s[4:19], s[0:1], 0')
    a(f'v_readfirstlane_b32 s{sWV}, v0')
    a('s_cmp_ge_u32 s2, 256')
    a('s_cbranch_scc1 L_end')
    a(f'v_lshrrev_b32 {vr(t1)}, 4, v0')
    a(f'v_xor_b32 {vr(vDK)}, {vr(t1)}, v0')
    a(f'v_and_b32 {vr(vDK)}, 15, {vr(vDK)}')
    a(f'v_lshl_add_u32 {vr(vDK)}, {vr(t1)}, 4, {vr(vDK)}')
    a(f's_bfe_u32 s{sC}, s2, 0x30003')
    a(f's_lshl_b32 s{sQ0B}, s{sC}, 16')
    a(f'v_lshl_add_u32 {vr(vDK)}, {vr(vDK)}, 4, s{sQ0B}')
    a('s_and_b32 s41, s2, 7')
    a(f's_lshr_b32 s{sH}, s2, 6')
    a(f's_lshl2_add_u32 s{sH}, s41, s{sH}')
    a(f's_lshl_b32 s{sHO}, s{sH}, 19')
    a(f's_lshl_b32 m0, s{sWV}, 4')
    a(f's_mov_b32 s{sK+2}, 0x80000')
    a(f's_mov_b32 s{sK+3}, 0x20000')
    a(f's_movk_i32 s{sCNT}, 17')
    if opt.get('cpf', True):
        a(f's_getpc_b64 s[{sEX}:{sEX+1}]')
        a(f'v_lshlrev_b32 v1, 5, v0')
        a(f'global_load_dword {vr(X8)}, v1, s[{sEX}:{sEX+1}]')
    a(f's_cmp_ge_u32 s{sWV}, 256')
    a('s_cbranch_scc1 L_helper')
    a('s_waitcnt lgkmcnt(0)')
    stamp()
    a(f's_add_u32 s{sK}, s6, s{sHO}')
    a(f's_addc_u32 s{sK+1}, s7, 0')
    thr = int(opt.get('thr', 0)); tl = [0]
    if thr: a('s_getreg_b32 s1, hwreg(HW_REG_XCC_ID, 0, 4)')
    def throttle():
        if thr:
            a('s_bitcmp1_b32 s1, 0')
            a(f's_cbranch_scc{opt.get("thpar", 1)} L_th{tl[0]}')
            a(f's_waitcnt vmcnt({thr-1})')
            a.label(f'L_th{tl[0]}')
            tl[0] += 1
    a.label('L_kloop')
    throttle()
    a(f'buffer_load_dwordx4 {vr(vDK)}, {sr(sK,4)}, 0 offen {opt.get("kpol", ldpol)} lds')
    a('s_add_u32 m0, m0, 0x1000')
    a(f'v_add_u32 {vr(vDK)}, 0x1000, {vr(vDK)}')
    a(f's_sub_u32 s{sCNT}, s{sCNT}, 1')
    a('s_cbranch_scc0 L_kloop')
    stamp(opt.get('postk', False))
    def common():
        a(f's_lshr_b32 s{sWV}, s{sWV}, 6')
        a(f'v_and_b32 {vr(vLANE)}, 63, v0')
        a(f'v_and_b32 {vr(vI)}, 15, v0')
        a(f'v_bfe_u32 {vr(vKGp)}, v0, 4, 2')
        a(f's_lshl_b32 s{sT1}, s{sWV}, 10')
        a(f's_add_u32 s{sT2}, s{sT1}, s{sQ0B}')
        for s_ in (sV, sQ):
            a(f's_mov_b32 s{s_+2}, 0x80000')
            a(f's_mov_b32 s{s_+3}, 0x20000')
        a(f's_mov_b32 s{sW+2}, 0x4000')
        a(f's_mov_b32 s{sW+3}, 0x20000')
        a(f's_and_b32 s{sBK}, s{sWV}, 3')
        a(f's_lshl_b32 s{sBK}, s{sBK}, 1')
        a(f's_cmp_lt_u32 s{sWV}, 4')
        a(f's_addc_u32 s{sBK}, s{sBK}, 0')
        a(f's_cmp_eq_u32 s{sC}, 0')
        a(f's_cselect_b32 s{sT3}, 0x40000000, 0')
        a(f's_lshl_b32 s{sT0}, s{sBK}, 13')
        a(f's_add_u32 s{sT0}, s{sT0}, s{sQ0B}')
        a(f'v_lshlrev_b32 {vr(vDQ)}, 4, {vr(vKGp)}')
        a(f'v_lshl_add_u32 {vr(vDQ)}, {vr(vI)}, 8, {vr(vDQ)}')
        a(f'v_add_u32 {vr(vDQ)}, s{sT0}, {vr(vDQ)}')
        a(f'v_lshlrev_b32 {vr(t3)}, 4, {vr(vLANE)}')
        a(f's_lshl_b32 s41, s{sH}, 14')
        a(f's_lshl_b32 s42, s{sC}, 11')
    common()
    a(f's_mov_b32 s{sN}, 0')
    def srds():
        a(f's_add_u32 s{sV}, s8, s{sHO}')
        a(f's_addc_u32 s{sV+1}, s9, 0')
        a(f's_add_u32 s{sQ}, s4, s{sHO}')
        a(f's_addc_u32 s{sQ+1}, s5, 0')
        a(f's_add_u32 s{sW}, s18, s41')
        a(f's_addc_u32 s{sW+1}, s19, 0')
    srds()
    a('s_branch L_v1')
    a.label('L_helper')
    a('s_setprio 3')
    a('s_memrealtime s[60:61]')
    common()
    a(f's_sub_u32 s{sT0}, s{sT3}, 0x2000')
    a(f'v_add_u32 {vr(t1)}, s{sT0}, {vr(vDQ)}')
    a(f'v_add_u32 {vr(t2)}, 0x1000, {vr(t1)}')
    a(f's_mov_b32 m0, {SOFF}')
    a('s_waitcnt lgkmcnt(0)')
    if stamps:
        nst[0] -= 1
        stamp()
    a(f's_add_u32 s{sK}, s6, s{sHO}')
    a(f's_addc_u32 s{sK+1}, s7, 0')
    srds()
    if stamps and opt.get('postk'):
        nst[0] -= 1
        stamp()
    a(f's_or_b32 s{sN}, s60, 1')
    if opt.get('leakxcc'):
        a('s_getreg_b32 s61, hwreg(HW_REG_XCC_ID, 0, 4)')
        a(f's_and_b32 s{sN}, s60, 0xffffffe0')
        a(f's_lshl1_add_u32 s{sN}, s61, s{sN}')
        a(f's_or_b32 s{sN}, s{sN}, 1')
    only(FW, 'L_noclear')
    a(f's_lshl_b32 s{sT0}, s{sH}, 3')
    a(f'v_mov_b32 {vr(S+4)}, s{sT0}')
    a(f'v_mov_b32 {vr(S+5)}, s{sN}')
    a(f'v_mov_b32 {vr(S+6)}, {LCNT}')
    a(f'v_mov_b32 {vr(S+7)}, 0')
    a('s_mov_b64 exec, 1')
    a(f's_cmp_lg_u32 s{sC}, {CC}')
    a('s_cbranch_scc1 L_nopub')
    a(f'global_store_dword {vr(S+4)}, {vr(S+5)}, s[16:17] sc0 sc1')
    a.label('L_nopub')
    a(f'ds_write_b32 {vr(S+6)}, {vr(S+7)}')
    a('s_mov_b64 exec, -1')
    if opt.get('wstouch'):
        pol = {'ld': '', 'ldsc': 'sc0 sc1'}.get(opt['wstouch'])
        if pol is not None:
            a(f'buffer_load_dwordx4 {vr(S+8,4)}, {vr(t3)}, {sr(sW,4)}, s42 offen {pol}')
            a(f'buffer_load_dwordx4 {vr(S+12,4)}, {vr(t3)}, {sr(sW,4)}, s42 offen offset:1024 {pol}')
        else:
            for n in range(4): a(f'v_mov_b32 {vr(S+8+n)}, 0')
            a(f'buffer_store_dwordx4 {vr(S+8,4)}, {vr(t3)}, {sr(sW,4)}, s42 offen sc0 sc1')
            a(f'buffer_store_dwordx4 {vr(S+8,4)}, {vr(t3)}, {sr(sW,4)}, s42 offen offset:1024 sc0 sc1')
    a.label('L_noclear')
    only(SW, 'L_nosmall')
    for n, srd in enumerate((sK, sQ, sV)):
        if n:
            a(f's_mov_b32 m0, {SOFF + 1024*n}')
            a('s_nop 0')
        a(f'buffer_load_dwordx4 {vr(t3)}, {sr(srd,4)}, 0 offen lds')
    a.label('L_nosmall')
    only(HW, 'L_nohalo')
    for T in range(2):
        for ks in range(4):
            a(f'buffer_load_dwordx4 {vr(kf(T,ks),4)}, {vr(t1+T)}, {sr(sK,4)}, 0 offen offset:{64*ks}')
    a.label('L_nohalo')
    a('s_setprio 0')
    a('s_branch L_nov1')
    a.label('L_v1')
    def vpiece(i):
        throttle()
        if i:
            a('s_add_u32 m0, m0, 0x1000')
            a(f'v_add_u32 {vr(vDV)}, 0x1000, {vr(vDV)}')
        if i < 2:
            a(f'v_add_u32 {vr(t1)}, s{sT3}, {vr(vDV)}')
            a(f'buffer_load_dwordx4 {vr(t1)}, {sr(sV,4)}, 0 offen {ldpol} lds')
        else:
            a(f'buffer_load_dwordx4 {vr(vDV)}, {sr(sV,4)}, 0 offen {ldpol} lds')
    a(f's_and_b32 s{sT0}, s{sWV}, 1')
    a(f's_lshl_b32 s{sT0}, s{sT0}, 2')
    a(f'v_add_lshl_u32 {vr(vDV)}, s{sT0}, {vr(vKGp)}, 1')
    a(f'v_xor_b32 {vr(vDV)}, {vr(vDV)}, {vr(vI)}')
    a(f'v_lshlrev_b32 {vr(vDV)}, 4, {vr(vDV)}')
    a(f'v_lshl_add_u32 {vr(vDV)}, {vr(vKGp)}, 8, {vr(vDV)}')
    a(f's_sub_u32 s{sT2}, s{sT2}, 0x2000')
    a(f'v_add_u32 {vr(vDV)}, s{sT2}, {vr(vDV)}')
    a(f's_add_u32 m0, s{sT1}, {VOFF}')
    for i in range(N1): vpiece(i)
    a.label('L_nov1')
    stamp()

    a(f's_add_u32 s{sO}, s14, s{sHO}')
    a(f's_addc_u32 s{sO+1}, s15, 0')
    a(f's_mov_b32 s{sO+2}, 0x80000')
    a(f's_mov_b32 s{sO+3}, 0x20000')
    a(f's_movk_i32 s{sTOFF}, 0x1000')
    a(f's_mov_b32 s{sZERO}, 0')
    a(f's_mov_b32 s{sCS}, 0x{CSC:08x}')
    a(f's_mov_b32 s{sCS+1}, 0x{CSC:08x}')
    a(f'v_mov_b32 {vr(vNEG)}, 0x{NEG:08x}')
    a(f'v_lshlrev_b32 {vr(t2)}, 2, {vr(vKGp)}')
    a(f'v_cmp_eq_u32 {sr(sKG0,2)}, 0, {vr(vKGp)}')
    for r in range(4):
        a(f'v_add_u32 {vr(t1)}, {r}, {vr(t2)}')
        a(f'v_cmp_ge_u32 vcc, {vr(t1)}, {vr(vI)}')
        a(f'v_cmp_le_u32 s[60:61], {vr(t1)}, {vr(vI)}')
        a('s_nop 0')
        a(f'v_cndmask_b32 {vr(BLO+r)}, {vr(vNEG)}, 0, vcc')
        a(f'v_cndmask_b32 {vr(BHI+r)}, {vr(vNEG)}, 0, s[60:61]')
    a(f's_lshl_b32 s{sT0}, s{sBK}, 13')
    a(f'v_xor_b32 {vr(t1)}, {vr(vKGp)}, {vr(vI)}')
    a(f'v_lshlrev_b32 {vr(t1)}, 4, {vr(t1)}')
    a(f'v_lshl_add_u32 {vr(t1)}, {vr(vI)}, 8, {vr(t1)}')
    a(f'v_add_u32 {vr(vAK)}, s{sT0}, {vr(t1)}')
    for ks in range(1, 4):
        a(f'v_xor_b32 {vr(vAK+ks)}, {64*ks}, {vr(vAK)}')
    a(f'v_and_b32 {vr(t1)}, 1, {vr(vI)}')
    a(f'v_lshlrev_b32 {vr(vNEG)}, 3, {vr(t1)}')
    a(f'v_lshlrev_b32 {vr(t1)}, 8, {vr(t1)}')
    a(f'v_lshl_add_u32 {vr(t1)}, {vr(vKGp)}, 4, {vr(t1)}')
    a(f'v_add_u32 {vr(vAG)}, {SOFF}, {vr(t1)}')
    a(f'v_bfe_u32 {vr(t1)}, {vr(vLANE)}, 2, 2')
    a(f'v_and_b32 {vr(t2)}, 3, {vr(vLANE)}')
    a(f'v_lshlrev_b32 {vr(t2)}, 3, {vr(t2)}')
    a(f'v_lshl_add_u32 {vr(t1)}, {vr(t1)}, 8, {vr(t2)}')
    a(f'v_add_u32 {vr(vAVG)}, {SOFF+2048}, {vr(t1)}')
    a(f'v_lshrrev_b32 {vr(t1)}, 2, {vr(vLANE)}')
    a(f'v_and_b32 {vr(vT0)}, 7, {vr(t1)}')
    a(f'v_lshl_add_u32 {vr(t2)}, {vr(vT0)}, 5, {vr(t2)}')
    a(f'v_lshl_add_u32 {vr(t2)}, {vr(t1)}, 8, {vr(t2)}')
    a(f's_add_u32 s{sT1}, s{sT0}, {VOFF}')
    a(f'v_add_u32 {vr(VA)}, s{sT1}, {vr(t2)}')
    for t in range(1, 8):
        a(f'v_xor_b32 {vr(VA+t)}, {32*t}, {vr(VA)}')
    a(f's_mul_i32 s{sT1}, s{sWV}, {32*STGP}')
    a(f's_add_u32 s{sT1}, s{sT1}, {STG}')
    a(f'v_mul_u32_u24 {vr(t1)}, {STGP}, {vr(vI)}')
    a(f'v_lshl_add_u32 {vr(t1)}, {vr(vKGp)}, 3, {vr(t1)}')
    a(f'v_add_u32 {vr(vSW)}, s{sT1}, {vr(t1)}')
    a(f'v_mul_u32_u24 {vr(t1)}, {STGP}, {vr(vKGp)}')
    a(f'v_lshl_add_u32 {vr(t1)}, {vr(vI)}, 4, {vr(t1)}')
    a(f'v_add_u32 {vr(vSR)}, s{sT1}, {vr(t1)}')
    a(f's_add_u32 s{sT0}, s{sT0}, s{sQ0B}')
    a(f'v_add_u32 {vr(vOO)}, s{sT0}, {vr(t3)}')
    a(f's_lshr_b32 s{sQB}, s{sT0}, 8')
    a(f's_cmp_eq_u32 s{sQB}, 0')
    a(f's_cselect_b32 s{sEX}, 0, -1')
    a(f's_mov_b32 s{sEX+1}, -1')
    a(f's_cmp_eq_u32 s{sQB}, {256*CC+32*(2*CW+1)}')
    a(f's_cselect_b32 s{sCMB}, 1, 0')
    a(f's_lshl_b32 s{sT0}, s{sWV}, 4')
    a(f's_add_u32 s{sT0}, s{sT0}, {PARTML}')
    a(f'v_add_u32 {vr(vNEG)}, s{sT0}, {vr(vNEG)}')

    a(f's_waitcnt vmcnt({N1}) lgkmcnt(0)')
    a(f's_cmp_lt_u32 s{sWV}, 4')
    a('s_cbranch_scc1 L_kw')
    a(f's_cmp_eq_u32 s{sWV}, {FW}')
    a('s_cbranch_scc1 L_kw')
    a('s_waitcnt vmcnt(0)')
    a.label('L_kw')
    stamp(opt.get('prek', False))
    a('s_barrier')
    stamp()
    a(f's_cmp_ge_u32 s{sWV}, 4')
    a('s_cbranch_scc1 L_nov2')
    for i in range(N1, 20): vpiece(i)
    a.label('L_nov2')
    stamp(fine)
    QG = O
    for W in (2, 3, 4, 5):
        for ks in range(4):
            a(f'ds_read_b128 {vr(kf(W,ks),4)}, {vr(vAK+ks)} offset:{4096*(W-2)}')
    for ks in range(4):
        a(f'ds_read_b128 {vr(KG+4*ks,4)}, {vr(vAG)} offset:{64*ks}')
    for t in range(8):
        a(f'ds_read_b64_tr_b16 {vr(VG+4*t+2,2)}, {vr(vAVG)} offset:{32*t}')
    a(f's_cmp_eq_u32 s{sWV}, {HW}')
    a('s_cbranch_scc1 L_k01done')
    for ks in range(4):
        a(f'v_subrev_u32 {vr(vAK+ks)}, 0x2000, {vr(vAK+ks)}')
    for W in (0, 1):
        for ks in range(4):
            a(f'ds_read_b128 {vr(kf(W,ks),4)}, {vr(vAK+ks)} offset:{4096*W}')
    a.label('L_k01done')
    def issue_qa():
        if opt.get('qprio'): a('s_setprio 3')
        for ks in range(4):
            a(f'buffer_load_dwordx4 {vr(QA+4*ks,4)}, {vr(vDQ)}, {sr(sQ,4)}, 0 offen offset:{64*ks} {qpol}')
        if opt.get('qprio'): a('s_setprio 0')

    def xred(m, t, op='v_max_f32'):
        a(f'v_mov_b32 {vr(t)}, {vr(m)}')
        a.nop(2)
        a(f'v_permlane16_swap_b32 {vr(m)}, {vr(t)}')
        a(f'{op} {vr(m)}, {vr(m)}, {vr(t)}')
        a(f'v_mov_b32 {vr(t)}, {vr(m)}')
        a.nop(2)
        a(f'v_permlane32_swap_b32 {vr(m)}, {vr(t)}')
        a(f'{op} {vr(m)}, {vr(m)}, {vr(t)}')
    def maxtree_l(vals, m, first=True):
        out = []; rest = list(vals)
        if first:
            out.append(f'v_max3_f32 {vr(m)}, {vr(rest[0])}, {vr(rest[1])}, {vr(rest[2])}'); rest = rest[3:]
        while len(rest) >= 2:
            out.append(f'v_max3_f32 {vr(m)}, {vr(m)}, {vr(rest[0])}, {vr(rest[1])}'); rest = rest[2:]
        if rest:
            out.append(f'v_max_f32 {vr(m)}, {vr(m)}, {vr(rest[0])}')
        return out
    def fma_l(vals, mc):
        if pk:
            return [f'v_pk_fma_f32 {vr(vals[n],2)}, {vr(vals[n],2)}, {sr(sCS,2)}, {vr(mc,2)} op_sel_hi:[1,1,0] neg_lo:[0,0,1] neg_hi:[0,0,1]' for n in range(0, len(vals), 2)]
        return [f'v_fma_f32 {vr(v)}, {vr(v)}, s{sCS}, -{vr(mc)}' for v in vals]
    exp_l = lambda vals: [f'v_exp_f32 {vr(v)}, {vr(v)}' for v in vals]
    cvt_l = lambda dst, src, n: [f'v_cvt_pk_bf16_f32 {vr(dst+k)}, {vr(src+2*k)}, {vr(src+2*k+1)}' for k in range(n)]

    def vread(dst, t, W):
        return f'ds_read_b64_tr_b16 {vr(dst,2)}, {vr(VA+t)} offset:{4096*W}'
    a(f's_cmp_lt_u32 s{sWV}, 4')
    a('s_cbranch_scc1 L_gk')
    only(FW, 'L_notag')
    a('s_setprio 3')
    a(f's_lshl_b32 s{sT0}, s{sH}, 3')
    a(f'v_mov_b32 {vr(S+4)}, s{sT0}')
    a(f'v_mov_b32 {vr(S+5)}, s{sN}')
    a(f'v_mov_b32 {vr(S+6)}, {LCNT}')
    a(f'global_load_dword {vr(S+7)}, {vr(S+4)}, s[16:17]')
    a('s_setprio 0')
    issue_qa()
    a('s_waitcnt vmcnt(4)')
    if opt.get('forcefb'): a(f'v_mov_b32 {vr(S+7)}, 0')
    a(f's_cmp_eq_u32 s{sC}, {CC}')
    a('s_cselect_b64 vcc, -1, 0')
    a(f'v_cndmask_b32 {vr(S+7)}, {vr(S+7)}, {vr(S+5)}, vcc')
    a('s_mov_b64 exec, 1')
    a(f'ds_write_b32 {vr(S+6)}, {vr(S+7)} offset:4')
    a('s_mov_b64 exec, -1')
    a('s_branch L_tagdone')
    a.label('L_notag')
    issue_qa()
    a.label('L_tagdone')
    a('s_waitcnt lgkmcnt(0)')
    a(f'v_add_u32 {vr(vDQk)}, 0x1000, {vr(vDQ)}')
    stamp(fine)
    a('s_barrier')
    for t in range(8):
        a(vread(X[t+1], t, 0)); a(vread(X[t+1]+2, t, 1))
    a('s_branch L_gdone')
    a.label('L_gk')
    for ks in range(4):
        a(f'ds_read_b128 {vr(QG+4*ks,4)}, {vr(vAG)} offset:{1024+64*ks}')
    issue_qa()
    a('s_waitcnt lgkmcnt(0)')
    for T in range(4):
        for ks in range(4):
            a(mfma(S+4*T, kf(T,ks), QG+4*ks, '0' if ks == 0 else S+4*T))
    a(f'v_add_u32 {vr(vDQk)}, 0x1000, {vr(vDQ)}')
    a.nop(7)
    for l in maxtree_l([S+x for x in range(16)], vM): a(l)
    xred(vM, vT)
    a(f'v_mul_f32 {vr(vM)}, s{sCS}, {vr(vM)}')
    for l in fma_l([S+x for x in range(16)], vM): a(l)
    for l in exp_l([S+x for x in range(16)]): a(l)
    a.nop(1)
    a(f'v_add_f32 {vr(vT)}, {vr(S)}, {vr(S+1)}')
    for x in range(2, 16):
        a(f'v_add_f32 {vr(vT)}, {vr(vT)}, {vr(S+x)}')
    for l in cvt_l(S, S, 8): a(l)
    xred(vT, vT0, 'v_add_f32')
    a(f'ds_write_b64 {vr(vNEG)}, {vr(vM,2)}')
    a(f'v_mbcnt_lo_u32_b32 {vr(vT0)}, -1, 0')
    a(f's_lshl_b32 s{sT0}, s{sWV}, 10')
    a(f'v_lshl_add_u32 {vr(vT0)}, {vr(vT0)}, 3, s{sT0}')
    if stamps and fine:
        nst[0] -= 1
        stamp()
    a('s_waitcnt vmcnt(4) lgkmcnt(0)')
    a('s_barrier')
    gb = [QB + 4*n for n in range(4)] + [S + 8 + 4*n for n in range(4)]
    for t in range(8):
        a(vread(gb[t], t, 2)); a(vread(gb[t]+2, t, 3))
    for t in range(8):
        a('s_waitcnt lgkmcnt(14)')
        a(mfma(gb[t], S+4, gb[t], '0'))
        a(vread(X[t+1], t, 0)); a(vread(X[t+1]+2, t, 1))
    for t in range(8):
        a(f's_waitcnt lgkmcnt({14-2*t})')
        a(mfma(gb[t], S, X[t+1], gb[t]))
    a('s_mov_b64 exec, 1')
    a(f'v_mov_b32 {vr(S)}, {LCNT}')
    a(f'v_mov_b32 {vr(S+1)}, 1')
    a('s_mov_b64 exec, 0xffff')
    for t in range(8):
        a(f'ds_write_b64 {vr(vT0)}, {vr(gb[t],2)} offset:{PART+128*t}')
    a('s_mov_b64 exec, 1')
    a(f'ds_add_u32 {vr(S)}, {vr(S+1)}')
    a('s_mov_b64 exec, -1')
    a.label('L_gdone')
    stamp()

    emit = lambda ls: [a(l) for l in ls]
    def combine(og, mg, tm):
        NP = len(og)
        emit(maxtree_l([mg[n] for n in range(NP)], tm))
        for n in range(NP):
            a(f'v_sub_f32 {vr(mg[n])}, {vr(mg[n])}, {vr(tm)}')
        for n in range(NP):
            a(f'v_exp_f32 {vr(mg[n])}, {vr(mg[n])}')
        a.nop(1)
        for e in range(4):
            a(f'v_mul_f32 {vr(og[0][e])}, {vr(og[0][e])}, {vr(mg[0])}')
        a(f'v_mul_f32 {vr(mg[0]+1)}, {vr(mg[0]+1)}, {vr(mg[0])}')
        for n in range(1, NP):
            for e in range(4):
                a(f'v_fmac_f32 {vr(og[0][e])}, {vr(og[n][e])}, {vr(mg[n])}')
            a(f'v_fmac_f32 {vr(mg[0]+1)}, {vr(mg[n]+1)}, {vr(mg[n])}')

    def issue_qb():
        for ks in range(4):
            a(f'buffer_load_dwordx4 {vr(QB+4*ks,4)}, {vr(vDQk)}, {sr(sQ,4)}, 0 offen offset:{64*ks} {qpol}')
        a(f'v_mov_b32 {vr(vDQk)}, 0')
    issue_qb()
    if opt.get('otouch'):
        only(FW, 'L_nootouch')
        a(f's_mov_b32 m0, {PARTML+256}')
        a('s_mov_b64 exec, 1')
        a(f'buffer_load_dword {vr(vOO)}, {sr(sO,4)}, 0 offen lds')
        a(f'buffer_load_dword {vr(vOO)}, {sr(sO,4)}, 0 offen offset:512 lds')
        a('s_mov_b64 exec, -1')
        a('s_waitcnt vmcnt(6)')
        a('s_branch L_tileA')
        a.label('L_nootouch')
    a(f's_cmp_eq_u32 s{sWV}, {RW}')
    a('s_cbranch_scc1 L_reduce')
    a(f's_cmp_eq_u32 s{sCMB}, 0')
    a('s_cbranch_scc1 L_noflag')
    a(f'v_mov_b32 {vr(vT0)}, {LNON}')
    a(f'ds_read_b32 {vr(vT0)}, {vr(vT0)}')
    a('s_waitcnt lgkmcnt(0)')
    a(f'v_readfirstlane_b32 s{sN}, {vr(vT0)}')
    a.label('L_noflag')
    a('s_waitcnt vmcnt(4)')
    a('s_branch L_tileA')
    a.label('L_reduce')
    R0 = S
    a(f'v_mbcnt_lo_u32_b32 {vr(R0)}, -1, 0')
    a(f'v_mbcnt_hi_u32_b32 {vr(R0)}, -1, {vr(R0)}')
    a(f'v_lshrrev_b32 {vr(R0+1)}, 5, {vr(R0)}')
    a(f'v_and_b32 {vr(R0+3)}, 31, {vr(R0)}')
    a(f'v_lshlrev_b32 {vr(R0+3)}, 5, {vr(R0+3)}')
    a(f'v_lshl_add_u32 {vr(R0+3)}, {vr(R0+1)}, 2, {vr(R0+3)}')
    a(f'v_lshlrev_b32 {vr(R0+1)}, 3, {vr(R0+1)}')
    a(f'v_add_u32 {vr(R0+1)}, {PARTML}, {vr(R0+1)}')
    a(f'v_lshlrev_b32 {vr(R0)}, 4, {vr(R0)}')
    a(f'v_mov_b32 {vr(R0+2)}, {LCNT}')
    a(f's_mov_b32 s{sCNT}, 0')
    a.label('L_lspin')
    a(f'ds_read_b64 {vr(S+4,2)}, {vr(R0+2)}')
    a(f's_add_u32 s{sCNT}, s{sCNT}, 1')
    a('s_waitcnt lgkmcnt(0)')
    a(f'v_readfirstlane_b32 s{sT0}, {vr(S+4)}')
    a(f'v_readfirstlane_b32 s{sN}, {vr(S+5)}')
    a(f's_cmp_ge_u32 s{sCNT}, 0x100000')
    a('s_cbranch_scc1 L_lok')
    a(f's_cmp_lt_u32 s{sT0}, 4')
    a('s_cbranch_scc1 L_lspin')
    a.label('L_lok')
    mg = [S+4, S+6, O, O+2]
    G0 = S + 8
    og = [[G0+4*n+e for e in range(4)] for n in range(4)]
    for n in range(4):
        a(f'ds_read_b64 {vr(mg[n],2)}, {vr(R0+1)} offset:{16*n}')
    for n in range(4):
        if n: a(f'v_add_u32 {vr(R0+3)}, 1024, {vr(R0+3)}')
        a(f'ds_read2_b32 {vr(G0+4*n,2)}, {vr(R0+3)} offset0:0 offset1:2')
        a(f'ds_read2_b32 {vr(G0+4*n+2,2)}, {vr(R0+3)} offset0:4 offset1:6')
    a('s_waitcnt lgkmcnt(0)')
    combine(og, mg, R0+1)
    a(f'v_mov_b32 {vr(G0+4)}, {vr(G0+3)}')
    a(f'v_mov_b32 {vr(G0+5)}, {vr(R0+1)}')
    a(f'v_mov_b32 {vr(G0+6)}, {vr(mg[0]+1)}')
    a(f'v_mov_b32 {vr(G0+7)}, s{sN}')
    a(f'v_mov_b32 {vr(G0+3)}, s{sN}')
    a(f'buffer_store_dwordx4 {vr(G0+4,4)}, {vr(R0)}, {sr(sW,4)}, s42 offen offset:1024 sc0 sc1')
    a(f'buffer_store_dwordx4 {vr(G0,4)}, {vr(R0)}, {sr(sW,4)}, s42 offen sc0 sc1')
    a(f's_cmp_lg_u32 s{sN}, 0')
    a('s_cbranch_scc1 L_tagged')
    a('s_waitcnt vmcnt(0)')
    a(f's_lshl_b32 s{sT0}, s{sH}, 3')
    a(f's_lshl_b32 s{sT1}, 1, s{sC}')
    a(f'v_mov_b32 {vr(R0)}, s{sT0}')
    a(f'v_mov_b32 {vr(R0+1)}, s{sT1}')
    a('s_mov_b64 exec, 1')
    a(f'global_atomic_or {vr(R0)}, {vr(R0+1)}, s[16:17] offset:4 sc1')
    a('s_mov_b64 exec, -1')
    a.label('L_tagged')
    a('s_waitcnt vmcnt(6)')
    a.label('L_tileA')
    def yprio(tag):
        if yp == tag:
            a(f's_cmp_lt_u32 s{sWV}, 4')
            a(f's_cbranch_scc1 L_yp{tag}')
            a('s_setprio 1')
            a.label(f'L_yp{tag}')
    yprio('a')
    stamp()

    def inter(ms, vs, per=2):
        vs = list(vs)
        for m in ms:
            a(m)
            for _ in range(per):
                if vs: a(vs.pop(0))
        for v in vs: a(v)

    HB = kf(2, 0)
    def hand_loads():
        a(f'v_mbcnt_lo_u32_b32 {vr(KG)}, -1, 0')
        a(f'v_mbcnt_hi_u32_b32 {vr(KG)}, -1, {vr(KG)}')
        a(f'v_lshlrev_b32 {vr(KG)}, 4, {vr(KG)}')
        for n in range(8):
            a(f's_movk_i32 s{sT0}, {2048*n}')
            a(f'buffer_load_dwordx4 {vr(HB+8*n,4)}, {vr(KG)}, {sr(sW,4)}, s{sT0} offen sc0 sc1')
            a(f'buffer_load_dwordx4 {vr(HB+8*n+4,4)}, {vr(KG)}, {sr(sW,4)}, s{sT0} offen offset:1024 sc0 sc1')

    buf = [kf(0, n) for n in range(4)] + [QA + 4*n for n in range(4)]
    SLOTW = {0: [0, 1, 2, 3, 4], 1: [4, 5, 2, 3, 1]}
    def qk(tau, sl):
        Q = QA if tau == 0 else QB
        if sl == 'G':
            return [mfma(S+20, KG+4*ks, Q+4*ks, '0' if ks == 0 else S+20) for ks in range(4)]
        W = SLOTW[tau][sl]
        c0 = BLO if W == tau else BHI if W == tau + 4 else '0'
        return [mfma(S+4*sl, kf(W,ks), Q+4*ks, c0 if ks == 0 else S+4*sl) for ks in range(4)]
    def edge_test(tau, lab):
        a(f's_sub_u32 s{sT0}, s{sQB}, {48 - 16*tau}')
        a(f's_cmp_lt_u32 s{sT0}, 1968')
        a(f's_cbranch_scc1 {lab}')
    def edge_mask(tau, tr):
        a(f'v_mbcnt_lo_u32_b32 {vr(tr)}, -1, 0')
        a(f'v_mbcnt_hi_u32_b32 {vr(tr)}, -1, {vr(tr)}')
        a(f'v_lshrrev_b32 {vr(tr)}, 4, {vr(tr)}')
        a(f's_sub_u32 s{sT0}, s{sQB}, 34')
        a(f's_movk_i32 s{sT1}, 2046')
        a(f'v_lshl_add_u32 {vr(tr)}, {vr(tr)}, 2, s{sT0}')
        a(f'v_mov_b32 {vr(vM)}, 0x{NEG:08x}')
        a('s_nop 3')
        for sl in range(5):
            for r in range(4):
                a(f'v_add_u32 {vr(vT)}, {16*SLOTW[tau][sl]+r}, {vr(tr)}')
                a(f'v_cmp_gt_u32 vcc, s{sT1}, {vr(vT)}')
                a('s_nop 1')
                a(f'v_cndmask_b32 {vr(S+4*sl+r)}, {vr(vM)}, {vr(S+4*sl+r)}, vcc')
        for l in maxtree_l([S+x for x in range(22)], vM): a(l)
    def epi(t, tau=0):
        l = [f'v_mul_f32 {vr(O+4*t+e)}, {vr(O+4*t+e)}, {vr(vT0)}' for e in range(4)]
        l += [f'v_cvt_pk_bf16_f32 {vr(O+4*t)}, {vr(O+4*t)}, {vr(O+4*t+1)}',
              f'v_cvt_pk_bf16_f32 {vr(O+4*t+1)}, {vr(O+4*t+2)}, {vr(O+4*t+3)}',
              f'ds_write_b64 {vr(vSW)}, {vr(O+4*t,2)} offset:{32*t + 16*STGP*tau}']
        return l
    def stage_reads(tau=0, R=O):
        return [f'ds_read_b128 {vr(R+4*j,4)}, {vr(vSR)} offset:{4*STGP*j + 16*STGP*tau}' for j in range(4)]
    def stores(tau, R=O, extra=0):
        for j in range(4):
            a(f's_waitcnt lgkmcnt({3-j+extra})')
            if tau == 0 and j == 0: a(f's_mov_b64 exec, {sr(sEX,2)}')
            a(f'buffer_store_dwordx4 {vr(R+4*j,4)}, {vr(vOO)}, {sr(sO,4)}, s{sTOFF if tau else sZERO} offen offset:{1024*j} {stpol}')
            if tau == 0 and j == 0: a('s_mov_b64 exec, -1')
    RA = kf(1, 0)
    def late_a():
        for l in stage_reads(0, RA): a(l)
        stores(0, RA)
    def softmax_pv(tau):
        m = vM
        xred(m, vT)
        a(f'v_mul_f32 {vr(m)}, s{sCS}, {vr(m)}')
        set0 = [S+x for x in range(8)]; set1 = [S+8+x for x in range(8)]; set2 = [S+16+x for x in range(6)]
        for l in fma_l(set0, m): a(l)
        f2 = fma_l(set2, m); f1 = fma_l(set1, m)
        for l in exp_l(set0): a(l)
        a(f2[0])
        for l in cvt_l(S, S, 4): a(l)
        a(f2[1])
        a('s_waitcnt lgkmcnt(0)' if tau == 1 else 's_waitcnt lgkmcnt(8)')
        if tau == 1 and apos == 1: late_a()
        ONES, LACC = S+4, S+20
        v2 = f2[2:] + exp_l(set2) + [f'v_mov_b32 {vr(ONES+n)}, 0x3f803f80' for n in range(4)] + cvt_l(S+16, S+16, 3) \
             + [f'v_mov_b32 {vr(S+19)}, 0', f'v_cndmask_b32 {vr(S+18)}, 0, {vr(S+18)}, {sr(sKG0,2)}']
        inter([mfma(X[t], X[t+1], S, '0') for t in range(8)], v2 + f1[:2])
        v1 = f1[2:] + exp_l(set1) + [f'v_mov_b32 {vr(vT0)}, 0'] + cvt_l(S+8, S+8, 4)
        inter([mfma(O+4*t, VG+4*t, S+16, O+4*t) for t in range(8)], v1)
        a(mfma(LACC, ONES, S, '0'))
        a(mfma(LACC, ONES, S+16, LACC))
        a(mfma(LACC, ONES, S+8, LACC))
        if tau == 0:
            a('s_waitcnt lgkmcnt(0)')
        for t in range(8):
            a(mfma(O+4*t, buf[t], S+8, O+4*t))
            if tau == 0: a(vread(VG+4*t, t, 1))
        a(f'v_rcp_f32 {vr(vT0)}, {vr(LACC)}')

    late = []
    for t in range(8):
        late += [vread(buf[t], t, 2), vread(buf[t]+2, t, 3)]
    vgr = [vread(VG+4*t, t, 4) for t in range(8)]
    edge_test(0, 'L_fastA')
    for l in vgr: a(l)
    for sl in ('G', 0, 1, 2, 3, 4):
        for l in qk(0, sl): a(l)
    for l in late: a(l)
    edge_mask(0, vT0)
    a('s_branch L_joinA')
    a.label('L_fastA')
    m = vM
    inter(qk(0, 0) + qk(0, 'G'), vgr, per=1)
    inter(qk(0, 1) + qk(0, 2), late[:8], per=1)
    inter(qk(0, 3), maxtree_l([S+20, S+21, S+0], m) + maxtree_l([S+1, S+2, S+3, S+4, S+5, S+6], m, False), per=1)
    inter(qk(0, 4), maxtree_l([S+7, S+8, S+9, S+10], m, False), per=1)
    for l in late[8:11]: a(l)
    for l in maxtree_l([S+11, S+12], m, False): a(l)
    for l in late[11:13]: a(l)
    for l in maxtree_l([S+13, S+14, S+15], m, False): a(l)
    for l in late[13:]: a(l)
    for l in maxtree_l([S+16, S+17, S+18, S+19], m, False): a(l)
    a.label('L_joinA')
    yprio('s')
    stamp(fine)
    softmax_pv(0)
    stamp(fine)
    ep = []
    for t in range(8): ep += epi(t)
    if apos == 0: ep += stage_reads()
    xb = []
    for t in range(8): xb += [vread(X[t+1], t, 4), vread(X[t+1]+2, t, 5)]
    def qb_wait(n):
        a(f's_waitcnt vmcnt({n+2})')
        if opt.get('otouch'):
            a(f's_and_b32 s{sT0}, s{sWV}, 3')
            a(f's_cmp_eq_u32 s{sT0}, 3')
        else:
            a(f's_cmp_eq_u32 s{sWV}, {RW}')
        a('s_cbranch_scc1 L_qbw')
        a(f's_waitcnt vmcnt({n})')
        a.label('L_qbw')
    if merge == 'hyb':
        a('s_nop 0')
        for l in ep: a(l)
        qb_wait(0)
        stamp()
        spos = int(opt.get('spos', 0))
        edge_test(1, 'L_fastB')
        stores(0)
        for sl in ('G', 0, 1, 2, 3, 4):
            for l in qk(1, sl): a(l)
        for l in xb: a(l)
        edge_mask(1, vT0)
        a('s_branch L_joinB')
        a.label('L_fastB')
        if spos == 0:
            stores(0)
            inter(qk(1, 'G') + qk(1, 0) + qk(1, 1) + qk(1, 2), xb, per=1)
        elif spos == 1:
            for l in qk(1, 'G') + qk(1, 0): a(l)
            stores(0)
            inter(qk(1, 1) + qk(1, 2), xb, per=2)
        else:
            for l in qk(1, 'G') + qk(1, 0) + qk(1, 1) + qk(1, 2): a(l)
        inter(qk(1, 3), maxtree_l([S+20, S+21, S+0], m) + maxtree_l([S+1, S+2, S+3, S+4, S+5, S+6], m, False), per=1)
        inter(qk(1, 4), maxtree_l([S+7, S+8], m, False), per=1)
        a.nop(1)
        for l in maxtree_l([S+9, S+10, S+11, S+12], m, False): a(l)
        a.nop(1)
        for l in maxtree_l([S+13, S+14, S+15], m, False): a(l)
        if spos == 2:
            stores(0)
            for l in xb: a(l)
        else:
            a.nop(3)
        for l in maxtree_l([S+16, S+17, S+18, S+19], m, False): a(l)
    elif not merge:
        a('s_nop 0')
        for l in ep: a(l)
        stores(0)
        for l in xb: a(l)
        qb_wait(4)
        stamp()
        edge_test(1, 'L_fastB')
        for sl in ('G', 0, 1, 2, 3, 4):
            for l in qk(1, sl): a(l)
        edge_mask(1, vT0)
        a('s_branch L_joinB')
        a.label('L_fastB')
        for sl in ('G', 0, 1, 2):
            for l in qk(1, sl): a(l)
        inter(qk(1, 3), maxtree_l([S+20, S+21, S+0], m) + maxtree_l([S+1, S+2], m, False), per=1)
        inter(qk(1, 4), maxtree_l([S+3, S+4, S+5, S+6, S+7, S+8], m, False), per=1)
        a.nop(1)
        for l in maxtree_l([S+9, S+10, S+11, S+12], m, False): a(l)
        a.nop(1)
        for l in maxtree_l([S+13, S+14, S+15], m, False): a(l)
        a.nop(2)
        for l in maxtree_l([S+16, S+17, S+18, S+19], m, False): a(l)
    else:
        qb_wait(0)
        yprio('m')
        stamp()
        edge_test(1, 'L_fastB')
        for l in ep: a(l)
        if apos == 0: stores(0)
        for sl in (0, 1, 2, 3, 4, 'G'):
            for l in qk(1, sl): a(l)
        for l in xb: a(l)
        edge_mask(1, vT0)
        a('s_branch L_joinB')
        a.label('L_fastB')
        ms = []
        for sl in (0, 1, 2, 3, 4, 'G'): ms += qk(1, sl)
        inter(ms, ep, per=3)
        for l in maxtree_l([S+x for x in range(15)], vT0): a(l)
        if apos == 0: stores(0)
        for l in xb: a(l)
        a(f'v_max3_f32 {vr(vM)}, {vr(vT0)}, {vr(S+15)}, {vr(S+16)}')
        for l in maxtree_l([S+17, S+18, S+19, S+20, S+21], vM, False): a(l)
    a.label('L_joinB')
    yprio('b')
    stamp()
    a(f's_cmp_eq_u32 s{sCMB}, 0')
    a('s_cbranch_scc1 L_nohand')
    hand_loads()
    a.label('L_nohand')
    softmax_pv(1)
    stamp(fine)
    if apos == 2:
        late_a()
    a('s_nop 0')
    if apos == 3:
        for l in stage_reads(0, RA): a(l)
    for t in range(8):
        for l in epi(t, 1): a(l)
    for l in stage_reads(1): a(l)
    if apos == 3:
        stores(0, RA, extra=4+8) if False else None
        for j in range(4):
            if j == 0: a(f's_mov_b64 exec, {sr(sEX,2)}')
            if j == 0: a('s_waitcnt lgkmcnt(4)')
            a(f'buffer_store_dwordx4 {vr(RA+4*j,4)}, {vr(vOO)}, {sr(sO,4)}, s{sZERO} offen offset:{1024*j} {stpol}')
            if j == 0: a('s_mov_b64 exec, -1')
    stores(1)
    stamp()

    a(f's_cmp_eq_u32 s{sCMB}, 0')
    a('s_cbranch_scc1 L_fin')
    a(f's_waitcnt vmcnt({4 if apos == 0 else 8})')
    a(f's_mov_b32 s{sCNT}, 0')
    a(f's_mov_b32 s{sT2}, 0')
    a.label('L_chk')
    a(f's_mov_b32 s{sT3}, s{sT2}')
    for n in range(8):
        a(f'v_cmp_eq_u32 vcc, s{sN}, {vr(HB+8*n+3)}')
        a(f'v_cmp_eq_u32 s[60:61], s{sN}, {vr(HB+8*n+7)}')
        a('s_nop 0')
        a('s_and_b64 vcc, vcc, s[60:61]')
        a('s_cmp_eq_u64 vcc, exec')
        a(f's_cselect_b32 s{sT0}, {1 << n}, 0')
        a(f's_or_b32 s{sT3}, s{sT3}, s{sT0}')
    a(f's_add_u32 s{sCNT}, s{sCNT}, 1')
    a(f's_cmp_eq_u32 s{sT3}, 0xff')
    a('s_cbranch_scc1 L_ready')
    a(f's_cmp_ge_u32 s{sCNT}, 0x40000')
    a('s_cbranch_scc1 L_ready')
    a(f's_lshl_b32 s{sT0}, s{sH}, 3')
    a(f'v_mov_b32 {vr(KG+1)}, s{sT0}')
    a(f'global_load_dword {vr(KG+2)}, {vr(KG+1)}, s[16:17] offset:4 sc0 sc1')
    a('s_waitcnt vmcnt(0)')
    a(f'v_readfirstlane_b32 s{sT2}, {vr(KG+2)}')
    hand_loads()
    a('s_waitcnt vmcnt(0)')
    a('s_branch L_chk')
    a.label('L_ready')
    hog = [[HB+8*n, HB+8*n+1, HB+8*n+2, HB+8*n+4] for n in range(8)]
    hmg = [HB+8*n+5 for n in range(8)]
    combine(hog, hmg, X8)
    a(f'v_rcp_f32 {vr(X8)}, {vr(hmg[0]+1)}')
    a(f'v_lshrrev_b32 {vr(KG)}, 1, {vr(KG)}')
    for e in range(4):
        a(f'v_mul_f32 {vr(hog[0][e])}, {vr(hog[0][e])}, {vr(X8)}')
    a(f'v_cvt_pk_bf16_f32 {vr(X8+2)}, {vr(hog[0][0])}, {vr(hog[0][1])}')
    a(f'v_cvt_pk_bf16_f32 {vr(X8+3)}, {vr(hog[0][2])}, {vr(hog[0][3])}')
    a(f'buffer_store_dwordx2 {vr(X8+2,2)}, {vr(KG)}, {sr(sO,4)}, 0 offen {stpol}')
    a.label('L_fin')
    if stamps:
        stamp()
        a('s_waitcnt vmcnt(0)')
        stamp()
        if opt.get('clk'):
            a('s_memtime s[98:99]')
            a('s_waitcnt lgkmcnt(0)')
            a('s_sub_u32 s98, s98, s96')
            a(f's_add_u32 s{64+2*nst[0]}, s98, s64')
            nst[0] += 1
        a(f's_lshl_b32 s{sT0}, s2, 3')
        a(f's_add_u32 s{sT0}, s{sT0}, s{sWV}')
        a(f's_lshl_b32 s{sT0}, s{sT0}, 6')
        a(f's_add_u32 s{sT0}, s{sT0}, 0x100000')
        a(f's_add_u32 s{sW}, s18, s{sT0}')
        a(f's_addc_u32 s{sW+1}, s19, 0')
        a(f'v_mov_b32 v1, 0')
        a('s_mov_b64 exec, 1')
        for n in range(min(16, nst[0])):
            a(f'v_mov_b32 v2, s{64+2*n}')
            a(f'buffer_store_dword v2, v1, {sr(sW,4)}, 0 offen offset:{4*n}')
        if 'leak' in opt:
            k = int(opt['leak'])
            a(f's_sub_u32 s{sT0}, s{64+2*k}, s64')
            a(f's_lshl_b32 s{sT0}, s{sT0}, 2')
            if opt.get('leakskew'):
                a.label('L_pre')
                a('s_memrealtime s[100:101]')
                a('s_waitcnt lgkmcnt(0)')
                a(f's_sub_u32 s{sT1}, s100, s64')
                a(f's_cmp_lt_u32 s{sT1}, 3000')
                a('s_cbranch_scc1 L_pre')
                a('s_mov_b64 exec, -1')
                a('v_mbcnt_lo_u32_b32 v3, -1, 0')
                a('v_and_b32 v3, 31, v3')
                a('v_lshlrev_b32 v3, 3, v3')
                a('global_load_dword v4, v3, s[16:17] sc0 sc1')
                a('s_waitcnt vmcnt(0)')
                a('v_readlane_b32 s20, v4, 0')
                a('s_mov_b32 s21, 0'); a('s_mov_b32 s22, 0')
                for n in range(1, 32):
                    a(f'v_readlane_b32 s23, v4, {n}')
                    a('s_nop 0')
                    a('s_sub_i32 s23, s23, s20')
                    a('s_min_i32 s21, s21, s23')
                    a('s_max_i32 s22, s22, s23')
                a(f's_sub_u32 s{sT0}, s22, s21')
                a(f's_min_u32 s{sT0}, s{sT0}, 2000')
                a(f's_lshl_b32 s{sT0}, s{sT0}, 2')
            if opt.get('leakxcc'):
                a('s_getreg_b32 s61, hwreg(HW_REG_XCC_ID, 0, 4)')
                a(f's_bfe_u32 s60, s{sN}, 0x40001')
                a('s_cmp_lg_u32 s60, s61')
                a(f's_cselect_b32 s{sT0}, 2000, 0')
            if opt.get('leakcnt'):
                a(f's_mul_i32 s{sT0}, s{sCNT}, 500')
                a(f's_mul_i32 s{sT0}, s{sT0}, s{sCMB}')
            if 'leakw' in opt:
                a(f's_lshr_b32 s{sT1}, {opt["leakw"]}, s{sWV}')
                a(f's_bitcmp1_b32 s{sT1}, 0')
                a(f's_cselect_b32 s{sT0}, s{sT0}, 0')
            a(f"s_add_u32 s{sT0}, s{sT0}, {opt.get('spin', 5000)}")
            a.label('L_spin')
            a('s_memrealtime s[100:101]')
            a('s_waitcnt lgkmcnt(0)')
            a(f's_sub_u32 s{sT1}, s100, s64')
            a(f's_cmp_lt_u32 s{sT1}, s{sT0}')
            a('s_cbranch_scc1 L_spin')
    a.label('L_end')
    a('s_endpgm')
    if opt.get('cpf', True):
        a('.fill 4096, 4, 0xbf800000')

    check(a.lines)
    if stamps: print('stamps', nst[0])
    head = f'''; windowed + global-token attention, B=1 H=32 S=2048 D=128 bf16 (window 32, 2 global tokens)
; @launch grid=(256,1,1) block=(512,1,1) lds=163840
.amdgcn_target "amdgcn-amd-amdhsa--gfx950"
.text
.globl {NAME}
.p2align 8
.type {NAME},@function
{NAME}:
'''
    tail = f'''.section .rodata,"a"
.p2align 6
.amdhsa_kernel {NAME}
  .amdhsa_next_free_vgpr 256
  .amdhsa_next_free_sgpr {102 if stamps else 64}
  .amdhsa_accum_offset 256
  .amdhsa_group_segment_fixed_size 0
  .amdhsa_kernarg_size 64
  .amdhsa_user_sgpr_count 2
  .amdhsa_user_sgpr_kernarg_segment_ptr 1
  .amdhsa_system_sgpr_workgroup_id_x 1
.end_amdhsa_kernel
'''
    return head + a.text() + tail

if __name__ == '__main__':
    out = sys.argv[1]
    opt = {}
    for kv in sys.argv[2:]:
        k, v = kv.split('=', 1)
        opt[k] = {'True': True, 'False': False}.get(v, v.replace('+', ' '))
    open(out, 'w').write(gen(opt))
```

```python
import sys, math, struct
from asmlib import *

NAME = 'standalone__global_local_windowed_global_tokens__prompt_kernel'
def f2u(x): return struct.unpack('<I', struct.pack('<f', x))[0]

def gen(opt):
    a = Asm()
    NEG = 0xFF000000
    CSC = f2u(128 ** -0.5 * math.log2(math.e))
    KOFF, VOFF, SOFF = 0, 73728, 155648
    apos = int(opt.get('apos', 0))
    PART, STG = 0, 4096
    PARTML, LCNT, LNON = SOFF + 3072, SOFF + 3072 + 128, SOFF + 3072 + 132
    STGP = 272
    ldpol = opt.get('ldpol', '')
    qpol = opt.get('qpol', '')
    stpol = opt.get('stpol', 'sc0 sc1 nt')
    pk = opt.get('pk', True)
    N1 = int(opt.get('n1', 10))
    yp = opt.get('yp', '')
    RW = int(opt.get('rw', 3))
    FW = 7
    SW = 5
    CW, CC = int(opt.get('cw', 1)), 3
    merge = opt.get('merge', True)
    sQ, sK, sV, sO, sW = 20, 24, 28, 32, 36
    sWV, sH, sC, sHO, sQ0B = 40, 43, 44, 45, 46
    sT0, sT1, sT2, sT3 = 47, 48, 49, 50
    sBK = 62
    HW = 4
    sCS = 52; sKG0 = 54; sQB = 51; sEX = 56; sCMB = 58; sCNT = 59; sN = 63; sTOFF = 41; sZERO = 3
    VA = 0
    vSW, vSR, vOO, vT0 = 8, 9, 10, 11
    X8 = 12
    KF = 16; KG = 112; QA, QB = 128, 144; VG = 160; O = 192; S = 224
    BLO, BHI = 248, 252
    kf = lambda W, ks: KF + 16 * W + 4 * ks
    X = [O + 4 * n for n in range(8)] + [X8]
    vLANE, vI, vKGp, vDK, vDV, vDQ, vAG, vNEG, vAK = O+16, O+17, O+18, O+19, O+20, O+21, O+22, O+23, O+24
    vAVG, t1, t2, t3 = O+28, O+29, O+30, O+31
    vDQk = VG + 7
    vFLAG = VG + 3
    vM, vT = S + 22, S + 23

    stamps = opt.get('stamps', False)
    fine = opt.get('fine', False)
    nst = [0]
    def stamp(on=True):
        if stamps and on:
            a(f's_memrealtime s[{64+2*nst[0]}:{65+2*nst[0]}]')
            if nst[0]: a('s_waitcnt lgkmcnt(0)')
            nst[0] += 1
    M16 = 'v_mfma_f32_16x16x32_bf16'
    def mfma(d, x, y, c):
        return f'{M16} {vr(d,4)}, {vr(x,4)}, {vr(y,4)}, {c if isinstance(c,str) else vr(c,4)}'
    def only(w, lab):
        a(f's_cmp_lg_u32 s{sWV}, {w}')
        a(f's_cbranch_scc1 {lab}')

    stamp()
    if opt.get('clk'): a('s_memtime s[96:97]')
    a('s_load_dwordx16 s[4:19], s[0:1], 0')
    a(f'v_readfirstlane_b32 s{sWV}, v0')
    a('s_cmp_ge_u32 s2, 256')
    a('s_cbranch_scc1 L_end')
    a(f'v_lshrrev_b32 {vr(t1)}, 4, v0')
    a(f'v_xor_b32 {vr(vDK)}, {vr(t1)}, v0')
    a(f'v_and_b32 {vr(vDK)}, 15, {vr(vDK)}')
    a(f'v_lshl_add_u32 {vr(vDK)}, {vr(t1)}, 4, {vr(vDK)}')
    a(f's_bfe_u32 s{sC}, s2, 0x30003')
    a(f's_lshl_b32 s{sQ0B}, s{sC}, 16')
    a(f'v_lshl_add_u32 {vr(vDK)}, {vr(vDK)}, 4, s{sQ0B}')
    a('s_and_b32 s41, s2, 7')
    a(f's_lshr_b32 s{sH}, s2, 6')
    a(f's_lshl2_add_u32 s{sH}, s41, s{sH}')
    a(f's_lshl_b32 s{sHO}, s{sH}, 19')
    a(f's_lshl_b32 m0, s{sWV}, 4')
    a(f's_mov_b32 s{sK+2}, 0x80000')
    a(f's_mov_b32 s{sK+3}, 0x20000')
    a(f's_movk_i32 s{sCNT}, 17')
    if opt.get('cpf', True):
        a(f's_getpc_b64 s[{sEX}:{sEX+1}]')
        a(f'v_lshlrev_b32 v1, 5, v0')
        a(f'global_load_dword {vr(X8)}, v1, s[{sEX}:{sEX+1}]')
    a(f's_cmp_ge_u32 s{sWV}, 256')
    a('s_cbranch_scc1 L_helper')
    a('s_waitcnt lgkmcnt(0)')
    stamp()
    a(f's_add_u32 s{sK}, s6, s{sHO}')
    a(f's_addc_u32 s{sK+1}, s7, 0')
    thr = int(opt.get('thr', 0)); tl = [0]
    if thr: a('s_getreg_b32 s1, hwreg(HW_REG_XCC_ID, 0, 4)')
    def throttle():
        if thr:
            a('s_bitcmp1_b32 s1, 0')
            a(f's_cbranch_scc{opt.get("thpar", 1)} L_th{tl[0]}')
            a(f's_waitcnt vmcnt({thr-1})')
            a.label(f'L_th{tl[0]}')
            tl[0] += 1
    a.label('L_kloop')
    throttle()
    a(f'buffer_load_dwordx4 {vr(vDK)}, {sr(sK,4)}, 0 offen {opt.get("kpol", ldpol)} lds')
    a('s_add_u32 m0, m0, 0x1000')
    a(f'v_add_u32 {vr(vDK)}, 0x1000, {vr(vDK)}')
    a(f's_sub_u32 s{sCNT}, s{sCNT}, 1')
    a('s_cbranch_scc0 L_kloop')
    stamp(opt.get('postk', False))
    def common():
        a(f's_lshr_b32 s{sWV}, s{sWV}, 6')
        a(f'v_and_b32 {vr(vLANE)}, 63, v0')
        a(f'v_and_b32 {vr(vI)}, 15, v0')
        a(f'v_bfe_u32 {vr(vKGp)}, v0, 4, 2')
        a(f's_lshl_b32 s{sT1}, s{sWV}, 10')
        a(f's_add_u32 s{sT2}, s{sT1}, s{sQ0B}')
        for s_ in (sV, sQ):
            a(f's_mov_b32 s{s_+2}, 0x80000')
            a(f's_mov_b32 s{s_+3}, 0x20000')
        a(f's_mov_b32 s{sW+2}, 0x4000')
        a(f's_mov_b32 s{sW+3}, 0x20000')
        a(f's_and_b32 s{sBK}, s{sWV}, 3')
        a(f's_lshl_b32 s{sBK}, s{sBK}, 1')
        a(f's_cmp_lt_u32 s{sWV}, 4')
        a(f's_addc_u32 s{sBK}, s{sBK}, 0')
        a(f's_cmp_eq_u32 s{sC}, 0')
        a(f's_cselect_b32 s{sT3}, 0x40000000, 0')
        a(f's_lshl_b32 s{sT0}, s{sBK}, 13')
        a(f's_add_u32 s{sT0}, s{sT0}, s{sQ0B}')
        a(f'v_lshlrev_b32 {vr(vDQ)}, 4, {vr(vKGp)}')
        a(f'v_lshl_add_u32 {vr(vDQ)}, {vr(vI)}, 8, {vr(vDQ)}')
        a(f'v_add_u32 {vr(vDQ)}, s{sT0}, {vr(vDQ)}')
        a(f'v_lshlrev_b32 {vr(t3)}, 4, {vr(vLANE)}')
        a(f's_lshl_b32 s41, s{sH}, 14')
        a(f's_lshl_b32 s42, s{sC}, 11')
    common()
    a(f's_mov_b32 s{sN}, 0')
    def srds():
        a(f's_add_u32 s{sV}, s8, s{sHO}')
        a(f's_addc_u32 s{sV+1}, s9, 0')
        a(f's_add_u32 s{sQ}, s4, s{sHO}')
        a(f's_addc_u32 s{sQ+1}, s5, 0')
        a(f's_add_u32 s{sW}, s18, s41')
        a(f's_addc_u32 s{sW+1}, s19, 0')
    srds()
    a('s_branch L_v1')
    a.label('L_helper')
    a('s_setprio 3')
    a('s_memrealtime s[60:61]')
    common()
    a(f's_sub_u32 s{sT0}, s{sT3}, 0x2000')
    a(f'v_add_u32 {vr(t1)}, s{sT0}, {vr(vDQ)}')
    a(f'v_add_u32 {vr(t2)}, 0x1000, {vr(t1)}')
    a(f's_mov_b32 m0, {SOFF}')
    a('s_waitcnt lgkmcnt(0)')
    if stamps:
        nst[0] -= 1
        stamp()
    a(f's_add_u32 s{sK}, s6, s{sHO}')
    a(f's_addc_u32 s{sK+1}, s7, 0')
    srds()
    if stamps and opt.get('postk'):
        nst[0] -= 1
        stamp()
    a(f's_or_b32 s{sN}, s60, 1')
    if opt.get('leakxcc'):
        a('s_getreg_b32 s61, hwreg(HW_REG_XCC_ID, 0, 4)')
        a(f's_and_b32 s{sN}, s60, 0xffffffe0')
        a(f's_lshl1_add_u32 s{sN}, s61, s{sN}')
        a(f's_or_b32 s{sN}, s{sN}, 1')
    only(FW, 'L_noclear')
    a(f's_lshl_b32 s{sT0}, s{sH}, 3')
    a(f'v_mov_b32 {vr(S+4)}, s{sT0}')
    a(f'v_mov_b32 {vr(S+5)}, s{sN}')
    a(f'v_mov_b32 {vr(S+6)}, {LCNT}')
    a(f'v_mov_b32 {vr(S+7)}, 0')
    a('s_mov_b64 exec, 1')
    a(f's_cmp_lg_u32 s{sC}, {CC}')
    a('s_cbranch_scc1 L_nopub')
    a(f'global_store_dword {vr(S+4)}, {vr(S+5)}, s[16:17] sc0 sc1')
    a.label('L_nopub')
    a(f'ds_write_b32 {vr(S+6)}, {vr(S+7)}')
    a('s_mov_b64 exec, -1')
    if opt.get('wstouch'):
        pol = {'ld': '', 'ldsc': 'sc0 sc1'}.get(opt['wstouch'])
        if pol is not None:
            a(f'buffer_load_dwordx4 {vr(S+8,4)}, {vr(t3)}, {sr(sW,4)}, s42 offen {pol}')
            a(f'buffer_load_dwordx4 {vr(S+12,4)}, {vr(t3)}, {sr(sW,4)}, s42 offen offset:1024 {pol}')
        else:
            for n in range(4): a(f'v_mov_b32 {vr(S+8+n)}, 0')
            a(f'buffer_store_dwordx4 {vr(S+8,4)}, {vr(t3)}, {sr(sW,4)}, s42 offen sc0 sc1')
            a(f'buffer_store_dwordx4 {vr(S+8,4)}, {vr(t3)}, {sr(sW,4)}, s42 offen offset:1024 sc0 sc1')
    a.label('L_noclear')
    only(SW, 'L_nosmall')
    for n, srd in enumerate((sK, sQ, sV)):
        if n:
            a(f's_mov_b32 m0, {SOFF + 1024*n}')
            a('s_nop 0')
        a(f'buffer_load_dwordx4 {vr(t3)}, {sr(srd,4)}, 0 offen lds')
    a.label('L_nosmall')
    only(HW, 'L_nohalo')
    for T in range(2):
        for ks in range(4):
            a(f'buffer_load_dwordx4 {vr(kf(T,ks),4)}, {vr(t1+T)}, {sr(sK,4)}, 0 offen offset:{64*ks}')
    a.label('L_nohalo')
    a('s_setprio 0')
    a('s_branch L_nov1')
    a.label('L_v1')
    def vpiece(i):
        throttle()
        if i:
            a('s_add_u32 m0, m0, 0x1000')
            a(f'v_add_u32 {vr(vDV)}, 0x1000, {vr(vDV)}')
        if i < 2:
            a(f'v_add_u32 {vr(t1)}, s{sT3}, {vr(vDV)}')
            a(f'buffer_load_dwordx4 {vr(t1)}, {sr(sV,4)}, 0 offen {ldpol} lds')
        else:
            a(f'buffer_load_dwordx4 {vr(vDV)}, {sr(sV,4)}, 0 offen {ldpol} lds')
    a(f's_and_b32 s{sT0}, s{sWV}, 1')
    a(f's_lshl_b32 s{sT0}, s{sT0}, 2')
    a(f'v_add_lshl_u32 {vr(vDV)}, s{sT0}, {vr(vKGp)}, 1')
    a(f'v_xor_b32 {vr(vDV)}, {vr(vDV)}, {vr(vI)}')
    a(f'v_lshlrev_b32 {vr(vDV)}, 4, {vr(vDV)}')
    a(f'v_lshl_add_u32 {vr(vDV)}, {vr(vKGp)}, 8, {vr(vDV)}')
    a(f's_sub_u32 s{sT2}, s{sT2}, 0x2000')
    a(f'v_add_u32 {vr(vDV)}, s{sT2}, {vr(vDV)}')
    a(f's_add_u32 m0, s{sT1}, {VOFF}')
    for i in range(N1): vpiece(i)
    a.label('L_nov1')
    stamp()

    a(f's_add_u32 s{sO}, s14, s{sHO}')
    a(f's_addc_u32 s{sO+1}, s15, 0')
    a(f's_mov_b32 s{sO+2}, 0x80000')
    a(f's_mov_b32 s{sO+3}, 0x20000')
    a(f's_movk_i32 s{sTOFF}, 0x1000')
    a(f's_mov_b32 s{sZERO}, 0')
    a(f's_mov_b32 s{sCS}, 0x{CSC:08x}')
    a(f's_mov_b32 s{sCS+1}, 0x{CSC:08x}')
    a(f'v_mov_b32 {vr(vNEG)}, 0x{NEG:08x}')
    a(f'v_lshlrev_b32 {vr(t2)}, 2, {vr(vKGp)}')
    a(f'v_cmp_eq_u32 {sr(sKG0,2)}, 0, {vr(vKGp)}')
    for r in range(4):
        a(f'v_add_u32 {vr(t1)}, {r}, {vr(t2)}')
        a(f'v_cmp_ge_u32 vcc, {vr(t1)}, {vr(vI)}')
        a(f'v_cmp_le_u32 s[60:61], {vr(t1)}, {vr(vI)}')
        a('s_nop 0')
        a(f'v_cndmask_b32 {vr(BLO+r)}, {vr(vNEG)}, 0, vcc')
        a(f'v_cndmask_b32 {vr(BHI+r)}, {vr(vNEG)}, 0, s[60:61]')
    a(f's_lshl_b32 s{sT0}, s{sBK}, 13')
    a(f'v_xor_b32 {vr(t1)}, {vr(vKGp)}, {vr(vI)}')
    a(f'v_lshlrev_b32 {vr(t1)}, 4, {vr(t1)}')
    a(f'v_lshl_add_u32 {vr(t1)}, {vr(vI)}, 8, {vr(t1)}')
    a(f'v_add_u32 {vr(vAK)}, s{sT0}, {vr(t1)}')
    for ks in range(1, 4):
        a(f'v_xor_b32 {vr(vAK+ks)}, {64*ks}, {vr(vAK)}')
    a(f'v_and_b32 {vr(t1)}, 1, {vr(vI)}')
    a(f'v_lshlrev_b32 {vr(vNEG)}, 3, {vr(t1)}')
    a(f'v_lshlrev_b32 {vr(t1)}, 8, {vr(t1)}')
    a(f'v_lshl_add_u32 {vr(t1)}, {vr(vKGp)}, 4, {vr(t1)}')
    a(f'v_add_u32 {vr(vAG)}, {SOFF}, {vr(t1)}')
    a(f'v_bfe_u32 {vr(t1)}, {vr(vLANE)}, 2, 2')
    a(f'v_and_b32 {vr(t2)}, 3, {vr(vLANE)}')
    a(f'v_lshlrev_b32 {vr(t2)}, 3, {vr(t2)}')
    a(f'v_lshl_add_u32 {vr(t1)}, {vr(t1)}, 8, {vr(t2)}')
    a(f'v_add_u32 {vr(vAVG)}, {SOFF+2048}, {vr(t1)}')
    a(f'v_lshrrev_b32 {vr(t1)}, 2, {vr(vLANE)}')
    a(f'v_and_b32 {vr(vT0)}, 7, {vr(t1)}')
    a(f'v_lshl_add_u32 {vr(t2)}, {vr(vT0)}, 5, {vr(t2)}')
    a(f'v_lshl_add_u32 {vr(t2)}, {vr(t1)}, 8, {vr(t2)}')
    a(f's_add_u32 s{sT1}, s{sT0}, {VOFF}')
    a(f'v_add_u32 {vr(VA)}, s{sT1}, {vr(t2)}')
    for t in range(1, 8):
        a(f'v_xor_b32 {vr(VA+t)}, {32*t}, {vr(VA)}')
    a(f's_mul_i32 s{sT1}, s{sWV}, {32*STGP}')
    a(f's_add_u32 s{sT1}, s{sT1}, {STG}')
    a(f'v_mul_u32_u24 {vr(t1)}, {STGP}, {vr(vI)}')
    a(f'v_lshl_add_u32 {vr(t1)}, {vr(vKGp)}, 3, {vr(t1)}')
    a(f'v_add_u32 {vr(vSW)}, s{sT1}, {vr(t1)}')
    a(f'v_mul_u32_u24 {vr(t1)}, {STGP}, {vr(vKGp)}')
    a(f'v_lshl_add_u32 {vr(t1)}, {vr(vI)}, 4, {vr(t1)}')
    a(f'v_add_u32 {vr(vSR)}, s{sT1}, {vr(t1)}')
    a(f's_add_u32 s{sT0}, s{sT0}, s{sQ0B}')
    a(f'v_add_u32 {vr(vOO)}, s{sT0}, {vr(t3)}')
    a(f's_lshr_b32 s{sQB}, s{sT0}, 8')
    a(f's_cmp_eq_u32 s{sQB}, 0')
    a(f's_cselect_b32 s{sEX}, 0, -1')
    a(f's_mov_b32 s{sEX+1}, -1')
    a(f's_cmp_eq_u32 s{sQB}, {256*CC+32*(2*CW+1)}')
    a(f's_cselect_b32 s{sCMB}, 1, 0')
    a(f's_lshl_b32 s{sT0}, s{sWV}, 4')
    a(f's_add_u32 s{sT0}, s{sT0}, {PARTML}')
    a(f'v_add_u32 {vr(vNEG)}, s{sT0}, {vr(vNEG)}')

    spf = [int(x) for x in opt.get('spf', '0,0').split(',')]
    spstep = int(opt.get('spstep', 128)); sptile = opt.get('sptile', 'B')
    def sp_offsets():
        o = []
        for half in ([1, 0] if sptile == 'B' else [0, 1]):
            for blk in (1, 0):
                o += [8192*blk + 4096*half + x for x in range(0, 4096, spstep)]
        return o
    spo = sp_offsets()
    def sprefetch(n):
        for _ in range(n):
            if spo: a(f's_load_dword s61, s[10:11], {spo.pop(0)}')
    if sum(spf):
        a(f's_cmp_lt_u32 s{sWV}, 4')
        a('s_cbranch_scc1 L_nosp')
        a(f's_lshl_b32 s{sT0}, s{sBK}, 13')
        a(f's_add_u32 s{sT0}, s{sT0}, s{sQ0B}')
        a(f's_add_u32 s10, s{sQ}, s{sT0}')
        a(f's_addc_u32 s11, s{sQ+1}, 0')
        sprefetch(spf[0])
        a.label('L_nosp')
    a(f's_waitcnt vmcnt({N1}) lgkmcnt(0)')
    a(f's_cmp_lt_u32 s{sWV}, 4')
    a('s_cbranch_scc1 L_kw')
    a(f's_cmp_eq_u32 s{sWV}, {FW}')
    a('s_cbranch_scc1 L_kw')
    a('s_waitcnt vmcnt(0)')
    a.label('L_kw')
    stamp(opt.get('prek', False))
    a('s_barrier')
    stamp()
    a(f's_cmp_ge_u32 s{sWV}, 4')
    a('s_cbranch_scc1 L_nov2')
    for i in range(N1, 20): vpiece(i)
    a.label('L_nov2')
    stamp(fine)
    QG = O
    for W in (2, 3, 4, 5):
        for ks in range(4):
            a(f'ds_read_b128 {vr(kf(W,ks),4)}, {vr(vAK+ks)} offset:{4096*(W-2)}')
    for ks in range(4):
        a(f'ds_read_b128 {vr(KG+4*ks,4)}, {vr(vAG)} offset:{64*ks}')
    for t in range(8):
        a(f'ds_read_b64_tr_b16 {vr(VG+4*t+2,2)}, {vr(vAVG)} offset:{32*t}')
    a(f's_cmp_eq_u32 s{sWV}, {HW}')
    a('s_cbranch_scc1 L_k01done')
    for ks in range(4):
        a(f'v_subrev_u32 {vr(vAK+ks)}, 0x2000, {vr(vAK+ks)}')
    for W in (0, 1):
        for ks in range(4):
            a(f'ds_read_b128 {vr(kf(W,ks),4)}, {vr(vAK+ks)} offset:{4096*W}')
    a.label('L_k01done')
    def issue_qa():
        if opt.get('qprio'): a('s_setprio 3')
        for ks in range(4):
            a(f'buffer_load_dwordx4 {vr(QA+4*ks,4)}, {vr(vDQ)}, {sr(sQ,4)}, 0 offen offset:{64*ks} {qpol}')
        if opt.get('qprio'): a('s_setprio 0')

    def xred(m, t, op='v_max_f32'):
        a(f'v_mov_b32 {vr(t)}, {vr(m)}')
        a.nop(2)
        a(f'v_permlane16_swap_b32 {vr(m)}, {vr(t)}')
        a(f'{op} {vr(m)}, {vr(m)}, {vr(t)}')
        a(f'v_mov_b32 {vr(t)}, {vr(m)}')
        a.nop(2)
        a(f'v_permlane32_swap_b32 {vr(m)}, {vr(t)}')
        a(f'{op} {vr(m)}, {vr(m)}, {vr(t)}')
    def maxtree_l(vals, m, first=True):
        out = []; rest = list(vals)
        if first:
            out.append(f'v_max3_f32 {vr(m)}, {vr(rest[0])}, {vr(rest[1])}, {vr(rest[2])}'); rest = rest[3:]
        while len(rest) >= 2:
            out.append(f'v_max3_f32 {vr(m)}, {vr(m)}, {vr(rest[0])}, {vr(rest[1])}'); rest = rest[2:]
        if rest:
            out.append(f'v_max_f32 {vr(m)}, {vr(m)}, {vr(rest[0])}')
        return out
    def fma_l(vals, mc):
        if pk:
            return [f'v_pk_fma_f32 {vr(vals[n],2)}, {vr(vals[n],2)}, {sr(sCS,2)}, {vr(mc,2)} op_sel_hi:[1,1,0] neg_lo:[0,0,1] neg_hi:[0,0,1]' for n in range(0, len(vals), 2)]
        return [f'v_fma_f32 {vr(v)}, {vr(v)}, s{sCS}, -{vr(mc)}' for v in vals]
    exp_l = lambda vals: [f'v_exp_f32 {vr(v)}, {vr(v)}' for v in vals]
    cvt_l = lambda dst, src, n: [f'v_cvt_pk_bf16_f32 {vr(dst+k)}, {vr(src+2*k)}, {vr(src+2*k+1)}' for k in range(n)]

    def vread(dst, t, W):
        return f'ds_read_b64_tr_b16 {vr(dst,2)}, {vr(VA+t)} offset:{4096*W}'
    a(f's_cmp_lt_u32 s{sWV}, 4')
    a('s_cbranch_scc1 L_gk')
    sprefetch(spf[1])
    only(FW, 'L_notag')
    a('s_setprio 3')
    a(f's_lshl_b32 s{sT0}, s{sH}, 3')
    a(f'v_mov_b32 {vr(S+4)}, s{sT0}')
    a(f'v_mov_b32 {vr(S+5)}, s{sN}')
    a(f'v_mov_b32 {vr(S+6)}, {LCNT}')
    a(f'global_load_dword {vr(S+7)}, {vr(S+4)}, s[16:17]')
    a('s_setprio 0')
    issue_qa()
    a('s_waitcnt vmcnt(4)')
    if opt.get('forcefb'): a(f'v_mov_b32 {vr(S+7)}, 0')
    a(f's_cmp_eq_u32 s{sC}, {CC}')
    a('s_cselect_b64 vcc, -1, 0')
    a(f'v_cndmask_b32 {vr(S+7)}, {vr(S+7)}, {vr(S+5)}, vcc')
    a('s_mov_b64 exec, 1')
    a(f'ds_write_b32 {vr(S+6)}, {vr(S+7)} offset:4')
    a('s_mov_b64 exec, -1')
    a('s_branch L_tagdone')
    a.label('L_notag')
    issue_qa()
    a.label('L_tagdone')
    a('s_waitcnt lgkmcnt(0)')
    a(f'v_add_u32 {vr(vDQk)}, 0x1000, {vr(vDQ)}')
    stamp(fine)
    a('s_barrier')
    for t in range(8):
        a(vread(X[t+1], t, 0)); a(vread(X[t+1]+2, t, 1))
    a('s_branch L_gdone')
    a.label('L_gk')
    for ks in range(4):
        a(f'ds_read_b128 {vr(QG+4*ks,4)}, {vr(vAG)} offset:{1024+64*ks}')
    issue_qa()
    a('s_waitcnt lgkmcnt(0)')
    for T in range(4):
        for ks in range(4):
            a(mfma(S+4*T, kf(T,ks), QG+4*ks, '0' if ks == 0 else S+4*T))
    a(f'v_add_u32 {vr(vDQk)}, 0x1000, {vr(vDQ)}')
    a.nop(7)
    for l in maxtree_l([S+x for x in range(16)], vM): a(l)
    xred(vM, vT)
    a(f'v_mul_f32 {vr(vM)}, s{sCS}, {vr(vM)}')
    for l in fma_l([S+x for x in range(16)], vM): a(l)
    for l in exp_l([S+x for x in range(16)]): a(l)
    a.nop(1)
    a(f'v_add_f32 {vr(vT)}, {vr(S)}, {vr(S+1)}')
    for x in range(2, 16):
        a(f'v_add_f32 {vr(vT)}, {vr(vT)}, {vr(S+x)}')
    for l in cvt_l(S, S, 8): a(l)
    xred(vT, vT0, 'v_add_f32')
    a(f'ds_write_b64 {vr(vNEG)}, {vr(vM,2)}')
    a(f'v_mbcnt_lo_u32_b32 {vr(vT0)}, -1, 0')
    a(f's_lshl_b32 s{sT0}, s{sWV}, 10')
    a(f'v_lshl_add_u32 {vr(vT0)}, {vr(vT0)}, 3, s{sT0}')
    if stamps and fine:
        nst[0] -= 1
        stamp()
    a('s_waitcnt vmcnt(4) lgkmcnt(0)')
    a('s_barrier')
    gb = [QB + 4*n for n in range(4)] + [S + 8 + 4*n for n in range(4)]
    for t in range(8):
        a(vread(gb[t], t, 2)); a(vread(gb[t]+2, t, 3))
    for t in range(8):
        a('s_waitcnt lgkmcnt(14)')
        a(mfma(gb[t], S+4, gb[t], '0'))
        a(vread(X[t+1], t, 0)); a(vread(X[t+1]+2, t, 1))
    for t in range(8):
        a(f's_waitcnt lgkmcnt({14-2*t})')
        a(mfma(gb[t], S, X[t+1], gb[t]))
    a('s_mov_b64 exec, 1')
    a(f'v_mov_b32 {vr(S)}, {LCNT}')
    a(f'v_mov_b32 {vr(S+1)}, 1')
    a('s_mov_b64 exec, 0xffff')
    for t in range(8):
        a(f'ds_write_b64 {vr(vT0)}, {vr(gb[t],2)} offset:{PART+128*t}')
    a('s_mov_b64 exec, 1')
    a(f'ds_add_u32 {vr(S)}, {vr(S+1)}')
    a('s_mov_b64 exec, -1')
    a.label('L_gdone')
    stamp()

    emit = lambda ls: [a(l) for l in ls]
    def combine(og, mg, tm):
        NP = len(og)
        emit(maxtree_l([mg[n] for n in range(NP)], tm))
        for n in range(NP):
            a(f'v_sub_f32 {vr(mg[n])}, {vr(mg[n])}, {vr(tm)}')
        for n in range(NP):
            a(f'v_exp_f32 {vr(mg[n])}, {vr(mg[n])}')
        a.nop(1)
        for e in range(4):
            a(f'v_mul_f32 {vr(og[0][e])}, {vr(og[0][e])}, {vr(mg[0])}')
        a(f'v_mul_f32 {vr(mg[0]+1)}, {vr(mg[0]+1)}, {vr(mg[0])}')
        for n in range(1, NP):
            for e in range(4):
                a(f'v_fmac_f32 {vr(og[0][e])}, {vr(og[n][e])}, {vr(mg[n])}')
            a(f'v_fmac_f32 {vr(mg[0]+1)}, {vr(mg[n]+1)}, {vr(mg[n])}')

    def issue_qb():
        for ks in range(4):
            a(f'buffer_load_dwordx4 {vr(QB+4*ks,4)}, {vr(vDQk)}, {sr(sQ,4)}, 0 offen offset:{64*ks} {qpol}')
        a(f'v_mov_b32 {vr(vDQk)}, 0')
    issue_qb()
    if opt.get('otouch'):
        only(FW, 'L_nootouch')
        a(f's_mov_b32 m0, {PARTML+256}')
        a('s_mov_b64 exec, 1')
        a(f'buffer_load_dword {vr(vOO)}, {sr(sO,4)}, 0 offen lds')
        a(f'buffer_load_dword {vr(vOO)}, {sr(sO,4)}, 0 offen offset:512 lds')
        a('s_mov_b64 exec, -1')
        a('s_waitcnt vmcnt(6)')
        a('s_branch L_tileA')
        a.label('L_nootouch')
    a(f's_cmp_eq_u32 s{sWV}, {RW}')
    a('s_cbranch_scc1 L_reduce')
    a(f's_cmp_eq_u32 s{sCMB}, 0')
    a('s_cbranch_scc1 L_noflag')
    a(f'v_mov_b32 {vr(vT0)}, {LNON}')
    a(f'ds_read_b32 {vr(vT0)}, {vr(vT0)}')
    a('s_waitcnt lgkmcnt(0)')
    a(f'v_readfirstlane_b32 s{sN}, {vr(vT0)}')
    a.label('L_noflag')
    a('s_waitcnt vmcnt(4)')
    a('s_branch L_tileA')
    a.label('L_reduce')
    R0 = S
    a(f'v_mbcnt_lo_u32_b32 {vr(R0)}, -1, 0')
    a(f'v_mbcnt_hi_u32_b32 {vr(R0)}, -1, {vr(R0)}')
    a(f'v_lshrrev_b32 {vr(R0+1)}, 5, {vr(R0)}')
    a(f'v_and_b32 {vr(R0+3)}, 31, {vr(R0)}')
    a(f'v_lshlrev_b32 {vr(R0+3)}, 5, {vr(R0+3)}')
    a(f'v_lshl_add_u32 {vr(R0+3)}, {vr(R0+1)}, 2, {vr(R0+3)}')
    a(f'v_lshlrev_b32 {vr(R0+1)}, 3, {vr(R0+1)}')
    a(f'v_add_u32 {vr(R0+1)}, {PARTML}, {vr(R0+1)}')
    a(f'v_lshlrev_b32 {vr(R0)}, 4, {vr(R0)}')
    a(f'v_mov_b32 {vr(R0+2)}, {LCNT}')
    a(f's_mov_b32 s{sCNT}, 0')
    a.label('L_lspin')
    a(f'ds_read_b64 {vr(S+4,2)}, {vr(R0+2)}')
    a(f's_add_u32 s{sCNT}, s{sCNT}, 1')
    a('s_waitcnt lgkmcnt(0)')
    a(f'v_readfirstlane_b32 s{sT0}, {vr(S+4)}')
    a(f'v_readfirstlane_b32 s{sN}, {vr(S+5)}')
    a(f's_cmp_ge_u32 s{sCNT}, 0x100000')
    a('s_cbranch_scc1 L_lok')
    a(f's_cmp_lt_u32 s{sT0}, 4')
    a('s_cbranch_scc1 L_lspin')
    a.label('L_lok')
    mg = [S+4, S+6, O, O+2]
    G0 = S + 8
    og = [[G0+4*n+e for e in range(4)] for n in range(4)]
    for n in range(4):
        a(f'ds_read_b64 {vr(mg[n],2)}, {vr(R0+1)} offset:{16*n}')
    for n in range(4):
        if n: a(f'v_add_u32 {vr(R0+3)}, 1024, {vr(R0+3)}')
        a(f'ds_read2_b32 {vr(G0+4*n,2)}, {vr(R0+3)} offset0:0 offset1:2')
        a(f'ds_read2_b32 {vr(G0+4*n+2,2)}, {vr(R0+3)} offset0:4 offset1:6')
    a('s_waitcnt lgkmcnt(0)')
    combine(og, mg, R0+1)
    a(f'v_mov_b32 {vr(G0+4)}, {vr(G0+3)}')
    a(f'v_mov_b32 {vr(G0+5)}, {vr(R0+1)}')
    a(f'v_mov_b32 {vr(G0+6)}, {vr(mg[0]+1)}')
    a(f'v_mov_b32 {vr(G0+7)}, s{sN}')
    a(f'v_mov_b32 {vr(G0+3)}, s{sN}')
    a(f'buffer_store_dwordx4 {vr(G0+4,4)}, {vr(R0)}, {sr(sW,4)}, s42 offen offset:1024 sc0 sc1')
    a(f'buffer_store_dwordx4 {vr(G0,4)}, {vr(R0)}, {sr(sW,4)}, s42 offen sc0 sc1')
    a(f's_cmp_lg_u32 s{sN}, 0')
    a('s_cbranch_scc1 L_tagged')
    a('s_waitcnt vmcnt(0)')
    a(f's_lshl_b32 s{sT0}, s{sH}, 3')
    a(f's_lshl_b32 s{sT1}, 1, s{sC}')
    a(f'v_mov_b32 {vr(R0)}, s{sT0}')
    a(f'v_mov_b32 {vr(R0+1)}, s{sT1}')
    a('s_mov_b64 exec, 1')
    a(f'global_atomic_or {vr(R0)}, {vr(R0+1)}, s[16:17] offset:4 sc1')
    a('s_mov_b64 exec, -1')
    a.label('L_tagged')
    a('s_waitcnt vmcnt(6)')
    a.label('L_tileA')
    def yprio(tag):
        if yp == tag:
            a(f's_cmp_lt_u32 s{sWV}, 4')
            a(f's_cbranch_scc1 L_yp{tag}')
            a('s_setprio 1')
            a.label(f'L_yp{tag}')
    yprio('a')
    stamp()

    def inter(ms, vs, per=2):
        vs = list(vs)
        for m in ms:
            a(m)
            for _ in range(per):
                if vs: a(vs.pop(0))
        for v in vs: a(v)

    HB = kf(2, 0)
    def hand_loads():
        a(f'v_mbcnt_lo_u32_b32 {vr(KG)}, -1, 0')
        a(f'v_mbcnt_hi_u32_b32 {vr(KG)}, -1, {vr(KG)}')
        a(f'v_lshlrev_b32 {vr(KG)}, 4, {vr(KG)}')
        for n in range(8):
            a(f's_movk_i32 s{sT0}, {2048*n}')
            a(f'buffer_load_dwordx4 {vr(HB+8*n,4)}, {vr(KG)}, {sr(sW,4)}, s{sT0} offen sc0 sc1')
            a(f'buffer_load_dwordx4 {vr(HB+8*n+4,4)}, {vr(KG)}, {sr(sW,4)}, s{sT0} offen offset:1024 sc0 sc1')

    buf = [kf(0, n) for n in range(4)] + [QA + 4*n for n in range(4)]
    SLOTW = {0: [0, 1, 2, 3, 4], 1: [4, 5, 2, 3, 1]}
    def qk(tau, sl):
        Q = QA if tau == 0 else QB
        if sl == 'G':
            return [mfma(S+20, KG+4*ks, Q+4*ks, '0' if ks == 0 else S+20) for ks in range(4)]
        W = SLOTW[tau][sl]
        c0 = BLO if W == tau else BHI if W == tau + 4 else '0'
        return [mfma(S+4*sl, kf(W,ks), Q+4*ks, c0 if ks == 0 else S+4*sl) for ks in range(4)]
    def edge_test(tau, lab):
        a(f's_sub_u32 s{sT0}, s{sQB}, {48 - 16*tau}')
        a(f's_cmp_lt_u32 s{sT0}, 1968')
        a(f's_cbranch_scc1 {lab}')
    def edge_mask(tau, tr):
        a(f'v_mbcnt_lo_u32_b32 {vr(tr)}, -1, 0')
        a(f'v_mbcnt_hi_u32_b32 {vr(tr)}, -1, {vr(tr)}')
        a(f'v_lshrrev_b32 {vr(tr)}, 4, {vr(tr)}')
        a(f's_sub_u32 s{sT0}, s{sQB}, 34')
        a(f's_movk_i32 s{sT1}, 2046')
        a(f'v_lshl_add_u32 {vr(tr)}, {vr(tr)}, 2, s{sT0}')
        a(f'v_mov_b32 {vr(vM)}, 0x{NEG:08x}')
        a('s_nop 3')
        for sl in range(5):
            for r in range(4):
                a(f'v_add_u32 {vr(vT)}, {16*SLOTW[tau][sl]+r}, {vr(tr)}')
                a(f'v_cmp_gt_u32 vcc, s{sT1}, {vr(vT)}')
                a('s_nop 1')
                a(f'v_cndmask_b32 {vr(S+4*sl+r)}, {vr(vM)}, {vr(S+4*sl+r)}, vcc')
        for l in maxtree_l([S+x for x in range(22)], vM): a(l)
    def epi(t, tau=0):
        l = [f'v_mul_f32 {vr(O+4*t+e)}, {vr(O+4*t+e)}, {vr(vT0)}' for e in range(4)]
        l += [f'v_cvt_pk_bf16_f32 {vr(O+4*t)}, {vr(O+4*t)}, {vr(O+4*t+1)}',
              f'v_cvt_pk_bf16_f32 {vr(O+4*t+1)}, {vr(O+4*t+2)}, {vr(O+4*t+3)}',
              f'ds_write_b64 {vr(vSW)}, {vr(O+4*t,2)} offset:{32*t + 16*STGP*tau}']
        return l
    def stage_reads(tau=0, R=O):
        return [f'ds_read_b128 {vr(R+4*j,4)}, {vr(vSR)} offset:{4*STGP*j + 16*STGP*tau}' for j in range(4)]
    def stores(tau, R=O, extra=0):
        for j in range(4):
            a(f's_waitcnt lgkmcnt({3-j+extra})')
            if tau == 0 and j == 0: a(f's_mov_b64 exec, {sr(sEX,2)}')
            a(f'buffer_store_dwordx4 {vr(R+4*j,4)}, {vr(vOO)}, {sr(sO,4)}, s{sTOFF if tau else sZERO} offen offset:{1024*j} {stpol}')
            if tau == 0 and j == 0: a('s_mov_b64 exec, -1')
    RA = kf(1, 0)
    def late_a():
        for l in stage_reads(0, RA): a(l)
        stores(0, RA)
    def softmax_pv(tau):
        m = vM
        xred(m, vT)
        a(f'v_mul_f32 {vr(m)}, s{sCS}, {vr(m)}')
        set0 = [S+x for x in range(8)]; set1 = [S+8+x for x in range(8)]; set2 = [S+16+x for x in range(6)]
        for l in fma_l(set0, m): a(l)
        f2 = fma_l(set2, m); f1 = fma_l(set1, m)
        for l in exp_l(set0): a(l)
        a(f2[0])
        for l in cvt_l(S, S, 4): a(l)
        a(f2[1])
        a('s_waitcnt lgkmcnt(0)' if tau == 1 else 's_waitcnt lgkmcnt(8)')
        if tau == 1 and apos == 1: late_a()
        ONES, LACC = S+4, S+20
        v2 = f2[2:] + exp_l(set2) + [f'v_mov_b32 {vr(ONES+n)}, 0x3f803f80' for n in range(4)] + cvt_l(S+16, S+16, 3) \
             + [f'v_mov_b32 {vr(S+19)}, 0', f'v_cndmask_b32 {vr(S+18)}, 0, {vr(S+18)}, {sr(sKG0,2)}']
        inter([mfma(X[t], X[t+1], S, '0') for t in range(8)], v2 + f1[:2])
        v1 = f1[2:] + exp_l(set1) + [f'v_mov_b32 {vr(vT0)}, 0'] + cvt_l(S+8, S+8, 4)
        inter([mfma(O+4*t, VG+4*t, S+16, O+4*t) for t in range(8)], v1)
        a(mfma(LACC, ONES, S, '0'))
        a(mfma(LACC, ONES, S+16, LACC))
        a(mfma(LACC, ONES, S+8, LACC))
        if tau == 0:
            a('s_waitcnt lgkmcnt(0)')
        for t in range(8):
            a(mfma(O+4*t, buf[t], S+8, O+4*t))
            if tau == 0: a(vread(VG+4*t, t, 1))
        a(f'v_rcp_f32 {vr(vT0)}, {vr(LACC)}')

    late = []
    for t in range(8):
        late += [vread(buf[t], t, 2), vread(buf[t]+2, t, 3)]
    vgr = [vread(VG+4*t, t, 4) for t in range(8)]
    edge_test(0, 'L_fastA')
    for l in vgr: a(l)
    for sl in ('G', 0, 1, 2, 3, 4):
        for l in qk(0, sl): a(l)
    for l in late: a(l)
    edge_mask(0, vT0)
    a('s_branch L_joinA')
    a.label('L_fastA')
    m = vM
    inter(qk(0, 0) + qk(0, 'G'), vgr, per=1)
    inter(qk(0, 1) + qk(0, 2), late[:8], per=1)
    inter(qk(0, 3), maxtree_l([S+20, S+21, S+0], m) + maxtree_l([S+1, S+2, S+3, S+4, S+5, S+6], m, False), per=1)
    inter(qk(0, 4), maxtree_l([S+7, S+8, S+9, S+10], m, False), per=1)
    for l in late[8:11]: a(l)
    for l in maxtree_l([S+11, S+12], m, False): a(l)
    for l in late[11:13]: a(l)
    for l in maxtree_l([S+13, S+14, S+15], m, False): a(l)
    for l in late[13:]: a(l)
    for l in maxtree_l([S+16, S+17, S+18, S+19], m, False): a(l)
    a.label('L_joinA')
    yprio('s')
    stamp(fine)
    softmax_pv(0)
    stamp(fine)
    ep = []
    for t in range(8): ep += epi(t)
    if apos == 0: ep += stage_reads()
    xb = []
    for t in range(8): xb += [vread(X[t+1], t, 4), vread(X[t+1]+2, t, 5)]
    def qb_wait(n):
        a(f's_waitcnt vmcnt({n+2})')
        if opt.get('otouch'):
            a(f's_and_b32 s{sT0}, s{sWV}, 3')
            a(f's_cmp_eq_u32 s{sT0}, 3')
        else:
            a(f's_cmp_eq_u32 s{sWV}, {RW}')
        a('s_cbranch_scc1 L_qbw')
        a(f's_waitcnt vmcnt({n})')
        a.label('L_qbw')
    if merge == 'hyb':
        a('s_nop 0')
        for l in ep: a(l)
        qb_wait(0)
        stamp()
        spos = int(opt.get('spos', 0))
        edge_test(1, 'L_fastB')
        stores(0)
        for sl in ('G', 0, 1, 2, 3, 4):
            for l in qk(1, sl): a(l)
        for l in xb: a(l)
        edge_mask(1, vT0)
        a('s_branch L_joinB')
        a.label('L_fastB')
        if spos == 0:
            stores(0)
            inter(qk(1, 'G') + qk(1, 0) + qk(1, 1) + qk(1, 2), xb, per=1)
        elif spos == 1:
            for l in qk(1, 'G') + qk(1, 0): a(l)
            stores(0)
            inter(qk(1, 1) + qk(1, 2), xb, per=2)
        else:
            for l in qk(1, 'G') + qk(1, 0) + qk(1, 1) + qk(1, 2): a(l)
        inter(qk(1, 3), maxtree_l([S+20, S+21, S+0], m) + maxtree_l([S+1, S+2, S+3, S+4, S+5, S+6], m, False), per=1)
        inter(qk(1, 4), maxtree_l([S+7, S+8], m, False), per=1)
        a.nop(1)
        for l in maxtree_l([S+9, S+10, S+11, S+12], m, False): a(l)
        a.nop(1)
        for l in maxtree_l([S+13, S+14, S+15], m, False): a(l)
        if spos == 2:
            stores(0)
            for l in xb: a(l)
        else:
            a.nop(3)
        for l in maxtree_l([S+16, S+17, S+18, S+19], m, False): a(l)
    elif not merge:
        a('s_nop 0')
        for l in ep: a(l)
        stores(0)
        for l in xb: a(l)
        qb_wait(4)
        stamp()
        edge_test(1, 'L_fastB')
        for sl in ('G', 0, 1, 2, 3, 4):
            for l in qk(1, sl): a(l)
        edge_mask(1, vT0)
        a('s_branch L_joinB')
        a.label('L_fastB')
        for sl in ('G', 0, 1, 2):
            for l in qk(1, sl): a(l)
        inter(qk(1, 3), maxtree_l([S+20, S+21, S+0], m) + maxtree_l([S+1, S+2], m, False), per=1)
        inter(qk(1, 4), maxtree_l([S+3, S+4, S+5, S+6, S+7, S+8], m, False), per=1)
        a.nop(1)
        for l in maxtree_l([S+9, S+10, S+11, S+12], m, False): a(l)
        a.nop(1)
        for l in maxtree_l([S+13, S+14, S+15], m, False): a(l)
        a.nop(2)
        for l in maxtree_l([S+16, S+17, S+18, S+19], m, False): a(l)
    else:
        qb_wait(0)
        yprio('m')
        stamp()
        edge_test(1, 'L_fastB')
        for l in ep: a(l)
        if apos == 0: stores(0)
        for sl in (0, 1, 2, 3, 4, 'G'):
            for l in qk(1, sl): a(l)
        for l in xb: a(l)
        edge_mask(1, vT0)
        a('s_branch L_joinB')
        a.label('L_fastB')
        ms = []
        for sl in (0, 1, 2, 3, 4, 'G'): ms += qk(1, sl)
        inter(ms, ep, per=3)
        for l in maxtree_l([S+x for x in range(15)], vT0): a(l)
        if apos == 0: stores(0)
        for l in xb: a(l)
        a(f'v_max3_f32 {vr(vM)}, {vr(vT0)}, {vr(S+15)}, {vr(S+16)}')
        for l in maxtree_l([S+17, S+18, S+19, S+20, S+21], vM, False): a(l)
    a.label('L_joinB')
    yprio('b')
    stamp()
    a(f's_cmp_eq_u32 s{sCMB}, 0')
    a('s_cbranch_scc1 L_nohand')
    hand_loads()
    a.label('L_nohand')
    softmax_pv(1)
    stamp(fine)
    if apos == 2:
        late_a()
    a('s_nop 0')
    if apos == 3:
        for l in stage_reads(0, RA): a(l)
    for t in range(8):
        for l in epi(t, 1): a(l)
    for l in stage_reads(1): a(l)
    if apos == 3:
        stores(0, RA, extra=4+8) if False else None
        for j in range(4):
            if j == 0: a(f's_mov_b64 exec, {sr(sEX,2)}')
            if j == 0: a('s_waitcnt lgkmcnt(4)')
            a(f'buffer_store_dwordx4 {vr(RA+4*j,4)}, {vr(vOO)}, {sr(sO,4)}, s{sZERO} offen offset:{1024*j} {stpol}')
            if j == 0: a('s_mov_b64 exec, -1')
    stores(1)
    stamp()

    a(f's_cmp_eq_u32 s{sCMB}, 0')
    a('s_cbranch_scc1 L_fin')
    a(f's_waitcnt vmcnt({4 if apos == 0 else 8})')
    a(f's_mov_b32 s{sCNT}, 0')
    a(f's_mov_b32 s{sT2}, 0')
    a.label('L_chk')
    a(f's_mov_b32 s{sT3}, s{sT2}')
    for n in range(8):
        a(f'v_cmp_eq_u32 vcc, s{sN}, {vr(HB+8*n+3)}')
        a(f'v_cmp_eq_u32 s[60:61], s{sN}, {vr(HB+8*n+7)}')
        a('s_nop 0')
        a('s_and_b64 vcc, vcc, s[60:61]')
        a('s_cmp_eq_u64 vcc, exec')
        a(f's_cselect_b32 s{sT0}, {1 << n}, 0')
        a(f's_or_b32 s{sT3}, s{sT3}, s{sT0}')
    a(f's_add_u32 s{sCNT}, s{sCNT}, 1')
    a(f's_cmp_eq_u32 s{sT3}, 0xff')
    a('s_cbranch_scc1 L_ready')
    a(f's_cmp_ge_u32 s{sCNT}, 0x40000')
    a('s_cbranch_scc1 L_ready')
    a(f's_lshl_b32 s{sT0}, s{sH}, 3')
    a(f'v_mov_b32 {vr(KG+1)}, s{sT0}')
    a(f'global_load_dword {vr(KG+2)}, {vr(KG+1)}, s[16:17] offset:4 sc0 sc1')
    a('s_waitcnt vmcnt(0)')
    a(f'v_readfirstlane_b32 s{sT2}, {vr(KG+2)}')
    hand_loads()
    a('s_waitcnt vmcnt(0)')
    a('s_branch L_chk')
    a.label('L_ready')
    hog = [[HB+8*n, HB+8*n+1, HB+8*n+2, HB+8*n+4] for n in range(8)]
    hmg = [HB+8*n+5 for n in range(8)]
    combine(hog, hmg, X8)
    a(f'v_rcp_f32 {vr(X8)}, {vr(hmg[0]+1)}')
    a(f'v_lshrrev_b32 {vr(KG)}, 1, {vr(KG)}')
    for e in range(4):
        a(f'v_mul_f32 {vr(hog[0][e])}, {vr(hog[0][e])}, {vr(X8)}')
    a(f'v_cvt_pk_bf16_f32 {vr(X8+2)}, {vr(hog[0][0])}, {vr(hog[0][1])}')
    a(f'v_cvt_pk_bf16_f32 {vr(X8+3)}, {vr(hog[0][2])}, {vr(hog[0][3])}')
    a(f'buffer_store_dwordx2 {vr(X8+2,2)}, {vr(KG)}, {sr(sO,4)}, 0 offen {stpol}')
    a.label('L_fin')
    if stamps:
        stamp()
        a('s_waitcnt vmcnt(0)')
        stamp()
        if opt.get('clk'):
            a('s_memtime s[98:99]')
            a('s_waitcnt lgkmcnt(0)')
            a('s_sub_u32 s98, s98, s96')
            a(f's_add_u32 s{64+2*nst[0]}, s98, s64')
            nst[0] += 1
        a(f's_lshl_b32 s{sT0}, s2, 3')
        a(f's_add_u32 s{sT0}, s{sT0}, s{sWV}')
        a(f's_lshl_b32 s{sT0}, s{sT0}, 6')
        a(f's_add_u32 s{sT0}, s{sT0}, 0x100000')
        a(f's_add_u32 s{sW}, s18, s{sT0}')
        a(f's_addc_u32 s{sW+1}, s19, 0')
        a(f'v_mov_b32 v1, 0')
        a('s_mov_b64 exec, 1')
        for n in range(min(16, nst[0])):
            a(f'v_mov_b32 v2, s{64+2*n}')
            a(f'buffer_store_dword v2, v1, {sr(sW,4)}, 0 offen offset:{4*n}')
        if 'leak' in opt:
            k = int(opt['leak'])
            a(f's_sub_u32 s{sT0}, s{64+2*k}, s64')
            a(f's_lshl_b32 s{sT0}, s{sT0}, 2')
            if opt.get('leakskew'):
                a.label('L_pre')
                a('s_memrealtime s[100:101]')
                a('s_waitcnt lgkmcnt(0)')
                a(f's_sub_u32 s{sT1}, s100, s64')
                a(f's_cmp_lt_u32 s{sT1}, 3000')
                a('s_cbranch_scc1 L_pre')
                a('s_mov_b64 exec, -1')
                a('v_mbcnt_lo_u32_b32 v3, -1, 0')
                a('v_and_b32 v3, 31, v3')
                a('v_lshlrev_b32 v3, 3, v3')
                a('global_load_dword v4, v3, s[16:17] sc0 sc1')
                a('s_waitcnt vmcnt(0)')
                a('v_readlane_b32 s20, v4, 0')
                a('s_mov_b32 s21, 0'); a('s_mov_b32 s22, 0')
                for n in range(1, 32):
                    a(f'v_readlane_b32 s23, v4, {n}')
                    a('s_nop 0')
                    a('s_sub_i32 s23, s23, s20')
                    a('s_min_i32 s21, s21, s23')
                    a('s_max_i32 s22, s22, s23')
                a(f's_sub_u32 s{sT0}, s22, s21')
                a(f's_min_u32 s{sT0}, s{sT0}, 2000')
                a(f's_lshl_b32 s{sT0}, s{sT0}, 2')
            if opt.get('leakxcc'):
                a('s_getreg_b32 s61, hwreg(HW_REG_XCC_ID, 0, 4)')
                a(f's_bfe_u32 s60, s{sN}, 0x40001')
                a('s_cmp_lg_u32 s60, s61')
                a(f's_cselect_b32 s{sT0}, 2000, 0')
            if opt.get('leakcnt'):
                a(f's_mul_i32 s{sT0}, s{sCNT}, 500')
                a(f's_mul_i32 s{sT0}, s{sT0}, s{sCMB}')
            if 'leakh' in opt:
                lo, hi = opt['leakh'].split(',')
                a(f's_sub_u32 s{sT1}, s{sH}, {lo}')
                a(f's_cmp_lt_u32 s{sT1}, {int(hi)-int(lo)}')
                a(f's_cselect_b32 s{sT0}, s{sT0}, 0')
            if 'leakwg' in opt:
                a(f's_cmp_eq_u32 s2, {opt["leakwg"]}')
                a(f's_cselect_b32 s{sT0}, s{sT0}, 0')
            if 'leakx' in opt:
                a(f's_getreg_b32 s{sT1}, hwreg(HW_REG_XCC_ID, 0, 4)')
                a(f's_lshr_b32 s{sT1}, {opt["leakx"]}, s{sT1}')
                a(f's_bitcmp1_b32 s{sT1}, 0')
                a(f's_cselect_b32 s{sT0}, s{sT0}, 0')
            if 'leakw' in opt:
                a(f's_lshr_b32 s{sT1}, {opt["leakw"]}, s{sWV}')
                a(f's_bitcmp1_b32 s{sT1}, 0')
                a(f's_cselect_b32 s{sT0}, s{sT0}, 0')
            a(f"s_add_u32 s{sT0}, s{sT0}, {opt.get('spin', 5000)}")
            a.label('L_spin')
            a('s_memrealtime s[100:101]')
            a('s_waitcnt lgkmcnt(0)')
            a(f's_sub_u32 s{sT1}, s100, s64')
            a(f's_cmp_lt_u32 s{sT1}, s{sT0}')
            a('s_cbranch_scc1 L_spin')
    a.label('L_end')
    a('s_endpgm')
    if opt.get('cpf', True):
        a('.fill 4096, 4, 0xbf800000')

    check(a.lines)
    if stamps: print('stamps', nst[0])
    head = f'''; windowed + global-token attention, B=1 H=32 S=2048 D=128 bf16 (window 32, 2 global tokens)
; @launch grid=(256,1,1) block=(512,1,1) lds=163840
.amdgcn_target "amdgcn-amd-amdhsa--gfx950"
.text
.globl {NAME}
.p2align 8
.type {NAME},@function
{NAME}:
'''
    tail = f'''.section .rodata,"a"
.p2align 6
.amdhsa_kernel {NAME}
  .amdhsa_next_free_vgpr 256
  .amdhsa_next_free_sgpr {102 if stamps else 64}
  .amdhsa_accum_offset 256
  .amdhsa_group_segment_fixed_size 0
  .amdhsa_kernarg_size 64
  .amdhsa_user_sgpr_count 2
  .amdhsa_user_sgpr_kernarg_segment_ptr 1
  .amdhsa_system_sgpr_workgroup_id_x 1
.end_amdhsa_kernel
'''
    return head + a.text() + tail

if __name__ == '__main__':
    out = sys.argv[1]
    opt = {}
    for kv in sys.argv[2:]:
        k, v = kv.split('=', 1)
        opt[k] = {'True': True, 'False': False}.get(v, v.replace('+', ' '))
    open(out, 'w').write(gen(opt))
```

```python
import sys, math, struct
from asmlib import *

NAME = 'standalone__global_local_windowed_global_tokens__prompt_kernel'
def f2u(x): return struct.unpack('<I', struct.pack('<f', x))[0]

def gen(opt):
    a = Asm()
    NEG = 0xFF000000
    CSC = f2u(128 ** -0.5 * math.log2(math.e))
    KOFF, VOFF, SOFF = 0, 73728, 155648
    apos = int(opt.get('apos', 0))
    PART, STG = 0, 4096
    PARTML, LCNT, LNON = SOFF + 3072, SOFF + 3072 + 128, SOFF + 3072 + 132
    STGP = 272
    ldpol = opt.get('ldpol', '')
    qpol = opt.get('qpol', '')
    stpol = opt.get('stpol', 'sc0 sc1 nt')
    pk = opt.get('pk', True)
    N1 = int(opt.get('n1', 10))
    yp = opt.get('yp', '')
    RW = int(opt.get('rw', 3))
    FW = 7
    SW = 5
    CW, CC = int(opt.get('cw', 1)), 3
    merge = opt.get('merge', True)
    sQ, sK, sV, sO, sW = 20, 24, 28, 32, 36
    sWV, sH, sC, sHO, sQ0B = 40, 43, 44, 45, 46
    sT0, sT1, sT2, sT3 = 47, 48, 49, 50
    sBK = 62
    HW = 4
    sCS = 52; sKG0 = 54; sQB = 51; sEX = 56; sCMB = 58; sCNT = 59; sN = 63; sTOFF = 41; sZERO = 3
    VA = 0
    vSW, vSR, vOO, vT0 = 8, 9, 10, 11
    X8 = 12
    KF = 16; KG = 112; QA, QB = 128, 144; VG = 160; O = 192; S = 224
    BLO, BHI = 248, 252
    kf = lambda W, ks: KF + 16 * W + 4 * ks
    X = [O + 4 * n for n in range(8)] + [X8]
    vLANE, vI, vKGp, vDK, vDV, vDQ, vAG, vNEG, vAK = O+16, O+17, O+18, O+19, O+20, O+21, O+22, O+23, O+24
    vAVG, t1, t2, t3 = O+28, O+29, O+30, O+31
    vDQk = VG + 7
    vFLAG = VG + 3
    vM, vT = S + 22, S + 23

    stamps = opt.get('stamps', False)
    fine = opt.get('fine', False)
    nst = [0]
    def stamp(on=True):
        if stamps and on:
            a(f's_memrealtime s[{64+2*nst[0]}:{65+2*nst[0]}]')
            if nst[0]: a('s_waitcnt lgkmcnt(0)')
            nst[0] += 1
    M16 = 'v_mfma_f32_16x16x32_bf16'
    def mfma(d, x, y, c):
        return f'{M16} {vr(d,4)}, {vr(x,4)}, {vr(y,4)}, {c if isinstance(c,str) else vr(c,4)}'
    def only(w, lab):
        a(f's_cmp_lg_u32 s{sWV}, {w}')
        a(f's_cbranch_scc1 {lab}')

    stamp()
    if opt.get('clk'): a('s_memtime s[96:97]')
    a('s_load_dwordx16 s[4:19], s[0:1], 0')
    a(f'v_readfirstlane_b32 s{sWV}, v0')
    a('s_cmp_ge_u32 s2, 256')
    a('s_cbranch_scc1 L_end')
    a(f'v_lshrrev_b32 {vr(t1)}, 4, v0')
    a(f'v_xor_b32 {vr(vDK)}, {vr(t1)}, v0')
    a(f'v_and_b32 {vr(vDK)}, 15, {vr(vDK)}')
    a(f'v_lshl_add_u32 {vr(vDK)}, {vr(t1)}, 4, {vr(vDK)}')
    a(f's_bfe_u32 s{sC}, s2, 0x30003')
    a(f's_lshl_b32 s{sQ0B}, s{sC}, 16')
    a(f'v_lshl_add_u32 {vr(vDK)}, {vr(vDK)}, 4, s{sQ0B}')
    a('s_and_b32 s41, s2, 7')
    a(f's_lshr_b32 s{sH}, s2, 6')
    a(f's_lshl2_add_u32 s{sH}, s41, s{sH}')
    a(f's_lshl_b32 s{sHO}, s{sH}, 19')
    a(f's_lshl_b32 m0, s{sWV}, 4')
    a(f's_mov_b32 s{sK+2}, 0x80000')
    a(f's_mov_b32 s{sK+3}, 0x20000')
    a(f's_movk_i32 s{sCNT}, 17')
    if opt.get('cpf', True):
        a(f's_getpc_b64 s[{sEX}:{sEX+1}]')
        a(f'v_lshlrev_b32 v1, 5, v0')
        a(f'global_load_dword {vr(X8)}, v1, s[{sEX}:{sEX+1}]')
    a(f's_cmp_ge_u32 s{sWV}, 256')
    a('s_cbranch_scc1 L_helper')
    a('s_waitcnt lgkmcnt(0)')
    stamp()
    a(f's_add_u32 s{sK}, s6, s{sHO}')
    a(f's_addc_u32 s{sK+1}, s7, 0')
    thr = int(opt.get('thr', 0)); tl = [0]
    if thr: a('s_getreg_b32 s1, hwreg(HW_REG_XCC_ID, 0, 4)')
    def throttle():
        if thr:
            a('s_bitcmp1_b32 s1, 0')
            a(f's_cbranch_scc{opt.get("thpar", 1)} L_th{tl[0]}')
            a(f's_waitcnt vmcnt({thr-1})')
            a.label(f'L_th{tl[0]}')
            tl[0] += 1
    a.label('L_kloop')
    throttle()
    a(f'buffer_load_dwordx4 {vr(vDK)}, {sr(sK,4)}, 0 offen {opt.get("kpol", ldpol)} lds')
    a('s_add_u32 m0, m0, 0x1000')
    a(f'v_add_u32 {vr(vDK)}, 0x1000, {vr(vDK)}')
    a(f's_sub_u32 s{sCNT}, s{sCNT}, 1')
    a('s_cbranch_scc0 L_kloop')
    if 'dup' in opt:
        nd = int(opt['dup'])
        a(f's_sub_u32 m0, m0, {0x1000*18}')
        a(f'v_subrev_u32 {vr(vDK)}, {0x1000*18}, {vr(vDK)}')
        for i in range(nd):
            a(f'buffer_load_dwordx4 {vr(vDK)}, {sr(sK,4)}, 0 offen lds')
            a('s_add_u32 m0, m0, 0x1000')
            a(f'v_add_u32 {vr(vDK)}, 0x1000, {vr(vDK)}')
    stamp(opt.get('postk', False))
    def common():
        a(f's_lshr_b32 s{sWV}, s{sWV}, 6')
        a(f'v_and_b32 {vr(vLANE)}, 63, v0')
        a(f'v_and_b32 {vr(vI)}, 15, v0')
        a(f'v_bfe_u32 {vr(vKGp)}, v0, 4, 2')
        a(f's_lshl_b32 s{sT1}, s{sWV}, 10')
        a(f's_add_u32 s{sT2}, s{sT1}, s{sQ0B}')
        for s_ in (sV, sQ):
            a(f's_mov_b32 s{s_+2}, 0x80000')
            a(f's_mov_b32 s{s_+3}, 0x20000')
        a(f's_mov_b32 s{sW+2}, 0x4000')
        a(f's_mov_b32 s{sW+3}, 0x20000')
        a(f's_and_b32 s{sBK}, s{sWV}, 3')
        a(f's_lshl_b32 s{sBK}, s{sBK}, 1')
        a(f's_cmp_lt_u32 s{sWV}, 4')
        a(f's_addc_u32 s{sBK}, s{sBK}, 0')
        a(f's_cmp_eq_u32 s{sC}, 0')
        a(f's_cselect_b32 s{sT3}, 0x40000000, 0')
        a(f's_lshl_b32 s{sT0}, s{sBK}, 13')
        a(f's_add_u32 s{sT0}, s{sT0}, s{sQ0B}')
        a(f'v_lshlrev_b32 {vr(vDQ)}, 4, {vr(vKGp)}')
        a(f'v_lshl_add_u32 {vr(vDQ)}, {vr(vI)}, 8, {vr(vDQ)}')
        a(f'v_add_u32 {vr(vDQ)}, s{sT0}, {vr(vDQ)}')
        a(f'v_lshlrev_b32 {vr(t3)}, 4, {vr(vLANE)}')
        a(f's_lshl_b32 s41, s{sH}, 14')
        a(f's_lshl_b32 s42, s{sC}, 11')
    common()
    a(f's_mov_b32 s{sN}, 0')
    def srds():
        a(f's_add_u32 s{sV}, s8, s{sHO}')
        a(f's_addc_u32 s{sV+1}, s9, 0')
        a(f's_add_u32 s{sQ}, s4, s{sHO}')
        a(f's_addc_u32 s{sQ+1}, s5, 0')
        a(f's_add_u32 s{sW}, s18, s41')
        a(f's_addc_u32 s{sW+1}, s19, 0')
    srds()
    a('s_branch L_v1')
    a.label('L_helper')
    a('s_setprio 3')
    a('s_memrealtime s[60:61]')
    common()
    a(f's_sub_u32 s{sT0}, s{sT3}, 0x2000')
    a(f'v_add_u32 {vr(t1)}, s{sT0}, {vr(vDQ)}')
    a(f'v_add_u32 {vr(t2)}, 0x1000, {vr(t1)}')
    a(f's_mov_b32 m0, {SOFF}')
    a('s_waitcnt lgkmcnt(0)')
    if stamps:
        nst[0] -= 1
        stamp()
    a(f's_add_u32 s{sK}, s6, s{sHO}')
    a(f's_addc_u32 s{sK+1}, s7, 0')
    srds()
    if stamps and opt.get('postk'):
        nst[0] -= 1
        stamp()
    a(f's_or_b32 s{sN}, s60, 1')
    if opt.get('leakxcc'):
        a('s_getreg_b32 s61, hwreg(HW_REG_XCC_ID, 0, 4)')
        a(f's_and_b32 s{sN}, s60, 0xffffffe0')
        a(f's_lshl1_add_u32 s{sN}, s61, s{sN}')
        a(f's_or_b32 s{sN}, s{sN}, 1')
    only(FW, 'L_noclear')
    a(f's_lshl_b32 s{sT0}, s{sH}, 3')
    a(f'v_mov_b32 {vr(S+4)}, s{sT0}')
    a(f'v_mov_b32 {vr(S+5)}, s{sN}')
    a(f'v_mov_b32 {vr(S+6)}, {LCNT}')
    a(f'v_mov_b32 {vr(S+7)}, 0')
    a('s_mov_b64 exec, 1')
    a(f's_cmp_lg_u32 s{sC}, {CC}')
    a('s_cbranch_scc1 L_nopub')
    a(f'global_store_dword {vr(S+4)}, {vr(S+5)}, s[16:17] sc0 sc1')
    a.label('L_nopub')
    a(f'ds_write_b32 {vr(S+6)}, {vr(S+7)}')
    a('s_mov_b64 exec, -1')
    if opt.get('wstouch'):
        pol = {'ld': '', 'ldsc': 'sc0 sc1'}.get(opt['wstouch'])
        if pol is not None:
            a(f'buffer_load_dwordx4 {vr(S+8,4)}, {vr(t3)}, {sr(sW,4)}, s42 offen {pol}')
            a(f'buffer_load_dwordx4 {vr(S+12,4)}, {vr(t3)}, {sr(sW,4)}, s42 offen offset:1024 {pol}')
        else:
            for n in range(4): a(f'v_mov_b32 {vr(S+8+n)}, 0')
            a(f'buffer_store_dwordx4 {vr(S+8,4)}, {vr(t3)}, {sr(sW,4)}, s42 offen sc0 sc1')
            a(f'buffer_store_dwordx4 {vr(S+8,4)}, {vr(t3)}, {sr(sW,4)}, s42 offen offset:1024 sc0 sc1')
    a.label('L_noclear')
    only(SW, 'L_nosmall')
    for n, srd in enumerate((sK, sQ, sV)):
        if n:
            a(f's_mov_b32 m0, {SOFF + 1024*n}')
            a('s_nop 0')
        a(f'buffer_load_dwordx4 {vr(t3)}, {sr(srd,4)}, 0 offen lds')
    a.label('L_nosmall')
    only(HW, 'L_nohalo')
    for T in range(2):
        for ks in range(4):
            a(f'buffer_load_dwordx4 {vr(kf(T,ks),4)}, {vr(t1+T)}, {sr(sK,4)}, 0 offen offset:{64*ks}')
    a.label('L_nohalo')
    a('s_setprio 0')
    a('s_branch L_nov1')
    a.label('L_v1')
    def vpiece(i):
        throttle()
        if i:
            a('s_add_u32 m0, m0, 0x1000')
            a(f'v_add_u32 {vr(vDV)}, 0x1000, {vr(vDV)}')
        if i < 2:
            a(f'v_add_u32 {vr(t1)}, s{sT3}, {vr(vDV)}')
            a(f'buffer_load_dwordx4 {vr(t1)}, {sr(sV,4)}, 0 offen {ldpol} lds')
        else:
            a(f'buffer_load_dwordx4 {vr(vDV)}, {sr(sV,4)}, 0 offen {ldpol} lds')
    a(f's_and_b32 s{sT0}, s{sWV}, 1')
    a(f's_lshl_b32 s{sT0}, s{sT0}, 2')
    a(f'v_add_lshl_u32 {vr(vDV)}, s{sT0}, {vr(vKGp)}, 1')
    a(f'v_xor_b32 {vr(vDV)}, {vr(vDV)}, {vr(vI)}')
    a(f'v_lshlrev_b32 {vr(vDV)}, 4, {vr(vDV)}')
    a(f'v_lshl_add_u32 {vr(vDV)}, {vr(vKGp)}, 8, {vr(vDV)}')
    a(f's_sub_u32 s{sT2}, s{sT2}, 0x2000')
    a(f'v_add_u32 {vr(vDV)}, s{sT2}, {vr(vDV)}')
    a(f's_add_u32 m0, s{sT1}, {VOFF}')
    for i in range(N1): vpiece(i)
    a.label('L_nov1')
    stamp()

    a(f's_add_u32 s{sO}, s14, s{sHO}')
    a(f's_addc_u32 s{sO+1}, s15, 0')
    a(f's_mov_b32 s{sO+2}, 0x80000')
    a(f's_mov_b32 s{sO+3}, 0x20000')
    a(f's_movk_i32 s{sTOFF}, 0x1000')
    a(f's_mov_b32 s{sZERO}, 0')
    a(f's_mov_b32 s{sCS}, 0x{CSC:08x}')
    a(f's_mov_b32 s{sCS+1}, 0x{CSC:08x}')
    a(f'v_mov_b32 {vr(vNEG)}, 0x{NEG:08x}')
    a(f'v_lshlrev_b32 {vr(t2)}, 2, {vr(vKGp)}')
    a(f'v_cmp_eq_u32 {sr(sKG0,2)}, 0, {vr(vKGp)}')
    for r in range(4):
        a(f'v_add_u32 {vr(t1)}, {r}, {vr(t2)}')
        a(f'v_cmp_ge_u32 vcc, {vr(t1)}, {vr(vI)}')
        a(f'v_cmp_le_u32 s[60:61], {vr(t1)}, {vr(vI)}')
        a('s_nop 0')
        a(f'v_cndmask_b32 {vr(BLO+r)}, {vr(vNEG)}, 0, vcc')
        a(f'v_cndmask_b32 {vr(BHI+r)}, {vr(vNEG)}, 0, s[60:61]')
    a(f's_lshl_b32 s{sT0}, s{sBK}, 13')
    a(f'v_xor_b32 {vr(t1)}, {vr(vKGp)}, {vr(vI)}')
    a(f'v_lshlrev_b32 {vr(t1)}, 4, {vr(t1)}')
    a(f'v_lshl_add_u32 {vr(t1)}, {vr(vI)}, 8, {vr(t1)}')
    a(f'v_add_u32 {vr(vAK)}, s{sT0}, {vr(t1)}')
    for ks in range(1, 4):
        a(f'v_xor_b32 {vr(vAK+ks)}, {64*ks}, {vr(vAK)}')
    a(f'v_and_b32 {vr(t1)}, 1, {vr(vI)}')
    a(f'v_lshlrev_b32 {vr(vNEG)}, 3, {vr(t1)}')
    a(f'v_lshlrev_b32 {vr(t1)}, 8, {vr(t1)}')
    a(f'v_lshl_add_u32 {vr(t1)}, {vr(vKGp)}, 4, {vr(t1)}')
    a(f'v_add_u32 {vr(vAG)}, {SOFF}, {vr(t1)}')
    a(f'v_bfe_u32 {vr(t1)}, {vr(vLANE)}, 2, 2')
    a(f'v_and_b32 {vr(t2)}, 3, {vr(vLANE)}')
    a(f'v_lshlrev_b32 {vr(t2)}, 3, {vr(t2)}')
    a(f'v_lshl_add_u32 {vr(t1)}, {vr(t1)}, 8, {vr(t2)}')
    a(f'v_add_u32 {vr(vAVG)}, {SOFF+2048}, {vr(t1)}')
    a(f'v_lshrrev_b32 {vr(t1)}, 2, {vr(vLANE)}')
    a(f'v_and_b32 {vr(vT0)}, 7, {vr(t1)}')
    a(f'v_lshl_add_u32 {vr(t2)}, {vr(vT0)}, 5, {vr(t2)}')
    a(f'v_lshl_add_u32 {vr(t2)}, {vr(t1)}, 8, {vr(t2)}')
    a(f's_add_u32 s{sT1}, s{sT0}, {VOFF}')
    a(f'v_add_u32 {vr(VA)}, s{sT1}, {vr(t2)}')
    for t in range(1, 8):
        a(f'v_xor_b32 {vr(VA+t)}, {32*t}, {vr(VA)}')
    a(f's_mul_i32 s{sT1}, s{sWV}, {32*STGP}')
    a(f's_add_u32 s{sT1}, s{sT1}, {STG}')
    a(f'v_mul_u32_u24 {vr(t1)}, {STGP}, {vr(vI)}')
    a(f'v_lshl_add_u32 {vr(t1)}, {vr(vKGp)}, 3, {vr(t1)}')
    a(f'v_add_u32 {vr(vSW)}, s{sT1}, {vr(t1)}')
    a(f'v_mul_u32_u24 {vr(t1)}, {STGP}, {vr(vKGp)}')
    a(f'v_lshl_add_u32 {vr(t1)}, {vr(vI)}, 4, {vr(t1)}')
    a(f'v_add_u32 {vr(vSR)}, s{sT1}, {vr(t1)}')
    a(f's_add_u32 s{sT0}, s{sT0}, s{sQ0B}')
    a(f'v_add_u32 {vr(vOO)}, s{sT0}, {vr(t3)}')
    a(f's_lshr_b32 s{sQB}, s{sT0}, 8')
    a(f's_cmp_eq_u32 s{sQB}, 0')
    a(f's_cselect_b32 s{sEX}, 0, -1')
    a(f's_mov_b32 s{sEX+1}, -1')
    a(f's_cmp_eq_u32 s{sQB}, {256*CC+32*(2*CW+1)}')
    a(f's_cselect_b32 s{sCMB}, 1, 0')
    a(f's_lshl_b32 s{sT0}, s{sWV}, 4')
    a(f's_add_u32 s{sT0}, s{sT0}, {PARTML}')
    a(f'v_add_u32 {vr(vNEG)}, s{sT0}, {vr(vNEG)}')

    spf = [int(x) for x in opt.get('spf', '0,0').split(',')]
    spstep = int(opt.get('spstep', 128)); sptile = opt.get('sptile', 'B')
    def sp_offsets():
        o = []
        for half in ([1, 0] if sptile == 'B' else [0, 1]):
            for blk in (1, 0):
                o += [8192*blk + 4096*half + x for x in range(0, 4096, spstep)]
        return o
    spo = sp_offsets()
    def sprefetch(n):
        for _ in range(n):
            if spo: a(f's_load_dword s61, s[10:11], {spo.pop(0)}')
    if sum(spf):
        a(f's_cmp_lt_u32 s{sWV}, 4')
        a('s_cbranch_scc1 L_nosp')
        a(f's_lshl_b32 s{sT0}, s{sBK}, 13')
        a(f's_add_u32 s{sT0}, s{sT0}, s{sQ0B}')
        a(f's_add_u32 s10, s{sQ}, s{sT0}')
        a(f's_addc_u32 s11, s{sQ+1}, 0')
        sprefetch(spf[0])
        a.label('L_nosp')
    a(f's_waitcnt vmcnt({N1}) lgkmcnt(0)')
    a(f's_cmp_lt_u32 s{sWV}, 4')
    a('s_cbranch_scc1 L_kw')
    a(f's_cmp_eq_u32 s{sWV}, {FW}')
    a('s_cbranch_scc1 L_kw')
    a('s_waitcnt vmcnt(0)')
    a.label('L_kw')
    stamp(opt.get('prek', False))
    a('s_barrier')
    stamp()
    a(f's_cmp_ge_u32 s{sWV}, 4')
    a('s_cbranch_scc1 L_nov2')
    for i in range(N1, 20): vpiece(i)
    a.label('L_nov2')
    stamp(fine)
    QG = O
    for W in (2, 3, 4, 5):
        for ks in range(4):
            a(f'ds_read_b128 {vr(kf(W,ks),4)}, {vr(vAK+ks)} offset:{4096*(W-2)}')
    for ks in range(4):
        a(f'ds_read_b128 {vr(KG+4*ks,4)}, {vr(vAG)} offset:{64*ks}')
    for t in range(8):
        a(f'ds_read_b64_tr_b16 {vr(VG+4*t+2,2)}, {vr(vAVG)} offset:{32*t}')
    a(f's_cmp_eq_u32 s{sWV}, {HW}')
    a('s_cbranch_scc1 L_k01done')
    for ks in range(4):
        a(f'v_subrev_u32 {vr(vAK+ks)}, 0x2000, {vr(vAK+ks)}')
    for W in (0, 1):
        for ks in range(4):
            a(f'ds_read_b128 {vr(kf(W,ks),4)}, {vr(vAK+ks)} offset:{4096*W}')
    a.label('L_k01done')
    def issue_qa():
        if opt.get('qprio'): a('s_setprio 3')
        for ks in range(4):
            a(f'buffer_load_dwordx4 {vr(QA+4*ks,4)}, {vr(vDQ)}, {sr(sQ,4)}, 0 offen offset:{64*ks} {qpol}')
        if opt.get('qprio'): a('s_setprio 0')

    def xred(m, t, op='v_max_f32'):
        a(f'v_mov_b32 {vr(t)}, {vr(m)}')
        a.nop(2)
        a(f'v_permlane16_swap_b32 {vr(m)}, {vr(t)}')
        a(f'{op} {vr(m)}, {vr(m)}, {vr(t)}')
        a(f'v_mov_b32 {vr(t)}, {vr(m)}')
        a.nop(2)
        a(f'v_permlane32_swap_b32 {vr(m)}, {vr(t)}')
        a(f'{op} {vr(m)}, {vr(m)}, {vr(t)}')
    def maxtree_l(vals, m, first=True):
        out = []; rest = list(vals)
        if first:
            out.append(f'v_max3_f32 {vr(m)}, {vr(rest[0])}, {vr(rest[1])}, {vr(rest[2])}'); rest = rest[3:]
        while len(rest) >= 2:
            out.append(f'v_max3_f32 {vr(m)}, {vr(m)}, {vr(rest[0])}, {vr(rest[1])}'); rest = rest[2:]
        if rest:
            out.append(f'v_max_f32 {vr(m)}, {vr(m)}, {vr(rest[0])}')
        return out
    def fma_l(vals, mc):
        if pk:
            return [f'v_pk_fma_f32 {vr(vals[n],2)}, {vr(vals[n],2)}, {sr(sCS,2)}, {vr(mc,2)} op_sel_hi:[1,1,0] neg_lo:[0,0,1] neg_hi:[0,0,1]' for n in range(0, len(vals), 2)]
        return [f'v_fma_f32 {vr(v)}, {vr(v)}, s{sCS}, -{vr(mc)}' for v in vals]
    exp_l = lambda vals: [f'v_exp_f32 {vr(v)}, {vr(v)}' for v in vals]
    cvt_l = lambda dst, src, n: [f'v_cvt_pk_bf16_f32 {vr(dst+k)}, {vr(src+2*k)}, {vr(src+2*k+1)}' for k in range(n)]

    def vread(dst, t, W):
        return f'ds_read_b64_tr_b16 {vr(dst,2)}, {vr(VA+t)} offset:{4096*W}'
    a(f's_cmp_lt_u32 s{sWV}, 4')
    a('s_cbranch_scc1 L_gk')
    sprefetch(spf[1])
    only(FW, 'L_notag')
    a('s_setprio 3')
    a(f's_lshl_b32 s{sT0}, s{sH}, 3')
    a(f'v_mov_b32 {vr(S+4)}, s{sT0}')
    a(f'v_mov_b32 {vr(S+5)}, s{sN}')
    a(f'v_mov_b32 {vr(S+6)}, {LCNT}')
    a(f'global_load_dword {vr(S+7)}, {vr(S+4)}, s[16:17]')
    a('s_setprio 0')
    issue_qa()
    a('s_waitcnt vmcnt(4)')
    if opt.get('forcefb'): a(f'v_mov_b32 {vr(S+7)}, 0')
    a(f's_cmp_eq_u32 s{sC}, {CC}')
    a('s_cselect_b64 vcc, -1, 0')
    a(f'v_cndmask_b32 {vr(S+7)}, {vr(S+7)}, {vr(S+5)}, vcc')
    a('s_mov_b64 exec, 1')
    a(f'ds_write_b32 {vr(S+6)}, {vr(S+7)} offset:4')
    a('s_mov_b64 exec, -1')
    a('s_branch L_tagdone')
    a.label('L_notag')
    issue_qa()
    a.label('L_tagdone')
    a('s_waitcnt lgkmcnt(0)')
    a(f'v_add_u32 {vr(vDQk)}, 0x1000, {vr(vDQ)}')
    stamp(fine)
    a('s_barrier')
    for t in range(8):
        a(vread(X[t+1], t, 0)); a(vread(X[t+1]+2, t, 1))
    a('s_branch L_gdone')
    a.label('L_gk')
    for ks in range(4):
        a(f'ds_read_b128 {vr(QG+4*ks,4)}, {vr(vAG)} offset:{1024+64*ks}')
    issue_qa()
    a('s_waitcnt lgkmcnt(0)')
    for T in range(4):
        for ks in range(4):
            a(mfma(S+4*T, kf(T,ks), QG+4*ks, '0' if ks == 0 else S+4*T))
    a(f'v_add_u32 {vr(vDQk)}, 0x1000, {vr(vDQ)}')
    a.nop(7)
    for l in maxtree_l([S+x for x in range(16)], vM): a(l)
    xred(vM, vT)
    a(f'v_mul_f32 {vr(vM)}, s{sCS}, {vr(vM)}')
    for l in fma_l([S+x for x in range(16)], vM): a(l)
    for l in exp_l([S+x for x in range(16)]): a(l)
    a.nop(1)
    a(f'v_add_f32 {vr(vT)}, {vr(S)}, {vr(S+1)}')
    for x in range(2, 16):
        a(f'v_add_f32 {vr(vT)}, {vr(vT)}, {vr(S+x)}')
    for l in cvt_l(S, S, 8): a(l)
    xred(vT, vT0, 'v_add_f32')
    a(f'ds_write_b64 {vr(vNEG)}, {vr(vM,2)}')
    a(f'v_mbcnt_lo_u32_b32 {vr(vT0)}, -1, 0')
    a(f's_lshl_b32 s{sT0}, s{sWV}, 10')
    a(f'v_lshl_add_u32 {vr(vT0)}, {vr(vT0)}, 3, s{sT0}')
    if stamps and fine:
        nst[0] -= 1
        stamp()
    a('s_waitcnt vmcnt(4) lgkmcnt(0)')
    a('s_barrier')
    gb = [QB + 4*n for n in range(4)] + [S + 8 + 4*n for n in range(4)]
    for t in range(8):
        a(vread(gb[t], t, 2)); a(vread(gb[t]+2, t, 3))
    for t in range(8):
        a('s_waitcnt lgkmcnt(14)')
        a(mfma(gb[t], S+4, gb[t], '0'))
        a(vread(X[t+1], t, 0)); a(vread(X[t+1]+2, t, 1))
    for t in range(8):
        a(f's_waitcnt lgkmcnt({14-2*t})')
        a(mfma(gb[t], S, X[t+1], gb[t]))
    a('s_mov_b64 exec, 1')
    a(f'v_mov_b32 {vr(S)}, {LCNT}')
    a(f'v_mov_b32 {vr(S+1)}, 1')
    a('s_mov_b64 exec, 0xffff')
    for t in range(8):
        a(f'ds_write_b64 {vr(vT0)}, {vr(gb[t],2)} offset:{PART+128*t}')
    a('s_mov_b64 exec, 1')
    a(f'ds_add_u32 {vr(S)}, {vr(S+1)}')
    a('s_mov_b64 exec, -1')
    a.label('L_gdone')
    stamp()

    emit = lambda ls: [a(l) for l in ls]
    def combine(og, mg, tm):
        NP = len(og)
        emit(maxtree_l([mg[n] for n in range(NP)], tm))
        for n in range(NP):
            a(f'v_sub_f32 {vr(mg[n])}, {vr(mg[n])}, {vr(tm)}')
        for n in range(NP):
            a(f'v_exp_f32 {vr(mg[n])}, {vr(mg[n])}')
        a.nop(1)
        for e in range(4):
            a(f'v_mul_f32 {vr(og[0][e])}, {vr(og[0][e])}, {vr(mg[0])}')
        a(f'v_mul_f32 {vr(mg[0]+1)}, {vr(mg[0]+1)}, {vr(mg[0])}')
        for n in range(1, NP):
            for e in range(4):
                a(f'v_fmac_f32 {vr(og[0][e])}, {vr(og[n][e])}, {vr(mg[n])}')
            a(f'v_fmac_f32 {vr(mg[0]+1)}, {vr(mg[n]+1)}, {vr(mg[n])}')

    def issue_qb():
        for ks in range(4):
            a(f'buffer_load_dwordx4 {vr(QB+4*ks,4)}, {vr(vDQk)}, {sr(sQ,4)}, 0 offen offset:{64*ks} {qpol}')
        a(f'v_mov_b32 {vr(vDQk)}, 0')
    issue_qb()
    if opt.get('otouch'):
        only(FW, 'L_nootouch')
        a(f's_mov_b32 m0, {PARTML+256}')
        a('s_mov_b64 exec, 1')
        a(f'buffer_load_dword {vr(vOO)}, {sr(sO,4)}, 0 offen lds')
        a(f'buffer_load_dword {vr(vOO)}, {sr(sO,4)}, 0 offen offset:512 lds')
        a('s_mov_b64 exec, -1')
        a('s_waitcnt vmcnt(6)')
        a('s_branch L_tileA')
        a.label('L_nootouch')
    a(f's_cmp_eq_u32 s{sWV}, {RW}')
    a('s_cbranch_scc1 L_reduce')
    a(f's_cmp_eq_u32 s{sCMB}, 0')
    a('s_cbranch_scc1 L_noflag')
    a(f'v_mov_b32 {vr(vT0)}, {LNON}')
    a(f'ds_read_b32 {vr(vT0)}, {vr(vT0)}')
    a('s_waitcnt lgkmcnt(0)')
    a(f'v_readfirstlane_b32 s{sN}, {vr(vT0)}')
    a.label('L_noflag')
    a('s_waitcnt vmcnt(4)')
    a('s_branch L_tileA')
    a.label('L_reduce')
    R0 = S
    a(f'v_mbcnt_lo_u32_b32 {vr(R0)}, -1, 0')
    a(f'v_mbcnt_hi_u32_b32 {vr(R0)}, -1, {vr(R0)}')
    a(f'v_lshrrev_b32 {vr(R0+1)}, 5, {vr(R0)}')
    a(f'v_and_b32 {vr(R0+3)}, 31, {vr(R0)}')
    a(f'v_lshlrev_b32 {vr(R0+3)}, 5, {vr(R0+3)}')
    a(f'v_lshl_add_u32 {vr(R0+3)}, {vr(R0+1)}, 2, {vr(R0+3)}')
    a(f'v_lshlrev_b32 {vr(R0+1)}, 3, {vr(R0+1)}')
    a(f'v_add_u32 {vr(R0+1)}, {PARTML}, {vr(R0+1)}')
    a(f'v_lshlrev_b32 {vr(R0)}, 4, {vr(R0)}')
    a(f'v_mov_b32 {vr(R0+2)}, {LCNT}')
    a(f's_mov_b32 s{sCNT}, 0')
    a.label('L_lspin')
    a(f'ds_read_b64 {vr(S+4,2)}, {vr(R0+2)}')
    a(f's_add_u32 s{sCNT}, s{sCNT}, 1')
    a('s_waitcnt lgkmcnt(0)')
    a(f'v_readfirstlane_b32 s{sT0}, {vr(S+4)}')
    a(f'v_readfirstlane_b32 s{sN}, {vr(S+5)}')
    a(f's_cmp_ge_u32 s{sCNT}, 0x100000')
    a('s_cbranch_scc1 L_lok')
    a(f's_cmp_lt_u32 s{sT0}, 4')
    a('s_cbranch_scc1 L_lspin')
    a.label('L_lok')
    mg = [S+4, S+6, O, O+2]
    G0 = S + 8
    og = [[G0+4*n+e for e in range(4)] for n in range(4)]
    for n in range(4):
        a(f'ds_read_b64 {vr(mg[n],2)}, {vr(R0+1)} offset:{16*n}')
    for n in range(4):
        if n: a(f'v_add_u32 {vr(R0+3)}, 1024, {vr(R0+3)}')
        a(f'ds_read2_b32 {vr(G0+4*n,2)}, {vr(R0+3)} offset0:0 offset1:2')
        a(f'ds_read2_b32 {vr(G0+4*n+2,2)}, {vr(R0+3)} offset0:4 offset1:6')
    a('s_waitcnt lgkmcnt(0)')
    combine(og, mg, R0+1)
    a(f'v_mov_b32 {vr(G0+4)}, {vr(G0+3)}')
    a(f'v_mov_b32 {vr(G0+5)}, {vr(R0+1)}')
    a(f'v_mov_b32 {vr(G0+6)}, {vr(mg[0]+1)}')
    a(f'v_mov_b32 {vr(G0+7)}, s{sN}')
    a(f'v_mov_b32 {vr(G0+3)}, s{sN}')
    a(f'buffer_store_dwordx4 {vr(G0+4,4)}, {vr(R0)}, {sr(sW,4)}, s42 offen offset:1024 sc0 sc1')
    a(f'buffer_store_dwordx4 {vr(G0,4)}, {vr(R0)}, {sr(sW,4)}, s42 offen sc0 sc1')
    a(f's_cmp_lg_u32 s{sN}, 0')
    a('s_cbranch_scc1 L_tagged')
    a('s_waitcnt vmcnt(0)')
    a(f's_lshl_b32 s{sT0}, s{sH}, 3')
    a(f's_lshl_b32 s{sT1}, 1, s{sC}')
    a(f'v_mov_b32 {vr(R0)}, s{sT0}')
    a(f'v_mov_b32 {vr(R0+1)}, s{sT1}')
    a('s_mov_b64 exec, 1')
    a(f'global_atomic_or {vr(R0)}, {vr(R0+1)}, s[16:17] offset:4 sc1')
    a('s_mov_b64 exec, -1')
    a.label('L_tagged')
    a('s_waitcnt vmcnt(6)')
    a.label('L_tileA')
    def yprio(tag):
        if yp == tag:
            a(f's_cmp_lt_u32 s{sWV}, 4')
            a(f's_cbranch_scc1 L_yp{tag}')
            a('s_setprio 1')
            a.label(f'L_yp{tag}')
    yprio('a')
    stamp()

    def inter(ms, vs, per=2):
        vs = list(vs)
        for m in ms:
            a(m)
            for _ in range(per):
                if vs: a(vs.pop(0))
        for v in vs: a(v)

    HB = kf(2, 0)
    def hand_loads():
        a(f'v_mbcnt_lo_u32_b32 {vr(KG)}, -1, 0')
        a(f'v_mbcnt_hi_u32_b32 {vr(KG)}, -1, {vr(KG)}')
        a(f'v_lshlrev_b32 {vr(KG)}, 4, {vr(KG)}')
        for n in range(8):
            a(f's_movk_i32 s{sT0}, {2048*n}')
            a(f'buffer_load_dwordx4 {vr(HB+8*n,4)}, {vr(KG)}, {sr(sW,4)}, s{sT0} offen sc0 sc1')
            a(f'buffer_load_dwordx4 {vr(HB+8*n+4,4)}, {vr(KG)}, {sr(sW,4)}, s{sT0} offen offset:1024 sc0 sc1')

    buf = [kf(0, n) for n in range(4)] + [QA + 4*n for n in range(4)]
    SLOTW = {0: [0, 1, 2, 3, 4], 1: [4, 5, 2, 3, 1]}
    def qk(tau, sl):
        Q = QA if tau == 0 else QB
        if sl == 'G':
            return [mfma(S+20, KG+4*ks, Q+4*ks, '0' if ks == 0 else S+20) for ks in range(4)]
        W = SLOTW[tau][sl]
        c0 = BLO if W == tau else BHI if W == tau + 4 else '0'
        return [mfma(S+4*sl, kf(W,ks), Q+4*ks, c0 if ks == 0 else S+4*sl) for ks in range(4)]
    def edge_test(tau, lab):
        a(f's_sub_u32 s{sT0}, s{sQB}, {48 - 16*tau}')
        a(f's_cmp_lt_u32 s{sT0}, 1968')
        a(f's_cbranch_scc1 {lab}')
    def edge_mask(tau, tr):
        a(f'v_mbcnt_lo_u32_b32 {vr(tr)}, -1, 0')
        a(f'v_mbcnt_hi_u32_b32 {vr(tr)}, -1, {vr(tr)}')
        a(f'v_lshrrev_b32 {vr(tr)}, 4, {vr(tr)}')
        a(f's_sub_u32 s{sT0}, s{sQB}, 34')
        a(f's_movk_i32 s{sT1}, 2046')
        a(f'v_lshl_add_u32 {vr(tr)}, {vr(tr)}, 2, s{sT0}')
        a(f'v_mov_b32 {vr(vM)}, 0x{NEG:08x}')
        a('s_nop 3')
        for sl in range(5):
            for r in range(4):
                a(f'v_add_u32 {vr(vT)}, {16*SLOTW[tau][sl]+r}, {vr(tr)}')
                a(f'v_cmp_gt_u32 vcc, s{sT1}, {vr(vT)}')
                a('s_nop 1')
                a(f'v_cndmask_b32 {vr(S+4*sl+r)}, {vr(vM)}, {vr(S+4*sl+r)}, vcc')
        for l in maxtree_l([S+x for x in range(22)], vM): a(l)
    def epi(t, tau=0):
        l = [f'v_mul_f32 {vr(O+4*t+e)}, {vr(O+4*t+e)}, {vr(vT0)}' for e in range(4)]
        l += [f'v_cvt_pk_bf16_f32 {vr(O+4*t)}, {vr(O+4*t)}, {vr(O+4*t+1)}',
              f'v_cvt_pk_bf16_f32 {vr(O+4*t+1)}, {vr(O+4*t+2)}, {vr(O+4*t+3)}',
              f'ds_write_b64 {vr(vSW)}, {vr(O+4*t,2)} offset:{32*t + 16*STGP*tau}']
        return l
    def stage_reads(tau=0, R=O):
        return [f'ds_read_b128 {vr(R+4*j,4)}, {vr(vSR)} offset:{4*STGP*j + 16*STGP*tau}' for j in range(4)]
    def stores(tau, R=O, extra=0):
        for j in range(4):
            a(f's_waitcnt lgkmcnt({3-j+extra})')
            if tau == 0 and j == 0: a(f's_mov_b64 exec, {sr(sEX,2)}')
            a(f'buffer_store_dwordx4 {vr(R+4*j,4)}, {vr(vOO)}, {sr(sO,4)}, s{sTOFF if tau else sZERO} offen offset:{1024*j} {stpol}')
            if tau == 0 and j == 0: a('s_mov_b64 exec, -1')
    RA = kf(1, 0)
    def late_a():
        for l in stage_reads(0, RA): a(l)
        stores(0, RA)
    def softmax_pv(tau):
        m = vM
        xred(m, vT)
        a(f'v_mul_f32 {vr(m)}, s{sCS}, {vr(m)}')
        set0 = [S+x for x in range(8)]; set1 = [S+8+x for x in range(8)]; set2 = [S+16+x for x in range(6)]
        for l in fma_l(set0, m): a(l)
        f2 = fma_l(set2, m); f1 = fma_l(set1, m)
        for l in exp_l(set0): a(l)
        a(f2[0])
        for l in cvt_l(S, S, 4): a(l)
        a(f2[1])
        a('s_waitcnt lgkmcnt(0)' if tau == 1 else 's_waitcnt lgkmcnt(8)')
        if tau == 1 and apos == 1: late_a()
        ONES, LACC = S+4, S+20
        v2 = f2[2:] + exp_l(set2) + [f'v_mov_b32 {vr(ONES+n)}, 0x3f803f80' for n in range(4)] + cvt_l(S+16, S+16, 3) \
             + [f'v_mov_b32 {vr(S+19)}, 0', f'v_cndmask_b32 {vr(S+18)}, 0, {vr(S+18)}, {sr(sKG0,2)}']
        inter([mfma(X[t], X[t+1], S, '0') for t in range(8)], v2 + f1[:2])
        v1 = f1[2:] + exp_l(set1) + [f'v_mov_b32 {vr(vT0)}, 0'] + cvt_l(S+8, S+8, 4)
        inter([mfma(O+4*t, VG+4*t, S+16, O+4*t) for t in range(8)], v1)
        a(mfma(LACC, ONES, S, '0'))
        a(mfma(LACC, ONES, S+16, LACC))
        a(mfma(LACC, ONES, S+8, LACC))
        if tau == 0:
            a('s_waitcnt lgkmcnt(0)')
        for t in range(8):
            a(mfma(O+4*t, buf[t], S+8, O+4*t))
            if tau == 0: a(vread(VG+4*t, t, 1))
        a(f'v_rcp_f32 {vr(vT0)}, {vr(LACC)}')

    late = []
    for t in range(8):
        late += [vread(buf[t], t, 2), vread(buf[t]+2, t, 3)]
    vgr = [vread(VG+4*t, t, 4) for t in range(8)]
    edge_test(0, 'L_fastA')
    for l in vgr: a(l)
    for sl in ('G', 0, 1, 2, 3, 4):
        for l in qk(0, sl): a(l)
    for l in late: a(l)
    edge_mask(0, vT0)
    a('s_branch L_joinA')
    a.label('L_fastA')
    m = vM
    inter(qk(0, 0) + qk(0, 'G'), vgr, per=1)
    inter(qk(0, 1) + qk(0, 2), late[:8], per=1)
    inter(qk(0, 3), maxtree_l([S+20, S+21, S+0], m) + maxtree_l([S+1, S+2, S+3, S+4, S+5, S+6], m, False), per=1)
    inter(qk(0, 4), maxtree_l([S+7, S+8, S+9, S+10], m, False), per=1)
    for l in late[8:11]: a(l)
    for l in maxtree_l([S+11, S+12], m, False): a(l)
    for l in late[11:13]: a(l)
    for l in maxtree_l([S+13, S+14, S+15], m, False): a(l)
    for l in late[13:]: a(l)
    for l in maxtree_l([S+16, S+17, S+18, S+19], m, False): a(l)
    a.label('L_joinA')
    yprio('s')
    stamp(fine)
    softmax_pv(0)
    stamp(fine)
    ep = []
    for t in range(8): ep += epi(t)
    if apos == 0: ep += stage_reads()
    xb = []
    for t in range(8): xb += [vread(X[t+1], t, 4), vread(X[t+1]+2, t, 5)]
    def qb_wait(n):
        a(f's_waitcnt vmcnt({n+2})')
        if opt.get('otouch'):
            a(f's_and_b32 s{sT0}, s{sWV}, 3')
            a(f's_cmp_eq_u32 s{sT0}, 3')
        else:
            a(f's_cmp_eq_u32 s{sWV}, {RW}')
        a('s_cbranch_scc1 L_qbw')
        a(f's_waitcnt vmcnt({n})')
        a.label('L_qbw')
    if merge == 'hyb':
        a('s_nop 0')
        for l in ep: a(l)
        qb_wait(0)
        stamp()
        spos = int(opt.get('spos', 0))
        edge_test(1, 'L_fastB')
        stores(0)
        for sl in ('G', 0, 1, 2, 3, 4):
            for l in qk(1, sl): a(l)
        for l in xb: a(l)
        edge_mask(1, vT0)
        a('s_branch L_joinB')
        a.label('L_fastB')
        if spos == 0:
            stores(0)
            inter(qk(1, 'G') + qk(1, 0) + qk(1, 1) + qk(1, 2), xb, per=1)
        elif spos == 1:
            for l in qk(1, 'G') + qk(1, 0): a(l)
            stores(0)
            inter(qk(1, 1) + qk(1, 2), xb, per=2)
        else:
            for l in qk(1, 'G') + qk(1, 0) + qk(1, 1) + qk(1, 2): a(l)
        inter(qk(1, 3), maxtree_l([S+20, S+21, S+0], m) + maxtree_l([S+1, S+2, S+3, S+4, S+5, S+6], m, False), per=1)
        inter(qk(1, 4), maxtree_l([S+7, S+8], m, False), per=1)
        a.nop(1)
        for l in maxtree_l([S+9, S+10, S+11, S+12], m, False): a(l)
        a.nop(1)
        for l in maxtree_l([S+13, S+14, S+15], m, False): a(l)
        if spos == 2:
            stores(0)
            for l in xb: a(l)
        else:
            a.nop(3)
        for l in maxtree_l([S+16, S+17, S+18, S+19], m, False): a(l)
    elif not merge:
        a('s_nop 0')
        for l in ep: a(l)
        stores(0)
        for l in xb: a(l)
        qb_wait(4)
        stamp()
        edge_test(1, 'L_fastB')
        for sl in ('G', 0, 1, 2, 3, 4):
            for l in qk(1, sl): a(l)
        edge_mask(1, vT0)
        a('s_branch L_joinB')
        a.label('L_fastB')
        for sl in ('G', 0, 1, 2):
            for l in qk(1, sl): a(l)
        inter(qk(1, 3), maxtree_l([S+20, S+21, S+0], m) + maxtree_l([S+1, S+2], m, False), per=1)
        inter(qk(1, 4), maxtree_l([S+3, S+4, S+5, S+6, S+7, S+8], m, False), per=1)
        a.nop(1)
        for l in maxtree_l([S+9, S+10, S+11, S+12], m, False): a(l)
        a.nop(1)
        for l in maxtree_l([S+13, S+14, S+15], m, False): a(l)
        a.nop(2)
        for l in maxtree_l([S+16, S+17, S+18, S+19], m, False): a(l)
    else:
        qb_wait(0)
        yprio('m')
        stamp()
        edge_test(1, 'L_fastB')
        for l in ep: a(l)
        if apos == 0: stores(0)
        for sl in (0, 1, 2, 3, 4, 'G'):
            for l in qk(1, sl): a(l)
        for l in xb: a(l)
        edge_mask(1, vT0)
        a('s_branch L_joinB')
        a.label('L_fastB')
        ms = []
        for sl in (0, 1, 2, 3, 4, 'G'): ms += qk(1, sl)
        inter(ms, ep, per=3)
        for l in maxtree_l([S+x for x in range(15)], vT0): a(l)
        if apos == 0: stores(0)
        for l in xb: a(l)
        a(f'v_max3_f32 {vr(vM)}, {vr(vT0)}, {vr(S+15)}, {vr(S+16)}')
        for l in maxtree_l([S+17, S+18, S+19, S+20, S+21], vM, False): a(l)
    a.label('L_joinB')
    yprio('b')
    stamp()
    a(f's_cmp_eq_u32 s{sCMB}, 0')
    a('s_cbranch_scc1 L_nohand')
    hand_loads()
    a.label('L_nohand')
    softmax_pv(1)
    stamp(fine)
    if apos == 2:
        late_a()
    a('s_nop 0')
    if apos == 3:
        for l in stage_reads(0, RA): a(l)
    for t in range(8):
        for l in epi(t, 1): a(l)
    for l in stage_reads(1): a(l)
    if apos == 3:
        stores(0, RA, extra=4+8) if False else None
        for j in range(4):
            if j == 0: a(f's_mov_b64 exec, {sr(sEX,2)}')
            if j == 0: a('s_waitcnt lgkmcnt(4)')
            a(f'buffer_store_dwordx4 {vr(RA+4*j,4)}, {vr(vOO)}, {sr(sO,4)}, s{sZERO} offen offset:{1024*j} {stpol}')
            if j == 0: a('s_mov_b64 exec, -1')
    stores(1)
    stamp()

    a(f's_cmp_eq_u32 s{sCMB}, 0')
    a('s_cbranch_scc1 L_fin')
    a(f's_waitcnt vmcnt({4 if apos == 0 else 8})')
    a(f's_mov_b32 s{sCNT}, 0')
    a(f's_mov_b32 s{sT2}, 0')
    a.label('L_chk')
    a(f's_mov_b32 s{sT3}, s{sT2}')
    for n in range(8):
        a(f'v_cmp_eq_u32 vcc, s{sN}, {vr(HB+8*n+3)}')
        a(f'v_cmp_eq_u32 s[60:61], s{sN}, {vr(HB+8*n+7)}')
        a('s_nop 0')
        a('s_and_b64 vcc, vcc, s[60:61]')
        a('s_cmp_eq_u64 vcc, exec')
        a(f's_cselect_b32 s{sT0}, {1 << n}, 0')
        a(f's_or_b32 s{sT3}, s{sT3}, s{sT0}')
    a(f's_add_u32 s{sCNT}, s{sCNT}, 1')
    a(f's_cmp_eq_u32 s{sT3}, 0xff')
    a('s_cbranch_scc1 L_ready')
    a(f's_cmp_ge_u32 s{sCNT}, 0x40000')
    a('s_cbranch_scc1 L_ready')
    a(f's_lshl_b32 s{sT0}, s{sH}, 3')
    a(f'v_mov_b32 {vr(KG+1)}, s{sT0}')
    a(f'global_load_dword {vr(KG+2)}, {vr(KG+1)}, s[16:17] offset:4 sc0 sc1')
    a('s_waitcnt vmcnt(0)')
    a(f'v_readfirstlane_b32 s{sT2}, {vr(KG+2)}')
    hand_loads()
    a('s_waitcnt vmcnt(0)')
    a('s_branch L_chk')
    a.label('L_ready')
    hog = [[HB+8*n, HB+8*n+1, HB+8*n+2, HB+8*n+4] for n in range(8)]
    hmg = [HB+8*n+5 for n in range(8)]
    combine(hog, hmg, X8)
    a(f'v_rcp_f32 {vr(X8)}, {vr(hmg[0]+1)}')
    a(f'v_lshrrev_b32 {vr(KG)}, 1, {vr(KG)}')
    for e in range(4):
        a(f'v_mul_f32 {vr(hog[0][e])}, {vr(hog[0][e])}, {vr(X8)}')
    a(f'v_cvt_pk_bf16_f32 {vr(X8+2)}, {vr(hog[0][0])}, {vr(hog[0][1])}')
    a(f'v_cvt_pk_bf16_f32 {vr(X8+3)}, {vr(hog[0][2])}, {vr(hog[0][3])}')
    a(f'buffer_store_dwordx2 {vr(X8+2,2)}, {vr(KG)}, {sr(sO,4)}, 0 offen {stpol}')
    a.label('L_fin')
    if stamps:
        stamp()
        a('s_waitcnt vmcnt(0)')
        stamp()
        if opt.get('clk'):
            a('s_memtime s[98:99]')
            a('s_waitcnt lgkmcnt(0)')
            a('s_sub_u32 s98, s98, s96')
            a(f's_add_u32 s{64+2*nst[0]}, s98, s64')
            nst[0] += 1
        a(f's_lshl_b32 s{sT0}, s2, 3')
        a(f's_add_u32 s{sT0}, s{sT0}, s{sWV}')
        a(f's_lshl_b32 s{sT0}, s{sT0}, 6')
        a(f's_add_u32 s{sT0}, s{sT0}, 0x100000')
        a(f's_add_u32 s{sW}, s18, s{sT0}')
        a(f's_addc_u32 s{sW+1}, s19, 0')
        a(f'v_mov_b32 v1, 0')
        a('s_mov_b64 exec, 1')
        for n in range(min(16, nst[0])):
            a(f'v_mov_b32 v2, s{64+2*n}')
            a(f'buffer_store_dword v2, v1, {sr(sW,4)}, 0 offen offset:{4*n}')
        if 'leak' in opt:
            k = int(opt['leak'])
            a(f's_sub_u32 s{sT0}, s{64+2*k}, s64')
            a(f's_lshl_b32 s{sT0}, s{sT0}, 2')
            if opt.get('leakskew'):
                a.label('L_pre')
                a('s_memrealtime s[100:101]')
                a('s_waitcnt lgkmcnt(0)')
                a(f's_sub_u32 s{sT1}, s100, s64')
                a(f's_cmp_lt_u32 s{sT1}, 3000')
                a('s_cbranch_scc1 L_pre')
                a('s_mov_b64 exec, -1')
                a('v_mbcnt_lo_u32_b32 v3, -1, 0')
                a('v_and_b32 v3, 31, v3')
                a('v_lshlrev_b32 v3, 3, v3')
                a('global_load_dword v4, v3, s[16:17] sc0 sc1')
                a('s_waitcnt vmcnt(0)')
                a('v_readlane_b32 s20, v4, 0')
                a('s_mov_b32 s21, 0'); a('s_mov_b32 s22, 0')
                for n in range(1, 32):
                    a(f'v_readlane_b32 s23, v4, {n}')
                    a('s_nop 0')
                    a('s_sub_i32 s23, s23, s20')
                    a('s_min_i32 s21, s21, s23')
                    a('s_max_i32 s22, s22, s23')
                a(f's_sub_u32 s{sT0}, s22, s21')
                a(f's_min_u32 s{sT0}, s{sT0}, 2000')
                a(f's_lshl_b32 s{sT0}, s{sT0}, 2')
            if opt.get('leakxcc'):
                a('s_getreg_b32 s61, hwreg(HW_REG_XCC_ID, 0, 4)')
                a(f's_bfe_u32 s60, s{sN}, 0x40001')
                a('s_cmp_lg_u32 s60, s61')
                a(f's_cselect_b32 s{sT0}, 2000, 0')
            if opt.get('leakcnt'):
                a(f's_mul_i32 s{sT0}, s{sCNT}, 500')
                a(f's_mul_i32 s{sT0}, s{sT0}, s{sCMB}')
            if 'leakh' in opt:
                lo, hi = opt['leakh'].split(',')
                a(f's_sub_u32 s{sT1}, s{sH}, {lo}')
                a(f's_cmp_lt_u32 s{sT1}, {int(hi)-int(lo)}')
                a(f's_cselect_b32 s{sT0}, s{sT0}, 0')
            if 'leakwg' in opt:
                a(f's_cmp_eq_u32 s2, {opt["leakwg"]}')
                a(f's_cselect_b32 s{sT0}, s{sT0}, 0')
            if 'leakx' in opt:
                a(f's_getreg_b32 s{sT1}, hwreg(HW_REG_XCC_ID, 0, 4)')
                a(f's_lshr_b32 s{sT1}, {opt["leakx"]}, s{sT1}')
                a(f's_bitcmp1_b32 s{sT1}, 0')
                a(f's_cselect_b32 s{sT0}, s{sT0}, 0')
            if 'leakw' in opt:
                a(f's_lshr_b32 s{sT1}, {opt["leakw"]}, s{sWV}')
                a(f's_bitcmp1_b32 s{sT1}, 0')
                a(f's_cselect_b32 s{sT0}, s{sT0}, 0')
            a(f"s_add_u32 s{sT0}, s{sT0}, {opt.get('spin', 5000)}")
            a.label('L_spin')
            a('s_memrealtime s[100:101]')
            a('s_waitcnt lgkmcnt(0)')
            a(f's_sub_u32 s{sT1}, s100, s64')
            a(f's_cmp_lt_u32 s{sT1}, s{sT0}')
            a('s_cbranch_scc1 L_spin')
    a.label('L_end')
    a('s_endpgm')
    if opt.get('cpf', True):
        a('.fill 4096, 4, 0xbf800000')

    check(a.lines)
    if stamps: print('stamps', nst[0])
    head = f'''; windowed + global-token attention, B=1 H=32 S=2048 D=128 bf16 (window 32, 2 global tokens)
; @launch grid=(256,1,1) block=(512,1,1) lds=163840
.amdgcn_target "amdgcn-amd-amdhsa--gfx950"
.text
.globl {NAME}
.p2align 8
.type {NAME},@function
{NAME}:
'''
    tail = f'''.section .rodata,"a"
.p2align 6
.amdhsa_kernel {NAME}
  .amdhsa_next_free_vgpr 256
  .amdhsa_next_free_sgpr {102 if stamps else 64}
  .amdhsa_accum_offset 256
  .amdhsa_group_segment_fixed_size 0
  .amdhsa_kernarg_size 64
  .amdhsa_user_sgpr_count 2
  .amdhsa_user_sgpr_kernarg_segment_ptr 1
  .amdhsa_system_sgpr_workgroup_id_x 1
.end_amdhsa_kernel
'''
    return head + a.text() + tail

if __name__ == '__main__':
    out = sys.argv[1]
    opt = {}
    for kv in sys.argv[2:]:
        k, v = kv.split('=', 1)
        opt[k] = {'True': True, 'False': False}.get(v, v.replace('+', ' '))
    open(out, 'w').write(gen(opt))
```

```python
import sys, math, struct
from asmlib import *

NAME = 'standalone__global_local_windowed_global_tokens__prompt_kernel'
def f2u(x): return struct.unpack('<I', struct.pack('<f', x))[0]

def gen(opt):
    a = Asm()
    NEG = 0xFF000000
    CSC = f2u(128 ** -0.5 * math.log2(math.e))
    KOFF, VOFF, SOFF = 0, 73728, 155648
    apos = int(opt.get('apos', 0))
    PART, STG = 0, 4096
    PARTML, LCNT, LNON = SOFF + 3072, SOFF + 3072 + 128, SOFF + 3072 + 132
    STGP = 272
    ldpol = opt.get('ldpol', '')
    qpol = opt.get('qpol', '')
    stpol = opt.get('stpol', 'sc0 sc1 nt')
    pk = opt.get('pk', True)
    N1 = int(opt.get('n1', 10))
    yp = opt.get('yp', '')
    RW = int(opt.get('rw', 3))
    FW = 7
    SW = 5
    CW, CC = int(opt.get('cw', 1)), 3
    merge = opt.get('merge', True)
    sQ, sK, sV, sO, sW = 20, 24, 28, 32, 36
    sWV, sH, sC, sHO, sQ0B = 40, 43, 44, 45, 46
    sT0, sT1, sT2, sT3 = 47, 48, 49, 50
    sBK = 62
    HW = 4
    sCS = 52; sKG0 = 54; sQB = 51; sEX = 56; sCMB = 58; sCNT = 59; sN = 63; sTOFF = 41; sZERO = 3
    VA = 0
    vSW, vSR, vOO, vT0 = 8, 9, 10, 11
    X8 = 12
    KF = 16; KG = 112; QA, QB = 128, 144; VG = 160; O = 192; S = 224
    BLO, BHI = 248, 252
    kf = lambda W, ks: KF + 16 * W + 4 * ks
    X = [O + 4 * n for n in range(8)] + [X8]
    vLANE, vI, vKGp, vDK, vDV, vDQ, vAG, vNEG, vAK = O+16, O+17, O+18, O+19, O+20, O+21, O+22, O+23, O+24
    vAVG, t1, t2, t3 = O+28, O+29, O+30, O+31
    vDQk = VG + 7
    vFLAG = VG + 3
    vM, vT = S + 22, S + 23

    stamps = opt.get('stamps', False)
    fine = opt.get('fine', False)
    nst = [0]
    def stamp(on=True):
        if stamps and on:
            a(f's_memrealtime s[{64+2*nst[0]}:{65+2*nst[0]}]')
            if nst[0]: a('s_waitcnt lgkmcnt(0)')
            nst[0] += 1
    M16 = 'v_mfma_f32_16x16x32_bf16'
    def mfma(d, x, y, c):
        return f'{M16} {vr(d,4)}, {vr(x,4)}, {vr(y,4)}, {c if isinstance(c,str) else vr(c,4)}'
    def only(w, lab):
        a(f's_cmp_lg_u32 s{sWV}, {w}')
        a(f's_cbranch_scc1 {lab}')

    stamp()
    if opt.get('clk'): a('s_memtime s[96:97]')
    a('s_load_dwordx16 s[4:19], s[0:1], 0')
    a(f'v_readfirstlane_b32 s{sWV}, v0')
    a('s_cmp_ge_u32 s2, 256')
    a('s_cbranch_scc1 L_end')
    a(f'v_lshrrev_b32 {vr(t1)}, 4, v0')
    a(f'v_xor_b32 {vr(vDK)}, {vr(t1)}, v0')
    a(f'v_and_b32 {vr(vDK)}, 15, {vr(vDK)}')
    a(f'v_lshl_add_u32 {vr(vDK)}, {vr(t1)}, 4, {vr(vDK)}')
    a(f's_bfe_u32 s{sC}, s2, 0x30003')
    a(f's_lshl_b32 s{sQ0B}, s{sC}, 16')
    a(f'v_lshl_add_u32 {vr(vDK)}, {vr(vDK)}, 4, s{sQ0B}')
    a('s_and_b32 s41, s2, 7')
    a(f's_lshr_b32 s{sH}, s2, 6')
    a(f's_lshl2_add_u32 s{sH}, s41, s{sH}')
    a(f's_lshl_b32 s{sHO}, s{sH}, 19')
    a(f's_lshl_b32 m0, s{sWV}, 4')
    a(f's_mov_b32 s{sK+2}, 0x80000')
    a(f's_mov_b32 s{sK+3}, 0x20000')
    a(f's_movk_i32 s{sCNT}, 17')
    cpf = opt.get('cpf', 'one')
    a.label('L_base')
    if cpf is True:
        a(f's_getpc_b64 s[{sEX}:{sEX+1}]')
        a(f'v_lshlrev_b32 v1, 5, v0')
        a(f'global_load_dword {vr(X8)}, v1, s[{sEX}:{sEX+1}]')
    a(f's_cmp_ge_u32 s{sWV}, 256')
    a('s_cbranch_scc1 L_helper')
    a('s_waitcnt lgkmcnt(0)')
    stamp()
    a(f's_add_u32 s{sK}, s6, s{sHO}')
    a(f's_addc_u32 s{sK+1}, s7, 0')
    thr = int(opt.get('thr', 0)); tl = [0]
    if thr: a('s_getreg_b32 s1, hwreg(HW_REG_XCC_ID, 0, 4)')
    def throttle():
        if thr:
            a('s_bitcmp1_b32 s1, 0')
            a(f's_cbranch_scc{opt.get("thpar", 1)} L_th{tl[0]}')
            a(f's_waitcnt vmcnt({thr-1})')
            a.label(f'L_th{tl[0]}')
            tl[0] += 1
    a.label('L_kloop')
    throttle()
    a(f'buffer_load_dwordx4 {vr(vDK)}, {sr(sK,4)}, 0 offen {opt.get("kpol", ldpol)} lds')
    a('s_add_u32 m0, m0, 0x1000')
    a(f'v_add_u32 {vr(vDK)}, 0x1000, {vr(vDK)}')
    a(f's_sub_u32 s{sCNT}, s{sCNT}, 1')
    a('s_cbranch_scc0 L_kloop')
    if 'dup' in opt:
        nd = int(opt['dup'])
        a(f's_sub_u32 m0, m0, {0x1000*18}')
        a(f'v_subrev_u32 {vr(vDK)}, {0x1000*18}, {vr(vDK)}')
        for i in range(nd):
            a(f'buffer_load_dwordx4 {vr(vDK)}, {sr(sK,4)}, 0 offen lds')
            a('s_add_u32 m0, m0, 0x1000')
            a(f'v_add_u32 {vr(vDK)}, 0x1000, {vr(vDK)}')
    stamp(opt.get('postk', False))
    def common():
        a(f's_lshr_b32 s{sWV}, s{sWV}, 6')
        a(f'v_and_b32 {vr(vLANE)}, 63, v0')
        a(f'v_and_b32 {vr(vI)}, 15, v0')
        a(f'v_bfe_u32 {vr(vKGp)}, v0, 4, 2')
        a(f's_lshl_b32 s{sT1}, s{sWV}, 10')
        a(f's_add_u32 s{sT2}, s{sT1}, s{sQ0B}')
        for s_ in (sV, sQ):
            a(f's_mov_b32 s{s_+2}, 0x80000')
            a(f's_mov_b32 s{s_+3}, 0x20000')
        a(f's_mov_b32 s{sW+2}, 0x4000')
        a(f's_mov_b32 s{sW+3}, 0x20000')
        a(f's_and_b32 s{sBK}, s{sWV}, 3')
        a(f's_lshl_b32 s{sBK}, s{sBK}, 1')
        a(f's_cmp_lt_u32 s{sWV}, 4')
        a(f's_addc_u32 s{sBK}, s{sBK}, 0')
        a(f's_cmp_eq_u32 s{sC}, 0')
        a(f's_cselect_b32 s{sT3}, 0x40000000, 0')
        a(f's_lshl_b32 s{sT0}, s{sBK}, 13')
        a(f's_add_u32 s{sT0}, s{sT0}, s{sQ0B}')
        a(f'v_lshlrev_b32 {vr(vDQ)}, 4, {vr(vKGp)}')
        a(f'v_lshl_add_u32 {vr(vDQ)}, {vr(vI)}, 8, {vr(vDQ)}')
        a(f'v_add_u32 {vr(vDQ)}, s{sT0}, {vr(vDQ)}')
        a(f'v_lshlrev_b32 {vr(t3)}, 4, {vr(vLANE)}')
        a(f's_lshl_b32 s41, s{sH}, 14')
        a(f's_lshl_b32 s42, s{sC}, 11')
    common()
    a(f's_mov_b32 s{sN}, 0')
    def srds():
        a(f's_add_u32 s{sV}, s8, s{sHO}')
        a(f's_addc_u32 s{sV+1}, s9, 0')
        a(f's_add_u32 s{sQ}, s4, s{sHO}')
        a(f's_addc_u32 s{sQ+1}, s5, 0')
        a(f's_add_u32 s{sW}, s18, s41')
        a(f's_addc_u32 s{sW+1}, s19, 0')
    srds()
    a('s_branch L_v1')
    a.label('L_helper')
    a('s_setprio 3')
    a('s_memrealtime s[60:61]')
    if cpf == 'one':
        a(f's_cmp_lg_u32 s{sWV}, {64*6}')
        a('s_cbranch_scc1 L_nocpf')
        a(f's_getpc_b64 s[{sEX}:{sEX+1}]')
        a(f's_lshl_b32 s{sT0}, s{sC}, 11')
        a(f'v_and_b32 v1, 15, v0')
        a(f'v_lshl_add_u32 v1, v1, 7, s{sT0}')
        a('s_mov_b64 exec, 0xffff')
        a(f'global_load_dword {vr(X8)}, v1, s[{sEX}:{sEX+1}]')
        a('s_mov_b64 exec, -1')
        a.label('L_nocpf')
    common()
    a(f's_sub_u32 s{sT0}, s{sT3}, 0x2000')
    a(f'v_add_u32 {vr(t1)}, s{sT0}, {vr(vDQ)}')
    a(f'v_add_u32 {vr(t2)}, 0x1000, {vr(t1)}')
    a(f's_mov_b32 m0, {SOFF}')
    a('s_waitcnt lgkmcnt(0)')
    if stamps:
        nst[0] -= 1
        stamp()
    a(f's_add_u32 s{sK}, s6, s{sHO}')
    a(f's_addc_u32 s{sK+1}, s7, 0')
    srds()
    if stamps and opt.get('postk'):
        nst[0] -= 1
        stamp()
    a(f's_or_b32 s{sN}, s60, 1')
    if opt.get('leakxcc'):
        a('s_getreg_b32 s61, hwreg(HW_REG_XCC_ID, 0, 4)')
        a(f's_and_b32 s{sN}, s60, 0xffffffe0')
        a(f's_lshl1_add_u32 s{sN}, s61, s{sN}')
        a(f's_or_b32 s{sN}, s{sN}, 1')
    only(FW, 'L_noclear')
    a(f's_lshl_b32 s{sT0}, s{sH}, 3')
    a(f'v_mov_b32 {vr(S+4)}, s{sT0}')
    a(f'v_mov_b32 {vr(S+5)}, s{sN}')
    a(f'v_mov_b32 {vr(S+6)}, {LCNT}')
    a(f'v_mov_b32 {vr(S+7)}, 0')
    a('s_mov_b64 exec, 1')
    a(f's_cmp_lg_u32 s{sC}, {CC}')
    a('s_cbranch_scc1 L_nopub')
    a(f'global_store_dword {vr(S+4)}, {vr(S+5)}, s[16:17] sc0 sc1')
    a.label('L_nopub')
    a(f'ds_write_b32 {vr(S+6)}, {vr(S+7)}')
    a('s_mov_b64 exec, -1')
    if opt.get('wstouch'):
        pol = {'ld': '', 'ldsc': 'sc0 sc1'}.get(opt['wstouch'])
        if pol is not None:
            a(f'buffer_load_dwordx4 {vr(S+8,4)}, {vr(t3)}, {sr(sW,4)}, s42 offen {pol}')
            a(f'buffer_load_dwordx4 {vr(S+12,4)}, {vr(t3)}, {sr(sW,4)}, s42 offen offset:1024 {pol}')
        else:
            for n in range(4): a(f'v_mov_b32 {vr(S+8+n)}, 0')
            a(f'buffer_store_dwordx4 {vr(S+8,4)}, {vr(t3)}, {sr(sW,4)}, s42 offen sc0 sc1')
            a(f'buffer_store_dwordx4 {vr(S+8,4)}, {vr(t3)}, {sr(sW,4)}, s42 offen offset:1024 sc0 sc1')
    a.label('L_noclear')
    only(SW, 'L_nosmall')
    for n, srd in enumerate((sK, sQ, sV)):
        if n:
            a(f's_mov_b32 m0, {SOFF + 1024*n}')
            a('s_nop 0')
        a(f'buffer_load_dwordx4 {vr(t3)}, {sr(srd,4)}, 0 offen lds')
    a.label('L_nosmall')
    only(HW, 'L_nohalo')
    for T in range(2):
        for ks in range(4):
            a(f'buffer_load_dwordx4 {vr(kf(T,ks),4)}, {vr(t1+T)}, {sr(sK,4)}, 0 offen offset:{64*ks}')
    a.label('L_nohalo')
    a('s_setprio 0')
    a('s_branch L_nov1')
    a.label('L_v1')
    def vpiece(i):
        throttle()
        if i:
            a('s_add_u32 m0, m0, 0x1000')
            a(f'v_add_u32 {vr(vDV)}, 0x1000, {vr(vDV)}')
        if i < 2:
            a(f'v_add_u32 {vr(t1)}, s{sT3}, {vr(vDV)}')
            a(f'buffer_load_dwordx4 {vr(t1)}, {sr(sV,4)}, 0 offen {ldpol} lds')
        else:
            a(f'buffer_load_dwordx4 {vr(vDV)}, {sr(sV,4)}, 0 offen {ldpol} lds')
    a(f's_and_b32 s{sT0}, s{sWV}, 1')
    a(f's_lshl_b32 s{sT0}, s{sT0}, 2')
    a(f'v_add_lshl_u32 {vr(vDV)}, s{sT0}, {vr(vKGp)}, 1')
    a(f'v_xor_b32 {vr(vDV)}, {vr(vDV)}, {vr(vI)}')
    a(f'v_lshlrev_b32 {vr(vDV)}, 4, {vr(vDV)}')
    a(f'v_lshl_add_u32 {vr(vDV)}, {vr(vKGp)}, 8, {vr(vDV)}')
    a(f's_sub_u32 s{sT2}, s{sT2}, 0x2000')
    a(f'v_add_u32 {vr(vDV)}, s{sT2}, {vr(vDV)}')
    a(f's_add_u32 m0, s{sT1}, {VOFF}')
    for i in range(N1): vpiece(i)
    a.label('L_nov1')
    stamp()

    a(f's_add_u32 s{sO}, s14, s{sHO}')
    a(f's_addc_u32 s{sO+1}, s15, 0')
    a(f's_mov_b32 s{sO+2}, 0x80000')
    a(f's_mov_b32 s{sO+3}, 0x20000')
    a(f's_movk_i32 s{sTOFF}, 0x1000')
    a(f's_mov_b32 s{sZERO}, 0')
    a(f's_mov_b32 s{sCS}, 0x{CSC:08x}')
    a(f's_mov_b32 s{sCS+1}, 0x{CSC:08x}')
    a(f'v_mov_b32 {vr(vNEG)}, 0x{NEG:08x}')
    a(f'v_lshlrev_b32 {vr(t2)}, 2, {vr(vKGp)}')
    a(f'v_cmp_eq_u32 {sr(sKG0,2)}, 0, {vr(vKGp)}')
    for r in range(4):
        a(f'v_add_u32 {vr(t1)}, {r}, {vr(t2)}')
        a(f'v_cmp_ge_u32 vcc, {vr(t1)}, {vr(vI)}')
        a(f'v_cmp_le_u32 s[60:61], {vr(t1)}, {vr(vI)}')
        a('s_nop 0')
        a(f'v_cndmask_b32 {vr(BLO+r)}, {vr(vNEG)}, 0, vcc')
        a(f'v_cndmask_b32 {vr(BHI+r)}, {vr(vNEG)}, 0, s[60:61]')
    a(f's_lshl_b32 s{sT0}, s{sBK}, 13')
    a(f'v_xor_b32 {vr(t1)}, {vr(vKGp)}, {vr(vI)}')
    a(f'v_lshlrev_b32 {vr(t1)}, 4, {vr(t1)}')
    a(f'v_lshl_add_u32 {vr(t1)}, {vr(vI)}, 8, {vr(t1)}')
    a(f'v_add_u32 {vr(vAK)}, s{sT0}, {vr(t1)}')
    for ks in range(1, 4):
        a(f'v_xor_b32 {vr(vAK+ks)}, {64*ks}, {vr(vAK)}')
    a(f'v_and_b32 {vr(t1)}, 1, {vr(vI)}')
    a(f'v_lshlrev_b32 {vr(vNEG)}, 3, {vr(t1)}')
    a(f'v_lshlrev_b32 {vr(t1)}, 8, {vr(t1)}')
    a(f'v_lshl_add_u32 {vr(t1)}, {vr(vKGp)}, 4, {vr(t1)}')
    a(f'v_add_u32 {vr(vAG)}, {SOFF}, {vr(t1)}')
    a(f'v_bfe_u32 {vr(t1)}, {vr(vLANE)}, 2, 2')
    a(f'v_and_b32 {vr(t2)}, 3, {vr(vLANE)}')
    a(f'v_lshlrev_b32 {vr(t2)}, 3, {vr(t2)}')
    a(f'v_lshl_add_u32 {vr(t1)}, {vr(t1)}, 8, {vr(t2)}')
    a(f'v_add_u32 {vr(vAVG)}, {SOFF+2048}, {vr(t1)}')
    a(f'v_lshrrev_b32 {vr(t1)}, 2, {vr(vLANE)}')
    a(f'v_and_b32 {vr(vT0)}, 7, {vr(t1)}')
    a(f'v_lshl_add_u32 {vr(t2)}, {vr(vT0)}, 5, {vr(t2)}')
    a(f'v_lshl_add_u32 {vr(t2)}, {vr(t1)}, 8, {vr(t2)}')
    a(f's_add_u32 s{sT1}, s{sT0}, {VOFF}')
    a(f'v_add_u32 {vr(VA)}, s{sT1}, {vr(t2)}')
    for t in range(1, 8):
        a(f'v_xor_b32 {vr(VA+t)}, {32*t}, {vr(VA)}')
    a(f's_mul_i32 s{sT1}, s{sWV}, {32*STGP}')
    a(f's_add_u32 s{sT1}, s{sT1}, {STG}')
    a(f'v_mul_u32_u24 {vr(t1)}, {STGP}, {vr(vI)}')
    a(f'v_lshl_add_u32 {vr(t1)}, {vr(vKGp)}, 3, {vr(t1)}')
    a(f'v_add_u32 {vr(vSW)}, s{sT1}, {vr(t1)}')
    a(f'v_mul_u32_u24 {vr(t1)}, {STGP}, {vr(vKGp)}')
    a(f'v_lshl_add_u32 {vr(t1)}, {vr(vI)}, 4, {vr(t1)}')
    a(f'v_add_u32 {vr(vSR)}, s{sT1}, {vr(t1)}')
    a(f's_add_u32 s{sT0}, s{sT0}, s{sQ0B}')
    a(f'v_add_u32 {vr(vOO)}, s{sT0}, {vr(t3)}')
    a(f's_lshr_b32 s{sQB}, s{sT0}, 8')
    a(f's_cmp_eq_u32 s{sQB}, 0')
    a(f's_cselect_b32 s{sEX}, 0, -1')
    a(f's_mov_b32 s{sEX+1}, -1')
    a(f's_cmp_eq_u32 s{sQB}, {256*CC+32*(2*CW+1)}')
    a(f's_cselect_b32 s{sCMB}, 1, 0')
    a(f's_lshl_b32 s{sT0}, s{sWV}, 4')
    a(f's_add_u32 s{sT0}, s{sT0}, {PARTML}')
    a(f'v_add_u32 {vr(vNEG)}, s{sT0}, {vr(vNEG)}')

    spf = [int(x) for x in opt.get('spf', '0,0').split(',')]
    spstep = int(opt.get('spstep', 128)); sptile = opt.get('sptile', 'B')
    def sp_offsets():
        o = []
        for half in ([1, 0] if sptile == 'B' else [0, 1]):
            for blk in (1, 0):
                o += [8192*blk + 4096*half + x for x in range(0, 4096, spstep)]
        return o
    spo = sp_offsets()
    def sprefetch(n):
        for _ in range(n):
            if spo: a(f's_load_dword s61, s[10:11], {spo.pop(0)}')
    if sum(spf):
        a(f's_cmp_lt_u32 s{sWV}, 4')
        a('s_cbranch_scc1 L_nosp')
        a(f's_lshl_b32 s{sT0}, s{sBK}, 13')
        a(f's_add_u32 s{sT0}, s{sT0}, s{sQ0B}')
        a(f's_add_u32 s10, s{sQ}, s{sT0}')
        a(f's_addc_u32 s11, s{sQ+1}, 0')
        sprefetch(spf[0])
        a.label('L_nosp')
    a(f's_waitcnt vmcnt({N1}) lgkmcnt(0)')
    a(f's_cmp_lt_u32 s{sWV}, 4')
    a('s_cbranch_scc1 L_kw')
    a(f's_cmp_eq_u32 s{sWV}, {FW}')
    a('s_cbranch_scc1 L_kw')
    a('s_waitcnt vmcnt(0)')
    a.label('L_kw')
    stamp(opt.get('prek', False))
    a('s_barrier')
    stamp()
    a(f's_cmp_ge_u32 s{sWV}, 4')
    a('s_cbranch_scc1 L_nov2')
    for i in range(N1, 20): vpiece(i)
    a.label('L_nov2')
    stamp(fine)
    QG = O
    for W in (2, 3, 4, 5):
        for ks in range(4):
            a(f'ds_read_b128 {vr(kf(W,ks),4)}, {vr(vAK+ks)} offset:{4096*(W-2)}')
    for ks in range(4):
        a(f'ds_read_b128 {vr(KG+4*ks,4)}, {vr(vAG)} offset:{64*ks}')
    for t in range(8):
        a(f'ds_read_b64_tr_b16 {vr(VG+4*t+2,2)}, {vr(vAVG)} offset:{32*t}')
    a(f's_cmp_eq_u32 s{sWV}, {HW}')
    a('s_cbranch_scc1 L_k01done')
    for ks in range(4):
        a(f'v_subrev_u32 {vr(vAK+ks)}, 0x2000, {vr(vAK+ks)}')
    for W in (0, 1):
        for ks in range(4):
            a(f'ds_read_b128 {vr(kf(W,ks),4)}, {vr(vAK+ks)} offset:{4096*W}')
    a.label('L_k01done')
    def issue_qa():
        if opt.get('qprio'): a('s_setprio 3')
        for ks in range(4):
            a(f'buffer_load_dwordx4 {vr(QA+4*ks,4)}, {vr(vDQ)}, {sr(sQ,4)}, 0 offen offset:{64*ks} {qpol}')
        if opt.get('qprio'): a('s_setprio 0')

    def xred(m, t, op='v_max_f32'):
        a(f'v_mov_b32 {vr(t)}, {vr(m)}')
        a.nop(2)
        a(f'v_permlane16_swap_b32 {vr(m)}, {vr(t)}')
        a(f'{op} {vr(m)}, {vr(m)}, {vr(t)}')
        a(f'v_mov_b32 {vr(t)}, {vr(m)}')
        a.nop(2)
        a(f'v_permlane32_swap_b32 {vr(m)}, {vr(t)}')
        a(f'{op} {vr(m)}, {vr(m)}, {vr(t)}')
    def maxtree_l(vals, m, first=True):
        out = []; rest = list(vals)
        if first:
            out.append(f'v_max3_f32 {vr(m)}, {vr(rest[0])}, {vr(rest[1])}, {vr(rest[2])}'); rest = rest[3:]
        while len(rest) >= 2:
            out.append(f'v_max3_f32 {vr(m)}, {vr(m)}, {vr(rest[0])}, {vr(rest[1])}'); rest = rest[2:]
        if rest:
            out.append(f'v_max_f32 {vr(m)}, {vr(m)}, {vr(rest[0])}')
        return out
    def fma_l(vals, mc):
        if pk:
            return [f'v_pk_fma_f32 {vr(vals[n],2)}, {vr(vals[n],2)}, {sr(sCS,2)}, {vr(mc,2)} op_sel_hi:[1,1,0] neg_lo:[0,0,1] neg_hi:[0,0,1]' for n in range(0, len(vals), 2)]
        return [f'v_fma_f32 {vr(v)}, {vr(v)}, s{sCS}, -{vr(mc)}' for v in vals]
    exp_l = lambda vals: [f'v_exp_f32 {vr(v)}, {vr(v)}' for v in vals]
    cvt_l = lambda dst, src, n: [f'v_cvt_pk_bf16_f32 {vr(dst+k)}, {vr(src+2*k)}, {vr(src+2*k+1)}' for k in range(n)]

    def vread(dst, t, W):
        return f'ds_read_b64_tr_b16 {vr(dst,2)}, {vr(VA+t)} offset:{4096*W}'
    a(f's_cmp_lt_u32 s{sWV}, 4')
    a('s_cbranch_scc1 L_gk')
    sprefetch(spf[1])
    only(FW, 'L_notag')
    a('s_setprio 3')
    a(f's_lshl_b32 s{sT0}, s{sH}, 3')
    a(f'v_mov_b32 {vr(S+4)}, s{sT0}')
    a(f'v_mov_b32 {vr(S+5)}, s{sN}')
    a(f'v_mov_b32 {vr(S+6)}, {LCNT}')
    a(f'global_load_dword {vr(S+7)}, {vr(S+4)}, s[16:17]')
    a('s_setprio 0')
    issue_qa()
    a('s_waitcnt vmcnt(4)')
    if opt.get('forcefb'): a(f'v_mov_b32 {vr(S+7)}, 0')
    a(f's_cmp_eq_u32 s{sC}, {CC}')
    a('s_cselect_b64 vcc, -1, 0')
    a(f'v_cndmask_b32 {vr(S+7)}, {vr(S+7)}, {vr(S+5)}, vcc')
    a('s_mov_b64 exec, 1')
    a(f'ds_write_b32 {vr(S+6)}, {vr(S+7)} offset:4')
    a('s_mov_b64 exec, -1')
    a('s_branch L_tagdone')
    a.label('L_notag')
    issue_qa()
    a.label('L_tagdone')
    a('s_waitcnt lgkmcnt(0)')
    a(f'v_add_u32 {vr(vDQk)}, 0x1000, {vr(vDQ)}')
    stamp(fine)
    a('s_barrier')
    for t in range(8):
        a(vread(X[t+1], t, 0)); a(vread(X[t+1]+2, t, 1))
    a('s_branch L_gdone')
    a.label('L_gk')
    for ks in range(4):
        a(f'ds_read_b128 {vr(QG+4*ks,4)}, {vr(vAG)} offset:{1024+64*ks}')
    issue_qa()
    a('s_waitcnt lgkmcnt(0)')
    for T in range(4):
        for ks in range(4):
            a(mfma(S+4*T, kf(T,ks), QG+4*ks, '0' if ks == 0 else S+4*T))
    a(f'v_add_u32 {vr(vDQk)}, 0x1000, {vr(vDQ)}')
    a.nop(7)
    for l in maxtree_l([S+x for x in range(16)], vM): a(l)
    xred(vM, vT)
    a(f'v_mul_f32 {vr(vM)}, s{sCS}, {vr(vM)}')
    for l in fma_l([S+x for x in range(16)], vM): a(l)
    for l in exp_l([S+x for x in range(16)]): a(l)
    a.nop(1)
    a(f'v_add_f32 {vr(vT)}, {vr(S)}, {vr(S+1)}')
    for x in range(2, 16):
        a(f'v_add_f32 {vr(vT)}, {vr(vT)}, {vr(S+x)}')
    for l in cvt_l(S, S, 8): a(l)
    xred(vT, vT0, 'v_add_f32')
    a(f'ds_write_b64 {vr(vNEG)}, {vr(vM,2)}')
    a(f'v_mbcnt_lo_u32_b32 {vr(vT0)}, -1, 0')
    a(f's_lshl_b32 s{sT0}, s{sWV}, 10')
    a(f'v_lshl_add_u32 {vr(vT0)}, {vr(vT0)}, 3, s{sT0}')
    if stamps and fine:
        nst[0] -= 1
        stamp()
    a('s_waitcnt vmcnt(4) lgkmcnt(0)')
    a('s_barrier')
    gb = [QB + 4*n for n in range(4)] + [S + 8 + 4*n for n in range(4)]
    for t in range(8):
        a(vread(gb[t], t, 2)); a(vread(gb[t]+2, t, 3))
    for t in range(8):
        a('s_waitcnt lgkmcnt(14)')
        a(mfma(gb[t], S+4, gb[t], '0'))
        a(vread(X[t+1], t, 0)); a(vread(X[t+1]+2, t, 1))
    for t in range(8):
        a(f's_waitcnt lgkmcnt({14-2*t})')
        a(mfma(gb[t], S, X[t+1], gb[t]))
    a('s_mov_b64 exec, 1')
    a(f'v_mov_b32 {vr(S)}, {LCNT}')
    a(f'v_mov_b32 {vr(S+1)}, 1')
    a('s_mov_b64 exec, 0xffff')
    for t in range(8):
        a(f'ds_write_b64 {vr(vT0)}, {vr(gb[t],2)} offset:{PART+128*t}')
    a('s_mov_b64 exec, 1')
    a(f'ds_add_u32 {vr(S)}, {vr(S+1)}')
    a('s_mov_b64 exec, -1')
    a.label('L_gdone')
    stamp()

    emit = lambda ls: [a(l) for l in ls]
    def combine(og, mg, tm):
        NP = len(og)
        emit(maxtree_l([mg[n] for n in range(NP)], tm))
        for n in range(NP):
            a(f'v_sub_f32 {vr(mg[n])}, {vr(mg[n])}, {vr(tm)}')
        for n in range(NP):
            a(f'v_exp_f32 {vr(mg[n])}, {vr(mg[n])}')
        a.nop(1)
        for e in range(4):
            a(f'v_mul_f32 {vr(og[0][e])}, {vr(og[0][e])}, {vr(mg[0])}')
        a(f'v_mul_f32 {vr(mg[0]+1)}, {vr(mg[0]+1)}, {vr(mg[0])}')
        for n in range(1, NP):
            for e in range(4):
                a(f'v_fmac_f32 {vr(og[0][e])}, {vr(og[n][e])}, {vr(mg[n])}')
            a(f'v_fmac_f32 {vr(mg[0]+1)}, {vr(mg[n]+1)}, {vr(mg[n])}')

    def issue_qb():
        for ks in range(4):
            a(f'buffer_load_dwordx4 {vr(QB+4*ks,4)}, {vr(vDQk)}, {sr(sQ,4)}, 0 offen offset:{64*ks} {qpol}')
        a(f'v_mov_b32 {vr(vDQk)}, 0')
    issue_qb()
    if opt.get('otouch'):
        only(FW, 'L_nootouch')
        a(f's_mov_b32 m0, {PARTML+256}')
        a('s_mov_b64 exec, 1')
        a(f'buffer_load_dword {vr(vOO)}, {sr(sO,4)}, 0 offen lds')
        a(f'buffer_load_dword {vr(vOO)}, {sr(sO,4)}, 0 offen offset:512 lds')
        a('s_mov_b64 exec, -1')
        a('s_waitcnt vmcnt(6)')
        a('s_branch L_tileA')
        a.label('L_nootouch')
    a(f's_cmp_eq_u32 s{sWV}, {RW}')
    a('s_cbranch_scc1 L_reduce')
    a(f's_cmp_eq_u32 s{sCMB}, 0')
    a('s_cbranch_scc1 L_noflag')
    a(f'v_mov_b32 {vr(vT0)}, {LNON}')
    a(f'ds_read_b32 {vr(vT0)}, {vr(vT0)}')
    a('s_waitcnt lgkmcnt(0)')
    a(f'v_readfirstlane_b32 s{sN}, {vr(vT0)}')
    a.label('L_noflag')
    a('s_waitcnt vmcnt(4)')
    a('s_branch L_tileA')
    a.label('L_reduce')
    R0 = S
    a(f'v_mbcnt_lo_u32_b32 {vr(R0)}, -1, 0')
    a(f'v_mbcnt_hi_u32_b32 {vr(R0)}, -1, {vr(R0)}')
    a(f'v_lshrrev_b32 {vr(R0+1)}, 5, {vr(R0)}')
    a(f'v_and_b32 {vr(R0+3)}, 31, {vr(R0)}')
    a(f'v_lshlrev_b32 {vr(R0+3)}, 5, {vr(R0+3)}')
    a(f'v_lshl_add_u32 {vr(R0+3)}, {vr(R0+1)}, 2, {vr(R0+3)}')
    a(f'v_lshlrev_b32 {vr(R0+1)}, 3, {vr(R0+1)}')
    a(f'v_add_u32 {vr(R0+1)}, {PARTML}, {vr(R0+1)}')
    a(f'v_lshlrev_b32 {vr(R0)}, 4, {vr(R0)}')
    a(f'v_mov_b32 {vr(R0+2)}, {LCNT}')
    a(f's_mov_b32 s{sCNT}, 0')
    a.label('L_lspin')
    a(f'ds_read_b64 {vr(S+4,2)}, {vr(R0+2)}')
    a(f's_add_u32 s{sCNT}, s{sCNT}, 1')
    a('s_waitcnt lgkmcnt(0)')
    a(f'v_readfirstlane_b32 s{sT0}, {vr(S+4)}')
    a(f'v_readfirstlane_b32 s{sN}, {vr(S+5)}')
    a(f's_cmp_ge_u32 s{sCNT}, 0x100000')
    a('s_cbranch_scc1 L_lok')
    a(f's_cmp_lt_u32 s{sT0}, 4')
    a('s_cbranch_scc1 L_lspin')
    a.label('L_lok')
    mg = [S+4, S+6, O, O+2]
    G0 = S + 8
    og = [[G0+4*n+e for e in range(4)] for n in range(4)]
    for n in range(4):
        a(f'ds_read_b64 {vr(mg[n],2)}, {vr(R0+1)} offset:{16*n}')
    for n in range(4):
        if n: a(f'v_add_u32 {vr(R0+3)}, 1024, {vr(R0+3)}')
        a(f'ds_read2_b32 {vr(G0+4*n,2)}, {vr(R0+3)} offset0:0 offset1:2')
        a(f'ds_read2_b32 {vr(G0+4*n+2,2)}, {vr(R0+3)} offset0:4 offset1:6')
    a('s_waitcnt lgkmcnt(0)')
    combine(og, mg, R0+1)
    a(f'v_mov_b32 {vr(G0+4)}, {vr(G0+3)}')
    a(f'v_mov_b32 {vr(G0+5)}, {vr(R0+1)}')
    a(f'v_mov_b32 {vr(G0+6)}, {vr(mg[0]+1)}')
    a(f'v_mov_b32 {vr(G0+7)}, s{sN}')
    a(f'v_mov_b32 {vr(G0+3)}, s{sN}')
    a(f'buffer_store_dwordx4 {vr(G0+4,4)}, {vr(R0)}, {sr(sW,4)}, s42 offen offset:1024 sc0 sc1')
    a(f'buffer_store_dwordx4 {vr(G0,4)}, {vr(R0)}, {sr(sW,4)}, s42 offen sc0 sc1')
    a(f's_cmp_lg_u32 s{sN}, 0')
    a('s_cbranch_scc1 L_tagged')
    a('s_waitcnt vmcnt(0)')
    a(f's_lshl_b32 s{sT0}, s{sH}, 3')
    a(f's_lshl_b32 s{sT1}, 1, s{sC}')
    a(f'v_mov_b32 {vr(R0)}, s{sT0}')
    a(f'v_mov_b32 {vr(R0+1)}, s{sT1}')
    a('s_mov_b64 exec, 1')
    a(f'global_atomic_or {vr(R0)}, {vr(R0+1)}, s[16:17] offset:4 sc1')
    a('s_mov_b64 exec, -1')
    a.label('L_tagged')
    a('s_waitcnt vmcnt(6)')
    a.label('L_tileA')
    def yprio(tag):
        if yp == tag:
            a(f's_cmp_lt_u32 s{sWV}, 4')
            a(f's_cbranch_scc1 L_yp{tag}')
            a('s_setprio 1')
            a.label(f'L_yp{tag}')
    yprio('a')
    stamp()

    def inter(ms, vs, per=2):
        vs = list(vs)
        for m in ms:
            a(m)
            for _ in range(per):
                if vs: a(vs.pop(0))
        for v in vs: a(v)

    HB = kf(2, 0)
    def hand_loads():
        a(f'v_mbcnt_lo_u32_b32 {vr(KG)}, -1, 0')
        a(f'v_mbcnt_hi_u32_b32 {vr(KG)}, -1, {vr(KG)}')
        a(f'v_lshlrev_b32 {vr(KG)}, 4, {vr(KG)}')
        for n in range(8):
            a(f's_movk_i32 s{sT0}, {2048*n}')
            a(f'buffer_load_dwordx4 {vr(HB+8*n,4)}, {vr(KG)}, {sr(sW,4)}, s{sT0} offen sc0 sc1')
            a(f'buffer_load_dwordx4 {vr(HB+8*n+4,4)}, {vr(KG)}, {sr(sW,4)}, s{sT0} offen offset:1024 sc0 sc1')

    buf = [kf(0, n) for n in range(4)] + [QA + 4*n for n in range(4)]
    SLOTW = {0: [0, 1, 2, 3, 4], 1: [4, 5, 2, 3, 1]}
    def qk(tau, sl):
        Q = QA if tau == 0 else QB
        if sl == 'G':
            return [mfma(S+20, KG+4*ks, Q+4*ks, '0' if ks == 0 else S+20) for ks in range(4)]
        W = SLOTW[tau][sl]
        c0 = BLO if W == tau else BHI if W == tau + 4 else '0'
        return [mfma(S+4*sl, kf(W,ks), Q+4*ks, c0 if ks == 0 else S+4*sl) for ks in range(4)]
    def edge_test(tau, lab):
        a(f's_sub_u32 s{sT0}, s{sQB}, {48 - 16*tau}')
        a(f's_cmp_lt_u32 s{sT0}, 1968')
        a(f's_cbranch_scc1 {lab}')
    def edge_mask(tau, tr):
        a(f'v_mbcnt_lo_u32_b32 {vr(tr)}, -1, 0')
        a(f'v_mbcnt_hi_u32_b32 {vr(tr)}, -1, {vr(tr)}')
        a(f'v_lshrrev_b32 {vr(tr)}, 4, {vr(tr)}')
        a(f's_sub_u32 s{sT0}, s{sQB}, 34')
        a(f's_movk_i32 s{sT1}, 2046')
        a(f'v_lshl_add_u32 {vr(tr)}, {vr(tr)}, 2, s{sT0}')
        a(f'v_mov_b32 {vr(vM)}, 0x{NEG:08x}')
        a('s_nop 3')
        for sl in range(5):
            for r in range(4):
                a(f'v_add_u32 {vr(vT)}, {16*SLOTW[tau][sl]+r}, {vr(tr)}')
                a(f'v_cmp_gt_u32 vcc, s{sT1}, {vr(vT)}')
                a('s_nop 1')
                a(f'v_cndmask_b32 {vr(S+4*sl+r)}, {vr(vM)}, {vr(S+4*sl+r)}, vcc')
        for l in maxtree_l([S+x for x in range(22)], vM): a(l)
    def epi(t, tau=0):
        l = [f'v_mul_f32 {vr(O+4*t+e)}, {vr(O+4*t+e)}, {vr(vT0)}' for e in range(4)]
        l += [f'v_cvt_pk_bf16_f32 {vr(O+4*t)}, {vr(O+4*t)}, {vr(O+4*t+1)}',
              f'v_cvt_pk_bf16_f32 {vr(O+4*t+1)}, {vr(O+4*t+2)}, {vr(O+4*t+3)}',
              f'ds_write_b64 {vr(vSW)}, {vr(O+4*t,2)} offset:{32*t + 16*STGP*tau}']
        return l
    def stage_reads(tau=0, R=O):
        return [f'ds_read_b128 {vr(R+4*j,4)}, {vr(vSR)} offset:{4*STGP*j + 16*STGP*tau}' for j in range(4)]
    def stores(tau, R=O, extra=0):
        for j in range(4):
            a(f's_waitcnt lgkmcnt({3-j+extra})')
            if tau == 0 and j == 0: a(f's_mov_b64 exec, {sr(sEX,2)}')
            a(f'buffer_store_dwordx4 {vr(R+4*j,4)}, {vr(vOO)}, {sr(sO,4)}, s{sTOFF if tau else sZERO} offen offset:{1024*j} {stpol}')
            if tau == 0 and j == 0: a('s_mov_b64 exec, -1')
    RA = kf(1, 0)
    def late_a():
        for l in stage_reads(0, RA): a(l)
        stores(0, RA)
    def softmax_pv(tau):
        m = vM
        xred(m, vT)
        a(f'v_mul_f32 {vr(m)}, s{sCS}, {vr(m)}')
        set0 = [S+x for x in range(8)]; set1 = [S+8+x for x in range(8)]; set2 = [S+16+x for x in range(6)]
        for l in fma_l(set0, m): a(l)
        f2 = fma_l(set2, m); f1 = fma_l(set1, m)
        for l in exp_l(set0): a(l)
        a(f2[0])
        for l in cvt_l(S, S, 4): a(l)
        a(f2[1])
        a('s_waitcnt lgkmcnt(0)' if tau == 1 else 's_waitcnt lgkmcnt(8)')
        if tau == 1 and apos == 1: late_a()
        ONES, LACC = S+4, S+20
        v2 = f2[2:] + exp_l(set2) + [f'v_mov_b32 {vr(ONES+n)}, 0x3f803f80' for n in range(4)] + cvt_l(S+16, S+16, 3) \
             + [f'v_mov_b32 {vr(S+19)}, 0', f'v_cndmask_b32 {vr(S+18)}, 0, {vr(S+18)}, {sr(sKG0,2)}']
        inter([mfma(X[t], X[t+1], S, '0') for t in range(8)], v2 + f1[:2])
        v1 = f1[2:] + exp_l(set1) + [f'v_mov_b32 {vr(vT0)}, 0'] + cvt_l(S+8, S+8, 4)
        inter([mfma(O+4*t, VG+4*t, S+16, O+4*t) for t in range(8)], v1)
        a(mfma(LACC, ONES, S, '0'))
        a(mfma(LACC, ONES, S+16, LACC))
        a(mfma(LACC, ONES, S+8, LACC))
        if tau == 0:
            a('s_waitcnt lgkmcnt(0)')
        for t in range(8):
            a(mfma(O+4*t, buf[t], S+8, O+4*t))
            if tau == 0: a(vread(VG+4*t, t, 1))
        a(f'v_rcp_f32 {vr(vT0)}, {vr(LACC)}')

    late = []
    for t in range(8):
        late += [vread(buf[t], t, 2), vread(buf[t]+2, t, 3)]
    vgr = [vread(VG+4*t, t, 4) for t in range(8)]
    edge_test(0, 'L_fastA')
    for l in vgr: a(l)
    for sl in ('G', 0, 1, 2, 3, 4):
        for l in qk(0, sl): a(l)
    for l in late: a(l)
    edge_mask(0, vT0)
    a('s_branch L_joinA')
    a.label('L_fastA')
    m = vM
    inter(qk(0, 0) + qk(0, 'G'), vgr, per=1)
    inter(qk(0, 1) + qk(0, 2), late[:8], per=1)
    inter(qk(0, 3), maxtree_l([S+20, S+21, S+0], m) + maxtree_l([S+1, S+2, S+3, S+4, S+5, S+6], m, False), per=1)
    inter(qk(0, 4), maxtree_l([S+7, S+8, S+9, S+10], m, False), per=1)
    for l in late[8:11]: a(l)
    for l in maxtree_l([S+11, S+12], m, False): a(l)
    for l in late[11:13]: a(l)
    for l in maxtree_l([S+13, S+14, S+15], m, False): a(l)
    for l in late[13:]: a(l)
    for l in maxtree_l([S+16, S+17, S+18, S+19], m, False): a(l)
    a.label('L_joinA')
    yprio('s')
    stamp(fine)
    softmax_pv(0)
    stamp(fine)
    ep = []
    for t in range(8): ep += epi(t)
    if apos == 0: ep += stage_reads()
    xb = []
    for t in range(8): xb += [vread(X[t+1], t, 4), vread(X[t+1]+2, t, 5)]
    def qb_wait(n):
        a(f's_waitcnt vmcnt({n+2})')
        if opt.get('otouch'):
            a(f's_and_b32 s{sT0}, s{sWV}, 3')
            a(f's_cmp_eq_u32 s{sT0}, 3')
        else:
            a(f's_cmp_eq_u32 s{sWV}, {RW}')
        a('s_cbranch_scc1 L_qbw')
        a(f's_waitcnt vmcnt({n})')
        a.label('L_qbw')
    if merge == 'hyb':
        a('s_nop 0')
        for l in ep: a(l)
        qb_wait(0)
        stamp()
        spos = int(opt.get('spos', 0))
        edge_test(1, 'L_fastB')
        stores(0)
        for sl in ('G', 0, 1, 2, 3, 4):
            for l in qk(1, sl): a(l)
        for l in xb: a(l)
        edge_mask(1, vT0)
        a('s_branch L_joinB')
        a.label('L_fastB')
        if spos == 0:
            stores(0)
            inter(qk(1, 'G') + qk(1, 0) + qk(1, 1) + qk(1, 2), xb, per=1)
        elif spos == 1:
            for l in qk(1, 'G') + qk(1, 0): a(l)
            stores(0)
            inter(qk(1, 1) + qk(1, 2), xb, per=2)
        else:
            for l in qk(1, 'G') + qk(1, 0) + qk(1, 1) + qk(1, 2): a(l)
        inter(qk(1, 3), maxtree_l([S+20, S+21, S+0], m) + maxtree_l([S+1, S+2, S+3, S+4, S+5, S+6], m, False), per=1)
        inter(qk(1, 4), maxtree_l([S+7, S+8], m, False), per=1)
        a.nop(1)
        for l in maxtree_l([S+9, S+10, S+11, S+12], m, False): a(l)
        a.nop(1)
        for l in maxtree_l([S+13, S+14, S+15], m, False): a(l)
        if spos == 2:
            stores(0)
            for l in xb: a(l)
        else:
            a.nop(3)
        for l in maxtree_l([S+16, S+17, S+18, S+19], m, False): a(l)
    elif not merge:
        a('s_nop 0')
        for l in ep: a(l)
        stores(0)
        for l in xb: a(l)
        qb_wait(4)
        stamp()
        edge_test(1, 'L_fastB')
        for sl in ('G', 0, 1, 2, 3, 4):
            for l in qk(1, sl): a(l)
        edge_mask(1, vT0)
        a('s_branch L_joinB')
        a.label('L_fastB')
        for sl in ('G', 0, 1, 2):
            for l in qk(1, sl): a(l)
        inter(qk(1, 3), maxtree_l([S+20, S+21, S+0], m) + maxtree_l([S+1, S+2], m, False), per=1)
        inter(qk(1, 4), maxtree_l([S+3, S+4, S+5, S+6, S+7, S+8], m, False), per=1)
        a.nop(1)
        for l in maxtree_l([S+9, S+10, S+11, S+12], m, False): a(l)
        a.nop(1)
        for l in maxtree_l([S+13, S+14, S+15], m, False): a(l)
        a.nop(2)
        for l in maxtree_l([S+16, S+17, S+18, S+19], m, False): a(l)
    else:
        qb_wait(0)
        yprio('m')
        stamp()
        edge_test(1, 'L_fastB')
        for l in ep: a(l)
        if apos == 0: stores(0)
        for sl in (0, 1, 2, 3, 4, 'G'):
            for l in qk(1, sl): a(l)
        for l in xb: a(l)
        edge_mask(1, vT0)
        a('s_branch L_joinB')
        a.label('L_fastB')
        ms = []
        for sl in (0, 1, 2, 3, 4, 'G'): ms += qk(1, sl)
        inter(ms, ep, per=3)
        for l in maxtree_l([S+x for x in range(15)], vT0): a(l)
        if apos == 0: stores(0)
        for l in xb: a(l)
        a(f'v_max3_f32 {vr(vM)}, {vr(vT0)}, {vr(S+15)}, {vr(S+16)}')
        for l in maxtree_l([S+17, S+18, S+19, S+20, S+21], vM, False): a(l)
    a.label('L_joinB')
    yprio('b')
    stamp()
    a(f's_cmp_eq_u32 s{sCMB}, 0')
    a('s_cbranch_scc1 L_nohand')
    hand_loads()
    a.label('L_nohand')
    softmax_pv(1)
    stamp(fine)
    if apos == 2:
        late_a()
    a('s_nop 0')
    if apos == 3:
        for l in stage_reads(0, RA): a(l)
    for t in range(8):
        for l in epi(t, 1): a(l)
    for l in stage_reads(1): a(l)
    if apos == 3:
        stores(0, RA, extra=4+8) if False else None
        for j in range(4):
            if j == 0: a(f's_mov_b64 exec, {sr(sEX,2)}')
            if j == 0: a('s_waitcnt lgkmcnt(4)')
            a(f'buffer_store_dwordx4 {vr(RA+4*j,4)}, {vr(vOO)}, {sr(sO,4)}, s{sZERO} offen offset:{1024*j} {stpol}')
            if j == 0: a('s_mov_b64 exec, -1')
    stores(1)
    stamp()

    a(f's_cmp_eq_u32 s{sCMB}, 0')
    a('s_cbranch_scc1 L_fin')
    a(f's_waitcnt vmcnt({4 if apos == 0 else 8})')
    a(f's_mov_b32 s{sCNT}, 0')
    a(f's_mov_b32 s{sT2}, 0')
    a.label('L_chk')
    a(f's_mov_b32 s{sT3}, s{sT2}')
    for n in range(8):
        a(f'v_cmp_eq_u32 vcc, s{sN}, {vr(HB+8*n+3)}')
        a(f'v_cmp_eq_u32 s[60:61], s{sN}, {vr(HB+8*n+7)}')
        a('s_nop 0')
        a('s_and_b64 vcc, vcc, s[60:61]')
        a('s_cmp_eq_u64 vcc, exec')
        a(f's_cselect_b32 s{sT0}, {1 << n}, 0')
        a(f's_or_b32 s{sT3}, s{sT3}, s{sT0}')
    a(f's_add_u32 s{sCNT}, s{sCNT}, 1')
    a(f's_cmp_eq_u32 s{sT3}, 0xff')
    a('s_cbranch_scc1 L_ready')
    a(f's_cmp_ge_u32 s{sCNT}, 0x40000')
    a('s_cbranch_scc1 L_ready')
    a(f's_lshl_b32 s{sT0}, s{sH}, 3')
    a(f'v_mov_b32 {vr(KG+1)}, s{sT0}')
    a(f'global_load_dword {vr(KG+2)}, {vr(KG+1)}, s[16:17] offset:4 sc0 sc1')
    a('s_waitcnt vmcnt(0)')
    a(f'v_readfirstlane_b32 s{sT2}, {vr(KG+2)}')
    hand_loads()
    a('s_waitcnt vmcnt(0)')
    a('s_branch L_chk')
    a.label('L_ready')
    hog = [[HB+8*n, HB+8*n+1, HB+8*n+2, HB+8*n+4] for n in range(8)]
    hmg = [HB+8*n+5 for n in range(8)]
    combine(hog, hmg, X8)
    a(f'v_rcp_f32 {vr(X8)}, {vr(hmg[0]+1)}')
    a(f'v_lshrrev_b32 {vr(KG)}, 1, {vr(KG)}')
    for e in range(4):
        a(f'v_mul_f32 {vr(hog[0][e])}, {vr(hog[0][e])}, {vr(X8)}')
    a(f'v_cvt_pk_bf16_f32 {vr(X8+2)}, {vr(hog[0][0])}, {vr(hog[0][1])}')
    a(f'v_cvt_pk_bf16_f32 {vr(X8+3)}, {vr(hog[0][2])}, {vr(hog[0][3])}')
    a(f'buffer_store_dwordx2 {vr(X8+2,2)}, {vr(KG)}, {sr(sO,4)}, 0 offen {stpol}')
    a.label('L_fin')
    if stamps:
        stamp()
        a('s_waitcnt vmcnt(0)')
        stamp()
        if opt.get('clk'):
            a('s_memtime s[98:99]')
            a('s_waitcnt lgkmcnt(0)')
            a('s_sub_u32 s98, s98, s96')
            a(f's_add_u32 s{64+2*nst[0]}, s98, s64')
            nst[0] += 1
        a(f's_lshl_b32 s{sT0}, s2, 3')
        a(f's_add_u32 s{sT0}, s{sT0}, s{sWV}')
        a(f's_lshl_b32 s{sT0}, s{sT0}, 6')
        a(f's_add_u32 s{sT0}, s{sT0}, 0x100000')
        a(f's_add_u32 s{sW}, s18, s{sT0}')
        a(f's_addc_u32 s{sW+1}, s19, 0')
        a(f'v_mov_b32 v1, 0')
        a('s_mov_b64 exec, 1')
        for n in range(min(16, nst[0])):
            a(f'v_mov_b32 v2, s{64+2*n}')
            a(f'buffer_store_dword v2, v1, {sr(sW,4)}, 0 offen offset:{4*n}')
        if 'leak' in opt:
            k = int(opt['leak'])
            a(f's_sub_u32 s{sT0}, s{64+2*k}, s64')
            a(f's_lshl_b32 s{sT0}, s{sT0}, 2')
            if opt.get('leakskew'):
                a.label('L_pre')
                a('s_memrealtime s[100:101]')
                a('s_waitcnt lgkmcnt(0)')
                a(f's_sub_u32 s{sT1}, s100, s64')
                a(f's_cmp_lt_u32 s{sT1}, 3000')
                a('s_cbranch_scc1 L_pre')
                a('s_mov_b64 exec, -1')
                a('v_mbcnt_lo_u32_b32 v3, -1, 0')
                a('v_and_b32 v3, 31, v3')
                a('v_lshlrev_b32 v3, 3, v3')
                a('global_load_dword v4, v3, s[16:17] sc0 sc1')
                a('s_waitcnt vmcnt(0)')
                a('v_readlane_b32 s20, v4, 0')
                a('s_mov_b32 s21, 0'); a('s_mov_b32 s22, 0')
                for n in range(1, 32):
                    a(f'v_readlane_b32 s23, v4, {n}')
                    a('s_nop 0')
                    a('s_sub_i32 s23, s23, s20')
                    a('s_min_i32 s21, s21, s23')
                    a('s_max_i32 s22, s22, s23')
                a(f's_sub_u32 s{sT0}, s22, s21')
                a(f's_min_u32 s{sT0}, s{sT0}, 2000')
                a(f's_lshl_b32 s{sT0}, s{sT0}, 2')
            if opt.get('leakxcc'):
                a('s_getreg_b32 s61, hwreg(HW_REG_XCC_ID, 0, 4)')
                a(f's_bfe_u32 s60, s{sN}, 0x40001')
                a('s_cmp_lg_u32 s60, s61')
                a(f's_cselect_b32 s{sT0}, 2000, 0')
            if opt.get('leakcnt'):
                a(f's_mul_i32 s{sT0}, s{sCNT}, 500')
                a(f's_mul_i32 s{sT0}, s{sT0}, s{sCMB}')
            if 'leakh' in opt:
                lo, hi = opt['leakh'].split(',')
                a(f's_sub_u32 s{sT1}, s{sH}, {lo}')
                a(f's_cmp_lt_u32 s{sT1}, {int(hi)-int(lo)}')
                a(f's_cselect_b32 s{sT0}, s{sT0}, 0')
            if 'leakwg' in opt:
                a(f's_cmp_eq_u32 s2, {opt["leakwg"]}')
                a(f's_cselect_b32 s{sT0}, s{sT0}, 0')
            if 'leakx' in opt:
                a(f's_getreg_b32 s{sT1}, hwreg(HW_REG_XCC_ID, 0, 4)')
                a(f's_lshr_b32 s{sT1}, {opt["leakx"]}, s{sT1}')
                a(f's_bitcmp1_b32 s{sT1}, 0')
                a(f's_cselect_b32 s{sT0}, s{sT0}, 0')
            if 'leakw' in opt:
                a(f's_lshr_b32 s{sT1}, {opt["leakw"]}, s{sWV}')
                a(f's_bitcmp1_b32 s{sT1}, 0')
                a(f's_cselect_b32 s{sT0}, s{sT0}, 0')
            a(f"s_add_u32 s{sT0}, s{sT0}, {opt.get('spin', 5000)}")
            a.label('L_spin')
            a('s_memrealtime s[100:101]')
            a('s_waitcnt lgkmcnt(0)')
            a(f's_sub_u32 s{sT1}, s100, s64')
            a(f's_cmp_lt_u32 s{sT1}, s{sT0}')
            a('s_cbranch_scc1 L_spin')
    a.label('L_end')
    a('s_endpgm')
    if cpf:
        a('.fill 4096, 4, 0xbf800000')

    check(a.lines)
    if stamps: print('stamps', nst[0])
    head = f'''; windowed + global-token attention, B=1 H=32 S=2048 D=128 bf16 (window 32, 2 global tokens)
; @launch grid=(256,1,1) block=(512,1,1) lds=163840
.amdgcn_target "amdgcn-amd-amdhsa--gfx950"
.text
.globl {NAME}
.p2align 8
.type {NAME},@function
{NAME}:
'''
    tail = f'''.section .rodata,"a"
.p2align 6
.amdhsa_kernel {NAME}
  .amdhsa_next_free_vgpr 256
  .amdhsa_next_free_sgpr {102 if stamps else 64}
  .amdhsa_accum_offset 256
  .amdhsa_group_segment_fixed_size 0
  .amdhsa_kernarg_size 64
  .amdhsa_user_sgpr_count 2
  .amdhsa_user_sgpr_kernarg_segment_ptr 1
  .amdhsa_system_sgpr_workgroup_id_x 1
.end_amdhsa_kernel
'''
    return head + a.text() + tail

if __name__ == '__main__':
    out = sys.argv[1]
    opt = {}
    for kv in sys.argv[2:]:
        k, v = kv.split('=', 1)
        opt[k] = {'True': True, 'False': False}.get(v, v.replace('+', ' '))
    open(out, 'w').write(gen(opt))
```

```python
import sys, math, struct
from asmlib import *

NAME = 'standalone__global_local_windowed_global_tokens__prompt_kernel'
def f2u(x): return struct.unpack('<I', struct.pack('<f', x))[0]

def gen(opt):
    a = Asm()
    NEG = 0xFF000000
    CSC = f2u(128 ** -0.5 * math.log2(math.e))
    KOFF, VOFF, SOFF = 0, 73728, 155648
    apos = int(opt.get('apos', 0))
    PART, STG = 0, 4096
    PARTML, LCNT, LNON = SOFF + 3072, SOFF + 3072 + 128, SOFF + 3072 + 132
    STGP = 272
    ldpol = opt.get('ldpol', '')
    qpol = opt.get('qpol', '')
    stpol = opt.get('stpol', 'sc0 sc1 nt')
    pk = opt.get('pk', True)
    N1 = int(opt.get('n1', 10))
    yp = opt.get('yp', '')
    RW = int(opt.get('rw', 3))
    FW = 7
    SW = 5
    CW, CC = int(opt.get('cw', 1)), 3
    merge = opt.get('merge', True)
    sQ, sK, sV, sO, sW = 20, 24, 28, 32, 36
    sWV, sH, sC, sHO, sQ0B = 40, 43, 44, 45, 46
    sT0, sT1, sT2, sT3 = 47, 48, 49, 50
    sBK = 62
    HW = 4
    sCS = 52; sKG0 = 54; sQB = 51; sEX = 56; sCMB = 58; sCNT = 59; sN = 63; sTOFF = 41; sZERO = 3
    VA = 0
    vSW, vSR, vOO, vT0 = 8, 9, 10, 11
    X8 = 12
    KF = 16; KG = 112; QA, QB = 128, 144; VG = 160; O = 192; S = 224
    BLO, BHI = 248, 252
    kf = lambda W, ks: KF + 16 * W + 4 * ks
    X = [O + 4 * n for n in range(8)] + [X8]
    vLANE, vI, vKGp, vDK, vDV, vDQ, vAG, vNEG, vAK = O+16, O+17, O+18, O+19, O+20, O+21, O+22, O+23, O+24
    vAVG, t1, t2, t3 = O+28, O+29, O+30, O+31
    vDQk = VG + 7
    vFLAG = VG + 3
    vM, vT = S + 22, S + 23

    stamps = opt.get('stamps', False)
    fine = opt.get('fine', False)
    nst = [0]
    def stamp(on=True):
        if stamps and on:
            a(f's_memrealtime s[{64+2*nst[0]}:{65+2*nst[0]}]')
            if nst[0]: a('s_waitcnt lgkmcnt(0)')
            nst[0] += 1
    M16 = 'v_mfma_f32_16x16x32_bf16'
    def mfma(d, x, y, c):
        return f'{M16} {vr(d,4)}, {vr(x,4)}, {vr(y,4)}, {c if isinstance(c,str) else vr(c,4)}'
    def only(w, lab):
        a(f's_cmp_lg_u32 s{sWV}, {w}')
        a(f's_cbranch_scc1 {lab}')

    stamp()
    if opt.get('clk'): a('s_memtime s[96:97]')
    a('s_load_dwordx16 s[4:19], s[0:1], 0')
    a(f'v_readfirstlane_b32 s{sWV}, v0')
    a('s_cmp_ge_u32 s2, 256')
    a('s_cbranch_scc1 L_end')
    a(f'v_lshrrev_b32 {vr(t1)}, 4, v0')
    a(f'v_xor_b32 {vr(vDK)}, {vr(t1)}, v0')
    a(f'v_and_b32 {vr(vDK)}, 15, {vr(vDK)}')
    a(f'v_lshl_add_u32 {vr(vDK)}, {vr(t1)}, 4, {vr(vDK)}')
    a(f's_bfe_u32 s{sC}, s2, 0x30003')
    a(f's_lshl_b32 s{sQ0B}, s{sC}, 16')
    a(f'v_lshl_add_u32 {vr(vDK)}, {vr(vDK)}, 4, s{sQ0B}')
    a('s_and_b32 s41, s2, 7')
    a(f's_lshr_b32 s{sH}, s2, 6')
    a(f's_lshl2_add_u32 s{sH}, s41, s{sH}')
    a(f's_lshl_b32 s{sHO}, s{sH}, 19')
    a(f's_lshl_b32 m0, s{sWV}, 4')
    a(f's_mov_b32 s{sK+2}, 0x80000')
    a(f's_mov_b32 s{sK+3}, 0x20000')
    a(f's_movk_i32 s{sCNT}, 17')
    cpf = opt.get('cpf', True)
    a.label('L_base')
    if cpf is True:
        a(f's_getpc_b64 s[{sEX}:{sEX+1}]')
        a(f'v_lshlrev_b32 v1, 5, v0')
        a(f'global_load_dword {vr(X8)}, v1, s[{sEX}:{sEX+1}]')
    a(f's_cmp_ge_u32 s{sWV}, 256')
    a('s_cbranch_scc1 L_helper')
    a('s_waitcnt lgkmcnt(0)')
    stamp()
    a(f's_add_u32 s{sK}, s6, s{sHO}')
    a(f's_addc_u32 s{sK+1}, s7, 0')
    thr = int(opt.get('thr', 0)); tl = [0]
    if thr: a('s_getreg_b32 s1, hwreg(HW_REG_XCC_ID, 0, 4)')
    def throttle():
        if thr:
            a('s_bitcmp1_b32 s1, 0')
            a(f's_cbranch_scc{opt.get("thpar", 1)} L_th{tl[0]}')
            a(f's_waitcnt vmcnt({thr-1})')
            a.label(f'L_th{tl[0]}')
            tl[0] += 1
    a.label('L_kloop')
    throttle()
    a(f'buffer_load_dwordx4 {vr(vDK)}, {sr(sK,4)}, 0 offen {opt.get("kpol", ldpol)} lds')
    a('s_add_u32 m0, m0, 0x1000')
    a(f'v_add_u32 {vr(vDK)}, 0x1000, {vr(vDK)}')
    a(f's_sub_u32 s{sCNT}, s{sCNT}, 1')
    a('s_cbranch_scc0 L_kloop')
    if 'dup' in opt:
        nd = int(opt['dup'])
        a(f's_sub_u32 m0, m0, {0x1000*18}')
        a(f'v_subrev_u32 {vr(vDK)}, {0x1000*18}, {vr(vDK)}')
        for i in range(nd):
            a(f'buffer_load_dwordx4 {vr(vDK)}, {sr(sK,4)}, 0 offen lds')
            a('s_add_u32 m0, m0, 0x1000')
            a(f'v_add_u32 {vr(vDK)}, 0x1000, {vr(vDK)}')
    stamp(opt.get('postk', False))
    def common():
        a(f's_lshr_b32 s{sWV}, s{sWV}, 6')
        a(f'v_and_b32 {vr(vLANE)}, 63, v0')
        a(f'v_and_b32 {vr(vI)}, 15, v0')
        a(f'v_bfe_u32 {vr(vKGp)}, v0, 4, 2')
        a(f's_lshl_b32 s{sT1}, s{sWV}, 10')
        a(f's_add_u32 s{sT2}, s{sT1}, s{sQ0B}')
        for s_ in (sV, sQ):
            a(f's_mov_b32 s{s_+2}, 0x80000')
            a(f's_mov_b32 s{s_+3}, 0x20000')
        a(f's_mov_b32 s{sW+2}, 0x4000')
        a(f's_mov_b32 s{sW+3}, 0x20000')
        a(f's_and_b32 s{sBK}, s{sWV}, 3')
        a(f's_lshl_b32 s{sBK}, s{sBK}, 1')
        a(f's_cmp_lt_u32 s{sWV}, 4')
        a(f's_addc_u32 s{sBK}, s{sBK}, 0')
        a(f's_cmp_eq_u32 s{sC}, 0')
        a(f's_cselect_b32 s{sT3}, 0x40000000, 0')
        a(f's_lshl_b32 s{sT0}, s{sBK}, 13')
        a(f's_add_u32 s{sT0}, s{sT0}, s{sQ0B}')
        a(f'v_lshlrev_b32 {vr(vDQ)}, 4, {vr(vKGp)}')
        a(f'v_lshl_add_u32 {vr(vDQ)}, {vr(vI)}, 8, {vr(vDQ)}')
        a(f'v_add_u32 {vr(vDQ)}, s{sT0}, {vr(vDQ)}')
        a(f'v_lshlrev_b32 {vr(t3)}, 4, {vr(vLANE)}')
        a(f's_lshl_b32 s41, s{sH}, 14')
        a(f's_lshl_b32 s42, s{sC}, 11')
    common()
    a(f's_mov_b32 s{sN}, 0')
    def srds():
        a(f's_add_u32 s{sV}, s8, s{sHO}')
        a(f's_addc_u32 s{sV+1}, s9, 0')
        a(f's_add_u32 s{sQ}, s4, s{sHO}')
        a(f's_addc_u32 s{sQ+1}, s5, 0')
        a(f's_add_u32 s{sW}, s18, s41')
        a(f's_addc_u32 s{sW+1}, s19, 0')
    srds()
    a('s_branch L_v1')
    a.label('L_helper')
    a('s_setprio 3')
    a('s_memrealtime s[60:61]')
    if cpf == 'one':
        a(f's_cmp_lg_u32 s{sWV}, {64*6}')
        a('s_cbranch_scc1 L_nocpf')
        a(f's_getpc_b64 s[{sEX}:{sEX+1}]')
        a(f's_lshl_b32 s{sT0}, s{sC}, 11')
        a(f'v_and_b32 v1, 15, v0')
        a(f'v_lshl_add_u32 v1, v1, 7, s{sT0}')
        a('s_mov_b64 exec, 0xffff')
        a(f'global_load_dword {vr(X8)}, v1, s[{sEX}:{sEX+1}]')
        a('s_mov_b64 exec, -1')
        a.label('L_nocpf')
    common()
    a(f's_sub_u32 s{sT0}, s{sT3}, 0x2000')
    a(f'v_add_u32 {vr(t1)}, s{sT0}, {vr(vDQ)}')
    a(f'v_add_u32 {vr(t2)}, 0x1000, {vr(t1)}')
    a(f's_mov_b32 m0, {SOFF}')
    a('s_waitcnt lgkmcnt(0)')
    if stamps:
        nst[0] -= 1
        stamp()
    a(f's_add_u32 s{sK}, s6, s{sHO}')
    a(f's_addc_u32 s{sK+1}, s7, 0')
    srds()
    if stamps and opt.get('postk'):
        nst[0] -= 1
        stamp()
    a(f's_or_b32 s{sN}, s60, 1')
    if opt.get('leakxcc'):
        a('s_getreg_b32 s61, hwreg(HW_REG_XCC_ID, 0, 4)')
        a(f's_and_b32 s{sN}, s60, 0xffffffe0')
        a(f's_lshl1_add_u32 s{sN}, s61, s{sN}')
        a(f's_or_b32 s{sN}, s{sN}, 1')
    only(FW, 'L_noclear')
    a(f's_lshl_b32 s{sT0}, s{sH}, 3')
    a(f'v_mov_b32 {vr(S+4)}, s{sT0}')
    a(f'v_mov_b32 {vr(S+5)}, s{sN}')
    a(f'v_mov_b32 {vr(S+6)}, {LCNT}')
    a(f'v_mov_b32 {vr(S+7)}, 0')
    a('s_mov_b64 exec, 1')
    a(f's_cmp_lg_u32 s{sC}, {CC}')
    a('s_cbranch_scc1 L_nopub')
    a(f'global_store_dword {vr(S+4)}, {vr(S+5)}, s[16:17] sc0 sc1')
    a.label('L_nopub')
    a(f'ds_write_b32 {vr(S+6)}, {vr(S+7)}')
    a('s_mov_b64 exec, -1')
    if opt.get('wstouch'):
        pol = {'ld': '', 'ldsc': 'sc0 sc1'}.get(opt['wstouch'])
        if pol is not None:
            a(f'buffer_load_dwordx4 {vr(S+8,4)}, {vr(t3)}, {sr(sW,4)}, s42 offen {pol}')
            a(f'buffer_load_dwordx4 {vr(S+12,4)}, {vr(t3)}, {sr(sW,4)}, s42 offen offset:1024 {pol}')
        else:
            for n in range(4): a(f'v_mov_b32 {vr(S+8+n)}, 0')
            a(f'buffer_store_dwordx4 {vr(S+8,4)}, {vr(t3)}, {sr(sW,4)}, s42 offen sc0 sc1')
            a(f'buffer_store_dwordx4 {vr(S+8,4)}, {vr(t3)}, {sr(sW,4)}, s42 offen offset:1024 sc0 sc1')
    a.label('L_noclear')
    only(SW, 'L_nosmall')
    for n, srd in enumerate((sK, sQ, sV)):
        if n:
            a(f's_mov_b32 m0, {SOFF + 1024*n}')
            a('s_nop 0')
        a(f'buffer_load_dwordx4 {vr(t3)}, {sr(srd,4)}, 0 offen lds')
    a.label('L_nosmall')
    only(HW, 'L_nohalo')
    for T in range(2):
        for ks in range(4):
            a(f'buffer_load_dwordx4 {vr(kf(T,ks),4)}, {vr(t1+T)}, {sr(sK,4)}, 0 offen offset:{64*ks}')
    a.label('L_nohalo')
    a('s_setprio 0')
    v2h = int(opt.get('v2h', 0))
    def vaddr(i0):
        a(f's_and_b32 s{sT0}, s{sWV}, 1')
        a(f's_lshl_b32 s{sT0}, s{sT0}, 2')
        a(f'v_add_lshl_u32 {vr(vDV)}, s{sT0}, {vr(vKGp)}, 1')
        a(f'v_xor_b32 {vr(vDV)}, {vr(vDV)}, {vr(vI)}')
        a(f'v_lshlrev_b32 {vr(vDV)}, 4, {vr(vDV)}')
        a(f'v_lshl_add_u32 {vr(vDV)}, {vr(vKGp)}, 8, {vr(vDV)}')
        a(f's_add_u32 s{sT2}, s{sT2}, {(0x1000*i0 - 0x2000) & 0xffffffff}')
        a(f'v_add_u32 {vr(vDV)}, s{sT2}, {vr(vDV)}')
        a(f's_add_u32 m0, s{sT1}, {VOFF + 0x1000*i0}')
    if v2h:
        vaddr(20 - v2h - 1 - 1)
    a('s_branch L_nov1')
    a.label('L_v1')
    def vpiece(i):
        throttle()
        if i:
            a('s_add_u32 m0, m0, 0x1000')
            a(f'v_add_u32 {vr(vDV)}, 0x1000, {vr(vDV)}')
        if i < 2:
            a(f'v_add_u32 {vr(t1)}, s{sT3}, {vr(vDV)}')
            a(f'buffer_load_dwordx4 {vr(t1)}, {sr(sV,4)}, 0 offen {ldpol} lds')
        else:
            a(f'buffer_load_dwordx4 {vr(vDV)}, {sr(sV,4)}, 0 offen {ldpol} lds')
    vaddr(0)
    for i in range(N1): vpiece(i)
    a.label('L_nov1')
    stamp()

    a(f's_add_u32 s{sO}, s14, s{sHO}')
    a(f's_addc_u32 s{sO+1}, s15, 0')
    a(f's_mov_b32 s{sO+2}, 0x80000')
    a(f's_mov_b32 s{sO+3}, 0x20000')
    a(f's_movk_i32 s{sTOFF}, 0x1000')
    a(f's_mov_b32 s{sZERO}, 0')
    a(f's_mov_b32 s{sCS}, 0x{CSC:08x}')
    a(f's_mov_b32 s{sCS+1}, 0x{CSC:08x}')
    a(f'v_mov_b32 {vr(vNEG)}, 0x{NEG:08x}')
    a(f'v_lshlrev_b32 {vr(t2)}, 2, {vr(vKGp)}')
    a(f'v_cmp_eq_u32 {sr(sKG0,2)}, 0, {vr(vKGp)}')
    for r in range(4):
        a(f'v_add_u32 {vr(t1)}, {r}, {vr(t2)}')
        a(f'v_cmp_ge_u32 vcc, {vr(t1)}, {vr(vI)}')
        a(f'v_cmp_le_u32 s[60:61], {vr(t1)}, {vr(vI)}')
        a('s_nop 0')
        a(f'v_cndmask_b32 {vr(BLO+r)}, {vr(vNEG)}, 0, vcc')
        a(f'v_cndmask_b32 {vr(BHI+r)}, {vr(vNEG)}, 0, s[60:61]')
    a(f's_lshl_b32 s{sT0}, s{sBK}, 13')
    a(f'v_xor_b32 {vr(t1)}, {vr(vKGp)}, {vr(vI)}')
    a(f'v_lshlrev_b32 {vr(t1)}, 4, {vr(t1)}')
    a(f'v_lshl_add_u32 {vr(t1)}, {vr(vI)}, 8, {vr(t1)}')
    a(f'v_add_u32 {vr(vAK)}, s{sT0}, {vr(t1)}')
    for ks in range(1, 4):
        a(f'v_xor_b32 {vr(vAK+ks)}, {64*ks}, {vr(vAK)}')
    a(f'v_and_b32 {vr(t1)}, 1, {vr(vI)}')
    a(f'v_lshlrev_b32 {vr(vNEG)}, 3, {vr(t1)}')
    a(f'v_lshlrev_b32 {vr(t1)}, 8, {vr(t1)}')
    a(f'v_lshl_add_u32 {vr(t1)}, {vr(vKGp)}, 4, {vr(t1)}')
    a(f'v_add_u32 {vr(vAG)}, {SOFF}, {vr(t1)}')
    a(f'v_bfe_u32 {vr(t1)}, {vr(vLANE)}, 2, 2')
    a(f'v_and_b32 {vr(t2)}, 3, {vr(vLANE)}')
    a(f'v_lshlrev_b32 {vr(t2)}, 3, {vr(t2)}')
    a(f'v_lshl_add_u32 {vr(t1)}, {vr(t1)}, 8, {vr(t2)}')
    a(f'v_add_u32 {vr(vAVG)}, {SOFF+2048}, {vr(t1)}')
    a(f'v_lshrrev_b32 {vr(t1)}, 2, {vr(vLANE)}')
    a(f'v_and_b32 {vr(vT0)}, 7, {vr(t1)}')
    a(f'v_lshl_add_u32 {vr(t2)}, {vr(vT0)}, 5, {vr(t2)}')
    a(f'v_lshl_add_u32 {vr(t2)}, {vr(t1)}, 8, {vr(t2)}')
    a(f's_add_u32 s{sT1}, s{sT0}, {VOFF}')
    a(f'v_add_u32 {vr(VA)}, s{sT1}, {vr(t2)}')
    for t in range(1, 8):
        a(f'v_xor_b32 {vr(VA+t)}, {32*t}, {vr(VA)}')
    a(f's_mul_i32 s{sT1}, s{sWV}, {32*STGP}')
    a(f's_add_u32 s{sT1}, s{sT1}, {STG}')
    a(f'v_mul_u32_u24 {vr(t1)}, {STGP}, {vr(vI)}')
    a(f'v_lshl_add_u32 {vr(t1)}, {vr(vKGp)}, 3, {vr(t1)}')
    a(f'v_add_u32 {vr(vSW)}, s{sT1}, {vr(t1)}')
    a(f'v_mul_u32_u24 {vr(t1)}, {STGP}, {vr(vKGp)}')
    a(f'v_lshl_add_u32 {vr(t1)}, {vr(vI)}, 4, {vr(t1)}')
    a(f'v_add_u32 {vr(vSR)}, s{sT1}, {vr(t1)}')
    a(f's_add_u32 s{sT0}, s{sT0}, s{sQ0B}')
    a(f'v_add_u32 {vr(vOO)}, s{sT0}, {vr(t3)}')
    a(f's_lshr_b32 s{sQB}, s{sT0}, 8')
    a(f's_cmp_eq_u32 s{sQB}, 0')
    a(f's_cselect_b32 s{sEX}, 0, -1')
    a(f's_mov_b32 s{sEX+1}, -1')
    a(f's_cmp_eq_u32 s{sQB}, {256*CC+32*(2*CW+1)}')
    a(f's_cselect_b32 s{sCMB}, 1, 0')
    a(f's_lshl_b32 s{sT0}, s{sWV}, 4')
    a(f's_add_u32 s{sT0}, s{sT0}, {PARTML}')
    a(f'v_add_u32 {vr(vNEG)}, s{sT0}, {vr(vNEG)}')

    spf = [int(x) for x in opt.get('spf', '0,0').split(',')]
    spstep = int(opt.get('spstep', 128)); sptile = opt.get('sptile', 'B')
    def sp_offsets():
        o = []
        for half in ([1, 0] if sptile == 'B' else [0, 1]):
            for blk in (1, 0):
                o += [8192*blk + 4096*half + x for x in range(0, 4096, spstep)]
        return o
    spo = sp_offsets()
    def sprefetch(n):
        for _ in range(n):
            if spo: a(f's_load_dword s61, s[10:11], {spo.pop(0)}')
    if sum(spf):
        a(f's_cmp_lt_u32 s{sWV}, 4')
        a('s_cbranch_scc1 L_nosp')
        a(f's_lshl_b32 s{sT0}, s{sBK}, 13')
        a(f's_add_u32 s{sT0}, s{sT0}, s{sQ0B}')
        a(f's_add_u32 s10, s{sQ}, s{sT0}')
        a(f's_addc_u32 s11, s{sQ+1}, 0')
        sprefetch(spf[0])
        a.label('L_nosp')
    a(f's_waitcnt vmcnt({N1}) lgkmcnt(0)')
    a(f's_cmp_lt_u32 s{sWV}, 4')
    a('s_cbranch_scc1 L_kw')
    a(f's_cmp_eq_u32 s{sWV}, {FW}')
    a('s_cbranch_scc1 L_kw')
    a('s_waitcnt vmcnt(0)')
    a.label('L_kw')
    stamp(opt.get('prek', False))
    a('s_barrier')
    stamp()
    a(f's_cmp_ge_u32 s{sWV}, 4')
    a('s_cbranch_scc1 L_nov2')
    for i in range(N1, 20 - v2h): vpiece(i)
    if v2h:
        a('s_branch L_nov2b')
    a.label('L_nov2')
    if v2h:
        a(f's_setprio {opt.get("v2p", 3)}')
        for i in range(20 - v2h, 20): vpiece(i)
        a('s_setprio 0')
        a.label('L_nov2b')
    stamp(fine)
    QG = O
    for W in (2, 3, 4, 5):
        for ks in range(4):
            a(f'ds_read_b128 {vr(kf(W,ks),4)}, {vr(vAK+ks)} offset:{4096*(W-2)}')
    for ks in range(4):
        a(f'ds_read_b128 {vr(KG+4*ks,4)}, {vr(vAG)} offset:{64*ks}')
    for t in range(8):
        a(f'ds_read_b64_tr_b16 {vr(VG+4*t+2,2)}, {vr(vAVG)} offset:{32*t}')
    a(f's_cmp_eq_u32 s{sWV}, {HW}')
    a('s_cbranch_scc1 L_k01done')
    for ks in range(4):
        a(f'v_subrev_u32 {vr(vAK+ks)}, 0x2000, {vr(vAK+ks)}')
    for W in (0, 1):
        for ks in range(4):
            a(f'ds_read_b128 {vr(kf(W,ks),4)}, {vr(vAK+ks)} offset:{4096*W}')
    a.label('L_k01done')
    def issue_qa():
        if opt.get('qprio'): a('s_setprio 3')
        for ks in range(4):
            a(f'buffer_load_dwordx4 {vr(QA+4*ks,4)}, {vr(vDQ)}, {sr(sQ,4)}, 0 offen offset:{64*ks} {qpol}')
        if opt.get('qprio'): a('s_setprio 0')

    def xred(m, t, op='v_max_f32'):
        a(f'v_mov_b32 {vr(t)}, {vr(m)}')
        a.nop(2)
        a(f'v_permlane16_swap_b32 {vr(m)}, {vr(t)}')
        a(f'{op} {vr(m)}, {vr(m)}, {vr(t)}')
        a(f'v_mov_b32 {vr(t)}, {vr(m)}')
        a.nop(2)
        a(f'v_permlane32_swap_b32 {vr(m)}, {vr(t)}')
        a(f'{op} {vr(m)}, {vr(m)}, {vr(t)}')
    def maxtree_l(vals, m, first=True):
        out = []; rest = list(vals)
        if first:
            out.append(f'v_max3_f32 {vr(m)}, {vr(rest[0])}, {vr(rest[1])}, {vr(rest[2])}'); rest = rest[3:]
        while len(rest) >= 2:
            out.append(f'v_max3_f32 {vr(m)}, {vr(m)}, {vr(rest[0])}, {vr(rest[1])}'); rest = rest[2:]
        if rest:
            out.append(f'v_max_f32 {vr(m)}, {vr(m)}, {vr(rest[0])}')
        return out
    def fma_l(vals, mc):
        if pk:
            return [f'v_pk_fma_f32 {vr(vals[n],2)}, {vr(vals[n],2)}, {sr(sCS,2)}, {vr(mc,2)} op_sel_hi:[1,1,0] neg_lo:[0,0,1] neg_hi:[0,0,1]' for n in range(0, len(vals), 2)]
        return [f'v_fma_f32 {vr(v)}, {vr(v)}, s{sCS}, -{vr(mc)}' for v in vals]
    exp_l = lambda vals: [f'v_exp_f32 {vr(v)}, {vr(v)}' for v in vals]
    cvt_l = lambda dst, src, n: [f'v_cvt_pk_bf16_f32 {vr(dst+k)}, {vr(src+2*k)}, {vr(src+2*k+1)}' for k in range(n)]

    def vread(dst, t, W):
        return f'ds_read_b64_tr_b16 {vr(dst,2)}, {vr(VA+t)} offset:{4096*W}'
    a(f's_cmp_lt_u32 s{sWV}, 4')
    a('s_cbranch_scc1 L_gk')
    sprefetch(spf[1])
    only(FW, 'L_notag')
    a('s_setprio 3')
    a(f's_lshl_b32 s{sT0}, s{sH}, 3')
    a(f'v_mov_b32 {vr(S+4)}, s{sT0}')
    a(f'v_mov_b32 {vr(S+5)}, s{sN}')
    a(f'v_mov_b32 {vr(S+6)}, {LCNT}')
    a(f'global_load_dword {vr(S+7)}, {vr(S+4)}, s[16:17]')
    a('s_setprio 0')
    issue_qa()
    a('s_waitcnt vmcnt(4)')
    if opt.get('forcefb'): a(f'v_mov_b32 {vr(S+7)}, 0')
    a(f's_cmp_eq_u32 s{sC}, {CC}')
    a('s_cselect_b64 vcc, -1, 0')
    a(f'v_cndmask_b32 {vr(S+7)}, {vr(S+7)}, {vr(S+5)}, vcc')
    a('s_mov_b64 exec, 1')
    a(f'ds_write_b32 {vr(S+6)}, {vr(S+7)} offset:4')
    a('s_mov_b64 exec, -1')
    a('s_branch L_tagdone')
    a.label('L_notag')
    issue_qa()
    if v2h: a('s_waitcnt vmcnt(4)')
    a.label('L_tagdone')
    a('s_waitcnt lgkmcnt(0)')
    a(f'v_add_u32 {vr(vDQk)}, 0x1000, {vr(vDQ)}')
    stamp(fine)
    a('s_barrier')
    for t in range(8):
        a(vread(X[t+1], t, 0)); a(vread(X[t+1]+2, t, 1))
    a('s_branch L_gdone')
    a.label('L_gk')
    for ks in range(4):
        a(f'ds_read_b128 {vr(QG+4*ks,4)}, {vr(vAG)} offset:{1024+64*ks}')
    issue_qa()
    a('s_waitcnt lgkmcnt(0)')
    for T in range(4):
        for ks in range(4):
            a(mfma(S+4*T, kf(T,ks), QG+4*ks, '0' if ks == 0 else S+4*T))
    a(f'v_add_u32 {vr(vDQk)}, 0x1000, {vr(vDQ)}')
    a.nop(7)
    for l in maxtree_l([S+x for x in range(16)], vM): a(l)
    xred(vM, vT)
    a(f'v_mul_f32 {vr(vM)}, s{sCS}, {vr(vM)}')
    for l in fma_l([S+x for x in range(16)], vM): a(l)
    for l in exp_l([S+x for x in range(16)]): a(l)
    a.nop(1)
    a(f'v_add_f32 {vr(vT)}, {vr(S)}, {vr(S+1)}')
    for x in range(2, 16):
        a(f'v_add_f32 {vr(vT)}, {vr(vT)}, {vr(S+x)}')
    for l in cvt_l(S, S, 8): a(l)
    xred(vT, vT0, 'v_add_f32')
    a(f'ds_write_b64 {vr(vNEG)}, {vr(vM,2)}')
    a(f'v_mbcnt_lo_u32_b32 {vr(vT0)}, -1, 0')
    a(f's_lshl_b32 s{sT0}, s{sWV}, 10')
    a(f'v_lshl_add_u32 {vr(vT0)}, {vr(vT0)}, 3, s{sT0}')
    if stamps and fine:
        nst[0] -= 1
        stamp()
    a('s_waitcnt vmcnt(4) lgkmcnt(0)')
    a('s_barrier')
    gb = [QB + 4*n for n in range(4)] + [S + 8 + 4*n for n in range(4)]
    for t in range(8):
        a(vread(gb[t], t, 2)); a(vread(gb[t]+2, t, 3))
    for t in range(8):
        a('s_waitcnt lgkmcnt(14)')
        a(mfma(gb[t], S+4, gb[t], '0'))
        a(vread(X[t+1], t, 0)); a(vread(X[t+1]+2, t, 1))
    for t in range(8):
        a(f's_waitcnt lgkmcnt({14-2*t})')
        a(mfma(gb[t], S, X[t+1], gb[t]))
    a('s_mov_b64 exec, 1')
    a(f'v_mov_b32 {vr(S)}, {LCNT}')
    a(f'v_mov_b32 {vr(S+1)}, 1')
    a('s_mov_b64 exec, 0xffff')
    for t in range(8):
        a(f'ds_write_b64 {vr(vT0)}, {vr(gb[t],2)} offset:{PART+128*t}')
    a('s_mov_b64 exec, 1')
    a(f'ds_add_u32 {vr(S)}, {vr(S+1)}')
    a('s_mov_b64 exec, -1')
    a.label('L_gdone')
    stamp()

    emit = lambda ls: [a(l) for l in ls]
    def combine(og, mg, tm):
        NP = len(og)
        emit(maxtree_l([mg[n] for n in range(NP)], tm))
        for n in range(NP):
            a(f'v_sub_f32 {vr(mg[n])}, {vr(mg[n])}, {vr(tm)}')
        for n in range(NP):
            a(f'v_exp_f32 {vr(mg[n])}, {vr(mg[n])}')
        a.nop(1)
        for e in range(4):
            a(f'v_mul_f32 {vr(og[0][e])}, {vr(og[0][e])}, {vr(mg[0])}')
        a(f'v_mul_f32 {vr(mg[0]+1)}, {vr(mg[0]+1)}, {vr(mg[0])}')
        for n in range(1, NP):
            for e in range(4):
                a(f'v_fmac_f32 {vr(og[0][e])}, {vr(og[n][e])}, {vr(mg[n])}')
            a(f'v_fmac_f32 {vr(mg[0]+1)}, {vr(mg[n]+1)}, {vr(mg[n])}')

    def issue_qb():
        for ks in range(4):
            a(f'buffer_load_dwordx4 {vr(QB+4*ks,4)}, {vr(vDQk)}, {sr(sQ,4)}, 0 offen offset:{64*ks} {qpol}')
        a(f'v_mov_b32 {vr(vDQk)}, 0')
    issue_qb()
    if opt.get('otouch'):
        only(FW, 'L_nootouch')
        a(f's_mov_b32 m0, {PARTML+256}')
        a('s_mov_b64 exec, 1')
        a(f'buffer_load_dword {vr(vOO)}, {sr(sO,4)}, 0 offen lds')
        a(f'buffer_load_dword {vr(vOO)}, {sr(sO,4)}, 0 offen offset:512 lds')
        a('s_mov_b64 exec, -1')
        a('s_waitcnt vmcnt(6)')
        a('s_branch L_tileA')
        a.label('L_nootouch')
    a(f's_cmp_eq_u32 s{sWV}, {RW}')
    a('s_cbranch_scc1 L_reduce')
    a(f's_cmp_eq_u32 s{sCMB}, 0')
    a('s_cbranch_scc1 L_noflag')
    a(f'v_mov_b32 {vr(vT0)}, {LNON}')
    a(f'ds_read_b32 {vr(vT0)}, {vr(vT0)}')
    a('s_waitcnt lgkmcnt(0)')
    a(f'v_readfirstlane_b32 s{sN}, {vr(vT0)}')
    a.label('L_noflag')
    a('s_waitcnt vmcnt(4)')
    a('s_branch L_tileA')
    a.label('L_reduce')
    R0 = S
    a(f'v_mbcnt_lo_u32_b32 {vr(R0)}, -1, 0')
    a(f'v_mbcnt_hi_u32_b32 {vr(R0)}, -1, {vr(R0)}')
    a(f'v_lshrrev_b32 {vr(R0+1)}, 5, {vr(R0)}')
    a(f'v_and_b32 {vr(R0+3)}, 31, {vr(R0)}')
    a(f'v_lshlrev_b32 {vr(R0+3)}, 5, {vr(R0+3)}')
    a(f'v_lshl_add_u32 {vr(R0+3)}, {vr(R0+1)}, 2, {vr(R0+3)}')
    a(f'v_lshlrev_b32 {vr(R0+1)}, 3, {vr(R0+1)}')
    a(f'v_add_u32 {vr(R0+1)}, {PARTML}, {vr(R0+1)}')
    a(f'v_lshlrev_b32 {vr(R0)}, 4, {vr(R0)}')
    a(f'v_mov_b32 {vr(R0+2)}, {LCNT}')
    a(f's_mov_b32 s{sCNT}, 0')
    a.label('L_lspin')
    a(f'ds_read_b64 {vr(S+4,2)}, {vr(R0+2)}')
    a(f's_add_u32 s{sCNT}, s{sCNT}, 1')
    a('s_waitcnt lgkmcnt(0)')
    a(f'v_readfirstlane_b32 s{sT0}, {vr(S+4)}')
    a(f'v_readfirstlane_b32 s{sN}, {vr(S+5)}')
    a(f's_cmp_ge_u32 s{sCNT}, 0x100000')
    a('s_cbranch_scc1 L_lok')
    a(f's_cmp_lt_u32 s{sT0}, 4')
    a('s_cbranch_scc1 L_lspin')
    a.label('L_lok')
    mg = [S+4, S+6, O, O+2]
    G0 = S + 8
    og = [[G0+4*n+e for e in range(4)] for n in range(4)]
    for n in range(4):
        a(f'ds_read_b64 {vr(mg[n],2)}, {vr(R0+1)} offset:{16*n}')
    for n in range(4):
        if n: a(f'v_add_u32 {vr(R0+3)}, 1024, {vr(R0+3)}')
        a(f'ds_read2_b32 {vr(G0+4*n,2)}, {vr(R0+3)} offset0:0 offset1:2')
        a(f'ds_read2_b32 {vr(G0+4*n+2,2)}, {vr(R0+3)} offset0:4 offset1:6')
    a('s_waitcnt lgkmcnt(0)')
    combine(og, mg, R0+1)
    a(f'v_mov_b32 {vr(G0+4)}, {vr(G0+3)}')
    a(f'v_mov_b32 {vr(G0+5)}, {vr(R0+1)}')
    a(f'v_mov_b32 {vr(G0+6)}, {vr(mg[0]+1)}')
    a(f'v_mov_b32 {vr(G0+7)}, s{sN}')
    a(f'v_mov_b32 {vr(G0+3)}, s{sN}')
    a(f'buffer_store_dwordx4 {vr(G0+4,4)}, {vr(R0)}, {sr(sW,4)}, s42 offen offset:1024 sc0 sc1')
    a(f'buffer_store_dwordx4 {vr(G0,4)}, {vr(R0)}, {sr(sW,4)}, s42 offen sc0 sc1')
    a(f's_cmp_lg_u32 s{sN}, 0')
    a('s_cbranch_scc1 L_tagged')
    a('s_waitcnt vmcnt(0)')
    a(f's_lshl_b32 s{sT0}, s{sH}, 3')
    a(f's_lshl_b32 s{sT1}, 1, s{sC}')
    a(f'v_mov_b32 {vr(R0)}, s{sT0}')
    a(f'v_mov_b32 {vr(R0+1)}, s{sT1}')
    a('s_mov_b64 exec, 1')
    a(f'global_atomic_or {vr(R0)}, {vr(R0+1)}, s[16:17] offset:4 sc1')
    a('s_mov_b64 exec, -1')
    a.label('L_tagged')
    a('s_waitcnt vmcnt(6)')
    a.label('L_tileA')
    def yprio(tag):
        if yp == tag:
            a(f's_cmp_lt_u32 s{sWV}, 4')
            a(f's_cbranch_scc1 L_yp{tag}')
            a('s_setprio 1')
            a.label(f'L_yp{tag}')
    yprio('a')
    stamp()

    def inter(ms, vs, per=2):
        vs = list(vs)
        for m in ms:
            a(m)
            for _ in range(per):
                if vs: a(vs.pop(0))
        for v in vs: a(v)

    HB = kf(2, 0)
    def hand_loads():
        a(f'v_mbcnt_lo_u32_b32 {vr(KG)}, -1, 0')
        a(f'v_mbcnt_hi_u32_b32 {vr(KG)}, -1, {vr(KG)}')
        a(f'v_lshlrev_b32 {vr(KG)}, 4, {vr(KG)}')
        for n in range(8):
            a(f's_movk_i32 s{sT0}, {2048*n}')
            a(f'buffer_load_dwordx4 {vr(HB+8*n,4)}, {vr(KG)}, {sr(sW,4)}, s{sT0} offen sc0 sc1')
            a(f'buffer_load_dwordx4 {vr(HB+8*n+4,4)}, {vr(KG)}, {sr(sW,4)}, s{sT0} offen offset:1024 sc0 sc1')

    buf = [kf(0, n) for n in range(4)] + [QA + 4*n for n in range(4)]
    SLOTW = {0: [0, 1, 2, 3, 4], 1: [4, 5, 2, 3, 1]}
    def qk(tau, sl):
        Q = QA if tau == 0 else QB
        if sl == 'G':
            return [mfma(S+20, KG+4*ks, Q+4*ks, '0' if ks == 0 else S+20) for ks in range(4)]
        W = SLOTW[tau][sl]
        c0 = BLO if W == tau else BHI if W == tau + 4 else '0'
        return [mfma(S+4*sl, kf(W,ks), Q+4*ks, c0 if ks == 0 else S+4*sl) for ks in range(4)]
    def edge_test(tau, lab):
        a(f's_sub_u32 s{sT0}, s{sQB}, {48 - 16*tau}')
        a(f's_cmp_lt_u32 s{sT0}, 1968')
        a(f's_cbranch_scc1 {lab}')
    def edge_mask(tau, tr):
        a(f'v_mbcnt_lo_u32_b32 {vr(tr)}, -1, 0')
        a(f'v_mbcnt_hi_u32_b32 {vr(tr)}, -1, {vr(tr)}')
        a(f'v_lshrrev_b32 {vr(tr)}, 4, {vr(tr)}')
        a(f's_sub_u32 s{sT0}, s{sQB}, 34')
        a(f's_movk_i32 s{sT1}, 2046')
        a(f'v_lshl_add_u32 {vr(tr)}, {vr(tr)}, 2, s{sT0}')
        a(f'v_mov_b32 {vr(vM)}, 0x{NEG:08x}')
        a('s_nop 3')
        for sl in range(5):
            for r in range(4):
                a(f'v_add_u32 {vr(vT)}, {16*SLOTW[tau][sl]+r}, {vr(tr)}')
                a(f'v_cmp_gt_u32 vcc, s{sT1}, {vr(vT)}')
                a('s_nop 1')
                a(f'v_cndmask_b32 {vr(S+4*sl+r)}, {vr(vM)}, {vr(S+4*sl+r)}, vcc')
        for l in maxtree_l([S+x for x in range(22)], vM): a(l)
    def epi(t, tau=0):
        l = [f'v_mul_f32 {vr(O+4*t+e)}, {vr(O+4*t+e)}, {vr(vT0)}' for e in range(4)]
        l += [f'v_cvt_pk_bf16_f32 {vr(O+4*t)}, {vr(O+4*t)}, {vr(O+4*t+1)}',
              f'v_cvt_pk_bf16_f32 {vr(O+4*t+1)}, {vr(O+4*t+2)}, {vr(O+4*t+3)}',
              f'ds_write_b64 {vr(vSW)}, {vr(O+4*t,2)} offset:{32*t + 16*STGP*tau}']
        return l
    def stage_reads(tau=0, R=O):
        return [f'ds_read_b128 {vr(R+4*j,4)}, {vr(vSR)} offset:{4*STGP*j + 16*STGP*tau}' for j in range(4)]
    def stores(tau, R=O, extra=0):
        for j in range(4):
            a(f's_waitcnt lgkmcnt({3-j+extra})')
            if tau == 0 and j == 0: a(f's_mov_b64 exec, {sr(sEX,2)}')
            a(f'buffer_store_dwordx4 {vr(R+4*j,4)}, {vr(vOO)}, {sr(sO,4)}, s{sTOFF if tau else sZERO} offen offset:{1024*j} {stpol}')
            if tau == 0 and j == 0: a('s_mov_b64 exec, -1')
    RA = kf(1, 0)
    def late_a():
        for l in stage_reads(0, RA): a(l)
        stores(0, RA)
    def softmax_pv(tau):
        m = vM
        xred(m, vT)
        a(f'v_mul_f32 {vr(m)}, s{sCS}, {vr(m)}')
        set0 = [S+x for x in range(8)]; set1 = [S+8+x for x in range(8)]; set2 = [S+16+x for x in range(6)]
        for l in fma_l(set0, m): a(l)
        f2 = fma_l(set2, m); f1 = fma_l(set1, m)
        for l in exp_l(set0): a(l)
        a(f2[0])
        for l in cvt_l(S, S, 4): a(l)
        a(f2[1])
        a('s_waitcnt lgkmcnt(0)' if tau == 1 else 's_waitcnt lgkmcnt(8)')
        if tau == 1 and apos == 1: late_a()
        ONES, LACC = S+4, S+20
        v2 = f2[2:] + exp_l(set2) + [f'v_mov_b32 {vr(ONES+n)}, 0x3f803f80' for n in range(4)] + cvt_l(S+16, S+16, 3) \
             + [f'v_mov_b32 {vr(S+19)}, 0', f'v_cndmask_b32 {vr(S+18)}, 0, {vr(S+18)}, {sr(sKG0,2)}']
        inter([mfma(X[t], X[t+1], S, '0') for t in range(8)], v2 + f1[:2])
        v1 = f1[2:] + exp_l(set1) + [f'v_mov_b32 {vr(vT0)}, 0'] + cvt_l(S+8, S+8, 4)
        inter([mfma(O+4*t, VG+4*t, S+16, O+4*t) for t in range(8)], v1)
        a(mfma(LACC, ONES, S, '0'))
        a(mfma(LACC, ONES, S+16, LACC))
        a(mfma(LACC, ONES, S+8, LACC))
        if tau == 0:
            a('s_waitcnt lgkmcnt(0)')
        for t in range(8):
            a(mfma(O+4*t, buf[t], S+8, O+4*t))
            if tau == 0: a(vread(VG+4*t, t, 1))
        a(f'v_rcp_f32 {vr(vT0)}, {vr(LACC)}')

    late = []
    for t in range(8):
        late += [vread(buf[t], t, 2), vread(buf[t]+2, t, 3)]
    vgr = [vread(VG+4*t, t, 4) for t in range(8)]
    edge_test(0, 'L_fastA')
    for l in vgr: a(l)
    for sl in ('G', 0, 1, 2, 3, 4):
        for l in qk(0, sl): a(l)
    for l in late: a(l)
    edge_mask(0, vT0)
    a('s_branch L_joinA')
    a.label('L_fastA')
    m = vM
    inter(qk(0, 0) + qk(0, 'G'), vgr, per=1)
    inter(qk(0, 1) + qk(0, 2), late[:8], per=1)
    inter(qk(0, 3), maxtree_l([S+20, S+21, S+0], m) + maxtree_l([S+1, S+2, S+3, S+4, S+5, S+6], m, False), per=1)
    inter(qk(0, 4), maxtree_l([S+7, S+8, S+9, S+10], m, False), per=1)
    for l in late[8:11]: a(l)
    for l in maxtree_l([S+11, S+12], m, False): a(l)
    for l in late[11:13]: a(l)
    for l in maxtree_l([S+13, S+14, S+15], m, False): a(l)
    for l in late[13:]: a(l)
    for l in maxtree_l([S+16, S+17, S+18, S+19], m, False): a(l)
    a.label('L_joinA')
    yprio('s')
    stamp(fine)
    softmax_pv(0)
    stamp(fine)
    ep = []
    for t in range(8): ep += epi(t)
    if apos == 0: ep += stage_reads()
    xb = []
    for t in range(8): xb += [vread(X[t+1], t, 4), vread(X[t+1]+2, t, 5)]
    def qb_wait(n):
        a(f's_waitcnt vmcnt({n+2})')
        if opt.get('otouch'):
            a(f's_and_b32 s{sT0}, s{sWV}, 3')
            a(f's_cmp_eq_u32 s{sT0}, 3')
        else:
            a(f's_cmp_eq_u32 s{sWV}, {RW}')
        a('s_cbranch_scc1 L_qbw')
        a(f's_waitcnt vmcnt({n})')
        a.label('L_qbw')
    if merge == 'hyb':
        a('s_nop 0')
        for l in ep: a(l)
        qb_wait(0)
        stamp()
        spos = int(opt.get('spos', 0))
        edge_test(1, 'L_fastB')
        stores(0)
        for sl in ('G', 0, 1, 2, 3, 4):
            for l in qk(1, sl): a(l)
        for l in xb: a(l)
        edge_mask(1, vT0)
        a('s_branch L_joinB')
        a.label('L_fastB')
        if spos == 0:
            stores(0)
            inter(qk(1, 'G') + qk(1, 0) + qk(1, 1) + qk(1, 2), xb, per=1)
        elif spos == 1:
            for l in qk(1, 'G') + qk(1, 0): a(l)
            stores(0)
            inter(qk(1, 1) + qk(1, 2), xb, per=2)
        else:
            for l in qk(1, 'G') + qk(1, 0) + qk(1, 1) + qk(1, 2): a(l)
        inter(qk(1, 3), maxtree_l([S+20, S+21, S+0], m) + maxtree_l([S+1, S+2, S+3, S+4, S+5, S+6], m, False), per=1)
        inter(qk(1, 4), maxtree_l([S+7, S+8], m, False), per=1)
        a.nop(1)
        for l in maxtree_l([S+9, S+10, S+11, S+12], m, False): a(l)
        a.nop(1)
        for l in maxtree_l([S+13, S+14, S+15], m, False): a(l)
        if spos == 2:
            stores(0)
            for l in xb: a(l)
        else:
            a.nop(3)
        for l in maxtree_l([S+16, S+17, S+18, S+19], m, False): a(l)
    elif not merge:
        a('s_nop 0')
        for l in ep: a(l)
        stores(0)
        for l in xb: a(l)
        qb_wait(4)
        stamp()
        edge_test(1, 'L_fastB')
        for sl in ('G', 0, 1, 2, 3, 4):
            for l in qk(1, sl): a(l)
        edge_mask(1, vT0)
        a('s_branch L_joinB')
        a.label('L_fastB')
        for sl in ('G', 0, 1, 2):
            for l in qk(1, sl): a(l)
        inter(qk(1, 3), maxtree_l([S+20, S+21, S+0], m) + maxtree_l([S+1, S+2], m, False), per=1)
        inter(qk(1, 4), maxtree_l([S+3, S+4, S+5, S+6, S+7, S+8], m, False), per=1)
        a.nop(1)
        for l in maxtree_l([S+9, S+10, S+11, S+12], m, False): a(l)
        a.nop(1)
        for l in maxtree_l([S+13, S+14, S+15], m, False): a(l)
        a.nop(2)
        for l in maxtree_l([S+16, S+17, S+18, S+19], m, False): a(l)
    else:
        qb_wait(0)
        yprio('m')
        stamp()
        edge_test(1, 'L_fastB')
        for l in ep: a(l)
        if apos == 0: stores(0)
        for sl in (0, 1, 2, 3, 4, 'G'):
            for l in qk(1, sl): a(l)
        for l in xb: a(l)
        edge_mask(1, vT0)
        a('s_branch L_joinB')
        a.label('L_fastB')
        ms = []
        for sl in (0, 1, 2, 3, 4, 'G'): ms += qk(1, sl)
        inter(ms, ep, per=3)
        for l in maxtree_l([S+x for x in range(15)], vT0): a(l)
        if apos == 0: stores(0)
        for l in xb: a(l)
        a(f'v_max3_f32 {vr(vM)}, {vr(vT0)}, {vr(S+15)}, {vr(S+16)}')
        for l in maxtree_l([S+17, S+18, S+19, S+20, S+21], vM, False): a(l)
    a.label('L_joinB')
    yprio('b')
    stamp()
    a(f's_cmp_eq_u32 s{sCMB}, 0')
    a('s_cbranch_scc1 L_nohand')
    hand_loads()
    a.label('L_nohand')
    softmax_pv(1)
    stamp(fine)
    if apos == 2:
        late_a()
    a('s_nop 0')
    if apos == 3:
        for l in stage_reads(0, RA): a(l)
    for t in range(8):
        for l in epi(t, 1): a(l)
    for l in stage_reads(1): a(l)
    if apos == 3:
        stores(0, RA, extra=4+8) if False else None
        for j in range(4):
            if j == 0: a(f's_mov_b64 exec, {sr(sEX,2)}')
            if j == 0: a('s_waitcnt lgkmcnt(4)')
            a(f'buffer_store_dwordx4 {vr(RA+4*j,4)}, {vr(vOO)}, {sr(sO,4)}, s{sZERO} offen offset:{1024*j} {stpol}')
            if j == 0: a('s_mov_b64 exec, -1')
    stores(1)
    stamp()

    a(f's_cmp_eq_u32 s{sCMB}, 0')
    a('s_cbranch_scc1 L_fin')
    a(f's_waitcnt vmcnt({4 if apos == 0 else 8})')
    a(f's_mov_b32 s{sCNT}, 0')
    a(f's_mov_b32 s{sT2}, 0')
    a.label('L_chk')
    a(f's_mov_b32 s{sT3}, s{sT2}')
    for n in range(8):
        a(f'v_cmp_eq_u32 vcc, s{sN}, {vr(HB+8*n+3)}')
        a(f'v_cmp_eq_u32 s[60:61], s{sN}, {vr(HB+8*n+7)}')
        a('s_nop 0')
        a('s_and_b64 vcc, vcc, s[60:61]')
        a('s_cmp_eq_u64 vcc, exec')
        a(f's_cselect_b32 s{sT0}, {1 << n}, 0')
        a(f's_or_b32 s{sT3}, s{sT3}, s{sT0}')
    a(f's_add_u32 s{sCNT}, s{sCNT}, 1')
    a(f's_cmp_eq_u32 s{sT3}, 0xff')
    a('s_cbranch_scc1 L_ready')
    a(f's_cmp_ge_u32 s{sCNT}, 0x40000')
    a('s_cbranch_scc1 L_ready')
    a(f's_lshl_b32 s{sT0}, s{sH}, 3')
    a(f'v_mov_b32 {vr(KG+1)}, s{sT0}')
    a(f'global_load_dword {vr(KG+2)}, {vr(KG+1)}, s[16:17] offset:4 sc0 sc1')
    a('s_waitcnt vmcnt(0)')
    a(f'v_readfirstlane_b32 s{sT2}, {vr(KG+2)}')
    hand_loads()
    a('s_waitcnt vmcnt(0)')
    a('s_branch L_chk')
    a.label('L_ready')
    hog = [[HB+8*n, HB+8*n+1, HB+8*n+2, HB+8*n+4] for n in range(8)]
    hmg = [HB+8*n+5 for n in range(8)]
    combine(hog, hmg, X8)
    a(f'v_rcp_f32 {vr(X8)}, {vr(hmg[0]+1)}')
    a(f'v_lshrrev_b32 {vr(KG)}, 1, {vr(KG)}')
    for e in range(4):
        a(f'v_mul_f32 {vr(hog[0][e])}, {vr(hog[0][e])}, {vr(X8)}')
    a(f'v_cvt_pk_bf16_f32 {vr(X8+2)}, {vr(hog[0][0])}, {vr(hog[0][1])}')
    a(f'v_cvt_pk_bf16_f32 {vr(X8+3)}, {vr(hog[0][2])}, {vr(hog[0][3])}')
    a(f'buffer_store_dwordx2 {vr(X8+2,2)}, {vr(KG)}, {sr(sO,4)}, 0 offen {stpol}')
    a.label('L_fin')
    if stamps:
        stamp()
        a('s_waitcnt vmcnt(0)')
        stamp()
        if opt.get('clk'):
            a('s_memtime s[98:99]')
            a('s_waitcnt lgkmcnt(0)')
            a('s_sub_u32 s98, s98, s96')
            a(f's_add_u32 s{64+2*nst[0]}, s98, s64')
            nst[0] += 1
        a(f's_lshl_b32 s{sT0}, s2, 3')
        a(f's_add_u32 s{sT0}, s{sT0}, s{sWV}')
        a(f's_lshl_b32 s{sT0}, s{sT0}, 6')
        a(f's_add_u32 s{sT0}, s{sT0}, 0x100000')
        a(f's_add_u32 s{sW}, s18, s{sT0}')
        a(f's_addc_u32 s{sW+1}, s19, 0')
        a(f'v_mov_b32 v1, 0')
        a('s_mov_b64 exec, 1')
        for n in range(min(16, nst[0])):
            a(f'v_mov_b32 v2, s{64+2*n}')
            a(f'buffer_store_dword v2, v1, {sr(sW,4)}, 0 offen offset:{4*n}')
        if 'leak' in opt:
            k = int(opt['leak'])
            a(f's_sub_u32 s{sT0}, s{64+2*k}, s64')
            a(f's_lshl_b32 s{sT0}, s{sT0}, 2')
            if opt.get('leakskew'):
                a.label('L_pre')
                a('s_memrealtime s[100:101]')
                a('s_waitcnt lgkmcnt(0)')
                a(f's_sub_u32 s{sT1}, s100, s64')
                a(f's_cmp_lt_u32 s{sT1}, 3000')
                a('s_cbranch_scc1 L_pre')
                a('s_mov_b64 exec, -1')
                a('v_mbcnt_lo_u32_b32 v3, -1, 0')
                a('v_and_b32 v3, 31, v3')
                a('v_lshlrev_b32 v3, 3, v3')
                a('global_load_dword v4, v3, s[16:17] sc0 sc1')
                a('s_waitcnt vmcnt(0)')
                a('v_readlane_b32 s20, v4, 0')
                a('s_mov_b32 s21, 0'); a('s_mov_b32 s22, 0')
                for n in range(1, 32):
                    a(f'v_readlane_b32 s23, v4, {n}')
                    a('s_nop 0')
                    a('s_sub_i32 s23, s23, s20')
                    a('s_min_i32 s21, s21, s23')
                    a('s_max_i32 s22, s22, s23')
                a(f's_sub_u32 s{sT0}, s22, s21')
                a(f's_min_u32 s{sT0}, s{sT0}, 2000')
                a(f's_lshl_b32 s{sT0}, s{sT0}, 2')
            if opt.get('leakxcc'):
                a('s_getreg_b32 s61, hwreg(HW_REG_XCC_ID, 0, 4)')
                a(f's_bfe_u32 s60, s{sN}, 0x40001')
                a('s_cmp_lg_u32 s60, s61')
                a(f's_cselect_b32 s{sT0}, 2000, 0')
            if opt.get('leakcnt'):
                a(f's_mul_i32 s{sT0}, s{sCNT}, 500')
                a(f's_mul_i32 s{sT0}, s{sT0}, s{sCMB}')
            if 'leakh' in opt:
                lo, hi = opt['leakh'].split(',')
                a(f's_sub_u32 s{sT1}, s{sH}, {lo}')
                a(f's_cmp_lt_u32 s{sT1}, {int(hi)-int(lo)}')
                a(f's_cselect_b32 s{sT0}, s{sT0}, 0')
            if 'leakwg' in opt:
                a(f's_cmp_eq_u32 s2, {opt["leakwg"]}')
                a(f's_cselect_b32 s{sT0}, s{sT0}, 0')
            if 'leakx' in opt:
                a(f's_getreg_b32 s{sT1}, hwreg(HW_REG_XCC_ID, 0, 4)')
                a(f's_lshr_b32 s{sT1}, {opt["leakx"]}, s{sT1}')
                a(f's_bitcmp1_b32 s{sT1}, 0')
                a(f's_cselect_b32 s{sT0}, s{sT0}, 0')
            if 'leakw' in opt:
                a(f's_lshr_b32 s{sT1}, {opt["leakw"]}, s{sWV}')
                a(f's_bitcmp1_b32 s{sT1}, 0')
                a(f's_cselect_b32 s{sT0}, s{sT0}, 0')
            a(f"s_add_u32 s{sT0}, s{sT0}, {opt.get('spin', 5000)}")
            a.label('L_spin')
            a('s_memrealtime s[100:101]')
            a('s_waitcnt lgkmcnt(0)')
            a(f's_sub_u32 s{sT1}, s100, s64')
            a(f's_cmp_lt_u32 s{sT1}, s{sT0}')
            a('s_cbranch_scc1 L_spin')
    a.label('L_end')
    a('s_endpgm')
    if cpf:
        a('.fill 4096, 4, 0xbf800000')

    check(a.lines)
    if stamps: print('stamps', nst[0])
    head = f'''; windowed + global-token attention, B=1 H=32 S=2048 D=128 bf16 (window 32, 2 global tokens)
; @launch grid=(256,1,1) block=(512,1,1) lds=163840
.amdgcn_target "amdgcn-amd-amdhsa--gfx950"
.text
.globl {NAME}
.p2align 8
.type {NAME},@function
{NAME}:
'''
    tail = f'''.section .rodata,"a"
.p2align 6
.amdhsa_kernel {NAME}
  .amdhsa_next_free_vgpr 256
  .amdhsa_next_free_sgpr {102 if stamps else 64}
  .amdhsa_accum_offset 256
  .amdhsa_group_segment_fixed_size 0
  .amdhsa_kernarg_size 64
  .amdhsa_user_sgpr_count 2
  .amdhsa_user_sgpr_kernarg_segment_ptr 1
  .amdhsa_system_sgpr_workgroup_id_x 1
.end_amdhsa_kernel
'''
    return head + a.text() + tail

if __name__ == '__main__':
    out = sys.argv[1]
    opt = {}
    for kv in sys.argv[2:]:
        k, v = kv.split('=', 1)
        opt[k] = {'True': True, 'False': False}.get(v, v.replace('+', ' '))
    open(out, 'w').write(gen(opt))
```

```python
import sys, math, struct
from asmlib import *

NAME = 'standalone__global_local_windowed_global_tokens__prompt_kernel'
def f2u(x): return struct.unpack('<I', struct.pack('<f', x))[0]

def gen(opt):
    a = Asm()
    NEG = 0xFF000000
    CSC = f2u(128 ** -0.5 * math.log2(math.e))
    KOFF, VOFF, SOFF = 0, 73728, 155648
    apos = int(opt.get('apos', 0))
    PART, HALO = SOFF + 3328, 65536
    PARTML, LCNT, LNON = SOFF + 3072, SOFF + 3072 + 128, SOFF + 3072 + 132
    STGP = 272
    ldpol = opt.get('ldpol', '')
    qpol = opt.get('qpol', '')
    stpol = opt.get('stpol', 'sc0 sc1 nt')
    pk = opt.get('pk', True)
    N1 = int(opt.get('n1', 10))
    yp = opt.get('yp', '')
    RW = int(opt.get('rw', 3))
    FW = 7
    SW = 5
    CW, CC = int(opt.get('cw', 1)), 3
    merge = opt.get('merge', True)
    sQ, sK, sV, sO, sW = 20, 24, 28, 32, 36
    sWV, sH, sC, sHO, sQ0B = 40, 43, 44, 45, 46
    sT0, sT1, sT2, sT3 = 47, 48, 49, 50
    sBK = 62
    HW = 4
    sCS = 52; sKG0 = 54; sQB = 51; sEX = 56; sCMB = 58; sCNT = 59; sN = 63; sTOFF = 41; sZERO = 3
    VA = 0
    vSW, vSR, vOO, vT0 = 8, 9, 10, 11
    X8 = 12
    KF = 16; KG = 112; QA, QB = 128, 144; VG = 160; O = 192; S = 224
    BLO, BHI = 248, 252
    kf = lambda W, ks: KF + 16 * W + 4 * ks
    X = [O + 4 * n for n in range(8)] + [X8]
    vLANE, vI, vKGp, vDK, vDV, vDQ, vAG, vNEG, vAK = O+16, O+17, O+18, O+19, O+20, O+21, O+22, O+23, O+24
    vAVG, t1, t2, t3 = O+28, O+29, O+30, O+31
    vDQk = VG + 7
    vAQ = VG + 11
    vFLAG = VG + 3
    vM, vT = S + 22, S + 23

    stamps = opt.get('stamps', False)
    fine = opt.get('fine', False)
    nst = [0]
    def stamp(on=True):
        if stamps and on:
            a(f's_memrealtime s[{64+2*nst[0]}:{65+2*nst[0]}]')
            if nst[0]: a('s_waitcnt lgkmcnt(0)')
            nst[0] += 1
    M16 = 'v_mfma_f32_16x16x32_bf16'
    def mfma(d, x, y, c):
        return f'{M16} {vr(d,4)}, {vr(x,4)}, {vr(y,4)}, {c if isinstance(c,str) else vr(c,4)}'
    def only(w, lab):
        a(f's_cmp_lg_u32 s{sWV}, {w}')
        a(f's_cbranch_scc1 {lab}')

    stamp()
    if opt.get('clk'): a('s_memtime s[96:97]')
    a('s_load_dwordx16 s[4:19], s[0:1], 0')
    a(f'v_readfirstlane_b32 s{sWV}, v0')
    a('s_cmp_ge_u32 s2, 256')
    a('s_cbranch_scc1 L_end')
    a(f'v_lshrrev_b32 {vr(t1)}, 4, v0')
    a(f'v_xor_b32 {vr(vDK)}, {vr(t1)}, v0')
    a(f'v_and_b32 {vr(vDK)}, 15, {vr(vDK)}')
    a(f'v_lshl_add_u32 {vr(vDK)}, {vr(t1)}, 4, {vr(vDK)}')
    a(f's_bfe_u32 s{sC}, s2, 0x30003')
    a(f's_lshl_b32 s{sQ0B}, s{sC}, 16')
    a(f'v_lshl_add_u32 {vr(vDK)}, {vr(vDK)}, 4, s{sQ0B}')
    a('s_and_b32 s41, s2, 7')
    a(f's_lshr_b32 s{sH}, s2, 6')
    a(f's_lshl2_add_u32 s{sH}, s41, s{sH}')
    a(f's_lshl_b32 s{sHO}, s{sH}, 19')
    a(f's_lshl_b32 m0, s{sWV}, 4')
    a(f's_mov_b32 s{sK+2}, 0x80000')
    a(f's_mov_b32 s{sK+3}, 0x20000')
    a(f's_movk_i32 s{sCNT}, 17')
    cpf = opt.get('cpf', True)
    a.label('L_base')
    if cpf is True:
        a(f's_getpc_b64 s[{sEX}:{sEX+1}]')
        a(f'v_lshlrev_b32 v1, 5, v0')
        a(f'global_load_dword {vr(X8)}, v1, s[{sEX}:{sEX+1}]')
    a(f's_cmp_ge_u32 s{sWV}, 256')
    a('s_cbranch_scc1 L_helper')
    a('s_waitcnt lgkmcnt(0)')
    stamp()
    a(f's_add_u32 s{sK}, s6, s{sHO}')
    a(f's_addc_u32 s{sK+1}, s7, 0')
    thr = int(opt.get('thr', 0)); tl = [0]
    if thr: a('s_getreg_b32 s1, hwreg(HW_REG_XCC_ID, 0, 4)')
    def throttle():
        if thr:
            a('s_bitcmp1_b32 s1, 0')
            a(f's_cbranch_scc{opt.get("thpar", 1)} L_th{tl[0]}')
            a(f's_waitcnt vmcnt({thr-1})')
            a.label(f'L_th{tl[0]}')
            tl[0] += 1
    a.label('L_kloop')
    throttle()
    a(f'buffer_load_dwordx4 {vr(vDK)}, {sr(sK,4)}, 0 offen {opt.get("kpol", ldpol)} lds')
    a('s_add_u32 m0, m0, 0x1000')
    a(f'v_add_u32 {vr(vDK)}, 0x1000, {vr(vDK)}')
    a(f's_sub_u32 s{sCNT}, s{sCNT}, 1')
    a('s_cbranch_scc0 L_kloop')
    if 'dup' in opt:
        nd = int(opt['dup'])
        a(f's_sub_u32 m0, m0, {0x1000*18}')
        a(f'v_subrev_u32 {vr(vDK)}, {0x1000*18}, {vr(vDK)}')
        for i in range(nd):
            a(f'buffer_load_dwordx4 {vr(vDK)}, {sr(sK,4)}, 0 offen lds')
            a('s_add_u32 m0, m0, 0x1000')
            a(f'v_add_u32 {vr(vDK)}, 0x1000, {vr(vDK)}')
    stamp(opt.get('postk', False))
    def common():
        a(f's_lshr_b32 s{sWV}, s{sWV}, 6')
        a(f'v_and_b32 {vr(vLANE)}, 63, v0')
        a(f'v_and_b32 {vr(vI)}, 15, v0')
        a(f'v_bfe_u32 {vr(vKGp)}, v0, 4, 2')
        a(f's_lshl_b32 s{sT1}, s{sWV}, 10')
        a(f's_add_u32 s{sT2}, s{sT1}, s{sQ0B}')
        for s_ in (sV, sQ):
            a(f's_mov_b32 s{s_+2}, 0x80000')
            a(f's_mov_b32 s{s_+3}, 0x20000')
        a(f's_mov_b32 s{sW+2}, 0x4000')
        a(f's_mov_b32 s{sW+3}, 0x20000')
        a(f's_and_b32 s{sBK}, s{sWV}, 3')
        a(f's_lshl_b32 s{sBK}, s{sBK}, 1')
        a(f's_cmp_lt_u32 s{sWV}, 4')
        a(f's_addc_u32 s{sBK}, s{sBK}, 0')
        a(f's_cmp_eq_u32 s{sC}, 0')
        a(f's_cselect_b32 s{sT3}, 0x40000000, 0')
        a(f's_lshl_b32 s{sT0}, s{sBK}, 13')
        a(f's_add_u32 s{sT0}, s{sT0}, s{sQ0B}')
        a(f'v_xor_b32 {vr(vDQ)}, {vr(vKGp)}, {vr(vI)}')
        a(f'v_lshlrev_b32 {vr(vDQ)}, 4, {vr(vDQ)}')
        a(f'v_lshl_add_u32 {vr(vDQ)}, {vr(vKGp)}, 8, {vr(vDQ)}')
        a(f'v_add_u32 {vr(vDQ)}, s{sT0}, {vr(vDQ)}')
        a(f'v_lshlrev_b32 {vr(t3)}, 4, {vr(vLANE)}')
        a(f's_lshl_b32 s41, s{sH}, 14')
        a(f's_lshl_b32 s42, s{sC}, 11')
    common()
    a(f's_mov_b32 s{sN}, 0')
    def srds():
        a(f's_add_u32 s{sV}, s8, s{sHO}')
        a(f's_addc_u32 s{sV+1}, s9, 0')
        a(f's_add_u32 s{sQ}, s4, s{sHO}')
        a(f's_addc_u32 s{sQ+1}, s5, 0')
        a(f's_add_u32 s{sW}, s18, s41')
        a(f's_addc_u32 s{sW+1}, s19, 0')
    srds()
    a('s_branch L_v1')
    a.label('L_helper')
    a('s_setprio 3')
    a('s_memrealtime s[60:61]')
    if cpf == 'one':
        a(f's_cmp_lg_u32 s{sWV}, {64*6}')
        a('s_cbranch_scc1 L_nocpf')
        a(f's_getpc_b64 s[{sEX}:{sEX+1}]')
        a(f's_lshl_b32 s{sT0}, s{sC}, 11')
        a(f'v_and_b32 v1, 15, v0')
        a(f'v_lshl_add_u32 v1, v1, 7, s{sT0}')
        a('s_mov_b64 exec, 0xffff')
        a(f'global_load_dword {vr(X8)}, v1, s[{sEX}:{sEX+1}]')
        a('s_mov_b64 exec, -1')
        a.label('L_nocpf')
    common()
    a(f's_mov_b32 m0, {SOFF}')
    a('s_waitcnt lgkmcnt(0)')
    if stamps:
        nst[0] -= 1
        stamp()
    a(f's_add_u32 s{sK}, s6, s{sHO}')
    a(f's_addc_u32 s{sK+1}, s7, 0')
    srds()
    if stamps and opt.get('postk'):
        nst[0] -= 1
        stamp()
    a(f's_or_b32 s{sN}, s60, 1')
    if opt.get('leakxcc'):
        a('s_getreg_b32 s61, hwreg(HW_REG_XCC_ID, 0, 4)')
        a(f's_and_b32 s{sN}, s60, 0xffffffe0')
        a(f's_lshl1_add_u32 s{sN}, s61, s{sN}')
        a(f's_or_b32 s{sN}, s{sN}, 1')
    only(FW, 'L_noclear')
    a(f's_lshl_b32 s{sT0}, s{sH}, 3')
    a(f'v_mov_b32 {vr(S+4)}, s{sT0}')
    a(f'v_mov_b32 {vr(S+5)}, s{sN}')
    a(f'v_mov_b32 {vr(S+6)}, {LCNT}')
    a(f'v_mov_b32 {vr(S+7)}, 0')
    a('s_mov_b64 exec, 1')
    a(f's_cmp_lg_u32 s{sC}, {CC}')
    a('s_cbranch_scc1 L_nopub')
    a(f'global_store_dword {vr(S+4)}, {vr(S+5)}, s[16:17] sc0 sc1')
    a.label('L_nopub')
    a(f'ds_write_b32 {vr(S+6)}, {vr(S+7)}')
    a('s_mov_b64 exec, -1')
    if opt.get('wstouch'):
        pol = {'ld': '', 'ldsc': 'sc0 sc1'}.get(opt['wstouch'])
        if pol is not None:
            a(f'buffer_load_dwordx4 {vr(S+8,4)}, {vr(t3)}, {sr(sW,4)}, s42 offen {pol}')
            a(f'buffer_load_dwordx4 {vr(S+12,4)}, {vr(t3)}, {sr(sW,4)}, s42 offen offset:1024 {pol}')
        else:
            for n in range(4): a(f'v_mov_b32 {vr(S+8+n)}, 0')
            a(f'buffer_store_dwordx4 {vr(S+8,4)}, {vr(t3)}, {sr(sW,4)}, s42 offen sc0 sc1')
            a(f'buffer_store_dwordx4 {vr(S+8,4)}, {vr(t3)}, {sr(sW,4)}, s42 offen offset:1024 sc0 sc1')
    a.label('L_noclear')
    only(SW, 'L_nosmall')
    for n, srd in enumerate((sK, sQ, sV)):
        if n:
            a(f's_mov_b32 m0, {SOFF + 1024*n}')
            a('s_nop 0')
        a(f'buffer_load_dwordx4 {vr(t3)}, {sr(srd,4)}, 0 offen lds')
    a.label('L_nosmall')
    a('s_setprio 0')
    v2h = int(opt.get('v2h', 0))
    def vaddr(i0):
        a(f's_and_b32 s{sT0}, s{sWV}, 1')
        a(f's_lshl_b32 s{sT0}, s{sT0}, 2')
        a(f'v_add_lshl_u32 {vr(vDV)}, s{sT0}, {vr(vKGp)}, 1')
        a(f'v_xor_b32 {vr(vDV)}, {vr(vDV)}, {vr(vI)}')
        a(f'v_lshlrev_b32 {vr(vDV)}, 4, {vr(vDV)}')
        a(f'v_lshl_add_u32 {vr(vDV)}, {vr(vKGp)}, 8, {vr(vDV)}')
        a(f's_add_u32 s{sT2}, s{sT2}, {(0x1000*i0 - 0x2000) & 0xffffffff}')
        a(f'v_add_u32 {vr(vDV)}, s{sT2}, {vr(vDV)}')
        a(f's_add_u32 m0, s{sT1}, {VOFF + 0x1000*i0}')
    if v2h:
        vaddr(20 - v2h - 1 - 1)
    a('s_branch L_nov1')
    a.label('L_v1')
    def vpiece(i):
        throttle()
        if i:
            a('s_add_u32 m0, m0, 0x1000')
            a(f'v_add_u32 {vr(vDV)}, 0x1000, {vr(vDV)}')
        if i < 2:
            a(f'v_add_u32 {vr(t1)}, s{sT3}, {vr(vDV)}')
            a(f'buffer_load_dwordx4 {vr(t1)}, {sr(sV,4)}, 0 offen {ldpol} lds')
        else:
            a(f'buffer_load_dwordx4 {vr(vDV)}, {sr(sV,4)}, 0 offen {ldpol} lds')
    vaddr(0)
    for i in range(N1): vpiece(i)
    a.label('L_nov1')
    stamp()

    a(f's_add_u32 s{sO}, s14, s{sHO}')
    a(f's_addc_u32 s{sO+1}, s15, 0')
    a(f's_mov_b32 s{sO+2}, 0x80000')
    a(f's_mov_b32 s{sO+3}, 0x20000')
    a(f's_movk_i32 s{sTOFF}, 0x1000')
    a(f's_mov_b32 s{sZERO}, 0')
    a(f's_mov_b32 s{sCS}, 0x{CSC:08x}')
    a(f's_mov_b32 s{sCS+1}, 0x{CSC:08x}')
    a(f'v_mov_b32 {vr(vNEG)}, 0x{NEG:08x}')
    a(f'v_lshlrev_b32 {vr(t2)}, 2, {vr(vKGp)}')
    a(f'v_cmp_eq_u32 {sr(sKG0,2)}, 0, {vr(vKGp)}')
    for r in range(4):
        a(f'v_add_u32 {vr(t1)}, {r}, {vr(t2)}')
        a(f'v_cmp_ge_u32 vcc, {vr(t1)}, {vr(vI)}')
        a(f'v_cmp_le_u32 s[60:61], {vr(t1)}, {vr(vI)}')
        a('s_nop 0')
        a(f'v_cndmask_b32 {vr(BLO+r)}, {vr(vNEG)}, 0, vcc')
        a(f'v_cndmask_b32 {vr(BHI+r)}, {vr(vNEG)}, 0, s[60:61]')
    a(f's_lshl_b32 s{sT0}, s{sBK}, 13')
    a(f'v_xor_b32 {vr(t1)}, {vr(vKGp)}, {vr(vI)}')
    a(f'v_lshlrev_b32 {vr(t1)}, 4, {vr(t1)}')
    a(f'v_lshl_add_u32 {vr(t1)}, {vr(vI)}, 8, {vr(t1)}')
    a(f'v_add_u32 {vr(vAK)}, s{sT0}, {vr(t1)}')
    for ks in range(1, 4):
        a(f'v_xor_b32 {vr(vAK+ks)}, {64*ks}, {vr(vAK)}')
    a(f'v_mov_b32 {vr(vDK)}, {vr(vAK)}')
    a(f'v_and_b32 {vr(t1)}, 1, {vr(vI)}')
    a(f'v_lshlrev_b32 {vr(vNEG)}, 3, {vr(t1)}')
    a(f'v_lshlrev_b32 {vr(t1)}, 8, {vr(t1)}')
    a(f'v_lshl_add_u32 {vr(t1)}, {vr(vKGp)}, 4, {vr(t1)}')
    a(f'v_add_u32 {vr(vAG)}, {SOFF}, {vr(t1)}')
    a(f'v_bfe_u32 {vr(t1)}, {vr(vLANE)}, 2, 2')
    a(f'v_and_b32 {vr(t2)}, 3, {vr(vLANE)}')
    a(f'v_lshlrev_b32 {vr(t2)}, 3, {vr(t2)}')
    a(f'v_lshl_add_u32 {vr(t1)}, {vr(t1)}, 8, {vr(t2)}')
    a(f'v_add_u32 {vr(vAVG)}, {SOFF+2048}, {vr(t1)}')
    a(f'v_lshrrev_b32 {vr(t1)}, 2, {vr(vLANE)}')
    a(f'v_and_b32 {vr(vT0)}, 7, {vr(t1)}')
    a(f'v_lshl_add_u32 {vr(t2)}, {vr(vT0)}, 5, {vr(t2)}')
    a(f'v_lshl_add_u32 {vr(t2)}, {vr(t1)}, 8, {vr(t2)}')
    a(f's_add_u32 s{sT1}, s{sT0}, {VOFF}')
    a(f'v_add_u32 {vr(VA)}, s{sT1}, {vr(t2)}')
    for t in range(1, 8):
        a(f'v_xor_b32 {vr(VA+t)}, {32*t}, {vr(VA)}')
    a(f's_mov_b32 s{sT1}, s{sT0}')
    a(f'v_mul_u32_u24 {vr(t1)}, {STGP}, {vr(vI)}')
    a(f'v_lshl_add_u32 {vr(t1)}, {vr(vKGp)}, 3, {vr(t1)}')
    a(f'v_add_u32 {vr(vSW)}, s{sT1}, {vr(t1)}')
    a(f'v_mul_u32_u24 {vr(t1)}, {STGP}, {vr(vKGp)}')
    a(f'v_lshl_add_u32 {vr(t1)}, {vr(vI)}, 4, {vr(t1)}')
    a(f'v_add_u32 {vr(vSR)}, s{sT1}, {vr(t1)}')
    a(f's_add_u32 s{sT0}, s{sT0}, s{sQ0B}')
    a(f'v_add_u32 {vr(vOO)}, s{sT0}, {vr(t3)}')
    a(f's_lshr_b32 s{sQB}, s{sT0}, 8')
    a(f's_cmp_eq_u32 s{sQB}, 0')
    a(f's_cselect_b32 s{sEX}, 0, -1')
    a(f's_mov_b32 s{sEX+1}, -1')
    a(f's_cmp_eq_u32 s{sQB}, {256*CC+32*(2*CW+1)}')
    a(f's_cselect_b32 s{sCMB}, 1, 0')
    a(f's_lshl_b32 s{sT0}, s{sWV}, 4')
    a(f's_add_u32 s{sT0}, s{sT0}, {PARTML}')
    a(f'v_add_u32 {vr(vNEG)}, s{sT0}, {vr(vNEG)}')

    spf = [int(x) for x in opt.get('spf', '0,0').split(',')]
    spstep = int(opt.get('spstep', 128)); sptile = opt.get('sptile', 'B')
    def sp_offsets():
        o = []
        for half in ([1, 0] if sptile == 'B' else [0, 1]):
            for blk in (1, 0):
                o += [8192*blk + 4096*half + x for x in range(0, 4096, spstep)]
        return o
    spo = sp_offsets()
    def sprefetch(n):
        for _ in range(n):
            if spo: a(f's_load_dword s61, s[10:11], {spo.pop(0)}')
    if sum(spf):
        a(f's_cmp_lt_u32 s{sWV}, 4')
        a('s_cbranch_scc1 L_nosp')
        a(f's_lshl_b32 s{sT0}, s{sBK}, 13')
        a(f's_add_u32 s{sT0}, s{sT0}, s{sQ0B}')
        a(f's_add_u32 s10, s{sQ}, s{sT0}')
        a(f's_addc_u32 s11, s{sQ+1}, 0')
        sprefetch(spf[0])
        a.label('L_nosp')
    a(f's_waitcnt vmcnt({N1}) lgkmcnt(0)')
    a(f's_cmp_lt_u32 s{sWV}, 4')
    a('s_cbranch_scc1 L_kw')
    a(f's_cmp_eq_u32 s{sWV}, {FW}')
    a('s_cbranch_scc1 L_kw')
    a('s_waitcnt vmcnt(0)')
    a.label('L_kw')
    stamp(opt.get('prek', False))
    a('s_barrier')
    stamp()
    a(f's_cmp_ge_u32 s{sWV}, 4')
    a('s_cbranch_scc1 L_nov2')
    for i in range(N1, 20 - v2h): vpiece(i)
    if v2h:
        a('s_branch L_nov2b')
    a.label('L_nov2')
    if v2h:
        a(f's_setprio {opt.get("v2p", 3)}')
        for i in range(20 - v2h, 20): vpiece(i)
        a('s_setprio 0')
        a.label('L_nov2b')
    stamp(fine)
    QG = O
    for W in (2, 3, 4, 5):
        for ks in range(4):
            a(f'ds_read_b128 {vr(kf(W,ks),4)}, {vr(vAK+ks)} offset:{4096*(W-2)}')
    for ks in range(4):
        a(f'ds_read_b128 {vr(KG+4*ks,4)}, {vr(vAG)} offset:{64*ks}')
    for t in range(8):
        a(f'ds_read_b64_tr_b16 {vr(VG+4*t+2,2)}, {vr(vAVG)} offset:{32*t}')
    a(f's_cmp_eq_u32 s{sWV}, {HW}')
    a('s_cbranch_scc1 L_k01done')
    for ks in range(4):
        a(f'v_subrev_u32 {vr(vAK+ks)}, 0x2000, {vr(vAK+ks)}')
    for W in (0, 1):
        for ks in range(4):
            a(f'ds_read_b128 {vr(kf(W,ks),4)}, {vr(vAK+ks)} offset:{4096*W}')
    a.label('L_k01done')
    def dma_tile(srd, src, tmp, tile, m0expr):
        a(m0expr)
        for j in range(1, 4):
            a(f'v_xor_b32 {vr(tmp+j-1)}, {64*j}, {vr(src)}')
        for j in range(4):
            a(f'buffer_load_dwordx4 {vr(src if j == 0 else tmp+j-1)}, {sr(srd,4)}, s{sTOFF if tile else sZERO} offen offset:{1024*j} {qpol} lds')
    qbearly = opt.get('qbearly', False)
    def issue_qa():
        a('s_waitcnt lgkmcnt(0)')
        a('s_barrier')
        a(f'v_mov_b32 {vr(vAQ)}, {vr(vDK)}')
        dma_tile(sQ, vDQ, t1, 0, f's_lshl_b32 m0, s{sBK}, 13')
    def issue_qb(src, tmp):
        a(f's_lshl_b32 s{sT0}, s{sBK}, 13')
        dma_tile(sQ, src, tmp, 1, f's_add_u32 m0, s{sT0}, 0x1000')
    NQ = 8 if qbearly else 4

    def xred(m, t, op='v_max_f32'):
        a(f'v_mov_b32 {vr(t)}, {vr(m)}')
        a.nop(2)
        a(f'v_permlane16_swap_b32 {vr(m)}, {vr(t)}')
        a(f'{op} {vr(m)}, {vr(m)}, {vr(t)}')
        a(f'v_mov_b32 {vr(t)}, {vr(m)}')
        a.nop(2)
        a(f'v_permlane32_swap_b32 {vr(m)}, {vr(t)}')
        a(f'{op} {vr(m)}, {vr(m)}, {vr(t)}')
    def maxtree_l(vals, m, first=True):
        out = []; rest = list(vals)
        if first:
            out.append(f'v_max3_f32 {vr(m)}, {vr(rest[0])}, {vr(rest[1])}, {vr(rest[2])}'); rest = rest[3:]
        while len(rest) >= 2:
            out.append(f'v_max3_f32 {vr(m)}, {vr(m)}, {vr(rest[0])}, {vr(rest[1])}'); rest = rest[2:]
        if rest:
            out.append(f'v_max_f32 {vr(m)}, {vr(m)}, {vr(rest[0])}')
        return out
    def fma_l(vals, mc):
        if pk:
            return [f'v_pk_fma_f32 {vr(vals[n],2)}, {vr(vals[n],2)}, {sr(sCS,2)}, {vr(mc,2)} op_sel_hi:[1,1,0] neg_lo:[0,0,1] neg_hi:[0,0,1]' for n in range(0, len(vals), 2)]
        return [f'v_fma_f32 {vr(v)}, {vr(v)}, s{sCS}, -{vr(mc)}' for v in vals]
    exp_l = lambda vals: [f'v_exp_f32 {vr(v)}, {vr(v)}' for v in vals]
    cvt_l = lambda dst, src, n: [f'v_cvt_pk_bf16_f32 {vr(dst+k)}, {vr(src+2*k)}, {vr(src+2*k+1)}' for k in range(n)]

    def vread(dst, t, W):
        return f'ds_read_b64_tr_b16 {vr(dst,2)}, {vr(VA+t)} offset:{4096*W}'
    a(f's_cmp_lt_u32 s{sWV}, 4')
    a('s_cbranch_scc1 L_gk')
    sprefetch(spf[1])
    only(FW, 'L_notag')
    a('s_setprio 3')
    a(f's_lshl_b32 s{sT0}, s{sH}, 3')
    a(f'v_mov_b32 {vr(S+4)}, s{sT0}')
    a(f'v_mov_b32 {vr(S+5)}, s{sN}')
    a(f'v_mov_b32 {vr(S+6)}, {LCNT}')
    a(f'global_load_dword {vr(S+7)}, {vr(S+4)}, s[16:17]')
    a('s_setprio 0')
    issue_qa()
    if qbearly: issue_qb(vDQ, t1)
    a(f's_waitcnt vmcnt({NQ})')
    if opt.get('forcefb'): a(f'v_mov_b32 {vr(S+7)}, 0')
    a(f's_cmp_eq_u32 s{sC}, {CC}')
    a('s_cselect_b64 vcc, -1, 0')
    a(f'v_cndmask_b32 {vr(S+7)}, {vr(S+7)}, {vr(S+5)}, vcc')
    a('s_mov_b64 exec, 1')
    a(f'ds_write_b32 {vr(S+6)}, {vr(S+7)} offset:4')
    a('s_mov_b64 exec, -1')
    a('s_branch L_tagdone')
    a.label('L_notag')
    issue_qa()
    only(HW, 'L_nohalo')
    a(f's_sub_u32 s{sT0}, s{sT3}, 0x2000')
    a(f'v_add_u32 {vr(S)}, s{sT0}, {vr(vDQ)}')
    dma_tile(sK, S, t1, 0, f's_mov_b32 m0, {HALO}')
    dma_tile(sK, S, t1, 1, f's_mov_b32 m0, {HALO+4096}')
    a.label('L_nohalo')
    if qbearly: issue_qb(vDQ, t1)
    a.label('L_tagdone')
    a('s_waitcnt lgkmcnt(0)')
    if not qbearly: a(f'v_mov_b32 {vr(vDQk)}, {vr(vDQ)}')
    stamp(fine)
    a('s_barrier')
    for t in range(8):
        a(vread(X[t+1], t, 0)); a(vread(X[t+1]+2, t, 1))
    a('s_branch L_gdone')
    a.label('L_gk')
    for ks in range(4):
        a(f'ds_read_b128 {vr(QG+4*ks,4)}, {vr(vAG)} offset:{1024+64*ks}')
    issue_qa()
    for T in range(4):
        for ks in range(4):
            a(mfma(S+4*T, kf(T,ks), QG+4*ks, '0' if ks == 0 else S+4*T))
    if not qbearly: a(f'v_mov_b32 {vr(vDQk)}, {vr(vDQ)}')
    a.nop(8)
    for l in maxtree_l([S+x for x in range(16)], vM): a(l)
    xred(vM, vT)
    a(f'v_mul_f32 {vr(vM)}, s{sCS}, {vr(vM)}')
    for l in fma_l([S+x for x in range(16)], vM): a(l)
    for l in exp_l([S+x for x in range(16)]): a(l)
    a.nop(1)
    a(f'v_add_f32 {vr(vT)}, {vr(S)}, {vr(S+1)}')
    for x in range(2, 16):
        a(f'v_add_f32 {vr(vT)}, {vr(vT)}, {vr(S+x)}')
    for l in cvt_l(S, S, 8): a(l)
    xred(vT, vT0, 'v_add_f32')
    a(f'ds_write_b64 {vr(vNEG)}, {vr(vM,2)}')
    a(f'v_mbcnt_lo_u32_b32 {vr(vT0)}, -1, 0')
    a(f's_lshl_b32 s{sT0}, s{sWV}, 10')
    a(f's_add_u32 s{sT0}, s{sT0}, {PART}')
    a(f'v_lshl_add_u32 {vr(vT0)}, {vr(vT0)}, 3, s{sT0}')
    if qbearly: issue_qb(vDQ, t1)
    if stamps and fine:
        nst[0] -= 1
        stamp()
    a(f's_waitcnt vmcnt({NQ}) lgkmcnt(0)')
    a('s_barrier')
    gb = [QB + 4*n for n in range(4)] + [S + 8 + 4*n for n in range(4)]
    for t in range(8):
        a(vread(gb[t], t, 2)); a(vread(gb[t]+2, t, 3))
    for t in range(8):
        a('s_waitcnt lgkmcnt(14)')
        a(mfma(gb[t], S+4, gb[t], '0'))
        a(vread(X[t+1], t, 0)); a(vread(X[t+1]+2, t, 1))
    for t in range(8):
        a(f's_waitcnt lgkmcnt({14-2*t})')
        a(mfma(gb[t], S, X[t+1], gb[t]))
    a('s_mov_b64 exec, 1')
    a(f'v_mov_b32 {vr(S)}, {LCNT}')
    a(f'v_mov_b32 {vr(S+1)}, 1')
    a('s_mov_b64 exec, 0xffff')
    for t in range(8):
        a(f'ds_write_b64 {vr(vT0)}, {vr(gb[t],2)} offset:{128*t}')
    a('s_mov_b64 exec, 1')
    a(f'ds_add_u32 {vr(S)}, {vr(S+1)}')
    a('s_mov_b64 exec, -1')
    a.label('L_gdone')
    stamp()

    emit = lambda ls: [a(l) for l in ls]
    def combine(og, mg, tm):
        NP = len(og)
        emit(maxtree_l([mg[n] for n in range(NP)], tm))
        for n in range(NP):
            a(f'v_sub_f32 {vr(mg[n])}, {vr(mg[n])}, {vr(tm)}')
        for n in range(NP):
            a(f'v_exp_f32 {vr(mg[n])}, {vr(mg[n])}')
        a.nop(1)
        for e in range(4):
            a(f'v_mul_f32 {vr(og[0][e])}, {vr(og[0][e])}, {vr(mg[0])}')
        a(f'v_mul_f32 {vr(mg[0]+1)}, {vr(mg[0]+1)}, {vr(mg[0])}')
        for n in range(1, NP):
            for e in range(4):
                a(f'v_fmac_f32 {vr(og[0][e])}, {vr(og[n][e])}, {vr(mg[n])}')
            a(f'v_fmac_f32 {vr(mg[0]+1)}, {vr(mg[n]+1)}, {vr(mg[n])}')

    if not qbearly:
        issue_qb(vDQk, S+2)
        a(f'v_mov_b32 {vr(vDQk)}, 0')
    a(f's_cmp_eq_u32 s{sWV}, {RW}')
    a('s_cbranch_scc1 L_reduce')
    a(f's_cmp_eq_u32 s{sCMB}, 0')
    a('s_cbranch_scc1 L_noflag')
    a(f'v_mov_b32 {vr(vT0)}, {LNON}')
    a(f'ds_read_b32 {vr(vT0)}, {vr(vT0)}')
    a('s_waitcnt lgkmcnt(0)')
    a(f'v_readfirstlane_b32 s{sN}, {vr(vT0)}')
    a.label('L_noflag')
    a('s_waitcnt vmcnt(4)')
    a('s_branch L_tileA')
    a.label('L_reduce')
    R0 = S
    a(f'v_mbcnt_lo_u32_b32 {vr(R0)}, -1, 0')
    a(f'v_mbcnt_hi_u32_b32 {vr(R0)}, -1, {vr(R0)}')
    a(f'v_lshrrev_b32 {vr(R0+1)}, 5, {vr(R0)}')
    a(f'v_and_b32 {vr(R0+3)}, 31, {vr(R0)}')
    a(f'v_lshlrev_b32 {vr(R0+3)}, 5, {vr(R0+3)}')
    a(f'v_lshl_add_u32 {vr(R0+3)}, {vr(R0+1)}, 2, {vr(R0+3)}')
    a(f'v_add_u32 {vr(R0+3)}, {PART}, {vr(R0+3)}')
    a(f'v_lshlrev_b32 {vr(R0+1)}, 3, {vr(R0+1)}')
    a(f'v_add_u32 {vr(R0+1)}, {PARTML}, {vr(R0+1)}')
    a(f'v_lshlrev_b32 {vr(R0)}, 4, {vr(R0)}')
    a(f'v_mov_b32 {vr(R0+2)}, {LCNT}')
    a(f's_mov_b32 s{sCNT}, 0')
    a.label('L_lspin')
    a(f'ds_read_b64 {vr(S+4,2)}, {vr(R0+2)}')
    a(f's_add_u32 s{sCNT}, s{sCNT}, 1')
    a('s_waitcnt lgkmcnt(0)')
    a(f'v_readfirstlane_b32 s{sT0}, {vr(S+4)}')
    a(f'v_readfirstlane_b32 s{sN}, {vr(S+5)}')
    a(f's_cmp_ge_u32 s{sCNT}, 0x100000')
    a('s_cbranch_scc1 L_lok')
    a(f's_cmp_lt_u32 s{sT0}, 4')
    a('s_cbranch_scc1 L_lspin')
    a.label('L_lok')
    mg = [S+4, S+6, O, O+2]
    G0 = S + 8
    og = [[G0+4*n+e for e in range(4)] for n in range(4)]
    for n in range(4):
        a(f'ds_read_b64 {vr(mg[n],2)}, {vr(R0+1)} offset:{16*n}')
    for n in range(4):
        if n: a(f'v_add_u32 {vr(R0+3)}, 1024, {vr(R0+3)}')
        a(f'ds_read2_b32 {vr(G0+4*n,2)}, {vr(R0+3)} offset0:0 offset1:2')
        a(f'ds_read2_b32 {vr(G0+4*n+2,2)}, {vr(R0+3)} offset0:4 offset1:6')
    a('s_waitcnt lgkmcnt(0)')
    combine(og, mg, R0+1)
    a(f'v_mov_b32 {vr(G0+4)}, {vr(G0+3)}')
    a(f'v_mov_b32 {vr(G0+5)}, {vr(R0+1)}')
    a(f'v_mov_b32 {vr(G0+6)}, {vr(mg[0]+1)}')
    a(f'v_mov_b32 {vr(G0+7)}, s{sN}')
    a(f'v_mov_b32 {vr(G0+3)}, s{sN}')
    a(f'buffer_store_dwordx4 {vr(G0+4,4)}, {vr(R0)}, {sr(sW,4)}, s42 offen offset:1024 sc0 sc1')
    a(f'buffer_store_dwordx4 {vr(G0,4)}, {vr(R0)}, {sr(sW,4)}, s42 offen sc0 sc1')
    a(f's_cmp_lg_u32 s{sN}, 0')
    a('s_cbranch_scc1 L_tagged')
    a('s_waitcnt vmcnt(0)')
    a(f's_lshl_b32 s{sT0}, s{sH}, 3')
    a(f's_lshl_b32 s{sT1}, 1, s{sC}')
    a(f'v_mov_b32 {vr(R0)}, s{sT0}')
    a(f'v_mov_b32 {vr(R0+1)}, s{sT1}')
    a('s_mov_b64 exec, 1')
    a(f'global_atomic_or {vr(R0)}, {vr(R0+1)}, s[16:17] offset:4 sc1')
    a('s_mov_b64 exec, -1')
    a.label('L_tagged')
    a('s_waitcnt vmcnt(6)')
    a.label('L_tileA')
    def qfrag(Q, tile, tmp):
        for ks in range(1, 4):
            a(f'v_xor_b32 {vr(tmp+ks-1)}, {64*ks}, {vr(vAQ)}')
        for ks in range(4):
            a(f'ds_read_b128 {vr(Q+4*ks,4)}, {vr(vAQ if ks == 0 else tmp+ks-1)} offset:{4096*tile}')
    qfrag(QA, 0, S+13)
    only(HW, 'L_nohalo2')
    a(f'v_add_u32 {vr(S+12)}, {HALO}, {vr(vAQ)}')
    for ks in range(1, 4):
        a(f'v_add_u32 {vr(S+12+ks)}, {HALO}, {vr(S+12+ks)}')
    for W in (0, 1):
        for ks in range(4):
            a(f'ds_read_b128 {vr(kf(W,ks),4)}, {vr(S+12+ks)} offset:{4096*W}')
    a.label('L_nohalo2')
    a('s_waitcnt lgkmcnt(0)')
    def yprio(tag):
        if yp == tag:
            a(f's_cmp_lt_u32 s{sWV}, 4')
            a(f's_cbranch_scc1 L_yp{tag}')
            a('s_setprio 1')
            a.label(f'L_yp{tag}')
    yprio('a')
    stamp()

    def inter(ms, vs, per=2):
        vs = list(vs)
        for m in ms:
            a(m)
            for _ in range(per):
                if vs: a(vs.pop(0))
        for v in vs: a(v)

    HB = kf(2, 0)
    def hand_loads():
        a(f'v_mbcnt_lo_u32_b32 {vr(KG)}, -1, 0')
        a(f'v_mbcnt_hi_u32_b32 {vr(KG)}, -1, {vr(KG)}')
        a(f'v_lshlrev_b32 {vr(KG)}, 4, {vr(KG)}')
        for n in range(8):
            a(f's_movk_i32 s{sT0}, {2048*n}')
            a(f'buffer_load_dwordx4 {vr(HB+8*n,4)}, {vr(KG)}, {sr(sW,4)}, s{sT0} offen sc0 sc1')
            a(f'buffer_load_dwordx4 {vr(HB+8*n+4,4)}, {vr(KG)}, {sr(sW,4)}, s{sT0} offen offset:1024 sc0 sc1')

    buf = [kf(0, n) for n in range(4)] + [QA + 4*n for n in range(4)]
    SLOTW = {0: [0, 1, 2, 3, 4], 1: [4, 5, 2, 3, 1]}
    def qk(tau, sl):
        Q = QA if tau == 0 else QB
        if sl == 'G':
            return [mfma(S+20, KG+4*ks, Q+4*ks, '0' if ks == 0 else S+20) for ks in range(4)]
        W = SLOTW[tau][sl]
        c0 = BLO if W == tau else BHI if W == tau + 4 else '0'
        return [mfma(S+4*sl, kf(W,ks), Q+4*ks, c0 if ks == 0 else S+4*sl) for ks in range(4)]
    def edge_test(tau, lab):
        a(f's_sub_u32 s{sT0}, s{sQB}, {48 - 16*tau}')
        a(f's_cmp_lt_u32 s{sT0}, 1968')
        a(f's_cbranch_scc1 {lab}')
    def edge_mask(tau, tr):
        a(f'v_mbcnt_lo_u32_b32 {vr(tr)}, -1, 0')
        a(f'v_mbcnt_hi_u32_b32 {vr(tr)}, -1, {vr(tr)}')
        a(f'v_lshrrev_b32 {vr(tr)}, 4, {vr(tr)}')
        a(f's_sub_u32 s{sT0}, s{sQB}, 34')
        a(f's_movk_i32 s{sT1}, 2046')
        a(f'v_lshl_add_u32 {vr(tr)}, {vr(tr)}, 2, s{sT0}')
        a(f'v_mov_b32 {vr(vM)}, 0x{NEG:08x}')
        a('s_nop 3')
        for sl in range(5):
            for r in range(4):
                a(f'v_add_u32 {vr(vT)}, {16*SLOTW[tau][sl]+r}, {vr(tr)}')
                a(f'v_cmp_gt_u32 vcc, s{sT1}, {vr(vT)}')
                a('s_nop 1')
                a(f'v_cndmask_b32 {vr(S+4*sl+r)}, {vr(vM)}, {vr(S+4*sl+r)}, vcc')
        for l in maxtree_l([S+x for x in range(22)], vM): a(l)
    def epi(t, tau=0):
        l = [f'v_mul_f32 {vr(O+4*t+e)}, {vr(O+4*t+e)}, {vr(vT0)}' for e in range(4)]
        l += [f'v_cvt_pk_bf16_f32 {vr(O+4*t)}, {vr(O+4*t)}, {vr(O+4*t+1)}',
              f'v_cvt_pk_bf16_f32 {vr(O+4*t+1)}, {vr(O+4*t+2)}, {vr(O+4*t+3)}',
              f'ds_write_b64 {vr(vSW)}, {vr(O+4*t,2)} offset:{32*t}']
        return l
    def stage_reads(tau=0, R=O):
        return [f'ds_read_b128 {vr(R+4*j,4)}, {vr(vSR)} offset:{4*STGP*j}' for j in range(4)]
    def stores(tau, R=O, extra=0):
        for j in range(4):
            a(f's_waitcnt lgkmcnt({3-j+extra})')
            if tau == 0 and j == 0: a(f's_mov_b64 exec, {sr(sEX,2)}')
            a(f'buffer_store_dwordx4 {vr(R+4*j,4)}, {vr(vOO)}, {sr(sO,4)}, s{sTOFF if tau else sZERO} offen offset:{1024*j} {stpol}')
            if tau == 0 and j == 0: a('s_mov_b64 exec, -1')
    RA = kf(1, 0)
    def late_a():
        for l in stage_reads(0, RA): a(l)
        stores(0, RA)
    def softmax_pv(tau):
        m = vM
        xred(m, vT)
        a(f'v_mul_f32 {vr(m)}, s{sCS}, {vr(m)}')
        set0 = [S+x for x in range(8)]; set1 = [S+8+x for x in range(8)]; set2 = [S+16+x for x in range(6)]
        for l in fma_l(set0, m): a(l)
        f2 = fma_l(set2, m); f1 = fma_l(set1, m)
        for l in exp_l(set0): a(l)
        a(f2[0])
        for l in cvt_l(S, S, 4): a(l)
        a(f2[1])
        a('s_waitcnt lgkmcnt(0)' if tau == 1 else 's_waitcnt lgkmcnt(8)')
        if tau == 1 and apos == 1: late_a()
        ONES, LACC = S+4, S+20
        v2 = f2[2:] + exp_l(set2) + [f'v_mov_b32 {vr(ONES+n)}, 0x3f803f80' for n in range(4)] + cvt_l(S+16, S+16, 3) \
             + [f'v_mov_b32 {vr(S+19)}, 0', f'v_cndmask_b32 {vr(S+18)}, 0, {vr(S+18)}, {sr(sKG0,2)}']
        inter([mfma(X[t], X[t+1], S, '0') for t in range(8)], v2 + f1[:2])
        v1 = f1[2:] + exp_l(set1) + [f'v_mov_b32 {vr(vT0)}, 0'] + cvt_l(S+8, S+8, 4)
        inter([mfma(O+4*t, VG+4*t, S+16, O+4*t) for t in range(8)], v1)
        a(mfma(LACC, ONES, S, '0'))
        a(mfma(LACC, ONES, S+16, LACC))
        a(mfma(LACC, ONES, S+8, LACC))
        if tau == 0:
            a('s_waitcnt lgkmcnt(0)')
        for t in range(8):
            a(mfma(O+4*t, buf[t], S+8, O+4*t))
            if tau == 0: a(vread(VG+4*t, t, 1))
        a(f'v_rcp_f32 {vr(vT0)}, {vr(LACC)}')

    late = []
    for t in range(8):
        late += [vread(buf[t], t, 2), vread(buf[t]+2, t, 3)]
    vgr = [vread(VG+4*t, t, 4) for t in range(8)]
    edge_test(0, 'L_fastA')
    for l in vgr: a(l)
    for sl in ('G', 0, 1, 2, 3, 4):
        for l in qk(0, sl): a(l)
    for l in late: a(l)
    edge_mask(0, vT0)
    a('s_branch L_joinA')
    a.label('L_fastA')
    m = vM
    inter(qk(0, 0) + qk(0, 'G'), vgr, per=1)
    inter(qk(0, 1) + qk(0, 2), late[:8], per=1)
    inter(qk(0, 3), maxtree_l([S+20, S+21, S+0], m) + maxtree_l([S+1, S+2, S+3, S+4, S+5, S+6], m, False), per=1)
    inter(qk(0, 4), maxtree_l([S+7, S+8, S+9, S+10], m, False), per=1)
    for l in late[8:11]: a(l)
    for l in maxtree_l([S+11, S+12], m, False): a(l)
    for l in late[11:13]: a(l)
    for l in maxtree_l([S+13, S+14, S+15], m, False): a(l)
    for l in late[13:]: a(l)
    for l in maxtree_l([S+16, S+17, S+18, S+19], m, False): a(l)
    a.label('L_joinA')
    yprio('s')
    stamp(fine)
    softmax_pv(0)
    stamp(fine)
    ep = []
    for t in range(8): ep += epi(t)
    if apos == 0: ep += stage_reads()
    xb = []
    for t in range(8): xb += [vread(X[t+1], t, 4), vread(X[t+1]+2, t, 5)]
    def qb_wait(n):
        a(f's_waitcnt vmcnt({n+2})')
        if opt.get('otouch'):
            a(f's_and_b32 s{sT0}, s{sWV}, 3')
            a(f's_cmp_eq_u32 s{sT0}, 3')
        else:
            a(f's_cmp_eq_u32 s{sWV}, {RW}')
        a('s_cbranch_scc1 L_qbw')
        a(f's_waitcnt vmcnt({n})')
        a.label('L_qbw')
    qb_wait(0)
    stamp()
    qfrag(QB, 1, S+13)
    edge_test(1, 'L_fastB')
    for l in ep: a(l)
    stores(0)
    for sl in (0, 1, 2, 3, 4, 'G'):
        for l in qk(1, sl): a(l)
    for l in xb: a(l)
    edge_mask(1, vT0)
    a('s_branch L_joinB')
    a.label('L_fastB')
    ms = []
    for sl in (0, 1, 2, 3, 4, 'G'): ms += qk(1, sl)
    for l in ep[:14]: a(l)
    a('s_waitcnt lgkmcnt(2)')
    inter(ms, ep[14:], per=2)
    for l in maxtree_l([S+x for x in range(15)], vT0): a(l)
    stores(0)
    for l in xb: a(l)
    a(f'v_max3_f32 {vr(vM)}, {vr(vT0)}, {vr(S+15)}, {vr(S+16)}')
    for l in maxtree_l([S+17, S+18, S+19, S+20, S+21], vM, False): a(l)
    a.label('L_joinB')
    yprio('b')
    stamp()
    a(f's_cmp_eq_u32 s{sCMB}, 0')
    a('s_cbranch_scc1 L_nohand')
    hand_loads()
    a.label('L_nohand')
    softmax_pv(1)
    stamp(fine)
    if apos == 2:
        late_a()
    a('s_nop 0')
    if apos == 3:
        for l in stage_reads(0, RA): a(l)
    for t in range(8):
        for l in epi(t, 1): a(l)
    for l in stage_reads(1): a(l)
    if apos == 3:
        stores(0, RA, extra=4+8) if False else None
        for j in range(4):
            if j == 0: a(f's_mov_b64 exec, {sr(sEX,2)}')
            if j == 0: a('s_waitcnt lgkmcnt(4)')
            a(f'buffer_store_dwordx4 {vr(RA+4*j,4)}, {vr(vOO)}, {sr(sO,4)}, s{sZERO} offen offset:{1024*j} {stpol}')
            if j == 0: a('s_mov_b64 exec, -1')
    stores(1)
    stamp()

    a(f's_cmp_eq_u32 s{sCMB}, 0')
    a('s_cbranch_scc1 L_fin')
    a(f's_waitcnt vmcnt({4 if apos == 0 else 8})')
    a(f's_mov_b32 s{sCNT}, 0')
    a(f's_mov_b32 s{sT2}, 0')
    a.label('L_chk')
    a(f's_mov_b32 s{sT3}, s{sT2}')
    for n in range(8):
        a(f'v_cmp_eq_u32 vcc, s{sN}, {vr(HB+8*n+3)}')
        a(f'v_cmp_eq_u32 s[60:61], s{sN}, {vr(HB+8*n+7)}')
        a('s_nop 0')
        a('s_and_b64 vcc, vcc, s[60:61]')
        a('s_cmp_eq_u64 vcc, exec')
        a(f's_cselect_b32 s{sT0}, {1 << n}, 0')
        a(f's_or_b32 s{sT3}, s{sT3}, s{sT0}')
    a(f's_add_u32 s{sCNT}, s{sCNT}, 1')
    a(f's_cmp_eq_u32 s{sT3}, 0xff')
    a('s_cbranch_scc1 L_ready')
    a(f's_cmp_ge_u32 s{sCNT}, 0x40000')
    a('s_cbranch_scc1 L_ready')
    a(f's_lshl_b32 s{sT0}, s{sH}, 3')
    a(f'v_mov_b32 {vr(KG+1)}, s{sT0}')
    a(f'global_load_dword {vr(KG+2)}, {vr(KG+1)}, s[16:17] offset:4 sc0 sc1')
    a('s_waitcnt vmcnt(0)')
    a(f'v_readfirstlane_b32 s{sT2}, {vr(KG+2)}')
    hand_loads()
    a('s_waitcnt vmcnt(0)')
    a('s_branch L_chk')
    a.label('L_ready')
    hog = [[HB+8*n, HB+8*n+1, HB+8*n+2, HB+8*n+4] for n in range(8)]
    hmg = [HB+8*n+5 for n in range(8)]
    combine(hog, hmg, X8)
    a(f'v_rcp_f32 {vr(X8)}, {vr(hmg[0]+1)}')
    a(f'v_lshrrev_b32 {vr(KG)}, 1, {vr(KG)}')
    for e in range(4):
        a(f'v_mul_f32 {vr(hog[0][e])}, {vr(hog[0][e])}, {vr(X8)}')
    a(f'v_cvt_pk_bf16_f32 {vr(X8+2)}, {vr(hog[0][0])}, {vr(hog[0][1])}')
    a(f'v_cvt_pk_bf16_f32 {vr(X8+3)}, {vr(hog[0][2])}, {vr(hog[0][3])}')
    a(f'buffer_store_dwordx2 {vr(X8+2,2)}, {vr(KG)}, {sr(sO,4)}, 0 offen {stpol}')
    a.label('L_fin')
    if stamps:
        stamp()
        a('s_waitcnt vmcnt(0)')
        stamp()
        if opt.get('clk'):
            a('s_memtime s[98:99]')
            a('s_waitcnt lgkmcnt(0)')
            a('s_sub_u32 s98, s98, s96')
            a(f's_add_u32 s{64+2*nst[0]}, s98, s64')
            nst[0] += 1
        a(f's_lshl_b32 s{sT0}, s2, 3')
        a(f's_add_u32 s{sT0}, s{sT0}, s{sWV}')
        a(f's_lshl_b32 s{sT0}, s{sT0}, 6')
        a(f's_add_u32 s{sT0}, s{sT0}, 0x100000')
        a(f's_add_u32 s{sW}, s18, s{sT0}')
        a(f's_addc_u32 s{sW+1}, s19, 0')
        a(f'v_mov_b32 v1, 0')
        a('s_mov_b64 exec, 1')
        for n in range(min(16, nst[0])):
            a(f'v_mov_b32 v2, s{64+2*n}')
            a(f'buffer_store_dword v2, v1, {sr(sW,4)}, 0 offen offset:{4*n}')
        if 'leak' in opt:
            k = int(opt['leak'])
            a(f's_sub_u32 s{sT0}, s{64+2*k}, s64')
            a(f's_lshl_b32 s{sT0}, s{sT0}, 2')
            if opt.get('leakskew'):
                a.label('L_pre')
                a('s_memrealtime s[100:101]')
                a('s_waitcnt lgkmcnt(0)')
                a(f's_sub_u32 s{sT1}, s100, s64')
                a(f's_cmp_lt_u32 s{sT1}, 3000')
                a('s_cbranch_scc1 L_pre')
                a('s_mov_b64 exec, -1')
                a('v_mbcnt_lo_u32_b32 v3, -1, 0')
                a('v_and_b32 v3, 31, v3')
                a('v_lshlrev_b32 v3, 3, v3')
                a('global_load_dword v4, v3, s[16:17] sc0 sc1')
                a('s_waitcnt vmcnt(0)')
                a('v_readlane_b32 s20, v4, 0')
                a('s_mov_b32 s21, 0'); a('s_mov_b32 s22, 0')
                for n in range(1, 32):
                    a(f'v_readlane_b32 s23, v4, {n}')
                    a('s_nop 0')
                    a('s_sub_i32 s23, s23, s20')
                    a('s_min_i32 s21, s21, s23')
                    a('s_max_i32 s22, s22, s23')
                a(f's_sub_u32 s{sT0}, s22, s21')
                a(f's_min_u32 s{sT0}, s{sT0}, 2000')
                a(f's_lshl_b32 s{sT0}, s{sT0}, 2')
            if opt.get('leakxcc'):
                a('s_getreg_b32 s61, hwreg(HW_REG_XCC_ID, 0, 4)')
                a(f's_bfe_u32 s60, s{sN}, 0x40001')
                a('s_cmp_lg_u32 s60, s61')
                a(f's_cselect_b32 s{sT0}, 2000, 0')
            if opt.get('leakcnt'):
                a(f's_mul_i32 s{sT0}, s{sCNT}, 500')
                a(f's_mul_i32 s{sT0}, s{sT0}, s{sCMB}')
            if 'leakh' in opt:
                lo, hi = opt['leakh'].split(',')
                a(f's_sub_u32 s{sT1}, s{sH}, {lo}')
                a(f's_cmp_lt_u32 s{sT1}, {int(hi)-int(lo)}')
                a(f's_cselect_b32 s{sT0}, s{sT0}, 0')
            if 'leakwg' in opt:
                a(f's_cmp_eq_u32 s2, {opt["leakwg"]}')
                a(f's_cselect_b32 s{sT0}, s{sT0}, 0')
            if 'leakx' in opt:
                a(f's_getreg_b32 s{sT1}, hwreg(HW_REG_XCC_ID, 0, 4)')
                a(f's_lshr_b32 s{sT1}, {opt["leakx"]}, s{sT1}')
                a(f's_bitcmp1_b32 s{sT1}, 0')
                a(f's_cselect_b32 s{sT0}, s{sT0}, 0')
            if 'leakw' in opt:
                a(f's_lshr_b32 s{sT1}, {opt["leakw"]}, s{sWV}')
                a(f's_bitcmp1_b32 s{sT1}, 0')
                a(f's_cselect_b32 s{sT0}, s{sT0}, 0')
            a(f"s_add_u32 s{sT0}, s{sT0}, {opt.get('spin', 5000)}")
            a.label('L_spin')
            a('s_memrealtime s[100:101]')
            a('s_waitcnt lgkmcnt(0)')
            a(f's_sub_u32 s{sT1}, s100, s64')
            a(f's_cmp_lt_u32 s{sT1}, s{sT0}')
            a('s_cbranch_scc1 L_spin')
    a.label('L_end')
    a('s_endpgm')
    if cpf:
        a('.fill 4096, 4, 0xbf800000')

    check(a.lines)
    if stamps: print('stamps', nst[0])
    head = f'''; windowed + global-token attention, B=1 H=32 S=2048 D=128 bf16 (window 32, 2 global tokens)
; @launch grid=(256,1,1) block=(512,1,1) lds=163840
.amdgcn_target "amdgcn-amd-amdhsa--gfx950"
.text
.globl {NAME}
.p2align 8
.type {NAME},@function
{NAME}:
'''
    tail = f'''.section .rodata,"a"
.p2align 6
.amdhsa_kernel {NAME}
  .amdhsa_next_free_vgpr 256
  .amdhsa_next_free_sgpr {102 if stamps else 64}
  .amdhsa_accum_offset 256
  .amdhsa_group_segment_fixed_size 0
  .amdhsa_kernarg_size 64
  .amdhsa_user_sgpr_count 2
  .amdhsa_user_sgpr_kernarg_segment_ptr 1
  .amdhsa_system_sgpr_workgroup_id_x 1
.end_amdhsa_kernel
'''
    return head + a.text() + tail

if __name__ == '__main__':
    out = sys.argv[1]
    opt = {}
    for kv in sys.argv[2:]:
        k, v = kv.split('=', 1)
        opt[k] = {'True': True, 'False': False}.get(v, v.replace('+', ' '))
    open(out, 'w').write(gen(opt))
```

```python
import sys, math, struct
from asmlib import *

NAME = 'standalone__global_local_windowed_global_tokens__prompt_kernel'
def f2u(x): return struct.unpack('<I', struct.pack('<f', x))[0]

def gen(opt):
    a = Asm()
    NEG = 0xFF000000
    CSC = f2u(128 ** -0.5 * math.log2(math.e))
    KOFF, VOFF, SOFF = 0, 73728, 155648
    apos = int(opt.get('apos', 0))
    PART, STG = 0, 4096
    PARTML, LCNT, LNON = SOFF + 3072, SOFF + 3072 + 128, SOFF + 3072 + 132
    STGP = 272
    ldpol = opt.get('ldpol', '')
    qpol = opt.get('qpol', '')
    stpol = opt.get('stpol', 'sc0 sc1 nt')
    pk = opt.get('pk', True)
    N1 = int(opt.get('n1', 10))
    yp = opt.get('yp', '')
    RW = int(opt.get('rw', 3))
    FW = 7
    SW = 5
    CW, CC = int(opt.get('cw', 1)), 3
    merge = opt.get('merge', True)
    sQ, sK, sV, sO, sW = 20, 24, 28, 32, 36
    sWV, sH, sC, sHO, sQ0B = 40, 43, 44, 45, 46
    sT0, sT1, sT2, sT3 = 47, 48, 49, 50
    sBK = 62
    HW = 4
    sCS = 52; sKG0 = 54; sQB = 51; sEX = 56; sCMB = 58; sCNT = 59; sN = 63; sTOFF = 41; sZERO = 3
    VA = 0
    vSW, vSR, vOO, vT0 = 8, 9, 10, 11
    X8 = 12
    KF = 16; KG = 112; QA, QB = 128, 144; VG = 160; O = 192; S = 224
    BLO, BHI = 248, 252
    kf = lambda W, ks: KF + 16 * W + 4 * ks
    X = [O + 4 * n for n in range(8)] + [X8]
    vLANE, vI, vKGp, vDK, vDV, vDQ, vAG, vNEG, vAK = O+16, O+17, O+18, O+19, O+20, O+21, O+22, O+23, O+24
    vAVG, t1, t2, t3 = O+28, O+29, O+30, O+31
    vDQk = VG + 7
    vFLAG = VG + 3
    vM, vT = S + 22, S + 23

    stamps = opt.get('stamps', False)
    fine = opt.get('fine', False)
    nst = [0]
    def stamp(on=True):
        if stamps and on:
            a(f's_memrealtime s[{64+2*nst[0]}:{65+2*nst[0]}]')
            if nst[0]: a('s_waitcnt lgkmcnt(0)')
            nst[0] += 1
    M16 = 'v_mfma_f32_16x16x32_bf16'
    def mfma(d, x, y, c):
        return f'{M16} {vr(d,4)}, {vr(x,4)}, {vr(y,4)}, {c if isinstance(c,str) else vr(c,4)}'
    def only(w, lab):
        a(f's_cmp_lg_u32 s{sWV}, {w}')
        a(f's_cbranch_scc1 {lab}')

    stamp()
    if opt.get('clk'): a('s_memtime s[96:97]')
    a('s_load_dwordx16 s[4:19], s[0:1], 0')
    a(f'v_readfirstlane_b32 s{sWV}, v0')
    a('s_cmp_ge_u32 s2, 256')
    a('s_cbranch_scc1 L_end')
    a(f'v_lshrrev_b32 {vr(t1)}, 4, v0')
    a(f'v_xor_b32 {vr(vDK)}, {vr(t1)}, v0')
    a(f'v_and_b32 {vr(vDK)}, 15, {vr(vDK)}')
    a(f'v_lshl_add_u32 {vr(vDK)}, {vr(t1)}, 4, {vr(vDK)}')
    a(f's_bfe_u32 s{sC}, s2, 0x30003')
    a(f's_lshl_b32 s{sQ0B}, s{sC}, 16')
    a(f'v_lshl_add_u32 {vr(vDK)}, {vr(vDK)}, 4, s{sQ0B}')
    a('s_and_b32 s41, s2, 7')
    a(f's_lshr_b32 s{sH}, s2, 6')
    a(f's_lshl2_add_u32 s{sH}, s41, s{sH}')
    a(f's_lshl_b32 s{sHO}, s{sH}, 19')
    a(f's_lshl_b32 m0, s{sWV}, 4')
    a(f's_mov_b32 s{sK+2}, 0x80000')
    a(f's_mov_b32 s{sK+3}, 0x20000')
    a(f's_movk_i32 s{sCNT}, 17')
    cpf = opt.get('cpf', True)
    a.label('L_base')
    if cpf is True:
        a(f's_getpc_b64 s[{sEX}:{sEX+1}]')
        a(f'v_lshlrev_b32 v1, 5, v0')
        a(f'global_load_dword {vr(X8)}, v1, s[{sEX}:{sEX+1}]')
    a(f's_cmp_ge_u32 s{sWV}, 256')
    a('s_cbranch_scc1 L_helper')
    a('s_waitcnt lgkmcnt(0)')
    stamp()
    a(f's_add_u32 s{sK}, s6, s{sHO}')
    a(f's_addc_u32 s{sK+1}, s7, 0')
    thr = int(opt.get('thr', 0)); tl = [0]
    if thr: a('s_getreg_b32 s1, hwreg(HW_REG_XCC_ID, 0, 4)')
    def throttle():
        if thr:
            a('s_bitcmp1_b32 s1, 0')
            a(f's_cbranch_scc{opt.get("thpar", 1)} L_th{tl[0]}')
            a(f's_waitcnt vmcnt({thr-1})')
            a.label(f'L_th{tl[0]}')
            tl[0] += 1
    a.label('L_kloop')
    throttle()
    a(f'buffer_load_dwordx4 {vr(vDK)}, {sr(sK,4)}, 0 offen {opt.get("kpol", ldpol)} lds')
    a('s_add_u32 m0, m0, 0x1000')
    a(f'v_add_u32 {vr(vDK)}, 0x1000, {vr(vDK)}')
    a(f's_sub_u32 s{sCNT}, s{sCNT}, 1')
    a('s_cbranch_scc0 L_kloop')
    if 'dup' in opt:
        nd = int(opt['dup'])
        a(f's_sub_u32 m0, m0, {0x1000*18}')
        a(f'v_subrev_u32 {vr(vDK)}, {0x1000*18}, {vr(vDK)}')
        for i in range(nd):
            a(f'buffer_load_dwordx4 {vr(vDK)}, {sr(sK,4)}, 0 offen lds')
            a('s_add_u32 m0, m0, 0x1000')
            a(f'v_add_u32 {vr(vDK)}, 0x1000, {vr(vDK)}')
    stamp(opt.get('postk', False))
    def common():
        a(f's_lshr_b32 s{sWV}, s{sWV}, 6')
        a(f'v_and_b32 {vr(vLANE)}, 63, v0')
        a(f'v_and_b32 {vr(vI)}, 15, v0')
        a(f'v_bfe_u32 {vr(vKGp)}, v0, 4, 2')
        a(f's_lshl_b32 s{sT1}, s{sWV}, 10')
        a(f's_add_u32 s{sT2}, s{sT1}, s{sQ0B}')
        for s_ in (sV, sQ):
            a(f's_mov_b32 s{s_+2}, 0x80000')
            a(f's_mov_b32 s{s_+3}, 0x20000')
        a(f's_mov_b32 s{sW+2}, 0x4000')
        a(f's_mov_b32 s{sW+3}, 0x20000')
        a(f's_and_b32 s{sBK}, s{sWV}, 3')
        a(f's_lshl_b32 s{sBK}, s{sBK}, 1')
        a(f's_cmp_lt_u32 s{sWV}, 4')
        a(f's_addc_u32 s{sBK}, s{sBK}, 0')
        a(f's_cmp_eq_u32 s{sC}, 0')
        a(f's_cselect_b32 s{sT3}, 0x40000000, 0')
        a(f's_lshl_b32 s{sT0}, s{sBK}, 13')
        a(f's_add_u32 s{sT0}, s{sT0}, s{sQ0B}')
        a(f'v_lshlrev_b32 {vr(vDQ)}, 4, {vr(vKGp)}')
        a(f'v_lshl_add_u32 {vr(vDQ)}, {vr(vI)}, 8, {vr(vDQ)}')
        a(f'v_add_u32 {vr(vDQ)}, s{sT0}, {vr(vDQ)}')
        a(f'v_lshlrev_b32 {vr(t3)}, 4, {vr(vLANE)}')
        a(f's_lshl_b32 s41, s{sH}, 14')
        a(f's_lshl_b32 s42, s{sC}, 11')
    common()
    a(f's_mov_b32 s{sN}, 0')
    def srds():
        a(f's_add_u32 s{sV}, s8, s{sHO}')
        a(f's_addc_u32 s{sV+1}, s9, 0')
        a(f's_add_u32 s{sQ}, s4, s{sHO}')
        a(f's_addc_u32 s{sQ+1}, s5, 0')
        a(f's_add_u32 s{sW}, s18, s41')
        a(f's_addc_u32 s{sW+1}, s19, 0')
    srds()
    a('s_branch L_v1')
    a.label('L_helper')
    a('s_setprio 3')
    a('s_memrealtime s[60:61]')
    if cpf == 'one':
        a(f's_cmp_lg_u32 s{sWV}, {64*6}')
        a('s_cbranch_scc1 L_nocpf')
        a(f's_getpc_b64 s[{sEX}:{sEX+1}]')
        a(f's_lshl_b32 s{sT0}, s{sC}, 11')
        a(f'v_and_b32 v1, 15, v0')
        a(f'v_lshl_add_u32 v1, v1, 7, s{sT0}')
        a('s_mov_b64 exec, 0xffff')
        a(f'global_load_dword {vr(X8)}, v1, s[{sEX}:{sEX+1}]')
        a('s_mov_b64 exec, -1')
        a.label('L_nocpf')
    common()
    a(f's_sub_u32 s{sT0}, s{sT3}, 0x2000')
    a(f'v_add_u32 {vr(t1)}, s{sT0}, {vr(vDQ)}')
    a(f'v_add_u32 {vr(t2)}, 0x1000, {vr(t1)}')
    a(f's_mov_b32 m0, {SOFF}')
    a('s_waitcnt lgkmcnt(0)')
    if stamps:
        nst[0] -= 1
        stamp()
    a(f's_add_u32 s{sK}, s6, s{sHO}')
    a(f's_addc_u32 s{sK+1}, s7, 0')
    srds()
    if stamps and opt.get('postk'):
        nst[0] -= 1
        stamp()
    a(f's_or_b32 s{sN}, s60, 1')
    if opt.get('leakxcc'):
        a('s_getreg_b32 s61, hwreg(HW_REG_XCC_ID, 0, 4)')
        a(f's_and_b32 s{sN}, s60, 0xffffffe0')
        a(f's_lshl1_add_u32 s{sN}, s61, s{sN}')
        a(f's_or_b32 s{sN}, s{sN}, 1')
    only(FW, 'L_noclear')
    a(f's_lshl_b32 s{sT0}, s{sH}, 3')
    a(f'v_mov_b32 {vr(S+4)}, s{sT0}')
    a(f'v_mov_b32 {vr(S+5)}, s{sN}')
    a(f'v_mov_b32 {vr(S+6)}, {LCNT}')
    a(f'v_mov_b32 {vr(S+7)}, 0')
    a('s_mov_b64 exec, 1')
    a(f's_cmp_lg_u32 s{sC}, {CC}')
    a('s_cbranch_scc1 L_nopub')
    a(f'global_store_dword {vr(S+4)}, {vr(S+5)}, s[16:17] sc0 sc1')
    a.label('L_nopub')
    a(f'ds_write_b32 {vr(S+6)}, {vr(S+7)}')
    a('s_mov_b64 exec, -1')
    if opt.get('wstouch'):
        pol = {'ld': '', 'ldsc': 'sc0 sc1'}.get(opt['wstouch'])
        if pol is not None:
            a(f'buffer_load_dwordx4 {vr(S+8,4)}, {vr(t3)}, {sr(sW,4)}, s42 offen {pol}')
            a(f'buffer_load_dwordx4 {vr(S+12,4)}, {vr(t3)}, {sr(sW,4)}, s42 offen offset:1024 {pol}')
        else:
            for n in range(4): a(f'v_mov_b32 {vr(S+8+n)}, 0')
            a(f'buffer_store_dwordx4 {vr(S+8,4)}, {vr(t3)}, {sr(sW,4)}, s42 offen sc0 sc1')
            a(f'buffer_store_dwordx4 {vr(S+8,4)}, {vr(t3)}, {sr(sW,4)}, s42 offen offset:1024 sc0 sc1')
    a.label('L_noclear')
    only(SW, 'L_nosmall')
    for n, srd in enumerate((sK, sQ, sV)):
        if n:
            a(f's_mov_b32 m0, {SOFF + 1024*n}')
            a('s_nop 0')
        a(f'buffer_load_dwordx4 {vr(t3)}, {sr(srd,4)}, 0 offen lds')
    a.label('L_nosmall')
    if opt.get('tch'):
        only(6, 'L_notch')
        a(f'v_and_b32 {vr(S+8)}, 1, {vr(vLANE)}')
        a(f'v_mul_u32_u24 {vr(S+8)}, 0xff00, {vr(S+8)}')
        a(f'v_add_u32 {vr(S+8)}, s{sQ0B}, {vr(S+8)}')
        a('s_mov_b64 exec, 3')
        a(f'buffer_load_dword {vr(S+9)}, {vr(S+8)}, {sr(sV,4)}, 0 offen')
        a(f'buffer_load_dword {vr(S+10)}, {vr(S+8)}, {sr(sQ,4)}, 0 offen')
        if opt['tch'] == 'o':
            a(f'v_add_u32 {vr(S+8)}, s{sHO}, {vr(S+8)}')
            a(f'global_load_dword {vr(S+11)}, {vr(S+8)}, s[14:15]')
        a('s_mov_b64 exec, -1')
        a.label('L_notch')
    only(HW, 'L_nohalo')
    for T in range(2):
        for ks in range(4):
            a(f'buffer_load_dwordx4 {vr(kf(T,ks),4)}, {vr(t1+T)}, {sr(sK,4)}, 0 offen offset:{64*ks}')
    a.label('L_nohalo')
    a('s_setprio 0')
    v2h = int(opt.get('v2h', 0))
    def vaddr(i0):
        a(f's_and_b32 s{sT0}, s{sWV}, 1')
        a(f's_lshl_b32 s{sT0}, s{sT0}, 2')
        a(f'v_add_lshl_u32 {vr(vDV)}, s{sT0}, {vr(vKGp)}, 1')
        a(f'v_xor_b32 {vr(vDV)}, {vr(vDV)}, {vr(vI)}')
        a(f'v_lshlrev_b32 {vr(vDV)}, 4, {vr(vDV)}')
        a(f'v_lshl_add_u32 {vr(vDV)}, {vr(vKGp)}, 8, {vr(vDV)}')
        a(f's_add_u32 s{sT2}, s{sT2}, {(0x1000*i0 - 0x2000) & 0xffffffff}')
        a(f'v_add_u32 {vr(vDV)}, s{sT2}, {vr(vDV)}')
        a(f's_add_u32 m0, s{sT1}, {VOFF + 0x1000*i0}')
    if v2h:
        vaddr(20 - v2h - 1 - 1)
    a('s_branch L_nov1')
    a.label('L_v1')
    def vpiece(i):
        throttle()
        if i:
            a('s_add_u32 m0, m0, 0x1000')
            a(f'v_add_u32 {vr(vDV)}, 0x1000, {vr(vDV)}')
        if i < 2:
            a(f'v_add_u32 {vr(t1)}, s{sT3}, {vr(vDV)}')
            a(f'buffer_load_dwordx4 {vr(t1)}, {sr(sV,4)}, 0 offen {ldpol} lds')
        else:
            a(f'buffer_load_dwordx4 {vr(vDV)}, {sr(sV,4)}, 0 offen {ldpol} lds')
    vaddr(0)
    for i in range(N1): vpiece(i)
    a.label('L_nov1')
    stamp()

    a(f's_add_u32 s{sO}, s14, s{sHO}')
    a(f's_addc_u32 s{sO+1}, s15, 0')
    a(f's_mov_b32 s{sO+2}, 0x80000')
    a(f's_mov_b32 s{sO+3}, 0x20000')
    a(f's_movk_i32 s{sTOFF}, 0x1000')
    a(f's_mov_b32 s{sZERO}, 0')
    a(f's_mov_b32 s{sCS}, 0x{CSC:08x}')
    a(f's_mov_b32 s{sCS+1}, 0x{CSC:08x}')
    a(f'v_mov_b32 {vr(vNEG)}, 0x{NEG:08x}')
    a(f'v_lshlrev_b32 {vr(t2)}, 2, {vr(vKGp)}')
    a(f'v_cmp_eq_u32 {sr(sKG0,2)}, 0, {vr(vKGp)}')
    for r in range(4):
        a(f'v_add_u32 {vr(t1)}, {r}, {vr(t2)}')
        a(f'v_cmp_ge_u32 vcc, {vr(t1)}, {vr(vI)}')
        a(f'v_cmp_le_u32 s[60:61], {vr(t1)}, {vr(vI)}')
        a('s_nop 0')
        a(f'v_cndmask_b32 {vr(BLO+r)}, {vr(vNEG)}, 0, vcc')
        a(f'v_cndmask_b32 {vr(BHI+r)}, {vr(vNEG)}, 0, s[60:61]')
    a(f's_lshl_b32 s{sT0}, s{sBK}, 13')
    a(f'v_xor_b32 {vr(t1)}, {vr(vKGp)}, {vr(vI)}')
    a(f'v_lshlrev_b32 {vr(t1)}, 4, {vr(t1)}')
    a(f'v_lshl_add_u32 {vr(t1)}, {vr(vI)}, 8, {vr(t1)}')
    a(f'v_add_u32 {vr(vAK)}, s{sT0}, {vr(t1)}')
    for ks in range(1, 4):
        a(f'v_xor_b32 {vr(vAK+ks)}, {64*ks}, {vr(vAK)}')
    a(f'v_and_b32 {vr(t1)}, 1, {vr(vI)}')
    a(f'v_lshlrev_b32 {vr(vNEG)}, 3, {vr(t1)}')
    a(f'v_lshlrev_b32 {vr(t1)}, 8, {vr(t1)}')
    a(f'v_lshl_add_u32 {vr(t1)}, {vr(vKGp)}, 4, {vr(t1)}')
    a(f'v_add_u32 {vr(vAG)}, {SOFF}, {vr(t1)}')
    a(f'v_bfe_u32 {vr(t1)}, {vr(vLANE)}, 2, 2')
    a(f'v_and_b32 {vr(t2)}, 3, {vr(vLANE)}')
    a(f'v_lshlrev_b32 {vr(t2)}, 3, {vr(t2)}')
    a(f'v_lshl_add_u32 {vr(t1)}, {vr(t1)}, 8, {vr(t2)}')
    a(f'v_add_u32 {vr(vAVG)}, {SOFF+2048}, {vr(t1)}')
    a(f'v_lshrrev_b32 {vr(t1)}, 2, {vr(vLANE)}')
    a(f'v_and_b32 {vr(vT0)}, 7, {vr(t1)}')
    a(f'v_lshl_add_u32 {vr(t2)}, {vr(vT0)}, 5, {vr(t2)}')
    a(f'v_lshl_add_u32 {vr(t2)}, {vr(t1)}, 8, {vr(t2)}')
    a(f's_add_u32 s{sT1}, s{sT0}, {VOFF}')
    a(f'v_add_u32 {vr(VA)}, s{sT1}, {vr(t2)}')
    for t in range(1, 8):
        a(f'v_xor_b32 {vr(VA+t)}, {32*t}, {vr(VA)}')
    a(f's_mul_i32 s{sT1}, s{sWV}, {32*STGP}')
    a(f's_add_u32 s{sT1}, s{sT1}, {STG}')
    a(f'v_mul_u32_u24 {vr(t1)}, {STGP}, {vr(vI)}')
    a(f'v_lshl_add_u32 {vr(t1)}, {vr(vKGp)}, 3, {vr(t1)}')
    a(f'v_add_u32 {vr(vSW)}, s{sT1}, {vr(t1)}')
    a(f'v_mul_u32_u24 {vr(t1)}, {STGP}, {vr(vKGp)}')
    a(f'v_lshl_add_u32 {vr(t1)}, {vr(vI)}, 4, {vr(t1)}')
    a(f'v_add_u32 {vr(vSR)}, s{sT1}, {vr(t1)}')
    a(f's_add_u32 s{sT0}, s{sT0}, s{sQ0B}')
    a(f'v_add_u32 {vr(vOO)}, s{sT0}, {vr(t3)}')
    a(f's_lshr_b32 s{sQB}, s{sT0}, 8')
    a(f's_cmp_eq_u32 s{sQB}, 0')
    a(f's_cselect_b32 s{sEX}, 0, -1')
    a(f's_mov_b32 s{sEX+1}, -1')
    a(f's_cmp_eq_u32 s{sQB}, {256*CC+32*(2*CW+1)}')
    a(f's_cselect_b32 s{sCMB}, 1, 0')
    a(f's_lshl_b32 s{sT0}, s{sWV}, 4')
    a(f's_add_u32 s{sT0}, s{sT0}, {PARTML}')
    a(f'v_add_u32 {vr(vNEG)}, s{sT0}, {vr(vNEG)}')

    spf = [int(x) for x in opt.get('spf', '0,0').split(',')]
    spstep = int(opt.get('spstep', 128)); sptile = opt.get('sptile', 'B')
    def sp_offsets():
        o = []
        for half in ([1, 0] if sptile == 'B' else [0, 1]):
            for blk in (1, 0):
                o += [8192*blk + 4096*half + x for x in range(0, 4096, spstep)]
        return o
    spo = sp_offsets()
    def sprefetch(n):
        for _ in range(n):
            if spo: a(f's_load_dword s61, s[10:11], {spo.pop(0)}')
    if sum(spf):
        a(f's_cmp_lt_u32 s{sWV}, 4')
        a('s_cbranch_scc1 L_nosp')
        a(f's_lshl_b32 s{sT0}, s{sBK}, 13')
        a(f's_add_u32 s{sT0}, s{sT0}, s{sQ0B}')
        a(f's_add_u32 s10, s{sQ}, s{sT0}')
        a(f's_addc_u32 s11, s{sQ+1}, 0')
        sprefetch(spf[0])
        a.label('L_nosp')
    a(f's_waitcnt vmcnt({N1}) lgkmcnt(0)')
    a(f's_cmp_lt_u32 s{sWV}, 4')
    a('s_cbranch_scc1 L_kw')
    a(f's_cmp_eq_u32 s{sWV}, {FW}')
    a('s_cbranch_scc1 L_kw')
    a('s_waitcnt vmcnt(0)')
    a.label('L_kw')
    stamp(opt.get('prek', False))
    a('s_barrier')
    stamp()
    a(f's_cmp_ge_u32 s{sWV}, 4')
    a('s_cbranch_scc1 L_nov2')
    for i in range(N1, 20 - v2h): vpiece(i)
    if v2h:
        a('s_branch L_nov2b')
    a.label('L_nov2')
    if v2h:
        a(f's_setprio {opt.get("v2p", 3)}')
        for i in range(20 - v2h, 20): vpiece(i)
        a('s_setprio 0')
        a.label('L_nov2b')
    stamp(fine)
    QG = O
    for W in (2, 3, 4, 5):
        for ks in range(4):
            a(f'ds_read_b128 {vr(kf(W,ks),4)}, {vr(vAK+ks)} offset:{4096*(W-2)}')
    for ks in range(4):
        a(f'ds_read_b128 {vr(KG+4*ks,4)}, {vr(vAG)} offset:{64*ks}')
    for t in range(8):
        a(f'ds_read_b64_tr_b16 {vr(VG+4*t+2,2)}, {vr(vAVG)} offset:{32*t}')
    a(f's_cmp_eq_u32 s{sWV}, {HW}')
    a('s_cbranch_scc1 L_k01done')
    for ks in range(4):
        a(f'v_subrev_u32 {vr(vAK+ks)}, 0x2000, {vr(vAK+ks)}')
    for W in (0, 1):
        for ks in range(4):
            a(f'ds_read_b128 {vr(kf(W,ks),4)}, {vr(vAK+ks)} offset:{4096*W}')
    a.label('L_k01done')
    def issue_qa():
        if opt.get('qprio'): a('s_setprio 3')
        for ks in range(4):
            a(f'buffer_load_dwordx4 {vr(QA+4*ks,4)}, {vr(vDQ)}, {sr(sQ,4)}, 0 offen offset:{64*ks} {qpol}')
        if opt.get('qprio'): a('s_setprio 0')

    def xred(m, t, op='v_max_f32'):
        a(f'v_mov_b32 {vr(t)}, {vr(m)}')
        a.nop(2)
        a(f'v_permlane16_swap_b32 {vr(m)}, {vr(t)}')
        a(f'{op} {vr(m)}, {vr(m)}, {vr(t)}')
        a(f'v_mov_b32 {vr(t)}, {vr(m)}')
        a.nop(2)
        a(f'v_permlane32_swap_b32 {vr(m)}, {vr(t)}')
        a(f'{op} {vr(m)}, {vr(m)}, {vr(t)}')
    def maxtree_l(vals, m, first=True):
        out = []; rest = list(vals)
        if first:
            out.append(f'v_max3_f32 {vr(m)}, {vr(rest[0])}, {vr(rest[1])}, {vr(rest[2])}'); rest = rest[3:]
        while len(rest) >= 2:
            out.append(f'v_max3_f32 {vr(m)}, {vr(m)}, {vr(rest[0])}, {vr(rest[1])}'); rest = rest[2:]
        if rest:
            out.append(f'v_max_f32 {vr(m)}, {vr(m)}, {vr(rest[0])}')
        return out
    def fma_l(vals, mc):
        if pk:
            return [f'v_pk_fma_f32 {vr(vals[n],2)}, {vr(vals[n],2)}, {sr(sCS,2)}, {vr(mc,2)} op_sel_hi:[1,1,0] neg_lo:[0,0,1] neg_hi:[0,0,1]' for n in range(0, len(vals), 2)]
        return [f'v_fma_f32 {vr(v)}, {vr(v)}, s{sCS}, -{vr(mc)}' for v in vals]
    exp_l = lambda vals: [f'v_exp_f32 {vr(v)}, {vr(v)}' for v in vals]
    cvt_l = lambda dst, src, n: [f'v_cvt_pk_bf16_f32 {vr(dst+k)}, {vr(src+2*k)}, {vr(src+2*k+1)}' for k in range(n)]

    def vread(dst, t, W):
        return f'ds_read_b64_tr_b16 {vr(dst,2)}, {vr(VA+t)} offset:{4096*W}'
    a(f's_cmp_lt_u32 s{sWV}, 4')
    a('s_cbranch_scc1 L_gk')
    sprefetch(spf[1])
    only(FW, 'L_notag')
    a('s_setprio 3')
    a(f's_lshl_b32 s{sT0}, s{sH}, 3')
    a(f'v_mov_b32 {vr(S+4)}, s{sT0}')
    a(f'v_mov_b32 {vr(S+5)}, s{sN}')
    a(f'v_mov_b32 {vr(S+6)}, {LCNT}')
    a(f'global_load_dword {vr(S+7)}, {vr(S+4)}, s[16:17]')
    a('s_setprio 0')
    issue_qa()
    a('s_waitcnt vmcnt(4)')
    if opt.get('forcefb'): a(f'v_mov_b32 {vr(S+7)}, 0')
    a(f's_cmp_eq_u32 s{sC}, {CC}')
    a('s_cselect_b64 vcc, -1, 0')
    a(f'v_cndmask_b32 {vr(S+7)}, {vr(S+7)}, {vr(S+5)}, vcc')
    a('s_mov_b64 exec, 1')
    a(f'ds_write_b32 {vr(S+6)}, {vr(S+7)} offset:4')
    a('s_mov_b64 exec, -1')
    a('s_branch L_tagdone')
    a.label('L_notag')
    issue_qa()
    if v2h: a('s_waitcnt vmcnt(4)')
    a.label('L_tagdone')
    a('s_waitcnt lgkmcnt(0)')
    a(f'v_add_u32 {vr(vDQk)}, 0x1000, {vr(vDQ)}')
    stamp(fine)
    a('s_barrier')
    for t in range(8):
        a(vread(X[t+1], t, 0)); a(vread(X[t+1]+2, t, 1))
    a('s_branch L_gdone')
    a.label('L_gk')
    for ks in range(4):
        a(f'ds_read_b128 {vr(QG+4*ks,4)}, {vr(vAG)} offset:{1024+64*ks}')
    issue_qa()
    a('s_waitcnt lgkmcnt(0)')
    for T in range(4):
        for ks in range(4):
            a(mfma(S+4*T, kf(T,ks), QG+4*ks, '0' if ks == 0 else S+4*T))
    a(f'v_add_u32 {vr(vDQk)}, 0x1000, {vr(vDQ)}')
    a.nop(7)
    for l in maxtree_l([S+x for x in range(16)], vM): a(l)
    xred(vM, vT)
    a(f'v_mul_f32 {vr(vM)}, s{sCS}, {vr(vM)}')
    for l in fma_l([S+x for x in range(16)], vM): a(l)
    for l in exp_l([S+x for x in range(16)]): a(l)
    a.nop(1)
    a(f'v_add_f32 {vr(vT)}, {vr(S)}, {vr(S+1)}')
    for x in range(2, 16):
        a(f'v_add_f32 {vr(vT)}, {vr(vT)}, {vr(S+x)}')
    for l in cvt_l(S, S, 8): a(l)
    xred(vT, vT0, 'v_add_f32')
    a(f'ds_write_b64 {vr(vNEG)}, {vr(vM,2)}')
    a(f'v_mbcnt_lo_u32_b32 {vr(vT0)}, -1, 0')
    a(f's_lshl_b32 s{sT0}, s{sWV}, 10')
    a(f'v_lshl_add_u32 {vr(vT0)}, {vr(vT0)}, 3, s{sT0}')
    if stamps and fine:
        nst[0] -= 1
        stamp()
    a('s_waitcnt vmcnt(4) lgkmcnt(0)')
    a('s_barrier')
    gb = [QB + 4*n for n in range(4)] + [S + 8 + 4*n for n in range(4)]
    for t in range(8):
        a(vread(gb[t], t, 2)); a(vread(gb[t]+2, t, 3))
    for t in range(8):
        a('s_waitcnt lgkmcnt(14)')
        a(mfma(gb[t], S+4, gb[t], '0'))
        a(vread(X[t+1], t, 0)); a(vread(X[t+1]+2, t, 1))
    for t in range(8):
        a(f's_waitcnt lgkmcnt({14-2*t})')
        a(mfma(gb[t], S, X[t+1], gb[t]))
    a('s_mov_b64 exec, 1')
    a(f'v_mov_b32 {vr(S)}, {LCNT}')
    a(f'v_mov_b32 {vr(S+1)}, 1')
    a('s_mov_b64 exec, 0xffff')
    for t in range(8):
        a(f'ds_write_b64 {vr(vT0)}, {vr(gb[t],2)} offset:{PART+128*t}')
    a('s_mov_b64 exec, 1')
    a(f'ds_add_u32 {vr(S)}, {vr(S+1)}')
    a('s_mov_b64 exec, -1')
    a.label('L_gdone')
    stamp()

    emit = lambda ls: [a(l) for l in ls]
    def combine(og, mg, tm):
        NP = len(og)
        emit(maxtree_l([mg[n] for n in range(NP)], tm))
        for n in range(NP):
            a(f'v_sub_f32 {vr(mg[n])}, {vr(mg[n])}, {vr(tm)}')
        for n in range(NP):
            a(f'v_exp_f32 {vr(mg[n])}, {vr(mg[n])}')
        a.nop(1)
        for e in range(4):
            a(f'v_mul_f32 {vr(og[0][e])}, {vr(og[0][e])}, {vr(mg[0])}')
        a(f'v_mul_f32 {vr(mg[0]+1)}, {vr(mg[0]+1)}, {vr(mg[0])}')
        for n in range(1, NP):
            for e in range(4):
                a(f'v_fmac_f32 {vr(og[0][e])}, {vr(og[n][e])}, {vr(mg[n])}')
            a(f'v_fmac_f32 {vr(mg[0]+1)}, {vr(mg[n]+1)}, {vr(mg[n])}')

    def issue_qb():
        for ks in range(4):
            a(f'buffer_load_dwordx4 {vr(QB+4*ks,4)}, {vr(vDQk)}, {sr(sQ,4)}, 0 offen offset:{64*ks} {qpol}')
        a(f'v_mov_b32 {vr(vDQk)}, 0')
    issue_qb()
    if opt.get('otouch'):
        only(FW, 'L_nootouch')
        a(f's_mov_b32 m0, {PARTML+256}')
        a('s_mov_b64 exec, 1')
        a(f'buffer_load_dword {vr(vOO)}, {sr(sO,4)}, 0 offen lds')
        a(f'buffer_load_dword {vr(vOO)}, {sr(sO,4)}, 0 offen offset:512 lds')
        a('s_mov_b64 exec, -1')
        a('s_waitcnt vmcnt(6)')
        a('s_branch L_tileA')
        a.label('L_nootouch')
    a(f's_cmp_eq_u32 s{sWV}, {RW}')
    a('s_cbranch_scc1 L_reduce')
    a(f's_cmp_eq_u32 s{sCMB}, 0')
    a('s_cbranch_scc1 L_noflag')
    a(f'v_mov_b32 {vr(vT0)}, {LNON}')
    a(f'ds_read_b32 {vr(vT0)}, {vr(vT0)}')
    a('s_waitcnt lgkmcnt(0)')
    a(f'v_readfirstlane_b32 s{sN}, {vr(vT0)}')
    a.label('L_noflag')
    a('s_waitcnt vmcnt(4)')
    a('s_branch L_tileA')
    a.label('L_reduce')
    R0 = S
    a(f'v_mbcnt_lo_u32_b32 {vr(R0)}, -1, 0')
    a(f'v_mbcnt_hi_u32_b32 {vr(R0)}, -1, {vr(R0)}')
    a(f'v_lshrrev_b32 {vr(R0+1)}, 5, {vr(R0)}')
    a(f'v_and_b32 {vr(R0+3)}, 31, {vr(R0)}')
    a(f'v_lshlrev_b32 {vr(R0+3)}, 5, {vr(R0+3)}')
    a(f'v_lshl_add_u32 {vr(R0+3)}, {vr(R0+1)}, 2, {vr(R0+3)}')
    a(f'v_lshlrev_b32 {vr(R0+1)}, 3, {vr(R0+1)}')
    a(f'v_add_u32 {vr(R0+1)}, {PARTML}, {vr(R0+1)}')
    a(f'v_lshlrev_b32 {vr(R0)}, 4, {vr(R0)}')
    a(f'v_mov_b32 {vr(R0+2)}, {LCNT}')
    a(f's_mov_b32 s{sCNT}, 0')
    a.label('L_lspin')
    a(f'ds_read_b64 {vr(S+4,2)}, {vr(R0+2)}')
    a(f's_add_u32 s{sCNT}, s{sCNT}, 1')
    a('s_waitcnt lgkmcnt(0)')
    a(f'v_readfirstlane_b32 s{sT0}, {vr(S+4)}')
    a(f'v_readfirstlane_b32 s{sN}, {vr(S+5)}')
    a(f's_cmp_ge_u32 s{sCNT}, 0x100000')
    a('s_cbranch_scc1 L_lok')
    a(f's_cmp_lt_u32 s{sT0}, 4')
    a('s_cbranch_scc1 L_lspin')
    a.label('L_lok')
    mg = [S+4, S+6, O, O+2]
    G0 = S + 8
    og = [[G0+4*n+e for e in range(4)] for n in range(4)]
    for n in range(4):
        a(f'ds_read_b64 {vr(mg[n],2)}, {vr(R0+1)} offset:{16*n}')
    for n in range(4):
        if n: a(f'v_add_u32 {vr(R0+3)}, 1024, {vr(R0+3)}')
        a(f'ds_read2_b32 {vr(G0+4*n,2)}, {vr(R0+3)} offset0:0 offset1:2')
        a(f'ds_read2_b32 {vr(G0+4*n+2,2)}, {vr(R0+3)} offset0:4 offset1:6')
    a('s_waitcnt lgkmcnt(0)')
    combine(og, mg, R0+1)
    a(f'v_mov_b32 {vr(G0+4)}, {vr(G0+3)}')
    a(f'v_mov_b32 {vr(G0+5)}, {vr(R0+1)}')
    a(f'v_mov_b32 {vr(G0+6)}, {vr(mg[0]+1)}')
    a(f'v_mov_b32 {vr(G0+7)}, s{sN}')
    a(f'v_mov_b32 {vr(G0+3)}, s{sN}')
    a(f'buffer_store_dwordx4 {vr(G0+4,4)}, {vr(R0)}, {sr(sW,4)}, s42 offen offset:1024 sc0 sc1')
    a(f'buffer_store_dwordx4 {vr(G0,4)}, {vr(R0)}, {sr(sW,4)}, s42 offen sc0 sc1')
    a(f's_cmp_lg_u32 s{sN}, 0')
    a('s_cbranch_scc1 L_tagged')
    a('s_waitcnt vmcnt(0)')
    a(f's_lshl_b32 s{sT0}, s{sH}, 3')
    a(f's_lshl_b32 s{sT1}, 1, s{sC}')
    a(f'v_mov_b32 {vr(R0)}, s{sT0}')
    a(f'v_mov_b32 {vr(R0+1)}, s{sT1}')
    a('s_mov_b64 exec, 1')
    a(f'global_atomic_or {vr(R0)}, {vr(R0+1)}, s[16:17] offset:4 sc1')
    a('s_mov_b64 exec, -1')
    a.label('L_tagged')
    a('s_waitcnt vmcnt(6)')
    a.label('L_tileA')
    def yprio(tag):
        if yp == tag:
            a(f's_cmp_lt_u32 s{sWV}, 4')
            a(f's_cbranch_scc1 L_yp{tag}')
            a('s_setprio 1')
            a.label(f'L_yp{tag}')
    yprio('a')
    stamp()

    def inter(ms, vs, per=2):
        vs = list(vs)
        for m in ms:
            a(m)
            for _ in range(per):
                if vs: a(vs.pop(0))
        for v in vs: a(v)

    HB = kf(2, 0)
    def hand_loads():
        a(f'v_mbcnt_lo_u32_b32 {vr(KG)}, -1, 0')
        a(f'v_mbcnt_hi_u32_b32 {vr(KG)}, -1, {vr(KG)}')
        a(f'v_lshlrev_b32 {vr(KG)}, 4, {vr(KG)}')
        for n in range(8):
            a(f's_movk_i32 s{sT0}, {2048*n}')
            a(f'buffer_load_dwordx4 {vr(HB+8*n,4)}, {vr(KG)}, {sr(sW,4)}, s{sT0} offen sc0 sc1')
            a(f'buffer_load_dwordx4 {vr(HB+8*n+4,4)}, {vr(KG)}, {sr(sW,4)}, s{sT0} offen offset:1024 sc0 sc1')

    buf = [kf(0, n) for n in range(4)] + [QA + 4*n for n in range(4)]
    SLOTW = {0: [0, 1, 2, 3, 4], 1: [4, 5, 2, 3, 1]}
    def qk(tau, sl):
        Q = QA if tau == 0 else QB
        if sl == 'G':
            return [mfma(S+20, KG+4*ks, Q+4*ks, '0' if ks == 0 else S+20) for ks in range(4)]
        W = SLOTW[tau][sl]
        c0 = BLO if W == tau else BHI if W == tau + 4 else '0'
        return [mfma(S+4*sl, kf(W,ks), Q+4*ks, c0 if ks == 0 else S+4*sl) for ks in range(4)]
    def edge_test(tau, lab):
        a(f's_sub_u32 s{sT0}, s{sQB}, {48 - 16*tau}')
        a(f's_cmp_lt_u32 s{sT0}, 1968')
        a(f's_cbranch_scc1 {lab}')
    def edge_mask(tau, tr):
        a(f'v_mbcnt_lo_u32_b32 {vr(tr)}, -1, 0')
        a(f'v_mbcnt_hi_u32_b32 {vr(tr)}, -1, {vr(tr)}')
        a(f'v_lshrrev_b32 {vr(tr)}, 4, {vr(tr)}')
        a(f's_sub_u32 s{sT0}, s{sQB}, 34')
        a(f's_movk_i32 s{sT1}, 2046')
        a(f'v_lshl_add_u32 {vr(tr)}, {vr(tr)}, 2, s{sT0}')
        a(f'v_mov_b32 {vr(vM)}, 0x{NEG:08x}')
        a('s_nop 3')
        for sl in range(5):
            for r in range(4):
                a(f'v_add_u32 {vr(vT)}, {16*SLOTW[tau][sl]+r}, {vr(tr)}')
                a(f'v_cmp_gt_u32 vcc, s{sT1}, {vr(vT)}')
                a('s_nop 1')
                a(f'v_cndmask_b32 {vr(S+4*sl+r)}, {vr(vM)}, {vr(S+4*sl+r)}, vcc')
        for l in maxtree_l([S+x for x in range(22)], vM): a(l)
    def epi(t, tau=0):
        l = [f'v_mul_f32 {vr(O+4*t+e)}, {vr(O+4*t+e)}, {vr(vT0)}' for e in range(4)]
        l += [f'v_cvt_pk_bf16_f32 {vr(O+4*t)}, {vr(O+4*t)}, {vr(O+4*t+1)}',
              f'v_cvt_pk_bf16_f32 {vr(O+4*t+1)}, {vr(O+4*t+2)}, {vr(O+4*t+3)}',
              f'ds_write_b64 {vr(vSW)}, {vr(O+4*t,2)} offset:{32*t + 16*STGP*tau}']
        return l
    def stage_reads(tau=0, R=O):
        return [f'ds_read_b128 {vr(R+4*j,4)}, {vr(vSR)} offset:{4*STGP*j + 16*STGP*tau}' for j in range(4)]
    def stores(tau, R=O, extra=0):
        for j in range(4):
            a(f's_waitcnt lgkmcnt({3-j+extra})')
            if tau == 0 and j == 0: a(f's_mov_b64 exec, {sr(sEX,2)}')
            a(f'buffer_store_dwordx4 {vr(R+4*j,4)}, {vr(vOO)}, {sr(sO,4)}, s{sTOFF if tau else sZERO} offen offset:{1024*j} {stpol}')
            if tau == 0 and j == 0: a('s_mov_b64 exec, -1')
    RA = kf(1, 0)
    def late_a():
        for l in stage_reads(0, RA): a(l)
        stores(0, RA)
    def softmax_pv(tau):
        m = vM
        xred(m, vT)
        a(f'v_mul_f32 {vr(m)}, s{sCS}, {vr(m)}')
        set0 = [S+x for x in range(8)]; set1 = [S+8+x for x in range(8)]; set2 = [S+16+x for x in range(6)]
        for l in fma_l(set0, m): a(l)
        f2 = fma_l(set2, m); f1 = fma_l(set1, m)
        for l in exp_l(set0): a(l)
        a(f2[0])
        for l in cvt_l(S, S, 4): a(l)
        a(f2[1])
        a('s_waitcnt lgkmcnt(0)' if tau == 1 else 's_waitcnt lgkmcnt(8)')
        if tau == 1 and apos == 1: late_a()
        ONES, LACC = S+4, S+20
        v2 = f2[2:] + exp_l(set2) + [f'v_mov_b32 {vr(ONES+n)}, 0x3f803f80' for n in range(4)] + cvt_l(S+16, S+16, 3) \
             + [f'v_mov_b32 {vr(S+19)}, 0', f'v_cndmask_b32 {vr(S+18)}, 0, {vr(S+18)}, {sr(sKG0,2)}']
        inter([mfma(X[t], X[t+1], S, '0') for t in range(8)], v2 + f1[:2])
        v1 = f1[2:] + exp_l(set1) + [f'v_mov_b32 {vr(vT0)}, 0'] + cvt_l(S+8, S+8, 4)
        inter([mfma(O+4*t, VG+4*t, S+16, O+4*t) for t in range(8)], v1)
        a(mfma(LACC, ONES, S, '0'))
        a(mfma(LACC, ONES, S+16, LACC))
        a(mfma(LACC, ONES, S+8, LACC))
        if tau == 0:
            a('s_waitcnt lgkmcnt(0)')
        for t in range(8):
            a(mfma(O+4*t, buf[t], S+8, O+4*t))
            if tau == 0: a(vread(VG+4*t, t, 1))
        a(f'v_rcp_f32 {vr(vT0)}, {vr(LACC)}')

    late = []
    for t in range(8):
        late += [vread(buf[t], t, 2), vread(buf[t]+2, t, 3)]
    vgr = [vread(VG+4*t, t, 4) for t in range(8)]
    edge_test(0, 'L_fastA')
    for l in vgr: a(l)
    for sl in ('G', 0, 1, 2, 3, 4):
        for l in qk(0, sl): a(l)
    for l in late: a(l)
    edge_mask(0, vT0)
    a('s_branch L_joinA')
    a.label('L_fastA')
    m = vM
    inter(qk(0, 0) + qk(0, 'G'), vgr, per=1)
    inter(qk(0, 1) + qk(0, 2), late[:8], per=1)
    inter(qk(0, 3), maxtree_l([S+20, S+21, S+0], m) + maxtree_l([S+1, S+2, S+3, S+4, S+5, S+6], m, False), per=1)
    inter(qk(0, 4), maxtree_l([S+7, S+8, S+9, S+10], m, False), per=1)
    for l in late[8:11]: a(l)
    for l in maxtree_l([S+11, S+12], m, False): a(l)
    for l in late[11:13]: a(l)
    for l in maxtree_l([S+13, S+14, S+15], m, False): a(l)
    for l in late[13:]: a(l)
    for l in maxtree_l([S+16, S+17, S+18, S+19], m, False): a(l)
    a.label('L_joinA')
    yprio('s')
    stamp(fine)
    softmax_pv(0)
    stamp(fine)
    ep = []
    for t in range(8): ep += epi(t)
    if apos == 0: ep += stage_reads()
    xb = []
    for t in range(8): xb += [vread(X[t+1], t, 4), vread(X[t+1]+2, t, 5)]
    def qb_wait(n):
        a(f's_waitcnt vmcnt({n+2})')
        if opt.get('otouch'):
            a(f's_and_b32 s{sT0}, s{sWV}, 3')
            a(f's_cmp_eq_u32 s{sT0}, 3')
        else:
            a(f's_cmp_eq_u32 s{sWV}, {RW}')
        a('s_cbranch_scc1 L_qbw')
        a(f's_waitcnt vmcnt({n})')
        a.label('L_qbw')
    if merge == 'hyb':
        a('s_nop 0')
        for l in ep: a(l)
        qb_wait(0)
        stamp()
        spos = int(opt.get('spos', 0))
        edge_test(1, 'L_fastB')
        stores(0)
        for sl in ('G', 0, 1, 2, 3, 4):
            for l in qk(1, sl): a(l)
        for l in xb: a(l)
        edge_mask(1, vT0)
        a('s_branch L_joinB')
        a.label('L_fastB')
        if spos == 0:
            stores(0)
            inter(qk(1, 'G') + qk(1, 0) + qk(1, 1) + qk(1, 2), xb, per=1)
        elif spos == 1:
            for l in qk(1, 'G') + qk(1, 0): a(l)
            stores(0)
            inter(qk(1, 1) + qk(1, 2), xb, per=2)
        else:
            for l in qk(1, 'G') + qk(1, 0) + qk(1, 1) + qk(1, 2): a(l)
        inter(qk(1, 3), maxtree_l([S+20, S+21, S+0], m) + maxtree_l([S+1, S+2, S+3, S+4, S+5, S+6], m, False), per=1)
        inter(qk(1, 4), maxtree_l([S+7, S+8], m, False), per=1)
        a.nop(1)
        for l in maxtree_l([S+9, S+10, S+11, S+12], m, False): a(l)
        a.nop(1)
        for l in maxtree_l([S+13, S+14, S+15], m, False): a(l)
        if spos == 2:
            stores(0)
            for l in xb: a(l)
        else:
            a.nop(3)
        for l in maxtree_l([S+16, S+17, S+18, S+19], m, False): a(l)
    elif not merge:
        a('s_nop 0')
        for l in ep: a(l)
        stores(0)
        for l in xb: a(l)
        qb_wait(4)
        stamp()
        edge_test(1, 'L_fastB')
        for sl in ('G', 0, 1, 2, 3, 4):
            for l in qk(1, sl): a(l)
        edge_mask(1, vT0)
        a('s_branch L_joinB')
        a.label('L_fastB')
        for sl in ('G', 0, 1, 2):
            for l in qk(1, sl): a(l)
        inter(qk(1, 3), maxtree_l([S+20, S+21, S+0], m) + maxtree_l([S+1, S+2], m, False), per=1)
        inter(qk(1, 4), maxtree_l([S+3, S+4, S+5, S+6, S+7, S+8], m, False), per=1)
        a.nop(1)
        for l in maxtree_l([S+9, S+10, S+11, S+12], m, False): a(l)
        a.nop(1)
        for l in maxtree_l([S+13, S+14, S+15], m, False): a(l)
        a.nop(2)
        for l in maxtree_l([S+16, S+17, S+18, S+19], m, False): a(l)
    else:
        qb_wait(0)
        yprio('m')
        stamp()
        edge_test(1, 'L_fastB')
        for l in ep: a(l)
        if apos == 0: stores(0)
        for sl in (0, 1, 2, 3, 4, 'G'):
            for l in qk(1, sl): a(l)
        for l in xb: a(l)
        edge_mask(1, vT0)
        a('s_branch L_joinB')
        a.label('L_fastB')
        ms = []
        for sl in (0, 1, 2, 3, 4, 'G'): ms += qk(1, sl)
        inter(ms, ep, per=3)
        for l in maxtree_l([S+x for x in range(15)], vT0): a(l)
        if apos == 0: stores(0)
        for l in xb: a(l)
        a(f'v_max3_f32 {vr(vM)}, {vr(vT0)}, {vr(S+15)}, {vr(S+16)}')
        for l in maxtree_l([S+17, S+18, S+19, S+20, S+21], vM, False): a(l)
    a.label('L_joinB')
    yprio('b')
    stamp()
    a(f's_cmp_eq_u32 s{sCMB}, 0')
    a('s_cbranch_scc1 L_nohand')
    hand_loads()
    a.label('L_nohand')
    softmax_pv(1)
    stamp(fine)
    if apos == 2:
        late_a()
    a('s_nop 0')
    if apos == 3:
        for l in stage_reads(0, RA): a(l)
    for t in range(8):
        for l in epi(t, 1): a(l)
    for l in stage_reads(1): a(l)
    if apos == 3:
        stores(0, RA, extra=4+8) if False else None
        for j in range(4):
            if j == 0: a(f's_mov_b64 exec, {sr(sEX,2)}')
            if j == 0: a('s_waitcnt lgkmcnt(4)')
            a(f'buffer_store_dwordx4 {vr(RA+4*j,4)}, {vr(vOO)}, {sr(sO,4)}, s{sZERO} offen offset:{1024*j} {stpol}')
            if j == 0: a('s_mov_b64 exec, -1')
    stores(1)
    stamp()

    a(f's_cmp_eq_u32 s{sCMB}, 0')
    a('s_cbranch_scc1 L_fin')
    a(f's_waitcnt vmcnt({4 if apos == 0 else 8})')
    a(f's_mov_b32 s{sCNT}, 0')
    a(f's_mov_b32 s{sT2}, 0')
    a.label('L_chk')
    a(f's_mov_b32 s{sT3}, s{sT2}')
    for n in range(8):
        a(f'v_cmp_eq_u32 vcc, s{sN}, {vr(HB+8*n+3)}')
        a(f'v_cmp_eq_u32 s[60:61], s{sN}, {vr(HB+8*n+7)}')
        a('s_nop 0')
        a('s_and_b64 vcc, vcc, s[60:61]')
        a('s_cmp_eq_u64 vcc, exec')
        a(f's_cselect_b32 s{sT0}, {1 << n}, 0')
        a(f's_or_b32 s{sT3}, s{sT3}, s{sT0}')
    a(f's_add_u32 s{sCNT}, s{sCNT}, 1')
    a(f's_cmp_eq_u32 s{sT3}, 0xff')
    a('s_cbranch_scc1 L_ready')
    a(f's_cmp_ge_u32 s{sCNT}, 0x40000')
    a('s_cbranch_scc1 L_ready')
    a(f's_lshl_b32 s{sT0}, s{sH}, 3')
    a(f'v_mov_b32 {vr(KG+1)}, s{sT0}')
    a(f'global_load_dword {vr(KG+2)}, {vr(KG+1)}, s[16:17] offset:4 sc0 sc1')
    a('s_waitcnt vmcnt(0)')
    a(f'v_readfirstlane_b32 s{sT2}, {vr(KG+2)}')
    hand_loads()
    a('s_waitcnt vmcnt(0)')
    a('s_branch L_chk')
    a.label('L_ready')
    hog = [[HB+8*n, HB+8*n+1, HB+8*n+2, HB+8*n+4] for n in range(8)]
    hmg = [HB+8*n+5 for n in range(8)]
    combine(hog, hmg, X8)
    a(f'v_rcp_f32 {vr(X8)}, {vr(hmg[0]+1)}')
    a(f'v_lshrrev_b32 {vr(KG)}, 1, {vr(KG)}')
    for e in range(4):
        a(f'v_mul_f32 {vr(hog[0][e])}, {vr(hog[0][e])}, {vr(X8)}')
    a(f'v_cvt_pk_bf16_f32 {vr(X8+2)}, {vr(hog[0][0])}, {vr(hog[0][1])}')
    a(f'v_cvt_pk_bf16_f32 {vr(X8+3)}, {vr(hog[0][2])}, {vr(hog[0][3])}')
    a(f'buffer_store_dwordx2 {vr(X8+2,2)}, {vr(KG)}, {sr(sO,4)}, 0 offen {stpol}')
    a.label('L_fin')
    if stamps:
        stamp()
        a('s_waitcnt vmcnt(0)')
        stamp()
        if opt.get('clk'):
            a('s_memtime s[98:99]')
            a('s_waitcnt lgkmcnt(0)')
            a('s_sub_u32 s98, s98, s96')
            a(f's_add_u32 s{64+2*nst[0]}, s98, s64')
            nst[0] += 1
        a(f's_lshl_b32 s{sT0}, s2, 3')
        a(f's_add_u32 s{sT0}, s{sT0}, s{sWV}')
        a(f's_lshl_b32 s{sT0}, s{sT0}, 6')
        a(f's_add_u32 s{sT0}, s{sT0}, 0x100000')
        a(f's_add_u32 s{sW}, s18, s{sT0}')
        a(f's_addc_u32 s{sW+1}, s19, 0')
        a(f'v_mov_b32 v1, 0')
        a('s_mov_b64 exec, 1')
        for n in range(min(16, nst[0])):
            a(f'v_mov_b32 v2, s{64+2*n}')
            a(f'buffer_store_dword v2, v1, {sr(sW,4)}, 0 offen offset:{4*n}')
        if 'leak' in opt:
            k = int(opt['leak'])
            a(f's_sub_u32 s{sT0}, s{64+2*k}, s64')
            a(f's_lshl_b32 s{sT0}, s{sT0}, 2')
            if opt.get('leakskew'):
                a.label('L_pre')
                a('s_memrealtime s[100:101]')
                a('s_waitcnt lgkmcnt(0)')
                a(f's_sub_u32 s{sT1}, s100, s64')
                a(f's_cmp_lt_u32 s{sT1}, 3000')
                a('s_cbranch_scc1 L_pre')
                a('s_mov_b64 exec, -1')
                a('v_mbcnt_lo_u32_b32 v3, -1, 0')
                a('v_and_b32 v3, 31, v3')
                a('v_lshlrev_b32 v3, 3, v3')
                a('global_load_dword v4, v3, s[16:17] sc0 sc1')
                a('s_waitcnt vmcnt(0)')
                a('v_readlane_b32 s20, v4, 0')
                a('s_mov_b32 s21, 0'); a('s_mov_b32 s22, 0')
                for n in range(1, 32):
                    a(f'v_readlane_b32 s23, v4, {n}')
                    a('s_nop 0')
                    a('s_sub_i32 s23, s23, s20')
                    a('s_min_i32 s21, s21, s23')
                    a('s_max_i32 s22, s22, s23')
                a(f's_sub_u32 s{sT0}, s22, s21')
                a(f's_min_u32 s{sT0}, s{sT0}, 2000')
                a(f's_lshl_b32 s{sT0}, s{sT0}, 2')
            if opt.get('leakxcc'):
                a('s_getreg_b32 s61, hwreg(HW_REG_XCC_ID, 0, 4)')
                a(f's_bfe_u32 s60, s{sN}, 0x40001')
                a('s_cmp_lg_u32 s60, s61')
                a(f's_cselect_b32 s{sT0}, 2000, 0')
            if opt.get('leakcnt'):
                a(f's_mul_i32 s{sT0}, s{sCNT}, 500')
                a(f's_mul_i32 s{sT0}, s{sT0}, s{sCMB}')
            if 'leakh' in opt:
                lo, hi = opt['leakh'].split(',')
                a(f's_sub_u32 s{sT1}, s{sH}, {lo}')
                a(f's_cmp_lt_u32 s{sT1}, {int(hi)-int(lo)}')
                a(f's_cselect_b32 s{sT0}, s{sT0}, 0')
            if 'leakwg' in opt:
                a(f's_cmp_eq_u32 s2, {opt["leakwg"]}')
                a(f's_cselect_b32 s{sT0}, s{sT0}, 0')
            if 'leakx' in opt:
                a(f's_getreg_b32 s{sT1}, hwreg(HW_REG_XCC_ID, 0, 4)')
                a(f's_lshr_b32 s{sT1}, {opt["leakx"]}, s{sT1}')
                a(f's_bitcmp1_b32 s{sT1}, 0')
                a(f's_cselect_b32 s{sT0}, s{sT0}, 0')
            if 'leakw' in opt:
                a(f's_lshr_b32 s{sT1}, {opt["leakw"]}, s{sWV}')
                a(f's_bitcmp1_b32 s{sT1}, 0')
                a(f's_cselect_b32 s{sT0}, s{sT0}, 0')
            a(f"s_add_u32 s{sT0}, s{sT0}, {opt.get('spin', 5000)}")
            a.label('L_spin')
            a('s_memrealtime s[100:101]')
            a('s_waitcnt lgkmcnt(0)')
            a(f's_sub_u32 s{sT1}, s100, s64')
            a(f's_cmp_lt_u32 s{sT1}, s{sT0}')
            a('s_cbranch_scc1 L_spin')
    a.label('L_end')
    a('s_endpgm')
    if cpf:
        a('.fill 4096, 4, 0xbf800000')

    check(a.lines)
    if stamps: print('stamps', nst[0])
    head = f'''; windowed + global-token attention, B=1 H=32 S=2048 D=128 bf16 (window 32, 2 global tokens)
; @launch grid=(256,1,1) block=(512,1,1) lds=163840
.amdgcn_target "amdgcn-amd-amdhsa--gfx950"
.text
.globl {NAME}
.p2align 8
.type {NAME},@function
{NAME}:
'''
    tail = f'''.section .rodata,"a"
.p2align 6
.amdhsa_kernel {NAME}
  .amdhsa_next_free_vgpr 256
  .amdhsa_next_free_sgpr {102 if stamps else 64}
  .amdhsa_accum_offset 256
  .amdhsa_group_segment_fixed_size 0
  .amdhsa_kernarg_size 64
  .amdhsa_user_sgpr_count 2
  .amdhsa_user_sgpr_kernarg_segment_ptr 1
  .amdhsa_system_sgpr_workgroup_id_x 1
.end_amdhsa_kernel
'''
    return head + a.text() + tail

if __name__ == '__main__':
    out = sys.argv[1]
    opt = {}
    for kv in sys.argv[2:]:
        k, v = kv.split('=', 1)
        opt[k] = {'True': True, 'False': False}.get(v, v.replace('+', ' '))
    open(out, 'w').write(gen(opt))
```

```python
import sys, math, struct
from asmlib import *

NAME = 'standalone__global_local_windowed_global_tokens__prompt_kernel'
def f2u(x): return struct.unpack('<I', struct.pack('<f', x))[0]

def gen(opt):
    a = Asm()
    NEG = 0xFF000000
    CSC = f2u(128 ** -0.5 * math.log2(math.e))
    KOFF, VOFF, SOFF = 0, 73728, 155648
    apos = int(opt.get('apos', 0))
    PART, STG = 0, 4096
    PARTML, LCNT, LNON = SOFF + 3072, SOFF + 3072 + 128, SOFF + 3072 + 132
    STGP = 272
    ldpol = opt.get('ldpol', '')
    qpol = opt.get('qpol', '')
    stpol = opt.get('stpol', 'sc0 sc1 nt')
    pk = opt.get('pk', True)
    N1 = int(opt.get('n1', 10))
    yp = opt.get('yp', '')
    RW = int(opt.get('rw', 3))
    FW = 7
    SW = 5
    CW, CC = int(opt.get('cw', 1)), 3
    merge = opt.get('merge', True)
    sQ, sK, sV, sO, sW = 20, 24, 28, 32, 36
    sWV, sH, sC, sHO, sQ0B = 40, 43, 44, 45, 46
    sT0, sT1, sT2, sT3 = 47, 48, 49, 50
    sBK = 62
    HW = 4
    sCS = 52; sKG0 = 54; sQB = 51; sEX = 56; sCMB = 58; sCNT = 59; sN = 63; sTOFF = 41; sZERO = 3
    VA = 0
    vSW, vSR, vOO, vT0 = 8, 9, 10, 11
    X8 = 12
    KF = 16; KG = 112; QA, QB = 128, 144; VG = 160; O = 192; S = 224
    BLO, BHI = 248, 252
    kf = lambda W, ks: KF + 16 * W + 4 * ks
    X = [O + 4 * n for n in range(8)] + [X8]
    vLANE, vI, vKGp, vDK, vDV, vDQ, vAG, vNEG, vAK = O+16, O+17, O+18, O+19, O+20, O+21, O+22, O+23, O+24
    vAVG, t1, t2, t3 = O+28, O+29, O+30, O+31
    vDQk = VG + 7
    vFLAG = VG + 3
    vM, vT = S + 22, S + 23

    stamps = opt.get('stamps', False)
    fine = opt.get('fine', False)
    nst = [0]
    def stamp(on=True):
        if stamps and on:
            a(f's_memrealtime s[{64+2*nst[0]}:{65+2*nst[0]}]')
            if nst[0]: a('s_waitcnt lgkmcnt(0)')
            nst[0] += 1
    M16 = 'v_mfma_f32_16x16x32_bf16'
    def mfma(d, x, y, c):
        return f'{M16} {vr(d,4)}, {vr(x,4)}, {vr(y,4)}, {c if isinstance(c,str) else vr(c,4)}'
    def only(w, lab):
        a(f's_cmp_lg_u32 s{sWV}, {w}')
        a(f's_cbranch_scc1 {lab}')

    stamp()
    if opt.get('clk'): a('s_memtime s[96:97]')
    a('s_load_dwordx16 s[4:19], s[0:1], 0')
    a(f'v_readfirstlane_b32 s{sWV}, v0')
    a('s_cmp_ge_u32 s2, 256')
    a('s_cbranch_scc1 L_end')
    a(f'v_lshrrev_b32 {vr(t1)}, 4, v0')
    a(f'v_xor_b32 {vr(vDK)}, {vr(t1)}, v0')
    a(f'v_and_b32 {vr(vDK)}, 15, {vr(vDK)}')
    a(f'v_lshl_add_u32 {vr(vDK)}, {vr(t1)}, 4, {vr(vDK)}')
    a(f's_bfe_u32 s{sC}, s2, 0x30003')
    a(f's_lshl_b32 s{sQ0B}, s{sC}, 16')
    a(f'v_lshl_add_u32 {vr(vDK)}, {vr(vDK)}, 4, s{sQ0B}')
    a('s_and_b32 s41, s2, 7')
    a(f's_lshr_b32 s{sH}, s2, 6')
    a(f's_lshl2_add_u32 s{sH}, s41, s{sH}')
    a(f's_lshl_b32 s{sHO}, s{sH}, 19')
    a(f's_lshl_b32 m0, s{sWV}, 4')
    a(f's_mov_b32 s{sK+2}, 0x80000')
    a(f's_mov_b32 s{sK+3}, 0x20000')
    a(f's_movk_i32 s{sCNT}, 17')
    cpf = opt.get('cpf', True)
    a.label('L_base')
    if cpf is True:
        a(f's_getpc_b64 s[{sEX}:{sEX+1}]')
        a(f'v_lshlrev_b32 v1, 5, v0')
        a(f'global_load_dword {vr(X8)}, v1, s[{sEX}:{sEX+1}]')
    a(f's_cmp_ge_u32 s{sWV}, 256')
    a('s_cbranch_scc1 L_helper')
    a('s_waitcnt lgkmcnt(0)')
    stamp()
    a(f's_add_u32 s{sK}, s6, s{sHO}')
    a(f's_addc_u32 s{sK+1}, s7, 0')
    thr = int(opt.get('thr', 0)); tl = [0]
    if thr: a('s_getreg_b32 s1, hwreg(HW_REG_XCC_ID, 0, 4)')
    def throttle():
        if thr:
            a('s_bitcmp1_b32 s1, 0')
            a(f's_cbranch_scc{opt.get("thpar", 1)} L_th{tl[0]}')
            a(f's_waitcnt vmcnt({thr-1})')
            a.label(f'L_th{tl[0]}')
            tl[0] += 1
    a.label('L_kloop')
    throttle()
    a(f'buffer_load_dwordx4 {vr(vDK)}, {sr(sK,4)}, 0 offen {opt.get("kpol", ldpol)} lds')
    a('s_add_u32 m0, m0, 0x1000')
    a(f'v_add_u32 {vr(vDK)}, 0x1000, {vr(vDK)}')
    a(f's_sub_u32 s{sCNT}, s{sCNT}, 1')
    a('s_cbranch_scc0 L_kloop')
    if 'dup' in opt:
        nd = int(opt['dup'])
        a(f's_sub_u32 m0, m0, {0x1000*18}')
        a(f'v_subrev_u32 {vr(vDK)}, {0x1000*18}, {vr(vDK)}')
        for i in range(nd):
            a(f'buffer_load_dwordx4 {vr(vDK)}, {sr(sK,4)}, 0 offen lds')
            a('s_add_u32 m0, m0, 0x1000')
            a(f'v_add_u32 {vr(vDK)}, 0x1000, {vr(vDK)}')
    stamp(opt.get('postk', False))
    def common():
        a(f's_lshr_b32 s{sWV}, s{sWV}, 6')
        a(f'v_and_b32 {vr(vLANE)}, 63, v0')
        a(f'v_and_b32 {vr(vI)}, 15, v0')
        a(f'v_bfe_u32 {vr(vKGp)}, v0, 4, 2')
        a(f's_lshl_b32 s{sT1}, s{sWV}, 10')
        a(f's_add_u32 s{sT2}, s{sT1}, s{sQ0B}')
        for s_ in (sV, sQ):
            a(f's_mov_b32 s{s_+2}, 0x80000')
            a(f's_mov_b32 s{s_+3}, 0x20000')
        a(f's_mov_b32 s{sW+2}, 0x4000')
        a(f's_mov_b32 s{sW+3}, 0x20000')
        a(f's_and_b32 s{sBK}, s{sWV}, 3')
        a(f's_lshl_b32 s{sBK}, s{sBK}, 1')
        a(f's_cmp_lt_u32 s{sWV}, 4')
        a(f's_addc_u32 s{sBK}, s{sBK}, 0')
        a(f's_cmp_eq_u32 s{sC}, 0')
        a(f's_cselect_b32 s{sT3}, 0x40000000, 0')
        a(f's_lshl_b32 s{sT0}, s{sBK}, 13')
        a(f's_add_u32 s{sT0}, s{sT0}, s{sQ0B}')
        a(f'v_lshlrev_b32 {vr(vDQ)}, 4, {vr(vKGp)}')
        a(f'v_lshl_add_u32 {vr(vDQ)}, {vr(vI)}, 8, {vr(vDQ)}')
        a(f'v_add_u32 {vr(vDQ)}, s{sT0}, {vr(vDQ)}')
        a(f'v_lshlrev_b32 {vr(t3)}, 4, {vr(vLANE)}')
        a(f's_lshl_b32 s41, s{sH}, 14')
        a(f's_lshl_b32 s42, s{sC}, 11')
    common()
    a(f's_mov_b32 s{sN}, 0')
    def srds():
        a(f's_add_u32 s{sV}, s8, s{sHO}')
        a(f's_addc_u32 s{sV+1}, s9, 0')
        a(f's_add_u32 s{sQ}, s4, s{sHO}')
        a(f's_addc_u32 s{sQ+1}, s5, 0')
        a(f's_add_u32 s{sW}, s18, s41')
        a(f's_addc_u32 s{sW+1}, s19, 0')
    srds()
    a('s_branch L_v1')
    a.label('L_helper')
    a('s_setprio 3')
    a('s_memrealtime s[60:61]')
    if cpf == 'one':
        a(f's_cmp_lg_u32 s{sWV}, {64*6}')
        a('s_cbranch_scc1 L_nocpf')
        a(f's_getpc_b64 s[{sEX}:{sEX+1}]')
        a(f's_lshl_b32 s{sT0}, s{sC}, 11')
        a(f'v_and_b32 v1, 15, v0')
        a(f'v_lshl_add_u32 v1, v1, 7, s{sT0}')
        a('s_mov_b64 exec, 0xffff')
        a(f'global_load_dword {vr(X8)}, v1, s[{sEX}:{sEX+1}]')
        a('s_mov_b64 exec, -1')
        a.label('L_nocpf')
    common()
    a(f's_sub_u32 s{sT0}, s{sT3}, 0x2000')
    a(f'v_add_u32 {vr(t1)}, s{sT0}, {vr(vDQ)}')
    a(f'v_add_u32 {vr(t2)}, 0x1000, {vr(t1)}')
    a(f's_mov_b32 m0, {SOFF}')
    a('s_waitcnt lgkmcnt(0)')
    if stamps:
        nst[0] -= 1
        stamp()
    a(f's_add_u32 s{sK}, s6, s{sHO}')
    a(f's_addc_u32 s{sK+1}, s7, 0')
    srds()
    if stamps and opt.get('postk'):
        nst[0] -= 1
        stamp()
    a(f's_or_b32 s{sN}, s60, 1')
    if opt.get('leakxcc'):
        a('s_getreg_b32 s61, hwreg(HW_REG_XCC_ID, 0, 4)')
        a(f's_and_b32 s{sN}, s60, 0xffffffe0')
        a(f's_lshl1_add_u32 s{sN}, s61, s{sN}')
        a(f's_or_b32 s{sN}, s{sN}, 1')
    only(FW, 'L_noclear')
    a(f's_lshl_b32 s{sT0}, s{sH}, 3')
    a(f'v_mov_b32 {vr(S+4)}, s{sT0}')
    a(f'v_mov_b32 {vr(S+5)}, s{sN}')
    a(f'v_mov_b32 {vr(S+6)}, {LCNT}')
    a(f'v_mov_b32 {vr(S+7)}, 0')
    a('s_mov_b64 exec, 1')
    a(f's_cmp_lg_u32 s{sC}, {CC}')
    a('s_cbranch_scc1 L_nopub')
    a(f'global_store_dword {vr(S+4)}, {vr(S+5)}, s[16:17] sc0 sc1')
    a.label('L_nopub')
    a(f'ds_write_b32 {vr(S+6)}, {vr(S+7)}')
    a('s_mov_b64 exec, -1')
    if opt.get('wstouch'):
        pol = {'ld': '', 'ldsc': 'sc0 sc1'}.get(opt['wstouch'])
        if pol is not None:
            a(f'buffer_load_dwordx4 {vr(S+8,4)}, {vr(t3)}, {sr(sW,4)}, s42 offen {pol}')
            a(f'buffer_load_dwordx4 {vr(S+12,4)}, {vr(t3)}, {sr(sW,4)}, s42 offen offset:1024 {pol}')
        else:
            for n in range(4): a(f'v_mov_b32 {vr(S+8+n)}, 0')
            a(f'buffer_store_dwordx4 {vr(S+8,4)}, {vr(t3)}, {sr(sW,4)}, s42 offen sc0 sc1')
            a(f'buffer_store_dwordx4 {vr(S+8,4)}, {vr(t3)}, {sr(sW,4)}, s42 offen offset:1024 sc0 sc1')
    a.label('L_noclear')
    only(SW, 'L_nosmall')
    for n, srd in enumerate((sK, sQ, sV)):
        if n:
            a(f's_mov_b32 m0, {SOFF + 1024*n}')
            a('s_nop 0')
        a(f'buffer_load_dwordx4 {vr(t3)}, {sr(srd,4)}, 0 offen lds')
    a.label('L_nosmall')
    if opt.get('tch'):
        only(6, 'L_notch')
        a(f'v_and_b32 {vr(S+8)}, 1, {vr(vLANE)}')
        a(f'v_mul_u32_u24 {vr(S+8)}, 0xff00, {vr(S+8)}')
        a(f'v_add_u32 {vr(S+8)}, s{sQ0B}, {vr(S+8)}')
        a('s_mov_b64 exec, 3')
        a(f'buffer_load_dword {vr(S+9)}, {vr(S+8)}, {sr(sV,4)}, 0 offen')
        a(f'buffer_load_dword {vr(S+10)}, {vr(S+8)}, {sr(sQ,4)}, 0 offen')
        if opt['tch'] == 'o':
            a(f'v_add_u32 {vr(S+8)}, s{sHO}, {vr(S+8)}')
            a(f'global_load_dword {vr(S+11)}, {vr(S+8)}, s[14:15]')
        a('s_mov_b64 exec, -1')
        a.label('L_notch')
    hlate = opt.get('hlate', '')
    def halo_k():
        only(HW, 'L_nohalo')
        if hlate:
            a(f's_sub_u32 s{sT0}, s{sT3}, 0x2000')
            a(f'v_add_u32 {vr(t1)}, s{sT0}, {vr(vDQ)}')
            a(f'v_add_u32 {vr(t2)}, 0x1000, {vr(t1)}')
        for T in range(2):
            for ks in range(4):
                a(f'buffer_load_dwordx4 {vr(kf(T,ks),4)}, {vr(t1+T)}, {sr(sK,4)}, 0 offen offset:{64*ks}')
        a.label('L_nohalo')
    if not hlate: halo_k()
    a('s_setprio 0')
    v2h = int(opt.get('v2h', 0))
    def vaddr(i0):
        a(f's_and_b32 s{sT0}, s{sWV}, 1')
        a(f's_lshl_b32 s{sT0}, s{sT0}, 2')
        a(f'v_add_lshl_u32 {vr(vDV)}, s{sT0}, {vr(vKGp)}, 1')
        a(f'v_xor_b32 {vr(vDV)}, {vr(vDV)}, {vr(vI)}')
        a(f'v_lshlrev_b32 {vr(vDV)}, 4, {vr(vDV)}')
        a(f'v_lshl_add_u32 {vr(vDV)}, {vr(vKGp)}, 8, {vr(vDV)}')
        a(f's_add_u32 s{sT2}, s{sT2}, {(0x1000*i0 - 0x2000) & 0xffffffff}')
        a(f'v_add_u32 {vr(vDV)}, s{sT2}, {vr(vDV)}')
        a(f's_add_u32 m0, s{sT1}, {VOFF + 0x1000*i0}')
    if v2h:
        vaddr(20 - v2h - 1 - 1)
    a('s_branch L_nov1')
    a.label('L_v1')
    def vpiece(i):
        throttle()
        if i:
            a('s_add_u32 m0, m0, 0x1000')
            a(f'v_add_u32 {vr(vDV)}, 0x1000, {vr(vDV)}')
        if i < 2:
            a(f'v_add_u32 {vr(t1)}, s{sT3}, {vr(vDV)}')
            a(f'buffer_load_dwordx4 {vr(t1)}, {sr(sV,4)}, 0 offen {ldpol} lds')
        else:
            a(f'buffer_load_dwordx4 {vr(vDV)}, {sr(sV,4)}, 0 offen {ldpol} lds')
    vaddr(0)
    for i in range(N1): vpiece(i)
    a.label('L_nov1')
    stamp()
    if hlate == 'low': halo_k()

    a(f's_add_u32 s{sO}, s14, s{sHO}')
    a(f's_addc_u32 s{sO+1}, s15, 0')
    a(f's_mov_b32 s{sO+2}, 0x80000')
    a(f's_mov_b32 s{sO+3}, 0x20000')
    a(f's_movk_i32 s{sTOFF}, 0x1000')
    a(f's_mov_b32 s{sZERO}, 0')
    a(f's_mov_b32 s{sCS}, 0x{CSC:08x}')
    a(f's_mov_b32 s{sCS+1}, 0x{CSC:08x}')
    a(f'v_mov_b32 {vr(vNEG)}, 0x{NEG:08x}')
    a(f'v_lshlrev_b32 {vr(t2)}, 2, {vr(vKGp)}')
    a(f'v_cmp_eq_u32 {sr(sKG0,2)}, 0, {vr(vKGp)}')
    for r in range(4):
        a(f'v_add_u32 {vr(t1)}, {r}, {vr(t2)}')
        a(f'v_cmp_ge_u32 vcc, {vr(t1)}, {vr(vI)}')
        a(f'v_cmp_le_u32 s[60:61], {vr(t1)}, {vr(vI)}')
        a('s_nop 0')
        a(f'v_cndmask_b32 {vr(BLO+r)}, {vr(vNEG)}, 0, vcc')
        a(f'v_cndmask_b32 {vr(BHI+r)}, {vr(vNEG)}, 0, s[60:61]')
    a(f's_lshl_b32 s{sT0}, s{sBK}, 13')
    a(f'v_xor_b32 {vr(t1)}, {vr(vKGp)}, {vr(vI)}')
    a(f'v_lshlrev_b32 {vr(t1)}, 4, {vr(t1)}')
    a(f'v_lshl_add_u32 {vr(t1)}, {vr(vI)}, 8, {vr(t1)}')
    a(f'v_add_u32 {vr(vAK)}, s{sT0}, {vr(t1)}')
    for ks in range(1, 4):
        a(f'v_xor_b32 {vr(vAK+ks)}, {64*ks}, {vr(vAK)}')
    a(f'v_and_b32 {vr(t1)}, 1, {vr(vI)}')
    a(f'v_lshlrev_b32 {vr(vNEG)}, 3, {vr(t1)}')
    a(f'v_lshlrev_b32 {vr(t1)}, 8, {vr(t1)}')
    a(f'v_lshl_add_u32 {vr(t1)}, {vr(vKGp)}, 4, {vr(t1)}')
    a(f'v_add_u32 {vr(vAG)}, {SOFF}, {vr(t1)}')
    a(f'v_bfe_u32 {vr(t1)}, {vr(vLANE)}, 2, 2')
    a(f'v_and_b32 {vr(t2)}, 3, {vr(vLANE)}')
    a(f'v_lshlrev_b32 {vr(t2)}, 3, {vr(t2)}')
    a(f'v_lshl_add_u32 {vr(t1)}, {vr(t1)}, 8, {vr(t2)}')
    a(f'v_add_u32 {vr(vAVG)}, {SOFF+2048}, {vr(t1)}')
    a(f'v_lshrrev_b32 {vr(t1)}, 2, {vr(vLANE)}')
    a(f'v_and_b32 {vr(vT0)}, 7, {vr(t1)}')
    a(f'v_lshl_add_u32 {vr(t2)}, {vr(vT0)}, 5, {vr(t2)}')
    a(f'v_lshl_add_u32 {vr(t2)}, {vr(t1)}, 8, {vr(t2)}')
    a(f's_add_u32 s{sT1}, s{sT0}, {VOFF}')
    a(f'v_add_u32 {vr(VA)}, s{sT1}, {vr(t2)}')
    for t in range(1, 8):
        a(f'v_xor_b32 {vr(VA+t)}, {32*t}, {vr(VA)}')
    a(f's_mul_i32 s{sT1}, s{sWV}, {32*STGP}')
    a(f's_add_u32 s{sT1}, s{sT1}, {STG}')
    a(f'v_mul_u32_u24 {vr(t1)}, {STGP}, {vr(vI)}')
    a(f'v_lshl_add_u32 {vr(t1)}, {vr(vKGp)}, 3, {vr(t1)}')
    a(f'v_add_u32 {vr(vSW)}, s{sT1}, {vr(t1)}')
    a(f'v_mul_u32_u24 {vr(t1)}, {STGP}, {vr(vKGp)}')
    a(f'v_lshl_add_u32 {vr(t1)}, {vr(vI)}, 4, {vr(t1)}')
    a(f'v_add_u32 {vr(vSR)}, s{sT1}, {vr(t1)}')
    a(f's_add_u32 s{sT0}, s{sT0}, s{sQ0B}')
    a(f'v_add_u32 {vr(vOO)}, s{sT0}, {vr(t3)}')
    a(f's_lshr_b32 s{sQB}, s{sT0}, 8')
    a(f's_cmp_eq_u32 s{sQB}, 0')
    a(f's_cselect_b32 s{sEX}, 0, -1')
    a(f's_mov_b32 s{sEX+1}, -1')
    a(f's_cmp_eq_u32 s{sQB}, {256*CC+32*(2*CW+1)}')
    a(f's_cselect_b32 s{sCMB}, 1, 0')
    a(f's_lshl_b32 s{sT0}, s{sWV}, 4')
    a(f's_add_u32 s{sT0}, s{sT0}, {PARTML}')
    a(f'v_add_u32 {vr(vNEG)}, s{sT0}, {vr(vNEG)}')

    spf = [int(x) for x in opt.get('spf', '0,0').split(',')]
    spstep = int(opt.get('spstep', 128)); sptile = opt.get('sptile', 'B')
    def sp_offsets():
        o = []
        for half in ([1, 0] if sptile == 'B' else [0, 1]):
            for blk in (1, 0):
                o += [8192*blk + 4096*half + x for x in range(0, 4096, spstep)]
        return o
    spo = sp_offsets()
    def sprefetch(n):
        for _ in range(n):
            if spo: a(f's_load_dword s61, s[10:11], {spo.pop(0)}')
    if sum(spf):
        a(f's_cmp_lt_u32 s{sWV}, 4')
        a('s_cbranch_scc1 L_nosp')
        a(f's_lshl_b32 s{sT0}, s{sBK}, 13')
        a(f's_add_u32 s{sT0}, s{sT0}, s{sQ0B}')
        a(f's_add_u32 s10, s{sQ}, s{sT0}')
        a(f's_addc_u32 s11, s{sQ+1}, 0')
        sprefetch(spf[0])
        a.label('L_nosp')
    a(f's_waitcnt vmcnt({N1}) lgkmcnt(0)')
    a(f's_cmp_lt_u32 s{sWV}, 4')
    a('s_cbranch_scc1 L_kw')
    a(f's_cmp_eq_u32 s{sWV}, {FW}')
    a('s_cbranch_scc1 L_kw')
    a('s_waitcnt vmcnt(0)')
    a.label('L_kw')
    stamp(opt.get('prek', False))
    a('s_barrier')
    stamp()
    a(f's_cmp_ge_u32 s{sWV}, 4')
    a('s_cbranch_scc1 L_nov2')
    for i in range(N1, 20 - v2h): vpiece(i)
    if v2h:
        a('s_branch L_nov2b')
    a.label('L_nov2')
    if v2h:
        a(f's_setprio {opt.get("v2p", 3)}')
        for i in range(20 - v2h, 20): vpiece(i)
        a('s_setprio 0')
        a.label('L_nov2b')
    stamp(fine)
    QG = O
    for W in (2, 3, 4, 5):
        for ks in range(4):
            a(f'ds_read_b128 {vr(kf(W,ks),4)}, {vr(vAK+ks)} offset:{4096*(W-2)}')
    for ks in range(4):
        a(f'ds_read_b128 {vr(KG+4*ks,4)}, {vr(vAG)} offset:{64*ks}')
    for t in range(8):
        a(f'ds_read_b64_tr_b16 {vr(VG+4*t+2,2)}, {vr(vAVG)} offset:{32*t}')
    a(f's_cmp_eq_u32 s{sWV}, {HW}')
    a('s_cbranch_scc1 L_k01done')
    for ks in range(4):
        a(f'v_subrev_u32 {vr(vAK+ks)}, 0x2000, {vr(vAK+ks)}')
    for W in (0, 1):
        for ks in range(4):
            a(f'ds_read_b128 {vr(kf(W,ks),4)}, {vr(vAK+ks)} offset:{4096*W}')
    a.label('L_k01done')
    def issue_qa():
        if opt.get('qprio'): a('s_setprio 3')
        for ks in range(4):
            a(f'buffer_load_dwordx4 {vr(QA+4*ks,4)}, {vr(vDQ)}, {sr(sQ,4)}, 0 offen offset:{64*ks} {qpol}')
        if opt.get('qprio'): a('s_setprio 0')

    def xred(m, t, op='v_max_f32'):
        a(f'v_mov_b32 {vr(t)}, {vr(m)}')
        a.nop(2)
        a(f'v_permlane16_swap_b32 {vr(m)}, {vr(t)}')
        a(f'{op} {vr(m)}, {vr(m)}, {vr(t)}')
        a(f'v_mov_b32 {vr(t)}, {vr(m)}')
        a.nop(2)
        a(f'v_permlane32_swap_b32 {vr(m)}, {vr(t)}')
        a(f'{op} {vr(m)}, {vr(m)}, {vr(t)}')
    def maxtree_l(vals, m, first=True):
        out = []; rest = list(vals)
        if first:
            out.append(f'v_max3_f32 {vr(m)}, {vr(rest[0])}, {vr(rest[1])}, {vr(rest[2])}'); rest = rest[3:]
        while len(rest) >= 2:
            out.append(f'v_max3_f32 {vr(m)}, {vr(m)}, {vr(rest[0])}, {vr(rest[1])}'); rest = rest[2:]
        if rest:
            out.append(f'v_max_f32 {vr(m)}, {vr(m)}, {vr(rest[0])}')
        return out
    def fma_l(vals, mc):
        if pk:
            return [f'v_pk_fma_f32 {vr(vals[n],2)}, {vr(vals[n],2)}, {sr(sCS,2)}, {vr(mc,2)} op_sel_hi:[1,1,0] neg_lo:[0,0,1] neg_hi:[0,0,1]' for n in range(0, len(vals), 2)]
        return [f'v_fma_f32 {vr(v)}, {vr(v)}, s{sCS}, -{vr(mc)}' for v in vals]
    exp_l = lambda vals: [f'v_exp_f32 {vr(v)}, {vr(v)}' for v in vals]
    cvt_l = lambda dst, src, n: [f'v_cvt_pk_bf16_f32 {vr(dst+k)}, {vr(src+2*k)}, {vr(src+2*k+1)}' for k in range(n)]

    def vread(dst, t, W):
        return f'ds_read_b64_tr_b16 {vr(dst,2)}, {vr(VA+t)} offset:{4096*W}'
    a(f's_cmp_lt_u32 s{sWV}, 4')
    a('s_cbranch_scc1 L_gk')
    sprefetch(spf[1])
    only(FW, 'L_notag')
    a('s_setprio 3')
    a(f's_lshl_b32 s{sT0}, s{sH}, 3')
    a(f'v_mov_b32 {vr(S+4)}, s{sT0}')
    a(f'v_mov_b32 {vr(S+5)}, s{sN}')
    a(f'v_mov_b32 {vr(S+6)}, {LCNT}')
    a(f'global_load_dword {vr(S+7)}, {vr(S+4)}, s[16:17]')
    a('s_setprio 0')
    issue_qa()
    a('s_waitcnt vmcnt(4)')
    if opt.get('forcefb'): a(f'v_mov_b32 {vr(S+7)}, 0')
    a(f's_cmp_eq_u32 s{sC}, {CC}')
    a('s_cselect_b64 vcc, -1, 0')
    a(f'v_cndmask_b32 {vr(S+7)}, {vr(S+7)}, {vr(S+5)}, vcc')
    a('s_mov_b64 exec, 1')
    a(f'ds_write_b32 {vr(S+6)}, {vr(S+7)} offset:4')
    a('s_mov_b64 exec, -1')
    a('s_branch L_tagdone')
    a.label('L_notag')
    if hlate == 'pre': halo_k()
    issue_qa()
    if hlate == 'post': halo_k()
    if v2h: a('s_waitcnt vmcnt(4)')
    a.label('L_tagdone')
    a('s_waitcnt lgkmcnt(0)')
    a(f'v_add_u32 {vr(vDQk)}, 0x1000, {vr(vDQ)}')
    stamp(fine)
    a('s_barrier')
    for t in range(8):
        a(vread(X[t+1], t, 0)); a(vread(X[t+1]+2, t, 1))
    a('s_branch L_gdone')
    a.label('L_gk')
    for ks in range(4):
        a(f'ds_read_b128 {vr(QG+4*ks,4)}, {vr(vAG)} offset:{1024+64*ks}')
    issue_qa()
    a('s_waitcnt lgkmcnt(0)')
    for T in range(4):
        for ks in range(4):
            a(mfma(S+4*T, kf(T,ks), QG+4*ks, '0' if ks == 0 else S+4*T))
    a(f'v_add_u32 {vr(vDQk)}, 0x1000, {vr(vDQ)}')
    a.nop(7)
    for l in maxtree_l([S+x for x in range(16)], vM): a(l)
    xred(vM, vT)
    a(f'v_mul_f32 {vr(vM)}, s{sCS}, {vr(vM)}')
    for l in fma_l([S+x for x in range(16)], vM): a(l)
    for l in exp_l([S+x for x in range(16)]): a(l)
    a.nop(1)
    a(f'v_add_f32 {vr(vT)}, {vr(S)}, {vr(S+1)}')
    for x in range(2, 16):
        a(f'v_add_f32 {vr(vT)}, {vr(vT)}, {vr(S+x)}')
    for l in cvt_l(S, S, 8): a(l)
    xred(vT, vT0, 'v_add_f32')
    a(f'ds_write_b64 {vr(vNEG)}, {vr(vM,2)}')
    a(f'v_mbcnt_lo_u32_b32 {vr(vT0)}, -1, 0')
    a(f's_lshl_b32 s{sT0}, s{sWV}, 10')
    a(f'v_lshl_add_u32 {vr(vT0)}, {vr(vT0)}, 3, s{sT0}')
    if stamps and fine:
        nst[0] -= 1
        stamp()
    a('s_waitcnt vmcnt(4) lgkmcnt(0)')
    a('s_barrier')
    gb = [QB + 4*n for n in range(4)] + [S + 8 + 4*n for n in range(4)]
    for t in range(8):
        a(vread(gb[t], t, 2)); a(vread(gb[t]+2, t, 3))
    for t in range(8):
        a('s_waitcnt lgkmcnt(14)')
        a(mfma(gb[t], S+4, gb[t], '0'))
        a(vread(X[t+1], t, 0)); a(vread(X[t+1]+2, t, 1))
    for t in range(8):
        a(f's_waitcnt lgkmcnt({14-2*t})')
        a(mfma(gb[t], S, X[t+1], gb[t]))
    a('s_mov_b64 exec, 1')
    a(f'v_mov_b32 {vr(S)}, {LCNT}')
    a(f'v_mov_b32 {vr(S+1)}, 1')
    a('s_mov_b64 exec, 0xffff')
    for t in range(8):
        a(f'ds_write_b64 {vr(vT0)}, {vr(gb[t],2)} offset:{PART+128*t}')
    a('s_mov_b64 exec, 1')
    a(f'ds_add_u32 {vr(S)}, {vr(S+1)}')
    a('s_mov_b64 exec, -1')
    a.label('L_gdone')
    stamp()

    emit = lambda ls: [a(l) for l in ls]
    def combine(og, mg, tm):
        NP = len(og)
        emit(maxtree_l([mg[n] for n in range(NP)], tm))
        for n in range(NP):
            a(f'v_sub_f32 {vr(mg[n])}, {vr(mg[n])}, {vr(tm)}')
        for n in range(NP):
            a(f'v_exp_f32 {vr(mg[n])}, {vr(mg[n])}')
        a.nop(1)
        for e in range(4):
            a(f'v_mul_f32 {vr(og[0][e])}, {vr(og[0][e])}, {vr(mg[0])}')
        a(f'v_mul_f32 {vr(mg[0]+1)}, {vr(mg[0]+1)}, {vr(mg[0])}')
        for n in range(1, NP):
            for e in range(4):
                a(f'v_fmac_f32 {vr(og[0][e])}, {vr(og[n][e])}, {vr(mg[n])}')
            a(f'v_fmac_f32 {vr(mg[0]+1)}, {vr(mg[n]+1)}, {vr(mg[n])}')

    def issue_qb():
        for ks in range(4):
            a(f'buffer_load_dwordx4 {vr(QB+4*ks,4)}, {vr(vDQk)}, {sr(sQ,4)}, 0 offen offset:{64*ks} {qpol}')
        a(f'v_mov_b32 {vr(vDQk)}, 0')
    issue_qb()
    if opt.get('otouch'):
        only(FW, 'L_nootouch')
        a(f's_mov_b32 m0, {PARTML+256}')
        a('s_mov_b64 exec, 1')
        a(f'buffer_load_dword {vr(vOO)}, {sr(sO,4)}, 0 offen lds')
        a(f'buffer_load_dword {vr(vOO)}, {sr(sO,4)}, 0 offen offset:512 lds')
        a('s_mov_b64 exec, -1')
        a('s_waitcnt vmcnt(6)')
        a('s_branch L_tileA')
        a.label('L_nootouch')
    a(f's_cmp_eq_u32 s{sWV}, {RW}')
    a('s_cbranch_scc1 L_reduce')
    a(f's_cmp_eq_u32 s{sCMB}, 0')
    a('s_cbranch_scc1 L_noflag')
    a(f'v_mov_b32 {vr(vT0)}, {LNON}')
    a(f'ds_read_b32 {vr(vT0)}, {vr(vT0)}')
    a('s_waitcnt lgkmcnt(0)')
    a(f'v_readfirstlane_b32 s{sN}, {vr(vT0)}')
    a.label('L_noflag')
    a('s_waitcnt vmcnt(4)')
    a('s_branch L_tileA')
    a.label('L_reduce')
    R0 = S
    a(f'v_mbcnt_lo_u32_b32 {vr(R0)}, -1, 0')
    a(f'v_mbcnt_hi_u32_b32 {vr(R0)}, -1, {vr(R0)}')
    a(f'v_lshrrev_b32 {vr(R0+1)}, 5, {vr(R0)}')
    a(f'v_and_b32 {vr(R0+3)}, 31, {vr(R0)}')
    a(f'v_lshlrev_b32 {vr(R0+3)}, 5, {vr(R0+3)}')
    a(f'v_lshl_add_u32 {vr(R0+3)}, {vr(R0+1)}, 2, {vr(R0+3)}')
    a(f'v_lshlrev_b32 {vr(R0+1)}, 3, {vr(R0+1)}')
    a(f'v_add_u32 {vr(R0+1)}, {PARTML}, {vr(R0+1)}')
    a(f'v_lshlrev_b32 {vr(R0)}, 4, {vr(R0)}')
    a(f'v_mov_b32 {vr(R0+2)}, {LCNT}')
    a(f's_mov_b32 s{sCNT}, 0')
    a.label('L_lspin')
    a(f'ds_read_b64 {vr(S+4,2)}, {vr(R0+2)}')
    a(f's_add_u32 s{sCNT}, s{sCNT}, 1')
    a('s_waitcnt lgkmcnt(0)')
    a(f'v_readfirstlane_b32 s{sT0}, {vr(S+4)}')
    a(f'v_readfirstlane_b32 s{sN}, {vr(S+5)}')
    a(f's_cmp_ge_u32 s{sCNT}, 0x100000')
    a('s_cbranch_scc1 L_lok')
    a(f's_cmp_lt_u32 s{sT0}, 4')
    a('s_cbranch_scc1 L_lspin')
    a.label('L_lok')
    mg = [S+4, S+6, O, O+2]
    G0 = S + 8
    og = [[G0+4*n+e for e in range(4)] for n in range(4)]
    for n in range(4):
        a(f'ds_read_b64 {vr(mg[n],2)}, {vr(R0+1)} offset:{16*n}')
    for n in range(4):
        if n: a(f'v_add_u32 {vr(R0+3)}, 1024, {vr(R0+3)}')
        a(f'ds_read2_b32 {vr(G0+4*n,2)}, {vr(R0+3)} offset0:0 offset1:2')
        a(f'ds_read2_b32 {vr(G0+4*n+2,2)}, {vr(R0+3)} offset0:4 offset1:6')
    a('s_waitcnt lgkmcnt(0)')
    combine(og, mg, R0+1)
    a(f'v_mov_b32 {vr(G0+4)}, {vr(G0+3)}')
    a(f'v_mov_b32 {vr(G0+5)}, {vr(R0+1)}')
    a(f'v_mov_b32 {vr(G0+6)}, {vr(mg[0]+1)}')
    a(f'v_mov_b32 {vr(G0+7)}, s{sN}')
    a(f'v_mov_b32 {vr(G0+3)}, s{sN}')
    a(f'buffer_store_dwordx4 {vr(G0+4,4)}, {vr(R0)}, {sr(sW,4)}, s42 offen offset:1024 sc0 sc1')
    a(f'buffer_store_dwordx4 {vr(G0,4)}, {vr(R0)}, {sr(sW,4)}, s42 offen sc0 sc1')
    a(f's_cmp_lg_u32 s{sN}, 0')
    a('s_cbranch_scc1 L_tagged')
    a('s_waitcnt vmcnt(0)')
    a(f's_lshl_b32 s{sT0}, s{sH}, 3')
    a(f's_lshl_b32 s{sT1}, 1, s{sC}')
    a(f'v_mov_b32 {vr(R0)}, s{sT0}')
    a(f'v_mov_b32 {vr(R0+1)}, s{sT1}')
    a('s_mov_b64 exec, 1')
    a(f'global_atomic_or {vr(R0)}, {vr(R0+1)}, s[16:17] offset:4 sc1')
    a('s_mov_b64 exec, -1')
    a.label('L_tagged')
    a('s_waitcnt vmcnt(6)')
    a.label('L_tileA')
    def yprio(tag):
        if yp == tag:
            a(f's_cmp_lt_u32 s{sWV}, 4')
            a(f's_cbranch_scc1 L_yp{tag}')
            a('s_setprio 1')
            a.label(f'L_yp{tag}')
    yprio('a')
    stamp()

    def inter(ms, vs, per=2):
        vs = list(vs)
        for m in ms:
            a(m)
            for _ in range(per):
                if vs: a(vs.pop(0))
        for v in vs: a(v)

    HB = kf(2, 0)
    def hand_loads():
        a(f'v_mbcnt_lo_u32_b32 {vr(KG)}, -1, 0')
        a(f'v_mbcnt_hi_u32_b32 {vr(KG)}, -1, {vr(KG)}')
        a(f'v_lshlrev_b32 {vr(KG)}, 4, {vr(KG)}')
        for n in range(8):
            a(f's_movk_i32 s{sT0}, {2048*n}')
            a(f'buffer_load_dwordx4 {vr(HB+8*n,4)}, {vr(KG)}, {sr(sW,4)}, s{sT0} offen sc0 sc1')
            a(f'buffer_load_dwordx4 {vr(HB+8*n+4,4)}, {vr(KG)}, {sr(sW,4)}, s{sT0} offen offset:1024 sc0 sc1')

    buf = [kf(0, n) for n in range(4)] + [QA + 4*n for n in range(4)]
    SLOTW = {0: [0, 1, 2, 3, 4], 1: [4, 5, 2, 3, 1]}
    def qk(tau, sl):
        Q = QA if tau == 0 else QB
        if sl == 'G':
            return [mfma(S+20, KG+4*ks, Q+4*ks, '0' if ks == 0 else S+20) for ks in range(4)]
        W = SLOTW[tau][sl]
        c0 = BLO if W == tau else BHI if W == tau + 4 else '0'
        return [mfma(S+4*sl, kf(W,ks), Q+4*ks, c0 if ks == 0 else S+4*sl) for ks in range(4)]
    def edge_test(tau, lab):
        a(f's_sub_u32 s{sT0}, s{sQB}, {48 - 16*tau}')
        a(f's_cmp_lt_u32 s{sT0}, 1968')
        a(f's_cbranch_scc1 {lab}')
    def edge_mask(tau, tr):
        a(f'v_mbcnt_lo_u32_b32 {vr(tr)}, -1, 0')
        a(f'v_mbcnt_hi_u32_b32 {vr(tr)}, -1, {vr(tr)}')
        a(f'v_lshrrev_b32 {vr(tr)}, 4, {vr(tr)}')
        a(f's_sub_u32 s{sT0}, s{sQB}, 34')
        a(f's_movk_i32 s{sT1}, 2046')
        a(f'v_lshl_add_u32 {vr(tr)}, {vr(tr)}, 2, s{sT0}')
        a(f'v_mov_b32 {vr(vM)}, 0x{NEG:08x}')
        a('s_nop 3')
        for sl in range(5):
            for r in range(4):
                a(f'v_add_u32 {vr(vT)}, {16*SLOTW[tau][sl]+r}, {vr(tr)}')
                a(f'v_cmp_gt_u32 vcc, s{sT1}, {vr(vT)}')
                a('s_nop 1')
                a(f'v_cndmask_b32 {vr(S+4*sl+r)}, {vr(vM)}, {vr(S+4*sl+r)}, vcc')
        for l in maxtree_l([S+x for x in range(22)], vM): a(l)
    def epi(t, tau=0):
        l = [f'v_mul_f32 {vr(O+4*t+e)}, {vr(O+4*t+e)}, {vr(vT0)}' for e in range(4)]
        l += [f'v_cvt_pk_bf16_f32 {vr(O+4*t)}, {vr(O+4*t)}, {vr(O+4*t+1)}',
              f'v_cvt_pk_bf16_f32 {vr(O+4*t+1)}, {vr(O+4*t+2)}, {vr(O+4*t+3)}',
              f'ds_write_b64 {vr(vSW)}, {vr(O+4*t,2)} offset:{32*t + 16*STGP*tau}']
        return l
    def stage_reads(tau=0, R=O):
        return [f'ds_read_b128 {vr(R+4*j,4)}, {vr(vSR)} offset:{4*STGP*j + 16*STGP*tau}' for j in range(4)]
    def stores(tau, R=O, extra=0):
        for j in range(4):
            a(f's_waitcnt lgkmcnt({3-j+extra})')
            if tau == 0 and j == 0: a(f's_mov_b64 exec, {sr(sEX,2)}')
            a(f'buffer_store_dwordx4 {vr(R+4*j,4)}, {vr(vOO)}, {sr(sO,4)}, s{sTOFF if tau else sZERO} offen offset:{1024*j} {stpol}')
            if tau == 0 and j == 0: a('s_mov_b64 exec, -1')
    RA = kf(1, 0)
    def late_a():
        for l in stage_reads(0, RA): a(l)
        stores(0, RA)
    def softmax_pv(tau):
        m = vM
        xred(m, vT)
        a(f'v_mul_f32 {vr(m)}, s{sCS}, {vr(m)}')
        set0 = [S+x for x in range(8)]; set1 = [S+8+x for x in range(8)]; set2 = [S+16+x for x in range(6)]
        for l in fma_l(set0, m): a(l)
        f2 = fma_l(set2, m); f1 = fma_l(set1, m)
        for l in exp_l(set0): a(l)
        a(f2[0])
        for l in cvt_l(S, S, 4): a(l)
        a(f2[1])
        a('s_waitcnt lgkmcnt(0)' if tau == 1 else 's_waitcnt lgkmcnt(8)')
        if tau == 1 and apos == 1: late_a()
        ONES, LACC = S+4, S+20
        v2 = f2[2:] + exp_l(set2) + [f'v_mov_b32 {vr(ONES+n)}, 0x3f803f80' for n in range(4)] + cvt_l(S+16, S+16, 3) \
             + [f'v_mov_b32 {vr(S+19)}, 0', f'v_cndmask_b32 {vr(S+18)}, 0, {vr(S+18)}, {sr(sKG0,2)}']
        inter([mfma(X[t], X[t+1], S, '0') for t in range(8)], v2 + f1[:2])
        v1 = f1[2:] + exp_l(set1) + [f'v_mov_b32 {vr(vT0)}, 0'] + cvt_l(S+8, S+8, 4)
        inter([mfma(O+4*t, VG+4*t, S+16, O+4*t) for t in range(8)], v1)
        a(mfma(LACC, ONES, S, '0'))
        a(mfma(LACC, ONES, S+16, LACC))
        a(mfma(LACC, ONES, S+8, LACC))
        if tau == 0:
            a('s_waitcnt lgkmcnt(0)')
        for t in range(8):
            a(mfma(O+4*t, buf[t], S+8, O+4*t))
            if tau == 0: a(vread(VG+4*t, t, 1))
        a(f'v_rcp_f32 {vr(vT0)}, {vr(LACC)}')

    late = []
    for t in range(8):
        late += [vread(buf[t], t, 2), vread(buf[t]+2, t, 3)]
    vgr = [vread(VG+4*t, t, 4) for t in range(8)]
    edge_test(0, 'L_fastA')
    for l in vgr: a(l)
    for sl in ('G', 0, 1, 2, 3, 4):
        for l in qk(0, sl): a(l)
    for l in late: a(l)
    edge_mask(0, vT0)
    a('s_branch L_joinA')
    a.label('L_fastA')
    m = vM
    inter(qk(0, 0) + qk(0, 'G'), vgr, per=1)
    inter(qk(0, 1) + qk(0, 2), late[:8], per=1)
    inter(qk(0, 3), maxtree_l([S+20, S+21, S+0], m) + maxtree_l([S+1, S+2, S+3, S+4, S+5, S+6], m, False), per=1)
    inter(qk(0, 4), maxtree_l([S+7, S+8, S+9, S+10], m, False), per=1)
    for l in late[8:11]: a(l)
    for l in maxtree_l([S+11, S+12], m, False): a(l)
    for l in late[11:13]: a(l)
    for l in maxtree_l([S+13, S+14, S+15], m, False): a(l)
    for l in late[13:]: a(l)
    for l in maxtree_l([S+16, S+17, S+18, S+19], m, False): a(l)
    a.label('L_joinA')
    yprio('s')
    stamp(fine)
    softmax_pv(0)
    stamp(fine)
    ep = []
    for t in range(8): ep += epi(t)
    if apos == 0: ep += stage_reads()
    xb = []
    for t in range(8): xb += [vread(X[t+1], t, 4), vread(X[t+1]+2, t, 5)]
    def qb_wait(n):
        a(f's_waitcnt vmcnt({n+2})')
        if opt.get('otouch'):
            a(f's_and_b32 s{sT0}, s{sWV}, 3')
            a(f's_cmp_eq_u32 s{sT0}, 3')
        else:
            a(f's_cmp_eq_u32 s{sWV}, {RW}')
        a('s_cbranch_scc1 L_qbw')
        a(f's_waitcnt vmcnt({n})')
        a.label('L_qbw')
    if merge == 'hyb':
        a('s_nop 0')
        for l in ep: a(l)
        qb_wait(0)
        stamp()
        spos = int(opt.get('spos', 0))
        edge_test(1, 'L_fastB')
        stores(0)
        for sl in ('G', 0, 1, 2, 3, 4):
            for l in qk(1, sl): a(l)
        for l in xb: a(l)
        edge_mask(1, vT0)
        a('s_branch L_joinB')
        a.label('L_fastB')
        if spos == 0:
            stores(0)
            inter(qk(1, 'G') + qk(1, 0) + qk(1, 1) + qk(1, 2), xb, per=1)
        elif spos == 1:
            for l in qk(1, 'G') + qk(1, 0): a(l)
            stores(0)
            inter(qk(1, 1) + qk(1, 2), xb, per=2)
        else:
            for l in qk(1, 'G') + qk(1, 0) + qk(1, 1) + qk(1, 2): a(l)
        inter(qk(1, 3), maxtree_l([S+20, S+21, S+0], m) + maxtree_l([S+1, S+2, S+3, S+4, S+5, S+6], m, False), per=1)
        inter(qk(1, 4), maxtree_l([S+7, S+8], m, False), per=1)
        a.nop(1)
        for l in maxtree_l([S+9, S+10, S+11, S+12], m, False): a(l)
        a.nop(1)
        for l in maxtree_l([S+13, S+14, S+15], m, False): a(l)
        if spos == 2:
            stores(0)
            for l in xb: a(l)
        else:
            a.nop(3)
        for l in maxtree_l([S+16, S+17, S+18, S+19], m, False): a(l)
    elif not merge:
        a('s_nop 0')
        for l in ep: a(l)
        stores(0)
        for l in xb: a(l)
        qb_wait(4)
        stamp()
        edge_test(1, 'L_fastB')
        for sl in ('G', 0, 1, 2, 3, 4):
            for l in qk(1, sl): a(l)
        edge_mask(1, vT0)
        a('s_branch L_joinB')
        a.label('L_fastB')
        for sl in ('G', 0, 1, 2):
            for l in qk(1, sl): a(l)
        inter(qk(1, 3), maxtree_l([S+20, S+21, S+0], m) + maxtree_l([S+1, S+2], m, False), per=1)
        inter(qk(1, 4), maxtree_l([S+3, S+4, S+5, S+6, S+7, S+8], m, False), per=1)
        a.nop(1)
        for l in maxtree_l([S+9, S+10, S+11, S+12], m, False): a(l)
        a.nop(1)
        for l in maxtree_l([S+13, S+14, S+15], m, False): a(l)
        a.nop(2)
        for l in maxtree_l([S+16, S+17, S+18, S+19], m, False): a(l)
    else:
        qb_wait(0)
        yprio('m')
        stamp()
        edge_test(1, 'L_fastB')
        for l in ep: a(l)
        if apos == 0: stores(0)
        for sl in (0, 1, 2, 3, 4, 'G'):
            for l in qk(1, sl): a(l)
        for l in xb: a(l)
        edge_mask(1, vT0)
        a('s_branch L_joinB')
        a.label('L_fastB')
        ms = []
        for sl in (0, 1, 2, 3, 4, 'G'): ms += qk(1, sl)
        inter(ms, ep, per=3)
        for l in maxtree_l([S+x for x in range(15)], vT0): a(l)
        if apos == 0: stores(0)
        for l in xb: a(l)
        a(f'v_max3_f32 {vr(vM)}, {vr(vT0)}, {vr(S+15)}, {vr(S+16)}')
        for l in maxtree_l([S+17, S+18, S+19, S+20, S+21], vM, False): a(l)
    a.label('L_joinB')
    yprio('b')
    stamp()
    a(f's_cmp_eq_u32 s{sCMB}, 0')
    a('s_cbranch_scc1 L_nohand')
    hand_loads()
    a.label('L_nohand')
    softmax_pv(1)
    stamp(fine)
    if apos == 2:
        late_a()
    a('s_nop 0')
    if apos == 3:
        for l in stage_reads(0, RA): a(l)
    for t in range(8):
        for l in epi(t, 1): a(l)
    for l in stage_reads(1): a(l)
    if apos == 3:
        stores(0, RA, extra=4+8) if False else None
        for j in range(4):
            if j == 0: a(f's_mov_b64 exec, {sr(sEX,2)}')
            if j == 0: a('s_waitcnt lgkmcnt(4)')
            a(f'buffer_store_dwordx4 {vr(RA+4*j,4)}, {vr(vOO)}, {sr(sO,4)}, s{sZERO} offen offset:{1024*j} {stpol}')
            if j == 0: a('s_mov_b64 exec, -1')
    stores(1)
    stamp()

    a(f's_cmp_eq_u32 s{sCMB}, 0')
    a('s_cbranch_scc1 L_fin')
    a(f's_waitcnt vmcnt({4 if apos == 0 else 8})')
    a(f's_mov_b32 s{sCNT}, 0')
    a(f's_mov_b32 s{sT2}, 0')
    a.label('L_chk')
    a(f's_mov_b32 s{sT3}, s{sT2}')
    for n in range(8):
        a(f'v_cmp_eq_u32 vcc, s{sN}, {vr(HB+8*n+3)}')
        a(f'v_cmp_eq_u32 s[60:61], s{sN}, {vr(HB+8*n+7)}')
        a('s_nop 0')
        a('s_and_b64 vcc, vcc, s[60:61]')
        a('s_cmp_eq_u64 vcc, exec')
        a(f's_cselect_b32 s{sT0}, {1 << n}, 0')
        a(f's_or_b32 s{sT3}, s{sT3}, s{sT0}')
    a(f's_add_u32 s{sCNT}, s{sCNT}, 1')
    a(f's_cmp_eq_u32 s{sT3}, 0xff')
    a('s_cbranch_scc1 L_ready')
    a(f's_cmp_ge_u32 s{sCNT}, 0x40000')
    a('s_cbranch_scc1 L_ready')
    a(f's_lshl_b32 s{sT0}, s{sH}, 3')
    a(f'v_mov_b32 {vr(KG+1)}, s{sT0}')
    a(f'global_load_dword {vr(KG+2)}, {vr(KG+1)}, s[16:17] offset:4 sc0 sc1')
    a('s_waitcnt vmcnt(0)')
    a(f'v_readfirstlane_b32 s{sT2}, {vr(KG+2)}')
    hand_loads()
    a('s_waitcnt vmcnt(0)')
    a('s_branch L_chk')
    a.label('L_ready')
    hog = [[HB+8*n, HB+8*n+1, HB+8*n+2, HB+8*n+4] for n in range(8)]
    hmg = [HB+8*n+5 for n in range(8)]
    combine(hog, hmg, X8)
    a(f'v_rcp_f32 {vr(X8)}, {vr(hmg[0]+1)}')
    a(f'v_lshrrev_b32 {vr(KG)}, 1, {vr(KG)}')
    for e in range(4):
        a(f'v_mul_f32 {vr(hog[0][e])}, {vr(hog[0][e])}, {vr(X8)}')
    a(f'v_cvt_pk_bf16_f32 {vr(X8+2)}, {vr(hog[0][0])}, {vr(hog[0][1])}')
    a(f'v_cvt_pk_bf16_f32 {vr(X8+3)}, {vr(hog[0][2])}, {vr(hog[0][3])}')
    a(f'buffer_store_dwordx2 {vr(X8+2,2)}, {vr(KG)}, {sr(sO,4)}, 0 offen {stpol}')
    a.label('L_fin')
    if stamps:
        stamp()
        a('s_waitcnt vmcnt(0)')
        stamp()
        if opt.get('clk'):
            a('s_memtime s[98:99]')
            a('s_waitcnt lgkmcnt(0)')
            a('s_sub_u32 s98, s98, s96')
            a(f's_add_u32 s{64+2*nst[0]}, s98, s64')
            nst[0] += 1
        a(f's_lshl_b32 s{sT0}, s2, 3')
        a(f's_add_u32 s{sT0}, s{sT0}, s{sWV}')
        a(f's_lshl_b32 s{sT0}, s{sT0}, 6')
        a(f's_add_u32 s{sT0}, s{sT0}, 0x100000')
        a(f's_add_u32 s{sW}, s18, s{sT0}')
        a(f's_addc_u32 s{sW+1}, s19, 0')
        a(f'v_mov_b32 v1, 0')
        a('s_mov_b64 exec, 1')
        for n in range(min(16, nst[0])):
            a(f'v_mov_b32 v2, s{64+2*n}')
            a(f'buffer_store_dword v2, v1, {sr(sW,4)}, 0 offen offset:{4*n}')
        if 'leak' in opt:
            k = int(opt['leak'])
            a(f's_sub_u32 s{sT0}, s{64+2*k}, s64')
            a(f's_lshl_b32 s{sT0}, s{sT0}, 2')
            if opt.get('leakskew'):
                a.label('L_pre')
                a('s_memrealtime s[100:101]')
                a('s_waitcnt lgkmcnt(0)')
                a(f's_sub_u32 s{sT1}, s100, s64')
                a(f's_cmp_lt_u32 s{sT1}, 3000')
                a('s_cbranch_scc1 L_pre')
                a('s_mov_b64 exec, -1')
                a('v_mbcnt_lo_u32_b32 v3, -1, 0')
                a('v_and_b32 v3, 31, v3')
                a('v_lshlrev_b32 v3, 3, v3')
                a('global_load_dword v4, v3, s[16:17] sc0 sc1')
                a('s_waitcnt vmcnt(0)')
                a('v_readlane_b32 s20, v4, 0')
                a('s_mov_b32 s21, 0'); a('s_mov_b32 s22, 0')
                for n in range(1, 32):
                    a(f'v_readlane_b32 s23, v4, {n}')
                    a('s_nop 0')
                    a('s_sub_i32 s23, s23, s20')
                    a('s_min_i32 s21, s21, s23')
                    a('s_max_i32 s22, s22, s23')
                a(f's_sub_u32 s{sT0}, s22, s21')
                a(f's_min_u32 s{sT0}, s{sT0}, 2000')
                a(f's_lshl_b32 s{sT0}, s{sT0}, 2')
            if opt.get('leakxcc'):
                a('s_getreg_b32 s61, hwreg(HW_REG_XCC_ID, 0, 4)')
                a(f's_bfe_u32 s60, s{sN}, 0x40001')
                a('s_cmp_lg_u32 s60, s61')
                a(f's_cselect_b32 s{sT0}, 2000, 0')
            if opt.get('leakcnt'):
                a(f's_mul_i32 s{sT0}, s{sCNT}, 500')
                a(f's_mul_i32 s{sT0}, s{sT0}, s{sCMB}')
            if 'leakh' in opt:
                lo, hi = opt['leakh'].split(',')
                a(f's_sub_u32 s{sT1}, s{sH}, {lo}')
                a(f's_cmp_lt_u32 s{sT1}, {int(hi)-int(lo)}')
                a(f's_cselect_b32 s{sT0}, s{sT0}, 0')
            if 'leakwg' in opt:
                a(f's_cmp_eq_u32 s2, {opt["leakwg"]}')
                a(f's_cselect_b32 s{sT0}, s{sT0}, 0')
            if 'leakx' in opt:
                a(f's_getreg_b32 s{sT1}, hwreg(HW_REG_XCC_ID, 0, 4)')
                a(f's_lshr_b32 s{sT1}, {opt["leakx"]}, s{sT1}')
                a(f's_bitcmp1_b32 s{sT1}, 0')
                a(f's_cselect_b32 s{sT0}, s{sT0}, 0')
            if 'leakw' in opt:
                a(f's_lshr_b32 s{sT1}, {opt["leakw"]}, s{sWV}')
                a(f's_bitcmp1_b32 s{sT1}, 0')
                a(f's_cselect_b32 s{sT0}, s{sT0}, 0')
            a(f"s_add_u32 s{sT0}, s{sT0}, {opt.get('spin', 5000)}")
            a.label('L_spin')
            a('s_memrealtime s[100:101]')
            a('s_waitcnt lgkmcnt(0)')
            a(f's_sub_u32 s{sT1}, s100, s64')
            a(f's_cmp_lt_u32 s{sT1}, s{sT0}')
            a('s_cbranch_scc1 L_spin')
    a.label('L_end')
    a('s_endpgm')
    if cpf:
        a('.fill 4096, 4, 0xbf800000')

    check(a.lines)
    if stamps: print('stamps', nst[0])
    head = f'''; windowed + global-token attention, B=1 H=32 S=2048 D=128 bf16 (window 32, 2 global tokens)
; @launch grid=(256,1,1) block=(512,1,1) lds=163840
.amdgcn_target "amdgcn-amd-amdhsa--gfx950"
.text
.globl {NAME}
.p2align 8
.type {NAME},@function
{NAME}:
'''
    tail = f'''.section .rodata,"a"
.p2align 6
.amdhsa_kernel {NAME}
  .amdhsa_next_free_vgpr 256
  .amdhsa_next_free_sgpr {102 if stamps else 64}
  .amdhsa_accum_offset 256
  .amdhsa_group_segment_fixed_size 0
  .amdhsa_kernarg_size 64
  .amdhsa_user_sgpr_count 2
  .amdhsa_user_sgpr_kernarg_segment_ptr 1
  .amdhsa_system_sgpr_workgroup_id_x 1
.end_amdhsa_kernel
'''
    return head + a.text() + tail

if __name__ == '__main__':
    out = sys.argv[1]
    opt = {}
    for kv in sys.argv[2:]:
        k, v = kv.split('=', 1)
        opt[k] = {'True': True, 'False': False}.get(v, v.replace('+', ' '))
    open(out, 'w').write(gen(opt))
```

```python
import sys, math, struct
from asmlib import *

NAME = 'standalone__global_local_windowed_global_tokens__prompt_kernel'
def f2u(x): return struct.unpack('<I', struct.pack('<f', x))[0]

def gen(opt):
    a = Asm()
    NEG = 0xFF000000
    CSC = f2u(128 ** -0.5 * math.log2(math.e))
    KOFF, VOFF, SOFF = 0, 73728, 155648
    apos = int(opt.get('apos', 0))
    PART, STG = 0, 4096
    PARTML, LCNT, LNON = SOFF + 3072, SOFF + 3072 + 128, SOFF + 3072 + 132
    STGP = 272
    ldpol = opt.get('ldpol', '')
    qpol = opt.get('qpol', '')
    stpol = opt.get('stpol', 'sc0 sc1 nt')
    pk = opt.get('pk', True)
    N1 = int(opt.get('n1', 10))
    yp = opt.get('yp', '')
    RW = int(opt.get('rw', 3))
    FW = 7
    SW = 5
    CW, CC = int(opt.get('cw', 1)), 3
    merge = opt.get('merge', True)
    sQ, sK, sV, sO, sW = 20, 24, 28, 32, 36
    sWV, sH, sC, sHO, sQ0B = 40, 43, 44, 45, 46
    sT0, sT1, sT2, sT3 = 47, 48, 49, 50
    sBK = 62
    HW = 4
    sCS = 52; sKG0 = 54; sQB = 51; sEX = 56; sCMB = 58; sCNT = 59; sN = 63; sTOFF = 41; sZERO = 3
    VA = 0
    vSW, vSR, vOO, vT0 = 8, 9, 10, 11
    X8 = 12
    KF = 16; KG = 112; QA, QB = 128, 144; VG = 160; O = 192; S = 224
    BLO, BHI = 248, 252
    kf = lambda W, ks: KF + 16 * W + 4 * ks
    X = [O + 4 * n for n in range(8)] + [X8]
    vLANE, vI, vKGp, vDK, vDV, vDQ, vAG, vNEG, vAK = O+16, O+17, O+18, O+19, O+20, O+21, O+22, O+23, O+24
    vAVG, t1, t2, t3 = O+28, O+29, O+30, O+31
    vDQk = VG + 7
    vFLAG = VG + 3
    vM, vT = S + 22, S + 23

    stamps = opt.get('stamps', False)
    fine = opt.get('fine', False)
    nst = [0]
    def stamp(on=True):
        if stamps and on:
            a(f's_memrealtime s[{64+2*nst[0]}:{65+2*nst[0]}]')
            if nst[0]: a('s_waitcnt lgkmcnt(0)')
            nst[0] += 1
    M16 = 'v_mfma_f32_16x16x32_bf16'
    def mfma(d, x, y, c):
        return f'{M16} {vr(d,4)}, {vr(x,4)}, {vr(y,4)}, {c if isinstance(c,str) else vr(c,4)}'
    def only(w, lab):
        a(f's_cmp_lg_u32 s{sWV}, {w}')
        a(f's_cbranch_scc1 {lab}')

    stamp()
    if opt.get('clk'): a('s_memtime s[96:97]')
    a('s_load_dwordx16 s[4:19], s[0:1], 0')
    a(f'v_readfirstlane_b32 s{sWV}, v0')
    a('s_cmp_ge_u32 s2, 256')
    a('s_cbranch_scc1 L_end')
    a(f'v_lshrrev_b32 {vr(t1)}, 4, v0')
    a(f'v_xor_b32 {vr(vDK)}, {vr(t1)}, v0')
    a(f'v_and_b32 {vr(vDK)}, 15, {vr(vDK)}')
    a(f'v_lshl_add_u32 {vr(vDK)}, {vr(t1)}, 4, {vr(vDK)}')
    a(f's_bfe_u32 s{sC}, s2, 0x30003')
    a(f's_lshl_b32 s{sQ0B}, s{sC}, 16')
    a(f'v_lshl_add_u32 {vr(vDK)}, {vr(vDK)}, 4, s{sQ0B}')
    a('s_and_b32 s41, s2, 7')
    a(f's_lshr_b32 s{sH}, s2, 6')
    a(f's_lshl2_add_u32 s{sH}, s41, s{sH}')
    a(f's_lshl_b32 s{sHO}, s{sH}, 19')
    a(f's_lshl_b32 m0, s{sWV}, 4')
    a(f's_mov_b32 s{sK+2}, 0x80000')
    a(f's_mov_b32 s{sK+3}, 0x20000')
    a(f's_movk_i32 s{sCNT}, 17')
    cpf = opt.get('cpf', True)
    a.label('L_base')
    if cpf is True:
        a(f's_getpc_b64 s[{sEX}:{sEX+1}]')
        a(f'v_lshlrev_b32 v1, 5, v0')
        a(f'global_load_dword {vr(X8)}, v1, s[{sEX}:{sEX+1}]')
    a(f's_cmp_ge_u32 s{sWV}, 256')
    a('s_cbranch_scc1 L_helper')
    a('s_waitcnt lgkmcnt(0)')
    stamp()
    a(f's_add_u32 s{sK}, s6, s{sHO}')
    a(f's_addc_u32 s{sK+1}, s7, 0')
    thr = int(opt.get('thr', 0)); tl = [0]
    if thr: a('s_getreg_b32 s1, hwreg(HW_REG_XCC_ID, 0, 4)')
    def throttle():
        if thr:
            a('s_bitcmp1_b32 s1, 0')
            a(f's_cbranch_scc{opt.get("thpar", 1)} L_th{tl[0]}')
            a(f's_waitcnt vmcnt({thr-1})')
            a.label(f'L_th{tl[0]}')
            tl[0] += 1
    a.label('L_kloop')
    throttle()
    a(f'buffer_load_dwordx4 {vr(vDK)}, {sr(sK,4)}, 0 offen {opt.get("kpol", ldpol)} lds')
    a('s_add_u32 m0, m0, 0x1000')
    a(f'v_add_u32 {vr(vDK)}, 0x1000, {vr(vDK)}')
    a(f's_sub_u32 s{sCNT}, s{sCNT}, 1')
    a('s_cbranch_scc0 L_kloop')
    if 'dup' in opt:
        nd = int(opt['dup'])
        a(f's_sub_u32 m0, m0, {0x1000*18}')
        a(f'v_subrev_u32 {vr(vDK)}, {0x1000*18}, {vr(vDK)}')
        for i in range(nd):
            a(f'buffer_load_dwordx4 {vr(vDK)}, {sr(sK,4)}, 0 offen lds')
            a('s_add_u32 m0, m0, 0x1000')
            a(f'v_add_u32 {vr(vDK)}, 0x1000, {vr(vDK)}')
    stamp(opt.get('postk', False))
    def common():
        a(f's_lshr_b32 s{sWV}, s{sWV}, 6')
        a(f'v_and_b32 {vr(vLANE)}, 63, v0')
        a(f'v_and_b32 {vr(vI)}, 15, v0')
        a(f'v_bfe_u32 {vr(vKGp)}, v0, 4, 2')
        a(f's_lshl_b32 s{sT1}, s{sWV}, 10')
        a(f's_add_u32 s{sT2}, s{sT1}, s{sQ0B}')
        for s_ in (sV, sQ):
            a(f's_mov_b32 s{s_+2}, 0x80000')
            a(f's_mov_b32 s{s_+3}, 0x20000')
        a(f's_mov_b32 s{sW+2}, 0x4000')
        a(f's_mov_b32 s{sW+3}, 0x20000')
        a(f's_and_b32 s{sBK}, s{sWV}, 3')
        a(f's_lshl_b32 s{sBK}, s{sBK}, 1')
        a(f's_cmp_lt_u32 s{sWV}, 4')
        a(f's_addc_u32 s{sBK}, s{sBK}, 0')
        a(f's_cmp_eq_u32 s{sC}, 0')
        a(f's_cselect_b32 s{sT3}, 0x40000000, 0')
        a(f's_lshl_b32 s{sT0}, s{sBK}, 13')
        a(f's_add_u32 s{sT0}, s{sT0}, s{sQ0B}')
        a(f'v_lshlrev_b32 {vr(vDQ)}, 4, {vr(vKGp)}')
        a(f'v_lshl_add_u32 {vr(vDQ)}, {vr(vI)}, 8, {vr(vDQ)}')
        a(f'v_add_u32 {vr(vDQ)}, s{sT0}, {vr(vDQ)}')
        a(f'v_lshlrev_b32 {vr(t3)}, 4, {vr(vLANE)}')
        a(f's_lshl_b32 s41, s{sH}, 14')
        a(f's_lshl_b32 s42, s{sC}, 11')
    common()
    a(f's_mov_b32 s{sN}, 0')
    def srds():
        a(f's_add_u32 s{sV}, s8, s{sHO}')
        a(f's_addc_u32 s{sV+1}, s9, 0')
        a(f's_add_u32 s{sQ}, s4, s{sHO}')
        a(f's_addc_u32 s{sQ+1}, s5, 0')
        a(f's_add_u32 s{sW}, s18, s41')
        a(f's_addc_u32 s{sW+1}, s19, 0')
    srds()
    a('s_branch L_v1')
    a.label('L_helper')
    a('s_setprio 3')
    a('s_memrealtime s[60:61]')
    if cpf == 'one':
        a(f's_cmp_lg_u32 s{sWV}, {64*6}')
        a('s_cbranch_scc1 L_nocpf')
        a(f's_getpc_b64 s[{sEX}:{sEX+1}]')
        a(f's_lshl_b32 s{sT0}, s{sC}, 11')
        a(f'v_and_b32 v1, 15, v0')
        a(f'v_lshl_add_u32 v1, v1, 7, s{sT0}')
        a('s_mov_b64 exec, 0xffff')
        a(f'global_load_dword {vr(X8)}, v1, s[{sEX}:{sEX+1}]')
        a('s_mov_b64 exec, -1')
        a.label('L_nocpf')
    common()
    a(f's_sub_u32 s{sT0}, s{sT3}, 0x2000')
    a(f'v_add_u32 {vr(t1)}, s{sT0}, {vr(vDQ)}')
    a(f'v_add_u32 {vr(t2)}, 0x1000, {vr(t1)}')
    a(f's_mov_b32 m0, {SOFF}')
    a('s_waitcnt lgkmcnt(0)')
    if stamps:
        nst[0] -= 1
        stamp()
    a(f's_add_u32 s{sK}, s6, s{sHO}')
    a(f's_addc_u32 s{sK+1}, s7, 0')
    srds()
    if stamps and opt.get('postk'):
        nst[0] -= 1
        stamp()
    a(f's_or_b32 s{sN}, s60, 1')
    if opt.get('leakxcc'):
        a('s_getreg_b32 s61, hwreg(HW_REG_XCC_ID, 0, 4)')
        a(f's_and_b32 s{sN}, s60, 0xffffffe0')
        a(f's_lshl1_add_u32 s{sN}, s61, s{sN}')
        a(f's_or_b32 s{sN}, s{sN}, 1')
    slate = opt.get('slate', False)
    def specials():
        a(f's_mov_b32 m0, {SOFF}')
        only(FW, 'L_noclear')
        a(f's_lshl_b32 s{sT0}, s{sH}, 3')
        a(f'v_mov_b32 {vr(S+4)}, s{sT0}')
        a(f'v_mov_b32 {vr(S+5)}, s{sN}')
        a(f'v_mov_b32 {vr(S+6)}, {LCNT}')
        a(f'v_mov_b32 {vr(S+7)}, 0')
        a('s_mov_b64 exec, 1')
        a(f's_cmp_lg_u32 s{sC}, {CC}')
        a('s_cbranch_scc1 L_nopub')
        a(f'global_store_dword {vr(S+4)}, {vr(S+5)}, s[16:17] sc0 sc1')
        a.label('L_nopub')
        a(f'ds_write_b32 {vr(S+6)}, {vr(S+7)}')
        a('s_mov_b64 exec, -1')
        if opt.get('wstouch'):
            pol = {'ld': '', 'ldsc': 'sc0 sc1'}.get(opt['wstouch'])
            if pol is not None:
                a(f'buffer_load_dwordx4 {vr(S+8,4)}, {vr(t3)}, {sr(sW,4)}, s42 offen {pol}')
                a(f'buffer_load_dwordx4 {vr(S+12,4)}, {vr(t3)}, {sr(sW,4)}, s42 offen offset:1024 {pol}')
            else:
                for n in range(4): a(f'v_mov_b32 {vr(S+8+n)}, 0')
                a(f'buffer_store_dwordx4 {vr(S+8,4)}, {vr(t3)}, {sr(sW,4)}, s42 offen sc0 sc1')
                a(f'buffer_store_dwordx4 {vr(S+8,4)}, {vr(t3)}, {sr(sW,4)}, s42 offen offset:1024 sc0 sc1')
        a.label('L_noclear')
        only(SW, 'L_nosmall')
        for n, srd in enumerate((sK, sQ, sV)):
            if n:
                a(f's_mov_b32 m0, {SOFF + 1024*n}')
                a('s_nop 0')
            a(f'buffer_load_dwordx4 {vr(t3)}, {sr(srd,4)}, 0 offen lds')
        a.label('L_nosmall')
    if not slate: specials()
    if opt.get('tch'):
        only(6, 'L_notch')
        a(f'v_and_b32 {vr(S+8)}, 1, {vr(vLANE)}')
        a(f'v_mul_u32_u24 {vr(S+8)}, 0xff00, {vr(S+8)}')
        a(f'v_add_u32 {vr(S+8)}, s{sQ0B}, {vr(S+8)}')
        a('s_mov_b64 exec, 3')
        a(f'buffer_load_dword {vr(S+9)}, {vr(S+8)}, {sr(sV,4)}, 0 offen')
        a(f'buffer_load_dword {vr(S+10)}, {vr(S+8)}, {sr(sQ,4)}, 0 offen')
        if opt['tch'] == 'o':
            a(f'v_add_u32 {vr(S+8)}, s{sHO}, {vr(S+8)}')
            a(f'global_load_dword {vr(S+11)}, {vr(S+8)}, s[14:15]')
        a('s_mov_b64 exec, -1')
        a.label('L_notch')
    hlate = opt.get('hlate', '')
    def halo_k():
        only(HW, 'L_nohalo')
        if hlate:
            a(f's_sub_u32 s{sT0}, s{sT3}, 0x2000')
            a(f'v_add_u32 {vr(t1)}, s{sT0}, {vr(vDQ)}')
            a(f'v_add_u32 {vr(t2)}, 0x1000, {vr(t1)}')
        for T in range(2):
            for ks in range(4):
                a(f'buffer_load_dwordx4 {vr(kf(T,ks),4)}, {vr(t1+T)}, {sr(sK,4)}, 0 offen offset:{64*ks}')
        a.label('L_nohalo')
    if not hlate: halo_k()
    a('s_setprio 0')
    v2h = int(opt.get('v2h', 0))
    def vaddr(i0):
        a(f's_and_b32 s{sT0}, s{sWV}, 1')
        a(f's_lshl_b32 s{sT0}, s{sT0}, 2')
        a(f'v_add_lshl_u32 {vr(vDV)}, s{sT0}, {vr(vKGp)}, 1')
        a(f'v_xor_b32 {vr(vDV)}, {vr(vDV)}, {vr(vI)}')
        a(f'v_lshlrev_b32 {vr(vDV)}, 4, {vr(vDV)}')
        a(f'v_lshl_add_u32 {vr(vDV)}, {vr(vKGp)}, 8, {vr(vDV)}')
        a(f's_add_u32 s{sT2}, s{sT2}, {(0x1000*i0 - 0x2000) & 0xffffffff}')
        a(f'v_add_u32 {vr(vDV)}, s{sT2}, {vr(vDV)}')
        a(f's_add_u32 m0, s{sT1}, {VOFF + 0x1000*i0}')
    if v2h:
        vaddr(20 - v2h - 1 - 1)
    a('s_branch L_nov1')
    a.label('L_v1')
    def vpiece(i):
        throttle()
        if i:
            a('s_add_u32 m0, m0, 0x1000')
            a(f'v_add_u32 {vr(vDV)}, 0x1000, {vr(vDV)}')
        if i < 2:
            a(f'v_add_u32 {vr(t1)}, s{sT3}, {vr(vDV)}')
            a(f'buffer_load_dwordx4 {vr(t1)}, {sr(sV,4)}, 0 offen {ldpol} lds')
        else:
            a(f'buffer_load_dwordx4 {vr(vDV)}, {sr(sV,4)}, 0 offen {ldpol} lds')
    vaddr(0)
    for i in range(N1): vpiece(i)
    a.label('L_nov1')
    stamp()
    if hlate == 'low': halo_k()

    a(f's_add_u32 s{sO}, s14, s{sHO}')
    a(f's_addc_u32 s{sO+1}, s15, 0')
    a(f's_mov_b32 s{sO+2}, 0x80000')
    a(f's_mov_b32 s{sO+3}, 0x20000')
    a(f's_movk_i32 s{sTOFF}, 0x1000')
    a(f's_mov_b32 s{sZERO}, 0')
    a(f's_mov_b32 s{sCS}, 0x{CSC:08x}')
    a(f's_mov_b32 s{sCS+1}, 0x{CSC:08x}')
    a(f'v_mov_b32 {vr(vNEG)}, 0x{NEG:08x}')
    a(f'v_lshlrev_b32 {vr(t2)}, 2, {vr(vKGp)}')
    a(f'v_cmp_eq_u32 {sr(sKG0,2)}, 0, {vr(vKGp)}')
    for r in range(4):
        a(f'v_add_u32 {vr(t1)}, {r}, {vr(t2)}')
        a(f'v_cmp_ge_u32 vcc, {vr(t1)}, {vr(vI)}')
        a(f'v_cmp_le_u32 s[60:61], {vr(t1)}, {vr(vI)}')
        a('s_nop 0')
        a(f'v_cndmask_b32 {vr(BLO+r)}, {vr(vNEG)}, 0, vcc')
        a(f'v_cndmask_b32 {vr(BHI+r)}, {vr(vNEG)}, 0, s[60:61]')
    a(f's_lshl_b32 s{sT0}, s{sBK}, 13')
    a(f'v_xor_b32 {vr(t1)}, {vr(vKGp)}, {vr(vI)}')
    a(f'v_lshlrev_b32 {vr(t1)}, 4, {vr(t1)}')
    a(f'v_lshl_add_u32 {vr(t1)}, {vr(vI)}, 8, {vr(t1)}')
    a(f'v_add_u32 {vr(vAK)}, s{sT0}, {vr(t1)}')
    for ks in range(1, 4):
        a(f'v_xor_b32 {vr(vAK+ks)}, {64*ks}, {vr(vAK)}')
    a(f'v_and_b32 {vr(t1)}, 1, {vr(vI)}')
    a(f'v_lshlrev_b32 {vr(vNEG)}, 3, {vr(t1)}')
    a(f'v_lshlrev_b32 {vr(t1)}, 8, {vr(t1)}')
    a(f'v_lshl_add_u32 {vr(t1)}, {vr(vKGp)}, 4, {vr(t1)}')
    a(f'v_add_u32 {vr(vAG)}, {SOFF}, {vr(t1)}')
    a(f'v_bfe_u32 {vr(t1)}, {vr(vLANE)}, 2, 2')
    a(f'v_and_b32 {vr(t2)}, 3, {vr(vLANE)}')
    a(f'v_lshlrev_b32 {vr(t2)}, 3, {vr(t2)}')
    a(f'v_lshl_add_u32 {vr(t1)}, {vr(t1)}, 8, {vr(t2)}')
    a(f'v_add_u32 {vr(vAVG)}, {SOFF+2048}, {vr(t1)}')
    a(f'v_lshrrev_b32 {vr(t1)}, 2, {vr(vLANE)}')
    a(f'v_and_b32 {vr(vT0)}, 7, {vr(t1)}')
    a(f'v_lshl_add_u32 {vr(t2)}, {vr(vT0)}, 5, {vr(t2)}')
    a(f'v_lshl_add_u32 {vr(t2)}, {vr(t1)}, 8, {vr(t2)}')
    a(f's_add_u32 s{sT1}, s{sT0}, {VOFF}')
    a(f'v_add_u32 {vr(VA)}, s{sT1}, {vr(t2)}')
    for t in range(1, 8):
        a(f'v_xor_b32 {vr(VA+t)}, {32*t}, {vr(VA)}')
    a(f's_mul_i32 s{sT1}, s{sWV}, {32*STGP}')
    a(f's_add_u32 s{sT1}, s{sT1}, {STG}')
    a(f'v_mul_u32_u24 {vr(t1)}, {STGP}, {vr(vI)}')
    a(f'v_lshl_add_u32 {vr(t1)}, {vr(vKGp)}, 3, {vr(t1)}')
    a(f'v_add_u32 {vr(vSW)}, s{sT1}, {vr(t1)}')
    a(f'v_mul_u32_u24 {vr(t1)}, {STGP}, {vr(vKGp)}')
    a(f'v_lshl_add_u32 {vr(t1)}, {vr(vI)}, 4, {vr(t1)}')
    a(f'v_add_u32 {vr(vSR)}, s{sT1}, {vr(t1)}')
    a(f's_add_u32 s{sT0}, s{sT0}, s{sQ0B}')
    a(f'v_add_u32 {vr(vOO)}, s{sT0}, {vr(t3)}')
    a(f's_lshr_b32 s{sQB}, s{sT0}, 8')
    a(f's_cmp_eq_u32 s{sQB}, 0')
    a(f's_cselect_b32 s{sEX}, 0, -1')
    a(f's_mov_b32 s{sEX+1}, -1')
    a(f's_cmp_eq_u32 s{sQB}, {256*CC+32*(2*CW+1)}')
    a(f's_cselect_b32 s{sCMB}, 1, 0')
    a(f's_lshl_b32 s{sT0}, s{sWV}, 4')
    a(f's_add_u32 s{sT0}, s{sT0}, {PARTML}')
    a(f'v_add_u32 {vr(vNEG)}, s{sT0}, {vr(vNEG)}')

    spf = [int(x) for x in opt.get('spf', '0,0').split(',')]
    spstep = int(opt.get('spstep', 128)); sptile = opt.get('sptile', 'B')
    def sp_offsets():
        o = []
        for half in ([1, 0] if sptile == 'B' else [0, 1]):
            for blk in (1, 0):
                o += [8192*blk + 4096*half + x for x in range(0, 4096, spstep)]
        return o
    spo = sp_offsets()
    def sprefetch(n):
        for _ in range(n):
            if spo: a(f's_load_dword s61, s[10:11], {spo.pop(0)}')
    if sum(spf):
        a(f's_cmp_lt_u32 s{sWV}, 4')
        a('s_cbranch_scc1 L_nosp')
        a(f's_lshl_b32 s{sT0}, s{sBK}, 13')
        a(f's_add_u32 s{sT0}, s{sT0}, s{sQ0B}')
        a(f's_add_u32 s10, s{sQ}, s{sT0}')
        a(f's_addc_u32 s11, s{sQ+1}, 0')
        sprefetch(spf[0])
        a.label('L_nosp')
    if slate:
        a(f's_cmp_lt_u32 s{sWV}, 4')
        a('s_cbranch_scc1 L_nospec')
        for _ in range(int(opt.get('sdelay', 0))): pass
        a('s_setprio 3')
        specials()
        a('s_setprio 0')
        a.label('L_nospec')
    a(f's_waitcnt vmcnt({N1}) lgkmcnt(0)')
    a(f's_cmp_lt_u32 s{sWV}, 4')
    a('s_cbranch_scc1 L_kw')
    a(f's_cmp_eq_u32 s{sWV}, {FW}')
    a('s_cbranch_scc1 L_kw')
    a('s_waitcnt vmcnt(0)')
    a.label('L_kw')
    stamp(opt.get('prek', False))
    a('s_barrier')
    stamp()
    a(f's_cmp_ge_u32 s{sWV}, 4')
    a('s_cbranch_scc1 L_nov2')
    for i in range(N1, 20 - v2h): vpiece(i)
    if v2h:
        a('s_branch L_nov2b')
    a.label('L_nov2')
    if v2h:
        a(f's_setprio {opt.get("v2p", 3)}')
        for i in range(20 - v2h, 20): vpiece(i)
        a('s_setprio 0')
        a.label('L_nov2b')
    stamp(fine)
    QG = O
    for W in (2, 3, 4, 5):
        for ks in range(4):
            a(f'ds_read_b128 {vr(kf(W,ks),4)}, {vr(vAK+ks)} offset:{4096*(W-2)}')
    for ks in range(4):
        a(f'ds_read_b128 {vr(KG+4*ks,4)}, {vr(vAG)} offset:{64*ks}')
    for t in range(8):
        a(f'ds_read_b64_tr_b16 {vr(VG+4*t+2,2)}, {vr(vAVG)} offset:{32*t}')
    a(f's_cmp_eq_u32 s{sWV}, {HW}')
    a('s_cbranch_scc1 L_k01done')
    for ks in range(4):
        a(f'v_subrev_u32 {vr(vAK+ks)}, 0x2000, {vr(vAK+ks)}')
    for W in (0, 1):
        for ks in range(4):
            a(f'ds_read_b128 {vr(kf(W,ks),4)}, {vr(vAK+ks)} offset:{4096*W}')
    a.label('L_k01done')
    def issue_qa():
        if opt.get('qprio'): a('s_setprio 3')
        for ks in range(4):
            a(f'buffer_load_dwordx4 {vr(QA+4*ks,4)}, {vr(vDQ)}, {sr(sQ,4)}, 0 offen offset:{64*ks} {qpol}')
        if opt.get('qprio'): a('s_setprio 0')

    def xred(m, t, op='v_max_f32'):
        a(f'v_mov_b32 {vr(t)}, {vr(m)}')
        a.nop(2)
        a(f'v_permlane16_swap_b32 {vr(m)}, {vr(t)}')
        a(f'{op} {vr(m)}, {vr(m)}, {vr(t)}')
        a(f'v_mov_b32 {vr(t)}, {vr(m)}')
        a.nop(2)
        a(f'v_permlane32_swap_b32 {vr(m)}, {vr(t)}')
        a(f'{op} {vr(m)}, {vr(m)}, {vr(t)}')
    def maxtree_l(vals, m, first=True):
        out = []; rest = list(vals)
        if first:
            out.append(f'v_max3_f32 {vr(m)}, {vr(rest[0])}, {vr(rest[1])}, {vr(rest[2])}'); rest = rest[3:]
        while len(rest) >= 2:
            out.append(f'v_max3_f32 {vr(m)}, {vr(m)}, {vr(rest[0])}, {vr(rest[1])}'); rest = rest[2:]
        if rest:
            out.append(f'v_max_f32 {vr(m)}, {vr(m)}, {vr(rest[0])}')
        return out
    def fma_l(vals, mc):
        if pk:
            return [f'v_pk_fma_f32 {vr(vals[n],2)}, {vr(vals[n],2)}, {sr(sCS,2)}, {vr(mc,2)} op_sel_hi:[1,1,0] neg_lo:[0,0,1] neg_hi:[0,0,1]' for n in range(0, len(vals), 2)]
        return [f'v_fma_f32 {vr(v)}, {vr(v)}, s{sCS}, -{vr(mc)}' for v in vals]
    exp_l = lambda vals: [f'v_exp_f32 {vr(v)}, {vr(v)}' for v in vals]
    cvt_l = lambda dst, src, n: [f'v_cvt_pk_bf16_f32 {vr(dst+k)}, {vr(src+2*k)}, {vr(src+2*k+1)}' for k in range(n)]

    def vread(dst, t, W):
        return f'ds_read_b64_tr_b16 {vr(dst,2)}, {vr(VA+t)} offset:{4096*W}'
    a(f's_cmp_lt_u32 s{sWV}, 4')
    a('s_cbranch_scc1 L_gk')
    sprefetch(spf[1])
    only(FW, 'L_notag')
    a('s_setprio 3')
    a(f's_lshl_b32 s{sT0}, s{sH}, 3')
    a(f'v_mov_b32 {vr(S+4)}, s{sT0}')
    a(f'v_mov_b32 {vr(S+5)}, s{sN}')
    a(f'v_mov_b32 {vr(S+6)}, {LCNT}')
    a(f'global_load_dword {vr(S+7)}, {vr(S+4)}, s[16:17]')
    a('s_setprio 0')
    issue_qa()
    a('s_waitcnt vmcnt(4)')
    if opt.get('forcefb'): a(f'v_mov_b32 {vr(S+7)}, 0')
    a(f's_cmp_eq_u32 s{sC}, {CC}')
    a('s_cselect_b64 vcc, -1, 0')
    a(f'v_cndmask_b32 {vr(S+7)}, {vr(S+7)}, {vr(S+5)}, vcc')
    a('s_mov_b64 exec, 1')
    a(f'ds_write_b32 {vr(S+6)}, {vr(S+7)} offset:4')
    a('s_mov_b64 exec, -1')
    a('s_branch L_tagdone')
    a.label('L_notag')
    if hlate == 'pre': halo_k()
    issue_qa()
    if hlate == 'post': halo_k()
    if v2h: a('s_waitcnt vmcnt(4)')
    a.label('L_tagdone')
    a('s_waitcnt lgkmcnt(0)')
    a(f'v_add_u32 {vr(vDQk)}, 0x1000, {vr(vDQ)}')
    stamp(fine)
    a('s_barrier')
    for t in range(8):
        a(vread(X[t+1], t, 0)); a(vread(X[t+1]+2, t, 1))
    a('s_branch L_gdone')
    a.label('L_gk')
    for ks in range(4):
        a(f'ds_read_b128 {vr(QG+4*ks,4)}, {vr(vAG)} offset:{1024+64*ks}')
    issue_qa()
    a('s_waitcnt lgkmcnt(0)')
    for T in range(4):
        for ks in range(4):
            a(mfma(S+4*T, kf(T,ks), QG+4*ks, '0' if ks == 0 else S+4*T))
    a(f'v_add_u32 {vr(vDQk)}, 0x1000, {vr(vDQ)}')
    a.nop(7)
    for l in maxtree_l([S+x for x in range(16)], vM): a(l)
    xred(vM, vT)
    a(f'v_mul_f32 {vr(vM)}, s{sCS}, {vr(vM)}')
    for l in fma_l([S+x for x in range(16)], vM): a(l)
    for l in exp_l([S+x for x in range(16)]): a(l)
    a.nop(1)
    a(f'v_add_f32 {vr(vT)}, {vr(S)}, {vr(S+1)}')
    for x in range(2, 16):
        a(f'v_add_f32 {vr(vT)}, {vr(vT)}, {vr(S+x)}')
    for l in cvt_l(S, S, 8): a(l)
    xred(vT, vT0, 'v_add_f32')
    a(f'ds_write_b64 {vr(vNEG)}, {vr(vM,2)}')
    a(f'v_mbcnt_lo_u32_b32 {vr(vT0)}, -1, 0')
    a(f's_lshl_b32 s{sT0}, s{sWV}, 10')
    a(f'v_lshl_add_u32 {vr(vT0)}, {vr(vT0)}, 3, s{sT0}')
    if stamps and fine:
        nst[0] -= 1
        stamp()
    a('s_waitcnt vmcnt(4) lgkmcnt(0)')
    a('s_barrier')
    gb = [QB + 4*n for n in range(4)] + [S + 8 + 4*n for n in range(4)]
    for t in range(8):
        a(vread(gb[t], t, 2)); a(vread(gb[t]+2, t, 3))
    for t in range(8):
        a('s_waitcnt lgkmcnt(14)')
        a(mfma(gb[t], S+4, gb[t], '0'))
        a(vread(X[t+1], t, 0)); a(vread(X[t+1]+2, t, 1))
    for t in range(8):
        a(f's_waitcnt lgkmcnt({14-2*t})')
        a(mfma(gb[t], S, X[t+1], gb[t]))
    a('s_mov_b64 exec, 1')
    a(f'v_mov_b32 {vr(S)}, {LCNT}')
    a(f'v_mov_b32 {vr(S+1)}, 1')
    a('s_mov_b64 exec, 0xffff')
    for t in range(8):
        a(f'ds_write_b64 {vr(vT0)}, {vr(gb[t],2)} offset:{PART+128*t}')
    a('s_mov_b64 exec, 1')
    a(f'ds_add_u32 {vr(S)}, {vr(S+1)}')
    a('s_mov_b64 exec, -1')
    a.label('L_gdone')
    stamp()

    emit = lambda ls: [a(l) for l in ls]
    def combine(og, mg, tm):
        NP = len(og)
        emit(maxtree_l([mg[n] for n in range(NP)], tm))
        for n in range(NP):
            a(f'v_sub_f32 {vr(mg[n])}, {vr(mg[n])}, {vr(tm)}')
        for n in range(NP):
            a(f'v_exp_f32 {vr(mg[n])}, {vr(mg[n])}')
        a.nop(1)
        for e in range(4):
            a(f'v_mul_f32 {vr(og[0][e])}, {vr(og[0][e])}, {vr(mg[0])}')
        a(f'v_mul_f32 {vr(mg[0]+1)}, {vr(mg[0]+1)}, {vr(mg[0])}')
        for n in range(1, NP):
            for e in range(4):
                a(f'v_fmac_f32 {vr(og[0][e])}, {vr(og[n][e])}, {vr(mg[n])}')
            a(f'v_fmac_f32 {vr(mg[0]+1)}, {vr(mg[n]+1)}, {vr(mg[n])}')

    def issue_qb():
        for ks in range(4):
            a(f'buffer_load_dwordx4 {vr(QB+4*ks,4)}, {vr(vDQk)}, {sr(sQ,4)}, 0 offen offset:{64*ks} {qpol}')
        a(f'v_mov_b32 {vr(vDQk)}, 0')
    issue_qb()
    if opt.get('otouch'):
        only(FW, 'L_nootouch')
        a(f's_mov_b32 m0, {PARTML+256}')
        a('s_mov_b64 exec, 1')
        a(f'buffer_load_dword {vr(vOO)}, {sr(sO,4)}, 0 offen lds')
        a(f'buffer_load_dword {vr(vOO)}, {sr(sO,4)}, 0 offen offset:512 lds')
        a('s_mov_b64 exec, -1')
        a('s_waitcnt vmcnt(6)')
        a('s_branch L_tileA')
        a.label('L_nootouch')
    a(f's_cmp_eq_u32 s{sWV}, {RW}')
    a('s_cbranch_scc1 L_reduce')
    a(f's_cmp_eq_u32 s{sCMB}, 0')
    a('s_cbranch_scc1 L_noflag')
    a(f'v_mov_b32 {vr(vT0)}, {LNON}')
    a(f'ds_read_b32 {vr(vT0)}, {vr(vT0)}')
    a('s_waitcnt lgkmcnt(0)')
    a(f'v_readfirstlane_b32 s{sN}, {vr(vT0)}')
    a.label('L_noflag')
    a('s_waitcnt vmcnt(4)')
    a('s_branch L_tileA')
    a.label('L_reduce')
    R0 = S
    a(f'v_mbcnt_lo_u32_b32 {vr(R0)}, -1, 0')
    a(f'v_mbcnt_hi_u32_b32 {vr(R0)}, -1, {vr(R0)}')
    a(f'v_lshrrev_b32 {vr(R0+1)}, 5, {vr(R0)}')
    a(f'v_and_b32 {vr(R0+3)}, 31, {vr(R0)}')
    a(f'v_lshlrev_b32 {vr(R0+3)}, 5, {vr(R0+3)}')
    a(f'v_lshl_add_u32 {vr(R0+3)}, {vr(R0+1)}, 2, {vr(R0+3)}')
    a(f'v_lshlrev_b32 {vr(R0+1)}, 3, {vr(R0+1)}')
    a(f'v_add_u32 {vr(R0+1)}, {PARTML}, {vr(R0+1)}')
    a(f'v_lshlrev_b32 {vr(R0)}, 4, {vr(R0)}')
    a(f'v_mov_b32 {vr(R0+2)}, {LCNT}')
    a(f's_mov_b32 s{sCNT}, 0')
    a.label('L_lspin')
    a(f'ds_read_b64 {vr(S+4,2)}, {vr(R0+2)}')
    a(f's_add_u32 s{sCNT}, s{sCNT}, 1')
    a('s_waitcnt lgkmcnt(0)')
    a(f'v_readfirstlane_b32 s{sT0}, {vr(S+4)}')
    a(f'v_readfirstlane_b32 s{sN}, {vr(S+5)}')
    a(f's_cmp_ge_u32 s{sCNT}, 0x100000')
    a('s_cbranch_scc1 L_lok')
    a(f's_cmp_lt_u32 s{sT0}, 4')
    a('s_cbranch_scc1 L_lspin')
    a.label('L_lok')
    mg = [S+4, S+6, O, O+2]
    G0 = S + 8
    og = [[G0+4*n+e for e in range(4)] for n in range(4)]
    for n in range(4):
        a(f'ds_read_b64 {vr(mg[n],2)}, {vr(R0+1)} offset:{16*n}')
    for n in range(4):
        if n: a(f'v_add_u32 {vr(R0+3)}, 1024, {vr(R0+3)}')
        a(f'ds_read2_b32 {vr(G0+4*n,2)}, {vr(R0+3)} offset0:0 offset1:2')
        a(f'ds_read2_b32 {vr(G0+4*n+2,2)}, {vr(R0+3)} offset0:4 offset1:6')
    a('s_waitcnt lgkmcnt(0)')
    combine(og, mg, R0+1)
    a(f'v_mov_b32 {vr(G0+4)}, {vr(G0+3)}')
    a(f'v_mov_b32 {vr(G0+5)}, {vr(R0+1)}')
    a(f'v_mov_b32 {vr(G0+6)}, {vr(mg[0]+1)}')
    a(f'v_mov_b32 {vr(G0+7)}, s{sN}')
    a(f'v_mov_b32 {vr(G0+3)}, s{sN}')
    a(f'buffer_store_dwordx4 {vr(G0+4,4)}, {vr(R0)}, {sr(sW,4)}, s42 offen offset:1024 sc0 sc1')
    a(f'buffer_store_dwordx4 {vr(G0,4)}, {vr(R0)}, {sr(sW,4)}, s42 offen sc0 sc1')
    a(f's_cmp_lg_u32 s{sN}, 0')
    a('s_cbranch_scc1 L_tagged')
    a('s_waitcnt vmcnt(0)')
    a(f's_lshl_b32 s{sT0}, s{sH}, 3')
    a(f's_lshl_b32 s{sT1}, 1, s{sC}')
    a(f'v_mov_b32 {vr(R0)}, s{sT0}')
    a(f'v_mov_b32 {vr(R0+1)}, s{sT1}')
    a('s_mov_b64 exec, 1')
    a(f'global_atomic_or {vr(R0)}, {vr(R0+1)}, s[16:17] offset:4 sc1')
    a('s_mov_b64 exec, -1')
    a.label('L_tagged')
    a('s_waitcnt vmcnt(6)')
    a.label('L_tileA')
    def yprio(tag):
        if yp == tag:
            a(f's_cmp_lt_u32 s{sWV}, 4')
            a(f's_cbranch_scc1 L_yp{tag}')
            a('s_setprio 1')
            a.label(f'L_yp{tag}')
    yprio('a')
    stamp()

    def inter(ms, vs, per=2):
        vs = list(vs)
        for m in ms:
            a(m)
            for _ in range(per):
                if vs: a(vs.pop(0))
        for v in vs: a(v)

    HB = kf(2, 0)
    def hand_loads():
        a(f'v_mbcnt_lo_u32_b32 {vr(KG)}, -1, 0')
        a(f'v_mbcnt_hi_u32_b32 {vr(KG)}, -1, {vr(KG)}')
        a(f'v_lshlrev_b32 {vr(KG)}, 4, {vr(KG)}')
        for n in range(8):
            a(f's_movk_i32 s{sT0}, {2048*n}')
            a(f'buffer_load_dwordx4 {vr(HB+8*n,4)}, {vr(KG)}, {sr(sW,4)}, s{sT0} offen sc0 sc1')
            a(f'buffer_load_dwordx4 {vr(HB+8*n+4,4)}, {vr(KG)}, {sr(sW,4)}, s{sT0} offen offset:1024 sc0 sc1')

    buf = [kf(0, n) for n in range(4)] + [QA + 4*n for n in range(4)]
    SLOTW = {0: [0, 1, 2, 3, 4], 1: [4, 5, 2, 3, 1]}
    def qk(tau, sl):
        Q = QA if tau == 0 else QB
        if sl == 'G':
            return [mfma(S+20, KG+4*ks, Q+4*ks, '0' if ks == 0 else S+20) for ks in range(4)]
        W = SLOTW[tau][sl]
        c0 = BLO if W == tau else BHI if W == tau + 4 else '0'
        return [mfma(S+4*sl, kf(W,ks), Q+4*ks, c0 if ks == 0 else S+4*sl) for ks in range(4)]
    def edge_test(tau, lab):
        a(f's_sub_u32 s{sT0}, s{sQB}, {48 - 16*tau}')
        a(f's_cmp_lt_u32 s{sT0}, 1968')
        a(f's_cbranch_scc1 {lab}')
    def edge_mask(tau, tr):
        a(f'v_mbcnt_lo_u32_b32 {vr(tr)}, -1, 0')
        a(f'v_mbcnt_hi_u32_b32 {vr(tr)}, -1, {vr(tr)}')
        a(f'v_lshrrev_b32 {vr(tr)}, 4, {vr(tr)}')
        a(f's_sub_u32 s{sT0}, s{sQB}, 34')
        a(f's_movk_i32 s{sT1}, 2046')
        a(f'v_lshl_add_u32 {vr(tr)}, {vr(tr)}, 2, s{sT0}')
        a(f'v_mov_b32 {vr(vM)}, 0x{NEG:08x}')
        a('s_nop 3')
        for sl in range(5):
            for r in range(4):
                a(f'v_add_u32 {vr(vT)}, {16*SLOTW[tau][sl]+r}, {vr(tr)}')
                a(f'v_cmp_gt_u32 vcc, s{sT1}, {vr(vT)}')
                a('s_nop 1')
                a(f'v_cndmask_b32 {vr(S+4*sl+r)}, {vr(vM)}, {vr(S+4*sl+r)}, vcc')
        for l in maxtree_l([S+x for x in range(22)], vM): a(l)
    def epi(t, tau=0):
        l = [f'v_mul_f32 {vr(O+4*t+e)}, {vr(O+4*t+e)}, {vr(vT0)}' for e in range(4)]
        l += [f'v_cvt_pk_bf16_f32 {vr(O+4*t)}, {vr(O+4*t)}, {vr(O+4*t+1)}',
              f'v_cvt_pk_bf16_f32 {vr(O+4*t+1)}, {vr(O+4*t+2)}, {vr(O+4*t+3)}',
              f'ds_write_b64 {vr(vSW)}, {vr(O+4*t,2)} offset:{32*t + 16*STGP*tau}']
        return l
    def stage_reads(tau=0, R=O):
        return [f'ds_read_b128 {vr(R+4*j,4)}, {vr(vSR)} offset:{4*STGP*j + 16*STGP*tau}' for j in range(4)]
    def stores(tau, R=O, extra=0):
        for j in range(4):
            a(f's_waitcnt lgkmcnt({3-j+extra})')
            if tau == 0 and j == 0: a(f's_mov_b64 exec, {sr(sEX,2)}')
            a(f'buffer_store_dwordx4 {vr(R+4*j,4)}, {vr(vOO)}, {sr(sO,4)}, s{sTOFF if tau else sZERO} offen offset:{1024*j} {stpol}')
            if tau == 0 and j == 0: a('s_mov_b64 exec, -1')
    RA = kf(1, 0)
    def late_a():
        for l in stage_reads(0, RA): a(l)
        stores(0, RA)
    def softmax_pv(tau):
        m = vM
        xred(m, vT)
        a(f'v_mul_f32 {vr(m)}, s{sCS}, {vr(m)}')
        set0 = [S+x for x in range(8)]; set1 = [S+8+x for x in range(8)]; set2 = [S+16+x for x in range(6)]
        for l in fma_l(set0, m): a(l)
        f2 = fma_l(set2, m); f1 = fma_l(set1, m)
        for l in exp_l(set0): a(l)
        a(f2[0])
        for l in cvt_l(S, S, 4): a(l)
        a(f2[1])
        a('s_waitcnt lgkmcnt(0)' if tau == 1 else 's_waitcnt lgkmcnt(8)')
        if tau == 1 and apos == 1: late_a()
        ONES, LACC = S+4, S+20
        v2 = f2[2:] + exp_l(set2) + [f'v_mov_b32 {vr(ONES+n)}, 0x3f803f80' for n in range(4)] + cvt_l(S+16, S+16, 3) \
             + [f'v_mov_b32 {vr(S+19)}, 0', f'v_cndmask_b32 {vr(S+18)}, 0, {vr(S+18)}, {sr(sKG0,2)}']
        inter([mfma(X[t], X[t+1], S, '0') for t in range(8)], v2 + f1[:2])
        v1 = f1[2:] + exp_l(set1) + [f'v_mov_b32 {vr(vT0)}, 0'] + cvt_l(S+8, S+8, 4)
        inter([mfma(O+4*t, VG+4*t, S+16, O+4*t) for t in range(8)], v1)
        a(mfma(LACC, ONES, S, '0'))
        a(mfma(LACC, ONES, S+16, LACC))
        a(mfma(LACC, ONES, S+8, LACC))
        if tau == 0:
            a('s_waitcnt lgkmcnt(0)')
        for t in range(8):
            a(mfma(O+4*t, buf[t], S+8, O+4*t))
            if tau == 0: a(vread(VG+4*t, t, 1))
        a(f'v_rcp_f32 {vr(vT0)}, {vr(LACC)}')

    late = []
    for t in range(8):
        late += [vread(buf[t], t, 2), vread(buf[t]+2, t, 3)]
    vgr = [vread(VG+4*t, t, 4) for t in range(8)]
    edge_test(0, 'L_fastA')
    for l in vgr: a(l)
    for sl in ('G', 0, 1, 2, 3, 4):
        for l in qk(0, sl): a(l)
    for l in late: a(l)
    edge_mask(0, vT0)
    a('s_branch L_joinA')
    a.label('L_fastA')
    m = vM
    inter(qk(0, 0) + qk(0, 'G'), vgr, per=1)
    inter(qk(0, 1) + qk(0, 2), late[:8], per=1)
    inter(qk(0, 3), maxtree_l([S+20, S+21, S+0], m) + maxtree_l([S+1, S+2, S+3, S+4, S+5, S+6], m, False), per=1)
    inter(qk(0, 4), maxtree_l([S+7, S+8, S+9, S+10], m, False), per=1)
    for l in late[8:11]: a(l)
    for l in maxtree_l([S+11, S+12], m, False): a(l)
    for l in late[11:13]: a(l)
    for l in maxtree_l([S+13, S+14, S+15], m, False): a(l)
    for l in late[13:]: a(l)
    for l in maxtree_l([S+16, S+17, S+18, S+19], m, False): a(l)
    a.label('L_joinA')
    yprio('s')
    stamp(fine)
    softmax_pv(0)
    stamp(fine)
    ep = []
    for t in range(8): ep += epi(t)
    if apos == 0: ep += stage_reads()
    xb = []
    for t in range(8): xb += [vread(X[t+1], t, 4), vread(X[t+1]+2, t, 5)]
    def qb_wait(n):
        a(f's_waitcnt vmcnt({n+2})')
        if opt.get('otouch'):
            a(f's_and_b32 s{sT0}, s{sWV}, 3')
            a(f's_cmp_eq_u32 s{sT0}, 3')
        else:
            a(f's_cmp_eq_u32 s{sWV}, {RW}')
        a('s_cbranch_scc1 L_qbw')
        a(f's_waitcnt vmcnt({n})')
        a.label('L_qbw')
    if merge == 'hyb':
        a('s_nop 0')
        for l in ep: a(l)
        qb_wait(0)
        stamp()
        spos = int(opt.get('spos', 0))
        edge_test(1, 'L_fastB')
        stores(0)
        for sl in ('G', 0, 1, 2, 3, 4):
            for l in qk(1, sl): a(l)
        for l in xb: a(l)
        edge_mask(1, vT0)
        a('s_branch L_joinB')
        a.label('L_fastB')
        if spos == 0:
            stores(0)
            inter(qk(1, 'G') + qk(1, 0) + qk(1, 1) + qk(1, 2), xb, per=1)
        elif spos == 1:
            for l in qk(1, 'G') + qk(1, 0): a(l)
            stores(0)
            inter(qk(1, 1) + qk(1, 2), xb, per=2)
        else:
            for l in qk(1, 'G') + qk(1, 0) + qk(1, 1) + qk(1, 2): a(l)
        inter(qk(1, 3), maxtree_l([S+20, S+21, S+0], m) + maxtree_l([S+1, S+2, S+3, S+4, S+5, S+6], m, False), per=1)
        inter(qk(1, 4), maxtree_l([S+7, S+8], m, False), per=1)
        a.nop(1)
        for l in maxtree_l([S+9, S+10, S+11, S+12], m, False): a(l)
        a.nop(1)
        for l in maxtree_l([S+13, S+14, S+15], m, False): a(l)
        if spos == 2:
            stores(0)
            for l in xb: a(l)
        else:
            a.nop(3)
        for l in maxtree_l([S+16, S+17, S+18, S+19], m, False): a(l)
    elif not merge:
        a('s_nop 0')
        for l in ep: a(l)
        stores(0)
        for l in xb: a(l)
        qb_wait(4)
        stamp()
        edge_test(1, 'L_fastB')
        for sl in ('G', 0, 1, 2, 3, 4):
            for l in qk(1, sl): a(l)
        edge_mask(1, vT0)
        a('s_branch L_joinB')
        a.label('L_fastB')
        for sl in ('G', 0, 1, 2):
            for l in qk(1, sl): a(l)
        inter(qk(1, 3), maxtree_l([S+20, S+21, S+0], m) + maxtree_l([S+1, S+2], m, False), per=1)
        inter(qk(1, 4), maxtree_l([S+3, S+4, S+5, S+6, S+7, S+8], m, False), per=1)
        a.nop(1)
        for l in maxtree_l([S+9, S+10, S+11, S+12], m, False): a(l)
        a.nop(1)
        for l in maxtree_l([S+13, S+14, S+15], m, False): a(l)
        a.nop(2)
        for l in maxtree_l([S+16, S+17, S+18, S+19], m, False): a(l)
    else:
        qb_wait(0)
        yprio('m')
        stamp()
        edge_test(1, 'L_fastB')
        for l in ep: a(l)
        if apos == 0: stores(0)
        for sl in (0, 1, 2, 3, 4, 'G'):
            for l in qk(1, sl): a(l)
        for l in xb: a(l)
        edge_mask(1, vT0)
        a('s_branch L_joinB')
        a.label('L_fastB')
        ms = []
        for sl in (0, 1, 2, 3, 4, 'G'): ms += qk(1, sl)
        inter(ms, ep, per=3)
        for l in maxtree_l([S+x for x in range(15)], vT0): a(l)
        if apos == 0: stores(0)
        for l in xb: a(l)
        a(f'v_max3_f32 {vr(vM)}, {vr(vT0)}, {vr(S+15)}, {vr(S+16)}')
        for l in maxtree_l([S+17, S+18, S+19, S+20, S+21], vM, False): a(l)
    a.label('L_joinB')
    yprio('b')
    stamp()
    a(f's_cmp_eq_u32 s{sCMB}, 0')
    a('s_cbranch_scc1 L_nohand')
    hand_loads()
    a.label('L_nohand')
    softmax_pv(1)
    stamp(fine)
    if apos == 2:
        late_a()
    a('s_nop 0')
    if apos == 3:
        for l in stage_reads(0, RA): a(l)
    for t in range(8):
        for l in epi(t, 1): a(l)
    for l in stage_reads(1): a(l)
    if apos == 3:
        stores(0, RA, extra=4+8) if False else None
        for j in range(4):
            if j == 0: a(f's_mov_b64 exec, {sr(sEX,2)}')
            if j == 0: a('s_waitcnt lgkmcnt(4)')
            a(f'buffer_store_dwordx4 {vr(RA+4*j,4)}, {vr(vOO)}, {sr(sO,4)}, s{sZERO} offen offset:{1024*j} {stpol}')
            if j == 0: a('s_mov_b64 exec, -1')
    stores(1)
    stamp()

    a(f's_cmp_eq_u32 s{sCMB}, 0')
    a('s_cbranch_scc1 L_fin')
    a(f's_waitcnt vmcnt({4 if apos == 0 else 8})')
    a(f's_mov_b32 s{sCNT}, 0')
    a(f's_mov_b32 s{sT2}, 0')
    a.label('L_chk')
    a(f's_mov_b32 s{sT3}, s{sT2}')
    for n in range(8):
        a(f'v_cmp_eq_u32 vcc, s{sN}, {vr(HB+8*n+3)}')
        a(f'v_cmp_eq_u32 s[60:61], s{sN}, {vr(HB+8*n+7)}')
        a('s_nop 0')
        a('s_and_b64 vcc, vcc, s[60:61]')
        a('s_cmp_eq_u64 vcc, exec')
        a(f's_cselect_b32 s{sT0}, {1 << n}, 0')
        a(f's_or_b32 s{sT3}, s{sT3}, s{sT0}')
    a(f's_add_u32 s{sCNT}, s{sCNT}, 1')
    a(f's_cmp_eq_u32 s{sT3}, 0xff')
    a('s_cbranch_scc1 L_ready')
    a(f's_cmp_ge_u32 s{sCNT}, 0x40000')
    a('s_cbranch_scc1 L_ready')
    a(f's_lshl_b32 s{sT0}, s{sH}, 3')
    a(f'v_mov_b32 {vr(KG+1)}, s{sT0}')
    a(f'global_load_dword {vr(KG+2)}, {vr(KG+1)}, s[16:17] offset:4 sc0 sc1')
    a('s_waitcnt vmcnt(0)')
    a(f'v_readfirstlane_b32 s{sT2}, {vr(KG+2)}')
    hand_loads()
    a('s_waitcnt vmcnt(0)')
    a('s_branch L_chk')
    a.label('L_ready')
    hog = [[HB+8*n, HB+8*n+1, HB+8*n+2, HB+8*n+4] for n in range(8)]
    hmg = [HB+8*n+5 for n in range(8)]
    combine(hog, hmg, X8)
    a(f'v_rcp_f32 {vr(X8)}, {vr(hmg[0]+1)}')
    a(f'v_lshrrev_b32 {vr(KG)}, 1, {vr(KG)}')
    for e in range(4):
        a(f'v_mul_f32 {vr(hog[0][e])}, {vr(hog[0][e])}, {vr(X8)}')
    a(f'v_cvt_pk_bf16_f32 {vr(X8+2)}, {vr(hog[0][0])}, {vr(hog[0][1])}')
    a(f'v_cvt_pk_bf16_f32 {vr(X8+3)}, {vr(hog[0][2])}, {vr(hog[0][3])}')
    a(f'buffer_store_dwordx2 {vr(X8+2,2)}, {vr(KG)}, {sr(sO,4)}, 0 offen {stpol}')
    a.label('L_fin')
    if stamps:
        stamp()
        a('s_waitcnt vmcnt(0)')
        stamp()
        if opt.get('clk'):
            a('s_memtime s[98:99]')
            a('s_waitcnt lgkmcnt(0)')
            a('s_sub_u32 s98, s98, s96')
            a(f's_add_u32 s{64+2*nst[0]}, s98, s64')
            nst[0] += 1
        a(f's_lshl_b32 s{sT0}, s2, 3')
        a(f's_add_u32 s{sT0}, s{sT0}, s{sWV}')
        a(f's_lshl_b32 s{sT0}, s{sT0}, 6')
        a(f's_add_u32 s{sT0}, s{sT0}, 0x100000')
        a(f's_add_u32 s{sW}, s18, s{sT0}')
        a(f's_addc_u32 s{sW+1}, s19, 0')
        a(f'v_mov_b32 v1, 0')
        a('s_mov_b64 exec, 1')
        for n in range(min(16, nst[0])):
            a(f'v_mov_b32 v2, s{64+2*n}')
            a(f'buffer_store_dword v2, v1, {sr(sW,4)}, 0 offen offset:{4*n}')
        if 'leak' in opt:
            k = int(opt['leak'])
            a(f's_sub_u32 s{sT0}, s{64+2*k}, s64')
            a(f's_lshl_b32 s{sT0}, s{sT0}, 2')
            if opt.get('leakskew'):
                a.label('L_pre')
                a('s_memrealtime s[100:101]')
                a('s_waitcnt lgkmcnt(0)')
                a(f's_sub_u32 s{sT1}, s100, s64')
                a(f's_cmp_lt_u32 s{sT1}, 3000')
                a('s_cbranch_scc1 L_pre')
                a('s_mov_b64 exec, -1')
                a('v_mbcnt_lo_u32_b32 v3, -1, 0')
                a('v_and_b32 v3, 31, v3')
                a('v_lshlrev_b32 v3, 3, v3')
                a('global_load_dword v4, v3, s[16:17] sc0 sc1')
                a('s_waitcnt vmcnt(0)')
                a('v_readlane_b32 s20, v4, 0')
                a('s_mov_b32 s21, 0'); a('s_mov_b32 s22, 0')
                for n in range(1, 32):
                    a(f'v_readlane_b32 s23, v4, {n}')
                    a('s_nop 0')
                    a('s_sub_i32 s23, s23, s20')
                    a('s_min_i32 s21, s21, s23')
                    a('s_max_i32 s22, s22, s23')
                a(f's_sub_u32 s{sT0}, s22, s21')
                a(f's_min_u32 s{sT0}, s{sT0}, 2000')
                a(f's_lshl_b32 s{sT0}, s{sT0}, 2')
            if opt.get('leakxcc'):
                a('s_getreg_b32 s61, hwreg(HW_REG_XCC_ID, 0, 4)')
                a(f's_bfe_u32 s60, s{sN}, 0x40001')
                a('s_cmp_lg_u32 s60, s61')
                a(f's_cselect_b32 s{sT0}, 2000, 0')
            if opt.get('leakcnt'):
                a(f's_mul_i32 s{sT0}, s{sCNT}, 500')
                a(f's_mul_i32 s{sT0}, s{sT0}, s{sCMB}')
            if 'leakh' in opt:
                lo, hi = opt['leakh'].split(',')
                a(f's_sub_u32 s{sT1}, s{sH}, {lo}')
                a(f's_cmp_lt_u32 s{sT1}, {int(hi)-int(lo)}')
                a(f's_cselect_b32 s{sT0}, s{sT0}, 0')
            if 'leakwg' in opt:
                a(f's_cmp_eq_u32 s2, {opt["leakwg"]}')
                a(f's_cselect_b32 s{sT0}, s{sT0}, 0')
            if 'leakx' in opt:
                a(f's_getreg_b32 s{sT1}, hwreg(HW_REG_XCC_ID, 0, 4)')
                a(f's_lshr_b32 s{sT1}, {opt["leakx"]}, s{sT1}')
                a(f's_bitcmp1_b32 s{sT1}, 0')
                a(f's_cselect_b32 s{sT0}, s{sT0}, 0')
            if 'leakw' in opt:
                a(f's_lshr_b32 s{sT1}, {opt["leakw"]}, s{sWV}')
                a(f's_bitcmp1_b32 s{sT1}, 0')
                a(f's_cselect_b32 s{sT0}, s{sT0}, 0')
            a(f"s_add_u32 s{sT0}, s{sT0}, {opt.get('spin', 5000)}")
            a.label('L_spin')
            a('s_memrealtime s[100:101]')
            a('s_waitcnt lgkmcnt(0)')
            a(f's_sub_u32 s{sT1}, s100, s64')
            a(f's_cmp_lt_u32 s{sT1}, s{sT0}')
            a('s_cbranch_scc1 L_spin')
    a.label('L_end')
    a('s_endpgm')
    if cpf:
        a('.fill 4096, 4, 0xbf800000')

    check(a.lines)
    if stamps: print('stamps', nst[0])
    head = f'''; windowed + global-token attention, B=1 H=32 S=2048 D=128 bf16 (window 32, 2 global tokens)
; @launch grid=(256,1,1) block=(512,1,1) lds=163840
.amdgcn_target "amdgcn-amd-amdhsa--gfx950"
.text
.globl {NAME}
.p2align 8
.type {NAME},@function
{NAME}:
'''
    tail = f'''.section .rodata,"a"
.p2align 6
.amdhsa_kernel {NAME}
  .amdhsa_next_free_vgpr 256
  .amdhsa_next_free_sgpr {102 if stamps else 64}
  .amdhsa_accum_offset 256
  .amdhsa_group_segment_fixed_size 0
  .amdhsa_kernarg_size 64
  .amdhsa_user_sgpr_count 2
  .amdhsa_user_sgpr_kernarg_segment_ptr 1
  .amdhsa_system_sgpr_workgroup_id_x 1
.end_amdhsa_kernel
'''
    return head + a.text() + tail

if __name__ == '__main__':
    out = sys.argv[1]
    opt = {}
    for kv in sys.argv[2:]:
        k, v = kv.split('=', 1)
        opt[k] = {'True': True, 'False': False}.get(v, v.replace('+', ' '))
    open(out, 'w').write(gen(opt))
```

```python
import sys, math, struct
from asmlib import *

NAME = 'standalone__global_local_windowed_global_tokens__prompt_kernel'
def f2u(x): return struct.unpack('<I', struct.pack('<f', x))[0]

def gen(opt):
    a = Asm()
    NEG = 0xFF000000
    CSC = f2u(128 ** -0.5 * math.log2(math.e))
    KOFF, VOFF, SOFF = 0, 73728, 155648
    apos = int(opt.get('apos', 0))
    PART, STG = 0, 4096
    PARTML, LCNT, LNON = SOFF + 3072, SOFF + 3072 + 128, SOFF + 3072 + 132
    STGP = 272
    ldpol = opt.get('ldpol', '')
    qpol = opt.get('qpol', '')
    stpol = opt.get('stpol', 'sc0 sc1 nt')
    pk = opt.get('pk', True)
    N1 = int(opt.get('n1', 10))
    yp = opt.get('yp', '')
    RW = int(opt.get('rw', 3))
    FW = 7
    SW = 5
    CW, CC = int(opt.get('cw', 1)), 3
    merge = opt.get('merge', True)
    sQ, sK, sV, sO, sW = 20, 24, 28, 32, 36
    sWV, sH, sC, sHO, sQ0B = 40, 43, 44, 45, 46
    sT0, sT1, sT2, sT3 = 47, 48, 49, 50
    sBK = 62
    HW = 4
    sCS = 52; sKG0 = 54; sQB = 51; sEX = 56; sCMB = 58; sCNT = 59; sN = 63; sTOFF = 41; sZERO = 3
    VA = 0
    vSW, vSR, vOO, vT0 = 8, 9, 10, 11
    X8 = 12
    KF = 16; KG = 112; QA, QB = 128, 144; VG = 160; O = 192; S = 224
    BLO, BHI = 248, 252
    kf = lambda W, ks: KF + 16 * W + 4 * ks
    X = [O + 4 * n for n in range(8)] + [X8]
    vLANE, vI, vKGp, vDK, vDV, vDQ, vAG, vNEG, vAK = O+16, O+17, O+18, O+19, O+20, O+21, O+22, O+23, O+24
    vAVG, t1, t2, t3 = O+28, O+29, O+30, O+31
    vDQk = VG + 7
    vFLAG = VG + 3
    vM, vT = S + 22, S + 23

    stamps = opt.get('stamps', False)
    fine = opt.get('fine', False)
    nst = [0]
    def stamp(on=True):
        if stamps and on:
            a(f's_memrealtime s[{64+2*nst[0]}:{65+2*nst[0]}]')
            if nst[0]: a('s_waitcnt lgkmcnt(0)')
            nst[0] += 1
    M16 = 'v_mfma_f32_16x16x32_bf16'
    def mfma(d, x, y, c):
        return f'{M16} {vr(d,4)}, {vr(x,4)}, {vr(y,4)}, {c if isinstance(c,str) else vr(c,4)}'
    def only(w, lab):
        a(f's_cmp_lg_u32 s{sWV}, {w}')
        a(f's_cbranch_scc1 {lab}')

    stamp()
    if opt.get('clk'): a('s_memtime s[96:97]')
    a('s_load_dwordx16 s[4:19], s[0:1], 0')
    a(f'v_readfirstlane_b32 s{sWV}, v0')
    a('s_cmp_ge_u32 s2, 256')
    a('s_cbranch_scc1 L_end')
    a(f'v_lshrrev_b32 {vr(t1)}, 4, v0')
    a(f'v_xor_b32 {vr(vDK)}, {vr(t1)}, v0')
    a(f'v_and_b32 {vr(vDK)}, 15, {vr(vDK)}')
    a(f'v_lshl_add_u32 {vr(vDK)}, {vr(t1)}, 4, {vr(vDK)}')
    a(f's_bfe_u32 s{sC}, s2, 0x30003')
    a(f's_lshl_b32 s{sQ0B}, s{sC}, 16')
    a(f'v_lshl_add_u32 {vr(vDK)}, {vr(vDK)}, 4, s{sQ0B}')
    a('s_and_b32 s41, s2, 7')
    a(f's_lshr_b32 s{sH}, s2, 6')
    a(f's_lshl2_add_u32 s{sH}, s41, s{sH}')
    a(f's_lshl_b32 s{sHO}, s{sH}, 19')
    a(f's_lshl_b32 m0, s{sWV}, 4')
    a(f's_mov_b32 s{sK+2}, 0x80000')
    a(f's_mov_b32 s{sK+3}, 0x20000')
    a(f's_movk_i32 s{sCNT}, 17')
    cpf = opt.get('cpf', True)
    a.label('L_base')
    if cpf is True:
        a(f's_getpc_b64 s[{sEX}:{sEX+1}]')
        a(f'v_lshlrev_b32 v1, 5, v0')
        a(f'global_load_dword {vr(X8)}, v1, s[{sEX}:{sEX+1}]')
    if opt.get('katch'):
        a(f'v_mov_b32 v2, 0')
        a(f'global_load_dword {vr(X8+1)}, v2, s[0:1]')
    a(f's_cmp_ge_u32 s{sWV}, 256')
    a('s_cbranch_scc1 L_helper')
    a('s_waitcnt lgkmcnt(0)')
    stamp()
    a(f's_add_u32 s{sK}, s6, s{sHO}')
    a(f's_addc_u32 s{sK+1}, s7, 0')
    thr = int(opt.get('thr', 0)); tl = [0]
    if thr: a('s_getreg_b32 s1, hwreg(HW_REG_XCC_ID, 0, 4)')
    def throttle():
        if thr:
            a('s_bitcmp1_b32 s1, 0')
            a(f's_cbranch_scc{opt.get("thpar", 1)} L_th{tl[0]}')
            a(f's_waitcnt vmcnt({thr-1})')
            a.label(f'L_th{tl[0]}')
            tl[0] += 1
    a.label('L_kloop')
    throttle()
    a(f'buffer_load_dwordx4 {vr(vDK)}, {sr(sK,4)}, 0 offen {opt.get("kpol", ldpol)} lds')
    a('s_add_u32 m0, m0, 0x1000')
    a(f'v_add_u32 {vr(vDK)}, 0x1000, {vr(vDK)}')
    a(f's_sub_u32 s{sCNT}, s{sCNT}, 1')
    a('s_cbranch_scc0 L_kloop')
    if 'dup' in opt:
        nd = int(opt['dup'])
        a(f's_sub_u32 m0, m0, {0x1000*18}')
        a(f'v_subrev_u32 {vr(vDK)}, {0x1000*18}, {vr(vDK)}')
        for i in range(nd):
            a(f'buffer_load_dwordx4 {vr(vDK)}, {sr(sK,4)}, 0 offen lds')
            a('s_add_u32 m0, m0, 0x1000')
            a(f'v_add_u32 {vr(vDK)}, 0x1000, {vr(vDK)}')
    stamp(opt.get('postk', False))
    def common():
        a(f's_lshr_b32 s{sWV}, s{sWV}, 6')
        a(f'v_and_b32 {vr(vLANE)}, 63, v0')
        a(f'v_and_b32 {vr(vI)}, 15, v0')
        a(f'v_bfe_u32 {vr(vKGp)}, v0, 4, 2')
        a(f's_lshl_b32 s{sT1}, s{sWV}, 10')
        a(f's_add_u32 s{sT2}, s{sT1}, s{sQ0B}')
        for s_ in (sV, sQ):
            a(f's_mov_b32 s{s_+2}, 0x80000')
            a(f's_mov_b32 s{s_+3}, 0x20000')
        a(f's_mov_b32 s{sW+2}, 0x4000')
        a(f's_mov_b32 s{sW+3}, 0x20000')
        a(f's_and_b32 s{sBK}, s{sWV}, 3')
        a(f's_lshl_b32 s{sBK}, s{sBK}, 1')
        a(f's_cmp_lt_u32 s{sWV}, 4')
        a(f's_addc_u32 s{sBK}, s{sBK}, 0')
        a(f's_cmp_eq_u32 s{sC}, 0')
        a(f's_cselect_b32 s{sT3}, 0x40000000, 0')
        a(f's_lshl_b32 s{sT0}, s{sBK}, 13')
        a(f's_add_u32 s{sT0}, s{sT0}, s{sQ0B}')
        a(f'v_lshlrev_b32 {vr(vDQ)}, 4, {vr(vKGp)}')
        a(f'v_lshl_add_u32 {vr(vDQ)}, {vr(vI)}, 8, {vr(vDQ)}')
        a(f'v_add_u32 {vr(vDQ)}, s{sT0}, {vr(vDQ)}')
        a(f'v_lshlrev_b32 {vr(t3)}, 4, {vr(vLANE)}')
        a(f's_lshl_b32 s41, s{sH}, 14')
        a(f's_lshl_b32 s42, s{sC}, 11')
    common()
    a(f's_mov_b32 s{sN}, 0')
    def srds():
        a(f's_add_u32 s{sV}, s8, s{sHO}')
        a(f's_addc_u32 s{sV+1}, s9, 0')
        a(f's_add_u32 s{sQ}, s4, s{sHO}')
        a(f's_addc_u32 s{sQ+1}, s5, 0')
        a(f's_add_u32 s{sW}, s18, s41')
        a(f's_addc_u32 s{sW+1}, s19, 0')
    srds()
    a('s_branch L_v1')
    a.label('L_helper')
    a('s_setprio 3')
    a('s_memrealtime s[60:61]')
    if cpf == 'one':
        a(f's_cmp_lg_u32 s{sWV}, {64*6}')
        a('s_cbranch_scc1 L_nocpf')
        a(f's_getpc_b64 s[{sEX}:{sEX+1}]')
        a(f's_lshl_b32 s{sT0}, s{sC}, 11')
        a(f'v_and_b32 v1, 15, v0')
        a(f'v_lshl_add_u32 v1, v1, 7, s{sT0}')
        a('s_mov_b64 exec, 0xffff')
        a(f'global_load_dword {vr(X8)}, v1, s[{sEX}:{sEX+1}]')
        a('s_mov_b64 exec, -1')
        a.label('L_nocpf')
    common()
    a(f's_sub_u32 s{sT0}, s{sT3}, 0x2000')
    a(f'v_add_u32 {vr(t1)}, s{sT0}, {vr(vDQ)}')
    a(f'v_add_u32 {vr(t2)}, 0x1000, {vr(t1)}')
    a(f's_mov_b32 m0, {SOFF}')
    a('s_waitcnt lgkmcnt(0)')
    if stamps:
        nst[0] -= 1
        stamp()
    a(f's_add_u32 s{sK}, s6, s{sHO}')
    a(f's_addc_u32 s{sK+1}, s7, 0')
    srds()
    if stamps and opt.get('postk'):
        nst[0] -= 1
        stamp()
    a(f's_or_b32 s{sN}, s60, 1')
    if opt.get('leakxcc'):
        a('s_getreg_b32 s61, hwreg(HW_REG_XCC_ID, 0, 4)')
        a(f's_and_b32 s{sN}, s60, 0xffffffe0')
        a(f's_lshl1_add_u32 s{sN}, s61, s{sN}')
        a(f's_or_b32 s{sN}, s{sN}, 1')
    stch = opt.get('stch', '')
    if stch:
        only(6, 'L_nostch')
        if 'v' in stch: a(f's_load_dword s12, s[{sV}:{sV+1}], s{sQ0B}')
        if 'q' in stch: a(f's_load_dword s12, s[{sQ}:{sQ+1}], s{sQ0B}')
        if 'o' in stch:
            a(f's_add_u32 s{sT0}, s{sHO}, s{sQ0B}')
            a(f's_load_dword s13, s[14:15], s{sT0}')
        if 'w' in stch: a(f's_load_dword s13, s[{sW}:{sW+1}], s42')
        if 'd' in stch: a(f's_load_dword s13, s[16:17], 0x80')
        a.label('L_nostch')
    slate = opt.get('slate', False)
    def specials():
        a(f's_mov_b32 m0, {SOFF}')
        only(FW, 'L_noclear')
        a(f's_lshl_b32 s{sT0}, s{sH}, 3')
        a(f'v_mov_b32 {vr(S+4)}, s{sT0}')
        a(f'v_mov_b32 {vr(S+5)}, s{sN}')
        a(f'v_mov_b32 {vr(S+6)}, {LCNT}')
        a(f'v_mov_b32 {vr(S+7)}, 0')
        a('s_mov_b64 exec, 1')
        a(f's_cmp_lg_u32 s{sC}, {CC}')
        a('s_cbranch_scc1 L_nopub')
        a(f'global_store_dword {vr(S+4)}, {vr(S+5)}, s[16:17] sc0 sc1')
        a.label('L_nopub')
        a(f'ds_write_b32 {vr(S+6)}, {vr(S+7)}')
        a('s_mov_b64 exec, -1')
        if opt.get('wstouch'):
            pol = {'ld': '', 'ldsc': 'sc0 sc1'}.get(opt['wstouch'])
            if pol is not None:
                a(f'buffer_load_dwordx4 {vr(S+8,4)}, {vr(t3)}, {sr(sW,4)}, s42 offen {pol}')
                a(f'buffer_load_dwordx4 {vr(S+12,4)}, {vr(t3)}, {sr(sW,4)}, s42 offen offset:1024 {pol}')
            else:
                for n in range(4): a(f'v_mov_b32 {vr(S+8+n)}, 0')
                a(f'buffer_store_dwordx4 {vr(S+8,4)}, {vr(t3)}, {sr(sW,4)}, s42 offen sc0 sc1')
                a(f'buffer_store_dwordx4 {vr(S+8,4)}, {vr(t3)}, {sr(sW,4)}, s42 offen offset:1024 sc0 sc1')
        a.label('L_noclear')
        only(SW, 'L_nosmall')
        for n, srd in enumerate((sK, sQ, sV)):
            if n:
                a(f's_mov_b32 m0, {SOFF + 1024*n}')
                a('s_nop 0')
            a(f'buffer_load_dwordx4 {vr(t3)}, {sr(srd,4)}, 0 offen lds')
        a.label('L_nosmall')
    if not slate: specials()
    if opt.get('tch'):
        only(6, 'L_notch')
        a(f'v_and_b32 {vr(S+8)}, 1, {vr(vLANE)}')
        a(f'v_mul_u32_u24 {vr(S+8)}, 0xff00, {vr(S+8)}')
        a(f'v_add_u32 {vr(S+8)}, s{sQ0B}, {vr(S+8)}')
        a('s_mov_b64 exec, 3')
        a(f'buffer_load_dword {vr(S+9)}, {vr(S+8)}, {sr(sV,4)}, 0 offen')
        a(f'buffer_load_dword {vr(S+10)}, {vr(S+8)}, {sr(sQ,4)}, 0 offen')
        if opt['tch'] == 'o':
            a(f'v_add_u32 {vr(S+8)}, s{sHO}, {vr(S+8)}')
            a(f'global_load_dword {vr(S+11)}, {vr(S+8)}, s[14:15]')
        a('s_mov_b64 exec, -1')
        a.label('L_notch')
    hlate = opt.get('hlate', '')
    def halo_k():
        only(HW, 'L_nohalo')
        if hlate:
            a(f's_sub_u32 s{sT0}, s{sT3}, 0x2000')
            a(f'v_add_u32 {vr(t1)}, s{sT0}, {vr(vDQ)}')
            a(f'v_add_u32 {vr(t2)}, 0x1000, {vr(t1)}')
        for T in range(2):
            for ks in range(4):
                a(f'buffer_load_dwordx4 {vr(kf(T,ks),4)}, {vr(t1+T)}, {sr(sK,4)}, 0 offen offset:{64*ks}')
        a.label('L_nohalo')
    if not hlate: halo_k()
    a('s_setprio 0')
    v2h = int(opt.get('v2h', 0))
    def vaddr(i0):
        a(f's_and_b32 s{sT0}, s{sWV}, 1')
        a(f's_lshl_b32 s{sT0}, s{sT0}, 2')
        a(f'v_add_lshl_u32 {vr(vDV)}, s{sT0}, {vr(vKGp)}, 1')
        a(f'v_xor_b32 {vr(vDV)}, {vr(vDV)}, {vr(vI)}')
        a(f'v_lshlrev_b32 {vr(vDV)}, 4, {vr(vDV)}')
        a(f'v_lshl_add_u32 {vr(vDV)}, {vr(vKGp)}, 8, {vr(vDV)}')
        a(f's_add_u32 s{sT2}, s{sT2}, {(0x1000*i0 - 0x2000) & 0xffffffff}')
        a(f'v_add_u32 {vr(vDV)}, s{sT2}, {vr(vDV)}')
        a(f's_add_u32 m0, s{sT1}, {VOFF + 0x1000*i0}')
    if v2h:
        vaddr(20 - v2h - 1 - 1)
    a('s_branch L_nov1')
    a.label('L_v1')
    def vpiece(i):
        throttle()
        if i:
            a('s_add_u32 m0, m0, 0x1000')
            a(f'v_add_u32 {vr(vDV)}, 0x1000, {vr(vDV)}')
        if i < 2:
            a(f'v_add_u32 {vr(t1)}, s{sT3}, {vr(vDV)}')
            a(f'buffer_load_dwordx4 {vr(t1)}, {sr(sV,4)}, 0 offen {ldpol} lds')
        else:
            a(f'buffer_load_dwordx4 {vr(vDV)}, {sr(sV,4)}, 0 offen {ldpol} lds')
    vaddr(0)
    for i in range(N1): vpiece(i)
    a.label('L_nov1')
    stamp()
    if hlate == 'low': halo_k()

    a(f's_add_u32 s{sO}, s14, s{sHO}')
    a(f's_addc_u32 s{sO+1}, s15, 0')
    a(f's_mov_b32 s{sO+2}, 0x80000')
    a(f's_mov_b32 s{sO+3}, 0x20000')
    a(f's_movk_i32 s{sTOFF}, 0x1000')
    a(f's_mov_b32 s{sZERO}, 0')
    a(f's_mov_b32 s{sCS}, 0x{CSC:08x}')
    a(f's_mov_b32 s{sCS+1}, 0x{CSC:08x}')
    a(f'v_mov_b32 {vr(vNEG)}, 0x{NEG:08x}')
    a(f'v_lshlrev_b32 {vr(t2)}, 2, {vr(vKGp)}')
    a(f'v_cmp_eq_u32 {sr(sKG0,2)}, 0, {vr(vKGp)}')
    for r in range(4):
        a(f'v_add_u32 {vr(t1)}, {r}, {vr(t2)}')
        a(f'v_cmp_ge_u32 vcc, {vr(t1)}, {vr(vI)}')
        a(f'v_cmp_le_u32 s[60:61], {vr(t1)}, {vr(vI)}')
        a('s_nop 0')
        a(f'v_cndmask_b32 {vr(BLO+r)}, {vr(vNEG)}, 0, vcc')
        a(f'v_cndmask_b32 {vr(BHI+r)}, {vr(vNEG)}, 0, s[60:61]')
    a(f's_lshl_b32 s{sT0}, s{sBK}, 13')
    a(f'v_xor_b32 {vr(t1)}, {vr(vKGp)}, {vr(vI)}')
    a(f'v_lshlrev_b32 {vr(t1)}, 4, {vr(t1)}')
    a(f'v_lshl_add_u32 {vr(t1)}, {vr(vI)}, 8, {vr(t1)}')
    a(f'v_add_u32 {vr(vAK)}, s{sT0}, {vr(t1)}')
    for ks in range(1, 4):
        a(f'v_xor_b32 {vr(vAK+ks)}, {64*ks}, {vr(vAK)}')
    a(f'v_and_b32 {vr(t1)}, 1, {vr(vI)}')
    a(f'v_lshlrev_b32 {vr(vNEG)}, 3, {vr(t1)}')
    a(f'v_lshlrev_b32 {vr(t1)}, 8, {vr(t1)}')
    a(f'v_lshl_add_u32 {vr(t1)}, {vr(vKGp)}, 4, {vr(t1)}')
    a(f'v_add_u32 {vr(vAG)}, {SOFF}, {vr(t1)}')
    a(f'v_bfe_u32 {vr(t1)}, {vr(vLANE)}, 2, 2')
    a(f'v_and_b32 {vr(t2)}, 3, {vr(vLANE)}')
    a(f'v_lshlrev_b32 {vr(t2)}, 3, {vr(t2)}')
    a(f'v_lshl_add_u32 {vr(t1)}, {vr(t1)}, 8, {vr(t2)}')
    a(f'v_add_u32 {vr(vAVG)}, {SOFF+2048}, {vr(t1)}')
    a(f'v_lshrrev_b32 {vr(t1)}, 2, {vr(vLANE)}')
    a(f'v_and_b32 {vr(vT0)}, 7, {vr(t1)}')
    a(f'v_lshl_add_u32 {vr(t2)}, {vr(vT0)}, 5, {vr(t2)}')
    a(f'v_lshl_add_u32 {vr(t2)}, {vr(t1)}, 8, {vr(t2)}')
    a(f's_add_u32 s{sT1}, s{sT0}, {VOFF}')
    a(f'v_add_u32 {vr(VA)}, s{sT1}, {vr(t2)}')
    for t in range(1, 8):
        a(f'v_xor_b32 {vr(VA+t)}, {32*t}, {vr(VA)}')
    a(f's_mul_i32 s{sT1}, s{sWV}, {32*STGP}')
    a(f's_add_u32 s{sT1}, s{sT1}, {STG}')
    a(f'v_mul_u32_u24 {vr(t1)}, {STGP}, {vr(vI)}')
    a(f'v_lshl_add_u32 {vr(t1)}, {vr(vKGp)}, 3, {vr(t1)}')
    a(f'v_add_u32 {vr(vSW)}, s{sT1}, {vr(t1)}')
    a(f'v_mul_u32_u24 {vr(t1)}, {STGP}, {vr(vKGp)}')
    a(f'v_lshl_add_u32 {vr(t1)}, {vr(vI)}, 4, {vr(t1)}')
    a(f'v_add_u32 {vr(vSR)}, s{sT1}, {vr(t1)}')
    a(f's_add_u32 s{sT0}, s{sT0}, s{sQ0B}')
    a(f'v_add_u32 {vr(vOO)}, s{sT0}, {vr(t3)}')
    a(f's_lshr_b32 s{sQB}, s{sT0}, 8')
    a(f's_cmp_eq_u32 s{sQB}, 0')
    a(f's_cselect_b32 s{sEX}, 0, -1')
    a(f's_mov_b32 s{sEX+1}, -1')
    a(f's_cmp_eq_u32 s{sQB}, {256*CC+32*(2*CW+1)}')
    a(f's_cselect_b32 s{sCMB}, 1, 0')
    a(f's_lshl_b32 s{sT0}, s{sWV}, 4')
    a(f's_add_u32 s{sT0}, s{sT0}, {PARTML}')
    a(f'v_add_u32 {vr(vNEG)}, s{sT0}, {vr(vNEG)}')

    spf = [int(x) for x in opt.get('spf', '0,0').split(',')]
    spstep = int(opt.get('spstep', 128)); sptile = opt.get('sptile', 'B')
    def sp_offsets():
        o = []
        for half in ([1, 0] if sptile == 'B' else [0, 1]):
            for blk in (1, 0):
                o += [8192*blk + 4096*half + x for x in range(0, 4096, spstep)]
        return o
    spo = sp_offsets()
    def sprefetch(n):
        for _ in range(n):
            if spo: a(f's_load_dword s61, s[10:11], {spo.pop(0)}')
    if sum(spf):
        a(f's_cmp_lt_u32 s{sWV}, 4')
        a('s_cbranch_scc1 L_nosp')
        a(f's_lshl_b32 s{sT0}, s{sBK}, 13')
        a(f's_add_u32 s{sT0}, s{sT0}, s{sQ0B}')
        a(f's_add_u32 s10, s{sQ}, s{sT0}')
        a(f's_addc_u32 s11, s{sQ+1}, 0')
        sprefetch(spf[0])
        a.label('L_nosp')
    if slate:
        a(f's_cmp_lt_u32 s{sWV}, 4')
        a('s_cbranch_scc1 L_nospec')
        for _ in range(int(opt.get('sdelay', 0))): pass
        a('s_setprio 3')
        specials()
        a('s_setprio 0')
        a.label('L_nospec')
    a(f's_waitcnt vmcnt({N1}) lgkmcnt(0)')
    a(f's_cmp_lt_u32 s{sWV}, 4')
    a('s_cbranch_scc1 L_kw')
    a(f's_cmp_eq_u32 s{sWV}, {FW}')
    a('s_cbranch_scc1 L_kw')
    a('s_waitcnt vmcnt(0)')
    a.label('L_kw')
    stamp(opt.get('prek', False))
    a('s_barrier')
    stamp()
    a(f's_cmp_ge_u32 s{sWV}, 4')
    a('s_cbranch_scc1 L_nov2')
    for i in range(N1, 20 - v2h): vpiece(i)
    if v2h:
        a('s_branch L_nov2b')
    a.label('L_nov2')
    if v2h:
        a(f's_setprio {opt.get("v2p", 3)}')
        for i in range(20 - v2h, 20): vpiece(i)
        a('s_setprio 0')
        a.label('L_nov2b')
    stamp(fine)
    QG = O
    for W in (2, 3, 4, 5):
        for ks in range(4):
            a(f'ds_read_b128 {vr(kf(W,ks),4)}, {vr(vAK+ks)} offset:{4096*(W-2)}')
    for ks in range(4):
        a(f'ds_read_b128 {vr(KG+4*ks,4)}, {vr(vAG)} offset:{64*ks}')
    for t in range(8):
        a(f'ds_read_b64_tr_b16 {vr(VG+4*t+2,2)}, {vr(vAVG)} offset:{32*t}')
    a(f's_cmp_eq_u32 s{sWV}, {HW}')
    a('s_cbranch_scc1 L_k01done')
    for ks in range(4):
        a(f'v_subrev_u32 {vr(vAK+ks)}, 0x2000, {vr(vAK+ks)}')
    for W in (0, 1):
        for ks in range(4):
            a(f'ds_read_b128 {vr(kf(W,ks),4)}, {vr(vAK+ks)} offset:{4096*W}')
    a.label('L_k01done')
    def issue_qa():
        if opt.get('qprio'): a('s_setprio 3')
        for ks in range(4):
            a(f'buffer_load_dwordx4 {vr(QA+4*ks,4)}, {vr(vDQ)}, {sr(sQ,4)}, 0 offen offset:{64*ks} {qpol}')
        if opt.get('qprio'): a('s_setprio 0')

    def xred(m, t, op='v_max_f32'):
        a(f'v_mov_b32 {vr(t)}, {vr(m)}')
        a.nop(2)
        a(f'v_permlane16_swap_b32 {vr(m)}, {vr(t)}')
        a(f'{op} {vr(m)}, {vr(m)}, {vr(t)}')
        a(f'v_mov_b32 {vr(t)}, {vr(m)}')
        a.nop(2)
        a(f'v_permlane32_swap_b32 {vr(m)}, {vr(t)}')
        a(f'{op} {vr(m)}, {vr(m)}, {vr(t)}')
    def maxtree_l(vals, m, first=True):
        out = []; rest = list(vals)
        if first:
            out.append(f'v_max3_f32 {vr(m)}, {vr(rest[0])}, {vr(rest[1])}, {vr(rest[2])}'); rest = rest[3:]
        while len(rest) >= 2:
            out.append(f'v_max3_f32 {vr(m)}, {vr(m)}, {vr(rest[0])}, {vr(rest[1])}'); rest = rest[2:]
        if rest:
            out.append(f'v_max_f32 {vr(m)}, {vr(m)}, {vr(rest[0])}')
        return out
    def fma_l(vals, mc):
        if pk:
            return [f'v_pk_fma_f32 {vr(vals[n],2)}, {vr(vals[n],2)}, {sr(sCS,2)}, {vr(mc,2)} op_sel_hi:[1,1,0] neg_lo:[0,0,1] neg_hi:[0,0,1]' for n in range(0, len(vals), 2)]
        return [f'v_fma_f32 {vr(v)}, {vr(v)}, s{sCS}, -{vr(mc)}' for v in vals]
    exp_l = lambda vals: [f'v_exp_f32 {vr(v)}, {vr(v)}' for v in vals]
    cvt_l = lambda dst, src, n: [f'v_cvt_pk_bf16_f32 {vr(dst+k)}, {vr(src+2*k)}, {vr(src+2*k+1)}' for k in range(n)]

    def vread(dst, t, W):
        return f'ds_read_b64_tr_b16 {vr(dst,2)}, {vr(VA+t)} offset:{4096*W}'
    a(f's_cmp_lt_u32 s{sWV}, 4')
    a('s_cbranch_scc1 L_gk')
    sprefetch(spf[1])
    only(FW, 'L_notag')
    a('s_setprio 3')
    a(f's_lshl_b32 s{sT0}, s{sH}, 3')
    a(f'v_mov_b32 {vr(S+4)}, s{sT0}')
    a(f'v_mov_b32 {vr(S+5)}, s{sN}')
    a(f'v_mov_b32 {vr(S+6)}, {LCNT}')
    a(f'global_load_dword {vr(S+7)}, {vr(S+4)}, s[16:17]')
    a('s_setprio 0')
    issue_qa()
    a('s_waitcnt vmcnt(4)')
    if opt.get('forcefb'): a(f'v_mov_b32 {vr(S+7)}, 0')
    a(f's_cmp_eq_u32 s{sC}, {CC}')
    a('s_cselect_b64 vcc, -1, 0')
    a(f'v_cndmask_b32 {vr(S+7)}, {vr(S+7)}, {vr(S+5)}, vcc')
    a('s_mov_b64 exec, 1')
    a(f'ds_write_b32 {vr(S+6)}, {vr(S+7)} offset:4')
    a('s_mov_b64 exec, -1')
    a('s_branch L_tagdone')
    a.label('L_notag')
    if hlate == 'pre': halo_k()
    issue_qa()
    if hlate == 'post': halo_k()
    if v2h: a('s_waitcnt vmcnt(4)')
    a.label('L_tagdone')
    a('s_waitcnt lgkmcnt(0)')
    a(f'v_add_u32 {vr(vDQk)}, 0x1000, {vr(vDQ)}')
    stamp(fine)
    a('s_barrier')
    for t in range(8):
        a(vread(X[t+1], t, 0)); a(vread(X[t+1]+2, t, 1))
    a('s_branch L_gdone')
    a.label('L_gk')
    for ks in range(4):
        a(f'ds_read_b128 {vr(QG+4*ks,4)}, {vr(vAG)} offset:{1024+64*ks}')
    issue_qa()
    a('s_waitcnt lgkmcnt(0)')
    for T in range(4):
        for ks in range(4):
            a(mfma(S+4*T, kf(T,ks), QG+4*ks, '0' if ks == 0 else S+4*T))
    a(f'v_add_u32 {vr(vDQk)}, 0x1000, {vr(vDQ)}')
    a.nop(7)
    for l in maxtree_l([S+x for x in range(16)], vM): a(l)
    xred(vM, vT)
    a(f'v_mul_f32 {vr(vM)}, s{sCS}, {vr(vM)}')
    for l in fma_l([S+x for x in range(16)], vM): a(l)
    for l in exp_l([S+x for x in range(16)]): a(l)
    a.nop(1)
    a(f'v_add_f32 {vr(vT)}, {vr(S)}, {vr(S+1)}')
    for x in range(2, 16):
        a(f'v_add_f32 {vr(vT)}, {vr(vT)}, {vr(S+x)}')
    for l in cvt_l(S, S, 8): a(l)
    xred(vT, vT0, 'v_add_f32')
    a(f'ds_write_b64 {vr(vNEG)}, {vr(vM,2)}')
    a(f'v_mbcnt_lo_u32_b32 {vr(vT0)}, -1, 0')
    a(f's_lshl_b32 s{sT0}, s{sWV}, 10')
    a(f'v_lshl_add_u32 {vr(vT0)}, {vr(vT0)}, 3, s{sT0}')
    if stamps and fine:
        nst[0] -= 1
        stamp()
    a('s_waitcnt vmcnt(4) lgkmcnt(0)')
    a('s_barrier')
    gb = [QB + 4*n for n in range(4)] + [S + 8 + 4*n for n in range(4)]
    for t in range(8):
        a(vread(gb[t], t, 2)); a(vread(gb[t]+2, t, 3))
    for t in range(8):
        a('s_waitcnt lgkmcnt(14)')
        a(mfma(gb[t], S+4, gb[t], '0'))
        a(vread(X[t+1], t, 0)); a(vread(X[t+1]+2, t, 1))
    for t in range(8):
        a(f's_waitcnt lgkmcnt({14-2*t})')
        a(mfma(gb[t], S, X[t+1], gb[t]))
    a('s_mov_b64 exec, 1')
    a(f'v_mov_b32 {vr(S)}, {LCNT}')
    a(f'v_mov_b32 {vr(S+1)}, 1')
    a('s_mov_b64 exec, 0xffff')
    for t in range(8):
        a(f'ds_write_b64 {vr(vT0)}, {vr(gb[t],2)} offset:{PART+128*t}')
    a('s_mov_b64 exec, 1')
    a(f'ds_add_u32 {vr(S)}, {vr(S+1)}')
    a('s_mov_b64 exec, -1')
    a.label('L_gdone')
    stamp()

    emit = lambda ls: [a(l) for l in ls]
    def combine(og, mg, tm):
        NP = len(og)
        emit(maxtree_l([mg[n] for n in range(NP)], tm))
        for n in range(NP):
            a(f'v_sub_f32 {vr(mg[n])}, {vr(mg[n])}, {vr(tm)}')
        for n in range(NP):
            a(f'v_exp_f32 {vr(mg[n])}, {vr(mg[n])}')
        a.nop(1)
        for e in range(4):
            a(f'v_mul_f32 {vr(og[0][e])}, {vr(og[0][e])}, {vr(mg[0])}')
        a(f'v_mul_f32 {vr(mg[0]+1)}, {vr(mg[0]+1)}, {vr(mg[0])}')
        for n in range(1, NP):
            for e in range(4):
                a(f'v_fmac_f32 {vr(og[0][e])}, {vr(og[n][e])}, {vr(mg[n])}')
            a(f'v_fmac_f32 {vr(mg[0]+1)}, {vr(mg[n]+1)}, {vr(mg[n])}')

    def issue_qb():
        for ks in range(4):
            a(f'buffer_load_dwordx4 {vr(QB+4*ks,4)}, {vr(vDQk)}, {sr(sQ,4)}, 0 offen offset:{64*ks} {qpol}')
        a(f'v_mov_b32 {vr(vDQk)}, 0')
    issue_qb()
    if opt.get('otouch'):
        only(FW, 'L_nootouch')
        a(f's_mov_b32 m0, {PARTML+256}')
        a('s_mov_b64 exec, 1')
        a(f'buffer_load_dword {vr(vOO)}, {sr(sO,4)}, 0 offen lds')
        a(f'buffer_load_dword {vr(vOO)}, {sr(sO,4)}, 0 offen offset:512 lds')
        a('s_mov_b64 exec, -1')
        a('s_waitcnt vmcnt(6)')
        a('s_branch L_tileA')
        a.label('L_nootouch')
    a(f's_cmp_eq_u32 s{sWV}, {RW}')
    a('s_cbranch_scc1 L_reduce')
    a(f's_cmp_eq_u32 s{sCMB}, 0')
    a('s_cbranch_scc1 L_noflag')
    a(f'v_mov_b32 {vr(vT0)}, {LNON}')
    a(f'ds_read_b32 {vr(vT0)}, {vr(vT0)}')
    a('s_waitcnt lgkmcnt(0)')
    a(f'v_readfirstlane_b32 s{sN}, {vr(vT0)}')
    a.label('L_noflag')
    a('s_waitcnt vmcnt(4)')
    a('s_branch L_tileA')
    a.label('L_reduce')
    R0 = S
    a(f'v_mbcnt_lo_u32_b32 {vr(R0)}, -1, 0')
    a(f'v_mbcnt_hi_u32_b32 {vr(R0)}, -1, {vr(R0)}')
    a(f'v_lshrrev_b32 {vr(R0+1)}, 5, {vr(R0)}')
    a(f'v_and_b32 {vr(R0+3)}, 31, {vr(R0)}')
    a(f'v_lshlrev_b32 {vr(R0+3)}, 5, {vr(R0+3)}')
    a(f'v_lshl_add_u32 {vr(R0+3)}, {vr(R0+1)}, 2, {vr(R0+3)}')
    a(f'v_lshlrev_b32 {vr(R0+1)}, 3, {vr(R0+1)}')
    a(f'v_add_u32 {vr(R0+1)}, {PARTML}, {vr(R0+1)}')
    a(f'v_lshlrev_b32 {vr(R0)}, 4, {vr(R0)}')
    a(f'v_mov_b32 {vr(R0+2)}, {LCNT}')
    a(f's_mov_b32 s{sCNT}, 0')
    a.label('L_lspin')
    a(f'ds_read_b64 {vr(S+4,2)}, {vr(R0+2)}')
    a(f's_add_u32 s{sCNT}, s{sCNT}, 1')
    a('s_waitcnt lgkmcnt(0)')
    a(f'v_readfirstlane_b32 s{sT0}, {vr(S+4)}')
    a(f'v_readfirstlane_b32 s{sN}, {vr(S+5)}')
    a(f's_cmp_ge_u32 s{sCNT}, 0x100000')
    a('s_cbranch_scc1 L_lok')
    a(f's_cmp_lt_u32 s{sT0}, 4')
    a('s_cbranch_scc1 L_lspin')
    a.label('L_lok')
    mg = [S+4, S+6, O, O+2]
    G0 = S + 8
    og = [[G0+4*n+e for e in range(4)] for n in range(4)]
    for n in range(4):
        a(f'ds_read_b64 {vr(mg[n],2)}, {vr(R0+1)} offset:{16*n}')
    for n in range(4):
        if n: a(f'v_add_u32 {vr(R0+3)}, 1024, {vr(R0+3)}')
        a(f'ds_read2_b32 {vr(G0+4*n,2)}, {vr(R0+3)} offset0:0 offset1:2')
        a(f'ds_read2_b32 {vr(G0+4*n+2,2)}, {vr(R0+3)} offset0:4 offset1:6')
    a('s_waitcnt lgkmcnt(0)')
    combine(og, mg, R0+1)
    a(f'v_mov_b32 {vr(G0+4)}, {vr(G0+3)}')
    a(f'v_mov_b32 {vr(G0+5)}, {vr(R0+1)}')
    a(f'v_mov_b32 {vr(G0+6)}, {vr(mg[0]+1)}')
    a(f'v_mov_b32 {vr(G0+7)}, s{sN}')
    a(f'v_mov_b32 {vr(G0+3)}, s{sN}')
    a(f'buffer_store_dwordx4 {vr(G0+4,4)}, {vr(R0)}, {sr(sW,4)}, s42 offen offset:1024 sc0 sc1')
    a(f'buffer_store_dwordx4 {vr(G0,4)}, {vr(R0)}, {sr(sW,4)}, s42 offen sc0 sc1')
    a(f's_cmp_lg_u32 s{sN}, 0')
    a('s_cbranch_scc1 L_tagged')
    a('s_waitcnt vmcnt(0)')
    a(f's_lshl_b32 s{sT0}, s{sH}, 3')
    a(f's_lshl_b32 s{sT1}, 1, s{sC}')
    a(f'v_mov_b32 {vr(R0)}, s{sT0}')
    a(f'v_mov_b32 {vr(R0+1)}, s{sT1}')
    a('s_mov_b64 exec, 1')
    a(f'global_atomic_or {vr(R0)}, {vr(R0+1)}, s[16:17] offset:4 sc1')
    a('s_mov_b64 exec, -1')
    a.label('L_tagged')
    a('s_waitcnt vmcnt(6)')
    a.label('L_tileA')
    def yprio(tag):
        if yp == tag:
            a(f's_cmp_lt_u32 s{sWV}, 4')
            a(f's_cbranch_scc1 L_yp{tag}')
            a('s_setprio 1')
            a.label(f'L_yp{tag}')
    yprio('a')
    stamp()

    def inter(ms, vs, per=2):
        vs = list(vs)
        for m in ms:
            a(m)
            for _ in range(per):
                if vs: a(vs.pop(0))
        for v in vs: a(v)

    HB = kf(2, 0)
    def hand_loads():
        a(f'v_mbcnt_lo_u32_b32 {vr(KG)}, -1, 0')
        a(f'v_mbcnt_hi_u32_b32 {vr(KG)}, -1, {vr(KG)}')
        a(f'v_lshlrev_b32 {vr(KG)}, 4, {vr(KG)}')
        for n in range(8):
            a(f's_movk_i32 s{sT0}, {2048*n}')
            a(f'buffer_load_dwordx4 {vr(HB+8*n,4)}, {vr(KG)}, {sr(sW,4)}, s{sT0} offen sc0 sc1')
            a(f'buffer_load_dwordx4 {vr(HB+8*n+4,4)}, {vr(KG)}, {sr(sW,4)}, s{sT0} offen offset:1024 sc0 sc1')

    buf = [kf(0, n) for n in range(4)] + [QA + 4*n for n in range(4)]
    SLOTW = {0: [0, 1, 2, 3, 4], 1: [4, 5, 2, 3, 1]}
    def qk(tau, sl):
        Q = QA if tau == 0 else QB
        if sl == 'G':
            return [mfma(S+20, KG+4*ks, Q+4*ks, '0' if ks == 0 else S+20) for ks in range(4)]
        W = SLOTW[tau][sl]
        c0 = BLO if W == tau else BHI if W == tau + 4 else '0'
        return [mfma(S+4*sl, kf(W,ks), Q+4*ks, c0 if ks == 0 else S+4*sl) for ks in range(4)]
    def edge_test(tau, lab):
        a(f's_sub_u32 s{sT0}, s{sQB}, {48 - 16*tau}')
        a(f's_cmp_lt_u32 s{sT0}, 1968')
        a(f's_cbranch_scc1 {lab}')
    def edge_mask(tau, tr):
        a(f'v_mbcnt_lo_u32_b32 {vr(tr)}, -1, 0')
        a(f'v_mbcnt_hi_u32_b32 {vr(tr)}, -1, {vr(tr)}')
        a(f'v_lshrrev_b32 {vr(tr)}, 4, {vr(tr)}')
        a(f's_sub_u32 s{sT0}, s{sQB}, 34')
        a(f's_movk_i32 s{sT1}, 2046')
        a(f'v_lshl_add_u32 {vr(tr)}, {vr(tr)}, 2, s{sT0}')
        a(f'v_mov_b32 {vr(vM)}, 0x{NEG:08x}')
        a('s_nop 3')
        for sl in range(5):
            for r in range(4):
                a(f'v_add_u32 {vr(vT)}, {16*SLOTW[tau][sl]+r}, {vr(tr)}')
                a(f'v_cmp_gt_u32 vcc, s{sT1}, {vr(vT)}')
                a('s_nop 1')
                a(f'v_cndmask_b32 {vr(S+4*sl+r)}, {vr(vM)}, {vr(S+4*sl+r)}, vcc')
        for l in maxtree_l([S+x for x in range(22)], vM): a(l)
    def epi(t, tau=0):
        l = [f'v_mul_f32 {vr(O+4*t+e)}, {vr(O+4*t+e)}, {vr(vT0)}' for e in range(4)]
        l += [f'v_cvt_pk_bf16_f32 {vr(O+4*t)}, {vr(O+4*t)}, {vr(O+4*t+1)}',
              f'v_cvt_pk_bf16_f32 {vr(O+4*t+1)}, {vr(O+4*t+2)}, {vr(O+4*t+3)}',
              f'ds_write_b64 {vr(vSW)}, {vr(O+4*t,2)} offset:{32*t + 16*STGP*tau}']
        return l
    def stage_reads(tau=0, R=O):
        return [f'ds_read_b128 {vr(R+4*j,4)}, {vr(vSR)} offset:{4*STGP*j + 16*STGP*tau}' for j in range(4)]
    def stores(tau, R=O, extra=0):
        for j in range(4):
            a(f's_waitcnt lgkmcnt({3-j+extra})')
            if tau == 0 and j == 0: a(f's_mov_b64 exec, {sr(sEX,2)}')
            a(f'buffer_store_dwordx4 {vr(R+4*j,4)}, {vr(vOO)}, {sr(sO,4)}, s{sTOFF if tau else sZERO} offen offset:{1024*j} {stpol}')
            if tau == 0 and j == 0: a('s_mov_b64 exec, -1')
    RA = kf(1, 0)
    def late_a():
        for l in stage_reads(0, RA): a(l)
        stores(0, RA)
    def softmax_pv(tau):
        m = vM
        xred(m, vT)
        a(f'v_mul_f32 {vr(m)}, s{sCS}, {vr(m)}')
        set0 = [S+x for x in range(8)]; set1 = [S+8+x for x in range(8)]; set2 = [S+16+x for x in range(6)]
        for l in fma_l(set0, m): a(l)
        f2 = fma_l(set2, m); f1 = fma_l(set1, m)
        for l in exp_l(set0): a(l)
        a(f2[0])
        for l in cvt_l(S, S, 4): a(l)
        a(f2[1])
        a('s_waitcnt lgkmcnt(0)' if tau == 1 else 's_waitcnt lgkmcnt(8)')
        if tau == 1 and apos == 1: late_a()
        ONES, LACC = S+4, S+20
        v2 = f2[2:] + exp_l(set2) + [f'v_mov_b32 {vr(ONES+n)}, 0x3f803f80' for n in range(4)] + cvt_l(S+16, S+16, 3) \
             + [f'v_mov_b32 {vr(S+19)}, 0', f'v_cndmask_b32 {vr(S+18)}, 0, {vr(S+18)}, {sr(sKG0,2)}']
        inter([mfma(X[t], X[t+1], S, '0') for t in range(8)], v2 + f1[:2])
        v1 = f1[2:] + exp_l(set1) + [f'v_mov_b32 {vr(vT0)}, 0'] + cvt_l(S+8, S+8, 4)
        inter([mfma(O+4*t, VG+4*t, S+16, O+4*t) for t in range(8)], v1)
        a(mfma(LACC, ONES, S, '0'))
        a(mfma(LACC, ONES, S+16, LACC))
        a(mfma(LACC, ONES, S+8, LACC))
        if tau == 0:
            a('s_waitcnt lgkmcnt(0)')
        for t in range(8):
            a(mfma(O+4*t, buf[t], S+8, O+4*t))
            if tau == 0: a(vread(VG+4*t, t, 1))
        a(f'v_rcp_f32 {vr(vT0)}, {vr(LACC)}')

    late = []
    for t in range(8):
        late += [vread(buf[t], t, 2), vread(buf[t]+2, t, 3)]
    vgr = [vread(VG+4*t, t, 4) for t in range(8)]
    edge_test(0, 'L_fastA')
    for l in vgr: a(l)
    for sl in ('G', 0, 1, 2, 3, 4):
        for l in qk(0, sl): a(l)
    for l in late: a(l)
    edge_mask(0, vT0)
    a('s_branch L_joinA')
    a.label('L_fastA')
    m = vM
    inter(qk(0, 0) + qk(0, 'G'), vgr, per=1)
    inter(qk(0, 1) + qk(0, 2), late[:8], per=1)
    inter(qk(0, 3), maxtree_l([S+20, S+21, S+0], m) + maxtree_l([S+1, S+2, S+3, S+4, S+5, S+6], m, False), per=1)
    inter(qk(0, 4), maxtree_l([S+7, S+8, S+9, S+10], m, False), per=1)
    for l in late[8:11]: a(l)
    for l in maxtree_l([S+11, S+12], m, False): a(l)
    for l in late[11:13]: a(l)
    for l in maxtree_l([S+13, S+14, S+15], m, False): a(l)
    for l in late[13:]: a(l)
    for l in maxtree_l([S+16, S+17, S+18, S+19], m, False): a(l)
    a.label('L_joinA')
    yprio('s')
    stamp(fine)
    softmax_pv(0)
    stamp(fine)
    ep = []
    for t in range(8): ep += epi(t)
    if apos == 0: ep += stage_reads()
    xb = []
    for t in range(8): xb += [vread(X[t+1], t, 4), vread(X[t+1]+2, t, 5)]
    def qb_wait(n):
        a(f's_waitcnt vmcnt({n+2})')
        if opt.get('otouch'):
            a(f's_and_b32 s{sT0}, s{sWV}, 3')
            a(f's_cmp_eq_u32 s{sT0}, 3')
        else:
            a(f's_cmp_eq_u32 s{sWV}, {RW}')
        a('s_cbranch_scc1 L_qbw')
        a(f's_waitcnt vmcnt({n})')
        a.label('L_qbw')
    if merge == 'hyb':
        a('s_nop 0')
        for l in ep: a(l)
        qb_wait(0)
        stamp()
        spos = int(opt.get('spos', 0))
        edge_test(1, 'L_fastB')
        stores(0)
        for sl in ('G', 0, 1, 2, 3, 4):
            for l in qk(1, sl): a(l)
        for l in xb: a(l)
        edge_mask(1, vT0)
        a('s_branch L_joinB')
        a.label('L_fastB')
        if spos == 0:
            stores(0)
            inter(qk(1, 'G') + qk(1, 0) + qk(1, 1) + qk(1, 2), xb, per=1)
        elif spos == 1:
            for l in qk(1, 'G') + qk(1, 0): a(l)
            stores(0)
            inter(qk(1, 1) + qk(1, 2), xb, per=2)
        else:
            for l in qk(1, 'G') + qk(1, 0) + qk(1, 1) + qk(1, 2): a(l)
        inter(qk(1, 3), maxtree_l([S+20, S+21, S+0], m) + maxtree_l([S+1, S+2, S+3, S+4, S+5, S+6], m, False), per=1)
        inter(qk(1, 4), maxtree_l([S+7, S+8], m, False), per=1)
        a.nop(1)
        for l in maxtree_l([S+9, S+10, S+11, S+12], m, False): a(l)
        a.nop(1)
        for l in maxtree_l([S+13, S+14, S+15], m, False): a(l)
        if spos == 2:
            stores(0)
            for l in xb: a(l)
        else:
            a.nop(3)
        for l in maxtree_l([S+16, S+17, S+18, S+19], m, False): a(l)
    elif not merge:
        a('s_nop 0')
        for l in ep: a(l)
        stores(0)
        for l in xb: a(l)
        qb_wait(4)
        stamp()
        edge_test(1, 'L_fastB')
        for sl in ('G', 0, 1, 2, 3, 4):
            for l in qk(1, sl): a(l)
        edge_mask(1, vT0)
        a('s_branch L_joinB')
        a.label('L_fastB')
        for sl in ('G', 0, 1, 2):
            for l in qk(1, sl): a(l)
        inter(qk(1, 3), maxtree_l([S+20, S+21, S+0], m) + maxtree_l([S+1, S+2], m, False), per=1)
        inter(qk(1, 4), maxtree_l([S+3, S+4, S+5, S+6, S+7, S+8], m, False), per=1)
        a.nop(1)
        for l in maxtree_l([S+9, S+10, S+11, S+12], m, False): a(l)
        a.nop(1)
        for l in maxtree_l([S+13, S+14, S+15], m, False): a(l)
        a.nop(2)
        for l in maxtree_l([S+16, S+17, S+18, S+19], m, False): a(l)
    else:
        qb_wait(0)
        yprio('m')
        stamp()
        edge_test(1, 'L_fastB')
        for l in ep: a(l)
        if apos == 0: stores(0)
        for sl in (0, 1, 2, 3, 4, 'G'):
            for l in qk(1, sl): a(l)
        for l in xb: a(l)
        edge_mask(1, vT0)
        a('s_branch L_joinB')
        a.label('L_fastB')
        ms = []
        for sl in (0, 1, 2, 3, 4, 'G'): ms += qk(1, sl)
        inter(ms, ep, per=3)
        for l in maxtree_l([S+x for x in range(15)], vT0): a(l)
        if apos == 0: stores(0)
        for l in xb: a(l)
        a(f'v_max3_f32 {vr(vM)}, {vr(vT0)}, {vr(S+15)}, {vr(S+16)}')
        for l in maxtree_l([S+17, S+18, S+19, S+20, S+21], vM, False): a(l)
    a.label('L_joinB')
    yprio('b')
    stamp()
    a(f's_cmp_eq_u32 s{sCMB}, 0')
    a('s_cbranch_scc1 L_nohand')
    hand_loads()
    a.label('L_nohand')
    softmax_pv(1)
    stamp(fine)
    if apos == 2:
        late_a()
    a('s_nop 0')
    if apos == 3:
        for l in stage_reads(0, RA): a(l)
    for t in range(8):
        for l in epi(t, 1): a(l)
    for l in stage_reads(1): a(l)
    if apos == 3:
        stores(0, RA, extra=4+8) if False else None
        for j in range(4):
            if j == 0: a(f's_mov_b64 exec, {sr(sEX,2)}')
            if j == 0: a('s_waitcnt lgkmcnt(4)')
            a(f'buffer_store_dwordx4 {vr(RA+4*j,4)}, {vr(vOO)}, {sr(sO,4)}, s{sZERO} offen offset:{1024*j} {stpol}')
            if j == 0: a('s_mov_b64 exec, -1')
    stores(1)
    stamp()

    a(f's_cmp_eq_u32 s{sCMB}, 0')
    a('s_cbranch_scc1 L_fin')
    a(f's_waitcnt vmcnt({4 if apos == 0 else 8})')
    a(f's_mov_b32 s{sCNT}, 0')
    a(f's_mov_b32 s{sT2}, 0')
    a.label('L_chk')
    a(f's_mov_b32 s{sT3}, s{sT2}')
    for n in range(8):
        a(f'v_cmp_eq_u32 vcc, s{sN}, {vr(HB+8*n+3)}')
        a(f'v_cmp_eq_u32 s[60:61], s{sN}, {vr(HB+8*n+7)}')
        a('s_nop 0')
        a('s_and_b64 vcc, vcc, s[60:61]')
        a('s_cmp_eq_u64 vcc, exec')
        a(f's_cselect_b32 s{sT0}, {1 << n}, 0')
        a(f's_or_b32 s{sT3}, s{sT3}, s{sT0}')
    a(f's_add_u32 s{sCNT}, s{sCNT}, 1')
    a(f's_cmp_eq_u32 s{sT3}, 0xff')
    a('s_cbranch_scc1 L_ready')
    a(f's_cmp_ge_u32 s{sCNT}, 0x40000')
    a('s_cbranch_scc1 L_ready')
    a(f's_lshl_b32 s{sT0}, s{sH}, 3')
    a(f'v_mov_b32 {vr(KG+1)}, s{sT0}')
    a(f'global_load_dword {vr(KG+2)}, {vr(KG+1)}, s[16:17] offset:4 sc0 sc1')
    a('s_waitcnt vmcnt(0)')
    a(f'v_readfirstlane_b32 s{sT2}, {vr(KG+2)}')
    hand_loads()
    a('s_waitcnt vmcnt(0)')
    a('s_branch L_chk')
    a.label('L_ready')
    hog = [[HB+8*n, HB+8*n+1, HB+8*n+2, HB+8*n+4] for n in range(8)]
    hmg = [HB+8*n+5 for n in range(8)]
    combine(hog, hmg, X8)
    a(f'v_rcp_f32 {vr(X8)}, {vr(hmg[0]+1)}')
    a(f'v_lshrrev_b32 {vr(KG)}, 1, {vr(KG)}')
    for e in range(4):
        a(f'v_mul_f32 {vr(hog[0][e])}, {vr(hog[0][e])}, {vr(X8)}')
    a(f'v_cvt_pk_bf16_f32 {vr(X8+2)}, {vr(hog[0][0])}, {vr(hog[0][1])}')
    a(f'v_cvt_pk_bf16_f32 {vr(X8+3)}, {vr(hog[0][2])}, {vr(hog[0][3])}')
    a(f'buffer_store_dwordx2 {vr(X8+2,2)}, {vr(KG)}, {sr(sO,4)}, 0 offen {stpol}')
    a.label('L_fin')
    if stamps:
        stamp()
        a('s_waitcnt vmcnt(0)')
        stamp()
        if opt.get('clk'):
            a('s_memtime s[98:99]')
            a('s_waitcnt lgkmcnt(0)')
            a('s_sub_u32 s98, s98, s96')
            a(f's_add_u32 s{64+2*nst[0]}, s98, s64')
            nst[0] += 1
        a(f's_lshl_b32 s{sT0}, s2, 3')
        a(f's_add_u32 s{sT0}, s{sT0}, s{sWV}')
        a(f's_lshl_b32 s{sT0}, s{sT0}, 6')
        a(f's_add_u32 s{sT0}, s{sT0}, 0x100000')
        a(f's_add_u32 s{sW}, s18, s{sT0}')
        a(f's_addc_u32 s{sW+1}, s19, 0')
        a(f'v_mov_b32 v1, 0')
        a('s_mov_b64 exec, 1')
        for n in range(min(16, nst[0])):
            a(f'v_mov_b32 v2, s{64+2*n}')
            a(f'buffer_store_dword v2, v1, {sr(sW,4)}, 0 offen offset:{4*n}')
        if 'leak' in opt:
            k = int(opt['leak'])
            a(f's_sub_u32 s{sT0}, s{64+2*k}, s64')
            a(f's_lshl_b32 s{sT0}, s{sT0}, 2')
            if opt.get('leakskew'):
                a.label('L_pre')
                a('s_memrealtime s[100:101]')
                a('s_waitcnt lgkmcnt(0)')
                a(f's_sub_u32 s{sT1}, s100, s64')
                a(f's_cmp_lt_u32 s{sT1}, 3000')
                a('s_cbranch_scc1 L_pre')
                a('s_mov_b64 exec, -1')
                a('v_mbcnt_lo_u32_b32 v3, -1, 0')
                a('v_and_b32 v3, 31, v3')
                a('v_lshlrev_b32 v3, 3, v3')
                a('global_load_dword v4, v3, s[16:17] sc0 sc1')
                a('s_waitcnt vmcnt(0)')
                a('v_readlane_b32 s20, v4, 0')
                a('s_mov_b32 s21, 0'); a('s_mov_b32 s22, 0')
                for n in range(1, 32):
                    a(f'v_readlane_b32 s23, v4, {n}')
                    a('s_nop 0')
                    a('s_sub_i32 s23, s23, s20')
                    a('s_min_i32 s21, s21, s23')
                    a('s_max_i32 s22, s22, s23')
                a(f's_sub_u32 s{sT0}, s22, s21')
                a(f's_min_u32 s{sT0}, s{sT0}, 2000')
                a(f's_lshl_b32 s{sT0}, s{sT0}, 2')
            if opt.get('leakxcc'):
                a('s_getreg_b32 s61, hwreg(HW_REG_XCC_ID, 0, 4)')
                a(f's_bfe_u32 s60, s{sN}, 0x40001')
                a('s_cmp_lg_u32 s60, s61')
                a(f's_cselect_b32 s{sT0}, 2000, 0')
            if opt.get('leakcnt'):
                a(f's_mul_i32 s{sT0}, s{sCNT}, 500')
                a(f's_mul_i32 s{sT0}, s{sT0}, s{sCMB}')
            if 'leakh' in opt:
                lo, hi = opt['leakh'].split(',')
                a(f's_sub_u32 s{sT1}, s{sH}, {lo}')
                a(f's_cmp_lt_u32 s{sT1}, {int(hi)-int(lo)}')
                a(f's_cselect_b32 s{sT0}, s{sT0}, 0')
            if 'leakwg' in opt:
                a(f's_cmp_eq_u32 s2, {opt["leakwg"]}')
                a(f's_cselect_b32 s{sT0}, s{sT0}, 0')
            if 'leakx' in opt:
                a(f's_getreg_b32 s{sT1}, hwreg(HW_REG_XCC_ID, 0, 4)')
                a(f's_lshr_b32 s{sT1}, {opt["leakx"]}, s{sT1}')
                a(f's_bitcmp1_b32 s{sT1}, 0')
                a(f's_cselect_b32 s{sT0}, s{sT0}, 0')
            if 'leakw' in opt:
                a(f's_lshr_b32 s{sT1}, {opt["leakw"]}, s{sWV}')
                a(f's_bitcmp1_b32 s{sT1}, 0')
                a(f's_cselect_b32 s{sT0}, s{sT0}, 0')
            a(f"s_add_u32 s{sT0}, s{sT0}, {opt.get('spin', 5000)}")
            a.label('L_spin')
            a('s_memrealtime s[100:101]')
            a('s_waitcnt lgkmcnt(0)')
            a(f's_sub_u32 s{sT1}, s100, s64')
            a(f's_cmp_lt_u32 s{sT1}, s{sT0}')
            a('s_cbranch_scc1 L_spin')
    a.label('L_end')
    a('s_endpgm')
    if cpf:
        a('.fill 4096, 4, 0xbf800000')

    check(a.lines)
    if stamps: print('stamps', nst[0])
    head = f'''; windowed + global-token attention, B=1 H=32 S=2048 D=128 bf16 (window 32, 2 global tokens)
; @launch grid=(256,1,1) block=(512,1,1) lds=163840
.amdgcn_target "amdgcn-amd-amdhsa--gfx950"
.text
.globl {NAME}
.p2align 8
.type {NAME},@function
{NAME}:
'''
    tail = f'''.section .rodata,"a"
.p2align 6
.amdhsa_kernel {NAME}
  .amdhsa_next_free_vgpr 256
  .amdhsa_next_free_sgpr {102 if stamps else 64}
  .amdhsa_accum_offset 256
  .amdhsa_group_segment_fixed_size 0
  .amdhsa_kernarg_size 64
  .amdhsa_user_sgpr_count 2
  .amdhsa_user_sgpr_kernarg_segment_ptr 1
  .amdhsa_system_sgpr_workgroup_id_x 1
.end_amdhsa_kernel
'''
    return head + a.text() + tail

if __name__ == '__main__':
    out = sys.argv[1]
    opt = {}
    for kv in sys.argv[2:]:
        k, v = kv.split('=', 1)
        opt[k] = {'True': True, 'False': False}.get(v, v.replace('+', ' '))
    open(out, 'w').write(gen(opt))
```

```python
import sys, math, struct
from asmlib import *

NAME = 'standalone__global_local_windowed_global_tokens__prompt_kernel'
def f2u(x): return struct.unpack('<I', struct.pack('<f', x))[0]

def gen(opt):
    a = Asm()
    NEG = 0xFF000000
    CSC = f2u(128 ** -0.5 * math.log2(math.e))
    KOFF, VOFF, SOFF = 0, 73728, 155648
    apos = int(opt.get('apos', 0))
    PART, STG = 0, 4096
    PARTML, LCNT, LNON = SOFF + 3072, SOFF + 3072 + 128, SOFF + 3072 + 132
    STGP = 272
    ldpol = opt.get('ldpol', '')
    qpol = opt.get('qpol', '')
    stpol = opt.get('stpol', 'sc0 sc1 nt')
    pk = opt.get('pk', True)
    N1 = int(opt.get('n1', 10))
    yp = opt.get('yp', '')
    RW = int(opt.get('rw', 3))
    FW = 7
    SW = 5 if not opt.get('sld') else 99
    CW, CC = int(opt.get('cw', 1)), 3
    merge = opt.get('merge', True)
    sQ, sK, sV, sO, sW = 20, 24, 28, 32, 36
    sWV, sH, sC, sHO, sQ0B = 40, 43, 44, 45, 46
    sT0, sT1, sT2, sT3 = 47, 48, 49, 50
    sBK = 62
    HW = 4
    sCS = 52; sKG0 = 54; sQB = 51; sEX = 56; sCMB = 58; sCNT = 59; sN = 63; sTOFF = 41; sZERO = 3
    VA = 0
    vSW, vSR, vOO, vT0 = 8, 9, 10, 11
    X8 = 12
    KF = 16; KG = 112; QA, QB = 128, 144; VG = 160; O = 192; S = 224
    BLO, BHI = 248, 252
    kf = lambda W, ks: KF + 16 * W + 4 * ks
    X = [O + 4 * n for n in range(8)] + [X8]
    vLANE, vI, vKGp, vDK, vDV, vDQ, vAG, vNEG, vAK = O+16, O+17, O+18, O+19, O+20, O+21, O+22, O+23, O+24
    vAVG, t1, t2, t3 = O+28, O+29, O+30, O+31
    vDQk = VG + 7
    vFLAG = VG + 3
    vM, vT = S + 22, S + 23

    stamps = opt.get('stamps', False)
    fine = opt.get('fine', False)
    nst = [0]
    def stamp(on=True):
        if stamps and on:
            a(f's_memrealtime s[{64+2*nst[0]}:{65+2*nst[0]}]')
            if nst[0]: a('s_waitcnt lgkmcnt(0)')
            nst[0] += 1
    M16 = 'v_mfma_f32_16x16x32_bf16'
    def mfma(d, x, y, c):
        return f'{M16} {vr(d,4)}, {vr(x,4)}, {vr(y,4)}, {c if isinstance(c,str) else vr(c,4)}'
    def only(w, lab):
        a(f's_cmp_lg_u32 s{sWV}, {w}')
        a(f's_cbranch_scc1 {lab}')

    stamp()
    if opt.get('clk'): a('s_memtime s[96:97]')
    a('s_load_dwordx16 s[4:19], s[0:1], 0')
    a(f'v_readfirstlane_b32 s{sWV}, v0')
    a('s_cmp_ge_u32 s2, 256')
    a('s_cbranch_scc1 L_end')
    a(f'v_lshrrev_b32 {vr(t1)}, 4, v0')
    a(f'v_xor_b32 {vr(vDK)}, {vr(t1)}, v0')
    a(f'v_and_b32 {vr(vDK)}, 15, {vr(vDK)}')
    a(f'v_lshl_add_u32 {vr(vDK)}, {vr(t1)}, 4, {vr(vDK)}')
    a(f's_bfe_u32 s{sC}, s2, 0x30003')
    a(f's_lshl_b32 s{sQ0B}, s{sC}, 16')
    a(f'v_lshl_add_u32 {vr(vDK)}, {vr(vDK)}, 4, s{sQ0B}')
    a('s_and_b32 s41, s2, 7')
    a(f's_lshr_b32 s{sH}, s2, 6')
    a(f's_lshl2_add_u32 s{sH}, s41, s{sH}')
    a(f's_lshl_b32 s{sHO}, s{sH}, 19')
    a(f's_lshl_b32 m0, s{sWV}, 4')
    a(f's_mov_b32 s{sK+2}, 0x80000')
    a(f's_mov_b32 s{sK+3}, 0x20000')
    a(f's_movk_i32 s{sCNT}, 17')
    cpf = opt.get('cpf', True)
    a.label('L_base')
    if cpf is True:
        a(f's_getpc_b64 s[{sEX}:{sEX+1}]')
        a(f'v_lshlrev_b32 v1, 5, v0')
        a(f'global_load_dword {vr(X8)}, v1, s[{sEX}:{sEX+1}]')
    if opt.get('katch'):
        a(f'v_mov_b32 v2, 0')
        a(f'global_load_dword {vr(X8+1)}, v2, s[0:1]')
    a(f's_cmp_ge_u32 s{sWV}, 256')
    a('s_cbranch_scc1 L_helper')
    a('s_waitcnt lgkmcnt(0)')
    stamp()
    a(f's_add_u32 s{sK}, s6, s{sHO}')
    a(f's_addc_u32 s{sK+1}, s7, 0')
    thr = int(opt.get('thr', 0)); tl = [0]
    if thr: a('s_getreg_b32 s1, hwreg(HW_REG_XCC_ID, 0, 4)')
    def throttle():
        if thr:
            a('s_bitcmp1_b32 s1, 0')
            a(f's_cbranch_scc{opt.get("thpar", 1)} L_th{tl[0]}')
            a(f's_waitcnt vmcnt({thr-1})')
            a.label(f'L_th{tl[0]}')
            tl[0] += 1
    a.label('L_kloop')
    throttle()
    a(f'buffer_load_dwordx4 {vr(vDK)}, {sr(sK,4)}, 0 offen {opt.get("kpol", ldpol)} lds')
    a('s_add_u32 m0, m0, 0x1000')
    a(f'v_add_u32 {vr(vDK)}, 0x1000, {vr(vDK)}')
    a(f's_sub_u32 s{sCNT}, s{sCNT}, 1')
    a('s_cbranch_scc0 L_kloop')
    if 'dup' in opt:
        nd = int(opt['dup'])
        a(f's_sub_u32 m0, m0, {0x1000*18}')
        a(f'v_subrev_u32 {vr(vDK)}, {0x1000*18}, {vr(vDK)}')
        for i in range(nd):
            a(f'buffer_load_dwordx4 {vr(vDK)}, {sr(sK,4)}, 0 offen lds')
            a('s_add_u32 m0, m0, 0x1000')
            a(f'v_add_u32 {vr(vDK)}, 0x1000, {vr(vDK)}')
    stamp(opt.get('postk', False))
    def common():
        a(f's_lshr_b32 s{sWV}, s{sWV}, 6')
        a(f'v_and_b32 {vr(vLANE)}, 63, v0')
        a(f'v_and_b32 {vr(vI)}, 15, v0')
        a(f'v_bfe_u32 {vr(vKGp)}, v0, 4, 2')
        a(f's_lshl_b32 s{sT1}, s{sWV}, 10')
        a(f's_add_u32 s{sT2}, s{sT1}, s{sQ0B}')
        for s_ in (sV, sQ):
            a(f's_mov_b32 s{s_+2}, 0x80000')
            a(f's_mov_b32 s{s_+3}, 0x20000')
        a(f's_mov_b32 s{sW+2}, 0x4000')
        a(f's_mov_b32 s{sW+3}, 0x20000')
        a(f's_and_b32 s{sBK}, s{sWV}, 3')
        a(f's_lshl_b32 s{sBK}, s{sBK}, 1')
        a(f's_cmp_lt_u32 s{sWV}, 4')
        a(f's_addc_u32 s{sBK}, s{sBK}, 0')
        a(f's_cmp_eq_u32 s{sC}, 0')
        a(f's_cselect_b32 s{sT3}, 0x40000000, 0')
        a(f's_lshl_b32 s{sT0}, s{sBK}, 13')
        a(f's_add_u32 s{sT0}, s{sT0}, s{sQ0B}')
        a(f'v_lshlrev_b32 {vr(vDQ)}, 4, {vr(vKGp)}')
        a(f'v_lshl_add_u32 {vr(vDQ)}, {vr(vI)}, 8, {vr(vDQ)}')
        a(f'v_add_u32 {vr(vDQ)}, s{sT0}, {vr(vDQ)}')
        a(f'v_lshlrev_b32 {vr(t3)}, 4, {vr(vLANE)}')
        a(f's_lshl_b32 s41, s{sH}, 14')
        a(f's_lshl_b32 s42, s{sC}, 11')
    common()
    a(f's_mov_b32 s{sN}, 0')
    def srds():
        a(f's_add_u32 s{sV}, s8, s{sHO}')
        a(f's_addc_u32 s{sV+1}, s9, 0')
        a(f's_add_u32 s{sQ}, s4, s{sHO}')
        a(f's_addc_u32 s{sQ+1}, s5, 0')
        a(f's_add_u32 s{sW}, s18, s41')
        a(f's_addc_u32 s{sW+1}, s19, 0')
    srds()
    if opt.get('sld'):
        only(1, 'L_nosmall1')
        for n, srd in enumerate((sK, sQ, sV)):
            a(f's_mov_b32 m0, {SOFF + 1024*n}')
            a('s_nop 0')
            a(f'buffer_load_dwordx4 {vr(t3)}, {sr(srd,4)}, 0 offen lds')
        a.label('L_nosmall1')
    a('s_branch L_v1')
    a.label('L_helper')
    a('s_setprio 3')
    a('s_memrealtime s[60:61]')
    if cpf == 'one':
        a(f's_cmp_lg_u32 s{sWV}, {64*6}')
        a('s_cbranch_scc1 L_nocpf')
        a(f's_getpc_b64 s[{sEX}:{sEX+1}]')
        a(f's_lshl_b32 s{sT0}, s{sC}, 11')
        a(f'v_and_b32 v1, 15, v0')
        a(f'v_lshl_add_u32 v1, v1, 7, s{sT0}')
        a('s_mov_b64 exec, 0xffff')
        a(f'global_load_dword {vr(X8)}, v1, s[{sEX}:{sEX+1}]')
        a('s_mov_b64 exec, -1')
        a.label('L_nocpf')
    common()
    a(f's_sub_u32 s{sT0}, s{sT3}, 0x2000')
    a(f'v_add_u32 {vr(t1)}, s{sT0}, {vr(vDQ)}')
    a(f'v_add_u32 {vr(t2)}, 0x1000, {vr(t1)}')
    a(f's_mov_b32 m0, {SOFF}')
    a('s_waitcnt lgkmcnt(0)')
    if stamps:
        nst[0] -= 1
        stamp()
    a(f's_add_u32 s{sK}, s6, s{sHO}')
    a(f's_addc_u32 s{sK+1}, s7, 0')
    srds()
    if stamps and opt.get('postk'):
        nst[0] -= 1
        stamp()
    a(f's_or_b32 s{sN}, s60, 1')
    if opt.get('leakxcc'):
        a('s_getreg_b32 s61, hwreg(HW_REG_XCC_ID, 0, 4)')
        a(f's_and_b32 s{sN}, s60, 0xffffffe0')
        a(f's_lshl1_add_u32 s{sN}, s61, s{sN}')
        a(f's_or_b32 s{sN}, s{sN}, 1')
    stch = opt.get('stch', '')
    if stch:
        only(6, 'L_nostch')
        if 'v' in stch: a(f's_load_dword s12, s[{sV}:{sV+1}], s{sQ0B}')
        if 'q' in stch: a(f's_load_dword s12, s[{sQ}:{sQ+1}], s{sQ0B}')
        if 'o' in stch:
            a(f's_add_u32 s{sT0}, s{sHO}, s{sQ0B}')
            a(f's_load_dword s13, s[14:15], s{sT0}')
        if 'w' in stch: a(f's_load_dword s13, s[{sW}:{sW+1}], s42')
        if 'd' in stch: a(f's_load_dword s13, s[16:17], 0x80')
        a.label('L_nostch')
    slate = opt.get('slate', False)
    def specials():
        a(f's_mov_b32 m0, {SOFF}')
        only(FW, 'L_noclear')
        a(f's_lshl_b32 s{sT0}, s{sH}, 3')
        a(f'v_mov_b32 {vr(S+4)}, s{sT0}')
        a(f'v_mov_b32 {vr(S+5)}, s{sN}')
        a(f'v_mov_b32 {vr(S+6)}, {LCNT}')
        a(f'v_mov_b32 {vr(S+7)}, 0')
        a('s_mov_b64 exec, 1')
        a(f's_cmp_lg_u32 s{sC}, {CC}')
        a('s_cbranch_scc1 L_nopub')
        a(f'global_store_dword {vr(S+4)}, {vr(S+5)}, s[16:17] sc0 sc1')
        a.label('L_nopub')
        a(f'ds_write_b32 {vr(S+6)}, {vr(S+7)}')
        a('s_mov_b64 exec, -1')
        if opt.get('wstouch'):
            pol = {'ld': '', 'ldsc': 'sc0 sc1'}.get(opt['wstouch'])
            if pol is not None:
                a(f'buffer_load_dwordx4 {vr(S+8,4)}, {vr(t3)}, {sr(sW,4)}, s42 offen {pol}')
                a(f'buffer_load_dwordx4 {vr(S+12,4)}, {vr(t3)}, {sr(sW,4)}, s42 offen offset:1024 {pol}')
            else:
                for n in range(4): a(f'v_mov_b32 {vr(S+8+n)}, 0')
                a(f'buffer_store_dwordx4 {vr(S+8,4)}, {vr(t3)}, {sr(sW,4)}, s42 offen sc0 sc1')
                a(f'buffer_store_dwordx4 {vr(S+8,4)}, {vr(t3)}, {sr(sW,4)}, s42 offen offset:1024 sc0 sc1')
        a.label('L_noclear')
        only(SW, 'L_nosmall')
        for n, srd in enumerate((sK, sQ, sV)):
            if n:
                a(f's_mov_b32 m0, {SOFF + 1024*n}')
                a('s_nop 0')
            a(f'buffer_load_dwordx4 {vr(t3)}, {sr(srd,4)}, 0 offen lds')
        a.label('L_nosmall')
    if not slate: specials()
    if opt.get('tch'):
        only(6, 'L_notch')
        a(f'v_and_b32 {vr(S+8)}, 1, {vr(vLANE)}')
        a(f'v_mul_u32_u24 {vr(S+8)}, 0xff00, {vr(S+8)}')
        a(f'v_add_u32 {vr(S+8)}, s{sQ0B}, {vr(S+8)}')
        a('s_mov_b64 exec, 3')
        a(f'buffer_load_dword {vr(S+9)}, {vr(S+8)}, {sr(sV,4)}, 0 offen')
        a(f'buffer_load_dword {vr(S+10)}, {vr(S+8)}, {sr(sQ,4)}, 0 offen')
        if opt['tch'] == 'o':
            a(f'v_add_u32 {vr(S+8)}, s{sHO}, {vr(S+8)}')
            a(f'global_load_dword {vr(S+11)}, {vr(S+8)}, s[14:15]')
        a('s_mov_b64 exec, -1')
        a.label('L_notch')
    hlate = opt.get('hlate', '')
    def halo_k():
        only(HW, 'L_nohalo')
        if hlate:
            a(f's_sub_u32 s{sT0}, s{sT3}, 0x2000')
            a(f'v_add_u32 {vr(t1)}, s{sT0}, {vr(vDQ)}')
            a(f'v_add_u32 {vr(t2)}, 0x1000, {vr(t1)}')
        for T in range(2):
            for ks in range(4):
                a(f'buffer_load_dwordx4 {vr(kf(T,ks),4)}, {vr(t1+T)}, {sr(sK,4)}, 0 offen offset:{64*ks}')
        a.label('L_nohalo')
    if not hlate: halo_k()
    a('s_setprio 0')
    v2h = int(opt.get('v2h', 0))
    def vaddr(i0):
        a(f's_and_b32 s{sT0}, s{sWV}, 1')
        a(f's_lshl_b32 s{sT0}, s{sT0}, 2')
        a(f'v_add_lshl_u32 {vr(vDV)}, s{sT0}, {vr(vKGp)}, 1')
        a(f'v_xor_b32 {vr(vDV)}, {vr(vDV)}, {vr(vI)}')
        a(f'v_lshlrev_b32 {vr(vDV)}, 4, {vr(vDV)}')
        a(f'v_lshl_add_u32 {vr(vDV)}, {vr(vKGp)}, 8, {vr(vDV)}')
        a(f's_add_u32 s{sT2}, s{sT2}, {(0x1000*i0 - 0x2000) & 0xffffffff}')
        a(f'v_add_u32 {vr(vDV)}, s{sT2}, {vr(vDV)}')
        a(f's_add_u32 m0, s{sT1}, {VOFF + 0x1000*i0}')
    if v2h:
        vaddr(20 - v2h - 1 - 1)
    a('s_branch L_nov1')
    a.label('L_v1')
    def vpiece(i):
        throttle()
        if i:
            a('s_add_u32 m0, m0, 0x1000')
            a(f'v_add_u32 {vr(vDV)}, 0x1000, {vr(vDV)}')
        if i < 2:
            a(f'v_add_u32 {vr(t1)}, s{sT3}, {vr(vDV)}')
            a(f'buffer_load_dwordx4 {vr(t1)}, {sr(sV,4)}, 0 offen {ldpol} lds')
        else:
            a(f'buffer_load_dwordx4 {vr(vDV)}, {sr(sV,4)}, 0 offen {ldpol} lds')
    vaddr(0)
    for i in range(N1): vpiece(i)
    a.label('L_nov1')
    stamp()
    if hlate == 'low': halo_k()

    a(f's_add_u32 s{sO}, s14, s{sHO}')
    a(f's_addc_u32 s{sO+1}, s15, 0')
    a(f's_mov_b32 s{sO+2}, 0x80000')
    a(f's_mov_b32 s{sO+3}, 0x20000')
    a(f's_movk_i32 s{sTOFF}, 0x1000')
    a(f's_mov_b32 s{sZERO}, 0')
    a(f's_mov_b32 s{sCS}, 0x{CSC:08x}')
    a(f's_mov_b32 s{sCS+1}, 0x{CSC:08x}')
    a(f'v_mov_b32 {vr(vNEG)}, 0x{NEG:08x}')
    a(f'v_lshlrev_b32 {vr(t2)}, 2, {vr(vKGp)}')
    a(f'v_cmp_eq_u32 {sr(sKG0,2)}, 0, {vr(vKGp)}')
    for r in range(4):
        a(f'v_add_u32 {vr(t1)}, {r}, {vr(t2)}')
        a(f'v_cmp_ge_u32 vcc, {vr(t1)}, {vr(vI)}')
        a(f'v_cmp_le_u32 s[60:61], {vr(t1)}, {vr(vI)}')
        a('s_nop 0')
        a(f'v_cndmask_b32 {vr(BLO+r)}, {vr(vNEG)}, 0, vcc')
        a(f'v_cndmask_b32 {vr(BHI+r)}, {vr(vNEG)}, 0, s[60:61]')
    a(f's_lshl_b32 s{sT0}, s{sBK}, 13')
    a(f'v_xor_b32 {vr(t1)}, {vr(vKGp)}, {vr(vI)}')
    a(f'v_lshlrev_b32 {vr(t1)}, 4, {vr(t1)}')
    a(f'v_lshl_add_u32 {vr(t1)}, {vr(vI)}, 8, {vr(t1)}')
    a(f'v_add_u32 {vr(vAK)}, s{sT0}, {vr(t1)}')
    for ks in range(1, 4):
        a(f'v_xor_b32 {vr(vAK+ks)}, {64*ks}, {vr(vAK)}')
    a(f'v_and_b32 {vr(t1)}, 1, {vr(vI)}')
    a(f'v_lshlrev_b32 {vr(vNEG)}, 3, {vr(t1)}')
    a(f'v_lshlrev_b32 {vr(t1)}, 8, {vr(t1)}')
    a(f'v_lshl_add_u32 {vr(t1)}, {vr(vKGp)}, 4, {vr(t1)}')
    a(f'v_add_u32 {vr(vAG)}, {SOFF}, {vr(t1)}')
    a(f'v_bfe_u32 {vr(t1)}, {vr(vLANE)}, 2, 2')
    a(f'v_and_b32 {vr(t2)}, 3, {vr(vLANE)}')
    a(f'v_lshlrev_b32 {vr(t2)}, 3, {vr(t2)}')
    a(f'v_lshl_add_u32 {vr(t1)}, {vr(t1)}, 8, {vr(t2)}')
    a(f'v_add_u32 {vr(vAVG)}, {SOFF+2048}, {vr(t1)}')
    a(f'v_lshrrev_b32 {vr(t1)}, 2, {vr(vLANE)}')
    a(f'v_and_b32 {vr(vT0)}, 7, {vr(t1)}')
    a(f'v_lshl_add_u32 {vr(t2)}, {vr(vT0)}, 5, {vr(t2)}')
    a(f'v_lshl_add_u32 {vr(t2)}, {vr(t1)}, 8, {vr(t2)}')
    a(f's_add_u32 s{sT1}, s{sT0}, {VOFF}')
    a(f'v_add_u32 {vr(VA)}, s{sT1}, {vr(t2)}')
    for t in range(1, 8):
        a(f'v_xor_b32 {vr(VA+t)}, {32*t}, {vr(VA)}')
    a(f's_mul_i32 s{sT1}, s{sWV}, {32*STGP}')
    a(f's_add_u32 s{sT1}, s{sT1}, {STG}')
    a(f'v_mul_u32_u24 {vr(t1)}, {STGP}, {vr(vI)}')
    a(f'v_lshl_add_u32 {vr(t1)}, {vr(vKGp)}, 3, {vr(t1)}')
    a(f'v_add_u32 {vr(vSW)}, s{sT1}, {vr(t1)}')
    a(f'v_mul_u32_u24 {vr(t1)}, {STGP}, {vr(vKGp)}')
    a(f'v_lshl_add_u32 {vr(t1)}, {vr(vI)}, 4, {vr(t1)}')
    a(f'v_add_u32 {vr(vSR)}, s{sT1}, {vr(t1)}')
    a(f's_add_u32 s{sT0}, s{sT0}, s{sQ0B}')
    a(f'v_add_u32 {vr(vOO)}, s{sT0}, {vr(t3)}')
    a(f's_lshr_b32 s{sQB}, s{sT0}, 8')
    a(f's_cmp_eq_u32 s{sQB}, 0')
    a(f's_cselect_b32 s{sEX}, 0, -1')
    a(f's_mov_b32 s{sEX+1}, -1')
    a(f's_cmp_eq_u32 s{sQB}, {256*CC+32*(2*CW+1)}')
    a(f's_cselect_b32 s{sCMB}, 1, 0')
    a(f's_lshl_b32 s{sT0}, s{sWV}, 4')
    a(f's_add_u32 s{sT0}, s{sT0}, {PARTML}')
    a(f'v_add_u32 {vr(vNEG)}, s{sT0}, {vr(vNEG)}')

    spf = [int(x) for x in opt.get('spf', '0,0').split(',')]
    spstep = int(opt.get('spstep', 128)); sptile = opt.get('sptile', 'B')
    def sp_offsets():
        o = []
        for half in ([1, 0] if sptile == 'B' else [0, 1]):
            for blk in (1, 0):
                o += [8192*blk + 4096*half + x for x in range(0, 4096, spstep)]
        return o
    spo = sp_offsets()
    def sprefetch(n):
        for _ in range(n):
            if spo: a(f's_load_dword s61, s[10:11], {spo.pop(0)}')
    if sum(spf):
        a(f's_cmp_lt_u32 s{sWV}, 4')
        a('s_cbranch_scc1 L_nosp')
        a(f's_lshl_b32 s{sT0}, s{sBK}, 13')
        a(f's_add_u32 s{sT0}, s{sT0}, s{sQ0B}')
        a(f's_add_u32 s10, s{sQ}, s{sT0}')
        a(f's_addc_u32 s11, s{sQ+1}, 0')
        sprefetch(spf[0])
        a.label('L_nosp')
    if slate:
        a(f's_cmp_lt_u32 s{sWV}, 4')
        a('s_cbranch_scc1 L_nospec')
        for _ in range(int(opt.get('sdelay', 0))): pass
        a('s_setprio 3')
        specials()
        a('s_setprio 0')
        a.label('L_nospec')
    a(f's_waitcnt vmcnt({N1}) lgkmcnt(0)')
    a(f's_cmp_lt_u32 s{sWV}, 4')
    a('s_cbranch_scc1 L_kw')
    a(f's_cmp_eq_u32 s{sWV}, {FW}')
    a('s_cbranch_scc1 L_kw')
    a('s_waitcnt vmcnt(0)')
    a.label('L_kw')
    stamp(opt.get('prek', False))
    a('s_barrier')
    stamp()
    a(f's_cmp_ge_u32 s{sWV}, 4')
    a('s_cbranch_scc1 L_nov2')
    for i in range(N1, 20 - v2h): vpiece(i)
    if v2h:
        a('s_branch L_nov2b')
    a.label('L_nov2')
    if v2h:
        a(f's_setprio {opt.get("v2p", 3)}')
        for i in range(20 - v2h, 20): vpiece(i)
        a('s_setprio 0')
        a.label('L_nov2b')
    stamp(fine)
    QG = O
    for W in (2, 3, 4, 5):
        for ks in range(4):
            a(f'ds_read_b128 {vr(kf(W,ks),4)}, {vr(vAK+ks)} offset:{4096*(W-2)}')
    for ks in range(4):
        a(f'ds_read_b128 {vr(KG+4*ks,4)}, {vr(vAG)} offset:{64*ks}')
    for t in range(8):
        a(f'ds_read_b64_tr_b16 {vr(VG+4*t+2,2)}, {vr(vAVG)} offset:{32*t}')
    a(f's_cmp_eq_u32 s{sWV}, {HW}')
    a('s_cbranch_scc1 L_k01done')
    for ks in range(4):
        a(f'v_subrev_u32 {vr(vAK+ks)}, 0x2000, {vr(vAK+ks)}')
    for W in (0, 1):
        for ks in range(4):
            a(f'ds_read_b128 {vr(kf(W,ks),4)}, {vr(vAK+ks)} offset:{4096*W}')
    a.label('L_k01done')
    def issue_qa():
        if opt.get('qprio'): a('s_setprio 3')
        for ks in range(4):
            a(f'buffer_load_dwordx4 {vr(QA+4*ks,4)}, {vr(vDQ)}, {sr(sQ,4)}, 0 offen offset:{64*ks} {qpol}')
        if opt.get('qprio'): a('s_setprio 0')

    def xred(m, t, op='v_max_f32'):
        a(f'v_mov_b32 {vr(t)}, {vr(m)}')
        a.nop(2)
        a(f'v_permlane16_swap_b32 {vr(m)}, {vr(t)}')
        a(f'{op} {vr(m)}, {vr(m)}, {vr(t)}')
        a(f'v_mov_b32 {vr(t)}, {vr(m)}')
        a.nop(2)
        a(f'v_permlane32_swap_b32 {vr(m)}, {vr(t)}')
        a(f'{op} {vr(m)}, {vr(m)}, {vr(t)}')
    def maxtree_l(vals, m, first=True):
        out = []; rest = list(vals)
        if first:
            out.append(f'v_max3_f32 {vr(m)}, {vr(rest[0])}, {vr(rest[1])}, {vr(rest[2])}'); rest = rest[3:]
        while len(rest) >= 2:
            out.append(f'v_max3_f32 {vr(m)}, {vr(m)}, {vr(rest[0])}, {vr(rest[1])}'); rest = rest[2:]
        if rest:
            out.append(f'v_max_f32 {vr(m)}, {vr(m)}, {vr(rest[0])}')
        return out
    def fma_l(vals, mc):
        if pk:
            return [f'v_pk_fma_f32 {vr(vals[n],2)}, {vr(vals[n],2)}, {sr(sCS,2)}, {vr(mc,2)} op_sel_hi:[1,1,0] neg_lo:[0,0,1] neg_hi:[0,0,1]' for n in range(0, len(vals), 2)]
        return [f'v_fma_f32 {vr(v)}, {vr(v)}, s{sCS}, -{vr(mc)}' for v in vals]
    exp_l = lambda vals: [f'v_exp_f32 {vr(v)}, {vr(v)}' for v in vals]
    cvt_l = lambda dst, src, n: [f'v_cvt_pk_bf16_f32 {vr(dst+k)}, {vr(src+2*k)}, {vr(src+2*k+1)}' for k in range(n)]

    def vread(dst, t, W):
        return f'ds_read_b64_tr_b16 {vr(dst,2)}, {vr(VA+t)} offset:{4096*W}'
    a(f's_cmp_lt_u32 s{sWV}, 4')
    a('s_cbranch_scc1 L_gk')
    sprefetch(spf[1])
    only(FW, 'L_notag')
    a('s_setprio 3')
    a(f's_lshl_b32 s{sT0}, s{sH}, 3')
    a(f'v_mov_b32 {vr(S+4)}, s{sT0}')
    a(f'v_mov_b32 {vr(S+5)}, s{sN}')
    a(f'v_mov_b32 {vr(S+6)}, {LCNT}')
    a(f'global_load_dword {vr(S+7)}, {vr(S+4)}, s[16:17]')
    a('s_setprio 0')
    issue_qa()
    a('s_waitcnt vmcnt(4)')
    if opt.get('forcefb'): a(f'v_mov_b32 {vr(S+7)}, 0')
    a(f's_cmp_eq_u32 s{sC}, {CC}')
    a('s_cselect_b64 vcc, -1, 0')
    a(f'v_cndmask_b32 {vr(S+7)}, {vr(S+7)}, {vr(S+5)}, vcc')
    a('s_mov_b64 exec, 1')
    a(f'ds_write_b32 {vr(S+6)}, {vr(S+7)} offset:4')
    a('s_mov_b64 exec, -1')
    a('s_branch L_tagdone')
    a.label('L_notag')
    if hlate == 'pre': halo_k()
    issue_qa()
    if hlate == 'post': halo_k()
    if v2h: a('s_waitcnt vmcnt(4)')
    a.label('L_tagdone')
    a('s_waitcnt lgkmcnt(0)')
    a(f'v_add_u32 {vr(vDQk)}, 0x1000, {vr(vDQ)}')
    stamp(fine)
    a('s_barrier')
    for t in range(8):
        a(vread(X[t+1], t, 0)); a(vread(X[t+1]+2, t, 1))
    a('s_branch L_gdone')
    a.label('L_gk')
    for ks in range(4):
        a(f'ds_read_b128 {vr(QG+4*ks,4)}, {vr(vAG)} offset:{1024+64*ks}')
    issue_qa()
    a('s_waitcnt lgkmcnt(0)')
    for T in range(4):
        for ks in range(4):
            a(mfma(S+4*T, kf(T,ks), QG+4*ks, '0' if ks == 0 else S+4*T))
    a(f'v_add_u32 {vr(vDQk)}, 0x1000, {vr(vDQ)}')
    a.nop(7)
    for l in maxtree_l([S+x for x in range(16)], vM): a(l)
    xred(vM, vT)
    a(f'v_mul_f32 {vr(vM)}, s{sCS}, {vr(vM)}')
    for l in fma_l([S+x for x in range(16)], vM): a(l)
    for l in exp_l([S+x for x in range(16)]): a(l)
    a.nop(1)
    a(f'v_add_f32 {vr(vT)}, {vr(S)}, {vr(S+1)}')
    for x in range(2, 16):
        a(f'v_add_f32 {vr(vT)}, {vr(vT)}, {vr(S+x)}')
    for l in cvt_l(S, S, 8): a(l)
    xred(vT, vT0, 'v_add_f32')
    a(f'ds_write_b64 {vr(vNEG)}, {vr(vM,2)}')
    a(f'v_mbcnt_lo_u32_b32 {vr(vT0)}, -1, 0')
    a(f's_lshl_b32 s{sT0}, s{sWV}, 10')
    a(f'v_lshl_add_u32 {vr(vT0)}, {vr(vT0)}, 3, s{sT0}')
    if stamps and fine:
        nst[0] -= 1
        stamp()
    a('s_waitcnt vmcnt(4) lgkmcnt(0)')
    a('s_barrier')
    gb = [QB + 4*n for n in range(4)] + [S + 8 + 4*n for n in range(4)]
    for t in range(8):
        a(vread(gb[t], t, 2)); a(vread(gb[t]+2, t, 3))
    for t in range(8):
        a('s_waitcnt lgkmcnt(14)')
        a(mfma(gb[t], S+4, gb[t], '0'))
        a(vread(X[t+1], t, 0)); a(vread(X[t+1]+2, t, 1))
    for t in range(8):
        a(f's_waitcnt lgkmcnt({14-2*t})')
        a(mfma(gb[t], S, X[t+1], gb[t]))
    a('s_mov_b64 exec, 1')
    a(f'v_mov_b32 {vr(S)}, {LCNT}')
    a(f'v_mov_b32 {vr(S+1)}, 1')
    a('s_mov_b64 exec, 0xffff')
    for t in range(8):
        a(f'ds_write_b64 {vr(vT0)}, {vr(gb[t],2)} offset:{PART+128*t}')
    a('s_mov_b64 exec, 1')
    a(f'ds_add_u32 {vr(S)}, {vr(S+1)}')
    a('s_mov_b64 exec, -1')
    a.label('L_gdone')
    stamp()

    emit = lambda ls: [a(l) for l in ls]
    def combine(og, mg, tm):
        NP = len(og)
        emit(maxtree_l([mg[n] for n in range(NP)], tm))
        for n in range(NP):
            a(f'v_sub_f32 {vr(mg[n])}, {vr(mg[n])}, {vr(tm)}')
        for n in range(NP):
            a(f'v_exp_f32 {vr(mg[n])}, {vr(mg[n])}')
        a.nop(1)
        for e in range(4):
            a(f'v_mul_f32 {vr(og[0][e])}, {vr(og[0][e])}, {vr(mg[0])}')
        a(f'v_mul_f32 {vr(mg[0]+1)}, {vr(mg[0]+1)}, {vr(mg[0])}')
        for n in range(1, NP):
            for e in range(4):
                a(f'v_fmac_f32 {vr(og[0][e])}, {vr(og[n][e])}, {vr(mg[n])}')
            a(f'v_fmac_f32 {vr(mg[0]+1)}, {vr(mg[n]+1)}, {vr(mg[n])}')

    def issue_qb():
        for ks in range(4):
            a(f'buffer_load_dwordx4 {vr(QB+4*ks,4)}, {vr(vDQk)}, {sr(sQ,4)}, 0 offen offset:{64*ks} {qpol}')
        a(f'v_mov_b32 {vr(vDQk)}, 0')
    issue_qb()
    if opt.get('otouch'):
        only(FW, 'L_nootouch')
        a(f's_mov_b32 m0, {PARTML+256}')
        a('s_mov_b64 exec, 1')
        a(f'buffer_load_dword {vr(vOO)}, {sr(sO,4)}, 0 offen lds')
        a(f'buffer_load_dword {vr(vOO)}, {sr(sO,4)}, 0 offen offset:512 lds')
        a('s_mov_b64 exec, -1')
        a('s_waitcnt vmcnt(6)')
        a('s_branch L_tileA')
        a.label('L_nootouch')
    a(f's_cmp_eq_u32 s{sWV}, {RW}')
    a('s_cbranch_scc1 L_reduce')
    a(f's_cmp_eq_u32 s{sCMB}, 0')
    a('s_cbranch_scc1 L_noflag')
    a(f'v_mov_b32 {vr(vT0)}, {LNON}')
    a(f'ds_read_b32 {vr(vT0)}, {vr(vT0)}')
    a('s_waitcnt lgkmcnt(0)')
    a(f'v_readfirstlane_b32 s{sN}, {vr(vT0)}')
    a.label('L_noflag')
    a('s_waitcnt vmcnt(4)')
    a('s_branch L_tileA')
    a.label('L_reduce')
    R0 = S
    a(f'v_mbcnt_lo_u32_b32 {vr(R0)}, -1, 0')
    a(f'v_mbcnt_hi_u32_b32 {vr(R0)}, -1, {vr(R0)}')
    a(f'v_lshrrev_b32 {vr(R0+1)}, 5, {vr(R0)}')
    a(f'v_and_b32 {vr(R0+3)}, 31, {vr(R0)}')
    a(f'v_lshlrev_b32 {vr(R0+3)}, 5, {vr(R0+3)}')
    a(f'v_lshl_add_u32 {vr(R0+3)}, {vr(R0+1)}, 2, {vr(R0+3)}')
    a(f'v_lshlrev_b32 {vr(R0+1)}, 3, {vr(R0+1)}')
    a(f'v_add_u32 {vr(R0+1)}, {PARTML}, {vr(R0+1)}')
    a(f'v_lshlrev_b32 {vr(R0)}, 4, {vr(R0)}')
    a(f'v_mov_b32 {vr(R0+2)}, {LCNT}')
    a(f's_mov_b32 s{sCNT}, 0')
    a.label('L_lspin')
    a(f'ds_read_b64 {vr(S+4,2)}, {vr(R0+2)}')
    a(f's_add_u32 s{sCNT}, s{sCNT}, 1')
    a('s_waitcnt lgkmcnt(0)')
    a(f'v_readfirstlane_b32 s{sT0}, {vr(S+4)}')
    a(f'v_readfirstlane_b32 s{sN}, {vr(S+5)}')
    a(f's_cmp_ge_u32 s{sCNT}, 0x100000')
    a('s_cbranch_scc1 L_lok')
    a(f's_cmp_lt_u32 s{sT0}, 4')
    a('s_cbranch_scc1 L_lspin')
    a.label('L_lok')
    mg = [S+4, S+6, O, O+2]
    G0 = S + 8
    og = [[G0+4*n+e for e in range(4)] for n in range(4)]
    for n in range(4):
        a(f'ds_read_b64 {vr(mg[n],2)}, {vr(R0+1)} offset:{16*n}')
    for n in range(4):
        if n: a(f'v_add_u32 {vr(R0+3)}, 1024, {vr(R0+3)}')
        a(f'ds_read2_b32 {vr(G0+4*n,2)}, {vr(R0+3)} offset0:0 offset1:2')
        a(f'ds_read2_b32 {vr(G0+4*n+2,2)}, {vr(R0+3)} offset0:4 offset1:6')
    a('s_waitcnt lgkmcnt(0)')
    combine(og, mg, R0+1)
    a(f'v_mov_b32 {vr(G0+4)}, {vr(G0+3)}')
    a(f'v_mov_b32 {vr(G0+5)}, {vr(R0+1)}')
    a(f'v_mov_b32 {vr(G0+6)}, {vr(mg[0]+1)}')
    a(f'v_mov_b32 {vr(G0+7)}, s{sN}')
    a(f'v_mov_b32 {vr(G0+3)}, s{sN}')
    a(f'buffer_store_dwordx4 {vr(G0+4,4)}, {vr(R0)}, {sr(sW,4)}, s42 offen offset:1024 sc0 sc1')
    a(f'buffer_store_dwordx4 {vr(G0,4)}, {vr(R0)}, {sr(sW,4)}, s42 offen sc0 sc1')
    a(f's_cmp_lg_u32 s{sN}, 0')
    a('s_cbranch_scc1 L_tagged')
    a('s_waitcnt vmcnt(0)')
    a(f's_lshl_b32 s{sT0}, s{sH}, 3')
    a(f's_lshl_b32 s{sT1}, 1, s{sC}')
    a(f'v_mov_b32 {vr(R0)}, s{sT0}')
    a(f'v_mov_b32 {vr(R0+1)}, s{sT1}')
    a('s_mov_b64 exec, 1')
    a(f'global_atomic_or {vr(R0)}, {vr(R0+1)}, s[16:17] offset:4 sc1')
    a('s_mov_b64 exec, -1')
    a.label('L_tagged')
    a('s_waitcnt vmcnt(6)')
    a.label('L_tileA')
    def yprio(tag):
        if yp == tag:
            a(f's_cmp_lt_u32 s{sWV}, 4')
            a(f's_cbranch_scc1 L_yp{tag}')
            a('s_setprio 1')
            a.label(f'L_yp{tag}')
    yprio('a')
    stamp()

    def inter(ms, vs, per=2):
        vs = list(vs)
        for m in ms:
            a(m)
            for _ in range(per):
                if vs: a(vs.pop(0))
        for v in vs: a(v)

    HB = kf(2, 0)
    def hand_loads():
        a(f'v_mbcnt_lo_u32_b32 {vr(KG)}, -1, 0')
        a(f'v_mbcnt_hi_u32_b32 {vr(KG)}, -1, {vr(KG)}')
        a(f'v_lshlrev_b32 {vr(KG)}, 4, {vr(KG)}')
        for n in range(8):
            a(f's_movk_i32 s{sT0}, {2048*n}')
            a(f'buffer_load_dwordx4 {vr(HB+8*n,4)}, {vr(KG)}, {sr(sW,4)}, s{sT0} offen sc0 sc1')
            a(f'buffer_load_dwordx4 {vr(HB+8*n+4,4)}, {vr(KG)}, {sr(sW,4)}, s{sT0} offen offset:1024 sc0 sc1')

    buf = [kf(0, n) for n in range(4)] + [QA + 4*n for n in range(4)]
    SLOTW = {0: [0, 1, 2, 3, 4], 1: [4, 5, 2, 3, 1]}
    def qk(tau, sl):
        Q = QA if tau == 0 else QB
        if sl == 'G':
            return [mfma(S+20, KG+4*ks, Q+4*ks, '0' if ks == 0 else S+20) for ks in range(4)]
        W = SLOTW[tau][sl]
        c0 = BLO if W == tau else BHI if W == tau + 4 else '0'
        return [mfma(S+4*sl, kf(W,ks), Q+4*ks, c0 if ks == 0 else S+4*sl) for ks in range(4)]
    def edge_test(tau, lab):
        a(f's_sub_u32 s{sT0}, s{sQB}, {48 - 16*tau}')
        a(f's_cmp_lt_u32 s{sT0}, 1968')
        a(f's_cbranch_scc1 {lab}')
    def edge_mask(tau, tr):
        a(f'v_mbcnt_lo_u32_b32 {vr(tr)}, -1, 0')
        a(f'v_mbcnt_hi_u32_b32 {vr(tr)}, -1, {vr(tr)}')
        a(f'v_lshrrev_b32 {vr(tr)}, 4, {vr(tr)}')
        a(f's_sub_u32 s{sT0}, s{sQB}, 34')
        a(f's_movk_i32 s{sT1}, 2046')
        a(f'v_lshl_add_u32 {vr(tr)}, {vr(tr)}, 2, s{sT0}')
        a(f'v_mov_b32 {vr(vM)}, 0x{NEG:08x}')
        a('s_nop 3')
        for sl in range(5):
            for r in range(4):
                a(f'v_add_u32 {vr(vT)}, {16*SLOTW[tau][sl]+r}, {vr(tr)}')
                a(f'v_cmp_gt_u32 vcc, s{sT1}, {vr(vT)}')
                a('s_nop 1')
                a(f'v_cndmask_b32 {vr(S+4*sl+r)}, {vr(vM)}, {vr(S+4*sl+r)}, vcc')
        for l in maxtree_l([S+x for x in range(22)], vM): a(l)
    def epi(t, tau=0):
        l = [f'v_mul_f32 {vr(O+4*t+e)}, {vr(O+4*t+e)}, {vr(vT0)}' for e in range(4)]
        l += [f'v_cvt_pk_bf16_f32 {vr(O+4*t)}, {vr(O+4*t)}, {vr(O+4*t+1)}',
              f'v_cvt_pk_bf16_f32 {vr(O+4*t+1)}, {vr(O+4*t+2)}, {vr(O+4*t+3)}',
              f'ds_write_b64 {vr(vSW)}, {vr(O+4*t,2)} offset:{32*t + 16*STGP*tau}']
        return l
    def stage_reads(tau=0, R=O):
        return [f'ds_read_b128 {vr(R+4*j,4)}, {vr(vSR)} offset:{4*STGP*j + 16*STGP*tau}' for j in range(4)]
    def stores(tau, R=O, extra=0):
        for j in range(4):
            a(f's_waitcnt lgkmcnt({3-j+extra})')
            if tau == 0 and j == 0: a(f's_mov_b64 exec, {sr(sEX,2)}')
            a(f'buffer_store_dwordx4 {vr(R+4*j,4)}, {vr(vOO)}, {sr(sO,4)}, s{sTOFF if tau else sZERO} offen offset:{1024*j} {stpol}')
            if tau == 0 and j == 0: a('s_mov_b64 exec, -1')
    RA = kf(1, 0)
    def late_a():
        for l in stage_reads(0, RA): a(l)
        stores(0, RA)
    def softmax_pv(tau):
        m = vM
        xred(m, vT)
        a(f'v_mul_f32 {vr(m)}, s{sCS}, {vr(m)}')
        set0 = [S+x for x in range(8)]; set1 = [S+8+x for x in range(8)]; set2 = [S+16+x for x in range(6)]
        for l in fma_l(set0, m): a(l)
        f2 = fma_l(set2, m); f1 = fma_l(set1, m)
        for l in exp_l(set0): a(l)
        a(f2[0])
        for l in cvt_l(S, S, 4): a(l)
        a(f2[1])
        a('s_waitcnt lgkmcnt(0)' if tau == 1 else 's_waitcnt lgkmcnt(8)')
        if tau == 1 and apos == 1: late_a()
        ONES, LACC = S+4, S+20
        v2 = f2[2:] + exp_l(set2) + [f'v_mov_b32 {vr(ONES+n)}, 0x3f803f80' for n in range(4)] + cvt_l(S+16, S+16, 3) \
             + [f'v_mov_b32 {vr(S+19)}, 0', f'v_cndmask_b32 {vr(S+18)}, 0, {vr(S+18)}, {sr(sKG0,2)}']
        inter([mfma(X[t], X[t+1], S, '0') for t in range(8)], v2 + f1[:2])
        v1 = f1[2:] + exp_l(set1) + [f'v_mov_b32 {vr(vT0)}, 0'] + cvt_l(S+8, S+8, 4)
        inter([mfma(O+4*t, VG+4*t, S+16, O+4*t) for t in range(8)], v1)
        a(mfma(LACC, ONES, S, '0'))
        a(mfma(LACC, ONES, S+16, LACC))
        a(mfma(LACC, ONES, S+8, LACC))
        if tau == 0:
            a('s_waitcnt lgkmcnt(0)')
        for t in range(8):
            a(mfma(O+4*t, buf[t], S+8, O+4*t))
            if tau == 0: a(vread(VG+4*t, t, 1))
        a(f'v_rcp_f32 {vr(vT0)}, {vr(LACC)}')

    late = []
    for t in range(8):
        late += [vread(buf[t], t, 2), vread(buf[t]+2, t, 3)]
    vgr = [vread(VG+4*t, t, 4) for t in range(8)]
    edge_test(0, 'L_fastA')
    for l in vgr: a(l)
    for sl in ('G', 0, 1, 2, 3, 4):
        for l in qk(0, sl): a(l)
    for l in late: a(l)
    edge_mask(0, vT0)
    a('s_branch L_joinA')
    a.label('L_fastA')
    m = vM
    inter(qk(0, 0) + qk(0, 'G'), vgr, per=1)
    inter(qk(0, 1) + qk(0, 2), late[:8], per=1)
    inter(qk(0, 3), maxtree_l([S+20, S+21, S+0], m) + maxtree_l([S+1, S+2, S+3, S+4, S+5, S+6], m, False), per=1)
    inter(qk(0, 4), maxtree_l([S+7, S+8, S+9, S+10], m, False), per=1)
    for l in late[8:11]: a(l)
    for l in maxtree_l([S+11, S+12], m, False): a(l)
    for l in late[11:13]: a(l)
    for l in maxtree_l([S+13, S+14, S+15], m, False): a(l)
    for l in late[13:]: a(l)
    for l in maxtree_l([S+16, S+17, S+18, S+19], m, False): a(l)
    a.label('L_joinA')
    yprio('s')
    stamp(fine)
    softmax_pv(0)
    stamp(fine)
    ep = []
    for t in range(8): ep += epi(t)
    if apos == 0: ep += stage_reads()
    xb = []
    for t in range(8): xb += [vread(X[t+1], t, 4), vread(X[t+1]+2, t, 5)]
    def qb_wait(n):
        a(f's_waitcnt vmcnt({n+2})')
        if opt.get('otouch'):
            a(f's_and_b32 s{sT0}, s{sWV}, 3')
            a(f's_cmp_eq_u32 s{sT0}, 3')
        else:
            a(f's_cmp_eq_u32 s{sWV}, {RW}')
        a('s_cbranch_scc1 L_qbw')
        a(f's_waitcnt vmcnt({n})')
        a.label('L_qbw')
    if merge == 'hyb':
        a('s_nop 0')
        for l in ep: a(l)
        qb_wait(0)
        stamp()
        spos = int(opt.get('spos', 0))
        edge_test(1, 'L_fastB')
        stores(0)
        for sl in ('G', 0, 1, 2, 3, 4):
            for l in qk(1, sl): a(l)
        for l in xb: a(l)
        edge_mask(1, vT0)
        a('s_branch L_joinB')
        a.label('L_fastB')
        if spos == 0:
            stores(0)
            inter(qk(1, 'G') + qk(1, 0) + qk(1, 1) + qk(1, 2), xb, per=1)
        elif spos == 1:
            for l in qk(1, 'G') + qk(1, 0): a(l)
            stores(0)
            inter(qk(1, 1) + qk(1, 2), xb, per=2)
        else:
            for l in qk(1, 'G') + qk(1, 0) + qk(1, 1) + qk(1, 2): a(l)
        inter(qk(1, 3), maxtree_l([S+20, S+21, S+0], m) + maxtree_l([S+1, S+2, S+3, S+4, S+5, S+6], m, False), per=1)
        inter(qk(1, 4), maxtree_l([S+7, S+8], m, False), per=1)
        a.nop(1)
        for l in maxtree_l([S+9, S+10, S+11, S+12], m, False): a(l)
        a.nop(1)
        for l in maxtree_l([S+13, S+14, S+15], m, False): a(l)
        if spos == 2:
            stores(0)
            for l in xb: a(l)
        else:
            a.nop(3)
        for l in maxtree_l([S+16, S+17, S+18, S+19], m, False): a(l)
    elif not merge:
        a('s_nop 0')
        for l in ep: a(l)
        stores(0)
        for l in xb: a(l)
        qb_wait(4)
        stamp()
        edge_test(1, 'L_fastB')
        for sl in ('G', 0, 1, 2, 3, 4):
            for l in qk(1, sl): a(l)
        edge_mask(1, vT0)
        a('s_branch L_joinB')
        a.label('L_fastB')
        for sl in ('G', 0, 1, 2):
            for l in qk(1, sl): a(l)
        inter(qk(1, 3), maxtree_l([S+20, S+21, S+0], m) + maxtree_l([S+1, S+2], m, False), per=1)
        inter(qk(1, 4), maxtree_l([S+3, S+4, S+5, S+6, S+7, S+8], m, False), per=1)
        a.nop(1)
        for l in maxtree_l([S+9, S+10, S+11, S+12], m, False): a(l)
        a.nop(1)
        for l in maxtree_l([S+13, S+14, S+15], m, False): a(l)
        a.nop(2)
        for l in maxtree_l([S+16, S+17, S+18, S+19], m, False): a(l)
    else:
        qb_wait(0)
        yprio('m')
        stamp()
        edge_test(1, 'L_fastB')
        for l in ep: a(l)
        if apos == 0: stores(0)
        for sl in (0, 1, 2, 3, 4, 'G'):
            for l in qk(1, sl): a(l)
        for l in xb: a(l)
        edge_mask(1, vT0)
        a('s_branch L_joinB')
        a.label('L_fastB')
        ms = []
        for sl in (0, 1, 2, 3, 4, 'G'): ms += qk(1, sl)
        inter(ms, ep, per=3)
        for l in maxtree_l([S+x for x in range(15)], vT0): a(l)
        if apos == 0: stores(0)
        for l in xb: a(l)
        a(f'v_max3_f32 {vr(vM)}, {vr(vT0)}, {vr(S+15)}, {vr(S+16)}')
        for l in maxtree_l([S+17, S+18, S+19, S+20, S+21], vM, False): a(l)
    a.label('L_joinB')
    yprio('b')
    stamp()
    a(f's_cmp_eq_u32 s{sCMB}, 0')
    a('s_cbranch_scc1 L_nohand')
    hand_loads()
    a.label('L_nohand')
    softmax_pv(1)
    stamp(fine)
    if apos == 2:
        late_a()
    a('s_nop 0')
    if apos == 3:
        for l in stage_reads(0, RA): a(l)
    for t in range(8):
        for l in epi(t, 1): a(l)
    for l in stage_reads(1): a(l)
    if apos == 3:
        stores(0, RA, extra=4+8) if False else None
        for j in range(4):
            if j == 0: a(f's_mov_b64 exec, {sr(sEX,2)}')
            if j == 0: a('s_waitcnt lgkmcnt(4)')
            a(f'buffer_store_dwordx4 {vr(RA+4*j,4)}, {vr(vOO)}, {sr(sO,4)}, s{sZERO} offen offset:{1024*j} {stpol}')
            if j == 0: a('s_mov_b64 exec, -1')
    stores(1)
    stamp()

    a(f's_cmp_eq_u32 s{sCMB}, 0')
    a('s_cbranch_scc1 L_fin')
    a(f's_waitcnt vmcnt({4 if apos == 0 else 8})')
    a(f's_mov_b32 s{sCNT}, 0')
    a(f's_mov_b32 s{sT2}, 0')
    a.label('L_chk')
    a(f's_mov_b32 s{sT3}, s{sT2}')
    for n in range(8):
        a(f'v_cmp_eq_u32 vcc, s{sN}, {vr(HB+8*n+3)}')
        a(f'v_cmp_eq_u32 s[60:61], s{sN}, {vr(HB+8*n+7)}')
        a('s_nop 0')
        a('s_and_b64 vcc, vcc, s[60:61]')
        a('s_cmp_eq_u64 vcc, exec')
        a(f's_cselect_b32 s{sT0}, {1 << n}, 0')
        a(f's_or_b32 s{sT3}, s{sT3}, s{sT0}')
    a(f's_add_u32 s{sCNT}, s{sCNT}, 1')
    a(f's_cmp_eq_u32 s{sT3}, 0xff')
    a('s_cbranch_scc1 L_ready')
    a(f's_cmp_ge_u32 s{sCNT}, 0x40000')
    a('s_cbranch_scc1 L_ready')
    a(f's_lshl_b32 s{sT0}, s{sH}, 3')
    a(f'v_mov_b32 {vr(KG+1)}, s{sT0}')
    a(f'global_load_dword {vr(KG+2)}, {vr(KG+1)}, s[16:17] offset:4 sc0 sc1')
    a('s_waitcnt vmcnt(0)')
    a(f'v_readfirstlane_b32 s{sT2}, {vr(KG+2)}')
    hand_loads()
    a('s_waitcnt vmcnt(0)')
    a('s_branch L_chk')
    a.label('L_ready')
    hog = [[HB+8*n, HB+8*n+1, HB+8*n+2, HB+8*n+4] for n in range(8)]
    hmg = [HB+8*n+5 for n in range(8)]
    combine(hog, hmg, X8)
    a(f'v_rcp_f32 {vr(X8)}, {vr(hmg[0]+1)}')
    a(f'v_lshrrev_b32 {vr(KG)}, 1, {vr(KG)}')
    for e in range(4):
        a(f'v_mul_f32 {vr(hog[0][e])}, {vr(hog[0][e])}, {vr(X8)}')
    a(f'v_cvt_pk_bf16_f32 {vr(X8+2)}, {vr(hog[0][0])}, {vr(hog[0][1])}')
    a(f'v_cvt_pk_bf16_f32 {vr(X8+3)}, {vr(hog[0][2])}, {vr(hog[0][3])}')
    a(f'buffer_store_dwordx2 {vr(X8+2,2)}, {vr(KG)}, {sr(sO,4)}, 0 offen {stpol}')
    a.label('L_fin')
    if stamps:
        stamp()
        a('s_waitcnt vmcnt(0)')
        stamp()
        if opt.get('clk'):
            a('s_memtime s[98:99]')
            a('s_waitcnt lgkmcnt(0)')
            a('s_sub_u32 s98, s98, s96')
            a(f's_add_u32 s{64+2*nst[0]}, s98, s64')
            nst[0] += 1
        a(f's_lshl_b32 s{sT0}, s2, 3')
        a(f's_add_u32 s{sT0}, s{sT0}, s{sWV}')
        a(f's_lshl_b32 s{sT0}, s{sT0}, 6')
        a(f's_add_u32 s{sT0}, s{sT0}, 0x100000')
        a(f's_add_u32 s{sW}, s18, s{sT0}')
        a(f's_addc_u32 s{sW+1}, s19, 0')
        a(f'v_mov_b32 v1, 0')
        a('s_mov_b64 exec, 1')
        for n in range(min(16, nst[0])):
            a(f'v_mov_b32 v2, s{64+2*n}')
            a(f'buffer_store_dword v2, v1, {sr(sW,4)}, 0 offen offset:{4*n}')
        if 'leak' in opt:
            k = int(opt['leak'])
            a(f's_sub_u32 s{sT0}, s{64+2*k}, s64')
            a(f's_lshl_b32 s{sT0}, s{sT0}, 2')
            if opt.get('leakskew'):
                a.label('L_pre')
                a('s_memrealtime s[100:101]')
                a('s_waitcnt lgkmcnt(0)')
                a(f's_sub_u32 s{sT1}, s100, s64')
                a(f's_cmp_lt_u32 s{sT1}, 3000')
                a('s_cbranch_scc1 L_pre')
                a('s_mov_b64 exec, -1')
                a('v_mbcnt_lo_u32_b32 v3, -1, 0')
                a('v_and_b32 v3, 31, v3')
                a('v_lshlrev_b32 v3, 3, v3')
                a('global_load_dword v4, v3, s[16:17] sc0 sc1')
                a('s_waitcnt vmcnt(0)')
                a('v_readlane_b32 s20, v4, 0')
                a('s_mov_b32 s21, 0'); a('s_mov_b32 s22, 0')
                for n in range(1, 32):
                    a(f'v_readlane_b32 s23, v4, {n}')
                    a('s_nop 0')
                    a('s_sub_i32 s23, s23, s20')
                    a('s_min_i32 s21, s21, s23')
                    a('s_max_i32 s22, s22, s23')
                a(f's_sub_u32 s{sT0}, s22, s21')
                a(f's_min_u32 s{sT0}, s{sT0}, 2000')
                a(f's_lshl_b32 s{sT0}, s{sT0}, 2')
            if opt.get('leakxcc'):
                a('s_getreg_b32 s61, hwreg(HW_REG_XCC_ID, 0, 4)')
                a(f's_bfe_u32 s60, s{sN}, 0x40001')
                a('s_cmp_lg_u32 s60, s61')
                a(f's_cselect_b32 s{sT0}, 2000, 0')
            if opt.get('leakcnt'):
                a(f's_mul_i32 s{sT0}, s{sCNT}, 500')
                a(f's_mul_i32 s{sT0}, s{sT0}, s{sCMB}')
            if 'leakh' in opt:
                lo, hi = opt['leakh'].split(',')
                a(f's_sub_u32 s{sT1}, s{sH}, {lo}')
                a(f's_cmp_lt_u32 s{sT1}, {int(hi)-int(lo)}')
                a(f's_cselect_b32 s{sT0}, s{sT0}, 0')
            if 'leakwg' in opt:
                a(f's_cmp_eq_u32 s2, {opt["leakwg"]}')
                a(f's_cselect_b32 s{sT0}, s{sT0}, 0')
            if 'leakx' in opt:
                a(f's_getreg_b32 s{sT1}, hwreg(HW_REG_XCC_ID, 0, 4)')
                a(f's_lshr_b32 s{sT1}, {opt["leakx"]}, s{sT1}')
                a(f's_bitcmp1_b32 s{sT1}, 0')
                a(f's_cselect_b32 s{sT0}, s{sT0}, 0')
            if 'leakw' in opt:
                a(f's_lshr_b32 s{sT1}, {opt["leakw"]}, s{sWV}')
                a(f's_bitcmp1_b32 s{sT1}, 0')
                a(f's_cselect_b32 s{sT0}, s{sT0}, 0')
            a(f"s_add_u32 s{sT0}, s{sT0}, {opt.get('spin', 5000)}")
            a.label('L_spin')
            a('s_memrealtime s[100:101]')
            a('s_waitcnt lgkmcnt(0)')
            a(f's_sub_u32 s{sT1}, s100, s64')
            a(f's_cmp_lt_u32 s{sT1}, s{sT0}')
            a('s_cbranch_scc1 L_spin')
    a.label('L_end')
    a('s_endpgm')
    if cpf:
        a('.fill 4096, 4, 0xbf800000')

    check(a.lines)
    if stamps: print('stamps', nst[0])
    head = f'''; windowed + global-token attention, B=1 H=32 S=2048 D=128 bf16 (window 32, 2 global tokens)
; @launch grid=(256,1,1) block=(512,1,1) lds=163840
.amdgcn_target "amdgcn-amd-amdhsa--gfx950"
.text
.globl {NAME}
.p2align 8
.type {NAME},@function
{NAME}:
'''
    tail = f'''.section .rodata,"a"
.p2align 6
.amdhsa_kernel {NAME}
  .amdhsa_next_free_vgpr 256
  .amdhsa_next_free_sgpr {102 if stamps else 64}
  .amdhsa_accum_offset 256
  .amdhsa_group_segment_fixed_size 0
  .amdhsa_kernarg_size 64
  .amdhsa_user_sgpr_count 2
  .amdhsa_user_sgpr_kernarg_segment_ptr 1
  .amdhsa_system_sgpr_workgroup_id_x 1
.end_amdhsa_kernel
'''
    return head + a.text() + tail

if __name__ == '__main__':
    out = sys.argv[1]
    opt = {}
    for kv in sys.argv[2:]:
        k, v = kv.split('=', 1)
        opt[k] = {'True': True, 'False': False}.get(v, v.replace('+', ' '))
    open(out, 'w').write(gen(opt))
```

```python
import sys, math, struct
from asmlib import *

NAME = 'standalone__global_local_windowed_global_tokens__prompt_kernel'
def f2u(x): return struct.unpack('<I', struct.pack('<f', x))[0]

def gen(opt):
    a = Asm()
    NEG = 0xFF000000
    CSC = f2u(128 ** -0.5 * math.log2(math.e))
    KOFF, VOFF, SOFF = 0, 73728, 155648
    apos = int(opt.get('apos', 0))
    PART, STG = 0, 4096
    PARTML, LCNT, LNON = SOFF + 3072, SOFF + 3072 + 128, SOFF + 3072 + 132
    STGP = 272
    ldpol = opt.get('ldpol', '')
    qpol = opt.get('qpol', '')
    stpol = opt.get('stpol', 'sc0 sc1 nt')
    pk = opt.get('pk', True)
    N1 = int(opt.get('n1', 10))
    yp = opt.get('yp', '')
    RW = int(opt.get('rw', 3))
    FW = 7
    SW = 5 if not opt.get('sld') else 99
    CW, CC = int(opt.get('cw', 1)), 3
    merge = opt.get('merge', True)
    sQ, sK, sV, sO, sW = 20, 24, 28, 32, 36
    sWV, sH, sC, sHO, sQ0B = 40, 43, 44, 45, 46
    sT0, sT1, sT2, sT3 = 47, 48, 49, 50
    sBK = 62
    HW = 4
    sCS = 52; sKG0 = 54; sQB = 51; sEX = 56; sCMB = 58; sCNT = 59; sN = 63; sTOFF = 41; sZERO = 3
    VA = 0
    vSW, vSR, vOO, vT0 = 8, 9, 10, 11
    X8 = 12
    KF = 16; KG = 112; QA, QB = 128, 144; VG = 160; O = 192; S = 224
    BLO, BHI = 248, 252
    kf = lambda W, ks: KF + 16 * W + 4 * ks
    X = [O + 4 * n for n in range(8)] + [X8]
    vLANE, vI, vKGp, vDK, vDV, vDQ, vAG, vNEG, vAK = O+16, O+17, O+18, O+19, O+20, O+21, O+22, O+23, O+24
    vAVG, t1, t2, t3 = O+28, O+29, O+30, O+31
    vDQk = VG + 7
    vFLAG = VG + 3
    vM, vT = S + 22, S + 23

    stamps = opt.get('stamps', False)
    fine = opt.get('fine', False)
    nst = [0]
    def stamp(on=True):
        if stamps and on:
            a(f's_memrealtime s[{64+2*nst[0]}:{65+2*nst[0]}]')
            if nst[0]: a('s_waitcnt lgkmcnt(0)')
            nst[0] += 1
    M16 = 'v_mfma_f32_16x16x32_bf16'
    def mfma(d, x, y, c):
        return f'{M16} {vr(d,4)}, {vr(x,4)}, {vr(y,4)}, {c if isinstance(c,str) else vr(c,4)}'
    def only(w, lab):
        a(f's_cmp_lg_u32 s{sWV}, {w}')
        a(f's_cbranch_scc1 {lab}')

    stamp()
    if opt.get('clk'): a('s_memtime s[96:97]')
    a('s_load_dwordx16 s[4:19], s[0:1], 0')
    a(f'v_readfirstlane_b32 s{sWV}, v0')
    a('s_cmp_ge_u32 s2, 256')
    a('s_cbranch_scc1 L_end')
    a(f'v_lshrrev_b32 {vr(t1)}, 4, v0')
    a(f'v_xor_b32 {vr(vDK)}, {vr(t1)}, v0')
    a(f'v_and_b32 {vr(vDK)}, 15, {vr(vDK)}')
    a(f'v_lshl_add_u32 {vr(vDK)}, {vr(t1)}, 4, {vr(vDK)}')
    a(f's_bfe_u32 s{sC}, s2, 0x30003')
    a(f's_lshl_b32 s{sQ0B}, s{sC}, 16')
    a(f'v_lshl_add_u32 {vr(vDK)}, {vr(vDK)}, 4, s{sQ0B}')
    a('s_and_b32 s41, s2, 7')
    a(f's_lshr_b32 s{sH}, s2, 6')
    a(f's_lshl2_add_u32 s{sH}, s41, s{sH}')
    a(f's_lshl_b32 s{sHO}, s{sH}, 19')
    a(f's_lshl_b32 m0, s{sWV}, 4')
    a(f's_mov_b32 s{sK+2}, 0x80000')
    a(f's_mov_b32 s{sK+3}, 0x20000')
    a(f's_movk_i32 s{sCNT}, 17')
    cpf = opt.get('cpf', True)
    a.label('L_base')
    if cpf is True:
        a(f's_getpc_b64 s[{sEX}:{sEX+1}]')
        a(f'v_lshlrev_b32 v1, 5, v0')
        a(f'global_load_dword {vr(X8)}, v1, s[{sEX}:{sEX+1}]')
    if opt.get('katch'):
        a(f'v_mov_b32 v2, 0')
        a(f'global_load_dword {vr(X8+1)}, v2, s[0:1]')
    a(f's_cmp_ge_u32 s{sWV}, 256')
    a('s_cbranch_scc1 L_helper')
    a('s_waitcnt lgkmcnt(0)')
    stamp()
    a(f's_add_u32 s{sK}, s6, s{sHO}')
    a(f's_addc_u32 s{sK+1}, s7, 0')
    thr = int(opt.get('thr', 0)); tl = [0]
    if thr: a('s_getreg_b32 s1, hwreg(HW_REG_XCC_ID, 0, 4)')
    def throttle():
        if thr:
            a('s_bitcmp1_b32 s1, 0')
            a(f's_cbranch_scc{opt.get("thpar", 1)} L_th{tl[0]}')
            a(f's_waitcnt vmcnt({thr-1})')
            a.label(f'L_th{tl[0]}')
            tl[0] += 1
    snt = opt.get('snt', '')
    if 'k' in snt:
        for i in range(18):
            a(f'buffer_load_dwordx4 {vr(vDK)}, {sr(sK,4)}, 0 offen {"nt" if 2 <= i < 14 else ""} lds')
            a('s_add_u32 m0, m0, 0x1000')
            a(f'v_add_u32 {vr(vDK)}, 0x1000, {vr(vDK)}')
    else:
        a.label('L_kloop')
        throttle()
        a(f'buffer_load_dwordx4 {vr(vDK)}, {sr(sK,4)}, 0 offen {opt.get("kpol", ldpol)} lds')
        a('s_add_u32 m0, m0, 0x1000')
        a(f'v_add_u32 {vr(vDK)}, 0x1000, {vr(vDK)}')
        a(f's_sub_u32 s{sCNT}, s{sCNT}, 1')
        a('s_cbranch_scc0 L_kloop')
    if 'dup' in opt:
        nd = int(opt['dup'])
        a(f's_sub_u32 m0, m0, {0x1000*18}')
        a(f'v_subrev_u32 {vr(vDK)}, {0x1000*18}, {vr(vDK)}')
        for i in range(nd):
            a(f'buffer_load_dwordx4 {vr(vDK)}, {sr(sK,4)}, 0 offen lds')
            a('s_add_u32 m0, m0, 0x1000')
            a(f'v_add_u32 {vr(vDK)}, 0x1000, {vr(vDK)}')
    stamp(opt.get('postk', False))
    def common():
        a(f's_lshr_b32 s{sWV}, s{sWV}, 6')
        a(f'v_and_b32 {vr(vLANE)}, 63, v0')
        a(f'v_and_b32 {vr(vI)}, 15, v0')
        a(f'v_bfe_u32 {vr(vKGp)}, v0, 4, 2')
        a(f's_lshl_b32 s{sT1}, s{sWV}, 10')
        a(f's_add_u32 s{sT2}, s{sT1}, s{sQ0B}')
        for s_ in (sV, sQ):
            a(f's_mov_b32 s{s_+2}, 0x80000')
            a(f's_mov_b32 s{s_+3}, 0x20000')
        a(f's_mov_b32 s{sW+2}, 0x4000')
        a(f's_mov_b32 s{sW+3}, 0x20000')
        a(f's_and_b32 s{sBK}, s{sWV}, 3')
        a(f's_lshl_b32 s{sBK}, s{sBK}, 1')
        a(f's_cmp_lt_u32 s{sWV}, 4')
        a(f's_addc_u32 s{sBK}, s{sBK}, 0')
        a(f's_cmp_eq_u32 s{sC}, 0')
        a(f's_cselect_b32 s{sT3}, 0x40000000, 0')
        a(f's_lshl_b32 s{sT0}, s{sBK}, 13')
        a(f's_add_u32 s{sT0}, s{sT0}, s{sQ0B}')
        a(f'v_lshlrev_b32 {vr(vDQ)}, 4, {vr(vKGp)}')
        a(f'v_lshl_add_u32 {vr(vDQ)}, {vr(vI)}, 8, {vr(vDQ)}')
        a(f'v_add_u32 {vr(vDQ)}, s{sT0}, {vr(vDQ)}')
        a(f'v_lshlrev_b32 {vr(t3)}, 4, {vr(vLANE)}')
        a(f's_lshl_b32 s41, s{sH}, 14')
        a(f's_lshl_b32 s42, s{sC}, 11')
    common()
    a(f's_mov_b32 s{sN}, 0')
    def srds():
        a(f's_add_u32 s{sV}, s8, s{sHO}')
        a(f's_addc_u32 s{sV+1}, s9, 0')
        a(f's_add_u32 s{sQ}, s4, s{sHO}')
        a(f's_addc_u32 s{sQ+1}, s5, 0')
        a(f's_add_u32 s{sW}, s18, s41')
        a(f's_addc_u32 s{sW+1}, s19, 0')
    srds()
    if opt.get('sld'):
        only(1, 'L_nosmall1')
        for n, srd in enumerate((sK, sQ, sV)):
            a(f's_mov_b32 m0, {SOFF + 1024*n}')
            a('s_nop 0')
            a(f'buffer_load_dwordx4 {vr(t3)}, {sr(srd,4)}, 0 offen lds')
        a.label('L_nosmall1')
    a('s_branch L_v1')
    a.label('L_helper')
    a('s_setprio 3')
    a('s_memrealtime s[60:61]')
    if cpf == 'one':
        a(f's_cmp_lg_u32 s{sWV}, {64*6}')
        a('s_cbranch_scc1 L_nocpf')
        a(f's_getpc_b64 s[{sEX}:{sEX+1}]')
        a(f's_lshl_b32 s{sT0}, s{sC}, 11')
        a(f'v_and_b32 v1, 15, v0')
        a(f'v_lshl_add_u32 v1, v1, 7, s{sT0}')
        a('s_mov_b64 exec, 0xffff')
        a(f'global_load_dword {vr(X8)}, v1, s[{sEX}:{sEX+1}]')
        a('s_mov_b64 exec, -1')
        a.label('L_nocpf')
    common()
    a(f's_sub_u32 s{sT0}, s{sT3}, 0x2000')
    a(f'v_add_u32 {vr(t1)}, s{sT0}, {vr(vDQ)}')
    a(f'v_add_u32 {vr(t2)}, 0x1000, {vr(t1)}')
    a(f's_mov_b32 m0, {SOFF}')
    a('s_waitcnt lgkmcnt(0)')
    if stamps:
        nst[0] -= 1
        stamp()
    a(f's_add_u32 s{sK}, s6, s{sHO}')
    a(f's_addc_u32 s{sK+1}, s7, 0')
    srds()
    if stamps and opt.get('postk'):
        nst[0] -= 1
        stamp()
    a(f's_or_b32 s{sN}, s60, 1')
    if opt.get('leakxcc'):
        a('s_getreg_b32 s61, hwreg(HW_REG_XCC_ID, 0, 4)')
        a(f's_and_b32 s{sN}, s60, 0xffffffe0')
        a(f's_lshl1_add_u32 s{sN}, s61, s{sN}')
        a(f's_or_b32 s{sN}, s{sN}, 1')
    stch = opt.get('stch', '')
    if stch:
        only(6, 'L_nostch')
        if 'v' in stch: a(f's_load_dword s12, s[{sV}:{sV+1}], s{sQ0B}')
        if 'q' in stch: a(f's_load_dword s12, s[{sQ}:{sQ+1}], s{sQ0B}')
        if 'o' in stch:
            a(f's_add_u32 s{sT0}, s{sHO}, s{sQ0B}')
            a(f's_load_dword s13, s[14:15], s{sT0}')
        if 'w' in stch: a(f's_load_dword s13, s[{sW}:{sW+1}], s42')
        if 'd' in stch: a(f's_load_dword s13, s[16:17], 0x80')
        a.label('L_nostch')
    slate = opt.get('slate', False)
    def specials():
        a(f's_mov_b32 m0, {SOFF}')
        only(FW, 'L_noclear')
        a(f's_lshl_b32 s{sT0}, s{sH}, 3')
        a(f'v_mov_b32 {vr(S+4)}, s{sT0}')
        a(f'v_mov_b32 {vr(S+5)}, s{sN}')
        a(f'v_mov_b32 {vr(S+6)}, {LCNT}')
        a(f'v_mov_b32 {vr(S+7)}, 0')
        a('s_mov_b64 exec, 1')
        a(f's_cmp_lg_u32 s{sC}, {CC}')
        a('s_cbranch_scc1 L_nopub')
        a(f'global_store_dword {vr(S+4)}, {vr(S+5)}, s[16:17] sc0 sc1')
        a.label('L_nopub')
        a(f'ds_write_b32 {vr(S+6)}, {vr(S+7)}')
        a('s_mov_b64 exec, -1')
        if opt.get('wstouch'):
            pol = {'ld': '', 'ldsc': 'sc0 sc1'}.get(opt['wstouch'])
            if pol is not None:
                a(f'buffer_load_dwordx4 {vr(S+8,4)}, {vr(t3)}, {sr(sW,4)}, s42 offen {pol}')
                a(f'buffer_load_dwordx4 {vr(S+12,4)}, {vr(t3)}, {sr(sW,4)}, s42 offen offset:1024 {pol}')
            else:
                for n in range(4): a(f'v_mov_b32 {vr(S+8+n)}, 0')
                a(f'buffer_store_dwordx4 {vr(S+8,4)}, {vr(t3)}, {sr(sW,4)}, s42 offen sc0 sc1')
                a(f'buffer_store_dwordx4 {vr(S+8,4)}, {vr(t3)}, {sr(sW,4)}, s42 offen offset:1024 sc0 sc1')
        a.label('L_noclear')
        only(SW, 'L_nosmall')
        for n, srd in enumerate((sK, sQ, sV)):
            if n:
                a(f's_mov_b32 m0, {SOFF + 1024*n}')
                a('s_nop 0')
            a(f'buffer_load_dwordx4 {vr(t3)}, {sr(srd,4)}, 0 offen lds')
        a.label('L_nosmall')
    if not slate: specials()
    if opt.get('tch'):
        only(6, 'L_notch')
        a(f'v_and_b32 {vr(S+8)}, 1, {vr(vLANE)}')
        a(f'v_mul_u32_u24 {vr(S+8)}, 0xff00, {vr(S+8)}')
        a(f'v_add_u32 {vr(S+8)}, s{sQ0B}, {vr(S+8)}')
        a('s_mov_b64 exec, 3')
        a(f'buffer_load_dword {vr(S+9)}, {vr(S+8)}, {sr(sV,4)}, 0 offen')
        a(f'buffer_load_dword {vr(S+10)}, {vr(S+8)}, {sr(sQ,4)}, 0 offen')
        if opt['tch'] == 'o':
            a(f'v_add_u32 {vr(S+8)}, s{sHO}, {vr(S+8)}')
            a(f'global_load_dword {vr(S+11)}, {vr(S+8)}, s[14:15]')
        a('s_mov_b64 exec, -1')
        a.label('L_notch')
    hlate = opt.get('hlate', '')
    def halo_k():
        only(HW, 'L_nohalo')
        if hlate:
            a(f's_sub_u32 s{sT0}, s{sT3}, 0x2000')
            a(f'v_add_u32 {vr(t1)}, s{sT0}, {vr(vDQ)}')
            a(f'v_add_u32 {vr(t2)}, 0x1000, {vr(t1)}')
        for T in range(2):
            for ks in range(4):
                a(f'buffer_load_dwordx4 {vr(kf(T,ks),4)}, {vr(t1+T)}, {sr(sK,4)}, 0 offen offset:{64*ks}')
        a.label('L_nohalo')
    if not hlate: halo_k()
    a('s_setprio 0')
    v2h = int(opt.get('v2h', 0))
    def vaddr(i0):
        a(f's_and_b32 s{sT0}, s{sWV}, 1')
        a(f's_lshl_b32 s{sT0}, s{sT0}, 2')
        a(f'v_add_lshl_u32 {vr(vDV)}, s{sT0}, {vr(vKGp)}, 1')
        a(f'v_xor_b32 {vr(vDV)}, {vr(vDV)}, {vr(vI)}')
        a(f'v_lshlrev_b32 {vr(vDV)}, 4, {vr(vDV)}')
        a(f'v_lshl_add_u32 {vr(vDV)}, {vr(vKGp)}, 8, {vr(vDV)}')
        a(f's_add_u32 s{sT2}, s{sT2}, {(0x1000*i0 - 0x2000) & 0xffffffff}')
        a(f'v_add_u32 {vr(vDV)}, s{sT2}, {vr(vDV)}')
        a(f's_add_u32 m0, s{sT1}, {VOFF + 0x1000*i0}')
    if v2h:
        vaddr(20 - v2h - 1 - 1)
    a('s_branch L_nov1')
    a.label('L_v1')
    def vpiece(i):
        throttle()
        if i:
            a('s_add_u32 m0, m0, 0x1000')
            a(f'v_add_u32 {vr(vDV)}, 0x1000, {vr(vDV)}')
        if i < 2:
            a(f'v_add_u32 {vr(t1)}, s{sT3}, {vr(vDV)}')
            a(f'buffer_load_dwordx4 {vr(t1)}, {sr(sV,4)}, 0 offen {ldpol} lds')
        else:
            a(f'buffer_load_dwordx4 {vr(vDV)}, {sr(sV,4)}, 0 offen {"nt" if "v" in snt and 4 <= i < 16 else ldpol} lds')
    vaddr(0)
    for i in range(N1): vpiece(i)
    a.label('L_nov1')
    stamp()
    if hlate == 'low': halo_k()

    a(f's_add_u32 s{sO}, s14, s{sHO}')
    a(f's_addc_u32 s{sO+1}, s15, 0')
    a(f's_mov_b32 s{sO+2}, 0x80000')
    a(f's_mov_b32 s{sO+3}, 0x20000')
    a(f's_movk_i32 s{sTOFF}, 0x1000')
    a(f's_mov_b32 s{sZERO}, 0')
    a(f's_mov_b32 s{sCS}, 0x{CSC:08x}')
    a(f's_mov_b32 s{sCS+1}, 0x{CSC:08x}')
    a(f'v_mov_b32 {vr(vNEG)}, 0x{NEG:08x}')
    a(f'v_lshlrev_b32 {vr(t2)}, 2, {vr(vKGp)}')
    a(f'v_cmp_eq_u32 {sr(sKG0,2)}, 0, {vr(vKGp)}')
    for r in range(4):
        a(f'v_add_u32 {vr(t1)}, {r}, {vr(t2)}')
        a(f'v_cmp_ge_u32 vcc, {vr(t1)}, {vr(vI)}')
        a(f'v_cmp_le_u32 s[60:61], {vr(t1)}, {vr(vI)}')
        a('s_nop 0')
        a(f'v_cndmask_b32 {vr(BLO+r)}, {vr(vNEG)}, 0, vcc')
        a(f'v_cndmask_b32 {vr(BHI+r)}, {vr(vNEG)}, 0, s[60:61]')
    a(f's_lshl_b32 s{sT0}, s{sBK}, 13')
    a(f'v_xor_b32 {vr(t1)}, {vr(vKGp)}, {vr(vI)}')
    a(f'v_lshlrev_b32 {vr(t1)}, 4, {vr(t1)}')
    a(f'v_lshl_add_u32 {vr(t1)}, {vr(vI)}, 8, {vr(t1)}')
    a(f'v_add_u32 {vr(vAK)}, s{sT0}, {vr(t1)}')
    for ks in range(1, 4):
        a(f'v_xor_b32 {vr(vAK+ks)}, {64*ks}, {vr(vAK)}')
    a(f'v_and_b32 {vr(t1)}, 1, {vr(vI)}')
    a(f'v_lshlrev_b32 {vr(vNEG)}, 3, {vr(t1)}')
    a(f'v_lshlrev_b32 {vr(t1)}, 8, {vr(t1)}')
    a(f'v_lshl_add_u32 {vr(t1)}, {vr(vKGp)}, 4, {vr(t1)}')
    a(f'v_add_u32 {vr(vAG)}, {SOFF}, {vr(t1)}')
    a(f'v_bfe_u32 {vr(t1)}, {vr(vLANE)}, 2, 2')
    a(f'v_and_b32 {vr(t2)}, 3, {vr(vLANE)}')
    a(f'v_lshlrev_b32 {vr(t2)}, 3, {vr(t2)}')
    a(f'v_lshl_add_u32 {vr(t1)}, {vr(t1)}, 8, {vr(t2)}')
    a(f'v_add_u32 {vr(vAVG)}, {SOFF+2048}, {vr(t1)}')
    a(f'v_lshrrev_b32 {vr(t1)}, 2, {vr(vLANE)}')
    a(f'v_and_b32 {vr(vT0)}, 7, {vr(t1)}')
    a(f'v_lshl_add_u32 {vr(t2)}, {vr(vT0)}, 5, {vr(t2)}')
    a(f'v_lshl_add_u32 {vr(t2)}, {vr(t1)}, 8, {vr(t2)}')
    a(f's_add_u32 s{sT1}, s{sT0}, {VOFF}')
    a(f'v_add_u32 {vr(VA)}, s{sT1}, {vr(t2)}')
    for t in range(1, 8):
        a(f'v_xor_b32 {vr(VA+t)}, {32*t}, {vr(VA)}')
    a(f's_mul_i32 s{sT1}, s{sWV}, {32*STGP}')
    a(f's_add_u32 s{sT1}, s{sT1}, {STG}')
    a(f'v_mul_u32_u24 {vr(t1)}, {STGP}, {vr(vI)}')
    a(f'v_lshl_add_u32 {vr(t1)}, {vr(vKGp)}, 3, {vr(t1)}')
    a(f'v_add_u32 {vr(vSW)}, s{sT1}, {vr(t1)}')
    a(f'v_mul_u32_u24 {vr(t1)}, {STGP}, {vr(vKGp)}')
    a(f'v_lshl_add_u32 {vr(t1)}, {vr(vI)}, 4, {vr(t1)}')
    a(f'v_add_u32 {vr(vSR)}, s{sT1}, {vr(t1)}')
    a(f's_add_u32 s{sT0}, s{sT0}, s{sQ0B}')
    a(f'v_add_u32 {vr(vOO)}, s{sT0}, {vr(t3)}')
    a(f's_lshr_b32 s{sQB}, s{sT0}, 8')
    a(f's_cmp_eq_u32 s{sQB}, 0')
    a(f's_cselect_b32 s{sEX}, 0, -1')
    a(f's_mov_b32 s{sEX+1}, -1')
    a(f's_cmp_eq_u32 s{sQB}, {256*CC+32*(2*CW+1)}')
    a(f's_cselect_b32 s{sCMB}, 1, 0')
    a(f's_lshl_b32 s{sT0}, s{sWV}, 4')
    a(f's_add_u32 s{sT0}, s{sT0}, {PARTML}')
    a(f'v_add_u32 {vr(vNEG)}, s{sT0}, {vr(vNEG)}')

    spf = [int(x) for x in opt.get('spf', '0,0').split(',')]
    spstep = int(opt.get('spstep', 128)); sptile = opt.get('sptile', 'B')
    def sp_offsets():
        o = []
        for half in ([1, 0] if sptile == 'B' else [0, 1]):
            for blk in (1, 0):
                o += [8192*blk + 4096*half + x for x in range(0, 4096, spstep)]
        return o
    spo = sp_offsets()
    def sprefetch(n):
        for _ in range(n):
            if spo: a(f's_load_dword s61, s[10:11], {spo.pop(0)}')
    if sum(spf):
        a(f's_cmp_lt_u32 s{sWV}, 4')
        a('s_cbranch_scc1 L_nosp')
        a(f's_lshl_b32 s{sT0}, s{sBK}, 13')
        a(f's_add_u32 s{sT0}, s{sT0}, s{sQ0B}')
        a(f's_add_u32 s10, s{sQ}, s{sT0}')
        a(f's_addc_u32 s11, s{sQ+1}, 0')
        sprefetch(spf[0])
        a.label('L_nosp')
    if slate:
        a(f's_cmp_lt_u32 s{sWV}, 4')
        a('s_cbranch_scc1 L_nospec')
        for _ in range(int(opt.get('sdelay', 0))): pass
        a('s_setprio 3')
        specials()
        a('s_setprio 0')
        a.label('L_nospec')
    a(f's_waitcnt vmcnt({N1}) lgkmcnt(0)')
    a(f's_cmp_lt_u32 s{sWV}, 4')
    a('s_cbranch_scc1 L_kw')
    a(f's_cmp_eq_u32 s{sWV}, {FW}')
    a('s_cbranch_scc1 L_kw')
    a('s_waitcnt vmcnt(0)')
    a.label('L_kw')
    stamp(opt.get('prek', False))
    a('s_barrier')
    stamp()
    a(f's_cmp_ge_u32 s{sWV}, 4')
    a('s_cbranch_scc1 L_nov2')
    for i in range(N1, 20 - v2h): vpiece(i)
    if v2h:
        a('s_branch L_nov2b')
    a.label('L_nov2')
    if v2h:
        a(f's_setprio {opt.get("v2p", 3)}')
        for i in range(20 - v2h, 20): vpiece(i)
        a('s_setprio 0')
        a.label('L_nov2b')
    stamp(fine)
    QG = O
    for W in (2, 3, 4, 5):
        for ks in range(4):
            a(f'ds_read_b128 {vr(kf(W,ks),4)}, {vr(vAK+ks)} offset:{4096*(W-2)}')
    for ks in range(4):
        a(f'ds_read_b128 {vr(KG+4*ks,4)}, {vr(vAG)} offset:{64*ks}')
    for t in range(8):
        a(f'ds_read_b64_tr_b16 {vr(VG+4*t+2,2)}, {vr(vAVG)} offset:{32*t}')
    a(f's_cmp_eq_u32 s{sWV}, {HW}')
    a('s_cbranch_scc1 L_k01done')
    for ks in range(4):
        a(f'v_subrev_u32 {vr(vAK+ks)}, 0x2000, {vr(vAK+ks)}')
    for W in (0, 1):
        for ks in range(4):
            a(f'ds_read_b128 {vr(kf(W,ks),4)}, {vr(vAK+ks)} offset:{4096*W}')
    a.label('L_k01done')
    def issue_qa():
        if opt.get('qprio'): a('s_setprio 3')
        for ks in range(4):
            a(f'buffer_load_dwordx4 {vr(QA+4*ks,4)}, {vr(vDQ)}, {sr(sQ,4)}, 0 offen offset:{64*ks} {qpol}')
        if opt.get('qprio'): a('s_setprio 0')

    def xred(m, t, op='v_max_f32'):
        a(f'v_mov_b32 {vr(t)}, {vr(m)}')
        a.nop(2)
        a(f'v_permlane16_swap_b32 {vr(m)}, {vr(t)}')
        a(f'{op} {vr(m)}, {vr(m)}, {vr(t)}')
        a(f'v_mov_b32 {vr(t)}, {vr(m)}')
        a.nop(2)
        a(f'v_permlane32_swap_b32 {vr(m)}, {vr(t)}')
        a(f'{op} {vr(m)}, {vr(m)}, {vr(t)}')
    def maxtree_l(vals, m, first=True):
        out = []; rest = list(vals)
        if first:
            out.append(f'v_max3_f32 {vr(m)}, {vr(rest[0])}, {vr(rest[1])}, {vr(rest[2])}'); rest = rest[3:]
        while len(rest) >= 2:
            out.append(f'v_max3_f32 {vr(m)}, {vr(m)}, {vr(rest[0])}, {vr(rest[1])}'); rest = rest[2:]
        if rest:
            out.append(f'v_max_f32 {vr(m)}, {vr(m)}, {vr(rest[0])}')
        return out
    def fma_l(vals, mc):
        if pk:
            return [f'v_pk_fma_f32 {vr(vals[n],2)}, {vr(vals[n],2)}, {sr(sCS,2)}, {vr(mc,2)} op_sel_hi:[1,1,0] neg_lo:[0,0,1] neg_hi:[0,0,1]' for n in range(0, len(vals), 2)]
        return [f'v_fma_f32 {vr(v)}, {vr(v)}, s{sCS}, -{vr(mc)}' for v in vals]
    exp_l = lambda vals: [f'v_exp_f32 {vr(v)}, {vr(v)}' for v in vals]
    cvt_l = lambda dst, src, n: [f'v_cvt_pk_bf16_f32 {vr(dst+k)}, {vr(src+2*k)}, {vr(src+2*k+1)}' for k in range(n)]

    def vread(dst, t, W):
        return f'ds_read_b64_tr_b16 {vr(dst,2)}, {vr(VA+t)} offset:{4096*W}'
    a(f's_cmp_lt_u32 s{sWV}, 4')
    a('s_cbranch_scc1 L_gk')
    sprefetch(spf[1])
    only(FW, 'L_notag')
    a('s_setprio 3')
    a(f's_lshl_b32 s{sT0}, s{sH}, 3')
    a(f'v_mov_b32 {vr(S+4)}, s{sT0}')
    a(f'v_mov_b32 {vr(S+5)}, s{sN}')
    a(f'v_mov_b32 {vr(S+6)}, {LCNT}')
    a(f'global_load_dword {vr(S+7)}, {vr(S+4)}, s[16:17]')
    a('s_setprio 0')
    issue_qa()
    a('s_waitcnt vmcnt(4)')
    if opt.get('forcefb'): a(f'v_mov_b32 {vr(S+7)}, 0')
    a(f's_cmp_eq_u32 s{sC}, {CC}')
    a('s_cselect_b64 vcc, -1, 0')
    a(f'v_cndmask_b32 {vr(S+7)}, {vr(S+7)}, {vr(S+5)}, vcc')
    a('s_mov_b64 exec, 1')
    a(f'ds_write_b32 {vr(S+6)}, {vr(S+7)} offset:4')
    a('s_mov_b64 exec, -1')
    a('s_branch L_tagdone')
    a.label('L_notag')
    if hlate == 'pre': halo_k()
    issue_qa()
    if hlate == 'post': halo_k()
    if v2h: a('s_waitcnt vmcnt(4)')
    a.label('L_tagdone')
    a('s_waitcnt lgkmcnt(0)')
    a(f'v_add_u32 {vr(vDQk)}, 0x1000, {vr(vDQ)}')
    stamp(fine)
    a('s_barrier')
    for t in range(8):
        a(vread(X[t+1], t, 0)); a(vread(X[t+1]+2, t, 1))
    a('s_branch L_gdone')
    a.label('L_gk')
    for ks in range(4):
        a(f'ds_read_b128 {vr(QG+4*ks,4)}, {vr(vAG)} offset:{1024+64*ks}')
    issue_qa()
    a('s_waitcnt lgkmcnt(0)')
    for T in range(4):
        for ks in range(4):
            a(mfma(S+4*T, kf(T,ks), QG+4*ks, '0' if ks == 0 else S+4*T))
    a(f'v_add_u32 {vr(vDQk)}, 0x1000, {vr(vDQ)}')
    a.nop(7)
    for l in maxtree_l([S+x for x in range(16)], vM): a(l)
    xred(vM, vT)
    a(f'v_mul_f32 {vr(vM)}, s{sCS}, {vr(vM)}')
    for l in fma_l([S+x for x in range(16)], vM): a(l)
    for l in exp_l([S+x for x in range(16)]): a(l)
    a.nop(1)
    a(f'v_add_f32 {vr(vT)}, {vr(S)}, {vr(S+1)}')
    for x in range(2, 16):
        a(f'v_add_f32 {vr(vT)}, {vr(vT)}, {vr(S+x)}')
    for l in cvt_l(S, S, 8): a(l)
    xred(vT, vT0, 'v_add_f32')
    a(f'ds_write_b64 {vr(vNEG)}, {vr(vM,2)}')
    a(f'v_mbcnt_lo_u32_b32 {vr(vT0)}, -1, 0')
    a(f's_lshl_b32 s{sT0}, s{sWV}, 10')
    a(f'v_lshl_add_u32 {vr(vT0)}, {vr(vT0)}, 3, s{sT0}')
    if stamps and fine:
        nst[0] -= 1
        stamp()
    a('s_waitcnt vmcnt(4) lgkmcnt(0)')
    a('s_barrier')
    gb = [QB + 4*n for n in range(4)] + [S + 8 + 4*n for n in range(4)]
    for t in range(8):
        a(vread(gb[t], t, 2)); a(vread(gb[t]+2, t, 3))
    for t in range(8):
        a('s_waitcnt lgkmcnt(14)')
        a(mfma(gb[t], S+4, gb[t], '0'))
        a(vread(X[t+1], t, 0)); a(vread(X[t+1]+2, t, 1))
    for t in range(8):
        a(f's_waitcnt lgkmcnt({14-2*t})')
        a(mfma(gb[t], S, X[t+1], gb[t]))
    a('s_mov_b64 exec, 1')
    a(f'v_mov_b32 {vr(S)}, {LCNT}')
    a(f'v_mov_b32 {vr(S+1)}, 1')
    a('s_mov_b64 exec, 0xffff')
    for t in range(8):
        a(f'ds_write_b64 {vr(vT0)}, {vr(gb[t],2)} offset:{PART+128*t}')
    a('s_mov_b64 exec, 1')
    a(f'ds_add_u32 {vr(S)}, {vr(S+1)}')
    a('s_mov_b64 exec, -1')
    a.label('L_gdone')
    stamp()

    emit = lambda ls: [a(l) for l in ls]
    def combine(og, mg, tm):
        NP = len(og)
        emit(maxtree_l([mg[n] for n in range(NP)], tm))
        for n in range(NP):
            a(f'v_sub_f32 {vr(mg[n])}, {vr(mg[n])}, {vr(tm)}')
        for n in range(NP):
            a(f'v_exp_f32 {vr(mg[n])}, {vr(mg[n])}')
        a.nop(1)
        for e in range(4):
            a(f'v_mul_f32 {vr(og[0][e])}, {vr(og[0][e])}, {vr(mg[0])}')
        a(f'v_mul_f32 {vr(mg[0]+1)}, {vr(mg[0]+1)}, {vr(mg[0])}')
        for n in range(1, NP):
            for e in range(4):
                a(f'v_fmac_f32 {vr(og[0][e])}, {vr(og[n][e])}, {vr(mg[n])}')
            a(f'v_fmac_f32 {vr(mg[0]+1)}, {vr(mg[n]+1)}, {vr(mg[n])}')

    def issue_qb():
        for ks in range(4):
            a(f'buffer_load_dwordx4 {vr(QB+4*ks,4)}, {vr(vDQk)}, {sr(sQ,4)}, 0 offen offset:{64*ks} {qpol}')
        a(f'v_mov_b32 {vr(vDQk)}, 0')
    issue_qb()
    if opt.get('otouch'):
        only(FW, 'L_nootouch')
        a(f's_mov_b32 m0, {PARTML+256}')
        a('s_mov_b64 exec, 1')
        a(f'buffer_load_dword {vr(vOO)}, {sr(sO,4)}, 0 offen lds')
        a(f'buffer_load_dword {vr(vOO)}, {sr(sO,4)}, 0 offen offset:512 lds')
        a('s_mov_b64 exec, -1')
        a('s_waitcnt vmcnt(6)')
        a('s_branch L_tileA')
        a.label('L_nootouch')
    a(f's_cmp_eq_u32 s{sWV}, {RW}')
    a('s_cbranch_scc1 L_reduce')
    a(f's_cmp_eq_u32 s{sCMB}, 0')
    a('s_cbranch_scc1 L_noflag')
    a(f'v_mov_b32 {vr(vT0)}, {LNON}')
    a(f'ds_read_b32 {vr(vT0)}, {vr(vT0)}')
    a('s_waitcnt lgkmcnt(0)')
    a(f'v_readfirstlane_b32 s{sN}, {vr(vT0)}')
    a.label('L_noflag')
    a('s_waitcnt vmcnt(4)')
    a('s_branch L_tileA')
    a.label('L_reduce')
    R0 = S
    a(f'v_mbcnt_lo_u32_b32 {vr(R0)}, -1, 0')
    a(f'v_mbcnt_hi_u32_b32 {vr(R0)}, -1, {vr(R0)}')
    a(f'v_lshrrev_b32 {vr(R0+1)}, 5, {vr(R0)}')
    a(f'v_and_b32 {vr(R0+3)}, 31, {vr(R0)}')
    a(f'v_lshlrev_b32 {vr(R0+3)}, 5, {vr(R0+3)}')
    a(f'v_lshl_add_u32 {vr(R0+3)}, {vr(R0+1)}, 2, {vr(R0+3)}')
    a(f'v_lshlrev_b32 {vr(R0+1)}, 3, {vr(R0+1)}')
    a(f'v_add_u32 {vr(R0+1)}, {PARTML}, {vr(R0+1)}')
    a(f'v_lshlrev_b32 {vr(R0)}, 4, {vr(R0)}')
    a(f'v_mov_b32 {vr(R0+2)}, {LCNT}')
    a(f's_mov_b32 s{sCNT}, 0')
    a.label('L_lspin')
    a(f'ds_read_b64 {vr(S+4,2)}, {vr(R0+2)}')
    a(f's_add_u32 s{sCNT}, s{sCNT}, 1')
    a('s_waitcnt lgkmcnt(0)')
    a(f'v_readfirstlane_b32 s{sT0}, {vr(S+4)}')
    a(f'v_readfirstlane_b32 s{sN}, {vr(S+5)}')
    a(f's_cmp_ge_u32 s{sCNT}, 0x100000')
    a('s_cbranch_scc1 L_lok')
    a(f's_cmp_lt_u32 s{sT0}, 4')
    a('s_cbranch_scc1 L_lspin')
    a.label('L_lok')
    mg = [S+4, S+6, O, O+2]
    G0 = S + 8
    og = [[G0+4*n+e for e in range(4)] for n in range(4)]
    for n in range(4):
        a(f'ds_read_b64 {vr(mg[n],2)}, {vr(R0+1)} offset:{16*n}')
    for n in range(4):
        if n: a(f'v_add_u32 {vr(R0+3)}, 1024, {vr(R0+3)}')
        a(f'ds_read2_b32 {vr(G0+4*n,2)}, {vr(R0+3)} offset0:0 offset1:2')
        a(f'ds_read2_b32 {vr(G0+4*n+2,2)}, {vr(R0+3)} offset0:4 offset1:6')
    a('s_waitcnt lgkmcnt(0)')
    combine(og, mg, R0+1)
    a(f'v_mov_b32 {vr(G0+4)}, {vr(G0+3)}')
    a(f'v_mov_b32 {vr(G0+5)}, {vr(R0+1)}')
    a(f'v_mov_b32 {vr(G0+6)}, {vr(mg[0]+1)}')
    a(f'v_mov_b32 {vr(G0+7)}, s{sN}')
    a(f'v_mov_b32 {vr(G0+3)}, s{sN}')
    a(f'buffer_store_dwordx4 {vr(G0+4,4)}, {vr(R0)}, {sr(sW,4)}, s42 offen offset:1024 sc0 sc1')
    a(f'buffer_store_dwordx4 {vr(G0,4)}, {vr(R0)}, {sr(sW,4)}, s42 offen sc0 sc1')
    a(f's_cmp_lg_u32 s{sN}, 0')
    a('s_cbranch_scc1 L_tagged')
    a('s_waitcnt vmcnt(0)')
    a(f's_lshl_b32 s{sT0}, s{sH}, 3')
    a(f's_lshl_b32 s{sT1}, 1, s{sC}')
    a(f'v_mov_b32 {vr(R0)}, s{sT0}')
    a(f'v_mov_b32 {vr(R0+1)}, s{sT1}')
    a('s_mov_b64 exec, 1')
    a(f'global_atomic_or {vr(R0)}, {vr(R0+1)}, s[16:17] offset:4 sc1')
    a('s_mov_b64 exec, -1')
    a.label('L_tagged')
    a('s_waitcnt vmcnt(6)')
    a.label('L_tileA')
    def yprio(tag):
        if yp == tag:
            a(f's_cmp_lt_u32 s{sWV}, 4')
            a(f's_cbranch_scc1 L_yp{tag}')
            a('s_setprio 1')
            a.label(f'L_yp{tag}')
    yprio('a')
    stamp()

    def inter(ms, vs, per=2):
        vs = list(vs)
        for m in ms:
            a(m)
            for _ in range(per):
                if vs: a(vs.pop(0))
        for v in vs: a(v)

    HB = kf(2, 0)
    def hand_loads():
        a(f'v_mbcnt_lo_u32_b32 {vr(KG)}, -1, 0')
        a(f'v_mbcnt_hi_u32_b32 {vr(KG)}, -1, {vr(KG)}')
        a(f'v_lshlrev_b32 {vr(KG)}, 4, {vr(KG)}')
        for n in range(8):
            a(f's_movk_i32 s{sT0}, {2048*n}')
            a(f'buffer_load_dwordx4 {vr(HB+8*n,4)}, {vr(KG)}, {sr(sW,4)}, s{sT0} offen sc0 sc1')
            a(f'buffer_load_dwordx4 {vr(HB+8*n+4,4)}, {vr(KG)}, {sr(sW,4)}, s{sT0} offen offset:1024 sc0 sc1')

    buf = [kf(0, n) for n in range(4)] + [QA + 4*n for n in range(4)]
    SLOTW = {0: [0, 1, 2, 3, 4], 1: [4, 5, 2, 3, 1]}
    def qk(tau, sl):
        Q = QA if tau == 0 else QB
        if sl == 'G':
            return [mfma(S+20, KG+4*ks, Q+4*ks, '0' if ks == 0 else S+20) for ks in range(4)]
        W = SLOTW[tau][sl]
        c0 = BLO if W == tau else BHI if W == tau + 4 else '0'
        return [mfma(S+4*sl, kf(W,ks), Q+4*ks, c0 if ks == 0 else S+4*sl) for ks in range(4)]
    def edge_test(tau, lab):
        a(f's_sub_u32 s{sT0}, s{sQB}, {48 - 16*tau}')
        a(f's_cmp_lt_u32 s{sT0}, 1968')
        a(f's_cbranch_scc1 {lab}')
    def edge_mask(tau, tr):
        a(f'v_mbcnt_lo_u32_b32 {vr(tr)}, -1, 0')
        a(f'v_mbcnt_hi_u32_b32 {vr(tr)}, -1, {vr(tr)}')
        a(f'v_lshrrev_b32 {vr(tr)}, 4, {vr(tr)}')
        a(f's_sub_u32 s{sT0}, s{sQB}, 34')
        a(f's_movk_i32 s{sT1}, 2046')
        a(f'v_lshl_add_u32 {vr(tr)}, {vr(tr)}, 2, s{sT0}')
        a(f'v_mov_b32 {vr(vM)}, 0x{NEG:08x}')
        a('s_nop 3')
        for sl in range(5):
            for r in range(4):
                a(f'v_add_u32 {vr(vT)}, {16*SLOTW[tau][sl]+r}, {vr(tr)}')
                a(f'v_cmp_gt_u32 vcc, s{sT1}, {vr(vT)}')
                a('s_nop 1')
                a(f'v_cndmask_b32 {vr(S+4*sl+r)}, {vr(vM)}, {vr(S+4*sl+r)}, vcc')
        for l in maxtree_l([S+x for x in range(22)], vM): a(l)
    def epi(t, tau=0):
        l = [f'v_mul_f32 {vr(O+4*t+e)}, {vr(O+4*t+e)}, {vr(vT0)}' for e in range(4)]
        l += [f'v_cvt_pk_bf16_f32 {vr(O+4*t)}, {vr(O+4*t)}, {vr(O+4*t+1)}',
              f'v_cvt_pk_bf16_f32 {vr(O+4*t+1)}, {vr(O+4*t+2)}, {vr(O+4*t+3)}',
              f'ds_write_b64 {vr(vSW)}, {vr(O+4*t,2)} offset:{32*t + 16*STGP*tau}']
        return l
    def stage_reads(tau=0, R=O):
        return [f'ds_read_b128 {vr(R+4*j,4)}, {vr(vSR)} offset:{4*STGP*j + 16*STGP*tau}' for j in range(4)]
    def stores(tau, R=O, extra=0):
        for j in range(4):
            a(f's_waitcnt lgkmcnt({3-j+extra})')
            if tau == 0 and j == 0: a(f's_mov_b64 exec, {sr(sEX,2)}')
            a(f'buffer_store_dwordx4 {vr(R+4*j,4)}, {vr(vOO)}, {sr(sO,4)}, s{sTOFF if tau else sZERO} offen offset:{1024*j} {stpol}')
            if tau == 0 and j == 0: a('s_mov_b64 exec, -1')
    RA = kf(1, 0)
    def late_a():
        for l in stage_reads(0, RA): a(l)
        stores(0, RA)
    def softmax_pv(tau):
        m = vM
        xred(m, vT)
        a(f'v_mul_f32 {vr(m)}, s{sCS}, {vr(m)}')
        set0 = [S+x for x in range(8)]; set1 = [S+8+x for x in range(8)]; set2 = [S+16+x for x in range(6)]
        for l in fma_l(set0, m): a(l)
        f2 = fma_l(set2, m); f1 = fma_l(set1, m)
        for l in exp_l(set0): a(l)
        a(f2[0])
        for l in cvt_l(S, S, 4): a(l)
        a(f2[1])
        a('s_waitcnt lgkmcnt(0)' if tau == 1 else 's_waitcnt lgkmcnt(8)')
        if tau == 1 and apos == 1: late_a()
        ONES, LACC = S+4, S+20
        v2 = f2[2:] + exp_l(set2) + [f'v_mov_b32 {vr(ONES+n)}, 0x3f803f80' for n in range(4)] + cvt_l(S+16, S+16, 3) \
             + [f'v_mov_b32 {vr(S+19)}, 0', f'v_cndmask_b32 {vr(S+18)}, 0, {vr(S+18)}, {sr(sKG0,2)}']
        inter([mfma(X[t], X[t+1], S, '0') for t in range(8)], v2 + f1[:2])
        v1 = f1[2:] + exp_l(set1) + [f'v_mov_b32 {vr(vT0)}, 0'] + cvt_l(S+8, S+8, 4)
        inter([mfma(O+4*t, VG+4*t, S+16, O+4*t) for t in range(8)], v1)
        a(mfma(LACC, ONES, S, '0'))
        a(mfma(LACC, ONES, S+16, LACC))
        a(mfma(LACC, ONES, S+8, LACC))
        if tau == 0:
            a('s_waitcnt lgkmcnt(0)')
        for t in range(8):
            a(mfma(O+4*t, buf[t], S+8, O+4*t))
            if tau == 0: a(vread(VG+4*t, t, 1))
        a(f'v_rcp_f32 {vr(vT0)}, {vr(LACC)}')

    late = []
    for t in range(8):
        late += [vread(buf[t], t, 2), vread(buf[t]+2, t, 3)]
    vgr = [vread(VG+4*t, t, 4) for t in range(8)]
    edge_test(0, 'L_fastA')
    for l in vgr: a(l)
    for sl in ('G', 0, 1, 2, 3, 4):
        for l in qk(0, sl): a(l)
    for l in late: a(l)
    edge_mask(0, vT0)
    a('s_branch L_joinA')
    a.label('L_fastA')
    m = vM
    inter(qk(0, 0) + qk(0, 'G'), vgr, per=1)
    inter(qk(0, 1) + qk(0, 2), late[:8], per=1)
    inter(qk(0, 3), maxtree_l([S+20, S+21, S+0], m) + maxtree_l([S+1, S+2, S+3, S+4, S+5, S+6], m, False), per=1)
    inter(qk(0, 4), maxtree_l([S+7, S+8, S+9, S+10], m, False), per=1)
    for l in late[8:11]: a(l)
    for l in maxtree_l([S+11, S+12], m, False): a(l)
    for l in late[11:13]: a(l)
    for l in maxtree_l([S+13, S+14, S+15], m, False): a(l)
    for l in late[13:]: a(l)
    for l in maxtree_l([S+16, S+17, S+18, S+19], m, False): a(l)
    a.label('L_joinA')
    yprio('s')
    stamp(fine)
    softmax_pv(0)
    stamp(fine)
    ep = []
    for t in range(8): ep += epi(t)
    if apos == 0: ep += stage_reads()
    xb = []
    for t in range(8): xb += [vread(X[t+1], t, 4), vread(X[t+1]+2, t, 5)]
    def qb_wait(n):
        a(f's_waitcnt vmcnt({n+2})')
        if opt.get('otouch'):
            a(f's_and_b32 s{sT0}, s{sWV}, 3')
            a(f's_cmp_eq_u32 s{sT0}, 3')
        else:
            a(f's_cmp_eq_u32 s{sWV}, {RW}')
        a('s_cbranch_scc1 L_qbw')
        a(f's_waitcnt vmcnt({n})')
        a.label('L_qbw')
    if merge == 'hyb':
        a('s_nop 0')
        for l in ep: a(l)
        qb_wait(0)
        stamp()
        spos = int(opt.get('spos', 0))
        edge_test(1, 'L_fastB')
        stores(0)
        for sl in ('G', 0, 1, 2, 3, 4):
            for l in qk(1, sl): a(l)
        for l in xb: a(l)
        edge_mask(1, vT0)
        a('s_branch L_joinB')
        a.label('L_fastB')
        if spos == 0:
            stores(0)
            inter(qk(1, 'G') + qk(1, 0) + qk(1, 1) + qk(1, 2), xb, per=1)
        elif spos == 1:
            for l in qk(1, 'G') + qk(1, 0): a(l)
            stores(0)
            inter(qk(1, 1) + qk(1, 2), xb, per=2)
        else:
            for l in qk(1, 'G') + qk(1, 0) + qk(1, 1) + qk(1, 2): a(l)
        inter(qk(1, 3), maxtree_l([S+20, S+21, S+0], m) + maxtree_l([S+1, S+2, S+3, S+4, S+5, S+6], m, False), per=1)
        inter(qk(1, 4), maxtree_l([S+7, S+8], m, False), per=1)
        a.nop(1)
        for l in maxtree_l([S+9, S+10, S+11, S+12], m, False): a(l)
        a.nop(1)
        for l in maxtree_l([S+13, S+14, S+15], m, False): a(l)
        if spos == 2:
            stores(0)
            for l in xb: a(l)
        else:
            a.nop(3)
        for l in maxtree_l([S+16, S+17, S+18, S+19], m, False): a(l)
    elif not merge:
        a('s_nop 0')
        for l in ep: a(l)
        stores(0)
        for l in xb: a(l)
        qb_wait(4)
        stamp()
        edge_test(1, 'L_fastB')
        for sl in ('G', 0, 1, 2, 3, 4):
            for l in qk(1, sl): a(l)
        edge_mask(1, vT0)
        a('s_branch L_joinB')
        a.label('L_fastB')
        for sl in ('G', 0, 1, 2):
            for l in qk(1, sl): a(l)
        inter(qk(1, 3), maxtree_l([S+20, S+21, S+0], m) + maxtree_l([S+1, S+2], m, False), per=1)
        inter(qk(1, 4), maxtree_l([S+3, S+4, S+5, S+6, S+7, S+8], m, False), per=1)
        a.nop(1)
        for l in maxtree_l([S+9, S+10, S+11, S+12], m, False): a(l)
        a.nop(1)
        for l in maxtree_l([S+13, S+14, S+15], m, False): a(l)
        a.nop(2)
        for l in maxtree_l([S+16, S+17, S+18, S+19], m, False): a(l)
    else:
        qb_wait(0)
        yprio('m')
        stamp()
        edge_test(1, 'L_fastB')
        for l in ep: a(l)
        if apos == 0: stores(0)
        for sl in (0, 1, 2, 3, 4, 'G'):
            for l in qk(1, sl): a(l)
        for l in xb: a(l)
        edge_mask(1, vT0)
        a('s_branch L_joinB')
        a.label('L_fastB')
        ms = []
        for sl in (0, 1, 2, 3, 4, 'G'): ms += qk(1, sl)
        inter(ms, ep, per=3)
        for l in maxtree_l([S+x for x in range(15)], vT0): a(l)
        if apos == 0: stores(0)
        for l in xb: a(l)
        a(f'v_max3_f32 {vr(vM)}, {vr(vT0)}, {vr(S+15)}, {vr(S+16)}')
        for l in maxtree_l([S+17, S+18, S+19, S+20, S+21], vM, False): a(l)
    a.label('L_joinB')
    yprio('b')
    stamp()
    a(f's_cmp_eq_u32 s{sCMB}, 0')
    a('s_cbranch_scc1 L_nohand')
    hand_loads()
    a.label('L_nohand')
    softmax_pv(1)
    stamp(fine)
    if apos == 2:
        late_a()
    a('s_nop 0')
    if apos == 3:
        for l in stage_reads(0, RA): a(l)
    for t in range(8):
        for l in epi(t, 1): a(l)
    for l in stage_reads(1): a(l)
    if apos == 3:
        stores(0, RA, extra=4+8) if False else None
        for j in range(4):
            if j == 0: a(f's_mov_b64 exec, {sr(sEX,2)}')
            if j == 0: a('s_waitcnt lgkmcnt(4)')
            a(f'buffer_store_dwordx4 {vr(RA+4*j,4)}, {vr(vOO)}, {sr(sO,4)}, s{sZERO} offen offset:{1024*j} {stpol}')
            if j == 0: a('s_mov_b64 exec, -1')
    stores(1)
    stamp()

    a(f's_cmp_eq_u32 s{sCMB}, 0')
    a('s_cbranch_scc1 L_fin')
    a(f's_waitcnt vmcnt({4 if apos == 0 else 8})')
    a(f's_mov_b32 s{sCNT}, 0')
    a(f's_mov_b32 s{sT2}, 0')
    a.label('L_chk')
    a(f's_mov_b32 s{sT3}, s{sT2}')
    for n in range(8):
        a(f'v_cmp_eq_u32 vcc, s{sN}, {vr(HB+8*n+3)}')
        a(f'v_cmp_eq_u32 s[60:61], s{sN}, {vr(HB+8*n+7)}')
        a('s_nop 0')
        a('s_and_b64 vcc, vcc, s[60:61]')
        a('s_cmp_eq_u64 vcc, exec')
        a(f's_cselect_b32 s{sT0}, {1 << n}, 0')
        a(f's_or_b32 s{sT3}, s{sT3}, s{sT0}')
    a(f's_add_u32 s{sCNT}, s{sCNT}, 1')
    a(f's_cmp_eq_u32 s{sT3}, 0xff')
    a('s_cbranch_scc1 L_ready')
    a(f's_cmp_ge_u32 s{sCNT}, 0x40000')
    a('s_cbranch_scc1 L_ready')
    a(f's_lshl_b32 s{sT0}, s{sH}, 3')
    a(f'v_mov_b32 {vr(KG+1)}, s{sT0}')
    a(f'global_load_dword {vr(KG+2)}, {vr(KG+1)}, s[16:17] offset:4 sc0 sc1')
    a('s_waitcnt vmcnt(0)')
    a(f'v_readfirstlane_b32 s{sT2}, {vr(KG+2)}')
    hand_loads()
    a('s_waitcnt vmcnt(0)')
    a('s_branch L_chk')
    a.label('L_ready')
    hog = [[HB+8*n, HB+8*n+1, HB+8*n+2, HB+8*n+4] for n in range(8)]
    hmg = [HB+8*n+5 for n in range(8)]
    combine(hog, hmg, X8)
    a(f'v_rcp_f32 {vr(X8)}, {vr(hmg[0]+1)}')
    a(f'v_lshrrev_b32 {vr(KG)}, 1, {vr(KG)}')
    for e in range(4):
        a(f'v_mul_f32 {vr(hog[0][e])}, {vr(hog[0][e])}, {vr(X8)}')
    a(f'v_cvt_pk_bf16_f32 {vr(X8+2)}, {vr(hog[0][0])}, {vr(hog[0][1])}')
    a(f'v_cvt_pk_bf16_f32 {vr(X8+3)}, {vr(hog[0][2])}, {vr(hog[0][3])}')
    a(f'buffer_store_dwordx2 {vr(X8+2,2)}, {vr(KG)}, {sr(sO,4)}, 0 offen {stpol}')
    a.label('L_fin')
    if stamps:
        stamp()
        a('s_waitcnt vmcnt(0)')
        stamp()
        if opt.get('clk'):
            a('s_memtime s[98:99]')
            a('s_waitcnt lgkmcnt(0)')
            a('s_sub_u32 s98, s98, s96')
            a(f's_add_u32 s{64+2*nst[0]}, s98, s64')
            nst[0] += 1
        a(f's_lshl_b32 s{sT0}, s2, 3')
        a(f's_add_u32 s{sT0}, s{sT0}, s{sWV}')
        a(f's_lshl_b32 s{sT0}, s{sT0}, 6')
        a(f's_add_u32 s{sT0}, s{sT0}, 0x100000')
        a(f's_add_u32 s{sW}, s18, s{sT0}')
        a(f's_addc_u32 s{sW+1}, s19, 0')
        a(f'v_mov_b32 v1, 0')
        a('s_mov_b64 exec, 1')
        for n in range(min(16, nst[0])):
            a(f'v_mov_b32 v2, s{64+2*n}')
            a(f'buffer_store_dword v2, v1, {sr(sW,4)}, 0 offen offset:{4*n}')
        if 'leak' in opt:
            k = int(opt['leak'])
            a(f's_sub_u32 s{sT0}, s{64+2*k}, s64')
            a(f's_lshl_b32 s{sT0}, s{sT0}, 2')
            if opt.get('leakskew'):
                a.label('L_pre')
                a('s_memrealtime s[100:101]')
                a('s_waitcnt lgkmcnt(0)')
                a(f's_sub_u32 s{sT1}, s100, s64')
                a(f's_cmp_lt_u32 s{sT1}, 3000')
                a('s_cbranch_scc1 L_pre')
                a('s_mov_b64 exec, -1')
                a('v_mbcnt_lo_u32_b32 v3, -1, 0')
                a('v_and_b32 v3, 31, v3')
                a('v_lshlrev_b32 v3, 3, v3')
                a('global_load_dword v4, v3, s[16:17] sc0 sc1')
                a('s_waitcnt vmcnt(0)')
                a('v_readlane_b32 s20, v4, 0')
                a('s_mov_b32 s21, 0'); a('s_mov_b32 s22, 0')
                for n in range(1, 32):
                    a(f'v_readlane_b32 s23, v4, {n}')
                    a('s_nop 0')
                    a('s_sub_i32 s23, s23, s20')
                    a('s_min_i32 s21, s21, s23')
                    a('s_max_i32 s22, s22, s23')
                a(f's_sub_u32 s{sT0}, s22, s21')
                a(f's_min_u32 s{sT0}, s{sT0}, 2000')
                a(f's_lshl_b32 s{sT0}, s{sT0}, 2')
            if opt.get('leakxcc'):
                a('s_getreg_b32 s61, hwreg(HW_REG_XCC_ID, 0, 4)')
                a(f's_bfe_u32 s60, s{sN}, 0x40001')
                a('s_cmp_lg_u32 s60, s61')
                a(f's_cselect_b32 s{sT0}, 2000, 0')
            if opt.get('leakcnt'):
                a(f's_mul_i32 s{sT0}, s{sCNT}, 500')
                a(f's_mul_i32 s{sT0}, s{sT0}, s{sCMB}')
            if 'leakh' in opt:
                lo, hi = opt['leakh'].split(',')
                a(f's_sub_u32 s{sT1}, s{sH}, {lo}')
                a(f's_cmp_lt_u32 s{sT1}, {int(hi)-int(lo)}')
                a(f's_cselect_b32 s{sT0}, s{sT0}, 0')
            if 'leakwg' in opt:
                a(f's_cmp_eq_u32 s2, {opt["leakwg"]}')
                a(f's_cselect_b32 s{sT0}, s{sT0}, 0')
            if 'leakx' in opt:
                a(f's_getreg_b32 s{sT1}, hwreg(HW_REG_XCC_ID, 0, 4)')
                a(f's_lshr_b32 s{sT1}, {opt["leakx"]}, s{sT1}')
                a(f's_bitcmp1_b32 s{sT1}, 0')
                a(f's_cselect_b32 s{sT0}, s{sT0}, 0')
            if 'leakw' in opt:
                a(f's_lshr_b32 s{sT1}, {opt["leakw"]}, s{sWV}')
                a(f's_bitcmp1_b32 s{sT1}, 0')
                a(f's_cselect_b32 s{sT0}, s{sT0}, 0')
            a(f"s_add_u32 s{sT0}, s{sT0}, {opt.get('spin', 5000)}")
            a.label('L_spin')
            a('s_memrealtime s[100:101]')
            a('s_waitcnt lgkmcnt(0)')
            a(f's_sub_u32 s{sT1}, s100, s64')
            a(f's_cmp_lt_u32 s{sT1}, s{sT0}')
            a('s_cbranch_scc1 L_spin')
    a.label('L_end')
    a('s_endpgm')
    if cpf:
        a('.fill 4096, 4, 0xbf800000')

    check(a.lines)
    if stamps: print('stamps', nst[0])
    head = f'''; windowed + global-token attention, B=1 H=32 S=2048 D=128 bf16 (window 32, 2 global tokens)
; @launch grid=(256,1,1) block=(512,1,1) lds=163840
.amdgcn_target "amdgcn-amd-amdhsa--gfx950"
.text
.globl {NAME}
.p2align 8
.type {NAME},@function
{NAME}:
'''
    tail = f'''.section .rodata,"a"
.p2align 6
.amdhsa_kernel {NAME}
  .amdhsa_next_free_vgpr 256
  .amdhsa_next_free_sgpr {102 if stamps else 64}
  .amdhsa_accum_offset 256
  .amdhsa_group_segment_fixed_size 0
  .amdhsa_kernarg_size 64
  .amdhsa_user_sgpr_count 2
  .amdhsa_user_sgpr_kernarg_segment_ptr 1
  .amdhsa_system_sgpr_workgroup_id_x 1
.end_amdhsa_kernel
'''
    return head + a.text() + tail

if __name__ == '__main__':
    out = sys.argv[1]
    opt = {}
    for kv in sys.argv[2:]:
        k, v = kv.split('=', 1)
        opt[k] = {'True': True, 'False': False}.get(v, v.replace('+', ' '))
    open(out, 'w').write(gen(opt))
```

```python
import sys, math, struct
from asmlib import *

NAME = 'standalone__global_local_windowed_global_tokens__prompt_kernel'
def f2u(x): return struct.unpack('<I', struct.pack('<f', x))[0]

def gen(opt):
    a = Asm()
    NEG = 0xFF000000
    CSC = f2u(128 ** -0.5 * math.log2(math.e))
    KOFF, VOFF, SOFF = 0, 73728, 155648
    apos = int(opt.get('apos', 0))
    PART, HALO = SOFF + 3328, 65536
    PARTML, LCNT, LNON = SOFF + 3072, SOFF + 3072 + 128, SOFF + 3072 + 132
    STGP = 272
    ldpol = opt.get('ldpol', '')
    qpol = opt.get('qpol', '')
    stpol = opt.get('stpol', 'sc0 sc1 nt')
    pk = opt.get('pk', True)
    N1 = int(opt.get('n1', 10))
    yp = opt.get('yp', '')
    RW = int(opt.get('rw', 3))
    FW = 7
    SW = 5
    CW, CC = int(opt.get('cw', 1)), 3
    merge = opt.get('merge', True)
    sQ, sK, sV, sO, sW = 20, 24, 28, 32, 36
    sWV, sH, sC, sHO, sQ0B = 40, 43, 44, 45, 46
    sT0, sT1, sT2, sT3 = 47, 48, 49, 50
    sBK = 62
    HW = 4
    sCS = 52; sKG0 = 54; sQB = 51; sEX = 56; sCMB = 58; sCNT = 59; sN = 63; sTOFF = 41; sZERO = 3
    VA = 0
    vSW, vSR, vOO, vT0 = 8, 9, 10, 11
    X8 = 12
    KF = 16; KG = 112; QA, QB = 128, 144; VG = 160; O = 192; S = 224
    BLO, BHI = 248, 252
    kf = lambda W, ks: KF + 16 * W + 4 * ks
    X = [O + 4 * n for n in range(8)] + [X8]
    vLANE, vI, vKGp, vDK, vDV, vDQ, vAG, vNEG, vAK = O+16, O+17, O+18, O+19, O+20, O+21, O+22, O+23, O+24
    vAVG, t1, t2, t3 = O+28, O+29, O+30, O+31
    vDQk = VG + 7
    vAQ = VG + 11
    vFLAG = VG + 3
    vM, vT = S + 22, S + 23

    stamps = opt.get('stamps', False)
    fine = opt.get('fine', False)
    nst = [0]
    mini = opt.get('mini', False); fin_ = [False]
    def stamp(on=True):
        if mini and nst[0] and not fin_[0]: return
        if stamps and on:
            a(f's_memrealtime s[{64+2*nst[0]}:{65+2*nst[0]}]')
            if nst[0]: a('s_waitcnt lgkmcnt(0)')
            nst[0] += 1
    M16 = 'v_mfma_f32_16x16x32_bf16'
    def mfma(d, x, y, c):
        return f'{M16} {vr(d,4)}, {vr(x,4)}, {vr(y,4)}, {c if isinstance(c,str) else vr(c,4)}'
    def only(w, lab):
        a(f's_cmp_lg_u32 s{sWV}, {w}')
        a(f's_cbranch_scc1 {lab}')

    stamp()
    if opt.get('clk'): a('s_memtime s[96:97]')
    a('s_load_dwordx16 s[4:19], s[0:1], 0')
    a(f'v_readfirstlane_b32 s{sWV}, v0')
    a('s_cmp_ge_u32 s2, 256')
    a('s_cbranch_scc1 L_end')
    a(f'v_lshrrev_b32 {vr(t1)}, 4, v0')
    a(f'v_xor_b32 {vr(vDK)}, {vr(t1)}, v0')
    a(f'v_and_b32 {vr(vDK)}, 15, {vr(vDK)}')
    a(f'v_lshl_add_u32 {vr(vDK)}, {vr(t1)}, 4, {vr(vDK)}')
    a(f's_bfe_u32 s{sC}, s2, 0x30003')
    a(f's_lshl_b32 s{sQ0B}, s{sC}, 16')
    a(f'v_lshl_add_u32 {vr(vDK)}, {vr(vDK)}, 4, s{sQ0B}')
    a('s_and_b32 s41, s2, 7')
    a(f's_lshr_b32 s{sH}, s2, 6')
    a(f's_lshl2_add_u32 s{sH}, s41, s{sH}')
    a(f's_lshl_b32 s{sHO}, s{sH}, 19')
    a(f's_lshl_b32 m0, s{sWV}, 4')
    a(f's_mov_b32 s{sK+2}, 0x80000')
    a(f's_mov_b32 s{sK+3}, 0x20000')
    a(f's_movk_i32 s{sCNT}, 17')
    cpf = opt.get('cpf', True)
    a.label('L_base')
    if cpf is True:
        a(f's_getpc_b64 s[{sEX}:{sEX+1}]')
        a(f'v_lshlrev_b32 v1, 5, v0')
        a(f'global_load_dword {vr(X8)}, v1, s[{sEX}:{sEX+1}]')
    a(f's_cmp_ge_u32 s{sWV}, 256')
    a('s_cbranch_scc1 L_helper')
    a('s_waitcnt lgkmcnt(0)')
    stamp()
    a(f's_add_u32 s{sK}, s6, s{sHO}')
    a(f's_addc_u32 s{sK+1}, s7, 0')
    thr = int(opt.get('thr', 0)); tl = [0]
    if thr: a('s_getreg_b32 s1, hwreg(HW_REG_XCC_ID, 0, 4)')
    def throttle():
        if thr:
            a('s_bitcmp1_b32 s1, 0')
            a(f's_cbranch_scc{opt.get("thpar", 1)} L_th{tl[0]}')
            a(f's_waitcnt vmcnt({thr-1})')
            a.label(f'L_th{tl[0]}')
            tl[0] += 1
    snt = opt.get('snt', '')
    if 'k' in snt:
        for i in range(18):
            a(f'buffer_load_dwordx4 {vr(vDK)}, {sr(sK,4)}, 0 offen {"nt" if 2 <= i < 14 else ""} lds')
            a('s_add_u32 m0, m0, 0x1000')
            a(f'v_add_u32 {vr(vDK)}, 0x1000, {vr(vDK)}')
    else:
        a.label('L_kloop')
        a(f'buffer_load_dwordx4 {vr(vDK)}, {sr(sK,4)}, 0 offen lds')
        a('s_add_u32 m0, m0, 0x1000')
        a(f'v_add_u32 {vr(vDK)}, 0x1000, {vr(vDK)}')
        a(f's_sub_u32 s{sCNT}, s{sCNT}, 1')
        a('s_cbranch_scc0 L_kloop')
    if 'dup' in opt:
        nd = int(opt['dup'])
        a(f's_sub_u32 m0, m0, {0x1000*18}')
        a(f'v_subrev_u32 {vr(vDK)}, {0x1000*18}, {vr(vDK)}')
        for i in range(nd):
            a(f'buffer_load_dwordx4 {vr(vDK)}, {sr(sK,4)}, 0 offen lds')
            a('s_add_u32 m0, m0, 0x1000')
            a(f'v_add_u32 {vr(vDK)}, 0x1000, {vr(vDK)}')
    stamp(opt.get('postk', False))
    def common():
        a(f's_lshr_b32 s{sWV}, s{sWV}, 6')
        a(f'v_and_b32 {vr(vLANE)}, 63, v0')
        a(f'v_and_b32 {vr(vI)}, 15, v0')
        a(f'v_bfe_u32 {vr(vKGp)}, v0, 4, 2')
        a(f's_lshl_b32 s{sT1}, s{sWV}, 10')
        a(f's_add_u32 s{sT2}, s{sT1}, s{sQ0B}')
        for s_ in (sV, sQ):
            a(f's_mov_b32 s{s_+2}, 0x80000')
            a(f's_mov_b32 s{s_+3}, 0x20000')
        a(f's_mov_b32 s{sW+2}, 0x4000')
        a(f's_mov_b32 s{sW+3}, 0x20000')
        a(f's_and_b32 s{sBK}, s{sWV}, 3')
        a(f's_lshl_b32 s{sBK}, s{sBK}, 1')
        a(f's_cmp_lt_u32 s{sWV}, 4')
        a(f's_addc_u32 s{sBK}, s{sBK}, 0')
        a(f's_cmp_eq_u32 s{sC}, 0')
        a(f's_cselect_b32 s{sT3}, 0x40000000, 0')
        a(f's_lshl_b32 s{sT0}, s{sBK}, 13')
        a(f's_add_u32 s{sT0}, s{sT0}, s{sQ0B}')
        a(f'v_xor_b32 {vr(vDQ)}, {vr(vKGp)}, {vr(vI)}')
        a(f'v_lshlrev_b32 {vr(vDQ)}, 4, {vr(vDQ)}')
        a(f'v_lshl_add_u32 {vr(vDQ)}, {vr(vKGp)}, 8, {vr(vDQ)}')
        a(f'v_add_u32 {vr(vDQ)}, s{sT0}, {vr(vDQ)}')
        a(f'v_lshlrev_b32 {vr(t3)}, 4, {vr(vLANE)}')
        a(f's_lshl_b32 s41, s{sH}, 14')
        a(f's_lshl_b32 s42, s{sC}, 11')
    common()
    a(f's_mov_b32 s{sN}, 0')
    def srds():
        a(f's_add_u32 s{sV}, s8, s{sHO}')
        a(f's_addc_u32 s{sV+1}, s9, 0')
        a(f's_add_u32 s{sQ}, s4, s{sHO}')
        a(f's_addc_u32 s{sQ+1}, s5, 0')
        a(f's_add_u32 s{sW}, s18, s41')
        a(f's_addc_u32 s{sW+1}, s19, 0')
    srds()
    a('s_branch L_v1')
    a.label('L_helper')
    a('s_setprio 3')
    a('s_memrealtime s[60:61]')
    if cpf == 'one':
        a(f's_cmp_lg_u32 s{sWV}, {64*6}')
        a('s_cbranch_scc1 L_nocpf')
        a(f's_getpc_b64 s[{sEX}:{sEX+1}]')
        a(f's_lshl_b32 s{sT0}, s{sC}, 11')
        a(f'v_and_b32 v1, 15, v0')
        a(f'v_lshl_add_u32 v1, v1, 7, s{sT0}')
        a('s_mov_b64 exec, 0xffff')
        a(f'global_load_dword {vr(X8)}, v1, s[{sEX}:{sEX+1}]')
        a('s_mov_b64 exec, -1')
        a.label('L_nocpf')
    common()
    a(f's_mov_b32 m0, {SOFF}')
    a('s_waitcnt lgkmcnt(0)')
    if stamps and not mini:
        nst[0] -= 1
        stamp()
    a(f's_add_u32 s{sK}, s6, s{sHO}')
    a(f's_addc_u32 s{sK+1}, s7, 0')
    srds()
    if stamps and opt.get('postk'):
        nst[0] -= 1
        stamp()
    a(f's_or_b32 s{sN}, s60, 1')
    if opt.get('leakxcc'):
        a('s_getreg_b32 s61, hwreg(HW_REG_XCC_ID, 0, 4)')
        a(f's_and_b32 s{sN}, s60, 0xffffffe0')
        a(f's_lshl1_add_u32 s{sN}, s61, s{sN}')
        a(f's_or_b32 s{sN}, s{sN}, 1')
    only(FW, 'L_noclear')
    a(f's_lshl_b32 s{sT0}, s{sH}, 3')
    a(f'v_mov_b32 {vr(S+4)}, s{sT0}')
    a(f'v_mov_b32 {vr(S+5)}, s{sN}')
    a(f'v_mov_b32 {vr(S+6)}, {LCNT}')
    a(f'v_mov_b32 {vr(S+7)}, 0')
    a('s_mov_b64 exec, 1')
    a(f's_cmp_lg_u32 s{sC}, {CC}')
    a('s_cbranch_scc1 L_nopub')
    a(f'global_store_dword {vr(S+4)}, {vr(S+5)}, s[16:17] sc0 sc1')
    a.label('L_nopub')
    a(f'ds_write_b32 {vr(S+6)}, {vr(S+7)}')
    a('s_mov_b64 exec, -1')
    if opt.get('wstouch'):
        pol = {'ld': '', 'ldsc': 'sc0 sc1'}.get(opt['wstouch'])
        if pol is not None:
            a(f'buffer_load_dwordx4 {vr(S+8,4)}, {vr(t3)}, {sr(sW,4)}, s42 offen {pol}')
            a(f'buffer_load_dwordx4 {vr(S+12,4)}, {vr(t3)}, {sr(sW,4)}, s42 offen offset:1024 {pol}')
        else:
            for n in range(4): a(f'v_mov_b32 {vr(S+8+n)}, 0')
            a(f'buffer_store_dwordx4 {vr(S+8,4)}, {vr(t3)}, {sr(sW,4)}, s42 offen sc0 sc1')
            a(f'buffer_store_dwordx4 {vr(S+8,4)}, {vr(t3)}, {sr(sW,4)}, s42 offen offset:1024 sc0 sc1')
    a.label('L_noclear')
    only(SW, 'L_nosmall')
    for n, srd in enumerate((sK, sQ, sV)):
        if n:
            a(f's_mov_b32 m0, {SOFF + 1024*n}')
            a('s_nop 0')
        a(f'buffer_load_dwordx4 {vr(t3)}, {sr(srd,4)}, 0 offen lds')
    a.label('L_nosmall')
    a('s_setprio 0')
    v2h = int(opt.get('v2h', 0))
    def vaddr(i0):
        a(f's_and_b32 s{sT0}, s{sWV}, 1')
        a(f's_lshl_b32 s{sT0}, s{sT0}, 2')
        a(f'v_add_lshl_u32 {vr(vDV)}, s{sT0}, {vr(vKGp)}, 1')
        a(f'v_xor_b32 {vr(vDV)}, {vr(vDV)}, {vr(vI)}')
        a(f'v_lshlrev_b32 {vr(vDV)}, 4, {vr(vDV)}')
        a(f'v_lshl_add_u32 {vr(vDV)}, {vr(vKGp)}, 8, {vr(vDV)}')
        a(f's_add_u32 s{sT2}, s{sT2}, {(0x1000*i0 - 0x2000) & 0xffffffff}')
        a(f'v_add_u32 {vr(vDV)}, s{sT2}, {vr(vDV)}')
        a(f's_add_u32 m0, s{sT1}, {VOFF + 0x1000*i0}')
    if v2h:
        vaddr(20 - v2h - 1 - 1)
    a('s_branch L_nov1')
    a.label('L_v1')
    def vpiece(i):
        throttle()
        if i:
            a('s_add_u32 m0, m0, 0x1000')
            a(f'v_add_u32 {vr(vDV)}, 0x1000, {vr(vDV)}')
        if i < 2:
            a(f'v_add_u32 {vr(t1)}, s{sT3}, {vr(vDV)}')
            a(f'buffer_load_dwordx4 {vr(t1)}, {sr(sV,4)}, 0 offen {ldpol} lds')
        else:
            a(f'buffer_load_dwordx4 {vr(vDV)}, {sr(sV,4)}, 0 offen {"nt" if "v" in snt and 4 <= i < 16 else ldpol} lds')
    vaddr(0)
    for i in range(N1): vpiece(i)
    a.label('L_nov1')
    stamp()

    a(f's_add_u32 s{sO}, s14, s{sHO}')
    a(f's_addc_u32 s{sO+1}, s15, 0')
    a(f's_mov_b32 s{sO+2}, 0x80000')
    a(f's_mov_b32 s{sO+3}, 0x20000')
    a(f's_movk_i32 s{sTOFF}, 0x1000')
    a(f's_mov_b32 s{sZERO}, 0')
    a(f's_mov_b32 s{sCS}, 0x{CSC:08x}')
    a(f's_mov_b32 s{sCS+1}, 0x{CSC:08x}')
    a(f'v_mov_b32 {vr(vNEG)}, 0x{NEG:08x}')
    a(f'v_lshlrev_b32 {vr(t2)}, 2, {vr(vKGp)}')
    a(f'v_cmp_eq_u32 {sr(sKG0,2)}, 0, {vr(vKGp)}')
    for r in range(4):
        a(f'v_add_u32 {vr(t1)}, {r}, {vr(t2)}')
        a(f'v_cmp_ge_u32 vcc, {vr(t1)}, {vr(vI)}')
        a(f'v_cmp_le_u32 s[60:61], {vr(t1)}, {vr(vI)}')
        a('s_nop 0')
        a(f'v_cndmask_b32 {vr(BLO+r)}, {vr(vNEG)}, 0, vcc')
        a(f'v_cndmask_b32 {vr(BHI+r)}, {vr(vNEG)}, 0, s[60:61]')
    a(f's_lshl_b32 s{sT0}, s{sBK}, 13')
    a(f'v_xor_b32 {vr(t1)}, {vr(vKGp)}, {vr(vI)}')
    a(f'v_lshlrev_b32 {vr(t1)}, 4, {vr(t1)}')
    a(f'v_lshl_add_u32 {vr(t1)}, {vr(vI)}, 8, {vr(t1)}')
    a(f'v_add_u32 {vr(vAK)}, s{sT0}, {vr(t1)}')
    for ks in range(1, 4):
        a(f'v_xor_b32 {vr(vAK+ks)}, {64*ks}, {vr(vAK)}')
    a(f'v_mov_b32 {vr(vDK)}, {vr(vAK)}')
    a(f'v_and_b32 {vr(t1)}, 1, {vr(vI)}')
    a(f'v_lshlrev_b32 {vr(vNEG)}, 3, {vr(t1)}')
    a(f'v_lshlrev_b32 {vr(t1)}, 8, {vr(t1)}')
    a(f'v_lshl_add_u32 {vr(t1)}, {vr(vKGp)}, 4, {vr(t1)}')
    a(f'v_add_u32 {vr(vAG)}, {SOFF}, {vr(t1)}')
    a(f'v_bfe_u32 {vr(t1)}, {vr(vLANE)}, 2, 2')
    a(f'v_and_b32 {vr(t2)}, 3, {vr(vLANE)}')
    a(f'v_lshlrev_b32 {vr(t2)}, 3, {vr(t2)}')
    a(f'v_lshl_add_u32 {vr(t1)}, {vr(t1)}, 8, {vr(t2)}')
    a(f'v_add_u32 {vr(vAVG)}, {SOFF+2048}, {vr(t1)}')
    a(f'v_lshrrev_b32 {vr(t1)}, 2, {vr(vLANE)}')
    a(f'v_and_b32 {vr(vT0)}, 7, {vr(t1)}')
    a(f'v_lshl_add_u32 {vr(t2)}, {vr(vT0)}, 5, {vr(t2)}')
    a(f'v_lshl_add_u32 {vr(t2)}, {vr(t1)}, 8, {vr(t2)}')
    a(f's_add_u32 s{sT1}, s{sT0}, {VOFF}')
    a(f'v_add_u32 {vr(VA)}, s{sT1}, {vr(t2)}')
    for t in range(1, 8):
        a(f'v_xor_b32 {vr(VA+t)}, {32*t}, {vr(VA)}')
    a(f's_mov_b32 s{sT1}, s{sT0}')
    a(f'v_mul_u32_u24 {vr(t1)}, {STGP}, {vr(vI)}')
    a(f'v_lshl_add_u32 {vr(t1)}, {vr(vKGp)}, 3, {vr(t1)}')
    a(f'v_add_u32 {vr(vSW)}, s{sT1}, {vr(t1)}')
    a(f'v_mul_u32_u24 {vr(t1)}, {STGP}, {vr(vKGp)}')
    a(f'v_lshl_add_u32 {vr(t1)}, {vr(vI)}, 4, {vr(t1)}')
    a(f'v_add_u32 {vr(vSR)}, s{sT1}, {vr(t1)}')
    a(f's_add_u32 s{sT0}, s{sT0}, s{sQ0B}')
    a(f'v_add_u32 {vr(vOO)}, s{sT0}, {vr(t3)}')
    a(f's_lshr_b32 s{sQB}, s{sT0}, 8')
    a(f's_cmp_eq_u32 s{sQB}, 0')
    a(f's_cselect_b32 s{sEX}, 0, -1')
    a(f's_mov_b32 s{sEX+1}, -1')
    a(f's_cmp_eq_u32 s{sQB}, {256*CC+32*(2*CW+1)}')
    a(f's_cselect_b32 s{sCMB}, 1, 0')
    a(f's_lshl_b32 s{sT0}, s{sWV}, 4')
    a(f's_add_u32 s{sT0}, s{sT0}, {PARTML}')
    a(f'v_add_u32 {vr(vNEG)}, s{sT0}, {vr(vNEG)}')

    spf = [int(x) for x in opt.get('spf', '0,0').split(',')]
    spstep = int(opt.get('spstep', 128)); sptile = opt.get('sptile', 'B')
    def sp_offsets():
        o = []
        for half in ([1, 0] if sptile == 'B' else [0, 1]):
            for blk in (1, 0):
                o += [8192*blk + 4096*half + x for x in range(0, 4096, spstep)]
        return o
    spo = sp_offsets()
    def sprefetch(n):
        for _ in range(n):
            if spo: a(f's_load_dword s61, s[10:11], {spo.pop(0)}')
    if sum(spf):
        a(f's_cmp_lt_u32 s{sWV}, 4')
        a('s_cbranch_scc1 L_nosp')
        a(f's_lshl_b32 s{sT0}, s{sBK}, 13')
        a(f's_add_u32 s{sT0}, s{sT0}, s{sQ0B}')
        a(f's_add_u32 s10, s{sQ}, s{sT0}')
        a(f's_addc_u32 s11, s{sQ+1}, 0')
        sprefetch(spf[0])
        a.label('L_nosp')
    a(f's_waitcnt vmcnt({N1}) lgkmcnt(0)')
    a(f's_cmp_lt_u32 s{sWV}, 4')
    a('s_cbranch_scc1 L_kw')
    a(f's_cmp_eq_u32 s{sWV}, {FW}')
    a('s_cbranch_scc1 L_kw')
    a('s_waitcnt vmcnt(0)')
    a.label('L_kw')
    stamp(opt.get('prek', False))
    a('s_barrier')
    stamp()
    kfirst = opt.get('kfirst', False)
    NK = int(opt.get('nk', 0))
    a(f's_cmp_ge_u32 s{sWV}, 4')
    a('s_cbranch_scc1 L_nov2')
    for i in range(N1, (N1 + NK) if kfirst else 20): vpiece(i)
    if v2h:
        a('s_branch L_nov2b')
    a.label('L_nov2')
    if v2h:
        a(f's_setprio {opt.get("v2p", 3)}')
        for i in range(20 - v2h, 20): vpiece(i)
        a('s_setprio 0')
        a.label('L_nov2b')
    stamp(fine)
    QG = O
    for W in (2, 3, 4, 5):
        for ks in range(4):
            a(f'ds_read_b128 {vr(kf(W,ks),4)}, {vr(vAK+ks)} offset:{4096*(W-2)}')
    for ks in range(4):
        a(f'ds_read_b128 {vr(KG+4*ks,4)}, {vr(vAG)} offset:{64*ks}')
    for t in range(8):
        a(f'ds_read_b64_tr_b16 {vr(VG+4*t+2,2)}, {vr(vAVG)} offset:{32*t}')
    a(f's_cmp_eq_u32 s{sWV}, {HW}')
    a('s_cbranch_scc1 L_k01done')
    for ks in range(4):
        a(f'v_subrev_u32 {vr(vAK+ks)}, 0x2000, {vr(vAK+ks)}')
    for W in (0, 1):
        for ks in range(4):
            a(f'ds_read_b128 {vr(kf(W,ks),4)}, {vr(vAK+ks)} offset:{4096*W}')
    a.label('L_k01done')
    def dma_tile(srd, src, tmp, tile, m0expr):
        a(m0expr)
        for j in range(1, 4):
            a(f'v_xor_b32 {vr(tmp+j-1)}, {64*j}, {vr(src)}')
        for j in range(4):
            a(f'buffer_load_dwordx4 {vr(src if j == 0 else tmp+j-1)}, {sr(srd,4)}, s{sTOFF if tile else sZERO} offen offset:{1024*j} {qpol if srd == sQ else ""} lds')
    qbearly = opt.get('qbearly', False)
    def issue_qa(loader=False):
        a('s_waitcnt lgkmcnt(0)')
        a('s_barrier')
        if loader and kfirst:
            for i in range(N1 + NK, 20): vpiece(i)
        a(f'v_mov_b32 {vr(vAQ)}, {vr(vDK)}')
        dma_tile(sQ, vDQ, t1, 0, f's_lshl_b32 m0, s{sBK}, 13')
    def issue_qb(src, tmp):
        a(f's_lshl_b32 s{sT0}, s{sBK}, 13')
        dma_tile(sQ, src, tmp, 1, f's_add_u32 m0, s{sT0}, 0x1000')
    NQ = 8 if qbearly else 4

    def xred(m, t, op='v_max_f32'):
        a(f'v_mov_b32 {vr(t)}, {vr(m)}')
        a.nop(2)
        a(f'v_permlane16_swap_b32 {vr(m)}, {vr(t)}')
        a(f'{op} {vr(m)}, {vr(m)}, {vr(t)}')
        a(f'v_mov_b32 {vr(t)}, {vr(m)}')
        a.nop(2)
        a(f'v_permlane32_swap_b32 {vr(m)}, {vr(t)}')
        a(f'{op} {vr(m)}, {vr(m)}, {vr(t)}')
    def maxtree_l(vals, m, first=True):
        out = []; rest = list(vals)
        if first:
            out.append(f'v_max3_f32 {vr(m)}, {vr(rest[0])}, {vr(rest[1])}, {vr(rest[2])}'); rest = rest[3:]
        while len(rest) >= 2:
            out.append(f'v_max3_f32 {vr(m)}, {vr(m)}, {vr(rest[0])}, {vr(rest[1])}'); rest = rest[2:]
        if rest:
            out.append(f'v_max_f32 {vr(m)}, {vr(m)}, {vr(rest[0])}')
        return out
    def fma_l(vals, mc):
        if pk:
            return [f'v_pk_fma_f32 {vr(vals[n],2)}, {vr(vals[n],2)}, {sr(sCS,2)}, {vr(mc,2)} op_sel_hi:[1,1,0] neg_lo:[0,0,1] neg_hi:[0,0,1]' for n in range(0, len(vals), 2)]
        return [f'v_fma_f32 {vr(v)}, {vr(v)}, s{sCS}, -{vr(mc)}' for v in vals]
    exp_l = lambda vals: [f'v_exp_f32 {vr(v)}, {vr(v)}' for v in vals]
    cvt_l = lambda dst, src, n: [f'v_cvt_pk_bf16_f32 {vr(dst+k)}, {vr(src+2*k)}, {vr(src+2*k+1)}' for k in range(n)]

    def vread(dst, t, W):
        return f'ds_read_b64_tr_b16 {vr(dst,2)}, {vr(VA+t)} offset:{4096*W}'
    a(f's_cmp_lt_u32 s{sWV}, 4')
    a('s_cbranch_scc1 L_gk')
    sprefetch(spf[1])
    only(FW, 'L_notag')
    a('s_setprio 3')
    a(f's_lshl_b32 s{sT0}, s{sH}, 3')
    a(f'v_mov_b32 {vr(S+4)}, s{sT0}')
    a(f'v_mov_b32 {vr(S+5)}, s{sN}')
    a(f'v_mov_b32 {vr(S+6)}, {LCNT}')
    a(f'global_load_dword {vr(S+7)}, {vr(S+4)}, s[16:17]')
    a('s_setprio 0')
    issue_qa()
    if qbearly: issue_qb(vDQ, t1)
    a(f's_waitcnt vmcnt({NQ})')
    if opt.get('forcefb'): a(f'v_mov_b32 {vr(S+7)}, 0')
    a(f's_cmp_eq_u32 s{sC}, {CC}')
    a('s_cselect_b64 vcc, -1, 0')
    a(f'v_cndmask_b32 {vr(S+7)}, {vr(S+7)}, {vr(S+5)}, vcc')
    a('s_mov_b64 exec, 1')
    a(f'ds_write_b32 {vr(S+6)}, {vr(S+7)} offset:4')
    a('s_mov_b64 exec, -1')
    a('s_branch L_tagdone')
    a.label('L_notag')
    issue_qa()
    only(HW, 'L_nohalo')
    a(f's_sub_u32 s{sT0}, s{sT3}, 0x2000')
    a(f'v_add_u32 {vr(S)}, s{sT0}, {vr(vDQ)}')
    dma_tile(sK, S, t1, 0, f's_mov_b32 m0, {HALO}')
    dma_tile(sK, S, t1, 1, f's_mov_b32 m0, {HALO+4096}')
    a.label('L_nohalo')
    if qbearly: issue_qb(vDQ, t1)
    a.label('L_tagdone')
    a('s_waitcnt lgkmcnt(0)')
    if not qbearly: a(f'v_mov_b32 {vr(vDQk)}, {vr(vDQ)}')
    stamp(fine)
    a('s_barrier')
    for t in range(8):
        a(vread(X[t+1], t, 0)); a(vread(X[t+1]+2, t, 1))
    a('s_branch L_gdone')
    a.label('L_gk')
    for ks in range(4):
        a(f'ds_read_b128 {vr(QG+4*ks,4)}, {vr(vAG)} offset:{1024+64*ks}')
    issue_qa(True)
    for T in range(4):
        for ks in range(4):
            a(mfma(S+4*T, kf(T,ks), QG+4*ks, '0' if ks == 0 else S+4*T))
    if not qbearly: a(f'v_mov_b32 {vr(vDQk)}, {vr(vDQ)}')
    a.nop(8)
    for l in maxtree_l([S+x for x in range(16)], vM): a(l)
    xred(vM, vT)
    a(f'v_mul_f32 {vr(vM)}, s{sCS}, {vr(vM)}')
    for l in fma_l([S+x for x in range(16)], vM): a(l)
    for l in exp_l([S+x for x in range(16)]): a(l)
    a.nop(1)
    a(f'v_add_f32 {vr(vT)}, {vr(S)}, {vr(S+1)}')
    for x in range(2, 16):
        a(f'v_add_f32 {vr(vT)}, {vr(vT)}, {vr(S+x)}')
    for l in cvt_l(S, S, 8): a(l)
    xred(vT, vT0, 'v_add_f32')
    a(f'ds_write_b64 {vr(vNEG)}, {vr(vM,2)}')
    a(f'v_mbcnt_lo_u32_b32 {vr(vT0)}, -1, 0')
    a(f's_lshl_b32 s{sT0}, s{sWV}, 10')
    a(f's_add_u32 s{sT0}, s{sT0}, {PART}')
    a(f'v_lshl_add_u32 {vr(vT0)}, {vr(vT0)}, 3, s{sT0}')
    if qbearly: issue_qb(vDQ, t1)
    if stamps and fine:
        nst[0] -= 1
        stamp()
    a(f's_waitcnt vmcnt({NQ}) lgkmcnt(0)')
    a('s_barrier')
    gb = [QB + 4*n for n in range(4)] + [S + 8 + 4*n for n in range(4)]
    for t in range(8):
        a(vread(gb[t], t, 2)); a(vread(gb[t]+2, t, 3))
    for t in range(8):
        a('s_waitcnt lgkmcnt(14)')
        a(mfma(gb[t], S+4, gb[t], '0'))
        a(vread(X[t+1], t, 0)); a(vread(X[t+1]+2, t, 1))
    for t in range(8):
        a(f's_waitcnt lgkmcnt({14-2*t})')
        a(mfma(gb[t], S, X[t+1], gb[t]))
    a('s_mov_b64 exec, 1')
    a(f'v_mov_b32 {vr(S)}, {LCNT}')
    a(f'v_mov_b32 {vr(S+1)}, 1')
    a('s_mov_b64 exec, 0xffff')
    for t in range(8):
        a(f'ds_write_b64 {vr(vT0)}, {vr(gb[t],2)} offset:{128*t}')
    a('s_mov_b64 exec, 1')
    a(f'ds_add_u32 {vr(S)}, {vr(S+1)}')
    a('s_mov_b64 exec, -1')
    a.label('L_gdone')
    stamp()

    emit = lambda ls: [a(l) for l in ls]
    def combine(og, mg, tm):
        NP = len(og)
        emit(maxtree_l([mg[n] for n in range(NP)], tm))
        for n in range(NP):
            a(f'v_sub_f32 {vr(mg[n])}, {vr(mg[n])}, {vr(tm)}')
        for n in range(NP):
            a(f'v_exp_f32 {vr(mg[n])}, {vr(mg[n])}')
        a.nop(1)
        for e in range(4):
            a(f'v_mul_f32 {vr(og[0][e])}, {vr(og[0][e])}, {vr(mg[0])}')
        a(f'v_mul_f32 {vr(mg[0]+1)}, {vr(mg[0]+1)}, {vr(mg[0])}')
        for n in range(1, NP):
            for e in range(4):
                a(f'v_fmac_f32 {vr(og[0][e])}, {vr(og[n][e])}, {vr(mg[n])}')
            a(f'v_fmac_f32 {vr(mg[0]+1)}, {vr(mg[n]+1)}, {vr(mg[n])}')

    if not qbearly:
        issue_qb(vDQk, S+2)
        a(f'v_mov_b32 {vr(vDQk)}, 0')
    a(f's_cmp_eq_u32 s{sWV}, {RW}')
    a('s_cbranch_scc1 L_reduce')
    a(f's_cmp_eq_u32 s{sCMB}, 0')
    a('s_cbranch_scc1 L_noflag')
    a(f'v_mov_b32 {vr(vT0)}, {LNON}')
    a(f'ds_read_b32 {vr(vT0)}, {vr(vT0)}')
    a('s_waitcnt lgkmcnt(0)')
    a(f'v_readfirstlane_b32 s{sN}, {vr(vT0)}')
    a.label('L_noflag')
    a('s_waitcnt vmcnt(4)')
    a('s_branch L_tileA')
    a.label('L_reduce')
    R0 = S
    a(f'v_mbcnt_lo_u32_b32 {vr(R0)}, -1, 0')
    a(f'v_mbcnt_hi_u32_b32 {vr(R0)}, -1, {vr(R0)}')
    a(f'v_lshrrev_b32 {vr(R0+1)}, 5, {vr(R0)}')
    a(f'v_and_b32 {vr(R0+3)}, 31, {vr(R0)}')
    a(f'v_lshlrev_b32 {vr(R0+3)}, 5, {vr(R0+3)}')
    a(f'v_lshl_add_u32 {vr(R0+3)}, {vr(R0+1)}, 2, {vr(R0+3)}')
    a(f'v_add_u32 {vr(R0+3)}, {PART}, {vr(R0+3)}')
    a(f'v_lshlrev_b32 {vr(R0+1)}, 3, {vr(R0+1)}')
    a(f'v_add_u32 {vr(R0+1)}, {PARTML}, {vr(R0+1)}')
    a(f'v_lshlrev_b32 {vr(R0)}, 4, {vr(R0)}')
    a(f'v_mov_b32 {vr(R0+2)}, {LCNT}')
    a(f's_mov_b32 s{sCNT}, 0')
    a.label('L_lspin')
    a(f'ds_read_b64 {vr(S+4,2)}, {vr(R0+2)}')
    a(f's_add_u32 s{sCNT}, s{sCNT}, 1')
    a('s_waitcnt lgkmcnt(0)')
    a(f'v_readfirstlane_b32 s{sT0}, {vr(S+4)}')
    a(f'v_readfirstlane_b32 s{sN}, {vr(S+5)}')
    a(f's_cmp_ge_u32 s{sCNT}, 0x100000')
    a('s_cbranch_scc1 L_lok')
    a(f's_cmp_lt_u32 s{sT0}, 4')
    a('s_cbranch_scc1 L_lspin')
    a.label('L_lok')
    mg = [S+4, S+6, O, O+2]
    G0 = S + 8
    og = [[G0+4*n+e for e in range(4)] for n in range(4)]
    for n in range(4):
        a(f'ds_read_b64 {vr(mg[n],2)}, {vr(R0+1)} offset:{16*n}')
    for n in range(4):
        if n: a(f'v_add_u32 {vr(R0+3)}, 1024, {vr(R0+3)}')
        a(f'ds_read2_b32 {vr(G0+4*n,2)}, {vr(R0+3)} offset0:0 offset1:2')
        a(f'ds_read2_b32 {vr(G0+4*n+2,2)}, {vr(R0+3)} offset0:4 offset1:6')
    a('s_waitcnt lgkmcnt(0)')
    combine(og, mg, R0+1)
    a(f'v_mov_b32 {vr(G0+4)}, {vr(G0+3)}')
    a(f'v_mov_b32 {vr(G0+5)}, {vr(R0+1)}')
    a(f'v_mov_b32 {vr(G0+6)}, {vr(mg[0]+1)}')
    a(f'v_mov_b32 {vr(G0+7)}, s{sN}')
    a(f'v_mov_b32 {vr(G0+3)}, s{sN}')
    a(f'buffer_store_dwordx4 {vr(G0+4,4)}, {vr(R0)}, {sr(sW,4)}, s42 offen offset:1024 sc0 sc1')
    a(f'buffer_store_dwordx4 {vr(G0,4)}, {vr(R0)}, {sr(sW,4)}, s42 offen sc0 sc1')
    a(f's_cmp_lg_u32 s{sN}, 0')
    a('s_cbranch_scc1 L_tagged')
    a('s_waitcnt vmcnt(0)')
    a(f's_lshl_b32 s{sT0}, s{sH}, 3')
    a(f's_lshl_b32 s{sT1}, 1, s{sC}')
    a(f'v_mov_b32 {vr(R0)}, s{sT0}')
    a(f'v_mov_b32 {vr(R0+1)}, s{sT1}')
    a('s_mov_b64 exec, 1')
    a(f'global_atomic_or {vr(R0)}, {vr(R0+1)}, s[16:17] offset:4 sc1')
    a('s_mov_b64 exec, -1')
    a.label('L_tagged')
    a('s_waitcnt vmcnt(6)')
    a.label('L_tileA')
    def qfrag(Q, tile, tmp):
        for ks in range(1, 4):
            a(f'v_xor_b32 {vr(tmp+ks-1)}, {64*ks}, {vr(vAQ)}')
        for ks in range(4):
            a(f'ds_read_b128 {vr(Q+4*ks,4)}, {vr(vAQ if ks == 0 else tmp+ks-1)} offset:{4096*tile}')
    qfrag(QA, 0, S+13)
    only(HW, 'L_nohalo2')
    a(f'v_add_u32 {vr(S+12)}, {HALO}, {vr(vAQ)}')
    for ks in range(1, 4):
        a(f'v_add_u32 {vr(S+12+ks)}, {HALO}, {vr(S+12+ks)}')
    for W in (0, 1):
        for ks in range(4):
            a(f'ds_read_b128 {vr(kf(W,ks),4)}, {vr(S+12+ks)} offset:{4096*W}')
    a.label('L_nohalo2')
    a('s_waitcnt lgkmcnt(0)')
    def yprio(tag):
        if yp == tag:
            a(f's_cmp_lt_u32 s{sWV}, 4')
            a(f's_cbranch_scc1 L_yp{tag}')
            a('s_setprio 1')
            a.label(f'L_yp{tag}')
    yprio('a')
    stamp()

    def inter(ms, vs, per=2):
        vs = list(vs)
        for m in ms:
            a(m)
            for _ in range(per):
                if vs: a(vs.pop(0))
        for v in vs: a(v)

    HB = kf(2, 0)
    def hand_loads():
        a(f'v_mbcnt_lo_u32_b32 {vr(KG)}, -1, 0')
        a(f'v_mbcnt_hi_u32_b32 {vr(KG)}, -1, {vr(KG)}')
        a(f'v_lshlrev_b32 {vr(KG)}, 4, {vr(KG)}')
        for n in range(8):
            a(f's_movk_i32 s{sT0}, {2048*n}')
            a(f'buffer_load_dwordx4 {vr(HB+8*n,4)}, {vr(KG)}, {sr(sW,4)}, s{sT0} offen sc0 sc1')
            a(f'buffer_load_dwordx4 {vr(HB+8*n+4,4)}, {vr(KG)}, {sr(sW,4)}, s{sT0} offen offset:1024 sc0 sc1')

    buf = [kf(0, n) for n in range(4)] + [QA + 4*n for n in range(4)]
    SLOTW = {0: [0, 1, 2, 3, 4], 1: [4, 5, 2, 3, 1]}
    def qk(tau, sl):
        Q = QA if tau == 0 else QB
        if sl == 'G':
            return [mfma(S+20, KG+4*ks, Q+4*ks, '0' if ks == 0 else S+20) for ks in range(4)]
        W = SLOTW[tau][sl]
        c0 = BLO if W == tau else BHI if W == tau + 4 else '0'
        return [mfma(S+4*sl, kf(W,ks), Q+4*ks, c0 if ks == 0 else S+4*sl) for ks in range(4)]
    def edge_test(tau, lab):
        a(f's_sub_u32 s{sT0}, s{sQB}, {48 - 16*tau}')
        a(f's_cmp_lt_u32 s{sT0}, 1968')
        a(f's_cbranch_scc1 {lab}')
    def edge_mask(tau, tr):
        a(f'v_mbcnt_lo_u32_b32 {vr(tr)}, -1, 0')
        a(f'v_mbcnt_hi_u32_b32 {vr(tr)}, -1, {vr(tr)}')
        a(f'v_lshrrev_b32 {vr(tr)}, 4, {vr(tr)}')
        a(f's_sub_u32 s{sT0}, s{sQB}, 34')
        a(f's_movk_i32 s{sT1}, 2046')
        a(f'v_lshl_add_u32 {vr(tr)}, {vr(tr)}, 2, s{sT0}')
        a(f'v_mov_b32 {vr(vM)}, 0x{NEG:08x}')
        a('s_nop 3')
        for sl in range(5):
            for r in range(4):
                a(f'v_add_u32 {vr(vT)}, {16*SLOTW[tau][sl]+r}, {vr(tr)}')
                a(f'v_cmp_gt_u32 vcc, s{sT1}, {vr(vT)}')
                a('s_nop 1')
                a(f'v_cndmask_b32 {vr(S+4*sl+r)}, {vr(vM)}, {vr(S+4*sl+r)}, vcc')
        for l in maxtree_l([S+x for x in range(22)], vM): a(l)
    def epi(t, tau=0):
        l = [f'v_mul_f32 {vr(O+4*t+e)}, {vr(O+4*t+e)}, {vr(vT0)}' for e in range(4)]
        l += [f'v_cvt_pk_bf16_f32 {vr(O+4*t)}, {vr(O+4*t)}, {vr(O+4*t+1)}',
              f'v_cvt_pk_bf16_f32 {vr(O+4*t+1)}, {vr(O+4*t+2)}, {vr(O+4*t+3)}',
              f'ds_write_b64 {vr(vSW)}, {vr(O+4*t,2)} offset:{32*t}']
        return l
    def stage_reads(tau=0, R=O):
        return [f'ds_read_b128 {vr(R+4*j,4)}, {vr(vSR)} offset:{4*STGP*j}' for j in range(4)]
    def stores(tau, R=O, extra=0):
        for j in range(4):
            a(f's_waitcnt lgkmcnt({3-j+extra})')
            if tau == 0 and j == 0: a(f's_mov_b64 exec, {sr(sEX,2)}')
            a(f'buffer_store_dwordx4 {vr(R+4*j,4)}, {vr(vOO)}, {sr(sO,4)}, s{sTOFF if tau else sZERO} offen offset:{1024*j} {stpol}')
            if tau == 0 and j == 0: a('s_mov_b64 exec, -1')
    RA = kf(1, 0)
    def late_a():
        for l in stage_reads(0, RA): a(l)
        stores(0, RA)
    def softmax_pv(tau):
        m = vM
        xred(m, vT)
        a(f'v_mul_f32 {vr(m)}, s{sCS}, {vr(m)}')
        set0 = [S+x for x in range(8)]; set1 = [S+8+x for x in range(8)]; set2 = [S+16+x for x in range(6)]
        for l in fma_l(set0, m): a(l)
        f2 = fma_l(set2, m); f1 = fma_l(set1, m)
        for l in exp_l(set0): a(l)
        a(f2[0])
        for l in cvt_l(S, S, 4): a(l)
        a(f2[1])
        a('s_waitcnt lgkmcnt(0)' if tau == 1 else 's_waitcnt lgkmcnt(8)')
        if tau == 1 and apos == 1: late_a()
        ONES, LACC = S+4, S+20
        v2 = f2[2:] + exp_l(set2) + [f'v_mov_b32 {vr(ONES+n)}, 0x3f803f80' for n in range(4)] + cvt_l(S+16, S+16, 3) \
             + [f'v_mov_b32 {vr(S+19)}, 0', f'v_cndmask_b32 {vr(S+18)}, 0, {vr(S+18)}, {sr(sKG0,2)}']
        inter([mfma(X[t], X[t+1], S, '0') for t in range(8)], v2 + f1[:2])
        v1 = f1[2:] + exp_l(set1) + [f'v_mov_b32 {vr(vT0)}, 0'] + cvt_l(S+8, S+8, 4)
        inter([mfma(O+4*t, VG+4*t, S+16, O+4*t) for t in range(8)], v1)
        a(mfma(LACC, ONES, S, '0'))
        a(mfma(LACC, ONES, S+16, LACC))
        a(mfma(LACC, ONES, S+8, LACC))
        if tau == 0:
            a('s_waitcnt lgkmcnt(0)')
        for t in range(8):
            a(mfma(O+4*t, buf[t], S+8, O+4*t))
            if tau == 0: a(vread(VG+4*t, t, 1))
        a(f'v_rcp_f32 {vr(vT0)}, {vr(LACC)}')

    late = []
    for t in range(8):
        late += [vread(buf[t], t, 2), vread(buf[t]+2, t, 3)]
    vgr = [vread(VG+4*t, t, 4) for t in range(8)]
    edge_test(0, 'L_fastA')
    for l in vgr: a(l)
    for sl in ('G', 0, 1, 2, 3, 4):
        for l in qk(0, sl): a(l)
    for l in late: a(l)
    edge_mask(0, vT0)
    a('s_branch L_joinA')
    a.label('L_fastA')
    m = vM
    inter(qk(0, 0) + qk(0, 'G'), vgr, per=1)
    inter(qk(0, 1) + qk(0, 2), late[:8], per=1)
    inter(qk(0, 3), maxtree_l([S+20, S+21, S+0], m) + maxtree_l([S+1, S+2, S+3, S+4, S+5, S+6], m, False), per=1)
    inter(qk(0, 4), maxtree_l([S+7, S+8, S+9, S+10], m, False), per=1)
    for l in late[8:11]: a(l)
    for l in maxtree_l([S+11, S+12], m, False): a(l)
    for l in late[11:13]: a(l)
    for l in maxtree_l([S+13, S+14, S+15], m, False): a(l)
    for l in late[13:]: a(l)
    for l in maxtree_l([S+16, S+17, S+18, S+19], m, False): a(l)
    a.label('L_joinA')
    yprio('s')
    stamp(fine)
    softmax_pv(0)
    stamp(fine)
    ep = []
    for t in range(8): ep += epi(t)
    if apos == 0: ep += stage_reads()
    xb = []
    for t in range(8): xb += [vread(X[t+1], t, 4), vread(X[t+1]+2, t, 5)]
    def qb_wait(n):
        a(f's_waitcnt vmcnt({n+2})')
        if opt.get('otouch'):
            a(f's_and_b32 s{sT0}, s{sWV}, 3')
            a(f's_cmp_eq_u32 s{sT0}, 3')
        else:
            a(f's_cmp_eq_u32 s{sWV}, {RW}')
        a('s_cbranch_scc1 L_qbw')
        a(f's_waitcnt vmcnt({n})')
        a.label('L_qbw')
    if merge == 'late':
        pass
    qb_wait(0)
    stamp()
    qfrag(QB, 1, S+13)
    edge_test(1, 'L_fastB')
    for l in ep: a(l)
    stores(0)
    for sl in (0, 1, 2, 3, 4, 'G'):
        for l in qk(1, sl): a(l)
    for l in xb: a(l)
    edge_mask(1, vT0)
    a('s_branch L_joinB')
    a.label('L_fastB')
    ms = []
    for sl in (0, 1, 2, 3, 4, 'G'): ms += qk(1, sl)
    npre = int(opt.get('npre', 2)); per = int(opt.get('per', 2))
    for l in ep[:7*npre]: a(l)
    a(f's_waitcnt lgkmcnt({npre})')
    inter(ms, ep[7*npre:], per=per)
    for l in maxtree_l([S+x for x in range(15)], vT0): a(l)
    stores(0)
    for l in xb: a(l)
    a(f'v_max3_f32 {vr(vM)}, {vr(vT0)}, {vr(S+15)}, {vr(S+16)}')
    for l in maxtree_l([S+17, S+18, S+19, S+20, S+21], vM, False): a(l)
    a.label('L_joinB')
    yprio('b')
    stamp()
    a(f's_cmp_eq_u32 s{sCMB}, 0')
    a('s_cbranch_scc1 L_nohand')
    hand_loads()
    a.label('L_nohand')
    softmax_pv(1)
    stamp(fine)
    if apos == 2:
        late_a()
    a('s_nop 0')
    if apos == 3:
        for l in stage_reads(0, RA): a(l)
    for t in range(8):
        for l in epi(t, 1): a(l)
    for l in stage_reads(1): a(l)
    if apos == 3:
        stores(0, RA, extra=4+8) if False else None
        for j in range(4):
            if j == 0: a(f's_mov_b64 exec, {sr(sEX,2)}')
            if j == 0: a('s_waitcnt lgkmcnt(4)')
            a(f'buffer_store_dwordx4 {vr(RA+4*j,4)}, {vr(vOO)}, {sr(sO,4)}, s{sZERO} offen offset:{1024*j} {stpol}')
            if j == 0: a('s_mov_b64 exec, -1')
    stores(1)
    stamp()

    a(f's_cmp_eq_u32 s{sCMB}, 0')
    a('s_cbranch_scc1 L_fin')
    a(f's_waitcnt vmcnt({4 if apos == 0 else 8})')
    a(f's_mov_b32 s{sCNT}, 0')
    a(f's_mov_b32 s{sT2}, 0')
    a.label('L_chk')
    a(f's_mov_b32 s{sT3}, s{sT2}')
    for n in range(8):
        a(f'v_cmp_eq_u32 vcc, s{sN}, {vr(HB+8*n+3)}')
        a(f'v_cmp_eq_u32 s[60:61], s{sN}, {vr(HB+8*n+7)}')
        a('s_nop 0')
        a('s_and_b64 vcc, vcc, s[60:61]')
        a('s_cmp_eq_u64 vcc, exec')
        a(f's_cselect_b32 s{sT0}, {1 << n}, 0')
        a(f's_or_b32 s{sT3}, s{sT3}, s{sT0}')
    a(f's_add_u32 s{sCNT}, s{sCNT}, 1')
    a(f's_cmp_eq_u32 s{sT3}, 0xff')
    a('s_cbranch_scc1 L_ready')
    a(f's_cmp_ge_u32 s{sCNT}, 0x40000')
    a('s_cbranch_scc1 L_ready')
    a(f's_lshl_b32 s{sT0}, s{sH}, 3')
    a(f'v_mov_b32 {vr(KG+1)}, s{sT0}')
    a(f'global_load_dword {vr(KG+2)}, {vr(KG+1)}, s[16:17] offset:4 sc0 sc1')
    a('s_waitcnt vmcnt(0)')
    a(f'v_readfirstlane_b32 s{sT2}, {vr(KG+2)}')
    hand_loads()
    a('s_waitcnt vmcnt(0)')
    a('s_branch L_chk')
    a.label('L_ready')
    hog = [[HB+8*n, HB+8*n+1, HB+8*n+2, HB+8*n+4] for n in range(8)]
    hmg = [HB+8*n+5 for n in range(8)]
    combine(hog, hmg, X8)
    a(f'v_rcp_f32 {vr(X8)}, {vr(hmg[0]+1)}')
    a(f'v_lshrrev_b32 {vr(KG)}, 1, {vr(KG)}')
    for e in range(4):
        a(f'v_mul_f32 {vr(hog[0][e])}, {vr(hog[0][e])}, {vr(X8)}')
    a(f'v_cvt_pk_bf16_f32 {vr(X8+2)}, {vr(hog[0][0])}, {vr(hog[0][1])}')
    a(f'v_cvt_pk_bf16_f32 {vr(X8+3)}, {vr(hog[0][2])}, {vr(hog[0][3])}')
    a(f'buffer_store_dwordx2 {vr(X8+2,2)}, {vr(KG)}, {sr(sO,4)}, 0 offen {stpol}')
    a.label('L_fin')
    if stamps:
        fin_[0] = True
        stamp()
        a('s_waitcnt vmcnt(0)')
        stamp()
        if opt.get('clk'):
            a('s_memtime s[98:99]')
            a('s_waitcnt lgkmcnt(0)')
            a('s_sub_u32 s98, s98, s96')
            a(f's_add_u32 s{64+2*nst[0]}, s98, s64')
            nst[0] += 1
        a(f's_lshl_b32 s{sT0}, s2, 3')
        a(f's_add_u32 s{sT0}, s{sT0}, s{sWV}')
        a(f's_lshl_b32 s{sT0}, s{sT0}, 6')
        a(f's_add_u32 s{sT0}, s{sT0}, 0x100000')
        a(f's_add_u32 s{sW}, s18, s{sT0}')
        a(f's_addc_u32 s{sW+1}, s19, 0')
        a(f'v_mov_b32 v1, 0')
        a('s_mov_b64 exec, 1')
        for n in range(min(16, nst[0])):
            a(f'v_mov_b32 v2, s{64+2*n}')
            a(f'buffer_store_dword v2, v1, {sr(sW,4)}, 0 offen offset:{4*n}')
        if 'leak' in opt:
            k = int(opt['leak'])
            a(f's_sub_u32 s{sT0}, s{64+2*k}, s64')
            a(f's_lshl_b32 s{sT0}, s{sT0}, 2')
            if opt.get('leakskew'):
                a.label('L_pre')
                a('s_memrealtime s[100:101]')
                a('s_waitcnt lgkmcnt(0)')
                a(f's_sub_u32 s{sT1}, s100, s64')
                a(f's_cmp_lt_u32 s{sT1}, 3000')
                a('s_cbranch_scc1 L_pre')
                a('s_mov_b64 exec, -1')
                a('v_mbcnt_lo_u32_b32 v3, -1, 0')
                a('v_and_b32 v3, 31, v3')
                a('v_lshlrev_b32 v3, 3, v3')
                a('global_load_dword v4, v3, s[16:17] sc0 sc1')
                a('s_waitcnt vmcnt(0)')
                a('v_readlane_b32 s20, v4, 0')
                a('s_mov_b32 s21, 0'); a('s_mov_b32 s22, 0')
                for n in range(1, 32):
                    a(f'v_readlane_b32 s23, v4, {n}')
                    a('s_nop 0')
                    a('s_sub_i32 s23, s23, s20')
                    a('s_min_i32 s21, s21, s23')
                    a('s_max_i32 s22, s22, s23')
                a(f's_sub_u32 s{sT0}, s22, s21')
                a(f's_min_u32 s{sT0}, s{sT0}, 2000')
                a(f's_lshl_b32 s{sT0}, s{sT0}, 2')
            if opt.get('leakxcc'):
                a('s_getreg_b32 s61, hwreg(HW_REG_XCC_ID, 0, 4)')
                a(f's_bfe_u32 s60, s{sN}, 0x40001')
                a('s_cmp_lg_u32 s60, s61')
                a(f's_cselect_b32 s{sT0}, 2000, 0')
            if opt.get('leakcnt'):
                a(f's_mul_i32 s{sT0}, s{sCNT}, 500')
                a(f's_mul_i32 s{sT0}, s{sT0}, s{sCMB}')
            if 'leakh' in opt:
                lo, hi = opt['leakh'].split(',')
                a(f's_sub_u32 s{sT1}, s{sH}, {lo}')
                a(f's_cmp_lt_u32 s{sT1}, {int(hi)-int(lo)}')
                a(f's_cselect_b32 s{sT0}, s{sT0}, 0')
            if 'leakwg' in opt:
                a(f's_cmp_eq_u32 s2, {opt["leakwg"]}')
                a(f's_cselect_b32 s{sT0}, s{sT0}, 0')
            if 'leakx' in opt:
                a(f's_getreg_b32 s{sT1}, hwreg(HW_REG_XCC_ID, 0, 4)')
                a(f's_lshr_b32 s{sT1}, {opt["leakx"]}, s{sT1}')
                a(f's_bitcmp1_b32 s{sT1}, 0')
                a(f's_cselect_b32 s{sT0}, s{sT0}, 0')
            if 'leakw' in opt:
                a(f's_lshr_b32 s{sT1}, {opt["leakw"]}, s{sWV}')
                a(f's_bitcmp1_b32 s{sT1}, 0')
                a(f's_cselect_b32 s{sT0}, s{sT0}, 0')
            a(f"s_add_u32 s{sT0}, s{sT0}, {opt.get('spin', 5000)}")
            a.label('L_spin')
            a('s_memrealtime s[100:101]')
            a('s_waitcnt lgkmcnt(0)')
            a(f's_sub_u32 s{sT1}, s100, s64')
            a(f's_cmp_lt_u32 s{sT1}, s{sT0}')
            a('s_cbranch_scc1 L_spin')
    a.label('L_end')
    a('s_endpgm')
    if cpf:
        a('.fill 4096, 4, 0xbf800000')

    check(a.lines)
    if stamps: print('stamps', nst[0])
    head = f'''; windowed + global-token attention, B=1 H=32 S=2048 D=128 bf16 (window 32, 2 global tokens)
; @launch grid=(256,1,1) block=(512,1,1) lds=163840
.amdgcn_target "amdgcn-amd-amdhsa--gfx950"
.text
.globl {NAME}
.p2align 8
.type {NAME},@function
{NAME}:
'''
    tail = f'''.section .rodata,"a"
.p2align 6
.amdhsa_kernel {NAME}
  .amdhsa_next_free_vgpr 256
  .amdhsa_next_free_sgpr {102 if stamps else 64}
  .amdhsa_accum_offset 256
  .amdhsa_group_segment_fixed_size 0
  .amdhsa_kernarg_size 64
  .amdhsa_user_sgpr_count 2
  .amdhsa_user_sgpr_kernarg_segment_ptr 1
  .amdhsa_system_sgpr_workgroup_id_x 1
.end_amdhsa_kernel
'''
    return head + a.text() + tail

if __name__ == '__main__':
    out = sys.argv[1]
    opt = {}
    for kv in sys.argv[2:]:
        k, v = kv.split('=', 1)
        opt[k] = {'True': True, 'False': False}.get(v, v.replace('+', ' '))
    open(out, 'w').write(gen(opt))
```

```python
import sys, math, struct
from asmlib import *

NAME = 'standalone__global_local_windowed_global_tokens__prompt_kernel'
def f2u(x): return struct.unpack('<I', struct.pack('<f', x))[0]

def gen(opt):
    a = Asm()
    NEG = 0xFF000000
    CSC = f2u(128 ** -0.5 * math.log2(math.e))
    KOFF, VOFF, SOFF = 0, 73728, 155648
    apos = int(opt.get('apos', 0))
    PART, HALO = SOFF + 3328, 65536
    PARTML, LCNT, LNON = SOFF + 3072, SOFF + 3072 + 128, SOFF + 3072 + 132
    STGP = 272
    ldpol = opt.get('ldpol', '')
    qpol = opt.get('qpol', 'nt')
    stpol = opt.get('stpol', 'nt')
    pk = opt.get('pk', True)
    vlate = opt.get('vlate', False); EW = 3
    N1 = int(opt.get('n1', 12))
    yp = opt.get('yp', '')
    RW = int(opt.get('rw', 3))
    FW = 7
    SW = 5
    CW, CC = int(opt.get('cw', 1)), 3
    merge = opt.get('merge', True)
    sQ, sK, sV, sO, sW = 20, 24, 28, 32, 36
    sWV, sH, sC, sHO, sQ0B = 40, 43, 44, 45, 46
    sT0, sT1, sT2, sT3 = 47, 48, 49, 50
    sBK = 62
    HW = 4
    sCS = 52; sKG0 = 54; sQB = 51; sEX = 56; sCMB = 58; sCNT = 59; sN = 63; sTOFF = 41; sZERO = 3
    VA = 0
    vSW, vSR, vOO, vT0 = 8, 9, 10, 11
    X8 = 12
    KF = 16; KG = 112; QA, QB = 128, 144; VG = 160; O = 192; S = 224
    BLO, BHI = 248, 252
    kf = lambda W, ks: KF + 16 * W + 4 * ks
    X = [O + 4 * n for n in range(8)] + [X8]
    vLANE, vI, vKGp, vDK, vDV, vDQ, vAG, vNEG, vAK = O+16, O+17, O+18, O+19, O+20, O+21, O+22, O+23, O+24
    vAVG, t1, t2, t3 = O+28, O+29, O+30, O+31
    vDQk = VG + 7
    vLV = VG + 15
    vAQ = VG + 11
    vFLAG = VG + 3
    vM, vT = S + 22, S + 23

    stamps = opt.get('stamps', False)
    fine = opt.get('fine', False)
    nst = [0]
    mini = opt.get('mini', False); fin_ = [False]
    def stamp(on=True):
        if mini and nst[0] and not fin_[0]: return
        if stamps and on:
            a(f's_memrealtime s[{64+2*nst[0]}:{65+2*nst[0]}]')
            if nst[0]: a('s_waitcnt lgkmcnt(0)')
            nst[0] += 1
    M16 = 'v_mfma_f32_16x16x32_bf16'
    def mfma(d, x, y, c):
        return f'{M16} {vr(d,4)}, {vr(x,4)}, {vr(y,4)}, {c if isinstance(c,str) else vr(c,4)}'
    def only(w, lab):
        a(f's_cmp_lg_u32 s{sWV}, {w}')
        a(f's_cbranch_scc1 {lab}')

    stamp()
    if opt.get('clk'): a('s_memtime s[96:97]')
    a('s_load_dwordx16 s[4:19], s[0:1], 0')
    a(f'v_readfirstlane_b32 s{sWV}, v0')
    a('s_cmp_ge_u32 s2, 256')
    a('s_cbranch_scc1 L_end')
    a(f'v_lshrrev_b32 {vr(t1)}, 4, v0')
    a(f'v_xor_b32 {vr(vDK)}, {vr(t1)}, v0')
    a(f'v_and_b32 {vr(vDK)}, 15, {vr(vDK)}')
    a(f'v_lshl_add_u32 {vr(vDK)}, {vr(t1)}, 4, {vr(vDK)}')
    a(f's_bfe_u32 s{sC}, s2, 0x30003')
    a(f's_lshl_b32 s{sQ0B}, s{sC}, 16')
    a(f'v_lshl_add_u32 {vr(vDK)}, {vr(vDK)}, 4, s{sQ0B}')
    a('s_and_b32 s41, s2, 7')
    a(f's_lshr_b32 s{sH}, s2, 6')
    a(f's_lshl2_add_u32 s{sH}, s41, s{sH}')
    a(f's_lshl_b32 s{sHO}, s{sH}, 19')
    a(f's_lshl_b32 m0, s{sWV}, 4')
    a(f's_mov_b32 s{sK+2}, 0x80000')
    a(f's_mov_b32 s{sK+3}, 0x20000')
    a(f's_movk_i32 s{sCNT}, 11')
    cpf = opt.get('cpf', True)
    a.label('L_base')
    if cpf is True:
        a(f's_getpc_b64 s[{sEX}:{sEX+1}]')
        a(f'v_mul_u32_u24 v1, 24, v0')
        a(f'global_load_dword {vr(X8)}, v1, s[{sEX}:{sEX+1}]')
    a(f's_cmp_ge_u32 s{sWV}, 256')
    a('s_cbranch_scc1 L_helper')
    a('s_waitcnt lgkmcnt(0)')
    stamp()
    a(f's_add_u32 s{sK}, s6, s{sHO}')
    a(f's_addc_u32 s{sK+1}, s7, 0')
    thr = int(opt.get('thr', 0)); tl = [0]
    if thr: a('s_getreg_b32 s1, hwreg(HW_REG_XCC_ID, 0, 4)')
    def throttle():
        if thr:
            a('s_bitcmp1_b32 s1, 0')
            a(f's_cbranch_scc{opt.get("thpar", 1)} L_th{tl[0]}')
            a(f's_waitcnt vmcnt({thr-1})')
            a.label(f'L_th{tl[0]}')
            tl[0] += 1
    snt = opt.get('snt', 'kv')
    def kpiece(pol):
        a(f'buffer_load_dwordx4 {vr(vDK)}, {sr(sK,4)}, 0 offen {pol} lds')
        a('s_add_u32 m0, m0, 0x1000')
        a(f'v_add_u32 {vr(vDK)}, 0x1000, {vr(vDK)}')
    kpiece(''); kpiece('')
    a.label('L_kloop')
    kpiece('nt')
    a(f's_sub_u32 s{sCNT}, s{sCNT}, 1')
    a('s_cbranch_scc0 L_kloop')
    for i in range(4): kpiece('')
    if 'dup' in opt:
        nd = int(opt['dup'])
        a(f's_sub_u32 m0, m0, {0x1000*18}')
        a(f'v_subrev_u32 {vr(vDK)}, {0x1000*18}, {vr(vDK)}')
        for i in range(nd):
            a(f'buffer_load_dwordx4 {vr(vDK)}, {sr(sK,4)}, 0 offen lds')
            a('s_add_u32 m0, m0, 0x1000')
            a(f'v_add_u32 {vr(vDK)}, 0x1000, {vr(vDK)}')
    stamp(opt.get('postk', False))
    def common():
        a(f's_lshr_b32 s{sWV}, s{sWV}, 6')
        a(f'v_and_b32 {vr(vLANE)}, 63, v0')
        a(f'v_and_b32 {vr(vI)}, 15, v0')
        a(f'v_bfe_u32 {vr(vKGp)}, v0, 4, 2')
        a(f's_lshl_b32 s{sT1}, s{sWV}, 10')
        a(f's_add_u32 s{sT2}, s{sT1}, s{sQ0B}')
        for s_ in (sV, sQ):
            a(f's_mov_b32 s{s_+2}, 0x80000')
            a(f's_mov_b32 s{s_+3}, 0x20000')
        a(f's_mov_b32 s{sW+2}, 0x4000')
        a(f's_mov_b32 s{sW+3}, 0x20000')
        a(f's_and_b32 s{sBK}, s{sWV}, 3')
        a(f's_lshl_b32 s{sBK}, s{sBK}, 1')
        a(f's_cmp_lt_u32 s{sWV}, 4')
        a(f's_addc_u32 s{sBK}, s{sBK}, 0')
        a(f's_cmp_eq_u32 s{sC}, 0')
        a(f's_cselect_b32 s{sT3}, 0x40000000, 0')
        a(f's_lshl_b32 s{sT0}, s{sBK}, 13')
        a(f's_add_u32 s{sT0}, s{sT0}, s{sQ0B}')
        a(f'v_xor_b32 {vr(vDQ)}, {vr(vKGp)}, {vr(vI)}')
        a(f'v_lshlrev_b32 {vr(vDQ)}, 4, {vr(vDQ)}')
        a(f'v_lshl_add_u32 {vr(vDQ)}, {vr(vKGp)}, 8, {vr(vDQ)}')
        a(f'v_add_u32 {vr(vDQ)}, s{sT0}, {vr(vDQ)}')
        a(f'v_lshlrev_b32 {vr(t3)}, 4, {vr(vLANE)}')
        a(f's_lshl_b32 s41, s{sH}, 14')
        a(f's_lshl_b32 s42, s{sC}, 11')
    common()
    a(f's_mov_b32 s{sN}, 0')
    def srds():
        a(f's_add_u32 s{sV}, s8, s{sHO}')
        a(f's_addc_u32 s{sV+1}, s9, 0')
        a(f's_add_u32 s{sQ}, s4, s{sHO}')
        a(f's_addc_u32 s{sQ+1}, s5, 0')
        a(f's_add_u32 s{sW}, s18, s41')
        a(f's_addc_u32 s{sW+1}, s19, 0')
    srds()
    a('s_branch L_v1')
    a.label('L_helper')
    a('s_setprio 3')
    a('s_memrealtime s[60:61]')
    if cpf == 'one':
        a(f's_cmp_lg_u32 s{sWV}, {64*6}')
        a('s_cbranch_scc1 L_nocpf')
        a(f's_getpc_b64 s[{sEX}:{sEX+1}]')
        a(f's_lshl_b32 s{sT0}, s{sC}, 11')
        a(f'v_and_b32 v1, 15, v0')
        a(f'v_lshl_add_u32 v1, v1, 7, s{sT0}')
        a('s_mov_b64 exec, 0xffff')
        a(f'global_load_dword {vr(X8)}, v1, s[{sEX}:{sEX+1}]')
        a('s_mov_b64 exec, -1')
        a.label('L_nocpf')
    common()
    a(f's_mov_b32 m0, {SOFF}')
    a('s_waitcnt lgkmcnt(0)')
    if stamps and not mini:
        nst[0] -= 1
        stamp()
    a(f's_add_u32 s{sK}, s6, s{sHO}')
    a(f's_addc_u32 s{sK+1}, s7, 0')
    srds()
    if stamps and opt.get('postk'):
        nst[0] -= 1
        stamp()
    a(f's_or_b32 s{sN}, s60, 1')
    if opt.get('leakxcc'):
        a('s_getreg_b32 s61, hwreg(HW_REG_XCC_ID, 0, 4)')
        a(f's_and_b32 s{sN}, s60, 0xffffffe0')
        a(f's_lshl1_add_u32 s{sN}, s61, s{sN}')
        a(f's_or_b32 s{sN}, s{sN}, 1')
    only(FW, 'L_noclear')
    a(f's_lshl_b32 s{sT0}, s{sH}, 3')
    a(f'v_mov_b32 {vr(S+4)}, s{sT0}')
    a(f'v_mov_b32 {vr(S+5)}, s{sN}')
    a(f'v_mov_b32 {vr(S+6)}, {LCNT}')
    a(f'v_mov_b32 {vr(S+7)}, 0')
    a('s_mov_b64 exec, 1')
    a(f's_cmp_lg_u32 s{sC}, {CC}')
    a('s_cbranch_scc1 L_nopub')
    a(f'global_store_dword {vr(S+4)}, {vr(S+5)}, s[16:17] sc0 sc1')
    a.label('L_nopub')
    a(f'ds_write_b32 {vr(S+6)}, {vr(S+7)}')
    a('s_mov_b64 exec, -1')
    if opt.get('wstouch'):
        pol = {'ld': '', 'ldsc': 'sc0 sc1'}.get(opt['wstouch'])
        if pol is not None:
            a(f'buffer_load_dwordx4 {vr(S+8,4)}, {vr(t3)}, {sr(sW,4)}, s42 offen {pol}')
            a(f'buffer_load_dwordx4 {vr(S+12,4)}, {vr(t3)}, {sr(sW,4)}, s42 offen offset:1024 {pol}')
        else:
            for n in range(4): a(f'v_mov_b32 {vr(S+8+n)}, 0')
            a(f'buffer_store_dwordx4 {vr(S+8,4)}, {vr(t3)}, {sr(sW,4)}, s42 offen sc0 sc1')
            a(f'buffer_store_dwordx4 {vr(S+8,4)}, {vr(t3)}, {sr(sW,4)}, s42 offen offset:1024 sc0 sc1')
    a.label('L_noclear')
    only(SW, 'L_nosmall')
    for n, srd in enumerate((sK, sQ, sV)):
        if n:
            a(f's_mov_b32 m0, {SOFF + 1024*n}')
            a('s_nop 0')
        a(f'buffer_load_dwordx4 {vr(t3)}, {sr(srd,4)}, 0 offen lds')
    a.label('L_nosmall')
    a('s_setprio 0')
    v2h = int(opt.get('v2h', 0))
    def vaddr(i0):
        a(f's_and_b32 s{sT0}, s{sWV}, 1')
        a(f's_lshl_b32 s{sT0}, s{sT0}, 2')
        a(f'v_add_lshl_u32 {vr(vDV)}, s{sT0}, {vr(vKGp)}, 1')
        a(f'v_xor_b32 {vr(vDV)}, {vr(vDV)}, {vr(vI)}')
        a(f'v_lshlrev_b32 {vr(vDV)}, 4, {vr(vDV)}')
        a(f'v_lshl_add_u32 {vr(vDV)}, {vr(vKGp)}, 8, {vr(vDV)}')
        a(f's_add_u32 s{sT2}, s{sT2}, {(0x1000*i0 - 0x2000) & 0xffffffff}')
        a(f'v_add_u32 {vr(vDV)}, s{sT2}, {vr(vDV)}')
        a(f's_add_u32 m0, s{sT1}, {VOFF + 0x1000*i0}')
    if v2h:
        vaddr(20 - v2h - 1 - 1)
    a('s_branch L_nov1')
    a.label('L_v1')
    V0, VN = (2, 18) if vlate else (0, 20)
    def vpiece(i):
        if i > V0:
            a('s_add_u32 m0, m0, 0x1000')
            a(f'v_add_u32 {vr(vDV)}, 0x1000, {vr(vDV)}')
        if i < 2:
            a(f'v_add_u32 {vr(t1)}, s{sT3}, {vr(vDV)}')
            a(f'buffer_load_dwordx4 {vr(t1)}, {sr(sV,4)}, 0 offen lds')
        else:
            a(f'buffer_load_dwordx4 {vr(vDV)}, {sr(sV,4)}, 0 offen {"nt" if 4 <= i < 16 else ""} lds')
    vaddr(V0)
    a('s_nop 0')
    for i in range(V0, V0 + N1): vpiece(i)
    a.label('L_nov1')
    stamp()

    a(f's_add_u32 s{sO}, s14, s{sHO}')
    a(f's_addc_u32 s{sO+1}, s15, 0')
    a(f's_mov_b32 s{sO+2}, 0x80000')
    a(f's_mov_b32 s{sO+3}, 0x20000')
    a(f's_movk_i32 s{sTOFF}, 0x1000')
    a(f's_mov_b32 s{sZERO}, 0')
    a(f's_mov_b32 s{sCS}, 0x{CSC:08x}')
    a(f's_mov_b32 s{sCS+1}, 0x{CSC:08x}')
    a(f'v_mov_b32 {vr(vNEG)}, 0x{NEG:08x}')
    a(f'v_lshlrev_b32 {vr(t2)}, 2, {vr(vKGp)}')
    a(f'v_cmp_eq_u32 {sr(sKG0,2)}, 0, {vr(vKGp)}')
    for r in range(4):
        a(f'v_add_u32 {vr(t1)}, {r}, {vr(t2)}')
        a(f'v_cmp_ge_u32 vcc, {vr(t1)}, {vr(vI)}')
        a(f'v_cmp_le_u32 s[60:61], {vr(t1)}, {vr(vI)}')
        a('s_nop 0')
        a(f'v_cndmask_b32 {vr(BLO+r)}, {vr(vNEG)}, 0, vcc')
        a(f'v_cndmask_b32 {vr(BHI+r)}, {vr(vNEG)}, 0, s[60:61]')
    a(f's_lshl_b32 s{sT0}, s{sBK}, 13')
    a(f'v_xor_b32 {vr(t1)}, {vr(vKGp)}, {vr(vI)}')
    a(f'v_lshlrev_b32 {vr(t1)}, 4, {vr(t1)}')
    a(f'v_lshl_add_u32 {vr(t1)}, {vr(vI)}, 8, {vr(t1)}')
    a(f'v_add_u32 {vr(vAK)}, s{sT0}, {vr(t1)}')
    for ks in range(1, 4):
        a(f'v_xor_b32 {vr(vAK+ks)}, {64*ks}, {vr(vAK)}')
    a(f'v_mov_b32 {vr(vDK)}, {vr(vAK)}')
    a(f'v_and_b32 {vr(t1)}, 1, {vr(vI)}')
    a(f'v_lshlrev_b32 {vr(vNEG)}, 3, {vr(t1)}')
    a(f'v_lshlrev_b32 {vr(t1)}, 8, {vr(t1)}')
    a(f'v_lshl_add_u32 {vr(t1)}, {vr(vKGp)}, 4, {vr(t1)}')
    a(f'v_add_u32 {vr(vAG)}, {SOFF}, {vr(t1)}')
    a(f'v_bfe_u32 {vr(t1)}, {vr(vLANE)}, 2, 2')
    a(f'v_and_b32 {vr(t2)}, 3, {vr(vLANE)}')
    a(f'v_lshlrev_b32 {vr(t2)}, 3, {vr(t2)}')
    a(f'v_lshl_add_u32 {vr(t1)}, {vr(t1)}, 8, {vr(t2)}')
    a(f'v_add_u32 {vr(vAVG)}, {SOFF+2048}, {vr(t1)}')
    a(f'v_lshrrev_b32 {vr(t1)}, 2, {vr(vLANE)}')
    a(f'v_and_b32 {vr(vT0)}, 7, {vr(t1)}')
    a(f'v_lshl_add_u32 {vr(t2)}, {vr(vT0)}, 5, {vr(t2)}')
    a(f'v_lshl_add_u32 {vr(t2)}, {vr(t1)}, 8, {vr(t2)}')
    a(f's_add_u32 s{sT1}, s{sT0}, {VOFF}')
    a(f'v_add_u32 {vr(VA)}, s{sT1}, {vr(t2)}')
    for t in range(1, 8):
        a(f'v_xor_b32 {vr(VA+t)}, {32*t}, {vr(VA)}')
    a(f's_mov_b32 s{sT1}, s{sT0}')
    xst = merge is False
    if xst:
        a(f'v_lshrrev_b32 {vr(t1)}, 1, {vr(vKGp)}')
        a(f'v_xor_b32 {vr(t1)}, {vr(t1)}, {vr(vI)}')
        a(f'v_lshlrev_b32 {vr(t1)}, 4, {vr(t1)}')
        a(f'v_lshl_add_u32 {vr(t1)}, {vr(vI)}, 8, {vr(t1)}')
        a(f'v_and_b32 {vr(t2)}, 1, {vr(vKGp)}')
        a(f'v_lshl_add_u32 {vr(t1)}, {vr(t2)}, 3, {vr(t1)}')
        a(f'v_add_u32 {vr(vSW)}, s{sT1}, {vr(t1)}')
        a(f'v_xor_b32 {vr(t1)}, {vr(vKGp)}, {vr(vI)}')
        a(f'v_lshlrev_b32 {vr(t1)}, 4, {vr(t1)}')
        a(f'v_lshl_add_u32 {vr(t1)}, {vr(vKGp)}, 8, {vr(t1)}')
        a(f'v_add_u32 {vr(vSR)}, s{sT1}, {vr(t1)}')
    else:
        a(f'v_mul_u32_u24 {vr(t1)}, {STGP}, {vr(vI)}')
        a(f'v_lshl_add_u32 {vr(t1)}, {vr(vKGp)}, 3, {vr(t1)}')
        a(f'v_add_u32 {vr(vSW)}, s{sT1}, {vr(t1)}')
        a(f'v_mul_u32_u24 {vr(t1)}, {STGP}, {vr(vKGp)}')
        a(f'v_lshl_add_u32 {vr(t1)}, {vr(vI)}, 4, {vr(t1)}')
        a(f'v_add_u32 {vr(vSR)}, s{sT1}, {vr(t1)}')
    a(f's_add_u32 s{sT0}, s{sT0}, s{sQ0B}')
    a(f'v_add_u32 {vr(vOO)}, s{sT0}, {vr(t3)}')
    a(f's_lshr_b32 s{sQB}, s{sT0}, 8')
    a(f's_cmp_eq_u32 s{sQB}, 0')
    a(f's_cselect_b32 s{sEX}, 0, -1')
    a(f's_mov_b32 s{sEX+1}, -1')
    a(f's_cmp_eq_u32 s{sQB}, {256*CC+32*(2*CW+1)}')
    a(f's_cselect_b32 s{sCMB}, 1, 0')
    a(f's_lshl_b32 s{sT0}, s{sWV}, 4')
    a(f's_add_u32 s{sT0}, s{sT0}, {PARTML}')
    a(f'v_add_u32 {vr(vNEG)}, s{sT0}, {vr(vNEG)}')

    spf = [int(x) for x in opt.get('spf', '0,0').split(',')]
    spstep = int(opt.get('spstep', 128)); sptile = opt.get('sptile', 'B')
    def sp_offsets():
        o = []
        for half in ([1, 0] if sptile == 'B' else [0, 1]):
            for blk in (1, 0):
                o += [8192*blk + 4096*half + x for x in range(0, 4096, spstep)]
        return o
    spo = sp_offsets()
    def sprefetch(n):
        for _ in range(n):
            if spo: a(f's_load_dword s61, s[10:11], {spo.pop(0)}')
    if sum(spf):
        a(f's_cmp_lt_u32 s{sWV}, 4')
        a('s_cbranch_scc1 L_nosp')
        a(f's_lshl_b32 s{sT0}, s{sBK}, 13')
        a(f's_add_u32 s{sT0}, s{sT0}, s{sQ0B}')
        a(f's_add_u32 s10, s{sQ}, s{sT0}')
        a(f's_addc_u32 s11, s{sQ+1}, 0')
        sprefetch(spf[0])
        a.label('L_nosp')
    a(f's_waitcnt vmcnt({N1}) lgkmcnt(0)')
    a(f's_cmp_lt_u32 s{sWV}, 4')
    a('s_cbranch_scc1 L_kw')
    a(f's_cmp_eq_u32 s{sWV}, {FW}')
    a('s_cbranch_scc1 L_kw')
    a('s_waitcnt vmcnt(0)')
    a.label('L_kw')
    stamp(opt.get('prek', False))
    a('s_barrier')
    stamp()
    kfirst = opt.get('kfirst', False)
    NK = int(opt.get('nk', 0))
    a(f's_cmp_ge_u32 s{sWV}, 4')
    a('s_cbranch_scc1 L_nov2')
    for i in range(V0 + N1, VN): vpiece(i)
    if v2h:
        a('s_branch L_nov2b')
    a.label('L_nov2')
    if v2h:
        a(f's_setprio {opt.get("v2p", 3)}')
        for i in range(20 - v2h, 20): vpiece(i)
        a('s_setprio 0')
        a.label('L_nov2b')
    stamp(fine)
    QG = O
    for W in (2, 3, 4, 5):
        for ks in range(4):
            a(f'ds_read_b128 {vr(kf(W,ks),4)}, {vr(vAK+ks)} offset:{4096*(W-2)}')
    for ks in range(4):
        a(f'ds_read_b128 {vr(KG+4*ks,4)}, {vr(vAG)} offset:{64*ks}')
    for t in range(8):
        a(f'ds_read_b64_tr_b16 {vr(VG+4*t+2,2)}, {vr(vAVG)} offset:{32*t}')
    a(f's_cmp_eq_u32 s{sWV}, {HW}')
    a('s_cbranch_scc1 L_k01done')
    for ks in range(4):
        a(f'v_subrev_u32 {vr(vAK+ks)}, 0x2000, {vr(vAK+ks)}')
    for W in (0, 1):
        for ks in range(4):
            a(f'ds_read_b128 {vr(kf(W,ks),4)}, {vr(vAK+ks)} offset:{4096*W}')
    a.label('L_k01done')
    def dma_tile(srd, src, tmp, tile, m0expr):
        a(m0expr)
        for j in range(1, 4):
            a(f'v_xor_b32 {vr(tmp+j-1)}, {64*j}, {vr(src)}')
        for j in range(4):
            a(f'buffer_load_dwordx4 {vr(src if j == 0 else tmp+j-1)}, {sr(srd,4)}, s{sTOFF if tile else sZERO} offen offset:{1024*j} {qpol if srd == sQ else ""} lds')
    def vhalo(src, tmp, m0v, soff):
        for half in range(2):
            a(f's_mov_b32 m0, {m0v + 4096*half}')
            for j in range(4):
                a(f'v_xor_b32 {vr(tmp)}, {128*(j&1)}, {vr(src)}')
                a(f'v_add_u32 {vr(tmp)}, s{soff}, {vr(tmp)}')
                a(f'buffer_load_dwordx4 {vr(tmp)}, {sr(sV,4)}, s{sTOFF if half else sZERO} offen offset:{1024*j} lds')
    def lane_v(dv):
        a(f'v_lshlrev_b32 {vr(dv)}, 1, {vr(vKGp)}')
        a(f'v_xor_b32 {vr(dv)}, {vr(dv)}, {vr(vI)}')
        a(f'v_lshlrev_b32 {vr(dv)}, 4, {vr(dv)}')
        a(f'v_lshl_add_u32 {vr(dv)}, {vr(vKGp)}, 8, {vr(dv)}')
    qbearly = opt.get('qbearly', False)
    def issue_qa(loader=False):
        a('s_waitcnt lgkmcnt(0)')
        a('s_barrier')
        if loader and kfirst:
            for i in range(N1 + NK, 20): vpiece(i)
        a(f'v_mov_b32 {vr(vAQ)}, {vr(vDK)}')
        dma_tile(sQ, vDQ, t1, 0, f's_lshl_b32 m0, s{sBK}, 13')
    def issue_qb(src, tmp):
        a(f's_lshl_b32 s{sT0}, s{sBK}, 13')
        dma_tile(sQ, src, tmp, 1, f's_add_u32 m0, s{sT0}, 0x1000')
    NQ = 8 if qbearly else 4

    def xred(m, t, op='v_max_f32'):
        a(f'v_mov_b32 {vr(t)}, {vr(m)}')
        a.nop(2)
        a(f'v_permlane16_swap_b32 {vr(m)}, {vr(t)}')
        a(f'{op} {vr(m)}, {vr(m)}, {vr(t)}')
        a(f'v_mov_b32 {vr(t)}, {vr(m)}')
        a.nop(2)
        a(f'v_permlane32_swap_b32 {vr(m)}, {vr(t)}')
        a(f'{op} {vr(m)}, {vr(m)}, {vr(t)}')
    def maxtree_l(vals, m, first=True):
        out = []; rest = list(vals)
        if first:
            out.append(f'v_max3_f32 {vr(m)}, {vr(rest[0])}, {vr(rest[1])}, {vr(rest[2])}'); rest = rest[3:]
        while len(rest) >= 2:
            out.append(f'v_max3_f32 {vr(m)}, {vr(m)}, {vr(rest[0])}, {vr(rest[1])}'); rest = rest[2:]
        if rest:
            out.append(f'v_max_f32 {vr(m)}, {vr(m)}, {vr(rest[0])}')
        return out
    def fma_l(vals, mc):
        if pk:
            return [f'v_pk_fma_f32 {vr(vals[n],2)}, {vr(vals[n],2)}, {sr(sCS,2)}, {vr(mc,2)} op_sel_hi:[1,1,0] neg_lo:[0,0,1] neg_hi:[0,0,1]' for n in range(0, len(vals), 2)]
        return [f'v_fma_f32 {vr(v)}, {vr(v)}, s{sCS}, -{vr(mc)}' for v in vals]
    exp_l = lambda vals: [f'v_exp_f32 {vr(v)}, {vr(v)}' for v in vals]
    cvt_l = lambda dst, src, n: [f'v_cvt_pk_bf16_f32 {vr(dst+k)}, {vr(src+2*k)}, {vr(src+2*k+1)}' for k in range(n)]

    def vread(dst, t, W):
        return f'ds_read_b64_tr_b16 {vr(dst,2)}, {vr(VA+t)} offset:{4096*W}'
    a(f's_cmp_lt_u32 s{sWV}, 4')
    a('s_cbranch_scc1 L_gk')
    sprefetch(spf[1])
    only(FW, 'L_notag')
    a('s_setprio 3')
    a(f's_lshl_b32 s{sT0}, s{sH}, 3')
    a(f'v_mov_b32 {vr(S+4)}, s{sT0}')
    a(f'v_mov_b32 {vr(S+5)}, s{sN}')
    a(f'v_mov_b32 {vr(S+6)}, {LCNT}')
    a(f'global_load_dword {vr(S+7)}, {vr(S+4)}, s[16:17]')
    a('s_setprio 0')
    issue_qa()
    if qbearly: issue_qb(vDQ, t1)
    a(f's_waitcnt vmcnt({NQ})')
    if opt.get('forcefb'): a(f'v_mov_b32 {vr(S+7)}, 0')
    a(f's_cmp_eq_u32 s{sC}, {CC}')
    a('s_cselect_b64 vcc, -1, 0')
    a(f'v_cndmask_b32 {vr(S+7)}, {vr(S+7)}, {vr(S+5)}, vcc')
    a('s_mov_b64 exec, 1')
    a(f'ds_write_b32 {vr(S+6)}, {vr(S+7)} offset:4')
    a('s_mov_b64 exec, -1')
    a('s_branch L_tagdone')
    a.label('L_notag')
    cpf2 = opt.get('cpf2', '')
    def retouch(tag, lanes, stride):
        only(6, f'L_rt{tag}')
        a('s_setprio 3')
        a('s_getpc_b64 s[10:11]')
        a(f's_mul_i32 s{sT0}, s{sC}, {stride}')
        a(f'v_lshl_add_u32 {vr(S+8)}, {vr(vLANE)}, 7, s{sT0}')
        a(f's_mov_b32 m0, {SOFF + 7424}')
        a(f's_mov_b64 exec, {hex((1 << lanes) - 1)}')
        a(f'global_load_lds_dword {vr(S+8)}, s[10:11]')
        a('s_mov_b64 exec, -1')
        a('s_setprio 0')
        a.label(f'L_rt{tag}')
    if 'a' in cpf2: retouch('a', 12, 1536)
    issue_qa()
    if 'b' in cpf2: retouch('b', 12, 1536)
    only(HW, 'L_nohalo')
    a(f's_sub_u32 s{sT0}, s{sT3}, 0x2000')
    a(f'v_add_u32 {vr(S)}, s{sT0}, {vr(vDQ)}')
    dma_tile(sK, S, t1, 0, f's_mov_b32 m0, {HALO}')
    dma_tile(sK, S, t1, 1, f's_mov_b32 m0, {HALO+4096}')
    if vlate:
        lane_v(t2)
        a(f's_add_u32 s{sT0}, s{sT0}, s{sQ0B}')
        vhalo(t2, t1, VOFF, sT0)
    a.label('L_nohalo')
    if qbearly: issue_qb(vDQ, t1)
    a.label('L_tagdone')
    a('s_waitcnt lgkmcnt(0)')
    if not qbearly: a(f'v_mov_b32 {vr(vDQk)}, {vr(vDQ)}')
    stamp(fine)
    a('s_barrier')
    if vlate:
        a(f's_cmp_eq_u32 s{sWV}, {HW}')
        a('s_cbranch_scc1 L_gdone')
    for t in range(8):
        a(vread(X[t+1], t, 0)); a(vread(X[t+1]+2, t, 1))
    a('s_branch L_gdone')
    a.label('L_gk')
    for ks in range(4):
        a(f'ds_read_b128 {vr(QG+4*ks,4)}, {vr(vAG)} offset:{1024+64*ks}')
    issue_qa(True)
    for T in range(4):
        for ks in range(4):
            a(mfma(S+4*T, kf(T,ks), QG+4*ks, '0' if ks == 0 else S+4*T))
    if not qbearly: a(f'v_mov_b32 {vr(vDQk)}, {vr(vDQ)}')
    lane_v(vLV)
    a.nop(4)
    for l in maxtree_l([S+x for x in range(16)], vM): a(l)
    xred(vM, vT)
    a(f'v_mul_f32 {vr(vM)}, s{sCS}, {vr(vM)}')
    for l in fma_l([S+x for x in range(16)], vM): a(l)
    for l in exp_l([S+x for x in range(16)]): a(l)
    a.nop(1)
    a(f'v_add_f32 {vr(vT)}, {vr(S)}, {vr(S+1)}')
    for x in range(2, 16):
        a(f'v_add_f32 {vr(vT)}, {vr(vT)}, {vr(S+x)}')
    for l in cvt_l(S, S, 8): a(l)
    xred(vT, vT0, 'v_add_f32')
    a(f'ds_write_b64 {vr(vNEG)}, {vr(vM,2)}')
    a(f'v_mbcnt_lo_u32_b32 {vr(vT0)}, -1, 0')
    a(f's_lshl_b32 s{sT0}, s{sWV}, 10')
    a(f's_add_u32 s{sT0}, s{sT0}, {PART}')
    a(f'v_lshl_add_u32 {vr(vT0)}, {vr(vT0)}, 3, s{sT0}')
    if qbearly: issue_qb(vDQ, t1)
    if stamps and fine:
        nst[0] -= 1
        stamp()
    a(f's_waitcnt vmcnt({NQ}) lgkmcnt(0)')
    a('s_barrier')
    gb = [QB + 4*n for n in range(4)] + [S + 8 + 4*n for n in range(4)]
    for t in range(8):
        a(vread(gb[t], t, 2)); a(vread(gb[t]+2, t, 3))
    for t in range(8):
        a('s_waitcnt lgkmcnt(14)')
        a(mfma(gb[t], S+4, gb[t], '0'))
        a(vread(X[t+1], t, 0)); a(vread(X[t+1]+2, t, 1))
    for t in range(8):
        a(f's_waitcnt lgkmcnt({14-2*t})')
        a(mfma(gb[t], S, X[t+1], gb[t]))
    a('s_mov_b64 exec, 1')
    a(f'v_mov_b32 {vr(S)}, {LCNT}')
    a(f'v_mov_b32 {vr(S+1)}, 1')
    a('s_mov_b64 exec, 0xffff')
    for t in range(8):
        a(f'ds_write_b64 {vr(vT0)}, {vr(gb[t],2)} offset:{128*t}')
    a('s_mov_b64 exec, 1')
    a(f'ds_add_u32 {vr(S)}, {vr(S+1)}')
    a('s_mov_b64 exec, -1')
    a.label('L_gdone')
    stamp()

    emit = lambda ls: [a(l) for l in ls]
    def combine(og, mg, tm):
        NP = len(og)
        emit(maxtree_l([mg[n] for n in range(NP)], tm))
        for n in range(NP):
            a(f'v_sub_f32 {vr(mg[n])}, {vr(mg[n])}, {vr(tm)}')
        for n in range(NP):
            a(f'v_exp_f32 {vr(mg[n])}, {vr(mg[n])}')
        a.nop(1)
        for e in range(4):
            a(f'v_mul_f32 {vr(og[0][e])}, {vr(og[0][e])}, {vr(mg[0])}')
        a(f'v_mul_f32 {vr(mg[0]+1)}, {vr(mg[0]+1)}, {vr(mg[0])}')
        for n in range(1, NP):
            for e in range(4):
                a(f'v_fmac_f32 {vr(og[0][e])}, {vr(og[n][e])}, {vr(mg[n])}')
            a(f'v_fmac_f32 {vr(mg[0]+1)}, {vr(mg[n]+1)}, {vr(mg[n])}')

    if vlate:
        only(EW, 'L_norh')
        a(f's_add_u32 s{sT0}, s{sQ0B}, 0x10000')
        vhalo(vLV, S+2, VOFF + 73728, sT0)
        a.label('L_norh')
    if not qbearly:
        issue_qb(vDQk, S+2)
        a(f'v_mov_b32 {vr(vDQk)}, 0')
    a(f's_cmp_eq_u32 s{sWV}, {RW}')
    a('s_cbranch_scc1 L_reduce')
    a(f's_cmp_eq_u32 s{sCMB}, 0')
    a('s_cbranch_scc1 L_noflag')
    a(f'v_mov_b32 {vr(vT0)}, {LNON}')
    a(f'ds_read_b32 {vr(vT0)}, {vr(vT0)}')
    a('s_waitcnt lgkmcnt(0)')
    a(f'v_readfirstlane_b32 s{sN}, {vr(vT0)}')
    a.label('L_noflag')
    a('s_waitcnt vmcnt(4)')
    a('s_branch L_tileA')
    a.label('L_reduce')
    R0 = S
    a(f'v_mbcnt_lo_u32_b32 {vr(R0)}, -1, 0')
    a(f'v_mbcnt_hi_u32_b32 {vr(R0)}, -1, {vr(R0)}')
    a(f'v_lshrrev_b32 {vr(R0+1)}, 5, {vr(R0)}')
    a(f'v_and_b32 {vr(R0+3)}, 31, {vr(R0)}')
    a(f'v_lshlrev_b32 {vr(R0+3)}, 5, {vr(R0+3)}')
    a(f'v_lshl_add_u32 {vr(R0+3)}, {vr(R0+1)}, 2, {vr(R0+3)}')
    a(f'v_add_u32 {vr(R0+3)}, {PART}, {vr(R0+3)}')
    a(f'v_lshlrev_b32 {vr(R0+1)}, 3, {vr(R0+1)}')
    a(f'v_add_u32 {vr(R0+1)}, {PARTML}, {vr(R0+1)}')
    a(f'v_lshlrev_b32 {vr(R0)}, 4, {vr(R0)}')
    a(f'v_mov_b32 {vr(R0+2)}, {LCNT}')
    a(f's_mov_b32 s{sCNT}, 0')
    a.label('L_lspin')
    a(f'ds_read_b64 {vr(S+4,2)}, {vr(R0+2)}')
    a(f's_add_u32 s{sCNT}, s{sCNT}, 1')
    a('s_waitcnt lgkmcnt(0)')
    a(f'v_readfirstlane_b32 s{sT0}, {vr(S+4)}')
    a(f'v_readfirstlane_b32 s{sN}, {vr(S+5)}')
    a(f's_cmp_ge_u32 s{sCNT}, 0x100000')
    a('s_cbranch_scc1 L_lok')
    a(f's_cmp_lt_u32 s{sT0}, 4')
    a('s_cbranch_scc1 L_lspin')
    a.label('L_lok')
    mg = [S+4, S+6, O, O+2]
    G0 = S + 8
    og = [[G0+4*n+e for e in range(4)] for n in range(4)]
    for n in range(4):
        a(f'ds_read_b64 {vr(mg[n],2)}, {vr(R0+1)} offset:{16*n}')
    for n in range(4):
        if n: a(f'v_add_u32 {vr(R0+3)}, 1024, {vr(R0+3)}')
        a(f'ds_read2_b32 {vr(G0+4*n,2)}, {vr(R0+3)} offset0:0 offset1:2')
        a(f'ds_read2_b32 {vr(G0+4*n+2,2)}, {vr(R0+3)} offset0:4 offset1:6')
    a('s_waitcnt lgkmcnt(0)')
    combine(og, mg, R0+1)
    a(f'v_mov_b32 {vr(G0+4)}, {vr(G0+3)}')
    a(f'v_mov_b32 {vr(G0+5)}, {vr(R0+1)}')
    a(f'v_mov_b32 {vr(G0+6)}, {vr(mg[0]+1)}')
    a(f'v_mov_b32 {vr(G0+7)}, s{sN}')
    a(f'v_mov_b32 {vr(G0+3)}, s{sN}')
    a(f'buffer_store_dwordx4 {vr(G0+4,4)}, {vr(R0)}, {sr(sW,4)}, s42 offen offset:1024 sc0 sc1')
    a(f'buffer_store_dwordx4 {vr(G0,4)}, {vr(R0)}, {sr(sW,4)}, s42 offen sc0 sc1')
    a(f's_cmp_lg_u32 s{sN}, 0')
    a('s_cbranch_scc1 L_tagged')
    a('s_waitcnt vmcnt(0)')
    a(f's_lshl_b32 s{sT0}, s{sH}, 3')
    a(f's_lshl_b32 s{sT1}, 1, s{sC}')
    a(f'v_mov_b32 {vr(R0)}, s{sT0}')
    a(f'v_mov_b32 {vr(R0+1)}, s{sT1}')
    a('s_mov_b64 exec, 1')
    a(f'global_atomic_or {vr(R0)}, {vr(R0+1)}, s[16:17] offset:4 sc1')
    a('s_mov_b64 exec, -1')
    a.label('L_tagged')
    a('s_waitcnt vmcnt(6)')
    a.label('L_tileA')
    def qfrag(Q, tile, tmp):
        for ks in range(1, 4):
            a(f'v_xor_b32 {vr(tmp+ks-1)}, {64*ks}, {vr(vAQ)}')
        for ks in range(4):
            a(f'ds_read_b128 {vr(Q+4*ks,4)}, {vr(vAQ if ks == 0 else tmp+ks-1)} offset:{4096*tile}')
    qfrag(QA, 0, S+13)
    only(HW, 'L_nohalo2')
    a(f'v_add_u32 {vr(S+12)}, {HALO}, {vr(vAQ)}')
    for ks in range(1, 4):
        a(f'v_add_u32 {vr(S+12+ks)}, {HALO}, {vr(S+12+ks)}')
    for W in (0, 1):
        for ks in range(4):
            a(f'ds_read_b128 {vr(kf(W,ks),4)}, {vr(S+12+ks)} offset:{4096*W}')
    if vlate:
        for t in range(8):
            a(vread(X[t+1], t, 0)); a(vread(X[t+1]+2, t, 1))
    a.label('L_nohalo2')
    a('s_waitcnt lgkmcnt(0)')
    def yprio(tag):
        if yp == tag:
            a(f's_cmp_lt_u32 s{sWV}, 4')
            a(f's_cbranch_scc1 L_yp{tag}')
            a('s_setprio 1')
            a.label(f'L_yp{tag}')
    yprio('a')
    stamp()

    def inter(ms, vs, per=2):
        vs = list(vs)
        for m in ms:
            a(m)
            for _ in range(per):
                if vs: a(vs.pop(0))
        for v in vs: a(v)

    HB = kf(2, 0)
    def hand_loads():
        a(f'v_mbcnt_lo_u32_b32 {vr(KG)}, -1, 0')
        a(f'v_mbcnt_hi_u32_b32 {vr(KG)}, -1, {vr(KG)}')
        a(f'v_lshlrev_b32 {vr(KG)}, 4, {vr(KG)}')
        for n in range(8):
            a(f's_movk_i32 s{sT0}, {2048*n}')
            a(f'buffer_load_dwordx4 {vr(HB+8*n,4)}, {vr(KG)}, {sr(sW,4)}, s{sT0} offen sc0 sc1')
            a(f'buffer_load_dwordx4 {vr(HB+8*n+4,4)}, {vr(KG)}, {sr(sW,4)}, s{sT0} offen offset:1024 sc0 sc1')

    buf = [kf(0, n) for n in range(4)] + [QA + 4*n for n in range(4)]
    SLOTW = {0: [0, 1, 2, 3, 4], 1: [4, 5, 2, 3, 1]}
    def qk(tau, sl):
        Q = QA if tau == 0 else QB
        if sl == 'G':
            return [mfma(S+20, KG+4*ks, Q+4*ks, '0' if ks == 0 else S+20) for ks in range(4)]
        W = SLOTW[tau][sl]
        c0 = BLO if W == tau else BHI if W == tau + 4 else '0'
        return [mfma(S+4*sl, kf(W,ks), Q+4*ks, c0 if ks == 0 else S+4*sl) for ks in range(4)]
    def edge_test(tau, lab):
        a(f's_sub_u32 s{sT0}, s{sQB}, {48 - 16*tau}')
        a(f's_cmp_lt_u32 s{sT0}, 1968')
        a(f's_cbranch_scc1 {lab}')
    def edge_mask(tau, tr):
        a(f'v_mbcnt_lo_u32_b32 {vr(tr)}, -1, 0')
        a(f'v_mbcnt_hi_u32_b32 {vr(tr)}, -1, {vr(tr)}')
        a(f'v_lshrrev_b32 {vr(tr)}, 4, {vr(tr)}')
        a(f's_sub_u32 s{sT0}, s{sQB}, 34')
        a(f's_movk_i32 s{sT1}, 2046')
        a(f'v_lshl_add_u32 {vr(tr)}, {vr(tr)}, 2, s{sT0}')
        a(f'v_mov_b32 {vr(vM)}, 0x{NEG:08x}')
        a('s_nop 3')
        for sl in range(5):
            for r in range(4):
                a(f'v_add_u32 {vr(vT)}, {16*SLOTW[tau][sl]+r}, {vr(tr)}')
                a(f'v_cmp_gt_u32 vcc, s{sT1}, {vr(vT)}')
                a('s_nop 1')
                a(f'v_cndmask_b32 {vr(S+4*sl+r)}, {vr(vM)}, {vr(S+4*sl+r)}, vcc')
        for l in maxtree_l([S+x for x in range(22)], vM): a(l)
    def epi(t, tau=0):
        l = [f'v_mul_f32 {vr(O+4*t+e)}, {vr(O+4*t+e)}, {vr(vT0)}' for e in range(4)]
        l += [f'v_cvt_pk_bf16_f32 {vr(O+4*t)}, {vr(O+4*t)}, {vr(O+4*t+1)}',
              f'v_cvt_pk_bf16_f32 {vr(O+4*t+1)}, {vr(O+4*t+2)}, {vr(O+4*t+3)}',
              f'ds_write_b64 {vr(vSW)}, {vr(O+4*t,2)} offset:{32*t}']
        if xst:
            l[-1] = f'ds_write_b64 {vr(S+t if t else vSW)}, {vr(O+4*t,2)} offset:{4096*tau}'
            if t: l = [f'v_xor_b32 {vr(S+t)}, {32*t}, {vr(vSW)}'] + l
        return l
    def stage_reads(tau=0, R=O):
        if xst:
            return [f'v_xor_b32 {vr(S+8+j)}, {64*j}, {vr(vSR)}' for j in range(1, 4)] + \
                   [f'ds_read_b128 {vr(R+4*j,4)}, {vr(S+8+j if j else vSR)} offset:{1024*j + 4096*tau}' for j in range(4)]
        return [f'ds_read_b128 {vr(R+4*j,4)}, {vr(vSR)} offset:{4*STGP*j}' for j in range(4)]
    def stores(tau, R=O, extra=0):
        for j in range(4):
            a(f's_waitcnt lgkmcnt({3-j+extra})')
            if tau == 0 and j == 0: a(f's_mov_b64 exec, {sr(sEX,2)}')
            a(f'buffer_store_dwordx4 {vr(R+4*j,4)}, {vr(vOO)}, {sr(sO,4)}, s{sTOFF if tau else sZERO} offen offset:{1024*j} {stpol}')
            if tau == 0 and j == 0: a('s_mov_b64 exec, -1')
    RA = kf(1, 0)
    def late_a():
        for l in stage_reads(0, RA): a(l)
        stores(0, RA)
    def softmax_pv(tau):
        m = vM
        xred(m, vT)
        a(f'v_mul_f32 {vr(m)}, s{sCS}, {vr(m)}')
        set0 = [S+x for x in range(8)]; set1 = [S+8+x for x in range(8)]; set2 = [S+16+x for x in range(6)]
        for l in fma_l(set0, m): a(l)
        f2 = fma_l(set2, m); f1 = fma_l(set1, m)
        for l in exp_l(set0): a(l)
        a(f2[0])
        for l in cvt_l(S, S, 4): a(l)
        a(f2[1])
        a('s_waitcnt lgkmcnt(0)' if tau == 1 else 's_waitcnt lgkmcnt(8)')
        if tau == 1 and apos == 1: late_a()
        ONES, LACC = S+4, S+20
        v2 = f2[2:] + exp_l(set2) + [f'v_mov_b32 {vr(ONES+n)}, 0x3f803f80' for n in range(4)] + cvt_l(S+16, S+16, 3) \
             + [f'v_mov_b32 {vr(S+19)}, 0', f'v_cndmask_b32 {vr(S+18)}, 0, {vr(S+18)}, {sr(sKG0,2)}']
        inter([mfma(X[t], X[t+1], S, '0') for t in range(8)], v2 + f1[:2])
        if tau == 1 and apos == 4: late_a()
        v1 = f1[2:] + exp_l(set1) + [f'v_mov_b32 {vr(vT0)}, 0'] + cvt_l(S+8, S+8, 4)
        inter([mfma(O+4*t, VG+4*t, S+16, O+4*t) for t in range(8)], v1)
        a(mfma(LACC, ONES, S, '0'))
        a(mfma(LACC, ONES, S+16, LACC))
        a(mfma(LACC, ONES, S+8, LACC))
        if tau == 0:
            a('s_waitcnt lgkmcnt(0)')
        for t in range(8):
            a(mfma(O+4*t, buf[t], S+8, O+4*t))
            if tau == 0: a(vread(VG+4*t, t, 1))
        a(f'v_rcp_f32 {vr(vT0)}, {vr(LACC)}')

    late = []
    for t in range(8):
        late += [vread(buf[t], t, 2), vread(buf[t]+2, t, 3)]
    vgr = [vread(VG+4*t, t, 4) for t in range(8)]
    edge_test(0, 'L_fastA')
    for l in vgr: a(l)
    for sl in ('G', 0, 1, 2, 3, 4):
        for l in qk(0, sl): a(l)
    for l in late: a(l)
    edge_mask(0, vT0)
    a('s_branch L_joinA')
    a.label('L_fastA')
    m = vM
    inter(qk(0, 0) + qk(0, 'G'), vgr, per=1)
    inter(qk(0, 1) + qk(0, 2), late[:8], per=1)
    inter(qk(0, 3), maxtree_l([S+20, S+21, S+0], m) + maxtree_l([S+1, S+2, S+3, S+4, S+5, S+6], m, False), per=1)
    inter(qk(0, 4), maxtree_l([S+7, S+8, S+9, S+10], m, False), per=1)
    for l in late[8:11]: a(l)
    for l in maxtree_l([S+11, S+12], m, False): a(l)
    for l in late[11:13]: a(l)
    for l in maxtree_l([S+13, S+14, S+15], m, False): a(l)
    for l in late[13:]: a(l)
    for l in maxtree_l([S+16, S+17, S+18, S+19], m, False): a(l)
    a.label('L_joinA')
    yprio('s')
    stamp(fine)
    softmax_pv(0)
    stamp(fine)
    ep = []
    for t in range(8): ep += epi(t)
    if apos == 0: ep += stage_reads()
    xb = []
    for t in range(8): xb += [vread(X[t+1], t, 4), vread(X[t+1]+2, t, 5)]
    def qb_wait(n):
        a(f's_waitcnt vmcnt({n+2})')
        if opt.get('otouch'):
            a(f's_and_b32 s{sT0}, s{sWV}, 3')
            a(f's_cmp_eq_u32 s{sT0}, 3')
        else:
            a(f's_cmp_eq_u32 s{sWV}, {RW}')
        a('s_cbranch_scc1 L_qbw')
        a(f's_waitcnt vmcnt({n})')
        a.label('L_qbw')
    if merge is False:
        a('s_nop 0')
        for l in ep: a(l)
        stores(0)
        for l in xb: a(l)
        qb_wait(4)
        stamp()
        qfrag(QB, 1, S+13)
        a('s_waitcnt lgkmcnt(0)')
        edge_test(1, 'L_fastB')
        for sl in ('G', 0, 1, 2, 3, 4):
            for l in qk(1, sl): a(l)
        edge_mask(1, vT0)
        a('s_branch L_joinB')
        a.label('L_fastB')
        for sl in ('G', 0, 1, 2):
            for l in qk(1, sl): a(l)
        inter(qk(1, 3), maxtree_l([S+20, S+21, S+0], m) + maxtree_l([S+1, S+2], m, False), per=1)
        inter(qk(1, 4), maxtree_l([S+3, S+4, S+5, S+6, S+7, S+8], m, False), per=1)
        a.nop(1)
        for l in maxtree_l([S+9, S+10, S+11, S+12], m, False): a(l)
        a.nop(1)
        for l in maxtree_l([S+13, S+14, S+15], m, False): a(l)
        a.nop(2)
        for l in maxtree_l([S+16, S+17, S+18, S+19], m, False): a(l)
    else:
        qb_wait(0)
        stamp()
        qfrag(QB, 1, S+13)
        edge_test(1, 'L_fastB')
        for l in ep: a(l)
        if apos == 0: stores(0)
        else: a('s_waitcnt lgkmcnt(0)')
        for sl in (0, 1, 2, 3, 4, 'G'):
            for l in qk(1, sl): a(l)
        for l in xb: a(l)
        edge_mask(1, vT0)
        a('s_branch L_joinB')
        a.label('L_fastB')
        ms = []
        for sl in (0, 1, 2, 3, 4, 'G'): ms += qk(1, sl)
        npre = int(opt.get('npre', 2)); per = int(opt.get('per', 2))
        for l in ep[:7*npre]: a(l)
        a(f's_waitcnt lgkmcnt({npre})')
        inter(ms, ep[7*npre:], per=per)
        for l in maxtree_l([S+x for x in range(15)], vT0): a(l)
        if apos == 0: stores(0)
        for l in xb: a(l)
        a(f'v_max3_f32 {vr(vM)}, {vr(vT0)}, {vr(S+15)}, {vr(S+16)}')
        for l in maxtree_l([S+17, S+18, S+19, S+20, S+21], vM, False): a(l)
    a.label('L_joinB')
    yprio('b')
    stamp()
    a(f's_cmp_eq_u32 s{sCMB}, 0')
    a('s_cbranch_scc1 L_nohand')
    hand_loads()
    a.label('L_nohand')
    softmax_pv(1)
    stamp(fine)
    if apos == 2:
        late_a()
    a('s_nop 0')
    if apos == 3:
        for l in stage_reads(0, RA): a(l)
    for t in range(8):
        for l in epi(t, 1): a(l)
    for l in stage_reads(1): a(l)
    if apos == 3:
        stores(0, RA, extra=4+8) if False else None
        for j in range(4):
            if j == 0: a(f's_mov_b64 exec, {sr(sEX,2)}')
            if j == 0: a('s_waitcnt lgkmcnt(4)')
            a(f'buffer_store_dwordx4 {vr(RA+4*j,4)}, {vr(vOO)}, {sr(sO,4)}, s{sZERO} offen offset:{1024*j} {stpol}')
            if j == 0: a('s_mov_b64 exec, -1')
    stores(1)
    stamp()

    a(f's_cmp_eq_u32 s{sCMB}, 0')
    a('s_cbranch_scc1 L_fin')
    a(f's_waitcnt vmcnt({4 if apos == 0 else 8})')
    a(f's_mov_b32 s{sCNT}, 0')
    a(f's_mov_b32 s{sT2}, 0')
    a.label('L_chk')
    a(f's_mov_b32 s{sT3}, s{sT2}')
    for n in range(8):
        a(f'v_cmp_eq_u32 vcc, s{sN}, {vr(HB+8*n+3)}')
        a(f'v_cmp_eq_u32 s[60:61], s{sN}, {vr(HB+8*n+7)}')
        a('s_nop 0')
        a('s_and_b64 vcc, vcc, s[60:61]')
        a('s_cmp_eq_u64 vcc, exec')
        a(f's_cselect_b32 s{sT0}, {1 << n}, 0')
        a(f's_or_b32 s{sT3}, s{sT3}, s{sT0}')
    a(f's_add_u32 s{sCNT}, s{sCNT}, 1')
    a(f's_cmp_eq_u32 s{sT3}, 0xff')
    a('s_cbranch_scc1 L_ready')
    a(f's_cmp_ge_u32 s{sCNT}, 0x40000')
    a('s_cbranch_scc1 L_ready')
    a(f's_lshl_b32 s{sT0}, s{sH}, 3')
    a(f'v_mov_b32 {vr(KG+1)}, s{sT0}')
    a(f'global_load_dword {vr(KG+2)}, {vr(KG+1)}, s[16:17] offset:4 sc0 sc1')
    a('s_waitcnt vmcnt(0)')
    a(f'v_readfirstlane_b32 s{sT2}, {vr(KG+2)}')
    hand_loads()
    a('s_waitcnt vmcnt(0)')
    a('s_branch L_chk')
    a.label('L_ready')
    hog = [[HB+8*n, HB+8*n+1, HB+8*n+2, HB+8*n+4] for n in range(8)]
    hmg = [HB+8*n+5 for n in range(8)]
    combine(hog, hmg, X8)
    a(f'v_rcp_f32 {vr(X8)}, {vr(hmg[0]+1)}')
    a(f'v_lshrrev_b32 {vr(KG)}, 1, {vr(KG)}')
    for e in range(4):
        a(f'v_mul_f32 {vr(hog[0][e])}, {vr(hog[0][e])}, {vr(X8)}')
    a(f'v_cvt_pk_bf16_f32 {vr(X8+2)}, {vr(hog[0][0])}, {vr(hog[0][1])}')
    a(f'v_cvt_pk_bf16_f32 {vr(X8+3)}, {vr(hog[0][2])}, {vr(hog[0][3])}')
    a(f'buffer_store_dwordx2 {vr(X8+2,2)}, {vr(KG)}, {sr(sO,4)}, 0 offen {stpol}')
    a.label('L_fin')
    if stamps:
        fin_[0] = True
        stamp()
        a('s_waitcnt vmcnt(0)')
        stamp()
        if opt.get('clk'):
            a('s_memtime s[98:99]')
            a('s_waitcnt lgkmcnt(0)')
            a('s_sub_u32 s98, s98, s96')
            a(f's_add_u32 s{64+2*nst[0]}, s98, s64')
            nst[0] += 1
        a(f's_lshl_b32 s{sT0}, s2, 3')
        a(f's_add_u32 s{sT0}, s{sT0}, s{sWV}')
        a(f's_lshl_b32 s{sT0}, s{sT0}, 6')
        a(f's_add_u32 s{sT0}, s{sT0}, 0x100000')
        a(f's_add_u32 s{sW}, s18, s{sT0}')
        a(f's_addc_u32 s{sW+1}, s19, 0')
        a(f'v_mov_b32 v1, 0')
        a('s_mov_b64 exec, 1')
        for n in range(min(16, nst[0])):
            a(f'v_mov_b32 v2, s{64+2*n}')
            a(f'buffer_store_dword v2, v1, {sr(sW,4)}, 0 offen offset:{4*n}')
        a('s_getreg_b32 s61, hwreg(HW_REG_XCC_ID, 0, 4)')
        a('v_mov_b32 v2, s61')
        a(f'buffer_store_dword v2, v1, {sr(sW,4)}, 0 offen offset:60')
        if 'leak' in opt:
            k = int(opt['leak'])
            a(f's_sub_u32 s{sT0}, s{64+2*k}, s64')
            a(f's_lshl_b32 s{sT0}, s{sT0}, 2')
            if opt.get('leakskew'):
                a.label('L_pre')
                a('s_memrealtime s[100:101]')
                a('s_waitcnt lgkmcnt(0)')
                a(f's_sub_u32 s{sT1}, s100, s64')
                a(f's_cmp_lt_u32 s{sT1}, 3000')
                a('s_cbranch_scc1 L_pre')
                a('s_mov_b64 exec, -1')
                a('v_mbcnt_lo_u32_b32 v3, -1, 0')
                a('v_and_b32 v3, 31, v3')
                a('v_lshlrev_b32 v3, 3, v3')
                a('global_load_dword v4, v3, s[16:17] sc0 sc1')
                a('s_waitcnt vmcnt(0)')
                a('v_readlane_b32 s20, v4, 0')
                a('s_mov_b32 s21, 0'); a('s_mov_b32 s22, 0')
                for n in range(1, 32):
                    a(f'v_readlane_b32 s23, v4, {n}')
                    a('s_nop 0')
                    a('s_sub_i32 s23, s23, s20')
                    a('s_min_i32 s21, s21, s23')
                    a('s_max_i32 s22, s22, s23')
                a(f's_sub_u32 s{sT0}, s22, s21')
                a(f's_min_u32 s{sT0}, s{sT0}, 2000')
                a(f's_lshl_b32 s{sT0}, s{sT0}, 2')
            if opt.get('leakxcc'):
                a('s_getreg_b32 s61, hwreg(HW_REG_XCC_ID, 0, 4)')
                a(f's_bfe_u32 s60, s{sN}, 0x40001')
                a('s_cmp_lg_u32 s60, s61')
                a(f's_cselect_b32 s{sT0}, 2000, 0')
            if opt.get('leakcnt'):
                a(f's_mul_i32 s{sT0}, s{sCNT}, 500')
                a(f's_mul_i32 s{sT0}, s{sT0}, s{sCMB}')
            if 'leakh' in opt:
                lo, hi = opt['leakh'].split(',')
                a(f's_sub_u32 s{sT1}, s{sH}, {lo}')
                a(f's_cmp_lt_u32 s{sT1}, {int(hi)-int(lo)}')
                a(f's_cselect_b32 s{sT0}, s{sT0}, 0')
            if 'leakwg' in opt:
                a(f's_cmp_eq_u32 s2, {opt["leakwg"]}')
                a(f's_cselect_b32 s{sT0}, s{sT0}, 0')
            if 'leakx' in opt:
                a(f's_getreg_b32 s{sT1}, hwreg(HW_REG_XCC_ID, 0, 4)')
                a(f's_lshr_b32 s{sT1}, {opt["leakx"]}, s{sT1}')
                a(f's_bitcmp1_b32 s{sT1}, 0')
                a(f's_cselect_b32 s{sT0}, s{sT0}, 0')
            if 'leakw' in opt:
                a(f's_lshr_b32 s{sT1}, {opt["leakw"]}, s{sWV}')
                a(f's_bitcmp1_b32 s{sT1}, 0')
                a(f's_cselect_b32 s{sT0}, s{sT0}, 0')
            a(f"s_add_u32 s{sT0}, s{sT0}, {opt.get('spin', 5000)}")
            a.label('L_spin')
            a('s_memrealtime s[100:101]')
            a('s_waitcnt lgkmcnt(0)')
            a(f's_sub_u32 s{sT1}, s100, s64')
            a(f's_cmp_lt_u32 s{sT1}, s{sT0}')
            a('s_cbranch_scc1 L_spin')
    a.label('L_end')
    a('s_endpgm')
    if cpf:
        a('.fill (L_base + 12352 - .) / 4, 4, 0xbf810000')

    check(a.lines)
    if stamps: print('stamps', nst[0])
    head = f'''; windowed + global-token attention, B=1 H=32 S=2048 D=128 bf16 (window 32, 2 global tokens)
; @launch grid=(256,1,1) block=(512,1,1) lds=163840
.amdgcn_target "amdgcn-amd-amdhsa--gfx950"
.text
.globl {NAME}
.p2align 8
.type {NAME},@function
{NAME}:
'''
    tail = f'''.section .rodata,"a"
.p2align 6
.amdhsa_kernel {NAME}
  .amdhsa_next_free_vgpr 256
  .amdhsa_next_free_sgpr {102 if stamps else 64}
  .amdhsa_accum_offset 256
  .amdhsa_group_segment_fixed_size 0
  .amdhsa_kernarg_size 64
  .amdhsa_user_sgpr_count 2
  .amdhsa_user_sgpr_kernarg_segment_ptr 1
  .amdhsa_system_sgpr_workgroup_id_x 1
.end_amdhsa_kernel
'''
    return head + a.text() + tail

if __name__ == '__main__':
    out = sys.argv[1]
    opt = {}
    for kv in sys.argv[2:]:
        k, v = kv.split('=', 1)
        opt[k] = {'True': True, 'False': False}.get(v, v.replace('+', ' '))
    open(out, 'w').write(gen(opt))
```

```python
import sys, math, struct
from asmlib import *

NAME = 'standalone__global_local_windowed_global_tokens__prompt_kernel'
def f2u(x): return struct.unpack('<I', struct.pack('<f', x))[0]

def gen(opt):
    a = Asm()
    NEG = 0xFF000000
    CSC = f2u(128 ** -0.5 * math.log2(math.e))
    KOFF, VOFF, SOFF = 0, 73728, 155648
    apos = int(opt.get('apos', 0))
    PART, HALO = SOFF + 3328, 65536
    PARTML, LCNT, LNON = SOFF + 3072, SOFF + 3072 + 128, SOFF + 3072 + 132
    STGP = 272
    ldpol = opt.get('ldpol', '')
    qpol = opt.get('qpol', 'nt')
    stpol = opt.get('stpol', 'nt')
    pk = opt.get('pk', True)
    vlate = opt.get('vlate', False); EW = 3
    N1 = int(opt.get('n1', 12))
    yp = opt.get('yp', '')
    RW = int(opt.get('rw', 3))
    FW = 7
    SW = 5
    CW, CC = int(opt.get('cw', 1)), 3
    merge = opt.get('merge', True)
    sQ, sK, sV, sO, sW = 20, 24, 28, 32, 36
    sWV, sH, sC, sHO, sQ0B = 40, 43, 44, 45, 46
    sT0, sT1, sT2, sT3 = 47, 48, 49, 50
    sBK = 62
    HW = 4
    sCS = 52; sKG0 = 54; sQB = 51; sEX = 56; sCMB = 58; sCNT = 59; sN = 63; sTOFF = 41; sZERO = 3
    VA = 0
    vSW, vSR, vOO, vT0 = 8, 9, 10, 11
    X8 = 12
    KF = 16; KG = 112; QA, QB = 128, 144; VG = 160; O = 192; S = 224
    BLO, BHI = 248, 252
    kf = lambda W, ks: KF + 16 * W + 4 * ks
    X = [O + 4 * n for n in range(8)] + [X8]
    vLANE, vI, vKGp, vDK, vDV, vDQ, vAG, vNEG, vAK = O+16, O+17, O+18, O+19, O+20, O+21, O+22, O+23, O+24
    vAVG, t1, t2, t3 = O+28, O+29, O+30, O+31
    vDQk = VG + 7
    vLV = VG + 15
    vAQ = VG + 11
    vFLAG = VG + 3
    vM, vT = S + 22, S + 23

    stamps = opt.get('stamps', False)
    fine = opt.get('fine', False)
    nst = [0]
    mini = opt.get('mini', False); fin_ = [False]
    def stamp(on=True):
        if mini and nst[0] and not fin_[0]: return
        if stamps and on:
            a(f's_memrealtime s[{64+2*nst[0]}:{65+2*nst[0]}]')
            if nst[0]: a('s_waitcnt lgkmcnt(0)')
            nst[0] += 1
    M16 = 'v_mfma_f32_16x16x32_bf16'
    def mfma(d, x, y, c):
        return f'{M16} {vr(d,4)}, {vr(x,4)}, {vr(y,4)}, {c if isinstance(c,str) else vr(c,4)}'
    def only(w, lab):
        a(f's_cmp_lg_u32 s{sWV}, {w}')
        a(f's_cbranch_scc1 {lab}')

    stamp()
    if opt.get('clk'): a('s_memtime s[96:97]')
    a('s_load_dwordx16 s[4:19], s[0:1], 0')
    a(f'v_readfirstlane_b32 s{sWV}, v0')
    a('s_cmp_ge_u32 s2, 256')
    a('s_cbranch_scc1 L_end')
    a(f'v_lshrrev_b32 {vr(t1)}, 4, v0')
    a(f'v_xor_b32 {vr(vDK)}, {vr(t1)}, v0')
    a(f'v_and_b32 {vr(vDK)}, 15, {vr(vDK)}')
    a(f'v_lshl_add_u32 {vr(vDK)}, {vr(t1)}, 4, {vr(vDK)}')
    a(f's_bfe_u32 s{sC}, s2, 0x30003')
    a(f's_lshl_b32 s{sQ0B}, s{sC}, 16')
    a(f'v_lshl_add_u32 {vr(vDK)}, {vr(vDK)}, 4, s{sQ0B}')
    a('s_and_b32 s41, s2, 7')
    a(f's_lshr_b32 s{sH}, s2, 6')
    a(f's_lshl2_add_u32 s{sH}, s41, s{sH}')
    a(f's_lshl_b32 s{sHO}, s{sH}, 19')
    a(f's_lshl_b32 m0, s{sWV}, 4')
    a(f's_mov_b32 s{sK+2}, 0x80000')
    a(f's_mov_b32 s{sK+3}, 0x20000')
    a(f's_movk_i32 s{sCNT}, 11')
    cpf = opt.get('cpf', True)
    a.label('L_base')
    if cpf is True:
        a(f's_getpc_b64 s[{sEX}:{sEX+1}]')
        a(f'v_mul_u32_u24 v1, 24, v0')
        a(f'global_load_dword {vr(X8)}, v1, s[{sEX}:{sEX+1}]')
    a(f's_cmp_ge_u32 s{sWV}, 256')
    a('s_cbranch_scc1 L_helper')
    a('s_waitcnt lgkmcnt(0)')
    stamp()
    a(f's_add_u32 s{sK}, s6, s{sHO}')
    a(f's_addc_u32 s{sK+1}, s7, 0')
    thr = int(opt.get('thr', 0)); tl = [0]
    if thr: a('s_getreg_b32 s1, hwreg(HW_REG_XCC_ID, 0, 4)')
    def throttle():
        if thr:
            a('s_bitcmp1_b32 s1, 0')
            a(f's_cbranch_scc{opt.get("thpar", 1)} L_th{tl[0]}')
            a(f's_waitcnt vmcnt({thr-1})')
            a.label(f'L_th{tl[0]}')
            tl[0] += 1
    snt = opt.get('snt', 'kv')
    def kpiece(pol):
        a(f'buffer_load_dwordx4 {vr(vDK)}, {sr(sK,4)}, 0 offen {pol} lds')
        a('s_add_u32 m0, m0, 0x1000')
        a(f'v_add_u32 {vr(vDK)}, 0x1000, {vr(vDK)}')
    kpiece(''); kpiece('')
    a.label('L_kloop')
    kpiece('nt')
    a(f's_sub_u32 s{sCNT}, s{sCNT}, 1')
    a('s_cbranch_scc0 L_kloop')
    for i in range(4): kpiece('')
    if 'dup' in opt:
        nd = int(opt['dup'])
        a(f's_sub_u32 m0, m0, {0x1000*18}')
        a(f'v_subrev_u32 {vr(vDK)}, {0x1000*18}, {vr(vDK)}')
        for i in range(nd):
            a(f'buffer_load_dwordx4 {vr(vDK)}, {sr(sK,4)}, 0 offen lds')
            a('s_add_u32 m0, m0, 0x1000')
            a(f'v_add_u32 {vr(vDK)}, 0x1000, {vr(vDK)}')
    stamp(opt.get('postk', False))
    def common():
        a(f's_lshr_b32 s{sWV}, s{sWV}, 6')
        a(f'v_and_b32 {vr(vLANE)}, 63, v0')
        a(f'v_and_b32 {vr(vI)}, 15, v0')
        a(f'v_bfe_u32 {vr(vKGp)}, v0, 4, 2')
        a(f's_lshl_b32 s{sT1}, s{sWV}, 10')
        a(f's_add_u32 s{sT2}, s{sT1}, s{sQ0B}')
        for s_ in (sV, sQ):
            a(f's_mov_b32 s{s_+2}, 0x80000')
            a(f's_mov_b32 s{s_+3}, 0x20000')
        a(f's_mov_b32 s{sW+2}, 0x4000')
        a(f's_mov_b32 s{sW+3}, 0x20000')
        a(f's_and_b32 s{sBK}, s{sWV}, 3')
        a(f's_lshl_b32 s{sBK}, s{sBK}, 1')
        a(f's_cmp_lt_u32 s{sWV}, 4')
        a(f's_addc_u32 s{sBK}, s{sBK}, 0')
        a(f's_cmp_eq_u32 s{sC}, 0')
        a(f's_cselect_b32 s{sT3}, 0x40000000, 0')
        a(f's_lshl_b32 s{sT0}, s{sBK}, 13')
        a(f's_add_u32 s{sT0}, s{sT0}, s{sQ0B}')
        a(f'v_xor_b32 {vr(vDQ)}, {vr(vKGp)}, {vr(vI)}')
        a(f'v_lshlrev_b32 {vr(vDQ)}, 4, {vr(vDQ)}')
        a(f'v_lshl_add_u32 {vr(vDQ)}, {vr(vKGp)}, 8, {vr(vDQ)}')
        a(f'v_add_u32 {vr(vDQ)}, s{sT0}, {vr(vDQ)}')
        a(f'v_lshlrev_b32 {vr(t3)}, 4, {vr(vLANE)}')
        a(f's_lshl_b32 s41, s{sH}, 14')
        a(f's_lshl_b32 s42, s{sC}, 11')
    common()
    a(f's_mov_b32 s{sN}, 0')
    def srds():
        a(f's_add_u32 s{sV}, s8, s{sHO}')
        a(f's_addc_u32 s{sV+1}, s9, 0')
        a(f's_add_u32 s{sQ}, s4, s{sHO}')
        a(f's_addc_u32 s{sQ+1}, s5, 0')
        a(f's_add_u32 s{sW}, s18, s41')
        a(f's_addc_u32 s{sW+1}, s19, 0')
    srds()
    a('s_branch L_v1')
    for _ in range(int(opt.get('pad', 0))): a('s_nop 0')
    a.label('L_helper')
    a('s_setprio 3')
    a('s_memrealtime s[60:61]')
    if cpf == 'one':
        a(f's_cmp_lg_u32 s{sWV}, {64*6}')
        a('s_cbranch_scc1 L_nocpf')
        a(f's_getpc_b64 s[{sEX}:{sEX+1}]')
        a(f's_lshl_b32 s{sT0}, s{sC}, 11')
        a(f'v_and_b32 v1, 15, v0')
        a(f'v_lshl_add_u32 v1, v1, 7, s{sT0}')
        a('s_mov_b64 exec, 0xffff')
        a(f'global_load_dword {vr(X8)}, v1, s[{sEX}:{sEX+1}]')
        a('s_mov_b64 exec, -1')
        a.label('L_nocpf')
    common()
    a(f's_mov_b32 m0, {SOFF}')
    a('s_waitcnt lgkmcnt(0)')
    if stamps and not mini:
        nst[0] -= 1
        stamp()
    a(f's_add_u32 s{sK}, s6, s{sHO}')
    a(f's_addc_u32 s{sK+1}, s7, 0')
    srds()
    if stamps and opt.get('postk'):
        nst[0] -= 1
        stamp()
    a(f's_or_b32 s{sN}, s60, 1')
    if opt.get('leakxcc'):
        a('s_getreg_b32 s61, hwreg(HW_REG_XCC_ID, 0, 4)')
        a(f's_and_b32 s{sN}, s60, 0xffffffe0')
        a(f's_lshl1_add_u32 s{sN}, s61, s{sN}')
        a(f's_or_b32 s{sN}, s{sN}, 1')
    only(FW, 'L_noclear')
    a(f's_lshl_b32 s{sT0}, s{sH}, 3')
    a(f'v_mov_b32 {vr(S+4)}, s{sT0}')
    a(f'v_mov_b32 {vr(S+5)}, s{sN}')
    a(f'v_mov_b32 {vr(S+6)}, {LCNT}')
    a(f'v_mov_b32 {vr(S+7)}, 0')
    a('s_mov_b64 exec, 1')
    a(f's_cmp_lg_u32 s{sC}, {CC}')
    a('s_cbranch_scc1 L_nopub')
    a(f'global_store_dword {vr(S+4)}, {vr(S+5)}, s[16:17] sc0 sc1')
    a.label('L_nopub')
    a(f'ds_write_b32 {vr(S+6)}, {vr(S+7)}')
    a('s_mov_b64 exec, -1')
    if opt.get('wstouch'):
        pol = {'ld': '', 'ldsc': 'sc0 sc1'}.get(opt['wstouch'])
        if pol is not None:
            a(f'buffer_load_dwordx4 {vr(S+8,4)}, {vr(t3)}, {sr(sW,4)}, s42 offen {pol}')
            a(f'buffer_load_dwordx4 {vr(S+12,4)}, {vr(t3)}, {sr(sW,4)}, s42 offen offset:1024 {pol}')
        else:
            for n in range(4): a(f'v_mov_b32 {vr(S+8+n)}, 0')
            a(f'buffer_store_dwordx4 {vr(S+8,4)}, {vr(t3)}, {sr(sW,4)}, s42 offen sc0 sc1')
            a(f'buffer_store_dwordx4 {vr(S+8,4)}, {vr(t3)}, {sr(sW,4)}, s42 offen offset:1024 sc0 sc1')
    a.label('L_noclear')
    only(SW, 'L_nosmall')
    for n, srd in enumerate((sK, sQ, sV)):
        if n:
            a(f's_mov_b32 m0, {SOFF + 1024*n}')
            a('s_nop 0')
        a(f'buffer_load_dwordx4 {vr(t3)}, {sr(srd,4)}, 0 offen lds')
    a.label('L_nosmall')
    a('s_setprio 0')
    v2h = int(opt.get('v2h', 0))
    def vaddr(i0):
        a(f's_and_b32 s{sT0}, s{sWV}, 1')
        a(f's_lshl_b32 s{sT0}, s{sT0}, 2')
        a(f'v_add_lshl_u32 {vr(vDV)}, s{sT0}, {vr(vKGp)}, 1')
        a(f'v_xor_b32 {vr(vDV)}, {vr(vDV)}, {vr(vI)}')
        a(f'v_lshlrev_b32 {vr(vDV)}, 4, {vr(vDV)}')
        a(f'v_lshl_add_u32 {vr(vDV)}, {vr(vKGp)}, 8, {vr(vDV)}')
        a(f's_add_u32 s{sT2}, s{sT2}, {(0x1000*i0 - 0x2000) & 0xffffffff}')
        a(f'v_add_u32 {vr(vDV)}, s{sT2}, {vr(vDV)}')
        a(f's_add_u32 m0, s{sT1}, {VOFF + 0x1000*i0}')
    if v2h:
        vaddr(20 - v2h - 1 - 1)
    a('s_branch L_nov1')
    a.label('L_v1')
    V0, VN = (2, 18) if vlate else (0, 20)
    def vpiece(i):
        if i > V0:
            a('s_add_u32 m0, m0, 0x1000')
            a(f'v_add_u32 {vr(vDV)}, 0x1000, {vr(vDV)}')
        if i < 2:
            a(f'v_add_u32 {vr(t1)}, s{sT3}, {vr(vDV)}')
            a(f'buffer_load_dwordx4 {vr(t1)}, {sr(sV,4)}, 0 offen lds')
        else:
            a(f'buffer_load_dwordx4 {vr(vDV)}, {sr(sV,4)}, 0 offen {"nt" if 4 <= i < 16 else ""} lds')
    vaddr(V0)
    a('s_nop 0')
    for i in range(V0, V0 + N1): vpiece(i)
    a.label('L_nov1')
    stamp()

    a(f's_add_u32 s{sO}, s14, s{sHO}')
    a(f's_addc_u32 s{sO+1}, s15, 0')
    a(f's_mov_b32 s{sO+2}, 0x80000')
    a(f's_mov_b32 s{sO+3}, 0x20000')
    a(f's_movk_i32 s{sTOFF}, 0x1000')
    a(f's_mov_b32 s{sZERO}, 0')
    a(f's_mov_b32 s{sCS}, 0x{CSC:08x}')
    a(f's_mov_b32 s{sCS+1}, 0x{CSC:08x}')
    a(f'v_mov_b32 {vr(vNEG)}, 0x{NEG:08x}')
    a(f'v_lshlrev_b32 {vr(t2)}, 2, {vr(vKGp)}')
    a(f'v_cmp_eq_u32 {sr(sKG0,2)}, 0, {vr(vKGp)}')
    for r in range(4):
        a(f'v_add_u32 {vr(t1)}, {r}, {vr(t2)}')
        a(f'v_cmp_ge_u32 vcc, {vr(t1)}, {vr(vI)}')
        a(f'v_cmp_le_u32 s[60:61], {vr(t1)}, {vr(vI)}')
        a('s_nop 0')
        a(f'v_cndmask_b32 {vr(BLO+r)}, {vr(vNEG)}, 0, vcc')
        a(f'v_cndmask_b32 {vr(BHI+r)}, {vr(vNEG)}, 0, s[60:61]')
    a(f's_lshl_b32 s{sT0}, s{sBK}, 13')
    a(f'v_xor_b32 {vr(t1)}, {vr(vKGp)}, {vr(vI)}')
    a(f'v_lshlrev_b32 {vr(t1)}, 4, {vr(t1)}')
    a(f'v_lshl_add_u32 {vr(t1)}, {vr(vI)}, 8, {vr(t1)}')
    a(f'v_add_u32 {vr(vAK)}, s{sT0}, {vr(t1)}')
    for ks in range(1, 4):
        a(f'v_xor_b32 {vr(vAK+ks)}, {64*ks}, {vr(vAK)}')
    a(f'v_mov_b32 {vr(vDK)}, {vr(vAK)}')
    a(f'v_and_b32 {vr(t1)}, 1, {vr(vI)}')
    a(f'v_lshlrev_b32 {vr(vNEG)}, 3, {vr(t1)}')
    a(f'v_lshlrev_b32 {vr(t1)}, 8, {vr(t1)}')
    a(f'v_lshl_add_u32 {vr(t1)}, {vr(vKGp)}, 4, {vr(t1)}')
    a(f'v_add_u32 {vr(vAG)}, {SOFF}, {vr(t1)}')
    a(f'v_bfe_u32 {vr(t1)}, {vr(vLANE)}, 2, 2')
    a(f'v_and_b32 {vr(t2)}, 3, {vr(vLANE)}')
    a(f'v_lshlrev_b32 {vr(t2)}, 3, {vr(t2)}')
    a(f'v_lshl_add_u32 {vr(t1)}, {vr(t1)}, 8, {vr(t2)}')
    a(f'v_add_u32 {vr(vAVG)}, {SOFF+2048}, {vr(t1)}')
    a(f'v_lshrrev_b32 {vr(t1)}, 2, {vr(vLANE)}')
    a(f'v_and_b32 {vr(vT0)}, 7, {vr(t1)}')
    a(f'v_lshl_add_u32 {vr(t2)}, {vr(vT0)}, 5, {vr(t2)}')
    a(f'v_lshl_add_u32 {vr(t2)}, {vr(t1)}, 8, {vr(t2)}')
    a(f's_add_u32 s{sT1}, s{sT0}, {VOFF}')
    a(f'v_add_u32 {vr(VA)}, s{sT1}, {vr(t2)}')
    for t in range(1, 8):
        a(f'v_xor_b32 {vr(VA+t)}, {32*t}, {vr(VA)}')
    a(f's_mov_b32 s{sT1}, s{sT0}')
    xst = merge is False
    if xst:
        a(f'v_lshrrev_b32 {vr(t1)}, 1, {vr(vKGp)}')
        a(f'v_xor_b32 {vr(t1)}, {vr(t1)}, {vr(vI)}')
        a(f'v_lshlrev_b32 {vr(t1)}, 4, {vr(t1)}')
        a(f'v_lshl_add_u32 {vr(t1)}, {vr(vI)}, 8, {vr(t1)}')
        a(f'v_and_b32 {vr(t2)}, 1, {vr(vKGp)}')
        a(f'v_lshl_add_u32 {vr(t1)}, {vr(t2)}, 3, {vr(t1)}')
        a(f'v_add_u32 {vr(vSW)}, s{sT1}, {vr(t1)}')
        a(f'v_xor_b32 {vr(t1)}, {vr(vKGp)}, {vr(vI)}')
        a(f'v_lshlrev_b32 {vr(t1)}, 4, {vr(t1)}')
        a(f'v_lshl_add_u32 {vr(t1)}, {vr(vKGp)}, 8, {vr(t1)}')
        a(f'v_add_u32 {vr(vSR)}, s{sT1}, {vr(t1)}')
    else:
        a(f'v_mul_u32_u24 {vr(t1)}, {STGP}, {vr(vI)}')
        a(f'v_lshl_add_u32 {vr(t1)}, {vr(vKGp)}, 3, {vr(t1)}')
        a(f'v_add_u32 {vr(vSW)}, s{sT1}, {vr(t1)}')
        a(f'v_mul_u32_u24 {vr(t1)}, {STGP}, {vr(vKGp)}')
        a(f'v_lshl_add_u32 {vr(t1)}, {vr(vI)}, 4, {vr(t1)}')
        a(f'v_add_u32 {vr(vSR)}, s{sT1}, {vr(t1)}')
    a(f's_add_u32 s{sT0}, s{sT0}, s{sQ0B}')
    a(f'v_add_u32 {vr(vOO)}, s{sT0}, {vr(t3)}')
    a(f's_lshr_b32 s{sQB}, s{sT0}, 8')
    a(f's_cmp_eq_u32 s{sQB}, 0')
    a(f's_cselect_b32 s{sEX}, 0, -1')
    a(f's_mov_b32 s{sEX+1}, -1')
    a(f's_cmp_eq_u32 s{sQB}, {256*CC+32*(2*CW+1)}')
    a(f's_cselect_b32 s{sCMB}, 1, 0')
    a(f's_lshl_b32 s{sT0}, s{sWV}, 4')
    a(f's_add_u32 s{sT0}, s{sT0}, {PARTML}')
    a(f'v_add_u32 {vr(vNEG)}, s{sT0}, {vr(vNEG)}')

    spf = [int(x) for x in opt.get('spf', '0,0').split(',')]
    spstep = int(opt.get('spstep', 128)); sptile = opt.get('sptile', 'B')
    def sp_offsets():
        o = []
        for half in ([1, 0] if sptile == 'B' else [0, 1]):
            for blk in (1, 0):
                o += [8192*blk + 4096*half + x for x in range(0, 4096, spstep)]
        return o
    spo = sp_offsets()
    def sprefetch(n):
        for _ in range(n):
            if spo: a(f's_load_dword s61, s[10:11], {spo.pop(0)}')
    if sum(spf):
        a(f's_cmp_lt_u32 s{sWV}, 4')
        a('s_cbranch_scc1 L_nosp')
        a(f's_lshl_b32 s{sT0}, s{sBK}, 13')
        a(f's_add_u32 s{sT0}, s{sT0}, s{sQ0B}')
        a(f's_add_u32 s10, s{sQ}, s{sT0}')
        a(f's_addc_u32 s11, s{sQ+1}, 0')
        sprefetch(spf[0])
        a.label('L_nosp')
    a(f's_waitcnt vmcnt({N1}) lgkmcnt(0)')
    a(f's_cmp_lt_u32 s{sWV}, 4')
    a('s_cbranch_scc1 L_kw')
    a(f's_cmp_eq_u32 s{sWV}, {FW}')
    a('s_cbranch_scc1 L_kw')
    a('s_waitcnt vmcnt(0)')
    a.label('L_kw')
    stamp(opt.get('prek', False))
    a('s_barrier')
    stamp()
    kfirst = opt.get('kfirst', False)
    NK = int(opt.get('nk', 0))
    a(f's_cmp_ge_u32 s{sWV}, 4')
    a('s_cbranch_scc1 L_nov2')
    for i in range(V0 + N1, VN): vpiece(i)
    if v2h:
        a('s_branch L_nov2b')
    a.label('L_nov2')
    if v2h:
        a(f's_setprio {opt.get("v2p", 3)}')
        for i in range(20 - v2h, 20): vpiece(i)
        a('s_setprio 0')
        a.label('L_nov2b')
    stamp(fine)
    QG = O
    for W in (2, 3, 4, 5):
        for ks in range(4):
            a(f'ds_read_b128 {vr(kf(W,ks),4)}, {vr(vAK+ks)} offset:{4096*(W-2)}')
    for ks in range(4):
        a(f'ds_read_b128 {vr(KG+4*ks,4)}, {vr(vAG)} offset:{64*ks}')
    for t in range(8):
        a(f'ds_read_b64_tr_b16 {vr(VG+4*t+2,2)}, {vr(vAVG)} offset:{32*t}')
    a(f's_cmp_eq_u32 s{sWV}, {HW}')
    a('s_cbranch_scc1 L_k01done')
    for ks in range(4):
        a(f'v_subrev_u32 {vr(vAK+ks)}, 0x2000, {vr(vAK+ks)}')
    for W in (0, 1):
        for ks in range(4):
            a(f'ds_read_b128 {vr(kf(W,ks),4)}, {vr(vAK+ks)} offset:{4096*W}')
    a.label('L_k01done')
    def dma_tile(srd, src, tmp, tile, m0expr):
        a(m0expr)
        for j in range(1, 4):
            a(f'v_xor_b32 {vr(tmp+j-1)}, {64*j}, {vr(src)}')
        for j in range(4):
            a(f'buffer_load_dwordx4 {vr(src if j == 0 else tmp+j-1)}, {sr(srd,4)}, s{sTOFF if tile else sZERO} offen offset:{1024*j} {qpol if srd == sQ else ""} lds')
    def vhalo(src, tmp, m0v, soff):
        for half in range(2):
            a(f's_mov_b32 m0, {m0v + 4096*half}')
            for j in range(4):
                a(f'v_xor_b32 {vr(tmp)}, {128*(j&1)}, {vr(src)}')
                a(f'v_add_u32 {vr(tmp)}, s{soff}, {vr(tmp)}')
                a(f'buffer_load_dwordx4 {vr(tmp)}, {sr(sV,4)}, s{sTOFF if half else sZERO} offen offset:{1024*j} lds')
    def lane_v(dv):
        a(f'v_lshlrev_b32 {vr(dv)}, 1, {vr(vKGp)}')
        a(f'v_xor_b32 {vr(dv)}, {vr(dv)}, {vr(vI)}')
        a(f'v_lshlrev_b32 {vr(dv)}, 4, {vr(dv)}')
        a(f'v_lshl_add_u32 {vr(dv)}, {vr(vKGp)}, 8, {vr(dv)}')
    qbearly = False
    qby = opt.get('qby', 'post'); qbo = opt.get('qbo', 'g'); qprio2 = opt.get('qprio2', False)
    def issue_qa(loader=False):
        a('s_waitcnt lgkmcnt(0)')
        a('s_barrier')
        if loader and kfirst:
            for i in range(N1 + NK, 20): vpiece(i)
        a(f'v_mov_b32 {vr(vAQ)}, {vr(vDK)}')
        dma_tile(sQ, vDQ, t1, 0, f's_lshl_b32 m0, s{sBK}, 13')
    def issue_qb(src, tmp):
        a(f's_lshl_b32 s{sT0}, s{sBK}, 13')
        dma_tile(sQ, src, tmp, 1, f's_add_u32 m0, s{sT0}, 0x1000')
    NQ = 8 if qbearly else 4

    def xred(m, t, op='v_max_f32'):
        a(f'v_mov_b32 {vr(t)}, {vr(m)}')
        a.nop(2)
        a(f'v_permlane16_swap_b32 {vr(m)}, {vr(t)}')
        a(f'{op} {vr(m)}, {vr(m)}, {vr(t)}')
        a(f'v_mov_b32 {vr(t)}, {vr(m)}')
        a.nop(2)
        a(f'v_permlane32_swap_b32 {vr(m)}, {vr(t)}')
        a(f'{op} {vr(m)}, {vr(m)}, {vr(t)}')
    def maxtree_l(vals, m, first=True):
        out = []; rest = list(vals)
        if first:
            out.append(f'v_max3_f32 {vr(m)}, {vr(rest[0])}, {vr(rest[1])}, {vr(rest[2])}'); rest = rest[3:]
        while len(rest) >= 2:
            out.append(f'v_max3_f32 {vr(m)}, {vr(m)}, {vr(rest[0])}, {vr(rest[1])}'); rest = rest[2:]
        if rest:
            out.append(f'v_max_f32 {vr(m)}, {vr(m)}, {vr(rest[0])}')
        return out
    def fma_l(vals, mc):
        if pk:
            return [f'v_pk_fma_f32 {vr(vals[n],2)}, {vr(vals[n],2)}, {sr(sCS,2)}, {vr(mc,2)} op_sel_hi:[1,1,0] neg_lo:[0,0,1] neg_hi:[0,0,1]' for n in range(0, len(vals), 2)]
        return [f'v_fma_f32 {vr(v)}, {vr(v)}, s{sCS}, -{vr(mc)}' for v in vals]
    exp_l = lambda vals: [f'v_exp_f32 {vr(v)}, {vr(v)}' for v in vals]
    cvt_l = lambda dst, src, n: [f'v_cvt_pk_bf16_f32 {vr(dst+k)}, {vr(src+2*k)}, {vr(src+2*k+1)}' for k in range(n)]

    def vread(dst, t, W):
        return f'ds_read_b64_tr_b16 {vr(dst,2)}, {vr(VA+t)} offset:{4096*W}'
    a(f's_cmp_lt_u32 s{sWV}, 4')
    a('s_cbranch_scc1 L_gk')
    sprefetch(spf[1])
    only(FW, 'L_notag')
    a('s_setprio 3')
    a(f's_lshl_b32 s{sT0}, s{sH}, 3')
    a(f'v_mov_b32 {vr(S+4)}, s{sT0}')
    a(f'v_mov_b32 {vr(S+5)}, s{sN}')
    a(f'v_mov_b32 {vr(S+6)}, {LCNT}')
    a(f'global_load_dword {vr(S+7)}, {vr(S+4)}, s[16:17]')
    a('s_setprio 0')
    issue_qa()
    if qby == 'pre': issue_qb(vDQ, t1)
    a(f's_waitcnt vmcnt({8 if qby == "pre" else 4})')
    if opt.get('forcefb'): a(f'v_mov_b32 {vr(S+7)}, 0')
    a(f's_cmp_eq_u32 s{sC}, {CC}')
    a('s_cselect_b64 vcc, -1, 0')
    a(f'v_cndmask_b32 {vr(S+7)}, {vr(S+7)}, {vr(S+5)}, vcc')
    a('s_mov_b64 exec, 1')
    a(f'ds_write_b32 {vr(S+6)}, {vr(S+7)} offset:4')
    a('s_mov_b64 exec, -1')
    a('s_branch L_tagdone')
    a.label('L_notag')
    cpf2 = opt.get('cpf2', '')
    def retouch(tag, lanes, stride):
        only(6, f'L_rt{tag}')
        a('s_setprio 3')
        a('s_getpc_b64 s[10:11]')
        a(f's_mul_i32 s{sT0}, s{sC}, {stride}')
        a(f'v_lshl_add_u32 {vr(S+8)}, {vr(vLANE)}, 7, s{sT0}')
        a(f's_mov_b32 m0, {SOFF + 7424}')
        a(f's_mov_b64 exec, {hex((1 << lanes) - 1)}')
        a(f'global_load_lds_dword {vr(S+8)}, s[10:11]')
        a('s_mov_b64 exec, -1')
        a('s_setprio 0')
        a.label(f'L_rt{tag}')
    if 'a' in cpf2: retouch('a', 12, 1536)
    issue_qa()
    if 'b' in cpf2: retouch('b', 12, 1536)
    only(HW, 'L_nohalo')
    a(f's_sub_u32 s{sT0}, s{sT3}, 0x2000')
    a(f'v_add_u32 {vr(S)}, s{sT0}, {vr(vDQ)}')
    dma_tile(sK, S, t1, 0, f's_mov_b32 m0, {HALO}')
    dma_tile(sK, S, t1, 1, f's_mov_b32 m0, {HALO+4096}')
    if vlate:
        lane_v(t2)
        a(f's_add_u32 s{sT0}, s{sT0}, s{sQ0B}')
        vhalo(t2, t1, VOFF, sT0)
    a.label('L_nohalo')
    if qby == 'pre': issue_qb(vDQ, t1)
    a.label('L_tagdone')
    a('s_waitcnt lgkmcnt(0)')
    stamp(fine)
    a('s_barrier')
    if qby == 'post':
        if qprio2: a('s_setprio 3')
        issue_qb(vDQ, t1)
        if qprio2: a('s_setprio 0')
    if vlate:
        a(f's_cmp_eq_u32 s{sWV}, {HW}')
        a('s_cbranch_scc1 L_gdone')
    for t in range(8):
        a(vread(X[t+1], t, 0)); a(vread(X[t+1]+2, t, 1))
    a('s_branch L_gdone')
    a.label('L_gk')
    for ks in range(4):
        a(f'ds_read_b128 {vr(QG+4*ks,4)}, {vr(vAG)} offset:{1024+64*ks}')
    issue_qa(True)
    for T in range(4):
        for ks in range(4):
            a(mfma(S+4*T, kf(T,ks), QG+4*ks, '0' if ks == 0 else S+4*T))
    if qbo == 'g': a(f'v_mov_b32 {vr(vDQk)}, {vr(vDQ)}')
    if vlate:
        lane_v(vLV)
        a.nop(4)
    else:
        a.nop(8)
    for l in maxtree_l([S+x for x in range(16)], vM): a(l)
    xred(vM, vT)
    a(f'v_mul_f32 {vr(vM)}, s{sCS}, {vr(vM)}')
    for l in fma_l([S+x for x in range(16)], vM): a(l)
    for l in exp_l([S+x for x in range(16)]): a(l)
    a.nop(1)
    a(f'v_add_f32 {vr(vT)}, {vr(S)}, {vr(S+1)}')
    for x in range(2, 16):
        a(f'v_add_f32 {vr(vT)}, {vr(vT)}, {vr(S+x)}')
    for l in cvt_l(S, S, 8): a(l)
    xred(vT, vT0, 'v_add_f32')
    a(f'ds_write_b64 {vr(vNEG)}, {vr(vM,2)}')
    a(f'v_mbcnt_lo_u32_b32 {vr(vT0)}, -1, 0')
    a(f's_lshl_b32 s{sT0}, s{sWV}, 10')
    a(f's_add_u32 s{sT0}, s{sT0}, {PART}')
    a(f'v_lshl_add_u32 {vr(vT0)}, {vr(vT0)}, 3, s{sT0}')
    if qbo == 'pre': issue_qb(vDQ, t1)
    if stamps and fine:
        nst[0] -= 1
        stamp()
    a(f's_waitcnt vmcnt({8 if qbo == "pre" else 4}) lgkmcnt(0)')
    a('s_barrier')
    if qbo == 'bar': issue_qb(vDQ, t1)
    gb = [QB + 4*n for n in range(4)] + [S + 8 + 4*n for n in range(4)]
    for t in range(8):
        a(vread(gb[t], t, 2)); a(vread(gb[t]+2, t, 3))
    for t in range(8):
        a('s_waitcnt lgkmcnt(14)')
        a(mfma(gb[t], S+4, gb[t], '0'))
        a(vread(X[t+1], t, 0)); a(vread(X[t+1]+2, t, 1))
    for t in range(8):
        a(f's_waitcnt lgkmcnt({14-2*t})')
        a(mfma(gb[t], S, X[t+1], gb[t]))
    a('s_mov_b64 exec, 1')
    a(f'v_mov_b32 {vr(S)}, {LCNT}')
    a(f'v_mov_b32 {vr(S+1)}, 1')
    a('s_mov_b64 exec, 0xffff')
    for t in range(8):
        a(f'ds_write_b64 {vr(vT0)}, {vr(gb[t],2)} offset:{128*t}')
    a('s_mov_b64 exec, 1')
    a(f'ds_add_u32 {vr(S)}, {vr(S+1)}')
    a('s_mov_b64 exec, -1')
    if qbo == 'g':
        issue_qb(vDQk, S+2)
        a(f'v_mov_b32 {vr(vDQk)}, 0')
    a.label('L_gdone')
    stamp()

    emit = lambda ls: [a(l) for l in ls]
    def combine(og, mg, tm):
        NP = len(og)
        emit(maxtree_l([mg[n] for n in range(NP)], tm))
        for n in range(NP):
            a(f'v_sub_f32 {vr(mg[n])}, {vr(mg[n])}, {vr(tm)}')
        for n in range(NP):
            a(f'v_exp_f32 {vr(mg[n])}, {vr(mg[n])}')
        a.nop(1)
        for e in range(4):
            a(f'v_mul_f32 {vr(og[0][e])}, {vr(og[0][e])}, {vr(mg[0])}')
        a(f'v_mul_f32 {vr(mg[0]+1)}, {vr(mg[0]+1)}, {vr(mg[0])}')
        for n in range(1, NP):
            for e in range(4):
                a(f'v_fmac_f32 {vr(og[0][e])}, {vr(og[n][e])}, {vr(mg[n])}')
            a(f'v_fmac_f32 {vr(mg[0]+1)}, {vr(mg[n]+1)}, {vr(mg[n])}')

    if vlate:
        only(EW, 'L_norh')
        a(f's_add_u32 s{sT0}, s{sQ0B}, 0x10000')
        vhalo(vLV, S+2, VOFF + 73728, sT0)
        a.label('L_norh')
    a(f's_cmp_eq_u32 s{sWV}, {RW}')
    a('s_cbranch_scc1 L_reduce')
    a(f's_cmp_eq_u32 s{sCMB}, 0')
    a('s_cbranch_scc1 L_noflag')
    a(f'v_mov_b32 {vr(vT0)}, {LNON}')
    a(f'ds_read_b32 {vr(vT0)}, {vr(vT0)}')
    a('s_waitcnt lgkmcnt(0)')
    a(f'v_readfirstlane_b32 s{sN}, {vr(vT0)}')
    a.label('L_noflag')
    a('s_waitcnt vmcnt(4)')
    a('s_branch L_tileA')
    a.label('L_reduce')
    R0 = S
    a(f'v_mbcnt_lo_u32_b32 {vr(R0)}, -1, 0')
    a(f'v_mbcnt_hi_u32_b32 {vr(R0)}, -1, {vr(R0)}')
    a(f'v_lshrrev_b32 {vr(R0+1)}, 5, {vr(R0)}')
    a(f'v_and_b32 {vr(R0+3)}, 31, {vr(R0)}')
    a(f'v_lshlrev_b32 {vr(R0+3)}, 5, {vr(R0+3)}')
    a(f'v_lshl_add_u32 {vr(R0+3)}, {vr(R0+1)}, 2, {vr(R0+3)}')
    a(f'v_add_u32 {vr(R0+3)}, {PART}, {vr(R0+3)}')
    a(f'v_lshlrev_b32 {vr(R0+1)}, 3, {vr(R0+1)}')
    a(f'v_add_u32 {vr(R0+1)}, {PARTML}, {vr(R0+1)}')
    a(f'v_lshlrev_b32 {vr(R0)}, 4, {vr(R0)}')
    a(f'v_mov_b32 {vr(R0+2)}, {LCNT}')
    a(f's_mov_b32 s{sCNT}, 0')
    a.label('L_lspin')
    a(f'ds_read_b64 {vr(S+4,2)}, {vr(R0+2)}')
    a(f's_add_u32 s{sCNT}, s{sCNT}, 1')
    a('s_waitcnt lgkmcnt(0)')
    a(f'v_readfirstlane_b32 s{sT0}, {vr(S+4)}')
    a(f'v_readfirstlane_b32 s{sN}, {vr(S+5)}')
    a(f's_cmp_ge_u32 s{sCNT}, 0x100000')
    a('s_cbranch_scc1 L_lok')
    a(f's_cmp_lt_u32 s{sT0}, 4')
    a('s_cbranch_scc1 L_lspin')
    a.label('L_lok')
    mg = [S+4, S+6, O, O+2]
    G0 = S + 8
    og = [[G0+4*n+e for e in range(4)] for n in range(4)]
    for n in range(4):
        a(f'ds_read_b64 {vr(mg[n],2)}, {vr(R0+1)} offset:{16*n}')
    for n in range(4):
        if n: a(f'v_add_u32 {vr(R0+3)}, 1024, {vr(R0+3)}')
        a(f'ds_read2_b32 {vr(G0+4*n,2)}, {vr(R0+3)} offset0:0 offset1:2')
        a(f'ds_read2_b32 {vr(G0+4*n+2,2)}, {vr(R0+3)} offset0:4 offset1:6')
    a('s_waitcnt lgkmcnt(0)')
    combine(og, mg, R0+1)
    a(f'v_mov_b32 {vr(G0+4)}, {vr(G0+3)}')
    a(f'v_mov_b32 {vr(G0+5)}, {vr(R0+1)}')
    a(f'v_mov_b32 {vr(G0+6)}, {vr(mg[0]+1)}')
    a(f'v_mov_b32 {vr(G0+7)}, s{sN}')
    a(f'v_mov_b32 {vr(G0+3)}, s{sN}')
    a(f'buffer_store_dwordx4 {vr(G0+4,4)}, {vr(R0)}, {sr(sW,4)}, s42 offen offset:1024 sc0 sc1')
    a(f'buffer_store_dwordx4 {vr(G0,4)}, {vr(R0)}, {sr(sW,4)}, s42 offen sc0 sc1')
    a(f's_cmp_lg_u32 s{sN}, 0')
    a('s_cbranch_scc1 L_tagged')
    a('s_waitcnt vmcnt(0)')
    a(f's_lshl_b32 s{sT0}, s{sH}, 3')
    a(f's_lshl_b32 s{sT1}, 1, s{sC}')
    a(f'v_mov_b32 {vr(R0)}, s{sT0}')
    a(f'v_mov_b32 {vr(R0+1)}, s{sT1}')
    a('s_mov_b64 exec, 1')
    a(f'global_atomic_or {vr(R0)}, {vr(R0+1)}, s[16:17] offset:4 sc1')
    a('s_mov_b64 exec, -1')
    a.label('L_tagged')
    a('s_waitcnt vmcnt(6)')
    a.label('L_tileA')
    def qfrag(Q, tile, tmp):
        for ks in range(1, 4):
            a(f'v_xor_b32 {vr(tmp+ks-1)}, {64*ks}, {vr(vAQ)}')
        for ks in range(4):
            a(f'ds_read_b128 {vr(Q+4*ks,4)}, {vr(vAQ if ks == 0 else tmp+ks-1)} offset:{4096*tile}')
    qfrag(QA, 0, S+13)
    only(HW, 'L_nohalo2')
    a(f'v_add_u32 {vr(S+12)}, {HALO}, {vr(vAQ)}')
    for ks in range(1, 4):
        a(f'v_add_u32 {vr(S+12+ks)}, {HALO}, {vr(S+12+ks)}')
    for W in (0, 1):
        for ks in range(4):
            a(f'ds_read_b128 {vr(kf(W,ks),4)}, {vr(S+12+ks)} offset:{4096*W}')
    if vlate:
        for t in range(8):
            a(vread(X[t+1], t, 0)); a(vread(X[t+1]+2, t, 1))
    a.label('L_nohalo2')
    a('s_waitcnt lgkmcnt(0)')
    def yprio(tag):
        if yp == tag:
            a(f's_cmp_lt_u32 s{sWV}, 4')
            a(f's_cbranch_scc1 L_yp{tag}')
            a('s_setprio 1')
            a.label(f'L_yp{tag}')
    yprio('a')
    stamp()

    def inter(ms, vs, per=2):
        vs = list(vs)
        for m in ms:
            a(m)
            for _ in range(per):
                if vs: a(vs.pop(0))
        for v in vs: a(v)

    HB = kf(2, 0)
    def hand_loads():
        a(f'v_mbcnt_lo_u32_b32 {vr(KG)}, -1, 0')
        a(f'v_mbcnt_hi_u32_b32 {vr(KG)}, -1, {vr(KG)}')
        a(f'v_lshlrev_b32 {vr(KG)}, 4, {vr(KG)}')
        for n in range(8):
            a(f's_movk_i32 s{sT0}, {2048*n}')
            a(f'buffer_load_dwordx4 {vr(HB+8*n,4)}, {vr(KG)}, {sr(sW,4)}, s{sT0} offen sc0 sc1')
            a(f'buffer_load_dwordx4 {vr(HB+8*n+4,4)}, {vr(KG)}, {sr(sW,4)}, s{sT0} offen offset:1024 sc0 sc1')

    buf = [kf(0, n) for n in range(4)] + [QA + 4*n for n in range(4)]
    SLOTW = {0: [0, 1, 2, 3, 4], 1: [4, 5, 2, 3, 1]}
    def qk(tau, sl):
        Q = QA if tau == 0 else QB
        if sl == 'G':
            return [mfma(S+20, KG+4*ks, Q+4*ks, '0' if ks == 0 else S+20) for ks in range(4)]
        W = SLOTW[tau][sl]
        c0 = BLO if W == tau else BHI if W == tau + 4 else '0'
        return [mfma(S+4*sl, kf(W,ks), Q+4*ks, c0 if ks == 0 else S+4*sl) for ks in range(4)]
    def edge_test(tau, lab):
        a(f's_sub_u32 s{sT0}, s{sQB}, {48 - 16*tau}')
        a(f's_cmp_lt_u32 s{sT0}, 1968')
        a(f's_cbranch_scc1 {lab}')
    def edge_mask(tau, tr):
        a(f'v_mbcnt_lo_u32_b32 {vr(tr)}, -1, 0')
        a(f'v_mbcnt_hi_u32_b32 {vr(tr)}, -1, {vr(tr)}')
        a(f'v_lshrrev_b32 {vr(tr)}, 4, {vr(tr)}')
        a(f's_sub_u32 s{sT0}, s{sQB}, 34')
        a(f's_movk_i32 s{sT1}, 2046')
        a(f'v_lshl_add_u32 {vr(tr)}, {vr(tr)}, 2, s{sT0}')
        a(f'v_mov_b32 {vr(vM)}, 0x{NEG:08x}')
        a('s_nop 3')
        for sl in range(5):
            for r in range(4):
                a(f'v_add_u32 {vr(vT)}, {16*SLOTW[tau][sl]+r}, {vr(tr)}')
                a(f'v_cmp_gt_u32 vcc, s{sT1}, {vr(vT)}')
                a('s_nop 1')
                a(f'v_cndmask_b32 {vr(S+4*sl+r)}, {vr(vM)}, {vr(S+4*sl+r)}, vcc')
        for l in maxtree_l([S+x for x in range(22)], vM): a(l)
    def epi(t, tau=0):
        l = [f'v_mul_f32 {vr(O+4*t+e)}, {vr(O+4*t+e)}, {vr(vT0)}' for e in range(4)]
        l += [f'v_cvt_pk_bf16_f32 {vr(O+4*t)}, {vr(O+4*t)}, {vr(O+4*t+1)}',
              f'v_cvt_pk_bf16_f32 {vr(O+4*t+1)}, {vr(O+4*t+2)}, {vr(O+4*t+3)}',
              f'ds_write_b64 {vr(vSW)}, {vr(O+4*t,2)} offset:{32*t}']
        if xst:
            l[-1] = f'ds_write_b64 {vr(S+t if t else vSW)}, {vr(O+4*t,2)} offset:{4096*tau}'
            if t: l = [f'v_xor_b32 {vr(S+t)}, {32*t}, {vr(vSW)}'] + l
        return l
    def stage_reads(tau=0, R=O):
        if xst:
            return [f'v_xor_b32 {vr(S+8+j)}, {64*j}, {vr(vSR)}' for j in range(1, 4)] + \
                   [f'ds_read_b128 {vr(R+4*j,4)}, {vr(S+8+j if j else vSR)} offset:{1024*j + 4096*tau}' for j in range(4)]
        return [f'ds_read_b128 {vr(R+4*j,4)}, {vr(vSR)} offset:{4*STGP*j}' for j in range(4)]
    def stores(tau, R=O, extra=0):
        for j in range(4):
            a(f's_waitcnt lgkmcnt({3-j+extra})')
            if tau == 0 and j == 0: a(f's_mov_b64 exec, {sr(sEX,2)}')
            a(f'buffer_store_dwordx4 {vr(R+4*j,4)}, {vr(vOO)}, {sr(sO,4)}, s{sTOFF if tau else sZERO} offen offset:{1024*j} {stpol}')
            if tau == 0 and j == 0: a('s_mov_b64 exec, -1')
    RA = kf(1, 0)
    def late_a():
        for l in stage_reads(0, RA): a(l)
        stores(0, RA)
    def softmax_pv(tau):
        m = vM
        xred(m, vT)
        a(f'v_mul_f32 {vr(m)}, s{sCS}, {vr(m)}')
        set0 = [S+x for x in range(8)]; set1 = [S+8+x for x in range(8)]; set2 = [S+16+x for x in range(6)]
        for l in fma_l(set0, m): a(l)
        f2 = fma_l(set2, m); f1 = fma_l(set1, m)
        for l in exp_l(set0): a(l)
        a(f2[0])
        for l in cvt_l(S, S, 4): a(l)
        a(f2[1])
        a('s_waitcnt lgkmcnt(0)' if tau == 1 else 's_waitcnt lgkmcnt(8)')
        if tau == 1 and apos == 1: late_a()
        ONES, LACC = S+4, S+20
        v2 = f2[2:] + exp_l(set2) + [f'v_mov_b32 {vr(ONES+n)}, 0x3f803f80' for n in range(4)] + cvt_l(S+16, S+16, 3) \
             + [f'v_mov_b32 {vr(S+19)}, 0', f'v_cndmask_b32 {vr(S+18)}, 0, {vr(S+18)}, {sr(sKG0,2)}']
        inter([mfma(X[t], X[t+1], S, '0') for t in range(8)], v2 + f1[:2])
        if tau == 1 and apos == 4: late_a()
        v1 = f1[2:] + exp_l(set1) + [f'v_mov_b32 {vr(vT0)}, 0'] + cvt_l(S+8, S+8, 4)
        inter([mfma(O+4*t, VG+4*t, S+16, O+4*t) for t in range(8)], v1)
        a(mfma(LACC, ONES, S, '0'))
        a(mfma(LACC, ONES, S+16, LACC))
        a(mfma(LACC, ONES, S+8, LACC))
        if tau == 0:
            a('s_waitcnt lgkmcnt(0)')
        for t in range(8):
            a(mfma(O+4*t, buf[t], S+8, O+4*t))
            if tau == 0: a(vread(VG+4*t, t, 1))
        a(f'v_rcp_f32 {vr(vT0)}, {vr(LACC)}')

    late = []
    for t in range(8):
        late += [vread(buf[t], t, 2), vread(buf[t]+2, t, 3)]
    vgr = [vread(VG+4*t, t, 4) for t in range(8)]
    edge_test(0, 'L_fastA')
    for l in vgr: a(l)
    for sl in ('G', 0, 1, 2, 3, 4):
        for l in qk(0, sl): a(l)
    for l in late: a(l)
    edge_mask(0, vT0)
    a('s_branch L_joinA')
    a.label('L_fastA')
    m = vM
    inter(qk(0, 0) + qk(0, 'G'), vgr, per=1)
    inter(qk(0, 1) + qk(0, 2), late[:8], per=1)
    inter(qk(0, 3), maxtree_l([S+20, S+21, S+0], m) + maxtree_l([S+1, S+2, S+3, S+4, S+5, S+6], m, False), per=1)
    inter(qk(0, 4), maxtree_l([S+7, S+8, S+9, S+10], m, False), per=1)
    for l in late[8:11]: a(l)
    for l in maxtree_l([S+11, S+12], m, False): a(l)
    for l in late[11:13]: a(l)
    for l in maxtree_l([S+13, S+14, S+15], m, False): a(l)
    for l in late[13:]: a(l)
    for l in maxtree_l([S+16, S+17, S+18, S+19], m, False): a(l)
    a.label('L_joinA')
    yprio('s')
    stamp(fine)
    softmax_pv(0)
    stamp(fine)
    ep = []
    for t in range(8): ep += epi(t)
    if apos == 0: ep += stage_reads()
    xb = []
    for t in range(8): xb += [vread(X[t+1], t, 4), vread(X[t+1]+2, t, 5)]
    def qb_wait(n):
        a(f's_waitcnt vmcnt({n+2})')
        if opt.get('otouch'):
            a(f's_and_b32 s{sT0}, s{sWV}, 3')
            a(f's_cmp_eq_u32 s{sT0}, 3')
        else:
            a(f's_cmp_eq_u32 s{sWV}, {RW}')
        a('s_cbranch_scc1 L_qbw')
        a(f's_waitcnt vmcnt({n})')
        a.label('L_qbw')
    if merge is False:
        a('s_nop 0')
        for l in ep: a(l)
        stores(0)
        for l in xb: a(l)
        qb_wait(4)
        stamp()
        qfrag(QB, 1, S+13)
        a('s_waitcnt lgkmcnt(0)')
        edge_test(1, 'L_fastB')
        for sl in ('G', 0, 1, 2, 3, 4):
            for l in qk(1, sl): a(l)
        edge_mask(1, vT0)
        a('s_branch L_joinB')
        a.label('L_fastB')
        for sl in ('G', 0, 1, 2):
            for l in qk(1, sl): a(l)
        inter(qk(1, 3), maxtree_l([S+20, S+21, S+0], m) + maxtree_l([S+1, S+2], m, False), per=1)
        inter(qk(1, 4), maxtree_l([S+3, S+4, S+5, S+6, S+7, S+8], m, False), per=1)
        a.nop(1)
        for l in maxtree_l([S+9, S+10, S+11, S+12], m, False): a(l)
        a.nop(1)
        for l in maxtree_l([S+13, S+14, S+15], m, False): a(l)
        a.nop(2)
        for l in maxtree_l([S+16, S+17, S+18, S+19], m, False): a(l)
    else:
        qb_wait(0)
        stamp()
        qfrag(QB, 1, S+13)
        edge_test(1, 'L_fastB')
        for l in ep: a(l)
        if apos == 0: stores(0)
        else: a('s_waitcnt lgkmcnt(0)')
        for sl in (0, 1, 2, 3, 4, 'G'):
            for l in qk(1, sl): a(l)
        for l in xb: a(l)
        edge_mask(1, vT0)
        a('s_branch L_joinB')
        a.label('L_fastB')
        ms = []
        for sl in (0, 1, 2, 3, 4, 'G'): ms += qk(1, sl)
        npre = int(opt.get('npre', 2)); per = int(opt.get('per', 2))
        for l in ep[:7*npre]: a(l)
        a(f's_waitcnt lgkmcnt({npre})')
        inter(ms, ep[7*npre:], per=per)
        for l in maxtree_l([S+x for x in range(15)], vT0): a(l)
        if apos == 0: stores(0)
        for l in xb: a(l)
        a(f'v_max3_f32 {vr(vM)}, {vr(vT0)}, {vr(S+15)}, {vr(S+16)}')
        for l in maxtree_l([S+17, S+18, S+19, S+20, S+21], vM, False): a(l)
    a.label('L_joinB')
    yprio('b')
    stamp()
    a(f's_cmp_eq_u32 s{sCMB}, 0')
    a('s_cbranch_scc1 L_nohand')
    hand_loads()
    a.label('L_nohand')
    softmax_pv(1)
    stamp(fine)
    if apos == 2:
        late_a()
    a('s_nop 0')
    if apos == 3:
        for l in stage_reads(0, RA): a(l)
    for t in range(8):
        for l in epi(t, 1): a(l)
    for l in stage_reads(1): a(l)
    if apos == 3:
        stores(0, RA, extra=4+8) if False else None
        for j in range(4):
            if j == 0: a(f's_mov_b64 exec, {sr(sEX,2)}')
            if j == 0: a('s_waitcnt lgkmcnt(4)')
            a(f'buffer_store_dwordx4 {vr(RA+4*j,4)}, {vr(vOO)}, {sr(sO,4)}, s{sZERO} offen offset:{1024*j} {stpol}')
            if j == 0: a('s_mov_b64 exec, -1')
    stores(1)
    stamp()

    a(f's_cmp_eq_u32 s{sCMB}, 0')
    a('s_cbranch_scc1 L_fin')
    a(f's_waitcnt vmcnt({4 if apos == 0 else 8})')
    a(f's_mov_b32 s{sCNT}, 0')
    a(f's_mov_b32 s{sT2}, 0')
    a.label('L_chk')
    a(f's_mov_b32 s{sT3}, s{sT2}')
    for n in range(8):
        a(f'v_cmp_eq_u32 vcc, s{sN}, {vr(HB+8*n+3)}')
        a(f'v_cmp_eq_u32 s[60:61], s{sN}, {vr(HB+8*n+7)}')
        a('s_nop 0')
        a('s_and_b64 vcc, vcc, s[60:61]')
        a('s_cmp_eq_u64 vcc, exec')
        a(f's_cselect_b32 s{sT0}, {1 << n}, 0')
        a(f's_or_b32 s{sT3}, s{sT3}, s{sT0}')
    a(f's_add_u32 s{sCNT}, s{sCNT}, 1')
    a(f's_cmp_eq_u32 s{sT3}, 0xff')
    a('s_cbranch_scc1 L_ready')
    a(f's_cmp_ge_u32 s{sCNT}, 0x40000')
    a('s_cbranch_scc1 L_ready')
    a(f's_lshl_b32 s{sT0}, s{sH}, 3')
    a(f'v_mov_b32 {vr(KG+1)}, s{sT0}')
    a(f'global_load_dword {vr(KG+2)}, {vr(KG+1)}, s[16:17] offset:4 sc0 sc1')
    a('s_waitcnt vmcnt(0)')
    a(f'v_readfirstlane_b32 s{sT2}, {vr(KG+2)}')
    hand_loads()
    a('s_waitcnt vmcnt(0)')
    a('s_branch L_chk')
    a.label('L_ready')
    hog = [[HB+8*n, HB+8*n+1, HB+8*n+2, HB+8*n+4] for n in range(8)]
    hmg = [HB+8*n+5 for n in range(8)]
    combine(hog, hmg, X8)
    a(f'v_rcp_f32 {vr(X8)}, {vr(hmg[0]+1)}')
    a(f'v_lshrrev_b32 {vr(KG)}, 1, {vr(KG)}')
    for e in range(4):
        a(f'v_mul_f32 {vr(hog[0][e])}, {vr(hog[0][e])}, {vr(X8)}')
    a(f'v_cvt_pk_bf16_f32 {vr(X8+2)}, {vr(hog[0][0])}, {vr(hog[0][1])}')
    a(f'v_cvt_pk_bf16_f32 {vr(X8+3)}, {vr(hog[0][2])}, {vr(hog[0][3])}')
    a(f'buffer_store_dwordx2 {vr(X8+2,2)}, {vr(KG)}, {sr(sO,4)}, 0 offen {stpol}')
    a.label('L_fin')
    if stamps:
        fin_[0] = True
        stamp()
        a('s_waitcnt vmcnt(0)')
        stamp()
        if opt.get('clk'):
            a('s_memtime s[98:99]')
            a('s_waitcnt lgkmcnt(0)')
            a('s_sub_u32 s98, s98, s96')
            a(f's_add_u32 s{64+2*nst[0]}, s98, s64')
            nst[0] += 1
        a(f's_lshl_b32 s{sT0}, s2, 3')
        a(f's_add_u32 s{sT0}, s{sT0}, s{sWV}')
        a(f's_lshl_b32 s{sT0}, s{sT0}, 6')
        a(f's_add_u32 s{sT0}, s{sT0}, 0x100000')
        a(f's_add_u32 s{sW}, s18, s{sT0}')
        a(f's_addc_u32 s{sW+1}, s19, 0')
        a(f'v_mov_b32 v1, 0')
        a('s_mov_b64 exec, 1')
        for n in range(min(16, nst[0])):
            a(f'v_mov_b32 v2, s{64+2*n}')
            a(f'buffer_store_dword v2, v1, {sr(sW,4)}, 0 offen offset:{4*n}')
        a('s_getreg_b32 s61, hwreg(HW_REG_XCC_ID, 0, 4)')
        a('v_mov_b32 v2, s61')
        a(f'buffer_store_dword v2, v1, {sr(sW,4)}, 0 offen offset:60')
        if 'leak' in opt:
            k = int(opt['leak'])
            a(f's_sub_u32 s{sT0}, s{64+2*k}, s64')
            a(f's_lshl_b32 s{sT0}, s{sT0}, 2')
            if opt.get('leakskew'):
                a.label('L_pre')
                a('s_memrealtime s[100:101]')
                a('s_waitcnt lgkmcnt(0)')
                a(f's_sub_u32 s{sT1}, s100, s64')
                a(f's_cmp_lt_u32 s{sT1}, 3000')
                a('s_cbranch_scc1 L_pre')
                a('s_mov_b64 exec, -1')
                a('v_mbcnt_lo_u32_b32 v3, -1, 0')
                a('v_and_b32 v3, 31, v3')
                a('v_lshlrev_b32 v3, 3, v3')
                a('global_load_dword v4, v3, s[16:17] sc0 sc1')
                a('s_waitcnt vmcnt(0)')
                a('v_readlane_b32 s20, v4, 0')
                a('s_mov_b32 s21, 0'); a('s_mov_b32 s22, 0')
                for n in range(1, 32):
                    a(f'v_readlane_b32 s23, v4, {n}')
                    a('s_nop 0')
                    a('s_sub_i32 s23, s23, s20')
                    a('s_min_i32 s21, s21, s23')
                    a('s_max_i32 s22, s22, s23')
                a(f's_sub_u32 s{sT0}, s22, s21')
                a(f's_min_u32 s{sT0}, s{sT0}, 2000')
                a(f's_lshl_b32 s{sT0}, s{sT0}, 2')
            if opt.get('leakxcc'):
                a('s_getreg_b32 s61, hwreg(HW_REG_XCC_ID, 0, 4)')
                a(f's_bfe_u32 s60, s{sN}, 0x40001')
                a('s_cmp_lg_u32 s60, s61')
                a(f's_cselect_b32 s{sT0}, 2000, 0')
            if opt.get('leakcnt'):
                a(f's_mul_i32 s{sT0}, s{sCNT}, 500')
                a(f's_mul_i32 s{sT0}, s{sT0}, s{sCMB}')
            if 'leakh' in opt:
                lo, hi = opt['leakh'].split(',')
                a(f's_sub_u32 s{sT1}, s{sH}, {lo}')
                a(f's_cmp_lt_u32 s{sT1}, {int(hi)-int(lo)}')
                a(f's_cselect_b32 s{sT0}, s{sT0}, 0')
            if 'leakwg' in opt:
                a(f's_cmp_eq_u32 s2, {opt["leakwg"]}')
                a(f's_cselect_b32 s{sT0}, s{sT0}, 0')
            if 'leakx' in opt:
                a(f's_getreg_b32 s{sT1}, hwreg(HW_REG_XCC_ID, 0, 4)')
                a(f's_lshr_b32 s{sT1}, {opt["leakx"]}, s{sT1}')
                a(f's_bitcmp1_b32 s{sT1}, 0')
                a(f's_cselect_b32 s{sT0}, s{sT0}, 0')
            if 'leakw' in opt:
                a(f's_lshr_b32 s{sT1}, {opt["leakw"]}, s{sWV}')
                a(f's_bitcmp1_b32 s{sT1}, 0')
                a(f's_cselect_b32 s{sT0}, s{sT0}, 0')
            a(f"s_add_u32 s{sT0}, s{sT0}, {opt.get('spin', 5000)}")
            a.label('L_spin')
            a('s_memrealtime s[100:101]')
            a('s_waitcnt lgkmcnt(0)')
            a(f's_sub_u32 s{sT1}, s100, s64')
            a(f's_cmp_lt_u32 s{sT1}, s{sT0}')
            a('s_cbranch_scc1 L_spin')
    a.label('L_end')
    a('s_endpgm')
    if cpf:
        a('.fill (L_base + 12352 - .) / 4, 4, 0xbf810000')

    check(a.lines)
    if stamps: print('stamps', nst[0])
    head = f'''; windowed + global-token attention, B=1 H=32 S=2048 D=128 bf16 (window 32, 2 global tokens)
; One workgroup (8 waves) per 256 queries of one head; generated by the author's own script (dev/gen16.py).
;    writes it to d_ws tagged with a per-launch value published in d_debug; one wave per head merges the 8 partials.
; @launch grid=(256,1,1) block=(512,1,1) lds=163840
.amdgcn_target "amdgcn-amd-amdhsa--gfx950"
.text
.globl {NAME}
.p2align 8
.type {NAME},@function
{NAME}:
'''
    tail = f'''.section .rodata,"a"
.p2align 6
.amdhsa_kernel {NAME}
  .amdhsa_next_free_vgpr 256
  .amdhsa_next_free_sgpr {102 if stamps else 64}
  .amdhsa_accum_offset 256
  .amdhsa_group_segment_fixed_size 0
  .amdhsa_kernarg_size 64
  .amdhsa_user_sgpr_count 2
  .amdhsa_user_sgpr_kernarg_segment_ptr 1
  .amdhsa_system_sgpr_workgroup_id_x 1
.end_amdhsa_kernel
'''
    return head + a.text() + tail

if __name__ == '__main__':
    out = sys.argv[1]
    opt = {}
    for kv in sys.argv[2:]:
        k, v = kv.split('=', 1)
        opt[k] = {'True': True, 'False': False}.get(v, v.replace('+', ' '))
    open(out, 'w').write(gen(opt))
```

```python
import sys, math, struct
from asmlib import *

NAME = 'standalone__global_local_windowed_global_tokens__prompt_kernel'
def f2u(x): return struct.unpack('<I', struct.pack('<f', x))[0]

def gen(opt):
    a = Asm()
    NEG = 0xFF000000
    CSC = f2u(128 ** -0.5 * math.log2(math.e))
    KOFF, VOFF, SOFF = 0, 73728, 155648
    apos = int(opt.get('apos', 0))
    PART, HALO = SOFF + 3328, 65536
    PARTML, LCNT, LNON = SOFF + 3072, SOFF + 3072 + 128, SOFF + 3072 + 132
    STGP = 272
    ldpol = opt.get('ldpol', '')
    qpol = opt.get('qpol', 'nt')
    stpol = opt.get('stpol', 'nt')
    pk = opt.get('pk', True)
    vlate = opt.get('vlate', False); EW = 3
    N1 = int(opt.get('n1', 12))
    yp = opt.get('yp', '')
    RW = int(opt.get('rw', 3))
    FW = 7
    SW = 5
    CW, CC = int(opt.get('cw', 1)), 3
    merge = opt.get('merge', True)
    sQ, sK, sV, sO, sW = 20, 24, 28, 32, 36
    sWV, sH, sC, sHO, sQ0B = 40, 43, 44, 45, 46
    sT0, sT1, sT2, sT3 = 47, 48, 49, 50
    sBK = 62
    HW = 4
    sCS = 52; sKG0 = 54; sQB = 51; sEX = 56; sCMB = 58; sCNT = 59; sN = 63; sTOFF = 41; sZERO = 3
    VA = 0
    vSW, vSR, vOO, vT0 = 8, 9, 10, 11
    X8 = 12
    KF = 16; KG = 112; QA, QB = 128, 144; VG = 160; O = 192; S = 224
    BLO, BHI = 248, 252
    kf = lambda W, ks: KF + 16 * W + 4 * ks
    X = [O + 4 * n for n in range(8)] + [X8]
    vLANE, vI, vKGp, vDK, vDV, vDQ, vAG, vNEG, vAK = O+16, O+17, O+18, O+19, O+20, O+21, O+22, O+23, O+24
    vAVG, t1, t2, t3 = O+28, O+29, O+30, O+31
    vDQk = VG + 7
    vLV = VG + 15
    vAQ = VG + 11
    vFLAG = VG + 3
    vM, vT = S + 22, S + 23

    stamps = opt.get('stamps', False)
    fine = opt.get('fine', False)
    nst = [0]
    mini = opt.get('mini', False); fin_ = [False]
    def stamp(on=True):
        if mini and nst[0] and not fin_[0]: return
        if stamps and on:
            a(f's_memrealtime s[{64+2*nst[0]}:{65+2*nst[0]}]')
            if nst[0]: a('s_waitcnt lgkmcnt(0)')
            nst[0] += 1
    M16 = 'v_mfma_f32_16x16x32_bf16'
    def mfma(d, x, y, c):
        return f'{M16} {vr(d,4)}, {vr(x,4)}, {vr(y,4)}, {c if isinstance(c,str) else vr(c,4)}'
    def only(w, lab):
        a(f's_cmp_lg_u32 s{sWV}, {w}')
        a(f's_cbranch_scc1 {lab}')

    stamp()
    if opt.get('clk'): a('s_memtime s[96:97]')
    a('s_load_dwordx16 s[4:19], s[0:1], 0')
    a(f'v_readfirstlane_b32 s{sWV}, v0')
    a('s_cmp_ge_u32 s2, 256')
    a('s_cbranch_scc1 L_end')
    a(f'v_lshrrev_b32 {vr(t1)}, 4, v0')
    a(f'v_xor_b32 {vr(vDK)}, {vr(t1)}, v0')
    a(f'v_and_b32 {vr(vDK)}, 15, {vr(vDK)}')
    a(f'v_lshl_add_u32 {vr(vDK)}, {vr(t1)}, 4, {vr(vDK)}')
    a(f's_bfe_u32 s{sC}, s2, 0x30003')
    a(f's_lshl_b32 s{sQ0B}, s{sC}, 16')
    a(f'v_lshl_add_u32 {vr(vDK)}, {vr(vDK)}, 4, s{sQ0B}')
    a('s_and_b32 s41, s2, 7')
    a(f's_lshr_b32 s{sH}, s2, 6')
    a(f's_lshl2_add_u32 s{sH}, s41, s{sH}')
    a(f's_lshl_b32 s{sHO}, s{sH}, 19')
    a(f's_lshl_b32 m0, s{sWV}, 4')
    a(f's_mov_b32 s{sK+2}, 0x80000')
    a(f's_mov_b32 s{sK+3}, 0x20000')
    a(f's_movk_i32 s{sCNT}, 11')
    cpf = opt.get('cpf', True)
    a.label('L_base')
    if cpf is True:
        a(f's_getpc_b64 s[{sEX}:{sEX+1}]')
        a(f'v_mul_u32_u24 v1, 24, v0')
        a(f'global_load_dword {vr(X8)}, v1, s[{sEX}:{sEX+1}]')
    a(f's_cmp_ge_u32 s{sWV}, 256')
    a('s_cbranch_scc1 L_helper')
    a('s_waitcnt lgkmcnt(0)')
    stamp()
    a(f's_add_u32 s{sK}, s6, s{sHO}')
    a(f's_addc_u32 s{sK+1}, s7, 0')
    thr = int(opt.get('thr', 0)); tl = [0]
    if thr: a('s_getreg_b32 s1, hwreg(HW_REG_XCC_ID, 0, 4)')
    def throttle():
        if thr:
            a('s_bitcmp1_b32 s1, 0')
            a(f's_cbranch_scc{opt.get("thpar", 1)} L_th{tl[0]}')
            a(f's_waitcnt vmcnt({thr-1})')
            a.label(f'L_th{tl[0]}')
            tl[0] += 1
    snt = opt.get('snt', 'kv')
    def kpiece(pol):
        a(f'buffer_load_dwordx4 {vr(vDK)}, {sr(sK,4)}, 0 offen {pol} lds')
        a('s_add_u32 m0, m0, 0x1000')
        a(f'v_add_u32 {vr(vDK)}, 0x1000, {vr(vDK)}')
    kpiece(''); kpiece('')
    a.label('L_kloop')
    kpiece('nt')
    a(f's_sub_u32 s{sCNT}, s{sCNT}, 1')
    a('s_cbranch_scc0 L_kloop')
    for i in range(4): kpiece('')
    if 'dup' in opt:
        nd = int(opt['dup'])
        a(f's_sub_u32 m0, m0, {0x1000*18}')
        a(f'v_subrev_u32 {vr(vDK)}, {0x1000*18}, {vr(vDK)}')
        for i in range(nd):
            a(f'buffer_load_dwordx4 {vr(vDK)}, {sr(sK,4)}, 0 offen lds')
            a('s_add_u32 m0, m0, 0x1000')
            a(f'v_add_u32 {vr(vDK)}, 0x1000, {vr(vDK)}')
    stamp(opt.get('postk', False))
    def common():
        a(f's_lshr_b32 s{sWV}, s{sWV}, 6')
        a(f'v_and_b32 {vr(vLANE)}, 63, v0')
        a(f'v_and_b32 {vr(vI)}, 15, v0')
        a(f'v_bfe_u32 {vr(vKGp)}, v0, 4, 2')
        a(f's_lshl_b32 s{sT1}, s{sWV}, 10')
        a(f's_add_u32 s{sT2}, s{sT1}, s{sQ0B}')
        for s_ in (sV, sQ):
            a(f's_mov_b32 s{s_+2}, 0x80000')
            a(f's_mov_b32 s{s_+3}, 0x20000')
        a(f's_mov_b32 s{sW+2}, 0x4000')
        a(f's_mov_b32 s{sW+3}, 0x20000')
        a(f's_and_b32 s{sBK}, s{sWV}, 3')
        a(f's_lshl_b32 s{sBK}, s{sBK}, 1')
        a(f's_cmp_lt_u32 s{sWV}, 4')
        a(f's_addc_u32 s{sBK}, s{sBK}, 0')
        a(f's_cmp_eq_u32 s{sC}, 0')
        a(f's_cselect_b32 s{sT3}, 0x40000000, 0')
        a(f's_lshl_b32 s{sT0}, s{sBK}, 13')
        a(f's_add_u32 s{sT0}, s{sT0}, s{sQ0B}')
        a(f'v_xor_b32 {vr(vDQ)}, {vr(vKGp)}, {vr(vI)}')
        a(f'v_lshlrev_b32 {vr(vDQ)}, 4, {vr(vDQ)}')
        a(f'v_lshl_add_u32 {vr(vDQ)}, {vr(vKGp)}, 8, {vr(vDQ)}')
        a(f'v_add_u32 {vr(vDQ)}, s{sT0}, {vr(vDQ)}')
        a(f'v_lshlrev_b32 {vr(t3)}, 4, {vr(vLANE)}')
        a(f's_lshl_b32 s41, s{sH}, 14')
        a(f's_lshl_b32 s42, s{sC}, 11')
    common()
    a(f's_mov_b32 s{sN}, 0')
    def srds():
        a(f's_add_u32 s{sV}, s8, s{sHO}')
        a(f's_addc_u32 s{sV+1}, s9, 0')
        a(f's_add_u32 s{sQ}, s4, s{sHO}')
        a(f's_addc_u32 s{sQ+1}, s5, 0')
        a(f's_add_u32 s{sW}, s18, s41')
        a(f's_addc_u32 s{sW+1}, s19, 0')
    srds()
    a('s_branch L_v1')
    for _ in range(int(opt.get('pad', 0))): a('s_nop 0')
    a.label('L_helper')
    a('s_setprio 3')
    a('s_memrealtime s[60:61]')
    if cpf == 'one':
        a(f's_cmp_lg_u32 s{sWV}, {64*6}')
        a('s_cbranch_scc1 L_nocpf')
        a(f's_getpc_b64 s[{sEX}:{sEX+1}]')
        a(f's_lshl_b32 s{sT0}, s{sC}, 11')
        a(f'v_and_b32 v1, 15, v0')
        a(f'v_lshl_add_u32 v1, v1, 7, s{sT0}')
        a('s_mov_b64 exec, 0xffff')
        a(f'global_load_dword {vr(X8)}, v1, s[{sEX}:{sEX+1}]')
        a('s_mov_b64 exec, -1')
        a.label('L_nocpf')
    common()
    a(f's_mov_b32 m0, {SOFF}')
    a('s_waitcnt lgkmcnt(0)')
    if stamps and not mini:
        nst[0] -= 1
        stamp()
    a(f's_add_u32 s{sK}, s6, s{sHO}')
    a(f's_addc_u32 s{sK+1}, s7, 0')
    srds()
    if stamps and opt.get('postk'):
        nst[0] -= 1
        stamp()
    a(f's_or_b32 s{sN}, s60, 1')
    if opt.get('leakxcc'):
        a('s_getreg_b32 s61, hwreg(HW_REG_XCC_ID, 0, 4)')
        a(f's_and_b32 s{sN}, s60, 0xffffffe0')
        a(f's_lshl1_add_u32 s{sN}, s61, s{sN}')
        a(f's_or_b32 s{sN}, s{sN}, 1')
    only(FW, 'L_noclear')
    a(f's_lshl_b32 s{sT0}, s{sH}, 3')
    a(f'v_mov_b32 {vr(S+4)}, s{sT0}')
    a(f'v_mov_b32 {vr(S+5)}, s{sN}')
    a(f'v_mov_b32 {vr(S+6)}, {LCNT}')
    a(f'v_mov_b32 {vr(S+7)}, 0')
    a('s_mov_b64 exec, 1')
    a(f's_cmp_lg_u32 s{sC}, {CC}')
    a('s_cbranch_scc1 L_nopub')
    a(f'global_store_dword {vr(S+4)}, {vr(S+5)}, s[16:17] sc0 sc1')
    a.label('L_nopub')
    a(f'ds_write_b32 {vr(S+6)}, {vr(S+7)}')
    a('s_mov_b64 exec, -1')
    if opt.get('wstouch'):
        pol = {'ld': '', 'ldsc': 'sc0 sc1'}.get(opt['wstouch'])
        if pol is not None:
            a(f'buffer_load_dwordx4 {vr(S+8,4)}, {vr(t3)}, {sr(sW,4)}, s42 offen {pol}')
            a(f'buffer_load_dwordx4 {vr(S+12,4)}, {vr(t3)}, {sr(sW,4)}, s42 offen offset:1024 {pol}')
        else:
            for n in range(4): a(f'v_mov_b32 {vr(S+8+n)}, 0')
            a(f'buffer_store_dwordx4 {vr(S+8,4)}, {vr(t3)}, {sr(sW,4)}, s42 offen sc0 sc1')
            a(f'buffer_store_dwordx4 {vr(S+8,4)}, {vr(t3)}, {sr(sW,4)}, s42 offen offset:1024 sc0 sc1')
    a.label('L_noclear')
    only(SW, 'L_nosmall')
    for n, srd in enumerate((sK, sQ, sV)):
        if n:
            a(f's_mov_b32 m0, {SOFF + 1024*n}')
            a('s_nop 0')
        a(f'buffer_load_dwordx4 {vr(t3)}, {sr(srd,4)}, 0 offen lds')
    a.label('L_nosmall')
    a('s_setprio 0')
    v2h = int(opt.get('v2h', 0))
    def vaddr(i0):
        a(f's_and_b32 s{sT0}, s{sWV}, 1')
        a(f's_lshl_b32 s{sT0}, s{sT0}, 2')
        a(f'v_add_lshl_u32 {vr(vDV)}, s{sT0}, {vr(vKGp)}, 1')
        a(f'v_xor_b32 {vr(vDV)}, {vr(vDV)}, {vr(vI)}')
        a(f'v_lshlrev_b32 {vr(vDV)}, 4, {vr(vDV)}')
        a(f'v_lshl_add_u32 {vr(vDV)}, {vr(vKGp)}, 8, {vr(vDV)}')
        a(f's_add_u32 s{sT2}, s{sT2}, {(0x1000*i0 - 0x2000) & 0xffffffff}')
        a(f'v_add_u32 {vr(vDV)}, s{sT2}, {vr(vDV)}')
        a(f's_add_u32 m0, s{sT1}, {VOFF + 0x1000*i0}')
    if v2h:
        vaddr(20 - v2h - 1 - 1)
    a('s_branch L_nov1')
    a.label('L_v1')
    V0, VN = (2, 18) if vlate else (0, 20)
    def vpiece(i):
        if i > V0:
            a('s_add_u32 m0, m0, 0x1000')
            a(f'v_add_u32 {vr(vDV)}, 0x1000, {vr(vDV)}')
        if i < 2:
            a(f'v_add_u32 {vr(t1)}, s{sT3}, {vr(vDV)}')
            a(f'buffer_load_dwordx4 {vr(t1)}, {sr(sV,4)}, 0 offen lds')
        else:
            a(f'buffer_load_dwordx4 {vr(vDV)}, {sr(sV,4)}, 0 offen {"nt" if 4 <= i < 16 else ""} lds')
    vaddr(V0)
    a('s_nop 0')
    for i in range(V0, V0 + N1): vpiece(i)
    a.label('L_nov1')
    stamp()

    a(f's_add_u32 s{sO}, s14, s{sHO}')
    a(f's_addc_u32 s{sO+1}, s15, 0')
    a(f's_mov_b32 s{sO+2}, 0x80000')
    a(f's_mov_b32 s{sO+3}, 0x20000')
    a(f's_movk_i32 s{sTOFF}, 0x1000')
    a(f's_mov_b32 s{sZERO}, 0')
    a(f's_mov_b32 s{sCS}, 0x{CSC:08x}')
    a(f's_mov_b32 s{sCS+1}, 0x{CSC:08x}')
    a(f'v_mov_b32 {vr(vNEG)}, 0x{NEG:08x}')
    a(f'v_lshlrev_b32 {vr(t2)}, 2, {vr(vKGp)}')
    a(f'v_cmp_eq_u32 {sr(sKG0,2)}, 0, {vr(vKGp)}')
    for r in range(4):
        a(f'v_add_u32 {vr(t1)}, {r}, {vr(t2)}')
        a(f'v_cmp_ge_u32 vcc, {vr(t1)}, {vr(vI)}')
        a(f'v_cmp_le_u32 s[60:61], {vr(t1)}, {vr(vI)}')
        a('s_nop 0')
        a(f'v_cndmask_b32 {vr(BLO+r)}, {vr(vNEG)}, 0, vcc')
        a(f'v_cndmask_b32 {vr(BHI+r)}, {vr(vNEG)}, 0, s[60:61]')
    a(f's_lshl_b32 s{sT0}, s{sBK}, 13')
    a(f'v_xor_b32 {vr(t1)}, {vr(vKGp)}, {vr(vI)}')
    a(f'v_lshlrev_b32 {vr(t1)}, 4, {vr(t1)}')
    a(f'v_lshl_add_u32 {vr(t1)}, {vr(vI)}, 8, {vr(t1)}')
    a(f'v_add_u32 {vr(vAK)}, s{sT0}, {vr(t1)}')
    for ks in range(1, 4):
        a(f'v_xor_b32 {vr(vAK+ks)}, {64*ks}, {vr(vAK)}')
    a(f'v_mov_b32 {vr(vDK)}, {vr(vAK)}')
    a(f'v_and_b32 {vr(t1)}, 1, {vr(vI)}')
    a(f'v_lshlrev_b32 {vr(vNEG)}, 3, {vr(t1)}')
    a(f'v_lshlrev_b32 {vr(t1)}, 8, {vr(t1)}')
    a(f'v_lshl_add_u32 {vr(t1)}, {vr(vKGp)}, 4, {vr(t1)}')
    a(f'v_add_u32 {vr(vAG)}, {SOFF}, {vr(t1)}')
    a(f'v_bfe_u32 {vr(t1)}, {vr(vLANE)}, 2, 2')
    a(f'v_and_b32 {vr(t2)}, 3, {vr(vLANE)}')
    a(f'v_lshlrev_b32 {vr(t2)}, 3, {vr(t2)}')
    a(f'v_lshl_add_u32 {vr(t1)}, {vr(t1)}, 8, {vr(t2)}')
    a(f'v_add_u32 {vr(vAVG)}, {SOFF+2048}, {vr(t1)}')
    a(f'v_lshrrev_b32 {vr(t1)}, 2, {vr(vLANE)}')
    a(f'v_and_b32 {vr(vT0)}, 7, {vr(t1)}')
    a(f'v_lshl_add_u32 {vr(t2)}, {vr(vT0)}, 5, {vr(t2)}')
    a(f'v_lshl_add_u32 {vr(t2)}, {vr(t1)}, 8, {vr(t2)}')
    a(f's_add_u32 s{sT1}, s{sT0}, {VOFF}')
    a(f'v_add_u32 {vr(VA)}, s{sT1}, {vr(t2)}')
    for t in range(1, 8):
        a(f'v_xor_b32 {vr(VA+t)}, {32*t}, {vr(VA)}')
    a(f's_mov_b32 s{sT1}, s{sT0}')
    xst = merge is False
    if xst:
        a(f'v_lshrrev_b32 {vr(t1)}, 1, {vr(vKGp)}')
        a(f'v_xor_b32 {vr(t1)}, {vr(t1)}, {vr(vI)}')
        a(f'v_lshlrev_b32 {vr(t1)}, 4, {vr(t1)}')
        a(f'v_lshl_add_u32 {vr(t1)}, {vr(vI)}, 8, {vr(t1)}')
        a(f'v_and_b32 {vr(t2)}, 1, {vr(vKGp)}')
        a(f'v_lshl_add_u32 {vr(t1)}, {vr(t2)}, 3, {vr(t1)}')
        a(f'v_add_u32 {vr(vSW)}, s{sT1}, {vr(t1)}')
        a(f'v_xor_b32 {vr(t1)}, {vr(vKGp)}, {vr(vI)}')
        a(f'v_lshlrev_b32 {vr(t1)}, 4, {vr(t1)}')
        a(f'v_lshl_add_u32 {vr(t1)}, {vr(vKGp)}, 8, {vr(t1)}')
        a(f'v_add_u32 {vr(vSR)}, s{sT1}, {vr(t1)}')
    else:
        a(f'v_mul_u32_u24 {vr(t1)}, {STGP}, {vr(vI)}')
        a(f'v_lshl_add_u32 {vr(t1)}, {vr(vKGp)}, 3, {vr(t1)}')
        a(f'v_add_u32 {vr(vSW)}, s{sT1}, {vr(t1)}')
        a(f'v_mul_u32_u24 {vr(t1)}, {STGP}, {vr(vKGp)}')
        a(f'v_lshl_add_u32 {vr(t1)}, {vr(vI)}, 4, {vr(t1)}')
        a(f'v_add_u32 {vr(vSR)}, s{sT1}, {vr(t1)}')
    a(f's_add_u32 s{sT0}, s{sT0}, s{sQ0B}')
    a(f'v_add_u32 {vr(vOO)}, s{sT0}, {vr(t3)}')
    a(f's_lshr_b32 s{sQB}, s{sT0}, 8')
    a(f's_cmp_eq_u32 s{sQB}, 0')
    a(f's_cselect_b32 s{sEX}, 0, -1')
    a(f's_mov_b32 s{sEX+1}, -1')
    a(f's_cmp_eq_u32 s{sQB}, {256*CC+32*(2*CW+1)}')
    a(f's_cselect_b32 s{sCMB}, 1, 0')
    a(f's_lshl_b32 s{sT0}, s{sWV}, 4')
    a(f's_add_u32 s{sT0}, s{sT0}, {PARTML}')
    a(f'v_add_u32 {vr(vNEG)}, s{sT0}, {vr(vNEG)}')

    spf = [int(x) for x in opt.get('spf', '0,0').split(',')]
    spstep = int(opt.get('spstep', 128)); sptile = opt.get('sptile', 'B')
    def sp_offsets():
        o = []
        for half in ([1, 0] if sptile == 'B' else [0, 1]):
            for blk in (1, 0):
                o += [8192*blk + 4096*half + x for x in range(0, 4096, spstep)]
        return o
    spo = sp_offsets()
    def sprefetch(n):
        for _ in range(n):
            if spo: a(f's_load_dword s61, s[10:11], {spo.pop(0)}')
    if sum(spf):
        a(f's_cmp_lt_u32 s{sWV}, 4')
        a('s_cbranch_scc1 L_nosp')
        a(f's_lshl_b32 s{sT0}, s{sBK}, 13')
        a(f's_add_u32 s{sT0}, s{sT0}, s{sQ0B}')
        a(f's_add_u32 s10, s{sQ}, s{sT0}')
        a(f's_addc_u32 s11, s{sQ+1}, 0')
        sprefetch(spf[0])
        a.label('L_nosp')
    a(f's_waitcnt vmcnt({N1}) lgkmcnt(0)')
    a(f's_cmp_lt_u32 s{sWV}, 4')
    a('s_cbranch_scc1 L_kw')
    a(f's_cmp_eq_u32 s{sWV}, {FW}')
    a('s_cbranch_scc1 L_kw')
    a('s_waitcnt vmcnt(0)')
    a.label('L_kw')
    stamp(opt.get('prek', False))
    a('s_barrier')
    stamp()
    kfirst = opt.get('kfirst', False)
    NK = int(opt.get('nk', 0))
    a(f's_cmp_ge_u32 s{sWV}, 4')
    a('s_cbranch_scc1 L_nov2')
    for i in range(V0 + N1, VN): vpiece(i)
    if v2h:
        a('s_branch L_nov2b')
    a.label('L_nov2')
    if v2h:
        a(f's_setprio {opt.get("v2p", 3)}')
        for i in range(20 - v2h, 20): vpiece(i)
        a('s_setprio 0')
        a.label('L_nov2b')
    stamp(fine)
    QG = O
    for W in (2, 3, 4, 5):
        for ks in range(4):
            a(f'ds_read_b128 {vr(kf(W,ks),4)}, {vr(vAK+ks)} offset:{4096*(W-2)}')
    for ks in range(4):
        a(f'ds_read_b128 {vr(KG+4*ks,4)}, {vr(vAG)} offset:{64*ks}')
    for t in range(8):
        a(f'ds_read_b64_tr_b16 {vr(VG+4*t+2,2)}, {vr(vAVG)} offset:{32*t}')
    a(f's_cmp_eq_u32 s{sWV}, {HW}')
    a('s_cbranch_scc1 L_k01done')
    for ks in range(4):
        a(f'v_subrev_u32 {vr(vAK+ks)}, 0x2000, {vr(vAK+ks)}')
    for W in (0, 1):
        for ks in range(4):
            a(f'ds_read_b128 {vr(kf(W,ks),4)}, {vr(vAK+ks)} offset:{4096*W}')
    a.label('L_k01done')
    def dma_tile(srd, src, tmp, tile, m0expr):
        a(m0expr)
        for j in range(1, 4):
            a(f'v_xor_b32 {vr(tmp+j-1)}, {64*j}, {vr(src)}')
        for j in range(4):
            a(f'buffer_load_dwordx4 {vr(src if j == 0 else tmp+j-1)}, {sr(srd,4)}, s{sTOFF if tile else sZERO} offen offset:{1024*j} {qpol if srd == sQ else ""} lds')
    def vhalo(src, tmp, m0v, soff):
        for half in range(2):
            a(f's_mov_b32 m0, {m0v + 4096*half}')
            for j in range(4):
                a(f'v_xor_b32 {vr(tmp)}, {128*(j&1)}, {vr(src)}')
                a(f'v_add_u32 {vr(tmp)}, s{soff}, {vr(tmp)}')
                a(f'buffer_load_dwordx4 {vr(tmp)}, {sr(sV,4)}, s{sTOFF if half else sZERO} offen offset:{1024*j} lds')
    def lane_v(dv):
        a(f'v_lshlrev_b32 {vr(dv)}, 1, {vr(vKGp)}')
        a(f'v_xor_b32 {vr(dv)}, {vr(dv)}, {vr(vI)}')
        a(f'v_lshlrev_b32 {vr(dv)}, 4, {vr(dv)}')
        a(f'v_lshl_add_u32 {vr(dv)}, {vr(vKGp)}, 8, {vr(dv)}')
    qbearly = False
    qby = opt.get('qby', 'post'); qbo = opt.get('qbo', 'g'); qprio2 = opt.get('qprio2', False)
    def issue_qa(loader=False):
        a('s_waitcnt lgkmcnt(0)')
        a('s_barrier')
        if loader and kfirst:
            for i in range(N1 + NK, 20): vpiece(i)
        a(f'v_mov_b32 {vr(vAQ)}, {vr(vDK)}')
        dma_tile(sQ, vDQ, t1, 0, f's_lshl_b32 m0, s{sBK}, 13')
    def issue_qb(src, tmp):
        a(f's_lshl_b32 s{sT0}, s{sBK}, 13')
        dma_tile(sQ, src, tmp, 1, f's_add_u32 m0, s{sT0}, 0x1000')
    NQ = 8 if qbearly else 4

    def xred(m, t, op='v_max_f32'):
        a(f'v_mov_b32 {vr(t)}, {vr(m)}')
        a.nop(2)
        a(f'v_permlane16_swap_b32 {vr(m)}, {vr(t)}')
        a(f'{op} {vr(m)}, {vr(m)}, {vr(t)}')
        a(f'v_mov_b32 {vr(t)}, {vr(m)}')
        a.nop(2)
        a(f'v_permlane32_swap_b32 {vr(m)}, {vr(t)}')
        a(f'{op} {vr(m)}, {vr(m)}, {vr(t)}')
    def maxtree_l(vals, m, first=True):
        out = []; rest = list(vals)
        if first:
            out.append(f'v_max3_f32 {vr(m)}, {vr(rest[0])}, {vr(rest[1])}, {vr(rest[2])}'); rest = rest[3:]
        while len(rest) >= 2:
            out.append(f'v_max3_f32 {vr(m)}, {vr(m)}, {vr(rest[0])}, {vr(rest[1])}'); rest = rest[2:]
        if rest:
            out.append(f'v_max_f32 {vr(m)}, {vr(m)}, {vr(rest[0])}')
        return out
    def fma_l(vals, mc):
        if pk:
            return [f'v_pk_fma_f32 {vr(vals[n],2)}, {vr(vals[n],2)}, {sr(sCS,2)}, {vr(mc,2)} op_sel_hi:[1,1,0] neg_lo:[0,0,1] neg_hi:[0,0,1]' for n in range(0, len(vals), 2)]
        return [f'v_fma_f32 {vr(v)}, {vr(v)}, s{sCS}, -{vr(mc)}' for v in vals]
    exp_l = lambda vals: [f'v_exp_f32 {vr(v)}, {vr(v)}' for v in vals]
    cvt_l = lambda dst, src, n: [f'v_cvt_pk_bf16_f32 {vr(dst+k)}, {vr(src+2*k)}, {vr(src+2*k+1)}' for k in range(n)]

    def vread(dst, t, W):
        return f'ds_read_b64_tr_b16 {vr(dst,2)}, {vr(VA+t)} offset:{4096*W}'
    a(f's_cmp_lt_u32 s{sWV}, 4')
    a('s_cbranch_scc1 L_gk')
    sprefetch(spf[1])
    only(FW, 'L_notag')
    a('s_setprio 3')
    a(f's_lshl_b32 s{sT0}, s{sH}, 3')
    a(f'v_mov_b32 {vr(S+4)}, s{sT0}')
    a(f'v_mov_b32 {vr(S+5)}, s{sN}')
    a(f'v_mov_b32 {vr(S+6)}, {LCNT}')
    a(f'global_load_dword {vr(S+7)}, {vr(S+4)}, s[16:17]')
    a('s_setprio 0')
    issue_qa()
    if qby == 'pre': issue_qb(vDQ, t1)
    a(f's_waitcnt vmcnt({8 if qby == "pre" else 4})')
    if opt.get('forcefb'): a(f'v_mov_b32 {vr(S+7)}, 0')
    a(f's_cmp_eq_u32 s{sC}, {CC}')
    a('s_cselect_b64 vcc, -1, 0')
    a(f'v_cndmask_b32 {vr(S+7)}, {vr(S+7)}, {vr(S+5)}, vcc')
    a('s_mov_b64 exec, 1')
    a(f'ds_write_b32 {vr(S+6)}, {vr(S+7)} offset:4')
    a('s_mov_b64 exec, -1')
    a('s_branch L_tagdone')
    a.label('L_notag')
    cpf2 = opt.get('cpf2', '')
    def retouch(tag, lanes, stride):
        only(6, f'L_rt{tag}')
        a('s_setprio 3')
        a('s_getpc_b64 s[10:11]')
        a(f's_mul_i32 s{sT0}, s{sC}, {stride}')
        a(f'v_lshl_add_u32 {vr(S+8)}, {vr(vLANE)}, 7, s{sT0}')
        a(f's_mov_b32 m0, {SOFF + 7424}')
        a(f's_mov_b64 exec, {hex((1 << lanes) - 1)}')
        a(f'global_load_lds_dword {vr(S+8)}, s[10:11]')
        a('s_mov_b64 exec, -1')
        a('s_setprio 0')
        a.label(f'L_rt{tag}')
    if 'a' in cpf2: retouch('a', 12, 1536)
    issue_qa()
    if 'b' in cpf2: retouch('b', 12, 1536)
    only(HW, 'L_nohalo')
    a(f's_sub_u32 s{sT0}, s{sT3}, 0x2000')
    a(f'v_add_u32 {vr(S)}, s{sT0}, {vr(vDQ)}')
    dma_tile(sK, S, t1, 0, f's_mov_b32 m0, {HALO}')
    dma_tile(sK, S, t1, 1, f's_mov_b32 m0, {HALO+4096}')
    if vlate:
        lane_v(t2)
        a(f's_add_u32 s{sT0}, s{sT0}, s{sQ0B}')
        vhalo(t2, t1, VOFF, sT0)
    a.label('L_nohalo')
    if qby == 'pre': issue_qb(vDQ, t1)
    a.label('L_tagdone')
    a('s_waitcnt lgkmcnt(0)')
    stamp(fine)
    a('s_barrier')
    if qby == 'post':
        if qprio2: a('s_setprio 3')
        issue_qb(vDQ, t1)
        if qprio2: a('s_setprio 0')
    if vlate:
        a(f's_cmp_eq_u32 s{sWV}, {HW}')
        a('s_cbranch_scc1 L_gdone')
    for t in range(8):
        a(vread(X[t+1], t, 0)); a(vread(X[t+1]+2, t, 1))
    a('s_branch L_gdone')
    a.label('L_gk')
    for ks in range(4):
        a(f'ds_read_b128 {vr(QG+4*ks,4)}, {vr(vAG)} offset:{1024+64*ks}')
    issue_qa(True)
    for T in range(4):
        for ks in range(4):
            a(mfma(S+4*T, kf(T,ks), QG+4*ks, '0' if ks == 0 else S+4*T))
    if qbo == 'g': a(f'v_mov_b32 {vr(vDQk)}, {vr(vDQ)}')
    if vlate:
        lane_v(vLV)
        a.nop(4)
    else:
        a.nop(8)
    for l in maxtree_l([S+x for x in range(16)], vM): a(l)
    xred(vM, vT)
    a(f'v_mul_f32 {vr(vM)}, s{sCS}, {vr(vM)}')
    for l in fma_l([S+x for x in range(16)], vM): a(l)
    for l in exp_l([S+x for x in range(16)]): a(l)
    a.nop(1)
    a(f'v_add_f32 {vr(vT)}, {vr(S)}, {vr(S+1)}')
    for x in range(2, 16):
        a(f'v_add_f32 {vr(vT)}, {vr(vT)}, {vr(S+x)}')
    for l in cvt_l(S, S, 8): a(l)
    xred(vT, vT0, 'v_add_f32')
    a(f'ds_write_b64 {vr(vNEG)}, {vr(vM,2)}')
    a(f'v_mbcnt_lo_u32_b32 {vr(vT0)}, -1, 0')
    a(f's_lshl_b32 s{sT0}, s{sWV}, 10')
    a(f's_add_u32 s{sT0}, s{sT0}, {PART}')
    a(f'v_lshl_add_u32 {vr(vT0)}, {vr(vT0)}, 3, s{sT0}')
    if qbo == 'pre': issue_qb(vDQ, t1)
    if stamps and fine:
        nst[0] -= 1
        stamp()
    a(f's_waitcnt vmcnt({8 if qbo == "pre" else 4}) lgkmcnt(0)')
    a('s_barrier')
    if qbo == 'bar': issue_qb(vDQ, t1)
    gb = [QB + 4*n for n in range(4)] + [S + 8 + 4*n for n in range(4)]
    for t in range(8):
        a(vread(gb[t], t, 2)); a(vread(gb[t]+2, t, 3))
    for t in range(8):
        a('s_waitcnt lgkmcnt(14)')
        a(mfma(gb[t], S+4, gb[t], '0'))
        a(vread(X[t+1], t, 0)); a(vread(X[t+1]+2, t, 1))
    for t in range(8):
        a(f's_waitcnt lgkmcnt({14-2*t})')
        a(mfma(gb[t], S, X[t+1], gb[t]))
    a('s_mov_b64 exec, 1')
    a(f'v_mov_b32 {vr(S)}, {LCNT}')
    a(f'v_mov_b32 {vr(S+1)}, 1')
    a('s_mov_b64 exec, 0xffff')
    for t in range(8):
        a(f'ds_write_b64 {vr(vT0)}, {vr(gb[t],2)} offset:{128*t}')
    a('s_mov_b64 exec, 1')
    a(f'ds_add_u32 {vr(S)}, {vr(S+1)}')
    a('s_mov_b64 exec, -1')
    if qbo == 'g':
        issue_qb(vDQk, S+2)
        a(f'v_mov_b32 {vr(vDQk)}, 0')
    a.label('L_gdone')
    stamp()

    emit = lambda ls: [a(l) for l in ls]
    def combine(og, mg, tm):
        NP = len(og)
        emit(maxtree_l([mg[n] for n in range(NP)], tm))
        for n in range(NP):
            a(f'v_sub_f32 {vr(mg[n])}, {vr(mg[n])}, {vr(tm)}')
        for n in range(NP):
            a(f'v_exp_f32 {vr(mg[n])}, {vr(mg[n])}')
        a.nop(1)
        for e in range(4):
            a(f'v_mul_f32 {vr(og[0][e])}, {vr(og[0][e])}, {vr(mg[0])}')
        a(f'v_mul_f32 {vr(mg[0]+1)}, {vr(mg[0]+1)}, {vr(mg[0])}')
        for n in range(1, NP):
            for e in range(4):
                a(f'v_fmac_f32 {vr(og[0][e])}, {vr(og[n][e])}, {vr(mg[n])}')
            a(f'v_fmac_f32 {vr(mg[0]+1)}, {vr(mg[n]+1)}, {vr(mg[n])}')

    if vlate:
        only(EW, 'L_norh')
        a(f's_add_u32 s{sT0}, s{sQ0B}, 0x10000')
        vhalo(vLV, S+2, VOFF + 73728, sT0)
        a.label('L_norh')
    a(f's_cmp_eq_u32 s{sWV}, {RW}')
    a('s_cbranch_scc1 L_reduce')
    a(f's_cmp_eq_u32 s{sCMB}, 0')
    a('s_cbranch_scc1 L_noflag')
    a(f'v_mov_b32 {vr(vT0)}, {LNON}')
    a(f'ds_read_b32 {vr(vT0)}, {vr(vT0)}')
    a('s_waitcnt lgkmcnt(0)')
    a(f'v_readfirstlane_b32 s{sN}, {vr(vT0)}')
    a.label('L_noflag')
    a('s_waitcnt vmcnt(4)')
    a('s_branch L_tileA')
    a.label('L_reduce')
    R0 = S
    a(f'v_mbcnt_lo_u32_b32 {vr(R0)}, -1, 0')
    a(f'v_mbcnt_hi_u32_b32 {vr(R0)}, -1, {vr(R0)}')
    a(f'v_lshrrev_b32 {vr(R0+1)}, 5, {vr(R0)}')
    a(f'v_and_b32 {vr(R0+3)}, 31, {vr(R0)}')
    a(f'v_lshlrev_b32 {vr(R0+3)}, 5, {vr(R0+3)}')
    a(f'v_lshl_add_u32 {vr(R0+3)}, {vr(R0+1)}, 2, {vr(R0+3)}')
    a(f'v_add_u32 {vr(R0+3)}, {PART}, {vr(R0+3)}')
    a(f'v_lshlrev_b32 {vr(R0+1)}, 3, {vr(R0+1)}')
    a(f'v_add_u32 {vr(R0+1)}, {PARTML}, {vr(R0+1)}')
    a(f'v_lshlrev_b32 {vr(R0)}, 4, {vr(R0)}')
    a(f'v_mov_b32 {vr(R0+2)}, {LCNT}')
    a(f's_mov_b32 s{sCNT}, 0')
    a.label('L_lspin')
    a(f'ds_read_b64 {vr(S+4,2)}, {vr(R0+2)}')
    a(f's_add_u32 s{sCNT}, s{sCNT}, 1')
    a('s_waitcnt lgkmcnt(0)')
    a(f'v_readfirstlane_b32 s{sT0}, {vr(S+4)}')
    a(f'v_readfirstlane_b32 s{sN}, {vr(S+5)}')
    a(f's_cmp_ge_u32 s{sCNT}, 0x100000')
    a('s_cbranch_scc1 L_lok')
    a(f's_cmp_lt_u32 s{sT0}, 4')
    a('s_cbranch_scc1 L_lspin')
    a.label('L_lok')
    mg = [S+4, S+6, O, O+2]
    G0 = S + 8
    og = [[G0+4*n+e for e in range(4)] for n in range(4)]
    for n in range(4):
        a(f'ds_read_b64 {vr(mg[n],2)}, {vr(R0+1)} offset:{16*n}')
    for n in range(4):
        if n: a(f'v_add_u32 {vr(R0+3)}, 1024, {vr(R0+3)}')
        a(f'ds_read2_b32 {vr(G0+4*n,2)}, {vr(R0+3)} offset0:0 offset1:2')
        a(f'ds_read2_b32 {vr(G0+4*n+2,2)}, {vr(R0+3)} offset0:4 offset1:6')
    a('s_waitcnt lgkmcnt(0)')
    combine(og, mg, R0+1)
    a(f'v_mov_b32 {vr(G0+4)}, {vr(G0+3)}')
    a(f'v_mov_b32 {vr(G0+5)}, {vr(R0+1)}')
    a(f'v_mov_b32 {vr(G0+6)}, {vr(mg[0]+1)}')
    a(f'v_mov_b32 {vr(G0+7)}, s{sN}')
    a(f'v_mov_b32 {vr(G0+3)}, s{sN}')
    a(f'buffer_store_dwordx4 {vr(G0+4,4)}, {vr(R0)}, {sr(sW,4)}, s42 offen offset:1024 sc0 sc1')
    a(f'buffer_store_dwordx4 {vr(G0,4)}, {vr(R0)}, {sr(sW,4)}, s42 offen sc0 sc1')
    a(f's_cmp_lg_u32 s{sN}, 0')
    a('s_cbranch_scc1 L_tagged')
    a('s_waitcnt vmcnt(0)')
    a(f's_lshl_b32 s{sT0}, s{sH}, 3')
    a(f's_lshl_b32 s{sT1}, 1, s{sC}')
    a(f'v_mov_b32 {vr(R0)}, s{sT0}')
    a(f'v_mov_b32 {vr(R0+1)}, s{sT1}')
    a('s_mov_b64 exec, 1')
    a(f'global_atomic_or {vr(R0)}, {vr(R0+1)}, s[16:17] offset:4 sc1')
    a('s_mov_b64 exec, -1')
    a.label('L_tagged')
    a('s_waitcnt vmcnt(6)')
    a.label('L_tileA')
    def qfrag(Q, tile, tmp):
        for ks in range(1, 4):
            a(f'v_xor_b32 {vr(tmp+ks-1)}, {64*ks}, {vr(vAQ)}')
        for ks in range(4):
            a(f'ds_read_b128 {vr(Q+4*ks,4)}, {vr(vAQ if ks == 0 else tmp+ks-1)} offset:{4096*tile}')
    qfrag(QA, 0, S+13)
    only(HW, 'L_nohalo2')
    a(f'v_add_u32 {vr(S+12)}, {HALO}, {vr(vAQ)}')
    for ks in range(1, 4):
        a(f'v_add_u32 {vr(S+12+ks)}, {HALO}, {vr(S+12+ks)}')
    for W in (0, 1):
        for ks in range(4):
            a(f'ds_read_b128 {vr(kf(W,ks),4)}, {vr(S+12+ks)} offset:{4096*W}')
    if vlate:
        for t in range(8):
            a(vread(X[t+1], t, 0)); a(vread(X[t+1]+2, t, 1))
    a.label('L_nohalo2')
    a('s_waitcnt lgkmcnt(0)')
    def yprio(tag):
        if yp == tag:
            a(f's_cmp_lt_u32 s{sWV}, 4')
            a(f's_cbranch_scc1 L_yp{tag}')
            a('s_setprio 1')
            a.label(f'L_yp{tag}')
    yprio('a')
    stamp()

    def inter(ms, vs, per=2):
        vs = list(vs)
        for m in ms:
            a(m)
            for _ in range(per):
                if vs: a(vs.pop(0))
        for v in vs: a(v)

    HB = kf(2, 0)
    def hand_loads():
        a(f'v_mbcnt_lo_u32_b32 {vr(KG)}, -1, 0')
        a(f'v_mbcnt_hi_u32_b32 {vr(KG)}, -1, {vr(KG)}')
        a(f'v_lshlrev_b32 {vr(KG)}, 4, {vr(KG)}')
        for n in range(8):
            a(f's_movk_i32 s{sT0}, {2048*n}')
            a(f'buffer_load_dwordx4 {vr(HB+8*n,4)}, {vr(KG)}, {sr(sW,4)}, s{sT0} offen sc0 sc1')
            a(f'buffer_load_dwordx4 {vr(HB+8*n+4,4)}, {vr(KG)}, {sr(sW,4)}, s{sT0} offen offset:1024 sc0 sc1')

    buf = [kf(0, n) for n in range(4)] + [QA + 4*n for n in range(4)]
    SLOTW = {0: [0, 1, 2, 3, 4], 1: [4, 5, 2, 3, 1]}
    def qk(tau, sl):
        Q = QA if tau == 0 else QB
        if sl == 'G':
            return [mfma(S+20, KG+4*ks, Q+4*ks, '0' if ks == 0 else S+20) for ks in range(4)]
        W = SLOTW[tau][sl]
        c0 = BLO if W == tau else BHI if W == tau + 4 else '0'
        return [mfma(S+4*sl, kf(W,ks), Q+4*ks, c0 if ks == 0 else S+4*sl) for ks in range(4)]
    def edge_test(tau, lab):
        a(f's_sub_u32 s{sT0}, s{sQB}, {48 - 16*tau}')
        a(f's_cmp_lt_u32 s{sT0}, 1968')
        a(f's_cbranch_scc1 {lab}')
    def edge_mask(tau, tr):
        a(f'v_mbcnt_lo_u32_b32 {vr(tr)}, -1, 0')
        a(f'v_mbcnt_hi_u32_b32 {vr(tr)}, -1, {vr(tr)}')
        a(f'v_lshrrev_b32 {vr(tr)}, 4, {vr(tr)}')
        a(f's_sub_u32 s{sT0}, s{sQB}, 34')
        a(f's_movk_i32 s{sT1}, 2046')
        a(f'v_lshl_add_u32 {vr(tr)}, {vr(tr)}, 2, s{sT0}')
        a(f'v_mov_b32 {vr(vM)}, 0x{NEG:08x}')
        a('s_nop 3')
        for sl in range(5):
            for r in range(4):
                a(f'v_add_u32 {vr(vT)}, {16*SLOTW[tau][sl]+r}, {vr(tr)}')
                a(f'v_cmp_gt_u32 vcc, s{sT1}, {vr(vT)}')
                a('s_nop 1')
                a(f'v_cndmask_b32 {vr(S+4*sl+r)}, {vr(vM)}, {vr(S+4*sl+r)}, vcc')
        for l in maxtree_l([S+x for x in range(22)], vM): a(l)
    def epi(t, tau=0):
        l = [f'v_mul_f32 {vr(O+4*t+e)}, {vr(O+4*t+e)}, {vr(vT0)}' for e in range(4)]
        l += [f'v_cvt_pk_bf16_f32 {vr(O+4*t)}, {vr(O+4*t)}, {vr(O+4*t+1)}',
              f'v_cvt_pk_bf16_f32 {vr(O+4*t+1)}, {vr(O+4*t+2)}, {vr(O+4*t+3)}',
              f'ds_write_b64 {vr(vSW)}, {vr(O+4*t,2)} offset:{32*t}']
        if xst:
            l[-1] = f'ds_write_b64 {vr(S+t if t else vSW)}, {vr(O+4*t,2)} offset:{4096*tau}'
            if t: l = [f'v_xor_b32 {vr(S+t)}, {32*t}, {vr(vSW)}'] + l
        return l
    def stage_reads(tau=0, R=O):
        if xst:
            return [f'v_xor_b32 {vr(S+8+j)}, {64*j}, {vr(vSR)}' for j in range(1, 4)] + \
                   [f'ds_read_b128 {vr(R+4*j,4)}, {vr(S+8+j if j else vSR)} offset:{1024*j + 4096*tau}' for j in range(4)]
        return [f'ds_read_b128 {vr(R+4*j,4)}, {vr(vSR)} offset:{4*STGP*j}' for j in range(4)]
    def stores(tau, R=O, extra=0):
        for j in range(4):
            a(f's_waitcnt lgkmcnt({3-j+extra})')
            if tau == 0 and j == 0: a(f's_mov_b64 exec, {sr(sEX,2)}')
            a(f'buffer_store_dwordx4 {vr(R+4*j,4)}, {vr(vOO)}, {sr(sO,4)}, s{sTOFF if tau else sZERO} offen offset:{1024*j} {stpol}')
            if tau == 0 and j == 0: a('s_mov_b64 exec, -1')
    RA = kf(1, 0)
    opos = int(opt.get('opos', 0))
    def late_a(tag=''):
        if tag:
            a(f's_cmp_ge_u32 s{sWV}, 4')
            a(f's_cbranch_scc1 L_la{tag}')
        for l in stage_reads(0, RA): a(l)
        stores(0, RA)
        if tag: a.label(f'L_la{tag}')
    def first_a(tag):
        if opos:
            a(f's_cmp_lt_u32 s{sWV}, 4')
            a(f's_cbranch_scc1 L_fa{tag}')
        stores(0)
        if opos:
            a.label(f'L_fa{tag}')
    def softmax_pv(tau):
        m = vM
        xred(m, vT)
        a(f'v_mul_f32 {vr(m)}, s{sCS}, {vr(m)}')
        set0 = [S+x for x in range(8)]; set1 = [S+8+x for x in range(8)]; set2 = [S+16+x for x in range(6)]
        for l in fma_l(set0, m): a(l)
        f2 = fma_l(set2, m); f1 = fma_l(set1, m)
        for l in exp_l(set0): a(l)
        a(f2[0])
        for l in cvt_l(S, S, 4): a(l)
        a(f2[1])
        a('s_waitcnt lgkmcnt(0)' if tau == 1 else 's_waitcnt lgkmcnt(8)')
        if tau == 1 and apos == 1: late_a()
        if tau == 1 and opos == 1: late_a('1')
        ONES, LACC = S+4, S+20
        v2 = f2[2:] + exp_l(set2) + [f'v_mov_b32 {vr(ONES+n)}, 0x3f803f80' for n in range(4)] + cvt_l(S+16, S+16, 3) \
             + [f'v_mov_b32 {vr(S+19)}, 0', f'v_cndmask_b32 {vr(S+18)}, 0, {vr(S+18)}, {sr(sKG0,2)}']
        inter([mfma(X[t], X[t+1], S, '0') for t in range(8)], v2 + f1[:2])
        if tau == 1 and apos == 4: late_a()
        if tau == 1 and opos == 4: late_a('4')
        v1 = f1[2:] + exp_l(set1) + [f'v_mov_b32 {vr(vT0)}, 0'] + cvt_l(S+8, S+8, 4)
        inter([mfma(O+4*t, VG+4*t, S+16, O+4*t) for t in range(8)], v1)
        a(mfma(LACC, ONES, S, '0'))
        a(mfma(LACC, ONES, S+16, LACC))
        a(mfma(LACC, ONES, S+8, LACC))
        if tau == 0:
            a('s_waitcnt lgkmcnt(0)')
        for t in range(8):
            a(mfma(O+4*t, buf[t], S+8, O+4*t))
            if tau == 0: a(vread(VG+4*t, t, 1))
        a(f'v_rcp_f32 {vr(vT0)}, {vr(LACC)}')

    late = []
    for t in range(8):
        late += [vread(buf[t], t, 2), vread(buf[t]+2, t, 3)]
    vgr = [vread(VG+4*t, t, 4) for t in range(8)]
    edge_test(0, 'L_fastA')
    for l in vgr: a(l)
    for sl in ('G', 0, 1, 2, 3, 4):
        for l in qk(0, sl): a(l)
    for l in late: a(l)
    edge_mask(0, vT0)
    a('s_branch L_joinA')
    a.label('L_fastA')
    m = vM
    inter(qk(0, 0) + qk(0, 'G'), vgr, per=1)
    inter(qk(0, 1) + qk(0, 2), late[:8], per=1)
    inter(qk(0, 3), maxtree_l([S+20, S+21, S+0], m) + maxtree_l([S+1, S+2, S+3, S+4, S+5, S+6], m, False), per=1)
    inter(qk(0, 4), maxtree_l([S+7, S+8, S+9, S+10], m, False), per=1)
    for l in late[8:11]: a(l)
    for l in maxtree_l([S+11, S+12], m, False): a(l)
    for l in late[11:13]: a(l)
    for l in maxtree_l([S+13, S+14, S+15], m, False): a(l)
    for l in late[13:]: a(l)
    for l in maxtree_l([S+16, S+17, S+18, S+19], m, False): a(l)
    a.label('L_joinA')
    yprio('s')
    stamp(fine)
    softmax_pv(0)
    stamp(fine)
    ep = []
    for t in range(8): ep += epi(t)
    if apos == 0: ep += stage_reads()
    xb = []
    for t in range(8): xb += [vread(X[t+1], t, 4), vread(X[t+1]+2, t, 5)]
    def qb_wait(n):
        a(f's_waitcnt vmcnt({n+2})')
        if opt.get('otouch'):
            a(f's_and_b32 s{sT0}, s{sWV}, 3')
            a(f's_cmp_eq_u32 s{sT0}, 3')
        else:
            a(f's_cmp_eq_u32 s{sWV}, {RW}')
        a('s_cbranch_scc1 L_qbw')
        a(f's_waitcnt vmcnt({n})')
        a.label('L_qbw')
    if merge is False:
        a('s_nop 0')
        for l in ep: a(l)
        stores(0)
        for l in xb: a(l)
        qb_wait(4)
        stamp()
        qfrag(QB, 1, S+13)
        a('s_waitcnt lgkmcnt(0)')
        edge_test(1, 'L_fastB')
        for sl in ('G', 0, 1, 2, 3, 4):
            for l in qk(1, sl): a(l)
        edge_mask(1, vT0)
        a('s_branch L_joinB')
        a.label('L_fastB')
        for sl in ('G', 0, 1, 2):
            for l in qk(1, sl): a(l)
        inter(qk(1, 3), maxtree_l([S+20, S+21, S+0], m) + maxtree_l([S+1, S+2], m, False), per=1)
        inter(qk(1, 4), maxtree_l([S+3, S+4, S+5, S+6, S+7, S+8], m, False), per=1)
        a.nop(1)
        for l in maxtree_l([S+9, S+10, S+11, S+12], m, False): a(l)
        a.nop(1)
        for l in maxtree_l([S+13, S+14, S+15], m, False): a(l)
        a.nop(2)
        for l in maxtree_l([S+16, S+17, S+18, S+19], m, False): a(l)
    else:
        qb_wait(0)
        stamp()
        qfrag(QB, 1, S+13)
        edge_test(1, 'L_fastB')
        for l in ep: a(l)
        if apos == 0: first_a('e')
        a('s_waitcnt lgkmcnt(0)')
        for sl in (0, 1, 2, 3, 4, 'G'):
            for l in qk(1, sl): a(l)
        for l in xb: a(l)
        edge_mask(1, vT0)
        a('s_branch L_joinB')
        a.label('L_fastB')
        ms = []
        for sl in (0, 1, 2, 3, 4, 'G'): ms += qk(1, sl)
        npre = int(opt.get('npre', 2)); per = int(opt.get('per', 2))
        for l in ep[:7*npre]: a(l)
        a(f's_waitcnt lgkmcnt({npre})')
        inter(ms, ep[7*npre:], per=per)
        for l in maxtree_l([S+x for x in range(15)], vT0): a(l)
        if apos == 0: first_a('f')
        for l in xb: a(l)
        a(f'v_max3_f32 {vr(vM)}, {vr(vT0)}, {vr(S+15)}, {vr(S+16)}')
        for l in maxtree_l([S+17, S+18, S+19, S+20, S+21], vM, False): a(l)
    a.label('L_joinB')
    yprio('b')
    stamp()
    a(f's_cmp_eq_u32 s{sCMB}, 0')
    a('s_cbranch_scc1 L_nohand')
    hand_loads()
    a.label('L_nohand')
    softmax_pv(1)
    stamp(fine)
    if apos == 2:
        late_a()
    if opos == 2:
        late_a('2')
    a('s_nop 0')
    if apos == 3:
        for l in stage_reads(0, RA): a(l)
    for t in range(8):
        for l in epi(t, 1): a(l)
    for l in stage_reads(1): a(l)
    if apos == 3:
        stores(0, RA, extra=4+8) if False else None
        for j in range(4):
            if j == 0: a(f's_mov_b64 exec, {sr(sEX,2)}')
            if j == 0: a('s_waitcnt lgkmcnt(4)')
            a(f'buffer_store_dwordx4 {vr(RA+4*j,4)}, {vr(vOO)}, {sr(sO,4)}, s{sZERO} offen offset:{1024*j} {stpol}')
            if j == 0: a('s_mov_b64 exec, -1')
    stores(1)
    stamp()

    a(f's_cmp_eq_u32 s{sCMB}, 0')
    a('s_cbranch_scc1 L_fin')
    a(f's_waitcnt vmcnt({4 if apos == 0 and opos == 0 else 8})')
    a(f's_mov_b32 s{sCNT}, 0')
    a(f's_mov_b32 s{sT2}, 0')
    a.label('L_chk')
    a(f's_mov_b32 s{sT3}, s{sT2}')
    for n in range(8):
        a(f'v_cmp_eq_u32 vcc, s{sN}, {vr(HB+8*n+3)}')
        a(f'v_cmp_eq_u32 s[60:61], s{sN}, {vr(HB+8*n+7)}')
        a('s_nop 0')
        a('s_and_b64 vcc, vcc, s[60:61]')
        a('s_cmp_eq_u64 vcc, exec')
        a(f's_cselect_b32 s{sT0}, {1 << n}, 0')
        a(f's_or_b32 s{sT3}, s{sT3}, s{sT0}')
    a(f's_add_u32 s{sCNT}, s{sCNT}, 1')
    a(f's_cmp_eq_u32 s{sT3}, 0xff')
    a('s_cbranch_scc1 L_ready')
    a(f's_cmp_ge_u32 s{sCNT}, 0x40000')
    a('s_cbranch_scc1 L_ready')
    a(f's_lshl_b32 s{sT0}, s{sH}, 3')
    a(f'v_mov_b32 {vr(KG+1)}, s{sT0}')
    a(f'global_load_dword {vr(KG+2)}, {vr(KG+1)}, s[16:17] offset:4 sc0 sc1')
    a('s_waitcnt vmcnt(0)')
    a(f'v_readfirstlane_b32 s{sT2}, {vr(KG+2)}')
    hand_loads()
    a('s_waitcnt vmcnt(0)')
    a('s_branch L_chk')
    a.label('L_ready')
    hog = [[HB+8*n, HB+8*n+1, HB+8*n+2, HB+8*n+4] for n in range(8)]
    hmg = [HB+8*n+5 for n in range(8)]
    combine(hog, hmg, X8)
    a(f'v_rcp_f32 {vr(X8)}, {vr(hmg[0]+1)}')
    a(f'v_lshrrev_b32 {vr(KG)}, 1, {vr(KG)}')
    for e in range(4):
        a(f'v_mul_f32 {vr(hog[0][e])}, {vr(hog[0][e])}, {vr(X8)}')
    a(f'v_cvt_pk_bf16_f32 {vr(X8+2)}, {vr(hog[0][0])}, {vr(hog[0][1])}')
    a(f'v_cvt_pk_bf16_f32 {vr(X8+3)}, {vr(hog[0][2])}, {vr(hog[0][3])}')
    a(f'buffer_store_dwordx2 {vr(X8+2,2)}, {vr(KG)}, {sr(sO,4)}, 0 offen {stpol}')
    a.label('L_fin')
    if stamps:
        fin_[0] = True
        stamp()
        a('s_waitcnt vmcnt(0)')
        stamp()
        if opt.get('clk'):
            a('s_memtime s[98:99]')
            a('s_waitcnt lgkmcnt(0)')
            a('s_sub_u32 s98, s98, s96')
            a(f's_add_u32 s{64+2*nst[0]}, s98, s64')
            nst[0] += 1
        a(f's_lshl_b32 s{sT0}, s2, 3')
        a(f's_add_u32 s{sT0}, s{sT0}, s{sWV}')
        a(f's_lshl_b32 s{sT0}, s{sT0}, 6')
        a(f's_add_u32 s{sT0}, s{sT0}, 0x100000')
        a(f's_add_u32 s{sW}, s18, s{sT0}')
        a(f's_addc_u32 s{sW+1}, s19, 0')
        a(f'v_mov_b32 v1, 0')
        a('s_mov_b64 exec, 1')
        for n in range(min(16, nst[0])):
            a(f'v_mov_b32 v2, s{64+2*n}')
            a(f'buffer_store_dword v2, v1, {sr(sW,4)}, 0 offen offset:{4*n}')
        a('s_getreg_b32 s61, hwreg(HW_REG_XCC_ID, 0, 4)')
        a('v_mov_b32 v2, s61')
        a(f'buffer_store_dword v2, v1, {sr(sW,4)}, 0 offen offset:60')
        if 'leak' in opt:
            k = int(opt['leak'])
            a(f's_sub_u32 s{sT0}, s{64+2*k}, s64')
            a(f's_lshl_b32 s{sT0}, s{sT0}, 2')
            if opt.get('leakskew'):
                a.label('L_pre')
                a('s_memrealtime s[100:101]')
                a('s_waitcnt lgkmcnt(0)')
                a(f's_sub_u32 s{sT1}, s100, s64')
                a(f's_cmp_lt_u32 s{sT1}, 3000')
                a('s_cbranch_scc1 L_pre')
                a('s_mov_b64 exec, -1')
                a('v_mbcnt_lo_u32_b32 v3, -1, 0')
                a('v_and_b32 v3, 31, v3')
                a('v_lshlrev_b32 v3, 3, v3')
                a('global_load_dword v4, v3, s[16:17] sc0 sc1')
                a('s_waitcnt vmcnt(0)')
                a('v_readlane_b32 s20, v4, 0')
                a('s_mov_b32 s21, 0'); a('s_mov_b32 s22, 0')
                for n in range(1, 32):
                    a(f'v_readlane_b32 s23, v4, {n}')
                    a('s_nop 0')
                    a('s_sub_i32 s23, s23, s20')
                    a('s_min_i32 s21, s21, s23')
                    a('s_max_i32 s22, s22, s23')
                a(f's_sub_u32 s{sT0}, s22, s21')
                a(f's_min_u32 s{sT0}, s{sT0}, 2000')
                a(f's_lshl_b32 s{sT0}, s{sT0}, 2')
            if opt.get('leakxcc'):
                a('s_getreg_b32 s61, hwreg(HW_REG_XCC_ID, 0, 4)')
                a(f's_bfe_u32 s60, s{sN}, 0x40001')
                a('s_cmp_lg_u32 s60, s61')
                a(f's_cselect_b32 s{sT0}, 2000, 0')
            if opt.get('leakcnt'):
                a(f's_mul_i32 s{sT0}, s{sCNT}, 500')
                a(f's_mul_i32 s{sT0}, s{sT0}, s{sCMB}')
            if 'leakh' in opt:
                lo, hi = opt['leakh'].split(',')
                a(f's_sub_u32 s{sT1}, s{sH}, {lo}')
                a(f's_cmp_lt_u32 s{sT1}, {int(hi)-int(lo)}')
                a(f's_cselect_b32 s{sT0}, s{sT0}, 0')
            if 'leakwg' in opt:
                a(f's_cmp_eq_u32 s2, {opt["leakwg"]}')
                a(f's_cselect_b32 s{sT0}, s{sT0}, 0')
            if 'leakx' in opt:
                a(f's_getreg_b32 s{sT1}, hwreg(HW_REG_XCC_ID, 0, 4)')
                a(f's_lshr_b32 s{sT1}, {opt["leakx"]}, s{sT1}')
                a(f's_bitcmp1_b32 s{sT1}, 0')
                a(f's_cselect_b32 s{sT0}, s{sT0}, 0')
            if 'leakw' in opt:
                a(f's_lshr_b32 s{sT1}, {opt["leakw"]}, s{sWV}')
                a(f's_bitcmp1_b32 s{sT1}, 0')
                a(f's_cselect_b32 s{sT0}, s{sT0}, 0')
            a(f"s_add_u32 s{sT0}, s{sT0}, {opt.get('spin', 5000)}")
            a.label('L_spin')
            a('s_memrealtime s[100:101]')
            a('s_waitcnt lgkmcnt(0)')
            a(f's_sub_u32 s{sT1}, s100, s64')
            a(f's_cmp_lt_u32 s{sT1}, s{sT0}')
            a('s_cbranch_scc1 L_spin')
    a.label('L_end')
    a('s_endpgm')
    if cpf:
        a('.fill (L_base + 12352 - .) / 4, 4, 0xbf810000')

    check(a.lines)
    if stamps: print('stamps', nst[0])
    head = f'''; windowed + global-token attention, B=1 H=32 S=2048 D=128 bf16 (window 32, 2 global tokens)
; One workgroup (8 waves) per 256 queries of one head; generated by the author's own script (dev/gen16.py).
;    writes it to d_ws tagged with a per-launch value published in d_debug; one wave per head merges the 8 partials.
; @launch grid=(256,1,1) block=(512,1,1) lds=163840
.amdgcn_target "amdgcn-amd-amdhsa--gfx950"
.text
.globl {NAME}
.p2align 8
.type {NAME},@function
{NAME}:
'''
    tail = f'''.section .rodata,"a"
.p2align 6
.amdhsa_kernel {NAME}
  .amdhsa_next_free_vgpr 256
  .amdhsa_next_free_sgpr {102 if stamps else 64}
  .amdhsa_accum_offset 256
  .amdhsa_group_segment_fixed_size 0
  .amdhsa_kernarg_size 64
  .amdhsa_user_sgpr_count 2
  .amdhsa_user_sgpr_kernarg_segment_ptr 1
  .amdhsa_system_sgpr_workgroup_id_x 1
.end_amdhsa_kernel
'''
    return head + a.text() + tail

if __name__ == '__main__':
    out = sys.argv[1]
    opt = {}
    for kv in sys.argv[2:]:
        k, v = kv.split('=', 1)
        opt[k] = {'True': True, 'False': False}.get(v, v.replace('+', ' '))
    open(out, 'w').write(gen(opt))
```
